```python
import torch

def _softmax(x, axis=-1):
    return torch.softmax(x, dim=axis)
def _gelu(x):
    return torch.nn.functional.gelu(x, approximate="tanh")
def _silu(x):
    return torch.nn.functional.silu(x)
def _sigmoid(x):
    return torch.sigmoid(x)
def _layernorm(x, axis=-1, eps=1e-5):
    m = x.mean(dim=axis, keepdim=True)
    v = x.var(dim=axis, keepdim=True, unbiased=False)
    return (x - m) / torch.sqrt(v + eps)
def _scatter_add(tgt, idx, src, axis=0):
    return tgt.clone().index_add_(axis, idx, src)
def _segment_sum(src, seg, n):
    out = torch.zeros((n,) + src.shape[1:], dtype=src.dtype)
    return out.index_add_(0, seg, src)
def _pad(x, pw):
    flat = tuple(v for pair in reversed(pw) for v in pair)
    return torch.nn.functional.pad(x, flat)

kernel_name = 'gated_mix__linear_kernel_hedgehog__dense_activation_gelu__prompt'

def setup_inputs():

    _w = (lambda a: (lambda t: t.to(torch.bfloat16) if t.is_floating_point() else t)(torch.as_tensor(a)))
    def _A_setup():
        B, S, D, H = 1, 2048, 640, 32
        Dh = D // H
        return {
            "x": _w((lambda *s: torch.randn(*s, dtype=torch.bfloat16) * 0.05)(B, S, D)),
            "wqkv": _w((lambda *s: torch.randn(*s, dtype=torch.bfloat16) * 0.8)(D, 3 * D)),
            "w_phi": _w((lambda *s: torch.randn(*s, dtype=torch.bfloat16) * 0.8)(H, Dh, Dh) * (Dh ** -0.5)),
            "wo": _w((lambda *s: torch.randn(*s, dtype=torch.bfloat16) * 0.05)(D, D)),
        }
    _A_in = _A_setup()

    def _B_setup():
        B, S, D, F = 1, 2048, 640, 1728
        return {
            "x": _w((lambda *s: torch.randn(*s, dtype=torch.bfloat16) * 0.05)(B, S, D)),
            "w1": _w((lambda *s: torch.randn(*s, dtype=torch.bfloat16) * 3.2)(D, F) * (D ** -0.5)),
            "b1": _w((lambda *s: torch.randn(*s, dtype=torch.bfloat16) * 3.2)(F) * 0.01),
            "w2": _w((lambda *s: torch.randn(*s, dtype=torch.bfloat16) * 0.4)(F, D) * (F ** -0.5)),
            "b2": _w((lambda *s: torch.randn(*s, dtype=torch.bfloat16) * 0.8)(D) * 0.01),
        }
    _B_in = _B_setup()

    return {
        "A_x": _A_in["x"],
        "A_wqkv": _A_in["wqkv"],
        "A_w_phi": _A_in["w_phi"],
        "A_wo": _A_in["wo"],
        "B_x": _B_in["x"],
        "B_w1": _B_in["w1"],
        "B_b1": _B_in["b1"],
        "B_w2": _B_in["w2"],
        "B_b2": _B_in["b2"],
        "gate_w": _w((lambda *s: torch.randn(*s, dtype=torch.bfloat16) * 0.05)(640) * 16.0),
    }

def reference(A_x, A_wqkv, A_w_phi, A_wo, B_x, B_w1, B_b1, B_w2, B_b2, gate_w):
    def _A_ref(x, wqkv, w_phi, wo):
        B, S, D = x.shape
        H = 32; Dh = D // H
        qkv = (lambda x, *d: x.permute(*d))((x @ wqkv).reshape(B, S, 3, H, Dh), 2, 0, 3, 1, 4)
        q, k, v = qkv[0], qkv[1], qkv[2]
        pq = torch.einsum("bhsd,hdf->bhsf", q, w_phi)
        pk = torch.einsum("bhsd,hdf->bhsf", k, w_phi)
        phi_q = torch.concatenate([_softmax(pq, axis=-1), _softmax(-pq, axis=-1)], axis=-1)
        phi_k = torch.concatenate([_softmax(pk, axis=-1), _softmax(-pk, axis=-1)], axis=-1)
        kv = torch.einsum("bhsf,bhsd->bhfd", phi_k, v)
        z  = torch.einsum("bhsf->bhf", phi_k)
        num = torch.einsum("bhqf,bhfd->bhqd", phi_q, kv)
        den = torch.einsum("bhqf,bhf->bhq", phi_q, z)[..., None] + 1e-6
        o = num / den
        return (lambda x, *d: x.permute(*d))(o, 0, 2, 1, 3).reshape(B, S, D) @ wo

    def _B_ref(x, w1, b1, w2, b2):
        h = torch.einsum("bsd,df->bsf", x, w1) + b1
        h = _gelu(h)
        return torch.einsum("bsf,fd->bsd", h, w2) + b2

    x = A_x
    g = _sigmoid((x * gate_w).sum(-1, keepdims=True))
    a = _A_ref(x, A_wqkv, A_w_phi, A_wo)
    b = _B_ref(x, B_w1, B_b1, B_w2, B_b2)
    return g * a + (1 - g) * b
```

```python
import re

def _regs(tok):
    tok = tok.strip()
    m = re.fullmatch(r'-?\|?(?:abs\()?([vas])\[(\d+):(\d+)\]\)?\|?', tok)
    if m: return [f"{m.group(1)}{i}" for i in range(int(m.group(2)), int(m.group(3)) + 1)]
    m = re.fullmatch(r'-?\|?(?:abs\()?([vas])(\d+)\)?\|?', tok)
    if m: return [f"{m.group(1)}{m.group(2)}"]
    if tok in ('vcc', 'vcc_lo', 'vcc_hi'): return ['vcc']
    if tok in ('exec', 'exec_lo', 'exec_hi'): return ['exec']
    if tok == 'm0': return ['m0']
    return []

TRANS = ('v_exp_f32', 'v_log_f32', 'v_rcp_f32', 'v_rsq_f32', 'v_sqrt_f32', 'v_sin_f32', 'v_cos_f32')

class Ins:
    __slots__ = ('text', 'op', 'kind', 'defs', 'uses', 'passes', 'ca', 'cb', 'cc', 'states', 'label')
    def __init__(self, text):
        self.text = text
        t = text.split(';')[0].strip()
        self.label = t.endswith(':') or t.startswith('.')
        self.defs = []; self.uses = []; self.kind = 'other'; self.passes = 0; self.states = 1
        self.ca = self.cb = self.cc = []
        if self.label or not t:
            self.op = ''; self.states = 0; return
        parts = t.split(None, 1)
        op = parts[0]; self.op = op
        rest = parts[1] if len(parts) > 1 else ''
        ops = [x.strip() for x in re.split(r',(?![^\[]*\])', rest)] if rest else []
        if ops:
            last = ops[-1].split()
            ops[-1] = last[0] if last else ''
            mods = last[1:]
        else: mods = []
        R = [_regs(o) for o in ops]
        base = re.sub(r'_e(32|64)$|_dpp$|_sdwa$', '', op)
        if op.startswith('v_mfma'):
            self.kind = 'mfma'; self.defs = R[0]; self.ca, self.cb, self.cc = R[1], R[2], R[3]
            self.uses = R[1] + R[2] + R[3]
            self.passes = 2 if '4x4x4' in op else (4 if '16x16' in op else 8)
        elif op.startswith('v_cmp'):
            self.kind = 'valu'; self.defs = R[0]; self.uses = sum(R[1:], [])
        elif op.startswith('v_readfirstlane') or op.startswith('v_readlane'):
            self.kind = 'rdlane'; self.defs = R[0]; self.uses = sum(R[1:], [])
        elif op.startswith('v_permlane'):
            self.kind = 'permlane'; self.defs = R[0] + R[1]; self.uses = R[0] + R[1]
        elif op.startswith('v_'):
            self.kind = 'trans' if base in TRANS else 'valu'
            self.defs = R[0]; self.uses = sum(R[1:], [])
            if base in ('v_add_co_u32', 'v_sub_co_u32', 'v_addc_co_u32', 'v_subrev_co_u32'):
                self.defs = R[0] + R[1]; self.uses = sum(R[2:], [])
            if base in ('v_fmac_f32', 'v_dot2c_f32_bf16', 'v_pk_fmac_f16'): self.uses += R[0]
            if base == 'v_cndmask_b32' and len(R) == 3: self.uses += ['vcc']
            if 'dpp' in op or any(m.startswith(('row_', 'quad_perm')) for m in mods): self.kind = 'dpp'
        elif op.startswith('ds_read'):
            self.kind = 'dsr'; self.defs = R[0]; self.uses = sum(R[1:], [])
        elif op.startswith('ds_write'):
            self.kind = 'dsw'; self.uses = sum(R, [])
        elif op.startswith(('buffer_load', 'global_load')):
            if 'lds' in mods or '_lds_' in op:
                self.kind = 'dma'; self.uses = sum(R, []) + ['m0']
            else:
                self.kind = 'vload'; self.defs = R[0]; self.uses = sum(R[1:], [])
        elif op.startswith(('buffer_store', 'global_store')):
            self.kind = 'vstore'; self.uses = sum(R, [])
            if 'dwordx4' in op or 'dwordx3' in op: self.ca = R[0] if op.startswith('buffer') else R[1]
        elif op == 's_nop':
            self.kind = 'nop'; self.states = int(ops[0]) + 1
        elif op.startswith('s_'):
            self.kind = 'salu'
            if op.startswith(('s_cmp', 's_cbranch', 's_branch', 's_waitcnt', 's_barrier', 's_endpgm', 's_sleep', 's_setprio', 's_bitcmp')):
                self.uses = sum(R, [])
                if 'vcc' in op: self.uses += ['vcc']
            else:
                self.defs = R[0] if R else []; self.uses = sum(R[1:], [])

VALU = ('valu', 'trans', 'dpp', 'permlane', 'rdlane')
VMEM = ('vload', 'vstore', 'dma')

def need(p, c):
    n = 0
    ov = lambda a, b: bool(set(a) & set(b))
    if p.kind in VALU:
        vd = [r for r in p.defs if r[0] in 'va' and r != 'vcc']
        sd = [r for r in p.defs if r[0] == 's' or r == 'vcc']
        if c.kind == 'mfma' and ov(vd, c.uses): n = max(n, 2)
        if c.kind == 'permlane' and ov(vd, c.uses): n = max(n, 2)
        if c.kind == 'dpp' and ov(vd, c.uses): n = max(n, 2)
        if c.kind == 'rdlane' and ov(vd, c.uses): n = max(n, 1)
        if p.kind == 'trans' and c.kind in VALU and ov(vd, c.uses): n = max(n, 1)
        if sd:
            if c.kind in VMEM and ov(sd, c.uses): n = max(n, 5)
            if c.kind in VALU and ov(sd, c.uses): n = max(n, 4 if c.kind == 'rdlane' else 2)
            if c.kind == 'salu' and ov(sd, c.uses): n = max(n, 4)
        if 'exec' in p.defs: n = max(n, 5)
    if p.kind == 'mfma':
        P = p.passes; d = p.defs
        if c.kind == 'mfma':
            if ov(d, c.ca + c.cb): n = max(n, {2: 5, 4: 8, 8: 12}[P])
            if ov(d, c.cc):
                same = c.cc == d and c.passes == P
                n = max(n, ({2: 2, 4: 0, 8: 0} if same else {2: 4, 4: 6, 8: 10})[P])
            elif ov(d, c.defs): n = max(n, {2: 5, 4: 8, 8: 12}[P])
        elif c.kind in VALU or c.kind in VMEM or c.kind in ('dsr', 'dsw'):
            if ov(d, c.uses + c.defs): n = max(n, {2: 5, 4: 8, 8: 12}[P])
        if c.kind in VALU and ov(p.cc, c.defs): n = max(n, {2: 1, 4: 3, 8: 7}[P])
    if p.kind == 'vstore' and p.ca and ov(p.ca, c.defs): n = max(n, 2)
    if p.kind == 'salu' and 'm0' in p.defs and c.kind == 'dma': n = max(n, 1)
    return n

class Emit:
    def __init__(self):
        self.ins = []
        self.vm = []
        self.lg = []
        self.nop_added = 0
    def __call__(self, s):
        for l in s.strip('\n').split('\n'):
            l = l.strip()
            if l: self.ins.append(Ins(l))
    def vmop(self, s, tag=None):
        self(s); self.vm.append(tag)
        assert len(self.vm) <= 63 or True
    def lgop(self, s, tag=None):
        self(s); self.lg.append(tag)
    def _n(self, lst, tags):
        if not isinstance(tags, (list, set)): tags = [tags]
        idx = [i for i, t in enumerate(lst) if t in tags]
        return None if not idx else len(lst) - 1 - max(idx)
    def wait(self, vm=None, lg=None, vm_all=False, lg_all=False):
        nv = (0 if self.vm else None) if vm_all else (self._n(self.vm, vm) if vm is not None else None)
        nl = (0 if self.lg else None) if lg_all else (self._n(self.lg, lg) if lg is not None else None)
        parts = []
        if nv is not None:
            nv2 = min(nv, 63); parts.append(f"vmcnt({nv2})"); self.vm = self.vm[len(self.vm) - nv2:] if nv2 else []
        if nl is not None:
            nl2 = min(nl, 15); parts.append(f"lgkmcnt({nl2})"); self.lg = self.lg[len(self.lg) - nl2:] if nl2 else []
        if parts: self("s_waitcnt " + " ".join(parts)); return True
        return False
    def pending_vm(self, tags): return self._n(self.vm, tags) is not None
    def pending_lg(self, tags): return self._n(self.lg, tags) is not None
    def finish(self):
        out = []
        for c in self.ins:
            if not c.label:
                req = 0; dist = 0
                for p in reversed(out):
                    if dist >= 20: break
                    if p.label: continue
                    k = need(p, c) - dist
                    if k > req: req = k
                    dist += p.states
                while req > 0:
                    k = min(req, 16); out.append(Ins(f"s_nop {k-1}")); req -= k; self.nop_added += 1
            out.append(c)
        return "\n".join(("" if i.label else "    ") + i.text for i in out) + "\n"
```

```python
import sys, math
from emit import Emit
NAME = "gated_mix__linear_kernel_hedgehog__dense_activation_gelu__prompt"

TAG = 0x0
F1 = 0x1000; F2 = 0x2000; F3 = 0x3000; F4 = 0x4000; F5 = 0x6000
STAMP = 0x8000
GB = 0x20000
PP = 0x40000; PSZ = 15360
FIN = 0x240000; FSZ = 7680
PB = 0x300000
A2 = 0x600000
OOB = 0x7ff00000

K1 = 1024
QH_ST = 46 * K1; KV_ST = 36 * K1
MISC = 154 * K1
L_WPHI = MISC; L_GATE = MISC + 3200; L_BIASKV = MISC + 4480; L_BIASQH = MISC + 3200
QH_PACK = 138 * K1; KV_PACK = 114 * K1
WH0 = 114 * K1; WH5 = 74 * K1
L_PHI = 0; RSP = 352; L_V = 128 * RSP; RSV = 224
L_BL = 0
NL = 18
L_RED = 80 * K1
L_FIN = 140 * K1

sW = 3
SX, SQ, S1, SWS, SPK, SM = 4, 8, 12, 16, 20, 24
pX, pQKV, pPHI, pWO, pBX, pW1, pB1, pW2, pB2, pGATE, pOUT, pDBG, pWS = [32 + 2 * i for i in range(13)]
sTAG = 58
sMT, sHG, sRB, sNB = 60, 61, 62, 63
sE = 64
sT0, sT1, sT2, sT3, sT4, sT5 = 74, 75, 76, 77, 78, 79
sM0 = 80
sBT, sAT, sB9, sA9 = 100, 101, 86, 87
sKW, sK1 = 89, 90
sF1 = 91
sPKD = 92
sA, sB = 96, 97
sC0, sC1 = 98, 99
sP0 = 28

def srd(r): return f"s[{r}:{r+3}]"
def vr(r, n=4): return f"v[{r}:{r+n-1}]" if n > 1 else f"v{r}"
def ar(r, n=4): return f"a[{r}:{r+n-1}]"
def R(loc, n=4): return (vr if loc[0] == 'v' else ar)(loc[1], n)
def fl(x):
    import struct
    return hex(struct.unpack('<I', struct.pack('<f', x))[0])

class Cfg:
    rot = 1; map2 = 1; stamps = 0; LA = 11; spin = 200000; stop = None; codepf = 40960

def mk_srd(e, r, p, nbytes):
    e(f"s_mov_b32 s{r}, s{p}\ns_and_b32 s{r+1}, s{p+1}, 0xffff\ns_mov_b32 s{r+2}, {nbytes}\ns_mov_b32 s{r+3}, 0x20000")

class Gen:
    def __init__(self, cfg):
        self.c = cfg; self.e = Emit(); self.tail = []; self.uid = 0; self.nstamp = 0
    def lab(self, p):
        self.uid += 1; return f"L_{p}_{self.uid}"
    def stamp(self, i):
        if not self.c.stamps: return
        e = self.e
        e(f"s_memrealtime s[{sC0}:{sC1}]\ns_waitcnt lgkmcnt(0)"); e.lg = []
        e(f"v_mov_b32 v14, s{sC0}\nv_mov_b32 v15, {STAMP + i*4}")
        e(f"s_lshl_b32 s{sC0}, s2, 2\ns_add_u32 s{sC0}, s{sC0}, s{sW}\ns_lshl_b32 s{sC0}, s{sC0}, 6")
        e.vmop(f"buffer_store_dword v14, v15, {srd(SWS)}, s{sC0} offen", 'stamp')

    def dump(self, name, regs):
        if getattr(self.c, 'dbg', None) != name: return
        e = self.e
        e(f"s_lshl_b32 s{sBT}, s2, 2\ns_add_u32 s{sBT}, s{sBT}, s{sW}\ns_lshl_b32 s{sBT}, s{sBT}, 14\ns_add_u32 s{sBT}, s{sBT}, 0x2000000\nv_lshlrev_b32 v7, 2, v0")
        for i, r in enumerate(regs):
            e.vmop(f"buffer_store_dword v{r}, v7, {srd(SWS)}, s{sBT} offen offset:{(i%16)*256}", 'dbg')
            if i % 16 == 15: e(f"s_add_u32 s{sBT}, s{sBT}, 4096")
        e.wait(vm='dbg'); self.Bcur = None

    def poll_issue(self, vaddr, vdst, n, tag, soff="0"):
        suf = {2: 'dwordx2', 4: 'dwordx4'}[n]
        return f"buffer_load_{suf} {vr(vdst, n)}, v{vaddr}, {srd(SWS)}, {soff} offen sc1"
    def poll_check(self, loads):
        Ls, Lb = self.lab('slow'), self.lab('back')
        cmps = []; ors = []; k = 0
        prs = ['vcc', 's[28:29]', 's[30:31]', 's[40:41]']
        for (va, vd, n, so) in loads:
            for h in range(n // 2):
                cmps.append(f"v_cmp_ne_u64 {prs[k]}, s[{sTAG}:{sTAG+1}], v[{vd+2*h}:{vd+2*h+1}]")
                if k: ors.append(f"s_or_b64 vcc, vcc, {prs[k]}")
                k += 1
        cmps = cmps[::-1] if False else cmps
        fast = cmps + ors + [f"s_cbranch_vccnz {Ls}\n{Lb}:"]
        t = [f"{Ls}:", f"s_mov_b32 s54, {self.c.spin}", f"{Ls}_l:"]
        for (va, vd, n, so) in loads: t.append(self.poll_issue(va, vd, n, None, so))
        t += ["s_waitcnt vmcnt(0)"] + cmps + ors
        t += ["s_sub_u32 s54, s54, 1", f"s_cbranch_vccz {Ls}_x", "s_cmp_lg_u32 s54, 0", f"s_cbranch_scc1 {Ls}_l", f"{Ls}_x:", "s_nop 4", f"s_branch {Lb}"]
        self.tail += t
        return fast
    def flag_store(self, vaddr, vtag, soff="0"):
        return f"buffer_store_dwordx2 {vr(vtag, 2)}, v{vaddr}, {srd(SWS)}, {soff} offen sc1"

    def stream(self, mf, reads, fill, syncs=None, LA=None, first_sync=None):
        e = self.e; LA = LA or self.c.LA
        reads = sorted(reads, key=lambda r: r[1]); rp = 0; synced = -1 if syncs else 99
        fq = list(fill)
        def emit_item(it):
            k = it[0]
            if k == 'vm': e.vmop(it[1], it[2])
            elif k == 'lg': e.lgop(it[1], it[2])
            elif k == 'wvm': e.wait(vm=it[1])
            elif k == 'wlg': e.wait(lg=it[1])
            else: e(it[1])
        def add_fill(items):
            fq.extend(items); fq.sort(key=lambda f: f['at'])
        if syncs:
            add_fill(syncs[0](0)); synced = 0
        n0 = 0
        while rp < len(reads) and reads[rp][1] < 4 and reads[rp][2] <= synced:
            e.lgop(reads[rp][0], ('rd', rp)); rp += 1
        last_read = -99
        dl_of = {('rd', i): r[1] for i, r in enumerate(reads)}
        def due(m): return [t for t in e.lg if t in dl_of and dl_of[t] <= m]
        NM = len(mf)
        for m in range(NM):
            d = due(m)
            if d: e.wait(lg=d)
            e(mf[m])
            if syncs and rp < len(reads) and reads[rp][2] > synced and m - last_read >= 2 and reads[rp][1] - m <= LA:
                synced = reads[rp][2]
                assert not any(it[0] == 'vm' and it[2] == ('S', synced) for f in fq for it in f['ins'])
                add_fill(syncs[synced](m + 1)); continue
            slots = 2 - (1 if due(m + 1) else 0); mem = 0
            can_read = lambda: rp < len(reads) and reads[rp][2] <= synced and reads[rp][3] <= m and len(e.lg) < 15
            behind = can_read() and reads[rp][1] - m <= LA - 3
            while slots > 0 and fq and fq[0]['at'] <= m:
                it = fq[0]['ins'][0]
                ismem = it[0] in ('vm', 'lg')
                if ismem and mem and not fq[0].get('force'): break
                emit_item(it); fq[0]['ins'].pop(0)
                if not fq[0]['ins']: fq.pop(0)
                slots -= 1
                mem += ismem
                if ismem: break
            if can_read() and reads[rp][1] - m <= LA and slots > 0 and (mem == 0 or behind):
                e.lgop(reads[rp][0], ('rd', rp)); rp += 1; last_read = m; slots -= 1; mem += 1
                if can_read() and reads[rp][1] - m <= LA - 5 and slots > 0:
                    e.lgop(reads[rp][0], ('rd', rp)); rp += 1
            while can_read() and reads[rp][1] <= m + 3:
                e.lgop(reads[rp][0], ('rd', rp)); rp += 1; last_read = m
            assert rp >= len(reads) or reads[rp][1] > m + 1, (m, reads[rp])
        for f in fq:
            for it in f['ins']: emit_item(it)

    def prologue(self):
        e = self.e; c = self.c
        e(f"""s_cmp_ge_u32 s2, 256
        s_cbranch_scc1 L_end
        s_load_dwordx16 s[32:47], s[0:1], 0
        s_load_dwordx8 s[48:55], s[0:1], 64
        s_load_dwordx2 s[56:57], s[0:1], 96
        v_lshrrev_b32 v1, 6, v0
        v_and_b32 v0, 63, v0
        s_and_b32 s{sT0}, s2, 7
        v_readfirstlane_b32 s{sW}, v1
        s_lshr_b32 s{sT1}, s2, 3
        s_lshr_b32 s{sT2}, s{sT0}, 1
        s_and_b32 s{sT3}, s{sT1}, 3
        s_lshl_b32 s{sMT}, s{sT2}, 2
        s_add_u32 s{sMT}, s{sMT}, s{sT3}
        s_lshr_b32 s{sT4}, s{sT1}, 2
        s_and_b32 s{sHG}, s{sT0}, 1
        s_lshl_b32 s{sHG}, s{sHG}, 2
        s_and_b32 s{sT5}, s{sT4}, 3
        s_add_u32 s{sHG}, s{sHG}, s{sT5}""")
        if c.rot:
            e(f"""s_lshr_b32 s{sT5}, s{sT4}, 2
            s_add_u32 s{sE}, s{sT4}, s{sT5}
            s_mul_i32 s{sT5}, s{sT3}, 5
            s_lshr_b32 s{sT5}, s{sT5}, 1
            s_add_u32 s{sE}, s{sE}, s{sT5}
            s_cmp_ge_u32 s{sE}, 10
            s_cselect_b32 s{sT5}, 10, 0
            s_sub_u32 s{sE}, s{sE}, s{sT5}
            s_lshl_b32 s{sE}, s{sE}, 7""")
        else: e(f"s_mov_b32 s{sE}, 0")
        if c.map2:
            e(f"""s_and_b32 s{sRB}, s{sT1}, 7
            s_lshl_b32 s{sT2}, s{sT2}, 3
            s_add_u32 s{sRB}, s{sRB}, s{sT2}
            s_and_b32 s{sNB}, s{sT0}, 1
            s_lshl_b32 s{sNB}, s{sNB}, 2
            s_lshr_b32 s{sT2}, s{sT1}, 3
            s_add_u32 s{sNB}, s{sNB}, s{sT2}""")
        else:
            e(f"""s_lshl_b32 s{sRB}, s{sT0}, 2
            s_add_u32 s{sRB}, s{sRB}, s{sT3}
            s_mov_b32 s{sNB}, s{sT4}""")
        e("""v_and_b32 v1, 15, v0
        v_lshrrev_b32 v2, 4, v0
        v_bfe_u32 v3, v0, 2, 2
        v_and_b32 v4, 3, v0
        v_lshrrev_b32 v5, 3, v0
        v_lshlrev_b32 v6, 4, v0""")
        e(f"""s_lshl_b32 s{sT2}, s{sMT}, 2
        s_add_u32 s{sT2}, s{sT2}, s{sW}
        s_mul_i32 s{sT2}, s{sT2}, {32*1280}
        v_xor_b32 v7, v2, v0
        v_and_b32 v7, 7, v7
        v_lshlrev_b32 v7, 4, v7
        v_mul_u32_u24 v8, 1280, v5
        v_add_u32 v8, s{sT2}, v8
        v_add_u32 v208, v8, v7
        v_xor_b32 v7, 64, v7
        v_add_u32 v209, v8, v7
        v_add_u32 v209, {10240-1024}, v209
        v_add_u32 v210, {2*(10240-1024)}, v208
        v_add_u32 v211, {2*(10240-1024)}, v209
        s_bitcmp1_b32 s{sT4}, 2
        s_waitcnt lgkmcnt(0)
        s_load_dwordx2 s[{sTAG}:{sTAG+1}], s[{pWS}:{pWS+1}], {TAG}""")
        mk_srd(e, SX, pX, 2048 * 1280); mk_srd(e, SQ, pQKV, 640 * 3840); mk_srd(e, S1, pW1, 640 * 3456)
        e(f"s_bitcmp1_b32 s{sT4}, 2\ns_cbranch_scc1 L_QH")

    def attn_voff(self, dst, cexpr_base, colbase_s):
        e = self.e
        e(f"""v_mul_u32_u24 v10, 6554, v9
        v_lshrrev_b32 v10, 16, v10
        v_mad_i32_i24 v11, v10, -10, v9""")
        self.swap23(10, 12)
        e(f"""v_mul_u32_u24 v10, 3840, v10
        v_lshl_add_u32 v10, v11, 4, v10
        v_add_u32 v{dst}, s{colbase_s}, v10""")
    def swap23(self, r, t):
        self.e(f"""v_lshrrev_b32 v{t}, 1, v{r}
        v_xor_b32 v{t}, v{t}, v{r}
        v_and_b32 v{t}, 4, v{t}
        v_mul_u32_u24 v{t}, 3, v{t}
        v_xor_b32 v{r}, v{r}, v{t}""")

    def small_dma(self, sr, vaddr, soff, ldsaddr, nlanes, tag, m0expr=None):
        e = self.e
        e(m0expr or f"s_mov_b32 m0, {ldsaddr}")
        if nlanes < 64: e(f"s_mov_b64 exec, {hex((1 << nlanes) - 1)}" if nlanes <= 32 else f"s_mov_b32 exec_hi, {hex((1 << (nlanes-32)) - 1)}")
        e.vmop(f"buffer_load_dwordx4 v{vaddr}, {srd(sr)}, {soff} offen lds", tag)
        if nlanes < 64: e("s_mov_b64 exec, -1")

    def csel(self, d, a, b):
        inl = lambda x: isinstance(x, str) or -16 <= x <= 64
        if inl(a) or inl(b): self.e(f"s_cselect_b32 s{d}, {a}, {b}")
        else: self.e(f"s_mov_b32 s{d}, {b}\ns_cselect_b32 s{d}, {a}, s{d}")

    def common_early(self, packbase):
        e = self.e; c = self.c
        mk_srd(e, SWS, pWS, 0x10000000)
        e(f"""s_lshl_b32 s{sT0}, s2, 2
        s_add_u32 s{sT0}, s{sT0}, s{sW}
        s_mul_i32 s{sT1}, s{sT0}, 6554
        s_lshr_b32 s{sT1}, s{sT1}, 16
        s_mul_i32 s{sT2}, s{sT1}, 10
        s_sub_u32 s{sT2}, s{sT0}, s{sT2}
        s_sub_u32 s{sT3}, s{sT1}, 54
        s_and_b32 s{sT3}, s{sT3}, 63
        s_mul_i32 s{sT4}, s{sT3}, 52
        s_lshr_b32 s{sT4}, s{sT4}, 8
        s_mul_i32 s{sT5}, s{sT4}, 5
        s_sub_u32 s{sT5}, s{sT3}, s{sT5}
        s_mul_i32 s{sC0}, s{sT4}, 160
        s_lshr_b32 s{sC1}, s{sT5}, 1
        s_mul_i32 s{sC1}, s{sC1}, 80
        s_and_b32 s{sT3}, s{sT5}, 1
        s_lshl_b32 s{sT3}, s{sT3}, 3
        s_add_u32 s{sC1}, s{sC1}, s{sT3}
        s_cmp_eq_u32 s{sT5}, 4
        s_cselect_b32 s{sC1}, 16, s{sC1}
        s_cselect_b32 s{sT3}, 80, 4
        s_add_u32 s{sC0}, s{sC0}, s{sC1}
        s_lshl_b32 s{sC1}, s{sT1}, 5
        s_cmp_lt_u32 s{sT1}, 54
        s_cselect_b32 s{sC0}, s{sC1}, s{sC0}
        s_cselect_b32 s{sT3}, 16, s{sT3}""")
        self.csel(sT4, 4 * 1280 - 1024, 20 * 1280 - 1024)
        e(f"""s_cselect_b32 s{SPK}, s{pW2}, s{pWO}
        s_cselect_b32 s{SPK+1}, s{pW2+1}, s{pWO+1}""")
        self.csel(SPK + 2, 1728 * 1280, 640 * 1280)
        e(f"""s_and_b32 s{SPK+1}, s{SPK+1}, 0xffff
        s_mov_b32 s{SPK+3}, 0x20000
        s_cmp_lt_u32 s{sT0}, 740
        s_cselect_b32 s{SPK+2}, s{SPK+2}, 0
        s_mul_i32 s{sC0}, s{sC0}, 1280
        s_lshl_b32 s{sC1}, s{sT2}, 7
        s_add_u32 s{sC0}, s{sC0}, s{sC1}
        v_lshrrev_b32 v9, 5, v0
        v_mul_lo_u32 v9, v9, s{sT3}
        v_and_b32 v10, 3, v5
        v_add_u32 v9, v9, v10
        v_mul_u32_u24 v9, 1280, v9
        v_and_b32 v10, 7, v0
        v_lshl_add_u32 v9, v10, 4, v9
        s_lshl_b32 s{sC1}, s{sW}, 12
        s_add_u32 m0, s{sC1}, {packbase}""")
        for i in range(4):
            e.vmop(f"buffer_load_dwordx4 v9, {srd(SPK)}, s{sC0} offen offset:{i*1024} lds", 'packld')
            if i < 3: e(f"s_add_u32 s{sC0}, s{sC0}, s{sT4}")
        mk_srd(e, SM, pPHI, 32 * 800)
        e(f"""s_lshl_b32 s{sT3}, s{sHG}, 2
        s_add_u32 s{sT3}, s{sT3}, s{sW}
        s_mul_i32 s{sT3}, s{sT3}, 800
        s_mul_i32 s{sT4}, s{sW}, 800""")
        self.small_dma(SM, 6, f"s{sT3}", None, 50, 'misc', f"s_add_u32 m0, s{sT4}, {L_WPHI}")
        if c.codepf:
            Lp = self.lab('pf'); end = "L_QH" if packbase == KV_PACK else "L_end"
            e(f"""s_getpc_b64 s[{sA}:{sB}]
            {Lp}:
            s_lshl_b32 s{sT3}, s{sW}, 13
            v_lshlrev_b32 v10, 7, v0
            v_add_u32 v10, s{sT3}, v10
            v_cmp_gt_u32 vcc, {end}-{Lp}, v10
            v_cndmask_b32 v10, 0, v10, vcc""")
            e.vmop(f"global_load_dword v244, v10, s[{sA}:{sB}]", 'pf')
        self.pk = (sT0, sT1, sT2, packbase)

    def common_late(self):
        e = self.e; packbase = self.pk[3]
        e(f"""s_lshl_b32 s{sC1}, s{sW}, 12
        v_lshlrev_b32 v9, 10, v2
        v_lshl_add_u32 v9, v3, 7, v9
        v_add_u32 v9, s{sC1}, v9
        v_add_u32 v9, {packbase}, v9""")
        for g in range(2):
            e(f"""s_lshl_b32 s{sT3}, s{sT2}, 1
            s_add_u32 s{sT3}, s{sT3}, {g}
            s_mul_i32 s{sT4}, s{sT3}, 52
            s_lshr_b32 s{sT4}, s{sT4}, 8
            s_mul_i32 s{sT5}, s{sT4}, 5
            s_sub_u32 s{sT5}, s{sT3}, s{sT5}
            s_cmp_eq_u32 s{sT5}, 2
            s_cselect_b32 s{sT3}, 3, 4
            s_cselect_b32 s{sC0}, 32, 8
            v_lshlrev_b32 v10, s{sT3}, v4
            v_add_u32 v{248+2*g}, v9, v10
            v_add_u32 v{249+2*g}, s{sC0}, v{248+2*g}""")
            for a_ in range(2):
                d = sPKD + 2 * g + a_
                e(f"""s_lshl_b32 s{sT3}, s{sT5}, 1
                s_add_u32 s{sT3}, s{sT3}, {a_}
                s_lshl_b32 s{sC0}, s{sT4}, 1
                s_cmp_ge_u32 s{sT3}, 5
                s_addc_u32 s{sC0}, s{sC0}, 0
                s_sub_u32 s{d}, s{sT3}, 6
                s_cmp_lt_u32 s{sT3}, 6
                s_cselect_b32 s{d}, s{sT3}, s{d}
                s_cmp_eq_u32 s{sT3}, 5
                s_cselect_b32 s{d}, 4, s{d}
                s_mul_i32 s{sC0}, s{sC0}, 74
                s_add_u32 s{sC0}, s{sC0}, s{sT1}
                s_mul_i32 s{sC0}, s{sC0}, 5
                s_add_u32 s{d}, s{d}, s{sC0}
                s_lshl_b32 s{d}, s{d}, 10
                s_add_u32 s{d}, s{d}, {PB}
                s_cmp_lt_u32 s{sT0}, 740
                s_cselect_b32 s{d}, s{d}, {OOB}""")
        for i in range(2, 10):
            e(f"s_add_u32 s{sE+i}, s{sE+i-1}, 128\ns_cmp_eq_u32 s{sE+i}, 1280\ns_cselect_b32 s{sE+i}, 0, s{sE+i}")
        e(f"""s_mul_i32 s{sB}, s{sNB}, 74
        s_add_u32 s{sB}, s{sB}, s{sW}
        s_mul_i32 s{sB}, s{sB}, 5120
        s_add_u32 s{sB}, s{sB}, {PB}
        s_mul_i32 s{sA}, s{sRB}, 74
        s_add_u32 s{sA}, s{sA}, s{sW}
        s_lshl_b32 s{sA}, s{sA}, 12
        s_add_u32 s{sA}, s{sA}, {A2}
        s_add_u32 s{sB9}, s{sB}, {36*5120}
        s_add_u32 s{sA9}, s{sA}, {36*4096}
        s_cmp_lt_u32 s{sW}, 2
        s_cselect_b32 s{sB9}, s{sB9}, {OOB}
        s_cselect_b32 s{sA9}, s{sA9}, {OOB}
        s_mul_i32 s88, s{sW}, {NL*1024}
        v_add_u32 v240, 4096, v6""")
        for j in range(4):
            e(f"s_add_u32 s{sT3}, s{sW}, {j}\ns_and_b32 s{sT3}, s{sT3}, 3\ns_lshl_b32 s{sT3}, s{sT3}, 10\nv_add_u32 v{236+j}, s{sT3}, v6")
        e(f"""s_lshl_b32 s{sF1}, s2, 3
        s_add_u32 s{sF1}, s{sF1}, {F1}
        s_cmp_eq_u32 s{sW}, 0
        s_cselect_b32 s{sF1}, s{sF1}, {OOB}
        v_mov_b32 v245, {OOB}
        v_cmp_eq_u32 vcc, 0, v0
        v_cndmask_b32 v245, v245, 0, vcc
        s_waitcnt lgkmcnt(0)
        s_add_u32 s{sTAG}, s{sTAG}, 1
        v_mov_b32 v247, s{sTAG+1}
        v_mov_b32 v246, s{sTAG}""")
        e.lg = []

    def kloop_common_fill(self, nm):
        f = []; ins = []
        for i in range(4):
            g = i >> 1
            ins.append(('lg', f"ds_read_b64_tr_b16 a[{160+4*i}:{161+4*i}], v{248+i} offset:{g*64}", 'pkrd'))
            ins.append(('lg', f"ds_read_b64_tr_b16 a[{162+4*i}:{163+4*i}], v{248+i} offset:{g*64+512}", 'pkrd'))
        for k, it in enumerate(ins): f.append(dict(at=nm + 1 + 2 * k, ins=[it], force=1))
        f.append(dict(at=nm + 22, ins=[('wlg', 'pkrd')]))
        for i in range(4):
            f.append(dict(at=nm + 23 + 2 * i, ins=[('vm', f"buffer_store_dwordx4 {ar(160+4*i)}, v6, {srd(SWS)}, s{sPKD+i} offen sc1", 'pkst')], force=1))
        f.append(dict(at=6 * nm + 3, ins=[('x', f"s_mov_b32 s{sT0}, {F1}"), ('x', "v_add_u32 v235, 1024, v6"), ('vm', self.poll_issue(6, 248, 4, None, f"s{sT0}"), 'f1p')], force=1))
        f.append(dict(at=6 * nm + 7, ins=[('vm', self.poll_issue(235, 252, 4, None, f"s{sT0}"), 'f1p')], force=1))
        chk = self.poll_check([(6, 248, 4, f"s{sT0}"), (235, 252, 4, f"s{sT0}")])
        ins = [('wvm', 'f1p')] + [('x', t) for t in chk]
        ins += [('x', f"s_or_b32 s{sT1}, s2, s{sW}"), ('x', f"s_cmp_eq_u32 s{sT1}, 0"), ('x', f"s_cselect_b32 s{sT1}, {TAG}, {OOB}"),
                ('vm', self.flag_store(245, 246, f"s{sT1}"), 'tagst')]
        f.append(dict(at=7 * nm + 2, ins=ins))
        return f

    def init_B(self):
        self.Bloc = {}; self.Bq = []
        order = [(i, t) for i in range(19) for t in range(5)]
        for u, k in enumerate(order):
            if u < 24: self.Bloc[k] = ('a', 160 + 4 * u)
            elif u < 64: self.Bloc[k] = ('a', 4 * (u - 24))
            elif u < 64 + NL: self.Bloc[k] = ('l', u - 64)
            else: self.Bloc[k] = None
        self.Border = order; self.Bnext = 0; self.Bcur = None; self.Acur = None
    def koff(self, i): return 4 * i - (2 if i >= 10 else 0)
    def B_items(self, k, loc):
        i, t = k; it = []
        if self.Bcur != i:
            it.append(('x', f"s_mov_b32 s{sBT}, s{sB9}" if i == 9 else f"s_add_u32 s{sBT}, s{sB}, {self.koff(i)*5120}")); self.Bcur = i
        va, imm = (6, t * 1024) if t < 4 else (240, 0)
        if loc[0] == 'l':
            assert L_BL + loc[1]*1024 - imm >= 0
            it.append(('x', f"s_add_u32 m0, s88, {L_BL + loc[1]*1024 - imm}"))
            it.append(('vm', f"buffer_load_dwordx4 v{va}, {srd(SWS)}, s{sBT} offen offset:{imm} sc1 lds", ('B', k)))
        else:
            it.append(('vm', f"buffer_load_dwordx4 {R(loc)}, v{va}, {srd(SWS)}, s{sBT} offen offset:{imm} sc1", ('B', k)))
        return it
    def B_take(self, us):
        out = []
        for u in us:
            k = self.Border[u]; out.append(self.B_items(k, self.Bloc[k]))
        return out
    def emit_items(self, items):
        e = self.e
        for it in items:
            if it[0] == 'vm': e.vmop(it[1], it[2])
            elif it[0] == 'lg': e.lgop(it[1], it[2])
            elif it[0] == 'wvm': e.wait(vm=it[1])
            elif it[0] == 'wlg': e.wait(lg=it[1])
            else: e(it[1])
    def valu(self, lines, side, every):
        n = 0
        for l in lines:
            if isinstance(l, str): self.e(l)
            else: self.emit_items([l])
            n += 1
            if side and n % every == 0: self.emit_items(side.pop(0))

    def gelu_lines(self, X, Y, T, O):
        U = [X, X + 2, Y, Y + 2]; L = []
        P = lambda r: f"v[{r}:{r+1}]"
        for i in range(4): L.append(f"v_pk_mul_f32 {P(T+2*i)}, {P(U[i])}, {P(U[i])}")
        for i in range(4): L.append(f"v_pk_fma_f32 {P(T+2*i)}, {P(T+2*i)}, v[14:15], s[{sC0}:{sC1}] op_sel_hi:[1,0,0]")
        for i in range(4): L.append(f"v_pk_mul_f32 {P(T+2*i)}, {P(T+2*i)}, {P(U[i])}")
        for i in range(8): L.append(f"v_exp_f32 v{T+i}, v{T+i}")
        for i in range(4): L.append(f"v_pk_add_f32 {P(T+2*i)}, {P(T+2*i)}, 1.0 op_sel_hi:[1,0]")
        for i in range(8): L.append(f"v_rcp_f32 v{T+i}, v{T+i}")
        for i in range(4): L.append(f"v_pk_mul_f32 {P(T+2*i)}, {P(T+2*i)}, {P(U[i])}")
        for i in range(4): L.append(f"v_cvt_pk_bf16_f32 v{O+i}, v{T+2*i}, v{T+2*i+1}")
        return L
    def gelu_consts(self):
        c1 = -2.0 * math.sqrt(2.0 / math.pi) * math.log2(math.e)
        self.e(f"s_mov_b32 s{sC0}, {fl(c1)}\nv_mov_b32 v14, {fl(c1 * 0.044715)}")
    def softmax_lines(self, Pp, E, PH):
        L = []; P = lambda r: f"v[{r}:{r+1}]"
        L += [f"v_max3_f32 v8, v{Pp}, v{Pp+1}, v{Pp+2}", f"v_min3_f32 v10, v{Pp}, v{Pp+1}, v{Pp+2}"]
        for i in range(3, 19, 2): L += [f"v_max3_f32 v8, v8, v{Pp+i}, v{Pp+i+1}", f"v_min3_f32 v10, v10, v{Pp+i}, v{Pp+i+1}"]
        L += [f"v_max_f32 v8, v8, v{Pp+19}", f"v_min_f32 v10, v10, v{Pp+19}"]
        L += [f"v_mul_f32_e64 v8, -v8, s{sC0}", f"v_mul_f32 v10, s{sC0}, v10"]
        for i in range(10):
            L.append(f"v_pk_fma_f32 {P(E+2*i)}, {P(Pp+2*i)}, s[{sC0}:{sC1}], v[8:9] op_sel_hi:[1,0,0]")
            L.append(f"v_pk_fma_f32 {P(E+20+2*i)}, {P(Pp+2*i)}, s[{sC0}:{sC1}], v[10:11] op_sel_hi:[1,0,0] neg_lo:[1,0,0] neg_hi:[1,0,0]")
        for i in range(40): L.append(f"v_exp_f32 v{E+i}, v{E+i}")
        L += [f"v_pk_add_f32 v[8:9], {P(E)}, {P(E+2)}", f"v_pk_add_f32 v[10:11], {P(E+20)}, {P(E+22)}"]
        for i in range(2, 10): L += [f"v_pk_add_f32 v[8:9], v[8:9], {P(E+2*i)}", f"v_pk_add_f32 v[10:11], v[10:11], {P(E+20+2*i)}"]
        L += ["v_add_f32 v8, v8, v9", "v_add_f32 v10, v10, v11", "v_rcp_f32 v8, v8", "v_rcp_f32 v10, v10"]
        for i in range(10): L.append(f"v_pk_mul_f32 {P(E+2*i)}, {P(E+2*i)}, v[8:9] op_sel_hi:[1,0]")
        for i in range(10): L.append(f"v_pk_mul_f32 {P(E+20+2*i)}, {P(E+20+2*i)}, v[10:11] op_sel_hi:[1,0]")
        for i in range(20): L.append(f"v_cvt_pk_bf16_f32 v{PH+i}, v{E+2*i}, v{E+2*i+1}")
        return L
    def wphi_reads(self, va):
        self.e(f"v_mul_u32_u24 v{va}, 800, v2\nv_mad_u32_u24 v{va}, v3, 40, v{va}\nv_add_u32 v{va}, {L_WPHI}, v{va}")
        return [[('lg', f"ds_read_b64_tr_b16 v[{168+2*(dg*5+fg)}:{169+2*(dg*5+fg)}], v{va} offset:{dg*160 + fg*8}", 'wphi')] for dg in range(5) for fg in range(5)]
    def phi_mfmas(self, KQ, Pp):
        L = []
        for dg in range(5):
            for j in range(2):
                for fg in range(5):
                    d = Pp + 20 * j + 4 * fg; w = 168 + 2 * (dg * 5 + fg); b = KQ + 10 * j + 2 * dg
                    L.append(f"v_mfma_f32_4x4x4_16b_bf16 {vr(d)}, v[{w}:{w+1}], v[{b}:{b+1}], {vr(d) if dg else 0}")
        return L
    def cvt_heads(self, acc0, dst, j, n=5):
        return [f"v_cvt_pk_bf16_f32 v{dst+2*t+h}, v{acc0+(t*2+j)*4+2*h}, v{acc0+(t*2+j)*4+2*h+1}" for t in range(n) for h in range(2)]
    def rho0(self, dst):
        self.e(f"v_lshrrev_b32 v{dst}, 1, v2\nv_lshl_add_u32 v{dst}, v{dst}, 4, v3\nv_and_b32 v7, 1, v2\nv_lshl_add_u32 v{dst}, v7, 2, v{dst}")
    def x_addr(self, ST):
        e = self.e
        e(f"""v_lshrrev_b32 v9, 1, v1
        v_xor_b32 v9, v9, v2
        v_lshlrev_b32 v9, 4, v9
        v_lshl_add_u32 v9, v1, 7, v9
        v_add_u32 v220, s{sM0}, v9
        v_xor_b32 v221, 64, v220""")
        for sl in (1, 2): e(f"v_add_u32 v{220+2*sl}, {sl*ST}, v220\nv_add_u32 v{221+2*sl}, {sl*ST}, v221")
    def paced(self, groups, m0, span):
        n = len(groups)
        return [dict(at=m0 + int((k + 0.2) * span / n), ins=list(g)) for k, g in enumerate(groups)]
    def flag_addr(self, d, base, rbmul, slotexpr_regs):
        pass

    def prog_QH(self):
        e = self.e; c = self.c; self.init_B()
        e("L_QH:")
        ST = QH_ST
        e(f"""s_mul_i32 s{sKW}, s{sHG}, 320
        s_lshl_b32 s{sT0}, s{sHG}, 8
        s_add_u32 s{sT0}, s{sT0}, 384
        s_cmp_lt_u32 s{sHG}, 6
        s_cselect_b32 s{sKW}, s{sKW}, s{sT0}
        s_cselect_b32 s{sK1}, 20, 16
        s_lshl_b32 s{sM0}, s{sW}, 12""")
        mk_srd(e, SM, pB1, 3456)
        e(f"s_mul_i32 s{sT1}, s{sW}, 320")
        self.small_dma(SM, 6, f"s{sKW}", None, 20, 'bias', f"s_add_u32 m0, s{sT1}, {L_BIASQH}")
        def dma_x(st):
            g = []
            for j in range(4):
                it = [('x', f"s_add_u32 m0, s{sM0}, {(st%3)*ST}")] if j == 0 else []
                g.append(it + [('vm', f"buffer_load_dwordx4 v{208+j}, {srd(SX)}, s{sE+st} offen offset:{j*1024} lds", ('S', st))])
            return g
        def dma_a(st, i):
            it = []
            if i == 0: it = [('x', f"s_mul_i32 s{sT2}, s{sE+st}, 1920"), ('x', f"s_add_u32 m0, s{sM0+1}, {(st%3)*ST}")]
            if i == 2: it = [('x', f"s_mov_b32 m0, s{sM0+3+st%3}")]
            return it + [('vm', f"buffer_load_dwordx4 v{212+i}, {srd(SQ)}, s{sT2} offen offset:{1024 if i == 1 else 0} lds", ('S', st))]
        def dma_h(st, i):
            it = []
            if i == 0: it = [('x', f"s_mul_i32 s{sT3}, s{sE+st}, 1728"), ('x', f"s_add_u32 m0, s{sM0+2}, {(st%3)*ST}")]
            if i == 4: it = [('x', "s_add_u32 m0, m0, 4096")]
            return it + [('vm', f"buffer_load_dwordx4 v{215+i}, {srd(S1)}, s{sT3} offen offset:{(i%4)*1024} lds", ('S', st))]
        def dma_stage(st): return dma_x(st) + [dma_a(st, i) for i in range(3)] + [dma_h(st, i) for i in range(5)]
        for g in dma_x(0): self.emit_items(g)
        e(f"""s_mul_i32 s{sT0}, s{sW}, 3
        s_lshl_b32 s{sT1}, s{sW}, 1
        s_add_u32 s{sT1}, s{sT1}, 2
        s_cmp_lt_u32 s{sW}, 2
        s_cselect_b32 s{sT0}, s{sT0}, s{sT1}
        s_lshl_b32 s{sM0+1}, s{sT0}, 10
        s_add_u32 s{sM0+1}, s{sM0+1}, 16384""")
        for sl in range(3):
            e(f"s_add_u32 s{sM0+3+sl}, s{sM0+1}, {2048 + sl*ST}\ns_cmp_lt_u32 s{sW}, 2\ns_cselect_b32 s{sM0+3+sl}, s{sM0+3+sl}, {MISC+4608}")
        e(f"s_lshl_b32 s{sT0}, s{sT0}, 6\ns_mul_i32 s{sT1}, s{sHG}, 160\ns_mul_i32 s{sM0+2}, s{sW}, 5120\ns_add_u32 s{sM0+2}, s{sM0+2}, {16384+10240}")
        for i in range(3):
            e(f"v_add_u32 v9, {64*i}, v0\nv_add_u32 v9, s{sT0}, v9")
            self.attn_voff(212 + i, None, sT1)
            if i == 1: e("v_subrev_u32 v213, 1024, v213")
            if i == 2: e(f"s_cmp_lt_u32 s{sW}, 2\ns_cselect_b32 s{sT4}, 0, {OOB}\nv_add_u32 v214, s{sT4}, v214")
            self.emit_items(dma_a(0, i))
        e(f"s_mul_i32 s{sT0}, s{sW}, 320")
        for i in range(5):
            e(f"""v_add_u32 v9, {64*i}, v0
            v_add_u32 v9, s{sT0}, v9
            v_mul_u32_u24 v10, 3277, v9
            v_lshrrev_b32 v10, 16, v10
            v_mul_u32_u24 v11, 20, v10
            v_sub_u32 v11, v9, v11
            v_bfe_u32 v13, v10, 2, 1
            v_lshlrev_b32 v13, 1, v13
            v_xor_b32 v11, v11, v13""")
            self.swap23(10, 12)
            e(f"""v_mul_u32_u24 v10, 3456, v10
            v_lshl_add_u32 v10, v11, 4, v10
            v_add_u32 v10, s{sKW}, v10
            v_subrev_u32 v10, {(i%4)*1024}, v10
            v_cmp_gt_u32 vcc, s{sK1}, v11
            v_mov_b32 v13, {OOB}
            v_cndmask_b32 v{215+i}, v13, v10, vcc""")
            self.emit_items(dma_h(0, i))
        self.common_early(QH_PACK)
        e(f"s_add_u32 s{sE+1}, s{sE}, 128\ns_cmp_eq_u32 s{sE+1}, 1280\ns_cselect_b32 s{sE+1}, 0, s{sE+1}")
        e(f"s_mov_b32 s{sAT}, s{sT2}")
        for g in dma_stage(1): self.emit_items(g)
        e(f"s_mov_b32 s{sT2}, s{sAT}")
        self.common_late()
        self.x_addr(ST); self.rho0(8)
        e(f"v_mul_u32_u24 v9, 160, v8\nv_mad_u32_u24 v9, v4, 40, v9\nv_add_u32 v226, 16384, v9")
        e(f"v_mul_u32_u24 v9, 320, v8\nv_lshl_add_u32 v9, v4, 3, v9\nv_add_u32 v9, {16384+10240}, v9\nv_lshl_add_u32 v229, v7, 5, v9\nv_xor_b32 v7, 1, v7\nv_lshl_add_u32 v232, v7, 5, v9")
        for sl in (1, 2): e(f"v_add_u32 v{226+sl}, {sl*ST}, v226\nv_add_u32 v{229+sl}, {sl*ST}, v229\nv_add_u32 v{232+sl}, {sl*ST}, v232")
        e(f"s_mul_i32 s{sT1}, s{sW}, 320\ns_add_u32 s{sT1}, s{sT1}, {L_BIASQH}\nv_lshl_add_u32 v9, v2, 3, s{sT1}")
        e.wait(vm='bias')
        for s_ in range(10): e.lgop(f"ds_read_b64 v[{136+2*s_}:{137+2*s_}], v9 offset:{s_*32}", 'b')
        e.wait(lg_all=True)
        for s_ in range(10):
            a0 = 16 + (5 + s_) * 8
            for h in range(2): e(f"v_lshlrev_b32 v{a0+2*h}, 16, v{136+2*s_+h}\nv_and_b32 v{a0+2*h+1}, 0xffff0000, v{136+2*s_+h}")
        self.stamp(0)
        NS = 15; nm = NS * 4; mf = []; reads = []
        for st in range(10):
            sl = st % 3
            for t in range(NS):
                gs = st * NS + t; wr = 168 + 8 * (gs % 4); m0 = len(mf)
                for ks in range(2):
                    for rd in range(2):
                        if t < 5: ad, off = 226 + sl, ks * 5120 + rd * 1280 + t * 8
                        else: ad, off = (229 if (t - 5) % 2 == 0 else 232) + sl, ks * 10240 + rd * 2560 + ((t - 5) >> 1) * 64
                        reads.append([f"ds_read_b64_tr_b16 v[{wr+4*ks+2*rd}:{wr+4*ks+2*rd+1}], v{ad} offset:{off}", m0, st, m0 - 13])
                jo = (1, 0) if st == 0 else (0, 1)
                for j in jo:
                    for ks in range(2):
                        xr = 136 + (st % 2) * 16 + (j * 2 + ks) * 4; d = 16 + (t * 2 + j) * 4
                        if t == 0: reads.append([f"ds_read_b128 {vr(xr)}, v{220+2*sl+ks} offset:{j*2048}", len(mf), st, -1])
                        cc = vr(d)
                        if st == 0 and ks == 0: cc = "0" if t < 5 else vr(16 + t * 8)
                        mf.append(f"v_mfma_f32_16x16x32_bf16 {vr(d)}, {vr(wr+4*ks)}, {vr(xr)}, {cc}")
        def mksync(st):
            def f(m):
                tags = [('S', st)] + (['pkst'] if st == 3 else []) + (['packld', 'misc'] if st == 1 else [])
                e.wait(vm=tags, lg_all=True); e("s_barrier")
                out = []
                if st + 2 < 10: out += self.paced(dma_stage(st + 2), m, nm - 6)
                else: out += self.paced(self.B_take(range((st - 8) * 12, (st - 7) * 12)), m, nm - 6)
                if st == 3: out.append(dict(at=m + 1, ins=[('vm', self.flag_store(245, 246, f"s{sF1}"), 'f1st')], force=1))
                return out
            return f
        self.stream(mf, reads, self.kloop_common_fill(nm), {st: mksync(st) for st in range(10)})
        self.stamp(1)
        side = self.B_take(range(24, 64))
        wr_ = self.wphi_reads(13)
        self.gelu_consts()
        e(f"""s_lshl_b32 s{sT0}, s{sMT}, 1
        s_lshr_b32 s{sT1}, s{sW}, 1
        s_add_u32 s{sT0}, s{sT0}, s{sT1}
        s_and_b32 s{sT1}, s{sW}, 1
        s_mul_i32 s{sT2}, s{sT0}, 74
        s_lshl_b32 s{sT2}, s{sT2}, 12
        s_lshl_b32 s{sT3}, s{sT1}, 11
        s_add_u32 s{sT2}, s{sT2}, s{sT3}
        s_add_u32 s{sT2}, s{sT2}, {A2}
        s_lshl_b32 s{sT3}, s{sKW}, 6
        s_add_u32 s{sT3}, s{sT3}, s{sT2}""")
        L = []
        for p in range(5):
            for j in range(2):
                O = 152 + 4 * ((2 * p + j) % 4)
                L += self.gelu_lines(16 + ((5 + 2 * p) * 2 + j) * 4, 16 + ((6 + 2 * p) * 2 + j) * 4, 136 + 8 * j, O)
                if j == 0:
                    if p == 4: L += [f"s_add_u32 s{sT4}, s{sT3}, {4*4096}", f"s_cmp_lt_u32 s{sHG}, 6", f"s_cselect_b32 s{sT4}, s{sT4}, {OOB}"]
                    else: L.append(f"s_add_u32 s{sT4}, s{sT3}, {p*4096}")
                L.append(('vm', f"buffer_store_dwordx4 {vr(O)}, v6, {srd(SWS)}, s{sT4} offen offset:{j*1024} sc1", 'hst'))
        mixed = []
        while side or wr_:
            if side: mixed.append(side.pop(0))
            if wr_: mixed.append(wr_.pop(0))
        self.valu(L, mixed, 6)
        for j in range(2):
            for l in self.cvt_heads(16, 56 + 10 * j, j): e(l)
        for g in mixed: self.emit_items(g)
        e("s_barrier")
        self.stamp(2)
        side = self.B_take(range(64, 64 + NL))
        e.wait(lg='wphi')
        self.valu(self.phi_mfmas(56, 76), side, 8)
        e(f"""s_lshl_b32 s{sT4}, s{sT0}, 8
        s_lshl_b32 s{sT5}, s{sHG}, 1
        s_add_u32 s{sT5}, s{sT5}, s{sT1}
        s_lshl_b32 s{sT5}, s{sT5}, 3
        s_add_u32 s{sT4}, s{sT4}, s{sT5}
        s_add_u32 s{sT4}, s{sT4}, {F4}
        s_mov_b32 s{sC0}, {fl(math.log2(math.e))}""")
        e.wait(vm='hst'); e.vmop(self.flag_store(245, 246, f"s{sT4}"), 'f4st')
        self.valu(self.softmax_lines(76, 16, 56), side, 12)
        e(f"s_lshl_b32 s{sKW}, s{sHG}, 9\ns_add_u32 s{sKW}, s{sKW}, {F3}\ns_add_u32 s{sK1}, s{sT4}, 128\nv_lshlrev_b32 v12, 3, v0\nv_mov_b32 v13, 0")
        L2 = self.softmax_lines(96, 16, 116)
        self.valu(L2[:70], side, 12)
        pl = [(12, 248, 2, f"s{sKW}"), (13, 250, 2, f"s{sK1}")]
        for p_ in pl: e.vmop(self.poll_issue(p_[0], p_[1], 2, None, p_[3]), 'pl')
        self.valu(L2[70:], side, 12)
        for g in side: self.emit_items(g)
        self.stamp(3)
        e.wait(vm='pl')
        for l in self.poll_check(pl): e(l)
        self.stamp(4)
        e(f"""s_mul_i32 s{sKW}, s{sHG}, {FSZ}
        s_mul_i32 s{sK1}, s{sW}, 1920
        s_add_u32 s{sKW}, s{sKW}, s{sK1}
        s_add_u32 s{sKW}, s{sKW}, {FIN}
        s_add_u32 m0, s{sK1}, {L_FIN}""")
        e.vmop(f"buffer_load_dwordx4 v6, {srd(SWS)}, s{sKW} offen sc1 lds", 'fin')
        e("s_mov_b32 exec_hi, 0xffffff")
        e.vmop(f"buffer_load_dwordx4 v6, {srd(SWS)}, s{sKW} offen offset:1024 sc1 lds", 'fin')
        e(f"""s_mov_b64 exec, -1
        s_lshl_b32 s{sKW}, s{sHG}, 13
        s_lshl_b32 s{sK1}, s{sMT}, 2
        s_add_u32 s{sK1}, s{sK1}, s{sW}
        s_lshl_b32 s{sK1}, s{sK1}, 7
        s_add_u32 s{sKW}, s{sKW}, s{sK1}
        s_add_u32 s{sKW}, s{sKW}, {GB}
        v_lshlrev_b32 v12, 2, v1""")
        for j in range(2): e.vmop(f"buffer_load_dword v{14+j}, v12, {srd(SWS)}, s{sKW} offen offset:{j*64} sc1", 'g')
        self.ph2_pre()
        e(f"v_lshlrev_b32 v13, 6, v2\nv_lshl_add_u32 v13, v4, 4, v13\nv_add_u32 v13, {L_FIN}, v13")
        e.wait(vm='fin'); e("s_barrier")
        mf = []; reads = []
        for fp in range(5):
            for dg in range(6):
                n = fp * 6 + dg; fr = 168 + 4 * (n % 8); m0 = len(mf)
                reads.append([f"ds_read_b128 {vr(fr)}, v13 offset:{(dg*5+fp)*256}", m0, -1, m0 - 28])
                for h in range(2):
                    for j in range(2):
                        d = (16 if j == 0 else 76) + 4 * dg; b = (56 if j == 0 else 116) + 2 * (2 * fp + h)
                        mf.append(f"v_mfma_f32_4x4x4_16b_bf16 {vr(d)}, v[{fr+2*h}:{fr+2*h+1}], v[{b}:{b+1}], {vr(d) if (fp or h) else 0}")
        mf2 = []
        for n in range(0, 30, 2):
            a_, b_ = mf[4*n:4*n+4], mf[4*n+4:4*n+8]
            mf2 += [a_[0], a_[1], b_[0], b_[1], a_[2], a_[3], b_[2], b_[3]]
        for r in reads: r[1] = (r[1] // 8) * 8 + (2 if (r[1] // 4) % 2 else 0); r[3] = (r[1] // 8) * 8 - 24
        self.stream(mf2, reads, [], None, LA=20)
        e.wait(vm='g')
        e(f"""s_lshr_b32 s{sT4}, s{sHG}, 1
        s_mul_i32 s{sT4}, s{sT4}, 5
        s_add_u32 s{sT4}, s{sT4}, 54
        s_lshl_b32 s{sT4}, s{sT4}, 12
        s_add_u32 s{sT4}, s{sT4}, s{sT2}
        s_and_b32 s{sT5}, s{sHG}, 1
        s_lshl_b32 s{sKW}, s{sT5}, 13
        s_add_u32 s{sKW}, s{sKW}, s{sT4}
        s_add_u32 s{sK1}, s{sKW}, 4096
        s_lshl_b32 s{sT5}, s{sT5}, 3
        s_add_u32 s{sT4}, s{sT4}, s{sT5}
        s_add_u32 s{sT4}, s{sT4}, {4*4096}""")
        for j in range(2):
            D = 16 if j == 0 else 76; O = 40 if j == 0 else 100
            e(f"v_add_f32 v8, {fl(1e-6)}, v{D+20}\nv_rcp_f32 v8, v8\nv_mul_f32 v8, v8, v{14+j}")
            for i in range(10): e(f"v_pk_mul_f32 v[{D+2*i}:{D+2*i+1}], v[{D+2*i}:{D+2*i+1}], v[8:9] op_sel_hi:[1,0]")
            for i in range(10): e(f"v_cvt_pk_bf16_f32 v{O+i}, v{D+2*i}, v{D+2*i+1}")
            e.vmop(f"buffer_store_dwordx4 {vr(O)}, v6, {srd(SWS)}, s{sKW} offen offset:{j*1024} sc1", 'ost')
            e.vmop(f"buffer_store_dwordx4 {vr(O+4)}, v6, {srd(SWS)}, s{sK1} offen offset:{j*1024} sc1", 'ost')
            e.vmop(f"buffer_store_dwordx2 {vr(O+8, 2)}, v6, {srd(SWS)}, s{sT4} offen offset:{j*1024} sc1", 'ost')
        e(f"""s_lshl_b32 s{sT4}, s{sT0}, 7
        s_lshl_b32 s{sT5}, s{sHG}, 1
        s_add_u32 s{sT5}, s{sT5}, s{sT1}
        s_lshl_b32 s{sT5}, s{sT5}, 3
        s_add_u32 s{sT4}, s{sT4}, s{sT5}
        s_add_u32 s{sKW}, s{sT4}, {F5}""")
        self.stamp(5)
        self.phase2([dict(at=24, ins=[('wvm', 'ost'), ('vm', self.flag_store(245, 246, f"s{sKW}"), 'f5st')])])

    def prog_KV(self):
        e = self.e; c = self.c; self.init_B()
        ST = KV_ST
        e(f"s_lshl_b32 s{sM0}, s{sW}, 12\ns_mul_i32 s{sM0+1}, s{sW}, 5120\ns_add_u32 s{sM0+1}, s{sM0+1}, 16384")
        def dma_x(st):
            g = []
            for j in range(4):
                it = [('x', f"s_add_u32 m0, s{sM0}, {(st%3)*ST}")] if j == 0 else []
                g.append(it + [('vm', f"buffer_load_dwordx4 v{208+j}, {srd(SX)}, s{sE+st} offen offset:{j*1024} lds", ('S', st))])
            return g
        def dma_w(st, i):
            it = []
            if i == 0: it = [('x', f"s_mul_i32 s{sT2}, s{sE+st}, 1920"), ('x', f"s_add_u32 m0, s{sM0+1}, {(st%3)*ST}")]
            if i == 4: it = [('x', "s_add_u32 m0, m0, 4096")]
            return it + [('vm', f"buffer_load_dwordx4 v{212+i}, {srd(SQ)}, s{sT2} offen offset:{(i%4)*1024} lds", ('S', st))]
        def dma_stage(st): return dma_x(st) + [dma_w(st, i) for i in range(5)]
        def whbase(ch): return (WH0 + ch * 8192) if ch < 5 else (WH5 + (ch - 5) * 8192)
        def dma_wh(ch):
            return [[('x', f"s_mul_i32 s{sT3}, s{sE+ch}, 1728"), ('x', f"s_add_u32 m0, s{sM0+2}, {whbase(ch)}"),
                     ('vm', f"buffer_load_dwordx4 v217, {srd(S1)}, s{sT3} offen lds", 'WH')],
                    [('vm', f"buffer_load_dwordx4 v218, {srd(S1)}, s{sT3} offen offset:1024 lds", 'WH')]]
        for g in dma_x(0): self.emit_items(g)
        e(f"""s_and_b32 s{sT0}, s{sW}, 1
        s_mul_i32 s{sT0}, s{sT0}, 320
        s_lshr_b32 s{sT1}, s{sW}, 1
        s_add_u32 s{sT1}, s{sT1}, 1
        s_mul_i32 s{sT1}, s{sT1}, 1280
        s_mul_i32 s{sT3}, s{sHG}, 160
        s_add_u32 s{sT1}, s{sT1}, s{sT3}""")
        for i in range(5):
            e(f"v_add_u32 v9, {64*i}, v0\nv_add_u32 v9, s{sT0}, v9")
            self.attn_voff(212 + i, None, sT1)
            if i % 4: e(f"v_subrev_u32 v{212+i}, {(i%4)*1024}, v{212+i}")
            self.emit_items(dma_w(0, i))
        self.common_early(KV_PACK)
        e(f"s_add_u32 s{sE+1}, s{sE}, 128\ns_cmp_eq_u32 s{sE+1}, 1280\ns_cselect_b32 s{sE+1}, 0, s{sE+1}")
        e(f"s_mov_b32 s{sAT}, s{sT2}")
        for g in dma_stage(1): self.emit_items(g)
        e(f"s_mov_b32 s{sT2}, s{sAT}")
        self.common_late()
        mk_srd(e, SM, pGATE, 1280)
        e(f"v_add_u32 v9, s{sE}, v6\nv_subrev_u32 v10, 1280, v9\nv_min_u32 v9, v9, v10\nv_add_u32 v11, 1024, v9\nv_subrev_u32 v10, 1280, v11\nv_min_u32 v11, v11, v10")
        self.small_dma(SM, 9, "0", L_GATE, 64, 'misc2'); self.small_dma(SM, 11, "0", L_GATE + 1024, 16, 'misc2')
        e("s_nop 0")
        mk_srd(e, SM, pB1, 3456)
        e(f"s_lshl_b32 s{sKW}, s{sHG}, 7\ns_add_u32 s{sKW}, s{sKW}, {19*128}")
        self.small_dma(SM, 6, f"s{sKW}", L_BIASKV, 8, 'misc2')
        e(f"s_lshl_b32 s{sM0+2}, s{sW}, 11\ns_lshl_b32 s{sT3}, s{sW}, 4")
        for pp in range(2):
            e(f"v_add_u32 v10, {8*pp}, v5\nv_add_u32 v10, s{sT3}, v10")
            self.swap23(10, 12)
            e(f"""v_lshlrev_b32 v11, 1, v2
            v_xor_b32 v11, v11, v0
            v_and_b32 v11, 7, v11
            v_mul_u32_u24 v10, 3456, v10
            v_lshl_add_u32 v10, v11, 4, v10
            v_add_u32 v10, s{sKW}, v10
            v_subrev_u32 v{217+pp}, {pp*1024}, v10""")
        self.x_addr(ST); self.rho0(8)
        e(f"v_mul_u32_u24 v9, 160, v8\nv_mad_u32_u24 v9, v4, 40, v9\nv_add_u32 v226, 16384, v9")
        for sl in (1, 2): e(f"v_add_u32 v{226+sl}, {sl*ST}, v226")
        e(f"v_lshlrev_b32 v9, 7, v8\nv_lshl_add_u32 v9, v4, 3, v9\nv_add_u32 v9, {WH0}, v9\nv_bfe_u32 v10, v8, 1, 2")
        for t in range(4): e(f"v_xor_b32 v11, {t}, v10\nv_lshl_add_u32 v{229+t}, v11, 5, v9")
        self.stamp(0)
        NS = 10; nm = NS * 4; mf = []; reads = []
        for st in range(10):
            sl = st % 3
            for t in range(NS):
                gs = st * NS + t; wr = 168 + 8 * (gs % 4); m0 = len(mf)
                for ks in range(2):
                    for rd in range(2):
                        off = (t // 5) * 10240 + ks * 5120 + rd * 1280 + (t % 5) * 8
                        reads.append([f"ds_read_b64_tr_b16 v[{wr+4*ks+2*rd}:{wr+4*ks+2*rd+1}], v{226+sl} offset:{off}", m0, st, m0 - 13])
                for j in range(2):
                    for ks in range(2):
                        xr = st * 16 + (j * 2 + ks) * 4; d = 16 + (t * 2 + j) * 4
                        if t == 0: reads.append([f"ds_read_b128 {ar(xr)}, v{220+2*sl+ks} offset:{j*2048}", len(mf), st, -1])
                        mf.append(f"v_mfma_f32_16x16x32_bf16 {vr(d)}, {vr(wr+4*ks)}, {ar(xr)}, {vr(d) if (st or ks) else 0}")
        def mksync(st):
            def f(m):
                tags = [('S', st)] + (['pkst'] if st == 3 else []) + (['packld', 'misc'] if st == 1 else []) + (['misc2'] if st == 2 else [])
                e.wait(vm=tags, lg_all=True); e("s_barrier")
                out = []
                if st + 2 < 10: out += self.paced(dma_stage(st + 2), m, nm - 6)
                else: out += self.paced(sum([dma_wh(ch) for ch in range((st - 8) * 5, (st - 7) * 5)], []), m, nm - 6)
                if st == 3: out.append(dict(at=m + 1, ins=[('vm', self.flag_store(245, 246, f"s{sF1}"), 'f1st')], force=1))
                return out
            return f
        self.stream(mf, reads, self.kloop_common_fill(nm), {st: mksync(st) for st in range(10)})
        self.stamp(1)
        self.dump('acc', range(16, 76))
        for g in self.wphi_reads(13): self.emit_items(g)
        side = self.B_take(range(0, 24))
        L = self.cvt_heads(16, 96, 0) + self.cvt_heads(16, 106, 1)
        self.valu(L, side, 5)
        e(f"""v_mul_u32_u24 v12, {RSV}, v1
        v_mad_u32_u24 v12, v2, 48, v12
        s_mul_i32 s{sT0}, s{sW}, {32*RSV}
        s_add_u32 s{sT0}, s{sT0}, {L_V}
        v_add_u32 v12, s{sT0}, v12
        v_mul_u32_u24 v13, {RSP}, v1
        s_mov_b32 s{sT0}, 80
        v_mad_u32_u24 v13, v2, s{sT0}, v13
        s_mul_i32 s{sT0}, s{sW}, {32*RSP}
        v_add_u32 v13, s{sT0}, v13""")
        e.wait(lg='wphi')
        self.valu(self.phi_mfmas(96, 128), side, 8)
        self.dump('p', list(range(128, 168)) + list(range(96, 116)))
        self.dump('w', list(range(168, 218)))
        e.wait(vm='WH'); e("s_barrier")
        for j in range(2):
            for l in self.cvt_heads(56, 116, j): e(l)
            if j == 0: e("v_mov_b32 v126, 0x3f80\nv_mov_b32 v127, 0")
            for i in range(3): e.lgop(f"ds_write_b128 v12, {vr(116+4*i)} offset:{j*16*RSV + i*16}", 'vw')
            if j == 0: e.wait(lg='vw')
        e(f"s_mov_b32 s{sC0}, {fl(math.log2(math.e))}")
        for j in range(2):
            PH = 56 + 20 * j
            self.valu(self.softmax_lines(128 + 20 * j, 16, PH), side, 12)
            for i in range(5): e.lgop(f"ds_write_b128 v13, {vr(PH+4*i)} offset:{j*16*RSP + i*16}", 'pw')
        for g in side: self.emit_items(g)
        e(f"""v_lshl_add_u32 v8, v2, 2, v3
        v_mul_u32_u24 v12, {RSP}, v8
        v_lshl_add_u32 v12, v4, 3, v12
        s_mul_i32 s{sT0}, s{sW}, 80
        v_add_u32 v12, s{sT0}, v12
        v_mul_u32_u24 v13, {RSV}, v8
        v_lshl_add_u32 v13, v4, 3, v13
        s_mul_i32 s{sT0}, s{sW}, 48
        s_add_u32 s{sT0}, s{sT0}, {L_V}
        v_add_u32 v13, s{sT0}, v13""")
        e(f"""v_lshrrev_b32 v8, 2, v1
        v_mul_u32_u24 v8, 2560, v8
        v_lshl_add_u32 v8, v4, 5, v8
        v_lshrrev_b32 v9, 1, v2
        v_lshl_add_u32 v8, v9, 9, v8
        v_and_b32 v9, 1, v2
        v_lshl_add_u32 v8, v9, 4, v8
        s_lshl_b32 s{sT0}, s{sW}, 7
        v_add_u32 v40, s{sT0}, v8
        v_add_u32 v42, 10240, v40
        v_mov_b32 v9, {OOB}
        v_cmp_ge_u32 vcc, 4, v1
        v_cndmask_b32 v42, v9, v42, vcc
        v_cmp_gt_u32 vcc, 2, v2
        v_cndmask_b32 v41, v9, v40, vcc
        v_cndmask_b32 v43, v9, v42, vcc
        s_lshl_b32 s{sT0}, s{sHG}, 4
        s_add_u32 s{sT0}, s{sT0}, s{sMT}
        s_mul_i32 s{sT1}, s{sT0}, {PSZ}
        s_add_u32 s{sT1}, s{sT1}, {PP}
        s_lshl_b32 s{sT0}, s{sT0}, 2
        s_add_u32 s{sT0}, s{sT0}, s{sW}
        s_lshl_b32 s{sT0}, s{sT0}, 3""")
        e.wait(lg_all=True); e("s_barrier")
        self.stamp(2)
        mf = []; reads = []
        for s_ in range(4):
            b0 = 128 + (s_ % 2) * 20; m0 = len(mf)
            for dt in range(2):
                for rd in range(2): reads.append([f"ds_read_b64_tr_b16 v[{b0+12+4*dt+2*rd}:{b0+13+4*dt+2*rd}], v13 offset:{(32*s_+16*rd)*RSV + dt*32}", m0 + dt, -1, m0 - 7])
            for ft in range(3):
                for rd in range(2): reads.append([f"ds_read_b64_tr_b16 v[{b0+4*ft+2*rd}:{b0+4*ft+2*rd+1}], v12 offset:{(32*s_+16*rd)*RSP + ft*32}", m0 + 2 * ft, -1, m0 - 7])
                for dt in range(2):
                    d = 16 + (ft * 2 + dt) * 4
                    mf.append(f"v_mfma_f32_16x16x32_bf16 {vr(d)}, {vr(b0+4*ft)}, {vr(b0+12+4*dt)}, {vr(d) if s_ else 0}")
        for r in reads[:10]: e.lgop(r[0], 'kv0')
        e.wait(lg='kv0')
        for r in reads[10:20]: e.lgop(r[0], 'kv1')
        for l in mf[:6]: e(l)
        e.wait(lg='kv1')
        for s_ in (2, 3):
            for r in reads[10*s_:10*s_+10]: e.lgop(r[0], 'kv1')
            for l in mf[6*(s_-1):6*s_]: e(l)
            e.wait(lg='kv1')
        e("s_barrier")
        e(f"v_lshlrev_b32 v9, 3, v2\nv_add_u32 v9, {L_BIASKV}, v9\nv_lshlrev_b32 v233, 4, v2\nv_add_u32 v233, {L_GATE}, v233")
        for s_ in range(4): e.lgop(f"ds_read_b64 v[{128+2*s_}:{129+2*s_}], v9 offset:{s_*32}", 'b')
        for l in mf[18:24]: e(l)
        e.wait(lg='b')
        for s_ in range(4):
            for h in range(2): e(f"v_lshlrev_b32 v{96+8*s_+2*h}, 16, v{128+2*s_+h}\nv_and_b32 v{97+8*s_+2*h}, 0xffff0000, v{128+2*s_+h}")
        for ft in range(3):
            for dt in range(2):
                e.vmop(f"buffer_store_dwordx4 {vr(16+(ft*2+dt)*4)}, v{40+2*dt+(ft==2)}, {srd(SWS)}, s{sT1} offen offset:{ft*1024} sc1", 'pst')
        self.stamp(3)
        mf = []; reads = []; nm = 20
        for st in range(10):
            for t in range(5):
                gs = st * 4 + t; wr = 168 + 8 * (gs % 4) if t < 4 else 200 + 8 * (st % 2); m0 = len(mf)
                for ks in range(2):
                    if t < 4:
                        for rd in range(2):
                            reads.append([f"ds_read_b64_tr_b16 v[{wr+4*ks+2*rd}:{wr+4*ks+2*rd+1}], v{(229 if st < 5 else 220)+t} offset:{(st%5)*8192 + ks*4096 + rd*1024}", m0, -1, m0 - 13])
                    else: reads.append([f"ds_read_b128 {vr(wr+4*ks)}, v233 offset:{(st*2+ks)*64}", m0, -1, m0 - 20])
                jo = (1, 0) if st == 0 else (0, 1)
                for j in jo:
                    for ks in range(2):
                        xr = st * 16 + (j * 2 + ks) * 4; d = 96 + (t * 2 + j) * 4; cc = vr(d)
                        if st == 0 and ks == 0: cc = vr(96 + t * 8) if t < 4 else "0"
                        mf.append(f"v_mfma_f32_16x16x32_bf16 {vr(d)}, {vr(wr+4*ks)}, {ar(xr)}, {cc}")
        for t in range(4): e(f"v_subrev_u32 v{220+t}, {WH0-WH5}, v{229+t}")
        fill = []
        lds_items = self.B_take(range(64, 64 + NL))
        fill += self.paced(lds_items[:9], 2, 18)
        bcur = self.Bcur
        xs = []
        seq = []
        for st in range(9):
            seq.append((20 * (st + 1), list(range(24 + 4 * st, 28 + 4 * st))))
        rest = lds_items[9:]
        self.Bcur = None
        fill = []
        order = [(2 + 2 * k, 64 + k) for k in range(9)]
        for st in range(9):
            for k in range(4): order.append((20 * (st + 1) + 1 + 4 * k, 24 + 4 * st + k))
            order.append((20 * (st + 1) + 17, 64 + 9 + st))
        for at, u in order: fill.append(dict(at=at, ins=self.B_take([u])[0]))
        fill.append(dict(at=70, ins=[('x', f"s_add_u32 s{sT2}, s{sT0}, {F2}"), ('wvm', 'pst'), ('vm', self.flag_store(245, 246, f"s{sT2}"), 'f2st')]))
        fill.append(dict(at=170, ins=[('x', f"s_lshl_b32 s{sT3}, s{sHG}, 9"), ('x', f"s_add_u32 s{sT3}, s{sT3}, {F2}"), ('x', "v_lshlrev_b32 v12, 3, v0"),
                                      ('vm', self.poll_issue(12, 248, 2, None, f"s{sT3}"), 'pl')]))
        fill.sort(key=lambda f: f['at'])
        self.stream(mf, reads, fill, None)
        self.stamp(4)
        side = self.B_take(range(60, 64))
        e.wait(vm='pl')
        for l in self.poll_check([(12, 248, 2, f"s{sT3}")]): e(l)
        self.stamp(14)
        e(f"""v_mul_u32_u24 v8, {PSZ}, v2
        v_lshl_add_u32 v8, v1, 4, v8
        v_mov_b32 v9, {OOB}
        v_cmp_gt_u32 vcc, 15, v1
        v_cndmask_b32 v8, v9, v8, vcc
        v_lshlrev_b32 v10, 3, v1
        v_cmp_gt_u32 vcc, 15, v0
        v_cndmask_b32 v10, v9, v10, vcc
        v_lshlrev_b32 v11, 2, v1
        v_cmp_gt_u32 vcc, 16, v0
        v_cndmask_b32 v11, v9, v11, vcc
        s_lshl_b32 s{sT2}, s{sMT}, 2
        s_add_u32 s{sT2}, s{sT2}, s{sW}
        s_mul_i32 s{sT3}, s{sT2}, 240
        s_mul_i32 s{sT4}, s{sHG}, {16*PSZ}
        s_add_u32 s{sT3}, s{sT3}, s{sT4}
        s_add_u32 s{sT3}, s{sT3}, {PP}""")
        for i in range(4):
            e.vmop(f"buffer_load_dwordx4 {vr(16+4*i)}, v8, {srd(SWS)}, s{sT3} offen sc1", 'pld')
            if i < 3: e(f"s_add_u32 s{sT3}, s{sT3}, {4*PSZ}")
        e(f"""s_mov_b32 s{sC0}, {fl(-math.log2(math.e))}
        v_mul_f32 v128, s{sC0}, v128
        v_mul_f32 v132, s{sC0}, v132
        v_exp_f32 v128, v128
        v_exp_f32 v132, v132
        s_lshl_b32 s{sT3}, s{sT2}, 7
        v_add_f32 v128, 1.0, v128
        v_add_f32 v132, 1.0, v132
        v_rcp_f32 v128, v128
        v_rcp_f32 v132, v132
        s_lshl_b32 s{sT4}, s{sHG}, 13
        s_add_u32 s{sT3}, s{sT3}, s{sT4}
        s_add_u32 s{sT3}, s{sT3}, {GB}""")
        for j in range(2): e.vmop(f"buffer_store_dword v{128+4*j}, v11, {srd(SWS)}, s{sT3} offen offset:{j*64} sc1", 'hst')
        self.gelu_consts()
        e(f"""s_lshl_b32 s{sT4}, s{sMT}, 1
        s_lshr_b32 s{sT5}, s{sW}, 1
        s_add_u32 s{sT4}, s{sT4}, s{sT5}
        s_and_b32 s{sT5}, s{sW}, 1
        s_mul_i32 s{sT3}, s{sT4}, 74
        s_lshl_b32 s{sKW}, s{sHG}, 1
        s_add_u32 s{sT3}, s{sT3}, s{sKW}
        s_add_u32 s{sT3}, s{sT3}, 38
        s_lshl_b32 s{sT3}, s{sT3}, 12
        s_lshl_b32 s{sK1}, s{sT5}, 11
        s_add_u32 s{sT3}, s{sT3}, s{sK1}
        s_add_u32 s{sT3}, s{sT3}, {A2}
        s_add_u32 s{sKW}, s{sKW}, s{sT5}
        s_lshl_b32 s{sKW}, s{sKW}, 3
        s_lshl_b32 s{sT4}, s{sT4}, 8
        s_add_u32 s{sKW}, s{sKW}, s{sT4}
        s_add_u32 s{sKW}, s{sKW}, {F4+128}""")
        L = []
        for p in range(2):
            for j in range(2):
                O = 152 + 4 * ((2 * p + j) % 4)
                L += self.gelu_lines(96 + (4 * p + j) * 4, 96 + (4 * p + 2 + j) * 4, 136 + 8 * j, O)
                if j == 0 and p == 1: L.append(f"s_add_u32 s{sT3}, s{sT3}, 4096")
                L.append(('vm', f"buffer_store_dwordx4 {vr(O)}, v6, {srd(SWS)}, s{sT3} offen offset:{j*1024} sc1", 'hst'))
        self.valu(L, side, 10)
        for g in side: self.emit_items(g)
        e.wait(vm='pld')
        e("""v_pk_add_f32 v[16:17], v[16:17], v[20:21]
        v_pk_add_f32 v[18:19], v[18:19], v[22:23]
        v_pk_add_f32 v[24:25], v[24:25], v[28:29]
        v_pk_add_f32 v[26:27], v[26:27], v[30:31]
        v_pk_add_f32 v[16:17], v[16:17], v[24:25]
        v_pk_add_f32 v[18:19], v[18:19], v[26:27]""")
        for sw in ('32', '16'):
            for i in range(4): e(f"v_mov_b32 v{20+i}, v{16+i}")
            for i in range(4): e(f"v_permlane{sw}_swap_b32 v{16+i}, v{20+i}")
            e("v_pk_add_f32 v[16:17], v[16:17], v[20:21]\nv_pk_add_f32 v[18:19], v[18:19], v[22:23]")
        e(f"""v_cvt_pk_bf16_f32 v16, v16, v17
        v_cvt_pk_bf16_f32 v17, v18, v19
        s_mul_i32 s{sT2}, s{sT2}, 120
        s_mul_i32 s{sT3}, s{sHG}, {FSZ}
        s_add_u32 s{sT2}, s{sT2}, s{sT3}
        s_add_u32 s{sT2}, s{sT2}, {FIN}
        s_add_u32 s{sK1}, s{sT0}, {F3}""")
        e.vmop(f"buffer_store_dwordx2 v[16:17], v10, {srd(SWS)}, s{sT2} offen sc1", 'hst')
        self.stamp(5)
        self.ph2_pre()
        e.wait(vm='hst')
        e.vmop(self.flag_store(245, 246, f"s{sK1}"), 'f3st'); e.vmop(self.flag_store(245, 246, f"s{sKW}"), 'f4st')
        e("s_barrier")
        self.phase2([])

    def ph2_pre(self):
        e = self.e
        mk_srd(e, SM, pB2, 1280); mk_srd(e, SPK, pOUT, 2048 * 1280)
        e(f"""s_mul_i32 s{sM0}, s{sNB}, 160
        s_and_b32 s{sM0+1}, s{sNB}, 1
        s_lshl_b32 s{sM0+2}, s{sM0+1}, 5
        s_add_u32 s{sM0+2}, s{sM0+2}, s{sM0}
        s_cmp_eq_u32 s{sM0+1}, 0
        s_cselect_b32 s{sM0+1}, 128, 0
        s_add_u32 s{sM0+1}, s{sM0+1}, s{sM0}
        s_cmp_eq_u32 s{sW}, 0
        s_cselect_b32 s{SM+2}, s{SM+2}, 0
        s_lshl_b32 s{sM0+3}, s{sRB}, 8
        s_add_u32 s{sM0+3}, s{sM0+3}, {F4}
        s_add_u32 s{sM0+4}, s{sM0+3}, 128
        s_lshl_b32 s{sM0+5}, s{sRB}, 7
        s_add_u32 s{sM0+5}, s{sM0+5}, {F5}
        v_lshlrev_b32 v7, 4, v2
        v_lshlrev_b32 v234, 3, v2
        v_lshlrev_b32 v235, 3, v1""")
        e.vmop(f"buffer_load_dwordx4 v[224:227], v7, {srd(SM)}, s{sM0+2} offen", 'b2')
        e.vmop(f"buffer_load_dwordx4 v[228:231], v7, {srd(SM)}, s{sM0+2} offen offset:64", 'b2')
        e.vmop(f"buffer_load_dwordx2 v[232:233], v234, {srd(SM)}, s{sM0+1} offen", 'b2')
        e.vmop(self.poll_issue(235, 252, 2, None, f"s{sM0+3}"), 'p4a')

    def phase2(self, extra):
        e = self.e; c = self.c
        ACC = 16; BI = 96
        e.wait(vm='p4a')
        for l in self.poll_check([(235, 252, 2, f"s{sM0+3}")]): e(l)
        self.stamp(6)
        pool = [('v', r) for r in list(range(200, 224, 4)) + list(range(136, 200, 4)) + list(range(116, 136, 4))]
        Aloc = {}; Bl = dict(self.Bloc)
        groups = [(0, 1), (2, 3), (4, 5), (6, 7), (8, 9), (10, 11), (12, 13), (14, 15), (16, 17), (18,)]
        mf = []
        for g in groups:
            for t in range(5):
                for j in range(4):
                    for i in g: mf.append((i, t, j))
        NM = len(mf)
        firstA = {}; lastA = {}; firstB = {}; lastB = {}
        for m, (i, t, j) in enumerate(mf):
            firstA.setdefault((i, j), m); lastA[(i, j)] = m; firstB.setdefault((i, t), m); lastB[(i, t)] = m
        mtrans = min(m for m, x in enumerate(mf) if x[0] >= 14)
        work = [('A', k, firstA[k]) for k in firstA]
        work += [('S', k, firstB[k]) for k in firstB if Bl[k] and Bl[k][0] == 'l']
        work += [('B', k, firstB[k] - 30) for k in firstB if Bl[k] is None]
        work.sort(key=lambda w: w[2])
        gate = {0: True, 1: False, 2: False}
        cls = lambda i: 0 if i < 10 else (1 if i < 14 else 2)
        e(f"s_add_u32 s{sT0}, s88, {L_BL}\nv_add_u32 v234, s{sT0}, v6")
        def issue(w):
            kind, k, _ = w
            loc = pool.pop(0)
            if kind == 'A':
                i, j = k
                if self.Acur != i:
                    e(f"s_mov_b32 s{sAT}, s{sA9}" if i == 9 else f"s_add_u32 s{sAT}, s{sA}, {self.koff(i)*4096}"); self.Acur = i
                e.vmop(f"buffer_load_dwordx4 {R(loc)}, v{236+j}, {srd(SWS)}, s{sAT} offen sc1", ('A', k)); Aloc[k] = loc
            elif kind == 'B':
                self.emit_items(self.B_items(k, loc)); Bl[k] = loc
            else:
                e.wait(vm=('B', k))
                e.lgop(f"ds_read_b128 {R(loc)}, v234 offset:{Bl[k][1]*1024}", ('S', k)); Bl[k] = loc
        def pick(m):
            for w in work:
                if w[0] == 'A' and not gate[cls(w[1][0])]: continue
                if w[0] == 'S' and w[2] - m > 16: continue
                if w[0] == 'B' and len(pool) < 6: continue
                if w[0] == 'A' and len(pool) < (3 if w[2] - m > 40 else 1): continue
                return w
            return None
        for _ in range(12):
            w = pick(0); work.remove(w); issue(w)
        e.wait(vm='b2')
        for t in range(5):
            for h in range(2):
                s_ = 224 + 2 * t + h
                e(f"v_lshlrev_b32 v{BI+4*t+2*h}, 16, v{s_}\nv_and_b32 v{BI+4*t+2*h+1}, 0xffff0000, v{s_}")
        pool += [('v', r) for r in (224, 228)]
        fq = sorted(extra, key=lambda f: f['at'])
        P1, C1, P2, C2 = c.p1, c.c1, c.p2, c.c2
        seen = set()
        for m, (i, t, j) in enumerate(mf):
            if m == mtrans:
                e.wait(vm='g')
                for jj in range(4): e(f"v_sub_f32 v{240+jj+1 if False else 8+2*jj}, 1.0, v{241+jj}")
                for tt in range(5):
                    for jj in range(4):
                        d = ACC + (jj * 5 + tt) * 4
                        for h in range(2): e(f"v_pk_mul_f32 v[{d+2*h}:{d+2*h+1}], v[{d+2*h}:{d+2*h+1}], v[{8+2*jj}:{9+2*jj}] op_sel_hi:[1,0]")
                self.stamp(7)
            assert (i, j) in Aloc and Bl[(i, t)] and Bl[(i, t)][0] != 'l', (m, i, t, j)
            e.wait(vm=[('A', (i, j)), ('B', (i, t))], lg=('S', (i, t)))
            d = ACC + (j * 5 + t) * 4
            cc = vr(d) if (j, t) in seen else vr(BI + 4 * t); seen.add((j, t))
            e(f"v_mfma_f32_16x16x32_bf16 {vr(d)}, {R(Bl[(i, t)])}, {R(Aloc[(i, j)])}, {cc}")
            if lastA[(i, j)] == m: pool.append(Aloc[(i, j)])
            if lastB[(i, t)] == m: pool.append(Bl[(i, t)])
            if m == 40: pool.extend([('v', BI + 4 * k) for k in range(5)])
            if m == P1: e.vmop(self.poll_issue(235, 252, 2, None, f"s{sM0+4}"), 'p4b'); continue
            if m == C1:
                self.stamp(10)
                e.wait(vm='p4b')
                for l in self.poll_check([(235, 252, 2, f"s{sM0+4}")]): e(l)
                self.stamp(11)
                gate[1] = True
                e(f"s_lshl_b32 s{sT0}, s{sRB}, 8\ns_add_u32 s{sT0}, s{sT0}, {GB}\nv_lshlrev_b32 v7, 2, v1")
                for jj in range(4):
                    e(f"v_subrev_u32 v8, v6, v{236+jj}\nv_lshrrev_b32 v8, 4, v8\nv_add_u32 v8, v8, v7")
                    e.vmop(f"buffer_load_dword v{241+jj}, v8, {srd(SWS)}, s{sT0} offen sc1", 'g')
                continue
            if m == P2: e.vmop(self.poll_issue(235, 254, 2, None, f"s{sM0+5}"), 'p5'); continue
            if m == C2:
                self.stamp(12)
                e.wait(vm='p5')
                for l in self.poll_check([(235, 254, 2, f"s{sM0+5}")]): e(l)
                self.stamp(13)
                gate[2] = True; continue
            if fq and fq[0]['at'] <= m:
                self.emit_items(fq.pop(0)['ins']); continue
            w = pick(m)
            if w and pool: work.remove(w); issue(w)
        assert not work, work
        self.stamp(8)
        for jj in range(1, 4):
            e(f"""s_add_u32 s{sT0}, s{sW}, {jj}
            s_and_b32 s{sT0}, s{sT0}, 3
            s_mul_i32 s{sT0}, s{sT0}, 15360
            s_add_u32 s{sT0}, s{sT0}, {L_RED + (jj-1)*5120}
            v_add_u32 v{8+jj}, s{sT0}, v6""")
        e(f"s_mul_i32 s{sT0}, s{sW}, 15360\ns_add_u32 s{sT0}, s{sT0}, {L_RED}\nv_add_u32 v8, s{sT0}, v6")
        for t in range(5):
            for jj in range(1, 4): e.lgop(f"ds_write_b128 v{8+jj}, {vr(ACC+(jj*5+t)*4)} offset:{t*1024}", 'rw')
        e(f"""s_lshl_b32 s{sT0}, s{sRB}, 2
        s_add_u32 s{sT0}, s{sT0}, s{sW}
        s_mul_i32 s{sT0}, s{sT0}, {16*1280}
        s_add_u32 s{sT1}, s{sT0}, s{sM0+2}
        s_add_u32 s{sT2}, s{sT0}, s{sM0+1}
        v_mul_u32_u24 v12, 1280, v1
        v_lshl_add_u32 v13, v2, 3, v12
        v_lshl_add_u32 v12, v2, 4, v12""")
        e.wait(lg_all=True); e("s_barrier")
        for t in range(5):
            for s_ in range(3): e.lgop(f"ds_read_b128 {vr(116+(t*3+s_)*4)}, v8 offset:{s_*5120+t*1024}", ('rr', t))
        for t in range(5):
            e.wait(lg=('rr', t)); d = ACC + t * 4; r = 116 + t * 12
            e(f"""v_pk_add_f32 v[{d}:{d+1}], v[{d}:{d+1}], v[{r}:{r+1}]
            v_pk_add_f32 v[{d+2}:{d+3}], v[{d+2}:{d+3}], v[{r+2}:{r+3}]
            v_pk_add_f32 v[{r+4}:{r+5}], v[{r+4}:{r+5}], v[{r+8}:{r+9}]
            v_pk_add_f32 v[{r+6}:{r+7}], v[{r+6}:{r+7}], v[{r+10}:{r+11}]
            v_pk_add_f32 v[{d}:{d+1}], v[{d}:{d+1}], v[{r+4}:{r+5}]
            v_pk_add_f32 v[{d+2}:{d+3}], v[{d+2}:{d+3}], v[{r+6}:{r+7}]
            v_cvt_pk_bf16_f32 v{96+2*t}, v{d}, v{d+1}
            v_cvt_pk_bf16_f32 v{97+2*t}, v{d+2}, v{d+3}""")
            if t == 1: e.vmop(f"buffer_store_dwordx4 v[96:99], v12, {srd(SPK)}, s{sT1} offen", 'o')
            if t == 3: e.vmop(f"buffer_store_dwordx4 v[100:103], v12, {srd(SPK)}, s{sT1} offen offset:64", 'o')
            if t == 4: e.vmop(f"buffer_store_dwordx2 v[104:105], v13, {srd(SPK)}, s{sT2} offen", 'o')
        self.stamp(9)
        e("s_endpgm")

    def build(self):
        e = self.e
        self.prologue()
        st = (list(e.vm), list(e.lg))
        self.prog_KV()
        e.vm, e.lg = list(st[0]), list(st[1])
        self.prog_QH()
        e("\n".join(self.tail))
        e("L_end:\ns_endpgm")
        body = e.finish()
        hdr = open('cdna_kernels/' + NAME + '.s.ref').read().split('; Override launch')[0]
        K = NAME + "_kernel"
        out = hdr + "; Generated by a hand-written Python generator (persistent fused kernel; see comments in the generator).\n"
        out += "; @launch grid=(256,1,1) block=(256,1,1) lds=163840\n"
        out += f'.amdgcn_target "amdgcn-amd-amdhsa--gfx950"\n.text\n.globl {K}\n.p2align 8\n.type {K},@function\n{K}:\n' + body
        out += f""".fill 64, 4, 0xbf800000
.section .rodata,"a"
.p2align 6
.amdhsa_kernel {K}
  .amdhsa_next_free_vgpr 512
  .amdhsa_next_free_sgpr 102
  .amdhsa_accum_offset 256
  .amdhsa_group_segment_fixed_size 0
  .amdhsa_kernarg_size 104
  .amdhsa_user_sgpr_count 2
  .amdhsa_user_sgpr_kernarg_segment_ptr 1
  .amdhsa_system_sgpr_workgroup_id_x 1
.end_amdhsa_kernel
"""
        return out

Cfg.p1 = 60; Cfg.c1 = 100; Cfg.p2 = 170; Cfg.c2 = 210

def generate(**kw):
    c = Cfg()
    for k, v in kw.items(): setattr(c, k, v)
    g = Gen(c); t = g.build()
    return t, g

if __name__ == "__main__":
    kw = {}
    for a_ in sys.argv[2:]:
        k, v = a_.split('='); kw[k] = int(v, 0) if v[0].isdigit() else v
    t, g = generate(**kw)
    open(sys.argv[1], 'w').write(t)
    print("instructions:", len(g.e.ins), "nops added:", g.e.nop_added)
```

```python
import sys, math
from emit import Emit
NAME = "gated_mix__linear_kernel_hedgehog__dense_activation_gelu__prompt"

TAG = 0x0
F1 = 0x1000
F2 = 0x2000; F3 = 0x6000; F4 = 0xa000; F5 = 0x12000
STAMP = 0x1000000
GB = 0x20000
PP = 0x40000; PSZ = 15360
FIN = 0x240000; FSZ = 7680
PB = 0x300000
A2 = 0x600000
OOB = 0x7ff00000

K1 = 1024
QH_ST = 46 * K1; KV_ST = 36 * K1
MISC = 154 * K1
L_WPHI = MISC; L_GATE = MISC + 3200; L_BIASKV = MISC + 4480; L_BIASQH = MISC + 3200
QH_PACK = 138 * K1; KV_PACK = 114 * K1
WH0 = 114 * K1; WH5 = 74 * K1
L_PHI = 0; RSP = 352; L_V = 128 * RSP; RSV = 224
L_BL = 0
NL = 18
L_RED = 80 * K1
L_FIN = 140 * K1

sW = 3
SX, SQ, S1, SWS, SPK, SM = 4, 8, 12, 16, 20, 24
pX, pQKV, pPHI, pWO, pBX, pW1, pB1, pW2, pB2, pGATE, pOUT, pDBG, pWS = [32 + 2 * i for i in range(13)]
sTAG = 58
sMT, sHG, sRB, sNB = 60, 61, 62, 63
sE = 64
sT0, sT1, sT2, sT3, sT4, sT5 = 74, 75, 76, 77, 78, 79
sM0 = 80
sBT, sAT, sB9, sA9 = 100, 101, 86, 87
sKW, sK1 = 89, 90
sF1 = 91
sPKD = 92
sA, sB = 96, 97
sC0, sC1 = 98, 99
sP0 = 28

def srd(r): return f"s[{r}:{r+3}]"
def vr(r, n=4): return f"v[{r}:{r+n-1}]" if n > 1 else f"v{r}"
def ar(r, n=4): return f"a[{r}:{r+n-1}]"
def R(loc, n=4): return (vr if loc[0] == 'v' else ar)(loc[1], n)
def fl(x):
    import struct
    return hex(struct.unpack('<I', struct.pack('<f', x))[0])

class Cfg:
    rot = 1; map2 = 1; stamps = 0; LA = 12; spin = 200000; codepf = 1; lag = 2; th1 = 2; th2 = 4; minlead = 4; verbose = 0; sleep = 3

sKA, sKB = 0, 1
def mk_srd(e, r, p, nbytes):
    e(f"s_mov_b32 s{r}, s{p}\ns_and_b32 s{r+1}, s{p+1}, 0xffff\ns_mov_b32 s{r+2}, {nbytes}\ns_mov_b32 s{r+3}, 0x20000")

class Gen:
    def __init__(self, cfg):
        self.c = cfg; self.e = Emit(); self.tail = []; self.uid = 0; self.nstamp = 0
    def record(self, fn):
        real = self.e
        class Rec:
            def __init__(r): r.items = []; r.lg = []; r.vm = []
            def __call__(r, t):
                for l in t.strip("\n").split("\n"):
                    if l.strip(): r.items.append(('x', l.strip()))
            def vmop(r, t, tag=None): r.items.append(('vm', t, tag))
            def lgop(r, t, tag=None): r.items.append(('lg', t, tag))
        rec = Rec(); self.e = rec
        try: fn()
        finally: self.e = real
        return rec.items
    def lab(self, p):
        self.uid += 1; return f"L_{p}_{self.uid}"
    def stamp(self, i, grp=1):
        if not self.c.stamps or (i and self.c.stamps != grp): return
        e = self.e
        e(f"s_memrealtime s[{sC0}:{sC1}]\ns_memtime s[30:31]\ns_waitcnt lgkmcnt(0)"); e.lg = []
        e(f"v_mov_b32 v14, s{sC0}\nv_mov_b32 v15, s30")
        e(f"s_lshl_b32 s{sC0}, s2, 2\ns_add_u32 s{sC0}, s{sC0}, s{sW}\ns_lshl_b32 s{sC0}, s{sC0}, 7\ns_add_u32 s{sC0}, s{sC0}, {STAMP}")
        e.vmop(f"buffer_store_dwordx2 v[14:15], v245, {srd(SWS)}, s{sC0} offen offset:{i*8}", 'stamp')
        if i == 0:
            e(f"v_mov_b32 v14, s54\nv_mov_b32 v15, s40")
            e.vmop(f"buffer_store_dwordx2 v[14:15], v245, {srd(SWS)}, s{sC0} offen offset:{15*8}", 'stamp')

    def dump(self, name, regs):
        if getattr(self.c, 'dbg', None) != name: return
        e = self.e
        e(f"s_lshl_b32 s{sBT}, s2, 2\ns_add_u32 s{sBT}, s{sBT}, s{sW}\ns_lshl_b32 s{sBT}, s{sBT}, 14\ns_add_u32 s{sBT}, s{sBT}, 0x2000000\nv_lshlrev_b32 v7, 2, v0")
        for i, r in enumerate(regs):
            e.vmop(f"buffer_store_dword v{r}, v7, {srd(SWS)}, s{sBT} offen offset:{(i%16)*256}", 'dbg')
            if i % 16 == 15: e(f"s_add_u32 s{sBT}, s{sBT}, 4096")
        e.wait(vm='dbg'); self.Bcur = None

    def poll_issue(self, vaddr, vdst, n, tag, soff="0"):
        suf = {2: 'dwordx2', 4: 'dwordx4'}[n]
        return f"buffer_load_{suf} {vr(vdst, n)}, v{vaddr}, {srd(SWS)}, {soff} offen sc1"
    def poll_check(self, loads):
        Ls, Lb = self.lab('slow'), self.lab('back')
        cmps = []; ors = []; k = 0
        prs = ['vcc', 's[28:29]', 's[30:31]', 's[40:41]']
        for (va, vd, n, so) in loads:
            for h in range(n // 2):
                cmps.append(f"v_cmp_ne_u64 {prs[k]}, s[{sTAG}:{sTAG+1}], v[{vd+2*h}:{vd+2*h+1}]")
                if k: ors.append(f"s_or_b64 vcc, vcc, {prs[k]}")
                k += 1
        cmps = cmps[::-1] if False else cmps
        fast = cmps + ors + [f"s_cbranch_vccnz {Ls}\n{Lb}:"]
        t = [f"{Ls}:", f"s_mov_b32 s54, {self.c.spin}", f"{Ls}_l:"]
        if self.c.sleep: t.append(f"s_sleep {self.c.sleep}")
        for (va, vd, n, so) in loads: t.append(self.poll_issue(va, vd, n, None, so))
        t += ["s_waitcnt vmcnt(0)"] + cmps + ors
        t += ["s_sub_u32 s54, s54, 1", f"s_cbranch_vccz {Ls}_x", "s_cmp_lg_u32 s54, 0", f"s_cbranch_scc1 {Ls}_l", f"{Ls}_x:", "s_nop 4", f"s_branch {Lb}"]
        self.tail += t
        return fast
    def flag_store(self, vaddr, vtag, soff="0"):
        return f"buffer_store_dwordx2 {vr(vtag, 2)}, v{vaddr}, {srd(SWS)}, {soff} offen sc1"

    def stream(self, mf, reads, fill, syncs=None, LA=None, name=''):
        e = self.e; LA = LA or self.c.LA
        reads = sorted(reads, key=lambda r: r[1]); rp = 0; synced = -1 if syncs else 99
        fq = sorted(fill, key=lambda f: f['at'])
        self.sid = getattr(self, 'sid', 0) + 1; sid = self.sid
        start = len(e.ins)
        def add_fill(items):
            lo = max([f['at'] for f in fq if f.get('chain')], default=-99)
            for f in items:
                if f.get('chain'): f['at'] = lo = max(f['at'], lo)
            fq.extend(items); fq.sort(key=lambda f: f['at'])
        def rd():
            nonlocal rp
            e.lgop(reads[rp][0], ('rd', sid, rp)); rp += 1
        if syncs: add_fill(syncs[0](0)); synced = 0
        while rp < len(reads) and reads[rp][1] < 8 and reads[rp][2] <= synced: rd()
        last_read = -99
        dl_of = {('rd', sid, i): r[1] for i, r in enumerate(reads)}
        def due(m): return [t for t in e.lg if t in dl_of and dl_of[t] <= m]
        ismem = lambda it: it[0] in ('vm', 'lg')
        for m in range(len(mf)):
            d = due(m)
            if d: e.wait(lg=d)
            e(mf[m])
            can = lambda: rp < len(reads) and reads[rp][2] <= synced and reads[rp][3] <= m and len(e.lg) < 15
            lead = lambda: reads[rp][1] - m
            if syncs and rp < len(reads) and reads[rp][2] > synced and m - last_read >= self.c.lag and lead() <= LA:
                synced = reads[rp][2]
                assert not any(it[0] == 'vm' and it[2] == ('S', synced) for f in fq for it in f['ins'])
                add_fill(syncs[synced](m + 1))
                if can(): rd(); last_read = m
                continue
            w = 1 if due(m + 1) else 0
            n = w; mem = 0
            if fq and fq[0]['at'] <= m:
                f = fq[0]
                if f.get('atomic'):
                    self.emit_items(f['ins']); n += len(f['ins']); mem += sum(map(ismem, f['ins'])); fq.pop(0)
                elif ismem(f['ins'][0]):
                    self.emit_items([f['ins'].pop(0)]); n += 1; mem += 1
                    if not f['ins']: fq.pop(0)
            if can() and lead() <= LA and (mem == 0 or (lead() <= LA - self.c.th1 and not w)):
                rd(); n += 1; mem += 1; last_read = m
            if can() and mem == 1 and not w and lead() <= LA - self.c.th2:
                rd(); n += 1; mem += 1
            while can() and lead() <= self.c.minlead: rd(); n += 1; mem += 1; last_read = m
            while (n < 2 or (fq and fq[0]['at'] <= m - 2 and n < 3)) and fq and fq[0]['at'] <= m + 2 and not fq[0].get('atomic') and not ismem(fq[0]['ins'][0]):
                f = fq[0]; self.emit_items([f['ins'].pop(0)]); n += 1
                if not f['ins']: fq.pop(0)
            assert rp >= len(reads) or reads[rp][1] > m + 1, (m, reads[rp])
        for f in fq: self.emit_items(f['ins'])
        if self.c.verbose:
            tot = 0; g = None
            for i in e.ins[start:]:
                if i.label: continue
                if i.kind == 'mfma':
                    if g is not None: tot += max(16, g)
                    g = 8; prevmem = False
                elif g is not None:
                    mm = i.kind in ('dsr', 'dsw', 'vload', 'vstore', 'dma')
                    g += 8 if (mm and prevmem) else 4; prevmem = mm
            print(f"stream {name}: {len(mf)} mfma, est clks {tot} (ideal {16*len(mf)})")

    def prologue(self):
        e = self.e; c = self.c
        if c.stamps: e("s_memrealtime s[54:55]\ns_memtime s[98:99]")
        e(f"""s_cmp_ge_u32 s2, 256
        s_cbranch_scc1 L_end
        s_load_dwordx16 s[32:47], s[0:1], 0
        s_load_dwordx4 s[48:51], s[0:1], 64
        s_load_dwordx2 s[52:53], s[0:1], 80
        s_load_dwordx2 s[56:57], s[0:1], 96""")
        if c.codepf:
            e(f"""s_getpc_b64 s[{sA}:{sB}]
            L_pf:
            s_lshr_b32 s{sT0}, s2, 3
            s_lshl_b32 s{sT0}, s{sT0}, 11
            v_lshrrev_b32 v1, 4, v0
            v_lshlrev_b32 v1, 7, v1
            v_add_u32 v1, s{sT0}, v1
            v_cmp_gt_u32 vcc, L_end-L_pf, v1
            v_cndmask_b32 v1, 0, v1, vcc""")
            e.vmop(f"global_load_dword v244, v1, s[{sA}:{sB}]", 'pf')
        e(f"""v_lshrrev_b32 v1, 6, v0
        v_and_b32 v0, 63, v0
        s_and_b32 s{sT0}, s2, 7
        v_readfirstlane_b32 s{sW}, v1
        s_lshr_b32 s{sT1}, s2, 3
        s_lshr_b32 s{sT2}, s{sT0}, 1
        s_and_b32 s{sT3}, s{sT1}, 3
        s_lshl_b32 s{sMT}, s{sT2}, 2
        s_add_u32 s{sMT}, s{sMT}, s{sT3}
        s_lshr_b32 s{sT4}, s{sT1}, 2
        s_and_b32 s{sHG}, s{sT0}, 1
        s_lshl_b32 s{sHG}, s{sHG}, 2
        s_and_b32 s{sT5}, s{sT4}, 3
        s_add_u32 s{sHG}, s{sHG}, s{sT5}""")
        if c.rot:
            e(f"""s_lshr_b32 s{sT5}, s{sT4}, 2
            s_add_u32 s{sE}, s{sT4}, s{sT5}
            s_mul_i32 s{sT5}, s{sT3}, 5
            s_lshr_b32 s{sT5}, s{sT5}, 1
            s_add_u32 s{sE}, s{sE}, s{sT5}
            s_cmp_ge_u32 s{sE}, 10
            s_cselect_b32 s{sT5}, 10, 0
            s_sub_u32 s{sE}, s{sE}, s{sT5}
            s_lshl_b32 s{sE}, s{sE}, 7""")
        else: e(f"s_mov_b32 s{sE}, 0")
        if c.map2:
            e(f"""s_and_b32 s{sRB}, s{sT1}, 7
            s_lshl_b32 s{sT2}, s{sT2}, 3
            s_add_u32 s{sRB}, s{sRB}, s{sT2}
            s_and_b32 s{sNB}, s{sT0}, 1
            s_lshl_b32 s{sNB}, s{sNB}, 2
            s_lshr_b32 s{sT2}, s{sT1}, 3
            s_add_u32 s{sNB}, s{sNB}, s{sT2}""")
        else:
            e(f"""s_lshl_b32 s{sRB}, s{sT0}, 2
            s_add_u32 s{sRB}, s{sRB}, s{sT3}
            s_mov_b32 s{sNB}, s{sT4}""")
        e("""v_and_b32 v1, 15, v0
        v_lshrrev_b32 v2, 4, v0
        v_bfe_u32 v3, v0, 2, 2
        v_and_b32 v4, 3, v0
        v_lshrrev_b32 v5, 3, v0
        v_lshlrev_b32 v6, 4, v0""")
        e(f"""s_lshl_b32 s{sT2}, s{sMT}, 2
        s_add_u32 s{sT2}, s{sT2}, s{sW}
        s_mul_i32 s{sT2}, s{sT2}, {32*1280}
        v_xor_b32 v7, v2, v0
        v_and_b32 v7, 7, v7
        v_lshlrev_b32 v7, 4, v7
        v_mul_u32_u24 v8, 1280, v5
        v_add_u32 v8, s{sT2}, v8
        v_add_u32 v208, v8, v7
        v_xor_b32 v7, 64, v7
        v_add_u32 v209, v8, v7
        v_add_u32 v209, {10240-1024}, v209
        v_add_u32 v210, {2*(10240-1024)}, v208
        v_add_u32 v211, {2*(10240-1024)}, v209
        s_lshl_b32 s{sM0}, s{sW}, 12
        s_add_u32 s{sE+1}, s{sE}, 128
        s_cmp_eq_u32 s{sE+1}, 1280
        s_cselect_b32 s{sE+1}, 0, s{sE+1}
        s_waitcnt lgkmcnt(0)
        s_load_dwordx2 s[{sTAG}:{sTAG+1}], s[{pWS}:{pWS+1}], {TAG}""")
        if c.stamps: e('s_mov_b32 s40, s98')
        mk_srd(e, SX, pX, 2048 * 1280); mk_srd(e, SQ, pQKV, 640 * 3840); mk_srd(e, S1, pW1, 640 * 3456)
        e(f"s_bitcmp1_b32 s{sT4}, 2\ns_cbranch_scc1 L_QH")

    def attn_voff(self, dst, cexpr_base, colbase_s):
        e = self.e
        e(f"""v_mul_u32_u24 v10, 6554, v9
        v_lshrrev_b32 v10, 16, v10
        v_mad_i32_i24 v11, v10, -10, v9""")
        self.swap23(10, 12)
        e(f"""v_mul_u32_u24 v10, 3840, v10
        v_lshl_add_u32 v10, v11, 4, v10
        v_add_u32 v{dst}, s{colbase_s}, v10""")
    def swap23(self, r, t):
        self.e(f"""v_lshrrev_b32 v{t}, 1, v{r}
        v_xor_b32 v{t}, v{t}, v{r}
        v_and_b32 v{t}, 4, v{t}
        v_mul_u32_u24 v{t}, 3, v{t}
        v_xor_b32 v{r}, v{r}, v{t}""")

    def small_dma(self, sr, vaddr, soff, ldsaddr, nlanes, tag, m0expr=None):
        e = self.e
        e(m0expr or f"s_mov_b32 m0, {ldsaddr}")
        if nlanes < 64: e(f"s_mov_b64 exec, {hex((1 << nlanes) - 1)}" if nlanes <= 32 else f"s_mov_b32 exec_hi, {hex((1 << (nlanes-32)) - 1)}")
        e.vmop(f"buffer_load_dwordx4 v{vaddr}, {srd(sr)}, {soff} offen lds", tag)
        if nlanes < 64: e("s_mov_b64 exec, -1")

    def csel(self, d, a, b):
        inl = lambda x: isinstance(x, str) or -16 <= x <= 64
        if inl(a) or inl(b): self.e(f"s_cselect_b32 s{d}, {a}, {b}")
        else: self.e(f"s_mov_b32 s{d}, {b}\ns_cselect_b32 s{d}, {a}, s{d}")

    def common_early(self, packbase):
        e = self.e; c = self.c
        mk_srd(e, SWS, pWS, 0x10000000)
        e(f"""s_lshl_b32 s{sT0}, s2, 2
        s_add_u32 s{sT0}, s{sT0}, s{sW}
        s_mul_i32 s{sT1}, s{sT0}, 6554
        s_lshr_b32 s{sT1}, s{sT1}, 16
        s_mul_i32 s{sT2}, s{sT1}, 10
        s_sub_u32 s{sT2}, s{sT0}, s{sT2}
        s_sub_u32 s{sT3}, s{sT1}, 54
        s_and_b32 s{sT3}, s{sT3}, 63
        s_mul_i32 s{sT4}, s{sT3}, 52
        s_lshr_b32 s{sT4}, s{sT4}, 8
        s_mul_i32 s{sT5}, s{sT4}, 5
        s_sub_u32 s{sT5}, s{sT3}, s{sT5}
        s_mul_i32 s{sC0}, s{sT4}, 160
        s_lshr_b32 s{sC1}, s{sT5}, 1
        s_mul_i32 s{sC1}, s{sC1}, 80
        s_and_b32 s{sT3}, s{sT5}, 1
        s_lshl_b32 s{sT3}, s{sT3}, 3
        s_add_u32 s{sC1}, s{sC1}, s{sT3}
        s_cmp_eq_u32 s{sT5}, 4
        s_cselect_b32 s{sC1}, 16, s{sC1}
        s_cselect_b32 s{sT3}, 80, 4
        s_add_u32 s{sC0}, s{sC0}, s{sC1}
        s_lshl_b32 s{sC1}, s{sT1}, 5
        s_cmp_lt_u32 s{sT1}, 54
        s_cselect_b32 s{sC0}, s{sC1}, s{sC0}
        s_cselect_b32 s{sT3}, 16, s{sT3}""")
        self.csel(sT4, 4 * 1280 - 1024, 20 * 1280 - 1024)
        e(f"""s_cselect_b32 s{SPK}, s{pW2}, s{pWO}
        s_cselect_b32 s{SPK+1}, s{pW2+1}, s{pWO+1}""")
        self.csel(SPK + 2, 1728 * 1280, 640 * 1280)
        e(f"""s_and_b32 s{SPK+1}, s{SPK+1}, 0xffff
        s_mov_b32 s{SPK+3}, 0x20000
        s_cmp_lt_u32 s{sT0}, 740
        s_cselect_b32 s{SPK+2}, s{SPK+2}, 0
        s_mul_i32 s{sC0}, s{sC0}, 1280
        s_lshl_b32 s{sC1}, s{sT2}, 7
        s_add_u32 s{sC0}, s{sC0}, s{sC1}
        v_lshrrev_b32 v9, 5, v0
        v_mul_lo_u32 v9, v9, s{sT3}
        v_and_b32 v10, 3, v5
        v_add_u32 v9, v9, v10
        v_mul_u32_u24 v9, 1280, v9
        v_and_b32 v10, 7, v0
        v_lshl_add_u32 v9, v10, 4, v9
        v_mov_b32 v252, v9
        s_mov_b32 s42, s{sC0}
        s_add_u32 s43, s42, s{sT4}
        s_add_u32 s38, s43, s{sT4}
        s_add_u32 s39, s38, s{sT4}""")
        mk_srd(e, SM, pPHI, 32 * 800)
        e(f"""s_lshl_b32 s{sT3}, s{sHG}, 2
        s_add_u32 s{sT3}, s{sT3}, s{sW}
        s_mul_i32 s36, s{sT3}, 800
        s_mul_i32 s37, s{sW}, 800
        s_add_u32 s37, s37, {L_WPHI}""")
        self.pk = (sT0, sT1, sT2, packbase)

    def early_dma_fill(self):
        packbase = self.pk[3]; f = []
        for i in range(4):
            ins = [('x', f"s_add_u32 m0, s{sM0}, {packbase}")] if i == 0 else []
            f.append(ins + [('vm', f"buffer_load_dwordx4 v252, {srd(SPK)}, s{(42, 43, 38, 39)[i]} offen offset:{i*1024} lds", 'packld')])
        out = [dict(at=2 * k, chain=1, ins=g) for k, g in enumerate(f)]
        out.append(dict(at=8, chain=1, atomic=1, ins=self.record(lambda: self.small_dma(SM, 6, "s36", None, 50, 'misc', "s_mov_b32 m0, s37"))))
        return out

    def common_late(self):
        e = self.e; packbase = self.pk[3]
        e(f"""s_lshl_b32 s{sC1}, s{sW}, 12
        v_lshlrev_b32 v9, 10, v2
        v_lshl_add_u32 v9, v3, 7, v9
        v_add_u32 v9, s{sC1}, v9
        v_add_u32 v9, {packbase}, v9""")
        for g in range(2):
            e(f"""s_lshl_b32 s{sT3}, s{sT2}, 1
            s_add_u32 s{sT3}, s{sT3}, {g}
            s_mul_i32 s{sT4}, s{sT3}, 52
            s_lshr_b32 s{sT4}, s{sT4}, 8
            s_mul_i32 s{sT5}, s{sT4}, 5
            s_sub_u32 s{sT5}, s{sT3}, s{sT5}
            s_cmp_eq_u32 s{sT5}, 2
            s_cselect_b32 s{sT3}, 3, 4
            s_cselect_b32 s{sC0}, 32, 8
            v_lshlrev_b32 v10, s{sT3}, v4
            v_add_u32 v{248+2*g}, v9, v10
            v_add_u32 v{249+2*g}, s{sC0}, v{248+2*g}""")
            for a_ in range(2):
                d = sPKD + 2 * g + a_
                e(f"""s_lshl_b32 s{sT3}, s{sT5}, 1
                s_add_u32 s{sT3}, s{sT3}, {a_}
                s_lshl_b32 s{sC0}, s{sT4}, 1
                s_cmp_ge_u32 s{sT3}, 5
                s_addc_u32 s{sC0}, s{sC0}, 0
                s_sub_u32 s{d}, s{sT3}, 6
                s_cmp_lt_u32 s{sT3}, 6
                s_cselect_b32 s{d}, s{sT3}, s{d}
                s_cmp_eq_u32 s{sT3}, 5
                s_cselect_b32 s{d}, 4, s{d}
                s_mul_i32 s{sC0}, s{sC0}, 74
                s_add_u32 s{sC0}, s{sC0}, s{sT1}
                s_mul_i32 s{sC0}, s{sC0}, 5
                s_add_u32 s{d}, s{d}, s{sC0}
                s_lshl_b32 s{d}, s{d}, 10
                s_add_u32 s{d}, s{d}, {PB}
                s_cmp_lt_u32 s{sT0}, 740
                s_cselect_b32 s{d}, s{d}, {OOB}""")
        for i in range(2, 10):
            e(f"s_add_u32 s{sE+i}, s{sE+i-1}, 128\ns_cmp_eq_u32 s{sE+i}, 1280\ns_cselect_b32 s{sE+i}, 0, s{sE+i}")
        e(f"""s_mul_i32 s{sB}, s{sNB}, 74
        s_add_u32 s{sB}, s{sB}, s{sW}
        s_mul_i32 s{sB}, s{sB}, 5120
        s_add_u32 s{sB}, s{sB}, {PB}
        s_mul_i32 s{sA}, s{sRB}, 74
        s_add_u32 s{sA}, s{sA}, s{sW}
        s_lshl_b32 s{sA}, s{sA}, 12
        s_add_u32 s{sA}, s{sA}, {A2}
        s_add_u32 s{sB9}, s{sB}, {36*5120}
        s_add_u32 s{sA9}, s{sA}, {36*4096}
        s_cmp_lt_u32 s{sW}, 2
        s_cselect_b32 s{sB9}, s{sB9}, {OOB}
        s_cselect_b32 s{sA9}, s{sA9}, {OOB}
        s_mul_i32 s88, s{sW}, {NL*1024}
        s_mov_b32 s55, {OOB}
        v_add_u32 v240, 4096, v6""")
        for j in range(4):
            e(f"s_add_u32 s{sT3}, s{sW}, {j}\ns_and_b32 s{sT3}, s{sT3}, 3\ns_lshl_b32 s{sT3}, s{sT3}, 10\nv_add_u32 v{236+j}, s{sT3}, v6")
        e(f"""s_lshl_b32 s{sF1}, s2, 3
        s_add_u32 s{sF1}, s{sF1}, {F1}
        s_cmp_eq_u32 s{sW}, 0
        s_cselect_b32 s{sF1}, s{sF1}, {OOB}
        v_mov_b32 v245, {OOB}
        v_cmp_eq_u32 vcc, 0, v0
        v_cndmask_b32 v245, v245, 0, vcc""")
    def tag_wait(self):
        self.e(f"""s_waitcnt lgkmcnt(0)
        s_add_u32 s{sTAG}, s{sTAG}, 1
        v_mov_b32 v247, s{sTAG+1}
        v_mov_b32 v246, s{sTAG}""")
        self.e.lg = []

    def kloop_common_fill(self, nm):
        f = []; ins = []
        for i in range(4):
            g = i >> 1
            ins.append(('lg', f"ds_read_b64_tr_b16 a[{160+4*i}:{161+4*i}], v{248+i} offset:{g*64}", 'pkrd'))
            ins.append(('lg', f"ds_read_b64_tr_b16 a[{162+4*i}:{163+4*i}], v{248+i} offset:{g*64+512}", 'pkrd'))
        P = 2 * nm
        for k, it in enumerate(ins): f.append(dict(at=P + 1 + 2 * k, ins=[it]))
        f.append(dict(at=P + 22, ins=[('wlg', 'pkrd')]))
        for i in range(4):
            f.append(dict(at=P + 23 + 2 * i, ins=[('vm', f"buffer_store_dwordx4 {ar(160+4*i)}, v6, {srd(SWS)}, s{sPKD+i} offen sc1", 'pkst')]))
        a0 = 7 * nm - 14
        f.append(dict(at=a0, ins=[('x', f"s_mov_b32 s{sT0}, {F1}"), ('x', "v_add_u32 v235, 1024, v6"), ('vm', self.poll_issue(6, 248, 4, None, f"s{sT0}"), 'f1p')]))
        f.append(dict(at=a0 + 4, ins=[('vm', self.poll_issue(235, 252, 4, None, f"s{sT0}"), 'f1p')]))
        chk = self.poll_check([(6, 248, 4, f"s{sT0}"), (235, 252, 4, f"s{sT0}")])
        a1 = 8 * nm - 36
        if self.c.nof1: chk[-1] = chk[-1].split('\n')[1]
        for k, t in enumerate([('wvm', 'f1p')] + [('x', t) for t in chk]): f.append(dict(at=a1 + 2 * k + (2 if k > 4 else 0), ins=[t]))
        f.append(dict(at=a1 + 20, ins=[('x', f"s_or_b32 s{sT1}, s2, s{sW}"), ('x', f"s_cmp_eq_u32 s{sT1}, 0\ns_cselect_b32 s{sT1}, {TAG}, {OOB}"),
                ('vm', self.flag_store(245, 246, f"s{sT1}"), 'tagst')]))
        return f

    def init_B(self):
        self.Bloc = {}; self.Bq = []
        order = [(i, t) for i in range(19) for t in range(5)]
        for u, k in enumerate(order):
            if u < 24: self.Bloc[k] = ('a', 160 + 4 * u)
            elif u < 64: self.Bloc[k] = ('a', 4 * (u - 24))
            elif u < 64 + NL: self.Bloc[k] = ('l', u - 64)
            else: self.Bloc[k] = None
        self.Border = order; self.Bnext = 0; self.Bcur = None; self.Acur = None
    def koff(self, i): return 4 * i - (2 if i >= 10 else 0)
    def B_items(self, k, loc):
        i, t = k; it = []
        if self.Bcur != i:
            it.append(('x', f"s_mov_b32 s{sBT}, s{sB9}" if i == 9 else f"s_add_u32 s{sBT}, s{sB}, {self.koff(i)*5120}")); self.Bcur = i
        va, imm = (6, t * 1024) if t < 4 else (240, 0)
        if loc[0] == 'l':
            assert L_BL + loc[1]*1024 - imm >= 0
            it.append(('x', f"s_add_u32 m0, s88, {L_BL + loc[1]*1024 - imm}"))
            it.append(('vm', f"buffer_load_dwordx4 v{va}, {srd(SWS)}, s{sBT} offen offset:{imm} sc1 lds", ('B', k)))
        else:
            it.append(('vm', f"buffer_load_dwordx4 {R(loc)}, v{va}, {srd(SWS)}, s{sBT} offen offset:{imm} sc1", ('B', k)))
        return it
    def B_take(self, us):
        out = []
        for u in us:
            k = self.Border[u]; out.append(self.B_items(k, self.Bloc[k]))
            if self.c.oobB: out[-1] = [it for it in out[-1] if it[0] != 'x' or 'm0' in it[1]]; out[-1] = [(it[0], it[1].replace(f"s{sBT} offen", "s55 offen"), it[2]) if it[0] == 'vm' else it for it in out[-1]]
            if self.c.noB: out[-1] = [('x', 's_nop 0')]
        return out
    def emit_items(self, items):
        e = self.e
        for it in items:
            if it[0] == 'vm': e.vmop(it[1], it[2])
            elif it[0] == 'lg': e.lgop(it[1], it[2])
            elif it[0] == 'wvm': e.wait(vm=it[1])
            elif it[0] == 'wlg': e.wait(lg=it[1])
            else: e(it[1])
    def valu(self, lines, side, every):
        n = 0
        for l in lines:
            if isinstance(l, str): self.e(l)
            else: self.emit_items([l])
            n += 1
            if side and n % every == 0: self.emit_items(side.pop(0))

    def interleave(self, items, side, every):
        W = ('s_cmp', 's_add', 's_sub', 's_and', 's_or', 's_xor', 's_lshl', 's_lshr', 's_bitcmp', 's_min', 's_max')
        Rd = ('s_cselect', 's_addc', 's_subb', 's_cbranch_scc')
        live = [False] * len(items); l = False
        for i in range(len(items) - 1, -1, -1):
            live[i] = l
            t = items[i][1]
            if t.startswith(Rd): l = True
            elif t.startswith(W): l = False
        n = 0
        for i, it in enumerate(items):
            self.emit_items([it]); n += 1
            if side and n >= every and not live[i]: self.emit_items(side.pop(0)); n = 0
        for g in side: self.emit_items(g)

    def gelu_lines(self, X, Y, T, O):
        U = [X, X + 2, Y, Y + 2]; L = []
        P = lambda r: f"v[{r}:{r+1}]"
        for i in range(4): L.append(f"v_pk_mul_f32 {P(T+2*i)}, {P(U[i])}, {P(U[i])}")
        for i in range(4): L.append(f"v_pk_fma_f32 {P(T+2*i)}, {P(T+2*i)}, v[14:15], s[{sC0}:{sC1}] op_sel_hi:[1,0,0]")
        for i in range(4): L.append(f"v_pk_mul_f32 {P(T+2*i)}, {P(T+2*i)}, {P(U[i])}")
        for i in range(8): L.append(f"v_exp_f32 v{T+i}, v{T+i}")
        for i in range(4): L.append(f"v_pk_add_f32 {P(T+2*i)}, {P(T+2*i)}, 1.0 op_sel_hi:[1,0]")
        for i in range(8): L.append(f"v_rcp_f32 v{T+i}, v{T+i}")
        for i in range(4): L.append(f"v_pk_mul_f32 {P(T+2*i)}, {P(T+2*i)}, {P(U[i])}")
        for i in range(4): L.append(f"v_cvt_pk_bf16_f32 v{O+i}, v{T+2*i}, v{T+2*i+1}")
        return L
    def gelu_consts(self):
        c1 = -2.0 * math.sqrt(2.0 / math.pi) * math.log2(math.e)
        self.e(f"s_mov_b32 s{sC0}, {fl(c1)}\nv_mov_b32 v14, {fl(c1 * 0.044715)}")
    def softmax_lines(self, Pp, E, PH):
        L = []; P = lambda r: f"v[{r}:{r+1}]"
        L += [f"v_max3_f32 v8, v{Pp}, v{Pp+1}, v{Pp+2}", f"v_min3_f32 v10, v{Pp}, v{Pp+1}, v{Pp+2}"]
        for i in range(3, 19, 2): L += [f"v_max3_f32 v8, v8, v{Pp+i}, v{Pp+i+1}", f"v_min3_f32 v10, v10, v{Pp+i}, v{Pp+i+1}"]
        L += [f"v_max_f32 v8, v8, v{Pp+19}", f"v_min_f32 v10, v10, v{Pp+19}"]
        L += [f"v_mul_f32_e64 v8, -v8, s{sC0}", f"v_mul_f32 v10, s{sC0}, v10"]
        for i in range(10):
            L.append(f"v_pk_fma_f32 {P(E+2*i)}, {P(Pp+2*i)}, s[{sC0}:{sC1}], v[8:9] op_sel_hi:[1,0,0]")
            L.append(f"v_pk_fma_f32 {P(E+20+2*i)}, {P(Pp+2*i)}, s[{sC0}:{sC1}], v[10:11] op_sel_hi:[1,0,0] neg_lo:[1,0,0] neg_hi:[1,0,0]")
        for i in range(40): L.append(f"v_exp_f32 v{E+i}, v{E+i}")
        L += [f"v_pk_add_f32 v[8:9], {P(E)}, {P(E+2)}", f"v_pk_add_f32 v[10:11], {P(E+20)}, {P(E+22)}"]
        for i in range(2, 10): L += [f"v_pk_add_f32 v[8:9], v[8:9], {P(E+2*i)}", f"v_pk_add_f32 v[10:11], v[10:11], {P(E+20+2*i)}"]
        L += ["v_add_f32 v8, v8, v9", "v_add_f32 v10, v10, v11", "v_rcp_f32 v8, v8", "v_rcp_f32 v10, v10"]
        for i in range(10): L.append(f"v_pk_mul_f32 {P(E+2*i)}, {P(E+2*i)}, v[8:9] op_sel_hi:[1,0]")
        for i in range(10): L.append(f"v_pk_mul_f32 {P(E+20+2*i)}, {P(E+20+2*i)}, v[10:11] op_sel_hi:[1,0]")
        for i in range(20): L.append(f"v_cvt_pk_bf16_f32 v{PH+i}, v{E+2*i}, v{E+2*i+1}")
        return L
    def wphi_reads(self, va):
        self.e(f"v_mul_u32_u24 v{va}, 800, v2\nv_mad_u32_u24 v{va}, v3, 40, v{va}\nv_add_u32 v{va}, {L_WPHI}, v{va}")
        return [[('lg', f"ds_read_b64_tr_b16 v[{168+2*(dg*5+fg)}:{169+2*(dg*5+fg)}], v{va} offset:{dg*160 + fg*8}", 'wphi')] for dg in range(5) for fg in range(5)]
    def phi_mfmas(self, KQ, Pp):
        L = []
        for dg in range(5):
            for j in range(2):
                for fg in range(5):
                    d = Pp + 20 * j + 4 * fg; w = 168 + 2 * (dg * 5 + fg); b = KQ + 10 * j + 2 * dg
                    L.append(f"v_mfma_f32_4x4x4_16b_bf16 {vr(d)}, v[{w}:{w+1}], v[{b}:{b+1}], {vr(d) if dg else 0}")
        return L
    def cvt_heads(self, acc0, dst, j, n=5):
        return [f"v_cvt_pk_bf16_f32 v{dst+2*t+h}, v{acc0+(t*2+j)*4+2*h}, v{acc0+(t*2+j)*4+2*h+1}" for t in range(n) for h in range(2)]
    def rho0(self, dst):
        self.e(f"v_lshrrev_b32 v{dst}, 1, v2\nv_lshl_add_u32 v{dst}, v{dst}, 4, v3\nv_and_b32 v7, 1, v2\nv_lshl_add_u32 v{dst}, v7, 2, v{dst}")
    def x_addr(self, ST):
        e = self.e
        e(f"""v_lshrrev_b32 v9, 1, v1
        v_xor_b32 v9, v9, v2
        v_lshlrev_b32 v9, 4, v9
        v_lshl_add_u32 v9, v1, 7, v9
        v_add_u32 v220, s{sM0}, v9
        v_xor_b32 v221, 64, v220""")
        for sl in (1, 2): e(f"v_add_u32 v{220+2*sl}, {sl*ST}, v220\nv_add_u32 v{221+2*sl}, {sl*ST}, v221")
    def paced(self, groups, m0, span):
        n = len(groups)
        return [dict(at=m0 + int((k + 0.2) * span / n), chain=1, ins=list(g)) for k, g in enumerate(groups)]
    def flag_addr(self, d, base, rbmul, slotexpr_regs):
        pass

    def prog_QH(self):
        e = self.e; c = self.c; self.init_B()
        e("L_QH:")
        ST = QH_ST
        e(f"""s_mul_i32 s{sKW}, s{sHG}, 320
        s_lshl_b32 s{sT0}, s{sHG}, 8
        s_add_u32 s{sT0}, s{sT0}, 384
        s_cmp_lt_u32 s{sHG}, 6
        s_cselect_b32 s{sKW}, s{sKW}, s{sT0}
        s_cselect_b32 s{sK1}, 20, 16""")
        mk_srd(e, SM, pB1, 3456)
        e(f"s_mul_i32 s{sT1}, s{sW}, 320")
        self.small_dma(SM, 6, f"s{sKW}", None, 20, 'bias', f"s_add_u32 m0, s{sT1}, {L_BIASQH}")
        def dma_x(st):
            g = []
            for j in range(4):
                it = [('x', f"s_add_u32 m0, s{sM0}, {(st%3)*ST}")] if j == 0 else []
                g.append(it + [('vm', f"buffer_load_dwordx4 v{208+j}, {srd(SX)}, s{sE+st} offen offset:{j*1024} lds", ('S', st))])
            return g
        def dma_a(st, i):
            it = []
            if i == 0: it = [('x', f"s_mul_i32 s{sKA}, s{sE+st}, 1920"), ('x', f"s_add_u32 m0, s{sM0+1}, {(st%3)*ST}")]
            if i == 2: it = [('x', f"s_mov_b32 m0, s{sM0+3+st%3}")]
            return it + [('vm', f"buffer_load_dwordx4 v{212+i}, {srd(SQ)}, s{sKA} offen offset:{1024 if i == 1 else 0} lds", ('S', st))]
        def dma_h(st, i):
            it = []
            if i == 0: it = [('x', f"s_mul_i32 s{sKB}, s{sE+st}, 1728"), ('x', f"s_add_u32 m0, s{sM0+2}, {(st%3)*ST}")]
            if i == 4: it = [('x', "s_add_u32 m0, m0, 4096")]
            return it + [('vm', f"buffer_load_dwordx4 v{215+i}, {srd(S1)}, s{sKB} offen offset:{(i%4)*1024} lds", ('S', st))]
        def dma_stage(st): return dma_x(st) + [dma_a(st, i) for i in range(3)] + [dma_h(st, i) for i in range(5)]
        for g in dma_x(0): self.emit_items(g)
        e(f"""s_mul_i32 s{sT0}, s{sW}, 3
        s_lshl_b32 s{sT1}, s{sW}, 1
        s_add_u32 s{sT1}, s{sT1}, 2
        s_cmp_lt_u32 s{sW}, 2
        s_cselect_b32 s{sT0}, s{sT0}, s{sT1}
        s_lshl_b32 s{sM0+1}, s{sT0}, 10
        s_add_u32 s{sM0+1}, s{sM0+1}, 16384""")
        for sl in range(3):
            e(f"s_add_u32 s{sM0+3+sl}, s{sM0+1}, {2048 + sl*ST}\ns_cmp_lt_u32 s{sW}, 2\ns_cselect_b32 s{sM0+3+sl}, s{sM0+3+sl}, {MISC+4608}")
        e(f"s_lshl_b32 s{sT0}, s{sT0}, 6\ns_mul_i32 s{sT1}, s{sHG}, 160\ns_mul_i32 s{sM0+2}, s{sW}, 5120\ns_add_u32 s{sM0+2}, s{sM0+2}, {16384+10240}")
        for i in range(3):
            e(f"v_add_u32 v9, {64*i}, v0\nv_add_u32 v9, s{sT0}, v9")
            self.attn_voff(212 + i, None, sT1)
            if i == 1: e("v_subrev_u32 v213, 1024, v213")
            if i == 2: e(f"s_cmp_lt_u32 s{sW}, 2\ns_cselect_b32 s{sT4}, 0, {OOB}\nv_add_u32 v214, s{sT4}, v214")
            self.emit_items(dma_a(0, i))
        e(f"s_mul_i32 s{sT0}, s{sW}, 320")
        for i in range(5):
            e(f"""v_add_u32 v9, {64*i}, v0
            v_add_u32 v9, s{sT0}, v9
            v_mul_u32_u24 v10, 3277, v9
            v_lshrrev_b32 v10, 16, v10
            v_mul_u32_u24 v11, 20, v10
            v_sub_u32 v11, v9, v11
            v_bfe_u32 v13, v10, 2, 1
            v_lshlrev_b32 v13, 1, v13
            v_xor_b32 v11, v11, v13""")
            self.swap23(10, 12)
            e(f"""v_mul_u32_u24 v10, 3456, v10
            v_lshl_add_u32 v10, v11, 4, v10
            v_add_u32 v10, s{sKW}, v10
            v_subrev_u32 v10, {(i%4)*1024}, v10
            v_cmp_gt_u32 vcc, s{sK1}, v11
            v_mov_b32 v13, {OOB}
            v_cndmask_b32 v{215+i}, v13, v10, vcc""")
            self.emit_items(dma_h(0, i))
        def setup():
            e = self.e
            self.x_addr(ST); self.rho0(8)
            e(f"v_mul_u32_u24 v9, 160, v8\nv_mad_u32_u24 v9, v4, 40, v9\nv_add_u32 v226, 16384, v9")
            e(f"v_mul_u32_u24 v9, 320, v8\nv_lshl_add_u32 v9, v4, 3, v9\nv_add_u32 v9, {16384+10240}, v9\nv_lshl_add_u32 v229, v7, 5, v9\nv_xor_b32 v7, 1, v7\nv_lshl_add_u32 v232, v7, 5, v9")
            for sl in (1, 2): e(f"v_add_u32 v{226+sl}, {sl*ST}, v226\nv_add_u32 v{229+sl}, {sl*ST}, v229\nv_add_u32 v{232+sl}, {sl*ST}, v232")
            self.common_early(QH_PACK); self.common_late()
            e(f"s_mul_i32 s{sT1}, s{sW}, 320\ns_add_u32 s{sT1}, s{sT1}, {L_BIASQH}\nv_lshl_add_u32 v9, v2, 3, s{sT1}")
        self.interleave(self.record(setup), dma_stage(1), c.pe)
        self.tag_wait()
        e.wait(vm='bias')
        for s_ in range(10): e.lgop(f"ds_read_b64 v[{136+2*s_}:{137+2*s_}], v9 offset:{s_*32}", 'b')
        e.wait(lg_all=True)
        for s_ in range(10):
            a0 = 16 + (5 + s_) * 8
            for h in range(2): e(f"v_lshlrev_b32 v{a0+2*h}, 16, v{136+2*s_+h}\nv_and_b32 v{a0+2*h+1}, 0xffff0000, v{136+2*s_+h}")
        self.stamp(0)
        NS = 15; nm = NS * 4; mf = []; reads = []
        for st in range(10):
            sl = st % 3
            for t in range(NS):
                gs = st * NS + t; wr = 168 + 8 * (gs % 4); m0 = len(mf)
                for ks in range(2):
                    for rd in range(2):
                        if t < 5: ad, off = 226 + sl, ks * 5120 + rd * 1280 + t * 8
                        else: ad, off = (229 if (t - 5) % 2 == 0 else 232) + sl, ks * 10240 + rd * 2560 + ((t - 5) >> 1) * 64
                        reads.append([f"ds_read_b64_tr_b16 v[{wr+4*ks+2*rd}:{wr+4*ks+2*rd+1}], v{ad} offset:{off}", m0, st, m0 - 13])
                jo = (1, 0) if st == 0 else (0, 1)
                for j in jo:
                    for ks in range(2):
                        xr = 136 + (st % 2) * 16 + (j * 2 + ks) * 4; d = 16 + (t * 2 + j) * 4
                        if t == 0: reads.append([f"ds_read_b128 {vr(xr)}, v{220+2*sl+ks} offset:{j*2048}", len(mf), st, -1])
                        cc = vr(d)
                        if st == 0 and ks == 0: cc = "0" if t < 5 else vr(16 + t * 8)
                        mf.append(f"v_mfma_f32_16x16x32_bf16 {vr(d)}, {vr(wr+4*ks)}, {vr(xr)}, {cc}")
        def mksync(st):
            def f(m):
                tags = [('S', st)] + (['pkst'] if st == 4 else []) + (['packld', 'misc'] if st == 2 else [])
                e.wait(vm=tags, lg_all=True); e("s_barrier")
                self.stamp(st + 1, 2)
                out = self.early_dma_fill() if st == 0 else []
                if st + 2 < 10: out += self.paced(dma_stage(st + 2), m + (12 if st == 0 else 0), nm - c.dtail - (22 if st == 0 else 0))
                else: out += self.paced(self.B_take(range((st - 8) * 12, (st - 7) * 12)), m, nm - c.dtail)
                if st == 4: out.append(dict(at=m + 1, ins=[('vm', self.flag_store(245, 246, f"s{sF1}"), 'f1st')]))
                return out
            return f
        self.stream(mf, reads, self.kloop_common_fill(nm), {st: mksync(st) for st in range(10)}, name='QH')
        self.stamp(1); self.stamp(11, 2)
        side = self.B_take(range(24, 24 + c.qb1))
        wr_ = self.wphi_reads(13)
        self.gelu_consts()
        e(f"""s_lshl_b32 s{sT0}, s{sMT}, 1
        s_lshr_b32 s{sT1}, s{sW}, 1
        s_add_u32 s{sT0}, s{sT0}, s{sT1}
        s_and_b32 s{sT1}, s{sW}, 1
        s_mul_i32 s{sT2}, s{sT0}, 74
        s_lshl_b32 s{sT2}, s{sT2}, 12
        s_lshl_b32 s{sT3}, s{sT1}, 11
        s_add_u32 s{sT2}, s{sT2}, s{sT3}
        s_add_u32 s{sT2}, s{sT2}, {A2}
        s_lshl_b32 s{sT3}, s{sKW}, 6
        s_add_u32 s{sT3}, s{sT3}, s{sT2}""")
        L = []
        for p in range(5):
            for j in range(2):
                O = 152 + 4 * ((2 * p + j) % 4)
                L += self.gelu_lines(16 + ((5 + 2 * p) * 2 + j) * 4, 16 + ((6 + 2 * p) * 2 + j) * 4, 136 + 8 * j, O)
                if j == 0:
                    if p == 4: L += [f"s_add_u32 s{sT4}, s{sT3}, {4*4096}", f"s_cmp_lt_u32 s{sHG}, 6", f"s_cselect_b32 s{sT4}, s{sT4}, {OOB}"]
                    else: L.append(f"s_add_u32 s{sT4}, s{sT3}, {p*4096}")
                L.append(('vm', f"buffer_store_dwordx4 {vr(O)}, v6, {srd(SWS)}, s{sT4} offen offset:{j*1024} sc1", 'hst'))
        mixed = []
        while side or wr_:
            if side: mixed.append(side.pop(0))
            if wr_: mixed.append(wr_.pop(0))
        self.valu(L, mixed, max(1, 410 // len(mixed)))
        for j in range(2):
            for l in self.cvt_heads(16, 56 + 10 * j, j): e(l)
        for g in mixed: self.emit_items(g)
        self.stamp(2)
        side = self.B_take(range(24 + c.qb1, 64))
        e.wait(lg='wphi')
        self.valu(self.phi_mfmas(56, 76), side, 8)
        e(f"""s_lshl_b32 s{sT4}, s{sMT}, 4
        s_add_u32 s{sT4}, s{sT4}, s{sHG}
        s_lshl_b32 s{sT4}, s{sT4}, 7
        s_add_u32 s{sT4}, s{sT4}, {F4}
        s_cmp_eq_u32 s{sW}, 0
        s_cselect_b32 s{sT5}, s{sT4}, {OOB}
        s_mov_b32 s{sC0}, {fl(math.log2(math.e))}""")
        e.wait(vm='hst'); e("s_barrier")
        e.vmop(self.flag_store(245, 246, f"s{sT5}"), 'f4st')
        side += self.B_take(range(64, 64 + NL))
        self.valu(self.softmax_lines(76, 16, 56), side, c.se)
        e(f"""s_lshl_b32 s{sKW}, s{sHG}, 11
        s_add_u32 s{sKW}, s{sKW}, {F3}
        s_add_u32 s{sK1}, s{sT4}, 1024
        s_sub_u32 s{sK1}, s{sK1}, s{sKW}
        v_lshlrev_b32 v12, 7, v1
        v_mov_b32 v13, s{sK1}
        v_cmp_eq_u32 vcc, 16, v0
        v_cndmask_b32 v12, v12, v13, vcc""")
        L2 = self.softmax_lines(96, 16, 116)
        self.valu(L2[:70], side, c.se)
        pl = [(12, 248, 2, f"s{sKW}")]
        for p_ in pl: e.vmop(self.poll_issue(p_[0], p_[1], 2, None, p_[3]), 'pl')
        self.valu(L2[70:], side, c.se)
        for g in side: self.emit_items(g)
        self.stamp(3)
        e.wait(vm='pl')
        for l in self.poll_check(pl): e(l)
        self.stamp(4)
        e(f"""s_mul_i32 s{sKW}, s{sHG}, {FSZ}
        s_mul_i32 s{sK1}, s{sW}, 1920
        s_add_u32 s{sKW}, s{sKW}, s{sK1}
        s_add_u32 s{sKW}, s{sKW}, {FIN}
        s_add_u32 m0, s{sK1}, {L_FIN}""")
        e.vmop(f"buffer_load_dwordx4 v6, {srd(SWS)}, s{sKW} offen sc1 lds", 'fin')
        e("s_mov_b32 exec_hi, 0xffffff")
        e.vmop(f"buffer_load_dwordx4 v6, {srd(SWS)}, s{sKW} offen offset:1024 sc1 lds", 'fin')
        e(f"""s_mov_b64 exec, -1
        s_lshl_b32 s{sKW}, s{sHG}, 13
        s_lshl_b32 s{sK1}, s{sMT}, 2
        s_add_u32 s{sK1}, s{sK1}, s{sW}
        s_lshl_b32 s{sK1}, s{sK1}, 7
        s_add_u32 s{sKW}, s{sKW}, s{sK1}
        s_add_u32 s{sKW}, s{sKW}, {GB}
        v_lshlrev_b32 v12, 2, v1""")
        for j in range(2): e.vmop(f"buffer_load_dword v{14+j}, v12, {srd(SWS)}, s{sKW} offen offset:{j*64} sc1", 'g')
        self.ph2_pre()
        e(f"v_lshlrev_b32 v13, 6, v2\nv_lshl_add_u32 v13, v4, 4, v13\nv_add_u32 v13, {L_FIN}, v13")
        e.wait(vm='fin'); e("s_barrier")
        mf = []; reads = []
        for fp in range(5):
            for dg in range(6):
                n = fp * 6 + dg; fr = 168 + 4 * (n % 8); m0 = len(mf)
                reads.append([f"ds_read_b128 {vr(fr)}, v13 offset:{(dg*5+fp)*256}", m0, -1, m0 - 28])
                for h in range(2):
                    for j in range(2):
                        d = (16 if j == 0 else 76) + 4 * dg; b = (56 if j == 0 else 116) + 2 * (2 * fp + h)
                        mf.append(f"v_mfma_f32_4x4x4_16b_bf16 {vr(d)}, v[{fr+2*h}:{fr+2*h+1}], v[{b}:{b+1}], {vr(d) if (fp or h) else 0}")
        mf2 = []
        for n in range(0, 30, 2):
            a_, b_ = mf[4*n:4*n+4], mf[4*n+4:4*n+8]
            mf2 += [a_[0], a_[1], b_[0], b_[1], a_[2], a_[3], b_[2], b_[3]]
        for r in reads: r[1] = (r[1] // 8) * 8 + (2 if (r[1] // 4) % 2 else 0); r[3] = (r[1] // 8) * 8 - 24
        self.stream(mf2, reads, [], None, LA=20)
        e.wait(vm='g')
        e(f"""s_lshr_b32 s{sT4}, s{sHG}, 1
        s_mul_i32 s{sT4}, s{sT4}, 5
        s_add_u32 s{sT4}, s{sT4}, 54
        s_lshl_b32 s{sT4}, s{sT4}, 12
        s_add_u32 s{sT4}, s{sT4}, s{sT2}
        s_and_b32 s{sT5}, s{sHG}, 1
        s_lshl_b32 s{sKW}, s{sT5}, 13
        s_add_u32 s{sKW}, s{sKW}, s{sT4}
        s_add_u32 s{sK1}, s{sKW}, 4096
        s_lshl_b32 s{sT5}, s{sT5}, 3
        s_add_u32 s{sT4}, s{sT4}, s{sT5}
        s_add_u32 s{sT4}, s{sT4}, {4*4096}""")
        for j in range(2):
            D = 16 if j == 0 else 76; O = 40 if j == 0 else 100
            e(f"v_add_f32 v8, {fl(1e-6)}, v{D+20}\nv_rcp_f32 v8, v8\nv_mul_f32 v8, v8, v{14+j}")
            for i in range(10): e(f"v_pk_mul_f32 v[{D+2*i}:{D+2*i+1}], v[{D+2*i}:{D+2*i+1}], v[8:9] op_sel_hi:[1,0]")
            for i in range(10): e(f"v_cvt_pk_bf16_f32 v{O+i}, v{D+2*i}, v{D+2*i+1}")
            e.vmop(f"buffer_store_dwordx4 {vr(O)}, v6, {srd(SWS)}, s{sKW} offen offset:{j*1024} sc1", 'ost')
            e.vmop(f"buffer_store_dwordx4 {vr(O+4)}, v6, {srd(SWS)}, s{sK1} offen offset:{j*1024} sc1", 'ost')
            e.vmop(f"buffer_store_dwordx2 {vr(O+8, 2)}, v6, {srd(SWS)}, s{sT4} offen offset:{j*1024} sc1", 'ost')
        e(f"""s_lshl_b32 s{sT4}, s{sMT}, 3
        s_add_u32 s{sT4}, s{sT4}, s{sHG}
        s_lshl_b32 s{sT4}, s{sT4}, 7
        s_add_u32 s{sT4}, s{sT4}, {F5}
        s_cmp_eq_u32 s{sW}, 0
        s_cselect_b32 s{sKW}, s{sT4}, {OOB}""")
        self.stamp(5)
        self.phase2([dict(at=c.f5at, ins=[('wvm', 'ost'), ('x', 's_barrier'), ('vm', self.flag_store(245, 246, f"s{sKW}"), 'f5st')])])

    def prog_KV(self):
        e = self.e; c = self.c; self.init_B()
        ST = KV_ST
        e(f"s_mul_i32 s{sM0+1}, s{sW}, 5120\ns_add_u32 s{sM0+1}, s{sM0+1}, 16384")
        def dma_x(st):
            g = []
            for j in range(4):
                it = [('x', f"s_add_u32 m0, s{sM0}, {(st%3)*ST}")] if j == 0 else []
                g.append(it + [('vm', f"buffer_load_dwordx4 v{208+j}, {srd(SX)}, s{sE+st} offen offset:{j*1024} lds", ('S', st))])
            return g
        def dma_w(st, i):
            it = []
            if i == 0: it = [('x', f"s_mul_i32 s{sKA}, s{sE+st}, 1920"), ('x', f"s_add_u32 m0, s{sM0+1}, {(st%3)*ST}")]
            if i == 4: it = [('x', "s_add_u32 m0, m0, 4096")]
            return it + [('vm', f"buffer_load_dwordx4 v{212+i}, {srd(SQ)}, s{sKA} offen offset:{(i%4)*1024} lds", ('S', st))]
        def dma_stage(st): return dma_x(st) + [dma_w(st, i) for i in range(5)]
        def whbase(ch): return (WH0 + ch * 8192) if ch < 5 else (WH5 + (ch - 5) * 8192)
        def dma_wh(ch):
            return [[('x', f"s_mul_i32 s{sKB}, s{sE+ch}, 1728"), ('x', f"s_add_u32 m0, s{sM0+2}, {whbase(ch)}"),
                     ('vm', f"buffer_load_dwordx4 v217, {srd(S1)}, s{sKB} offen lds", 'WH')],
                    [('vm', f"buffer_load_dwordx4 v218, {srd(S1)}, s{sKB} offen offset:1024 lds", 'WH')]]
        for g in dma_x(0): self.emit_items(g)
        mk_srd(e, SM, pB1, 3456)
        e(f"s_lshl_b32 s{sKW}, s{sHG}, 7\ns_add_u32 s{sKW}, s{sKW}, {19*128}")
        self.small_dma(SM, 6, f"s{sKW}", L_BIASKV, 8, 'misc')
        e(f"""s_and_b32 s{sT0}, s{sW}, 1
        s_mul_i32 s{sT0}, s{sT0}, 320
        s_lshr_b32 s{sT1}, s{sW}, 1
        s_add_u32 s{sT1}, s{sT1}, 1
        s_mul_i32 s{sT1}, s{sT1}, 1280
        s_mul_i32 s{sT3}, s{sHG}, 160
        s_add_u32 s{sT1}, s{sT1}, s{sT3}""")
        for i in range(5):
            e(f"v_add_u32 v9, {64*i}, v0\nv_add_u32 v9, s{sT0}, v9")
            self.attn_voff(212 + i, None, sT1)
            if i % 4: e(f"v_subrev_u32 v{212+i}, {(i%4)*1024}, v{212+i}")
            self.emit_items(dma_w(0, i))
        def setup():
            e = self.e
            self.x_addr(ST); self.rho0(8)
            e(f"v_mul_u32_u24 v9, 160, v8\nv_mad_u32_u24 v9, v4, 40, v9\nv_add_u32 v226, 16384, v9")
            for sl in (1, 2): e(f"v_add_u32 v{226+sl}, {sl*ST}, v226")
            e(f"v_lshlrev_b32 v9, 7, v8\nv_lshl_add_u32 v9, v4, 3, v9\nv_add_u32 v9, {WH0}, v9\nv_bfe_u32 v10, v8, 1, 2")
            for t in range(4): e(f"v_xor_b32 v11, {t}, v10\nv_lshl_add_u32 v{229+t}, v11, 5, v9")
            self.common_early(KV_PACK); self.common_late()
            e(f"v_add_u32 v253, s{sE}, v6\nv_subrev_u32 v10, 1280, v253\nv_min_u32 v253, v253, v10\nv_add_u32 v254, 1024, v253\nv_subrev_u32 v10, 1280, v254\nv_min_u32 v254, v254, v10")
            mk_srd(e, 28, pGATE, 1280)
            e(f"s_lshl_b32 s{sM0+2}, s{sW}, 11\ns_lshl_b32 s{sT3}, s{sW}, 4")
            for pp in range(2):
                e(f"v_add_u32 v10, {8*pp}, v5\nv_add_u32 v10, s{sT3}, v10")
                self.swap23(10, 12)
                e(f"""v_lshlrev_b32 v11, 1, v2
                v_xor_b32 v11, v11, v0
                v_and_b32 v11, 7, v11
                v_mul_u32_u24 v10, 3456, v10
                v_lshl_add_u32 v10, v11, 4, v10
                v_add_u32 v10, s{sKW}, v10
                v_subrev_u32 v{217+pp}, {pp*1024}, v10""")
        self.interleave(self.record(setup), dma_stage(1), c.pe)
        self.tag_wait()
        kvsmall = [dict(at=10, chain=1, ins=self.record(lambda: self.small_dma(28, 253, "0", L_GATE, 64, 'misc'))),
                   dict(at=12, chain=1, atomic=1, ins=self.record(lambda: self.small_dma(28, 254, "0", L_GATE + 1024, 16, 'misc')))]
        self.stamp(0)
        if c.stamps: mk_srd(e, 28, pGATE, 1280)
        if c.stamps == 2: kvsmall = [dict(at=9, chain=1, ins=self.record(lambda: mk_srd(self.e, 28, pGATE, 1280)))] + kvsmall
        NS = 10; nm = NS * 4; mf = []; reads = []
        for st in range(10):
            sl = st % 3
            for t in range(NS):
                gs = st * NS + t; wr = 168 + 8 * (gs % 4); m0 = len(mf)
                for ks in range(2):
                    for rd in range(2):
                        off = (t // 5) * 10240 + ks * 5120 + rd * 1280 + (t % 5) * 8
                        reads.append([f"ds_read_b64_tr_b16 v[{wr+4*ks+2*rd}:{wr+4*ks+2*rd+1}], v{226+sl} offset:{off}", m0, st, m0 - 13])
                for j in range(2):
                    for ks in range(2):
                        xr = st * 16 + (j * 2 + ks) * 4; d = 16 + (t * 2 + j) * 4
                        if t == 0: reads.append([f"ds_read_b128 {ar(xr)}, v{220+2*sl+ks} offset:{j*2048}", len(mf), st, -1])
                        mf.append(f"v_mfma_f32_16x16x32_bf16 {vr(d)}, {vr(wr+4*ks)}, {ar(xr)}, {vr(d) if (st or ks) else 0}")
        def mksync(st):
            def f(m):
                tags = [('S', st)] + (['pkst'] if st == 4 else []) + (['packld', 'misc'] if st == 2 else [])
                e.wait(vm=tags, lg_all=True); e("s_barrier")
                self.stamp(st + 1, 2)
                out = self.early_dma_fill() + kvsmall if st == 0 else []
                if st + 2 < 10: out += self.paced(dma_stage(st + 2), m + (12 if st == 0 else 0), nm - c.dtail - (22 if st == 0 else 0))
                else: out += self.paced(sum([dma_wh(ch) for ch in range((st - 8) * 5, (st - 7) * 5)], []), m, nm - c.dtail)
                if st == 4: out.append(dict(at=m + 1, ins=[('vm', self.flag_store(245, 246, f"s{sF1}"), 'f1st')]))
                return out
            return f
        self.stream(mf, reads, self.kloop_common_fill(nm), {st: mksync(st) for st in range(10)}, name='KV1')
        self.stamp(1); self.stamp(11, 2)
        self.dump('acc', range(16, 76))
        for g in self.wphi_reads(13): self.emit_items(g)
        side = self.B_take(range(0, 24))
        L = self.cvt_heads(16, 96, 0) + self.cvt_heads(16, 106, 1)
        self.valu(L, None, 5)
        e(f"""v_mul_u32_u24 v12, {RSV}, v1
        v_mad_u32_u24 v12, v2, 48, v12
        s_mul_i32 s{sT0}, s{sW}, {32*RSV}
        s_add_u32 s{sT0}, s{sT0}, {L_V}
        v_add_u32 v12, s{sT0}, v12
        v_mul_u32_u24 v13, {RSP}, v1
        s_mov_b32 s{sT0}, 80
        v_mad_u32_u24 v13, v2, s{sT0}, v13
        s_mul_i32 s{sT0}, s{sW}, {32*RSP}
        v_add_u32 v13, s{sT0}, v13""")
        e.wait(lg='wphi')
        self.valu(self.phi_mfmas(96, 128), None, 8)
        self.dump('p', list(range(128, 168)) + list(range(96, 116)))
        self.dump('w', list(range(168, 218)))
        e.wait(vm='WH'); e("s_barrier")
        for j in range(2):
            for l in self.cvt_heads(56, 116, j): e(l)
            if j == 0: e("v_mov_b32 v126, 0x3f80\nv_mov_b32 v127, 0")
            for i in range(3): e.lgop(f"ds_write_b128 v12, {vr(116+4*i)} offset:{j*16*RSV + i*16}", 'vw')
            if j == 0: e.wait(lg='vw')
        e(f"s_mov_b32 s{sC0}, {fl(math.log2(math.e))}")
        for j in range(2):
            PH = 56 + 20 * j
            self.valu(self.softmax_lines(128 + 20 * j, 16, PH), side, c.se)
            for i in range(5): e.lgop(f"ds_write_b128 v13, {vr(PH+4*i)} offset:{j*16*RSP + i*16}", 'pw')
        for g in side: self.emit_items(g)
        e(f"""v_lshl_add_u32 v8, v2, 2, v3
        v_mul_u32_u24 v12, {RSP}, v8
        v_lshl_add_u32 v12, v4, 3, v12
        s_mul_i32 s{sT0}, s{sW}, 80
        v_add_u32 v12, s{sT0}, v12
        v_mul_u32_u24 v13, {RSV}, v8
        v_lshl_add_u32 v13, v4, 3, v13
        s_mul_i32 s{sT0}, s{sW}, 48
        s_add_u32 s{sT0}, s{sT0}, {L_V}
        v_add_u32 v13, s{sT0}, v13""")
        e(f"""v_lshrrev_b32 v8, 2, v1
        v_mul_u32_u24 v8, 2560, v8
        v_lshl_add_u32 v8, v4, 5, v8
        v_lshrrev_b32 v9, 1, v2
        v_lshl_add_u32 v8, v9, 9, v8
        v_and_b32 v9, 1, v2
        v_lshl_add_u32 v8, v9, 4, v8
        s_lshl_b32 s{sT0}, s{sW}, 7
        v_add_u32 v40, s{sT0}, v8
        v_add_u32 v42, 10240, v40
        v_mov_b32 v9, {OOB}
        v_cmp_ge_u32 vcc, 4, v1
        v_cndmask_b32 v42, v9, v42, vcc
        v_cmp_gt_u32 vcc, 2, v2
        v_cndmask_b32 v41, v9, v40, vcc
        v_cndmask_b32 v43, v9, v42, vcc
        s_lshl_b32 s{sT0}, s{sHG}, 4
        s_add_u32 s{sT0}, s{sT0}, s{sMT}
        s_mul_i32 s{sT1}, s{sT0}, {PSZ}
        s_add_u32 s{sT1}, s{sT1}, {PP}
        s_lshl_b32 s{sT0}, s{sT0}, 7
        s_cmp_eq_u32 s{sW}, 0
        s_cselect_b32 s{sT0}, s{sT0}, {OOB}""")
        e.wait(lg_all=True); e("s_barrier")
        self.stamp(2)
        mf = []; reads = []
        for s_ in range(4):
            b0 = 128 + (s_ % 2) * 20; m0 = len(mf)
            for dt in range(2):
                for rd in range(2): reads.append([f"ds_read_b64_tr_b16 v[{b0+12+4*dt+2*rd}:{b0+13+4*dt+2*rd}], v13 offset:{(32*s_+16*rd)*RSV + dt*32}", m0 + dt, -1, m0 - 7])
            for ft in range(3):
                for rd in range(2): reads.append([f"ds_read_b64_tr_b16 v[{b0+4*ft+2*rd}:{b0+4*ft+2*rd+1}], v12 offset:{(32*s_+16*rd)*RSP + ft*32}", m0 + 2 * ft, -1, m0 - 7])
                for dt in range(2):
                    d = 16 + (ft * 2 + dt) * 4
                    mf.append(f"v_mfma_f32_16x16x32_bf16 {vr(d)}, {vr(b0+4*ft)}, {vr(b0+12+4*dt)}, {vr(d) if s_ else 0}")
        for r in reads[:10]: e.lgop(r[0], 'kv0')
        e.wait(lg='kv0')
        for r in reads[10:20]: e.lgop(r[0], 'kv1')
        for l in mf[:6]: e(l)
        e.wait(lg='kv1')
        for s_ in (2, 3):
            for r in reads[10*s_:10*s_+10]: e.lgop(r[0], 'kv1')
            for l in mf[6*(s_-1):6*s_]: e(l)
            e.wait(lg='kv1')
        e("s_barrier")
        e(f"v_lshlrev_b32 v9, 3, v2\nv_add_u32 v9, {L_BIASKV}, v9\nv_lshlrev_b32 v233, 4, v2\nv_add_u32 v233, {L_GATE}, v233")
        for s_ in range(4): e.lgop(f"ds_read_b64 v[{128+2*s_}:{129+2*s_}], v9 offset:{s_*32}", 'b')
        for l in mf[18:24]: e(l)
        e.wait(lg='b')
        for s_ in range(4):
            for h in range(2): e(f"v_lshlrev_b32 v{96+8*s_+2*h}, 16, v{128+2*s_+h}\nv_and_b32 v{97+8*s_+2*h}, 0xffff0000, v{128+2*s_+h}")
        for ft in range(3):
            for dt in range(2):
                e.vmop(f"buffer_store_dwordx4 {vr(16+(ft*2+dt)*4)}, v{40+2*dt+(ft==2)}, {srd(SWS)}, s{sT1} offen offset:{ft*1024} sc1", 'pst')
        self.stamp(3)
        mf = []; reads = []; nm = 20
        for st in range(10):
            for t in range(5):
                gs = st * 4 + t; wr = 168 + 8 * (gs % 4) if t < 4 else 200 + 8 * (st % 2); m0 = len(mf)
                for ks in range(2):
                    if t < 4:
                        for rd in range(2):
                            reads.append([f"ds_read_b64_tr_b16 v[{wr+4*ks+2*rd}:{wr+4*ks+2*rd+1}], v{(229 if st < 5 else 220)+t} offset:{(st%5)*8192 + ks*4096 + rd*1024}", m0, -1, m0 - 13])
                    else: reads.append([f"ds_read_b128 {vr(wr+4*ks)}, v233 offset:{(st*2+ks)*64}", m0, -1, m0 - 20])
                jo = (1, 0) if st == 0 else (0, 1)
                for j in jo:
                    for ks in range(2):
                        xr = st * 16 + (j * 2 + ks) * 4; d = 96 + (t * 2 + j) * 4; cc = vr(d)
                        if st == 0 and ks == 0: cc = vr(96 + t * 8) if t < 4 else "0"
                        mf.append(f"v_mfma_f32_16x16x32_bf16 {vr(d)}, {vr(wr+4*ks)}, {ar(xr)}, {cc}")
        for t in range(4): e(f"v_subrev_u32 v{220+t}, {WH0-WH5}, v{229+t}")
        fill = []
        lds_items = self.B_take(range(64, 64 + NL))
        fill += self.paced(lds_items[:9], 2, 18)
        bcur = self.Bcur
        xs = []
        seq = []
        for st in range(9):
            seq.append((20 * (st + 1), list(range(24 + 4 * st, 28 + 4 * st))))
        rest = lds_items[9:]
        self.Bcur = None
        fill = []
        order = [(2 + 2 * k, 64 + k) for k in range(9)]
        for st in range(9):
            for k in range(4): order.append((20 * (st + 1) + 1 + 4 * k, 24 + 4 * st + k))
            order.append((20 * (st + 1) + 17, 64 + 9 + st))
        for at, u in order: fill.append(dict(at=at, chain=1, ins=self.B_take([u])[0]))
        fill.append(dict(at=c.f2at, ins=[('x', f"s_add_u32 s{sT2}, s{sT0}, {F2}"), ('wvm', 'pst'), ('x', 's_barrier'), ('vm', self.flag_store(245, 246, f"s{sT2}"), 'f2st')]))
        fill.append(dict(at=170, ins=[('x', f"s_lshl_b32 s{sT3}, s{sHG}, 11"), ('x', f"s_add_u32 s{sT3}, s{sT3}, {F2}"), ('x', "v_lshlrev_b32 v12, 7, v1"),
                                      ('vm', self.poll_issue(12, 248, 2, None, f"s{sT3}"), 'pl')]))
        fill.sort(key=lambda f: f['at'])
        self.stream(mf, reads, fill, None, name='KV2')
        self.stamp(4)
        side = self.B_take(range(60, 64))
        e.wait(vm='pl')
        for l in self.poll_check([(12, 248, 2, f"s{sT3}")]): e(l)
        self.stamp(14)
        e(f"""v_mul_u32_u24 v8, {PSZ}, v2
        v_lshl_add_u32 v8, v1, 4, v8
        v_mov_b32 v9, {OOB}
        v_cmp_gt_u32 vcc, 15, v1
        v_cndmask_b32 v8, v9, v8, vcc
        v_lshlrev_b32 v10, 3, v1
        v_cmp_gt_u32 vcc, 15, v0
        v_cndmask_b32 v10, v9, v10, vcc
        v_lshlrev_b32 v11, 2, v1
        v_cmp_gt_u32 vcc, 16, v0
        v_cndmask_b32 v11, v9, v11, vcc
        s_lshl_b32 s{sT2}, s{sMT}, 2
        s_add_u32 s{sT2}, s{sT2}, s{sW}
        s_mul_i32 s{sT3}, s{sT2}, 240
        s_mul_i32 s{sT4}, s{sHG}, {16*PSZ}
        s_add_u32 s{sT3}, s{sT3}, s{sT4}
        s_add_u32 s{sT3}, s{sT3}, {PP}""")
        for i in range(4):
            e.vmop(f"buffer_load_dwordx4 {vr(16+4*i)}, v8, {srd(SWS)}, s{sT3} offen sc1", 'pld')
            if i < 3: e(f"s_add_u32 s{sT3}, s{sT3}, {4*PSZ}")
        e(f"""s_mov_b32 s{sC0}, {fl(-math.log2(math.e))}
        v_mul_f32 v128, s{sC0}, v128
        v_mul_f32 v132, s{sC0}, v132
        v_exp_f32 v128, v128
        v_exp_f32 v132, v132
        s_lshl_b32 s{sT3}, s{sT2}, 7
        v_add_f32 v128, 1.0, v128
        v_add_f32 v132, 1.0, v132
        v_rcp_f32 v128, v128
        v_rcp_f32 v132, v132
        s_lshl_b32 s{sT4}, s{sHG}, 13
        s_add_u32 s{sT3}, s{sT3}, s{sT4}
        s_add_u32 s{sT3}, s{sT3}, {GB}""")
        for j in range(2): e.vmop(f"buffer_store_dword v{128+4*j}, v11, {srd(SWS)}, s{sT3} offen offset:{j*64} sc1", 'hst')
        self.gelu_consts()
        e(f"""s_lshl_b32 s{sT4}, s{sMT}, 1
        s_lshr_b32 s{sT5}, s{sW}, 1
        s_add_u32 s{sT4}, s{sT4}, s{sT5}
        s_and_b32 s{sT5}, s{sW}, 1
        s_mul_i32 s{sT3}, s{sT4}, 74
        s_lshl_b32 s{sKW}, s{sHG}, 1
        s_add_u32 s{sT3}, s{sT3}, s{sKW}
        s_add_u32 s{sT3}, s{sT3}, 38
        s_lshl_b32 s{sT3}, s{sT3}, 12
        s_lshl_b32 s{sK1}, s{sT5}, 11
        s_add_u32 s{sT3}, s{sT3}, s{sK1}
        s_add_u32 s{sT3}, s{sT3}, {A2}
        s_lshl_b32 s{sKW}, s{sMT}, 4
        s_add_u32 s{sKW}, s{sKW}, s{sHG}
        s_lshl_b32 s{sKW}, s{sKW}, 7
        s_add_u32 s{sKW}, s{sKW}, {F4+1024}
        s_cmp_eq_u32 s{sW}, 0
        s_cselect_b32 s{sKW}, s{sKW}, {OOB}""")
        L = []
        for p in range(2):
            for j in range(2):
                O = 152 + 4 * ((2 * p + j) % 4)
                L += self.gelu_lines(96 + (4 * p + j) * 4, 96 + (4 * p + 2 + j) * 4, 136 + 8 * j, O)
                if j == 0 and p == 1: L.append(f"s_add_u32 s{sT3}, s{sT3}, 4096")
                L.append(('vm', f"buffer_store_dwordx4 {vr(O)}, v6, {srd(SWS)}, s{sT3} offen offset:{j*1024} sc1", 'hst'))
        self.valu(L, side, 10)
        for g in side: self.emit_items(g)
        e.wait(vm='pld')
        e("""v_pk_add_f32 v[16:17], v[16:17], v[20:21]
        v_pk_add_f32 v[18:19], v[18:19], v[22:23]
        v_pk_add_f32 v[24:25], v[24:25], v[28:29]
        v_pk_add_f32 v[26:27], v[26:27], v[30:31]
        v_pk_add_f32 v[16:17], v[16:17], v[24:25]
        v_pk_add_f32 v[18:19], v[18:19], v[26:27]""")
        for sw in ('32', '16'):
            for i in range(4): e(f"v_mov_b32 v{20+i}, v{16+i}")
            for i in range(4): e(f"v_permlane{sw}_swap_b32 v{16+i}, v{20+i}")
            e("v_pk_add_f32 v[16:17], v[16:17], v[20:21]\nv_pk_add_f32 v[18:19], v[18:19], v[22:23]")
        e(f"""v_cvt_pk_bf16_f32 v16, v16, v17
        v_cvt_pk_bf16_f32 v17, v18, v19
        s_mul_i32 s{sT2}, s{sT2}, 120
        s_mul_i32 s{sT3}, s{sHG}, {FSZ}
        s_add_u32 s{sT2}, s{sT2}, s{sT3}
        s_add_u32 s{sT2}, s{sT2}, {FIN}
        s_add_u32 s{sK1}, s{sT0}, {F3}""")
        e.vmop(f"buffer_store_dwordx2 v[16:17], v10, {srd(SWS)}, s{sT2} offen sc1", 'hst')
        self.stamp(5)
        self.ph2_pre()
        e.wait(vm='hst')
        e("s_barrier")
        e.vmop(self.flag_store(245, 246, f"s{sK1}"), 'f3st'); e.vmop(self.flag_store(245, 246, f"s{sKW}"), 'f4st')
        self.phase2([])

    def ph2_pre(self):
        e = self.e
        mk_srd(e, SM, pB2, 1280); mk_srd(e, SPK, pOUT, 2048 * 1280)
        e(f"""s_mul_i32 s{sM0}, s{sNB}, 160
        s_and_b32 s{sM0+1}, s{sNB}, 1
        s_lshl_b32 s{sM0+2}, s{sM0+1}, 5
        s_add_u32 s{sM0+2}, s{sM0+2}, s{sM0}
        s_cmp_eq_u32 s{sM0+1}, 0
        s_cselect_b32 s{sM0+1}, 128, 0
        s_add_u32 s{sM0+1}, s{sM0+1}, s{sM0}
        s_cmp_eq_u32 s{sW}, 0
        s_cselect_b32 s{SM+2}, s{SM+2}, 0
        s_lshr_b32 s{sM0+5}, s{sRB}, 1
        s_lshl_b32 s{sM0+3}, s{sM0+5}, 11
        s_add_u32 s{sM0+3}, s{sM0+3}, {F4}
        s_add_u32 s{sM0+4}, s{sM0+3}, 1024
        s_lshl_b32 s{sM0+5}, s{sM0+5}, 10
        s_add_u32 s{sM0+5}, s{sM0+5}, {F5}
        v_lshlrev_b32 v7, 4, v2
        v_lshlrev_b32 v234, 3, v2
        v_and_b32 v235, 7, v0
        v_lshlrev_b32 v235, 7, v235""")
        e.vmop(f"buffer_load_dwordx4 v[224:227], v7, {srd(SM)}, s{sM0+2} offen", 'b2')
        e.vmop(f"buffer_load_dwordx4 v[228:231], v7, {srd(SM)}, s{sM0+2} offen offset:64", 'b2')
        e.vmop(f"buffer_load_dwordx2 v[232:233], v234, {srd(SM)}, s{sM0+1} offen", 'b2')
        e.vmop(self.poll_issue(235, 252, 2, None, f"s{sM0+3}"), 'p4a')

    def phase2(self, extra):
        e = self.e; c = self.c
        ACC = 16; BI = 96
        e.wait(vm='p4a')
        for l in self.poll_check([(235, 252, 2, f"s{sM0+3}")]): e(l)
        self.stamp(6)
        pool = [('v', r) for r in list(range(200, 224, 4)) + list(range(136, 200, 4)) + list(range(116, 136, 4))]
        Aloc = {}; Bl = dict(self.Bloc)
        groups = [(0, 1), (2, 3), (4, 5), (6, 7), (8, 9), (10, 11), (12, 13), (14, 15), (16, 17), (18,)]
        mf = []
        for g in groups:
            for t in range(5):
                for j in range(4):
                    for i in g: mf.append((i, t, j))
        NM = len(mf)
        firstA = {}; lastA = {}; firstB = {}; lastB = {}
        for m, (i, t, j) in enumerate(mf):
            firstA.setdefault((i, j), m); lastA[(i, j)] = m; firstB.setdefault((i, t), m); lastB[(i, t)] = m
        mtrans = min(m for m, x in enumerate(mf) if x[0] >= 14)
        work = [('A', k, firstA[k]) for k in firstA]
        work += [('S', k, firstB[k]) for k in firstB if Bl[k] and Bl[k][0] == 'l']
        work += [('B', k, firstB[k] - 30) for k in firstB if Bl[k] is None]
        work.sort(key=lambda w: w[2])
        gate = {0: True, 1: False, 2: False}
        cls = lambda i: 0 if i < 10 else (1 if i < 14 else 2)
        e(f"s_add_u32 s{sT0}, s88, {L_BL}\nv_add_u32 v234, s{sT0}, v6")
        def issue(w):
            kind, k, _ = w
            loc = pool.pop(0)
            if kind == 'A':
                i, j = k
                if self.Acur != i:
                    e(f"s_mov_b32 s{sAT}, s{sA9}" if i == 9 else f"s_add_u32 s{sAT}, s{sA}, {self.koff(i)*4096}"); self.Acur = i
                e.vmop(f"buffer_load_dwordx4 {R(loc)}, v{236+j}, {srd(SWS)}, s{sAT} offen {c.asc}", ('A', k)); Aloc[k] = loc
            elif kind == 'B':
                self.emit_items(self.B_items(k, loc)); Bl[k] = loc
            else:
                e.wait(vm=('B', k))
                e.lgop(f"ds_read_b128 {R(loc)}, v234 offset:{Bl[k][1]*1024}", ('S', k)); Bl[k] = loc
        def pick(m):
            for w in work:
                if w[0] == 'A' and not gate[cls(w[1][0])]: continue
                if w[0] == 'S' and w[2] - m > 16: continue
                if w[0] == 'B' and len(pool) < 6: continue
                if w[0] == 'A' and len(pool) < (3 if w[2] - m > 40 else 1): continue
                return w
            return None
        for _ in range(c.a0):
            w = pick(0); work.remove(w); issue(w)
        lastiss = -99
        e.wait(vm='b2')
        for t in range(5):
            for h in range(2):
                s_ = 224 + 2 * t + h
                e(f"v_lshlrev_b32 v{BI+4*t+2*h}, 16, v{s_}\nv_and_b32 v{BI+4*t+2*h+1}, 0xffff0000, v{s_}")
        pool += [('v', r) for r in (224, 228)]
        fq = sorted(extra, key=lambda f: f['at'])
        P1, C1, P2, C2 = c.p1, c.c1, c.p2, c.c2
        seen = set()
        for m, (i, t, j) in enumerate(mf):
            if m == mtrans:
                e.wait(vm='g')
                for jj in range(4): e(f"v_sub_f32 v{240+jj+1 if False else 8+2*jj}, 1.0, v{241+jj}")
                for tt in range(5):
                    for jj in range(4):
                        d = ACC + (jj * 5 + tt) * 4
                        for h in range(2): e(f"v_pk_mul_f32 v[{d+2*h}:{d+2*h+1}], v[{d+2*h}:{d+2*h+1}], v[{8+2*jj}:{9+2*jj}] op_sel_hi:[1,0]")
                self.stamp(7)
            assert (i, j) in Aloc and Bl[(i, t)] and Bl[(i, t)][0] != 'l', (m, i, t, j)
            e.wait(vm=[('A', (i, j)), ('B', (i, t))], lg=('S', (i, t)))
            d = ACC + (j * 5 + t) * 4
            cc = vr(d) if (j, t) in seen else vr(BI + 4 * t); seen.add((j, t))
            e(f"v_mfma_f32_16x16x32_bf16 {vr(d)}, {R(Bl[(i, t)])}, {R(Aloc[(i, j)])}, {cc}")
            if lastA[(i, j)] == m: pool.append(Aloc[(i, j)])
            if lastB[(i, t)] == m: pool.append(Bl[(i, t)])
            if m == 40: pool.extend([('v', BI + 4 * k) for k in range(5)])
            if m == P1: e.vmop(self.poll_issue(235, 252, 2, None, f"s{sM0+4}"), 'p4b'); continue
            if m == C1:
                self.stamp(10)
                e.wait(vm='p4b')
                for l in self.poll_check([(235, 252, 2, f"s{sM0+4}")]): e(l)
                self.stamp(11)
                gate[1] = True
                e(f"s_lshl_b32 s{sT0}, s{sRB}, 8\ns_add_u32 s{sT0}, s{sT0}, {GB}\nv_lshlrev_b32 v7, 2, v1")
                for jj in range(4):
                    e(f"v_subrev_u32 v8, v6, v{236+jj}\nv_lshrrev_b32 v8, 4, v8\nv_add_u32 v8, v8, v7")
                    e.vmop(f"buffer_load_dword v{241+jj}, v8, {srd(SWS)}, s{sT0} offen sc1", 'g')
                continue
            if m == P2: e.vmop(self.poll_issue(235, 254, 2, None, f"s{sM0+5}"), 'p5'); continue
            if m == C2:
                self.stamp(12)
                e.wait(vm='p5')
                for l in self.poll_check([(235, 254, 2, f"s{sM0+5}")]): e(l)
                self.stamp(13)
                gate[2] = True; continue
            if fq and fq[0]['at'] <= m:
                self.emit_items(fq.pop(0)['ins']); continue
            if c.fine and m in (1, 20, 40, 60, 80): self.stamp({1: 1, 20: 2, 40: 3, 60: 4, 80: 5}[m])
            w = pick(m)
            if w and pool and (w[0] == 'S' or m - lastiss >= c.ap or w[2] - m < 12):
                work.remove(w); issue(w)
                if w[0] != 'S': lastiss = m
        assert not work, work
        self.stamp(8)
        for jj in range(1, 4):
            e(f"""s_add_u32 s{sT0}, s{sW}, {jj}
            s_and_b32 s{sT0}, s{sT0}, 3
            s_mul_i32 s{sT0}, s{sT0}, 15360
            s_add_u32 s{sT0}, s{sT0}, {L_RED + (jj-1)*5120}
            v_add_u32 v{8+jj}, s{sT0}, v6""")
        e(f"s_mul_i32 s{sT0}, s{sW}, 15360\ns_add_u32 s{sT0}, s{sT0}, {L_RED}\nv_add_u32 v8, s{sT0}, v6")
        for t in range(5):
            for jj in range(1, 4): e.lgop(f"ds_write_b128 v{8+jj}, {vr(ACC+(jj*5+t)*4)} offset:{t*1024}", 'rw')
        e(f"""s_lshl_b32 s{sT0}, s{sRB}, 2
        s_add_u32 s{sT0}, s{sT0}, s{sW}
        s_mul_i32 s{sT0}, s{sT0}, {16*1280}
        s_add_u32 s{sT1}, s{sT0}, s{sM0+2}
        s_add_u32 s{sT2}, s{sT0}, s{sM0+1}
        v_mul_u32_u24 v12, 1280, v1
        v_lshl_add_u32 v13, v2, 3, v12
        v_lshl_add_u32 v12, v2, 4, v12""")
        e.wait(lg_all=True); e("s_barrier")
        for t in range(5):
            for s_ in range(3): e.lgop(f"ds_read_b128 {vr(116+(t*3+s_)*4)}, v8 offset:{s_*5120+t*1024}", ('rr', t))
        for t in range(5):
            e.wait(lg=('rr', t)); d = ACC + t * 4; r = 116 + t * 12
            e(f"""v_pk_add_f32 v[{d}:{d+1}], v[{d}:{d+1}], v[{r}:{r+1}]
            v_pk_add_f32 v[{d+2}:{d+3}], v[{d+2}:{d+3}], v[{r+2}:{r+3}]
            v_pk_add_f32 v[{r+4}:{r+5}], v[{r+4}:{r+5}], v[{r+8}:{r+9}]
            v_pk_add_f32 v[{r+6}:{r+7}], v[{r+6}:{r+7}], v[{r+10}:{r+11}]
            v_pk_add_f32 v[{d}:{d+1}], v[{d}:{d+1}], v[{r+4}:{r+5}]
            v_pk_add_f32 v[{d+2}:{d+3}], v[{d+2}:{d+3}], v[{r+6}:{r+7}]
            v_cvt_pk_bf16_f32 v{96+2*t}, v{d}, v{d+1}
            v_cvt_pk_bf16_f32 v{97+2*t}, v{d+2}, v{d+3}""")
            if t == 1: e.vmop(f"buffer_store_dwordx4 v[96:99], v12, {srd(SPK)}, s{sT1} offen", 'o')
            if t == 3: e.vmop(f"buffer_store_dwordx4 v[100:103], v12, {srd(SPK)}, s{sT1} offen offset:64", 'o')
            if t == 4: e.vmop(f"buffer_store_dwordx2 v[104:105], v13, {srd(SPK)}, s{sT2} offen", 'o')
        self.stamp(9)
        e("s_endpgm")

    def build(self):
        e = self.e
        self.prologue()
        st = (list(e.vm), list(e.lg))
        self.prog_KV()
        e.vm, e.lg = list(st[0]), list(st[1])
        self.prog_QH()
        e("\n".join(self.tail))
        e("L_end:\ns_endpgm")
        body = e.finish()
        hdr = open('cdna_kernels/' + NAME + '.s.ref').read().split('; Override launch')[0]
        K = NAME + "_kernel"
        out = hdr + "; Generated by a hand-written Python generator (persistent fused kernel; see comments in the generator).\n"
        out += "; @launch grid=(256,1,1) block=(256,1,1) lds=163840\n"
        out += f'.amdgcn_target "amdgcn-amd-amdhsa--gfx950"\n.text\n.globl {K}\n.p2align 8\n.type {K},@function\n{K}:\n' + body
        out += f""".fill 64, 4, 0xbf800000
.section .rodata,"a"
.p2align 6
.amdhsa_kernel {K}
  .amdhsa_next_free_vgpr 512
  .amdhsa_next_free_sgpr 102
  .amdhsa_accum_offset 256
  .amdhsa_group_segment_fixed_size 0
  .amdhsa_kernarg_size 104
  .amdhsa_user_sgpr_count 2
  .amdhsa_user_sgpr_kernarg_segment_ptr 1
  .amdhsa_system_sgpr_workgroup_id_x 1
.end_amdhsa_kernel
"""
        return out

Cfg.pe = 16; Cfg.dtail = 4; Cfg.qb1 = 22; Cfg.se = 10
Cfg.a0 = 12; Cfg.ap = 1; Cfg.fine = 0; Cfg.asc = 'sc1'
Cfg.f5at = 24; Cfg.f2at = 60
Cfg.oobB = 0; Cfg.noB = 0
Cfg.nof1 = 0
Cfg.p1 = 60; Cfg.c1 = 100; Cfg.p2 = 170; Cfg.c2 = 210

def generate(**kw):
    c = Cfg()
    for k, v in kw.items(): setattr(c, k, v)
    g = Gen(c); t = g.build()
    return t, g

if __name__ == "__main__":
    kw = {}
    for a_ in sys.argv[2:]:
        k, v = a_.split('='); kw[k] = int(v, 0) if v[0].isdigit() else v
    t, g = generate(**kw)
    open(sys.argv[1], 'w').write(t)
    print("instructions:", len(g.e.ins), "nops added:", g.e.nop_added)
```

```python
import sys, math
from emit import Emit
NAME = "gated_mix__linear_kernel_hedgehog__dense_activation_gelu__prompt"

TAG = 0x0
F1 = 0x1000
F2 = 0x2000; F3 = 0x6000; F4 = 0xa000; F5 = 0x12000
STAMP = 0x1000000
GB = 0x20000
PP = 0x40000; PSZ = 15360
FIN = 0x240000; FSZ = 7680
PB = 0x300000
A2 = 0x600000
OOB = 0x7ff00000

K1 = 1024
QH_ST = 46 * K1; KV_ST = 36 * K1
MISC = 154 * K1
L_WPHI = MISC; L_GATE = MISC + 3200; L_BIASKV = MISC + 4480; L_BIASQH = MISC + 3200
QH_PACK = 138 * K1; KV_PACK = 114 * K1
WH0 = 114 * K1; WH5 = 74 * K1
L_PHI = 0; RSP = 352; L_V = 128 * RSP; RSV = 224
L_BL = 0
NL = 18
L_RED = 80 * K1
L_FIN = 140 * K1

sW = 3
SX, SQ, S1, SWS, SPK, SM = 4, 8, 12, 16, 20, 24
pX, pQKV, pPHI, pWO, pBX, pW1, pB1, pW2, pB2, pGATE, pOUT, pDBG, pWS = [32 + 2 * i for i in range(13)]
sTAG = 58
sMT, sHG, sRB, sNB = 60, 61, 62, 63
sE = 64
sT0, sT1, sT2, sT3, sT4, sT5 = 74, 75, 76, 77, 78, 79
sM0 = 80
sBT, sAT, sB9, sA9 = 100, 101, 86, 87
sKW, sK1 = 89, 90
sF1 = 91
sPKD = 92
sA, sB = 96, 97
sC0, sC1 = 98, 99
sP0 = 28

def srd(r): return f"s[{r}:{r+3}]"
def vr(r, n=4): return f"v[{r}:{r+n-1}]" if n > 1 else f"v{r}"
def ar(r, n=4): return f"a[{r}:{r+n-1}]"
def R(loc, n=4): return (vr if loc[0] == 'v' else ar)(loc[1], n)
def fl(x):
    import struct
    return hex(struct.unpack('<I', struct.pack('<f', x))[0])

class Cfg:
    rot = 1; map2 = 1; stamps = 0; LA = 12; spin = 200000; codepf = 1; lag = 2; th1 = 2; th2 = 4; minlead = 4; verbose = 0; sleep = 3

sKA, sKB = 0, 1
def mk_srd(e, r, p, nbytes):
    e(f"s_mov_b32 s{r}, s{p}\ns_and_b32 s{r+1}, s{p+1}, 0xffff\ns_mov_b32 s{r+2}, {nbytes}\ns_mov_b32 s{r+3}, 0x20000")

class Gen:
    def __init__(self, cfg):
        self.c = cfg; self.e = Emit(); self.tail = []; self.uid = 0; self.nstamp = 0
    def record(self, fn):
        real = self.e
        class Rec:
            def __init__(r): r.items = []; r.lg = []; r.vm = []
            def __call__(r, t):
                for l in t.strip("\n").split("\n"):
                    if l.strip(): r.items.append(('x', l.strip()))
            def vmop(r, t, tag=None): r.items.append(('vm', t, tag))
            def lgop(r, t, tag=None): r.items.append(('lg', t, tag))
        rec = Rec(); self.e = rec
        try: fn()
        finally: self.e = real
        return rec.items
    def lab(self, p):
        self.uid += 1; return f"L_{p}_{self.uid}"
    def stamp(self, i, grp=1):
        if not self.c.stamps or (i and self.c.stamps != grp): return
        e = self.e
        e(f"s_memrealtime s[{sC0}:{sC1}]\ns_memtime s[30:31]\ns_waitcnt lgkmcnt(0)"); e.lg = []
        e(f"v_mov_b32 v14, s{sC0}\nv_mov_b32 v15, s30")
        e(f"s_lshl_b32 s{sC0}, s2, 2\ns_add_u32 s{sC0}, s{sC0}, s{sW}\ns_lshl_b32 s{sC0}, s{sC0}, 7\ns_add_u32 s{sC0}, s{sC0}, {STAMP}")
        e.vmop(f"buffer_store_dwordx2 v[14:15], v245, {srd(SWS)}, s{sC0} offen offset:{i*8}", 'stamp')
        if i == 0:
            e(f"v_mov_b32 v14, s54\nv_mov_b32 v15, s40")
            e.vmop(f"buffer_store_dwordx2 v[14:15], v245, {srd(SWS)}, s{sC0} offen offset:{15*8}", 'stamp')

    def dump(self, name, regs):
        if getattr(self.c, 'dbg', None) != name: return
        e = self.e
        e(f"s_lshl_b32 s{sBT}, s2, 2\ns_add_u32 s{sBT}, s{sBT}, s{sW}\ns_lshl_b32 s{sBT}, s{sBT}, 14\ns_add_u32 s{sBT}, s{sBT}, 0x2000000\nv_lshlrev_b32 v7, 2, v0")
        for i, r in enumerate(regs):
            e.vmop(f"buffer_store_dword v{r}, v7, {srd(SWS)}, s{sBT} offen offset:{(i%16)*256}", 'dbg')
            if i % 16 == 15: e(f"s_add_u32 s{sBT}, s{sBT}, 4096")
        e.wait(vm='dbg'); self.Bcur = None

    def poll_issue(self, vaddr, vdst, n, tag, soff="0"):
        suf = {2: 'dwordx2', 4: 'dwordx4'}[n]
        return f"buffer_load_{suf} {vr(vdst, n)}, v{vaddr}, {srd(SWS)}, {soff} offen sc1"
    def poll_check(self, loads):
        Ls, Lb = self.lab('slow'), self.lab('back')
        cmps = []; ors = []; k = 0
        prs = ['vcc', 's[28:29]', 's[30:31]', 's[40:41]']
        for (va, vd, n, so) in loads:
            for h in range(n // 2):
                cmps.append(f"v_cmp_ne_u64 {prs[k]}, s[{sTAG}:{sTAG+1}], v[{vd+2*h}:{vd+2*h+1}]")
                if k: ors.append(f"s_or_b64 vcc, vcc, {prs[k]}")
                k += 1
        cmps = cmps[::-1] if False else cmps
        fast = cmps + ors + [f"s_cbranch_vccnz {Ls}\n{Lb}:"]
        t = [f"{Ls}:", f"s_mov_b32 s54, {self.c.spin}", f"{Ls}_l:"]
        if self.c.sleep: t.append(f"s_sleep {self.c.sleep}")
        for (va, vd, n, so) in loads: t.append(self.poll_issue(va, vd, n, None, so))
        t += ["s_waitcnt vmcnt(0)"] + cmps + ors
        t += ["s_sub_u32 s54, s54, 1", f"s_cbranch_vccz {Ls}_x", "s_cmp_lg_u32 s54, 0", f"s_cbranch_scc1 {Ls}_l", f"{Ls}_x:", "s_nop 4", f"s_branch {Lb}"]
        self.tail += t
        return fast
    def flag_store(self, vaddr, vtag, soff="0"):
        return f"buffer_store_dwordx2 {vr(vtag, 2)}, v{vaddr}, {srd(SWS)}, {soff} offen sc1"

    def stream(self, mf, reads, fill, syncs=None, LA=None, name=''):
        e = self.e; LA = LA or self.c.LA
        reads = sorted(reads, key=lambda r: r[1]); rp = 0; synced = -1 if syncs else 99
        fq = sorted(fill, key=lambda f: f['at'])
        self.sid = getattr(self, 'sid', 0) + 1; sid = self.sid
        start = len(e.ins)
        def add_fill(items):
            lo = max([f['at'] for f in fq if f.get('chain')], default=-99)
            for f in items:
                if f.get('chain'): f['at'] = lo = max(f['at'], lo)
            fq.extend(items); fq.sort(key=lambda f: f['at'])
        def rd():
            nonlocal rp
            e.lgop(reads[rp][0], ('rd', sid, rp)); rp += 1
        if syncs: add_fill(syncs[0](0)); synced = 0
        while rp < len(reads) and reads[rp][1] < 8 and reads[rp][2] <= synced: rd()
        last_read = -99
        dl_of = {('rd', sid, i): r[1] for i, r in enumerate(reads)}
        def due(m): return [t for t in e.lg if t in dl_of and dl_of[t] <= m]
        ismem = lambda it: it[0] in ('vm', 'lg')
        for m in range(len(mf)):
            d = due(m)
            if d: e.wait(lg=d)
            e(mf[m])
            can = lambda: rp < len(reads) and reads[rp][2] <= synced and reads[rp][3] <= m and len(e.lg) < 15
            lead = lambda: reads[rp][1] - m
            if syncs and rp < len(reads) and reads[rp][2] > synced and m - last_read >= self.c.lag and lead() <= LA:
                synced = reads[rp][2]
                assert not any(it[0] == 'vm' and it[2] == ('S', synced) for f in fq for it in f['ins'])
                add_fill(syncs[synced](m + 1))
                if can(): rd(); last_read = m
                continue
            w = 1 if due(m + 1) else 0
            n = w; mem = 0
            if fq and fq[0]['at'] <= m:
                f = fq[0]
                if f.get('atomic'):
                    self.emit_items(f['ins']); n += len(f['ins']); mem += sum(map(ismem, f['ins'])); fq.pop(0)
                elif ismem(f['ins'][0]):
                    self.emit_items([f['ins'].pop(0)]); n += 1; mem += 1
                    if not f['ins']: fq.pop(0)
            if can() and lead() <= LA and (mem == 0 or (lead() <= LA - self.c.th1 and not w)):
                rd(); n += 1; mem += 1; last_read = m
            if can() and mem == 1 and not w and lead() <= LA - self.c.th2:
                rd(); n += 1; mem += 1
            while can() and lead() <= self.c.minlead: rd(); n += 1; mem += 1; last_read = m
            while (n < 2 or (fq and fq[0]['at'] <= m - 2 and n < 3)) and fq and fq[0]['at'] <= m + 2 and not fq[0].get('atomic') and not ismem(fq[0]['ins'][0]):
                f = fq[0]; self.emit_items([f['ins'].pop(0)]); n += 1
                if not f['ins']: fq.pop(0)
            assert rp >= len(reads) or reads[rp][1] > m + 1, (m, reads[rp])
        for f in fq: self.emit_items(f['ins'])
        if self.c.verbose:
            tot = 0; g = None
            for i in e.ins[start:]:
                if i.label: continue
                if i.kind == 'mfma':
                    if g is not None: tot += max(16, g)
                    g = 8; prevmem = False
                elif g is not None:
                    mm = i.kind in ('dsr', 'dsw', 'vload', 'vstore', 'dma')
                    g += 8 if (mm and prevmem) else 4; prevmem = mm
            print(f"stream {name}: {len(mf)} mfma, est clks {tot} (ideal {16*len(mf)})")

    def prologue(self):
        e = self.e; c = self.c
        if c.stamps: e("s_memrealtime s[54:55]\ns_memtime s[98:99]")
        e(f"""s_cmp_ge_u32 s2, 256
        s_cbranch_scc1 L_end
        s_load_dwordx16 s[32:47], s[0:1], 0
        s_load_dwordx4 s[48:51], s[0:1], 64
        s_load_dwordx2 s[52:53], s[0:1], 80
        s_load_dwordx2 s[56:57], s[0:1], 96""")
        if c.codepf:
            e(f"""s_getpc_b64 s[{sA}:{sB}]
            L_pf:
            s_lshr_b32 s{sT0}, s2, 3
            s_lshl_b32 s{sT0}, s{sT0}, 11
            v_lshrrev_b32 v1, 4, v0
            v_lshlrev_b32 v1, 7, v1
            v_add_u32 v1, s{sT0}, v1
            v_cmp_gt_u32 vcc, L_end-L_pf, v1
            v_cndmask_b32 v1, 0, v1, vcc""")
            e.vmop(f"global_load_dword v244, v1, s[{sA}:{sB}]", 'pf')
        e(f"""v_lshrrev_b32 v1, 6, v0
        v_and_b32 v0, 63, v0
        s_and_b32 s{sT0}, s2, 7
        v_readfirstlane_b32 s{sW}, v1
        s_lshr_b32 s{sT1}, s2, 3
        s_lshr_b32 s{sT2}, s{sT0}, 1
        s_and_b32 s{sT3}, s{sT1}, 3
        s_lshl_b32 s{sMT}, s{sT2}, 2
        s_add_u32 s{sMT}, s{sMT}, s{sT3}
        s_lshr_b32 s{sT4}, s{sT1}, 2
        s_and_b32 s{sHG}, s{sT0}, 1
        s_lshl_b32 s{sHG}, s{sHG}, 2
        s_and_b32 s{sT5}, s{sT4}, 3
        s_add_u32 s{sHG}, s{sHG}, s{sT5}""")
        if c.rot:
            e(f"""s_lshr_b32 s{sT5}, s{sT4}, 2
            s_add_u32 s{sE}, s{sT4}, s{sT5}
            s_mul_i32 s{sT5}, s{sT3}, 5
            s_lshr_b32 s{sT5}, s{sT5}, 1
            s_add_u32 s{sE}, s{sE}, s{sT5}
            s_cmp_ge_u32 s{sE}, 10
            s_cselect_b32 s{sT5}, 10, 0
            s_sub_u32 s{sE}, s{sE}, s{sT5}
            s_lshl_b32 s{sE}, s{sE}, 7""")
        else: e(f"s_mov_b32 s{sE}, 0")
        if c.map2:
            e(f"""s_and_b32 s{sRB}, s{sT1}, 7
            s_lshl_b32 s{sT2}, s{sT2}, 3
            s_add_u32 s{sRB}, s{sRB}, s{sT2}
            s_and_b32 s{sNB}, s{sT0}, 1
            s_lshl_b32 s{sNB}, s{sNB}, 2
            s_lshr_b32 s{sT2}, s{sT1}, 3
            s_add_u32 s{sNB}, s{sNB}, s{sT2}""")
        else:
            e(f"""s_lshl_b32 s{sRB}, s{sT0}, 2
            s_add_u32 s{sRB}, s{sRB}, s{sT3}
            s_mov_b32 s{sNB}, s{sT4}""")
        e("""v_and_b32 v1, 15, v0
        v_lshrrev_b32 v2, 4, v0
        v_bfe_u32 v3, v0, 2, 2
        v_and_b32 v4, 3, v0
        v_lshrrev_b32 v5, 3, v0
        v_lshlrev_b32 v6, 4, v0""")
        e(f"""s_lshl_b32 s{sT2}, s{sMT}, 2
        s_add_u32 s{sT2}, s{sT2}, s{sW}
        s_mul_i32 s{sT2}, s{sT2}, {32*1280}
        v_xor_b32 v7, v2, v0
        v_and_b32 v7, 7, v7
        v_lshlrev_b32 v7, 4, v7
        v_mul_u32_u24 v8, 1280, v5
        v_add_u32 v8, s{sT2}, v8
        v_add_u32 v208, v8, v7
        v_xor_b32 v7, 64, v7
        v_add_u32 v209, v8, v7
        v_add_u32 v209, {10240-1024}, v209
        v_add_u32 v210, {2*(10240-1024)}, v208
        v_add_u32 v211, {2*(10240-1024)}, v209
        s_lshl_b32 s{sM0}, s{sW}, 12
        s_add_u32 s{sE+1}, s{sE}, 128
        s_cmp_eq_u32 s{sE+1}, 1280
        s_cselect_b32 s{sE+1}, 0, s{sE+1}
        s_waitcnt lgkmcnt(0)
        s_load_dwordx2 s[{sTAG}:{sTAG+1}], s[{pWS}:{pWS+1}], {TAG}""")
        if c.stamps: e('s_mov_b32 s40, s98')
        mk_srd(e, SX, pX, 2048 * 1280); mk_srd(e, SQ, pQKV, 640 * 3840); mk_srd(e, S1, pW1, 640 * 3456)
        e(f"s_bitcmp1_b32 s{sT4}, 2\ns_cbranch_scc1 L_QH")

    def attn_voff(self, dst, cexpr_base, colbase_s):
        e = self.e
        e(f"""v_mul_u32_u24 v10, 6554, v9
        v_lshrrev_b32 v10, 16, v10
        v_mad_i32_i24 v11, v10, -10, v9""")
        self.swap23(10, 12)
        e(f"""v_mul_u32_u24 v10, 3840, v10
        v_lshl_add_u32 v10, v11, 4, v10
        v_add_u32 v{dst}, s{colbase_s}, v10""")
    def swap23(self, r, t):
        self.e(f"""v_lshrrev_b32 v{t}, 1, v{r}
        v_xor_b32 v{t}, v{t}, v{r}
        v_and_b32 v{t}, 4, v{t}
        v_mul_u32_u24 v{t}, 3, v{t}
        v_xor_b32 v{r}, v{r}, v{t}""")

    def small_dma(self, sr, vaddr, soff, ldsaddr, nlanes, tag, m0expr=None):
        e = self.e
        e(m0expr or f"s_mov_b32 m0, {ldsaddr}")
        if nlanes < 64: e(f"s_mov_b64 exec, {hex((1 << nlanes) - 1)}" if nlanes <= 32 else f"s_mov_b32 exec_hi, {hex((1 << (nlanes-32)) - 1)}")
        e.vmop(f"buffer_load_dwordx4 v{vaddr}, {srd(sr)}, {soff} offen lds", tag)
        if nlanes < 64: e("s_mov_b64 exec, -1")

    def csel(self, d, a, b):
        inl = lambda x: isinstance(x, str) or -16 <= x <= 64
        if inl(a) or inl(b): self.e(f"s_cselect_b32 s{d}, {a}, {b}")
        else: self.e(f"s_mov_b32 s{d}, {b}\ns_cselect_b32 s{d}, {a}, s{d}")

    def common_early(self, packbase):
        e = self.e; c = self.c
        mk_srd(e, SWS, pWS, 0x10000000)
        e(f"""s_lshl_b32 s{sT0}, s2, 2
        s_add_u32 s{sT0}, s{sT0}, s{sW}
        s_mul_i32 s{sT1}, s{sT0}, 6554
        s_lshr_b32 s{sT1}, s{sT1}, 16
        s_mul_i32 s{sT2}, s{sT1}, 10
        s_sub_u32 s{sT2}, s{sT0}, s{sT2}
        s_sub_u32 s{sT3}, s{sT1}, 54
        s_and_b32 s{sT3}, s{sT3}, 63
        s_mul_i32 s{sT4}, s{sT3}, 52
        s_lshr_b32 s{sT4}, s{sT4}, 8
        s_mul_i32 s{sT5}, s{sT4}, 5
        s_sub_u32 s{sT5}, s{sT3}, s{sT5}
        s_mul_i32 s{sC0}, s{sT4}, 160
        s_lshr_b32 s{sC1}, s{sT5}, 1
        s_mul_i32 s{sC1}, s{sC1}, 80
        s_and_b32 s{sT3}, s{sT5}, 1
        s_lshl_b32 s{sT3}, s{sT3}, 3
        s_add_u32 s{sC1}, s{sC1}, s{sT3}
        s_cmp_eq_u32 s{sT5}, 4
        s_cselect_b32 s{sC1}, 16, s{sC1}
        s_cselect_b32 s{sT3}, 80, 4
        s_add_u32 s{sC0}, s{sC0}, s{sC1}
        s_lshl_b32 s{sC1}, s{sT1}, 5
        s_cmp_lt_u32 s{sT1}, 54
        s_cselect_b32 s{sC0}, s{sC1}, s{sC0}
        s_cselect_b32 s{sT3}, 16, s{sT3}""")
        self.csel(sT4, 4 * 1280 - 1024, 20 * 1280 - 1024)
        e(f"""s_cselect_b32 s{SPK}, s{pW2}, s{pWO}
        s_cselect_b32 s{SPK+1}, s{pW2+1}, s{pWO+1}""")
        self.csel(SPK + 2, 1728 * 1280, 640 * 1280)
        e(f"""s_and_b32 s{SPK+1}, s{SPK+1}, 0xffff
        s_mov_b32 s{SPK+3}, 0x20000
        s_cmp_lt_u32 s{sT0}, 740
        s_cselect_b32 s{SPK+2}, s{SPK+2}, 0
        s_mul_i32 s{sC0}, s{sC0}, 1280
        s_lshl_b32 s{sC1}, s{sT2}, 7
        s_add_u32 s{sC0}, s{sC0}, s{sC1}
        v_lshrrev_b32 v9, 5, v0
        v_mul_lo_u32 v9, v9, s{sT3}
        v_and_b32 v10, 3, v5
        v_add_u32 v9, v9, v10
        v_mul_u32_u24 v9, 1280, v9
        v_and_b32 v10, 7, v0
        v_lshl_add_u32 v9, v10, 4, v9
        v_mov_b32 v252, v9
        s_mov_b32 s42, s{sC0}
        s_add_u32 s43, s42, s{sT4}
        s_add_u32 s38, s43, s{sT4}
        s_add_u32 s39, s38, s{sT4}""")
        mk_srd(e, SM, pPHI, 32 * 800)
        e(f"""s_lshl_b32 s{sT3}, s{sHG}, 2
        s_add_u32 s{sT3}, s{sT3}, s{sW}
        s_mul_i32 s36, s{sT3}, 800
        s_mul_i32 s37, s{sW}, 800
        s_add_u32 s37, s37, {L_WPHI}""")
        self.pk = (sT0, sT1, sT2, packbase)

    def early_dma_fill(self):
        packbase = self.pk[3]; f = []
        for i in range(4):
            ins = [('x', f"s_add_u32 m0, s{sM0}, {packbase}")] if i == 0 else []
            f.append(ins + [('vm', f"buffer_load_dwordx4 v252, {srd(SPK)}, s{(42, 43, 38, 39)[i]} offen offset:{i*1024} lds", 'packld')])
        out = [dict(at=2 * k, chain=1, ins=g) for k, g in enumerate(f)]
        out.append(dict(at=8, chain=1, atomic=1, ins=self.record(lambda: self.small_dma(SM, 6, "s36", None, 50, 'misc', "s_mov_b32 m0, s37"))))
        return out

    def common_late(self):
        e = self.e; packbase = self.pk[3]
        e(f"""s_lshl_b32 s{sC1}, s{sW}, 12
        v_lshlrev_b32 v9, 10, v2
        v_lshl_add_u32 v9, v3, 7, v9
        v_add_u32 v9, s{sC1}, v9
        v_add_u32 v9, {packbase}, v9""")
        for g in range(2):
            e(f"""s_lshl_b32 s{sT3}, s{sT2}, 1
            s_add_u32 s{sT3}, s{sT3}, {g}
            s_mul_i32 s{sT4}, s{sT3}, 52
            s_lshr_b32 s{sT4}, s{sT4}, 8
            s_mul_i32 s{sT5}, s{sT4}, 5
            s_sub_u32 s{sT5}, s{sT3}, s{sT5}
            s_cmp_eq_u32 s{sT5}, 2
            s_cselect_b32 s{sT3}, 3, 4
            s_cselect_b32 s{sC0}, 32, 8
            v_lshlrev_b32 v10, s{sT3}, v4
            v_add_u32 v{248+2*g}, v9, v10
            v_add_u32 v{249+2*g}, s{sC0}, v{248+2*g}""")
            for a_ in range(2):
                d = sPKD + 2 * g + a_
                e(f"""s_lshl_b32 s{sT3}, s{sT5}, 1
                s_add_u32 s{sT3}, s{sT3}, {a_}
                s_lshl_b32 s{sC0}, s{sT4}, 1
                s_cmp_ge_u32 s{sT3}, 5
                s_addc_u32 s{sC0}, s{sC0}, 0
                s_sub_u32 s{d}, s{sT3}, 6
                s_cmp_lt_u32 s{sT3}, 6
                s_cselect_b32 s{d}, s{sT3}, s{d}
                s_cmp_eq_u32 s{sT3}, 5
                s_cselect_b32 s{d}, 4, s{d}
                s_mul_i32 s{sC0}, s{sC0}, 74
                s_add_u32 s{sC0}, s{sC0}, s{sT1}
                s_mul_i32 s{sC0}, s{sC0}, 5
                s_add_u32 s{d}, s{d}, s{sC0}
                s_lshl_b32 s{d}, s{d}, 10
                s_add_u32 s{d}, s{d}, {PB}
                s_cmp_lt_u32 s{sT0}, 740
                s_cselect_b32 s{d}, s{d}, {OOB}""")
        for i in range(2, 10):
            e(f"s_add_u32 s{sE+i}, s{sE+i-1}, 128\ns_cmp_eq_u32 s{sE+i}, 1280\ns_cselect_b32 s{sE+i}, 0, s{sE+i}")
        e(f"""s_mul_i32 s{sB}, s{sNB}, 74
        s_add_u32 s{sB}, s{sB}, s{sW}
        s_mul_i32 s{sB}, s{sB}, 5120
        s_add_u32 s{sB}, s{sB}, {PB}
        s_mul_i32 s{sA}, s{sRB}, 74
        s_add_u32 s{sA}, s{sA}, s{sW}
        s_lshl_b32 s{sA}, s{sA}, 12
        s_add_u32 s{sA}, s{sA}, {A2}
        s_add_u32 s{sB9}, s{sB}, {36*5120}
        s_add_u32 s{sA9}, s{sA}, {36*4096}
        s_cmp_lt_u32 s{sW}, 2
        s_cselect_b32 s{sB9}, s{sB9}, {OOB}
        s_cselect_b32 s{sA9}, s{sA9}, {OOB}
        s_mul_i32 s88, s{sW}, {NL*1024}
        s_mov_b32 s55, {OOB}
        v_add_u32 v240, 4096, v6""")
        for j in range(4):
            e(f"s_add_u32 s{sT3}, s{sW}, {j}\ns_and_b32 s{sT3}, s{sT3}, 3\ns_lshl_b32 s{sT3}, s{sT3}, 10\nv_add_u32 v{236+j}, s{sT3}, v6")
        e(f"""s_lshl_b32 s{sF1}, s2, 3
        s_add_u32 s{sF1}, s{sF1}, {F1}
        s_cmp_eq_u32 s{sW}, 0
        s_cselect_b32 s{sF1}, s{sF1}, {OOB}
        v_mov_b32 v245, {OOB}
        v_cmp_eq_u32 vcc, 0, v0
        v_cndmask_b32 v245, v245, 0, vcc""")
    def tag_wait(self):
        self.e(f"""s_waitcnt lgkmcnt(0)
        s_add_u32 s{sTAG}, s{sTAG}, 1
        v_mov_b32 v247, s{sTAG+1}
        v_mov_b32 v246, s{sTAG}""")
        self.e.lg = []

    def kloop_common_fill(self, nm):
        f = []; ins = []
        for i in range(4):
            g = i >> 1
            ins.append(('lg', f"ds_read_b64_tr_b16 a[{160+4*i}:{161+4*i}], v{248+i} offset:{g*64}", 'pkrd'))
            ins.append(('lg', f"ds_read_b64_tr_b16 a[{162+4*i}:{163+4*i}], v{248+i} offset:{g*64+512}", 'pkrd'))
        P = 2 * nm
        for k, it in enumerate(ins): f.append(dict(at=P + 1 + 2 * k, ins=[it]))
        f.append(dict(at=P + 22, ins=[('wlg', 'pkrd')]))
        for i in range(4):
            f.append(dict(at=P + 23 + 2 * i, ins=[('vm', f"buffer_store_dwordx4 {ar(160+4*i)}, v6, {srd(SWS)}, s{sPKD+i} offen sc1", 'pkst')]))
        a0 = 7 * nm - 14
        f.append(dict(at=a0, ins=[('x', f"s_mov_b32 s{sT0}, {F1}"), ('x', "v_add_u32 v235, 1024, v6"), ('vm', self.poll_issue(6, 248, 4, None, f"s{sT0}"), 'f1p')]))
        f.append(dict(at=a0 + 4, ins=[('vm', self.poll_issue(235, 252, 4, None, f"s{sT0}"), 'f1p')]))
        chk = self.poll_check([(6, 248, 4, f"s{sT0}"), (235, 252, 4, f"s{sT0}")])
        a1 = 8 * nm - 36
        if self.c.nof1: chk[-1] = chk[-1].split('\n')[1]
        for k, t in enumerate([('wvm', 'f1p')] + [('x', t) for t in chk]): f.append(dict(at=a1 + 2 * k + (2 if k > 4 else 0), ins=[t]))
        f.append(dict(at=a1 + 20, ins=[('x', f"s_or_b32 s{sT1}, s2, s{sW}"), ('x', f"s_cmp_eq_u32 s{sT1}, 0\ns_cselect_b32 s{sT1}, {TAG}, {OOB}"),
                ('vm', self.flag_store(245, 246, f"s{sT1}"), 'tagst')]))
        return f

    def init_B(self):
        self.Bloc = {}; self.Bq = []
        order = [(i, t) for i in range(19) for t in range(5)]
        for u, k in enumerate(order):
            if u < 24: self.Bloc[k] = ('a', 160 + 4 * u)
            elif u < 64: self.Bloc[k] = ('a', 4 * (u - 24))
            elif u < 64 + NL: self.Bloc[k] = ('l', u - 64)
            else: self.Bloc[k] = None
        self.Border = order; self.Bnext = 0; self.Bcur = None; self.Acur = None
    def koff(self, i): return 4 * i - (2 if i >= 10 else 0)
    def B_items(self, k, loc):
        i, t = k; it = []
        if self.Bcur != i:
            it.append(('x', f"s_mov_b32 s{sBT}, s{sB9}" if i == 9 else f"s_add_u32 s{sBT}, s{sB}, {self.koff(i)*5120}")); self.Bcur = i
        va, imm = (6, t * 1024) if t < 4 else (240, 0)
        if loc[0] == 'l':
            assert L_BL + loc[1]*1024 - imm >= 0
            it.append(('x', f"s_add_u32 m0, s88, {L_BL + loc[1]*1024 - imm}"))
            it.append(('vm', f"buffer_load_dwordx4 v{va}, {srd(SWS)}, s{sBT} offen offset:{imm} sc1 lds", ('B', k)))
        else:
            it.append(('vm', f"buffer_load_dwordx4 {R(loc)}, v{va}, {srd(SWS)}, s{sBT} offen offset:{imm} sc1", ('B', k)))
        return it
    def B_take(self, us):
        out = []
        for u in us:
            k = self.Border[u]; out.append(self.B_items(k, self.Bloc[k]))
            if self.c.oobB: out[-1] = [it for it in out[-1] if it[0] != 'x' or 'm0' in it[1]]; out[-1] = [(it[0], it[1].replace(f"s{sBT} offen", "s55 offen"), it[2]) if it[0] == 'vm' else it for it in out[-1]]
            if self.c.noB: out[-1] = [('x', 's_nop 0')]
        return out
    def emit_items(self, items):
        e = self.e
        for it in items:
            if it[0] == 'vm': e.vmop(it[1], it[2])
            elif it[0] == 'lg': e.lgop(it[1], it[2])
            elif it[0] == 'wvm': e.wait(vm=it[1])
            elif it[0] == 'wlg': e.wait(lg=it[1])
            else: e(it[1])
    def valu(self, lines, side, every):
        n = 0
        for l in lines:
            if isinstance(l, str): self.e(l)
            else: self.emit_items([l])
            n += 1
            if side and n % every == 0: self.emit_items(side.pop(0))

    def interleave(self, items, side, every):
        W = ('s_cmp', 's_add', 's_sub', 's_and', 's_or', 's_xor', 's_lshl', 's_lshr', 's_bitcmp', 's_min', 's_max')
        Rd = ('s_cselect', 's_addc', 's_subb', 's_cbranch_scc')
        live = [False] * len(items); l = False
        for i in range(len(items) - 1, -1, -1):
            live[i] = l
            t = items[i][1]
            if t.startswith(Rd): l = True
            elif t.startswith(W): l = False
        n = 0
        for i, it in enumerate(items):
            self.emit_items([it]); n += 1
            if side and n >= every and not live[i]: self.emit_items(side.pop(0)); n = 0
        for g in side: self.emit_items(g)

    def gelu_lines(self, X, Y, T, O):
        U = [X, X + 2, Y, Y + 2]; L = []
        P = lambda r: f"v[{r}:{r+1}]"
        for i in range(4): L.append(f"v_pk_mul_f32 {P(T+2*i)}, {P(U[i])}, {P(U[i])}")
        for i in range(4): L.append(f"v_pk_fma_f32 {P(T+2*i)}, {P(T+2*i)}, v[14:15], s[{sC0}:{sC1}] op_sel_hi:[1,0,0]")
        for i in range(4): L.append(f"v_pk_mul_f32 {P(T+2*i)}, {P(T+2*i)}, {P(U[i])}")
        for i in range(8): L.append(f"v_exp_f32 v{T+i}, v{T+i}")
        for i in range(4): L.append(f"v_pk_add_f32 {P(T+2*i)}, {P(T+2*i)}, 1.0 op_sel_hi:[1,0]")
        for i in range(8): L.append(f"v_rcp_f32 v{T+i}, v{T+i}")
        for i in range(4): L.append(f"v_pk_mul_f32 {P(T+2*i)}, {P(T+2*i)}, {P(U[i])}")
        for i in range(4): L.append(f"v_cvt_pk_bf16_f32 v{O+i}, v{T+2*i}, v{T+2*i+1}")
        return L
    def gelu_consts(self):
        c1 = -2.0 * math.sqrt(2.0 / math.pi) * math.log2(math.e)
        self.e(f"s_mov_b32 s{sC0}, {fl(c1)}\nv_mov_b32 v14, {fl(c1 * 0.044715)}")
    def softmax_lines(self, Pp, E, PH):
        L = []; P = lambda r: f"v[{r}:{r+1}]"
        L += [f"v_max3_f32 v8, v{Pp}, v{Pp+1}, v{Pp+2}", f"v_min3_f32 v10, v{Pp}, v{Pp+1}, v{Pp+2}"]
        for i in range(3, 19, 2): L += [f"v_max3_f32 v8, v8, v{Pp+i}, v{Pp+i+1}", f"v_min3_f32 v10, v10, v{Pp+i}, v{Pp+i+1}"]
        L += [f"v_max_f32 v8, v8, v{Pp+19}", f"v_min_f32 v10, v10, v{Pp+19}"]
        L += [f"v_mul_f32_e64 v8, -v8, s{sC0}", f"v_mul_f32 v10, s{sC0}, v10"]
        for i in range(10):
            L.append(f"v_pk_fma_f32 {P(E+2*i)}, {P(Pp+2*i)}, s[{sC0}:{sC1}], v[8:9] op_sel_hi:[1,0,0]")
            L.append(f"v_pk_fma_f32 {P(E+20+2*i)}, {P(Pp+2*i)}, s[{sC0}:{sC1}], v[10:11] op_sel_hi:[1,0,0] neg_lo:[1,0,0] neg_hi:[1,0,0]")
        for i in range(40): L.append(f"v_exp_f32 v{E+i}, v{E+i}")
        L += [f"v_pk_add_f32 v[8:9], {P(E)}, {P(E+2)}", f"v_pk_add_f32 v[10:11], {P(E+20)}, {P(E+22)}"]
        for i in range(2, 10): L += [f"v_pk_add_f32 v[8:9], v[8:9], {P(E+2*i)}", f"v_pk_add_f32 v[10:11], v[10:11], {P(E+20+2*i)}"]
        L += ["v_add_f32 v8, v8, v9", "v_add_f32 v10, v10, v11", "v_rcp_f32 v8, v8", "v_rcp_f32 v10, v10"]
        for i in range(10): L.append(f"v_pk_mul_f32 {P(E+2*i)}, {P(E+2*i)}, v[8:9] op_sel_hi:[1,0]")
        for i in range(10): L.append(f"v_pk_mul_f32 {P(E+20+2*i)}, {P(E+20+2*i)}, v[10:11] op_sel_hi:[1,0]")
        for i in range(20): L.append(f"v_cvt_pk_bf16_f32 v{PH+i}, v{E+2*i}, v{E+2*i+1}")
        return L
    def wphi_reads(self, va):
        self.e(f"v_mul_u32_u24 v{va}, 800, v2\nv_mad_u32_u24 v{va}, v3, 40, v{va}\nv_add_u32 v{va}, {L_WPHI}, v{va}")
        return [[('lg', f"ds_read_b64_tr_b16 v[{168+2*(dg*5+fg)}:{169+2*(dg*5+fg)}], v{va} offset:{dg*160 + fg*8}", 'wphi')] for dg in range(5) for fg in range(5)]
    def phi_mfmas(self, KQ, Pp):
        L = []
        for dg in range(5):
            for j in range(2):
                for fg in range(5):
                    d = Pp + 20 * j + 4 * fg; w = 168 + 2 * (dg * 5 + fg); b = KQ + 10 * j + 2 * dg
                    L.append(f"v_mfma_f32_4x4x4_16b_bf16 {vr(d)}, v[{w}:{w+1}], v[{b}:{b+1}], {vr(d) if dg else 0}")
        return L
    def cvt_heads(self, acc0, dst, j, n=5):
        return [f"v_cvt_pk_bf16_f32 v{dst+2*t+h}, v{acc0+(t*2+j)*4+2*h}, v{acc0+(t*2+j)*4+2*h+1}" for t in range(n) for h in range(2)]
    def rho0(self, dst):
        self.e(f"v_lshrrev_b32 v{dst}, 1, v2\nv_lshl_add_u32 v{dst}, v{dst}, 4, v3\nv_and_b32 v7, 1, v2\nv_lshl_add_u32 v{dst}, v7, 2, v{dst}")
    def x_addr(self, ST):
        e = self.e
        e(f"""v_lshrrev_b32 v9, 1, v1
        v_xor_b32 v9, v9, v2
        v_lshlrev_b32 v9, 4, v9
        v_lshl_add_u32 v9, v1, 7, v9
        v_add_u32 v220, s{sM0}, v9
        v_xor_b32 v221, 64, v220""")
        for sl in (1, 2): e(f"v_add_u32 v{220+2*sl}, {sl*ST}, v220\nv_add_u32 v{221+2*sl}, {sl*ST}, v221")
    def paced(self, groups, m0, span):
        n = len(groups)
        return [dict(at=m0 + int((k + 0.2) * span / n), chain=1, ins=list(g)) for k, g in enumerate(groups)]
    def flag_addr(self, d, base, rbmul, slotexpr_regs):
        pass

    def prog_QH(self):
        e = self.e; c = self.c; self.init_B()
        e("L_QH:")
        ST = QH_ST
        e(f"""s_mul_i32 s{sKW}, s{sHG}, 320
        s_lshl_b32 s{sT0}, s{sHG}, 8
        s_add_u32 s{sT0}, s{sT0}, 384
        s_cmp_lt_u32 s{sHG}, 6
        s_cselect_b32 s{sKW}, s{sKW}, s{sT0}
        s_cselect_b32 s{sK1}, 20, 16""")
        mk_srd(e, SM, pB1, 3456)
        e(f"s_mul_i32 s{sT1}, s{sW}, 320")
        self.small_dma(SM, 6, f"s{sKW}", None, 20, 'bias', f"s_add_u32 m0, s{sT1}, {L_BIASQH}")
        def dma_x(st):
            g = []
            for j in range(4):
                it = [('x', f"s_add_u32 m0, s{sM0}, {(st%3)*ST}")] if j == 0 else []
                g.append(it + [('vm', f"buffer_load_dwordx4 v{208+j}, {srd(SX)}, s{sE+st} offen offset:{j*1024} lds", ('S', st))])
            return g
        def dma_a(st, i):
            it = []
            if i == 0: it = [('x', f"s_mul_i32 s{sKA}, s{sE+st}, 1920"), ('x', f"s_add_u32 m0, s{sM0+1}, {(st%3)*ST}")]
            if i == 2: it = [('x', f"s_mov_b32 m0, s{sM0+3+st%3}")]
            return it + [('vm', f"buffer_load_dwordx4 v{212+i}, {srd(SQ)}, s{sKA} offen offset:{1024 if i == 1 else 0} lds", ('S', st))]
        def dma_h(st, i):
            it = []
            if i == 0: it = [('x', f"s_mul_i32 s{sKB}, s{sE+st}, 1728"), ('x', f"s_add_u32 m0, s{sM0+2}, {(st%3)*ST}")]
            if i == 4: it = [('x', "s_add_u32 m0, m0, 4096")]
            return it + [('vm', f"buffer_load_dwordx4 v{215+i}, {srd(S1)}, s{sKB} offen offset:{(i%4)*1024} lds", ('S', st))]
        def dma_stage(st): return dma_x(st) + [dma_a(st, i) for i in range(3)] + [dma_h(st, i) for i in range(5)]
        for g in dma_x(0): self.emit_items(g)
        e(f"""s_mul_i32 s{sT0}, s{sW}, 3
        s_lshl_b32 s{sT1}, s{sW}, 1
        s_add_u32 s{sT1}, s{sT1}, 2
        s_cmp_lt_u32 s{sW}, 2
        s_cselect_b32 s{sT0}, s{sT0}, s{sT1}
        s_lshl_b32 s{sM0+1}, s{sT0}, 10
        s_add_u32 s{sM0+1}, s{sM0+1}, 16384""")
        for sl in range(3):
            e(f"s_add_u32 s{sM0+3+sl}, s{sM0+1}, {2048 + sl*ST}\ns_cmp_lt_u32 s{sW}, 2\ns_cselect_b32 s{sM0+3+sl}, s{sM0+3+sl}, {MISC+4608}")
        e(f"s_lshl_b32 s{sT0}, s{sT0}, 6\ns_mul_i32 s{sT1}, s{sHG}, 160\ns_mul_i32 s{sM0+2}, s{sW}, 5120\ns_add_u32 s{sM0+2}, s{sM0+2}, {16384+10240}")
        for i in range(3):
            e(f"v_add_u32 v9, {64*i}, v0\nv_add_u32 v9, s{sT0}, v9")
            self.attn_voff(212 + i, None, sT1)
            if i == 1: e("v_subrev_u32 v213, 1024, v213")
            if i == 2: e(f"s_cmp_lt_u32 s{sW}, 2\ns_cselect_b32 s{sT4}, 0, {OOB}\nv_add_u32 v214, s{sT4}, v214")
            self.emit_items(dma_a(0, i))
        e(f"s_mul_i32 s{sT0}, s{sW}, 320")
        for i in range(5):
            e(f"""v_add_u32 v9, {64*i}, v0
            v_add_u32 v9, s{sT0}, v9
            v_mul_u32_u24 v10, 3277, v9
            v_lshrrev_b32 v10, 16, v10
            v_mul_u32_u24 v11, 20, v10
            v_sub_u32 v11, v9, v11
            v_bfe_u32 v13, v10, 2, 1
            v_lshlrev_b32 v13, 1, v13
            v_xor_b32 v11, v11, v13""")
            self.swap23(10, 12)
            e(f"""v_mul_u32_u24 v10, 3456, v10
            v_lshl_add_u32 v10, v11, 4, v10
            v_add_u32 v10, s{sKW}, v10
            v_subrev_u32 v10, {(i%4)*1024}, v10
            v_cmp_gt_u32 vcc, s{sK1}, v11
            v_mov_b32 v13, {OOB}
            v_cndmask_b32 v{215+i}, v13, v10, vcc""")
            self.emit_items(dma_h(0, i))
        def setup():
            e = self.e
            self.x_addr(ST); self.rho0(8)
            e(f"v_mul_u32_u24 v9, 160, v8\nv_mad_u32_u24 v9, v4, 40, v9\nv_add_u32 v226, 16384, v9")
            e(f"v_mul_u32_u24 v9, 320, v8\nv_lshl_add_u32 v9, v4, 3, v9\nv_add_u32 v9, {16384+10240}, v9\nv_lshl_add_u32 v229, v7, 5, v9\nv_xor_b32 v7, 1, v7\nv_lshl_add_u32 v232, v7, 5, v9")
            for sl in (1, 2): e(f"v_add_u32 v{226+sl}, {sl*ST}, v226\nv_add_u32 v{229+sl}, {sl*ST}, v229\nv_add_u32 v{232+sl}, {sl*ST}, v232")
            self.common_early(QH_PACK); self.common_late()
            e(f"s_mul_i32 s{sT1}, s{sW}, 320\ns_add_u32 s{sT1}, s{sT1}, {L_BIASQH}\nv_lshl_add_u32 v9, v2, 3, s{sT1}")
        self.interleave(self.record(setup), dma_stage(1), c.pe)
        self.tag_wait()
        e.wait(vm='bias')
        for s_ in range(10): e.lgop(f"ds_read_b64 v[{136+2*s_}:{137+2*s_}], v9 offset:{s_*32}", 'b')
        e.wait(lg_all=True)
        for s_ in range(10):
            a0 = 16 + (5 + s_) * 8
            for h in range(2): e(f"v_lshlrev_b32 v{a0+2*h}, 16, v{136+2*s_+h}\nv_and_b32 v{a0+2*h+1}, 0xffff0000, v{136+2*s_+h}")
        self.stamp(0)
        NS = 15; nm = NS * 4; mf = []; reads = []
        for st in range(10):
            sl = st % 3
            for t in range(NS):
                gs = st * NS + t; wr = 168 + 8 * (gs % 4); m0 = len(mf)
                for ks in range(2):
                    for rd in range(2):
                        if t < 5: ad, off = 226 + sl, ks * 5120 + rd * 1280 + t * 8
                        else: ad, off = (229 if (t - 5) % 2 == 0 else 232) + sl, ks * 10240 + rd * 2560 + ((t - 5) >> 1) * 64
                        reads.append([f"ds_read_b64_tr_b16 v[{wr+4*ks+2*rd}:{wr+4*ks+2*rd+1}], v{ad} offset:{off}", m0, st, m0 - 13])
                jo = (1, 0) if st == 0 else (0, 1)
                for j in jo:
                    for ks in range(2):
                        xr = 136 + (st % 2) * 16 + (j * 2 + ks) * 4; d = 16 + (t * 2 + j) * 4
                        if t == 0: reads.append([f"ds_read_b128 {vr(xr)}, v{220+2*sl+ks} offset:{j*2048}", len(mf), st, -1])
                        cc = vr(d)
                        if st == 0 and ks == 0: cc = "0" if t < 5 else vr(16 + t * 8)
                        mf.append(f"v_mfma_f32_16x16x32_bf16 {vr(d)}, {vr(wr+4*ks)}, {vr(xr)}, {cc}")
        def mksync(st):
            def f(m):
                tags = [('S', st)] + (['pkst'] if st == 4 else []) + (['packld', 'misc'] if st == 2 else [])
                e.wait(vm=tags, lg_all=True); e("s_barrier")
                self.stamp(st + 1, 2)
                out = self.early_dma_fill() if st == 0 else []
                if st + 2 < 10: out += self.paced(dma_stage(st + 2), m + (12 if st == 0 else 0), nm - c.dtail - (22 if st == 0 else 0))
                else: out += self.paced(self.B_take(range((st - 8) * 12, (st - 7) * 12)), m, nm - c.dtail)
                if st == 4: out.append(dict(at=m + 1, ins=[('vm', self.flag_store(245, 246, f"s{sF1}"), 'f1st')]))
                return out
            return f
        self.stream(mf, reads, self.kloop_common_fill(nm), {st: mksync(st) for st in range(10)}, name='QH')
        self.stamp(1); self.stamp(11, 2)
        side = self.B_take(range(24, 24 + c.qb1))
        wr_ = self.wphi_reads(13)
        self.gelu_consts()
        e(f"""s_lshl_b32 s{sT0}, s{sMT}, 1
        s_lshr_b32 s{sT1}, s{sW}, 1
        s_add_u32 s{sT0}, s{sT0}, s{sT1}
        s_and_b32 s{sT1}, s{sW}, 1
        s_mul_i32 s{sT2}, s{sT0}, 74
        s_lshl_b32 s{sT2}, s{sT2}, 12
        s_lshl_b32 s{sT3}, s{sT1}, 11
        s_add_u32 s{sT2}, s{sT2}, s{sT3}
        s_add_u32 s{sT2}, s{sT2}, {A2}
        s_lshl_b32 s{sT3}, s{sKW}, 6
        s_add_u32 s{sT3}, s{sT3}, s{sT2}""")
        L = []
        for p in range(5):
            for j in range(2):
                O = 152 + 4 * ((2 * p + j) % 4)
                L += self.gelu_lines(16 + ((5 + 2 * p) * 2 + j) * 4, 16 + ((6 + 2 * p) * 2 + j) * 4, 136 + 8 * j, O)
                if j == 0:
                    if p == 4: L += [f"s_add_u32 s{sT4}, s{sT3}, {4*4096}", f"s_cmp_lt_u32 s{sHG}, 6", f"s_cselect_b32 s{sT4}, s{sT4}, {OOB}"]
                    else: L.append(f"s_add_u32 s{sT4}, s{sT3}, {p*4096}")
                L.append(('vm', f"buffer_store_dwordx4 {vr(O)}, v6, {srd(SWS)}, s{sT4} offen offset:{j*1024} sc1", 'hst'))
        mixed = []
        while side or wr_:
            if side: mixed.append(side.pop(0))
            if wr_: mixed.append(wr_.pop(0))
        self.valu(L, mixed, max(1, 410 // len(mixed)))
        for j in range(2):
            for l in self.cvt_heads(16, 56 + 10 * j, j): e(l)
        for g in mixed: self.emit_items(g)
        self.stamp(2)
        side = self.B_take(range(24 + c.qb1, 64))
        e.wait(lg='wphi')
        self.valu(self.phi_mfmas(56, 76), side, 8)
        e(f"""s_lshl_b32 s{sT4}, s{sMT}, 4
        s_add_u32 s{sT4}, s{sT4}, s{sHG}
        s_lshl_b32 s{sT4}, s{sT4}, 7
        s_add_u32 s{sT4}, s{sT4}, {F4}
        s_cmp_eq_u32 s{sW}, 0
        s_cselect_b32 s{sT5}, s{sT4}, {OOB}
        s_mov_b32 s{sC0}, {fl(math.log2(math.e))}""")
        e.wait(vm='hst'); e("s_barrier")
        e.vmop(self.flag_store(245, 246, f"s{sT5}"), 'f4st')
        side += self.B_take(range(64, 64 + NL))
        self.valu(self.softmax_lines(76, 16, 56), side, c.se)
        e(f"""s_lshl_b32 s{sKW}, s{sHG}, 11
        s_add_u32 s{sKW}, s{sKW}, {F3}
        s_add_u32 s{sK1}, s{sT4}, 1024
        s_sub_u32 s{sK1}, s{sK1}, s{sKW}
        v_lshlrev_b32 v12, 7, v1
        v_mov_b32 v13, s{sK1}
        v_cmp_eq_u32 vcc, 16, v0
        v_cndmask_b32 v12, v12, v13, vcc""")
        L2 = self.softmax_lines(96, 16, 116)
        self.valu(L2[:70], side, c.se)
        pl = [(12, 248, 2, f"s{sKW}")]
        for p_ in pl: e.vmop(self.poll_issue(p_[0], p_[1], 2, None, p_[3]), 'pl')
        self.valu(L2[70:], side, c.se)
        for g in side: self.emit_items(g)
        self.stamp(3)
        e.wait(vm='pl')
        for l in self.poll_check(pl): e(l)
        self.stamp(4)
        e(f"""s_mul_i32 s{sKW}, s{sHG}, {FSZ}
        s_mul_i32 s{sK1}, s{sW}, 1920
        s_add_u32 s{sKW}, s{sKW}, s{sK1}
        s_add_u32 s{sKW}, s{sKW}, {FIN}
        s_add_u32 m0, s{sK1}, {L_FIN}""")
        e.vmop(f"buffer_load_dwordx4 v6, {srd(SWS)}, s{sKW} offen sc1 lds", 'fin')
        e("s_mov_b32 exec_hi, 0xffffff")
        e.vmop(f"buffer_load_dwordx4 v6, {srd(SWS)}, s{sKW} offen offset:1024 sc1 lds", 'fin')
        e(f"""s_mov_b64 exec, -1
        s_lshl_b32 s{sKW}, s{sHG}, 13
        s_lshl_b32 s{sK1}, s{sMT}, 2
        s_add_u32 s{sK1}, s{sK1}, s{sW}
        s_lshl_b32 s{sK1}, s{sK1}, 7
        s_add_u32 s{sKW}, s{sKW}, s{sK1}
        s_add_u32 s{sKW}, s{sKW}, {GB}
        v_lshlrev_b32 v12, 2, v1""")
        for j in range(2): e.vmop(f"buffer_load_dword v{14+j}, v12, {srd(SWS)}, s{sKW} offen offset:{j*64} sc1", 'g')
        self.ph2_pre()
        e(f"v_lshlrev_b32 v13, 6, v2\nv_lshl_add_u32 v13, v4, 4, v13\nv_add_u32 v13, {L_FIN}, v13")
        e.wait(vm='fin'); e("s_barrier")
        mf = []; reads = []
        for fp in range(5):
            for dg in range(6):
                n = fp * 6 + dg; fr = 168 + 4 * (n % 8); m0 = len(mf)
                reads.append([f"ds_read_b128 {vr(fr)}, v13 offset:{(dg*5+fp)*256}", m0, -1, m0 - 28])
                for h in range(2):
                    for j in range(2):
                        d = (16 if j == 0 else 76) + 4 * dg; b = (56 if j == 0 else 116) + 2 * (2 * fp + h)
                        mf.append(f"v_mfma_f32_4x4x4_16b_bf16 {vr(d)}, v[{fr+2*h}:{fr+2*h+1}], v[{b}:{b+1}], {vr(d) if (fp or h) else 0}")
        mf2 = []
        for n in range(0, 30, 2):
            a_, b_ = mf[4*n:4*n+4], mf[4*n+4:4*n+8]
            mf2 += [a_[0], a_[1], b_[0], b_[1], a_[2], a_[3], b_[2], b_[3]]
        for r in reads: r[1] = (r[1] // 8) * 8 + (2 if (r[1] // 4) % 2 else 0); r[3] = (r[1] // 8) * 8 - 24
        self.stream(mf2, reads, [], None, LA=20)
        e.wait(vm='g')
        e(f"""s_lshr_b32 s{sT4}, s{sHG}, 1
        s_mul_i32 s{sT4}, s{sT4}, 5
        s_add_u32 s{sT4}, s{sT4}, 54
        s_lshl_b32 s{sT4}, s{sT4}, 12
        s_add_u32 s{sT4}, s{sT4}, s{sT2}
        s_and_b32 s{sT5}, s{sHG}, 1
        s_lshl_b32 s{sKW}, s{sT5}, 13
        s_add_u32 s{sKW}, s{sKW}, s{sT4}
        s_add_u32 s{sK1}, s{sKW}, 4096
        s_lshl_b32 s{sT5}, s{sT5}, 3
        s_add_u32 s{sT4}, s{sT4}, s{sT5}
        s_add_u32 s{sT4}, s{sT4}, {4*4096}""")
        for j in range(2):
            D = 16 if j == 0 else 76; O = 40 if j == 0 else 100
            e(f"v_add_f32 v8, {fl(1e-6)}, v{D+20}\nv_rcp_f32 v8, v8\nv_mul_f32 v8, v8, v{14+j}")
            for i in range(10): e(f"v_pk_mul_f32 v[{D+2*i}:{D+2*i+1}], v[{D+2*i}:{D+2*i+1}], v[8:9] op_sel_hi:[1,0]")
            for i in range(10): e(f"v_cvt_pk_bf16_f32 v{O+i}, v{D+2*i}, v{D+2*i+1}")
            e.vmop(f"buffer_store_dwordx4 {vr(O)}, v6, {srd(SWS)}, s{sKW} offen offset:{j*1024} sc1", 'ost')
            e.vmop(f"buffer_store_dwordx4 {vr(O+4)}, v6, {srd(SWS)}, s{sK1} offen offset:{j*1024} sc1", 'ost')
            e.vmop(f"buffer_store_dwordx2 {vr(O+8, 2)}, v6, {srd(SWS)}, s{sT4} offen offset:{j*1024} sc1", 'ost')
        e(f"""s_lshl_b32 s{sT4}, s{sMT}, 3
        s_add_u32 s{sT4}, s{sT4}, s{sHG}
        s_lshl_b32 s{sT4}, s{sT4}, 7
        s_add_u32 s{sT4}, s{sT4}, {F5}
        s_cmp_eq_u32 s{sW}, 0
        s_cselect_b32 s{sKW}, s{sT4}, {OOB}""")
        self.stamp(5)
        self.phase2([dict(at=c.f5at, ins=[('wvm', 'ost'), ('x', 's_barrier'), ('vm', self.flag_store(245, 246, f"s{sKW}"), 'f5st')])])

    def prog_KV(self):
        e = self.e; c = self.c; self.init_B()
        ST = KV_ST
        e(f"s_mul_i32 s{sM0+1}, s{sW}, 5120\ns_add_u32 s{sM0+1}, s{sM0+1}, 16384")
        def dma_x(st):
            g = []
            for j in range(4):
                it = [('x', f"s_add_u32 m0, s{sM0}, {(st%3)*ST}")] if j == 0 else []
                g.append(it + [('vm', f"buffer_load_dwordx4 v{208+j}, {srd(SX)}, s{sE+st} offen offset:{j*1024} lds", ('S', st))])
            return g
        def dma_w(st, i):
            it = []
            if i == 0: it = [('x', f"s_mul_i32 s{sKA}, s{sE+st}, 1920"), ('x', f"s_add_u32 m0, s{sM0+1}, {(st%3)*ST}")]
            if i == 4: it = [('x', "s_add_u32 m0, m0, 4096")]
            return it + [('vm', f"buffer_load_dwordx4 v{212+i}, {srd(SQ)}, s{sKA} offen offset:{(i%4)*1024} lds", ('S', st))]
        def dma_stage(st): return dma_x(st) + [dma_w(st, i) for i in range(5)]
        def whbase(ch): return (WH0 + ch * 8192) if ch < 5 else (WH5 + (ch - 5) * 8192)
        def dma_wh(ch):
            return [[('x', f"s_mul_i32 s{sKB}, s{sE+ch}, 1728"), ('x', f"s_add_u32 m0, s{sM0+2}, {whbase(ch)}"),
                     ('vm', f"buffer_load_dwordx4 v217, {srd(S1)}, s{sKB} offen lds", 'WH')],
                    [('vm', f"buffer_load_dwordx4 v218, {srd(S1)}, s{sKB} offen offset:1024 lds", 'WH')]]
        for g in dma_x(0): self.emit_items(g)
        mk_srd(e, SM, pB1, 3456)
        e(f"s_lshl_b32 s{sKW}, s{sHG}, 7\ns_add_u32 s{sKW}, s{sKW}, {19*128}")
        self.small_dma(SM, 6, f"s{sKW}", L_BIASKV, 8, 'misc')
        e(f"""s_and_b32 s{sT0}, s{sW}, 1
        s_mul_i32 s{sT0}, s{sT0}, 320
        s_lshr_b32 s{sT1}, s{sW}, 1
        s_add_u32 s{sT1}, s{sT1}, 1
        s_mul_i32 s{sT1}, s{sT1}, 1280
        s_mul_i32 s{sT3}, s{sHG}, 160
        s_add_u32 s{sT1}, s{sT1}, s{sT3}""")
        for i in range(5):
            e(f"v_add_u32 v9, {64*i}, v0\nv_add_u32 v9, s{sT0}, v9")
            self.attn_voff(212 + i, None, sT1)
            if i % 4: e(f"v_subrev_u32 v{212+i}, {(i%4)*1024}, v{212+i}")
            self.emit_items(dma_w(0, i))
        def setup():
            e = self.e
            self.x_addr(ST); self.rho0(8)
            e(f"v_mul_u32_u24 v9, 160, v8\nv_mad_u32_u24 v9, v4, 40, v9\nv_add_u32 v226, 16384, v9")
            for sl in (1, 2): e(f"v_add_u32 v{226+sl}, {sl*ST}, v226")
            e(f"v_lshlrev_b32 v9, 7, v8\nv_lshl_add_u32 v9, v4, 3, v9\nv_add_u32 v9, {WH0}, v9\nv_bfe_u32 v10, v8, 1, 2")
            for t in range(4): e(f"v_xor_b32 v11, {t}, v10\nv_lshl_add_u32 v{229+t}, v11, 5, v9")
            self.common_early(KV_PACK); self.common_late()
            e(f"v_add_u32 v253, s{sE}, v6\nv_subrev_u32 v10, 1280, v253\nv_min_u32 v253, v253, v10\nv_add_u32 v254, 1024, v253\nv_subrev_u32 v10, 1280, v254\nv_min_u32 v254, v254, v10")
            mk_srd(e, 28, pGATE, 1280)
            e(f"s_lshl_b32 s{sM0+2}, s{sW}, 11\ns_lshl_b32 s{sT3}, s{sW}, 4")
            for pp in range(2):
                e(f"v_add_u32 v10, {8*pp}, v5\nv_add_u32 v10, s{sT3}, v10")
                self.swap23(10, 12)
                e(f"""v_lshlrev_b32 v11, 1, v2
                v_xor_b32 v11, v11, v0
                v_and_b32 v11, 7, v11
                v_mul_u32_u24 v10, 3456, v10
                v_lshl_add_u32 v10, v11, 4, v10
                v_add_u32 v10, s{sKW}, v10
                v_subrev_u32 v{217+pp}, {pp*1024}, v10""")
        self.interleave(self.record(setup), dma_stage(1), c.pe)
        self.tag_wait()
        kvsmall = [dict(at=10, chain=1, ins=self.record(lambda: self.small_dma(28, 253, "0", L_GATE, 64, 'misc'))),
                   dict(at=12, chain=1, atomic=1, ins=self.record(lambda: self.small_dma(28, 254, "0", L_GATE + 1024, 16, 'misc')))]
        self.stamp(0)
        if c.stamps: mk_srd(e, 28, pGATE, 1280)
        if c.stamps == 2: kvsmall = [dict(at=9, chain=1, ins=self.record(lambda: mk_srd(self.e, 28, pGATE, 1280)))] + kvsmall
        NS = 10; nm = NS * 4; mf = []; reads = []
        for st in range(10):
            sl = st % 3
            for t in range(NS):
                gs = st * NS + t; wr = 168 + 8 * (gs % 4); m0 = len(mf)
                for ks in range(2):
                    for rd in range(2):
                        off = (t // 5) * 10240 + ks * 5120 + rd * 1280 + (t % 5) * 8
                        reads.append([f"ds_read_b64_tr_b16 v[{wr+4*ks+2*rd}:{wr+4*ks+2*rd+1}], v{226+sl} offset:{off}", m0, st, m0 - 13])
                for j in range(2):
                    for ks in range(2):
                        xr = st * 16 + (j * 2 + ks) * 4; d = 16 + (t * 2 + j) * 4
                        if t == 0: reads.append([f"ds_read_b128 {ar(xr)}, v{220+2*sl+ks} offset:{j*2048}", len(mf), st, -1])
                        mf.append(f"v_mfma_f32_16x16x32_bf16 {vr(d)}, {vr(wr+4*ks)}, {ar(xr)}, {vr(d) if (st or ks) else 0}")
        def mksync(st):
            def f(m):
                tags = [('S', st)] + (['pkst'] if st == 4 else []) + (['packld', 'misc'] if st == 2 else [])
                e.wait(vm=tags, lg_all=True); e("s_barrier")
                self.stamp(st + 1, 2)
                out = self.early_dma_fill() + kvsmall if st == 0 else []
                if st + 2 < 10: out += self.paced(dma_stage(st + 2), m + (12 if st == 0 else 0), nm - c.dtail - (22 if st == 0 else 0))
                else: out += self.paced(sum([dma_wh(ch) for ch in range((st - 8) * 5, (st - 7) * 5)], []), m, nm - c.dtail)
                if st == 4: out.append(dict(at=m + 1, ins=[('vm', self.flag_store(245, 246, f"s{sF1}"), 'f1st')]))
                return out
            return f
        self.stream(mf, reads, self.kloop_common_fill(nm), {st: mksync(st) for st in range(10)}, name='KV1')
        self.stamp(1); self.stamp(11, 2)
        self.dump('acc', range(16, 76))
        for g in self.wphi_reads(13): self.emit_items(g)
        side = self.B_take(range(0, 24))
        L = self.cvt_heads(16, 96, 0) + self.cvt_heads(16, 106, 1)
        self.valu(L, None, 5)
        e(f"""v_mul_u32_u24 v12, {RSV}, v1
        v_mad_u32_u24 v12, v2, 48, v12
        s_mul_i32 s{sT0}, s{sW}, {32*RSV}
        s_add_u32 s{sT0}, s{sT0}, {L_V}
        v_add_u32 v12, s{sT0}, v12
        v_mul_u32_u24 v13, {RSP}, v1
        s_mov_b32 s{sT0}, 80
        v_mad_u32_u24 v13, v2, s{sT0}, v13
        s_mul_i32 s{sT0}, s{sW}, {32*RSP}
        v_add_u32 v13, s{sT0}, v13""")
        e.wait(lg='wphi')
        self.valu(self.phi_mfmas(96, 128), None, 8)
        self.dump('p', list(range(128, 168)) + list(range(96, 116)))
        self.dump('w', list(range(168, 218)))
        e.wait(vm='WH'); e("s_barrier")
        for j in range(2):
            for l in self.cvt_heads(56, 116, j): e(l)
            if j == 0: e("v_mov_b32 v126, 0x3f80\nv_mov_b32 v127, 0")
            for i in range(3): e.lgop(f"ds_write_b128 v12, {vr(116+4*i)} offset:{j*16*RSV + i*16}", 'vw')
            if j == 0: e.wait(lg='vw')
        e(f"s_mov_b32 s{sC0}, {fl(math.log2(math.e))}")
        for j in range(2):
            PH = 56 + 20 * j
            self.valu(self.softmax_lines(128 + 20 * j, 16, PH), side, c.se)
            for i in range(5): e.lgop(f"ds_write_b128 v13, {vr(PH+4*i)} offset:{j*16*RSP + i*16}", 'pw')
        for g in side: self.emit_items(g)
        e(f"""v_lshl_add_u32 v8, v2, 2, v3
        v_mul_u32_u24 v12, {RSP}, v8
        v_lshl_add_u32 v12, v4, 3, v12
        s_mul_i32 s{sT0}, s{sW}, 80
        v_add_u32 v12, s{sT0}, v12
        v_mul_u32_u24 v13, {RSV}, v8
        v_lshl_add_u32 v13, v4, 3, v13
        s_mul_i32 s{sT0}, s{sW}, 48
        s_add_u32 s{sT0}, s{sT0}, {L_V}
        v_add_u32 v13, s{sT0}, v13""")
        e(f"""v_lshrrev_b32 v8, 2, v1
        v_mul_u32_u24 v8, 2560, v8
        v_lshl_add_u32 v8, v4, 5, v8
        v_lshrrev_b32 v9, 1, v2
        v_lshl_add_u32 v8, v9, 9, v8
        v_and_b32 v9, 1, v2
        v_lshl_add_u32 v8, v9, 4, v8
        s_lshl_b32 s{sT0}, s{sW}, 7
        v_add_u32 v40, s{sT0}, v8
        v_add_u32 v42, 10240, v40
        v_mov_b32 v9, {OOB}
        v_cmp_ge_u32 vcc, 4, v1
        v_cndmask_b32 v42, v9, v42, vcc
        v_cmp_gt_u32 vcc, 2, v2
        v_cndmask_b32 v41, v9, v40, vcc
        v_cndmask_b32 v43, v9, v42, vcc
        s_lshl_b32 s{sT0}, s{sHG}, 4
        s_add_u32 s{sT0}, s{sT0}, s{sMT}
        s_mul_i32 s{sT1}, s{sT0}, {PSZ}
        s_add_u32 s{sT1}, s{sT1}, {PP}
        s_lshl_b32 s{sT0}, s{sT0}, 7
        s_cmp_eq_u32 s{sW}, 0
        s_cselect_b32 s{sT0}, s{sT0}, {OOB}""")
        e.wait(lg_all=True); e("s_barrier")
        self.stamp(2)
        mf = []; reads = []
        for s_ in range(4):
            b0 = 128 + (s_ % 2) * 20; m0 = len(mf)
            for dt in range(2):
                for rd in range(2): reads.append([f"ds_read_b64_tr_b16 v[{b0+12+4*dt+2*rd}:{b0+13+4*dt+2*rd}], v13 offset:{(32*s_+16*rd)*RSV + dt*32}", m0 + dt, -1, m0 - 7])
            for ft in range(3):
                for rd in range(2): reads.append([f"ds_read_b64_tr_b16 v[{b0+4*ft+2*rd}:{b0+4*ft+2*rd+1}], v12 offset:{(32*s_+16*rd)*RSP + ft*32}", m0 + 2 * ft, -1, m0 - 7])
                for dt in range(2):
                    d = 16 + (ft * 2 + dt) * 4
                    mf.append(f"v_mfma_f32_16x16x32_bf16 {vr(d)}, {vr(b0+4*ft)}, {vr(b0+12+4*dt)}, {vr(d) if s_ else 0}")
        for r in reads[:10]: e.lgop(r[0], 'kv0')
        e.wait(lg='kv0')
        for r in reads[10:20]: e.lgop(r[0], 'kv1')
        for l in mf[:6]: e(l)
        e.wait(lg='kv1')
        for s_ in (2, 3):
            for r in reads[10*s_:10*s_+10]: e.lgop(r[0], 'kv1')
            for l in mf[6*(s_-1):6*s_]: e(l)
            e.wait(lg='kv1')
        e("s_barrier")
        e(f"v_lshlrev_b32 v9, 3, v2\nv_add_u32 v9, {L_BIASKV}, v9\nv_lshlrev_b32 v233, 4, v2\nv_add_u32 v233, {L_GATE}, v233")
        for s_ in range(4): e.lgop(f"ds_read_b64 v[{128+2*s_}:{129+2*s_}], v9 offset:{s_*32}", 'b')
        for l in mf[18:24]: e(l)
        e.wait(lg='b')
        for s_ in range(4):
            for h in range(2): e(f"v_lshlrev_b32 v{96+8*s_+2*h}, 16, v{128+2*s_+h}\nv_and_b32 v{97+8*s_+2*h}, 0xffff0000, v{128+2*s_+h}")
        for ft in range(3):
            for dt in range(2):
                e.vmop(f"buffer_store_dwordx4 {vr(16+(ft*2+dt)*4)}, v{40+2*dt+(ft==2)}, {srd(SWS)}, s{sT1} offen offset:{ft*1024} sc1", 'pst')
        self.stamp(3)
        mf = []; reads = []; nm = 20
        for st in range(10):
            for t in range(5):
                gs = st * 4 + t; wr = 168 + 8 * (gs % 4) if t < 4 else 200 + 8 * (st % 2); m0 = len(mf)
                for ks in range(2):
                    if t < 4:
                        for rd in range(2):
                            reads.append([f"ds_read_b64_tr_b16 v[{wr+4*ks+2*rd}:{wr+4*ks+2*rd+1}], v{(229 if st < 5 else 220)+t} offset:{(st%5)*8192 + ks*4096 + rd*1024}", m0, -1, m0 - 13])
                    else: reads.append([f"ds_read_b128 {vr(wr+4*ks)}, v233 offset:{(st*2+ks)*64}", m0, -1, m0 - 20])
                jo = (1, 0) if st == 0 else (0, 1)
                for j in jo:
                    for ks in range(2):
                        xr = st * 16 + (j * 2 + ks) * 4; d = 96 + (t * 2 + j) * 4; cc = vr(d)
                        if st == 0 and ks == 0: cc = vr(96 + t * 8) if t < 4 else "0"
                        mf.append(f"v_mfma_f32_16x16x32_bf16 {vr(d)}, {vr(wr+4*ks)}, {ar(xr)}, {cc}")
        for t in range(4): e(f"v_subrev_u32 v{220+t}, {WH0-WH5}, v{229+t}")
        fill = []
        lds_items = self.B_take(range(64, 64 + NL))
        fill += self.paced(lds_items[:9], 2, 18)
        bcur = self.Bcur
        xs = []
        seq = []
        for st in range(9):
            seq.append((20 * (st + 1), list(range(24 + 4 * st, 28 + 4 * st))))
        rest = lds_items[9:]
        self.Bcur = None
        fill = []
        order = [(2 + 2 * k, 64 + k) for k in range(9)]
        for st in range(9):
            for k in range(4): order.append((20 * (st + 1) + 1 + 4 * k, 24 + 4 * st + k))
            order.append((20 * (st + 1) + 17, 64 + 9 + st))
        for at, u in order: fill.append(dict(at=at, chain=1, ins=self.B_take([u])[0]))
        fill.append(dict(at=c.f2at, ins=[('x', f"s_add_u32 s{sT2}, s{sT0}, {F2}"), ('wvm', 'pst'), ('x', 's_barrier'), ('vm', self.flag_store(245, 246, f"s{sT2}"), 'f2st')]))
        fill.append(dict(at=170, ins=[('x', f"s_lshl_b32 s{sT3}, s{sHG}, 11"), ('x', f"s_add_u32 s{sT3}, s{sT3}, {F2}"), ('x', "v_lshlrev_b32 v12, 7, v1"),
                                      ('vm', self.poll_issue(12, 248, 2, None, f"s{sT3}"), 'pl')]))
        fill.sort(key=lambda f: f['at'])
        self.stream(mf, reads, fill, None, name='KV2')
        self.stamp(4)
        side = self.B_take(range(60, 64))
        e.wait(vm='pl')
        for l in self.poll_check([(12, 248, 2, f"s{sT3}")]): e(l)
        self.stamp(14)
        e(f"""v_mul_u32_u24 v8, {PSZ}, v2
        v_lshl_add_u32 v8, v1, 4, v8
        v_mov_b32 v9, {OOB}
        v_cmp_gt_u32 vcc, 15, v1
        v_cndmask_b32 v8, v9, v8, vcc
        v_lshlrev_b32 v10, 3, v1
        v_cmp_gt_u32 vcc, 15, v0
        v_cndmask_b32 v10, v9, v10, vcc
        v_lshlrev_b32 v11, 2, v1
        v_cmp_gt_u32 vcc, 16, v0
        v_cndmask_b32 v11, v9, v11, vcc
        s_lshl_b32 s{sT2}, s{sMT}, 2
        s_add_u32 s{sT2}, s{sT2}, s{sW}
        s_mul_i32 s{sT3}, s{sT2}, 240
        s_mul_i32 s{sT4}, s{sHG}, {16*PSZ}
        s_add_u32 s{sT3}, s{sT3}, s{sT4}
        s_add_u32 s{sT3}, s{sT3}, {PP}""")
        for i in range(4):
            e.vmop(f"buffer_load_dwordx4 {vr(16+4*i)}, v8, {srd(SWS)}, s{sT3} offen sc1", 'pld')
            if i < 3: e(f"s_add_u32 s{sT3}, s{sT3}, {4*PSZ}")
        e(f"""s_mov_b32 s{sC0}, {fl(-math.log2(math.e))}
        v_mul_f32 v128, s{sC0}, v128
        v_mul_f32 v132, s{sC0}, v132
        v_exp_f32 v128, v128
        v_exp_f32 v132, v132
        s_lshl_b32 s{sT3}, s{sT2}, 7
        v_add_f32 v128, 1.0, v128
        v_add_f32 v132, 1.0, v132
        v_rcp_f32 v128, v128
        v_rcp_f32 v132, v132
        s_lshl_b32 s{sT4}, s{sHG}, 13
        s_add_u32 s{sT3}, s{sT3}, s{sT4}
        s_add_u32 s{sT3}, s{sT3}, {GB}""")
        for j in range(2): e.vmop(f"buffer_store_dword v{128+4*j}, v11, {srd(SWS)}, s{sT3} offen offset:{j*64} sc1", 'hst')
        self.gelu_consts()
        e(f"""s_lshl_b32 s{sT4}, s{sMT}, 1
        s_lshr_b32 s{sT5}, s{sW}, 1
        s_add_u32 s{sT4}, s{sT4}, s{sT5}
        s_and_b32 s{sT5}, s{sW}, 1
        s_mul_i32 s{sT3}, s{sT4}, 74
        s_lshl_b32 s{sKW}, s{sHG}, 1
        s_add_u32 s{sT3}, s{sT3}, s{sKW}
        s_add_u32 s{sT3}, s{sT3}, 38
        s_lshl_b32 s{sT3}, s{sT3}, 12
        s_lshl_b32 s{sK1}, s{sT5}, 11
        s_add_u32 s{sT3}, s{sT3}, s{sK1}
        s_add_u32 s{sT3}, s{sT3}, {A2}
        s_lshl_b32 s{sKW}, s{sMT}, 4
        s_add_u32 s{sKW}, s{sKW}, s{sHG}
        s_lshl_b32 s{sKW}, s{sKW}, 7
        s_add_u32 s{sKW}, s{sKW}, {F4+1024}
        s_cmp_eq_u32 s{sW}, 0
        s_cselect_b32 s{sKW}, s{sKW}, {OOB}""")
        L = []
        for p in range(2):
            for j in range(2):
                O = 152 + 4 * ((2 * p + j) % 4)
                L += self.gelu_lines(96 + (4 * p + j) * 4, 96 + (4 * p + 2 + j) * 4, 136 + 8 * j, O)
                if j == 0 and p == 1: L.append(f"s_add_u32 s{sT3}, s{sT3}, 4096")
                L.append(('vm', f"buffer_store_dwordx4 {vr(O)}, v6, {srd(SWS)}, s{sT3} offen offset:{j*1024} sc1", 'hst'))
        self.valu(L, side, 10)
        for g in side: self.emit_items(g)
        e.wait(vm='pld')
        e("""v_pk_add_f32 v[16:17], v[16:17], v[20:21]
        v_pk_add_f32 v[18:19], v[18:19], v[22:23]
        v_pk_add_f32 v[24:25], v[24:25], v[28:29]
        v_pk_add_f32 v[26:27], v[26:27], v[30:31]
        v_pk_add_f32 v[16:17], v[16:17], v[24:25]
        v_pk_add_f32 v[18:19], v[18:19], v[26:27]""")
        for sw in ('32', '16'):
            for i in range(4): e(f"v_mov_b32 v{20+i}, v{16+i}")
            for i in range(4): e(f"v_permlane{sw}_swap_b32 v{16+i}, v{20+i}")
            e("v_pk_add_f32 v[16:17], v[16:17], v[20:21]\nv_pk_add_f32 v[18:19], v[18:19], v[22:23]")
        e(f"""v_cvt_pk_bf16_f32 v16, v16, v17
        v_cvt_pk_bf16_f32 v17, v18, v19
        s_mul_i32 s{sT2}, s{sT2}, 120
        s_mul_i32 s{sT3}, s{sHG}, {FSZ}
        s_add_u32 s{sT2}, s{sT2}, s{sT3}
        s_add_u32 s{sT2}, s{sT2}, {FIN}
        s_add_u32 s{sK1}, s{sT0}, {F3}""")
        e.vmop(f"buffer_store_dwordx2 v[16:17], v10, {srd(SWS)}, s{sT2} offen sc1", 'hst')
        self.stamp(5)
        self.ph2_pre()
        e.wait(vm='hst')
        e("s_barrier")
        e.vmop(self.flag_store(245, 246, f"s{sK1}"), 'f3st'); e.vmop(self.flag_store(245, 246, f"s{sKW}"), 'f4st')
        self.phase2([])

    def ph2_pre(self):
        e = self.e
        mk_srd(e, SM, pB2, 1280); mk_srd(e, SPK, pOUT, 2048 * 1280)
        e(f"""s_mul_i32 s{sM0}, s{sNB}, 160
        s_and_b32 s{sM0+1}, s{sNB}, 1
        s_lshl_b32 s{sM0+2}, s{sM0+1}, 5
        s_add_u32 s{sM0+2}, s{sM0+2}, s{sM0}
        s_cmp_eq_u32 s{sM0+1}, 0
        s_cselect_b32 s{sM0+1}, 128, 0
        s_add_u32 s{sM0+1}, s{sM0+1}, s{sM0}
        s_cmp_eq_u32 s{sW}, 0
        s_cselect_b32 s{SM+2}, s{SM+2}, 0
        s_lshr_b32 s{sM0+5}, s{sRB}, 1
        s_lshl_b32 s{sM0+3}, s{sM0+5}, 11
        s_add_u32 s{sM0+3}, s{sM0+3}, {F4}
        s_add_u32 s{sM0+4}, s{sM0+3}, 1024
        s_lshl_b32 s{sM0+5}, s{sM0+5}, 10
        s_add_u32 s{sM0+5}, s{sM0+5}, {F5}
        v_lshlrev_b32 v7, 4, v2
        v_lshlrev_b32 v234, 3, v2
        v_and_b32 v235, 7, v0
        v_lshlrev_b32 v235, 7, v235""")
        e.vmop(f"buffer_load_dwordx4 v[224:227], v7, {srd(SM)}, s{sM0+2} offen", 'b2')
        e.vmop(f"buffer_load_dwordx4 v[228:231], v7, {srd(SM)}, s{sM0+2} offen offset:64", 'b2')
        e.vmop(f"buffer_load_dwordx2 v[232:233], v234, {srd(SM)}, s{sM0+1} offen", 'b2')
        e.vmop(self.poll_issue(235, 252, 2, None, f"s{sM0+3}"), 'p4a')

    def phase2(self, extra):
        e = self.e; c = self.c
        ACC = 16; BI = 96
        e.wait(vm='p4a')
        for l in self.poll_check([(235, 252, 2, f"s{sM0+3}")]): e(l)
        self.stamp(6)
        pool = [('v', r) for r in list(range(200, 224, 4)) + list(range(136, 200, 4)) + list(range(116, 136, 4))]
        Aloc = {}; Bl = dict(self.Bloc)
        groups = [(0, 1), (2, 3), (4, 5), (6, 7), (8, 9), (10, 11), (12, 13), (14, 15), (16, 17), (18,)]
        mf = []
        for g in groups:
            for t in range(5):
                for j in range(4):
                    for i in g: mf.append((i, t, j))
        NM = len(mf)
        firstA = {}; lastA = {}; firstB = {}; lastB = {}
        for m, (i, t, j) in enumerate(mf):
            firstA.setdefault((i, j), m); lastA[(i, j)] = m; firstB.setdefault((i, t), m); lastB[(i, t)] = m
        mtrans = min(m for m, x in enumerate(mf) if x[0] >= 14)
        work = [('A', k, firstA[k]) for k in firstA]
        work += [('S', k, firstB[k]) for k in firstB if Bl[k] and Bl[k][0] == 'l']
        work += [('B', k, firstB[k] - 30) for k in firstB if Bl[k] is None]
        work.sort(key=lambda w: w[2])
        gate = {0: True, 1: False, 2: False}
        cls = lambda i: 0 if i < 10 else (1 if i < 14 else 2)
        e(f"s_add_u32 s{sT0}, s88, {L_BL}\nv_add_u32 v234, s{sT0}, v6")
        def issue(w):
            kind, k, _ = w
            loc = pool.pop(0)
            if kind == 'A':
                i, j = k
                if self.Acur != i:
                    e(f"s_mov_b32 s{sAT}, s{sA9}" if i == 9 else f"s_add_u32 s{sAT}, s{sA}, {self.koff(i)*4096}"); self.Acur = i
                e.vmop(f"buffer_load_dwordx4 {R(loc)}, v{236+j}, {srd(SWS)}, s{sAT} offen {c.asc}", ('A', k)); Aloc[k] = loc
            elif kind == 'B':
                self.emit_items(self.B_items(k, loc)); Bl[k] = loc
            else:
                e.wait(vm=('B', k))
                e.lgop(f"ds_read_b128 {R(loc)}, v234 offset:{Bl[k][1]*1024}", ('S', k)); Bl[k] = loc
        def pick(m):
            for w in work:
                if w[0] == 'A' and not gate[cls(w[1][0])]: continue
                if w[0] == 'S' and w[2] - m > 16: continue
                if w[0] == 'B' and len(pool) < 6: continue
                if w[0] == 'A' and len(pool) < (3 if w[2] - m > 40 else 1): continue
                return w
            return None
        for _ in range(c.a0):
            w = pick(0); work.remove(w); issue(w)
        lastiss = -99
        e.wait(vm='b2')
        for t in range(5):
            for h in range(2):
                s_ = 224 + 2 * t + h
                e(f"v_lshlrev_b32 v{BI+4*t+2*h}, 16, v{s_}\nv_and_b32 v{BI+4*t+2*h+1}, 0xffff0000, v{s_}")
        pool += [('v', r) for r in (224, 228)]
        fq = sorted(extra, key=lambda f: f['at'])
        P1, C1, P2, C2 = c.p1, c.c1, c.p2, c.c2
        seen = set()
        for m, (i, t, j) in enumerate(mf):
            if m == mtrans:
                e.wait(vm='g')
                for jj in range(4): e(f"v_sub_f32 v{240+jj+1 if False else 8+2*jj}, 1.0, v{241+jj}")
                for tt in range(5):
                    for jj in range(4):
                        d = ACC + (jj * 5 + tt) * 4
                        for h in range(2): e(f"v_pk_mul_f32 v[{d+2*h}:{d+2*h+1}], v[{d+2*h}:{d+2*h+1}], v[{8+2*jj}:{9+2*jj}] op_sel_hi:[1,0]")
                self.stamp(7)
            assert (i, j) in Aloc and Bl[(i, t)] and Bl[(i, t)][0] != 'l', (m, i, t, j)
            e.wait(vm=[('A', (i, j)), ('B', (i, t))], lg=('S', (i, t)))
            d = ACC + (j * 5 + t) * 4
            cc = vr(d) if (j, t) in seen else vr(BI + 4 * t); seen.add((j, t))
            e(f"v_mfma_f32_16x16x32_bf16 {vr(d)}, {R(Bl[(i, t)])}, {R(Aloc[(i, j)])}, {cc}")
            if lastA[(i, j)] == m: pool.append(Aloc[(i, j)])
            if lastB[(i, t)] == m: pool.append(Bl[(i, t)])
            if m == 40: pool.extend([('v', BI + 4 * k) for k in range(5)])
            if m == P1: e.vmop(self.poll_issue(235, 252, 2, None, f"s{sM0+4}"), 'p4b'); continue
            if m == C1:
                self.stamp(10)
                e.wait(vm='p4b')
                for l in self.poll_check([(235, 252, 2, f"s{sM0+4}")]): e(l)
                self.stamp(11)
                gate[1] = True
                e(f"s_lshl_b32 s{sT0}, s{sRB}, 8\ns_add_u32 s{sT0}, s{sT0}, {GB}\nv_lshlrev_b32 v7, 2, v1")
                for jj in range(4):
                    e(f"v_subrev_u32 v8, v6, v{236+jj}\nv_lshrrev_b32 v8, 4, v8\nv_add_u32 v8, v8, v7")
                    e.vmop(f"buffer_load_dword v{241+jj}, v8, {srd(SWS)}, s{sT0} offen sc1", 'g')
                continue
            if m == P2: e.vmop(self.poll_issue(235, 254, 2, None, f"s{sM0+5}"), 'p5'); continue
            if m == C2:
                self.stamp(12)
                e.wait(vm='p5')
                for l in self.poll_check([(235, 254, 2, f"s{sM0+5}")]): e(l)
                self.stamp(13)
                gate[2] = True; continue
            if fq and fq[0]['at'] <= m:
                self.emit_items(fq.pop(0)['ins']); continue
            if c.fine and m in (1, 20, 40, 60, 80): self.stamp({1: 1, 20: 2, 40: 3, 60: 4, 80: 5}[m])
            w = pick(m)
            if w and pool and (w[0] == 'S' or m - lastiss >= c.ap or w[2] - m < 12):
                work.remove(w); issue(w)
                if w[0] != 'S': lastiss = m
        assert not work, work
        self.stamp(8)
        for jj in range(1, 4):
            e(f"""s_add_u32 s{sT0}, s{sW}, {jj}
            s_and_b32 s{sT0}, s{sT0}, 3
            s_mul_i32 s{sT0}, s{sT0}, 15360
            s_add_u32 s{sT0}, s{sT0}, {L_RED + (jj-1)*5120}
            v_add_u32 v{8+jj}, s{sT0}, v6""")
        e(f"s_mul_i32 s{sT0}, s{sW}, 15360\ns_add_u32 s{sT0}, s{sT0}, {L_RED}\nv_add_u32 v8, s{sT0}, v6")
        for t in range(5):
            for jj in range(1, 4): e.lgop(f"ds_write_b128 v{8+jj}, {vr(ACC+(jj*5+t)*4)} offset:{t*1024}", 'rw')
        e(f"""s_lshl_b32 s{sT0}, s{sRB}, 2
        s_add_u32 s{sT0}, s{sT0}, s{sW}
        s_mul_i32 s{sT0}, s{sT0}, {16*1280}
        s_add_u32 s{sT1}, s{sT0}, s{sM0+2}
        s_add_u32 s{sT2}, s{sT0}, s{sM0+1}
        v_mul_u32_u24 v12, 1280, v1
        v_lshl_add_u32 v13, v2, 3, v12
        v_lshl_add_u32 v12, v2, 4, v12""")
        e.wait(lg_all=True); e("s_barrier")
        for t in range(5):
            for s_ in range(3): e.lgop(f"ds_read_b128 {vr(116+(t*3+s_)*4)}, v8 offset:{s_*5120+t*1024}", ('rr', t))
        for t in range(5):
            e.wait(lg=('rr', t)); d = ACC + t * 4; r = 116 + t * 12
            e(f"""v_pk_add_f32 v[{d}:{d+1}], v[{d}:{d+1}], v[{r}:{r+1}]
            v_pk_add_f32 v[{d+2}:{d+3}], v[{d+2}:{d+3}], v[{r+2}:{r+3}]
            v_pk_add_f32 v[{r+4}:{r+5}], v[{r+4}:{r+5}], v[{r+8}:{r+9}]
            v_pk_add_f32 v[{r+6}:{r+7}], v[{r+6}:{r+7}], v[{r+10}:{r+11}]
            v_pk_add_f32 v[{d}:{d+1}], v[{d}:{d+1}], v[{r+4}:{r+5}]
            v_pk_add_f32 v[{d+2}:{d+3}], v[{d+2}:{d+3}], v[{r+6}:{r+7}]
            v_cvt_pk_bf16_f32 v{96+2*t}, v{d}, v{d+1}
            v_cvt_pk_bf16_f32 v{97+2*t}, v{d+2}, v{d+3}""")
            if t == 1: e.vmop(f"buffer_store_dwordx4 v[96:99], v12, {srd(SPK)}, s{sT1} offen {c.osc}", 'o')
            if t == 3: e.vmop(f"buffer_store_dwordx4 v[100:103], v12, {srd(SPK)}, s{sT1} offen offset:64 {c.osc}", 'o')
            if t == 4: e.vmop(f"buffer_store_dwordx2 v[104:105], v13, {srd(SPK)}, s{sT2} offen {c.osc}", 'o')
        self.stamp(9)
        e("s_endpgm")

    def build(self):
        e = self.e
        self.prologue()
        st = (list(e.vm), list(e.lg))
        self.prog_KV()
        e.vm, e.lg = list(st[0]), list(st[1])
        self.prog_QH()
        e("\n".join(self.tail))
        e("L_end:\ns_endpgm")
        body = e.finish()
        hdr = open('cdna_kernels/' + NAME + '.s.ref').read().split('; Override launch')[0]
        K = NAME + "_kernel"
        out = hdr + "; Generated by a hand-written Python generator (persistent fused kernel; see comments in the generator).\n"
        out += "; @launch grid=(256,1,1) block=(256,1,1) lds=163840\n"
        out += f'.amdgcn_target "amdgcn-amd-amdhsa--gfx950"\n.text\n.globl {K}\n.p2align 8\n.type {K},@function\n{K}:\n' + body
        out += f""".fill 64, 4, 0xbf800000
.section .rodata,"a"
.p2align 6
.amdhsa_kernel {K}
  .amdhsa_next_free_vgpr 512
  .amdhsa_next_free_sgpr 102
  .amdhsa_accum_offset 256
  .amdhsa_group_segment_fixed_size 0
  .amdhsa_kernarg_size 104
  .amdhsa_user_sgpr_count 2
  .amdhsa_user_sgpr_kernarg_segment_ptr 1
  .amdhsa_system_sgpr_workgroup_id_x 1
.end_amdhsa_kernel
"""
        return out

Cfg.pe = 16; Cfg.dtail = 4; Cfg.qb1 = 22; Cfg.se = 10
Cfg.a0 = 12; Cfg.ap = 1; Cfg.fine = 0; Cfg.asc = 'sc1'
Cfg.f5at = 24; Cfg.f2at = 60
Cfg.oobB = 0; Cfg.noB = 0
Cfg.nof1 = 0
Cfg.osc = ''
Cfg.p1 = 60; Cfg.c1 = 100; Cfg.p2 = 170; Cfg.c2 = 210

def generate(**kw):
    c = Cfg()
    for k, v in kw.items(): setattr(c, k, v)
    g = Gen(c); t = g.build()
    return t, g

if __name__ == "__main__":
    kw = {}
    for a_ in sys.argv[2:]:
        k, v = a_.split('='); kw[k] = int(v, 0) if v[0].isdigit() else v.replace('+', ' ')
    t, g = generate(**kw)
    open(sys.argv[1], 'w').write(t)
    print("instructions:", len(g.e.ins), "nops added:", g.e.nop_added)
```

```python
import re

def _regs(tok):
    tok = tok.strip()
    m = re.fullmatch(r'-?\|?(?:abs\()?([vas])\[(\d+):(\d+)\]\)?\|?', tok)
    if m: return [f"{m.group(1)}{i}" for i in range(int(m.group(2)), int(m.group(3)) + 1)]
    m = re.fullmatch(r'-?\|?(?:abs\()?([vas])(\d+)\)?\|?', tok)
    if m: return [f"{m.group(1)}{m.group(2)}"]
    if tok in ('vcc', 'vcc_lo', 'vcc_hi'): return ['vcc']
    if tok in ('exec', 'exec_lo', 'exec_hi'): return ['exec']
    if tok == 'm0': return ['m0']
    return []

TRANS = ('v_exp_f32', 'v_log_f32', 'v_rcp_f32', 'v_rsq_f32', 'v_sqrt_f32', 'v_sin_f32', 'v_cos_f32')

class Ins:
    __slots__ = ('text', 'op', 'kind', 'defs', 'uses', 'passes', 'ca', 'cb', 'cc', 'states', 'label')
    def __init__(self, text):
        self.text = text
        t = text.split(';')[0].strip()
        self.label = t.endswith(':') or t.startswith('.')
        self.defs = []; self.uses = []; self.kind = 'other'; self.passes = 0; self.states = 1
        self.ca = self.cb = self.cc = []
        if self.label or not t:
            self.op = ''; self.states = 0; return
        parts = t.split(None, 1)
        op = parts[0]; self.op = op
        rest = parts[1] if len(parts) > 1 else ''
        ops = [x.strip() for x in re.split(r',(?![^\[]*\])', rest)] if rest else []
        if ops:
            last = ops[-1].split()
            ops[-1] = last[0] if last else ''
            mods = last[1:]
        else: mods = []
        R = [_regs(o) for o in ops]
        base = re.sub(r'_e(32|64)$|_dpp$|_sdwa$', '', op)
        if op.startswith('v_mfma'):
            self.kind = 'mfma'; self.defs = R[0]; self.ca, self.cb, self.cc = R[1], R[2], R[3]
            self.uses = R[1] + R[2] + R[3]
            self.passes = 2 if '4x4x4' in op else (4 if '16x16' in op else 8)
        elif op.startswith('v_cmp'):
            self.kind = 'valu'; self.defs = R[0]; self.uses = sum(R[1:], [])
        elif op.startswith('v_readfirstlane') or op.startswith('v_readlane'):
            self.kind = 'rdlane'; self.defs = R[0]; self.uses = sum(R[1:], [])
        elif op.startswith('v_permlane'):
            self.kind = 'permlane'; self.defs = R[0] + R[1]; self.uses = R[0] + R[1]
        elif op.startswith('v_'):
            self.kind = 'trans' if base in TRANS else 'valu'
            self.defs = R[0]; self.uses = sum(R[1:], [])
            if base in ('v_add_co_u32', 'v_sub_co_u32', 'v_addc_co_u32', 'v_subrev_co_u32'):
                self.defs = R[0] + R[1]; self.uses = sum(R[2:], [])
            if base in ('v_fmac_f32', 'v_dot2c_f32_bf16', 'v_pk_fmac_f16'): self.uses += R[0]
            if base == 'v_cndmask_b32' and len(R) == 3: self.uses += ['vcc']
            if 'dpp' in op or any(m.startswith(('row_', 'quad_perm')) for m in mods): self.kind = 'dpp'
        elif op.startswith('ds_read'):
            self.kind = 'dsr'; self.defs = R[0]; self.uses = sum(R[1:], [])
        elif op.startswith('ds_write'):
            self.kind = 'dsw'; self.uses = sum(R, [])
        elif op.startswith(('buffer_load', 'global_load')):
            if 'lds' in mods or '_lds_' in op:
                self.kind = 'dma'; self.uses = sum(R, []) + ['m0']
            else:
                self.kind = 'vload'; self.defs = R[0]; self.uses = sum(R[1:], [])
        elif op.startswith(('buffer_store', 'global_store', 'global_atomic')):
            self.kind = 'vstore'; self.uses = sum(R, [])
            if 'dwordx4' in op or 'dwordx3' in op: self.ca = R[0] if op.startswith('buffer') else R[1]
        elif op == 's_nop':
            self.kind = 'nop'; self.states = int(ops[0]) + 1
        elif op.startswith('s_'):
            self.kind = 'salu'
            if op.startswith(('s_cmp', 's_cbranch', 's_branch', 's_waitcnt', 's_barrier', 's_endpgm', 's_sleep', 's_setprio', 's_bitcmp')):
                self.uses = sum(R, [])
                if 'vcc' in op: self.uses += ['vcc']
            else:
                self.defs = R[0] if R else []; self.uses = sum(R[1:], [])

VALU = ('valu', 'trans', 'dpp', 'permlane', 'rdlane')
VMEM = ('vload', 'vstore', 'dma')

def need(p, c):
    n = 0
    ov = lambda a, b: bool(set(a) & set(b))
    if p.kind in VALU:
        vd = [r for r in p.defs if r[0] in 'va' and r != 'vcc']
        sd = [r for r in p.defs if r[0] == 's' or r == 'vcc']
        if c.kind == 'mfma' and ov(vd, c.uses): n = max(n, 2)
        if c.kind == 'permlane' and ov(vd, c.uses): n = max(n, 2)
        if c.kind == 'dpp' and ov(vd, c.uses): n = max(n, 2)
        if c.kind == 'rdlane' and ov(vd, c.uses): n = max(n, 1)
        if p.kind == 'trans' and c.kind in VALU and ov(vd, c.uses): n = max(n, 1)
        if sd:
            if c.kind in VMEM and ov(sd, c.uses): n = max(n, 5)
            if c.kind in VALU and ov(sd, c.uses): n = max(n, 4 if c.kind == 'rdlane' else 2)
            if c.kind == 'salu' and ov(sd, c.uses): n = max(n, 4)
        if 'exec' in p.defs: n = max(n, 5)
    if p.kind == 'mfma':
        P = p.passes; d = p.defs
        if c.kind == 'mfma':
            if ov(d, c.ca + c.cb): n = max(n, {2: 5, 4: 8, 8: 12}[P])
            if ov(d, c.cc):
                same = c.cc == d and c.passes == P
                n = max(n, ({2: 2, 4: 0, 8: 0} if same else {2: 4, 4: 6, 8: 10})[P])
            elif ov(d, c.defs): n = max(n, {2: 5, 4: 8, 8: 12}[P])
        elif c.kind in VALU or c.kind in VMEM or c.kind in ('dsr', 'dsw'):
            if ov(d, c.uses + c.defs): n = max(n, {2: 5, 4: 8, 8: 12}[P])
        if c.kind in VALU and ov(p.cc, c.defs): n = max(n, {2: 1, 4: 3, 8: 7}[P])
    if p.kind == 'vstore' and p.ca and ov(p.ca, c.defs): n = max(n, 2)
    if p.kind == 'salu' and 'm0' in p.defs and c.kind == 'dma': n = max(n, 1)
    return n

class Emit:
    def __init__(self):
        self.ins = []
        self.vm = []
        self.lg = []
        self.nop_added = 0
        self.t = 0; self.tm = -99; self.tvm = -999
    def __call__(self, s):
        for l in s.strip('\n').split('\n'):
            l = l.strip()
            if l:
                i = Ins(l); self.ins.append(i)
                if i.kind == 'mfma' and i.passes == 4: self.t = max(self.t, self.tm + 16); self.tm = self.t; self.t += 8
                elif i.kind in ('mfma', 'trans'): self.t += 8
                elif not i.label: self.t += 4
                if i.kind in VMEM: self.tvm = max(self.t, self.tvm + 48)
    def vmop(self, s, tag=None):
        self(s); self.vm.append(tag)
        assert len(self.vm) <= 63 or True
    def lgop(self, s, tag=None):
        self(s); self.lg.append(tag)
    def _n(self, lst, tags):
        if not isinstance(tags, (list, set)): tags = [tags]
        idx = [i for i, t in enumerate(lst) if t in tags]
        return None if not idx else len(lst) - 1 - max(idx)
    def wait(self, vm=None, lg=None, vm_all=False, lg_all=False):
        nv = (0 if self.vm else None) if vm_all else (self._n(self.vm, vm) if vm is not None else None)
        nl = (0 if self.lg else None) if lg_all else (self._n(self.lg, lg) if lg is not None else None)
        parts = []
        if nv is not None:
            nv2 = min(nv, 63); parts.append(f"vmcnt({nv2})"); self.vm = self.vm[len(self.vm) - nv2:] if nv2 else []
        if nl is not None:
            nl2 = min(nl, 15); parts.append(f"lgkmcnt({nl2})"); self.lg = self.lg[len(self.lg) - nl2:] if nl2 else []
        if parts: self("s_waitcnt " + " ".join(parts)); return True
        return False
    def pending_vm(self, tags): return self._n(self.vm, tags) is not None
    def pending_lg(self, tags): return self._n(self.lg, tags) is not None
    def finish(self):
        out = []
        for c in self.ins:
            if not c.label:
                req = 0; dist = 0
                for p in reversed(out):
                    if dist >= 20: break
                    if p.label: continue
                    k = need(p, c) - dist
                    if k > req: req = k
                    dist += p.states
                while req > 0:
                    k = min(req, 16); out.append(Ins(f"s_nop {k-1}")); req -= k; self.nop_added += 1
            out.append(c)
        return "\n".join(("" if i.label else "    ") + i.text for i in out) + "\n"
```

```python
import sys, math
from emit import Emit
NAME = "gated_mix__linear_kernel_hedgehog__dense_activation_gelu__prompt"

TAG = 0x0
F1 = 0x1000
F2 = 0x2000; F3 = 0x6000; F4 = 0xa000; F5 = 0x12000
STAMP = 0x1000000
GB = 0x280000
PP = 0x40000; PSZ = 15360
FIN = 0x240000; FSZ = 15360
PB = 0x300000
A2 = 0x600000
OOB = 0x7ff00000

K1 = 1024
QH_ST = 46 * K1; KV_ST = 36 * K1
MISC = 154 * K1
L_WPHI = MISC; L_GATE = MISC + 3200; L_BIASKV = MISC + 4480; L_BIASQH = MISC + 3200
L_PACK = 138 * K1
WH0 = 114 * K1; WH5 = 74 * K1
L_PHI = 0; RSP = 352; L_V = 128 * RSP; RSV = 224
L_BL = 0
NL = 18
L_RED = 80 * K1
L_FIN = 140 * K1

sW = 3
SX, SQ, S1, SWS, SPK, SM = 4, 8, 12, 16, 20, 24
pX, pQKV, pPHI, pWO, pBX, pW1, pB1, pW2, pB2, pGATE, pOUT, pDBG, pWS = [32 + 2 * i for i in range(13)]
sTAG = 58
sMT, sHG, sRB, sNB = 60, 61, 62, 63
sE = 64
sT0, sT1, sT2, sT3, sT4, sT5 = 74, 75, 76, 77, 78, 79
sM0 = 80
sBT, sAT, sB9, sA9, sAT2 = 100, 101, 86, 87, 55
sKW, sK1 = 89, 90
sF1 = 91
sPKD = 92
sA, sB = 96, 97
sC0, sC1 = 98, 99
sP0 = 28

PKA = 200
TB = 10; TBM = (1 << TB) - 1; sTB = 58
def srd(r): return f"s[{r}:{r+3}]"
def vr(r, n=4): return f"v[{r}:{r+n-1}]" if n > 1 else f"v{r}"
def ar(r, n=4): return f"a[{r}:{r+n-1}]"
def R(loc, n=4): return (vr if loc[0] == 'v' else ar)(loc[1], n)
def fl(x):
    import struct
    return hex(struct.unpack('<I', struct.pack('<f', x))[0])

class Cfg:
    rot = 1; map2 = 1; stamps = 0; LA = 12; spin = 200000; codepf = 1; lag = 2; th1 = 2; th2 = 4; minlead = 4; verbose = 0; sleep = 3

sKA, sKB = 0, 1
def mk_srd(e, r, p, nbytes):
    e(f"s_mov_b32 s{r}, s{p}\ns_and_b32 s{r+1}, s{p+1}, 0xffff\ns_mov_b32 s{r+2}, {nbytes}\ns_mov_b32 s{r+3}, 0x20000")

class Gen:
    def __init__(self, cfg):
        self.c = cfg; self.e = Emit(); self.tail = []; self.uid = 0; self.nstamp = 0
    def record(self, fn):
        real = self.e
        class Rec:
            def __init__(r): r.items = []; r.lg = []; r.vm = []
            def __call__(r, t):
                for l in t.strip("\n").split("\n"):
                    if l.strip(): r.items.append(('x', l.strip()))
            def vmop(r, t, tag=None): r.items.append(('vm', t, tag))
            def lgop(r, t, tag=None): r.items.append(('lg', t, tag))
        rec = Rec(); self.e = rec
        try: fn()
        finally: self.e = real
        return rec.items
    def lab(self, p):
        self.uid += 1; return f"L_{p}_{self.uid}"
    def stamp(self, i, grp=1):
        if not self.c.stamps or (i and self.c.stamps != grp): return
        e = self.e
        e(f"s_memrealtime s[{sC0}:{sC1}]\ns_memtime s[46:47]\ns_waitcnt lgkmcnt(0)"); e.lg = []
        e(f"v_mov_b32 v14, s{sC0}\nv_mov_b32 v15, s46")
        e(f"s_lshl_b32 s{sC0}, s2, 2\ns_add_u32 s{sC0}, s{sC0}, s{sW}\ns_lshl_b32 s{sC0}, s{sC0}, 7\ns_add_u32 s{sC0}, s{sC0}, {STAMP}")
        e.vmop(f"buffer_store_dwordx2 v[14:15], v245, {srd(SWS)}, s{sC0} offen offset:{i*8}", 'stamp')
        if i == 0:
            e(f"v_mov_b32 v14, s54\nv_mov_b32 v15, s40")
            e.vmop(f"buffer_store_dwordx2 v[14:15], v245, {srd(SWS)}, s{sC0} offen offset:{15*8}", 'stamp')

    def dump(self, name, regs):
        if getattr(self.c, 'dbg', None) != name: return
        e = self.e
        e(f"s_lshl_b32 s{sBT}, s2, 2\ns_add_u32 s{sBT}, s{sBT}, s{sW}\ns_lshl_b32 s{sBT}, s{sBT}, 14\ns_add_u32 s{sBT}, s{sBT}, 0x2000000\nv_lshlrev_b32 v7, 2, v0")
        for i, r in enumerate(regs):
            e.vmop(f"buffer_store_dword v{r}, v7, {srd(SWS)}, s{sBT} offen offset:{(i%16)*256}", 'dbg')
            if i % 16 == 15: e(f"s_add_u32 s{sBT}, s{sBT}, 4096")
        e.wait(vm='dbg'); self.Bcur = None

    def poll_issue(self, vaddr, vdst, n, tag, soff="0"):
        suf = {2: 'dwordx2', 4: 'dwordx4'}[n]
        return f"buffer_load_{suf} {vr(vdst, n)}, v{vaddr}, {srd(SWS)}, {soff} offen sc1"
    def poll_check(self, loads):
        Ls, Lb = self.lab('slow'), self.lab('back')
        cmps = []; ors = []; k = 0
        prs = ['vcc', 's[28:29]', 's[30:31]', 's[40:41]']
        for (va, vd, n, so) in loads:
            for h in range(n // 2):
                cmps.append(f"v_cmp_ne_u64 {prs[k]}, s[{sTAG}:{sTAG+1}], v[{vd+2*h}:{vd+2*h+1}]")
                if k: ors.append(f"s_or_b64 vcc, vcc, {prs[k]}")
                k += 1
        cmps = cmps[::-1] if False else cmps
        fast = cmps + ors + [f"s_cbranch_vccnz {Ls}\n{Lb}:"]
        t = [f"{Ls}:", f"s_mov_b32 s54, {self.c.spin}", f"{Ls}_l:"]
        if self.c.sleep: t.append(f"s_sleep {self.c.sleep}")
        for (va, vd, n, so) in loads: t.append(self.poll_issue(va, vd, n, None, so))
        t += ["s_waitcnt vmcnt(0)"] + cmps + ors
        t += ["s_sub_u32 s54, s54, 1", f"s_cbranch_vccz {Ls}_x", "s_cmp_lg_u32 s54, 0", f"s_cbranch_scc1 {Ls}_l", f"{Ls}_x:", "s_nop 4", f"s_branch {Lb}"]
        self.tail += t
        return fast
    def tag_check(self, reload, regs, acc):
        Ls, Lb = self.lab('slow'), self.lab('back')
        regs = list(regs); L = [f"v_xor_b32 v{acc}, s{sTB}, v{regs[0]}"]
        for r in regs[1:]: L.append(f"v_bitop3_b32 v{acc}, v{r}, s{sTB}, v{acc} bitop3:0xbe")
        L += [f"v_and_b32 v{acc}, {TBM}, v{acc}", f"v_cmp_ne_u32 vcc, 0, v{acc}"]
        t = [f"{Ls}:", f"s_mov_b32 s54, {self.c.spin}", f"{Ls}_l:"]
        if self.c.sleep: t.append(f"s_sleep {self.c.sleep2}")
        t += list(reload) + ["s_waitcnt vmcnt(0)"] + L
        t += ["s_sub_u32 s54, s54, 1", f"s_cbranch_vccz {Ls}_x", "s_cmp_lg_u32 s54, 0", f"s_cbranch_scc1 {Ls}_l", f"{Ls}_x:", "s_nop 4", f"s_branch {Lb}"]
        self.tail += t
        return L + [f"s_cbranch_vccnz {Ls}\n{Lb}:"]
    def tag_put(self, r, src=None): return f"v_bfi_b32 v{r}, s42, v246, v{r if src is None else src}"
    def tag_strip(self, r): return f"v_and_b32 v{r}, {hex(0xffffffff ^ TBM)}, v{r}"
    def valid_check(self, reload, regs, acc):
        Ls, Lb = self.lab('slow'), self.lab('back')
        regs = list(regs); L = [f"v_max3_u32 v{acc}, v{regs[0]}, v{regs[1]}, v{regs[2 if len(regs) > 2 else 1]}"]
        r = regs[3:]
        for i in range(0, len(r), 2): L.append(f"v_max3_u32 v{acc}, v{acc}, v{r[i]}, v{r[min(i+1, len(r)-1)]}")
        L.append(f"v_cmp_eq_u32 vcc, -1, v{acc}")
        t = [f"{Ls}:", f"s_mov_b32 s54, {self.c.spin}", f"{Ls}_l:"]
        if self.c.sleep: t.append(f"s_sleep {self.c.sleep2}")
        t += list(reload) + ["s_waitcnt vmcnt(0)"] + L
        t += ["s_sub_u32 s54, s54, 1", f"s_cbranch_vccz {Ls}_x", "s_cmp_lg_u32 s54, 0", f"s_cbranch_scc1 {Ls}_l", f"{Ls}_x:", "s_nop 4", f"s_branch {Lb}"]
        self.tail += t
        return L + [f"s_cbranch_vccnz {Ls}\n{Lb}:"]
    def flag_store(self, vaddr, vtag, soff="0"):
        return f"buffer_store_dwordx2 {vr(vtag, 2)}, v{vaddr}, {srd(SWS)}, {soff} offen sc1"

    def stream(self, mf, reads, fill, syncs=None, LA=None, name='', bg=None):
        e = self.e; LA = LA or self.c.LA
        reads = sorted(reads, key=lambda r: r[1]); rp = 0; synced = -1 if syncs else 99
        fq = sorted(fill, key=lambda f: f['at'])
        self.sid = getattr(self, 'sid', 0) + 1; sid = self.sid
        start = len(e.ins)
        def add_fill(items):
            lo = max([f['at'] for f in fq if f.get('chain')], default=-99)
            for f in items:
                if f.get('chain'): f['at'] = lo = max(f['at'], lo)
            fq.extend(items); fq.sort(key=lambda f: f['at'])
        def rd():
            nonlocal rp
            e.lgop(reads[rp][0], ('rd', sid, rp)); rp += 1
        if syncs: add_fill(syncs[0](0)); synced = 0
        while rp < len(reads) and reads[rp][1] < 8 and reads[rp][2] <= synced: rd()
        last_read = -99
        dl_of = {('rd', sid, i): r[1] for i, r in enumerate(reads)}
        def due(m): return [t for t in e.lg if t in dl_of and dl_of[t] <= m]
        ismem = lambda it: it[0] in ('vm', 'lg')
        for m in range(len(mf)):
            d = due(m)
            if d: e.wait(lg=d)
            e(mf[m])
            can = lambda: rp < len(reads) and reads[rp][2] <= synced and reads[rp][3] <= m and len(e.lg) < 15
            lead = lambda: reads[rp][1] - m
            if syncs and rp < len(reads) and reads[rp][2] > synced and m - last_read >= self.c.lag and lead() <= LA:
                synced = reads[rp][2]
                assert not any(it[0] == 'vm' and it[2] == ('S', synced) for f in fq for it in f['ins'])
                add_fill(syncs[synced](m + 1))
                if can(): rd(); last_read = m
                continue
            w = 1 if due(m + 1) else 0
            n = w; mem = 0
            if fq and fq[0]['at'] <= m:
                f = fq[0]
                if f.get('atomic'):
                    self.emit_items(f['ins']); n += len(f['ins']); mem += sum(map(ismem, f['ins'])); fq.pop(0)
                elif ismem(f['ins'][0]):
                    self.emit_items([f['ins'].pop(0)]); n += 1; mem += 1
                    if not f['ins']: fq.pop(0)
            if bg and mem == 0:
                k0 = len(e.ins)
                if self.bg_try(bg(m)): n += len(e.ins) - k0; mem += 1
            if can() and lead() <= LA and (mem == 0 or (lead() <= LA - self.c.th1 and not w)):
                rd(); n += 1; mem += 1; last_read = m
            if can() and mem == 1 and not w and lead() <= LA - self.c.th2:
                rd(); n += 1; mem += 1
            while can() and lead() <= self.c.minlead: rd(); n += 1; mem += 1; last_read = m
            while (n < 2 or (fq and fq[0]['at'] <= m - 2 and n < 3)) and fq and fq[0]['at'] <= m + 2 and not fq[0].get('atomic') and not ismem(fq[0]['ins'][0]):
                f = fq[0]; self.emit_items([f['ins'].pop(0)]); n += 1
                if not f['ins']: fq.pop(0)
            assert rp >= len(reads) or reads[rp][1] > m + 1, (m, reads[rp])
        for f in fq: self.emit_items(f['ins'])
        if self.c.verbose:
            tot = 0; g = None
            for i in e.ins[start:]:
                if i.label: continue
                if i.kind == 'mfma':
                    if g is not None: tot += max(16, g)
                    g = 8; prevmem = False
                elif g is not None:
                    mm = i.kind in ('dsr', 'dsw', 'vload', 'vstore', 'dma')
                    g += 8 if (mm and prevmem) else 4; prevmem = mm
            print(f"stream {name}: {len(mf)} mfma, est clks {tot} (ideal {16*len(mf)})")

    def prologue(self):
        e = self.e; c = self.c
        if c.stamps: e("s_memrealtime s[54:55]\ns_memtime s[98:99]")
        e(f"""s_cmp_ge_u32 s2, 256
        s_cbranch_scc1 L_end
        s_load_dwordx16 s[32:47], s[0:1], 0
        s_load_dwordx4 s[48:51], s[0:1], 64
        s_load_dwordx2 s[52:53], s[0:1], 80
        s_load_dwordx2 s[56:57], s[0:1], 96""")
        if c.codepf:
            e(f"""s_getpc_b64 s[{sA}:{sB}]
            L_pf:
            s_lshr_b32 s{sT0}, s2, 3
            s_lshl_b32 s{sT0}, s{sT0}, 11
            v_lshrrev_b32 v1, 4, v0
            v_lshlrev_b32 v1, 7, v1
            v_add_u32 v1, s{sT0}, v1
            v_cmp_gt_u32 vcc, L_end-L_pf, v1
            v_cndmask_b32 v1, 0, v1, vcc""")
            e.vmop(f"global_load_dword v255, v1, s[{sA}:{sB}]", 'pf')
        e(f"""v_lshrrev_b32 v1, 6, v0
        v_and_b32 v0, 63, v0
        s_and_b32 s{sT0}, s2, 7
        v_readfirstlane_b32 s{sW}, v1
        s_lshr_b32 s{sT1}, s2, 3
        s_lshr_b32 s{sT2}, s{sT0}, 1
        s_and_b32 s{sT3}, s{sT1}, 3
        s_lshl_b32 s{sMT}, s{sT2}, 2
        s_add_u32 s{sMT}, s{sMT}, s{sT3}
        s_lshr_b32 s{sT4}, s{sT1}, 2
        s_and_b32 s{sHG}, s{sT0}, 1
        s_lshl_b32 s{sHG}, s{sHG}, 2
        s_and_b32 s{sT5}, s{sT4}, 3
        s_add_u32 s{sHG}, s{sHG}, s{sT5}""")
        if c.rot == 2:
            e(f"""s_mul_i32 s{sE}, s{sT2}, 5
            s_lshr_b32 s{sE}, s{sE}, 1
            s_and_b32 s{sT5}, s{sT0}, 1
            s_mul_i32 s{sT5}, s{sT5}, 5
            s_add_u32 s{sE}, s{sE}, s{sT5}
            s_cmp_ge_u32 s{sE}, 10
            s_cselect_b32 s{sT5}, 10, 0
            s_sub_u32 s{sE}, s{sE}, s{sT5}
            s_lshl_b32 s{sE}, s{sE}, 7""")
        else: e(f"s_mov_b32 s{sE}, 0")
        if c.mix: e(f"s_lshr_b32 s{sT5}, s{sT1}, 2\ns_and_b32 s{sT5}, s{sT5}, 4\ns_xor_b32 s{sT5}, s{sT5}, s{sT1}" if c.map2 else
                    f"s_lshr_b32 s{sT5}, s{sT1}, 4\ns_xor_b32 s{sT5}, s{sT5}, s{sT1}")
        if c.map2:
            if c.mix: e(f"s_and_b32 s{sRB}, s{sT5}, 7\ns_bfe_u32 s{sT5}, s{sT1}, 0x20002")
            else: e(f"s_and_b32 s{sRB}, s{sT1}, 7\ns_lshr_b32 s{sT5}, s{sT1}, 3")
            e(f"""s_lshl_b32 s{sT2}, s{sT2}, 3
            s_add_u32 s{sRB}, s{sRB}, s{sT2}
            s_and_b32 s{sNB}, s{sT0}, 1
            s_lshl_b32 s{sNB}, s{sNB}, 2
            s_add_u32 s{sNB}, s{sNB}, s{sT5}""")
        else:
            if c.mix: e(f"s_bfe_u32 s{sNB}, s{sT1}, 0x30001\ns_and_b32 s{sT3}, s{sT5}, 1\ns_lshr_b32 s{sT5}, s{sT1}, 4\ns_bfe_u32 s{sT4}, s{sT1}, 0x10001\ns_xor_b32 s{sT5}, s{sT5}, s{sT4}\ns_and_b32 s{sT3}, s{sT1}, 1\ns_lshl_b32 s{sT5}, s{sT5}, 1\ns_add_u32 s{sT3}, s{sT3}, s{sT5}")
            else: e(f"s_mov_b32 s{sNB}, s{sT4}")
            e(f"s_lshl_b32 s{sRB}, s{sT0}, 2\ns_add_u32 s{sRB}, s{sRB}, s{sT3}")
        e(f"""v_and_b32 v1, 15, v0
        v_lshrrev_b32 v2, 4, v0
        v_bfe_u32 v3, v0, 2, 2
        v_and_b32 v4, 3, v0
        v_lshrrev_b32 v5, 3, v0
        v_lshlrev_b32 v6, 4, v0
        s_lshl_b32 s{sT2}, s{sMT}, 2
        s_add_u32 s{sT2}, s{sT2}, s{sW}
        s_mul_i32 s{sT2}, s{sT2}, {32*1280}
        v_xor_b32 v7, v2, v0
        v_and_b32 v7, 7, v7
        v_lshlrev_b32 v7, 4, v7
        v_mul_u32_u24 v8, 1280, v5
        v_add_u32 v8, s{sT2}, v8
        v_add_u32 v208, v8, v7
        v_xor_b32 v7, 64, v7
        v_add_u32 v209, v8, v7
        v_add_u32 v209, {10240-1024}, v209
        v_add_u32 v210, {2*(10240-1024)}, v208
        v_add_u32 v211, {2*(10240-1024)}, v209
        s_lshl_b32 s{sM0}, s{sW}, 12
        s_add_u32 s{sE+1}, s{sE}, 128
        s_cmp_eq_u32 s{sE+1}, 1280
        s_cselect_b32 s{sE+1}, 0, s{sE+1}""")
        for r, n in ((SX, 2048 * 1280), (SQ, 640 * 3840), (S1, 640 * 3456), (SM, 3456)): e(f"s_mov_b32 s{r+2}, {n}\ns_mov_b32 s{r+3}, 0x20000")
        e(f"s_bitcmp1_b32 s2, 7\ns_cbranch_scc1 L_QH")

    def kernarg_wait(self):
        e = self.e
        e(f"s_waitcnt lgkmcnt(0)\ns_load_dwordx2 s[{sTAG}:{sTAG+1}], s[{pWS}:{pWS+1}], {TAG}")
        if self.c.stamps: e('s_mov_b32 s40, s98')
        for r, p in ((SX, pX), (SM, pB1), (SQ, pQKV), (S1, pW1)): e(f"s_mov_b32 s{r}, s{p}\ns_and_b32 s{r+1}, s{p+1}, 0xffff")

    def pack_setup(self):
        e = self.e
        e(f"""s_lshl_b32 s{sT0}, s2, 2
        s_add_u32 s{sT0}, s{sT0}, s{sW}
        s_mul_i32 s{sT1}, s{sT0}, 6554
        s_lshr_b32 s{sT1}, s{sT1}, 16
        s_mul_i32 s{sT2}, s{sT1}, 10
        s_sub_u32 s{sT2}, s{sT0}, s{sT2}
        s_sub_u32 s{sT3}, s{sT1}, 54
        s_and_b32 s{sT3}, s{sT3}, 63
        s_mul_i32 s{sT4}, s{sT3}, 52
        s_lshr_b32 s{sT4}, s{sT4}, 8
        s_mul_i32 s{sT5}, s{sT4}, 5
        s_sub_u32 s{sT5}, s{sT3}, s{sT5}
        s_mul_i32 s{sBT}, s{sT4}, 160
        s_lshr_b32 s{sAT}, s{sT5}, 1
        s_mul_i32 s{sAT}, s{sAT}, 80
        s_and_b32 s{sT3}, s{sT5}, 1
        s_lshl_b32 s{sT3}, s{sT3}, 3
        s_add_u32 s{sAT}, s{sAT}, s{sT3}
        s_cmp_eq_u32 s{sT5}, 4
        s_cselect_b32 s{sAT}, 16, s{sAT}
        s_cselect_b32 s{sT3}, 80, 4
        s_add_u32 s{sBT}, s{sBT}, s{sAT}
        s_lshl_b32 s{sAT}, s{sT1}, 5
        s_cmp_lt_u32 s{sT1}, 54
        s_cselect_b32 s{sBT}, s{sAT}, s{sBT}
        s_cselect_b32 s{sT3}, 16, s{sT3}""")
        self.csel(sT4, 4 * 1280 - 1024, 20 * 1280 - 1024)
        self.csel(SPK + 2, 1728 * 1280, 640 * 1280)
        e(f"""s_mov_b32 s{SPK+3}, 0x20000
        s_cmp_lt_u32 s{sT0}, 740
        s_cselect_b32 s{SPK+2}, s{SPK+2}, 0
        s_mul_i32 s{sBT}, s{sBT}, 1280
        s_lshl_b32 s{sAT}, s{sT2}, 7
        s_add_u32 s32, s{sBT}, s{sAT}
        s_add_u32 s33, s32, s{sT4}
        s_add_u32 s34, s33, s{sT4}
        s_add_u32 s35, s34, s{sT4}
        v_lshrrev_b32 v9, 5, v0
        v_mul_lo_u32 v9, v9, s{sT3}
        v_and_b32 v10, 3, v5
        v_add_u32 v9, v9, v10
        v_mul_u32_u24 v9, 1280, v9
        v_and_b32 v10, 7, v0
        v_lshl_add_u32 v252, v10, 4, v9
        v_lshlrev_b32 v9, 10, v2
        v_lshl_add_u32 v9, v3, 7, v9
        v_add_u32 v9, s{sM0}, v9
        v_add_u32 v9, {L_PACK}, v9""")
        for g in range(2):
            e(f"""s_lshl_b32 s{sT3}, s{sT2}, 1
            s_add_u32 s{sT3}, s{sT3}, {g}
            s_mul_i32 s{sT4}, s{sT3}, 52
            s_lshr_b32 s{sT4}, s{sT4}, 8
            s_mul_i32 s{sT5}, s{sT4}, 5
            s_sub_u32 s{sT5}, s{sT3}, s{sT5}
            s_cmp_eq_u32 s{sT5}, 2
            s_cselect_b32 s{sT3}, 3, 4
            s_cselect_b32 s{sAT}, 32, 8
            v_lshlrev_b32 v10, s{sT3}, v4
            v_add_u32 v{PKA+2*g}, v9, v10
            v_add_u32 v{PKA+1+2*g}, s{sAT}, v{PKA+2*g}
            s_mul_i32 s{sT4}, s{sT4}, 740
            s_mul_i32 s{sAT}, s{sT1}, 5
            s_add_u32 s{sT4}, s{sT4}, s{sAT}""")
            for a_ in range(2):
                d = sPKD + 2 * g + a_
                e(f"""s_lshl_b32 s{sT3}, s{sT5}, 1
                s_add_u32 s{sT3}, s{sT3}, {a_}
                s_add_u32 s{d}, s{sT3}, 364
                s_cmp_eq_u32 s{sT3}, 5
                s_cselect_b32 s{d}, 374, s{d}
                s_cmp_lt_u32 s{sT3}, 5
                s_cselect_b32 s{d}, s{sT3}, s{d}
                s_add_u32 s{d}, s{d}, s{sT4}
                s_lshl_b32 s{d}, s{d}, 10
                s_add_u32 s{d}, s{d}, {PB}
                s_cmp_lt_u32 s{sT0}, 740
                s_cselect_b32 s{d}, s{d}, {OOB}""")
        e(f"""s_cmp_lt_u32 s{sT1}, 54
        s_cselect_b32 s{SPK}, s{pW2}, s{pWO}
        s_cselect_b32 s{SPK+1}, s{pW2+1}, s{pWO+1}
        s_and_b32 s{SPK+1}, s{SPK+1}, 0xffff""")

    def common_setup(self):
        e = self.e
        mk_srd(e, SWS, pWS, 0x10000000); mk_srd(e, SM, pPHI, 32 * 800)
        e(f"""s_lshl_b32 s{sT3}, s{sHG}, 2
        s_add_u32 s{sT3}, s{sT3}, s{sW}
        s_mul_i32 s36, s{sT3}, 800
        s_mul_i32 s37, s{sW}, 800
        s_add_u32 s37, s37, {L_WPHI}""")
        for i in range(2, 10):
            e(f"s_add_u32 s{sE+i}, s{sE+i-1}, 128\ns_cmp_eq_u32 s{sE+i}, 1280\ns_cselect_b32 s{sE+i}, 0, s{sE+i}")
        e(f"""s_mul_i32 s{sB}, s{sNB}, 74
        s_add_u32 s{sB}, s{sB}, s{sW}
        s_mul_i32 s{sB}, s{sB}, 5120
        s_add_u32 s{sB}, s{sB}, {PB}
        s_mul_i32 s{sA}, s{sRB}, 74
        s_add_u32 s{sA}, s{sA}, s{sW}
        s_lshl_b32 s{sA}, s{sA}, 12
        s_add_u32 s{sA}, s{sA}, {A2}
        s_add_u32 s{sB9}, s{sB}, {36*5120}
        s_add_u32 s{sA9}, s{sA}, {36*4096}
        s_cmp_lt_u32 s{sW}, 2
        s_cselect_b32 s{sB9}, s{sB9}, {OOB}
        s_cselect_b32 s{sA9}, s{sA9}, {OOB}
        s_mul_i32 s88, s{sW}, {NL*1024}
        v_add_u32 v240, 4096, v6""")
        for j in range(4):
            e(f"s_add_u32 s{sT3}, s{sW}, {j}\ns_and_b32 s{sT3}, s{sT3}, 3\ns_lshl_b32 s{sT3}, s{sT3}, 10\nv_add_u32 v{236+j}, s{sT3}, v6")
        e(f"""s_lshl_b32 s{sF1}, s2, 3
        s_add_u32 s{sF1}, s{sF1}, {F1}
        s_cmp_eq_u32 s{sW}, 0
        s_cselect_b32 s{sF1}, s{sF1}, {OOB}
        v_mov_b32 v245, {OOB}
        v_cmp_eq_u32 vcc, 0, v0
        v_cndmask_b32 v245, v245, 0, vcc""")

    def tag_wait(self):
        e = self.e
        e(f"""s_waitcnt lgkmcnt(0)
        s_add_u32 s{sTAG}, s{sTAG}, 1
        v_mov_b32 v247, s{sTAG+1}
        v_mov_b32 v246, s{sTAG}
        s_mov_b32 s43, {OOB}
        s_movk_i32 s42, {TBM}""")
        e.lg = []
    def pack_loads(self):
        return [([('x', f"s_add_u32 m0, s{sM0}, {L_PACK}")] if i == 0 else []) +
                [('vm', f"buffer_load_dwordx4 v252, {srd(SPK)}, s{32+i} offen offset:{i*1024} {self.c.psc} lds", 'packld')] for i in range(4)]
    def pack_fill(self, m, nm):
        f = []
        for i in range(8):
            t, h = i >> 1, i & 1
            f.append(dict(at=m + 2 + 2 * i, ins=[('lg', f"ds_read_b64_tr_b16 a[{160+4*t+2*h}:{161+4*t+2*h}], v{PKA+t} offset:{(t>>1)*64+512*h}", 'pk')]))
        return f
    def pack_stores(self):
        return [([('wlg', 'pk')] if i == 0 else []) + [('vm', f"buffer_store_dwordx4 {ar(160+4*i)}, v6, {srd(SWS)}, s{sPKD+i} offen {self.c.pss}", 'pkst')] for i in range(4)]

    def f1_issue(self):
        return [[('x', f"s_mov_b32 s{sT0}, {F1}"), ('x', "v_add_u32 v235, 1024, v6"), ('vm', self.poll_issue(6, 248, 4, None, f"s{sT0}"), 'f1p')],
                [('vm', self.poll_issue(235, 252, 4, None, f"s{sT0}"), 'f1p')]]
    def f1_check(self):
        chk = self.poll_check([(6, 248, 4, f"s{sT0}"), (235, 252, 4, f"s{sT0}")])
        return [('wvm', 'f1p')] + [('x', t) for t in chk] + [('x', f"s_or_b32 s{sT1}, s2, s{sW}"),
                ('x', f"s_cmp_eq_u32 s{sT1}, 0\ns_cselect_b32 s{sT1}, {TAG}, {OOB}"), ('vm', self.flag_store(245, 246, f"s{sT1}"), 'tagst')]

    def attn_voff(self, dst, cexpr_base, colbase_s):
        e = self.e
        e(f"""v_mul_u32_u24 v10, 6554, v9
        v_lshrrev_b32 v10, 16, v10
        v_mad_i32_i24 v11, v10, -10, v9""")
        self.swap23(10, 12)
        e(f"""v_mul_u32_u24 v10, 3840, v10
        v_lshl_add_u32 v10, v11, 4, v10
        v_add_u32 v{dst}, s{colbase_s}, v10""")
    def swap23(self, r, t):
        self.e(f"""v_lshrrev_b32 v{t}, 1, v{r}
        v_xor_b32 v{t}, v{t}, v{r}
        v_and_b32 v{t}, 4, v{t}
        v_mul_u32_u24 v{t}, 3, v{t}
        v_xor_b32 v{r}, v{r}, v{t}""")

    def small_dma(self, sr, vaddr, soff, ldsaddr, nlanes, tag, m0expr=None):
        e = self.e
        e(m0expr or f"s_mov_b32 m0, {ldsaddr}")
        if nlanes < 64: e(f"s_mov_b64 exec, {hex((1 << nlanes) - 1)}" if nlanes <= 32 else f"s_mov_b32 exec_hi, {hex((1 << (nlanes-32)) - 1)}")
        e.vmop(f"buffer_load_dwordx4 v{vaddr}, {srd(sr)}, {soff} offen lds", tag)
        if nlanes < 64: e("s_mov_b64 exec, -1")

    def csel(self, d, a, b):
        inl = lambda x: isinstance(x, str) or -16 <= x <= 64
        if inl(a) or inl(b): self.e(f"s_cselect_b32 s{d}, {a}, {b}")
        else: self.e(f"s_mov_b32 s{d}, {b}\ns_cselect_b32 s{d}, {a}, s{d}")

    def init_B(self):
        self.Bloc = {}; self.Bq = []
        order = [(i, t) for i in range(19) for t in range(5)]
        for u, k in enumerate(order):
            if u < 24: self.Bloc[k] = ('a', 160 + 4 * u)
            elif u < 64: self.Bloc[k] = ('a', 4 * (u - 24))
            elif u < 64 + NL: self.Bloc[k] = ('l', u - 64)
            else: self.Bloc[k] = None
        self.Border = order; self.Bpend = list(range(64 + NL)); self.Bcur = None; self.Acur = None
    def koff(self, i):
        r0, r1, r2 = self.perm
        if i < 10: return 4 * ((i + r0) % 10)
        if i < 14: return 38 + 4 * ((i - 10 + r1) % 4)
        return 54 + 4 * ((i - 14 + r2) % 5)
    def B_items(self, k, loc):
        i, t = k; it = []
        if self.Bcur != i:
            it.append(('x', f"s_mov_b32 s{sBT}, s{sB9}" if self.koff(i) == 36 else f"s_add_u32 s{sBT}, s{sB}, {self.koff(i)*5120}")); self.Bcur = i
        va, imm = (6, t * 1024) if t < 4 else (240, 0)
        if loc[0] == 'l':
            assert L_BL + loc[1]*1024 - imm >= 0
            it.append(('x', f"s_add_u32 m0, s88, {L_BL + loc[1]*1024 - imm}"))
            it.append(('vm', f"buffer_load_dwordx4 v{va}, {srd(SWS)}, s{sBT} offen offset:{imm} sc1 lds", ('B', k)))
        else:
            it.append(('vm', f"buffer_load_dwordx4 {R(loc)}, v{va}, {srd(SWS)}, s{sBT} offen offset:{imm} sc1", ('B', k)))
        return it
    def B_take(self, us):
        out = []
        for u in us:
            k = self.Border[u]; out.append(self.B_items(k, self.Bloc[k]))
            if self.c.xB == 1: out[-1] = [('x', 's_nop 0')]
            if self.c.xB == 2: out[-1] = [(it[0], it[1].replace(f"s{sBT} offen", "s43 offen"), it[2]) if it[0] == 'vm' else it for it in out[-1]]
            if self.c.xB == 3: out[-1] = [(it[0], it[1].replace(f"s{sBT} offen", f"s{sB} offen"), it[2]) if it[0] == 'vm' else it for it in out[-1]]
        return out
    def bg_try(self, allowed, S=None):
        e = self.e
        if e.t - e.tvm < (S or self.c.S): return False
        for u in self.Bpend:
            if allowed(u):
                self.Bpend.remove(u); self.emit_items(self.B_take([u])[0]); return True
        return False
    def emit_items(self, items):
        e = self.e
        for it in items:
            if it[0] == 'vm': e.vmop(it[1], it[2])
            elif it[0] == 'lg': e.lgop(it[1], it[2])
            elif it[0] == 'wvm': e.wait(vm=it[1])
            elif it[0] == 'wlg': e.wait(lg=it[1])
            elif it[0] == 'st': self.stamp(it[1], it[2])
            else: e(it[1])
    def valu(self, lines, side=None, every=1, bg=None):
        n = 0
        for l in lines:
            if isinstance(l, str): self.e(l)
            else: self.emit_items([l])
            n += 1
            if side and n % every == 0: self.emit_items(side.pop(0))
            if bg: self.bg_try(bg)

    def interleave(self, items, side, every):
        W = ('s_cmp', 's_add', 's_sub', 's_and', 's_or', 's_xor', 's_lshl', 's_lshr', 's_bitcmp', 's_min', 's_max')
        Rd = ('s_cselect', 's_addc', 's_subb', 's_cbranch_scc')
        live = [False] * len(items); l = False
        for i in range(len(items) - 1, -1, -1):
            live[i] = l
            t = items[i][1]
            if t.startswith(Rd): l = True
            elif t.startswith(W): l = False
        n = 0
        for i, it in enumerate(items):
            self.emit_items([it]); n += 1
            if side and n >= every and not live[i]: self.emit_items(side.pop(0)); n = 0
        for g in side: self.emit_items(g)

    def gelu_lines(self, X, Y, T, O):
        U = [X, X + 2, Y, Y + 2]; L = []
        P = lambda r: f"v[{r}:{r+1}]"
        for i in range(4): L.append(f"v_pk_mul_f32 {P(T+2*i)}, {P(U[i])}, {P(U[i])}")
        for i in range(4): L.append(f"v_pk_fma_f32 {P(T+2*i)}, {P(T+2*i)}, v[14:15], s[{sC0}:{sC1}] op_sel_hi:[1,0,0]")
        for i in range(4): L.append(f"v_pk_mul_f32 {P(T+2*i)}, {P(T+2*i)}, {P(U[i])}")
        for i in range(8): L.append(f"v_exp_f32 v{T+i}, v{T+i}")
        for i in range(4): L.append(f"v_pk_add_f32 {P(T+2*i)}, {P(T+2*i)}, 1.0 op_sel_hi:[1,0]")
        for i in range(8): L.append(f"v_rcp_f32 v{T+i}, v{T+i}")
        for i in range(4): L.append(f"v_pk_mul_f32 {P(T+2*i)}, {P(T+2*i)}, {P(U[i])}")
        for i in range(4): L.append(f"v_cvt_pk_bf16_f32 v{O+i}, v{T+2*i}, v{T+2*i+1}")
        return L
    def gelu_consts(self):
        c1 = -2.0 * math.sqrt(2.0 / math.pi) * math.log2(math.e)
        self.e(f"s_mov_b32 s{sC0}, {fl(c1)}\nv_mov_b32 v14, {fl(c1 * 0.044715)}")
    def softmax_lines(self, Pp, E, PH):
        L = []; P = lambda r: f"v[{r}:{r+1}]"
        L += [f"v_max3_f32 v8, v{Pp}, v{Pp+1}, v{Pp+2}", f"v_min3_f32 v10, v{Pp}, v{Pp+1}, v{Pp+2}"]
        for i in range(3, 19, 2): L += [f"v_max3_f32 v8, v8, v{Pp+i}, v{Pp+i+1}", f"v_min3_f32 v10, v10, v{Pp+i}, v{Pp+i+1}"]
        L += [f"v_max_f32 v8, v8, v{Pp+19}", f"v_min_f32 v10, v10, v{Pp+19}"]
        L += [f"v_mul_f32_e64 v8, -v8, s{sC0}", f"v_mul_f32 v10, s{sC0}, v10"]
        for i in range(10):
            L.append(f"v_pk_fma_f32 {P(E+2*i)}, {P(Pp+2*i)}, s[{sC0}:{sC1}], v[8:9] op_sel_hi:[1,0,0]")
            L.append(f"v_pk_fma_f32 {P(E+20+2*i)}, {P(Pp+2*i)}, s[{sC0}:{sC1}], v[10:11] op_sel_hi:[1,0,0] neg_lo:[1,0,0] neg_hi:[1,0,0]")
        for i in range(40): L.append(f"v_exp_f32 v{E+i}, v{E+i}")
        L += [f"v_pk_add_f32 v[8:9], {P(E)}, {P(E+2)}", f"v_pk_add_f32 v[10:11], {P(E+20)}, {P(E+22)}"]
        for i in range(2, 10): L += [f"v_pk_add_f32 v[8:9], v[8:9], {P(E+2*i)}", f"v_pk_add_f32 v[10:11], v[10:11], {P(E+20+2*i)}"]
        L += ["v_add_f32 v8, v8, v9", "v_add_f32 v10, v10, v11", "v_rcp_f32 v8, v8", "v_rcp_f32 v10, v10"]
        for i in range(10): L.append(f"v_pk_mul_f32 {P(E+2*i)}, {P(E+2*i)}, v[8:9] op_sel_hi:[1,0]")
        for i in range(10): L.append(f"v_pk_mul_f32 {P(E+20+2*i)}, {P(E+20+2*i)}, v[10:11] op_sel_hi:[1,0]")
        for i in range(20): L.append(f"v_cvt_pk_bf16_f32 v{PH+i}, v{E+2*i}, v{E+2*i+1}")
        return L
    def wphi_reads(self, va, W0):
        self.e(f"v_mul_u32_u24 v{va}, 800, v2\nv_mad_u32_u24 v{va}, v3, 40, v{va}\nv_add_u32 v{va}, {L_WPHI}, v{va}")
        return [[('lg', f"ds_read_b64_tr_b16 v[{W0+2*(dg*5+fg)}:{W0+1+2*(dg*5+fg)}], v{va} offset:{dg*160 + fg*8}", 'wphi')] for dg in range(5) for fg in range(5)]
    def phi_mfmas(self, KQ, Pp, W0):
        L = []
        for dg in range(5):
            for j in range(2):
                for fg in range(5):
                    d = Pp + 20 * j + 4 * fg; w = W0 + 2 * (dg * 5 + fg); b = KQ + 10 * j + 2 * dg
                    L.append(f"v_mfma_f32_4x4x4_16b_bf16 {vr(d)}, v[{w}:{w+1}], v[{b}:{b+1}], {vr(d) if dg else 0}")
        return L
    def cvt_heads(self, acc0, dst, j, n=5):
        return [f"v_cvt_pk_bf16_f32 v{dst+2*t+h}, v{acc0+(t*2+j)*4+2*h}, v{acc0+(t*2+j)*4+2*h+1}" for t in range(n) for h in range(2)]
    def rho0(self, dst):
        self.e(f"v_lshrrev_b32 v{dst}, 1, v2\nv_lshl_add_u32 v{dst}, v{dst}, 4, v3\nv_and_b32 v7, 1, v2\nv_lshl_add_u32 v{dst}, v7, 2, v{dst}")
    def x_addr(self, ST, nsl=3, base=220):
        e = self.e
        e(f"""v_lshrrev_b32 v9, 1, v1
        v_xor_b32 v9, v9, v2
        v_lshlrev_b32 v9, 4, v9
        v_lshl_add_u32 v9, v1, 7, v9
        v_add_u32 v{base}, s{sM0}, v9
        v_xor_b32 v{base+1}, 64, v{base}""")
        for sl in range(1, nsl): e(f"v_add_u32 v{base+2*sl}, {sl*ST}, v{base}\nv_add_u32 v{base+1+2*sl}, {sl*ST}, v{base+1}")
    def paced(self, groups, m0, span):
        n = len(groups)
        return [dict(at=m0 + int((k + 0.2) * span / n), chain=1, ins=list(g)) for k, g in enumerate(groups)]
    def prog_QH(self):
        e = self.e; c = self.c; self.init_B(); self.perm = (0, 0, 0)
        e("L_QH:")
        ST = QH_ST
        e(f"""s_mul_i32 s{sKW}, s{sHG}, 320
        s_lshl_b32 s{sT0}, s{sHG}, 8
        s_add_u32 s{sT0}, s{sT0}, 384
        s_cmp_lt_u32 s{sHG}, 6
        s_cselect_b32 s{sKW}, s{sKW}, s{sT0}
        s_cselect_b32 s{sK1}, 20, 16
        s_mul_i32 s{sT2}, s{sW}, 320""")
        def dma_x(st):
            g = []
            for j in range(4):
                it = [('x', f"s_add_u32 m0, s{sM0}, {(st%3)*ST}")] if j == 0 else []
                g.append(it + [('vm', f"buffer_load_dwordx4 v{208+j}, {srd(SX)}, s{sE+st} offen offset:{j*1024} {c.xsc} lds", ('S', st))])
            return g
        def dma_a(st, i):
            it = []
            if i == 0: it = [('x', f"s_mul_i32 s{sKA}, s{sE+st}, 1920"), ('x', f"s_add_u32 m0, s{sM0+1}, {(st%3)*ST}")]
            if i == 2: it = [('x', f"s_mov_b32 m0, s{sM0+3+st%3}")]
            return it + [('vm', f"buffer_load_dwordx4 v{212+i}, {srd(SQ)}, s{sKA} offen offset:{1024 if i == 1 else 0} {c.wsc} lds", ('S', st))]
        def dma_h(st, i):
            it = []
            if i == 0: it = [('x', f"s_mul_i32 s{sKB}, s{sE+st}, 1728"), ('x', f"s_add_u32 m0, s{sM0+2}, {(st%3)*ST}")]
            if i == 4: it = [('x', "s_add_u32 m0, m0, 4096")]
            return it + [('vm', f"buffer_load_dwordx4 v{215+i}, {srd(S1)}, s{sKB} offen offset:{(i%4)*1024} {c.wsc} lds", ('S', st))]
        def dma_stage(st): return dma_x(st) + [dma_a(st, i) for i in range(3)] + [dma_h(st, i) for i in range(5)]
        e(f"""s_mul_i32 s{sT0}, s{sW}, 3
        s_lshl_b32 s{sT1}, s{sW}, 1
        s_add_u32 s{sT1}, s{sT1}, 2
        s_cmp_lt_u32 s{sW}, 2
        s_cselect_b32 s{sT0}, s{sT0}, s{sT1}
        s_lshl_b32 s{sM0+1}, s{sT0}, 10
        s_add_u32 s{sM0+1}, s{sM0+1}, 16384""")
        for sl in range(3):
            e(f"s_add_u32 s{sM0+3+sl}, s{sM0+1}, {2048 + sl*ST}\ns_cmp_lt_u32 s{sW}, 2\ns_cselect_b32 s{sM0+3+sl}, s{sM0+3+sl}, {MISC+4608}")
        e(f"s_lshl_b32 s{sT0}, s{sT0}, 6\ns_mul_i32 s{sT1}, s{sHG}, 160\ns_mul_i32 s{sM0+2}, s{sW}, 5120\ns_add_u32 s{sM0+2}, s{sM0+2}, {16384+10240}")
        for i in range(3):
            e(f"v_add_u32 v9, {64*i}, v0\nv_add_u32 v9, s{sT0}, v9")
            self.attn_voff(212 + i, None, sT1)
            if i == 1: e("v_subrev_u32 v213, 1024, v213")
            if i == 2: e(f"s_cmp_lt_u32 s{sW}, 2\ns_cselect_b32 s{sT4}, 0, {OOB}\nv_add_u32 v214, s{sT4}, v214")
        self.kernarg_wait()
        self.small_dma(SM, 6, f"s{sKW}", None, 20, 'bias', f"s_add_u32 m0, s{sT2}, {L_BIASQH}")
        for g in dma_x(0) + [dma_a(0, i) for i in range(3)]: self.emit_items(g)
        e(f"s_mul_i32 s{sT0}, s{sW}, 320\nv_mov_b32 v14, {OOB}")
        for i in range(5):
            e(f"""v_add_u32 v9, {64*i}, v0
            v_add_u32 v9, s{sT0}, v9
            v_mul_u32_u24 v10, 3277, v9
            v_lshrrev_b32 v10, 16, v10
            v_mul_u32_u24 v11, 20, v10
            v_sub_u32 v11, v9, v11
            v_bfe_u32 v13, v10, 2, 1
            v_lshlrev_b32 v13, 1, v13
            v_xor_b32 v11, v11, v13
            v_cmp_gt_u32 vcc, s{sK1}, v11""")
            self.swap23(10, 12)
            e(f"""v_mul_u32_u24 v10, 3456, v10
            v_lshl_add_u32 v10, v11, 4, v10
            v_add_u32 v10, s{sKW}, v10
            v_subrev_u32 v10, {(i%4)*1024}, v10
            v_cndmask_b32 v{215+i}, v14, v10, vcc""")
            self.emit_items(dma_h(0, i))
        def setup():
            e = self.e
            self.x_addr(ST); self.rho0(8)
            e(f"v_mul_u32_u24 v9, 160, v8\nv_mad_u32_u24 v9, v4, 40, v9\nv_add_u32 v226, 16384, v9")
            e(f"v_mul_u32_u24 v9, 320, v8\nv_lshl_add_u32 v9, v4, 3, v9\nv_add_u32 v9, {16384+10240}, v9\nv_lshl_add_u32 v229, v7, 5, v9\nv_xor_b32 v7, 1, v7\nv_lshl_add_u32 v232, v7, 5, v9")
            for sl in (1, 2): e(f"v_add_u32 v{226+sl}, {sl*ST}, v226\nv_add_u32 v{229+sl}, {sl*ST}, v229\nv_add_u32 v{232+sl}, {sl*ST}, v232")
            self.common_setup(); self.pack_setup()
            e(f"s_mul_i32 s{sT1}, s{sW}, 320\ns_add_u32 s{sT1}, s{sT1}, {L_BIASQH}\nv_lshl_add_u32 v13, v2, 3, s{sT1}")
            e(f"""s_lshl_b32 s{sT0}, s{sMT}, 1
            s_lshr_b32 s{sT1}, s{sW}, 1
            s_add_u32 s{sT0}, s{sT0}, s{sT1}
            s_and_b32 s{sT1}, s{sW}, 1
            s_mul_i32 s{sT2}, s{sT0}, 74
            s_lshl_b32 s{sT2}, s{sT2}, 12
            s_lshl_b32 s{sT3}, s{sT1}, 11
            s_add_u32 s{sT2}, s{sT2}, s{sT3}
            s_add_u32 s{sT2}, s{sT2}, {A2}
            s_lshr_b32 s{sT4}, s{sHG}, 1
            s_mul_i32 s{sT4}, s{sT4}, 5
            s_add_u32 s{sT4}, s{sT4}, 54
            s_lshl_b32 s{sT4}, s{sT4}, 12
            s_add_u32 s{sT4}, s{sT4}, s{sT2}
            s_and_b32 s{sT5}, s{sHG}, 1
            s_lshl_b32 s38, s{sT5}, 13
            s_add_u32 s38, s38, s{sT4}
            s_add_u32 s39, s{sT4}, {4*4096}
            s_lshl_b32 s{sT5}, s{sT5}, 3
            s_add_u32 s39, s39, s{sT5}
            s_lshl_b32 s{sT0}, s{sHG}, 4
            s_add_u32 s{sT0}, s{sT0}, s{sMT}
            s_lshl_b32 s{sT0}, s{sT0}, 2
            s_add_u32 s{sT0}, s{sT0}, s{sW}
            s_lshl_b32 s{sT0}, s{sT0}, 9
            s_add_u32 s45, s{sT0}, {GB}
            v_mov_b32 v204, -1
            v_mov_b32 v205, -1
            v_mov_b32 v206, -1
            v_mov_b32 v207, -1""")
        self.interleave(self.record(setup), dma_stage(1), c.pe)
        self.small_dma(SM, 6, "s36", None, 50, 'misc', "s_mov_b32 m0, s37")
        for g in self.pack_loads(): self.emit_items(g)
        self.tag_wait()
        e.wait(vm='bias')
        for s_ in range(10): e.lgop(f"ds_read_b64 v[{136+2*s_}:{137+2*s_}], v13 offset:{s_*32}", ('b', s_))
        for s_ in range(10):
            a0 = 16 + (5 + s_) * 8; e.wait(lg=('b', s_))
            for h in range(2): e(f"v_lshlrev_b32 v{a0+2*h}, 16, v{136+2*s_+h}\nv_and_b32 v{a0+2*h+1}, 0xffff0000, v{136+2*s_+h}")
        self.stamp(0)
        NS = 15; nm = NS * 4; mf = []; reads = []
        for st in range(10):
            sl = st % 3
            for t in range(NS):
                gs = st * NS + t; wr = 168 + 8 * (gs % 4); m0 = len(mf)
                for ks in range(2):
                    for rd in range(2):
                        if t < 5: ad, off = 226 + sl, ks * 5120 + rd * 1280 + t * 8
                        else: ad, off = (229 if (t - 5) % 2 == 0 else 232) + sl, ks * 10240 + rd * 2560 + ((t - 5) >> 1) * 64
                        reads.append([f"ds_read_b64_tr_b16 v[{wr+4*ks+2*rd}:{wr+4*ks+2*rd+1}], v{ad} offset:{off}", m0, st, m0 - 13])
                for j in ((1, 0) if st == 0 else (0, 1)):
                    for ks in range(2):
                        xr = 136 + (st % 2) * 16 + (j * 2 + ks) * 4; d = 16 + (t * 2 + j) * 4
                        if t == 0: reads.append([f"ds_read_b128 {vr(xr)}, v{220+2*sl+ks} offset:{j*2048}", len(mf), st, -1])
                        cc = vr(d)
                        if st == 0 and ks == 0: cc = "0" if t < 5 else vr(16 + t * 8)
                        mf.append(f"v_mfma_f32_16x16x32_bf16 {vr(d)}, {vr(wr+4*ks)}, {vr(xr)}, {cc}")
        NB0 = c.qb0
        po = lambda va, off: [('vm', f"buffer_store_dwordx4 v[204:207], v{va}, {srd(SWS)}, s38 offen offset:{off} sc1", 'hst')]
        poison = [po(6, 0), po(6, 1024), po(240, 0), po(240, 1024)] + [[('vm', f"buffer_store_dwordx2 v[204:205], v6, {srd(SWS)}, s39 offen offset:{j*1024} sc1", 'hst')] for j in range(2)]
        def mksync(st):
            def f(m):
                e.wait(vm=[('S', st)] + (['pkst'] if st == c.pks + 3 else []) + (['packld', 'misc'] if st == 2 else []), lg_all=True); e("s_barrier")
                self.stamp(st + 1, 2)
                out = []
                if st + 2 < 10: out += self.paced(dma_stage(st + 2) + (self.pack_stores() if st == c.pks else []), m, nm - c.dtail)
                if st == c.pks: out += self.pack_fill(m, nm)
                if st == c.pks + 3: out.append(dict(at=m + 1, ins=[('vm', self.flag_store(245, 246, f"s{sF1}"), 'f1st')]))
                if st == 7: out += [dict(at=m + nm - 4 + 2 * k, chain=1, ins=g) for k, g in enumerate(self.f1_issue())]
                if st == 8:
                    out += self.paced(poison, m, c.f1c)
                    out += [dict(at=m + c.f1c + 2 * k, chain=1, ins=[it]) for k, it in enumerate(self.f1_check())]
                    self.bg0 = m + c.f1c + 28
                return out
            return f
        self.bg0 = 9999
        self.stream(mf, reads, [], {st: mksync(st) for st in range(10)}, name='QH', bg=lambda m: (lambda u: m >= self.bg0 and u < 64))
        self.stamp(1); self.stamp(11, 2)
        A64 = lambda u: u < 64; ALL = lambda u: True
        wr_ = self.wphi_reads(13, 168)
        self.gelu_consts()
        e(f"s_lshl_b32 s{sT3}, s{sKW}, 6\ns_add_u32 s{sT3}, s{sT3}, s{sT2}")
        L = []
        for p in range(5):
            for j in range(2):
                O = 152 + 4 * ((2 * p + j) % 4)
                L += self.gelu_lines(16 + ((5 + 2 * p) * 2 + j) * 4, 16 + ((6 + 2 * p) * 2 + j) * 4, 136 + 8 * j, O)
                if j == 0:
                    if p == 4: L += [f"s_add_u32 s{sT4}, s{sT3}, {4*4096}", f"s_cmp_lt_u32 s{sHG}, 6\ns_cselect_b32 s{sT4}, s{sT4}, {OOB}"]
                    else: L.append(f"s_add_u32 s{sT4}, s{sT3}, {p*4096}")
                L.append(('vm', f"buffer_store_dwordx4 {vr(O)}, v6, {srd(SWS)}, s{sT4} offen offset:{j*1024} sc1", 'hst'))
        self.valu(L, wr_, 16, A64)
        for g in wr_: self.emit_items(g)
        self.valu(self.cvt_heads(16, 56, 0) + self.cvt_heads(16, 66, 1), bg=A64)
        self.stamp(2); self.stamp(1, 3)
        e.wait(lg='wphi')
        self.valu(self.phi_mfmas(56, 76, 168), bg=A64)
        e(f"""s_lshl_b32 s{sT4}, s{sMT}, 4
        s_add_u32 s{sT4}, s{sT4}, s{sHG}
        s_lshl_b32 s{sT4}, s{sT4}, 7
        s_add_u32 s{sT4}, s{sT4}, {F4}
        s_cmp_eq_u32 s{sW}, 0
        s_cselect_b32 s{sT5}, s{sT4}, {OOB}
        s_mov_b32 s{sC0}, {fl(math.log2(math.e))}""")
        L1 = self.softmax_lines(76, 16, 116)
        self.valu(L1[:c.f4at], bg=A64)
        self.stamp(2, 3)
        e.wait(vm='hst'); self.stamp(3, 3); e("s_barrier")
        self.stamp(4, 3)
        if c.stamps == 3: e(f"s_mov_b32 s{sC0}, {fl(math.log2(math.e))}")
        e.vmop(self.flag_store(245, 246, f"s{sT5}"), 'f4st')
        self.valu(L1[c.f4at:], bg=ALL)
        L2 = self.softmax_lines(96, 16, 136)
        self.valu(L2[:c.pa], bg=ALL)
        self.ph2_pre()
        self.valu(L2[c.pa:c.pb], bg=ALL)
        pool = [[('v', r), 160 if r < 204 else c.p3 if r < 220 else 999] for r in list(range(204, 224, 4)) + list(range(168, 204, 4))]
        self.stamp(5, 3); self.ph2_begin(pool); self.stamp(6, 3)
        if c.stamps == 3: e(f"s_mov_b32 s{sC0}, {fl(math.log2(math.e))}")
        self.valu(L2[c.pb:], bg=ALL)
        self.stamp(3)
        for q in range(7, 12): self.stamp(q, 3)
        pool += [[('v', r), 160] for r in range(156, 168, 4)]
        FO = (0, 1024, 2048, 2816)
        finld = [f"buffer_load_dwordx4 {vr(204+4*i)}, v6, {srd(SWS)}, s{sKW} offen offset:{FO[i]} sc1" for i in range(4)]
        finld += [f"buffer_load_dwordx4 {vr(248+4*j)}, v13, {srd(SWS)}, s45 offen offset:{j*256} sc1" for j in range(2)]
        def h_p3():
            e(f"""s_mul_i32 s{sKW}, s{sHG}, {FSZ}
            s_mul_i32 s{sK1}, s{sW}, 3840
            s_add_u32 s{sKW}, s{sKW}, s{sK1}
            s_add_u32 s{sKW}, s{sKW}, {FIN}
            v_lshlrev_b32 v13, 4, v1""")
            for l in finld: e.vmop(l, 'fin')
        def h_o():
            self.stamp(4)
            e(f"s_lshr_b32 s{sK1}, s{sK1}, 1\ns_add_u32 s{sK1}, s{sK1}, {L_FIN}\nv_lshl_add_u32 v9, v0, 3, s{sK1}")
            e.wait(vm='fin')
            for l in self.tag_check(finld, list(range(204, 220)) + list(range(248, 256)), 8): e(l)
            self.stamp(5)
            for r in list(range(204, 220)) + [248, 252]: e(self.tag_strip(r))
            e("v_mov_b32 v250, v248\nv_mov_b32 v251, v252")
            for i in range(4):
                e(f"v_cvt_pk_bf16_f32 v{204+4*i}, v{204+4*i}, v{205+4*i}\nv_cvt_pk_bf16_f32 v{205+4*i}, v{206+4*i}, v{207+4*i}")
                e.lgop(f"ds_write_b64 v9, v[{204+4*i}:{205+4*i}] offset:{FO[i]//2}", 'fw')
            self.poll4b_issue()
            fr = [p for p in pool if p[0][0] == 'a'][:8]; assert len(fr) == 8
            e(f"v_lshlrev_b32 v13, 6, v2\nv_lshl_add_u32 v13, v4, 4, v13\nv_add_u32 v13, {L_FIN}, v13")
            e.wait(lg='fw'); e("s_barrier")
            self.stamp(6)
            mf = []; reads = []
            for fp in range(5):
                for dg in range(6):
                    n = fp * 6 + dg; f0 = fr[n % 8][0][1]; base = (n // 2) * 8
                    reads.append([f"ds_read_b128 {ar(f0)}, v13 offset:{(dg*5+fp)*256}", base + 2 * (n % 2), -1, base - 24])
                    for h in range(2):
                        for j in range(2):
                            d = 156 + 24 * j + 4 * dg; b = 116 + 20 * j + 2 * (2 * fp + h)
                            mf.append(f"v_mfma_f32_4x4x4_16b_bf16 {vr(d)}, a[{f0+2*h}:{f0+2*h+1}], v[{b}:{b+1}], {vr(d) if (fp or h) else 0}")
            mf2 = []
            for n in range(0, 30, 2):
                a_, b_ = mf[4*n:4*n+4], mf[4*n+4:4*n+8]
                mf2 += [a_[0], a_[1], b_[0], b_[1], a_[2], a_[3], b_[2], b_[3]]
            self.stream(mf2, reads, [], None, LA=20)
            for j in range(2): e(f"v_add_f32 v{8+2*j}, {fl(1e-6)}, v{156+24*j+20}")
            for j in range(2): e(f"v_rcp_f32 v{8+2*j}, v{8+2*j}")
            for j in range(2): e(f"v_mul_f32 v{8+2*j}, v{8+2*j}, v{250+j}")
            for j in range(2):
                D = 156 + 24 * j
                for i in range(10): e(f"v_pk_mul_f32 v[{D+2*i}:{D+2*i+1}], v[{D+2*i}:{D+2*i+1}], v[{8+2*j}:{9+2*j}] op_sel_hi:[1,0]")
                for i in range(10): e(f"v_cvt_pk_bf16_f32 v{D+i}, v{D+2*i}, v{D+2*i+1}")
                for i in range(10): e(f"v_min_u32 v{D+i}, -2, v{D+i}")
                e.vmop(f"buffer_store_dwordx4 {vr(D)}, v6, {srd(SWS)}, s38 offen offset:{j*1024} sc1", 'ost')
                e.vmop(f"buffer_store_dwordx4 {vr(D+4)}, v240, {srd(SWS)}, s38 offen offset:{j*1024} sc1", 'ost')
                e.vmop(f"buffer_store_dwordx2 {vr(D+8, 2)}, v6, {srd(SWS)}, s39 offen offset:{j*1024} sc1", 'ost')
            for p in pool: p[1] = 999
            pool.extend([[('v', r), 999] for r in range(116, 156, 4)])
            self.stamp(14)
            self.poll4b_check()
        self.phase2({c.p3: h_p3, 159: h_o})

    def prog_KV(self):
        e = self.e; c = self.c; self.init_B(); self.perm = (5, 2, 2) if c.perm else (0, 0, 0)
        ST = KV_ST; NR = c.kvring; XA = 136; WA = 144
        e(f"""s_mul_i32 s{sM0+1}, s{sW}, 5120
        s_add_u32 s{sM0+1}, s{sM0+1}, 16384
        s_lshl_b32 s{sKW}, s{sHG}, 7
        s_add_u32 s{sKW}, s{sKW}, {19*128}""")
        def dma_x(st):
            g = []
            for j in range(4):
                it = [('x', f"s_add_u32 m0, s{sM0}, {(st%NR)*ST}")] if j == 0 else []
                g.append(it + [('vm', f"buffer_load_dwordx4 v{208+j}, {srd(SX)}, s{sE+st} offen offset:{j*1024} {c.xsc} lds", ('S', st))])
            return g
        def dma_w(st, i):
            it = []
            if i == 0: it = [('x', f"s_mul_i32 s{sKA}, s{sE+st}, 1920"), ('x', f"s_add_u32 m0, s{sM0+1}, {(st%NR)*ST}")]
            if i == 4: it = [('x', "s_add_u32 m0, m0, 4096")]
            return it + [('vm', f"buffer_load_dwordx4 v{212+i}, {srd(SQ)}, s{sKA} offen offset:{(i%4)*1024} {c.wsc} lds", ('S', st))]
        def dma_stage(st): return dma_x(st) + [dma_w(st, i) for i in range(5)]
        def whbase(ch): return (WH0 + ch * 8192) if ch < 5 else (WH5 + (ch - 5) * 8192)
        def dma_wh(chs):
            return sum([[[('x', f"s_mul_i32 s{sKB}, s{sE+ch}, 1728"), ('x', f"s_add_u32 m0, s{sM0+2}, {whbase(ch)}"),
                          ('vm', f"buffer_load_dwordx4 v217, {srd(S1)}, s{sKB} offen {c.wsc} lds", 'WH')],
                         [('vm', f"buffer_load_dwordx4 v218, {srd(S1)}, s{sKB} offen offset:1024 {c.wsc} lds", 'WH')]] for ch in chs], [])
        e(f"""s_and_b32 s{sT0}, s{sW}, 1
        s_mul_i32 s{sT0}, s{sT0}, 320
        s_lshr_b32 s{sT1}, s{sW}, 1
        s_add_u32 s{sT1}, s{sT1}, 1
        s_mul_i32 s{sT1}, s{sT1}, 1280
        s_mul_i32 s{sT3}, s{sHG}, 160
        s_add_u32 s{sT1}, s{sT1}, s{sT3}""")
        for i in range(5):
            e(f"v_add_u32 v9, {64*i}, v0\nv_add_u32 v9, s{sT0}, v9")
            self.attn_voff(212 + i, None, sT1)
            if i % 4: e(f"v_subrev_u32 v{212+i}, {(i%4)*1024}, v{212+i}")
        self.kernarg_wait()
        for g in dma_stage(0): self.emit_items(g)
        self.small_dma(SM, 6, f"s{sKW}", L_BIASKV, 8, 'misc')
        def setup():
            e = self.e
            self.x_addr(ST, NR, XA); self.rho0(8)
            e(f"v_mul_u32_u24 v9, 160, v8\nv_mad_u32_u24 v9, v4, 40, v9\nv_add_u32 v{WA}, 16384, v9")
            for sl in range(1, NR): e(f"v_add_u32 v{WA+sl}, {sl*ST}, v{WA}")
            e(f"v_lshlrev_b32 v9, 7, v8\nv_lshl_add_u32 v9, v4, 3, v9\nv_add_u32 v9, {WH0}, v9\nv_bfe_u32 v10, v8, 1, 2")
            for t in range(4): e(f"v_xor_b32 v11, {t}, v10\nv_lshl_add_u32 v{229+t}, v11, 5, v9\nv_subrev_u32 v{224+t}, {WH0-WH5}, v{229+t}")
            self.common_setup(); self.pack_setup()
            e(f"v_add_u32 v253, s{sE}, v6\nv_subrev_u32 v10, 1280, v253\nv_min_u32 v253, v253, v10\nv_add_u32 v254, 1024, v253\nv_subrev_u32 v10, 1280, v254\nv_min_u32 v254, v254, v10")
            e(f"s_lshl_b32 s{sM0+2}, s{sW}, 11\ns_lshl_b32 s{sT3}, s{sW}, 4")
            for pp in range(2):
                e(f"v_add_u32 v10, {8*pp}, v5\nv_add_u32 v10, s{sT3}, v10")
                self.swap23(10, 12)
                e(f"""v_lshlrev_b32 v11, 1, v2
                v_xor_b32 v11, v11, v0
                v_and_b32 v11, 7, v11
                v_mul_u32_u24 v10, 3456, v10
                v_lshl_add_u32 v10, v11, 4, v10
                v_add_u32 v10, s{sKW}, v10
                v_subrev_u32 v{217+pp}, {pp*1024}, v10""")
            e(f"""v_mul_u32_u24 v220, {RSV}, v1
            v_mad_u32_u24 v220, v2, 48, v220
            s_mul_i32 s{sT0}, s{sW}, {32*RSV}
            s_add_u32 s{sT0}, s{sT0}, {L_V}
            v_add_u32 v220, s{sT0}, v220
            v_mul_u32_u24 v221, {RSP}, v1
            s_mov_b32 s{sT0}, 80
            v_mad_u32_u24 v221, v2, s{sT0}, v221
            s_mul_i32 s{sT0}, s{sW}, {32*RSP}
            v_add_u32 v221, s{sT0}, v221
            v_lshl_add_u32 v8, v2, 2, v3
            v_mul_u32_u24 v222, {RSP}, v8
            v_lshl_add_u32 v222, v4, 3, v222
            s_mul_i32 s{sT0}, s{sW}, 80
            v_add_u32 v222, s{sT0}, v222
            v_mul_u32_u24 v223, {RSV}, v8
            v_lshl_add_u32 v223, v4, 3, v223
            s_mul_i32 s{sT0}, s{sW}, 48
            s_add_u32 s{sT0}, s{sT0}, {L_V}
            v_add_u32 v223, s{sT0}, v223
            v_lshlrev_b32 v228, 3, v2
            v_add_u32 v228, {L_BIASKV}, v228
            v_lshlrev_b32 v233, 4, v2
            v_add_u32 v233, {L_GATE}, v233""")
            e(f"""v_lshrrev_b32 v8, 2, v1
            v_mul_u32_u24 v8, 2560, v8
            v_lshl_add_u32 v8, v4, 5, v8
            v_lshrrev_b32 v9, 1, v2
            v_lshl_add_u32 v8, v9, 9, v8
            v_and_b32 v9, 1, v2
            v_lshl_add_u32 v8, v9, 4, v8
            s_lshl_b32 s{sT0}, s{sW}, 7
            v_add_u32 v241, s{sT0}, v8
            v_add_u32 v243, 10240, v241
            v_mov_b32 v9, {OOB}
            v_cmp_ge_u32 vcc, 7, v1
            v_cndmask_b32 v243, v9, v243, vcc
            v_cmp_gt_u32 vcc, 2, v2
            v_cndmask_b32 v242, v9, v241, vcc
            v_cndmask_b32 v244, v9, v243, vcc
            v_mul_u32_u24 v12, {PSZ}, v2
            v_min_u32 v10, 14, v1
            v_lshl_add_u32 v12, v10, 4, v12
            v_lshlrev_b32 v13, 4, v1
            v_cmp_gt_u32 vcc, 15, v0
            v_cndmask_b32 v13, v9, v13, vcc
            v_lshlrev_b32 v166, 4, v1
            v_cmp_gt_u32 vcc, 16, v0
            v_cndmask_b32 v166, v9, v166, vcc
            v_lshlrev_b32 v167, 7, v1""")
        self.interleave(self.record(setup), dma_stage(1), c.pe2)
        self.small_dma(SM, 6, "s36", None, 50, 'misc', "s_mov_b32 m0, s37")
        mk_srd(e, SM, pGATE, 1280)
        self.small_dma(SM, 253, "0", L_GATE, 64, 'misc'); self.small_dma(SM, 254, "0", L_GATE + 1024, 16, 'misc')
        for g in self.pack_loads(): self.emit_items(g)
        wphi = self.wphi_reads(219, 96)
        self.tag_wait()
        self.stamp(0)
        NS = 10; nm = NS * 4; mf = []; reads = []
        for st in range(10):
            sl = st % NR
            for t in range(NS):
                gs = st * NS + t; wr = 168 + 8 * (gs % 4); m0 = len(mf)
                for ks in range(2):
                    for rd in range(2):
                        off = (t // 5) * 10240 + ks * 5120 + rd * 1280 + (t % 5) * 8
                        reads.append([f"ds_read_b64_tr_b16 v[{wr+4*ks+2*rd}:{wr+4*ks+2*rd+1}], v{WA+sl} offset:{off}", m0, st, m0 - 13])
                for j in range(2):
                    for ks in range(2):
                        xr = st * 16 + (j * 2 + ks) * 4; d = 16 + (t * 2 + j) * 4
                        if t == 0: reads.append([f"ds_read_b128 {ar(xr)}, v{XA+2*sl+ks} offset:{j*2048}", len(mf), st, -1])
                        mf.append(f"v_mfma_f32_16x16x32_bf16 {vr(d)}, {vr(wr+4*ks)}, {ar(xr)}, {vr(d) if (st or ks) else 0}")
        whplan = {8: [0, 1, 2, 3, 4], 9: [5, 6, 7, 8, 9]} if NR == 3 else {7: [5, 6, 7, 8], 8: [9, 0, 1, 2, 3, 4]}
        def mksync(st):
            def f(m):
                e.wait(vm=[('S', st)] + (['pkst'] if st == c.pks + 3 else []) + (['packld', 'misc'] if st == 2 else []), lg_all=True); e("s_barrier")
                self.stamp(st + 1, 2)
                gr = []
                if NR == 4 and st == 0: gr += dma_stage(2)
                if st + NR - 1 < 10: gr += dma_stage(st + NR - 1)
                gr += dma_wh(whplan.get(st, []))
                if st == 9: gr += self.f1_issue()
                if st == c.pks: gr += self.pack_stores()
                out = self.paced(gr, m, nm - c.dtail) if gr else []
                if st == c.pks: out += self.pack_fill(m, nm)
                if st == c.pks + 3: out.append(dict(at=m + 1, ins=[('vm', self.flag_store(245, 246, f"s{sF1}"), 'f1st')]))
                return out
            return f
        early = [g for g in wphi if int(g[0][1].split('[')[1].split(':')[0]) < XA]; late = [g for g in wphi if g not in early]
        fill = [dict(at=5 * nm + 3 + 7 * k, ins=g) for k, g in enumerate(early)]
        self.stream(mf, reads, fill, {st: mksync(st) for st in range(10)}, name='KV1')
        self.stamp(1); self.stamp(11, 2)
        for g in late: self.emit_items(g)
        KQ = 146; PR = 168; VT = 208
        for j in range(2):
            for l in self.cvt_heads(16, KQ + 10 * j, j): e(l)
        e.wait(lg='wphi')
        ph = self.phi_mfmas(KQ, PR, 96)
        vc0 = self.cvt_heads(56, VT, 0) + [f"v_mov_b32 v{VT+10}, 0x3f80", f"v_mov_b32 v{VT+11}, 0"]
        self.valu(ph, [[('x', l)] for l in vc0], 4)
        e.wait(vm='WH'); e("s_barrier")
        for i in range(3): e.lgop(f"ds_write_b128 v220, {vr(VT+4*i)} offset:{i*16}", 'vw')
        e(f"s_mov_b32 s{sC0}, {fl(math.log2(math.e))}")
        L0 = self.softmax_lines(PR, 16, 96)
        self.valu(L0[:30], None, 1)
        e.wait(lg='vw')
        for l in self.cvt_heads(56, VT, 1): e(l)
        for i in range(3): e.lgop(f"ds_write_b128 v220, {vr(VT+4*i)} offset:{16*RSV + i*16}", 'vw')
        self.valu(L0[30:c.kf1], None, 1)
        self.emit_items(self.f1_check())
        A24 = lambda u: u < 24
        self.valu(L0[c.kf1:], bg=A24)
        pw = lambda j: [[('lg', f"ds_write_b128 v221, {vr(96+20*j+4*i)} offset:{j*16*RSP + i*16}", 'pw')] for i in range(5)]
        L1 = self.softmax_lines(PR + 20, 16, 116)
        self.valu(L1[:40], pw(0), 8, A24)
        self.valu(L1[40:-20], bg=A24)
        self.valu(L1[-20:], pw(1), 4, A24)
        e(f"""s_lshl_b32 s{sT0}, s{sHG}, 4
        s_add_u32 s{sT0}, s{sT0}, s{sMT}
        s_mul_i32 s{sT1}, s{sT0}, {PSZ}
        s_add_u32 s{sT1}, s{sT1}, {PP}""")
        e.wait(lg_all=True); e("s_barrier")
        self.stamp(2)
        mf = []; reads = []
        for s_ in range(4):
            b0 = 56 + s_ * 20; m0 = len(mf)
            for dt in range(2):
                for rd in range(2): reads.append([f"ds_read_b64_tr_b16 v[{b0+12+4*dt+2*rd}:{b0+13+4*dt+2*rd}], v223 offset:{(32*s_+16*rd)*RSV + dt*32}", m0 + dt, -1, -1])
            for ft in range(3):
                for rd in range(2): reads.append([f"ds_read_b64_tr_b16 v[{b0+4*ft+2*rd}:{b0+4*ft+2*rd+1}], v222 offset:{(32*s_+16*rd)*RSP + ft*32}", m0 + 2 * ft, -1, -1])
                for dt in range(2):
                    d = 16 + (ft * 2 + dt) * 4
                    mf.append(f"v_mfma_f32_16x16x32_bf16 {vr(d)}, {vr(b0+4*ft)}, {vr(b0+12+4*dt)}, {vr(d) if s_ else 0}")
        reads.sort(key=lambda r: r[1]); rp = 0
        for m in range(24):
            while rp < 40 and (len(e.lg) < 14 and (m == 0 or reads[rp][1] <= m + 8) or reads[rp][1] <= m): e.lgop(reads[rp][0], ('kv', reads[rp][1])); rp += 1
            e.wait(lg=[('kv', k) for k in range(m + 1)])
            if rp == 40 and not e.lg and 'B3' not in self.__dict__:
                self.B3 = 1; e("s_barrier")
                for s_ in range(4): e.lgop(f"ds_read_b64 v[{136+2*s_}:{137+2*s_}], v228 offset:{s_*32}", 'b')
            e(mf[m])
        del self.B3
        e.wait(lg='b')
        for ft in range(3):
            for dt in range(2):
                for i in range(4): e(self.tag_put(16+(ft*2+dt)*4+i))
                e.vmop(f"buffer_store_dwordx4 {vr(16+(ft*2+dt)*4)}, v{241+2*dt+(ft==2)}, {srd(SWS)}, s{sT1} offen offset:{ft*1024} sc1", 'pst')
        for s_ in range(4):
            for h in range(2): e(f"v_lshlrev_b32 v{96+8*s_+2*h}, 16, v{136+2*s_+h}\nv_and_b32 v{97+8*s_+2*h}, 0xffff0000, v{136+2*s_+h}")
        self.stamp(3); self.stamp(1, 3)
        mf = []; reads = []
        for st in range(10):
            wr = 136 + 8 * (st % 3); m0 = len(mf)
            for ks in range(2): reads.append([f"ds_read_b128 {vr(wr+4*ks)}, v233 offset:{(st*2+ks)*64}", m0, -1, m0 - 9])
            for j in range(2):
                for ks in range(2):
                    d = 128 + 4 * j
                    mf.append(f"v_mfma_f32_16x16x32_bf16 {vr(d)}, {vr(wr+4*ks)}, {ar(st*16+(j*2+ks)*4)}, {vr(d) if (st or ks) else 0}")
        G0 = 40
        for st in range(10):
            for t in range(4):
                wr = 168 + 8 * t; m0 = len(mf)
                for ks in range(2):
                    for rd in range(2):
                        reads.append([f"ds_read_b64_tr_b16 v[{wr+4*ks+2*rd}:{wr+4*ks+2*rd+1}], v{(229 if st < 5 else 224)+t} offset:{(st%5)*8192 + ks*4096 + rd*1024}", m0, -1, m0 - 13])
                for j in ((1, 0) if st == 0 else (0, 1)):
                    for ks in range(2):
                        xr = st * 16 + (j * 2 + ks) * 4; d = 96 + (t * 2 + j) * 4; cc = vr(d)
                        if st == 0 and ks == 0: cc = vr(96 + t * 8)
                        mf.append(f"v_mfma_f32_16x16x32_bf16 {vr(d)}, {vr(wr+4*ks)}, {ar(xr)}, {cc}")
        fill = []
        X = lambda s: [('x', l.strip()) for l in s.split("\n")]
        nl2e = fl(-math.log2(math.e))
        fill.append(dict(at=G0 + 3, ins=X(f"""v_mul_f32 v128, {nl2e}, v128
            v_mul_f32 v132, {nl2e}, v132
            v_exp_f32 v128, v128
            v_exp_f32 v132, v132
            s_lshl_b32 s{sT2}, s{sMT}, 2
            v_add_f32 v128, 1.0, v128
            v_add_f32 v132, 1.0, v132
            v_rcp_f32 v128, v128
            v_rcp_f32 v132, v132
            s_add_u32 s{sT2}, s{sT2}, s{sW}
            s_lshl_b32 s{sT3}, s{sT2}, 9
            s_lshl_b32 s{sT4}, s{sHG}, 15
            s_add_u32 s{sT3}, s{sT3}, s{sT4}
            s_add_u32 s{sT3}, s{sT3}, {GB}""") + [('x', self.tag_put(128 + 4*j + i, 128 + 4*j)) for j in range(2) for i in (3, 2, 1, 0)]
            + [('vm', f"buffer_store_dwordx4 {vr(128+4*j)}, v166, {srd(SWS)}, s{sT3} offen offset:{j*256} sc1", 'hst') for j in range(2)]))
        pld = [f"buffer_load_dwordx4 {vr(16+4*i)}, v12, {srd(SWS)}, s{32+i} offen sc1" for i in range(4)]
        fill.append(dict(at=c.r1, ins=X(f"""s_mul_i32 s32, s{sT2}, 240
            s_mul_i32 s{sT4}, s{sHG}, {16*PSZ}
            s_add_u32 s32, s32, s{sT4}
            s_add_u32 s32, s32, {PP}
            s_add_u32 s33, s32, {4*PSZ}
            s_add_u32 s34, s33, {4*PSZ}
            s_add_u32 s35, s34, {4*PSZ}""") + [('vm', l, 'pld') for l in pld]))
        red = [f"v_add_f32 v{16+i}, v{16+i}, v{20+i}" for i in range(4)] + [f"v_add_f32 v{24+i}, v{24+i}, v{28+i}" for i in range(4)] + [f"v_add_f32 v{16+i}, v{16+i}, v{24+i}" for i in range(4)]
        for sw in ('32', '16'):
            red += [f"v_mov_b32 v{20+i}, v{16+i}" for i in range(4)] + [f"v_permlane{sw}_swap_b32 v{16+i}, v{20+i}" for i in range(4)] + [f"v_add_f32 v{16+i}, v{16+i}, v{20+i}" for i in range(4)]
        fill.append(dict(at=c.r2, ins=[('st', 5, 3), ('wvm', 'pld')] + [('x', l) for l in self.tag_check(pld, range(16, 32), 8)] + [('st', 6, 3)] + [('x', self.tag_strip(16 + i)) for i in range(16)] + [('x', l) for l in red] + [('x', self.tag_put(16 + i)) for i in range(4)] +
            X(f"""s_mul_i32 s{sT4}, s{sT2}, 240
            s_mul_i32 s{sT3}, s{sHG}, {FSZ}
            s_add_u32 s{sT4}, s{sT4}, s{sT3}
            s_add_u32 s{sT4}, s{sT4}, {FIN}""") + [('vm', f"buffer_store_dwordx4 v[16:19], v13, {srd(SWS)}, s{sT4} offen sc1", 'fst'), ('st', 4, 3)]))
        fill.append(dict(at=180, ins=self.record(self.ph2_pre)))
        fill += [dict(at=35, ins=[('st', 2, 3)]), dict(at=69, ins=[('st', 3, 3)]), dict(at=170, ins=[('st', 10, 3)])]
        self.stream(mf, reads, fill, None, name='KV2', bg=lambda m: (lambda u: u < 24 or u >= 64 or m >= G0 + 16 * ((u - 24) // 4 + 1)))
        self.stamp(4); self.stamp(7, 3)
        self.stamp(14); self.stamp(8, 3)
        pool = [[('v', r), 999] for r in list(range(168, 224, 4))]
        self.ph2_begin(pool); self.stamp(9, 3)
        self.gelu_consts()
        e(f"""s_lshl_b32 s{sT4}, s{sMT}, 1
        s_lshr_b32 s{sT5}, s{sW}, 1
        s_add_u32 s{sT4}, s{sT4}, s{sT5}
        s_and_b32 s{sT5}, s{sW}, 1
        s_mul_i32 s{sT3}, s{sT4}, 74
        s_lshl_b32 s{sKW}, s{sHG}, 1
        s_add_u32 s{sT3}, s{sT3}, s{sKW}
        s_add_u32 s{sT3}, s{sT3}, 38
        s_lshl_b32 s{sT3}, s{sT3}, 12
        s_lshl_b32 s{sT5}, s{sT5}, 11
        s_add_u32 s{sT3}, s{sT3}, s{sT5}
        s_add_u32 s{sT3}, s{sT3}, {A2}
        s_lshl_b32 s{sKW}, s{sMT}, 4
        s_add_u32 s{sKW}, s{sKW}, s{sHG}
        s_lshl_b32 s{sKW}, s{sKW}, 7
        s_add_u32 s{sKW}, s{sKW}, {F4+1024}
        s_cmp_eq_u32 s{sW}, 0
        s_cselect_b32 s{sKW}, s{sKW}, {OOB}""")
        for p in range(2):
            L = []
            for j in range(2):
                O = 152 + 4 * ((2 * p + j) % 4)
                L += self.gelu_lines(96 + (4 * p + j) * 4, 96 + (4 * p + 2 + j) * 4, 136 + 8 * j, O)
                if j == 0 and p == 1: L.append(f"s_add_u32 s{sT3}, s{sT3}, 4096")
                L.append(('vm', f"buffer_store_dwordx4 {vr(O)}, v6, {srd(SWS)}, s{sT3} offen offset:{j*1024} sc1", 'hst'))
            self.valu(L, bg=lambda u: True)
        self.stamp(5); self.stamp(11, 3)
        pool += [[('v', r), 999] for r in list(range(116, 168, 4))]
        def h_f4():
            e.wait(vm='hst'); e("s_barrier"); e.vmop(self.flag_store(245, 246, f"s{sKW}"), 'f4st')
        self.phase2({c.f4k: h_f4, c.p1: self.poll4b_issue, c.c1: self.poll4b_check})

    def ph2_pre(self):
        e = self.e
        mk_srd(e, SM, pB2, 1280); mk_srd(e, SPK, pOUT, 2048 * 1280)
        e(f"""s_mul_i32 s{sM0}, s{sNB}, 160
        s_and_b32 s{sM0+1}, s{sNB}, 1
        s_lshl_b32 s{sM0+2}, s{sM0+1}, 5
        s_add_u32 s{sM0+2}, s{sM0+2}, s{sM0}
        s_xor_b32 s{sM0+1}, s{sM0+1}, 1
        s_lshl_b32 s{sM0+1}, s{sM0+1}, 7
        s_add_u32 s{sM0+1}, s{sM0+1}, s{sM0}
        s_min_u32 s{sM0+3}, s{sW}, 1
        s_mul_i32 s{sM0+3}, s{sM0+3}, 1280
        s_sub_u32 s{SM+2}, 1280, s{sM0+3}
        s_lshr_b32 s{sM0+5}, s{sRB}, 1
        s_lshl_b32 s{sM0+3}, s{sM0+5}, 11
        s_add_u32 s{sM0+3}, s{sM0+3}, {F4}
        s_add_u32 s{sM0+4}, s{sM0+3}, 1024
        v_and_b32 v235, 7, v0
        v_lshlrev_b32 v235, 7, v235""")
        e.vmop(self.poll_issue(235, 252, 2, None, f"s{sM0+3}"), 'p4a')

    def poll4b_issue(self): self.e.vmop(self.poll_issue(235, 252, 2, None, f"s{sM0+4}"), 'p4b')
    def poll4b_check(self):
        e = self.e
        self.stamp(10)
        e.wait(vm='p4b')
        for l in self.poll_check([(235, 252, 2, f"s{sM0+4}")]): e(l)
        self.stamp(11)
        self.gate[1] = True
        e(f"s_lshl_b32 s{sT0}, s{sRB}, 10\ns_add_u32 s{sT0}, s{sT0}, {GB}\nv_lshlrev_b32 v7, 4, v1")
        for jj in range(4):
            e(f"v_subrev_u32 v8, v6, v{236+jj}\nv_lshrrev_b32 v8, 2, v8\nv_add_u32 v8, v8, v7")
            e.vmop(f"buffer_load_dword v{241+jj}, v8, {srd(SWS)}, s{sT0} offen sc1", 'g')
        for _ in range(self.c.burst): self.try_issue(self.m, True)
    def ph2_begin(self, pool):
        e = self.e; c = self.c
        e.wait(vm='p4a')
        for l in self.poll_check([(235, 252, 2, f"s{sM0+3}")]): e(l)
        self.pool = pool; self.Aloc = {}; self.Bl = dict(self.Bloc); self.Acur = {}
        groups = [(0, 1), (2, 3), (4, 5), (6, 7), (8, 9), (10, 11), (12, 13), (14, 15), (16, 17), (18,)]
        self.mf = [(i, t, j) for g in groups for t in range(5) for j in range(4) for i in g]
        fA, lA, fB, lB = {}, {}, {}, {}
        for m, (i, t, j) in enumerate(self.mf):
            fA.setdefault((i, j), m); lA[(i, j)] = m; fB.setdefault((i, t), m); lB[(i, t)] = m
        self.lA, self.lB = lA, lB
        w = [('A', k, fA[k] if k[0] < 14 else (fA[k] // 40) * 40 - c.vlead - 1, lA[k]) for k in fA]
        w += [('S', k, fB[k], lB[k]) for k in fB if self.Bl[k] and self.Bl[k][0] == 'l']
        w += [('B', k, fB[k], lB[k]) for k in fB if self.Bl[k] is None]
        self.fB = fB
        self.work = sorted(w, key=lambda x: x[2]); self.gate = {0: True, 1: False, 2: False, 3: False}; self.Atxt = {}; self.lastiss = -99; self.m = 0
        for _ in range(c.a0): self.try_issue(0, True)
        e("v_lshlrev_b32 v7, 4, v2\nv_lshlrev_b32 v234, 3, v2")
        e.vmop(f"buffer_load_dwordx4 v[224:227], v7, {srd(SM)}, s{sM0+2} offen", 'b2')
        e.vmop(f"buffer_load_dwordx4 v[228:231], v7, {srd(SM)}, s{sM0+2} offen offset:64", 'b2')
        e.vmop(f"buffer_load_dwordx2 v[232:233], v234, {srd(SM)}, s{sM0+1} offen", 'b2')

    def try_issue(self, m, force=False):
        e = self.e; c = self.c; pool = self.pool
        cls = lambda i: 0 if i < 10 else (1 if i < 14 else 2 if i < 16 else 3)
        for w in self.work:
            kind, k, dl, last = w
            if kind == 'A' and not self.gate[cls(k[0])]: continue
            if kind == 'S' and (dl - m > 16 or self.Border.index(k) in self.Bpend): continue
            if kind != 'S' and not force and dl - m >= 12 and e.t - e.tvm < (c.S2 if dl - m >= c.urg else c.S3): continue
            if kind == 'P':
                self.Bpend.remove(k); self.emit_items(self.B_take([k])[0]); self.work.remove(w); return True
            ok = [p for p in pool if p[1] > last and (p[0][0] == 'v' or kind != 'A' or k[0] < 14)]
            if not (kind == 'A' and k[0] >= 14): ok.sort(key=lambda p: p[0][0] == 'v' and m > 150)
            if len(ok) < (1 if dl - m <= 40 else 4 if kind == 'A' else 7): continue
            p = ok[0]; pool.remove(p); loc = p[0]; self.until[loc] = p[1]
            if kind == 'A':
                i, j = k; sr = sAT if i % 2 == 0 else sAT2
                if self.Acur.get(sr) != i:
                    e(f"s_mov_b32 s{sr}, s{sA9}" if self.koff(i) == 36 else f"s_add_u32 s{sr}, s{sA}, {self.koff(i)*4096}"); self.Acur[sr] = i
                e.vmop(f"buffer_load_dwordx4 {R(loc)}, v{236+j}, {srd(SWS)}, s{sB if c.xA and i < 14 else sr} offen sc1", ('A', k)); self.Aloc[k] = loc
                self.Atxt[k] = [f"s_add_u32 s{sT1}, s{sA}, {self.koff(i)*4096}", f"buffer_load_dwordx4 {R(loc)}, v{236+j}, {srd(SWS)}, s{sT1} offen sc1"]
            elif kind == 'B':
                self.emit_items(self.B_items(k, loc)); self.Bl[k] = loc
            else:
                e.wait(vm=('B', k))
                e.lgop(f"ds_read_b128 {R(loc)}, v234 offset:{self.Bl[k][1]*1024}", ('S', k)); self.Bl[k] = loc
            if kind != 'S': self.lastiss = m
            self.work.remove(w); return True
        return False

    def phase2(self, hooks):
        e = self.e; c = self.c
        ACC = 16; BI = 96; pool = self.pool; mf = self.mf; Bl = self.Bl; Aloc = self.Aloc
        mtrans = min(m for m, x in enumerate(mf) if x[0] >= 14)
        if c.verbose: print("B loads left for phase 2:", len(self.Bpend))
        for u in self.Bpend:
            k = self.Border[u]; self.work.append(('P', u, self.fB[k] - (20 if self.Bloc[k][0] == 'l' else 0), 0))
        self.work.sort(key=lambda x: x[2])
        e.wait(vm='b2')
        for t in range(5):
            for h in range(2):
                s_ = 224 + 2 * t + h
                e(f"v_lshlrev_b32 v{BI+4*t+2*h}, 16, v{s_}\nv_and_b32 v{BI+4*t+2*h+1}, 0xffff0000, v{s_}")
        e(f"s_add_u32 s{sT0}, s88, {L_BL}\nv_add_u32 v234, s{sT0}, v6")
        pool += [[('v', r), 999] for r in (224, 228)]
        seen = set(); vchk = {280: (14, 15), 320: (16, 17), 360: (18,)}; vq = []
        for m, (i, t, j) in enumerate(mf):
            self.m = m
            if m == mtrans:
                e.wait(vm='g')
                for jj in range(4): e(self.tag_strip(241 + jj))
                for jj in range(4): e(f"v_sub_f32 v{8+2*jj}, 1.0, v{241+jj}")
                for tt in range(5):
                    for jj in range(4):
                        d = ACC + (jj * 5 + tt) * 4
                        for h in range(2): e(f"v_pk_mul_f32 v[{d+2*h}:{d+2*h+1}], v[{d+2*h}:{d+2*h+1}], v[{8+2*jj}:{9+2*jj}] op_sel_hi:[1,0]")
                self.stamp(7)
            assert (i, j) in Aloc and Bl[(i, t)] and Bl[(i, t)][0] != 'l', (m, i, t, j)
            e.wait(vm=[('A', (i, j)), ('B', (i, t))], lg=('S', (i, t)))
            d = ACC + (j * 5 + t) * 4
            cc = vr(d) if (j, t) in seen else vr(BI + 4 * t); seen.add((j, t))
            e(f"v_mfma_f32_16x16x32_bf16 {vr(d)}, {R(Bl[(i, t)])}, {R(Aloc[(i, j)])}, {cc}")
            for loc, last in ((Aloc[(i, j)], self.lA[(i, j)]), (Bl[(i, t)], self.lB[(i, t)])):
                if last == m: pool.append([loc, self.until.get(loc, 999) if self.until.get(loc, 999) > m else 999])
            if m == 40: pool.extend([[('v', BI + 4 * k), 999] for k in range(5)])
            if m == c.o1: self.gate[2] = True
            if m + 1 + c.vlead in vchk:
                ks = [(ii, jj) for ii in vchk[m + 1 + c.vlead] for jj in range(4)]
                assert all(k in Aloc for k in ks), (m, ks)
                if 14 in vchk[m + 1 + c.vlead]: self.stamp(12)
                e.wait(vm=[('A', k) for k in ks])
                vq = self.valid_check(sum([self.Atxt[k] for k in ks], []), [Aloc[k][1] + q for k in ks for q in range(4)], 7)
            if vq:
                n = -(-len(vq) // max(1, min(x for x in vchk if x > m) - m))
                for l in vq[:n]: e(l)
                vq = vq[n:]
                if not vq and not self.gate[3]:
                    self.stamp(13); self.gate[3] = True
                    for _ in range(8): self.try_issue(m, True)
            elif m in hooks: hooks[m]()
            self.try_issue(m)
            while any(w[2] - m < 4 for w in self.work) and self.try_issue(m): pass
        assert not self.work, self.work
        self.stamp(8)
        for jj in range(1, 4):
            e(f"""s_add_u32 s{sT0}, s{sW}, {jj}
            s_and_b32 s{sT0}, s{sT0}, 3
            s_mul_i32 s{sT0}, s{sT0}, 15360
            s_add_u32 s{sT0}, s{sT0}, {L_RED + (jj-1)*5120}
            v_add_u32 v{8+jj}, s{sT0}, v6""")
        e(f"s_mul_i32 s{sT0}, s{sW}, 15360\ns_add_u32 s{sT0}, s{sT0}, {L_RED}\nv_add_u32 v8, s{sT0}, v6")
        for t in range(5):
            for jj in range(1, 4): e.lgop(f"ds_write_b128 v{8+jj}, {vr(ACC+(jj*5+t)*4)} offset:{t*1024}", 'rw')
        e(f"""s_lshl_b32 s{sT0}, s{sRB}, 2
        s_add_u32 s{sT0}, s{sT0}, s{sW}
        s_mul_i32 s{sT0}, s{sT0}, {16*1280}
        s_add_u32 s{sT1}, s{sT0}, s{sM0+2}
        s_add_u32 s{sT2}, s{sT0}, s{sM0+1}
        v_mul_u32_u24 v12, 1280, v1
        v_lshl_add_u32 v13, v2, 3, v12
        v_lshl_add_u32 v12, v2, 4, v12""")
        e.wait(lg_all=True); e("s_barrier")
        for t in range(5):
            for s_ in range(3): e.lgop(f"ds_read_b128 {vr(116+(t*3+s_)*4)}, v8 offset:{s_*5120+t*1024}", ('rr', t))
        for t in range(5):
            e.wait(lg=('rr', t)); d = ACC + t * 4; r = 116 + t * 12
            e(f"""v_pk_add_f32 v[{d}:{d+1}], v[{d}:{d+1}], v[{r}:{r+1}]
            v_pk_add_f32 v[{d+2}:{d+3}], v[{d+2}:{d+3}], v[{r+2}:{r+3}]
            v_pk_add_f32 v[{r+4}:{r+5}], v[{r+4}:{r+5}], v[{r+8}:{r+9}]
            v_pk_add_f32 v[{r+6}:{r+7}], v[{r+6}:{r+7}], v[{r+10}:{r+11}]
            v_pk_add_f32 v[{d}:{d+1}], v[{d}:{d+1}], v[{r+4}:{r+5}]
            v_pk_add_f32 v[{d+2}:{d+3}], v[{d+2}:{d+3}], v[{r+6}:{r+7}]
            v_cvt_pk_bf16_f32 v{96+2*t}, v{d}, v{d+1}
            v_cvt_pk_bf16_f32 v{97+2*t}, v{d+2}, v{d+3}""")
            if t == 1: e.vmop(f"buffer_store_dwordx4 v[96:99], v12, {srd(SPK)}, s{sT1} offen {c.osc}", 'o')
            if t == 3: e.vmop(f"buffer_store_dwordx4 v[100:103], v12, {srd(SPK)}, s{sT1} offen offset:64 {c.osc}", 'o')
            if t == 4: e.vmop(f"buffer_store_dwordx2 v[104:105], v13, {srd(SPK)}, s{sT2} offen {c.osc}", 'o')
        self.stamp(9)
        e("s_endpgm")

    def build(self):
        e = self.e
        self.prologue()
        st = (list(e.vm), list(e.lg))
        self.until = {}
        self.prog_KV()
        e.vm, e.lg = list(st[0]), list(st[1])
        self.until = {}
        self.prog_QH()
        e("\n".join(self.tail))
        e("L_end:\ns_endpgm")
        body = e.finish()
        hdr = open('cdna_kernels/' + NAME + '.s.ref').read().split('; Override launch')[0]
        K = NAME + "_kernel"
        out = hdr + "; Generated by a hand-written Python generator (persistent fused kernel; see comments in the generator).\n"
        out += "; @launch grid=(256,1,1) block=(256,1,1) lds=163840\n"
        out += f'.amdgcn_target "amdgcn-amd-amdhsa--gfx950"\n.text\n.globl {K}\n.p2align 8\n.type {K},@function\n{K}:\n' + body
        out += f""".fill 64, 4, 0xbf800000
.section .rodata,"a"
.p2align 6
.amdhsa_kernel {K}
  .amdhsa_next_free_vgpr 512
  .amdhsa_next_free_sgpr 102
  .amdhsa_accum_offset 256
  .amdhsa_group_segment_fixed_size 0
  .amdhsa_kernarg_size 104
  .amdhsa_user_sgpr_count 2
  .amdhsa_user_sgpr_kernarg_segment_ptr 1
  .amdhsa_system_sgpr_workgroup_id_x 1
.end_amdhsa_kernel
"""
        return out

for k_, v_ in dict(rot=2, pks=2, xsc='', wsc='', psc='nt', pss='sc1', xA=0, S=56, S2=60, urg=40, S3=16, xB=0, mix=0, perm=0, kf1=60, pe=20, pe2=30, dtail=4, qb0=14, qb1=22, se=10, a0=8, ap=4, osc='sc1 nt', touch=0, kvring=3, f1c=24,
                   f4at=40, pa=20, pb=90, p3=125, r1=70, r2=105, o1=236, vlead=9, sleep2=1, f4k=24, p1=95, c1=125, burst=4).items():
    setattr(Cfg, k_, v_)

def generate(**kw):
    c = Cfg()
    for k, v in kw.items(): setattr(c, k, v)
    g = Gen(c); t = g.build()
    return t, g

if __name__ == "__main__":
    kw = {}
    for a_ in sys.argv[2:]:
        k, v = a_.split('='); kw[k] = int(v, 0) if v[0].isdigit() else v.replace('+', ' ')
    t, g = generate(**kw)
    open(sys.argv[1], 'w').write(t)
    print("instructions:", len(g.e.ins), "nops added:", g.e.nop_added)
```

```python
import sys, math
from emit import Emit
NAME = "gated_mix__linear_kernel_hedgehog__dense_activation_gelu__prompt"

TAG = 0x0
F1 = 0x1000
F2 = 0x2000; F3 = 0x6000; F4 = 0xa000; F5 = 0x12000
STAMP = 0x1000000
GB = 0x280000
PP = 0x40000; PSZ = 15360
FIN = 0x240000; FSZ = 15360
PB = 0x300000
A2 = 0x600000
OOB = 0x7ff00000

K1 = 1024
QH_ST = 46 * K1; KV_ST = 36 * K1
MISC = 154 * K1
L_WPHI = MISC; L_GATE = MISC + 3200; L_BIASKV = MISC + 4480; L_BIASQH = MISC + 3200
L_PACK = 138 * K1
WH0 = 114 * K1; WH5 = 74 * K1
L_PHI = 0; RSP = 352; L_V = 128 * RSP; RSV = 224
L_BL = 0
NL = 18
L_RED = 80 * K1
L_FIN = 140 * K1

sW = 3
SX, SQ, S1, SWS, SPK, SM = 4, 8, 12, 16, 20, 24
pX, pQKV, pPHI, pWO, pBX, pW1, pB1, pW2, pB2, pGATE, pOUT, pDBG, pWS = [32 + 2 * i for i in range(13)]
sTAG = 58
sMT, sHG, sRB, sNB = 60, 61, 62, 63
sE = 64
sT0, sT1, sT2, sT3, sT4, sT5 = 74, 75, 76, 77, 78, 79
sM0 = 80
sBT, sAT, sB9, sA9, sAT2 = 100, 101, 86, 87, 55
sKW, sK1 = 89, 90
sF1 = 91
sPKD = 92
sA, sB = 96, 97
sC0, sC1 = 98, 99
sP0 = 28

PKA = 200
TB = 10; TBM = (1 << TB) - 1; sTB = 58
def srd(r): return f"s[{r}:{r+3}]"
def vr(r, n=4): return f"v[{r}:{r+n-1}]" if n > 1 else f"v{r}"
def ar(r, n=4): return f"a[{r}:{r+n-1}]"
def R(loc, n=4): return (vr if loc[0] == 'v' else ar)(loc[1], n)
def fl(x):
    import struct
    return hex(struct.unpack('<I', struct.pack('<f', x))[0])

class Cfg:
    rot = 1; map2 = 1; stamps = 0; LA = 12; spin = 200000; codepf = 1; lag = 2; th1 = 2; th2 = 4; minlead = 4; verbose = 0; sleep = 3

sKA, sKB = 0, 1
def mk_srd(e, r, p, nbytes):
    e(f"s_mov_b32 s{r}, s{p}\ns_and_b32 s{r+1}, s{p+1}, 0xffff\ns_mov_b32 s{r+2}, {nbytes}\ns_mov_b32 s{r+3}, 0x20000")

class Gen:
    def __init__(self, cfg):
        self.c = cfg; self.e = Emit(); self.tail = []; self.uid = 0; self.nstamp = 0
    def record(self, fn):
        real = self.e
        class Rec:
            def __init__(r): r.items = []; r.lg = []; r.vm = []
            def __call__(r, t):
                for l in t.strip("\n").split("\n"):
                    if l.strip(): r.items.append(('x', l.strip()))
            def vmop(r, t, tag=None): r.items.append(('vm', t, tag))
            def lgop(r, t, tag=None): r.items.append(('lg', t, tag))
        rec = Rec(); self.e = rec
        try: fn()
        finally: self.e = real
        return rec.items
    def lab(self, p):
        self.uid += 1; return f"L_{p}_{self.uid}"
    def stamp(self, i, grp=1):
        if self.c.dstamp and grp == 1:
            slot = self.dmap.get(i)
            if slot is None: return
            e = self.e
            e(f"s_memrealtime s[{sC0}:{sC1}]\ns_load_dwordx2 s[46:47], s[40:41], 88\ns_waitcnt lgkmcnt(0)\nv_mov_b32 v14, s{sC0}\nv_mov_b32 v15, 0"); e.lg = []
            e("s_cmp_eq_u32 s3, 0\ns_cselect_b64 exec, 1, 0")
            L = self.lab('ds'); e(f"s_cbranch_execz {L}")
            e(f"global_atomic_umax v15, v14, s[46:47] offset:{slot*4}")
            if i == 0: e(f"v_mov_b32 v14, s54\nglobal_atomic_umax v15, v14, s[46:47] offset:4\nv_not_b32 v14, v14\nglobal_atomic_umax v15, v14, s[46:47] offset:0")
            e(f"{L}:\ns_mov_b64 exec, -1")
            return
        if not self.c.stamps or (i and self.c.stamps != grp): return
        e = self.e
        e(f"s_memrealtime s[{sC0}:{sC1}]\ns_memtime s[46:47]\ns_waitcnt lgkmcnt(0)"); e.lg = []
        e(f"v_mov_b32 v14, s{sC0}\nv_mov_b32 v15, s46")
        e(f"s_lshl_b32 s{sC0}, s2, 2\ns_add_u32 s{sC0}, s{sC0}, s{sW}\ns_lshl_b32 s{sC0}, s{sC0}, 7\ns_add_u32 s{sC0}, s{sC0}, {STAMP}")
        e.vmop(f"buffer_store_dwordx2 v[14:15], v245, {srd(SWS)}, s{sC0} offen offset:{i*8}", 'stamp')
        if i == 0:
            e(f"v_mov_b32 v14, s54\nv_mov_b32 v15, s40")
            e.vmop(f"buffer_store_dwordx2 v[14:15], v245, {srd(SWS)}, s{sC0} offen offset:{15*8}", 'stamp')

    def dump(self, name, regs):
        if getattr(self.c, 'dbg', None) != name: return
        e = self.e
        e(f"s_lshl_b32 s{sBT}, s2, 2\ns_add_u32 s{sBT}, s{sBT}, s{sW}\ns_lshl_b32 s{sBT}, s{sBT}, 14\ns_add_u32 s{sBT}, s{sBT}, 0x2000000\nv_lshlrev_b32 v7, 2, v0")
        for i, r in enumerate(regs):
            e.vmop(f"buffer_store_dword v{r}, v7, {srd(SWS)}, s{sBT} offen offset:{(i%16)*256}", 'dbg')
            if i % 16 == 15: e(f"s_add_u32 s{sBT}, s{sBT}, 4096")
        e.wait(vm='dbg'); self.Bcur = None

    def poll_issue(self, vaddr, vdst, n, tag, soff="0"):
        suf = {2: 'dwordx2', 4: 'dwordx4'}[n]
        return f"buffer_load_{suf} {vr(vdst, n)}, v{vaddr}, {srd(SWS)}, {soff} offen sc1"
    def poll_check(self, loads):
        Ls, Lb = self.lab('slow'), self.lab('back')
        cmps = []; ors = []; k = 0
        prs = ['vcc', 's[28:29]', 's[30:31]', 's[46:47]']
        for (va, vd, n, so) in loads:
            for h in range(n // 2):
                cmps.append(f"v_cmp_ne_u64 {prs[k]}, s[{sTAG}:{sTAG+1}], v[{vd+2*h}:{vd+2*h+1}]")
                if k: ors.append(f"s_or_b64 vcc, vcc, {prs[k]}")
                k += 1
        cmps = cmps[::-1] if False else cmps
        fast = cmps + ors + [f"s_cbranch_vccnz {Ls}\n{Lb}:"]
        t = [f"{Ls}:", f"s_mov_b32 s54, {self.c.spin}", f"{Ls}_l:"]
        if self.c.sleep: t.append(f"s_sleep {self.c.sleep}")
        for (va, vd, n, so) in loads: t.append(self.poll_issue(va, vd, n, None, so))
        t += ["s_waitcnt vmcnt(0)"] + cmps + ors
        t += ["s_sub_u32 s54, s54, 1", f"s_cbranch_vccz {Ls}_x", "s_cmp_lg_u32 s54, 0", f"s_cbranch_scc1 {Ls}_l", f"{Ls}_x:", "s_nop 4", f"s_branch {Lb}"]
        self.tail += t
        return fast
    def tag_check(self, reload, regs, acc):
        Ls, Lb = self.lab('slow'), self.lab('back')
        regs = list(regs); L = [f"v_xor_b32 v{acc}, s{sTB}, v{regs[0]}"]
        for r in regs[1:]: L.append(f"v_bitop3_b32 v{acc}, v{r}, s{sTB}, v{acc} bitop3:0xbe")
        L += [f"v_and_b32 v{acc}, {TBM}, v{acc}", f"v_cmp_ne_u32 vcc, 0, v{acc}"]
        t = [f"{Ls}:", f"s_mov_b32 s54, {self.c.spin}", f"{Ls}_l:"]
        if self.c.sleep: t.append(f"s_sleep {self.c.sleep2}")
        t += list(reload) + ["s_waitcnt vmcnt(0)"] + L
        t += ["s_sub_u32 s54, s54, 1", f"s_cbranch_vccz {Ls}_x", "s_cmp_lg_u32 s54, 0", f"s_cbranch_scc1 {Ls}_l", f"{Ls}_x:", "s_nop 4", f"s_branch {Lb}"]
        self.tail += t
        return L + [f"s_cbranch_vccnz {Ls}\n{Lb}:"]
    def tag_put(self, r, src=None): return f"v_bfi_b32 v{r}, s42, v246, v{r if src is None else src}"
    def tag_strip(self, r): return f"v_and_b32 v{r}, {hex(0xffffffff ^ TBM)}, v{r}"
    def valid_check(self, reload, regs, acc):
        Ls, Lb = self.lab('slow'), self.lab('back')
        regs = list(regs); L = [f"v_max3_u32 v{acc}, v{regs[0]}, v{regs[1]}, v{regs[2 if len(regs) > 2 else 1]}"]
        r = regs[3:]
        for i in range(0, len(r), 2): L.append(f"v_max3_u32 v{acc}, v{acc}, v{r[i]}, v{r[min(i+1, len(r)-1)]}")
        L.append(f"v_cmp_eq_u32 vcc, -1, v{acc}")
        t = [f"{Ls}:", f"s_mov_b32 s54, {self.c.spin}", f"{Ls}_l:"]
        if self.c.sleep: t.append(f"s_sleep {self.c.sleep2}")
        t += list(reload) + ["s_waitcnt vmcnt(0)"] + L
        t += ["s_sub_u32 s54, s54, 1", f"s_cbranch_vccz {Ls}_x", "s_cmp_lg_u32 s54, 0", f"s_cbranch_scc1 {Ls}_l", f"{Ls}_x:", "s_nop 4", f"s_branch {Lb}"]
        self.tail += t
        return L + [f"s_cbranch_vccnz {Ls}\n{Lb}:"]
    def flag_store(self, vaddr, vtag, soff="0"):
        return f"buffer_store_dwordx2 {vr(vtag, 2)}, v{vaddr}, {srd(SWS)}, {soff} offen sc1"

    def stream(self, mf, reads, fill, syncs=None, LA=None, name='', bg=None):
        e = self.e; LA = LA or self.c.LA
        reads = sorted(reads, key=lambda r: r[1]); rp = 0; synced = -1 if syncs else 99
        fq = sorted(fill, key=lambda f: f['at'])
        self.sid = getattr(self, 'sid', 0) + 1; sid = self.sid
        start = len(e.ins)
        def add_fill(items):
            lo = max([f['at'] for f in fq if f.get('chain')], default=-99)
            for f in items:
                if f.get('chain'): f['at'] = lo = max(f['at'], lo)
            fq.extend(items); fq.sort(key=lambda f: f['at'])
        def rd():
            nonlocal rp
            e.lgop(reads[rp][0], ('rd', sid, rp)); rp += 1
        if syncs: add_fill(syncs[0](0)); synced = 0
        while rp < len(reads) and reads[rp][1] < 8 and reads[rp][2] <= synced: rd()
        last_read = -99
        dl_of = {('rd', sid, i): r[1] for i, r in enumerate(reads)}
        def due(m): return [t for t in e.lg if t in dl_of and dl_of[t] <= m]
        ismem = lambda it: it[0] in ('vm', 'lg')
        for m in range(len(mf)):
            d = due(m)
            if d: e.wait(lg=d)
            e(mf[m])
            can = lambda: rp < len(reads) and reads[rp][2] <= synced and reads[rp][3] <= m and len(e.lg) < 15
            lead = lambda: reads[rp][1] - m
            if syncs and rp < len(reads) and reads[rp][2] > synced and m - last_read >= self.c.lag and lead() <= LA:
                synced = reads[rp][2]
                assert not any(it[0] == 'vm' and it[2] == ('S', synced) for f in fq for it in f['ins'])
                add_fill(syncs[synced](m + 1))
                if can(): rd(); last_read = m
                continue
            w = 1 if due(m + 1) else 0
            n = w; mem = 0
            if fq and fq[0]['at'] <= m:
                f = fq[0]
                if f.get('atomic'):
                    self.emit_items(f['ins']); n += len(f['ins']); mem += sum(map(ismem, f['ins'])); fq.pop(0)
                elif ismem(f['ins'][0]):
                    self.emit_items([f['ins'].pop(0)]); n += 1; mem += 1
                    if not f['ins']: fq.pop(0)
            if bg and mem == 0:
                k0 = len(e.ins)
                if self.bg_try(bg(m)): n += len(e.ins) - k0; mem += 1
            if can() and lead() <= LA and (mem == 0 or (lead() <= LA - self.c.th1 and not w)):
                rd(); n += 1; mem += 1; last_read = m
            if can() and mem == 1 and not w and lead() <= LA - self.c.th2:
                rd(); n += 1; mem += 1
            while can() and lead() <= self.c.minlead: rd(); n += 1; mem += 1; last_read = m
            while (n < 2 or (fq and fq[0]['at'] <= m - 2 and n < 3)) and fq and fq[0]['at'] <= m + 2 and not fq[0].get('atomic') and not ismem(fq[0]['ins'][0]):
                f = fq[0]; self.emit_items([f['ins'].pop(0)]); n += 1
                if not f['ins']: fq.pop(0)
            assert rp >= len(reads) or reads[rp][1] > m + 1, (m, reads[rp])
        for f in fq: self.emit_items(f['ins'])
        if self.c.verbose:
            tot = 0; g = None
            for i in e.ins[start:]:
                if i.label: continue
                if i.kind == 'mfma':
                    if g is not None: tot += max(16, g)
                    g = 8; prevmem = False
                elif g is not None:
                    mm = i.kind in ('dsr', 'dsw', 'vload', 'vstore', 'dma')
                    g += 8 if (mm and prevmem) else 4; prevmem = mm
            print(f"stream {name}: {len(mf)} mfma, est clks {tot} (ideal {16*len(mf)})")

    def prologue(self):
        e = self.e; c = self.c
        if c.stamps or c.dstamp: e("s_memrealtime s[54:55]\ns_memtime s[98:99]")
        e(f"""s_cmp_ge_u32 s2, 256
        s_cbranch_scc1 L_end
        s_load_dwordx16 s[32:47], s[0:1], 0
        s_load_dwordx4 s[48:51], s[0:1], 64
        s_load_dwordx2 s[52:53], s[0:1], 80
        s_load_dwordx2 s[56:57], s[0:1], 96""")
        if c.codepf:
            e(f"""s_getpc_b64 s[{sA}:{sB}]
            L_pf:
            s_lshr_b32 s{sT0}, s2, 3
            s_lshl_b32 s{sT0}, s{sT0}, 11
            v_lshrrev_b32 v1, 4, v0
            v_lshlrev_b32 v1, 7, v1
            v_add_u32 v1, s{sT0}, v1
            v_cmp_gt_u32 vcc, L_end-L_pf, v1
            v_cndmask_b32 v1, 0, v1, vcc""")
            e.vmop(f"global_load_dword v255, v1, s[{sA}:{sB}]", 'pf')
        e(f"""v_lshrrev_b32 v1, 6, v0
        v_and_b32 v0, 63, v0
        s_and_b32 s{sT0}, s2, 7
        v_readfirstlane_b32 s{sW}, v1
        s_lshr_b32 s{sT1}, s2, 3
        s_lshr_b32 s{sT2}, s{sT0}, 1
        s_and_b32 s{sT3}, s{sT1}, 3
        s_lshl_b32 s{sMT}, s{sT2}, 2
        s_add_u32 s{sMT}, s{sMT}, s{sT3}
        s_lshr_b32 s{sT4}, s{sT1}, 2
        s_and_b32 s{sHG}, s{sT0}, 1
        s_lshl_b32 s{sHG}, s{sHG}, 2
        s_and_b32 s{sT5}, s{sT4}, 3
        s_add_u32 s{sHG}, s{sHG}, s{sT5}""")
        if c.rot == 2:
            e(f"""s_mul_i32 s{sE}, s{sT2}, 5
            s_lshr_b32 s{sE}, s{sE}, 1
            s_and_b32 s{sT5}, s{sT0}, 1
            s_mul_i32 s{sT5}, s{sT5}, 5
            s_add_u32 s{sE}, s{sE}, s{sT5}
            s_cmp_ge_u32 s{sE}, 10
            s_cselect_b32 s{sT5}, 10, 0
            s_sub_u32 s{sE}, s{sE}, s{sT5}
            s_lshl_b32 s{sE}, s{sE}, 7""")
        else: e(f"s_mov_b32 s{sE}, 0")
        if c.mix: e(f"s_lshr_b32 s{sT5}, s{sT1}, 2\ns_and_b32 s{sT5}, s{sT5}, 4\ns_xor_b32 s{sT5}, s{sT5}, s{sT1}" if c.map2 else
                    f"s_lshr_b32 s{sT5}, s{sT1}, 4\ns_xor_b32 s{sT5}, s{sT5}, s{sT1}")
        if c.map2:
            if c.mix: e(f"s_and_b32 s{sRB}, s{sT5}, 7\ns_bfe_u32 s{sT5}, s{sT1}, 0x20002")
            else: e(f"s_and_b32 s{sRB}, s{sT1}, 7\ns_lshr_b32 s{sT5}, s{sT1}, 3")
            e(f"""s_lshl_b32 s{sT2}, s{sT2}, 3
            s_add_u32 s{sRB}, s{sRB}, s{sT2}
            s_and_b32 s{sNB}, s{sT0}, 1
            s_lshl_b32 s{sNB}, s{sNB}, 2
            s_add_u32 s{sNB}, s{sNB}, s{sT5}""")
        else:
            if c.mix: e(f"s_bfe_u32 s{sNB}, s{sT1}, 0x30001\ns_and_b32 s{sT3}, s{sT5}, 1\ns_lshr_b32 s{sT5}, s{sT1}, 4\ns_bfe_u32 s{sT4}, s{sT1}, 0x10001\ns_xor_b32 s{sT5}, s{sT5}, s{sT4}\ns_and_b32 s{sT3}, s{sT1}, 1\ns_lshl_b32 s{sT5}, s{sT5}, 1\ns_add_u32 s{sT3}, s{sT3}, s{sT5}")
            else: e(f"s_mov_b32 s{sNB}, s{sT4}")
            e(f"s_lshl_b32 s{sRB}, s{sT0}, 2\ns_add_u32 s{sRB}, s{sRB}, s{sT3}")
        e(f"""v_and_b32 v1, 15, v0
        v_lshrrev_b32 v2, 4, v0
        v_bfe_u32 v3, v0, 2, 2
        v_and_b32 v4, 3, v0
        v_lshrrev_b32 v5, 3, v0
        v_lshlrev_b32 v6, 4, v0
        s_lshl_b32 s{sT2}, s{sMT}, 2
        s_add_u32 s{sT2}, s{sT2}, s{sW}
        s_mul_i32 s{sT2}, s{sT2}, {32*1280}
        v_xor_b32 v7, v2, v0
        v_and_b32 v7, 7, v7
        v_lshlrev_b32 v7, 4, v7
        v_mul_u32_u24 v8, 1280, v5
        v_add_u32 v8, s{sT2}, v8
        v_add_u32 v208, v8, v7
        v_xor_b32 v7, 64, v7
        v_add_u32 v209, v8, v7
        v_add_u32 v209, {10240-1024}, v209
        v_add_u32 v210, {2*(10240-1024)}, v208
        v_add_u32 v211, {2*(10240-1024)}, v209
        s_lshl_b32 s{sM0}, s{sW}, 12
        s_add_u32 s{sE+1}, s{sE}, 128
        s_cmp_eq_u32 s{sE+1}, 1280
        s_cselect_b32 s{sE+1}, 0, s{sE+1}""")
        for r, n in ((SX, 2048 * 1280), (SQ, 640 * 3840), (S1, 640 * 3456), (SM, 3456)): e(f"s_mov_b32 s{r+2}, {n}\ns_mov_b32 s{r+3}, 0x20000")
        e(f"s_bitcmp1_b32 s2, 7\ns_cbranch_scc1 L_QH")

    def kernarg_wait(self):
        e = self.e
        e(f"s_waitcnt lgkmcnt(0)\ns_load_dwordx2 s[{sTAG}:{sTAG+1}], s[{pWS}:{pWS+1}], {TAG}")
        if self.c.stamps: e('s_mov_b32 s40, s98')
        if self.c.dstamp: e('s_mov_b64 s[40:41], s[0:1]')
        for r, p in ((SX, pX), (SM, pB1), (SQ, pQKV), (S1, pW1)): e(f"s_mov_b32 s{r}, s{p}\ns_and_b32 s{r+1}, s{p+1}, 0xffff")

    def pack_setup(self):
        e = self.e
        e(f"""s_lshl_b32 s{sT0}, s2, 2
        s_add_u32 s{sT0}, s{sT0}, s{sW}
        s_mul_i32 s{sT1}, s{sT0}, 6554
        s_lshr_b32 s{sT1}, s{sT1}, 16
        s_mul_i32 s{sT2}, s{sT1}, 10
        s_sub_u32 s{sT2}, s{sT0}, s{sT2}
        s_sub_u32 s{sT3}, s{sT1}, 54
        s_and_b32 s{sT3}, s{sT3}, 63
        s_mul_i32 s{sT4}, s{sT3}, 52
        s_lshr_b32 s{sT4}, s{sT4}, 8
        s_mul_i32 s{sT5}, s{sT4}, 5
        s_sub_u32 s{sT5}, s{sT3}, s{sT5}
        s_mul_i32 s{sBT}, s{sT4}, 160
        s_lshr_b32 s{sAT}, s{sT5}, 1
        s_mul_i32 s{sAT}, s{sAT}, 80
        s_and_b32 s{sT3}, s{sT5}, 1
        s_lshl_b32 s{sT3}, s{sT3}, 3
        s_add_u32 s{sAT}, s{sAT}, s{sT3}
        s_cmp_eq_u32 s{sT5}, 4
        s_cselect_b32 s{sAT}, 16, s{sAT}
        s_cselect_b32 s{sT3}, 80, 4
        s_add_u32 s{sBT}, s{sBT}, s{sAT}
        s_lshl_b32 s{sAT}, s{sT1}, 5
        s_cmp_lt_u32 s{sT1}, 54
        s_cselect_b32 s{sBT}, s{sAT}, s{sBT}
        s_cselect_b32 s{sT3}, 16, s{sT3}""")
        self.csel(sT4, 4 * 1280 - 1024, 20 * 1280 - 1024)
        self.csel(SPK + 2, 1728 * 1280, 640 * 1280)
        e(f"""s_mov_b32 s{SPK+3}, 0x20000
        s_cmp_lt_u32 s{sT0}, 740
        s_cselect_b32 s{SPK+2}, s{SPK+2}, 0
        s_mul_i32 s{sBT}, s{sBT}, 1280
        s_lshl_b32 s{sAT}, s{sT2}, 7
        s_add_u32 s32, s{sBT}, s{sAT}
        s_add_u32 s33, s32, s{sT4}
        s_add_u32 s34, s33, s{sT4}
        s_add_u32 s35, s34, s{sT4}
        v_lshrrev_b32 v9, 5, v0
        v_mul_lo_u32 v9, v9, s{sT3}
        v_and_b32 v10, 3, v5
        v_add_u32 v9, v9, v10
        v_mul_u32_u24 v9, 1280, v9
        v_and_b32 v10, 7, v0
        v_lshl_add_u32 v252, v10, 4, v9
        v_lshlrev_b32 v9, 10, v2
        v_lshl_add_u32 v9, v3, 7, v9
        v_add_u32 v9, s{sM0}, v9
        v_add_u32 v9, {L_PACK}, v9""")
        for g in range(2):
            e(f"""s_lshl_b32 s{sT3}, s{sT2}, 1
            s_add_u32 s{sT3}, s{sT3}, {g}
            s_mul_i32 s{sT4}, s{sT3}, 52
            s_lshr_b32 s{sT4}, s{sT4}, 8
            s_mul_i32 s{sT5}, s{sT4}, 5
            s_sub_u32 s{sT5}, s{sT3}, s{sT5}
            s_cmp_eq_u32 s{sT5}, 2
            s_cselect_b32 s{sT3}, 3, 4
            s_cselect_b32 s{sAT}, 32, 8
            v_lshlrev_b32 v10, s{sT3}, v4
            v_add_u32 v{PKA+2*g}, v9, v10
            v_add_u32 v{PKA+1+2*g}, s{sAT}, v{PKA+2*g}
            s_mul_i32 s{sT4}, s{sT4}, 740
            s_mul_i32 s{sAT}, s{sT1}, 5
            s_add_u32 s{sT4}, s{sT4}, s{sAT}""")
            for a_ in range(2):
                d = sPKD + 2 * g + a_
                e(f"""s_lshl_b32 s{sT3}, s{sT5}, 1
                s_add_u32 s{sT3}, s{sT3}, {a_}
                s_add_u32 s{d}, s{sT3}, 364
                s_cmp_eq_u32 s{sT3}, 5
                s_cselect_b32 s{d}, 374, s{d}
                s_cmp_lt_u32 s{sT3}, 5
                s_cselect_b32 s{d}, s{sT3}, s{d}
                s_add_u32 s{d}, s{d}, s{sT4}
                s_lshl_b32 s{d}, s{d}, 10
                s_add_u32 s{d}, s{d}, {PB}
                s_cmp_lt_u32 s{sT0}, 740
                s_cselect_b32 s{d}, s{d}, {OOB}""")
        e(f"""s_cmp_lt_u32 s{sT1}, 54
        s_cselect_b32 s{SPK}, s{pW2}, s{pWO}
        s_cselect_b32 s{SPK+1}, s{pW2+1}, s{pWO+1}
        s_and_b32 s{SPK+1}, s{SPK+1}, 0xffff""")

    def common_setup(self):
        e = self.e
        mk_srd(e, SWS, pWS, 0x10000000); mk_srd(e, SM, pPHI, 32 * 800)
        e(f"""s_lshl_b32 s{sT3}, s{sHG}, 2
        s_add_u32 s{sT3}, s{sT3}, s{sW}
        s_mul_i32 s36, s{sT3}, 800
        s_mul_i32 s37, s{sW}, 800
        s_add_u32 s37, s37, {L_WPHI}""")
        for i in range(2, 10):
            e(f"s_add_u32 s{sE+i}, s{sE+i-1}, 128\ns_cmp_eq_u32 s{sE+i}, 1280\ns_cselect_b32 s{sE+i}, 0, s{sE+i}")
        e(f"""s_mul_i32 s{sB}, s{sNB}, 74
        s_add_u32 s{sB}, s{sB}, s{sW}
        s_mul_i32 s{sB}, s{sB}, 5120
        s_add_u32 s{sB}, s{sB}, {PB}
        s_mul_i32 s{sA}, s{sRB}, 74
        s_add_u32 s{sA}, s{sA}, s{sW}
        s_lshl_b32 s{sA}, s{sA}, 12
        s_add_u32 s{sA}, s{sA}, {A2}
        s_add_u32 s{sB9}, s{sB}, {36*5120}
        s_add_u32 s{sA9}, s{sA}, {36*4096}
        s_cmp_lt_u32 s{sW}, 2
        s_cselect_b32 s{sB9}, s{sB9}, {OOB}
        s_cselect_b32 s{sA9}, s{sA9}, {OOB}
        s_mul_i32 s88, s{sW}, {NL*1024}
        v_add_u32 v240, 4096, v6""")
        for j in range(4):
            e(f"s_add_u32 s{sT3}, s{sW}, {j}\ns_and_b32 s{sT3}, s{sT3}, 3\ns_lshl_b32 s{sT3}, s{sT3}, 10\nv_add_u32 v{236+j}, s{sT3}, v6")
        e(f"""s_lshl_b32 s{sF1}, s2, 3
        s_add_u32 s{sF1}, s{sF1}, {F1}
        s_cmp_eq_u32 s{sW}, 0
        s_cselect_b32 s{sF1}, s{sF1}, {OOB}
        v_mov_b32 v245, {OOB}
        v_cmp_eq_u32 vcc, 0, v0
        v_cndmask_b32 v245, v245, 0, vcc""")

    def tag_wait(self):
        e = self.e
        e(f"""s_waitcnt lgkmcnt(0)
        s_add_u32 s{sTAG}, s{sTAG}, 1
        v_mov_b32 v247, s{sTAG+1}
        v_mov_b32 v246, s{sTAG}
        s_mov_b32 s43, {OOB}
        s_movk_i32 s42, {TBM}""")
        e.lg = []
    def pack_loads(self):
        return [([('x', f"s_add_u32 m0, s{sM0}, {L_PACK}")] if i == 0 else []) +
                [('vm', f"buffer_load_dwordx4 v252, {srd(SPK)}, s{32+i} offen offset:{i*1024} {self.c.psc} lds", 'packld')] for i in range(4)]
    def pack_fill(self, m, nm):
        f = []
        for i in range(8):
            t, h = i >> 1, i & 1
            f.append(dict(at=m + 2 + 2 * i, ins=[('lg', f"ds_read_b64_tr_b16 a[{160+4*t+2*h}:{161+4*t+2*h}], v{PKA+t} offset:{(t>>1)*64+512*h}", 'pk')]))
        return f
    def pack_stores(self):
        return [([('wlg', 'pk')] if i == 0 else []) + [('vm', f"buffer_store_dwordx4 {ar(160+4*i)}, v6, {srd(SWS)}, s{sPKD+i} offen {self.c.pss}", 'pkst')] for i in range(4)]

    def f1_issue(self):
        return [[('x', f"s_mov_b32 s{sT0}, {F1}"), ('x', "v_add_u32 v235, 1024, v6"), ('vm', self.poll_issue(6, 248, 4, None, f"s{sT0}"), 'f1p')],
                [('vm', self.poll_issue(235, 252, 4, None, f"s{sT0}"), 'f1p')]]
    def f1_check(self):
        chk = self.poll_check([(6, 248, 4, f"s{sT0}"), (235, 252, 4, f"s{sT0}")])
        return [('wvm', 'f1p')] + [('x', t) for t in chk] + [('x', f"s_or_b32 s{sT1}, s2, s{sW}"),
                ('x', f"s_cmp_eq_u32 s{sT1}, 0\ns_cselect_b32 s{sT1}, {TAG}, {OOB}"), ('vm', self.flag_store(245, 246, f"s{sT1}"), 'tagst')]

    def attn_voff(self, dst, cexpr_base, colbase_s):
        e = self.e
        e(f"""v_mul_u32_u24 v10, 6554, v9
        v_lshrrev_b32 v10, 16, v10
        v_mad_i32_i24 v11, v10, -10, v9""")
        self.swap23(10, 12)
        e(f"""v_mul_u32_u24 v10, 3840, v10
        v_lshl_add_u32 v10, v11, 4, v10
        v_add_u32 v{dst}, s{colbase_s}, v10""")
    def swap23(self, r, t):
        self.e(f"""v_lshrrev_b32 v{t}, 1, v{r}
        v_xor_b32 v{t}, v{t}, v{r}
        v_and_b32 v{t}, 4, v{t}
        v_mul_u32_u24 v{t}, 3, v{t}
        v_xor_b32 v{r}, v{r}, v{t}""")

    def small_dma(self, sr, vaddr, soff, ldsaddr, nlanes, tag, m0expr=None):
        e = self.e
        e(m0expr or f"s_mov_b32 m0, {ldsaddr}")
        if nlanes < 64: e(f"s_mov_b64 exec, {hex((1 << nlanes) - 1)}" if nlanes <= 32 else f"s_mov_b32 exec_hi, {hex((1 << (nlanes-32)) - 1)}")
        e.vmop(f"buffer_load_dwordx4 v{vaddr}, {srd(sr)}, {soff} offen lds", tag)
        if nlanes < 64: e("s_mov_b64 exec, -1")

    def csel(self, d, a, b):
        inl = lambda x: isinstance(x, str) or -16 <= x <= 64
        if inl(a) or inl(b): self.e(f"s_cselect_b32 s{d}, {a}, {b}")
        else: self.e(f"s_mov_b32 s{d}, {b}\ns_cselect_b32 s{d}, {a}, s{d}")

    def init_B(self):
        self.Bloc = {}; self.Bq = []
        order = [(i, t) for i in range(19) for t in range(5)]
        for u, k in enumerate(order):
            if u < 24: self.Bloc[k] = ('a', 160 + 4 * u)
            elif u < 64: self.Bloc[k] = ('a', 4 * (u - 24))
            elif u < 64 + NL: self.Bloc[k] = ('l', u - 64)
            else: self.Bloc[k] = None
        self.Border = order; self.Bpend = list(range(64 + NL)); self.Bcur = None; self.Acur = None
    def koff(self, i):
        r0, r1, r2 = self.perm
        if i < 10: return 4 * ((i + r0) % 10)
        if i < 14: return 38 + 4 * ((i - 10 + r1) % 4)
        return 54 + 4 * ((i - 14 + r2) % 5)
    def B_items(self, k, loc):
        i, t = k; it = []
        if self.Bcur != i:
            it.append(('x', f"s_mov_b32 s{sBT}, s{sB9}" if self.koff(i) == 36 else f"s_add_u32 s{sBT}, s{sB}, {self.koff(i)*5120}")); self.Bcur = i
        va, imm = (6, t * 1024) if t < 4 else (240, 0)
        if loc[0] == 'l':
            assert L_BL + loc[1]*1024 - imm >= 0
            it.append(('x', f"s_add_u32 m0, s88, {L_BL + loc[1]*1024 - imm}"))
            it.append(('vm', f"buffer_load_dwordx4 v{va}, {srd(SWS)}, s{sBT} offen offset:{imm} sc1 lds", ('B', k)))
        else:
            it.append(('vm', f"buffer_load_dwordx4 {R(loc)}, v{va}, {srd(SWS)}, s{sBT} offen offset:{imm} sc1", ('B', k)))
        return it
    def B_take(self, us):
        out = []
        for u in us:
            k = self.Border[u]; out.append(self.B_items(k, self.Bloc[k]))
            if self.c.xB == 1: out[-1] = [('x', 's_nop 0')]
            if self.c.xB == 2: out[-1] = [(it[0], it[1].replace(f"s{sBT} offen", "s43 offen"), it[2]) if it[0] == 'vm' else it for it in out[-1]]
            if self.c.xB == 3: out[-1] = [(it[0], it[1].replace(f"s{sBT} offen", f"s{sB} offen"), it[2]) if it[0] == 'vm' else it for it in out[-1]]
        return out
    def bg_try(self, allowed, S=None):
        e = self.e
        if e.t - e.tvm < (S or self.c.S): return False
        for u in self.Bpend:
            if allowed(u):
                self.Bpend.remove(u); self.emit_items(self.B_take([u])[0]); return True
        return False
    def emit_items(self, items):
        e = self.e
        for it in items:
            if it[0] == 'vm': e.vmop(it[1], it[2])
            elif it[0] == 'lg': e.lgop(it[1], it[2])
            elif it[0] == 'wvm': e.wait(vm=it[1])
            elif it[0] == 'wlg': e.wait(lg=it[1])
            elif it[0] == 'st': self.stamp(it[1], it[2])
            else: e(it[1])
    def valu(self, lines, side=None, every=1, bg=None):
        n = 0
        for l in lines:
            if isinstance(l, str): self.e(l)
            else: self.emit_items([l])
            n += 1
            if side and n % every == 0: self.emit_items(side.pop(0))
            if bg: self.bg_try(bg)

    def interleave(self, items, side, every):
        W = ('s_cmp', 's_add', 's_sub', 's_and', 's_or', 's_xor', 's_lshl', 's_lshr', 's_bitcmp', 's_min', 's_max')
        Rd = ('s_cselect', 's_addc', 's_subb', 's_cbranch_scc')
        live = [False] * len(items); l = False
        for i in range(len(items) - 1, -1, -1):
            live[i] = l
            t = items[i][1]
            if t.startswith(Rd): l = True
            elif t.startswith(W): l = False
        n = 0
        for i, it in enumerate(items):
            self.emit_items([it]); n += 1
            if side and n >= every and not live[i]: self.emit_items(side.pop(0)); n = 0
        for g in side: self.emit_items(g)

    def gelu_lines(self, X, Y, T, O):
        U = [X, X + 2, Y, Y + 2]; L = []
        P = lambda r: f"v[{r}:{r+1}]"
        for i in range(4): L.append(f"v_pk_mul_f32 {P(T+2*i)}, {P(U[i])}, {P(U[i])}")
        for i in range(4): L.append(f"v_pk_fma_f32 {P(T+2*i)}, {P(T+2*i)}, v[14:15], s[{sC0}:{sC1}] op_sel_hi:[1,0,0]")
        for i in range(4): L.append(f"v_pk_mul_f32 {P(T+2*i)}, {P(T+2*i)}, {P(U[i])}")
        for i in range(8): L.append(f"v_exp_f32 v{T+i}, v{T+i}")
        for i in range(4): L.append(f"v_pk_add_f32 {P(T+2*i)}, {P(T+2*i)}, 1.0 op_sel_hi:[1,0]")
        for i in range(8): L.append(f"v_rcp_f32 v{T+i}, v{T+i}")
        for i in range(4): L.append(f"v_pk_mul_f32 {P(T+2*i)}, {P(T+2*i)}, {P(U[i])}")
        for i in range(4): L.append(f"v_cvt_pk_bf16_f32 v{O+i}, v{T+2*i}, v{T+2*i+1}")
        return L
    def gelu_consts(self):
        c1 = -2.0 * math.sqrt(2.0 / math.pi) * math.log2(math.e)
        self.e(f"s_mov_b32 s{sC0}, {fl(c1)}\nv_mov_b32 v14, {fl(c1 * 0.044715)}")
    def softmax_lines(self, Pp, E, PH):
        L = []; P = lambda r: f"v[{r}:{r+1}]"
        L += [f"v_max3_f32 v8, v{Pp}, v{Pp+1}, v{Pp+2}", f"v_min3_f32 v10, v{Pp}, v{Pp+1}, v{Pp+2}"]
        for i in range(3, 19, 2): L += [f"v_max3_f32 v8, v8, v{Pp+i}, v{Pp+i+1}", f"v_min3_f32 v10, v10, v{Pp+i}, v{Pp+i+1}"]
        L += [f"v_max_f32 v8, v8, v{Pp+19}", f"v_min_f32 v10, v10, v{Pp+19}"]
        L += [f"v_mul_f32_e64 v8, -v8, s{sC0}", f"v_mul_f32 v10, s{sC0}, v10"]
        for i in range(10):
            L.append(f"v_pk_fma_f32 {P(E+2*i)}, {P(Pp+2*i)}, s[{sC0}:{sC1}], v[8:9] op_sel_hi:[1,0,0]")
            L.append(f"v_pk_fma_f32 {P(E+20+2*i)}, {P(Pp+2*i)}, s[{sC0}:{sC1}], v[10:11] op_sel_hi:[1,0,0] neg_lo:[1,0,0] neg_hi:[1,0,0]")
        for i in range(40): L.append(f"v_exp_f32 v{E+i}, v{E+i}")
        L += [f"v_pk_add_f32 v[8:9], {P(E)}, {P(E+2)}", f"v_pk_add_f32 v[10:11], {P(E+20)}, {P(E+22)}"]
        for i in range(2, 10): L += [f"v_pk_add_f32 v[8:9], v[8:9], {P(E+2*i)}", f"v_pk_add_f32 v[10:11], v[10:11], {P(E+20+2*i)}"]
        L += ["v_add_f32 v8, v8, v9", "v_add_f32 v10, v10, v11", "v_rcp_f32 v8, v8", "v_rcp_f32 v10, v10"]
        for i in range(10): L.append(f"v_pk_mul_f32 {P(E+2*i)}, {P(E+2*i)}, v[8:9] op_sel_hi:[1,0]")
        for i in range(10): L.append(f"v_pk_mul_f32 {P(E+20+2*i)}, {P(E+20+2*i)}, v[10:11] op_sel_hi:[1,0]")
        for i in range(20): L.append(f"v_cvt_pk_bf16_f32 v{PH+i}, v{E+2*i}, v{E+2*i+1}")
        return L
    def wphi_reads(self, va, W0):
        self.e(f"v_mul_u32_u24 v{va}, 800, v2\nv_mad_u32_u24 v{va}, v3, 40, v{va}\nv_add_u32 v{va}, {L_WPHI}, v{va}")
        return [[('lg', f"ds_read_b64_tr_b16 v[{W0+2*(dg*5+fg)}:{W0+1+2*(dg*5+fg)}], v{va} offset:{dg*160 + fg*8}", 'wphi')] for dg in range(5) for fg in range(5)]
    def phi_mfmas(self, KQ, Pp, W0):
        L = []
        for dg in range(5):
            for j in range(2):
                for fg in range(5):
                    d = Pp + 20 * j + 4 * fg; w = W0 + 2 * (dg * 5 + fg); b = KQ + 10 * j + 2 * dg
                    L.append(f"v_mfma_f32_4x4x4_16b_bf16 {vr(d)}, v[{w}:{w+1}], v[{b}:{b+1}], {vr(d) if dg else 0}")
        return L
    def cvt_heads(self, acc0, dst, j, n=5):
        return [f"v_cvt_pk_bf16_f32 v{dst+2*t+h}, v{acc0+(t*2+j)*4+2*h}, v{acc0+(t*2+j)*4+2*h+1}" for t in range(n) for h in range(2)]
    def rho0(self, dst):
        self.e(f"v_lshrrev_b32 v{dst}, 1, v2\nv_lshl_add_u32 v{dst}, v{dst}, 4, v3\nv_and_b32 v7, 1, v2\nv_lshl_add_u32 v{dst}, v7, 2, v{dst}")
    def x_addr(self, ST, nsl=3, base=220):
        e = self.e
        e(f"""v_lshrrev_b32 v9, 1, v1
        v_xor_b32 v9, v9, v2
        v_lshlrev_b32 v9, 4, v9
        v_lshl_add_u32 v9, v1, 7, v9
        v_add_u32 v{base}, s{sM0}, v9
        v_xor_b32 v{base+1}, 64, v{base}""")
        for sl in range(1, nsl): e(f"v_add_u32 v{base+2*sl}, {sl*ST}, v{base}\nv_add_u32 v{base+1+2*sl}, {sl*ST}, v{base+1}")
    def paced(self, groups, m0, span):
        n = len(groups)
        return [dict(at=m0 + int((k + 0.2) * span / n), chain=1, ins=list(g)) for k, g in enumerate(groups)]
    def prog_QH(self):
        e = self.e; c = self.c; self.init_B(); self.perm = (0, 0, 0); self.dmap = {0: 3, 1: 5, 2: 7, 3: 9, 14: 11, 7: 13, 9: 15}
        e("L_QH:")
        ST = QH_ST
        e(f"""s_mul_i32 s{sKW}, s{sHG}, 320
        s_lshl_b32 s{sT0}, s{sHG}, 8
        s_add_u32 s{sT0}, s{sT0}, 384
        s_cmp_lt_u32 s{sHG}, 6
        s_cselect_b32 s{sKW}, s{sKW}, s{sT0}
        s_cselect_b32 s{sK1}, 20, 16
        s_mul_i32 s{sT2}, s{sW}, 320""")
        def dma_x(st):
            g = []
            for j in range(4):
                it = [('x', f"s_add_u32 m0, s{sM0}, {(st%3)*ST}")] if j == 0 else []
                g.append(it + [('vm', f"buffer_load_dwordx4 v{208+j}, {srd(SX)}, s{sE+st} offen offset:{j*1024} {c.xsc} lds", ('S', st))])
            return g
        def dma_a(st, i):
            it = []
            if i == 0: it = [('x', f"s_mul_i32 s{sKA}, s{sE+st}, 1920"), ('x', f"s_add_u32 m0, s{sM0+1}, {(st%3)*ST}")]
            if i == 2: it = [('x', f"s_mov_b32 m0, s{sM0+3+st%3}")]
            return it + [('vm', f"buffer_load_dwordx4 v{212+i}, {srd(SQ)}, s{sKA} offen offset:{1024 if i == 1 else 0} {c.wsc} lds", ('S', st))]
        def dma_h(st, i):
            it = []
            if i == 0: it = [('x', f"s_mul_i32 s{sKB}, s{sE+st}, 1728"), ('x', f"s_add_u32 m0, s{sM0+2}, {(st%3)*ST}")]
            if i == 4: it = [('x', "s_add_u32 m0, m0, 4096")]
            return it + [('vm', f"buffer_load_dwordx4 v{215+i}, {srd(S1)}, s{sKB} offen offset:{(i%4)*1024} {c.wsc} lds", ('S', st))]
        def dma_stage(st): return dma_x(st) + [dma_a(st, i) for i in range(3)] + [dma_h(st, i) for i in range(5)]
        e(f"""s_mul_i32 s{sT0}, s{sW}, 3
        s_lshl_b32 s{sT1}, s{sW}, 1
        s_add_u32 s{sT1}, s{sT1}, 2
        s_cmp_lt_u32 s{sW}, 2
        s_cselect_b32 s{sT0}, s{sT0}, s{sT1}
        s_lshl_b32 s{sM0+1}, s{sT0}, 10
        s_add_u32 s{sM0+1}, s{sM0+1}, 16384""")
        for sl in range(3):
            e(f"s_add_u32 s{sM0+3+sl}, s{sM0+1}, {2048 + sl*ST}\ns_cmp_lt_u32 s{sW}, 2\ns_cselect_b32 s{sM0+3+sl}, s{sM0+3+sl}, {MISC+4608}")
        e(f"s_lshl_b32 s{sT0}, s{sT0}, 6\ns_mul_i32 s{sT1}, s{sHG}, 160\ns_mul_i32 s{sM0+2}, s{sW}, 5120\ns_add_u32 s{sM0+2}, s{sM0+2}, {16384+10240}")
        for i in range(3):
            e(f"v_add_u32 v9, {64*i}, v0\nv_add_u32 v9, s{sT0}, v9")
            self.attn_voff(212 + i, None, sT1)
            if i == 1: e("v_subrev_u32 v213, 1024, v213")
            if i == 2: e(f"s_cmp_lt_u32 s{sW}, 2\ns_cselect_b32 s{sT4}, 0, {OOB}\nv_add_u32 v214, s{sT4}, v214")
        self.kernarg_wait()
        self.small_dma(SM, 6, f"s{sKW}", None, 20, 'bias', f"s_add_u32 m0, s{sT2}, {L_BIASQH}")
        for g in dma_x(0) + [dma_a(0, i) for i in range(3)]: self.emit_items(g)
        e(f"s_mul_i32 s{sT0}, s{sW}, 320\nv_mov_b32 v14, {OOB}")
        for i in range(5):
            e(f"""v_add_u32 v9, {64*i}, v0
            v_add_u32 v9, s{sT0}, v9
            v_mul_u32_u24 v10, 3277, v9
            v_lshrrev_b32 v10, 16, v10
            v_mul_u32_u24 v11, 20, v10
            v_sub_u32 v11, v9, v11
            v_bfe_u32 v13, v10, 2, 1
            v_lshlrev_b32 v13, 1, v13
            v_xor_b32 v11, v11, v13
            v_cmp_gt_u32 vcc, s{sK1}, v11""")
            self.swap23(10, 12)
            e(f"""v_mul_u32_u24 v10, 3456, v10
            v_lshl_add_u32 v10, v11, 4, v10
            v_add_u32 v10, s{sKW}, v10
            v_subrev_u32 v10, {(i%4)*1024}, v10
            v_cndmask_b32 v{215+i}, v14, v10, vcc""")
            self.emit_items(dma_h(0, i))
        def setup():
            e = self.e
            self.x_addr(ST); self.rho0(8)
            e(f"v_mul_u32_u24 v9, 160, v8\nv_mad_u32_u24 v9, v4, 40, v9\nv_add_u32 v226, 16384, v9")
            e(f"v_mul_u32_u24 v9, 320, v8\nv_lshl_add_u32 v9, v4, 3, v9\nv_add_u32 v9, {16384+10240}, v9\nv_lshl_add_u32 v229, v7, 5, v9\nv_xor_b32 v7, 1, v7\nv_lshl_add_u32 v232, v7, 5, v9")
            for sl in (1, 2): e(f"v_add_u32 v{226+sl}, {sl*ST}, v226\nv_add_u32 v{229+sl}, {sl*ST}, v229\nv_add_u32 v{232+sl}, {sl*ST}, v232")
            self.common_setup(); self.pack_setup()
            e(f"s_mul_i32 s{sT1}, s{sW}, 320\ns_add_u32 s{sT1}, s{sT1}, {L_BIASQH}\nv_lshl_add_u32 v13, v2, 3, s{sT1}")
            e(f"""s_lshl_b32 s{sT0}, s{sMT}, 1
            s_lshr_b32 s{sT1}, s{sW}, 1
            s_add_u32 s{sT0}, s{sT0}, s{sT1}
            s_and_b32 s{sT1}, s{sW}, 1
            s_mul_i32 s{sT2}, s{sT0}, 74
            s_lshl_b32 s{sT2}, s{sT2}, 12
            s_lshl_b32 s{sT3}, s{sT1}, 11
            s_add_u32 s{sT2}, s{sT2}, s{sT3}
            s_add_u32 s{sT2}, s{sT2}, {A2}
            s_lshr_b32 s{sT4}, s{sHG}, 1
            s_mul_i32 s{sT4}, s{sT4}, 5
            s_add_u32 s{sT4}, s{sT4}, 54
            s_lshl_b32 s{sT4}, s{sT4}, 12
            s_add_u32 s{sT4}, s{sT4}, s{sT2}
            s_and_b32 s{sT5}, s{sHG}, 1
            s_lshl_b32 s38, s{sT5}, 13
            s_add_u32 s38, s38, s{sT4}
            s_add_u32 s39, s{sT4}, {4*4096}
            s_lshl_b32 s{sT5}, s{sT5}, 3
            s_add_u32 s39, s39, s{sT5}
            s_lshl_b32 s{sT0}, s{sHG}, 4
            s_add_u32 s{sT0}, s{sT0}, s{sMT}
            s_lshl_b32 s{sT0}, s{sT0}, 2
            s_add_u32 s{sT0}, s{sT0}, s{sW}
            s_lshl_b32 s{sT0}, s{sT0}, 9
            s_add_u32 s45, s{sT0}, {GB}
            v_mov_b32 v204, -1
            v_mov_b32 v205, -1
            v_mov_b32 v206, -1
            v_mov_b32 v207, -1""")
        self.interleave(self.record(setup), dma_stage(1), c.pe)
        self.small_dma(SM, 6, "s36", None, 50, 'misc', "s_mov_b32 m0, s37")
        for g in self.pack_loads(): self.emit_items(g)
        self.tag_wait()
        e.wait(vm='bias')
        for s_ in range(10): e.lgop(f"ds_read_b64 v[{136+2*s_}:{137+2*s_}], v13 offset:{s_*32}", ('b', s_))
        for s_ in range(10):
            a0 = 16 + (5 + s_) * 8; e.wait(lg=('b', s_))
            for h in range(2): e(f"v_lshlrev_b32 v{a0+2*h}, 16, v{136+2*s_+h}\nv_and_b32 v{a0+2*h+1}, 0xffff0000, v{136+2*s_+h}")
        self.stamp(0)
        NS = 15; nm = NS * 4; mf = []; reads = []
        for st in range(10):
            sl = st % 3
            for t in range(NS):
                gs = st * NS + t; wr = 168 + 8 * (gs % 4); m0 = len(mf)
                for ks in range(2):
                    for rd in range(2):
                        if t < 5: ad, off = 226 + sl, ks * 5120 + rd * 1280 + t * 8
                        else: ad, off = (229 if (t - 5) % 2 == 0 else 232) + sl, ks * 10240 + rd * 2560 + ((t - 5) >> 1) * 64
                        reads.append([f"ds_read_b64_tr_b16 v[{wr+4*ks+2*rd}:{wr+4*ks+2*rd+1}], v{ad} offset:{off}", m0, st, m0 - 13])
                for j in ((1, 0) if st == 0 else (0, 1)):
                    for ks in range(2):
                        xr = 136 + (st % 2) * 16 + (j * 2 + ks) * 4; d = 16 + (t * 2 + j) * 4
                        if t == 0: reads.append([f"ds_read_b128 {vr(xr)}, v{220+2*sl+ks} offset:{j*2048}", len(mf), st, -1])
                        cc = vr(d)
                        if st == 0 and ks == 0: cc = "0" if t < 5 else vr(16 + t * 8)
                        mf.append(f"v_mfma_f32_16x16x32_bf16 {vr(d)}, {vr(wr+4*ks)}, {vr(xr)}, {cc}")
        NB0 = c.qb0
        po = lambda va, off: [('vm', f"buffer_store_dwordx4 v[204:207], v{va}, {srd(SWS)}, s38 offen offset:{off} sc1", 'hst')]
        poison = [po(6, 0), po(6, 1024), po(240, 0), po(240, 1024)] + [[('vm', f"buffer_store_dwordx2 v[204:205], v6, {srd(SWS)}, s39 offen offset:{j*1024} sc1", 'hst')] for j in range(2)]
        def mksync(st):
            def f(m):
                e.wait(vm=[('S', st)] + (['pkst'] if st == c.pks + 3 else []) + (['packld', 'misc'] if st == 2 else []), lg_all=True); e("s_barrier")
                self.stamp(st + 1, 2)
                out = []
                if st + 2 < 10: out += self.paced(dma_stage(st + 2) + (self.pack_stores() if st == c.pks else []), m, nm - c.dtail)
                if st == c.pks: out += self.pack_fill(m, nm)
                if st == c.pks + 3: out.append(dict(at=m + 1, ins=[('vm', self.flag_store(245, 246, f"s{sF1}"), 'f1st')]))
                if st == 7: out += [dict(at=m + nm - 4 + 2 * k, chain=1, ins=g) for k, g in enumerate(self.f1_issue())]
                if st == 8:
                    out += self.paced(poison, m, c.f1c)
                    out += [dict(at=m + c.f1c + 2 * k, chain=1, ins=[it]) for k, it in enumerate(self.f1_check())]
                    self.bg0 = m + c.f1c + 28
                return out
            return f
        self.bg0 = 9999
        self.stream(mf, reads, [], {st: mksync(st) for st in range(10)}, name='QH', bg=lambda m: (lambda u: m >= self.bg0 and u < 64))
        self.stamp(1); self.stamp(11, 2)
        A64 = lambda u: u < 64; ALL = lambda u: True
        wr_ = self.wphi_reads(13, 168)
        self.gelu_consts()
        e(f"s_lshl_b32 s{sT3}, s{sKW}, 6\ns_add_u32 s{sT3}, s{sT3}, s{sT2}")
        L = []
        for p in range(5):
            for j in range(2):
                O = 152 + 4 * ((2 * p + j) % 4)
                L += self.gelu_lines(16 + ((5 + 2 * p) * 2 + j) * 4, 16 + ((6 + 2 * p) * 2 + j) * 4, 136 + 8 * j, O)
                if j == 0:
                    if p == 4: L += [f"s_add_u32 s{sT4}, s{sT3}, {4*4096}", f"s_cmp_lt_u32 s{sHG}, 6\ns_cselect_b32 s{sT4}, s{sT4}, {OOB}"]
                    else: L.append(f"s_add_u32 s{sT4}, s{sT3}, {p*4096}")
                L.append(('vm', f"buffer_store_dwordx4 {vr(O)}, v6, {srd(SWS)}, s{sT4} offen offset:{j*1024} sc1", 'hst'))
        self.valu(L, wr_, 16, A64)
        for g in wr_: self.emit_items(g)
        self.valu(self.cvt_heads(16, 56, 0) + self.cvt_heads(16, 66, 1), bg=A64)
        self.stamp(2); self.stamp(1, 3)
        e.wait(lg='wphi')
        self.valu(self.phi_mfmas(56, 76, 168), bg=A64)
        e(f"""s_lshl_b32 s{sT4}, s{sMT}, 4
        s_add_u32 s{sT4}, s{sT4}, s{sHG}
        s_lshl_b32 s{sT4}, s{sT4}, 7
        s_add_u32 s{sT4}, s{sT4}, {F4}
        s_cmp_eq_u32 s{sW}, 0
        s_cselect_b32 s{sT5}, s{sT4}, {OOB}
        s_mov_b32 s{sC0}, {fl(math.log2(math.e))}""")
        L1 = self.softmax_lines(76, 16, 116)
        self.valu(L1[:c.f4at], bg=A64)
        self.stamp(2, 3)
        e.wait(vm='hst'); self.stamp(3, 3); e("s_barrier")
        self.stamp(4, 3)
        if c.stamps == 3: e(f"s_mov_b32 s{sC0}, {fl(math.log2(math.e))}")
        e.vmop(self.flag_store(245, 246, f"s{sT5}"), 'f4st')
        self.valu(L1[c.f4at:], bg=ALL)
        L2 = self.softmax_lines(96, 16, 136)
        self.valu(L2[:c.pa], bg=ALL)
        self.ph2_pre()
        self.valu(L2[c.pa:c.pb], bg=ALL)
        pool = [[('v', r), 160 if r < 204 else c.p3 if r < 220 else 999] for r in list(range(204, 224, 4)) + list(range(168, 204, 4))]
        self.stamp(5, 3); self.ph2_begin(pool); self.stamp(6, 3)
        if c.stamps == 3: e(f"s_mov_b32 s{sC0}, {fl(math.log2(math.e))}")
        self.valu(L2[c.pb:], bg=ALL)
        self.stamp(3)
        for q in range(7, 12): self.stamp(q, 3)
        pool += [[('v', r), 160] for r in range(156, 168, 4)]
        FO = (0, 1024, 2048, 2816)
        finld = [f"buffer_load_dwordx4 {vr(204+4*i)}, v6, {srd(SWS)}, s{sKW} offen offset:{FO[i]} sc1" for i in range(4)]
        finld += [f"buffer_load_dwordx4 {vr(248+4*j)}, v13, {srd(SWS)}, s45 offen offset:{j*256} sc1" for j in range(2)]
        def h_p3():
            e(f"""s_mul_i32 s{sKW}, s{sHG}, {FSZ}
            s_mul_i32 s{sK1}, s{sW}, 3840
            s_add_u32 s{sKW}, s{sKW}, s{sK1}
            s_add_u32 s{sKW}, s{sKW}, {FIN}
            v_lshlrev_b32 v13, 4, v1""")
            for l in finld: e.vmop(l, 'fin')
        def h_o():
            self.stamp(4)
            e(f"s_lshr_b32 s{sK1}, s{sK1}, 1\ns_add_u32 s{sK1}, s{sK1}, {L_FIN}\nv_lshl_add_u32 v9, v0, 3, s{sK1}")
            e.wait(vm='fin')
            for l in self.tag_check(finld, list(range(204, 220)) + list(range(248, 256)), 8): e(l)
            self.stamp(5)
            for r in list(range(204, 220)) + [248, 252]: e(self.tag_strip(r))
            e("v_mov_b32 v250, v248\nv_mov_b32 v251, v252")
            for i in range(4):
                e(f"v_cvt_pk_bf16_f32 v{204+4*i}, v{204+4*i}, v{205+4*i}\nv_cvt_pk_bf16_f32 v{205+4*i}, v{206+4*i}, v{207+4*i}")
                e.lgop(f"ds_write_b64 v9, v[{204+4*i}:{205+4*i}] offset:{FO[i]//2}", 'fw')
            self.poll4b_issue()
            fr = [p for p in pool if p[0][0] == 'a'][:8]; assert len(fr) == 8
            e(f"v_lshlrev_b32 v13, 6, v2\nv_lshl_add_u32 v13, v4, 4, v13\nv_add_u32 v13, {L_FIN}, v13")
            e.wait(lg='fw'); e("s_barrier")
            self.stamp(6)
            mf = []; reads = []
            for fp in range(5):
                for dg in range(6):
                    n = fp * 6 + dg; f0 = fr[n % 8][0][1]; base = (n // 2) * 8
                    reads.append([f"ds_read_b128 {ar(f0)}, v13 offset:{(dg*5+fp)*256}", base + 2 * (n % 2), -1, base - 24])
                    for h in range(2):
                        for j in range(2):
                            d = 156 + 24 * j + 4 * dg; b = 116 + 20 * j + 2 * (2 * fp + h)
                            mf.append(f"v_mfma_f32_4x4x4_16b_bf16 {vr(d)}, a[{f0+2*h}:{f0+2*h+1}], v[{b}:{b+1}], {vr(d) if (fp or h) else 0}")
            mf2 = []
            for n in range(0, 30, 2):
                a_, b_ = mf[4*n:4*n+4], mf[4*n+4:4*n+8]
                mf2 += [a_[0], a_[1], b_[0], b_[1], a_[2], a_[3], b_[2], b_[3]]
            self.stream(mf2, reads, [], None, LA=20)
            for j in range(2): e(f"v_add_f32 v{8+2*j}, {fl(1e-6)}, v{156+24*j+20}")
            for j in range(2): e(f"v_rcp_f32 v{8+2*j}, v{8+2*j}")
            for j in range(2): e(f"v_mul_f32 v{8+2*j}, v{8+2*j}, v{250+j}")
            for j in range(2):
                D = 156 + 24 * j
                for i in range(10): e(f"v_pk_mul_f32 v[{D+2*i}:{D+2*i+1}], v[{D+2*i}:{D+2*i+1}], v[{8+2*j}:{9+2*j}] op_sel_hi:[1,0]")
                for i in range(10): e(f"v_cvt_pk_bf16_f32 v{D+i}, v{D+2*i}, v{D+2*i+1}")
                for i in range(10): e(f"v_min_u32 v{D+i}, -2, v{D+i}")
                e.vmop(f"buffer_store_dwordx4 {vr(D)}, v6, {srd(SWS)}, s38 offen offset:{j*1024} sc1", 'ost')
                e.vmop(f"buffer_store_dwordx4 {vr(D+4)}, v240, {srd(SWS)}, s38 offen offset:{j*1024} sc1", 'ost')
                e.vmop(f"buffer_store_dwordx2 {vr(D+8, 2)}, v6, {srd(SWS)}, s39 offen offset:{j*1024} sc1", 'ost')
            for p in pool: p[1] = 999
            pool.extend([[('v', r), 999] for r in range(116, 156, 4)])
            self.stamp(14)
            self.poll4b_check()
        self.phase2({c.p3: h_p3, 159: h_o})

    def prog_KV(self):
        e = self.e; c = self.c; self.init_B(); self.perm = (5, 2, 2) if c.perm else (0, 0, 0); self.dmap = {0: 2, 1: 4, 3: 6, 4: 8, 5: 10, 7: 12, 9: 14}
        ST = KV_ST; NR = c.kvring; XA = 136; WA = 144
        e(f"""s_mul_i32 s{sM0+1}, s{sW}, 5120
        s_add_u32 s{sM0+1}, s{sM0+1}, 16384
        s_lshl_b32 s{sKW}, s{sHG}, 7
        s_add_u32 s{sKW}, s{sKW}, {19*128}""")
        def dma_x(st):
            g = []
            for j in range(4):
                it = [('x', f"s_add_u32 m0, s{sM0}, {(st%NR)*ST}")] if j == 0 else []
                g.append(it + [('vm', f"buffer_load_dwordx4 v{208+j}, {srd(SX)}, s{sE+st} offen offset:{j*1024} {c.xsc} lds", ('S', st))])
            return g
        def dma_w(st, i):
            it = []
            if i == 0: it = [('x', f"s_mul_i32 s{sKA}, s{sE+st}, 1920"), ('x', f"s_add_u32 m0, s{sM0+1}, {(st%NR)*ST}")]
            if i == 4: it = [('x', "s_add_u32 m0, m0, 4096")]
            return it + [('vm', f"buffer_load_dwordx4 v{212+i}, {srd(SQ)}, s{sKA} offen offset:{(i%4)*1024} {c.wsc} lds", ('S', st))]
        def dma_stage(st): return dma_x(st) + [dma_w(st, i) for i in range(5)]
        def whbase(ch): return (WH0 + ch * 8192) if ch < 5 else (WH5 + (ch - 5) * 8192)
        def dma_wh(chs):
            return sum([[[('x', f"s_mul_i32 s{sKB}, s{sE+ch}, 1728"), ('x', f"s_add_u32 m0, s{sM0+2}, {whbase(ch)}"),
                          ('vm', f"buffer_load_dwordx4 v217, {srd(S1)}, s{sKB} offen {c.wsc} lds", 'WH')],
                         [('vm', f"buffer_load_dwordx4 v218, {srd(S1)}, s{sKB} offen offset:1024 {c.wsc} lds", 'WH')]] for ch in chs], [])
        e(f"""s_and_b32 s{sT0}, s{sW}, 1
        s_mul_i32 s{sT0}, s{sT0}, 320
        s_lshr_b32 s{sT1}, s{sW}, 1
        s_add_u32 s{sT1}, s{sT1}, 1
        s_mul_i32 s{sT1}, s{sT1}, 1280
        s_mul_i32 s{sT3}, s{sHG}, 160
        s_add_u32 s{sT1}, s{sT1}, s{sT3}""")
        for i in range(5):
            e(f"v_add_u32 v9, {64*i}, v0\nv_add_u32 v9, s{sT0}, v9")
            self.attn_voff(212 + i, None, sT1)
            if i % 4: e(f"v_subrev_u32 v{212+i}, {(i%4)*1024}, v{212+i}")
        self.kernarg_wait()
        for g in dma_stage(0): self.emit_items(g)
        self.small_dma(SM, 6, f"s{sKW}", L_BIASKV, 8, 'misc')
        def setup():
            e = self.e
            self.x_addr(ST, NR, XA); self.rho0(8)
            e(f"v_mul_u32_u24 v9, 160, v8\nv_mad_u32_u24 v9, v4, 40, v9\nv_add_u32 v{WA}, 16384, v9")
            for sl in range(1, NR): e(f"v_add_u32 v{WA+sl}, {sl*ST}, v{WA}")
            e(f"v_lshlrev_b32 v9, 7, v8\nv_lshl_add_u32 v9, v4, 3, v9\nv_add_u32 v9, {WH0}, v9\nv_bfe_u32 v10, v8, 1, 2")
            for t in range(4): e(f"v_xor_b32 v11, {t}, v10\nv_lshl_add_u32 v{229+t}, v11, 5, v9\nv_subrev_u32 v{224+t}, {WH0-WH5}, v{229+t}")
            self.common_setup(); self.pack_setup()
            e(f"v_add_u32 v253, s{sE}, v6\nv_subrev_u32 v10, 1280, v253\nv_min_u32 v253, v253, v10\nv_add_u32 v254, 1024, v253\nv_subrev_u32 v10, 1280, v254\nv_min_u32 v254, v254, v10")
            e(f"s_lshl_b32 s{sM0+2}, s{sW}, 11\ns_lshl_b32 s{sT3}, s{sW}, 4")
            for pp in range(2):
                e(f"v_add_u32 v10, {8*pp}, v5\nv_add_u32 v10, s{sT3}, v10")
                self.swap23(10, 12)
                e(f"""v_lshlrev_b32 v11, 1, v2
                v_xor_b32 v11, v11, v0
                v_and_b32 v11, 7, v11
                v_mul_u32_u24 v10, 3456, v10
                v_lshl_add_u32 v10, v11, 4, v10
                v_add_u32 v10, s{sKW}, v10
                v_subrev_u32 v{217+pp}, {pp*1024}, v10""")
            e(f"""v_mul_u32_u24 v220, {RSV}, v1
            v_mad_u32_u24 v220, v2, 48, v220
            s_mul_i32 s{sT0}, s{sW}, {32*RSV}
            s_add_u32 s{sT0}, s{sT0}, {L_V}
            v_add_u32 v220, s{sT0}, v220
            v_mul_u32_u24 v221, {RSP}, v1
            s_mov_b32 s{sT0}, 80
            v_mad_u32_u24 v221, v2, s{sT0}, v221
            s_mul_i32 s{sT0}, s{sW}, {32*RSP}
            v_add_u32 v221, s{sT0}, v221
            v_lshl_add_u32 v8, v2, 2, v3
            v_mul_u32_u24 v222, {RSP}, v8
            v_lshl_add_u32 v222, v4, 3, v222
            s_mul_i32 s{sT0}, s{sW}, 80
            v_add_u32 v222, s{sT0}, v222
            v_mul_u32_u24 v223, {RSV}, v8
            v_lshl_add_u32 v223, v4, 3, v223
            s_mul_i32 s{sT0}, s{sW}, 48
            s_add_u32 s{sT0}, s{sT0}, {L_V}
            v_add_u32 v223, s{sT0}, v223
            v_lshlrev_b32 v228, 3, v2
            v_add_u32 v228, {L_BIASKV}, v228
            v_lshlrev_b32 v233, 4, v2
            v_add_u32 v233, {L_GATE}, v233""")
            e(f"""v_lshrrev_b32 v8, 2, v1
            v_mul_u32_u24 v8, 2560, v8
            v_lshl_add_u32 v8, v4, 5, v8
            v_lshrrev_b32 v9, 1, v2
            v_lshl_add_u32 v8, v9, 9, v8
            v_and_b32 v9, 1, v2
            v_lshl_add_u32 v8, v9, 4, v8
            s_lshl_b32 s{sT0}, s{sW}, 7
            v_add_u32 v241, s{sT0}, v8
            v_add_u32 v243, 10240, v241
            v_mov_b32 v9, {OOB}
            v_cmp_ge_u32 vcc, 7, v1
            v_cndmask_b32 v243, v9, v243, vcc
            v_cmp_gt_u32 vcc, 2, v2
            v_cndmask_b32 v242, v9, v241, vcc
            v_cndmask_b32 v244, v9, v243, vcc
            v_mul_u32_u24 v12, {PSZ}, v2
            v_min_u32 v10, 14, v1
            v_lshl_add_u32 v12, v10, 4, v12
            v_lshlrev_b32 v13, 4, v1
            v_cmp_gt_u32 vcc, 15, v0
            v_cndmask_b32 v13, v9, v13, vcc
            v_lshlrev_b32 v166, 4, v1
            v_cmp_gt_u32 vcc, 16, v0
            v_cndmask_b32 v166, v9, v166, vcc
            v_lshlrev_b32 v167, 7, v1""")
        self.interleave(self.record(setup), dma_stage(1), c.pe2)
        self.small_dma(SM, 6, "s36", None, 50, 'misc', "s_mov_b32 m0, s37")
        mk_srd(e, SM, pGATE, 1280)
        self.small_dma(SM, 253, "0", L_GATE, 64, 'misc'); self.small_dma(SM, 254, "0", L_GATE + 1024, 16, 'misc')
        for g in self.pack_loads(): self.emit_items(g)
        wphi = self.wphi_reads(219, 96)
        self.tag_wait()
        self.stamp(0)
        NS = 10; nm = NS * 4; mf = []; reads = []
        for st in range(10):
            sl = st % NR
            for t in range(NS):
                gs = st * NS + t; wr = 168 + 8 * (gs % 4); m0 = len(mf)
                for ks in range(2):
                    for rd in range(2):
                        off = (t // 5) * 10240 + ks * 5120 + rd * 1280 + (t % 5) * 8
                        reads.append([f"ds_read_b64_tr_b16 v[{wr+4*ks+2*rd}:{wr+4*ks+2*rd+1}], v{WA+sl} offset:{off}", m0, st, m0 - 13])
                for j in range(2):
                    for ks in range(2):
                        xr = st * 16 + (j * 2 + ks) * 4; d = 16 + (t * 2 + j) * 4
                        if t == 0: reads.append([f"ds_read_b128 {ar(xr)}, v{XA+2*sl+ks} offset:{j*2048}", len(mf), st, -1])
                        mf.append(f"v_mfma_f32_16x16x32_bf16 {vr(d)}, {vr(wr+4*ks)}, {ar(xr)}, {vr(d) if (st or ks) else 0}")
        whplan = {8: [0, 1, 2, 3, 4], 9: [5, 6, 7, 8, 9]} if NR == 3 else {7: [5, 6, 7, 8], 8: [9, 0, 1, 2, 3, 4]}
        def mksync(st):
            def f(m):
                e.wait(vm=[('S', st)] + (['pkst'] if st == c.pks + 3 else []) + (['packld', 'misc'] if st == 2 else []), lg_all=True); e("s_barrier")
                self.stamp(st + 1, 2)
                gr = []
                if NR == 4 and st == 0: gr += dma_stage(2)
                if st + NR - 1 < 10: gr += dma_stage(st + NR - 1)
                gr += dma_wh(whplan.get(st, []))
                if st == 9: gr += self.f1_issue()
                if st == c.pks: gr += self.pack_stores()
                out = self.paced(gr, m, nm - c.dtail) if gr else []
                if st == c.pks: out += self.pack_fill(m, nm)
                if st == c.pks + 3: out.append(dict(at=m + 1, ins=[('vm', self.flag_store(245, 246, f"s{sF1}"), 'f1st')]))
                return out
            return f
        early = [g for g in wphi if int(g[0][1].split('[')[1].split(':')[0]) < XA]; late = [g for g in wphi if g not in early]
        fill = [dict(at=5 * nm + 3 + 7 * k, ins=g) for k, g in enumerate(early)]
        self.stream(mf, reads, fill, {st: mksync(st) for st in range(10)}, name='KV1')
        self.stamp(1); self.stamp(11, 2)
        for g in late: self.emit_items(g)
        KQ = 146; PR = 168; VT = 208
        for j in range(2):
            for l in self.cvt_heads(16, KQ + 10 * j, j): e(l)
        e.wait(lg='wphi')
        ph = self.phi_mfmas(KQ, PR, 96)
        vc0 = self.cvt_heads(56, VT, 0) + [f"v_mov_b32 v{VT+10}, 0x3f80", f"v_mov_b32 v{VT+11}, 0"]
        self.valu(ph, [[('x', l)] for l in vc0], 4)
        e.wait(vm='WH'); e("s_barrier")
        for i in range(3): e.lgop(f"ds_write_b128 v220, {vr(VT+4*i)} offset:{i*16}", 'vw')
        e(f"s_mov_b32 s{sC0}, {fl(math.log2(math.e))}")
        L0 = self.softmax_lines(PR, 16, 96)
        self.valu(L0[:30], None, 1)
        e.wait(lg='vw')
        for l in self.cvt_heads(56, VT, 1): e(l)
        for i in range(3): e.lgop(f"ds_write_b128 v220, {vr(VT+4*i)} offset:{16*RSV + i*16}", 'vw')
        self.valu(L0[30:c.kf1], None, 1)
        self.emit_items(self.f1_check())
        A24 = lambda u: u < 24
        self.valu(L0[c.kf1:], bg=A24)
        pw = lambda j: [[('lg', f"ds_write_b128 v221, {vr(96+20*j+4*i)} offset:{j*16*RSP + i*16}", 'pw')] for i in range(5)]
        L1 = self.softmax_lines(PR + 20, 16, 116)
        self.valu(L1[:40], pw(0), 8, A24)
        self.valu(L1[40:-20], bg=A24)
        self.valu(L1[-20:], pw(1), 4, A24)
        e(f"""s_lshl_b32 s{sT0}, s{sHG}, 4
        s_add_u32 s{sT0}, s{sT0}, s{sMT}
        s_mul_i32 s{sT1}, s{sT0}, {PSZ}
        s_add_u32 s{sT1}, s{sT1}, {PP}""")
        e.wait(lg_all=True); e("s_barrier")
        self.stamp(2)
        mf = []; reads = []
        for s_ in range(4):
            b0 = 56 + s_ * 20; m0 = len(mf)
            for dt in range(2):
                for rd in range(2): reads.append([f"ds_read_b64_tr_b16 v[{b0+12+4*dt+2*rd}:{b0+13+4*dt+2*rd}], v223 offset:{(32*s_+16*rd)*RSV + dt*32}", m0 + dt, -1, -1])
            for ft in range(3):
                for rd in range(2): reads.append([f"ds_read_b64_tr_b16 v[{b0+4*ft+2*rd}:{b0+4*ft+2*rd+1}], v222 offset:{(32*s_+16*rd)*RSP + ft*32}", m0 + 2 * ft, -1, -1])
                for dt in range(2):
                    d = 16 + (ft * 2 + dt) * 4
                    mf.append(f"v_mfma_f32_16x16x32_bf16 {vr(d)}, {vr(b0+4*ft)}, {vr(b0+12+4*dt)}, {vr(d) if s_ else 0}")
        reads.sort(key=lambda r: r[1]); rp = 0
        for m in range(24):
            while rp < 40 and (len(e.lg) < 14 and (m == 0 or reads[rp][1] <= m + 8) or reads[rp][1] <= m): e.lgop(reads[rp][0], ('kv', reads[rp][1])); rp += 1
            e.wait(lg=[('kv', k) for k in range(m + 1)])
            if rp == 40 and not e.lg and 'B3' not in self.__dict__:
                self.B3 = 1; e("s_barrier")
                for s_ in range(4): e.lgop(f"ds_read_b64 v[{136+2*s_}:{137+2*s_}], v228 offset:{s_*32}", 'b')
            e(mf[m])
        del self.B3
        e.wait(lg='b')
        for ft in range(3):
            for dt in range(2):
                for i in range(4): e(self.tag_put(16+(ft*2+dt)*4+i))
                e.vmop(f"buffer_store_dwordx4 {vr(16+(ft*2+dt)*4)}, v{241+2*dt+(ft==2)}, {srd(SWS)}, s{sT1} offen offset:{ft*1024} sc1", 'pst')
        for s_ in range(4):
            for h in range(2): e(f"v_lshlrev_b32 v{96+8*s_+2*h}, 16, v{136+2*s_+h}\nv_and_b32 v{97+8*s_+2*h}, 0xffff0000, v{136+2*s_+h}")
        self.stamp(3); self.stamp(1, 3)
        mf = []; reads = []
        for st in range(10):
            wr = 136 + 8 * (st % 3); m0 = len(mf)
            for ks in range(2): reads.append([f"ds_read_b128 {vr(wr+4*ks)}, v233 offset:{(st*2+ks)*64}", m0, -1, m0 - 9])
            for j in range(2):
                for ks in range(2):
                    d = 128 + 4 * j
                    mf.append(f"v_mfma_f32_16x16x32_bf16 {vr(d)}, {vr(wr+4*ks)}, {ar(st*16+(j*2+ks)*4)}, {vr(d) if (st or ks) else 0}")
        G0 = 40
        for st in range(10):
            for t in range(4):
                wr = 168 + 8 * t; m0 = len(mf)
                for ks in range(2):
                    for rd in range(2):
                        reads.append([f"ds_read_b64_tr_b16 v[{wr+4*ks+2*rd}:{wr+4*ks+2*rd+1}], v{(229 if st < 5 else 224)+t} offset:{(st%5)*8192 + ks*4096 + rd*1024}", m0, -1, m0 - 13])
                for j in ((1, 0) if st == 0 else (0, 1)):
                    for ks in range(2):
                        xr = st * 16 + (j * 2 + ks) * 4; d = 96 + (t * 2 + j) * 4; cc = vr(d)
                        if st == 0 and ks == 0: cc = vr(96 + t * 8)
                        mf.append(f"v_mfma_f32_16x16x32_bf16 {vr(d)}, {vr(wr+4*ks)}, {ar(xr)}, {cc}")
        fill = []
        X = lambda s: [('x', l.strip()) for l in s.split("\n")]
        nl2e = fl(-math.log2(math.e))
        fill.append(dict(at=G0 + 3, ins=X(f"""v_mul_f32 v128, {nl2e}, v128
            v_mul_f32 v132, {nl2e}, v132
            v_exp_f32 v128, v128
            v_exp_f32 v132, v132
            s_lshl_b32 s{sT2}, s{sMT}, 2
            v_add_f32 v128, 1.0, v128
            v_add_f32 v132, 1.0, v132
            v_rcp_f32 v128, v128
            v_rcp_f32 v132, v132
            s_add_u32 s{sT2}, s{sT2}, s{sW}
            s_lshl_b32 s{sT3}, s{sT2}, 9
            s_lshl_b32 s{sT4}, s{sHG}, 15
            s_add_u32 s{sT3}, s{sT3}, s{sT4}
            s_add_u32 s{sT3}, s{sT3}, {GB}""") + [('x', self.tag_put(128 + 4*j + i, 128 + 4*j)) for j in range(2) for i in (3, 2, 1, 0)]
            + [('vm', f"buffer_store_dwordx4 {vr(128+4*j)}, v166, {srd(SWS)}, s{sT3} offen offset:{j*256} sc1", 'hst') for j in range(2)]))
        pld = [f"buffer_load_dwordx4 {vr(16+4*i)}, v12, {srd(SWS)}, s{32+i} offen sc1" for i in range(4)]
        fill.append(dict(at=c.r1, ins=X(f"""s_mul_i32 s32, s{sT2}, 240
            s_mul_i32 s{sT4}, s{sHG}, {16*PSZ}
            s_add_u32 s32, s32, s{sT4}
            s_add_u32 s32, s32, {PP}
            s_add_u32 s33, s32, {4*PSZ}
            s_add_u32 s34, s33, {4*PSZ}
            s_add_u32 s35, s34, {4*PSZ}""") + [('vm', l, 'pld') for l in pld]))
        red = [f"v_add_f32 v{16+i}, v{16+i}, v{20+i}" for i in range(4)] + [f"v_add_f32 v{24+i}, v{24+i}, v{28+i}" for i in range(4)] + [f"v_add_f32 v{16+i}, v{16+i}, v{24+i}" for i in range(4)]
        for sw in ('32', '16'):
            red += [f"v_mov_b32 v{20+i}, v{16+i}" for i in range(4)] + [f"v_permlane{sw}_swap_b32 v{16+i}, v{20+i}" for i in range(4)] + [f"v_add_f32 v{16+i}, v{16+i}, v{20+i}" for i in range(4)]
        fill.append(dict(at=c.r2, ins=[('st', 5, 3), ('wvm', 'pld')] + [('x', l) for l in self.tag_check(pld, range(16, 32), 8)] + [('st', 6, 3)] + [('x', self.tag_strip(16 + i)) for i in range(16)] + [('x', l) for l in red] + [('x', self.tag_put(16 + i)) for i in range(4)] +
            X(f"""s_mul_i32 s{sT4}, s{sT2}, 240
            s_mul_i32 s{sT3}, s{sHG}, {FSZ}
            s_add_u32 s{sT4}, s{sT4}, s{sT3}
            s_add_u32 s{sT4}, s{sT4}, {FIN}""") + [('vm', f"buffer_store_dwordx4 v[16:19], v13, {srd(SWS)}, s{sT4} offen sc1", 'fst'), ('st', 4, 3)]))
        fill.append(dict(at=180, ins=self.record(self.ph2_pre)))
        fill += [dict(at=35, ins=[('st', 2, 3)]), dict(at=69, ins=[('st', 3, 3)]), dict(at=170, ins=[('st', 10, 3)])]
        self.stream(mf, reads, fill, None, name='KV2', bg=lambda m: (lambda u: u < 24 or u >= 64 or m >= G0 + 16 * ((u - 24) // 4 + 1)))
        self.stamp(4); self.stamp(7, 3)
        self.stamp(14); self.stamp(8, 3)
        pool = [[('v', r), 999] for r in list(range(168, 224, 4))]
        self.ph2_begin(pool); self.stamp(9, 3)
        self.gelu_consts()
        e(f"""s_lshl_b32 s{sT4}, s{sMT}, 1
        s_lshr_b32 s{sT5}, s{sW}, 1
        s_add_u32 s{sT4}, s{sT4}, s{sT5}
        s_and_b32 s{sT5}, s{sW}, 1
        s_mul_i32 s{sT3}, s{sT4}, 74
        s_lshl_b32 s{sKW}, s{sHG}, 1
        s_add_u32 s{sT3}, s{sT3}, s{sKW}
        s_add_u32 s{sT3}, s{sT3}, 38
        s_lshl_b32 s{sT3}, s{sT3}, 12
        s_lshl_b32 s{sT5}, s{sT5}, 11
        s_add_u32 s{sT3}, s{sT3}, s{sT5}
        s_add_u32 s{sT3}, s{sT3}, {A2}
        s_lshl_b32 s{sKW}, s{sMT}, 4
        s_add_u32 s{sKW}, s{sKW}, s{sHG}
        s_lshl_b32 s{sKW}, s{sKW}, 7
        s_add_u32 s{sKW}, s{sKW}, {F4+1024}
        s_cmp_eq_u32 s{sW}, 0
        s_cselect_b32 s{sKW}, s{sKW}, {OOB}""")
        for p in range(2):
            L = []
            for j in range(2):
                O = 152 + 4 * ((2 * p + j) % 4)
                L += self.gelu_lines(96 + (4 * p + j) * 4, 96 + (4 * p + 2 + j) * 4, 136 + 8 * j, O)
                if j == 0 and p == 1: L.append(f"s_add_u32 s{sT3}, s{sT3}, 4096")
                L.append(('vm', f"buffer_store_dwordx4 {vr(O)}, v6, {srd(SWS)}, s{sT3} offen offset:{j*1024} sc1", 'hst'))
            self.valu(L, bg=lambda u: True)
        self.stamp(5); self.stamp(11, 3)
        pool += [[('v', r), 999] for r in list(range(116, 168, 4))]
        def h_f4():
            e.wait(vm='hst'); e("s_barrier"); e.vmop(self.flag_store(245, 246, f"s{sKW}"), 'f4st')
        self.phase2({c.f4k: h_f4, c.p1: self.poll4b_issue, c.c1: self.poll4b_check})

    def ph2_pre(self):
        e = self.e
        mk_srd(e, SM, pB2, 1280); mk_srd(e, SPK, pOUT, 2048 * 1280)
        e(f"""s_mul_i32 s{sM0}, s{sNB}, 160
        s_and_b32 s{sM0+1}, s{sNB}, 1
        s_lshl_b32 s{sM0+2}, s{sM0+1}, 5
        s_add_u32 s{sM0+2}, s{sM0+2}, s{sM0}
        s_xor_b32 s{sM0+1}, s{sM0+1}, 1
        s_lshl_b32 s{sM0+1}, s{sM0+1}, 7
        s_add_u32 s{sM0+1}, s{sM0+1}, s{sM0}
        s_min_u32 s{sM0+3}, s{sW}, 1
        s_mul_i32 s{sM0+3}, s{sM0+3}, 1280
        s_sub_u32 s{SM+2}, 1280, s{sM0+3}
        s_lshr_b32 s{sM0+5}, s{sRB}, 1
        s_lshl_b32 s{sM0+3}, s{sM0+5}, 11
        s_add_u32 s{sM0+3}, s{sM0+3}, {F4}
        s_add_u32 s{sM0+4}, s{sM0+3}, 1024
        v_and_b32 v235, 7, v0
        v_lshlrev_b32 v235, 7, v235""")
        e.vmop(self.poll_issue(235, 252, 2, None, f"s{sM0+3}"), 'p4a')

    def poll4b_issue(self): self.e.vmop(self.poll_issue(235, 252, 2, None, f"s{sM0+4}"), 'p4b')
    def poll4b_check(self):
        e = self.e
        self.stamp(10)
        e.wait(vm='p4b')
        for l in self.poll_check([(235, 252, 2, f"s{sM0+4}")]): e(l)
        self.stamp(11)
        self.gate[1] = True
        e(f"s_lshl_b32 s{sT0}, s{sRB}, 10\ns_add_u32 s{sT0}, s{sT0}, {GB}\nv_lshlrev_b32 v7, 4, v1")
        for jj in range(4):
            e(f"v_subrev_u32 v8, v6, v{236+jj}\nv_lshrrev_b32 v8, 2, v8\nv_add_u32 v8, v8, v7")
            e.vmop(f"buffer_load_dword v{241+jj}, v8, {srd(SWS)}, s{sT0} offen sc1", 'g')
        for _ in range(self.c.burst): self.try_issue(self.m, True)
    def ph2_begin(self, pool):
        e = self.e; c = self.c
        e.wait(vm='p4a')
        for l in self.poll_check([(235, 252, 2, f"s{sM0+3}")]): e(l)
        self.pool = pool; self.Aloc = {}; self.Bl = dict(self.Bloc); self.Acur = {}
        groups = [(0, 1), (2, 3), (4, 5), (6, 7), (8, 9), (10, 11), (12, 13), (14, 15), (16, 17), (18,)]
        self.mf = [(i, t, j) for g in groups for t in range(5) for j in range(4) for i in g]
        fA, lA, fB, lB = {}, {}, {}, {}
        for m, (i, t, j) in enumerate(self.mf):
            fA.setdefault((i, j), m); lA[(i, j)] = m; fB.setdefault((i, t), m); lB[(i, t)] = m
        self.lA, self.lB = lA, lB
        w = [('A', k, fA[k] if k[0] < 14 else (fA[k] // 40) * 40 - c.vlead - 1, lA[k]) for k in fA]
        w += [('S', k, fB[k], lB[k]) for k in fB if self.Bl[k] and self.Bl[k][0] == 'l']
        w += [('B', k, fB[k], lB[k]) for k in fB if self.Bl[k] is None]
        self.fB = fB
        self.work = sorted(w, key=lambda x: x[2]); self.gate = {0: True, 1: False, 2: False, 3: False}; self.Atxt = {}; self.lastiss = -99; self.m = 0
        for _ in range(c.a0): self.try_issue(0, True)
        e("v_lshlrev_b32 v7, 4, v2\nv_lshlrev_b32 v234, 3, v2")
        e.vmop(f"buffer_load_dwordx4 v[224:227], v7, {srd(SM)}, s{sM0+2} offen", 'b2')
        e.vmop(f"buffer_load_dwordx4 v[228:231], v7, {srd(SM)}, s{sM0+2} offen offset:64", 'b2')
        e.vmop(f"buffer_load_dwordx2 v[232:233], v234, {srd(SM)}, s{sM0+1} offen", 'b2')

    def try_issue(self, m, force=False):
        e = self.e; c = self.c; pool = self.pool
        cls = lambda i: 0 if i < 10 else (1 if i < 14 else 2 if i < 16 else 3)
        for w in self.work:
            kind, k, dl, last = w
            if kind == 'A' and not self.gate[cls(k[0])]: continue
            if kind == 'S' and (dl - m > 16 or self.Border.index(k) in self.Bpend): continue
            if kind != 'S' and not force and dl - m >= 12 and e.t - e.tvm < (c.S2 if dl - m >= c.urg else c.S3): continue
            if kind == 'P':
                self.Bpend.remove(k); self.emit_items(self.B_take([k])[0]); self.work.remove(w); return True
            ok = [p for p in pool if p[1] > last and (p[0][0] == 'v' or kind != 'A' or k[0] < 14)]
            if not (kind == 'A' and k[0] >= 14): ok.sort(key=lambda p: p[0][0] == 'v' and m > 150)
            if len(ok) < (1 if dl - m <= 40 else 4 if kind == 'A' else 7): continue
            p = ok[0]; pool.remove(p); loc = p[0]; self.until[loc] = p[1]
            if kind == 'A':
                i, j = k; sr = sAT if i % 2 == 0 else sAT2
                if self.Acur.get(sr) != i:
                    e(f"s_mov_b32 s{sr}, s{sA9}" if self.koff(i) == 36 else f"s_add_u32 s{sr}, s{sA}, {self.koff(i)*4096}"); self.Acur[sr] = i
                e.vmop(f"buffer_load_dwordx4 {R(loc)}, v{236+j}, {srd(SWS)}, s{sB if c.xA and i < 14 else sr} offen sc1", ('A', k)); self.Aloc[k] = loc
                self.Atxt[k] = [f"s_add_u32 s{sT1}, s{sA}, {self.koff(i)*4096}", f"buffer_load_dwordx4 {R(loc)}, v{236+j}, {srd(SWS)}, s{sT1} offen sc1"]
            elif kind == 'B':
                self.emit_items(self.B_items(k, loc)); self.Bl[k] = loc
            else:
                e.wait(vm=('B', k))
                e.lgop(f"ds_read_b128 {R(loc)}, v234 offset:{self.Bl[k][1]*1024}", ('S', k)); self.Bl[k] = loc
            if kind != 'S': self.lastiss = m
            self.work.remove(w); return True
        return False

    def phase2(self, hooks):
        e = self.e; c = self.c
        ACC = 16; BI = 96; pool = self.pool; mf = self.mf; Bl = self.Bl; Aloc = self.Aloc
        mtrans = min(m for m, x in enumerate(mf) if x[0] >= 14)
        if c.verbose: print("B loads left for phase 2:", len(self.Bpend))
        for u in self.Bpend:
            k = self.Border[u]; self.work.append(('P', u, self.fB[k] - (20 if self.Bloc[k][0] == 'l' else 0), 0))
        self.work.sort(key=lambda x: x[2])
        e.wait(vm='b2')
        for t in range(5):
            for h in range(2):
                s_ = 224 + 2 * t + h
                e(f"v_lshlrev_b32 v{BI+4*t+2*h}, 16, v{s_}\nv_and_b32 v{BI+4*t+2*h+1}, 0xffff0000, v{s_}")
        e(f"s_add_u32 s{sT0}, s88, {L_BL}\nv_add_u32 v234, s{sT0}, v6")
        pool += [[('v', r), 999] for r in (224, 228)]
        seen = set(); vchk = {280: (14, 15), 320: (16, 17), 360: (18,)}; vq = []
        for m, (i, t, j) in enumerate(mf):
            self.m = m
            if m == mtrans:
                e.wait(vm='g')
                for jj in range(4): e(self.tag_strip(241 + jj))
                for jj in range(4): e(f"v_sub_f32 v{8+2*jj}, 1.0, v{241+jj}")
                for tt in range(5):
                    for jj in range(4):
                        d = ACC + (jj * 5 + tt) * 4
                        for h in range(2): e(f"v_pk_mul_f32 v[{d+2*h}:{d+2*h+1}], v[{d+2*h}:{d+2*h+1}], v[{8+2*jj}:{9+2*jj}] op_sel_hi:[1,0]")
                self.stamp(7)
            assert (i, j) in Aloc and Bl[(i, t)] and Bl[(i, t)][0] != 'l', (m, i, t, j)
            e.wait(vm=[('A', (i, j)), ('B', (i, t))], lg=('S', (i, t)))
            d = ACC + (j * 5 + t) * 4
            cc = vr(d) if (j, t) in seen else vr(BI + 4 * t); seen.add((j, t))
            e(f"v_mfma_f32_16x16x32_bf16 {vr(d)}, {R(Bl[(i, t)])}, {R(Aloc[(i, j)])}, {cc}")
            for loc, last in ((Aloc[(i, j)], self.lA[(i, j)]), (Bl[(i, t)], self.lB[(i, t)])):
                if last == m: pool.append([loc, self.until.get(loc, 999) if self.until.get(loc, 999) > m else 999])
            if m == 40: pool.extend([[('v', BI + 4 * k), 999] for k in range(5)])
            if m == c.o1: self.gate[2] = True
            if m + 1 + c.vlead in vchk:
                ks = [(ii, jj) for ii in vchk[m + 1 + c.vlead] for jj in range(4)]
                assert all(k in Aloc for k in ks), (m, ks)
                if 14 in vchk[m + 1 + c.vlead]: self.stamp(12)
                e.wait(vm=[('A', k) for k in ks])
                vq = self.valid_check(sum([self.Atxt[k] for k in ks], []), [Aloc[k][1] + q for k in ks for q in range(4)], 7)
            if vq:
                n = -(-len(vq) // max(1, min(x for x in vchk if x > m) - m))
                for l in vq[:n]: e(l)
                vq = vq[n:]
                if not vq and not self.gate[3]:
                    self.stamp(13); self.gate[3] = True
                    for _ in range(8): self.try_issue(m, True)
            elif m in hooks: hooks[m]()
            self.try_issue(m)
            while any(w[2] - m < 4 for w in self.work) and self.try_issue(m): pass
        assert not self.work, self.work
        self.stamp(8)
        for jj in range(1, 4):
            e(f"""s_add_u32 s{sT0}, s{sW}, {jj}
            s_and_b32 s{sT0}, s{sT0}, 3
            s_mul_i32 s{sT0}, s{sT0}, 15360
            s_add_u32 s{sT0}, s{sT0}, {L_RED + (jj-1)*5120}
            v_add_u32 v{8+jj}, s{sT0}, v6""")
        e(f"s_mul_i32 s{sT0}, s{sW}, 15360\ns_add_u32 s{sT0}, s{sT0}, {L_RED}\nv_add_u32 v8, s{sT0}, v6")
        for t in range(5):
            for jj in range(1, 4): e.lgop(f"ds_write_b128 v{8+jj}, {vr(ACC+(jj*5+t)*4)} offset:{t*1024}", 'rw')
        e(f"""s_lshl_b32 s{sT0}, s{sRB}, 2
        s_add_u32 s{sT0}, s{sT0}, s{sW}
        s_mul_i32 s{sT0}, s{sT0}, {16*1280}
        s_add_u32 s{sT1}, s{sT0}, s{sM0+2}
        s_add_u32 s{sT2}, s{sT0}, s{sM0+1}
        v_mul_u32_u24 v12, 1280, v1
        v_lshl_add_u32 v13, v2, 3, v12
        v_lshl_add_u32 v12, v2, 4, v12""")
        e.wait(lg_all=True); e("s_barrier")
        for t in range(5):
            for s_ in range(3): e.lgop(f"ds_read_b128 {vr(116+(t*3+s_)*4)}, v8 offset:{s_*5120+t*1024}", ('rr', t))
        for t in range(5):
            e.wait(lg=('rr', t)); d = ACC + t * 4; r = 116 + t * 12
            e(f"""v_pk_add_f32 v[{d}:{d+1}], v[{d}:{d+1}], v[{r}:{r+1}]
            v_pk_add_f32 v[{d+2}:{d+3}], v[{d+2}:{d+3}], v[{r+2}:{r+3}]
            v_pk_add_f32 v[{r+4}:{r+5}], v[{r+4}:{r+5}], v[{r+8}:{r+9}]
            v_pk_add_f32 v[{r+6}:{r+7}], v[{r+6}:{r+7}], v[{r+10}:{r+11}]
            v_pk_add_f32 v[{d}:{d+1}], v[{d}:{d+1}], v[{r+4}:{r+5}]
            v_pk_add_f32 v[{d+2}:{d+3}], v[{d+2}:{d+3}], v[{r+6}:{r+7}]
            v_cvt_pk_bf16_f32 v{96+2*t}, v{d}, v{d+1}
            v_cvt_pk_bf16_f32 v{97+2*t}, v{d+2}, v{d+3}""")
            if t == 1: e.vmop(f"buffer_store_dwordx4 v[96:99], v12, {srd(SPK)}, s{sT1} offen {c.osc}", 'o')
            if t == 3: e.vmop(f"buffer_store_dwordx4 v[100:103], v12, {srd(SPK)}, s{sT1} offen offset:64 {c.osc}", 'o')
            if t == 4: e.vmop(f"buffer_store_dwordx2 v[104:105], v13, {srd(SPK)}, s{sT2} offen {c.osc}", 'o')
        self.stamp(9)
        e("s_endpgm")

    def build(self):
        e = self.e
        self.prologue()
        st = (list(e.vm), list(e.lg))
        self.until = {}
        self.prog_KV()
        e.vm, e.lg = list(st[0]), list(st[1])
        self.until = {}
        self.prog_QH()
        e("\n".join(self.tail))
        e("L_end:\ns_endpgm")
        body = e.finish()
        hdr = open('cdna_kernels/' + NAME + '.s.ref').read().split('; Override launch')[0]
        K = NAME + "_kernel"
        out = hdr + "; Generated by a hand-written Python generator (persistent fused kernel; see comments in the generator).\n"
        out += "; @launch grid=(256,1,1) block=(256,1,1) lds=163840\n"
        out += f'.amdgcn_target "amdgcn-amd-amdhsa--gfx950"\n.text\n.globl {K}\n.p2align 8\n.type {K},@function\n{K}:\n' + body
        out += f""".fill 64, 4, 0xbf800000
.section .rodata,"a"
.p2align 6
.amdhsa_kernel {K}
  .amdhsa_next_free_vgpr 512
  .amdhsa_next_free_sgpr 102
  .amdhsa_accum_offset 256
  .amdhsa_group_segment_fixed_size 0
  .amdhsa_kernarg_size 104
  .amdhsa_user_sgpr_count 2
  .amdhsa_user_sgpr_kernarg_segment_ptr 1
  .amdhsa_system_sgpr_workgroup_id_x 1
.end_amdhsa_kernel
"""
        return out

for k_, v_ in dict(rot=2, pks=2, dstamp=0, xsc='', wsc='', psc='nt', pss='sc1', xA=0, S=56, S2=60, urg=40, S3=16, xB=0, mix=0, perm=0, kf1=60, pe=20, pe2=30, dtail=4, qb0=14, qb1=22, se=10, a0=8, ap=4, osc='sc1 nt', touch=0, kvring=3, f1c=24,
                   f4at=40, pa=20, pb=90, p3=125, r1=70, r2=105, o1=236, vlead=9, sleep2=1, f4k=24, p1=95, c1=125, burst=4).items():
    setattr(Cfg, k_, v_)

def generate(**kw):
    c = Cfg()
    for k, v in kw.items(): setattr(c, k, v)
    g = Gen(c); t = g.build()
    return t, g

if __name__ == "__main__":
    kw = {}
    for a_ in sys.argv[2:]:
        k, v = a_.split('='); kw[k] = int(v, 0) if v[0].isdigit() else v.replace('+', ' ')
    t, g = generate(**kw)
    open(sys.argv[1], 'w').write(t)
    print("instructions:", len(g.e.ins), "nops added:", g.e.nop_added)
```

```python
import re

def _regs(tok):
    tok = tok.strip()
    m = re.fullmatch(r'-?\|?(?:abs\()?([vas])\[(\d+):(\d+)\]\)?\|?', tok)
    if m: return [f"{m.group(1)}{i}" for i in range(int(m.group(2)), int(m.group(3)) + 1)]
    m = re.fullmatch(r'-?\|?(?:abs\()?([vas])(\d+)\)?\|?', tok)
    if m: return [f"{m.group(1)}{m.group(2)}"]
    if tok in ('vcc', 'vcc_lo', 'vcc_hi'): return ['vcc']
    if tok in ('exec', 'exec_lo', 'exec_hi'): return ['exec']
    if tok == 'm0': return ['m0']
    return []

TRANS = ('v_exp_f32', 'v_log_f32', 'v_rcp_f32', 'v_rsq_f32', 'v_sqrt_f32', 'v_sin_f32', 'v_cos_f32')

class Ins:
    __slots__ = ('text', 'op', 'kind', 'defs', 'uses', 'passes', 'ca', 'cb', 'cc', 'states', 'label')
    def __init__(self, text):
        self.text = text
        t = text.split(';')[0].strip()
        self.label = t.endswith(':') or t.startswith('.')
        self.defs = []; self.uses = []; self.kind = 'other'; self.passes = 0; self.states = 1
        self.ca = self.cb = self.cc = []
        if self.label or not t:
            self.op = ''; self.states = 0; return
        parts = t.split(None, 1)
        op = parts[0]; self.op = op
        rest = parts[1] if len(parts) > 1 else ''
        ops = [x.strip() for x in re.split(r',(?![^\[]*\])', rest)] if rest else []
        if ops:
            last = ops[-1].split()
            ops[-1] = last[0] if last else ''
            mods = last[1:]
        else: mods = []
        R = [_regs(o) for o in ops]
        base = re.sub(r'_e(32|64)$|_dpp$|_sdwa$', '', op)
        if op.startswith('v_mfma'):
            self.kind = 'mfma'; self.defs = R[0]; self.ca, self.cb, self.cc = R[1], R[2], R[3]
            self.uses = R[1] + R[2] + R[3]
            self.passes = 2 if '4x4x4' in op else (4 if '16x16' in op else 8)
        elif op.startswith('v_cmp'):
            self.kind = 'valu'; self.defs = R[0]; self.uses = sum(R[1:], [])
        elif op.startswith('v_readfirstlane') or op.startswith('v_readlane'):
            self.kind = 'rdlane'; self.defs = R[0]; self.uses = sum(R[1:], [])
        elif op.startswith('v_permlane'):
            self.kind = 'permlane'; self.defs = R[0] + R[1]; self.uses = R[0] + R[1]
        elif op.startswith('v_'):
            self.kind = 'trans' if base in TRANS else 'valu'
            self.defs = R[0]; self.uses = sum(R[1:], [])
            if base in ('v_add_co_u32', 'v_sub_co_u32', 'v_addc_co_u32', 'v_subrev_co_u32'):
                self.defs = R[0] + R[1]; self.uses = sum(R[2:], [])
            if base in ('v_fmac_f32', 'v_dot2c_f32_bf16', 'v_pk_fmac_f16'): self.uses += R[0]
            if base == 'v_cndmask_b32' and len(R) == 3: self.uses += ['vcc']
            if 'dpp' in op or any(m.startswith(('row_', 'quad_perm')) for m in mods): self.kind = 'dpp'
        elif op.startswith('ds_read'):
            self.kind = 'dsr'; self.defs = R[0]; self.uses = sum(R[1:], [])
        elif op.startswith('ds_write'):
            self.kind = 'dsw'; self.uses = sum(R, [])
        elif op.startswith(('buffer_load', 'global_load')):
            if 'lds' in mods or '_lds_' in op:
                self.kind = 'dma'; self.uses = sum(R, []) + ['m0']
            else:
                self.kind = 'vload'; self.defs = R[0]; self.uses = sum(R[1:], [])
        elif op.startswith(('buffer_store', 'global_store', 'global_atomic', 'buffer_wbl2')):
            self.kind = 'vstore'; self.uses = sum(R, []) if R else []
            if 'dwordx4' in op or 'dwordx3' in op: self.ca = R[0] if op.startswith('buffer') else R[1]
        elif op == 's_nop':
            self.kind = 'nop'; self.states = int(ops[0]) + 1
        elif op.startswith('s_'):
            self.kind = 'salu'
            if op.startswith(('s_cmp', 's_cbranch', 's_branch', 's_waitcnt', 's_barrier', 's_endpgm', 's_sleep', 's_setprio', 's_bitcmp')):
                self.uses = sum(R, [])
                if 'vcc' in op: self.uses += ['vcc']
            else:
                self.defs = R[0] if R else []; self.uses = sum(R[1:], [])

VALU = ('valu', 'trans', 'dpp', 'permlane', 'rdlane')
VMEM = ('vload', 'vstore', 'dma')

def need(p, c):
    n = 0
    ov = lambda a, b: bool(set(a) & set(b))
    if p.kind in VALU:
        vd = [r for r in p.defs if r[0] in 'va' and r != 'vcc']
        sd = [r for r in p.defs if r[0] == 's' or r == 'vcc']
        if c.kind == 'mfma' and ov(vd, c.uses): n = max(n, 2)
        if c.kind == 'permlane' and ov(vd, c.uses): n = max(n, 2)
        if c.kind == 'dpp' and ov(vd, c.uses): n = max(n, 2)
        if c.kind == 'rdlane' and ov(vd, c.uses): n = max(n, 1)
        if p.kind == 'trans' and c.kind in VALU and ov(vd, c.uses): n = max(n, 1)
        if sd:
            if c.kind in VMEM and ov(sd, c.uses): n = max(n, 5)
            if c.kind in VALU and ov(sd, c.uses): n = max(n, 4 if c.kind == 'rdlane' else 2)
            if c.kind == 'salu' and ov(sd, c.uses): n = max(n, 4)
        if 'exec' in p.defs: n = max(n, 5)
    if p.kind == 'mfma':
        P = p.passes; d = p.defs
        if c.kind == 'mfma':
            if ov(d, c.ca + c.cb): n = max(n, {2: 5, 4: 8, 8: 12}[P])
            if ov(d, c.cc):
                same = c.cc == d and c.passes == P
                n = max(n, ({2: 2, 4: 0, 8: 0} if same else {2: 4, 4: 6, 8: 10})[P])
            elif ov(d, c.defs): n = max(n, {2: 5, 4: 8, 8: 12}[P])
        elif c.kind in VALU or c.kind in VMEM or c.kind in ('dsr', 'dsw'):
            if ov(d, c.uses + c.defs): n = max(n, {2: 5, 4: 8, 8: 12}[P])
        if c.kind in VALU and ov(p.cc, c.defs): n = max(n, {2: 1, 4: 3, 8: 7}[P])
    if p.kind == 'vstore' and p.ca and ov(p.ca, c.defs): n = max(n, 2)
    if p.kind == 'salu' and 'm0' in p.defs and c.kind == 'dma': n = max(n, 1)
    return n

class Emit:
    def __init__(self):
        self.ins = []
        self.vm = []
        self.lg = []
        self.nop_added = 0
        self.t = 0; self.tm = -99; self.tvm = -999; self.VC = 64; self.QD = 2
    def __call__(self, s):
        for l in s.strip('\n').split('\n'):
            l = l.strip()
            if l:
                i = Ins(l); self.ins.append(i)
                if i.kind == 'mfma' and i.passes == 4: self.t = max(self.t, self.tm + 16); self.tm = self.t; self.t += 8
                elif i.kind in ('mfma', 'trans'): self.t += 8
                elif not i.label: self.t += 4
                if i.kind in VMEM:
                    self.tvm = max(self.t, self.tvm + self.VC)
                    self.t = max(self.t, self.tvm - self.QD * self.VC)
    def vmop(self, s, tag=None):
        self(s); self.vm.append(tag)
        assert len(self.vm) <= 63 or True
    def lgop(self, s, tag=None):
        self(s); self.lg.append(tag)
    def _n(self, lst, tags):
        if not isinstance(tags, (list, set)): tags = [tags]
        idx = [i for i, t in enumerate(lst) if t in tags]
        return None if not idx else len(lst) - 1 - max(idx)
    def wait(self, vm=None, lg=None, vm_all=False, lg_all=False):
        nv = (0 if self.vm else None) if vm_all else (self._n(self.vm, vm) if vm is not None else None)
        nl = (0 if self.lg else None) if lg_all else (self._n(self.lg, lg) if lg is not None else None)
        parts = []
        if nv is not None:
            nv2 = min(nv, 63); parts.append(f"vmcnt({nv2})"); self.vm = self.vm[len(self.vm) - nv2:] if nv2 else []
        if nl is not None:
            nl2 = min(nl, 15); parts.append(f"lgkmcnt({nl2})"); self.lg = self.lg[len(self.lg) - nl2:] if nl2 else []
        if parts: self("s_waitcnt " + " ".join(parts)); return True
        return False
    def pending_vm(self, tags): return self._n(self.vm, tags) is not None
    def pending_lg(self, tags): return self._n(self.lg, tags) is not None
    def finish(self):
        out = []
        for c in self.ins:
            if not c.label:
                req = 0; dist = 0
                for p in reversed(out):
                    if dist >= 20: break
                    if p.label: continue
                    k = need(p, c) - dist
                    if k > req: req = k
                    dist += p.states
                while req > 0:
                    k = min(req, 16); out.append(Ins(f"s_nop {k-1}")); req -= k; self.nop_added += 1
            out.append(c)
        return "\n".join(("" if i.label else "    ") + i.text for i in out) + "\n"
```

```python
import sys, math
from emit import Emit
NAME = "gated_mix__linear_kernel_hedgehog__dense_activation_gelu__prompt"

TAG = 0x0
F1 = 0x1000
F2 = 0x2000; F3 = 0x6000; F4 = 0xa000; F5 = 0x12000
STAMP = 0x1000000
GB = 0x280000
PP = 0x40000; PSZ = 15360
FIN = 0x240000; FSZ = 15360
PB = 0x300000
A2 = 0x600000
OOB = 0x7ff00000

K1 = 1024
QH_ST = 46 * K1; KV_ST = 44 * K1
MISC = 154 * K1
L_WPHI = MISC; L_GATE = MISC + 3200; L_BIASKV = MISC + 4480; L_BIASQH = MISC + 3200
L_PACK = 138 * K1
WH0 = 114 * K1; WH5 = 74 * K1
L_PHI = 0; RSP = 352; L_V = 128 * RSP; RSV = 224
L_BL = 72 * K1
NL = 18
L_RED = 0
L_FIN = 64 * K1

sW = 3
SX, SQ, S1, SWS, SPK, SM = 4, 8, 12, 16, 20, 24
pX, pQKV, pPHI, pWO, pBX, pW1, pB1, pW2, pB2, pGATE, pOUT, pDBG, pWS = [32 + 2 * i for i in range(13)]
sTAG = 58
sMT, sHG, sRB, sNB = 60, 61, 62, 63
sE = 64
sT0, sT1, sT2, sT3, sT4, sT5 = 74, 75, 76, 77, 78, 79
sM0 = 80
sBT, sAT, sB9, sA9, sAT2 = 100, 101, 86, 87, 55
sKW, sK1 = 89, 90
sF1 = 91
sPKD = 92
sA, sB = 96, 97
sC0, sC1 = 98, 99
sP0 = 28

PKA = 200
TB = 10; TBM = (1 << TB) - 1; sTB = 58
AW = 204
def srd(r): return f"s[{r}:{r+3}]"
def vr(r, n=4): return f"v[{r}:{r+n-1}]" if n > 1 else f"v{r}"
def ar(r, n=4): return f"a[{r}:{r+n-1}]"
def R(loc, n=4): return (vr if loc[0] == 'v' else ar)(loc[1], n)
def fl(x):
    import struct
    return hex(struct.unpack('<I', struct.pack('<f', x))[0])

class Cfg:
    rot = 1; map2 = 1; stamps = 0; LA = 12; spin = 200000; codepf = 1; lag = 2; th1 = 2; th2 = 4; minlead = 4; verbose = 0; sleep = 3

sKA, sKB = 0, 1
def mk_srd(e, r, p, nbytes):
    e(f"s_mov_b32 s{r}, s{p}\ns_and_b32 s{r+1}, s{p+1}, 0xffff\ns_mov_b32 s{r+2}, {nbytes}\ns_mov_b32 s{r+3}, 0x20000")

class Gen:
    def __init__(self, cfg):
        self.c = cfg; self.e = Emit(); self.tail = []; self.uid = 0; self.nstamp = 0
    def record(self, fn):
        real = self.e
        class Rec:
            def __init__(r): r.items = []; r.lg = []; r.vm = []
            def __call__(r, t):
                for l in t.strip("\n").split("\n"):
                    if l.strip(): r.items.append(('x', l.strip()))
            def vmop(r, t, tag=None): r.items.append(('vm', t, tag))
            def lgop(r, t, tag=None): r.items.append(('lg', t, tag))
        rec = Rec(); self.e = rec
        try: fn()
        finally: self.e = real
        return rec.items
    def lab(self, p):
        self.uid += 1; return f"L_{p}_{self.uid}"
    def stamp(self, i, grp=1):
        if self.c.dstamp and grp == 1:
            slot = self.dmap.get(i)
            if slot is None: return
            e = self.e
            e(f"s_memrealtime s[{sC0}:{sC1}]\ns_load_dwordx2 s[46:47], s[40:41], 88\ns_waitcnt lgkmcnt(0)\nv_mov_b32 v14, s{sC0}\nv_mov_b32 v15, 0"); e.lg = []
            e("s_cmp_eq_u32 s3, 0\ns_cselect_b64 exec, 1, 0")
            L = self.lab('ds'); e(f"s_cbranch_execz {L}")
            e(f"global_atomic_umax v15, v14, s[46:47] offset:{slot*4}")
            if i == 0: e(f"v_mov_b32 v14, s54\nglobal_atomic_umax v15, v14, s[46:47] offset:4\nv_not_b32 v14, v14\nglobal_atomic_umax v15, v14, s[46:47] offset:0")
            e(f"{L}:\ns_mov_b64 exec, -1")
            return
        if not self.c.stamps or (i and self.c.stamps != grp): return
        if self.c.only and i not in (0, self.c.only): return
        e = self.e
        e(f"s_memrealtime s[{sC0}:{sC1}]\ns_memtime s[46:47]\ns_waitcnt lgkmcnt(0)"); e.lg = []
        e(f"v_mov_b32 v14, s{sC0}\nv_mov_b32 v15, s46")
        e(f"s_lshl_b32 s{sC0}, s2, 2\ns_add_u32 s{sC0}, s{sC0}, s{sW}\ns_lshl_b32 s{sC0}, s{sC0}, 7\ns_add_u32 s{sC0}, s{sC0}, {STAMP}")
        e.vmop(f"buffer_store_dwordx2 v[14:15], v245, {srd(SWS)}, s{sC0} offen offset:{i*8} sc1", 'stamp')
        if self.c.exit_at == i and grp == 1: e("s_endpgm")
        if i == 0:
            e(f"v_mov_b32 v14, s54\nv_mov_b32 v15, s40")
            e.vmop(f"buffer_store_dwordx2 v[14:15], v245, {srd(SWS)}, s{sC0} offen offset:{15*8} sc1", 'stamp')

    def dump(self, name, regs):
        if getattr(self.c, 'dbg', None) != name: return
        e = self.e
        e(f"s_lshl_b32 s{sBT}, s2, 2\ns_add_u32 s{sBT}, s{sBT}, s{sW}\ns_lshl_b32 s{sBT}, s{sBT}, 14\ns_add_u32 s{sBT}, s{sBT}, 0x2000000\nv_lshlrev_b32 v7, 2, v0")
        for i, r in enumerate(regs):
            e.vmop(f"buffer_store_dword v{r}, v7, {srd(SWS)}, s{sBT} offen offset:{(i%16)*256}", 'dbg')
            if i % 16 == 15: e(f"s_add_u32 s{sBT}, s{sBT}, 4096")
        e.wait(vm='dbg'); self.Bcur = None

    def poll_issue(self, vaddr, vdst, n, tag, soff="0"):
        suf = {2: 'dwordx2', 4: 'dwordx4'}[n]
        return f"buffer_load_{suf} {vr(vdst, n)}, v{vaddr}, {srd(SWS)}, {soff} offen sc1"
    def poll_check(self, loads):
        Ls, Lb = self.lab('slow'), self.lab('back')
        cmps = []; ors = []; k = 0
        prs = ['vcc', 's[28:29]', 's[30:31]', 's[46:47]']
        for (va, vd, n, so) in loads:
            for h in range(n // 2):
                cmps.append(f"v_cmp_ne_u64 {prs[k]}, s[{sTAG}:{sTAG+1}], v[{vd+2*h}:{vd+2*h+1}]")
                if k: ors.append(f"s_or_b64 vcc, vcc, {prs[k]}")
                k += 1
        cmps = cmps[::-1] if False else cmps
        fast = cmps + ors + [f"s_cbranch_vccnz {Ls}\n{Lb}:"]
        t = [f"{Ls}:", f"s_mov_b32 s54, {self.c.spin}", f"{Ls}_l:"]
        if self.c.sleep: t.append(f"s_sleep {self.c.sleep}")
        for (va, vd, n, so) in loads: t.append(self.poll_issue(va, vd, n, None, so))
        t += ["s_waitcnt vmcnt(0)"] + cmps + ors
        t += ["s_sub_u32 s54, s54, 1", f"s_cbranch_vccz {Ls}_x", "s_cmp_lg_u32 s54, 0", f"s_cbranch_scc1 {Ls}_l", f"{Ls}_x:", "s_nop 4", f"s_branch {Lb}"]
        self.tail += t
        return fast
    def tag_check(self, reload, regs, acc):
        Ls, Lb = self.lab('slow'), self.lab('back')
        regs = list(regs); L = [f"v_xor_b32 v{acc}, s{sTB}, v{regs[0]}"]
        for r in regs[1:]: L.append(f"v_bitop3_b32 v{acc}, v{r}, s{sTB}, v{acc} bitop3:0xbe")
        L += [f"v_and_b32 v{acc}, {TBM}, v{acc}", f"v_cmp_ne_u32 vcc, 0, v{acc}"]
        t = [f"{Ls}:", f"s_mov_b32 s54, {self.c.spin}", f"{Ls}_l:"]
        if self.c.sleep: t.append(f"s_sleep {self.c.sleep2}")
        t += list(reload) + ["s_waitcnt vmcnt(0)"] + L
        t += ["s_sub_u32 s54, s54, 1", f"s_cbranch_vccz {Ls}_x", "s_cmp_lg_u32 s54, 0", f"s_cbranch_scc1 {Ls}_l", f"{Ls}_x:", "s_nop 4", f"s_branch {Lb}"]
        self.tail += t
        return L + [f"s_cbranch_vccnz {Ls}\n{Lb}:"]
    def tag_put(self, r, src=None): return f"v_bfi_b32 v{r}, s42, v246, v{r if src is None else src}"
    def tag_strip(self, r): return f"v_and_b32 v{r}, {hex(0xffffffff ^ TBM)}, v{r}"
    def valid_check(self, reload, regs, acc):
        Ls, Lb = self.lab('slow'), self.lab('back')
        regs = list(regs); L = [f"v_max3_u32 v{acc}, v{regs[0]}, v{regs[1]}, v{regs[2 if len(regs) > 2 else 1]}"]
        r = regs[3:]
        for i in range(0, len(r), 2): L.append(f"v_max3_u32 v{acc}, v{acc}, v{r[i]}, v{r[min(i+1, len(r)-1)]}")
        L.append(f"v_cmp_eq_u32 vcc, -1, v{acc}")
        t = [f"{Ls}:", f"s_mov_b32 s54, {self.c.spin}", f"{Ls}_l:"]
        if self.c.sleep: t.append(f"s_sleep {self.c.sleep2}")
        t += list(reload) + ["s_waitcnt vmcnt(0)"] + L
        t += ["s_sub_u32 s54, s54, 1", f"s_cbranch_vccz {Ls}_x", "s_cmp_lg_u32 s54, 0", f"s_cbranch_scc1 {Ls}_l", f"{Ls}_x:", "s_nop 4", f"s_branch {Lb}"]
        self.tail += t
        return L + [f"s_cbranch_vccnz {Ls}\n{Lb}:"]
    def flag_store(self, vaddr, vtag, soff="0"):
        return f"buffer_store_dwordx2 {vr(vtag, 2)}, v{vaddr}, {srd(SWS)}, {soff} offen sc1"

    def stream(self, mf, reads, fill, syncs=None, LA=None, name='', bg=None):
        e = self.e; LA = LA or self.c.LA
        reads = sorted(reads, key=lambda r: r[1]); rp = 0; synced = -1 if syncs else 99
        fq = sorted(fill, key=lambda f: f['at'])
        self.sid = getattr(self, 'sid', 0) + 1; sid = self.sid
        start = len(e.ins)
        def add_fill(items):
            lo = max([f['at'] for f in fq if f.get('chain')], default=-99)
            for f in items:
                if f.get('chain'): f['at'] = lo = max(f['at'], lo)
            fq.extend(items); fq.sort(key=lambda f: f['at'])
        def rd():
            nonlocal rp
            e.lgop(reads[rp][0], ('rd', sid, rp)); rp += 1
        if syncs: add_fill(syncs[0](0)); synced = 0
        while rp < len(reads) and reads[rp][1] < 8 and reads[rp][2] <= synced: rd()
        last_read = -99
        dl_of = {('rd', sid, i): r[1] for i, r in enumerate(reads)}
        def due(m): return [t for t in e.lg if t in dl_of and dl_of[t] <= m]
        ismem = lambda it: it[0] in ('vm', 'lg')
        for m in range(len(mf)):
            d = due(m)
            if d: e.wait(lg=d)
            e(mf[m])
            can = lambda: rp < len(reads) and reads[rp][2] <= synced and reads[rp][3] <= m and len(e.lg) < 15
            lead = lambda: reads[rp][1] - m
            if syncs and rp < len(reads) and reads[rp][2] > synced and m - last_read >= self.c.lag and lead() <= LA:
                synced = reads[rp][2]
                assert not any(it[0] == 'vm' and it[2] == ('S', synced) for f in fq for it in f['ins'])
                add_fill(syncs[synced](m + 1))
                if can(): rd(); last_read = m
                continue
            w = 1 if due(m + 1) else 0
            n = w; mem = 0
            if fq and fq[0]['at'] <= m:
                f = fq[0]
                if f.get('atomic'):
                    self.emit_items(f['ins']); n += len(f['ins']); mem += sum(map(ismem, f['ins'])); fq.pop(0)
                elif ismem(f['ins'][0]):
                    self.emit_items([f['ins'].pop(0)]); n += 1; mem += 1
                    if not f['ins']: fq.pop(0)
            if bg and mem == 0:
                k0 = len(e.ins)
                if self.bg_try(bg(m)): n += len(e.ins) - k0; mem += 1
            if can() and lead() <= LA and (mem == 0 or (lead() <= LA - self.c.th1 and not w)):
                rd(); n += 1; mem += 1; last_read = m
            if can() and mem == 1 and not w and lead() <= LA - self.c.th2:
                rd(); n += 1; mem += 1
            while can() and lead() <= self.c.minlead: rd(); n += 1; mem += 1; last_read = m
            while (n < 2 or (fq and fq[0]['at'] <= m - 2 and n < 3)) and fq and fq[0]['at'] <= m + 2 and not fq[0].get('atomic') and not ismem(fq[0]['ins'][0]):
                f = fq[0]; self.emit_items([f['ins'].pop(0)]); n += 1
                if not f['ins']: fq.pop(0)
            assert rp >= len(reads) or reads[rp][1] > m + 1, (m, reads[rp])
        for f in fq: self.emit_items(f['ins'])
        if self.c.verbose:
            tot = 0; g = None
            for i in e.ins[start:]:
                if i.label: continue
                if i.kind == 'mfma':
                    if g is not None: tot += max(16, g)
                    g = 8; prevmem = False
                elif g is not None:
                    mm = i.kind in ('dsr', 'dsw', 'vload', 'vstore', 'dma')
                    g += 8 if (mm and prevmem) else 4; prevmem = mm
            print(f"stream {name}: {len(mf)} mfma, est clks {tot} (ideal {16*len(mf)})")

    def prologue(self):
        e = self.e; c = self.c
        if c.stamps or c.dstamp: e("s_memrealtime s[54:55]\ns_memtime s[98:99]")
        e(f"""s_cmp_ge_u32 s2, 256
        s_cbranch_scc1 L_end
        s_load_dwordx16 s[32:47], s[0:1], 0
        s_load_dwordx4 s[48:51], s[0:1], 64
        s_load_dwordx2 s[52:53], s[0:1], 80
        s_load_dwordx2 s[56:57], s[0:1], 96""")
        if c.codepf:
            e(f"""s_getpc_b64 s[{sA}:{sB}]
            L_pf:
            s_lshr_b32 s{sT0}, s2, 3
            s_lshl_b32 s{sT0}, s{sT0}, 11
            v_lshrrev_b32 v1, 4, v0
            v_lshlrev_b32 v1, 7, v1
            v_add_u32 v1, s{sT0}, v1
            v_cmp_gt_u32 vcc, L_end-L_pf, v1
            v_cndmask_b32 v1, 0, v1, vcc""")
            e.vmop(f"global_load_dword v255, v1, s[{sA}:{sB}]", 'pf')
        e(f"""v_lshrrev_b32 v1, 6, v0
        v_and_b32 v0, 63, v0
        s_and_b32 s{sT0}, s2, 7
        v_readfirstlane_b32 s{sW}, v1
        s_lshr_b32 s{sT1}, s2, 3
        s_lshr_b32 s{sT2}, s{sT0}, 1
        s_and_b32 s{sT3}, s{sT1}, 3
        s_lshl_b32 s{sMT}, s{sT2}, 2
        s_add_u32 s{sMT}, s{sMT}, s{sT3}
        s_lshr_b32 s{sT4}, s{sT1}, 2
        s_and_b32 s{sHG}, s{sT0}, 1
        s_lshl_b32 s{sHG}, s{sHG}, 2
        s_and_b32 s{sT5}, s{sT4}, 3
        s_add_u32 s{sHG}, s{sHG}, s{sT5}""")
        if c.rot == 2:
            e(f"""s_mul_i32 s{sE}, s{sT2}, 5
            s_lshr_b32 s{sE}, s{sE}, 1
            s_and_b32 s{sT5}, s{sT0}, 1
            s_mul_i32 s{sT5}, s{sT5}, 5
            s_add_u32 s{sE}, s{sE}, s{sT5}
            s_cmp_ge_u32 s{sE}, 10
            s_cselect_b32 s{sT5}, 10, 0
            s_sub_u32 s{sE}, s{sE}, s{sT5}
            s_lshl_b32 s{sE}, s{sE}, 7""")
        else: e(f"s_mov_b32 s{sE}, 0")
        if c.mix: e(f"s_lshr_b32 s{sT5}, s{sT1}, 2\ns_and_b32 s{sT5}, s{sT5}, 4\ns_xor_b32 s{sT5}, s{sT5}, s{sT1}" if c.map2 else
                    f"s_lshr_b32 s{sT5}, s{sT1}, 4\ns_xor_b32 s{sT5}, s{sT5}, s{sT1}")
        if c.map2:
            if c.mix: e(f"s_and_b32 s{sRB}, s{sT5}, 7\ns_bfe_u32 s{sT5}, s{sT1}, 0x20002")
            else: e(f"s_and_b32 s{sRB}, s{sT1}, 7\ns_lshr_b32 s{sT5}, s{sT1}, 3")
            e(f"""s_lshl_b32 s{sT2}, s{sT2}, 3
            s_add_u32 s{sRB}, s{sRB}, s{sT2}
            s_and_b32 s{sNB}, s{sT0}, 1
            s_lshl_b32 s{sNB}, s{sNB}, 2
            s_add_u32 s{sNB}, s{sNB}, s{sT5}""")
        else:
            if c.mix: e(f"s_bfe_u32 s{sNB}, s{sT1}, 0x30001\ns_and_b32 s{sT3}, s{sT5}, 1\ns_lshr_b32 s{sT5}, s{sT1}, 4\ns_bfe_u32 s{sT4}, s{sT1}, 0x10001\ns_xor_b32 s{sT5}, s{sT5}, s{sT4}\ns_and_b32 s{sT3}, s{sT1}, 1\ns_lshl_b32 s{sT5}, s{sT5}, 1\ns_add_u32 s{sT3}, s{sT3}, s{sT5}")
            else: e(f"s_mov_b32 s{sNB}, s{sT4}")
            e(f"s_lshl_b32 s{sRB}, s{sT0}, 2\ns_add_u32 s{sRB}, s{sRB}, s{sT3}")
        e(f"""v_and_b32 v1, 15, v0
        v_lshrrev_b32 v2, 4, v0
        v_bfe_u32 v3, v0, 2, 2
        v_and_b32 v4, 3, v0
        v_lshrrev_b32 v5, 3, v0
        v_lshlrev_b32 v6, 4, v0
        s_lshl_b32 s{sT2}, s{sMT}, 2
        s_add_u32 s{sT2}, s{sT2}, s{sW}
        s_mul_i32 s{sT2}, s{sT2}, {32*1280}
        v_xor_b32 v7, v2, v0
        v_and_b32 v7, 7, v7
        v_lshlrev_b32 v7, 4, v7
        v_mul_u32_u24 v8, 1280, v5
        v_add_u32 v8, s{sT2}, v8
        v_add_u32 v208, v8, v7
        v_xor_b32 v7, 64, v7
        v_add_u32 v209, v8, v7
        v_add_u32 v209, {10240-1024}, v209
        v_add_u32 v210, {2*(10240-1024)}, v208
        v_add_u32 v211, {2*(10240-1024)}, v209
        s_lshl_b32 s{sM0}, s{sW}, 12
        s_add_u32 s{sE+1}, s{sE}, 128
        s_cmp_eq_u32 s{sE+1}, 1280
        s_cselect_b32 s{sE+1}, 0, s{sE+1}""")
        for r, n in ((SX, 2048 * 1280), (SQ, 640 * 3840), (S1, 640 * 3456), (SM, 3456)): e(f"s_mov_b32 s{r+2}, {n}\ns_mov_b32 s{r+3}, 0x20000")
        e(f"s_bitcmp1_b32 s2, 7\ns_cbranch_scc1 L_QH")

    def kernarg_wait(self):
        e = self.e
        e(f"s_waitcnt lgkmcnt(0)\ns_load_dwordx2 s[{sTAG}:{sTAG+1}], s[{pWS}:{pWS+1}], {TAG}")
        if self.c.stamps: e('s_mov_b32 s40, s98')
        if self.c.dstamp: e('s_mov_b64 s[40:41], s[0:1]')
        for r, p in ((SX, pX), (SM, pB1), (SQ, pQKV), (S1, pW1)): e(f"s_mov_b32 s{r}, s{p}\ns_and_b32 s{r+1}, s{p+1}, 0xffff")

    def pack_setup(self):
        e = self.e
        e(f"""s_lshl_b32 s{sT0}, s2, 2
        s_add_u32 s{sT0}, s{sT0}, s{sW}
        s_mul_i32 s{sT1}, s{sT0}, 6554
        s_lshr_b32 s{sT1}, s{sT1}, 16
        s_mul_i32 s{sT2}, s{sT1}, 10
        s_sub_u32 s{sT2}, s{sT0}, s{sT2}
        s_sub_u32 s{sT3}, s{sT1}, 54
        s_and_b32 s{sT3}, s{sT3}, 63
        s_mul_i32 s{sT4}, s{sT3}, 52
        s_lshr_b32 s{sT4}, s{sT4}, 8
        s_mul_i32 s{sT5}, s{sT4}, 5
        s_sub_u32 s{sT5}, s{sT3}, s{sT5}
        s_mul_i32 s{sBT}, s{sT4}, 160
        s_lshr_b32 s{sAT}, s{sT5}, 1
        s_mul_i32 s{sAT}, s{sAT}, 80
        s_and_b32 s{sT3}, s{sT5}, 1
        s_lshl_b32 s{sT3}, s{sT3}, 3
        s_add_u32 s{sAT}, s{sAT}, s{sT3}
        s_cmp_eq_u32 s{sT5}, 4
        s_cselect_b32 s{sAT}, 16, s{sAT}
        s_cselect_b32 s{sT3}, 80, 4
        s_add_u32 s{sBT}, s{sBT}, s{sAT}
        s_lshl_b32 s{sAT}, s{sT1}, 5
        s_cmp_lt_u32 s{sT1}, 54
        s_cselect_b32 s{sBT}, s{sAT}, s{sBT}
        s_cselect_b32 s{sT3}, 16, s{sT3}""")
        self.csel(sT4, 4 * 1280 - 1024, 20 * 1280 - 1024)
        self.csel(SPK + 2, 1728 * 1280, 640 * 1280)
        e(f"""s_mov_b32 s{SPK+3}, 0x20000
        s_cmp_lt_u32 s{sT0}, 740
        s_cselect_b32 s{SPK+2}, s{SPK+2}, 0
        s_mul_i32 s{sBT}, s{sBT}, 1280
        s_lshl_b32 s{sAT}, s{sT2}, 7
        s_add_u32 s32, s{sBT}, s{sAT}
        s_add_u32 s33, s32, s{sT4}
        s_add_u32 s34, s33, s{sT4}
        s_add_u32 s35, s34, s{sT4}
        v_lshrrev_b32 v9, 5, v0
        v_mul_lo_u32 v9, v9, s{sT3}
        v_and_b32 v10, 3, v5
        v_add_u32 v9, v9, v10
        v_mul_u32_u24 v9, 1280, v9
        v_and_b32 v10, 7, v0
        v_lshl_add_u32 v252, v10, 4, v9
        v_lshlrev_b32 v9, 10, v2
        v_lshl_add_u32 v9, v3, 7, v9
        v_add_u32 v9, s{sM0}, v9
        v_add_u32 v9, {L_PACK}, v9""")
        for g in range(2):
            e(f"""s_lshl_b32 s{sT3}, s{sT2}, 1
            s_add_u32 s{sT3}, s{sT3}, {g}
            s_mul_i32 s{sT4}, s{sT3}, 52
            s_lshr_b32 s{sT4}, s{sT4}, 8
            s_mul_i32 s{sT5}, s{sT4}, 5
            s_sub_u32 s{sT5}, s{sT3}, s{sT5}
            s_cmp_eq_u32 s{sT5}, 2
            s_cselect_b32 s{sT3}, 3, 4
            s_cselect_b32 s{sAT}, 32, 8
            v_lshlrev_b32 v10, s{sT3}, v4
            v_add_u32 v{PKA+2*g}, v9, v10
            v_add_u32 v{PKA+1+2*g}, s{sAT}, v{PKA+2*g}
            s_mul_i32 s{sT4}, s{sT4}, 740
            s_mul_i32 s{sAT}, s{sT1}, 5
            s_add_u32 s{sT4}, s{sT4}, s{sAT}""")
            for a_ in range(2):
                d = sPKD + 2 * g + a_
                e(f"""s_lshl_b32 s{sT3}, s{sT5}, 1
                s_add_u32 s{sT3}, s{sT3}, {a_}
                s_add_u32 s{d}, s{sT3}, 364
                s_cmp_eq_u32 s{sT3}, 5
                s_cselect_b32 s{d}, 374, s{d}
                s_cmp_lt_u32 s{sT3}, 5
                s_cselect_b32 s{d}, s{sT3}, s{d}
                s_add_u32 s{d}, s{d}, s{sT4}
                s_lshl_b32 s{d}, s{d}, 10
                s_add_u32 s{d}, s{d}, {PB}
                s_cmp_lt_u32 s{sT0}, 740
                s_cselect_b32 s{d}, s{d}, {OOB}""")
        e(f"""s_cmp_lt_u32 s{sT1}, 54
        s_cselect_b32 s{SPK}, s{pW2}, s{pWO}
        s_cselect_b32 s{SPK+1}, s{pW2+1}, s{pWO+1}
        s_and_b32 s{SPK+1}, s{SPK+1}, 0xffff""")

    def common_setup(self):
        e = self.e
        mk_srd(e, SWS, pWS, 0x10000000); mk_srd(e, SM, pPHI, 32 * 800)
        e(f"""s_lshl_b32 s{sT3}, s{sHG}, 2
        s_add_u32 s{sT3}, s{sT3}, s{sW}
        s_mul_i32 s36, s{sT3}, 800
        s_mul_i32 s37, s{sW}, 800
        s_add_u32 s37, s37, {L_WPHI}""")
        for i in range(2, 10):
            e(f"s_add_u32 s{sE+i}, s{sE+i-1}, 128\ns_cmp_eq_u32 s{sE+i}, 1280\ns_cselect_b32 s{sE+i}, 0, s{sE+i}")
        e(f"""s_mul_i32 s{sB}, s{sNB}, 74
        s_add_u32 s{sB}, s{sB}, s{sW}
        s_mul_i32 s{sB}, s{sB}, 5120
        s_add_u32 s{sB}, s{sB}, {PB}
        s_mul_i32 s{sA}, s{sRB}, 74
        s_add_u32 s{sA}, s{sA}, s{sW}
        s_lshl_b32 s{sA}, s{sA}, 12
        s_add_u32 s{sA}, s{sA}, {A2}
        s_add_u32 s{sB9}, s{sB}, {36*5120}
        s_add_u32 s{sA9}, s{sA}, {36*4096}
        s_cmp_lt_u32 s{sW}, 2
        s_cselect_b32 s{sB9}, s{sB9}, {OOB}
        s_cselect_b32 s{sA9}, s{sA9}, {OOB}
        s_mul_i32 s88, s{sW}, {NL*1024}
        v_add_u32 v240, 4096, v6""")
        for j in range(4):
            e(f"s_add_u32 s{sT3}, s{sW}, {j}\ns_and_b32 s{sT3}, s{sT3}, 3\ns_lshl_b32 s{sT3}, s{sT3}, 10\nv_add_u32 v{236+j}, s{sT3}, v6")
        e(f"""s_lshl_b32 s{sF1}, s2, 3
        s_add_u32 s{sF1}, s{sF1}, {F1}
        s_cmp_eq_u32 s{sW}, 0
        s_cselect_b32 s{sF1}, s{sF1}, {OOB}
        v_mov_b32 v245, {OOB}
        v_cmp_eq_u32 vcc, 0, v0
        v_cndmask_b32 v245, v245, 0, vcc""")

    def touch(self):
        e = self.e; c = self.c
        e(f"""s_cmp_eq_u32 s{sW}, 0
        s_cselect_b64 s[28:29], s[{SX}:{SX+1}], s[{S1}:{S1+1}]
        s_cselect_b32 s30, s{SX+2}, s{S1+2}
        s_cselect_b32 s{sT0}, 12, 0
        s_add_u32 s{sT0}, s{sT0}, 68
        s_cmp_eq_u32 s{sW}, 1
        s_cselect_b64 s[28:29], s[{SQ}:{SQ+1}], s[28:29]
        s_cselect_b32 s30, s{SQ+2}, s30
        s_cselect_b32 s{sT0}, 75, s{sT0}
        s_lshl_b32 s{sT1}, 1, s{sW}
        s_and_b32 s{sT1}, s{sT1}, {c.tmask}
        s_cselect_b32 s30, s30, 0
        s_mov_b32 s31, 0x20000
        s_mul_i32 s{sT1}, s{sT0}, s2
        s_lshl_b32 s{sT1}, s{sT1}, 7
        v_lshlrev_b32 v10, 7, v0
        v_add_u32 v11, 64, v0
        v_cmp_gt_u32 vcc, s{sT0}, v11
        v_lshlrev_b32 v11, 7, v11
        v_mov_b32 v14, {OOB}
        v_cndmask_b32 v11, v14, v11, vcc""")
        e.vmop(f"buffer_load_dword v255, v10, s[28:31], s{sT1} offen", 'pf')
        e.vmop(f"buffer_load_dword v255, v11, s[28:31], s{sT1} offen", 'pf')

    def tag_wait(self):
        e = self.e
        e(f"""s_waitcnt lgkmcnt(0)
        s_add_u32 s{sTAG}, s{sTAG}, 1
        v_mov_b32 v247, s{sTAG+1}
        v_mov_b32 v246, s{sTAG}
        s_mov_b32 s43, {OOB}
        s_movk_i32 s42, {TBM}""")
        e.lg = []
    def pack_loads(self):
        return [([('x', f"s_add_u32 m0, s{sM0}, {L_PACK}")] if i == 0 else []) +
                [('vm', f"buffer_load_dwordx4 v252, {srd(SPK)}, s{32+i} offen offset:{i*1024} {self.c.psc} lds", 'packld')] for i in range(4)]
    def pack_fill(self, m, nm):
        f = []
        for i in range(8):
            t, h = i >> 1, i & 1
            f.append(dict(at=m + 2 + 2 * i, ins=[('lg', f"ds_read_b64_tr_b16 a[{160+4*t+2*h}:{161+4*t+2*h}], v{PKA+t} offset:{(t>>1)*64+512*h}", 'pk')]))
        return f
    def wb_item(self):
        return [[('wvm', 'pkst'), ('vm', "buffer_wbl2 sc1", 'pkst')]] if self.c.wbl else []
    def pack_stores(self):
        return [([('wlg', 'pk')] if i == 0 else []) + [('vm', f"buffer_store_dwordx4 {ar(160+4*i)}, v6, {srd(SWS)}, s{sPKD+i} offen {self.c.pss}", 'pkst')] for i in range(4)]

    def btouch(self):
        pre = [l.strip() for l in f"""s_and_b32 s{sT0}, s{sRB}, 7
        s_lshl_b32 s{sT0}, s{sT0}, 2
        s_add_u32 s{sT0}, s{sT0}, s{sW}
        s_mul_i32 s{sT0}, s{sT0}, {93*128}
        s_mul_i32 s{sT1}, s{sNB}, {74*5120}
        s_add_u32 s{sT0}, s{sT0}, s{sT1}
        s_add_u32 s{sT0}, s{sT0}, {PB}
        v_lshlrev_b32 v248, 7, v0
        v_min_u32 v249, 28, v0
        v_lshlrev_b32 v249, 7, v249""".split("\n")]
        n = self.c.bt
        out = [[('x', l) for l in pre]]
        if n == 1:
            out[0] += [('vm', f"buffer_load_dword v255, v248, {srd(SWS)}, s{sT0} offen sc1", 'pf')]
            out.append([('x', f"s_add_u32 s{sT0}, s{sT0}, 8192"), ('vm', f"buffer_load_dword v255, v249, {srd(SWS)}, s{sT0} offen sc1", 'pf')])
        else:
            out[0] += [('x', "v_min_u32 v249, 23, v0"), ('x', "v_lshlrev_b32 v249, 7, v249")]
            for i in range(4): out.append([('vm', f"buffer_load_dword v255, v249, {srd(SWS)}, s{sT0} offen offset:0 sc1", 'pf'), ('x', f"s_add_u32 s{sT0}, s{sT0}, 3072")])
        return out
    def f1_issue(self):
        return [[('x', f"s_mov_b32 s{sT0}, {F1}"), ('x', "v_add_u32 v235, 1024, v6"), ('vm', self.poll_issue(6, 248, 4, None, f"s{sT0}"), 'f1p')],
                [('vm', self.poll_issue(235, 252, 4, None, f"s{sT0}"), 'f1p')]]
    def f1_check(self):
        chk = self.poll_check([(6, 248, 4, f"s{sT0}"), (235, 252, 4, f"s{sT0}")])
        return [('wvm', 'f1p')] + [('x', t) for t in chk] + [('x', f"s_or_b32 s{sT1}, s2, s{sW}"),
                ('x', f"s_cmp_eq_u32 s{sT1}, 0\ns_cselect_b32 s{sT1}, {TAG}, {OOB}"), ('vm', self.flag_store(245, 246, f"s{sT1}"), 'tagst')]

    def attn_voff(self, dst, cexpr_base, colbase_s):
        e = self.e
        e(f"""v_mul_u32_u24 v10, 6554, v9
        v_lshrrev_b32 v10, 16, v10
        v_mad_i32_i24 v11, v10, -10, v9""")
        self.swap23(10, 12)
        e(f"""v_mul_u32_u24 v10, 3840, v10
        v_lshl_add_u32 v10, v11, 4, v10
        v_add_u32 v{dst}, s{colbase_s}, v10""")
    def swap23(self, r, t):
        self.e(f"""v_lshrrev_b32 v{t}, 1, v{r}
        v_xor_b32 v{t}, v{t}, v{r}
        v_and_b32 v{t}, 4, v{t}
        v_mul_u32_u24 v{t}, 3, v{t}
        v_xor_b32 v{r}, v{r}, v{t}""")

    def small_dma(self, sr, vaddr, soff, ldsaddr, nlanes, tag, m0expr=None):
        e = self.e
        e(m0expr or f"s_mov_b32 m0, {ldsaddr}")
        if nlanes < 64: e(f"s_mov_b64 exec, {hex((1 << nlanes) - 1)}" if nlanes <= 32 else f"s_mov_b32 exec_hi, {hex((1 << (nlanes-32)) - 1)}")
        e.vmop(f"buffer_load_dwordx4 v{vaddr}, {srd(sr)}, {soff} offen lds", tag)
        if nlanes < 64: e("s_mov_b64 exec, -1")

    def csel(self, d, a, b):
        inl = lambda x: isinstance(x, str) or -16 <= x <= 64
        if inl(a) or inl(b): self.e(f"s_cselect_b32 s{d}, {a}, {b}")
        else: self.e(f"s_mov_b32 s{d}, {b}\ns_cselect_b32 s{d}, {a}, s{d}")

    def init_B(self):
        self.Bloc = {}; self.Bq = []
        order = [(i, t) for i in range(19) for t in range(5)]
        for u, k in enumerate(order):
            if u < 64: self.Bloc[k] = ('a', 4 * u)
            elif u < 64 + NL: self.Bloc[k] = ('l', u - 64)
            else: self.Bloc[k] = None
        self.Border = order; self.Bpend = list(range(64 + NL)); self.Bcur = None; self.Acur = None
    def koff(self, i): return 4 * i - (2 if i >= 10 else 0)
    def B_items(self, k, loc):
        i, t = k; it = []
        if self.Bcur != i:
            it.append(('x', f"s_mov_b32 s{sBT}, s{sB9}" if self.koff(i) == 36 else f"s_add_u32 s{sBT}, s{sB}, {self.koff(i)*5120}")); self.Bcur = i
        va, imm = (6, t * 1024) if t < 4 else (240, 0)
        if loc[0] == 'l':
            assert L_BL + loc[1]*1024 - imm >= 0
            it.append(('x', f"s_add_u32 m0, s88, {L_BL + loc[1]*1024 - imm}"))
            it.append(('vm', f"buffer_load_dwordx4 v{va}, {srd(SWS)}, s{sBT} offen offset:{imm} sc1 lds", ('B', k)))
        else:
            it.append(('vm', f"buffer_load_dwordx4 {R(loc)}, v{va}, {srd(SWS)}, s{sBT} offen offset:{imm} sc1", ('B', k)))
        return it
    def B_take(self, us):
        out = []
        for u in us:
            k = self.Border[u]; out.append(self.B_items(k, self.Bloc[k]))
            if self.c.xB == 1: out[-1] = [('x', 's_nop 0')]
            if self.c.xB == 2: out[-1] = [(it[0], it[1].replace(f"s{sBT} offen", "s43 offen"), it[2]) if it[0] == 'vm' else it for it in out[-1]]
            if self.c.xB == 3: out[-1] = [(it[0], it[1].replace(f"s{sBT} offen", f"s{sB} offen"), it[2]) if it[0] == 'vm' else it for it in out[-1]]
        return out
    def ph2_bg(self, u): pass
    def bg_try(self, allowed, S=None):
        e = self.e
        if e.t - e.tvm < (S or self.c.S): return False
        if allowed == self.ph2_bg: return self.try_issue(self.m, True, True)
        for u in self.Bpend:
            if allowed(u):
                self.Bpend.remove(u); self.emit_items(self.B_take([u])[0]); return True
        return False
    def emit_items(self, items):
        e = self.e
        for it in items:
            if it[0] == 'vm': e.vmop(it[1], it[2])
            elif it[0] == 'lg': e.lgop(it[1], it[2])
            elif it[0] == 'wvm': e.wait(vm=it[1])
            elif it[0] == 'wlg': e.wait(lg=it[1])
            elif it[0] == 'st': self.stamp(it[1], it[2])
            else: e(it[1])
    def valu(self, lines, side=None, every=1, bg=None, S=None):
        n = 0
        for l in lines:
            if isinstance(l, str): self.e(l)
            else: self.emit_items([l])
            n += 1
            if side and n % every == 0: self.emit_items(side.pop(0))
            if bg: self.bg_try(bg, S)

    def interleave(self, items, side, every):
        W = ('s_cmp', 's_add', 's_sub', 's_and', 's_or', 's_xor', 's_lshl', 's_lshr', 's_bitcmp', 's_min', 's_max')
        Rd = ('s_cselect', 's_addc', 's_subb', 's_cbranch_scc')
        live = [False] * len(items); l = False
        for i in range(len(items) - 1, -1, -1):
            live[i] = l
            t = items[i][1]
            if t.startswith(Rd): l = True
            elif t.startswith(W): l = False
        n = 0
        for i, it in enumerate(items):
            self.emit_items([it]); n += 1
            if side and n >= every and not live[i]: self.emit_items(side.pop(0)); n = 0
        for g in side: self.emit_items(g)

    def gelu_lines(self, X, Y, T, O):
        U = [X, X + 2, Y, Y + 2]; L = []
        P = lambda r: f"v[{r}:{r+1}]"
        for i in range(4): L.append(f"v_pk_mul_f32 {P(T+2*i)}, {P(U[i])}, {P(U[i])}")
        for i in range(4): L.append(f"v_pk_fma_f32 {P(T+2*i)}, {P(T+2*i)}, v[14:15], s[{sC0}:{sC1}] op_sel_hi:[1,0,0]")
        for i in range(4): L.append(f"v_pk_mul_f32 {P(T+2*i)}, {P(T+2*i)}, {P(U[i])}")
        for i in range(8): L.append(f"v_exp_f32 v{T+i}, v{T+i}")
        for i in range(4): L.append(f"v_pk_add_f32 {P(T+2*i)}, {P(T+2*i)}, 1.0 op_sel_hi:[1,0]")
        for i in range(8): L.append(f"v_rcp_f32 v{T+i}, v{T+i}")
        for i in range(4): L.append(f"v_pk_mul_f32 {P(T+2*i)}, {P(T+2*i)}, {P(U[i])}")
        for i in range(4): L.append(f"v_cvt_pk_bf16_f32 v{O+i}, v{T+2*i}, v{T+2*i+1}")
        return L
    def gelu_consts(self):
        c1 = -2.0 * math.sqrt(2.0 / math.pi) * math.log2(math.e)
        self.e(f"s_mov_b32 s{sC0}, {fl(c1)}\nv_mov_b32 v14, {fl(c1 * 0.044715)}")
    def softmax_lines(self, Pp, E, PH):
        L = []; P = lambda r: f"v[{r}:{r+1}]"
        L += [f"v_max3_f32 v8, v{Pp}, v{Pp+1}, v{Pp+2}", f"v_min3_f32 v10, v{Pp}, v{Pp+1}, v{Pp+2}"]
        for i in range(3, 19, 2): L += [f"v_max3_f32 v8, v8, v{Pp+i}, v{Pp+i+1}", f"v_min3_f32 v10, v10, v{Pp+i}, v{Pp+i+1}"]
        L += [f"v_max_f32 v8, v8, v{Pp+19}", f"v_min_f32 v10, v10, v{Pp+19}"]
        L += [f"v_mul_f32_e64 v8, -v8, s{sC0}", f"v_mul_f32 v10, s{sC0}, v10"]
        for i in range(10):
            L.append(f"v_pk_fma_f32 {P(E+2*i)}, {P(Pp+2*i)}, s[{sC0}:{sC1}], v[8:9] op_sel_hi:[1,0,0]")
            L.append(f"v_pk_fma_f32 {P(E+20+2*i)}, {P(Pp+2*i)}, s[{sC0}:{sC1}], v[10:11] op_sel_hi:[1,0,0] neg_lo:[1,0,0] neg_hi:[1,0,0]")
        for i in range(40): L.append(f"v_exp_f32 v{E+i}, v{E+i}")
        L += [f"v_pk_add_f32 v[8:9], {P(E)}, {P(E+2)}", f"v_pk_add_f32 v[10:11], {P(E+20)}, {P(E+22)}"]
        for i in range(2, 10): L += [f"v_pk_add_f32 v[8:9], v[8:9], {P(E+2*i)}", f"v_pk_add_f32 v[10:11], v[10:11], {P(E+20+2*i)}"]
        L += ["v_add_f32 v8, v8, v9", "v_add_f32 v10, v10, v11", "v_rcp_f32 v8, v8", "v_rcp_f32 v10, v10"]
        for i in range(10): L.append(f"v_pk_mul_f32 {P(E+2*i)}, {P(E+2*i)}, v[8:9] op_sel_hi:[1,0]")
        for i in range(10): L.append(f"v_pk_mul_f32 {P(E+20+2*i)}, {P(E+20+2*i)}, v[10:11] op_sel_hi:[1,0]")
        for i in range(20): L.append(f"v_cvt_pk_bf16_f32 v{PH+i}, v{E+2*i}, v{E+2*i+1}")
        return L
    def wphi_addr(self, va):
        self.e(f"v_mul_u32_u24 v{va}, 800, v2\nv_mad_u32_u24 v{va}, v3, 40, v{va}\nv_add_u32 v{va}, {L_WPHI}, v{va}")
    def wphi_reads(self, va):
        return [[('lg', f"ds_read_b64_tr_b16 a[{AW+2*(dg*5+fg)}:{AW+1+2*(dg*5+fg)}], v{va} offset:{dg*160 + fg*8}", 'wphi')] for dg in range(5) for fg in range(5)]
    def phi_mfmas(self, KQ, Pp):
        L = []
        for dg in range(5):
            for j in range(2):
                for fg in range(5):
                    d = Pp + 20 * j + 4 * fg; w = AW + 2 * (dg * 5 + fg); b = KQ + 10 * j + 2 * dg
                    L.append(f"v_mfma_f32_4x4x4_16b_bf16 {vr(d)}, a[{w}:{w+1}], v[{b}:{b+1}], {vr(d) if dg else 0}")
        return L
    def cvt_heads(self, acc0, dst, j, n=5):
        return [f"v_cvt_pk_bf16_f32 v{dst+2*t+h}, v{acc0+(t*2+j)*4+2*h}, v{acc0+(t*2+j)*4+2*h+1}" for t in range(n) for h in range(2)]
    def rho0(self, dst):
        self.e(f"v_lshrrev_b32 v{dst}, 1, v2\nv_lshl_add_u32 v{dst}, v{dst}, 4, v3\nv_and_b32 v7, 1, v2\nv_lshl_add_u32 v{dst}, v7, 2, v{dst}")
    def x_addr(self, ST, nsl=3, base=220):
        e = self.e
        e(f"""v_lshrrev_b32 v9, 1, v1
        v_xor_b32 v9, v9, v2
        v_lshlrev_b32 v9, 4, v9
        v_lshl_add_u32 v9, v1, 7, v9
        v_add_u32 v{base}, s{sM0}, v9
        v_xor_b32 v{base+1}, 64, v{base}""")
        for sl in range(1, nsl): e(f"v_add_u32 v{base+2*sl}, {sl*ST}, v{base}\nv_add_u32 v{base+1+2*sl}, {sl*ST}, v{base+1}")
    def paced(self, groups, m0, span):
        n = len(groups)
        return [dict(at=m0 + int((k + 0.2) * span / n), chain=1, ins=list(g)) for k, g in enumerate(groups)]
    def prog_QH(self):
        e = self.e; c = self.c; self.init_B(); self.dmap = {0: 3, 1: 5, 2: 7, 3: 9, 14: 11, 7: 13, 9: 15}
        e("L_QH:")
        ST = QH_ST
        e(f"""s_mul_i32 s{sKW}, s{sHG}, 320
        s_lshl_b32 s{sT0}, s{sHG}, 8
        s_add_u32 s{sT0}, s{sT0}, 384
        s_cmp_lt_u32 s{sHG}, 6
        s_cselect_b32 s{sKW}, s{sKW}, s{sT0}
        s_cselect_b32 s{sK1}, 20, 16
        s_mul_i32 s{sT2}, s{sW}, 320""")
        def dma_x(st):
            g = []
            for j in range(4):
                it = [('x', f"s_add_u32 m0, s{sM0}, {(st%3)*ST}")] if j == 0 else []
                g.append(it + [('vm', f"buffer_load_dwordx4 v{208+j}, {srd(SX)}, s{sE+st} offen offset:{j*1024} {c.xsc} lds", ('S', st))])
            return g
        def dma_a(st, i):
            it = []
            if i == 0: it = [('x', f"s_mul_i32 s{sKA}, s{sE+st}, 1920"), ('x', f"s_add_u32 m0, s{sM0+1}, {(st%3)*ST}")]
            if i == 2: it = [('x', f"s_mov_b32 m0, s{sM0+3+st%3}")]
            return it + [('vm', f"buffer_load_dwordx4 v{212+i}, {srd(SQ)}, s{sKA} offen offset:{1024 if i == 1 else 0} {c.wsc} lds", ('S', st))]
        def dma_h(st, i):
            it = []
            if i == 0: it = [('x', f"s_mul_i32 s{sKB}, s{sE+st}, 1728"), ('x', f"s_add_u32 m0, s{sM0+2}, {(st%3)*ST}")]
            if i == 4: it = [('x', "s_add_u32 m0, m0, 4096")]
            return it + [('vm', f"buffer_load_dwordx4 v{215+i}, {srd(S1)}, s{sKB} offen offset:{(i%4)*1024} {c.wsc} lds", ('S', st))]
        def dma_stage(st): return dma_x(st) + [dma_a(st, i) for i in range(3)] + [dma_h(st, i) for i in range(5)]
        e(f"""s_mul_i32 s{sT0}, s{sW}, 3
        s_lshl_b32 s{sT1}, s{sW}, 1
        s_add_u32 s{sT1}, s{sT1}, 2
        s_cmp_lt_u32 s{sW}, 2
        s_cselect_b32 s{sT0}, s{sT0}, s{sT1}
        s_lshl_b32 s{sM0+1}, s{sT0}, 10
        s_add_u32 s{sM0+1}, s{sM0+1}, 16384""")
        for sl in range(3):
            e(f"s_add_u32 s{sM0+3+sl}, s{sM0+1}, {2048 + sl*ST}\ns_cmp_lt_u32 s{sW}, 2\ns_cselect_b32 s{sM0+3+sl}, s{sM0+3+sl}, {MISC+4608}")
        e(f"s_lshl_b32 s{sT0}, s{sT0}, 6\ns_mul_i32 s{sT1}, s{sHG}, 160\ns_mul_i32 s{sM0+2}, s{sW}, 5120\ns_add_u32 s{sM0+2}, s{sM0+2}, {16384+10240}")
        for i in range(3):
            e(f"v_add_u32 v9, {64*i}, v0\nv_add_u32 v9, s{sT0}, v9")
            self.attn_voff(212 + i, None, sT1)
            if i == 1: e("v_subrev_u32 v213, 1024, v213")
            if i == 2: e(f"s_cmp_lt_u32 s{sW}, 2\ns_cselect_b32 s{sT4}, 0, {OOB}\nv_add_u32 v214, s{sT4}, v214")
        self.kernarg_wait()
        self.small_dma(SM, 6, f"s{sKW}", None, 20, 'bias', f"s_add_u32 m0, s{sT2}, {L_BIASQH}")
        for g in dma_x(0) + [dma_a(0, i) for i in range(3)]: self.emit_items(g)
        e(f"s_mul_i32 s{sT0}, s{sW}, 320\nv_mov_b32 v14, {OOB}")
        for i in range(5):
            e(f"""v_add_u32 v9, {64*i}, v0
            v_add_u32 v9, s{sT0}, v9
            v_mul_u32_u24 v10, 3277, v9
            v_lshrrev_b32 v10, 16, v10
            v_mul_u32_u24 v11, 20, v10
            v_sub_u32 v11, v9, v11
            v_bfe_u32 v13, v10, 2, 1
            v_lshlrev_b32 v13, 1, v13
            v_xor_b32 v11, v11, v13
            v_cmp_gt_u32 vcc, s{sK1}, v11""")
            self.swap23(10, 12)
            e(f"""v_mul_u32_u24 v10, 3456, v10
            v_lshl_add_u32 v10, v11, 4, v10
            v_add_u32 v10, s{sKW}, v10
            v_subrev_u32 v10, {(i%4)*1024}, v10
            v_cndmask_b32 v{215+i}, v14, v10, vcc""")
            self.emit_items(dma_h(0, i))
        if c.pke:
            self.pack_setup()
            for g in self.pack_loads(): self.emit_items(g)
        if c.touch == 1: self.touch()
        def setup():
            e = self.e
            self.x_addr(ST); self.rho0(8)
            e(f"v_mul_u32_u24 v9, 160, v8\nv_mad_u32_u24 v9, v4, 40, v9\nv_add_u32 v226, 16384, v9")
            e(f"v_mul_u32_u24 v9, 320, v8\nv_lshl_add_u32 v9, v4, 3, v9\nv_add_u32 v9, {16384+10240}, v9\nv_lshl_add_u32 v229, v7, 5, v9\nv_xor_b32 v7, 1, v7\nv_lshl_add_u32 v232, v7, 5, v9")
            for sl in (1, 2): e(f"v_add_u32 v{226+sl}, {sl*ST}, v226\nv_add_u32 v{229+sl}, {sl*ST}, v229\nv_add_u32 v{232+sl}, {sl*ST}, v232")
            self.common_setup()
            if not c.pke: self.pack_setup()
            e(f"s_mul_i32 s{sT1}, s{sW}, 320\ns_add_u32 s{sT1}, s{sT1}, {L_BIASQH}\nv_lshl_add_u32 v13, v2, 3, s{sT1}")
            e(f"""s_lshl_b32 s{sT0}, s{sMT}, 1
            s_lshr_b32 s{sT1}, s{sW}, 1
            s_add_u32 s{sT0}, s{sT0}, s{sT1}
            s_and_b32 s{sT1}, s{sW}, 1
            s_mul_i32 s{sT2}, s{sT0}, 74
            s_lshl_b32 s{sT2}, s{sT2}, 12
            s_lshl_b32 s{sT3}, s{sT1}, 11
            s_add_u32 s{sT2}, s{sT2}, s{sT3}
            s_add_u32 s{sT2}, s{sT2}, {A2}
            s_lshr_b32 s{sT4}, s{sHG}, 1
            s_mul_i32 s{sT4}, s{sT4}, 5
            s_add_u32 s{sT4}, s{sT4}, 54
            s_lshl_b32 s{sT4}, s{sT4}, 12
            s_add_u32 s{sT4}, s{sT4}, s{sT2}
            s_and_b32 s{sT5}, s{sHG}, 1
            s_lshl_b32 s38, s{sT5}, 13
            s_add_u32 s38, s38, s{sT4}
            s_add_u32 s39, s{sT4}, {4*4096}
            s_lshl_b32 s{sT5}, s{sT5}, 3
            s_add_u32 s39, s39, s{sT5}
            s_lshl_b32 s{sT0}, s{sHG}, 4
            s_add_u32 s{sT0}, s{sT0}, s{sMT}
            s_lshl_b32 s{sT0}, s{sT0}, 2
            s_add_u32 s{sT0}, s{sT0}, s{sW}
            s_lshl_b32 s{sT0}, s{sT0}, 9
            s_add_u32 s45, s{sT0}, {GB}
            v_mov_b32 v204, -1
            v_mov_b32 v205, -1
            v_mov_b32 v206, -1
            v_mov_b32 v207, -1""")
        self.interleave(self.record(setup), dma_stage(1), c.pe)
        self.small_dma(SM, 6, "s36", None, 50, 'misc', "s_mov_b32 m0, s37")
        if c.touch == 2: self.touch()
        if not c.pke:
            for g in self.pack_loads(): self.emit_items(g)
        self.tag_wait()
        e.wait(vm='bias')
        for s_ in range(10): e.lgop(f"ds_read_b64 v[{136+2*s_}:{137+2*s_}], v13 offset:{s_*32}", ('b', s_))
        for s_ in range(10):
            a0 = 16 + (5 + s_) * 8; e.wait(lg=('b', s_))
            for h in range(2): e(f"v_lshlrev_b32 v{a0+2*h}, 16, v{136+2*s_+h}\nv_and_b32 v{a0+2*h+1}, 0xffff0000, v{136+2*s_+h}")
        self.stamp(0)
        NS = 15; nm = NS * 4; mf = []; reads = []
        for st in range(10):
            sl = st % 3
            for t in range(NS):
                gs = st * NS + t; wr = 168 + 8 * (gs % 4); m0 = len(mf)
                for ks in range(2):
                    for rd in range(2):
                        if t < 5: ad, off = 226 + sl, ks * 5120 + rd * 1280 + t * 8
                        else: ad, off = (229 if (t - 5) % 2 == 0 else 232) + sl, ks * 10240 + rd * 2560 + ((t - 5) >> 1) * 64
                        reads.append([f"ds_read_b64_tr_b16 v[{wr+4*ks+2*rd}:{wr+4*ks+2*rd+1}], v{ad} offset:{off}", m0, st, m0 - 13])
                for j in ((1, 0) if st == 0 else (0, 1)):
                    for ks in range(2):
                        xr = 136 + (st % 2) * 16 + (j * 2 + ks) * 4; d = 16 + (t * 2 + j) * 4
                        if t == 0: reads.append([f"ds_read_b128 {vr(xr)}, v{220+2*sl+ks} offset:{j*2048}", len(mf), st, -1])
                        cc = vr(d)
                        if st == 0 and ks == 0: cc = "0" if t < 5 else vr(16 + t * 8)
                        mf.append(f"v_mfma_f32_16x16x32_bf16 {vr(d)}, {vr(wr+4*ks)}, {vr(xr)}, {cc}")
        po = lambda va, off: [('vm', f"buffer_store_dwordx4 v[204:207], v{va}, {srd(SWS)}, s38 offen offset:{off} sc1", 'hst')]
        poison = [po(6, 0), po(6, 1024), po(240, 0), po(240, 1024)] + [[('vm', f"buffer_store_dwordx2 v[204:205], v6, {srd(SWS)}, s39 offen offset:{j*1024} sc1", 'hst')] for j in range(2)]
        self.kloop(mf, reads, nm, dma_stage, poison, 'QH')
        A51 = lambda u: u < 51; A64 = lambda u: u < 64; ALL = lambda u: True
        self.gelu_consts()
        e(f"s_lshl_b32 s{sT3}, s{sKW}, 6\ns_add_u32 s{sT3}, s{sT3}, s{sT2}")
        L = []
        for p in range(5):
            for j in range(2):
                O = 152 + 4 * ((2 * p + j) % 4)
                L += self.gelu_lines(16 + ((5 + 2 * p) * 2 + j) * 4, 16 + ((6 + 2 * p) * 2 + j) * 4, 136 + 8 * j, O)
                if j == 0:
                    if p == 4: L += [f"s_add_u32 s{sT4}, s{sT3}, {4*4096}", f"s_cmp_lt_u32 s{sHG}, 6\ns_cselect_b32 s{sT4}, s{sT4}, {OOB}"]
                    else: L.append(f"s_add_u32 s{sT4}, s{sT3}, {p*4096}")
                L.append(('vm', f"buffer_store_dwordx4 {vr(O)}, v6, {srd(SWS)}, s{sT4} offen offset:{j*1024} sc1", 'hst'))
        self.valu(L, bg=A51, S=c.Sg)
        self.valu(self.cvt_heads(16, 56, 0) + self.cvt_heads(16, 66, 1), bg=A51)
        self.stamp(2); self.stamp(1, 3)
        e.wait(lg='wphi')
        self.valu(self.phi_mfmas(56, 76), bg=A51)
        e(f"""s_lshl_b32 s{sT4}, s{sMT}, 4
        s_add_u32 s{sT4}, s{sT4}, s{sHG}
        s_lshl_b32 s{sT4}, s{sT4}, 7
        s_add_u32 s{sT4}, s{sT4}, {F4}
        s_cmp_eq_u32 s{sW}, 0
        s_cselect_b32 s{sT5}, s{sT4}, {OOB}
        s_mov_b32 s{sC0}, {fl(math.log2(math.e))}""")
        L1 = self.softmax_lines(76, 16, 116)
        self.valu(L1[:c.f4at], bg=A64)
        self.stamp(2, 3)
        e.wait(vm='hst'); self.stamp(3, 3); e("s_barrier")
        self.stamp(4, 3)
        if c.stamps == 3: e(f"s_mov_b32 s{sC0}, {fl(math.log2(math.e))}")
        e.vmop(self.flag_store(245, 246, f"s{sT5}"), 'f4st')
        self.valu(L1[c.f4at:], bg=ALL)
        L2 = self.softmax_lines(96, 16, 136)
        self.valu(L2[:c.pa], bg=ALL)
        self.ph2_pre()
        self.valu(L2[c.pa:c.pb], bg=ALL)
        pool = [[('v', r), c.mo + 1 if r < 204 else c.p3 if r < 220 else 999] for r in list(range(204, 224, 4)) + list(range(168, 204, 4))]
        while len(self.Bpend) > c.qleft: self.bg_try(ALL, -9999)
        self.stamp(5, 3); self.ph2_begin(pool); self.stamp(6, 3)
        if c.stamps == 3: e(f"s_mov_b32 s{sC0}, {fl(math.log2(math.e))}")
        self.valu(L2[c.pb:], bg=ALL)
        self.stamp(3)
        for q in range(7, 12): self.stamp(q, 3)
        pool += [[('v', r), c.mo + 1] for r in range(156, 168, 4)]
        FO = (0, 1024, 2048, 2816)
        finld = [f"buffer_load_dwordx4 {vr(204+4*i)}, v6, {srd(SWS)}, s{sKW} offen offset:{FO[i]} sc1" for i in range(4)]
        finld += [f"buffer_load_dwordx4 {vr(248+4*j)}, v13, {srd(SWS)}, s45 offen offset:{j*256} sc1" for j in range(2)]
        def h_p3():
            e(f"""s_mul_i32 s{sKW}, s{sHG}, {FSZ}
            s_mul_i32 s{sK1}, s{sW}, 3840
            s_add_u32 s{sKW}, s{sKW}, s{sK1}
            s_add_u32 s{sKW}, s{sKW}, {FIN}
            v_lshlrev_b32 v13, 4, v1""")
            for l in finld: e.vmop(l, 'fin')
        def h_o():
            self.stamp(4)
            e(f"s_lshr_b32 s{sK1}, s{sK1}, 1\ns_add_u32 s{sK1}, s{sK1}, {L_FIN}\nv_lshl_add_u32 v9, v0, 3, s{sK1}")
            e.wait(vm='fin')
            for l in self.tag_check(finld, list(range(204, 220)) + list(range(248, 256)), 8): e(l)
            self.stamp(5)
            for r in list(range(204, 220)) + [248, 252]: e(self.tag_strip(r))
            e("v_mov_b32 v250, v248\nv_mov_b32 v251, v252")
            for i in range(4):
                e(f"v_cvt_pk_bf16_f32 v{204+4*i}, v{204+4*i}, v{205+4*i}\nv_cvt_pk_bf16_f32 v{205+4*i}, v{206+4*i}, v{207+4*i}")
                e.lgop(f"ds_write_b64 v9, v[{204+4*i}:{205+4*i}] offset:{FO[i]//2}", 'fw')
            fr = [p for p in pool if p[0][0] == 'a'][:8]; assert len(fr) == 8; self.busy = fr
            e(f"v_lshlrev_b32 v13, 6, v2\nv_lshl_add_u32 v13, v4, 4, v13\nv_add_u32 v13, {L_FIN}, v13")
            e.wait(lg='fw'); e("s_barrier")
            self.stamp(6)
            mf = []; reads = []
            for fp in range(5):
                for dg in range(6):
                    n = fp * 6 + dg; f0 = fr[n % 8][0][1]; base = (n // 2) * 8
                    reads.append([f"ds_read_b128 {ar(f0)}, v13 offset:{(dg*5+fp)*256}", base + 2 * (n % 2), -1, base - 24])
                    for h in range(2):
                        for j in range(2):
                            d = 156 + 24 * j + 4 * dg; b = 116 + 20 * j + 2 * (2 * fp + h)
                            mf.append(f"v_mfma_f32_4x4x4_16b_bf16 {vr(d)}, a[{f0+2*h}:{f0+2*h+1}], v[{b}:{b+1}], {vr(d) if (fp or h) else 0}")
            mf2 = []
            for n in range(0, 30, 2):
                a_, b_ = mf[4*n:4*n+4], mf[4*n+4:4*n+8]
                mf2 += [a_[0], a_[1], b_[0], b_[1], a_[2], a_[3], b_[2], b_[3]]
            self.stream(mf2, reads, [], None, LA=20, bg=lambda m: self.ph2_bg)
            for j in range(2): e(f"v_add_f32 v{8+2*j}, {fl(1e-6)}, v{156+24*j+20}")
            for j in range(2): e(f"v_rcp_f32 v{8+2*j}, v{8+2*j}")
            for j in range(2): e(f"v_mul_f32 v{8+2*j}, v{8+2*j}, v{250+j}")
            for j in range(2):
                D = 156 + 24 * j
                for i in range(10): e(f"v_pk_mul_f32 v[{D+2*i}:{D+2*i+1}], v[{D+2*i}:{D+2*i+1}], v[{8+2*j}:{9+2*j}] op_sel_hi:[1,0]")
                for i in range(10): e(f"v_cvt_pk_bf16_f32 v{D+i}, v{D+2*i}, v{D+2*i+1}")
                for i in range(10): e(f"v_min_u32 v{D+i}, -2, v{D+i}")
                e.vmop(f"buffer_store_dwordx4 {vr(D)}, v6, {srd(SWS)}, s38 offen offset:{j*1024} sc1", 'ost')
                e.vmop(f"buffer_store_dwordx4 {vr(D+4)}, v240, {srd(SWS)}, s38 offen offset:{j*1024} sc1", 'ost')
                e.vmop(f"buffer_store_dwordx2 {vr(D+8, 2)}, v6, {srd(SWS)}, s39 offen offset:{j*1024} sc1", 'ost')
            self.busy = []
            for p in pool: p[1] = 999
            pool.extend([[('v', r), 999] for r in range(116, 156, 4)])
            self.stamp(14)
        self.bias2()
        self.phase2({c.p3: h_p3, c.mo: h_o, c.p1q: self.poll4b_issue, c.c1q: self.poll4b_check})

    def prog_KV(self):
        e = self.e; c = self.c; self.init_B(); self.dmap = {0: 2, 1: 4, 3: 6, 4: 8, 5: 10, 7: 12, 9: 14}
        ST = KV_ST
        e(f"""s_mul_i32 s{sM0+1}, s{sW}, 5120
        s_add_u32 s{sM0+1}, s{sM0+1}, 16384
        s_lshl_b32 s{sM0+2}, s{sW}, 11
        s_add_u32 s{sM0+2}, s{sM0+2}, 36864
        s_lshl_b32 s{sKW}, s{sHG}, 7
        s_add_u32 s{sKW}, s{sKW}, {19*128}""")
        def dma_x(st):
            g = []
            for j in range(4):
                it = [('x', f"s_add_u32 m0, s{sM0}, {(st%3)*ST}")] if j == 0 else []
                g.append(it + [('vm', f"buffer_load_dwordx4 v{208+j}, {srd(SX)}, s{sE+st} offen offset:{j*1024} {c.xsc} lds", ('S', st))])
            return g
        def dma_w(st, i):
            it = []
            if i == 0: it = [('x', f"s_mul_i32 s{sKA}, s{sE+st}, 1920"), ('x', f"s_add_u32 m0, s{sM0+1}, {(st%3)*ST}")]
            if i == 4: it = [('x', "s_add_u32 m0, m0, 4096")]
            return it + [('vm', f"buffer_load_dwordx4 v{212+i}, {srd(SQ)}, s{sKA} offen offset:{(i%4)*1024} {c.wsc} lds", ('S', st))]
        def dma_h(st, i):
            it = [('x', f"s_mul_i32 s{sKB}, s{sE+st}, 1728"), ('x', f"s_add_u32 m0, s{sM0+2}, {(st%3)*ST}")] if i == 0 else []
            return it + [('vm', f"buffer_load_dwordx4 v{217+i}, {srd(S1)}, s{sKB} offen offset:{i*1024} {c.wsc} lds", ('S', st))]
        def dma_stage(st): return dma_x(st) + [dma_w(st, i) for i in range(5)] + [dma_h(st, i) for i in range(2)]
        e(f"""s_and_b32 s{sT0}, s{sW}, 1
        s_mul_i32 s{sT0}, s{sT0}, 320
        s_lshr_b32 s{sT1}, s{sW}, 1
        s_add_u32 s{sT1}, s{sT1}, 1
        s_mul_i32 s{sT1}, s{sT1}, 1280
        s_mul_i32 s{sT3}, s{sHG}, 160
        s_add_u32 s{sT1}, s{sT1}, s{sT3}""")
        for i in range(5):
            e(f"v_add_u32 v9, {64*i}, v0\nv_add_u32 v9, s{sT0}, v9")
            self.attn_voff(212 + i, None, sT1)
            if i % 4: e(f"v_subrev_u32 v{212+i}, {(i%4)*1024}, v{212+i}")
        self.kernarg_wait()
        self.small_dma(SM, 6, f"s{sKW}", L_BIASKV, 8, 'bias')
        for g in dma_x(0) + [dma_w(0, i) for i in range(5)]: self.emit_items(g)
        e(f"s_lshl_b32 s{sT3}, s{sW}, 4\nv_lshlrev_b32 v11, 1, v2\nv_xor_b32 v11, v11, v0\nv_and_b32 v11, 7, v11")
        for pp in range(2):
            e(f"v_add_u32 v10, {8*pp}, v5\nv_add_u32 v10, s{sT3}, v10")
            self.swap23(10, 12)
            e(f"""v_mul_u32_u24 v10, 3456, v10
            v_lshl_add_u32 v10, v11, 4, v10
            v_add_u32 v10, s{sKW}, v10
            v_subrev_u32 v{217+pp}, {pp*1024}, v10""")
            self.emit_items(dma_h(0, pp))
        mk_srd(e, 28, pGATE, 1280)
        e(f"v_add_u32 v9, s{sE}, v6\nv_subrev_u32 v10, 1280, v9\nv_min_u32 v9, v9, v10\nv_add_u32 v11, 1024, v9\nv_subrev_u32 v10, 1280, v11\nv_min_u32 v11, v11, v10")
        self.small_dma(28, 9, "0", L_GATE, 64, ('S', 0)); self.small_dma(28, 11, "0", L_GATE + 1024, 16, ('S', 0))
        if c.pke:
            self.pack_setup()
            for g in self.pack_loads(): self.emit_items(g)
        if c.touch == 1: self.touch()
        def setup():
            e = self.e
            self.x_addr(ST); self.rho0(8)
            e(f"v_mul_u32_u24 v9, 160, v8\nv_mad_u32_u24 v9, v4, 40, v9\nv_add_u32 v226, 16384, v9")
            for sl in (1, 2): e(f"v_add_u32 v{226+sl}, {sl*ST}, v226")
            e(f"v_lshlrev_b32 v9, 7, v8\nv_lshl_add_u32 v9, v4, 3, v9\nv_add_u32 v9, 36864, v9\nv_bfe_u32 v10, v8, 1, 2")
            for t in range(4): e(f"v_xor_b32 v11, {t}, v10\nv_lshl_add_u32 v{229+t}, v11, 5, v9\nv_add_u32 v{204+t}, {2*ST}, v{229+t}")
            e(f"v_lshlrev_b32 v233, 4, v2\nv_add_u32 v233, {L_GATE}, v233\nv_lshlrev_b32 v14, 3, v2\nv_add_u32 v14, {L_BIASKV}, v14")
            self.common_setup()
            if not c.pke: self.pack_setup()
            e(f"""v_lshrrev_b32 v8, 2, v1
            v_mul_u32_u24 v8, 2560, v8
            v_lshl_add_u32 v8, v4, 5, v8
            v_lshrrev_b32 v9, 1, v2
            v_lshl_add_u32 v8, v9, 9, v8
            v_and_b32 v9, 1, v2
            v_lshl_add_u32 v8, v9, 4, v8
            s_lshl_b32 s{sT0}, s{sW}, 7
            v_add_u32 v241, s{sT0}, v8
            v_add_u32 v243, 10240, v241
            v_mov_b32 v9, {OOB}
            v_cmp_ge_u32 vcc, 7, v1
            v_cndmask_b32 v243, v9, v243, vcc
            v_cmp_gt_u32 vcc, 2, v2
            v_cndmask_b32 v242, v9, v241, vcc
            v_cndmask_b32 v244, v9, v243, vcc
            v_mul_u32_u24 v12, {PSZ}, v2
            v_min_u32 v10, 14, v1
            v_lshl_add_u32 v12, v10, 4, v12
            v_lshlrev_b32 v13, 4, v1
            v_cmp_gt_u32 vcc, 16, v0
            v_cndmask_b32 v234, v9, v13, vcc
            v_cmp_gt_u32 vcc, 15, v0
            v_cndmask_b32 v13, v9, v13, vcc""")
        self.interleave(self.record(setup), dma_stage(1), c.pe2)
        self.small_dma(SM, 6, "s36", None, 50, 'misc', "s_mov_b32 m0, s37")
        if c.touch == 2: self.touch()
        if not c.pke:
            for g in self.pack_loads(): self.emit_items(g)
        self.tag_wait()
        e.wait(vm='bias')
        for s_ in range(4): e.lgop(f"ds_read_b64 v[{136+2*s_}:{137+2*s_}], v14 offset:{s_*32}", ('b', s_))
        for s_ in range(4):
            e.wait(lg=('b', s_))
            for h in range(2): e(f"v_lshlrev_b32 v{96+8*s_+2*h}, 16, v{136+2*s_+h}\nv_and_b32 v{97+8*s_+2*h}, 0xffff0000, v{136+2*s_+h}")
        self.stamp(0)
        NS = 15; nm = NS * 4; mf = []; reads = []
        for st in range(10):
            sl = st % 3
            for t in range(NS):
                gs = st * NS + t; wr = 168 + 8 * (gs % 4); m0 = len(mf)
                for ks in range(2):
                    if t == 14: reads.append([f"ds_read_b128 {vr(wr+4*ks)}, v233 offset:{(st*2+ks)*64}", m0, st, m0 - 13]); continue
                    for rd in range(2):
                        if t < 10: ad, off = 226 + sl, (t // 5) * 10240 + ks * 5120 + rd * 1280 + (t % 5) * 8
                        else: ad, off = (229 if sl < 2 else 204) + t - 10, (sl % 2) * ST + ks * 4096 + rd * 1024
                        reads.append([f"ds_read_b64_tr_b16 v[{wr+4*ks+2*rd}:{wr+4*ks+2*rd+1}], v{ad} offset:{off}", m0, st, m0 - 13])
                for j in ((1, 0) if st == 0 else (0, 1)):
                    for ks in range(2):
                        xr = 136 + (st % 2) * 16 + (j * 2 + ks) * 4; d = 16 + (t * 2 + j) * 4
                        if t == 0: reads.append([f"ds_read_b128 {vr(xr)}, v{220+2*sl+ks} offset:{j*2048}", len(mf), st, -1])
                        cc = vr(d)
                        if st == 0 and ks == 0: cc = vr(16 + t * 8) if 10 <= t < 14 else "0"
                        mf.append(f"v_mfma_f32_16x16x32_bf16 {vr(d)}, {vr(wr+4*ks)}, {vr(xr)}, {cc}")
        self.kloop(mf, reads, nm, dma_stage, [], 'KV')
        A64 = lambda u: u < 64; ALL = lambda u: True
        A51 = lambda u: u < 51; Sa = c.Sa
        KQ = 136; PR = 168; VT = 156
        nl2e = fl(-math.log2(math.e))
        side = [l.strip() for l in f"""v_mul_f32 v128, {nl2e}, v128
        v_mul_f32 v132, {nl2e}, v132
        v_exp_f32 v128, v128
        v_exp_f32 v132, v132
        s_lshl_b32 s{sT2}, s{sMT}, 2
        v_add_f32 v128, 1.0, v128
        v_add_f32 v132, 1.0, v132
        v_rcp_f32 v128, v128
        v_rcp_f32 v132, v132
        s_add_u32 s{sT2}, s{sT2}, s{sW}
        s_lshl_b32 s{sT3}, s{sT2}, 9
        s_lshl_b32 s{sT4}, s{sHG}, 15
        s_add_u32 s{sT3}, s{sT3}, s{sT4}
        s_add_u32 s{sT3}, s{sT3}, {GB}
        v_mul_u32_u24 v220, {RSV}, v1
        v_mad_u32_u24 v220, v2, 48, v220
        s_mul_i32 s{sT0}, s{sW}, {32*RSV}
        s_add_u32 s{sT0}, s{sT0}, {L_V}
        v_add_u32 v220, s{sT0}, v220
        v_mul_u32_u24 v221, {RSP}, v1
        s_mov_b32 s{sT0}, 80
        v_mad_u32_u24 v221, v2, s{sT0}, v221
        s_mul_i32 s{sT0}, s{sW}, {32*RSP}
        v_add_u32 v221, s{sT0}, v221
        v_lshl_add_u32 v8, v2, 2, v3
        v_mul_u32_u24 v222, {RSP}, v8
        v_lshl_add_u32 v222, v4, 3, v222
        s_mul_i32 s{sT0}, s{sW}, 80
        v_add_u32 v222, s{sT0}, v222
        v_mul_u32_u24 v223, {RSV}, v8
        v_lshl_add_u32 v223, v4, 3, v223
        s_mul_i32 s{sT0}, s{sW}, 48
        s_add_u32 s{sT0}, s{sT0}, {L_V}
        v_add_u32 v223, s{sT0}, v223
        s_lshl_b32 s{sT0}, s{sHG}, 4
        s_add_u32 s{sT0}, s{sT0}, s{sMT}
        s_mul_i32 s{sT1}, s{sT0}, {PSZ}
        s_add_u32 s{sT1}, s{sT1}, {PP}
        s_mov_b32 s{sC0}, {fl(math.log2(math.e))}""".split("\n")]
        self.valu(self.cvt_heads(16, KQ, 0) + self.cvt_heads(16, KQ + 10, 1))
        e.wait(lg='wphi')
        side = self.cvt_heads(56, VT, 0) + side[:38]; rest = [side.pop() for _ in range(0)]
        self.valu(self.phi_mfmas(KQ, PR), [[('x', l)] for l in side], 1)
        e(f"v_mov_b32 v{VT+10}, 0x3f80\nv_mov_b32 v{VT+11}, 0\ns_mov_b32 s{sC0}, {fl(math.log2(math.e))}\ns_barrier")
        for i in range(3): e.lgop(f"ds_write_b128 v220, {vr(VT+4*i)} offset:{i*16}", 'vw')
        for j in range(2):
            for i in (3, 2, 1, 0): e(self.tag_put(128 + 4 * j + i, 128 + 4 * j))
            e.vmop(f"buffer_store_dwordx4 {vr(128+4*j)}, v234, {srd(SWS)}, s{sT3} offen offset:{j*256} sc1", 'hst')
        L0 = self.softmax_lines(PR, 16, 136)
        self.valu(L0[:16], bg=ALL, S=Sa)
        e.wait(lg='vw')
        self.valu(self.cvt_heads(56, VT, 1), bg=ALL, S=Sa)
        for i in range(3): e.lgop(f"ds_write_b128 v220, {vr(VT+4*i)} offset:{16*RSV + i*16}", 'vw')
        self.valu(L0[16:], bg=ALL, S=Sa)
        PH = (136, 56)
        pw = lambda j: [[('lg', f"ds_write_b128 v221, {vr(PH[j]+4*i)} offset:{j*16*RSP + i*16}", 'pw')] for i in range(5)]
        L1 = self.softmax_lines(PR + 20, 16, 56)
        self.valu(L1[:40], pw(0), 8, ALL, Sa)
        self.valu(L1[40:-20], bg=ALL, S=Sa)
        self.valu(L1[-20:], pw(1), 4)
        e.wait(lg_all=True); e("s_barrier")
        self.stamp(2)
        mf = []; reads = []; D0 = 168
        for s_ in range(4):
            b0 = 16 + s_ * 20; m0 = len(mf)
            for dt in range(2):
                for rd in range(2): reads.append([f"ds_read_b64_tr_b16 v[{b0+12+4*dt+2*rd}:{b0+13+4*dt+2*rd}], v223 offset:{(32*s_+16*rd)*RSV + dt*32}", m0 + dt, -1, -1])
            for ft in range(3):
                for rd in range(2): reads.append([f"ds_read_b64_tr_b16 v[{b0+4*ft+2*rd}:{b0+4*ft+2*rd+1}], v222 offset:{(32*s_+16*rd)*RSP + ft*32}", m0 + 2 * ft, -1, -1])
                for dt in range(2):
                    d = D0 + (ft * 2 + dt) * 4
                    mf.append(f"v_mfma_f32_16x16x32_bf16 {vr(d)}, {vr(b0+4*ft)}, {vr(b0+12+4*dt)}, {vr(d) if s_ else 0}")
        reads.sort(key=lambda r: r[1]); rp = 0
        for m in range(24):
            while rp < 40 and (len(e.lg) < 14 and (m == 0 or reads[rp][1] <= m + 8) or reads[rp][1] <= m): e.lgop(reads[rp][0], ('kv', reads[rp][1])); rp += 1
            e.wait(lg=[('kv', k) for k in range(m + 1)])
            e(mf[m])
        self.gelu_consts()
        e(f"""s_lshl_b32 s{sT4}, s{sMT}, 1
        s_lshr_b32 s{sT5}, s{sW}, 1
        s_add_u32 s{sT4}, s{sT4}, s{sT5}
        s_and_b32 s{sT5}, s{sW}, 1
        s_mul_i32 s{sT3}, s{sT4}, 74
        s_lshl_b32 s{sKW}, s{sHG}, 1
        s_add_u32 s{sT3}, s{sT3}, s{sKW}""")
        for ft in range(3):
            for dt in range(2):
                for i in range(4): e(self.tag_put(D0 + (ft * 2 + dt) * 4 + i))
                e.vmop(f"buffer_store_dwordx4 {vr(D0+(ft*2+dt)*4)}, v{241+2*dt+(ft==2)}, {srd(SWS)}, s{sT1} offen offset:{ft*1024} sc1", 'pst')
        self.stamp(3)
        if c.stamps: self.gelu_consts()
        e(f"""s_add_u32 s{sT3}, s{sT3}, 38
        s_lshl_b32 s{sT3}, s{sT3}, 12
        s_lshl_b32 s{sT5}, s{sT5}, 11
        s_add_u32 s{sT3}, s{sT3}, s{sT5}
        s_add_u32 s{sT3}, s{sT3}, {A2}
        s_lshl_b32 s{sKW}, s{sMT}, 4
        s_add_u32 s{sKW}, s{sKW}, s{sHG}
        s_lshl_b32 s{sKW}, s{sKW}, 7
        s_add_u32 s{sKW}, s{sKW}, {F4+1024}
        s_cmp_eq_u32 s{sW}, 0
        s_cselect_b32 s{sKW}, s{sKW}, {OOB}
        s_mul_i32 s32, s{sT2}, 240
        s_mul_i32 s{sT4}, s{sHG}, {FSZ}
        s_add_u32 s{sT1}, s32, s{sT4}
        s_add_u32 s{sT1}, s{sT1}, {FIN}
        s_lshl_b32 s{sT4}, s{sT4}, 4
        s_add_u32 s32, s32, s{sT4}
        s_add_u32 s32, s32, {PP}
        s_add_u32 s33, s32, {4*PSZ}
        s_add_u32 s34, s33, {4*PSZ}
        s_add_u32 s35, s34, {4*PSZ}""")
        L = []
        for p in range(2):
            for j in range(2):
                O = 152 + 4 * ((2 * p + j) % 4)
                L += self.gelu_lines(96 + (4 * p + j) * 4, 96 + (4 * p + 2 + j) * 4, 136 + 8 * j, O)
                if j == 0 and p == 1: L.append(f"s_add_u32 s{sT3}, s{sT3}, 4096")
                L.append(('vm', f"buffer_store_dwordx4 {vr(O)}, v6, {srd(SWS)}, s{sT3} offen offset:{j*1024} sc1", 'hst'))
        RD = 116
        pld = [f"buffer_load_dwordx4 {vr(RD+4*i)}, v12, {srd(SWS)}, s{32+i} offen sc1" for i in range(4)]
        self.valu(L, bg=ALL if c.kgb else None, S=Sa)
        for l in pld: e.vmop(l, 'pld')
        pool = [[('v', r), 999] for r in list(range(168, 224, 4)) + list(range(136, 168, 4))]
        for _ in range(c.kb2): self.bg_try(ALL, -9999)
        self.stamp(4)
        def h_r2():
            red = [self.tag_strip(RD + i) for i in range(16)]
            red += [f"v_add_f32 v{RD+i}, v{RD+i}, v{RD+4+i}" for i in range(4)] + [f"v_add_f32 v{RD+8+i}, v{RD+8+i}, v{RD+12+i}" for i in range(4)] + [f"v_add_f32 v{RD+i}, v{RD+i}, v{RD+8+i}" for i in range(4)]
            for sw in ('32', '16'):
                red += [f"v_mov_b32 v{RD+4+i}, v{RD+i}" for i in range(4)] + [f"v_permlane{sw}_swap_b32 v{RD+i}, v{RD+4+i}" for i in range(4)] + [f"v_add_f32 v{RD+i}, v{RD+i}, v{RD+4+i}" for i in range(4)]
            red += [self.tag_put(RD + i) for i in range(4)]
            it = [('st', 14, 1), ('wvm', 'pld')] + [('x', l) for l in self.tag_check(pld, range(RD, RD + 16), 9)] + [('st', 5, 1)] + [('x', l) for l in red]
            it += [('vm', f"buffer_store_dwordx4 {vr(RD)}, v13, {srd(SWS)}, s{sT1} offen sc1", 'fst')]
            self.emit_items(it); pool.extend([[('v', r), 999] for r in range(RD, RD + 20, 4)])
        def h_f4():
            e.wait(vm='hst'); e("s_barrier"); e.vmop(self.flag_store(245, 246, f"s{sKW}"), 'f4st')
        h_r2()
        for _ in range(c.kb3): self.bg_try(ALL, -9999)
        h_f4()
        self.ph2_pre()
        while len(self.Bpend) > c.kleft: self.bg_try(ALL, -9999)
        self.stamp(6)
        self.ph2_begin(pool)
        self.bias2()
        self.phase2({c.p1: self.poll4b_issue, c.c1: self.poll4b_check})

    def kloop(self, mf, reads, nm, dma_stage, poison, name):
        e = self.e; c = self.c
        def mksync(st):
            def f(m):
                e.wait(vm=[('S', st)] + (['pkst'] if st == c.pks + 3 else []) + (['misc'] if st == 2 else []) + (['packld'] if st == c.pks else []), lg_all=True); e("s_barrier")
                self.stamp(st + 1, 2)
                out = []
                if st + 2 < 10: out += self.paced(dma_stage(st + 2) + (self.pack_stores() if st == c.pks else []), m, nm - c.dtail)
                if st == c.pks: out += self.pack_fill(m, nm)
                if st == c.pks + 3: out.append(dict(at=m + 1, ins=[('vm', self.flag_store(245, 246, f"s{sF1}"), 'f1st')]))
                if st == 3: out += [dict(at=m + 3 + 5 * k, ins=g) for k, g in enumerate(self.wphi_reads(254))]
                if st == c.f1s - 1: out += [dict(at=m + nm - c.dtail + 2 * k, chain=1, ins=g) for k, g in enumerate(self.f1_issue())]
                if st == c.f1s:
                    chk = [dict(at=m + c.f1c + 2 * k, ins=[it]) for k, it in enumerate(self.f1_check())]
                    out += chk
                    if c.bt: out += [dict(at=m + c.f1c + 26 + c.btsp * k, ins=g) for k, g in enumerate(self.btouch())]
                if st == 8:
                    if poison: out += self.paced(poison, m, 30)
                    self.bg0 = max(m + c.bgs, (m + c.f1c + 28) if c.f1s == 8 else 0)
                return out
            return f
        self.bg0 = 9999; self.wphi_addr(254)
        self.stream(mf, reads, [], {st: mksync(st) for st in range(10)}, name=name, bg=lambda m: (lambda u: m >= self.bg0 and u < 51))
        self.stamp(1); self.stamp(11, 2)

    def ph2_pre(self):
        e = self.e
        mk_srd(e, SM, pB2, 1280); mk_srd(e, SPK, pOUT, 2048 * 1280)
        e(f"""s_mul_i32 s{sM0}, s{sNB}, 160
        s_and_b32 s{sM0+1}, s{sNB}, 1
        s_lshl_b32 s{sM0+2}, s{sM0+1}, 5
        s_add_u32 s{sM0+2}, s{sM0+2}, s{sM0}
        s_xor_b32 s{sM0+1}, s{sM0+1}, 1
        s_lshl_b32 s{sM0+1}, s{sM0+1}, 7
        s_add_u32 s{sM0+1}, s{sM0+1}, s{sM0}
        s_min_u32 s{sM0+3}, s{sW}, 1
        s_mul_i32 s{sM0+3}, s{sM0+3}, 1280
        s_sub_u32 s{SM+2}, 1280, s{sM0+3}
        s_lshr_b32 s{sM0+5}, s{sRB}, 1
        s_lshl_b32 s{sM0+3}, s{sM0+5}, 11
        s_add_u32 s{sM0+3}, s{sM0+3}, {F4}
        s_add_u32 s{sM0+4}, s{sM0+3}, 1024
        v_and_b32 v235, 7, v0
        v_lshlrev_b32 v235, 7, v235""")
        e.vmop(self.poll_issue(235, 252, 2, None, f"s{sM0+3}"), 'p4a')

    def poll4b_issue(self): self.e.vmop(self.poll_issue(235, 252, 2, None, f"s{sM0+4}"), 'p4b')
    def poll4b_check(self):
        e = self.e
        self.stamp(10)
        e.wait(vm='p4b')
        for l in self.poll_check([(235, 252, 2, f"s{sM0+4}")]): e(l)
        self.stamp(11)
        self.gate[1] = True; self.g_loads()
        for _ in range(self.c.burst): self.try_issue(self.m, True)
    def g_loads(self):
        e = self.e
        e(f"s_lshl_b32 s{sT0}, s{sRB}, 10\ns_add_u32 s{sT0}, s{sT0}, {GB}\nv_lshlrev_b32 v7, 4, v1")
        for jj in range(4):
            e(f"v_subrev_u32 v8, v6, v{236+jj}\nv_lshrrev_b32 v8, 2, v8\nv_add_u32 v8, v8, v7")
            e.vmop(f"buffer_load_dword v{241+jj}, v8, {srd(SWS)}, s{sT0} offen sc1", 'g')
    def bias2(self):
        e = self.e; BI = 96
        e.wait(vm='b2')
        for t in range(5):
            for h in range(2):
                s_ = 224 + 2 * t + h
                e(f"v_lshlrev_b32 v{BI+4*t+2*h}, 16, v{s_}\nv_and_b32 v{BI+4*t+2*h+1}, 0xffff0000, v{s_}")

    def ph2_begin(self, pool):
        e = self.e; c = self.c
        e.wait(vm='p4a')
        for l in self.poll_check([(235, 252, 2, f"s{sM0+3}")]): e(l)
        self.pool = pool; self.busy = []; self.Aloc = {}; self.Bl = dict(self.Bloc); self.Acur = {}
        groups = [(0, 1), (2, 3), (4, 5), (6, 7), (8, 9), (10, 11), (12, 13), (14, 15), (16, 17, 18)]
        self.mf = [(i, t, j) for g in groups for t in range(5) for j in range(4) for i in g]
        fA, lA, fB, lB = {}, {}, {}, {}
        for m, (i, t, j) in enumerate(self.mf):
            fA.setdefault((i, j), m); lA[(i, j)] = m; fB.setdefault((i, t), m); lB[(i, t)] = m
        self.lA, self.lB = lA, lB
        w = [('A', k, fA[k] if k[0] < 14 else (280 if k[0] < 16 else 320) - c.vlead - 1, lA[k]) for k in fA]
        w += [('S', k, fB[k], lB[k]) for k in fB if self.Bl[k] and self.Bl[k][0] == 'l']
        w += [('B', k, fB[k], lB[k]) for k in fB if self.Bl[k] is None]
        self.fB = fB
        self.work = sorted(w, key=lambda x: x[2]); self.gate = {0: True, 1: False, 2: False, 3: False}; self.Atxt = {}; self.lastiss = -99; self.m = 0
        for _ in range(c.a0): self.try_issue(0, True)
        e("v_lshlrev_b32 v7, 4, v2\nv_lshlrev_b32 v234, 3, v2")
        e.vmop(f"buffer_load_dwordx4 v[224:227], v7, {srd(SM)}, s{sM0+2} offen", 'b2')
        e.vmop(f"buffer_load_dwordx4 v[228:231], v7, {srd(SM)}, s{sM0+2} offen offset:64", 'b2')
        e.vmop(f"buffer_load_dwordx2 v[232:233], v234, {srd(SM)}, s{sM0+1} offen", 'b2')

    def try_issue(self, m, force=False, nos=False):
        e = self.e; c = self.c; pool = self.pool
        cls = lambda i: 0 if i < 10 else (1 if i < 14 else 2 if i < 16 else 3)
        for w in self.work:
            kind, k, dl, last = w
            if kind == 'A' and not self.gate[cls(k[0])]: continue
            if kind == 'S' and (nos or dl - m > 16 or self.Border.index(k) in self.Bpend): continue
            if kind != 'S' and not force and dl - m >= 12 and e.t - e.tvm < (c.S2 if dl - m >= c.urg else c.S3): continue
            if kind == 'P':
                self.Bpend.remove(k); self.emit_items(self.B_take([k])[0]); self.work.remove(w); return True
            ok = [p for p in pool if p[1] > last and p not in self.busy and (p[0][0] == 'v' or kind != 'A' or k[0] < 14)]
            if not (kind == 'A' and k[0] >= 14): ok.sort(key=lambda p: p[0][0] == 'v' and m > 150)
            if len(ok) < (1 if dl - m <= 40 else 4 if kind == 'A' else 7): continue
            p = ok[0]; pool.remove(p); loc = p[0]; self.until[loc] = p[1]
            if kind == 'A':
                i, j = k; sr = sAT if i % 2 == 0 else sAT2
                if self.Acur.get(sr) != i:
                    e(f"s_mov_b32 s{sr}, s{sA9}" if self.koff(i) == 36 else f"s_add_u32 s{sr}, s{sA}, {self.koff(i)*4096}"); self.Acur[sr] = i
                e.vmop(f"buffer_load_dwordx4 {R(loc)}, v{236+j}, {srd(SWS)}, s{sB if c.xA and i < 14 else sr} offen sc1", ('A', k)); self.Aloc[k] = loc
                self.Atxt[k] = [f"s_add_u32 s{sT1}, s{sA}, {self.koff(i)*4096}", f"buffer_load_dwordx4 {R(loc)}, v{236+j}, {srd(SWS)}, s{sT1} offen sc1"]
            elif kind == 'B':
                self.emit_items(self.B_items(k, loc)); self.Bl[k] = loc
            else:
                e.wait(vm=('B', k))
                e.lgop(f"ds_read_b128 {R(loc)}, v234 offset:{self.Bl[k][1]*1024}", ('S', k)); self.Bl[k] = loc
            if kind != 'S': self.lastiss = m
            if c.verbose > 1: print(f'{kind}{k}@{m}->{dl}', end=' ')
            self.work.remove(w); return True
        return False

    def phase2(self, hooks):
        e = self.e; c = self.c
        ACC = 16; BI = 96; pool = self.pool; mf = self.mf; Bl = self.Bl; Aloc = self.Aloc
        mtrans = min(m for m, x in enumerate(mf) if x[0] >= 14)
        if c.verbose: print("B loads left for phase 2:", len(self.Bpend))
        for u in self.Bpend:
            k = self.Border[u]; self.work.append(('P', u, self.fB[k] - (20 if self.Bloc[k][0] == 'l' else 0), 0))
        self.work.sort(key=lambda x: x[2])
        e(f"s_add_u32 s{sT0}, s88, {L_BL}\nv_add_u32 v234, s{sT0}, v6")
        pool += [[('v', r), 999] for r in (224, 228)]
        seen = set(); vchk = {280: (14, 15), 320: (16, 17, 18)}
        aq = []
        lastH = {}; firstO = {}; lastO = {}
        for m, (i, t, j) in enumerate(mf):
            if i < 14: lastH[(j, t)] = m
            else: firstO.setdefault((j, t), m); lastO[(j, t)] = m
        g0 = min(lastH.values()) - 10
        aq.append([g0, g0 + 4, ('wvm', 'g')])
        for jj in range(4): aq += [[g0, g0 + 8, ('x', self.tag_strip(241 + jj))]]
        for jj in range(4): aq += [[g0, g0 + 12, ('x', f"v_sub_f32 v{241+jj}, 1.0, v{241+jj}")]]
        for k in sorted(lastH, key=lambda k: lastH[k]):
            jj, tt = k; d = ACC + (jj * 5 + tt) * 4
            for q in range(4): aq.append([lastH[k] + 3, firstO[k] - 2, ('x', f"v_mul_f32 v{d+q}, v{241+jj}, v{d+q}")])
        adr = []
        for jj in range(1, 4):
            adr += [f"s_add_u32 s{sT0}, s{sW}, {jj}", f"s_and_b32 s{sT0}, s{sT0}, 3", f"s_mul_i32 s{sT0}, s{sT0}, 15360",
                    f"s_add_u32 s{sT0}, s{sT0}, {L_RED + (jj-1)*5120}", f"v_add_u32 v{8+jj}, s{sT0}, v6"]
        adr += [l.strip() for l in f"""s_mul_i32 s{sT0}, s{sW}, 15360
        s_add_u32 s{sT0}, s{sT0}, {L_RED}
        v_add_u32 v8, s{sT0}, v6
        s_lshl_b32 s{sT0}, s{sRB}, 2
        s_add_u32 s{sT0}, s{sT0}, s{sW}
        s_mul_i32 s{sT0}, s{sT0}, {16*1280}
        s_add_u32 s{sT3}, s{sT0}, s{sM0+2}
        s_add_u32 s{sT2}, s{sT0}, s{sM0+1}
        v_mul_u32_u24 v12, 1280, v1
        v_lshl_add_u32 v13, v2, 3, v12
        v_lshl_add_u32 v12, v2, 4, v12""".split("\n")]
        for l in adr: aq.append([c.adr0, 325, ('x', l)])
        for k in sorted(lastO, key=lambda k: lastO[k]):
            jj, tt = k
            if jj: aq.append([lastO[k] + 3, 999, ('lg', f"ds_write_b128 v{8+jj}, {vr(ACC+(jj*5+tt)*4)} offset:{tt*1024}", 'rw')])
        self.aq = aq
        for m, (i, t, j) in enumerate(mf):
            self.m = m
            if m == mtrans: self.stamp(7)
            assert (i, j) in Aloc and Bl[(i, t)] and Bl[(i, t)][0] != 'l', (m, i, t, j)
            assert not any(a[1] < m for a in aq), (m, aq[0])
            e.wait(vm=[('A', (i, j)), ('B', (i, t))], lg=('S', (i, t)))
            d = ACC + (j * 5 + t) * 4
            cc = vr(d) if (j, t) in seen else vr(BI + 4 * t); seen.add((j, t))
            e(f"v_mfma_f32_16x16x32_bf16 {vr(d)}, {R(Bl[(i, t)])}, {R(Aloc[(i, j)])}, {cc}")
            k0 = len(e.ins)
            for loc, last in ((Aloc[(i, j)], self.lA[(i, j)]), (Bl[(i, t)], self.lB[(i, t)])):
                if last == m: pool.append([loc, self.until.get(loc, 999) if self.until.get(loc, 999) > m else 999])
            if m == 40: pool.extend([[('v', BI + 4 * k), 999] for k in range(5)])
            if m == c.o1: self.gate[2] = True
            if m == c.o2: self.gate[3] = True
            if m + 1 + c.vlead in vchk:
                mv = m + 1 + c.vlead; ks = [(ii, jj) for ii in vchk[mv] for jj in range(4)]
                assert all(k in Aloc for k in ks), (m, ks)
                vq = [('wvm', [('A', k) for k in ks])] + [('x', l) for l in self.valid_check(sum([self.Atxt[k] for k in ks], []), [Aloc[k][1] + q for k in ks for q in range(4)], 7)]
                if mv == 280: vq = [('st', 12, 1)] + vq + [('st', 13, 1), ('open',)]
                aq[:0] = [[m, mv - 1, it] for it in vq]
            if m in hooks: hooks[m]()
            self.try_issue(m)
            while any(w[2] - m < 4 for w in self.work) and self.try_issue(m): pass
            while True:
                av = [a for a in aq if a[0] <= m]
                if not av: break
                hurry = any(sum(1 for b in aq if b[1] <= a[1]) > 2 * (a[1] - m) for a in aq if a[1] < 999)
                a = min(av, key=lambda a: a[1])
                if len(e.ins) - k0 >= 2 and not hurry: break
                if a[2][0] == 'lg' and any(x.kind in ('dsw', 'dsr', 'vload', 'dma') for x in e.ins[k0:]): break
                aq.remove(a)
                if a[2][0] == 'open':
                    self.gate[3] = True
                    for _ in range(c.burst3): self.try_issue(m, True)
                elif a[2][0] == 'call': a[2][1]()
                else: self.emit_items([a[2]])
        assert not self.work, self.work
        self.stamp(8)
        for a in aq: self.emit_items([a[2]])
        e.wait(lg_all=True); e("s_barrier")
        for t in range(5):
            for s_ in range(3): e.lgop(f"ds_read_b128 {vr(116+(t*3+s_)*4)}, v8 offset:{s_*5120+t*1024}", ('rr', t))
        for t in range(5):
            e.wait(lg=('rr', t)); d = ACC + t * 4; r = 116 + t * 12
            e(f"""v_pk_add_f32 v[{d}:{d+1}], v[{d}:{d+1}], v[{r}:{r+1}]
            v_pk_add_f32 v[{d+2}:{d+3}], v[{d+2}:{d+3}], v[{r+2}:{r+3}]
            v_pk_add_f32 v[{r+4}:{r+5}], v[{r+4}:{r+5}], v[{r+8}:{r+9}]
            v_pk_add_f32 v[{r+6}:{r+7}], v[{r+6}:{r+7}], v[{r+10}:{r+11}]
            v_pk_add_f32 v[{d}:{d+1}], v[{d}:{d+1}], v[{r+4}:{r+5}]
            v_pk_add_f32 v[{d+2}:{d+3}], v[{d+2}:{d+3}], v[{r+6}:{r+7}]
            v_cvt_pk_bf16_f32 v{96+2*t}, v{d}, v{d+1}
            v_cvt_pk_bf16_f32 v{97+2*t}, v{d+2}, v{d+3}""")
            if t == 1: e.vmop(f"buffer_store_dwordx4 v[96:99], v12, {srd(SPK)}, s{sT3} offen {c.osc}", 'o')
            if t == 3: e.vmop(f"buffer_store_dwordx4 v[100:103], v12, {srd(SPK)}, s{sT3} offen offset:64 {c.osc}", 'o')
            if t == 4: e.vmop(f"buffer_store_dwordx2 v[104:105], v13, {srd(SPK)}, s{sT2} offen {c.osc}", 'o')
        self.stamp(9)
        e("s_endpgm")

    def build(self):
        e = self.e
        self.prologue()
        st = (list(e.vm), list(e.lg))
        self.until = {}
        self.prog_KV()
        e.vm, e.lg = list(st[0]), list(st[1])
        self.until = {}
        self.prog_QH()
        e("\n".join(self.tail))
        e("L_end:\ns_endpgm")
        body = e.finish()
        hdr = open('cdna_kernels/' + NAME + '.s.ref').read().split('; Override launch')[0]
        K = NAME + "_kernel"
        out = hdr + "; Generated by a hand-written Python generator (persistent fused kernel; see comments in the generator).\n"
        out += "; @launch grid=(256,1,1) block=(256,1,1) lds=163840\n"
        out += f'.amdgcn_target "amdgcn-amd-amdhsa--gfx950"\n.text\n.globl {K}\n.p2align 8\n.type {K},@function\n{K}:\n' + body
        out += f""".fill 64, 4, 0xbf800000
.section .rodata,"a"
.p2align 6
.amdhsa_kernel {K}
  .amdhsa_next_free_vgpr 512
  .amdhsa_next_free_sgpr 102
  .amdhsa_accum_offset 256
  .amdhsa_group_segment_fixed_size 0
  .amdhsa_kernarg_size 104
  .amdhsa_user_sgpr_count 2
  .amdhsa_user_sgpr_kernarg_segment_ptr 1
  .amdhsa_system_sgpr_workgroup_id_x 1
.end_amdhsa_kernel
"""
        return out

for k_, v_ in dict(rot=0, pks=2, pke=0, f1s=8, bt=0, btsp=20, bgs=30, qleft=0, kpre=180, kord=0, kgb=1, tmask=7, wbl=0, exit_at=-1, only=0, dstamp=0, xsc='', wsc='', psc='nt', pss='sc1', xA=0, S=48, S2=32, urg=50, S3=0, kb3=8, xB=0, mix=0, perm=0, kf1=60, pe=20, pe2=20, dtail=4, qb0=14, qb1=22, se=10, a0=14, ap=4, osc='sc1 nt', touch=1, kvring=3, f1c=24,
                   f4at=40, pa=100, pb=144, p3=90, r1=30, r2=70, rspan=24, kbeg=0, kb1=20, kpa=60, mo=119, p1q=125, c1q=150, Sa=56, kb2=8, kleft=0, Sg=64, o2=226, o1=210, vlead=14, adr0=205, burst3=12, sleep2=3, f4k=8, p1=110, c1=140, burst=4).items():
    setattr(Cfg, k_, v_)

def generate(**kw):
    c = Cfg()
    for k, v in kw.items(): setattr(c, k, v)
    g = Gen(c); t = g.build()
    return t, g

if __name__ == "__main__":
    kw = {}
    for a_ in sys.argv[2:]:
        k, v = a_.split('='); kw[k] = int(v, 0) if v[0].isdigit() else v.replace('+', ' ')
    t, g = generate(**kw)
    open(sys.argv[1], 'w').write(t)
    print("instructions:", len(g.e.ins), "nops added:", g.e.nop_added)
```

```python
import sys, math
from emit import Emit
NAME = "gated_mix__linear_kernel_hedgehog__dense_activation_gelu__prompt"

TAG = 0x0
F1 = 0x1000
F2 = 0x2000; F3 = 0x6000; F4 = 0xa000; F5 = 0x12000
STAMP = 0x1000000
GB = 0x280000
PP = 0x40000; PSZ = 15360
FIN = 0x240000; FSZ = 15360
PB = 0x300000
A2 = 0x600000
OOB = 0x7ff00000

K1 = 1024
QH_ST = 46 * K1; KV_ST = 44 * K1
MISC = 154 * K1
L_WPHI = MISC; L_GATE = MISC + 3200; L_BIASKV = MISC + 4480; L_BIASQH = MISC + 3200
L_PACK = 138 * K1
WH0 = 114 * K1; WH5 = 74 * K1
L_PHI = 0; RSP = 352; L_V = 128 * RSP; RSV = 224
L_BL = 72 * K1
NL = 18
L_RED = 0
L_FIN = 64 * K1

sW = 3
SX, SQ, S1, SWS, SPK, SM = 4, 8, 12, 16, 20, 24
pX, pQKV, pPHI, pWO, pBX, pW1, pB1, pW2, pB2, pGATE, pOUT, pDBG, pWS = [32 + 2 * i for i in range(13)]
sTAG = 58
sMT, sHG, sRB, sNB = 60, 61, 62, 63
sE = 64
sT0, sT1, sT2, sT3, sT4, sT5 = 74, 75, 76, 77, 78, 79
sM0 = 80
sBT, sAT, sB9, sA9, sAT2 = 100, 101, 86, 87, 55
sKW, sK1 = 89, 90
sF1 = 91
sPKD = 92
sA, sB = 96, 97
sC0, sC1 = 98, 99
sP0 = 28

PKA = 200
TB = 10; TBM = (1 << TB) - 1; sTB = 58
AW = 204
def srd(r): return f"s[{r}:{r+3}]"
def vr(r, n=4): return f"v[{r}:{r+n-1}]" if n > 1 else f"v{r}"
def ar(r, n=4): return f"a[{r}:{r+n-1}]"
def R(loc, n=4): return (vr if loc[0] == 'v' else ar)(loc[1], n)
def fl(x):
    import struct
    return hex(struct.unpack('<I', struct.pack('<f', x))[0])

class Cfg:
    rot = 1; map2 = 1; stamps = 0; LA = 12; spin = 200000; codepf = 1; lag = 2; th1 = 2; th2 = 4; minlead = 4; verbose = 0; sleep = 3

sKA, sKB = 0, 1
def mk_srd(e, r, p, nbytes):
    e(f"s_mov_b32 s{r}, s{p}\ns_and_b32 s{r+1}, s{p+1}, 0xffff\ns_mov_b32 s{r+2}, {nbytes}\ns_mov_b32 s{r+3}, 0x20000")

class Gen:
    def __init__(self, cfg):
        self.c = cfg; self.e = Emit(); self.tail = []; self.uid = 0; self.nstamp = 0
    def record(self, fn):
        real = self.e
        class Rec:
            def __init__(r): r.items = []; r.lg = []; r.vm = []
            def __call__(r, t):
                for l in t.strip("\n").split("\n"):
                    if l.strip(): r.items.append(('x', l.strip()))
            def vmop(r, t, tag=None): r.items.append(('vm', t, tag))
            def lgop(r, t, tag=None): r.items.append(('lg', t, tag))
        rec = Rec(); self.e = rec
        try: fn()
        finally: self.e = real
        return rec.items
    def lab(self, p):
        self.uid += 1; return f"L_{p}_{self.uid}"
    def stamp(self, i, grp=1):
        if self.c.dstamp and grp == 1:
            slot = self.dmap.get(i)
            if slot is None: return
            e = self.e
            e(f"s_memrealtime s[{sC0}:{sC1}]\ns_load_dwordx2 s[46:47], s[40:41], 88\ns_waitcnt lgkmcnt(0)\nv_mov_b32 v14, s{sC0}\nv_mov_b32 v15, 0"); e.lg = []
            e("s_cmp_eq_u32 s3, 0\ns_cselect_b64 exec, 1, 0")
            L = self.lab('ds'); e(f"s_cbranch_execz {L}")
            e(f"global_atomic_umax v15, v14, s[46:47] offset:{slot*4}")
            if i == 0: e(f"v_mov_b32 v14, s54\nglobal_atomic_umax v15, v14, s[46:47] offset:4\nv_not_b32 v14, v14\nglobal_atomic_umax v15, v14, s[46:47] offset:0")
            e(f"{L}:\ns_mov_b64 exec, -1")
            return
        if not self.c.stamps or (i and self.c.stamps != grp): return
        if self.c.only and i not in (0, self.c.only): return
        e = self.e
        e(f"s_memrealtime s[{sC0}:{sC1}]\ns_memtime s[46:47]\ns_waitcnt lgkmcnt(0)"); e.lg = []
        e(f"v_mov_b32 v14, s{sC0}\nv_mov_b32 v15, s46")
        e(f"s_lshl_b32 s{sC0}, s2, 2\ns_add_u32 s{sC0}, s{sC0}, s{sW}\ns_lshl_b32 s{sC0}, s{sC0}, 7\ns_add_u32 s{sC0}, s{sC0}, {STAMP}")
        e.vmop(f"buffer_store_dwordx2 v[14:15], v245, {srd(SWS)}, s{sC0} offen offset:{i*8} sc1", 'stamp')
        if self.c.exit_at == i and grp == 1: e("s_endpgm")
        if i == 0:
            e(f"v_mov_b32 v14, s54\nv_mov_b32 v15, s40")
            e.vmop(f"buffer_store_dwordx2 v[14:15], v245, {srd(SWS)}, s{sC0} offen offset:{15*8} sc1", 'stamp')

    def dump(self, name, regs):
        if getattr(self.c, 'dbg', None) != name: return
        e = self.e
        e(f"s_lshl_b32 s{sBT}, s2, 2\ns_add_u32 s{sBT}, s{sBT}, s{sW}\ns_lshl_b32 s{sBT}, s{sBT}, 14\ns_add_u32 s{sBT}, s{sBT}, 0x2000000\nv_lshlrev_b32 v7, 2, v0")
        for i, r in enumerate(regs):
            e.vmop(f"buffer_store_dword v{r}, v7, {srd(SWS)}, s{sBT} offen offset:{(i%16)*256}", 'dbg')
            if i % 16 == 15: e(f"s_add_u32 s{sBT}, s{sBT}, 4096")
        e.wait(vm='dbg'); self.Bcur = None

    def poll_issue(self, vaddr, vdst, n, tag, soff="0"):
        suf = {2: 'dwordx2', 4: 'dwordx4'}[n]
        return f"buffer_load_{suf} {vr(vdst, n)}, v{vaddr}, {srd(SWS)}, {soff} offen sc1"
    def poll_check(self, loads):
        Ls, Lb = self.lab('slow'), self.lab('back')
        cmps = []; ors = []; k = 0
        prs = ['vcc', 's[28:29]', 's[30:31]', 's[46:47]']
        for (va, vd, n, so) in loads:
            for h in range(n // 2):
                cmps.append(f"v_cmp_ne_u64 {prs[k]}, s[{sTAG}:{sTAG+1}], v[{vd+2*h}:{vd+2*h+1}]")
                if k: ors.append(f"s_or_b64 vcc, vcc, {prs[k]}")
                k += 1
        cmps = cmps[::-1] if False else cmps
        fast = cmps + ors + [f"s_cbranch_vccnz {Ls}\n{Lb}:"]
        t = [f"{Ls}:", f"s_mov_b32 s54, {self.c.spin}", f"{Ls}_l:"]
        if self.c.sleep: t.append(f"s_sleep {self.c.sleep}")
        for (va, vd, n, so) in loads: t.append(self.poll_issue(va, vd, n, None, so))
        t += ["s_waitcnt vmcnt(0)"] + cmps + ors
        t += ["s_sub_u32 s54, s54, 1", f"s_cbranch_vccz {Ls}_x", "s_cmp_lg_u32 s54, 0", f"s_cbranch_scc1 {Ls}_l", f"{Ls}_x:", "s_nop 4", f"s_branch {Lb}"]
        self.tail += t
        return fast
    def tag_check(self, reload, regs, acc):
        Ls, Lb = self.lab('slow'), self.lab('back')
        regs = list(regs); L = [f"v_xor_b32 v{acc}, s{sTB}, v{regs[0]}"]
        for r in regs[1:]: L.append(f"v_bitop3_b32 v{acc}, v{r}, s{sTB}, v{acc} bitop3:0xbe")
        L += [f"v_and_b32 v{acc}, {TBM}, v{acc}", f"v_cmp_ne_u32 vcc, 0, v{acc}"]
        t = [f"{Ls}:", f"s_mov_b32 s54, {self.c.spin}", f"{Ls}_l:"]
        if self.c.sleep: t.append(f"s_sleep {self.c.sleep2}")
        t += list(reload) + ["s_waitcnt vmcnt(0)"] + L
        t += ["s_sub_u32 s54, s54, 1", f"s_cbranch_vccz {Ls}_x", "s_cmp_lg_u32 s54, 0", f"s_cbranch_scc1 {Ls}_l", f"{Ls}_x:", "s_nop 4", f"s_branch {Lb}"]
        self.tail += t
        return L + [f"s_cbranch_vccnz {Ls}\n{Lb}:"]
    def tag_put(self, r, src=None): return f"v_bfi_b32 v{r}, s42, v246, v{r if src is None else src}"
    def tag_strip(self, r): return f"v_and_b32 v{r}, {hex(0xffffffff ^ TBM)}, v{r}"
    def valid_check(self, reload, regs, acc):
        Ls, Lb = self.lab('slow'), self.lab('back')
        regs = list(regs); L = [f"v_max3_u32 v{acc}, v{regs[0]}, v{regs[1]}, v{regs[2 if len(regs) > 2 else 1]}"]
        r = regs[3:]
        for i in range(0, len(r), 2): L.append(f"v_max3_u32 v{acc}, v{acc}, v{r[i]}, v{r[min(i+1, len(r)-1)]}")
        L.append(f"v_cmp_eq_u32 vcc, -1, v{acc}")
        t = [f"{Ls}:", f"s_mov_b32 s54, {self.c.spin}", f"{Ls}_l:"]
        if self.c.sleep: t.append(f"s_sleep {self.c.sleep2}")
        t += list(reload) + ["s_waitcnt vmcnt(0)"] + L
        t += ["s_sub_u32 s54, s54, 1", f"s_cbranch_vccz {Ls}_x", "s_cmp_lg_u32 s54, 0", f"s_cbranch_scc1 {Ls}_l", f"{Ls}_x:", "s_nop 4", f"s_branch {Lb}"]
        self.tail += t
        return L + [f"s_cbranch_vccnz {Ls}\n{Lb}:"]
    def flag_store(self, vaddr, vtag, soff="0"):
        return f"buffer_store_dwordx2 {vr(vtag, 2)}, v{vaddr}, {srd(SWS)}, {soff} offen sc1"

    def stream(self, mf, reads, fill, syncs=None, LA=None, name='', bg=None):
        e = self.e; LA = LA or self.c.LA
        reads = sorted(reads, key=lambda r: r[1]); rp = 0; synced = -1 if syncs else 99
        fq = sorted(fill, key=lambda f: f['at'])
        self.sid = getattr(self, 'sid', 0) + 1; sid = self.sid
        start = len(e.ins)
        def add_fill(items):
            lo = max([f['at'] for f in fq if f.get('chain')], default=-99)
            for f in items:
                if f.get('chain'): f['at'] = lo = max(f['at'], lo)
            fq.extend(items); fq.sort(key=lambda f: f['at'])
        def rd():
            nonlocal rp
            e.lgop(reads[rp][0], ('rd', sid, rp)); rp += 1
        if syncs: add_fill(syncs[0](0)); synced = 0
        while rp < len(reads) and reads[rp][1] < 8 and reads[rp][2] <= synced: rd()
        last_read = -99
        dl_of = {('rd', sid, i): r[1] for i, r in enumerate(reads)}
        def due(m): return [t for t in e.lg if t in dl_of and dl_of[t] <= m]
        ismem = lambda it: it[0] in ('vm', 'lg')
        for m in range(len(mf)):
            d = due(m)
            if d: e.wait(lg=d)
            e(mf[m])
            can = lambda: rp < len(reads) and reads[rp][2] <= synced and reads[rp][3] <= m and len(e.lg) < 15
            lead = lambda: reads[rp][1] - m
            if syncs and rp < len(reads) and reads[rp][2] > synced and m - last_read >= self.c.lag and lead() <= LA:
                synced = reads[rp][2]
                assert not any(it[0] == 'vm' and it[2] == ('S', synced) for f in fq for it in f['ins'])
                add_fill(syncs[synced](m + 1))
                if can(): rd(); last_read = m
                continue
            w = 1 if due(m + 1) else 0
            n = w; mem = 0
            if fq and fq[0]['at'] <= m:
                f = fq[0]
                if f.get('atomic'):
                    self.emit_items(f['ins']); n += len(f['ins']); mem += sum(map(ismem, f['ins'])); fq.pop(0)
                elif ismem(f['ins'][0]):
                    self.emit_items([f['ins'].pop(0)]); n += 1; mem += 1
                    if not f['ins']: fq.pop(0)
            if bg and mem == 0:
                k0 = len(e.ins)
                if self.bg_try(bg(m)): n += len(e.ins) - k0; mem += 1
            if can() and lead() <= LA and (mem == 0 or (lead() <= LA - self.c.th1 and not w)):
                rd(); n += 1; mem += 1; last_read = m
            if can() and mem == 1 and not w and lead() <= LA - self.c.th2:
                rd(); n += 1; mem += 1
            while can() and lead() <= self.c.minlead: rd(); n += 1; mem += 1; last_read = m
            while (n < 2 or (fq and fq[0]['at'] <= m - 2 and n < 3)) and fq and fq[0]['at'] <= m + 2 and not fq[0].get('atomic') and not ismem(fq[0]['ins'][0]):
                f = fq[0]; self.emit_items([f['ins'].pop(0)]); n += 1
                if not f['ins']: fq.pop(0)
            assert rp >= len(reads) or reads[rp][1] > m + 1, (m, reads[rp])
        for f in fq: self.emit_items(f['ins'])
        if self.c.verbose:
            tot = 0; g = None
            for i in e.ins[start:]:
                if i.label: continue
                if i.kind == 'mfma':
                    if g is not None: tot += max(16, g)
                    g = 8; prevmem = False
                elif g is not None:
                    mm = i.kind in ('dsr', 'dsw', 'vload', 'vstore', 'dma')
                    g += 8 if (mm and prevmem) else 4; prevmem = mm
            print(f"stream {name}: {len(mf)} mfma, est clks {tot} (ideal {16*len(mf)})")

    def prologue(self):
        e = self.e; c = self.c
        if c.stamps or c.dstamp: e("s_memrealtime s[54:55]\ns_memtime s[98:99]")
        e(f"""s_cmp_ge_u32 s2, 256
        s_cbranch_scc1 L_end
        s_load_dwordx16 s[32:47], s[0:1], 0
        s_load_dwordx4 s[48:51], s[0:1], 64
        s_load_dwordx2 s[52:53], s[0:1], 80
        s_load_dwordx2 s[56:57], s[0:1], 96""")
        if c.codepf:
            e(f"""s_getpc_b64 s[{sA}:{sB}]
            L_pf:
            s_lshr_b32 s{sT0}, s2, 3
            s_lshl_b32 s{sT0}, s{sT0}, 11
            v_lshrrev_b32 v1, 4, v0
            v_lshlrev_b32 v1, 7, v1
            v_add_u32 v1, s{sT0}, v1
            v_cmp_gt_u32 vcc, L_end-L_pf, v1
            v_cndmask_b32 v1, 0, v1, vcc""")
            e.vmop(f"global_load_dword v255, v1, s[{sA}:{sB}]", 'pf')
        e(f"""v_lshrrev_b32 v1, 6, v0
        v_and_b32 v0, 63, v0
        s_and_b32 s{sT0}, s2, 7
        v_readfirstlane_b32 s{sW}, v1
        s_lshr_b32 s{sT1}, s2, 3
        s_lshr_b32 s{sT2}, s{sT0}, 1
        s_and_b32 s{sT3}, s{sT1}, 3
        s_lshl_b32 s{sMT}, s{sT2}, 2
        s_add_u32 s{sMT}, s{sMT}, s{sT3}
        s_lshr_b32 s{sT4}, s{sT1}, 2
        s_and_b32 s{sHG}, s{sT0}, 1
        s_lshl_b32 s{sHG}, s{sHG}, 2
        s_and_b32 s{sT5}, s{sT4}, 3
        s_add_u32 s{sHG}, s{sHG}, s{sT5}""")
        if c.rot == 2:
            e(f"""s_mul_i32 s{sE}, s{sT2}, 5
            s_lshr_b32 s{sE}, s{sE}, 1
            s_and_b32 s{sT5}, s{sT0}, 1
            s_mul_i32 s{sT5}, s{sT5}, 5
            s_add_u32 s{sE}, s{sE}, s{sT5}
            s_cmp_ge_u32 s{sE}, 10
            s_cselect_b32 s{sT5}, 10, 0
            s_sub_u32 s{sE}, s{sE}, s{sT5}
            s_lshl_b32 s{sE}, s{sE}, 7""")
        else: e(f"s_mov_b32 s{sE}, 0")
        if c.mix: e(f"s_lshr_b32 s{sT5}, s{sT1}, 2\ns_and_b32 s{sT5}, s{sT5}, 4\ns_xor_b32 s{sT5}, s{sT5}, s{sT1}" if c.map2 else
                    f"s_lshr_b32 s{sT5}, s{sT1}, 4\ns_xor_b32 s{sT5}, s{sT5}, s{sT1}")
        if c.map2:
            if c.mix: e(f"s_and_b32 s{sRB}, s{sT5}, 7\ns_bfe_u32 s{sT5}, s{sT1}, 0x20002")
            else: e(f"s_and_b32 s{sRB}, s{sT1}, 7\ns_lshr_b32 s{sT5}, s{sT1}, 3")
            e(f"""s_lshl_b32 s{sT2}, s{sT2}, 3
            s_add_u32 s{sRB}, s{sRB}, s{sT2}
            s_and_b32 s{sNB}, s{sT0}, 1
            s_lshl_b32 s{sNB}, s{sNB}, 2
            s_add_u32 s{sNB}, s{sNB}, s{sT5}""")
        else:
            if c.mix: e(f"s_bfe_u32 s{sNB}, s{sT1}, 0x30001\ns_and_b32 s{sT3}, s{sT5}, 1\ns_lshr_b32 s{sT5}, s{sT1}, 4\ns_bfe_u32 s{sT4}, s{sT1}, 0x10001\ns_xor_b32 s{sT5}, s{sT5}, s{sT4}\ns_and_b32 s{sT3}, s{sT1}, 1\ns_lshl_b32 s{sT5}, s{sT5}, 1\ns_add_u32 s{sT3}, s{sT3}, s{sT5}")
            else: e(f"s_mov_b32 s{sNB}, s{sT4}")
            e(f"s_lshl_b32 s{sRB}, s{sT0}, 2\ns_add_u32 s{sRB}, s{sRB}, s{sT3}")
        e(f"""v_and_b32 v1, 15, v0
        v_lshrrev_b32 v2, 4, v0
        v_bfe_u32 v3, v0, 2, 2
        v_and_b32 v4, 3, v0
        v_lshrrev_b32 v5, 3, v0
        v_lshlrev_b32 v6, 4, v0
        s_lshl_b32 s{sT2}, s{sMT}, 2
        s_add_u32 s{sT2}, s{sT2}, s{sW}
        s_mul_i32 s{sT2}, s{sT2}, {32*1280}
        v_xor_b32 v7, v2, v0
        v_and_b32 v7, 7, v7
        v_lshlrev_b32 v7, 4, v7
        v_mul_u32_u24 v8, 1280, v5
        v_add_u32 v8, s{sT2}, v8
        v_add_u32 v208, v8, v7
        v_xor_b32 v7, 64, v7
        v_add_u32 v209, v8, v7
        v_add_u32 v209, {10240-1024}, v209
        v_add_u32 v210, {2*(10240-1024)}, v208
        v_add_u32 v211, {2*(10240-1024)}, v209
        s_lshl_b32 s{sM0}, s{sW}, 12
        s_add_u32 s{sE+1}, s{sE}, 128
        s_cmp_eq_u32 s{sE+1}, 1280
        s_cselect_b32 s{sE+1}, 0, s{sE+1}""")
        for r, n in ((SX, 2048 * 1280), (SQ, 640 * 3840), (S1, 640 * 3456), (SM, 3456)): e(f"s_mov_b32 s{r+2}, {n}\ns_mov_b32 s{r+3}, 0x20000")
        e(f"s_bitcmp1_b32 s2, 7\ns_cbranch_scc1 L_QH")

    def kernarg_wait(self):
        e = self.e
        e(f"s_waitcnt lgkmcnt(0)\ns_load_dwordx2 s[{sTAG}:{sTAG+1}], s[{pWS}:{pWS+1}], {TAG}")
        if self.c.stamps: e('s_mov_b32 s40, s98')
        if self.c.dstamp: e('s_mov_b64 s[40:41], s[0:1]')
        for r, p in ((SX, pX), (SM, pB1), (SQ, pQKV), (S1, pW1)): e(f"s_mov_b32 s{r}, s{p}\ns_and_b32 s{r+1}, s{p+1}, 0xffff")

    def pack_setup(self):
        e = self.e
        e(f"""s_lshl_b32 s{sT0}, s2, 2
        s_add_u32 s{sT0}, s{sT0}, s{sW}
        s_mul_i32 s{sT1}, s{sT0}, 6554
        s_lshr_b32 s{sT1}, s{sT1}, 16
        s_mul_i32 s{sT2}, s{sT1}, 10
        s_sub_u32 s{sT2}, s{sT0}, s{sT2}
        s_sub_u32 s{sT3}, s{sT1}, 54
        s_and_b32 s{sT3}, s{sT3}, 63
        s_mul_i32 s{sT4}, s{sT3}, 52
        s_lshr_b32 s{sT4}, s{sT4}, 8
        s_mul_i32 s{sT5}, s{sT4}, 5
        s_sub_u32 s{sT5}, s{sT3}, s{sT5}
        s_mul_i32 s{sBT}, s{sT4}, 160
        s_lshr_b32 s{sAT}, s{sT5}, 1
        s_mul_i32 s{sAT}, s{sAT}, 80
        s_and_b32 s{sT3}, s{sT5}, 1
        s_lshl_b32 s{sT3}, s{sT3}, 3
        s_add_u32 s{sAT}, s{sAT}, s{sT3}
        s_cmp_eq_u32 s{sT5}, 4
        s_cselect_b32 s{sAT}, 16, s{sAT}
        s_cselect_b32 s{sT3}, 80, 4
        s_add_u32 s{sBT}, s{sBT}, s{sAT}
        s_lshl_b32 s{sAT}, s{sT1}, 5
        s_cmp_lt_u32 s{sT1}, 54
        s_cselect_b32 s{sBT}, s{sAT}, s{sBT}
        s_cselect_b32 s{sT3}, 16, s{sT3}""")
        self.csel(sT4, 4 * 1280 - 1024, 20 * 1280 - 1024)
        self.csel(SPK + 2, 1728 * 1280, 640 * 1280)
        e(f"""s_mov_b32 s{SPK+3}, 0x20000
        s_cmp_lt_u32 s{sT0}, 740
        s_cselect_b32 s{SPK+2}, s{SPK+2}, 0
        s_mul_i32 s{sBT}, s{sBT}, 1280
        s_lshl_b32 s{sAT}, s{sT2}, 7
        s_add_u32 s32, s{sBT}, s{sAT}
        s_add_u32 s33, s32, s{sT4}
        s_add_u32 s34, s33, s{sT4}
        s_add_u32 s35, s34, s{sT4}
        v_lshrrev_b32 v9, 5, v0
        v_mul_lo_u32 v9, v9, s{sT3}
        v_and_b32 v10, 3, v5
        v_add_u32 v9, v9, v10
        v_mul_u32_u24 v9, 1280, v9
        v_and_b32 v10, 7, v0
        v_lshl_add_u32 v252, v10, 4, v9
        v_lshlrev_b32 v9, 10, v2
        v_lshl_add_u32 v9, v3, 7, v9
        v_add_u32 v9, s{sM0}, v9
        v_add_u32 v9, {L_PACK}, v9""")
        for g in range(2):
            e(f"""s_lshl_b32 s{sT3}, s{sT2}, 1
            s_add_u32 s{sT3}, s{sT3}, {g}
            s_mul_i32 s{sT4}, s{sT3}, 52
            s_lshr_b32 s{sT4}, s{sT4}, 8
            s_mul_i32 s{sT5}, s{sT4}, 5
            s_sub_u32 s{sT5}, s{sT3}, s{sT5}
            s_cmp_eq_u32 s{sT5}, 2
            s_cselect_b32 s{sT3}, 3, 4
            s_cselect_b32 s{sAT}, 32, 8
            v_lshlrev_b32 v10, s{sT3}, v4
            v_add_u32 v{PKA+2*g}, v9, v10
            v_add_u32 v{PKA+1+2*g}, s{sAT}, v{PKA+2*g}
            s_mul_i32 s{sT4}, s{sT4}, 740
            s_mul_i32 s{sAT}, s{sT1}, 5
            s_add_u32 s{sT4}, s{sT4}, s{sAT}""")
            for a_ in range(2):
                d = sPKD + 2 * g + a_
                e(f"""s_lshl_b32 s{sT3}, s{sT5}, 1
                s_add_u32 s{sT3}, s{sT3}, {a_}
                s_add_u32 s{d}, s{sT3}, 364
                s_cmp_eq_u32 s{sT3}, 5
                s_cselect_b32 s{d}, 374, s{d}
                s_cmp_lt_u32 s{sT3}, 5
                s_cselect_b32 s{d}, s{sT3}, s{d}
                s_add_u32 s{d}, s{d}, s{sT4}
                s_lshl_b32 s{d}, s{d}, 10
                s_add_u32 s{d}, s{d}, {PB}
                s_cmp_lt_u32 s{sT0}, 740
                s_cselect_b32 s{d}, s{d}, {OOB}""")
        e(f"""s_cmp_lt_u32 s{sT1}, 54
        s_cselect_b32 s{SPK}, s{pW2}, s{pWO}
        s_cselect_b32 s{SPK+1}, s{pW2+1}, s{pWO+1}
        s_and_b32 s{SPK+1}, s{SPK+1}, 0xffff""")

    def common_setup(self):
        e = self.e
        mk_srd(e, SWS, pWS, 0x10000000); mk_srd(e, SM, pPHI, 32 * 800)
        e(f"""s_lshl_b32 s{sT3}, s{sHG}, 2
        s_add_u32 s{sT3}, s{sT3}, s{sW}
        s_mul_i32 s36, s{sT3}, 800
        s_mul_i32 s37, s{sW}, 800
        s_add_u32 s37, s37, {L_WPHI}""")
        for i in range(2, 10):
            e(f"s_add_u32 s{sE+i}, s{sE+i-1}, 128\ns_cmp_eq_u32 s{sE+i}, 1280\ns_cselect_b32 s{sE+i}, 0, s{sE+i}")
        e(f"""s_mul_i32 s{sB}, s{sNB}, 74
        s_add_u32 s{sB}, s{sB}, s{sW}
        s_mul_i32 s{sB}, s{sB}, 5120
        s_add_u32 s{sB}, s{sB}, {PB}
        s_mul_i32 s{sA}, s{sRB}, 74
        s_add_u32 s{sA}, s{sA}, s{sW}
        s_lshl_b32 s{sA}, s{sA}, 12
        s_add_u32 s{sA}, s{sA}, {A2}
        s_add_u32 s{sB9}, s{sB}, {36*5120}
        s_add_u32 s{sA9}, s{sA}, {36*4096}
        s_cmp_lt_u32 s{sW}, 2
        s_cselect_b32 s{sB9}, s{sB9}, {OOB}
        s_cselect_b32 s{sA9}, s{sA9}, {OOB}
        s_mul_i32 s88, s{sW}, {NL*1024}
        v_add_u32 v240, 4096, v6""")
        for j in range(4):
            e(f"s_add_u32 s{sT3}, s{sW}, {j}\ns_and_b32 s{sT3}, s{sT3}, 3\ns_lshl_b32 s{sT3}, s{sT3}, 10\nv_add_u32 v{236+j}, s{sT3}, v6")
        e(f"""s_lshl_b32 s{sF1}, s2, 3
        s_add_u32 s{sF1}, s{sF1}, {F1}
        s_cmp_eq_u32 s{sW}, 0
        s_cselect_b32 s{sF1}, s{sF1}, {OOB}
        v_mov_b32 v245, {OOB}
        v_cmp_eq_u32 vcc, 0, v0
        v_cndmask_b32 v245, v245, 0, vcc""")

    def touch(self):
        e = self.e; c = self.c
        e(f"""s_cmp_eq_u32 s{sW}, 0
        s_cselect_b64 s[28:29], s[{SX}:{SX+1}], s[{S1}:{S1+1}]
        s_cselect_b32 s30, s{SX+2}, s{S1+2}
        s_cselect_b32 s{sT0}, 12, 0
        s_add_u32 s{sT0}, s{sT0}, 68
        s_cmp_eq_u32 s{sW}, 1
        s_cselect_b64 s[28:29], s[{SQ}:{SQ+1}], s[28:29]
        s_cselect_b32 s30, s{SQ+2}, s30
        s_cselect_b32 s{sT0}, 75, s{sT0}
        s_lshl_b32 s{sT1}, 1, s{sW}
        s_and_b32 s{sT1}, s{sT1}, {c.tmask}
        s_cselect_b32 s30, s30, 0
        s_mov_b32 s31, 0x20000
        s_mul_i32 s{sT1}, s{sT0}, s2
        s_lshl_b32 s{sT1}, s{sT1}, 7
        v_lshlrev_b32 v10, 7, v0
        v_add_u32 v11, 64, v0
        v_cmp_gt_u32 vcc, s{sT0}, v11
        v_lshlrev_b32 v11, 7, v11
        v_mov_b32 v14, {OOB}
        v_cndmask_b32 v11, v14, v11, vcc""")
        e.vmop(f"buffer_load_dword v255, v10, s[28:31], s{sT1} offen", 'pf')
        e.vmop(f"buffer_load_dword v255, v11, s[28:31], s{sT1} offen", 'pf')

    def tlb_touch(self):
        e = self.e; c = self.c
        if not c.tlb: return
        if c.tlb == 1:
            e(f"v_lshlrev_b32 v10, 18, v0\nv_add_u32 v10, 0x1f800, v10")
            e.vmop(f"buffer_load_dword v255, v10, {srd(SWS)}, 0 offen sc1", 'pf')
        else:
            e(f"""s_mul_i32 s{sT0}, s{sNB}, {74*5120}
            s_add_u32 s{sT0}, s{sT0}, {PB}
            s_mul_i32 s{sT1}, s{sRB}, {74*4096}
            s_add_u32 s{sT1}, s{sT1}, {A2 - 8*65536}
            s_mul_i32 s{sT3}, s{sMT}, {2*74*4096}
            s_add_u32 s{sT3}, s{sT3}, {A2 - 16*65536}
            v_lshlrev_b32 v10, 16, v0
            v_mov_b32 v11, s{sT0}
            v_mov_b32 v14, s{sT1}
            v_cmp_le_u32 vcc, 8, v0
            v_cndmask_b32 v11, v11, v14, vcc
            v_mov_b32 v14, s{sT3}
            v_cmp_le_u32 vcc, 16, v0
            v_cndmask_b32 v11, v11, v14, vcc
            v_add_u32 v11, v11, v10
            v_subrev_u32 v14, 32, v0
            v_mul_u32_u24 v14, 0x18000, v14
            v_cmp_le_u32 vcc, 32, v0
            v_cndmask_b32 v10, v11, v14, vcc""")
            e.vmop(f"buffer_load_dword v255, v10, {srd(SWS)}, 0 offen sc1", 'pf')
        mk_srd(e, 28, pOUT, 2048 * 1280)
        e("v_lshlrev_b32 v10, 16, v0")
        e.vmop("buffer_load_dword v255, v10, s[28:31], 0 offen sc1", 'pf')
        if c.tlb2:
            for p, n in ((pB2, 1280),):
                mk_srd(e, 28, p, n); e.vmop("buffer_load_dword v255, v6, s[28:31], 0 offen", 'pf')

    def tag_wait(self):
        e = self.e
        e(f"""s_waitcnt lgkmcnt(0)
        s_add_u32 s{sTAG}, s{sTAG}, 1
        v_mov_b32 v247, s{sTAG+1}
        v_mov_b32 v246, s{sTAG}
        s_mov_b32 s43, {OOB}
        s_movk_i32 s42, {TBM}""")
        e.lg = []
    def pack_loads(self):
        return [([('x', f"s_add_u32 m0, s{sM0}, {L_PACK}")] if i == 0 else []) +
                [('vm', f"buffer_load_dwordx4 v252, {srd(SPK)}, s{32+i} offen offset:{i*1024} {self.c.psc} lds", 'packld')] for i in range(4)]
    def pack_fill(self, m, nm):
        f = []
        for i in range(8):
            t, h = i >> 1, i & 1
            f.append(dict(at=m + 2 + 2 * i, ins=[('lg', f"ds_read_b64_tr_b16 a[{160+4*t+2*h}:{161+4*t+2*h}], v{PKA+t} offset:{(t>>1)*64+512*h}", 'pk')]))
        return f
    def wb_item(self):
        return [[('wvm', 'pkst'), ('vm', "buffer_wbl2 sc1", 'pkst')]] if self.c.wbl else []
    def pack_stores(self):
        return [([('wlg', 'pk')] if i == 0 else []) + [('vm', f"buffer_store_dwordx4 {ar(160+4*i)}, v6, {srd(SWS)}, s{sPKD+i} offen {self.c.pss}", 'pkst')] for i in range(4)]

    def btouch(self):
        pre = [l.strip() for l in f"""s_and_b32 s{sT0}, s{sRB}, 7
        s_lshl_b32 s{sT0}, s{sT0}, 2
        s_add_u32 s{sT0}, s{sT0}, s{sW}
        s_mul_i32 s{sT0}, s{sT0}, {93*128}
        s_mul_i32 s{sT1}, s{sNB}, {74*5120}
        s_add_u32 s{sT0}, s{sT0}, s{sT1}
        s_add_u32 s{sT0}, s{sT0}, {PB}
        v_lshlrev_b32 v248, 7, v0
        v_min_u32 v249, 28, v0
        v_lshlrev_b32 v249, 7, v249""".split("\n")]
        n = self.c.bt
        out = [[('x', l) for l in pre]]
        if n == 1:
            out[0] += [('vm', f"buffer_load_dword v255, v248, {srd(SWS)}, s{sT0} offen sc1", 'pf')]
            out.append([('x', f"s_add_u32 s{sT0}, s{sT0}, 8192"), ('vm', f"buffer_load_dword v255, v249, {srd(SWS)}, s{sT0} offen sc1", 'pf')])
        else:
            out[0] += [('x', "v_min_u32 v249, 23, v0"), ('x', "v_lshlrev_b32 v249, 7, v249")]
            for i in range(4): out.append([('vm', f"buffer_load_dword v255, v249, {srd(SWS)}, s{sT0} offen offset:0 sc1", 'pf'), ('x', f"s_add_u32 s{sT0}, s{sT0}, 3072")])
        return out
    def f1_issue(self):
        return [[('x', f"s_mov_b32 s{sT0}, {F1}"), ('x', "v_add_u32 v235, 1024, v6"), ('vm', self.poll_issue(6, 248, 4, None, f"s{sT0}"), 'f1p')],
                [('vm', self.poll_issue(235, 252, 4, None, f"s{sT0}"), 'f1p')]]
    def f1_check(self):
        chk = self.poll_check([(6, 248, 4, f"s{sT0}"), (235, 252, 4, f"s{sT0}")])
        return [('wvm', 'f1p')] + [('x', t) for t in chk] + [('x', f"s_or_b32 s{sT1}, s2, s{sW}"),
                ('x', f"s_cmp_eq_u32 s{sT1}, 0\ns_cselect_b32 s{sT1}, {TAG}, {OOB}"), ('vm', self.flag_store(245, 246, f"s{sT1}"), 'tagst')]

    def attn_voff(self, dst, cexpr_base, colbase_s):
        e = self.e
        e(f"""v_mul_u32_u24 v10, 6554, v9
        v_lshrrev_b32 v10, 16, v10
        v_mad_i32_i24 v11, v10, -10, v9""")
        self.swap23(10, 12)
        e(f"""v_mul_u32_u24 v10, 3840, v10
        v_lshl_add_u32 v10, v11, 4, v10
        v_add_u32 v{dst}, s{colbase_s}, v10""")
    def swap23(self, r, t):
        self.e(f"""v_lshrrev_b32 v{t}, 1, v{r}
        v_xor_b32 v{t}, v{t}, v{r}
        v_and_b32 v{t}, 4, v{t}
        v_mul_u32_u24 v{t}, 3, v{t}
        v_xor_b32 v{r}, v{r}, v{t}""")

    def small_dma(self, sr, vaddr, soff, ldsaddr, nlanes, tag, m0expr=None):
        e = self.e
        e(m0expr or f"s_mov_b32 m0, {ldsaddr}")
        if nlanes < 64: e(f"s_mov_b64 exec, {hex((1 << nlanes) - 1)}" if nlanes <= 32 else f"s_mov_b32 exec_hi, {hex((1 << (nlanes-32)) - 1)}")
        e.vmop(f"buffer_load_dwordx4 v{vaddr}, {srd(sr)}, {soff} offen lds", tag)
        if nlanes < 64: e("s_mov_b64 exec, -1")

    def csel(self, d, a, b):
        inl = lambda x: isinstance(x, str) or -16 <= x <= 64
        if inl(a) or inl(b): self.e(f"s_cselect_b32 s{d}, {a}, {b}")
        else: self.e(f"s_mov_b32 s{d}, {b}\ns_cselect_b32 s{d}, {a}, s{d}")

    def init_B(self):
        self.Bloc = {}; self.Bq = []
        order = [(i, t) for i in range(19) for t in range(5)]
        for u, k in enumerate(order):
            if u < 64: self.Bloc[k] = ('a', 4 * u)
            elif u < 64 + NL: self.Bloc[k] = ('l', u - 64)
            else: self.Bloc[k] = None
        self.Border = order; self.Bpend = list(range(64 + NL)); self.Bcur = None; self.Acur = None
    def koff(self, i): return 4 * i - (2 if i >= 10 else 0)
    def B_items(self, k, loc):
        i, t = k; it = []
        if self.Bcur != i:
            it.append(('x', f"s_mov_b32 s{sBT}, s{sB9}" if self.koff(i) == 36 else f"s_add_u32 s{sBT}, s{sB}, {self.koff(i)*5120}")); self.Bcur = i
        va, imm = (6, t * 1024) if t < 4 else (240, 0)
        if loc[0] == 'l':
            assert L_BL + loc[1]*1024 - imm >= 0
            it.append(('x', f"s_add_u32 m0, s88, {L_BL + loc[1]*1024 - imm}"))
            it.append(('vm', f"buffer_load_dwordx4 v{va}, {srd(SWS)}, s{sBT} offen offset:{imm} sc1 lds", ('B', k)))
        else:
            it.append(('vm', f"buffer_load_dwordx4 {R(loc)}, v{va}, {srd(SWS)}, s{sBT} offen offset:{imm} sc1", ('B', k)))
        return it
    def B_take(self, us):
        out = []
        for u in us:
            k = self.Border[u]; out.append(self.B_items(k, self.Bloc[k]))
            if self.c.xB == 1: out[-1] = [('x', 's_nop 0')]
            if self.c.xB == 2: out[-1] = [(it[0], it[1].replace(f"s{sBT} offen", "s43 offen"), it[2]) if it[0] == 'vm' else it for it in out[-1]]
            if self.c.xB == 3: out[-1] = [(it[0], it[1].replace(f"s{sBT} offen", f"s{sB} offen"), it[2]) if it[0] == 'vm' else it for it in out[-1]]
        return out
    def ph2_bg(self, u): pass
    def bg_try(self, allowed, S=None):
        e = self.e
        if e.t - e.tvm < (S or self.c.S): return False
        if allowed == self.ph2_bg: return self.try_issue(self.m, True, True)
        for u in self.Bpend:
            if allowed(u):
                self.Bpend.remove(u); self.emit_items(self.B_take([u])[0]); return True
        return False
    def emit_items(self, items):
        e = self.e
        for it in items:
            if it[0] == 'vm': e.vmop(it[1], it[2])
            elif it[0] == 'lg': e.lgop(it[1], it[2])
            elif it[0] == 'wvm': e.wait(vm=it[1])
            elif it[0] == 'wlg': e.wait(lg=it[1])
            elif it[0] == 'st': self.stamp(it[1], it[2])
            else: e(it[1])
    def valu(self, lines, side=None, every=1, bg=None, S=None):
        n = 0
        for l in lines:
            if isinstance(l, str): self.e(l)
            else: self.emit_items([l])
            n += 1
            if side and n % every == 0: self.emit_items(side.pop(0))
            if bg: self.bg_try(bg, S)

    def interleave(self, items, side, every):
        W = ('s_cmp', 's_add', 's_sub', 's_and', 's_or', 's_xor', 's_lshl', 's_lshr', 's_bitcmp', 's_min', 's_max')
        Rd = ('s_cselect', 's_addc', 's_subb', 's_cbranch_scc')
        live = [False] * len(items); l = False
        for i in range(len(items) - 1, -1, -1):
            live[i] = l
            t = items[i][1]
            if t.startswith(Rd): l = True
            elif t.startswith(W): l = False
        n = 0
        for i, it in enumerate(items):
            self.emit_items([it]); n += 1
            if side and n >= every and not live[i]: self.emit_items(side.pop(0)); n = 0
        for g in side: self.emit_items(g)

    def gelu_lines(self, X, Y, T, O):
        U = [X, X + 2, Y, Y + 2]; L = []
        P = lambda r: f"v[{r}:{r+1}]"
        for i in range(4): L.append(f"v_pk_mul_f32 {P(T+2*i)}, {P(U[i])}, {P(U[i])}")
        for i in range(4): L.append(f"v_pk_fma_f32 {P(T+2*i)}, {P(T+2*i)}, v[14:15], s[{sC0}:{sC1}] op_sel_hi:[1,0,0]")
        for i in range(4): L.append(f"v_pk_mul_f32 {P(T+2*i)}, {P(T+2*i)}, {P(U[i])}")
        for i in range(8): L.append(f"v_exp_f32 v{T+i}, v{T+i}")
        for i in range(4): L.append(f"v_pk_add_f32 {P(T+2*i)}, {P(T+2*i)}, 1.0 op_sel_hi:[1,0]")
        for i in range(8): L.append(f"v_rcp_f32 v{T+i}, v{T+i}")
        for i in range(4): L.append(f"v_pk_mul_f32 {P(T+2*i)}, {P(T+2*i)}, {P(U[i])}")
        for i in range(4): L.append(f"v_cvt_pk_bf16_f32 v{O+i}, v{T+2*i}, v{T+2*i+1}")
        return L
    def gelu_consts(self):
        c1 = -2.0 * math.sqrt(2.0 / math.pi) * math.log2(math.e)
        self.e(f"s_mov_b32 s{sC0}, {fl(c1)}\nv_mov_b32 v14, {fl(c1 * 0.044715)}")
    def softmax_lines(self, Pp, E, PH):
        L = []; P = lambda r: f"v[{r}:{r+1}]"
        L += [f"v_max3_f32 v8, v{Pp}, v{Pp+1}, v{Pp+2}", f"v_min3_f32 v10, v{Pp}, v{Pp+1}, v{Pp+2}"]
        for i in range(3, 19, 2): L += [f"v_max3_f32 v8, v8, v{Pp+i}, v{Pp+i+1}", f"v_min3_f32 v10, v10, v{Pp+i}, v{Pp+i+1}"]
        L += [f"v_max_f32 v8, v8, v{Pp+19}", f"v_min_f32 v10, v10, v{Pp+19}"]
        L += [f"v_mul_f32_e64 v8, -v8, s{sC0}", f"v_mul_f32 v10, s{sC0}, v10"]
        for i in range(10):
            L.append(f"v_pk_fma_f32 {P(E+2*i)}, {P(Pp+2*i)}, s[{sC0}:{sC1}], v[8:9] op_sel_hi:[1,0,0]")
            L.append(f"v_pk_fma_f32 {P(E+20+2*i)}, {P(Pp+2*i)}, s[{sC0}:{sC1}], v[10:11] op_sel_hi:[1,0,0] neg_lo:[1,0,0] neg_hi:[1,0,0]")
        for i in range(40): L.append(f"v_exp_f32 v{E+i}, v{E+i}")
        L += [f"v_pk_add_f32 v[8:9], {P(E)}, {P(E+2)}", f"v_pk_add_f32 v[10:11], {P(E+20)}, {P(E+22)}"]
        for i in range(2, 10): L += [f"v_pk_add_f32 v[8:9], v[8:9], {P(E+2*i)}", f"v_pk_add_f32 v[10:11], v[10:11], {P(E+20+2*i)}"]
        L += ["v_add_f32 v8, v8, v9", "v_add_f32 v10, v10, v11", "v_rcp_f32 v8, v8", "v_rcp_f32 v10, v10"]
        for i in range(10): L.append(f"v_pk_mul_f32 {P(E+2*i)}, {P(E+2*i)}, v[8:9] op_sel_hi:[1,0]")
        for i in range(10): L.append(f"v_pk_mul_f32 {P(E+20+2*i)}, {P(E+20+2*i)}, v[10:11] op_sel_hi:[1,0]")
        for i in range(20): L.append(f"v_cvt_pk_bf16_f32 v{PH+i}, v{E+2*i}, v{E+2*i+1}")
        return L
    def wphi_addr(self, va):
        self.e(f"v_mul_u32_u24 v{va}, 800, v2\nv_mad_u32_u24 v{va}, v3, 40, v{va}\nv_add_u32 v{va}, {L_WPHI}, v{va}")
    def wphi_reads(self, va):
        return [[('lg', f"ds_read_b64_tr_b16 a[{AW+2*(dg*5+fg)}:{AW+1+2*(dg*5+fg)}], v{va} offset:{dg*160 + fg*8}", 'wphi')] for dg in range(5) for fg in range(5)]
    def phi_mfmas(self, KQ, Pp):
        L = []
        for dg in range(5):
            for j in range(2):
                for fg in range(5):
                    d = Pp + 20 * j + 4 * fg; w = AW + 2 * (dg * 5 + fg); b = KQ + 10 * j + 2 * dg
                    L.append(f"v_mfma_f32_4x4x4_16b_bf16 {vr(d)}, a[{w}:{w+1}], v[{b}:{b+1}], {vr(d) if dg else 0}")
        return L
    def cvt_heads(self, acc0, dst, j, n=5):
        return [f"v_cvt_pk_bf16_f32 v{dst+2*t+h}, v{acc0+(t*2+j)*4+2*h}, v{acc0+(t*2+j)*4+2*h+1}" for t in range(n) for h in range(2)]
    def rho0(self, dst):
        self.e(f"v_lshrrev_b32 v{dst}, 1, v2\nv_lshl_add_u32 v{dst}, v{dst}, 4, v3\nv_and_b32 v7, 1, v2\nv_lshl_add_u32 v{dst}, v7, 2, v{dst}")
    def x_addr(self, ST, nsl=3, base=220):
        e = self.e
        e(f"""v_lshrrev_b32 v9, 1, v1
        v_xor_b32 v9, v9, v2
        v_lshlrev_b32 v9, 4, v9
        v_lshl_add_u32 v9, v1, 7, v9
        v_add_u32 v{base}, s{sM0}, v9
        v_xor_b32 v{base+1}, 64, v{base}""")
        for sl in range(1, nsl): e(f"v_add_u32 v{base+2*sl}, {sl*ST}, v{base}\nv_add_u32 v{base+1+2*sl}, {sl*ST}, v{base+1}")
    def paced(self, groups, m0, span):
        n = len(groups)
        return [dict(at=m0 + int((k + 0.2) * span / n), chain=1, ins=list(g)) for k, g in enumerate(groups)]
    def prog_QH(self):
        e = self.e; c = self.c; self.init_B(); self.dmap = {0: 3, 1: 5, 2: 7, 3: 9, 14: 11, 7: 13, 9: 15}
        e("L_QH:")
        ST = QH_ST
        e(f"""s_mul_i32 s{sKW}, s{sHG}, 320
        s_lshl_b32 s{sT0}, s{sHG}, 8
        s_add_u32 s{sT0}, s{sT0}, 384
        s_cmp_lt_u32 s{sHG}, 6
        s_cselect_b32 s{sKW}, s{sKW}, s{sT0}
        s_cselect_b32 s{sK1}, 20, 16
        s_mul_i32 s{sT2}, s{sW}, 320""")
        def dma_x(st):
            g = []
            for j in range(4):
                it = [('x', f"s_add_u32 m0, s{sM0}, {(st%3)*ST}")] if j == 0 else []
                g.append(it + [('vm', f"buffer_load_dwordx4 v{208+j}, {srd(SX)}, s{sE+st} offen offset:{j*1024} {c.xsc} lds", ('S', st))])
            return g
        def dma_a(st, i):
            it = []
            if i == 0: it = [('x', f"s_mul_i32 s{sKA}, s{sE+st}, 1920"), ('x', f"s_add_u32 m0, s{sM0+1}, {(st%3)*ST}")]
            if i == 2: it = [('x', f"s_mov_b32 m0, s{sM0+3+st%3}")]
            return it + [('vm', f"buffer_load_dwordx4 v{212+i}, {srd(SQ)}, s{sKA} offen offset:{1024 if i == 1 else 0} {c.wsc} lds", ('S', st))]
        def dma_h(st, i):
            it = []
            if i == 0: it = [('x', f"s_mul_i32 s{sKB}, s{sE+st}, 1728"), ('x', f"s_add_u32 m0, s{sM0+2}, {(st%3)*ST}")]
            if i == 4: it = [('x', "s_add_u32 m0, m0, 4096")]
            return it + [('vm', f"buffer_load_dwordx4 v{215+i}, {srd(S1)}, s{sKB} offen offset:{(i%4)*1024} {c.wsc} lds", ('S', st))]
        def dma_stage(st): return dma_x(st) + [dma_a(st, i) for i in range(3)] + [dma_h(st, i) for i in range(5)]
        e(f"""s_mul_i32 s{sT0}, s{sW}, 3
        s_lshl_b32 s{sT1}, s{sW}, 1
        s_add_u32 s{sT1}, s{sT1}, 2
        s_cmp_lt_u32 s{sW}, 2
        s_cselect_b32 s{sT0}, s{sT0}, s{sT1}
        s_lshl_b32 s{sM0+1}, s{sT0}, 10
        s_add_u32 s{sM0+1}, s{sM0+1}, 16384""")
        for sl in range(3):
            e(f"s_add_u32 s{sM0+3+sl}, s{sM0+1}, {2048 + sl*ST}\ns_cmp_lt_u32 s{sW}, 2\ns_cselect_b32 s{sM0+3+sl}, s{sM0+3+sl}, {MISC+4608}")
        e(f"s_lshl_b32 s{sT0}, s{sT0}, 6\ns_mul_i32 s{sT1}, s{sHG}, 160\ns_mul_i32 s{sM0+2}, s{sW}, 5120\ns_add_u32 s{sM0+2}, s{sM0+2}, {16384+10240}")
        for i in range(3):
            e(f"v_add_u32 v9, {64*i}, v0\nv_add_u32 v9, s{sT0}, v9")
            self.attn_voff(212 + i, None, sT1)
            if i == 1: e("v_subrev_u32 v213, 1024, v213")
            if i == 2: e(f"s_cmp_lt_u32 s{sW}, 2\ns_cselect_b32 s{sT4}, 0, {OOB}\nv_add_u32 v214, s{sT4}, v214")
        self.kernarg_wait()
        self.small_dma(SM, 6, f"s{sKW}", None, 20, 'bias', f"s_add_u32 m0, s{sT2}, {L_BIASQH}")
        for g in dma_x(0) + [dma_a(0, i) for i in range(3)]: self.emit_items(g)
        e(f"s_mul_i32 s{sT0}, s{sW}, 320\nv_mov_b32 v14, {OOB}")
        for i in range(5):
            e(f"""v_add_u32 v9, {64*i}, v0
            v_add_u32 v9, s{sT0}, v9
            v_mul_u32_u24 v10, 3277, v9
            v_lshrrev_b32 v10, 16, v10
            v_mul_u32_u24 v11, 20, v10
            v_sub_u32 v11, v9, v11
            v_bfe_u32 v13, v10, 2, 1
            v_lshlrev_b32 v13, 1, v13
            v_xor_b32 v11, v11, v13
            v_cmp_gt_u32 vcc, s{sK1}, v11""")
            self.swap23(10, 12)
            e(f"""v_mul_u32_u24 v10, 3456, v10
            v_lshl_add_u32 v10, v11, 4, v10
            v_add_u32 v10, s{sKW}, v10
            v_subrev_u32 v10, {(i%4)*1024}, v10
            v_cndmask_b32 v{215+i}, v14, v10, vcc""")
            self.emit_items(dma_h(0, i))
        if c.pke:
            self.pack_setup()
            for g in self.pack_loads(): self.emit_items(g)
        if c.touch == 1: self.touch()
        def setup():
            e = self.e
            self.x_addr(ST); self.rho0(8)
            e(f"v_mul_u32_u24 v9, 160, v8\nv_mad_u32_u24 v9, v4, 40, v9\nv_add_u32 v226, 16384, v9")
            e(f"v_mul_u32_u24 v9, 320, v8\nv_lshl_add_u32 v9, v4, 3, v9\nv_add_u32 v9, {16384+10240}, v9\nv_lshl_add_u32 v229, v7, 5, v9\nv_xor_b32 v7, 1, v7\nv_lshl_add_u32 v232, v7, 5, v9")
            for sl in (1, 2): e(f"v_add_u32 v{226+sl}, {sl*ST}, v226\nv_add_u32 v{229+sl}, {sl*ST}, v229\nv_add_u32 v{232+sl}, {sl*ST}, v232")
            self.common_setup()
            if not c.pke: self.pack_setup()
            e(f"s_mul_i32 s{sT1}, s{sW}, 320\ns_add_u32 s{sT1}, s{sT1}, {L_BIASQH}\nv_lshl_add_u32 v13, v2, 3, s{sT1}")
            e(f"""s_lshl_b32 s{sT0}, s{sMT}, 1
            s_lshr_b32 s{sT1}, s{sW}, 1
            s_add_u32 s{sT0}, s{sT0}, s{sT1}
            s_and_b32 s{sT1}, s{sW}, 1
            s_mul_i32 s{sT2}, s{sT0}, 74
            s_lshl_b32 s{sT2}, s{sT2}, 12
            s_lshl_b32 s{sT3}, s{sT1}, 11
            s_add_u32 s{sT2}, s{sT2}, s{sT3}
            s_add_u32 s{sT2}, s{sT2}, {A2}
            s_lshr_b32 s{sT4}, s{sHG}, 1
            s_mul_i32 s{sT4}, s{sT4}, 5
            s_add_u32 s{sT4}, s{sT4}, 54
            s_lshl_b32 s{sT4}, s{sT4}, 12
            s_add_u32 s{sT4}, s{sT4}, s{sT2}
            s_and_b32 s{sT5}, s{sHG}, 1
            s_lshl_b32 s38, s{sT5}, 13
            s_add_u32 s38, s38, s{sT4}
            s_add_u32 s39, s{sT4}, {4*4096}
            s_lshl_b32 s{sT5}, s{sT5}, 3
            s_add_u32 s39, s39, s{sT5}
            s_lshl_b32 s{sT0}, s{sHG}, 4
            s_add_u32 s{sT0}, s{sT0}, s{sMT}
            s_lshl_b32 s{sT0}, s{sT0}, 2
            s_add_u32 s{sT0}, s{sT0}, s{sW}
            s_lshl_b32 s{sT0}, s{sT0}, 9
            s_add_u32 s45, s{sT0}, {GB}
            v_mov_b32 v204, -1
            v_mov_b32 v205, -1
            v_mov_b32 v206, -1
            v_mov_b32 v207, -1""")
        self.interleave(self.record(setup), dma_stage(1), c.pe)
        self.small_dma(SM, 6, "s36", None, 50, 'misc', "s_mov_b32 m0, s37")
        if c.touch == 2: self.touch()
        if not c.pke:
            for g in self.pack_loads(): self.emit_items(g)
        self.tlb_touch(); self.tag_wait()
        e.wait(vm='bias')
        for s_ in range(10): e.lgop(f"ds_read_b64 v[{136+2*s_}:{137+2*s_}], v13 offset:{s_*32}", ('b', s_))
        for s_ in range(10):
            a0 = 16 + (5 + s_) * 8; e.wait(lg=('b', s_))
            for h in range(2): e(f"v_lshlrev_b32 v{a0+2*h}, 16, v{136+2*s_+h}\nv_and_b32 v{a0+2*h+1}, 0xffff0000, v{136+2*s_+h}")
        self.stamp(0)
        NS = 15; nm = NS * 4; mf = []; reads = []
        for st in range(10):
            sl = st % 3
            for t in range(NS):
                gs = st * NS + t; wr = 168 + 8 * (gs % 4); m0 = len(mf)
                for ks in range(2):
                    for rd in range(2):
                        if t < 5: ad, off = 226 + sl, ks * 5120 + rd * 1280 + t * 8
                        else: ad, off = (229 if (t - 5) % 2 == 0 else 232) + sl, ks * 10240 + rd * 2560 + ((t - 5) >> 1) * 64
                        reads.append([f"ds_read_b64_tr_b16 v[{wr+4*ks+2*rd}:{wr+4*ks+2*rd+1}], v{ad} offset:{off}", m0, st, m0 - 13])
                for j in ((1, 0) if st == 0 else (0, 1)):
                    for ks in range(2):
                        xr = 136 + (st % 2) * 16 + (j * 2 + ks) * 4; d = 16 + (t * 2 + j) * 4
                        if t == 0: reads.append([f"ds_read_b128 {vr(xr)}, v{220+2*sl+ks} offset:{j*2048}", len(mf), st, -1])
                        cc = vr(d)
                        if st == 0 and ks == 0: cc = "0" if t < 5 else vr(16 + t * 8)
                        mf.append(f"v_mfma_f32_16x16x32_bf16 {vr(d)}, {vr(wr+4*ks)}, {vr(xr)}, {cc}")
        po = lambda va, off: [('vm', f"buffer_store_dwordx4 v[204:207], v{va}, {srd(SWS)}, s38 offen offset:{off} sc1", 'hst')]
        poison = [po(6, 0), po(6, 1024), po(240, 0), po(240, 1024)] + [[('vm', f"buffer_store_dwordx2 v[204:205], v6, {srd(SWS)}, s39 offen offset:{j*1024} sc1", 'hst')] for j in range(2)]
        self.kloop(mf, reads, nm, dma_stage, poison, 'QH')
        A51 = lambda u: u < 51; A64 = lambda u: u < 64; ALL = lambda u: True
        self.gelu_consts()
        e(f"s_lshl_b32 s{sT3}, s{sKW}, 6\ns_add_u32 s{sT3}, s{sT3}, s{sT2}")
        L = []
        for p in range(5):
            for j in range(2):
                O = 152 + 4 * ((2 * p + j) % 4)
                L += self.gelu_lines(16 + ((5 + 2 * p) * 2 + j) * 4, 16 + ((6 + 2 * p) * 2 + j) * 4, 136 + 8 * j, O)
                if j == 0:
                    if p == 4: L += [f"s_add_u32 s{sT4}, s{sT3}, {4*4096}", f"s_cmp_lt_u32 s{sHG}, 6\ns_cselect_b32 s{sT4}, s{sT4}, {OOB}"]
                    else: L.append(f"s_add_u32 s{sT4}, s{sT3}, {p*4096}")
                L.append(('vm', f"buffer_store_dwordx4 {vr(O)}, v6, {srd(SWS)}, s{sT4} offen offset:{j*1024} sc1", 'hst'))
        self.valu(L, bg=A51, S=c.Sg)
        self.valu(self.cvt_heads(16, 56, 0) + self.cvt_heads(16, 66, 1), bg=A51)
        self.stamp(2); self.stamp(1, 3)
        e.wait(lg='wphi')
        self.valu(self.phi_mfmas(56, 76), bg=A51)
        e(f"""s_lshl_b32 s{sT4}, s{sMT}, 4
        s_add_u32 s{sT4}, s{sT4}, s{sHG}
        s_lshl_b32 s{sT4}, s{sT4}, 7
        s_add_u32 s{sT4}, s{sT4}, {F4}
        s_cmp_eq_u32 s{sW}, 0
        s_cselect_b32 s{sT5}, s{sT4}, {OOB}
        s_mov_b32 s{sC0}, {fl(math.log2(math.e))}""")
        L1 = self.softmax_lines(76, 16, 116)
        self.valu(L1[:c.f4at], bg=A64)
        self.stamp(2, 3)
        e.wait(vm='hst'); self.stamp(3, 3); e("s_barrier")
        self.stamp(4, 3)
        if c.stamps == 3: e(f"s_mov_b32 s{sC0}, {fl(math.log2(math.e))}")
        e.vmop(self.flag_store(245, 246, f"s{sT5}"), 'f4st')
        self.valu(L1[c.f4at:], bg=ALL)
        L2 = self.softmax_lines(96, 16, 136)
        self.valu(L2[:c.pa], bg=ALL)
        self.ph2_pre()
        self.valu(L2[c.pa:c.pb], bg=ALL)
        pool = [[('v', r), c.mo + 1 if r < 204 else c.p3 if r < 220 else 999] for r in list(range(204, 224, 4)) + list(range(168, 204, 4))]
        while len(self.Bpend) > c.qleft: self.bg_try(ALL, -9999)
        self.stamp(5, 3); self.ph2_begin(pool); self.stamp(6, 3)
        if c.stamps == 3: e(f"s_mov_b32 s{sC0}, {fl(math.log2(math.e))}")
        self.valu(L2[c.pb:], bg=ALL)
        self.stamp(3)
        for q in range(7, 12): self.stamp(q, 3)
        pool += [[('v', r), c.mo + 1] for r in range(156, 168, 4)]
        FO = (0, 1024, 2048, 2816)
        finld = [f"buffer_load_dwordx4 {vr(204+4*i)}, v6, {srd(SWS)}, s{sKW} offen offset:{FO[i]} sc1" for i in range(4)]
        finld += [f"buffer_load_dwordx4 {vr(248+4*j)}, v13, {srd(SWS)}, s45 offen offset:{j*256} sc1" for j in range(2)]
        def h_p3():
            e(f"""s_mul_i32 s{sKW}, s{sHG}, {FSZ}
            s_mul_i32 s{sK1}, s{sW}, 3840
            s_add_u32 s{sKW}, s{sKW}, s{sK1}
            s_add_u32 s{sKW}, s{sKW}, {FIN}
            v_lshlrev_b32 v13, 4, v1""")
            for l in finld: e.vmop(l, 'fin')
        def h_o():
            self.stamp(4)
            e(f"s_lshr_b32 s{sK1}, s{sK1}, 1\ns_add_u32 s{sK1}, s{sK1}, {L_FIN}\nv_lshl_add_u32 v9, v0, 3, s{sK1}")
            e.wait(vm='fin')
            for l in self.tag_check(finld, list(range(204, 220)) + list(range(248, 256)), 8): e(l)
            self.stamp(5)
            for r in list(range(204, 220)) + [248, 252]: e(self.tag_strip(r))
            e("v_mov_b32 v250, v248\nv_mov_b32 v251, v252")
            for i in range(4):
                e(f"v_cvt_pk_bf16_f32 v{204+4*i}, v{204+4*i}, v{205+4*i}\nv_cvt_pk_bf16_f32 v{205+4*i}, v{206+4*i}, v{207+4*i}")
                e.lgop(f"ds_write_b64 v9, v[{204+4*i}:{205+4*i}] offset:{FO[i]//2}", 'fw')
            fr = [p for p in pool if p[0][0] == 'a'][:8]; assert len(fr) == 8; self.busy = fr
            e(f"v_lshlrev_b32 v13, 6, v2\nv_lshl_add_u32 v13, v4, 4, v13\nv_add_u32 v13, {L_FIN}, v13")
            e.wait(lg='fw'); e("s_barrier")
            self.stamp(6)
            mf = []; reads = []
            for fp in range(5):
                for dg in range(6):
                    n = fp * 6 + dg; f0 = fr[n % 8][0][1]; base = (n // 2) * 8
                    reads.append([f"ds_read_b128 {ar(f0)}, v13 offset:{(dg*5+fp)*256}", base + 2 * (n % 2), -1, base - 24])
                    for h in range(2):
                        for j in range(2):
                            d = 156 + 24 * j + 4 * dg; b = 116 + 20 * j + 2 * (2 * fp + h)
                            mf.append(f"v_mfma_f32_4x4x4_16b_bf16 {vr(d)}, a[{f0+2*h}:{f0+2*h+1}], v[{b}:{b+1}], {vr(d) if (fp or h) else 0}")
            mf2 = []
            for n in range(0, 30, 2):
                a_, b_ = mf[4*n:4*n+4], mf[4*n+4:4*n+8]
                mf2 += [a_[0], a_[1], b_[0], b_[1], a_[2], a_[3], b_[2], b_[3]]
            self.stream(mf2, reads, [], None, LA=20, bg=lambda m: self.ph2_bg)
            for j in range(2): e(f"v_add_f32 v{8+2*j}, {fl(1e-6)}, v{156+24*j+20}")
            for j in range(2): e(f"v_rcp_f32 v{8+2*j}, v{8+2*j}")
            for j in range(2): e(f"v_mul_f32 v{8+2*j}, v{8+2*j}, v{250+j}")
            for j in range(2):
                D = 156 + 24 * j
                for i in range(10): e(f"v_pk_mul_f32 v[{D+2*i}:{D+2*i+1}], v[{D+2*i}:{D+2*i+1}], v[{8+2*j}:{9+2*j}] op_sel_hi:[1,0]")
                for i in range(10): e(f"v_cvt_pk_bf16_f32 v{D+i}, v{D+2*i}, v{D+2*i+1}")
                for i in range(10): e(f"v_min_u32 v{D+i}, -2, v{D+i}")
                e.vmop(f"buffer_store_dwordx4 {vr(D)}, v6, {srd(SWS)}, s38 offen offset:{j*1024} sc1", 'ost')
                e.vmop(f"buffer_store_dwordx4 {vr(D+4)}, v240, {srd(SWS)}, s38 offen offset:{j*1024} sc1", 'ost')
                e.vmop(f"buffer_store_dwordx2 {vr(D+8, 2)}, v6, {srd(SWS)}, s39 offen offset:{j*1024} sc1", 'ost')
            self.busy = []
            for p in pool: p[1] = 999
            pool.extend([[('v', r), 999] for r in range(116, 156, 4)])
            self.stamp(14)
        self.bias2()
        self.phase2({c.p3: h_p3, c.mo: h_o, c.p1q: self.poll4b_issue, c.c1q: self.poll4b_check})

    def prog_KV(self):
        e = self.e; c = self.c; self.init_B(); self.dmap = {0: 2, 1: 4, 3: 6, 4: 8, 5: 10, 7: 12, 9: 14}
        ST = KV_ST
        e(f"""s_mul_i32 s{sM0+1}, s{sW}, 5120
        s_add_u32 s{sM0+1}, s{sM0+1}, 16384
        s_lshl_b32 s{sM0+2}, s{sW}, 11
        s_add_u32 s{sM0+2}, s{sM0+2}, 36864
        s_lshl_b32 s{sKW}, s{sHG}, 7
        s_add_u32 s{sKW}, s{sKW}, {19*128}""")
        def dma_x(st):
            g = []
            for j in range(4):
                it = [('x', f"s_add_u32 m0, s{sM0}, {(st%3)*ST}")] if j == 0 else []
                g.append(it + [('vm', f"buffer_load_dwordx4 v{208+j}, {srd(SX)}, s{sE+st} offen offset:{j*1024} {c.xsc} lds", ('S', st))])
            return g
        def dma_w(st, i):
            it = []
            if i == 0: it = [('x', f"s_mul_i32 s{sKA}, s{sE+st}, 1920"), ('x', f"s_add_u32 m0, s{sM0+1}, {(st%3)*ST}")]
            if i == 4: it = [('x', "s_add_u32 m0, m0, 4096")]
            return it + [('vm', f"buffer_load_dwordx4 v{212+i}, {srd(SQ)}, s{sKA} offen offset:{(i%4)*1024} {c.wsc} lds", ('S', st))]
        def dma_h(st, i):
            it = [('x', f"s_mul_i32 s{sKB}, s{sE+st}, 1728"), ('x', f"s_add_u32 m0, s{sM0+2}, {(st%3)*ST}")] if i == 0 else []
            return it + [('vm', f"buffer_load_dwordx4 v{217+i}, {srd(S1)}, s{sKB} offen offset:{i*1024} {c.wsc} lds", ('S', st))]
        def dma_stage(st): return dma_x(st) + [dma_w(st, i) for i in range(5)] + [dma_h(st, i) for i in range(2)]
        e(f"""s_and_b32 s{sT0}, s{sW}, 1
        s_mul_i32 s{sT0}, s{sT0}, 320
        s_lshr_b32 s{sT1}, s{sW}, 1
        s_add_u32 s{sT1}, s{sT1}, 1
        s_mul_i32 s{sT1}, s{sT1}, 1280
        s_mul_i32 s{sT3}, s{sHG}, 160
        s_add_u32 s{sT1}, s{sT1}, s{sT3}""")
        for i in range(5):
            e(f"v_add_u32 v9, {64*i}, v0\nv_add_u32 v9, s{sT0}, v9")
            self.attn_voff(212 + i, None, sT1)
            if i % 4: e(f"v_subrev_u32 v{212+i}, {(i%4)*1024}, v{212+i}")
        self.kernarg_wait()
        self.small_dma(SM, 6, f"s{sKW}", L_BIASKV, 8, 'bias')
        for g in dma_x(0) + [dma_w(0, i) for i in range(5)]: self.emit_items(g)
        e(f"s_lshl_b32 s{sT3}, s{sW}, 4\nv_lshlrev_b32 v11, 1, v2\nv_xor_b32 v11, v11, v0\nv_and_b32 v11, 7, v11")
        for pp in range(2):
            e(f"v_add_u32 v10, {8*pp}, v5\nv_add_u32 v10, s{sT3}, v10")
            self.swap23(10, 12)
            e(f"""v_mul_u32_u24 v10, 3456, v10
            v_lshl_add_u32 v10, v11, 4, v10
            v_add_u32 v10, s{sKW}, v10
            v_subrev_u32 v{217+pp}, {pp*1024}, v10""")
            self.emit_items(dma_h(0, pp))
        mk_srd(e, 28, pGATE, 1280)
        e(f"v_add_u32 v9, s{sE}, v6\nv_subrev_u32 v10, 1280, v9\nv_min_u32 v9, v9, v10\nv_add_u32 v11, 1024, v9\nv_subrev_u32 v10, 1280, v11\nv_min_u32 v11, v11, v10")
        self.small_dma(28, 9, "0", L_GATE, 64, ('S', 0)); self.small_dma(28, 11, "0", L_GATE + 1024, 16, ('S', 0))
        if c.pke:
            self.pack_setup()
            for g in self.pack_loads(): self.emit_items(g)
        if c.touch == 1: self.touch()
        def setup():
            e = self.e
            self.x_addr(ST); self.rho0(8)
            e(f"v_mul_u32_u24 v9, 160, v8\nv_mad_u32_u24 v9, v4, 40, v9\nv_add_u32 v226, 16384, v9")
            for sl in (1, 2): e(f"v_add_u32 v{226+sl}, {sl*ST}, v226")
            e(f"v_lshlrev_b32 v9, 7, v8\nv_lshl_add_u32 v9, v4, 3, v9\nv_add_u32 v9, 36864, v9\nv_bfe_u32 v10, v8, 1, 2")
            for t in range(4): e(f"v_xor_b32 v11, {t}, v10\nv_lshl_add_u32 v{229+t}, v11, 5, v9\nv_add_u32 v{204+t}, {2*ST}, v{229+t}")
            e(f"v_lshlrev_b32 v233, 4, v2\nv_add_u32 v233, {L_GATE}, v233\nv_lshlrev_b32 v253, 3, v2\nv_add_u32 v253, {L_BIASKV}, v253")
            self.common_setup()
            if not c.pke: self.pack_setup()
            e(f"""v_lshrrev_b32 v8, 2, v1
            v_mul_u32_u24 v8, 2560, v8
            v_lshl_add_u32 v8, v4, 5, v8
            v_lshrrev_b32 v9, 1, v2
            v_lshl_add_u32 v8, v9, 9, v8
            v_and_b32 v9, 1, v2
            v_lshl_add_u32 v8, v9, 4, v8
            s_lshl_b32 s{sT0}, s{sW}, 7
            v_add_u32 v241, s{sT0}, v8
            v_add_u32 v243, 10240, v241
            v_mov_b32 v9, {OOB}
            v_cmp_ge_u32 vcc, 7, v1
            v_cndmask_b32 v243, v9, v243, vcc
            v_cmp_gt_u32 vcc, 2, v2
            v_cndmask_b32 v242, v9, v241, vcc
            v_cndmask_b32 v244, v9, v243, vcc
            v_mul_u32_u24 v12, {PSZ}, v2
            v_min_u32 v10, 14, v1
            v_lshl_add_u32 v12, v10, 4, v12
            v_lshlrev_b32 v13, 4, v1
            v_cmp_gt_u32 vcc, 16, v0
            v_cndmask_b32 v234, v9, v13, vcc
            v_cmp_gt_u32 vcc, 15, v0
            v_cndmask_b32 v13, v9, v13, vcc""")
        self.interleave(self.record(setup), dma_stage(1), c.pe2)
        self.small_dma(SM, 6, "s36", None, 50, 'misc', "s_mov_b32 m0, s37")
        if c.touch == 2: self.touch()
        if not c.pke:
            for g in self.pack_loads(): self.emit_items(g)
        self.tlb_touch(); self.tag_wait()
        e.wait(vm='bias')
        for s_ in range(4): e.lgop(f"ds_read_b64 v[{136+2*s_}:{137+2*s_}], v253 offset:{s_*32}", ('b', s_))
        for s_ in range(4):
            e.wait(lg=('b', s_))
            for h in range(2): e(f"v_lshlrev_b32 v{96+8*s_+2*h}, 16, v{136+2*s_+h}\nv_and_b32 v{97+8*s_+2*h}, 0xffff0000, v{136+2*s_+h}")
        self.stamp(0)
        NS = 15; nm = NS * 4; mf = []; reads = []
        for st in range(10):
            sl = st % 3
            for t in range(NS):
                gs = st * NS + t; wr = 168 + 8 * (gs % 4); m0 = len(mf)
                for ks in range(2):
                    if t == 14: reads.append([f"ds_read_b128 {vr(wr+4*ks)}, v233 offset:{(st*2+ks)*64}", m0, st, m0 - 13]); continue
                    for rd in range(2):
                        if t < 10: ad, off = 226 + sl, (t // 5) * 10240 + ks * 5120 + rd * 1280 + (t % 5) * 8
                        else: ad, off = (229 if sl < 2 else 204) + t - 10, (sl % 2) * ST + ks * 4096 + rd * 1024
                        reads.append([f"ds_read_b64_tr_b16 v[{wr+4*ks+2*rd}:{wr+4*ks+2*rd+1}], v{ad} offset:{off}", m0, st, m0 - 13])
                for j in ((1, 0) if st == 0 else (0, 1)):
                    for ks in range(2):
                        xr = 136 + (st % 2) * 16 + (j * 2 + ks) * 4; d = 16 + (t * 2 + j) * 4
                        if t == 0: reads.append([f"ds_read_b128 {vr(xr)}, v{220+2*sl+ks} offset:{j*2048}", len(mf), st, -1])
                        cc = vr(d)
                        if st == 0 and ks == 0: cc = vr(16 + t * 8) if 10 <= t < 14 else "0"
                        mf.append(f"v_mfma_f32_16x16x32_bf16 {vr(d)}, {vr(wr+4*ks)}, {vr(xr)}, {cc}")
        self.kloop(mf, reads, nm, dma_stage, [], 'KV')
        A64 = lambda u: u < 64; ALL = lambda u: True
        A51 = lambda u: u < 51; Sa = c.Sa
        KQ = 136; PR = 168; VT = 156
        nl2e = fl(-math.log2(math.e))
        side = [l.strip() for l in f"""v_mul_f32 v128, {nl2e}, v128
        v_mul_f32 v132, {nl2e}, v132
        v_exp_f32 v128, v128
        v_exp_f32 v132, v132
        s_lshl_b32 s{sT2}, s{sMT}, 2
        v_add_f32 v128, 1.0, v128
        v_add_f32 v132, 1.0, v132
        v_rcp_f32 v128, v128
        v_rcp_f32 v132, v132
        s_add_u32 s{sT2}, s{sT2}, s{sW}
        s_lshl_b32 s{sT3}, s{sT2}, 9
        s_lshl_b32 s{sT4}, s{sHG}, 15
        s_add_u32 s{sT3}, s{sT3}, s{sT4}
        s_add_u32 s{sT3}, s{sT3}, {GB}
        v_mul_u32_u24 v220, {RSV}, v1
        v_mad_u32_u24 v220, v2, 48, v220
        s_mul_i32 s{sT0}, s{sW}, {32*RSV}
        s_add_u32 s{sT0}, s{sT0}, {L_V}
        v_add_u32 v220, s{sT0}, v220
        v_mul_u32_u24 v221, {RSP}, v1
        s_mov_b32 s{sT0}, 80
        v_mad_u32_u24 v221, v2, s{sT0}, v221
        s_mul_i32 s{sT0}, s{sW}, {32*RSP}
        v_add_u32 v221, s{sT0}, v221
        v_lshl_add_u32 v8, v2, 2, v3
        v_mul_u32_u24 v222, {RSP}, v8
        v_lshl_add_u32 v222, v4, 3, v222
        s_mul_i32 s{sT0}, s{sW}, 80
        v_add_u32 v222, s{sT0}, v222
        v_mul_u32_u24 v223, {RSV}, v8
        v_lshl_add_u32 v223, v4, 3, v223
        s_mul_i32 s{sT0}, s{sW}, 48
        s_add_u32 s{sT0}, s{sT0}, {L_V}
        v_add_u32 v223, s{sT0}, v223
        s_lshl_b32 s{sT0}, s{sHG}, 4
        s_add_u32 s{sT0}, s{sT0}, s{sMT}
        s_mul_i32 s{sT1}, s{sT0}, {PSZ}
        s_add_u32 s{sT1}, s{sT1}, {PP}
        s_mov_b32 s{sC0}, {fl(math.log2(math.e))}""".split("\n")]
        self.valu(self.cvt_heads(16, KQ, 0) + self.cvt_heads(16, KQ + 10, 1))
        e.wait(lg='wphi')
        side = self.cvt_heads(56, VT, 0) + side[:38]; rest = [side.pop() for _ in range(0)]
        self.valu(self.phi_mfmas(KQ, PR), [[('x', l)] for l in side], 1)
        e(f"v_mov_b32 v{VT+10}, 0x3f80\nv_mov_b32 v{VT+11}, 0\ns_mov_b32 s{sC0}, {fl(math.log2(math.e))}\ns_barrier")
        for i in range(3): e.lgop(f"ds_write_b128 v220, {vr(VT+4*i)} offset:{i*16}", 'vw')
        for j in range(2):
            for i in (3, 2, 1, 0): e(self.tag_put(128 + 4 * j + i, 128 + 4 * j))
            e.vmop(f"buffer_store_dwordx4 {vr(128+4*j)}, v234, {srd(SWS)}, s{sT3} offen offset:{j*256} sc1", 'hst')
        L0 = self.softmax_lines(PR, 16, 136)
        self.valu(L0[:16], bg=ALL, S=Sa)
        e.wait(lg='vw')
        self.valu(self.cvt_heads(56, VT, 1), bg=ALL, S=Sa)
        for i in range(3): e.lgop(f"ds_write_b128 v220, {vr(VT+4*i)} offset:{16*RSV + i*16}", 'vw')
        self.valu(L0[16:], bg=ALL, S=Sa)
        PH = (136, 56)
        pw = lambda j: [[('lg', f"ds_write_b128 v221, {vr(PH[j]+4*i)} offset:{j*16*RSP + i*16}", 'pw')] for i in range(5)]
        L1 = self.softmax_lines(PR + 20, 16, 56)
        self.valu(L1[:40], pw(0), 8, ALL, Sa)
        self.valu(L1[40:-20], bg=ALL, S=Sa)
        self.valu(L1[-20:], pw(1), 4)
        e.wait(lg_all=True); e("s_barrier")
        self.stamp(2)
        mf = []; reads = []; D0 = 168
        for s_ in range(4):
            b0 = 16 + s_ * 20; m0 = len(mf)
            for dt in range(2):
                for rd in range(2): reads.append([f"ds_read_b64_tr_b16 v[{b0+12+4*dt+2*rd}:{b0+13+4*dt+2*rd}], v223 offset:{(32*s_+16*rd)*RSV + dt*32}", m0 + dt, -1, -1])
            for ft in range(3):
                for rd in range(2): reads.append([f"ds_read_b64_tr_b16 v[{b0+4*ft+2*rd}:{b0+4*ft+2*rd+1}], v222 offset:{(32*s_+16*rd)*RSP + ft*32}", m0 + 2 * ft, -1, -1])
                for dt in range(2):
                    d = D0 + (ft * 2 + dt) * 4
                    mf.append(f"v_mfma_f32_16x16x32_bf16 {vr(d)}, {vr(b0+4*ft)}, {vr(b0+12+4*dt)}, {vr(d) if s_ else 0}")
        reads.sort(key=lambda r: r[1]); rp = 0
        for m in range(24):
            while rp < 40 and (len(e.lg) < 14 and (m == 0 or reads[rp][1] <= m + 8) or reads[rp][1] <= m): e.lgop(reads[rp][0], ('kv', reads[rp][1])); rp += 1
            e.wait(lg=[('kv', k) for k in range(m + 1)])
            e(mf[m])
        self.gelu_consts()
        e(f"""s_lshl_b32 s{sT4}, s{sMT}, 1
        s_lshr_b32 s{sT5}, s{sW}, 1
        s_add_u32 s{sT4}, s{sT4}, s{sT5}
        s_and_b32 s{sT5}, s{sW}, 1
        s_mul_i32 s{sT3}, s{sT4}, 74
        s_lshl_b32 s{sKW}, s{sHG}, 1
        s_add_u32 s{sT3}, s{sT3}, s{sKW}""")
        for ft in range(3):
            for dt in range(2):
                for i in range(4): e(self.tag_put(D0 + (ft * 2 + dt) * 4 + i))
                e.vmop(f"buffer_store_dwordx4 {vr(D0+(ft*2+dt)*4)}, v{241+2*dt+(ft==2)}, {srd(SWS)}, s{sT1} offen offset:{ft*1024} sc1", 'pst')
        self.stamp(3)
        if c.stamps: self.gelu_consts()
        e(f"""s_add_u32 s{sT3}, s{sT3}, 38
        s_lshl_b32 s{sT3}, s{sT3}, 12
        s_lshl_b32 s{sT5}, s{sT5}, 11
        s_add_u32 s{sT3}, s{sT3}, s{sT5}
        s_add_u32 s{sT3}, s{sT3}, {A2}
        s_lshl_b32 s{sKW}, s{sMT}, 4
        s_add_u32 s{sKW}, s{sKW}, s{sHG}
        s_lshl_b32 s{sKW}, s{sKW}, 7
        s_add_u32 s{sKW}, s{sKW}, {F4+1024}
        s_cmp_eq_u32 s{sW}, 0
        s_cselect_b32 s{sKW}, s{sKW}, {OOB}
        s_mul_i32 s32, s{sT2}, 240
        s_mul_i32 s{sT4}, s{sHG}, {FSZ}
        s_add_u32 s{sT1}, s32, s{sT4}
        s_add_u32 s{sT1}, s{sT1}, {FIN}
        s_lshl_b32 s{sT4}, s{sT4}, 4
        s_add_u32 s32, s32, s{sT4}
        s_add_u32 s32, s32, {PP}
        s_add_u32 s33, s32, {4*PSZ}
        s_add_u32 s34, s33, {4*PSZ}
        s_add_u32 s35, s34, {4*PSZ}""")
        L = []
        for p in range(2):
            for j in range(2):
                O = 152 + 4 * ((2 * p + j) % 4)
                L += self.gelu_lines(96 + (4 * p + j) * 4, 96 + (4 * p + 2 + j) * 4, 136 + 8 * j, O)
                if j == 0 and p == 1: L.append(f"s_add_u32 s{sT3}, s{sT3}, 4096")
                L.append(('vm', f"buffer_store_dwordx4 {vr(O)}, v6, {srd(SWS)}, s{sT3} offen offset:{j*1024} sc1", 'hst'))
        RD = 116
        pld = [f"buffer_load_dwordx4 {vr(RD+4*i)}, v12, {srd(SWS)}, s{32+i} offen sc1" for i in range(4)]
        self.valu(L, bg=ALL if c.kgb else None, S=Sa)
        for l in pld: e.vmop(l, 'pld')
        pool = [[('v', r), 999] for r in list(range(168, 224, 4)) + list(range(136, 168, 4))]
        for _ in range(c.kb2): self.bg_try(ALL, -9999)
        self.stamp(4)
        def h_r2():
            red = [self.tag_strip(RD + i) for i in range(16)]
            red += [f"v_add_f32 v{RD+i}, v{RD+i}, v{RD+4+i}" for i in range(4)] + [f"v_add_f32 v{RD+8+i}, v{RD+8+i}, v{RD+12+i}" for i in range(4)] + [f"v_add_f32 v{RD+i}, v{RD+i}, v{RD+8+i}" for i in range(4)]
            for sw in ('32', '16'):
                red += [f"v_mov_b32 v{RD+4+i}, v{RD+i}" for i in range(4)] + [f"v_permlane{sw}_swap_b32 v{RD+i}, v{RD+4+i}" for i in range(4)] + [f"v_add_f32 v{RD+i}, v{RD+i}, v{RD+4+i}" for i in range(4)]
            red += [self.tag_put(RD + i) for i in range(4)]
            it = [('st', 14, 1), ('wvm', 'pld')] + [('x', l) for l in self.tag_check(pld, range(RD, RD + 16), 9)] + [('st', 5, 1)] + [('x', l) for l in red]
            it += [('vm', f"buffer_store_dwordx4 {vr(RD)}, v13, {srd(SWS)}, s{sT1} offen sc1", 'fst')]
            self.emit_items(it); pool.extend([[('v', r), 999] for r in range(RD, RD + 20, 4)])
        def h_f4():
            e.wait(vm='hst'); e("s_barrier"); e.vmop(self.flag_store(245, 246, f"s{sKW}"), 'f4st')
        h_r2()
        for _ in range(c.kb3): self.bg_try(ALL, -9999)
        h_f4()
        self.ph2_pre()
        while len(self.Bpend) > c.kleft: self.bg_try(ALL, -9999)
        self.stamp(6)
        self.ph2_begin(pool)
        self.bias2()
        self.phase2({c.p1: self.poll4b_issue, c.c1: self.poll4b_check})

    def kloop(self, mf, reads, nm, dma_stage, poison, name):
        e = self.e; c = self.c
        def mksync(st):
            def f(m):
                e.wait(vm=[('S', st)] + (['pkst'] if st == c.pks + 3 else []) + (['misc'] if st == 2 else []) + (['packld'] if st == c.pks else []), lg_all=True); e("s_barrier")
                self.stamp(st + 1, 2)
                out = []
                if st + 2 < 10: out += self.paced(dma_stage(st + 2) + (self.pack_stores() if st == c.pks else []), m, nm - c.dtail)
                if st == c.pks: out += self.pack_fill(m, nm)
                if st == c.pks + 3: out.append(dict(at=m + 1, ins=[('vm', self.flag_store(245, 246, f"s{sF1}"), 'f1st')]))
                if st == 3: out += [dict(at=m + 3 + 5 * k, ins=g) for k, g in enumerate(self.wphi_reads(254))]
                if st == c.f1s - 1: out += [dict(at=m + nm - c.dtail + 2 * k, chain=1, ins=g) for k, g in enumerate(self.f1_issue())]
                if st == c.f1s:
                    chk = [dict(at=m + c.f1c + 2 * k, ins=[it]) for k, it in enumerate(self.f1_check())]
                    out += chk
                    if c.bt: out += [dict(at=m + c.f1c + 26 + c.btsp * k, ins=g) for k, g in enumerate(self.btouch())]
                if st == 8:
                    if poison: out += self.paced(poison, m, 30)
                    self.bg0 = max(m + c.bgs, (m + c.f1c + 28) if c.f1s == 8 else 0)
                return out
            return f
        self.bg0 = 9999; self.wphi_addr(254)
        self.stream(mf, reads, [], {st: mksync(st) for st in range(10)}, name=name, bg=lambda m: (lambda u: m >= self.bg0 and u < 51))
        self.stamp(1); self.stamp(11, 2)

    def ph2_pre(self):
        e = self.e
        mk_srd(e, SM, pB2, 1280); mk_srd(e, SPK, pOUT, 2048 * 1280)
        e(f"""s_mul_i32 s{sM0}, s{sNB}, 160
        s_and_b32 s{sM0+1}, s{sNB}, 1
        s_lshl_b32 s{sM0+2}, s{sM0+1}, 5
        s_add_u32 s{sM0+2}, s{sM0+2}, s{sM0}
        s_xor_b32 s{sM0+1}, s{sM0+1}, 1
        s_lshl_b32 s{sM0+1}, s{sM0+1}, 7
        s_add_u32 s{sM0+1}, s{sM0+1}, s{sM0}
        s_min_u32 s{sM0+3}, s{sW}, 1
        s_mul_i32 s{sM0+3}, s{sM0+3}, 1280
        s_sub_u32 s{SM+2}, 1280, s{sM0+3}
        s_lshr_b32 s{sM0+5}, s{sRB}, 1
        s_lshl_b32 s{sM0+3}, s{sM0+5}, 11
        s_add_u32 s{sM0+3}, s{sM0+3}, {F4}
        s_add_u32 s{sM0+4}, s{sM0+3}, 1024
        v_and_b32 v235, 7, v0
        v_lshlrev_b32 v235, 7, v235""")
        e.vmop(self.poll_issue(235, 252, 2, None, f"s{sM0+3}"), 'p4a')

    def poll4b_issue(self): self.e.vmop(self.poll_issue(235, 252, 2, None, f"s{sM0+4}"), 'p4b')
    def poll4b_check(self):
        e = self.e
        self.stamp(10)
        e.wait(vm='p4b')
        for l in self.poll_check([(235, 252, 2, f"s{sM0+4}")]): e(l)
        self.stamp(11)
        self.gate[1] = True; self.g_loads()
        for _ in range(self.c.burst): self.try_issue(self.m, True)
    def g_loads(self):
        e = self.e
        e(f"s_lshl_b32 s{sT0}, s{sRB}, 10\ns_add_u32 s{sT0}, s{sT0}, {GB}\nv_lshlrev_b32 v7, 4, v1")
        for jj in range(4):
            e(f"v_subrev_u32 v8, v6, v{236+jj}\nv_lshrrev_b32 v8, 2, v8\nv_add_u32 v8, v8, v7")
            e.vmop(f"buffer_load_dword v{241+jj}, v8, {srd(SWS)}, s{sT0} offen sc1", 'g')
    def bias2(self):
        e = self.e; BI = 96
        e.wait(vm='b2')
        for t in range(5):
            for h in range(2):
                s_ = 224 + 2 * t + h
                e(f"v_lshlrev_b32 v{BI+4*t+2*h}, 16, v{s_}\nv_and_b32 v{BI+4*t+2*h+1}, 0xffff0000, v{s_}")

    def ph2_begin(self, pool):
        e = self.e; c = self.c
        e.wait(vm='p4a')
        for l in self.poll_check([(235, 252, 2, f"s{sM0+3}")]): e(l)
        self.pool = pool; self.busy = []; self.Aloc = {}; self.Bl = dict(self.Bloc); self.Acur = {}
        groups = [(0, 1), (2, 3), (4, 5), (6, 7), (8, 9), (10, 11), (12, 13), (14, 15), (16, 17, 18)]
        self.mf = [(i, t, j) for g in groups for t in range(5) for j in range(4) for i in g]
        fA, lA, fB, lB = {}, {}, {}, {}
        for m, (i, t, j) in enumerate(self.mf):
            fA.setdefault((i, j), m); lA[(i, j)] = m; fB.setdefault((i, t), m); lB[(i, t)] = m
        self.lA, self.lB = lA, lB
        w = [('A', k, fA[k] if k[0] < 14 else (280 if k[0] < 16 else 320) - c.vlead - 1, lA[k]) for k in fA]
        w += [('S', k, fB[k], lB[k]) for k in fB if self.Bl[k] and self.Bl[k][0] == 'l']
        w += [('B', k, fB[k], lB[k]) for k in fB if self.Bl[k] is None]
        self.fB = fB
        self.work = sorted(w, key=lambda x: x[2]); self.gate = {0: True, 1: False, 2: False, 3: False}; self.Atxt = {}; self.lastiss = -99; self.m = 0
        for _ in range(c.a0): self.try_issue(0, True)
        e("v_lshlrev_b32 v7, 4, v2\nv_lshlrev_b32 v234, 3, v2")
        e.vmop(f"buffer_load_dwordx4 v[224:227], v7, {srd(SM)}, s{sM0+2} offen", 'b2')
        e.vmop(f"buffer_load_dwordx4 v[228:231], v7, {srd(SM)}, s{sM0+2} offen offset:64", 'b2')
        e.vmop(f"buffer_load_dwordx2 v[232:233], v234, {srd(SM)}, s{sM0+1} offen", 'b2')

    def try_issue(self, m, force=False, nos=False):
        e = self.e; c = self.c; pool = self.pool
        cls = lambda i: 0 if i < 10 else (1 if i < 14 else 2 if i < 16 else 3)
        for w in self.work:
            kind, k, dl, last = w
            if kind == 'A' and not self.gate[cls(k[0])]: continue
            if kind == 'S' and (nos or dl - m > 16 or self.Border.index(k) in self.Bpend): continue
            if kind != 'S' and not force and dl - m >= 12 and e.t - e.tvm < (c.S2 if dl - m >= c.urg else c.S3): continue
            if kind == 'P':
                self.Bpend.remove(k); self.emit_items(self.B_take([k])[0]); self.work.remove(w); return True
            ok = [p for p in pool if p[1] > last and p not in self.busy and (p[0][0] == 'v' or kind != 'A' or k[0] < 14)]
            if not (kind == 'A' and k[0] >= 14): ok.sort(key=lambda p: p[0][0] == 'v' and m > 150)
            if len(ok) < (1 if dl - m <= 40 else 4 if kind == 'A' else 7): continue
            p = ok[0]; pool.remove(p); loc = p[0]; self.until[loc] = p[1]
            if kind == 'A':
                i, j = k; sr = sAT if i % 2 == 0 else sAT2
                if self.Acur.get(sr) != i:
                    e(f"s_mov_b32 s{sr}, s{sA9}" if self.koff(i) == 36 else f"s_add_u32 s{sr}, s{sA}, {self.koff(i)*4096}"); self.Acur[sr] = i
                e.vmop(f"buffer_load_dwordx4 {R(loc)}, v{236+j}, {srd(SWS)}, s{sB if c.xA and i < 14 else sr} offen sc1", ('A', k)); self.Aloc[k] = loc
                self.Atxt[k] = [f"s_add_u32 s{sT1}, s{sA}, {self.koff(i)*4096}", f"buffer_load_dwordx4 {R(loc)}, v{236+j}, {srd(SWS)}, s{sT1} offen sc1"]
            elif kind == 'B':
                self.emit_items(self.B_items(k, loc)); self.Bl[k] = loc
            else:
                e.wait(vm=('B', k))
                e.lgop(f"ds_read_b128 {R(loc)}, v234 offset:{self.Bl[k][1]*1024}", ('S', k)); self.Bl[k] = loc
            if kind != 'S': self.lastiss = m
            if c.verbose > 1: print(f'{kind}{k}@{m}->{dl}', end=' ')
            self.work.remove(w); return True
        return False

    def phase2(self, hooks):
        e = self.e; c = self.c
        ACC = 16; BI = 96; pool = self.pool; mf = self.mf; Bl = self.Bl; Aloc = self.Aloc
        mtrans = min(m for m, x in enumerate(mf) if x[0] >= 14)
        if c.verbose: print("B loads left for phase 2:", len(self.Bpend))
        for u in self.Bpend:
            k = self.Border[u]; self.work.append(('P', u, self.fB[k] - (20 if self.Bloc[k][0] == 'l' else 0), 0))
        self.work.sort(key=lambda x: x[2])
        e(f"s_add_u32 s{sT0}, s88, {L_BL}\nv_add_u32 v234, s{sT0}, v6")
        pool += [[('v', r), 999] for r in (224, 228)]
        seen = set(); vchk = {280: (14, 15), 320: (16, 17, 18)}
        aq = []
        lastH = {}; firstO = {}; lastO = {}
        for m, (i, t, j) in enumerate(mf):
            if i < 14: lastH[(j, t)] = m
            else: firstO.setdefault((j, t), m); lastO[(j, t)] = m
        g0 = min(lastH.values()) - 10
        aq.append([g0, g0 + 4, ('wvm', 'g')])
        for jj in range(4): aq += [[g0, g0 + 8, ('x', self.tag_strip(241 + jj))]]
        for jj in range(4): aq += [[g0, g0 + 12, ('x', f"v_sub_f32 v{241+jj}, 1.0, v{241+jj}")]]
        for k in sorted(lastH, key=lambda k: lastH[k]):
            jj, tt = k; d = ACC + (jj * 5 + tt) * 4
            for q in range(4): aq.append([lastH[k] + 3, firstO[k] - 2, ('x', f"v_mul_f32 v{d+q}, v{241+jj}, v{d+q}")])
        adr = []
        for jj in range(1, 4):
            adr += [f"s_add_u32 s{sT0}, s{sW}, {jj}", f"s_and_b32 s{sT0}, s{sT0}, 3", f"s_mul_i32 s{sT0}, s{sT0}, 15360",
                    f"s_add_u32 s{sT0}, s{sT0}, {L_RED + (jj-1)*5120}", f"v_add_u32 v{8+jj}, s{sT0}, v6"]
        adr += [l.strip() for l in f"""s_mul_i32 s{sT0}, s{sW}, 15360
        s_add_u32 s{sT0}, s{sT0}, {L_RED}
        v_add_u32 v8, s{sT0}, v6
        s_lshl_b32 s{sT0}, s{sRB}, 2
        s_add_u32 s{sT0}, s{sT0}, s{sW}
        s_mul_i32 s{sT0}, s{sT0}, {16*1280}
        s_add_u32 s{sT3}, s{sT0}, s{sM0+2}
        s_add_u32 s{sT2}, s{sT0}, s{sM0+1}
        v_mul_u32_u24 v12, 1280, v1
        v_lshl_add_u32 v13, v2, 3, v12
        v_lshl_add_u32 v12, v2, 4, v12""".split("\n")]
        for l in adr: aq.append([c.adr0, 325, ('x', l)])
        for k in sorted(lastO, key=lambda k: lastO[k]):
            jj, tt = k
            if jj: aq.append([lastO[k] + 3, 999, ('lg', f"ds_write_b128 v{8+jj}, {vr(ACC+(jj*5+tt)*4)} offset:{tt*1024}", 'rw')])
        self.aq = aq
        for m, (i, t, j) in enumerate(mf):
            self.m = m
            if m == mtrans: self.stamp(7)
            assert (i, j) in Aloc and Bl[(i, t)] and Bl[(i, t)][0] != 'l', (m, i, t, j)
            assert not any(a[1] < m for a in aq), (m, aq[0])
            e.wait(vm=[('A', (i, j)), ('B', (i, t))], lg=('S', (i, t)))
            d = ACC + (j * 5 + t) * 4
            cc = vr(d) if (j, t) in seen else vr(BI + 4 * t); seen.add((j, t))
            e(f"v_mfma_f32_16x16x32_bf16 {vr(d)}, {R(Bl[(i, t)])}, {R(Aloc[(i, j)])}, {cc}")
            k0 = len(e.ins)
            for loc, last in ((Aloc[(i, j)], self.lA[(i, j)]), (Bl[(i, t)], self.lB[(i, t)])):
                if last == m: pool.append([loc, self.until.get(loc, 999) if self.until.get(loc, 999) > m else 999])
            if m == 40: pool.extend([[('v', BI + 4 * k), 999] for k in range(5)])
            if m == c.o1: self.gate[2] = True
            if m == c.o2: self.gate[3] = True
            if m + 1 + c.vlead in vchk:
                mv = m + 1 + c.vlead; ks = [(ii, jj) for ii in vchk[mv] for jj in range(4)]
                assert all(k in Aloc for k in ks), (m, ks)
                vq = [('wvm', [('A', k) for k in ks])] + [('x', l) for l in self.valid_check(sum([self.Atxt[k] for k in ks], []), [Aloc[k][1] + q for k in ks for q in range(4)], 7)]
                if mv == 280: vq = [('st', 12, 1)] + vq + [('st', 13, 1), ('open',)]
                aq[:0] = [[m, mv - 1, it] for it in vq]
            if m in hooks: hooks[m]()
            self.try_issue(m)
            while any(w[2] - m < 4 for w in self.work) and self.try_issue(m): pass
            while True:
                av = [a for a in aq if a[0] <= m]
                if not av: break
                hurry = any(sum(1 for b in aq if b[1] <= a[1]) > 2 * (a[1] - m) for a in aq if a[1] < 999)
                a = min(av, key=lambda a: a[1])
                if len(e.ins) - k0 >= 2 and not hurry: break
                if a[2][0] == 'lg' and any(x.kind in ('dsw', 'dsr', 'vload', 'dma') for x in e.ins[k0:]): break
                aq.remove(a)
                if a[2][0] == 'open':
                    self.gate[3] = True
                    for _ in range(c.burst3): self.try_issue(m, True)
                elif a[2][0] == 'call': a[2][1]()
                else: self.emit_items([a[2]])
        assert not self.work, self.work
        self.stamp(8)
        for a in aq: self.emit_items([a[2]])
        e.wait(lg_all=True); e("s_barrier")
        for t in range(5):
            for s_ in range(3): e.lgop(f"ds_read_b128 {vr(116+(t*3+s_)*4)}, v8 offset:{s_*5120+t*1024}", ('rr', t))
        for t in range(5):
            e.wait(lg=('rr', t)); d = ACC + t * 4; r = 116 + t * 12
            e(f"""v_pk_add_f32 v[{d}:{d+1}], v[{d}:{d+1}], v[{r}:{r+1}]
            v_pk_add_f32 v[{d+2}:{d+3}], v[{d+2}:{d+3}], v[{r+2}:{r+3}]
            v_pk_add_f32 v[{r+4}:{r+5}], v[{r+4}:{r+5}], v[{r+8}:{r+9}]
            v_pk_add_f32 v[{r+6}:{r+7}], v[{r+6}:{r+7}], v[{r+10}:{r+11}]
            v_pk_add_f32 v[{d}:{d+1}], v[{d}:{d+1}], v[{r+4}:{r+5}]
            v_pk_add_f32 v[{d+2}:{d+3}], v[{d+2}:{d+3}], v[{r+6}:{r+7}]
            v_cvt_pk_bf16_f32 v{96+2*t}, v{d}, v{d+1}
            v_cvt_pk_bf16_f32 v{97+2*t}, v{d+2}, v{d+3}""")
            if t == 1: e.vmop(f"buffer_store_dwordx4 v[96:99], v12, {srd(SPK)}, s{sT3} offen {c.osc}", 'o')
            if t == 3: e.vmop(f"buffer_store_dwordx4 v[100:103], v12, {srd(SPK)}, s{sT3} offen offset:64 {c.osc}", 'o')
            if t == 4: e.vmop(f"buffer_store_dwordx2 v[104:105], v13, {srd(SPK)}, s{sT2} offen {c.osc}", 'o')
        self.stamp(9)
        e("s_endpgm")

    def build(self):
        e = self.e
        self.prologue()
        st = (list(e.vm), list(e.lg))
        self.until = {}
        self.prog_KV()
        e.vm, e.lg = list(st[0]), list(st[1])
        self.until = {}
        self.prog_QH()
        e("\n".join(self.tail))
        e("L_end:\ns_endpgm")
        body = e.finish()
        hdr = open('cdna_kernels/' + NAME + '.s.ref').read().split('; Override launch')[0]
        K = NAME + "_kernel"
        out = hdr + "; Generated by a hand-written Python generator (persistent fused kernel; see comments in the generator).\n"
        out += "; @launch grid=(256,1,1) block=(256,1,1) lds=163840\n"
        out += f'.amdgcn_target "amdgcn-amd-amdhsa--gfx950"\n.text\n.globl {K}\n.p2align 8\n.type {K},@function\n{K}:\n' + body
        out += f""".fill 64, 4, 0xbf800000
.section .rodata,"a"
.p2align 6
.amdhsa_kernel {K}
  .amdhsa_next_free_vgpr 512
  .amdhsa_next_free_sgpr 102
  .amdhsa_accum_offset 256
  .amdhsa_group_segment_fixed_size 0
  .amdhsa_kernarg_size 104
  .amdhsa_user_sgpr_count 2
  .amdhsa_user_sgpr_kernarg_segment_ptr 1
  .amdhsa_system_sgpr_workgroup_id_x 1
.end_amdhsa_kernel
"""
        return out

for k_, v_ in dict(rot=2, tlb=0, tlb2=0, pks=2, pke=0, f1s=8, bt=0, btsp=20, bgs=30, qleft=0, kpre=180, kord=0, kgb=1, tmask=7, wbl=0, exit_at=-1, only=0, dstamp=0, xsc='', wsc='', psc='nt', pss='sc1', xA=0, S=48, S2=32, urg=50, S3=0, kb3=8, xB=0, mix=0, perm=0, kf1=60, pe=20, pe2=20, dtail=4, qb0=14, qb1=22, se=10, a0=14, ap=4, osc='sc1 nt', touch=1, kvring=3, f1c=24,
                   f4at=40, pa=100, pb=144, p3=90, r1=30, r2=70, rspan=24, kbeg=0, kb1=20, kpa=60, mo=119, p1q=125, c1q=150, Sa=56, kb2=8, kleft=0, Sg=64, o2=226, o1=210, vlead=14, adr0=205, burst3=12, sleep2=3, f4k=8, p1=110, c1=140, burst=4).items():
    setattr(Cfg, k_, v_)

def generate(**kw):
    c = Cfg()
    for k, v in kw.items(): setattr(c, k, v)
    g = Gen(c); t = g.build()
    return t, g

if __name__ == "__main__":
    kw = {}
    for a_ in sys.argv[2:]:
        k, v = a_.split('='); kw[k] = int(v, 0) if v[0].isdigit() else v.replace('+', ' ')
    t, g = generate(**kw)
    open(sys.argv[1], 'w').write(t)
    print("instructions:", len(g.e.ins), "nops added:", g.e.nop_added)
```

```python
import sys, math
from emit import Emit
NAME = "gated_mix__linear_kernel_hedgehog__dense_activation_gelu__prompt"

TAG = 0x0
F1 = 0x1000
F2 = 0x2000; F3 = 0x6000; F4 = 0xa000; F5 = 0x12000
STAMP = 0x1000000
GB = 0x280000
PP = 0x40000; PSZ = 15360
FIN = 0x240000; FSZ = 15360
PB = 0x300000
A2 = 0x600000
OOB = 0x7ff00000

K1 = 1024
QH_ST = 46 * K1; KV_ST = 44 * K1
MISC = 154 * K1
L_WPHI = MISC; L_GATE = MISC + 3200; L_BIASKV = MISC + 4480; L_BIASQH = MISC + 3200
L_PACK = 138 * K1
WH0 = 114 * K1; WH5 = 74 * K1
L_PHI = 0; RSP = 352; L_V = 128 * RSP; RSV = 224
L_BL = 72 * K1
NL = 18
L_RED = 0
L_FIN = 64 * K1

sW = 3
SX, SQ, S1, SWS, SPK, SM = 4, 8, 12, 16, 20, 24
pX, pQKV, pPHI, pWO, pBX, pW1, pB1, pW2, pB2, pGATE, pOUT, pDBG, pWS = [32 + 2 * i for i in range(13)]
sTAG = 58
sMT, sHG, sRB, sNB = 60, 61, 62, 63
sE = 64
sT0, sT1, sT2, sT3, sT4, sT5 = 74, 75, 76, 77, 78, 79
sM0 = 80
sBT, sAT, sB9, sA9, sAT2 = 100, 101, 86, 87, 55
sAo, sBo, sA8, sB8 = 44, 45, 56, 57
sKW, sK1 = 89, 90
sF1 = 91
sPKD = 92
sA, sB = 96, 97
sC0, sC1 = 98, 99
sP0 = 28

PKA = 200
TB = 10; TBM = (1 << TB) - 1; sTB = 58
AW = 204
def srd(r): return f"s[{r}:{r+3}]"
def vr(r, n=4): return f"v[{r}:{r+n-1}]" if n > 1 else f"v{r}"
def ar(r, n=4): return f"a[{r}:{r+n-1}]"
def R(loc, n=4): return (vr if loc[0] == 'v' else ar)(loc[1], n)
def fl(x):
    import struct
    return hex(struct.unpack('<I', struct.pack('<f', x))[0])

class Cfg:
    rot = 1; map2 = 1; stamps = 0; LA = 12; spin = 200000; codepf = 1; lag = 2; th1 = 2; th2 = 4; minlead = 4; verbose = 0; sleep = 3

sKA, sKB = 0, 1
def mk_srd(e, r, p, nbytes):
    e(f"s_mov_b32 s{r}, s{p}\ns_and_b32 s{r+1}, s{p+1}, 0xffff\ns_mov_b32 s{r+2}, {nbytes}\ns_mov_b32 s{r+3}, 0x20000")

class Gen:
    def __init__(self, cfg):
        self.c = cfg; self.e = Emit(); self.tail = []; self.uid = 0; self.nstamp = 0
    def record(self, fn):
        real = self.e
        class Rec:
            def __init__(r): r.items = []; r.lg = []; r.vm = []
            def __call__(r, t):
                for l in t.strip("\n").split("\n"):
                    if l.strip(): r.items.append(('x', l.strip()))
            def vmop(r, t, tag=None): r.items.append(('vm', t, tag))
            def lgop(r, t, tag=None): r.items.append(('lg', t, tag))
        rec = Rec(); self.e = rec
        try: fn()
        finally: self.e = real
        return rec.items
    def cnt(self):
        if not self.c.cnt: return [], []
        self.ncnt = getattr(self, 'ncnt', 0) + 1; k = self.ncnt - 1
        post = ["s_load_dwordx2 s[46:47], s[40:41], 88", f"s_sub_u32 s54, {self.c.spin}, s54", "s_lshl_b32 s54, s54, 12", "s_add_u32 s54, s54, 1", "s_waitcnt lgkmcnt(0)",
                "v_mov_b32 v14, s54", "v_mov_b32 v15, 0", "s_mov_b64 exec, 1", f"global_atomic_add v15, v14, s[46:47] offset:{k*4}", "s_mov_b64 exec, -1"]
        return [], post
    def lab(self, p):
        self.uid += 1; return f"L_{p}_{self.uid}"
    def stamp(self, i, grp=1):
        if self.c.dstamp and grp == 1:
            slot = self.dmap.get(i)
            if slot is None: return
            e = self.e
            e(f"s_memrealtime s[{sC0}:{sC1}]\ns_load_dwordx2 s[46:47], s[40:41], 88\ns_waitcnt lgkmcnt(0)\nv_mov_b32 v14, s{sC0}\nv_mov_b32 v15, 0"); e.lg = []
            e("s_cmp_eq_u32 s3, 0\ns_cselect_b64 exec, 1, 0")
            L = self.lab('ds'); e(f"s_cbranch_execz {L}")
            e(f"global_atomic_umax v15, v14, s[46:47] offset:{slot*4}")
            if i == 0: e(f"v_mov_b32 v14, s54\nglobal_atomic_umax v15, v14, s[46:47] offset:4\nv_not_b32 v14, v14\nglobal_atomic_umax v15, v14, s[46:47] offset:0")
            e(f"{L}:\ns_mov_b64 exec, -1")
            return
        if not self.c.stamps or (i and self.c.stamps != grp): return
        if self.c.only and i not in (0, self.c.only): return
        e = self.e
        e(f"s_memrealtime s[{sC0}:{sC1}]\ns_memtime s[46:47]\ns_waitcnt lgkmcnt(0)"); e.lg = []
        e(f"v_mov_b32 v14, s{sC0}\nv_mov_b32 v15, s46")
        e(f"s_lshl_b32 s{sC0}, s2, 2\ns_add_u32 s{sC0}, s{sC0}, s{sW}\ns_lshl_b32 s{sC0}, s{sC0}, 7\ns_add_u32 s{sC0}, s{sC0}, {STAMP}")
        e.vmop(f"buffer_store_dwordx2 v[14:15], v245, {srd(SWS)}, s{sC0} offen offset:{i*8}", 'stamp')
        if self.c.exit_at == i and grp == 1: e("s_endpgm")
        if i == 0:
            e(f"v_mov_b32 v14, s54\nv_mov_b32 v15, s40")
            e.vmop(f"buffer_store_dwordx2 v[14:15], v245, {srd(SWS)}, s{sC0} offen offset:{15*8}", 'stamp')

    def pstamp(self, i):
        if self.c.stamps == 3: self.e(f"s_memtime s[100:101]\ns_waitcnt lgkmcnt(0)\nv_mov_b32 v{(248,249,250,251,235)[i]}, s100")
    def pstamp_flush(self):
        if self.c.stamps != 3: return
        e = self.e
        e(f"s_lshl_b32 s{sC0}, s2, 2\ns_add_u32 s{sC0}, s{sC0}, s{sW}\ns_lshl_b32 s{sC0}, s{sC0}, 7\ns_add_u32 s{sC0}, s{sC0}, {STAMP}")
        for i in range(5): e.vmop(f"buffer_store_dword v{(248,249,250,251,235)[i]}, v245, {srd(SWS)}, s{sC0} offen offset:{(2+i)*8+4} sc1", 'stamp')
    def dump(self, name, regs):
        if getattr(self.c, 'dbg', None) != name: return
        e = self.e
        e(f"s_lshl_b32 s{sBT}, s2, 2\ns_add_u32 s{sBT}, s{sBT}, s{sW}\ns_lshl_b32 s{sBT}, s{sBT}, 14\ns_add_u32 s{sBT}, s{sBT}, 0x2000000\nv_lshlrev_b32 v7, 2, v0")
        for i, r in enumerate(regs):
            e.vmop(f"buffer_store_dword v{r}, v7, {srd(SWS)}, s{sBT} offen offset:{(i%16)*256}", 'dbg')
            if i % 16 == 15: e(f"s_add_u32 s{sBT}, s{sBT}, 4096")
        e.wait(vm='dbg'); self.Bcur = None

    def poll_issue(self, vaddr, vdst, n, tag, soff="0"):
        suf = {2: 'dwordx2', 4: 'dwordx4'}[n]
        return f"buffer_load_{suf} {vr(vdst, n)}, v{vaddr}, {srd(SWS)}, {soff} offen sc1"
    def poll_check(self, loads):
        Ls, Lb = self.lab('slow'), self.lab('back')
        cmps = []; ors = []; k = 0
        prs = ['vcc', 's[28:29]', 's[30:31]', 's[46:47]']
        for (va, vd, n, so) in loads:
            for h in range(n // 2):
                cmps.append(f"v_cmp_ne_u64 {prs[k]}, s[{sTAG}:{sTAG+1}], v[{vd+2*h}:{vd+2*h+1}]")
                if k: ors.append(f"s_or_b64 vcc, vcc, {prs[k]}")
                k += 1
        cmps = cmps[::-1] if False else cmps
        fast = cmps + ors + [f"s_cbranch_vccnz {Ls}\n{Lb}:" if not (self.c.nochk & 1) else f"{Lb}:"]
        t = [f"{Ls}:", f"s_mov_b32 s54, {self.c.spin}", f"{Ls}_l:"]
        if self.c.sleep: t.append(f"s_sleep {self.c.sleep}")
        for (va, vd, n, so) in loads: t.append(self.poll_issue(va, vd, n, None, so))
        t += ["s_waitcnt vmcnt(0)"] + cmps + ors
        t += ["s_sub_u32 s54, s54, 1", f"s_cbranch_vccz {Ls}_x", "s_cmp_lg_u32 s54, 0", f"s_cbranch_scc1 {Ls}_l", f"{Ls}_x:"] + self.cnt()[1] + ["s_nop 4", f"s_branch {Lb}"]
        self.tail += t
        return fast
    def tag_check(self, reload, regs, acc):
        Ls, Lb = self.lab('slow'), self.lab('back')
        regs = list(regs); L = [f"v_xor_b32 v{acc}, s{sTB}, v{regs[0]}"]
        for r in regs[1:]: L.append(f"v_bitop3_b32 v{acc}, v{r}, s{sTB}, v{acc} bitop3:0xbe")
        L += [f"v_and_b32 v{acc}, {TBM}, v{acc}", f"v_cmp_ne_u32 vcc, 0, v{acc}"]
        t = [f"{Ls}:", f"s_mov_b32 s54, {self.c.spin}", f"{Ls}_l:"]
        if self.c.sleep: t.append(f"s_sleep {self.c.sleep2}")
        t += list(reload) + ["s_waitcnt vmcnt(0)"] + L
        t += ["s_sub_u32 s54, s54, 1", f"s_cbranch_vccz {Ls}_x", "s_cmp_lg_u32 s54, 0", f"s_cbranch_scc1 {Ls}_l", f"{Ls}_x:"] + self.cnt()[1] + ["s_nop 4", f"s_branch {Lb}"]
        self.tail += t
        return L + [f"s_cbranch_vccnz {Ls}\n{Lb}:" if not (self.c.nochk & 2) else f"{Lb}:"]
    def tag_put(self, r, src=None): return f"v_bfi_b32 v{r}, s42, v246, v{r if src is None else src}"
    def tag_strip(self, r): return f"v_and_b32 v{r}, {hex(0xffffffff ^ TBM)}, v{r}"
    def valid_check(self, reload, regs, acc):
        Ls, Lb = self.lab('slow'), self.lab('back')
        regs = list(regs); L = [f"v_max3_u32 v{acc}, v{regs[0]}, v{regs[1]}, v{regs[2 if len(regs) > 2 else 1]}"]
        r = regs[3:]
        for i in range(0, len(r), 2): L.append(f"v_max3_u32 v{acc}, v{acc}, v{r[i]}, v{r[min(i+1, len(r)-1)]}")
        L.append(f"v_cmp_eq_u32 vcc, -1, v{acc}")
        t = [f"{Ls}:", f"s_mov_b32 s54, {self.c.spin}", f"{Ls}_l:"]
        if self.c.sleep: t.append(f"s_sleep {self.c.sleep2}")
        t += list(reload) + ["s_waitcnt vmcnt(0)"] + L
        t += ["s_sub_u32 s54, s54, 1", f"s_cbranch_vccz {Ls}_x", "s_cmp_lg_u32 s54, 0", f"s_cbranch_scc1 {Ls}_l", f"{Ls}_x:"] + self.cnt()[1] + ["s_nop 4", f"s_branch {Lb}"]
        self.tail += t
        return L + [f"s_cbranch_vccnz {Ls}\n{Lb}:" if not (self.c.nochk & 4) else f"{Lb}:"]
    def flag_store(self, vaddr, vtag, soff="0"):
        return f"buffer_store_dwordx2 {vr(vtag, 2)}, v{vaddr}, {srd(SWS)}, {soff} offen sc1"

    def stream(self, mf, reads, fill, syncs=None, LA=None, name='', bg=None):
        e = self.e; LA = LA or self.c.LA
        reads = sorted(reads, key=lambda r: r[1]); rp = 0; synced = -1 if syncs else 99
        fq = sorted(fill, key=lambda f: f['at'])
        self.sid = getattr(self, 'sid', 0) + 1; sid = self.sid
        start = len(e.ins)
        def add_fill(items):
            lo = max([f['at'] for f in fq if f.get('chain')], default=-99)
            for f in items:
                if f.get('chain'): f['at'] = lo = max(f['at'], lo)
            fq.extend(items); fq.sort(key=lambda f: f['at'])
        def rd():
            nonlocal rp
            e.lgop(reads[rp][0], ('rd', sid, rp)); rp += 1
        if syncs: add_fill(syncs[0](0)); synced = 0
        while rp < len(reads) and reads[rp][1] < 8 and reads[rp][2] <= synced: rd()
        last_read = -99
        dl_of = {('rd', sid, i): r[1] for i, r in enumerate(reads)}
        def due(m): return [t for t in e.lg if t in dl_of and dl_of[t] <= m]
        ismem = lambda it: it[0] in ('vm', 'lg')
        for m in range(len(mf)):
            d = due(m)
            if d: e.wait(lg=d)
            e(mf[m])
            can = lambda: rp < len(reads) and reads[rp][2] <= synced and reads[rp][3] <= m and len(e.lg) < 15
            lead = lambda: reads[rp][1] - m
            if syncs and rp < len(reads) and reads[rp][2] > synced and m - last_read >= self.c.lag and lead() <= LA:
                synced = reads[rp][2]
                assert not any(it[0] == 'vm' and it[2] == ('S', synced) for f in fq for it in f['ins'])
                add_fill(syncs[synced](m + 1))
                if can(): rd(); last_read = m
                continue
            w = 1 if due(m + 1) else 0
            n = w; mem = 0
            if fq and fq[0]['at'] <= m:
                f = fq[0]
                if f.get('atomic'):
                    self.emit_items(f['ins']); n += len(f['ins']); mem += sum(map(ismem, f['ins'])); fq.pop(0)
                elif ismem(f['ins'][0]):
                    self.emit_items([f['ins'].pop(0)]); n += 1; mem += 1
                    if not f['ins']: fq.pop(0)
            if bg and mem == 0:
                k0 = len(e.ins)
                if self.bg_try(bg(m)): n += len(e.ins) - k0; mem += 1
            if can() and lead() <= LA and (mem == 0 or (lead() <= LA - self.c.th1 and not w)):
                rd(); n += 1; mem += 1; last_read = m
            if can() and mem == 1 and not w and lead() <= LA - self.c.th2:
                rd(); n += 1; mem += 1
            while can() and lead() <= self.c.minlead: rd(); n += 1; mem += 1; last_read = m
            while (n < 2 or (fq and fq[0]['at'] <= m - 2 and n < 3)) and fq and fq[0]['at'] <= m + 2 and not fq[0].get('atomic') and not ismem(fq[0]['ins'][0]):
                f = fq[0]; self.emit_items([f['ins'].pop(0)]); n += 1
                if not f['ins']: fq.pop(0)
            assert rp >= len(reads) or reads[rp][1] > m + 1, (m, reads[rp])
        for f in fq: self.emit_items(f['ins'])
        if self.c.verbose:
            tot = 0; g = None
            for i in e.ins[start:]:
                if i.label: continue
                if i.kind == 'mfma':
                    if g is not None: tot += max(16, g)
                    g = 8; prevmem = False
                elif g is not None:
                    mm = i.kind in ('dsr', 'dsw', 'vload', 'vstore', 'dma')
                    g += 8 if (mm and prevmem) else 4; prevmem = mm
            print(f"stream {name}: {len(mf)} mfma, est clks {tot} (ideal {16*len(mf)})")

    def prologue(self):
        e = self.e; c = self.c
        if c.stamps or c.dstamp: e("s_memrealtime s[54:55]\ns_memtime s[98:99]")
        e(f"""s_cmp_ge_u32 s2, 256
        s_cbranch_scc1 L_end
        s_load_dwordx16 s[32:47], s[0:1], 0
        s_load_dwordx4 s[48:51], s[0:1], 64
        s_load_dwordx2 s[52:53], s[0:1], 80
        s_load_dwordx2 s[56:57], s[0:1], 96""")
        if c.codepf:
            e(f"""s_getpc_b64 s[{sA}:{sB}]
            L_pf:
            s_lshr_b32 s{sT0}, s2, 3
            s_lshl_b32 s{sT0}, s{sT0}, 11
            v_lshrrev_b32 v1, 4, v0
            v_lshlrev_b32 v1, 7, v1
            v_add_u32 v1, s{sT0}, v1
            v_cmp_gt_u32 vcc, L_end-L_pf, v1
            v_cndmask_b32 v1, 0, v1, vcc""")
            e.vmop(f"global_load_dword v255, v1, s[{sA}:{sB}]", 'pf')
        e(f"""v_lshrrev_b32 v1, 6, v0
        v_and_b32 v0, 63, v0
        s_and_b32 s{sT0}, s2, 7
        v_readfirstlane_b32 s{sW}, v1
        s_lshr_b32 s{sT1}, s2, 3
        s_lshr_b32 s{sT2}, s{sT0}, 1
        s_and_b32 s{sT3}, s{sT1}, 3
        s_lshl_b32 s{sMT}, s{sT2}, 2
        s_add_u32 s{sMT}, s{sMT}, s{sT3}
        s_lshr_b32 s{sT4}, s{sT1}, 2
        s_and_b32 s{sHG}, s{sT0}, 1
        s_lshl_b32 s{sHG}, s{sHG}, 2
        s_and_b32 s{sT5}, s{sT4}, 3
        s_add_u32 s{sHG}, s{sHG}, s{sT5}""")
        if c.rot == 2:
            e(f"""s_mul_i32 s{sE}, s{sT2}, 5
            s_lshr_b32 s{sE}, s{sE}, 1
            s_and_b32 s{sT5}, s{sT0}, 1
            s_mul_i32 s{sT5}, s{sT5}, 5
            s_add_u32 s{sE}, s{sE}, s{sT5}
            s_cmp_ge_u32 s{sE}, 10
            s_cselect_b32 s{sT5}, 10, 0
            s_sub_u32 s{sE}, s{sE}, s{sT5}
            s_lshl_b32 s{sE}, s{sE}, 7""")
        elif c.rot == 3:
            e(f"s_xor_b32 s{sE}, s{sT3}, s{sT4}\ns_and_b32 s{sE}, s{sE}, 1\ns_lshl_b32 s{sE}, s{sE}, 7")
        else: e(f"s_mov_b32 s{sE}, 0")
        e(f"""v_and_b32 v1, 15, v0
        v_lshrrev_b32 v2, 4, v0
        v_bfe_u32 v3, v0, 2, 2
        v_and_b32 v4, 3, v0
        v_lshrrev_b32 v5, 3, v0
        v_lshlrev_b32 v6, 4, v0
        s_lshl_b32 s{sT2}, s{sMT}, 2
        s_add_u32 s{sT2}, s{sT2}, s{sW}
        s_mul_i32 s{sT2}, s{sT2}, {32*1280}
        v_xor_b32 v7, v2, v0
        v_and_b32 v7, 7, v7
        v_lshlrev_b32 v7, 4, v7
        v_mul_u32_u24 v8, 1280, v5
        v_add_u32 v8, s{sT2}, v8
        v_add_u32 v208, v8, v7
        v_xor_b32 v7, 64, v7
        v_add_u32 v209, v8, v7
        v_add_u32 v209, {10240-1024}, v209
        v_add_u32 v210, {2*(10240-1024)}, v208
        v_add_u32 v211, {2*(10240-1024)}, v209
        s_lshl_b32 s{sM0}, s{sW}, 12
""")
        if c.rot == 3: e(f"s_xor_b32 s{sE+1}, s{sE}, 128")
        else: e(f"s_add_u32 s{sE+1}, s{sE}, 128\ns_cmp_eq_u32 s{sE+1}, 1280\ns_cselect_b32 s{sE+1}, 0, s{sE+1}")
        for r, n in ((SX, 2048 * 1280), (SQ, 640 * 3840), (S1, 640 * 3456), (SM, 3456)): e(f"s_mov_b32 s{r+2}, {n}\ns_mov_b32 s{r+3}, 0x20000")
        e(f"s_bitcmp1_b32 s2, 7\ns_cbranch_scc1 L_QH")

    def kernarg_wait(self):
        e = self.e
        e("s_waitcnt lgkmcnt(0)"); self.pstamp(0)
        e(f"s_load_dwordx2 s[{sTAG}:{sTAG+1}], s[{pWS}:{pWS+1}], {TAG}")
        if self.c.stamps: e('s_mov_b32 s40, s98')
        if self.c.dstamp or self.c.cnt: e('s_mov_b64 s[40:41], s[0:1]')
        for r, p in ((SX, pX), (SM, pB1), (SQ, pQKV), (S1, pW1)): e(f"s_mov_b32 s{r}, s{p}\ns_and_b32 s{r+1}, s{p+1}, 0xffff")

    def pack_setup(self):
        e = self.e
        e(f"""s_lshl_b32 s{sT0}, s2, 2
        s_add_u32 s{sT0}, s{sT0}, s{sW}
        s_mul_i32 s{sT1}, s{sT0}, 6554
        s_lshr_b32 s{sT1}, s{sT1}, 16
        s_mul_i32 s{sT2}, s{sT1}, 10
        s_sub_u32 s{sT2}, s{sT0}, s{sT2}
        s_sub_u32 s{sT3}, s{sT1}, 54
        s_and_b32 s{sT3}, s{sT3}, 63
        s_mul_i32 s{sT4}, s{sT3}, 52
        s_lshr_b32 s{sT4}, s{sT4}, 8
        s_mul_i32 s{sT5}, s{sT4}, 5
        s_sub_u32 s{sT5}, s{sT3}, s{sT5}
        s_mul_i32 s{sBT}, s{sT4}, 160
        s_lshr_b32 s{sAT}, s{sT5}, 1
        s_mul_i32 s{sAT}, s{sAT}, 80
        s_and_b32 s{sT3}, s{sT5}, 1
        s_lshl_b32 s{sT3}, s{sT3}, 3
        s_add_u32 s{sAT}, s{sAT}, s{sT3}
        s_cmp_eq_u32 s{sT5}, 4
        s_cselect_b32 s{sAT}, 16, s{sAT}
        s_cselect_b32 s{sT3}, 80, 4
        s_add_u32 s{sBT}, s{sBT}, s{sAT}
        s_lshl_b32 s{sAT}, s{sT1}, 5
        s_cmp_lt_u32 s{sT1}, 54
        s_cselect_b32 s{sBT}, s{sAT}, s{sBT}
        s_cselect_b32 s{sT3}, 16, s{sT3}""")
        self.csel(sT4, 4 * 1280 - 1024, 20 * 1280 - 1024)
        self.csel(SPK + 2, 1728 * 1280, 640 * 1280)
        e(f"""s_mov_b32 s{SPK+3}, 0x20000
        s_cmp_lt_u32 s{sT0}, 740
        s_cselect_b32 s{SPK+2}, s{SPK+2}, 0
        s_mul_i32 s{sBT}, s{sBT}, 1280
        s_lshl_b32 s{sAT}, s{sT2}, 7
        s_add_u32 s32, s{sBT}, s{sAT}
        s_add_u32 s33, s32, s{sT4}
        s_add_u32 s34, s33, s{sT4}
        s_add_u32 s35, s34, s{sT4}
        v_lshrrev_b32 v9, 5, v0
        v_mul_lo_u32 v9, v9, s{sT3}
        v_and_b32 v10, 3, v5
        v_add_u32 v9, v9, v10
        v_mul_u32_u24 v9, 1280, v9
        v_and_b32 v10, 7, v0
        v_lshl_add_u32 v252, v10, 4, v9
        v_lshlrev_b32 v9, 10, v2
        v_lshl_add_u32 v9, v3, 7, v9
        v_add_u32 v9, s{sM0}, v9
        v_add_u32 v9, {L_PACK}, v9""")
        for g in range(2):
            e(f"""s_lshl_b32 s{sT3}, s{sT2}, 1
            s_add_u32 s{sT3}, s{sT3}, {g}
            s_mul_i32 s{sT4}, s{sT3}, 52
            s_lshr_b32 s{sT4}, s{sT4}, 8
            s_mul_i32 s{sT5}, s{sT4}, 5
            s_sub_u32 s{sT5}, s{sT3}, s{sT5}
            s_cmp_eq_u32 s{sT5}, 2
            s_cselect_b32 s{sT3}, 3, 4
            s_cselect_b32 s{sAT}, 32, 8
            v_lshlrev_b32 v10, s{sT3}, v4
            v_add_u32 v{PKA+2*g}, v9, v10
            v_add_u32 v{PKA+1+2*g}, s{sAT}, v{PKA+2*g}
            s_mul_i32 s{sT4}, s{sT4}, 740
            s_mul_i32 s{sAT}, s{sT1}, 5
            s_add_u32 s{sT4}, s{sT4}, s{sAT}""")
            for a_ in range(2):
                d = sPKD + 2 * g + a_
                e(f"""s_lshl_b32 s{sT3}, s{sT5}, 1
                s_add_u32 s{sT3}, s{sT3}, {a_}
                s_add_u32 s{d}, s{sT3}, 364
                s_cmp_eq_u32 s{sT3}, 5
                s_cselect_b32 s{d}, 374, s{d}
                s_cmp_lt_u32 s{sT3}, 5
                s_cselect_b32 s{d}, s{sT3}, s{d}
                s_add_u32 s{d}, s{d}, s{sT4}
                s_lshl_b32 s{d}, s{d}, 10
                s_add_u32 s{d}, s{d}, {PB}
                s_cmp_lt_u32 s{sT0}, 740
                s_cselect_b32 s{d}, s{d}, {OOB}""")
        e(f"""s_cmp_lt_u32 s{sT1}, 54
        s_cselect_b32 s{SPK}, s{pW2}, s{pWO}
        s_cselect_b32 s{SPK+1}, s{pW2+1}, s{pWO+1}
        s_and_b32 s{SPK+1}, s{SPK+1}, 0xffff""")

    def common_setup(self):
        e = self.e; c = self.c
        e(f"s_and_b32 s{sT0}, s2, 7\ns_lshr_b32 s{sT1}, s2, 3\ns_lshr_b32 s{sT2}, s{sT0}, 1\ns_and_b32 s{sT3}, s{sT1}, 3\ns_lshr_b32 s{sT4}, s{sT1}, 2")
        if c.mix: e(f"s_lshr_b32 s{sT5}, s{sT1}, 2\ns_and_b32 s{sT5}, s{sT5}, 4\ns_xor_b32 s{sT5}, s{sT5}, s{sT1}" if c.map2 else
                    f"s_lshr_b32 s{sT5}, s{sT1}, 4\ns_xor_b32 s{sT5}, s{sT5}, s{sT1}")
        if c.map2:
            if c.mix: e(f"s_and_b32 s{sRB}, s{sT5}, 7\ns_bfe_u32 s{sT5}, s{sT1}, 0x20002")
            else: e(f"s_and_b32 s{sRB}, s{sT1}, 7\ns_lshr_b32 s{sT5}, s{sT1}, 3")
            e(f"""s_lshl_b32 s{sT2}, s{sT2}, 3
            s_add_u32 s{sRB}, s{sRB}, s{sT2}
            s_and_b32 s{sNB}, s{sT0}, 1
            s_lshl_b32 s{sNB}, s{sNB}, 2
            s_add_u32 s{sNB}, s{sNB}, s{sT5}""")
        else:
            if c.mix: e(f"s_bfe_u32 s{sNB}, s{sT1}, 0x30001\ns_and_b32 s{sT3}, s{sT5}, 1\ns_lshr_b32 s{sT5}, s{sT1}, 4\ns_bfe_u32 s{sT4}, s{sT1}, 0x10001\ns_xor_b32 s{sT5}, s{sT5}, s{sT4}\ns_and_b32 s{sT3}, s{sT1}, 1\ns_lshl_b32 s{sT5}, s{sT5}, 1\ns_add_u32 s{sT3}, s{sT3}, s{sT5}")
            else: e(f"s_mov_b32 s{sNB}, s{sT4}")
            e(f"s_lshl_b32 s{sRB}, s{sT0}, 2\ns_add_u32 s{sRB}, s{sRB}, s{sT3}")
        mk_srd(e, SWS, pWS, 0x10000000); mk_srd(e, SM, pPHI, 32 * 800)
        e(f"""s_lshl_b32 s{sT3}, s{sHG}, 2
        s_add_u32 s{sT3}, s{sT3}, s{sW}
        s_mul_i32 s36, s{sT3}, 800
        s_mul_i32 s37, s{sW}, 800
        s_add_u32 s37, s37, {L_WPHI}""")
        for i in range(2, 10):
            if c.rot == 3: e(f"s_add_u32 s{sE+i}, s{sE+i-2}, 256")
            else: e(f"s_add_u32 s{sE+i}, s{sE+i-1}, 128\ns_cmp_eq_u32 s{sE+i}, 1280\ns_cselect_b32 s{sE+i}, 0, s{sE+i}")
        e(f"""s_mul_i32 s{sB}, s{sNB}, 74
        s_add_u32 s{sB}, s{sB}, s{sW}
        s_mul_i32 s{sB}, s{sB}, 5120
        s_add_u32 s{sB}, s{sB}, {PB}
        s_mul_i32 s{sA}, s{sRB}, 74
        s_add_u32 s{sA}, s{sA}, s{sW}
        s_lshl_b32 s{sA}, s{sA}, 12
        s_add_u32 s{sA}, s{sA}, {A2}
        s_xor_b32 s{sT0}, s{sRB}, s{sNB}
        s_and_b32 s{sT0}, s{sT0}, {min(c.par, 1)}
        s_mul_i32 s{sT1}, s{sT0}, {4*5120}
        s_add_u32 s{sB8}, s{sB}, {32*5120}
        s_add_u32 s{sB8}, s{sB8}, s{sT1}
        s_add_u32 s{sB9}, s{sB}, {36*5120}
        s_sub_u32 s{sB9}, s{sB9}, s{sT1}
        s_mul_i32 s{sT1}, s{sT1}, {max(c.par, 1)}
        s_sub_u32 s{sBo}, s{sB}, s{sT1}
        s_add_u32 s{sB}, s{sB}, s{sT1}
        s_lshl_b32 s{sT1}, s{sT0}, 14
        s_add_u32 s{sA8}, s{sA}, {32*4096}
        s_add_u32 s{sA8}, s{sA8}, s{sT1}
        s_add_u32 s{sA9}, s{sA}, {36*4096}
        s_sub_u32 s{sA9}, s{sA9}, s{sT1}
        s_mul_i32 s{sT1}, s{sT1}, {max(c.par, 1)}
        s_sub_u32 s{sAo}, s{sA}, s{sT1}
        s_add_u32 s{sA}, s{sA}, s{sT1}
        s_lshr_b32 s{sT1}, s{sW}, 1
        s_and_b32 s{sT3}, s{sT1}, s{sT0}
        s_cselect_b32 s{sB8}, {OOB}, s{sB8}
        s_cselect_b32 s{sA8}, {OOB}, s{sA8}
        s_andn2_b32 s{sT3}, s{sT1}, s{sT0}
        s_cselect_b32 s{sB9}, {OOB}, s{sB9}
        s_cselect_b32 s{sA9}, {OOB}, s{sA9}
        s_mul_i32 s88, s{sW}, {NL*1024}
        v_add_u32 v240, 4096, v6""")
        for j in range(4):
            e(f"s_add_u32 s{sT3}, s{sW}, {j}\ns_and_b32 s{sT3}, s{sT3}, 3\ns_lshl_b32 s{sT3}, s{sT3}, 10\nv_add_u32 v{236+j}, s{sT3}, v6")
        e(f"""s_lshl_b32 s{sF1}, s2, 3
        s_add_u32 s{sF1}, s{sF1}, {F1}
        s_cmp_eq_u32 s{sW}, 0
        s_cselect_b32 s{sF1}, s{sF1}, {OOB}
        v_mov_b32 v245, {OOB}
        v_cmp_eq_u32 vcc, 0, v0
        v_cndmask_b32 v245, v245, 0, vcc""")

    def touch(self):
        e = self.e; c = self.c
        e(f"""s_cmp_eq_u32 s{sW}, 0
        s_cselect_b64 s[28:29], s[{SX}:{SX+1}], s[{S1}:{S1+1}]
        s_cselect_b32 s30, s{SX+2}, s{S1+2}
        s_cselect_b32 s{sT0}, 12, 0
        s_add_u32 s{sT0}, s{sT0}, 68
        s_cmp_eq_u32 s{sW}, 1
        s_cselect_b64 s[28:29], s[{SQ}:{SQ+1}], s[28:29]
        s_cselect_b32 s30, s{SQ+2}, s30
        s_cselect_b32 s{sT0}, 75, s{sT0}
        s_lshl_b32 s{sT1}, 1, s{sW}
        s_and_b32 s{sT1}, s{sT1}, {c.tmask}
        s_cselect_b32 s30, s30, 0
        s_mov_b32 s31, 0x20000
        s_mul_i32 s{sT1}, s{sT0}, s2
        s_lshl_b32 s{sT1}, s{sT1}, 7
        v_lshlrev_b32 v10, 7, v0
        v_add_u32 v11, 64, v0
        v_cmp_gt_u32 vcc, s{sT0}, v11
        v_lshlrev_b32 v11, 7, v11
        v_mov_b32 v14, {OOB}
        v_cndmask_b32 v11, v14, v11, vcc""")
        e.vmop(f"buffer_load_dword v255, v10, s[28:31], s{sT1} offen", 'pf')
        e.vmop(f"buffer_load_dword v255, v11, s[28:31], s{sT1} offen", 'pf')

    def touch3_setup(self):
        e = self.e
        e(f"""s_cmp_eq_u32 s{sW}, 0
        s_cselect_b64 s[28:29], s[{SX}:{SX+1}], s[{S1}:{S1+1}]
        s_cselect_b32 s30, s{SX+2}, s{S1+2}
        s_cselect_b32 s{sT0}, 24, 21
        s_mov_b32 s44, {64*3456}
        s_cselect_b32 s44, 128, s44
        s_cselect_b64 vcc, -1, 0
        s_cmp_eq_u32 s{sW}, 1
        s_cselect_b64 s[28:29], s[{SQ}:{SQ+1}], s[28:29]
        s_cselect_b32 s30, s{SQ+2}, s30
        s_cselect_b32 s{sT0}, 23, s{sT0}
        s_cselect_b32 s44, {64*3840}, s44
        s_cmp_eq_u32 s{sW}, 3
        s_cselect_b32 s30, 0, s30
        s_mov_b32 s31, 0x20000
        s_mul_i32 s{sT1}, s{sT0}, s2
        v_add_u32 v10, s{sT1}, v0
        v_mul_u32_u24 v11, 21846, v10
        v_lshrrev_b32 v11, 16, v11
        v_mul_u32_u24 v11, {1280-384}, v11
        v_lshlrev_b32 v10, 7, v10
        v_add_u32 v11, v11, v10
        v_cndmask_b32 v10, v10, v11, vcc
        v_mov_b32 v14, {OOB}
        v_cmp_gt_u32 vcc, s{sT0}, v0
        v_cndmask_b32 v251, v14, v10, vcc""")
    def touch3(self, part):
        return [('x', f"s_mul_i32 s45, s44, {1 + 3 * part}"), ('vm', "buffer_load_dword v255, v251, s[28:31], s45 offen", 'pf')]

    def tlb_touch(self):
        e = self.e; c = self.c
        if not c.tlb: return
        if c.tlb == 1:
            e(f"v_lshlrev_b32 v10, 18, v0\nv_add_u32 v10, 0x1f800, v10")
            e.vmop(f"buffer_load_dword v255, v10, {srd(SWS)}, 0 offen sc1", 'pf')
        else:
            e(f"""s_mul_i32 s{sT0}, s{sNB}, {74*5120}
            s_add_u32 s{sT0}, s{sT0}, {PB}
            s_mul_i32 s{sT1}, s{sRB}, {74*4096}
            s_add_u32 s{sT1}, s{sT1}, {A2 - 8*65536}
            s_mul_i32 s{sT3}, s{sMT}, {2*74*4096}
            s_add_u32 s{sT3}, s{sT3}, {A2 - 16*65536}
            v_lshlrev_b32 v10, 16, v0
            v_mov_b32 v11, s{sT0}
            v_mov_b32 v14, s{sT1}
            v_cmp_le_u32 vcc, 8, v0
            v_cndmask_b32 v11, v11, v14, vcc
            v_mov_b32 v14, s{sT3}
            v_cmp_le_u32 vcc, 16, v0
            v_cndmask_b32 v11, v11, v14, vcc
            v_add_u32 v11, v11, v10
            v_subrev_u32 v14, 32, v0
            v_mul_u32_u24 v14, 0x18000, v14
            v_cmp_le_u32 vcc, 32, v0
            v_cndmask_b32 v10, v11, v14, vcc""")
            e.vmop(f"buffer_load_dword v255, v10, {srd(SWS)}, 0 offen sc1", 'pf')
        mk_srd(e, 28, pOUT, 2048 * 1280)
        e("v_lshlrev_b32 v10, 16, v0")
        e.vmop("buffer_load_dword v255, v10, s[28:31], 0 offen sc1", 'pf')
        if c.tlb2:
            for p, n in ((pB2, 1280),):
                mk_srd(e, 28, p, n); e.vmop("buffer_load_dword v255, v6, s[28:31], 0 offen", 'pf')

    def tag_wait(self):
        e = self.e
        e(f"""s_waitcnt lgkmcnt(0)
        s_add_u32 s{sTAG}, s{sTAG}, 1
        v_mov_b32 v247, s{sTAG+1}
        v_mov_b32 v246, s{sTAG}
        s_movk_i32 s42, {TBM}""")
        if self.c.xA == 2: e(f's_mov_b32 s41, {OOB}')
        e.lg = []
    def pack_loads(self):
        return [([('x', f"s_add_u32 m0, s{sM0}, {L_PACK}")] if i == 0 else []) +
                [('vm', f"buffer_load_dwordx4 v252, {srd(SPK)}, s{32+i} offen offset:{i*1024} {self.c.psc} lds", 'packld')] for i in range(4)]
    def pack_fill(self, m, nm):
        f = []
        for i in range(8):
            t, h = i >> 1, i & 1
            f.append(dict(at=m + 2 + 2 * i, ins=[('lg', f"ds_read_b64_tr_b16 a[{160+4*t+2*h}:{161+4*t+2*h}], v{PKA+t} offset:{(t>>1)*64+512*h}", 'pk')]))
        return f
    def wb_item(self):
        return [[('wvm', 'pkst'), ('vm', "buffer_wbl2 sc1", 'pkst')]] if self.c.wbl else []
    def pack_stores(self):
        return [([('wlg', 'pk')] if i == 0 else []) + [('vm', f"buffer_store_dwordx4 {ar(160+4*i)}, v6, {srd(SWS)}, s{sPKD+i} offen {self.c.pss}", 'pkst')] for i in range(4)]

    def btouch(self):
        pre = [l.strip() for l in f"""s_and_b32 s{sT0}, s{sRB}, 7
        s_lshl_b32 s{sT0}, s{sT0}, 2
        s_add_u32 s{sT0}, s{sT0}, s{sW}
        s_mul_i32 s{sT0}, s{sT0}, {93*128}
        s_mul_i32 s{sT1}, s{sNB}, {74*5120}
        s_add_u32 s{sT0}, s{sT0}, s{sT1}
        s_add_u32 s{sT0}, s{sT0}, {PB}
        v_lshlrev_b32 v248, 7, v0
        v_min_u32 v249, 28, v0
        v_lshlrev_b32 v249, 7, v249""".split("\n")]
        n = self.c.bt
        out = [[('x', l) for l in pre]]
        if n == 1:
            out[0] += [('vm', f"buffer_load_dword v255, v248, {srd(SWS)}, s{sT0} offen sc1", 'pf')]
            out.append([('x', f"s_add_u32 s{sT0}, s{sT0}, 8192"), ('vm', f"buffer_load_dword v255, v249, {srd(SWS)}, s{sT0} offen sc1", 'pf')])
        else:
            out[0] += [('x', "v_min_u32 v249, 23, v0"), ('x', "v_lshlrev_b32 v249, 7, v249")]
            for i in range(4): out.append([('vm', f"buffer_load_dword v255, v249, {srd(SWS)}, s{sT0} offen offset:0 sc1", 'pf'), ('x', f"s_add_u32 s{sT0}, s{sT0}, 3072")])
        return out
    def code_touch(self, endlab):
        Lp = self.lab('pc')
        return [('x', f"s_getpc_b64 s[30:31]\n{Lp}:"), ('x', f"s_bfe_u32 s{sT0}, s2, 0x40003"), ('x', f"s_lshl_b32 s{sT0}, s{sT0}, 2"), ('x', f"s_add_u32 s{sT0}, s{sT0}, s{sW}"),
                ('x', f"s_lshl_b32 s{sT0}, s{sT0}, 9"), ('x', "v_and_b32 v7, 3, v0"), ('x', f"v_lshl_add_u32 v7, v7, 7, s{sT0}"),
                ('x', f"v_cmp_gt_u32 vcc, {endlab}-{Lp}, v7"), ('x', "v_cndmask_b32 v7, 0, v7, vcc"), ('vm', "global_load_dword v255, v7, s[30:31]", 'pf')]
    def f1_issue(self):
        return [[('x', f"s_mov_b32 s{sT0}, {F1}"), ('x', "v_add_u32 v235, 1024, v6"), ('vm', self.poll_issue(6, 248, 4, None, f"s{sT0}"), 'f1p')],
                [('vm', self.poll_issue(235, 252, 4, None, f"s{sT0}"), 'f1p')]]
    def f1_check(self):
        chk = self.poll_check([(6, 248, 4, f"s{sT0}"), (235, 252, 4, f"s{sT0}")])
        return [('wvm', 'f1p')] + [('x', t) for t in chk] + [('x', f"s_or_b32 s{sT1}, s2, s{sW}"),
                ('x', f"s_cmp_eq_u32 s{sT1}, 0\ns_cselect_b32 s{sT1}, {TAG}, {OOB}"), ('vm', self.flag_store(245, 246, f"s{sT1}"), 'tagst')]

    def attn_voff(self, dst, cexpr_base, colbase_s):
        e = self.e
        e(f"""v_mul_u32_u24 v10, 6554, v9
        v_lshrrev_b32 v10, 16, v10
        v_mad_i32_i24 v11, v10, -10, v9""")
        self.swap23(10, 12)
        e(f"""v_mul_u32_u24 v10, 3840, v10
        v_lshl_add_u32 v10, v11, 4, v10
        v_add_u32 v{dst}, s{colbase_s}, v10""")
    def swap23(self, r, t):
        self.e(f"""v_lshrrev_b32 v{t}, 1, v{r}
        v_xor_b32 v{t}, v{t}, v{r}
        v_and_b32 v{t}, 4, v{t}
        v_mul_u32_u24 v{t}, 3, v{t}
        v_xor_b32 v{r}, v{r}, v{t}""")

    def small_dma(self, sr, vaddr, soff, ldsaddr, nlanes, tag, m0expr=None):
        e = self.e
        e(m0expr or f"s_mov_b32 m0, {ldsaddr}")
        if nlanes < 64: e(f"s_mov_b64 exec, {hex((1 << nlanes) - 1)}" if nlanes <= 32 else f"s_mov_b32 exec_hi, {hex((1 << (nlanes-32)) - 1)}")
        e.vmop(f"buffer_load_dwordx4 v{vaddr}, {srd(sr)}, {soff} offen lds", tag)
        if nlanes < 64: e("s_mov_b64 exec, -1")

    def csel(self, d, a, b):
        inl = lambda x: isinstance(x, str) or -16 <= x <= 64
        if inl(a) or inl(b): self.e(f"s_cselect_b32 s{d}, {a}, {b}")
        else: self.e(f"s_mov_b32 s{d}, {b}\ns_cselect_b32 s{d}, {a}, s{d}")

    def init_B(self):
        self.Bloc = {}; self.Bq = []
        order = [(i, t) for i in range(19) for t in range(5)]
        for u, k in enumerate(order):
            if u < 64: self.Bloc[k] = ('a', 4 * u)
            elif u < 64 + NL: self.Bloc[k] = ('l', u - 64)
            else: self.Bloc[k] = None
        self.Border = order; self.Bpend = list(range(64 + NL)); self.Bcur = None; self.Acur = None
    def koff(self, i): return 4 * i - (2 if i >= 10 else 0)
    def soff(self, d, i, w):
        e_, o_, s8, s9, unit = (sB, sBo, sB8, sB9, 5120) if w == 'B' else (sA, sAo, sA8, sA9, 4096)
        if i in (8, 9): return f"s_mov_b32 s{d}, s{s8 if i == 8 else s9}"
        if i == 18: return f"s_add_u32 s{d}, s{e_}, s{o_}\ns_lshr_b32 s{d}, s{d}, 1\ns_add_u32 s{d}, s{d}, {self.koff(i)*unit}"
        idx = i if i < 10 else i - 10 if i < 14 else i - 14
        return f"s_add_u32 s{d}, s{e_ if idx & max(self.c.par, 1) == 0 else o_}, {self.koff(i)*unit}"
    def B_items(self, k, loc):
        i, t = k; it = []
        if self.Bcur != i:
            it.append(('x', self.soff(sBT, i, 'B'))); self.Bcur = i
        va, imm = (6, t * 1024) if t < 4 else (240, 0)
        if loc[0] == 'l':
            assert L_BL + loc[1]*1024 - imm >= 0
            it.append(('x', f"s_add_u32 m0, s88, {L_BL + loc[1]*1024 - imm}"))
            it.append(('vm', f"buffer_load_dwordx4 v{va}, {srd(SWS)}, s{sBT} offen offset:{imm} sc1 lds", ('B', k)))
        else:
            it.append(('vm', f"buffer_load_dwordx4 {R(loc)}, v{va}, {srd(SWS)}, s{sBT} offen offset:{imm} sc1", ('B', k)))
        return it
    def B_take(self, us):
        out = []
        for u in us:
            k = self.Border[u]; out.append(self.B_items(k, self.Bloc[k]))
            if self.c.xB == 1: out[-1] = [('x', 's_nop 0')]
            if self.c.xB == 2: out[-1] = [(it[0], it[1].replace(f"s{sBT} offen", "s43 offen"), it[2]) if it[0] == 'vm' else it for it in out[-1]]
            if self.c.xB == 3: out[-1] = [(it[0], it[1].replace(f"s{sBT} offen", f"s{sB} offen"), it[2]) if it[0] == 'vm' else it for it in out[-1]]
        return out
    def ph2_bg(self, u): pass
    def bg_try(self, allowed, S=None):
        e = self.e
        if e.t - e.tvm < (S or self.c.S): return False
        if allowed == self.ph2_bg: return self.try_issue(self.m, True, True)
        for u in self.Bpend:
            if allowed(u):
                self.Bpend.remove(u); self.emit_items(self.B_take([u])[0]); return True
        return False
    def emit_items(self, items):
        e = self.e
        for it in items:
            if it[0] == 'vm': e.vmop(it[1], it[2])
            elif it[0] == 'lg': e.lgop(it[1], it[2])
            elif it[0] == 'wvm': e.wait(vm=it[1])
            elif it[0] == 'wlg': e.wait(lg=it[1])
            elif it[0] == 'st': self.stamp(it[1], it[2])
            else: e(it[1])
    def valu(self, lines, side=None, every=1, bg=None, S=None):
        n = 0
        for l in lines:
            if isinstance(l, str): self.e(l)
            else: self.emit_items([l])
            n += 1
            if side and n % every == 0: self.emit_items(side.pop(0))
            if bg: self.bg_try(bg, S)

    def interleave(self, items, side, every):
        W = ('s_cmp', 's_add', 's_sub', 's_and', 's_andn2', 's_or', 's_xor', 's_lshl', 's_lshr', 's_bitcmp', 's_min', 's_max')
        Rd = ('s_cselect', 's_addc', 's_subb', 's_cbranch_scc')
        live = [False] * len(items); l = False
        for i in range(len(items) - 1, -1, -1):
            live[i] = l
            t = items[i][1]
            if t.startswith(Rd): l = True
            elif t.startswith(W): l = False
        n = 0
        for i, it in enumerate(items):
            self.emit_items([it]); n += 1
            if side and n >= every and not live[i]: self.emit_items(side.pop(0)); n = 0
        for g in side: self.emit_items(g)

    def gelu_lines(self, X, Y, T, O):
        U = [X, X + 2, Y, Y + 2]; L = []
        P = lambda r: f"v[{r}:{r+1}]"
        for i in range(4): L.append(f"v_pk_mul_f32 {P(T+2*i)}, {P(U[i])}, {P(U[i])}")
        for i in range(4): L.append(f"v_pk_fma_f32 {P(T+2*i)}, {P(T+2*i)}, v[14:15], s[{sC0}:{sC1}] op_sel_hi:[1,0,0]")
        for i in range(4): L.append(f"v_pk_mul_f32 {P(T+2*i)}, {P(T+2*i)}, {P(U[i])}")
        for i in range(8): L.append(f"v_exp_f32 v{T+i}, v{T+i}")
        for i in range(4): L.append(f"v_pk_add_f32 {P(T+2*i)}, {P(T+2*i)}, 1.0 op_sel_hi:[1,0]")
        for i in range(8): L.append(f"v_rcp_f32 v{T+i}, v{T+i}")
        for i in range(4): L.append(f"v_pk_mul_f32 {P(T+2*i)}, {P(T+2*i)}, {P(U[i])}")
        for i in range(4): L.append(f"v_cvt_pk_bf16_f32 v{O+i}, v{T+2*i}, v{T+2*i+1}")
        return L if not (self.c.skip & 1) else L[-8:]
    def gelu_consts(self):
        c1 = -2.0 * math.sqrt(2.0 / math.pi) * math.log2(math.e)
        self.e(f"s_mov_b32 s{sC0}, {fl(c1)}\nv_mov_b32 v14, {fl(c1 * 0.044715)}")
    def softmax_lines(self, Pp, E, PH):
        L = []; P = lambda r: f"v[{r}:{r+1}]"
        L += [f"v_max3_f32 v8, v{Pp}, v{Pp+1}, v{Pp+2}", f"v_min3_f32 v10, v{Pp}, v{Pp+1}, v{Pp+2}"]
        for i in range(3, 19, 2): L += [f"v_max3_f32 v8, v8, v{Pp+i}, v{Pp+i+1}", f"v_min3_f32 v10, v10, v{Pp+i}, v{Pp+i+1}"]
        L += [f"v_max_f32 v8, v8, v{Pp+19}", f"v_min_f32 v10, v10, v{Pp+19}"]
        L += [f"v_mul_f32_e64 v8, -v8, s{sC0}", f"v_mul_f32 v10, s{sC0}, v10"]
        for i in range(10):
            L.append(f"v_pk_fma_f32 {P(E+2*i)}, {P(Pp+2*i)}, s[{sC0}:{sC1}], v[8:9] op_sel_hi:[1,0,0]")
            L.append(f"v_pk_fma_f32 {P(E+20+2*i)}, {P(Pp+2*i)}, s[{sC0}:{sC1}], v[10:11] op_sel_hi:[1,0,0] neg_lo:[1,0,0] neg_hi:[1,0,0]")
        for i in range(40): L.append(f"v_exp_f32 v{E+i}, v{E+i}")
        L += [f"v_pk_add_f32 v[8:9], {P(E)}, {P(E+2)}", f"v_pk_add_f32 v[10:11], {P(E+20)}, {P(E+22)}"]
        for i in range(2, 10): L += [f"v_pk_add_f32 v[8:9], v[8:9], {P(E+2*i)}", f"v_pk_add_f32 v[10:11], v[10:11], {P(E+20+2*i)}"]
        L += ["v_add_f32 v8, v8, v9", "v_add_f32 v10, v10, v11", "v_rcp_f32 v8, v8", "v_rcp_f32 v10, v10"]
        for i in range(10): L.append(f"v_pk_mul_f32 {P(E+2*i)}, {P(E+2*i)}, v[8:9] op_sel_hi:[1,0]")
        for i in range(10): L.append(f"v_pk_mul_f32 {P(E+20+2*i)}, {P(E+20+2*i)}, v[10:11] op_sel_hi:[1,0]")
        for i in range(20): L.append(f"v_cvt_pk_bf16_f32 v{PH+i}, v{E+2*i}, v{E+2*i+1}")
        return L if not (self.c.skip & 2) else [l if 'cvt' in l else '' for l in L]
    def wphi_addr(self, va):
        self.e(f"v_mul_u32_u24 v{va}, 800, v2\nv_mad_u32_u24 v{va}, v3, 40, v{va}\nv_add_u32 v{va}, {L_WPHI}, v{va}")
    def wphi_reads(self, va):
        return [[('lg', f"ds_read_b64_tr_b16 a[{AW+2*(dg*5+fg)}:{AW+1+2*(dg*5+fg)}], v{va} offset:{dg*160 + fg*8}", 'wphi')] for dg in range(5) for fg in range(5)]
    def phi_mfmas(self, KQ, Pp):
        L = []
        for dg in range(5):
            for j in range(2):
                for fg in range(5):
                    d = Pp + 20 * j + 4 * fg; w = AW + 2 * (dg * 5 + fg); b = KQ + 10 * j + 2 * dg
                    L.append(f"v_mfma_f32_4x4x4_16b_bf16 {vr(d)}, a[{w}:{w+1}], v[{b}:{b+1}], {vr(d) if dg else 0}")
        return L
    def cvt_heads(self, acc0, dst, j, n=5):
        return [f"v_cvt_pk_bf16_f32 v{dst+2*t+h}, v{acc0+(t*2+j)*4+2*h}, v{acc0+(t*2+j)*4+2*h+1}" for t in range(n) for h in range(2)]
    def rho0(self, dst):
        self.e(f"v_lshrrev_b32 v{dst}, 1, v2\nv_lshl_add_u32 v{dst}, v{dst}, 4, v3\nv_and_b32 v7, 1, v2\nv_lshl_add_u32 v{dst}, v7, 2, v{dst}")
    def x_addr(self, ST, nsl=3, base=220):
        e = self.e
        e(f"""v_lshrrev_b32 v9, 1, v1
        v_xor_b32 v9, v9, v2
        v_lshlrev_b32 v9, 4, v9
        v_lshl_add_u32 v9, v1, 7, v9
        v_add_u32 v{base}, s{sM0}, v9
        v_xor_b32 v{base+1}, 64, v{base}""")
        for sl in range(1, nsl): e(f"v_add_u32 v{base+2*sl}, {sl*ST}, v{base}\nv_add_u32 v{base+1+2*sl}, {sl*ST}, v{base+1}")
    def paced(self, groups, m0, span):
        n = len(groups)
        return [dict(at=m0 + int((k + 0.2) * span / n), chain=1, ins=list(g)) for k, g in enumerate(groups)]
    def prog_QH(self):
        e = self.e; c = self.c; self.init_B(); self.dmap = {0: 3, 1: 5, 2: 7, 3: 9, 14: 11, 7: 13, 9: 15}
        e("L_QH:")
        ST = QH_ST
        e(f"""s_mul_i32 s{sKW}, s{sHG}, 320
        s_lshl_b32 s{sT0}, s{sHG}, 8
        s_add_u32 s{sT0}, s{sT0}, 384
        s_cmp_lt_u32 s{sHG}, 6
        s_cselect_b32 s{sKW}, s{sKW}, s{sT0}
        s_cselect_b32 s{sK1}, 20, 16
        s_mul_i32 s{sT2}, s{sW}, 320""")
        def dma_x(st):
            g = []
            for j in range(4):
                it = [('x', f"s_add_u32 m0, s{sM0}, {(st%3)*ST}")] if j == 0 else []
                g.append(it + [('vm', f"buffer_load_dwordx4 v{208+j}, {srd(SX)}, s{sE+st} offen offset:{j*1024} {c.xsc} lds", ('S', st))])
            return g
        def dma_a(st, i):
            it = []
            if i == 0: it = [('x', f"s_mul_i32 s{sKA}, s{sE+st}, 1920"), ('x', f"s_add_u32 m0, s{sM0+1}, {(st%3)*ST}")]
            if i == 2: it = [('x', f"s_mov_b32 m0, s{sM0+3+st%3}")]
            return it + [('vm', f"buffer_load_dwordx4 v{212+i}, {srd(SQ)}, s{sKA} offen offset:{1024 if i == 1 else 0} {c.wsc} lds", ('S', st))]
        def dma_h(st, i):
            it = []
            if i == 0: it = [('x', f"s_mul_i32 s{sKB}, s{sE+st}, 1728"), ('x', f"s_add_u32 m0, s{sM0+2}, {(st%3)*ST}")]
            if i == 4: it = [('x', "s_add_u32 m0, m0, 4096")]
            return it + [('vm', f"buffer_load_dwordx4 v{215+i}, {srd(S1)}, s{sKB} offen offset:{(i%4)*1024} {c.wsc} lds", ('S', st))]
        def dma_stage(st): return dma_x(st) + [dma_a(st, i) for i in range(3)] + [dma_h(st, i) for i in range(5)]
        if c.fast:
            self.kernarg_wait()
            for g in dma_x(0): self.emit_items(g)
            self.small_dma(SM, 6, f"s{sKW}", None, 20, 'bias', f"s_add_u32 m0, s{sT2}, {L_BIASQH}")
        e(f"""s_mul_i32 s{sT0}, s{sW}, 3
        s_lshl_b32 s{sT1}, s{sW}, 1
        s_add_u32 s{sT1}, s{sT1}, 2
        s_cmp_lt_u32 s{sW}, 2
        s_cselect_b32 s{sT0}, s{sT0}, s{sT1}
        s_lshl_b32 s{sM0+1}, s{sT0}, 10
        s_add_u32 s{sM0+1}, s{sM0+1}, 16384""")
        for sl in range(3):
            e(f"s_add_u32 s{sM0+3+sl}, s{sM0+1}, {2048 + sl*ST}\ns_cmp_lt_u32 s{sW}, 2\ns_cselect_b32 s{sM0+3+sl}, s{sM0+3+sl}, {MISC+4608}")
        e(f"s_lshl_b32 s{sT0}, s{sT0}, 6\ns_mul_i32 s{sT1}, s{sHG}, 160\ns_mul_i32 s{sM0+2}, s{sW}, 5120\ns_add_u32 s{sM0+2}, s{sM0+2}, {16384+10240}")
        for i in range(3):
            e(f"v_add_u32 v9, {64*i}, v0\nv_add_u32 v9, s{sT0}, v9")
            self.attn_voff(212 + i, None, sT1)
            if i == 1: e("v_subrev_u32 v213, 1024, v213")
            if i == 2: e(f"s_cmp_lt_u32 s{sW}, 2\ns_cselect_b32 s{sT4}, 0, {OOB}\nv_add_u32 v214, s{sT4}, v214")
            if c.fast: self.emit_items(dma_a(0, i))
        if not c.fast:
            self.kernarg_wait()
            self.small_dma(SM, 6, f"s{sKW}", None, 20, 'bias', f"s_add_u32 m0, s{sT2}, {L_BIASQH}")
            for g in dma_x(0) + [dma_a(0, i) for i in range(3)]: self.emit_items(g)
        e(f"s_mul_i32 s{sT0}, s{sW}, 320\nv_mov_b32 v14, {OOB}")
        for i in range(5):
            e(f"""v_add_u32 v9, {64*i}, v0
            v_add_u32 v9, s{sT0}, v9
            v_mul_u32_u24 v10, 3277, v9
            v_lshrrev_b32 v10, 16, v10
            v_mul_u32_u24 v11, 20, v10
            v_sub_u32 v11, v9, v11
            v_bfe_u32 v13, v10, 2, 1
            v_lshlrev_b32 v13, 1, v13
            v_xor_b32 v11, v11, v13
            v_cmp_gt_u32 vcc, s{sK1}, v11""")
            self.swap23(10, 12)
            e(f"""v_mul_u32_u24 v10, 3456, v10
            v_lshl_add_u32 v10, v11, 4, v10
            v_add_u32 v10, s{sKW}, v10
            v_subrev_u32 v10, {(i%4)*1024}, v10
            v_cndmask_b32 v{215+i}, v14, v10, vcc""")
            self.emit_items(dma_h(0, i))
        self.pstamp(1)
        if c.pke:
            self.pack_setup()
            for g in self.pack_loads(): self.emit_items(g)
        if c.touch == 1: self.touch()
        if c.touch == 4:
            self.touch3_setup()
            for p_ in range(c.tp0): self.emit_items(self.touch3(p_))
        self.pstamp(2)
        def setup():
            e = self.e
            self.x_addr(ST); self.rho0(8)
            e(f"v_mul_u32_u24 v9, 160, v8\nv_mad_u32_u24 v9, v4, 40, v9\nv_add_u32 v226, 16384, v9")
            e(f"v_mul_u32_u24 v9, 320, v8\nv_lshl_add_u32 v9, v4, 3, v9\nv_add_u32 v9, {16384+10240}, v9\nv_lshl_add_u32 v229, v7, 5, v9\nv_xor_b32 v7, 1, v7\nv_lshl_add_u32 v232, v7, 5, v9")
            for sl in (1, 2): e(f"v_add_u32 v{226+sl}, {sl*ST}, v226\nv_add_u32 v{229+sl}, {sl*ST}, v229\nv_add_u32 v{232+sl}, {sl*ST}, v232")
            self.common_setup()
            if not c.pke: self.pack_setup()
            e(f"s_mul_i32 s{sT1}, s{sW}, 320\ns_add_u32 s{sT1}, s{sT1}, {L_BIASQH}\nv_lshl_add_u32 v13, v2, 3, s{sT1}")
            e(f"""s_lshl_b32 s{sT0}, s{sMT}, 1
            s_lshr_b32 s{sT1}, s{sW}, 1
            s_add_u32 s{sT0}, s{sT0}, s{sT1}
            s_and_b32 s{sT1}, s{sW}, 1
            s_mul_i32 s{sT2}, s{sT0}, 74
            s_lshl_b32 s{sT2}, s{sT2}, 12
            s_lshl_b32 s{sT3}, s{sT1}, 11
            s_add_u32 s{sT2}, s{sT2}, s{sT3}
            s_add_u32 s{sT2}, s{sT2}, {A2}
            s_lshr_b32 s{sT4}, s{sHG}, 1
            s_mul_i32 s{sT4}, s{sT4}, 5
            s_add_u32 s{sT4}, s{sT4}, 54
            s_lshl_b32 s{sT4}, s{sT4}, 12
            s_add_u32 s{sT4}, s{sT4}, s{sT2}
            s_and_b32 s{sT5}, s{sHG}, 1
            s_lshl_b32 s38, s{sT5}, 13
            s_add_u32 s38, s38, s{sT4}
            s_add_u32 s39, s{sT4}, {4*4096}
            s_lshl_b32 s{sT5}, s{sT5}, 3
            s_add_u32 s39, s39, s{sT5}
            s_lshl_b32 s{sT0}, s{sHG}, 4
            s_add_u32 s{sT0}, s{sT0}, s{sMT}
            s_lshl_b32 s{sT0}, s{sT0}, 2
            s_add_u32 s{sT0}, s{sT0}, s{sW}
            s_lshl_b32 s{sT0}, s{sT0}, 9
            s_add_u32 s43, s{sT0}, {GB}
            v_mov_b32 v204, -1
            v_mov_b32 v205, -1
            v_mov_b32 v206, -1
            v_mov_b32 v207, -1""")
        self.interleave(self.record(setup), dma_stage(1)[:c.n1], c.pe)
        self.pstamp(3)
        if c.n1 >= 12:
            self.small_dma(SM, 6, "s36", None, 50, 'misc', "s_mov_b32 m0, s37")
            if c.touch == 2: self.touch()
            if not c.pke:
                for g in self.pack_loads(): self.emit_items(g)
        self.tag_wait(); self.pstamp(4)
        e.wait(vm='bias')
        for s_ in range(10): e.lgop(f"ds_read_b64 v[{136+2*s_}:{137+2*s_}], v13 offset:{s_*32}", ('b', s_))
        for s_ in range(10):
            a0 = 16 + (5 + s_) * 8; e.wait(lg=('b', s_))
            for h in range(2): e(f"v_lshlrev_b32 v{a0+2*h}, 16, v{136+2*s_+h}\nv_and_b32 v{a0+2*h+1}, 0xffff0000, v{136+2*s_+h}")
        self.stamp(0)
        NS = 15; nm = NS * 4; mf = []; reads = []
        for st in range(10):
            sl = st % 3
            for t in range(NS):
                gs = st * NS + t; wr = 168 + 8 * (gs % 4); m0 = len(mf)
                for ks in range(2):
                    for rd in range(2):
                        if t < 5: ad, off = 226 + sl, ks * 5120 + rd * 1280 + t * 8
                        else: ad, off = (229 if (t - 5) % 2 == 0 else 232) + sl, ks * 10240 + rd * 2560 + ((t - 5) >> 1) * 64
                        reads.append([f"ds_read_b64_tr_b16 v[{wr+4*ks+2*rd}:{wr+4*ks+2*rd+1}], v{ad} offset:{off}", m0, st, m0 - 13])
                for j in ((1, 0) if st == 0 else (0, 1)):
                    for ks in range(2):
                        xr = 136 + (st % 2) * 16 + (j * 2 + ks) * 4; d = 16 + (t * 2 + j) * 4
                        if t == 0: reads.append([f"ds_read_b128 {vr(xr)}, v{220+2*sl+ks} offset:{j*2048}", len(mf), st, -1])
                        cc = vr(d)
                        if st == 0 and ks == 0: cc = "0" if t < 5 else vr(16 + t * 8)
                        mf.append(f"v_mfma_f32_16x16x32_bf16 {vr(d)}, {vr(wr+4*ks)}, {vr(xr)}, {cc}")
        po = lambda va, off: [('vm', f"buffer_store_dwordx4 v[204:207], v{va}, {srd(SWS)}, s38 offen offset:{off} sc1", 'hst')]
        poison = [po(6, 0), po(6, 1024), po(240, 0), po(240, 1024)] + [[('vm', f"buffer_store_dwordx2 v[204:205], v6, {srd(SWS)}, s39 offen offset:{j*1024} sc1", 'hst')] for j in range(2)]
        self.kloop(mf, reads, nm, dma_stage, poison, 'QH')
        A51 = lambda u: u < 51; A64 = lambda u: u < 64; ALL = lambda u: True
        self.gelu_consts()
        e(f"s_lshl_b32 s{sT3}, s{sKW}, 6\ns_add_u32 s{sT3}, s{sT3}, s{sT2}")
        L = []
        for p in range(5):
            for j in range(2):
                O = 152 + 4 * ((2 * p + j) % 4)
                L += self.gelu_lines(16 + ((5 + 2 * p) * 2 + j) * 4, 16 + ((6 + 2 * p) * 2 + j) * 4, 136 + 8 * j, O)
                if j == 0:
                    if p == 4: L += [f"s_add_u32 s{sT4}, s{sT3}, {4*4096}", f"s_cmp_lt_u32 s{sHG}, 6\ns_cselect_b32 s{sT4}, s{sT4}, {OOB}"]
                    else: L.append(f"s_add_u32 s{sT4}, s{sT3}, {p*4096}")
                L.append(('vm', f"buffer_store_dwordx4 {vr(O)}, v6, {srd(SWS)}, s{sT4} offen offset:{j*1024} sc1", 'hst'))
        self.valu(L, bg=A51, S=c.Sg)
        self.valu(self.cvt_heads(16, 56, 0) + self.cvt_heads(16, 66, 1), bg=A51)
        self.stamp(2)
        e.wait(lg='wphi')
        self.valu(self.phi_mfmas(56, 76), bg=A51)
        e(f"""s_lshl_b32 s{sT4}, s{sMT}, 4
        s_add_u32 s{sT4}, s{sT4}, s{sHG}
        s_lshl_b32 s{sT4}, s{sT4}, 7
        s_add_u32 s{sT4}, s{sT4}, {F4}
        s_cmp_eq_u32 s{sW}, 0
        s_cselect_b32 s{sT5}, s{sT4}, {OOB}
        s_mov_b32 s{sC0}, {fl(math.log2(math.e))}""")
        L1 = self.softmax_lines(76, 16, 116)
        self.valu(L1[:c.f4at], bg=A64)
        e.wait(vm='hst'); e("s_barrier")
        if c.stamps == 3: e(f"s_mov_b32 s{sC0}, {fl(math.log2(math.e))}")
        e.vmop(self.flag_store(245, 246, f"s{sT5}"), 'f4st')
        self.valu(L1[c.f4at:], bg=ALL)
        L2 = self.softmax_lines(96, 16, 136)
        self.valu(L2[:c.pa], bg=ALL)
        self.ph2_pre()
        self.valu(L2[c.pa:c.pb], bg=ALL)
        pool = [[('v', r), c.mo + 1 if r < 204 else c.p3 if r < 220 else 999] for r in list(range(204, 224, 4)) + list(range(168, 204, 4))]
        while len(self.Bpend) > c.qleft: self.bg_try(ALL, -9999)
        self.ph2_begin(pool)
        if c.stamps == 3: e(f"s_mov_b32 s{sC0}, {fl(math.log2(math.e))}")
        self.valu(L2[c.pb:], bg=ALL)
        self.stamp(3)
        pool += [[('v', r), c.mo + 1] for r in range(156, 168, 4)]
        FO = (0, 1024, 2048, 2816)
        finld = [f"buffer_load_dwordx4 {vr(204+4*i)}, v6, {srd(SWS)}, s{sKW} offen offset:{FO[i]} sc1" for i in range(4)]
        finld += [f"buffer_load_dwordx4 {vr(248+4*j)}, v13, {srd(SWS)}, s43 offen offset:{j*256} sc1" for j in range(2)]
        def h_p3():
            e(f"""s_mul_i32 s{sKW}, s{sHG}, {FSZ}
            s_mul_i32 s{sK1}, s{sW}, 3840
            s_add_u32 s{sKW}, s{sKW}, s{sK1}
            s_add_u32 s{sKW}, s{sKW}, {FIN}
            v_lshlrev_b32 v13, 4, v1""")
            for l in finld: e.vmop(l, 'fin')
        def h_o():
            self.stamp(4)
            e(f"s_lshr_b32 s{sK1}, s{sK1}, 1\ns_add_u32 s{sK1}, s{sK1}, {L_FIN}\nv_lshl_add_u32 v9, v0, 3, s{sK1}")
            e.wait(vm='fin')
            for l in self.tag_check(finld, list(range(204, 220)) + list(range(248, 256)), 8): e(l)
            self.stamp(5)
            for r in list(range(204, 220)) + [248, 252]: e(self.tag_strip(r))
            e("v_mov_b32 v250, v248\nv_mov_b32 v251, v252")
            for i in range(4):
                e(f"v_cvt_pk_bf16_f32 v{204+4*i}, v{204+4*i}, v{205+4*i}\nv_cvt_pk_bf16_f32 v{205+4*i}, v{206+4*i}, v{207+4*i}")
                e.lgop(f"ds_write_b64 v9, v[{204+4*i}:{205+4*i}] offset:{FO[i]//2}", 'fw')
            if c.p1q < 0: self.poll4b_issue()
            fr = [p for p in pool if p[0][0] == 'a'][:8]; assert len(fr) == 8; self.busy = fr
            e(f"v_lshlrev_b32 v13, 6, v2\nv_lshl_add_u32 v13, v4, 4, v13\nv_add_u32 v13, {L_FIN}, v13")
            e.wait(lg='fw'); e("s_barrier")
            self.stamp(6)
            mf = []; reads = []
            for fp in range(5):
                for dg in range(6):
                    n = fp * 6 + dg; f0 = fr[n % 8][0][1]; base = (n // 2) * 8
                    reads.append([f"ds_read_b128 {ar(f0)}, v13 offset:{(dg*5+fp)*256}", base + 2 * (n % 2), -1, base - 24])
                    for h in range(2):
                        for j in range(2):
                            d = 156 + 24 * j + 4 * dg; b = 116 + 20 * j + 2 * (2 * fp + h)
                            mf.append(f"v_mfma_f32_4x4x4_16b_bf16 {vr(d)}, a[{f0+2*h}:{f0+2*h+1}], v[{b}:{b+1}], {vr(d) if (fp or h) else 0}")
            mf2 = []
            for n in range(0, 30, 2):
                a_, b_ = mf[4*n:4*n+4], mf[4*n+4:4*n+8]
                mf2 += [a_[0], a_[1], b_[0], b_[1], a_[2], a_[3], b_[2], b_[3]]
            if c.skip & 4: mf2 = mf2[:8]; reads = reads[:2]
            self.stream(mf2, reads, [], None, LA=20, bg=lambda m: self.ph2_bg)
            for j in range(2): e(f"v_add_f32 v{8+2*j}, {fl(1e-6)}, v{156+24*j+20}")
            for j in range(2): e(f"v_rcp_f32 v{8+2*j}, v{8+2*j}")
            for j in range(2): e(f"v_mul_f32 v{8+2*j}, v{8+2*j}, v{250+j}")
            for j in range(2):
                D = 156 + 24 * j
                for i in range(10): e(f"v_pk_mul_f32 v[{D+2*i}:{D+2*i+1}], v[{D+2*i}:{D+2*i+1}], v[{8+2*j}:{9+2*j}] op_sel_hi:[1,0]")
                for i in range(10): e(f"v_cvt_pk_bf16_f32 v{D+i}, v{D+2*i}, v{D+2*i+1}")
                for i in range(10): e(f"v_min_u32 v{D+i}, -2, v{D+i}")
                e.vmop(f"buffer_store_dwordx4 {vr(D)}, v6, {srd(SWS)}, s38 offen offset:{j*1024} sc1", 'ost')
                e.vmop(f"buffer_store_dwordx4 {vr(D+4)}, v240, {srd(SWS)}, s38 offen offset:{j*1024} sc1", 'ost')
                e.vmop(f"buffer_store_dwordx2 {vr(D+8, 2)}, v6, {srd(SWS)}, s39 offen offset:{j*1024} sc1", 'ost')
            self.busy = []
            for p in pool: p[1] = 999
            pool.extend([[('v', r), 999] for r in range(116, 156, 4)])
            self.stamp(14)
        self.bias2()
        self.phase2({c.p3: h_p3, c.mo: h_o, c.p1q: self.poll4b_issue, c.c1q: self.poll4b_check})

    def prog_KV(self):
        e = self.e; c = self.c; self.init_B(); self.dmap = {0: 2, 1: 4, 3: 6, 4: 8, 5: 10, 7: 12, 9: 14}
        ST = KV_ST
        e(f"""s_mul_i32 s{sM0+1}, s{sW}, 5120
        s_add_u32 s{sM0+1}, s{sM0+1}, 16384
        s_lshl_b32 s{sM0+2}, s{sW}, 11
        s_add_u32 s{sM0+2}, s{sM0+2}, 36864
        s_lshl_b32 s{sKW}, s{sHG}, 7
        s_add_u32 s{sKW}, s{sKW}, {19*128}""")
        def dma_x(st):
            g = []
            for j in range(4):
                it = [('x', f"s_add_u32 m0, s{sM0}, {(st%3)*ST}")] if j == 0 else []
                g.append(it + [('vm', f"buffer_load_dwordx4 v{208+j}, {srd(SX)}, s{sE+st} offen offset:{j*1024} {c.xsc} lds", ('S', st))])
            return g
        def dma_w(st, i):
            it = []
            if i == 0: it = [('x', f"s_mul_i32 s{sKA}, s{sE+st}, 1920"), ('x', f"s_add_u32 m0, s{sM0+1}, {(st%3)*ST}")]
            if i == 4: it = [('x', "s_add_u32 m0, m0, 4096")]
            return it + [('vm', f"buffer_load_dwordx4 v{212+i}, {srd(SQ)}, s{sKA} offen offset:{(i%4)*1024} {c.wsc} lds", ('S', st))]
        def dma_h(st, i):
            it = [('x', f"s_mul_i32 s{sKB}, s{sE+st}, 1728"), ('x', f"s_add_u32 m0, s{sM0+2}, {(st%3)*ST}")] if i == 0 else []
            return it + [('vm', f"buffer_load_dwordx4 v{217+i}, {srd(S1)}, s{sKB} offen offset:{i*1024} {c.wsc} lds", ('S', st))]
        def dma_stage(st): return dma_x(st) + [dma_w(st, i) for i in range(5)] + [dma_h(st, i) for i in range(2)]
        if c.fast:
            self.kernarg_wait()
            for g in dma_x(0): self.emit_items(g)
            self.small_dma(SM, 6, f"s{sKW}", L_BIASKV, 8, 'bias')
        e(f"""s_and_b32 s{sT0}, s{sW}, 1
        s_mul_i32 s{sT0}, s{sT0}, 320
        s_lshr_b32 s{sT1}, s{sW}, 1
        s_add_u32 s{sT1}, s{sT1}, 1
        s_mul_i32 s{sT1}, s{sT1}, 1280
        s_mul_i32 s{sT3}, s{sHG}, 160
        s_add_u32 s{sT1}, s{sT1}, s{sT3}""")
        for i in range(5):
            e(f"v_add_u32 v9, {64*i}, v0\nv_add_u32 v9, s{sT0}, v9")
            self.attn_voff(212 + i, None, sT1)
            if i % 4: e(f"v_subrev_u32 v{212+i}, {(i%4)*1024}, v{212+i}")
            if c.fast: self.emit_items(dma_w(0, i))
        if not c.fast:
            self.kernarg_wait()
            self.small_dma(SM, 6, f"s{sKW}", L_BIASKV, 8, 'bias')
            for g in dma_x(0) + [dma_w(0, i) for i in range(5)]: self.emit_items(g)
        e(f"s_lshl_b32 s{sT3}, s{sW}, 4\nv_lshlrev_b32 v11, 1, v2\nv_xor_b32 v11, v11, v0\nv_and_b32 v11, 7, v11")
        for pp in range(2):
            e(f"v_add_u32 v10, {8*pp}, v5\nv_add_u32 v10, s{sT3}, v10")
            self.swap23(10, 12)
            e(f"""v_mul_u32_u24 v10, 3456, v10
            v_lshl_add_u32 v10, v11, 4, v10
            v_add_u32 v10, s{sKW}, v10
            v_subrev_u32 v{217+pp}, {pp*1024}, v10""")
            self.emit_items(dma_h(0, pp))
        mk_srd(e, 28, pGATE, 1280)
        if c.rot == 3: e(f"v_xor_b32 v9, s{sE}, v6\nv_add_u32 v11, 1024, v9")
        else: e(f"v_add_u32 v9, s{sE}, v6\nv_subrev_u32 v10, 1280, v9\nv_min_u32 v9, v9, v10\nv_add_u32 v11, 1024, v9\nv_subrev_u32 v10, 1280, v11\nv_min_u32 v11, v11, v10")
        self.small_dma(28, 9, "0", L_GATE, 64, ('S', 0)); self.small_dma(28, 11, "0", L_GATE + 1024, 16, ('S', 0))
        self.pstamp(1)
        if c.pke:
            self.pack_setup()
            for g in self.pack_loads(): self.emit_items(g)
        if c.touch == 1: self.touch()
        if c.touch == 4:
            self.touch3_setup()
            for p_ in range(c.tp0): self.emit_items(self.touch3(p_))
        self.pstamp(2)
        def setup():
            e = self.e
            self.x_addr(ST); self.rho0(8)
            e(f"v_mul_u32_u24 v9, 160, v8\nv_mad_u32_u24 v9, v4, 40, v9\nv_add_u32 v226, 16384, v9")
            for sl in (1, 2): e(f"v_add_u32 v{226+sl}, {sl*ST}, v226")
            e(f"v_lshlrev_b32 v9, 7, v8\nv_lshl_add_u32 v9, v4, 3, v9\nv_add_u32 v9, 36864, v9\nv_bfe_u32 v10, v8, 1, 2")
            for t in range(4): e(f"v_xor_b32 v11, {t}, v10\nv_lshl_add_u32 v{229+t}, v11, 5, v9\nv_add_u32 v{204+t}, {2*ST}, v{229+t}")
            e(f"v_lshlrev_b32 v233, 4, v2\nv_add_u32 v233, {L_GATE}, v233\nv_lshlrev_b32 v253, 3, v2\nv_add_u32 v253, {L_BIASKV}, v253")
            self.common_setup()
            if not c.pke: self.pack_setup()
            e(f"""v_lshrrev_b32 v8, 2, v1
            v_mul_u32_u24 v8, 2560, v8
            v_lshl_add_u32 v8, v4, 5, v8
            v_lshrrev_b32 v9, 1, v2
            v_lshl_add_u32 v8, v9, 9, v8
            v_and_b32 v9, 1, v2
            v_lshl_add_u32 v8, v9, 4, v8
            s_lshl_b32 s{sT0}, s{sW}, 7
            v_add_u32 v241, s{sT0}, v8
            v_add_u32 v243, 10240, v241
            v_mov_b32 v9, {OOB}
            v_cmp_ge_u32 vcc, 7, v1
            v_cndmask_b32 v243, v9, v243, vcc
            v_cmp_gt_u32 vcc, 2, v2
            v_cndmask_b32 v242, v9, v241, vcc
            v_cndmask_b32 v244, v9, v243, vcc
            v_mul_u32_u24 v12, {PSZ}, v2
            v_min_u32 v10, 14, v1
            v_lshl_add_u32 v12, v10, 4, v12
            v_lshlrev_b32 v13, 4, v1
            v_cmp_gt_u32 vcc, 16, v0
            v_cndmask_b32 v234, v9, v13, vcc
            v_cmp_gt_u32 vcc, 15, v0
            v_cndmask_b32 v13, v9, v13, vcc""")
        self.interleave(self.record(setup), dma_stage(1)[:c.n1], c.pe2)
        self.pstamp(3)
        if c.n1 >= 12:
            self.small_dma(SM, 6, "s36", None, 50, 'misc', "s_mov_b32 m0, s37")
            if c.touch == 2: self.touch()
            if not c.pke:
                for g in self.pack_loads(): self.emit_items(g)
        self.tag_wait(); self.pstamp(4)
        e.wait(vm='bias')
        for s_ in range(4): e.lgop(f"ds_read_b64 v[{136+2*s_}:{137+2*s_}], v253 offset:{s_*32}", ('b', s_))
        for s_ in range(4):
            e.wait(lg=('b', s_))
            for h in range(2): e(f"v_lshlrev_b32 v{96+8*s_+2*h}, 16, v{136+2*s_+h}\nv_and_b32 v{97+8*s_+2*h}, 0xffff0000, v{136+2*s_+h}")
        self.stamp(0)
        NS = 15; nm = NS * 4; mf = []; reads = []
        for st in range(10):
            sl = st % 3
            for t in range(NS):
                gs = st * NS + t; wr = 168 + 8 * (gs % 4); m0 = len(mf)
                for ks in range(2):
                    if t == 14: reads.append([f"ds_read_b128 {vr(wr+4*ks)}, v233 offset:{(st*2+ks)*64}", m0, st, m0 - 13]); continue
                    for rd in range(2):
                        if t < 10: ad, off = 226 + sl, (t // 5) * 10240 + ks * 5120 + rd * 1280 + (t % 5) * 8
                        else: ad, off = (229 if sl < 2 else 204) + t - 10, (sl % 2) * ST + ks * 4096 + rd * 1024
                        reads.append([f"ds_read_b64_tr_b16 v[{wr+4*ks+2*rd}:{wr+4*ks+2*rd+1}], v{ad} offset:{off}", m0, st, m0 - 13])
                for j in ((1, 0) if st == 0 else (0, 1)):
                    for ks in range(2):
                        xr = 136 + (st % 2) * 16 + (j * 2 + ks) * 4; d = 16 + (t * 2 + j) * 4
                        if t == 0: reads.append([f"ds_read_b128 {vr(xr)}, v{220+2*sl+ks} offset:{j*2048}", len(mf), st, -1])
                        cc = vr(d)
                        if st == 0 and ks == 0: cc = vr(16 + t * 8) if 10 <= t < 14 else "0"
                        mf.append(f"v_mfma_f32_16x16x32_bf16 {vr(d)}, {vr(wr+4*ks)}, {vr(xr)}, {cc}")
        self.kloop(mf, reads, nm, dma_stage, [], 'KV')
        A64 = lambda u: u < 64; ALL = lambda u: True
        A51 = lambda u: u < 51; Sa = c.Sa
        KQ = 136; PR = 168; VT = 156
        nl2e = fl(-math.log2(math.e))
        side = [l.strip() for l in f"""v_mul_f32 v128, {nl2e}, v128
        v_mul_f32 v132, {nl2e}, v132
        v_exp_f32 v128, v128
        v_exp_f32 v132, v132
        s_lshl_b32 s{sT2}, s{sMT}, 2
        v_add_f32 v128, 1.0, v128
        v_add_f32 v132, 1.0, v132
        v_rcp_f32 v128, v128
        v_rcp_f32 v132, v132
        s_add_u32 s{sT2}, s{sT2}, s{sW}
        s_lshl_b32 s{sT3}, s{sT2}, 9
        s_lshl_b32 s{sT4}, s{sHG}, 15
        s_add_u32 s{sT3}, s{sT3}, s{sT4}
        s_add_u32 s{sT3}, s{sT3}, {GB}
        v_mul_u32_u24 v220, {RSV}, v1
        v_mad_u32_u24 v220, v2, 48, v220
        s_mul_i32 s{sT0}, s{sW}, {32*RSV}
        s_add_u32 s{sT0}, s{sT0}, {L_V}
        v_add_u32 v220, s{sT0}, v220
        v_mul_u32_u24 v221, {RSP}, v1
        s_mov_b32 s{sT0}, 80
        v_mad_u32_u24 v221, v2, s{sT0}, v221
        s_mul_i32 s{sT0}, s{sW}, {32*RSP}
        v_add_u32 v221, s{sT0}, v221
        v_lshl_add_u32 v8, v2, 2, v3
        v_mul_u32_u24 v222, {RSP}, v8
        v_lshl_add_u32 v222, v4, 3, v222
        s_mul_i32 s{sT0}, s{sW}, 80
        v_add_u32 v222, s{sT0}, v222
        v_mul_u32_u24 v223, {RSV}, v8
        v_lshl_add_u32 v223, v4, 3, v223
        s_mul_i32 s{sT0}, s{sW}, 48
        s_add_u32 s{sT0}, s{sT0}, {L_V}
        v_add_u32 v223, s{sT0}, v223
        s_lshl_b32 s{sT0}, s{sHG}, 4
        s_add_u32 s{sT0}, s{sT0}, s{sMT}
        s_mul_i32 s{sT1}, s{sT0}, {PSZ}
        s_add_u32 s{sT1}, s{sT1}, {PP}
        s_mov_b32 s{sC0}, {fl(math.log2(math.e))}""".split("\n")]
        self.valu(self.cvt_heads(16, KQ, 0) + self.cvt_heads(16, KQ + 10, 1))
        e.wait(lg='wphi')
        side = self.cvt_heads(56, VT, 0) + side[:38]; rest = [side.pop() for _ in range(0)]
        self.valu(self.phi_mfmas(KQ, PR), [[('x', l)] for l in side], 1)
        e(f"v_mov_b32 v{VT+10}, 0x3f80\nv_mov_b32 v{VT+11}, 0\ns_mov_b32 s{sC0}, {fl(math.log2(math.e))}\ns_barrier")
        for i in range(3): e.lgop(f"ds_write_b128 v220, {vr(VT+4*i)} offset:{i*16}", 'vw')
        for j in range(2):
            for i in (3, 2, 1, 0): e(self.tag_put(128 + 4 * j + i, 128 + 4 * j))
            e.vmop(f"buffer_store_dwordx4 {vr(128+4*j)}, v234, {srd(SWS)}, s{sT3} offen offset:{j*256} sc1", 'hst')
        L0 = self.softmax_lines(PR, 16, 136)
        self.valu(L0[:16], bg=ALL, S=Sa)
        e.wait(lg='vw')
        self.valu(self.cvt_heads(56, VT, 1), bg=ALL, S=Sa)
        for i in range(3): e.lgop(f"ds_write_b128 v220, {vr(VT+4*i)} offset:{16*RSV + i*16}", 'vw')
        self.valu(L0[16:], bg=ALL, S=Sa)
        PH = (136, 56)
        pw = lambda j: [[('lg', f"ds_write_b128 v221, {vr(PH[j]+4*i)} offset:{j*16*RSP + i*16}", 'pw')] for i in range(5)]
        L1 = self.softmax_lines(PR + 20, 16, 56)
        self.valu(L1[:40], pw(0), 8, ALL, Sa)
        self.valu(L1[40:-20], bg=ALL, S=Sa)
        self.valu(L1[-20:], pw(1), 4)
        e.wait(lg_all=True); e("s_barrier")
        self.stamp(2)
        mf = []; reads = []; D0 = 168
        for s_ in range(4):
            b0 = 16 + s_ * 20; m0 = len(mf)
            for dt in range(2):
                for rd in range(2): reads.append([f"ds_read_b64_tr_b16 v[{b0+12+4*dt+2*rd}:{b0+13+4*dt+2*rd}], v223 offset:{(32*s_+16*rd)*RSV + dt*32}", m0 + dt, -1, -1])
            for ft in range(3):
                for rd in range(2): reads.append([f"ds_read_b64_tr_b16 v[{b0+4*ft+2*rd}:{b0+4*ft+2*rd+1}], v222 offset:{(32*s_+16*rd)*RSP + ft*32}", m0 + 2 * ft, -1, -1])
                for dt in range(2):
                    d = D0 + (ft * 2 + dt) * 4
                    mf.append(f"v_mfma_f32_16x16x32_bf16 {vr(d)}, {vr(b0+4*ft)}, {vr(b0+12+4*dt)}, {vr(d) if s_ else 0}")
        reads.sort(key=lambda r: r[1]); rp = 0
        for m in range(24):
            while rp < 40 and (len(e.lg) < 14 and (m == 0 or reads[rp][1] <= m + 8) or reads[rp][1] <= m): e.lgop(reads[rp][0], ('kv', reads[rp][1])); rp += 1
            e.wait(lg=[('kv', k) for k in range(m + 1)])
            e(mf[m])
        self.gelu_consts()
        e(f"""s_lshl_b32 s{sT4}, s{sMT}, 1
        s_lshr_b32 s{sT5}, s{sW}, 1
        s_add_u32 s{sT4}, s{sT4}, s{sT5}
        s_and_b32 s{sT5}, s{sW}, 1
        s_mul_i32 s{sT3}, s{sT4}, 74
        s_lshl_b32 s{sKW}, s{sHG}, 1
        s_add_u32 s{sT3}, s{sT3}, s{sKW}""")
        for ft in range(3):
            for dt in range(2):
                for i in range(4): e(self.tag_put(D0 + (ft * 2 + dt) * 4 + i))
                e.vmop(f"buffer_store_dwordx4 {vr(D0+(ft*2+dt)*4)}, v{241+2*dt+(ft==2)}, {srd(SWS)}, s{sT1} offen offset:{ft*1024} sc1", 'pst')
        self.stamp(3)
        if c.stamps: self.gelu_consts()
        e(f"""s_add_u32 s{sT3}, s{sT3}, 38
        s_lshl_b32 s{sT3}, s{sT3}, 12
        s_lshl_b32 s{sT5}, s{sT5}, 11
        s_add_u32 s{sT3}, s{sT3}, s{sT5}
        s_add_u32 s{sT3}, s{sT3}, {A2}
        s_lshl_b32 s{sKW}, s{sMT}, 4
        s_add_u32 s{sKW}, s{sKW}, s{sHG}
        s_lshl_b32 s{sKW}, s{sKW}, 7
        s_add_u32 s{sKW}, s{sKW}, {F4+1024}
        s_cmp_eq_u32 s{sW}, 0
        s_cselect_b32 s{sKW}, s{sKW}, {OOB}
        s_mul_i32 s32, s{sT2}, 240
        s_mul_i32 s{sT4}, s{sHG}, {FSZ}
        s_add_u32 s{sT1}, s32, s{sT4}
        s_add_u32 s{sT1}, s{sT1}, {FIN}
        s_lshl_b32 s{sT4}, s{sT4}, 4
        s_add_u32 s32, s32, s{sT4}
        s_add_u32 s32, s32, {PP}
        s_add_u32 s33, s32, {4*PSZ}
        s_add_u32 s34, s33, {4*PSZ}
        s_add_u32 s35, s34, {4*PSZ}""")
        L = []; hs = []
        for p in range(2):
            for j in range(2):
                O = 152 + 4 * ((2 * p + j) % 4)
                L += self.gelu_lines(96 + (4 * p + j) * 4, 96 + (4 * p + 2 + j) * 4, 136 + 8 * j, O)
                hs.append(('vm', f"buffer_store_dwordx4 {vr(O)}, v{6 if p == 0 else 240}, {srd(SWS)}, s{sT3} offen offset:{j*1024} sc1", 'hst'))
        RD = 116
        pld = [f"buffer_load_dwordx4 {vr(RD+4*i)}, v12, {srd(SWS)}, s{32+i} offen sc1" for i in range(4)]
        self.valu(L, bg=ALL if c.kgb else None, S=Sa)
        for l in pld: e.vmop(l, 'pld')
        self.ph2_pre()
        self.emit_items(hs)
        pool = [[('v', r), 999] for r in list(range(168, 224, 4)) + list(range(136, 168, 4))]
        for _ in range(c.kb2): self.bg_try(ALL, -9999)
        self.stamp(4)
        def h_r2():
            red = [self.tag_strip(RD + i) for i in range(16)]
            red += [f"v_add_f32 v{RD+i}, v{RD+i}, v{RD+4+i}" for i in range(4)] + [f"v_add_f32 v{RD+8+i}, v{RD+8+i}, v{RD+12+i}" for i in range(4)] + [f"v_add_f32 v{RD+i}, v{RD+i}, v{RD+8+i}" for i in range(4)]
            for sw in ('32', '16'):
                red += [f"v_mov_b32 v{RD+4+i}, v{RD+i}" for i in range(4)] + [f"v_permlane{sw}_swap_b32 v{RD+i}, v{RD+4+i}" for i in range(4)] + [f"v_add_f32 v{RD+i}, v{RD+i}, v{RD+4+i}" for i in range(4)]
            red += [self.tag_put(RD + i) for i in range(4)]
            it = [('st', 14, 1), ('wvm', 'pld')] + [('x', l) for l in self.tag_check(pld, range(RD, RD + 16), 9)] + [('st', 5, 1)] + [('x', l) for l in red]
            it += [('vm', f"buffer_store_dwordx4 {vr(RD)}, v13, {srd(SWS)}, s{sT1} offen sc1", 'fst')]
            self.emit_items(it); pool.extend([[('v', r), 999] for r in range(RD, RD + 20, 4)])
        def h_f4():
            e.wait(vm='hst'); e("s_barrier"); e.vmop(self.flag_store(245, 246, f"s{sKW}"), 'f4st')
        h_r2()
        self.ph2_begin(pool)
        while len(self.Bpend) > c.kleft: self.bg_try(ALL, -9999)
        self.stamp(6)
        self.bias2()
        self.phase2({c.f4k: h_f4, c.p1: self.poll4b_issue, c.c1: self.poll4b_check})

    def kloop(self, mf, reads, nm, dma_stage, poison, name):
        e = self.e; c = self.c; back = []
        def mksync(st):
            def f(m):
                tg = [it[2] for g in back for it in (g[1] if g[0] == 'atomic' else g) if it[0] == 'vm']
                assert not (st == c.pks and 'packld' in tg) and not (st == c.pks + 3 and 'pkst' in tg) and not (st == 3 and 'misc' in tg) and ('S', st) not in tg
                e.wait(vm=[('S', st)] + (['pkst'] if st == c.pks + 3 else []) + (['misc'] if st == 3 else []) + (['packld'] if st == c.pks else []), lg_all=True); e("s_barrier")
                self.stamp(st + 1, 2)
                if st < 3: self.stamp(7 + st, 3)
                if st == 2: self.pstamp_flush()
                out = []
                if st == 0 and c.n1 < 12:
                    back.extend(dma_stage(1)[c.n1:])
                    back.append(('atomic', self.record(lambda: self.small_dma(SM, 6, "s36", None, 50, 'misc', "s_mov_b32 m0, s37"))))
                if st + 2 < 10: back.extend(dma_stage(st + 2))
                if st == c.pkl and c.n1 < 12: back.extend(self.pack_loads())
                if st == c.pks: back.extend(self.pack_stores())
                need = max([k + 1 for k, g in enumerate(back) if g[0] != 'atomic' and g[-1][2] == ('S', st + 1)], default=0)
                n = min(len(back), max(c.quota, need)) if st < 7 else len(back)
                take = back[:n]; del back[:n]
                if take:
                    pc = self.paced([g[1] if g[0] == 'atomic' else g for g in take], m, nm - c.dtail)
                    for f, g in zip(pc, take):
                        if g[0] == 'atomic': f['atomic'] = 1
                    out += pc
                if c.touch == 4: out += [dict(at=m + nm - c.dtail + 1, chain=1, ins=self.touch3(p_)) for p_ in range(c.tp0, 3) if c.tst[p_] == st]
                if st in c.cpf: out.append(dict(at=m + nm - c.dtail + 2, ins=self.code_touch('L_QH' if name == 'KV' else 'L_end')))
                if st == c.pks: out += self.pack_fill(m, nm)
                if st == c.pks + 3: out.append(dict(at=m + 1, ins=[('vm', self.flag_store(245, 246, f"s{sF1}"), 'f1st')]))
                if st == 3: out += [dict(at=m + 3 + 5 * k, ins=g) for k, g in enumerate(self.wphi_reads(254))]
                if st == c.f1s - 1: out += [dict(at=m + nm - c.dtail + 2 * k, chain=1, ins=g) for k, g in enumerate(self.f1_issue())]
                if st == c.f1s:
                    chk = [dict(at=m + c.f1c + 2 * k, ins=[it]) for k, it in enumerate(self.f1_check())]
                    out += chk
                    if c.bt: out += [dict(at=m + c.f1c + 26 + c.btsp * k, ins=g) for k, g in enumerate(self.btouch())]
                if st == 8:
                    if poison: out += self.paced(poison, m, 30)
                    self.bg0 = max(m + c.bgs, (m + c.f1c + 28) if c.f1s == 8 else 0)
                return out
            return f
        self.bg0 = 9999; self.wphi_addr(254)
        self.stream(mf, reads, [], {st: mksync(st) for st in range(10)}, name=name, bg=lambda m: (lambda u: m >= self.bg0 and u < 51))
        self.stamp(1); self.stamp(11, 2)

    def ph2_pre(self):
        e = self.e
        mk_srd(e, SM, pB2, 1280); mk_srd(e, SPK, pOUT, 2048 * 1280)
        e(f"""s_mul_i32 s{sM0}, s{sNB}, 160
        s_and_b32 s{sM0+1}, s{sNB}, 1
        s_lshl_b32 s{sM0+2}, s{sM0+1}, 5
        s_add_u32 s{sM0+2}, s{sM0+2}, s{sM0}
        s_xor_b32 s{sM0+1}, s{sM0+1}, 1
        s_lshl_b32 s{sM0+1}, s{sM0+1}, 7
        s_add_u32 s{sM0+1}, s{sM0+1}, s{sM0}
        s_min_u32 s{sM0+3}, s{sW}, 1
        s_mul_i32 s{sM0+3}, s{sM0+3}, 1280
        s_sub_u32 s{SM+2}, 1280, s{sM0+3}
        s_lshr_b32 s{sM0+5}, s{sRB}, 1
        s_lshl_b32 s{sM0+3}, s{sM0+5}, 11
        s_add_u32 s{sM0+3}, s{sM0+3}, {F4}
        s_add_u32 s{sM0+4}, s{sM0+3}, 1024
        v_and_b32 v235, 7, v0
        v_lshlrev_b32 v235, 7, v235""")
        e.vmop(self.poll_issue(235, 252, 2, None, f"s{sM0+3}"), 'p4a')

    def poll4b_issue(self): self.e.vmop(self.poll_issue(235, 252, 2, None, f"s{sM0+4}"), 'p4b')
    def poll4b_check(self):
        e = self.e
        self.stamp(10)
        e.wait(vm='p4b')
        for l in self.poll_check([(235, 252, 2, f"s{sM0+4}")]): e(l)
        self.stamp(11)
        self.gate[1] = True; self.g_loads()
        for _ in range(self.c.burst): self.try_issue(self.m, True)
    def g_loads(self):
        e = self.e
        e(f"s_lshl_b32 s{sT0}, s{sRB}, 10\ns_add_u32 s{sT0}, s{sT0}, {GB}\nv_lshlrev_b32 v7, 4, v1")
        for jj in range(4):
            e(f"v_subrev_u32 v8, v6, v{236+jj}\nv_lshrrev_b32 v8, 2, v8\nv_add_u32 v8, v8, v7")
            e.vmop(f"buffer_load_dword v{241+jj}, v8, {srd(SWS)}, s{sT0} offen sc1", 'g')
    def bias2(self):
        e = self.e; BI = 96
        e.wait(vm='b2')
        for t in range(5):
            for h in range(2):
                s_ = 224 + 2 * t + h
                e(f"v_lshlrev_b32 v{BI+4*t+2*h}, 16, v{s_}\nv_and_b32 v{BI+4*t+2*h+1}, 0xffff0000, v{s_}")

    def ph2_begin(self, pool):
        e = self.e; c = self.c
        e.wait(vm='p4a')
        for l in self.poll_check([(235, 252, 2, f"s{sM0+3}")]): e(l)
        self.pool = pool; self.busy = []; self.Aloc = {}; self.Bl = dict(self.Bloc); self.Acur = {}
        groups = [(0, 1), (2, 3), (4, 5), (6, 7), (8, 9), (10, 11), (12, 13), (14, 15), (16, 17, 18)]
        self.mf = [(i, t, j) for g in groups for t in range(5) for j in range(4) for i in g]
        fA, lA, fB, lB = {}, {}, {}, {}
        for m, (i, t, j) in enumerate(self.mf):
            fA.setdefault((i, j), m); lA[(i, j)] = m; fB.setdefault((i, t), m); lB[(i, t)] = m
        self.lA, self.lB = lA, lB
        w = [('A', k, fA[k] if k[0] < 14 else (280 if k[0] < 16 else 320) - c.vlead - 1, lA[k]) for k in fA]
        w += [('S', k, fB[k], lB[k]) for k in fB if self.Bl[k] and self.Bl[k][0] == 'l']
        w += [('B', k, fB[k], lB[k]) for k in fB if self.Bl[k] is None]
        self.fB = fB
        self.work = sorted(w, key=lambda x: (x[2] // 40 * 40 + x[1][0] % 2 * 4 + x[1][1]) if (x[0] == 'A' and c.aord and x[1][0] < 14) else x[2]); self.gate = {0: True, 1: False, 2: False, 3: False}; self.Atxt = {}; self.lastiss = -99; self.m = 0
        for _ in range(c.a0): self.try_issue(0, True)
        e("v_lshlrev_b32 v7, 4, v2\nv_lshlrev_b32 v234, 3, v2")
        e.vmop(f"buffer_load_dwordx4 v[224:227], v7, {srd(SM)}, s{sM0+2} offen", 'b2')
        e.vmop(f"buffer_load_dwordx4 v[228:231], v7, {srd(SM)}, s{sM0+2} offen offset:64", 'b2')
        e.vmop(f"buffer_load_dwordx2 v[232:233], v234, {srd(SM)}, s{sM0+1} offen", 'b2')

    def try_issue(self, m, force=False, nos=False):
        e = self.e; c = self.c; pool = self.pool
        cls = lambda i: 0 if i < 10 else (1 if i < 14 else 2 if i < 16 else 3)
        for w in self.work:
            kind, k, dl, last = w
            if kind == 'A' and not self.gate[cls(k[0])]: continue
            if kind == 'S' and (nos or dl - m > 16 or self.Border.index(k) in self.Bpend): continue
            if kind != 'S' and not force and dl - m >= 12 and e.t - e.tvm < (c.S2 if dl - m >= c.urg else c.S3): continue
            if kind == 'P':
                self.Bpend.remove(k); self.emit_items(self.B_take([k])[0]); self.work.remove(w); return True
            ok = [p for p in pool if p[1] > last and p not in self.busy and (p[0][0] == 'v' or kind != 'A' or k[0] < 14)]
            if not (kind == 'A' and k[0] >= 14): ok.sort(key=lambda p: p[0][0] == 'v' and m > 150)
            if len(ok) < (1 if dl - m <= 40 else 4 if kind == 'A' else 7): continue
            p = ok[0]; pool.remove(p); loc = p[0]; self.until[loc] = p[1]
            if kind == 'A':
                i, j = k; sr = sAT if i % 2 == 0 else sAT2
                if self.Acur.get(sr) != i:
                    e(self.soff(sr, i, 'A')); self.Acur[sr] = i
                e.vmop(f"buffer_load_dwordx4 {R(loc)}, v{236+j}, {srd(SWS)}, s{sB if c.xA == 1 and i < 14 else 41 if c.xA == 2 else sr} offen sc1", ('A', k)); self.Aloc[k] = loc
                self.Atxt[k] = self.soff(sT1, i, 'A').split("\n") + [ f"buffer_load_dwordx4 {R(loc)}, v{236+j}, {srd(SWS)}, s{sT1} offen sc1"]
            elif kind == 'B':
                self.emit_items(self.B_items(k, loc)); self.Bl[k] = loc
            else:
                e.wait(vm=('B', k))
                e.lgop(f"ds_read_b128 {R(loc)}, v234 offset:{self.Bl[k][1]*1024}", ('S', k)); self.Bl[k] = loc
            if kind != 'S': self.lastiss = m
            if c.verbose > 1: print(f'{kind}{k}@{m}->{dl}', end=' ')
            self.work.remove(w); return True
        return False

    def phase2(self, hooks):
        e = self.e; c = self.c
        ACC = 16; BI = 96; pool = self.pool; mf = self.mf; Bl = self.Bl; Aloc = self.Aloc
        mtrans = min(m for m, x in enumerate(mf) if x[0] >= 14)
        if c.verbose: print("B loads left for phase 2:", len(self.Bpend))
        hooks = {k: v for k, v in hooks.items() if k >= 0}
        for u in self.Bpend:
            k = self.Border[u]; self.work.append(('P', u, self.fB[k] - (20 if self.Bloc[k][0] == 'l' else 0), 0))
        self.work.sort(key=lambda x: (x[2] // 40 * 40 + x[1][0] % 2 * 4 + x[1][1]) if (x[0] == 'A' and c.aord and x[1][0] < 14) else x[2])
        e(f"s_add_u32 s{sT0}, s88, {L_BL}\nv_add_u32 v234, s{sT0}, v6")
        pool += [[('v', r), 999] for r in (224, 228)]
        seen = set(); vchk = {280: (14, 15), 320: (16, 17, 18)}
        aq = []
        lastH = {}; firstO = {}; lastO = {}
        for m, (i, t, j) in enumerate(mf):
            if i < 14: lastH[(j, t)] = m
            else: firstO.setdefault((j, t), m); lastO[(j, t)] = m
        g0 = min(lastH.values()) - 10
        aq.append([g0, g0 + 4, ('wvm', 'g')])
        for jj in range(4): aq += [[g0, g0 + 8, ('x', self.tag_strip(241 + jj))]]
        for jj in range(4): aq += [[g0, g0 + 12, ('x', f"v_sub_f32 v{241+jj}, 1.0, v{241+jj}")]]
        for k in sorted(lastH, key=lambda k: lastH[k]):
            jj, tt = k; d = ACC + (jj * 5 + tt) * 4
            for q in range(4): aq.append([lastH[k] + 3, firstO[k] - 2, ('x', f"v_mul_f32 v{d+q}, v{241+jj}, v{d+q}")])
        adr = []
        for jj in range(1, 4):
            adr += [f"s_add_u32 s{sT0}, s{sW}, {jj}", f"s_and_b32 s{sT0}, s{sT0}, 3", f"s_mul_i32 s{sT0}, s{sT0}, 15360",
                    f"s_add_u32 s{sT0}, s{sT0}, {L_RED + (jj-1)*5120}", f"v_add_u32 v{8+jj}, s{sT0}, v6"]
        adr += [l.strip() for l in f"""s_mul_i32 s{sT0}, s{sW}, 15360
        s_add_u32 s{sT0}, s{sT0}, {L_RED}
        v_add_u32 v8, s{sT0}, v6
        s_lshl_b32 s{sT0}, s{sRB}, 2
        s_add_u32 s{sT0}, s{sT0}, s{sW}
        s_mul_i32 s{sT0}, s{sT0}, {16*1280}
        s_add_u32 s{sT3}, s{sT0}, s{sM0+2}
        s_add_u32 s{sT2}, s{sT0}, s{sM0+1}
        v_mul_u32_u24 v12, 1280, v1
        v_lshl_add_u32 v13, v2, 3, v12
        v_lshl_add_u32 v12, v2, 4, v12""".split("\n")]
        for l in adr: aq.append([c.adr0, 325, ('x', l)])
        for k in sorted(lastO, key=lambda k: lastO[k]):
            jj, tt = k
            if jj: aq.append([lastO[k] + 3, 999, ('lg', f"ds_write_b128 v{8+jj}, {vr(ACC+(jj*5+tt)*4)} offset:{tt*1024}", 'rw')])
        self.aq = aq
        for m, (i, t, j) in enumerate(mf):
            self.m = m
            if m == mtrans: self.stamp(7)
            assert (i, j) in Aloc and Bl[(i, t)] and Bl[(i, t)][0] != 'l', (m, i, t, j)
            assert not any(a[1] < m for a in aq), (m, aq[0])
            e.wait(vm=[('A', (i, j)), ('B', (i, t))], lg=('S', (i, t)))
            d = ACC + (j * 5 + t) * 4
            cc = vr(d) if (j, t) in seen else vr(BI + 4 * t); seen.add((j, t))
            e(f"v_mfma_f32_16x16x32_bf16 {vr(d)}, {R(Bl[(i, t)])}, {R(Aloc[(i, j)])}, {cc}")
            k0 = len(e.ins)
            for loc, last in ((Aloc[(i, j)], self.lA[(i, j)]), (Bl[(i, t)], self.lB[(i, t)])):
                if last == m: pool.append([loc, self.until.get(loc, 999) if self.until.get(loc, 999) > m else 999])
            if m == 40: pool.extend([[('v', BI + 4 * k), 999] for k in range(5)])
            if m == c.o1: self.gate[2] = True
            if m == c.o2: self.gate[3] = True
            if m + 1 + c.vlead in vchk:
                mv = m + 1 + c.vlead; ks = [(ii, jj) for ii in vchk[mv] for jj in range(4)]
                assert all(k in Aloc for k in ks), (m, ks)
                vq = [('wvm', [('A', k) for k in ks])] + [('x', l) for l in self.valid_check(sum([self.Atxt[k] for k in ks], []), [Aloc[k][1] + q for k in ks for q in range(4)], 7)]
                if mv == 280: vq = [('st', 12, 1)] + vq + [('st', 13, 1), ('open',)]
                aq[:0] = [[m, mv - 1, it] for it in vq]
            if m in hooks: hooks[m]()
            self.try_issue(m)
            while any(w[2] - m < 4 for w in self.work) and self.try_issue(m): pass
            while True:
                av = [a for a in aq if a[0] <= m]
                if not av: break
                hurry = any(sum(1 for b in aq if b[1] <= a[1]) > 2 * (a[1] - m) for a in aq if a[1] < 999)
                a = min(av, key=lambda a: a[1])
                if len(e.ins) - k0 >= 2 and not hurry: break
                if a[2][0] == 'lg' and any(x.kind in ('dsw', 'dsr', 'vload', 'dma') for x in e.ins[k0:]): break
                aq.remove(a)
                if a[2][0] == 'open':
                    self.gate[3] = True
                    for _ in range(c.burst3): self.try_issue(m, True)
                elif a[2][0] == 'call': a[2][1]()
                else: self.emit_items([a[2]])
        assert not self.work, self.work
        self.stamp(8)
        for a in aq: self.emit_items([a[2]])
        e.wait(lg_all=True); e("s_barrier")
        for t in range(5):
            for s_ in range(3): e.lgop(f"ds_read_b128 {vr(116+(t*3+s_)*4)}, v8 offset:{s_*5120+t*1024}", ('rr', t))
        for t in range(5):
            e.wait(lg=('rr', t)); d = ACC + t * 4; r = 116 + t * 12
            e(f"""v_pk_add_f32 v[{d}:{d+1}], v[{d}:{d+1}], v[{r}:{r+1}]
            v_pk_add_f32 v[{d+2}:{d+3}], v[{d+2}:{d+3}], v[{r+2}:{r+3}]
            v_pk_add_f32 v[{r+4}:{r+5}], v[{r+4}:{r+5}], v[{r+8}:{r+9}]
            v_pk_add_f32 v[{r+6}:{r+7}], v[{r+6}:{r+7}], v[{r+10}:{r+11}]
            v_pk_add_f32 v[{d}:{d+1}], v[{d}:{d+1}], v[{r+4}:{r+5}]
            v_pk_add_f32 v[{d+2}:{d+3}], v[{d+2}:{d+3}], v[{r+6}:{r+7}]
            v_cvt_pk_bf16_f32 v{96+2*t}, v{d}, v{d+1}
            v_cvt_pk_bf16_f32 v{97+2*t}, v{d+2}, v{d+3}""")
            if t == 1: e.vmop(f"buffer_store_dwordx4 v[96:99], v12, {srd(SPK)}, s{sT3} offen {c.osc}", 'o')
            if t == 3: e.vmop(f"buffer_store_dwordx4 v[100:103], v12, {srd(SPK)}, s{sT3} offen offset:64 {c.osc}", 'o')
            if t == 4: e.vmop(f"buffer_store_dwordx2 v[104:105], v13, {srd(SPK)}, s{sT2} offen {c.osc}", 'o')
        self.stamp(9)
        e("s_endpgm")

    def build(self):
        e = self.e
        self.prologue()
        st = (list(e.vm), list(e.lg))
        self.until = {}
        self.prog_KV()
        e.vm, e.lg = list(st[0]), list(st[1])
        self.until = {}
        self.prog_QH()
        e("\n".join(self.tail))
        e("L_end:\ns_endpgm")
        body = e.finish()
        hdr = open('cdna_kernels/' + NAME + '.s.ref').read().split('; Override launch')[0]
        K = NAME + "_kernel"
        out = hdr + "; Generated by a hand-written Python generator (persistent fused kernel; see comments in the generator).\n"
        out += "; @launch grid=(256,1,1) block=(256,1,1) lds=163840\n"
        out += f'.amdgcn_target "amdgcn-amd-amdhsa--gfx950"\n.text\n.globl {K}\n.p2align 8\n.type {K},@function\n{K}:\n' + body
        out += f""".fill 64, 4, 0xbf800000
.section .rodata,"a"
.p2align 6
.amdhsa_kernel {K}
  .amdhsa_next_free_vgpr 512
  .amdhsa_next_free_sgpr 102
  .amdhsa_accum_offset 256
  .amdhsa_group_segment_fixed_size 0
  .amdhsa_kernarg_size 104
  .amdhsa_user_sgpr_count 2
  .amdhsa_user_sgpr_kernarg_segment_ptr 1
  .amdhsa_system_sgpr_workgroup_id_x 1
.end_amdhsa_kernel
"""
        return out

for k_, v_ in dict(rot=3, par=0, cnt=0, cpf=(), aord=1, nochk=0, skip=0, fast=1, n1=12, quota=16, pkl=0, tp0=1, tst=(0, 0, 1), sp1=24, tlb=0, tlb2=0, pks=2, pke=0, f1s=8, bt=0, btsp=20, bgs=30, qleft=0, kpre=180, kord=0, kgb=1, tmask=7, wbl=0, exit_at=-1, only=0, dstamp=0, xsc='', wsc='', psc='nt', pss='sc1', xA=0, S=48, S2=32, urg=50, S3=0, kb3=8, xB=0, mix=0, perm=0, kf1=60, pe=20, pe2=20, dtail=4, qb0=14, qb1=22, se=10, a0=14, ap=4, osc='sc1 nt', touch=1, kvring=3, f1c=24,
                   f4at=40, pa=100, pb=144, p3=60, r1=30, r2=70, rspan=24, kbeg=0, kb1=20, kpa=60, mo=119, p1q=125, c1q=150, Sa=56, kb2=8, kleft=99, Sg=64, o2=226, o1=210, vlead=14, adr0=205, burst3=12, sleep2=3, f4k=16, p1=110, c1=140, burst=4).items():
    setattr(Cfg, k_, v_)

def generate(**kw):
    c = Cfg()
    for k, v in kw.items(): setattr(c, k, v)
    g = Gen(c); t = g.build()
    return t, g

if __name__ == "__main__":
    kw = {}
    for a_ in sys.argv[2:]:
        k, v = a_.split('='); kw[k] = tuple(map(int, v.split(','))) if ',' in v else int(v, 0) if v.lstrip('-')[0].isdigit() else v.replace('+', ' ')
    t, g = generate(**kw)
    open(sys.argv[1], 'w').write(t)
    print("instructions:", len(g.e.ins), "nops added:", g.e.nop_added)
```

```python
import sys, math
from emit import Emit
NAME = "gated_mix__linear_kernel_hedgehog__dense_activation_gelu__prompt"

TAG = 0x0
F1 = 0x1000
F2 = 0x2000; F3 = 0x6000; F4 = 0xa000; F5 = 0x12000
STAMP = 0x1000000
GB = 0x280000
PP = 0x40000; PSZ = 15360
FIN = 0x240000; FSZ = 15360
PB = 0x300000
A2 = 0x600000
OOB = 0x7ff00000

K1 = 1024
QH_ST = 46 * K1; KV_ST = 44 * K1
MISC = 154 * K1
L_WPHI = MISC; L_GATE = MISC + 3200; L_BIASKV = MISC + 4480; L_BIASQH = MISC + 3200
L_PACK = 138 * K1
WH0 = 114 * K1; WH5 = 74 * K1
L_PHI = 0; RSP = 352; L_V = 128 * RSP; RSV = 224
L_BL = 72 * K1
NL = 18
L_RED = 0
L_FIN = 64 * K1

sW = 3
SX, SQ, S1, SWS, SPK, SM = 4, 8, 12, 16, 20, 24
pX, pQKV, pPHI, pWO, pBX, pW1, pB1, pW2, pB2, pGATE, pOUT, pDBG, pWS = [32 + 2 * i for i in range(13)]
sTAG = 58
sMT, sHG, sRB, sNB = 60, 61, 62, 63
sE = 64
sT0, sT1, sT2, sT3, sT4, sT5 = 74, 75, 76, 77, 78, 79
sM0 = 80
sBT, sAT, sB9, sA9, sAT2 = 100, 101, 86, 87, 55
sAo, sBo, sA8, sB8 = 44, 45, 56, 57
sKW, sK1 = 89, 90
sF1 = 91
sPKD = 92
sA, sB = 96, 97
sC0, sC1 = 98, 99
sP0 = 28

PKA = 200
TB = 10; TBM = (1 << TB) - 1; sTB = 58
AW = 204
def srd(r): return f"s[{r}:{r+3}]"
def vr(r, n=4): return f"v[{r}:{r+n-1}]" if n > 1 else f"v{r}"
def ar(r, n=4): return f"a[{r}:{r+n-1}]"
def R(loc, n=4): return (vr if loc[0] == 'v' else ar)(loc[1], n)
def fl(x):
    import struct
    return hex(struct.unpack('<I', struct.pack('<f', x))[0])

class Cfg:
    rot = 1; map2 = 1; stamps = 0; LA = 12; spin = 200000; codepf = 1; lag = 2; th1 = 2; th2 = 4; minlead = 4; verbose = 0; sleep = 3

sKA, sKB = 0, 1
def mk_srd(e, r, p, nbytes):
    e(f"s_mov_b32 s{r}, s{p}\ns_and_b32 s{r+1}, s{p+1}, 0xffff\ns_mov_b32 s{r+2}, {nbytes}\ns_mov_b32 s{r+3}, 0x20000")

class Gen:
    def __init__(self, cfg):
        self.c = cfg; self.e = Emit(); self.tail = []; self.uid = 0; self.nstamp = 0
    def record(self, fn):
        real = self.e
        class Rec:
            def __init__(r): r.items = []; r.lg = []; r.vm = []
            def __call__(r, t):
                for l in t.strip("\n").split("\n"):
                    if l.strip(): r.items.append(('x', l.strip()))
            def vmop(r, t, tag=None): r.items.append(('vm', t, tag))
            def lgop(r, t, tag=None): r.items.append(('lg', t, tag))
        rec = Rec(); self.e = rec
        try: fn()
        finally: self.e = real
        return rec.items
    def cnt(self):
        if not self.c.cnt: return [], []
        self.ncnt = getattr(self, 'ncnt', 0) + 1; k = self.ncnt - 1
        post = ["s_load_dwordx2 s[46:47], s[40:41], 88", f"s_sub_u32 s54, {self.c.spin}, s54", "s_lshl_b32 s54, s54, 12", "s_add_u32 s54, s54, 1", "s_waitcnt lgkmcnt(0)",
                "v_mov_b32 v14, s54", "v_mov_b32 v15, 0", "s_mov_b64 exec, 1", f"global_atomic_add v15, v14, s[46:47] offset:{k*4}", "s_mov_b64 exec, -1"]
        return [], post
    def lab(self, p):
        self.uid += 1; return f"L_{p}_{self.uid}"
    def stamp(self, i, grp=1):
        if self.c.dstamp and grp == 1:
            slot = self.dmap.get(i)
            if slot is None: return
            e = self.e
            e(f"s_memrealtime s[{sC0}:{sC1}]\ns_load_dwordx2 s[46:47], s[40:41], 88\ns_waitcnt lgkmcnt(0)\nv_mov_b32 v14, s{sC0}\nv_mov_b32 v15, 0"); e.lg = []
            e("s_cmp_eq_u32 s3, 0\ns_cselect_b64 exec, 1, 0")
            L = self.lab('ds'); e(f"s_cbranch_execz {L}")
            e(f"global_atomic_umax v15, v14, s[46:47] offset:{slot*4}")
            if i == 0: e(f"v_mov_b32 v14, s54\nglobal_atomic_umax v15, v14, s[46:47] offset:4\nv_not_b32 v14, v14\nglobal_atomic_umax v15, v14, s[46:47] offset:0")
            e(f"{L}:\ns_mov_b64 exec, -1")
            return
        if not self.c.stamps or (i and self.c.stamps != grp): return
        if self.c.only and i not in (0, self.c.only): return
        e = self.e
        e(f"s_memrealtime s[{sC0}:{sC1}]\ns_memtime s[46:47]\ns_waitcnt lgkmcnt(0)"); e.lg = []
        e(f"v_mov_b32 v14, s{sC0}\nv_mov_b32 v15, s46")
        e(f"s_lshl_b32 s{sC0}, s2, 2\ns_add_u32 s{sC0}, s{sC0}, s{sW}\ns_lshl_b32 s{sC0}, s{sC0}, 7\ns_add_u32 s{sC0}, s{sC0}, {STAMP}")
        e.vmop(f"buffer_store_dwordx2 v[14:15], v245, {srd(SWS)}, s{sC0} offen offset:{i*8}", 'stamp')
        if self.c.exit_at == i and grp == 1: e("s_endpgm")
        if i == 0:
            e(f"v_mov_b32 v14, s54\nv_mov_b32 v15, s40")
            e.vmop(f"buffer_store_dwordx2 v[14:15], v245, {srd(SWS)}, s{sC0} offen offset:{15*8}", 'stamp')

    def pstamp(self, i):
        if self.c.stamps == 3: self.e(f"s_memtime s[100:101]\ns_waitcnt lgkmcnt(0)\nv_mov_b32 v{(248,249,250,251,235)[i]}, s100")
    def pstamp_flush(self):
        if self.c.stamps != 3: return
        e = self.e
        e(f"s_lshl_b32 s{sC0}, s2, 2\ns_add_u32 s{sC0}, s{sC0}, s{sW}\ns_lshl_b32 s{sC0}, s{sC0}, 7\ns_add_u32 s{sC0}, s{sC0}, {STAMP}")
        for i in range(5): e.vmop(f"buffer_store_dword v{(248,249,250,251,235)[i]}, v245, {srd(SWS)}, s{sC0} offen offset:{(2+i)*8+4} sc1", 'stamp')
    def dump(self, name, regs):
        if getattr(self.c, 'dbg', None) != name: return
        e = self.e
        e(f"s_lshl_b32 s{sBT}, s2, 2\ns_add_u32 s{sBT}, s{sBT}, s{sW}\ns_lshl_b32 s{sBT}, s{sBT}, 14\ns_add_u32 s{sBT}, s{sBT}, 0x2000000\nv_lshlrev_b32 v7, 2, v0")
        for i, r in enumerate(regs):
            e.vmop(f"buffer_store_dword v{r}, v7, {srd(SWS)}, s{sBT} offen offset:{(i%16)*256}", 'dbg')
            if i % 16 == 15: e(f"s_add_u32 s{sBT}, s{sBT}, 4096")
        e.wait(vm='dbg'); self.Bcur = None

    def poll_issue(self, vaddr, vdst, n, tag, soff="0"):
        suf = {2: 'dwordx2', 4: 'dwordx4'}[n]
        return f"buffer_load_{suf} {vr(vdst, n)}, v{vaddr}, {srd(SWS)}, {soff} offen sc1"
    def poll_check(self, loads):
        Ls, Lb = self.lab('slow'), self.lab('back')
        cmps = []; ors = []; k = 0
        prs = ['vcc', 's[28:29]', 's[30:31]', 's[46:47]']
        for (va, vd, n, so) in loads:
            for h in range(n // 2):
                cmps.append(f"v_cmp_ne_u64 {prs[k]}, s[{sTAG}:{sTAG+1}], v[{vd+2*h}:{vd+2*h+1}]")
                if k: ors.append(f"s_or_b64 vcc, vcc, {prs[k]}")
                k += 1
        cmps = cmps[::-1] if False else cmps
        fast = cmps + ors + [f"s_cbranch_vccnz {Ls}\n{Lb}:" if not (self.c.nochk & 1) else f"{Lb}:"]
        t = [f"{Ls}:", f"s_mov_b32 s54, {self.c.spin}", f"{Ls}_l:"]
        if self.c.sleep: t.append(f"s_sleep {self.c.sleep}")
        for (va, vd, n, so) in loads: t.append(self.poll_issue(va, vd, n, None, so))
        t += ["s_waitcnt vmcnt(0)"] + cmps + ors
        t += ["s_sub_u32 s54, s54, 1", f"s_cbranch_vccz {Ls}_x", "s_cmp_lg_u32 s54, 0", f"s_cbranch_scc1 {Ls}_l", f"{Ls}_x:"] + self.cnt()[1] + ["s_nop 4", f"s_branch {Lb}"]
        self.tail += t
        return fast
    def tag_check(self, reload, regs, acc):
        Ls, Lb = self.lab('slow'), self.lab('back')
        regs = list(regs); L = [f"v_xor_b32 v{acc}, s{sTB}, v{regs[0]}"]
        for r in regs[1:]: L.append(f"v_bitop3_b32 v{acc}, v{r}, s{sTB}, v{acc} bitop3:0xbe")
        L += [f"v_and_b32 v{acc}, {TBM}, v{acc}", f"v_cmp_ne_u32 vcc, 0, v{acc}"]
        t = [f"{Ls}:", f"s_mov_b32 s54, {self.c.spin}", f"{Ls}_l:"]
        if self.c.sleep: t.append(f"s_sleep {self.c.sleep2}")
        t += list(reload) + ["s_waitcnt vmcnt(0)"] + L
        t += ["s_sub_u32 s54, s54, 1", f"s_cbranch_vccz {Ls}_x", "s_cmp_lg_u32 s54, 0", f"s_cbranch_scc1 {Ls}_l", f"{Ls}_x:"] + self.cnt()[1] + ["s_nop 4", f"s_branch {Lb}"]
        self.tail += t
        return L + [f"s_cbranch_vccnz {Ls}\n{Lb}:" if not (self.c.nochk & 2) else f"{Lb}:"]
    def tag_put(self, r, src=None): return f"v_bfi_b32 v{r}, s42, v246, v{r if src is None else src}"
    def tag_strip(self, r): return f"v_and_b32 v{r}, {hex(0xffffffff ^ TBM)}, v{r}"
    def valid_check(self, reload, regs, acc):
        Ls, Lb = self.lab('slow'), self.lab('back')
        regs = list(regs); L = [f"v_max3_u32 v{acc}, v{regs[0]}, v{regs[1]}, v{regs[2 if len(regs) > 2 else 1]}"]
        r = regs[3:]
        for i in range(0, len(r), 2): L.append(f"v_max3_u32 v{acc}, v{acc}, v{r[i]}, v{r[min(i+1, len(r)-1)]}")
        L.append(f"v_cmp_eq_u32 vcc, -1, v{acc}")
        t = [f"{Ls}:", f"s_mov_b32 s54, {self.c.spin}", f"{Ls}_l:"]
        if self.c.sleep: t.append(f"s_sleep {self.c.sleep2}")
        t += list(reload) + ["s_waitcnt vmcnt(0)"] + L
        t += ["s_sub_u32 s54, s54, 1", f"s_cbranch_vccz {Ls}_x", "s_cmp_lg_u32 s54, 0", f"s_cbranch_scc1 {Ls}_l", f"{Ls}_x:"] + self.cnt()[1] + ["s_nop 4", f"s_branch {Lb}"]
        self.tail += t
        return L + [f"s_cbranch_vccnz {Ls}\n{Lb}:" if not (self.c.nochk & 4) else f"{Lb}:"]
    def flag_store(self, vaddr, vtag, soff="0"):
        return f"buffer_store_dwordx2 {vr(vtag, 2)}, v{vaddr}, {srd(SWS)}, {soff} offen sc1"

    def stream(self, mf, reads, fill, syncs=None, LA=None, name='', bg=None):
        e = self.e; LA = LA or self.c.LA
        reads = sorted(reads, key=lambda r: r[1]); rp = 0; synced = -1 if syncs else 99
        fq = sorted(fill, key=lambda f: f['at'])
        self.sid = getattr(self, 'sid', 0) + 1; sid = self.sid
        start = len(e.ins)
        def add_fill(items):
            lo = max([f['at'] for f in fq if f.get('chain')], default=-99)
            for f in items:
                if f.get('chain'): f['at'] = lo = max(f['at'], lo)
            fq.extend(items); fq.sort(key=lambda f: f['at'])
        def rd():
            nonlocal rp
            e.lgop(reads[rp][0], ('rd', sid, rp)); rp += 1
        if syncs: add_fill(syncs[0](0)); synced = 0
        while rp < len(reads) and reads[rp][1] < 8 and reads[rp][2] <= synced: rd()
        last_read = -99
        dl_of = {('rd', sid, i): r[1] for i, r in enumerate(reads)}
        def due(m): return [t for t in e.lg if t in dl_of and dl_of[t] <= m]
        ismem = lambda it: it[0] in ('vm', 'lg')
        for m in range(len(mf)):
            d = due(m)
            if d: e.wait(lg=d)
            e(mf[m])
            can = lambda: rp < len(reads) and reads[rp][2] <= synced and reads[rp][3] <= m and len(e.lg) < 15
            lead = lambda: reads[rp][1] - m
            if syncs and rp < len(reads) and reads[rp][2] > synced and m - last_read >= self.c.lag and lead() <= LA:
                synced = reads[rp][2]
                assert not any(it[0] == 'vm' and it[2] == ('S', synced) for f in fq for it in f['ins'])
                add_fill(syncs[synced](m + 1))
                if can(): rd(); last_read = m
                continue
            w = 1 if due(m + 1) else 0
            n = w; mem = 0
            if fq and fq[0]['at'] <= m:
                f = fq[0]
                if f.get('atomic'):
                    self.emit_items(f['ins']); n += len(f['ins']); mem += sum(map(ismem, f['ins'])); fq.pop(0)
                elif ismem(f['ins'][0]):
                    self.emit_items([f['ins'].pop(0)]); n += 1; mem += 1
                    if not f['ins']: fq.pop(0)
            if bg and mem == 0:
                k0 = len(e.ins)
                if self.bg_try(bg(m)): n += len(e.ins) - k0; mem += 1
            if can() and lead() <= LA and (mem == 0 or (lead() <= LA - self.c.th1 and not w)):
                rd(); n += 1; mem += 1; last_read = m
            if can() and mem == 1 and not w and lead() <= LA - self.c.th2:
                rd(); n += 1; mem += 1
            while can() and lead() <= self.c.minlead: rd(); n += 1; mem += 1; last_read = m
            while (n < 2 or (fq and fq[0]['at'] <= m - 2 and n < 3)) and fq and fq[0]['at'] <= m + 2 and not fq[0].get('atomic') and not ismem(fq[0]['ins'][0]):
                f = fq[0]; self.emit_items([f['ins'].pop(0)]); n += 1
                if not f['ins']: fq.pop(0)
            assert rp >= len(reads) or reads[rp][1] > m + 1, (m, reads[rp])
        for f in fq: self.emit_items(f['ins'])
        if self.c.verbose:
            tot = 0; g = None
            for i in e.ins[start:]:
                if i.label: continue
                if i.kind == 'mfma':
                    if g is not None: tot += max(16, g)
                    g = 8; prevmem = False
                elif g is not None:
                    mm = i.kind in ('dsr', 'dsw', 'vload', 'vstore', 'dma')
                    g += 8 if (mm and prevmem) else 4; prevmem = mm
            print(f"stream {name}: {len(mf)} mfma, est clks {tot} (ideal {16*len(mf)})")

    def prologue(self):
        e = self.e; c = self.c
        if c.stamps or c.dstamp: e("s_memrealtime s[54:55]\ns_memtime s[98:99]")
        e(f"""s_cmp_ge_u32 s2, 256
        s_cbranch_scc1 L_end
        s_load_dwordx16 s[32:47], s[0:1], 0
        s_load_dwordx4 s[48:51], s[0:1], 64
        s_load_dwordx2 s[52:53], s[0:1], 80
        s_load_dwordx2 s[56:57], s[0:1], 96""")
        if c.codepf:
            e(f"""s_getpc_b64 s[{sA}:{sB}]
            L_pf:
            s_lshr_b32 s{sT0}, s2, 3
            s_lshl_b32 s{sT0}, s{sT0}, 11
            v_lshrrev_b32 v1, 4, v0
            v_lshlrev_b32 v1, 7, v1
            v_add_u32 v1, s{sT0}, v1
            v_cmp_gt_u32 vcc, L_end-L_pf, v1
            v_cndmask_b32 v1, 0, v1, vcc""")
            e.vmop(f"global_load_dword v255, v1, s[{sA}:{sB}]", 'pf')
        e(f"""v_lshrrev_b32 v1, 6, v0
        v_and_b32 v0, 63, v0
        s_and_b32 s{sT0}, s2, 7
        v_readfirstlane_b32 s{sW}, v1
        s_lshr_b32 s{sT1}, s2, 3
        s_lshr_b32 s{sT2}, s{sT0}, 1
        s_and_b32 s{sT3}, s{sT1}, 3
        s_lshl_b32 s{sMT}, s{sT2}, 2
        s_add_u32 s{sMT}, s{sMT}, s{sT3}
        s_lshr_b32 s{sT4}, s{sT1}, 2
        s_and_b32 s{sHG}, s{sT0}, 1
        s_lshl_b32 s{sHG}, s{sHG}, 2
        s_and_b32 s{sT5}, s{sT4}, 3
        s_add_u32 s{sHG}, s{sHG}, s{sT5}""")
        if c.rot == 2:
            e(f"""s_mul_i32 s{sE}, s{sT2}, 5
            s_lshr_b32 s{sE}, s{sE}, 1
            s_and_b32 s{sT5}, s{sT0}, 1
            s_mul_i32 s{sT5}, s{sT5}, 5
            s_add_u32 s{sE}, s{sE}, s{sT5}
            s_cmp_ge_u32 s{sE}, 10
            s_cselect_b32 s{sT5}, 10, 0
            s_sub_u32 s{sE}, s{sE}, s{sT5}
            s_lshl_b32 s{sE}, s{sE}, 7""")
        elif c.rot == 3:
            e(f"s_xor_b32 s{sE}, s{sT3}, s{sT4}\ns_and_b32 s{sE}, s{sE}, 1\ns_lshl_b32 s{sE}, s{sE}, 7")
        else: e(f"s_mov_b32 s{sE}, 0")
        e(f"""v_and_b32 v1, 15, v0
        v_lshrrev_b32 v2, 4, v0
        v_bfe_u32 v3, v0, 2, 2
        v_and_b32 v4, 3, v0
        v_lshrrev_b32 v5, 3, v0
        v_lshlrev_b32 v6, 4, v0
        s_lshl_b32 s{sT2}, s{sMT}, 2
        s_add_u32 s{sT2}, s{sT2}, s{sW}
        s_mul_i32 s{sT2}, s{sT2}, {32*1280}
        v_xor_b32 v7, v2, v0
        v_and_b32 v7, 7, v7
        v_lshlrev_b32 v7, 4, v7
        v_mul_u32_u24 v8, 1280, v5
        v_add_u32 v8, s{sT2}, v8
        v_add_u32 v208, v8, v7
        v_xor_b32 v7, 64, v7
        v_add_u32 v209, v8, v7
        v_add_u32 v209, {10240-1024}, v209
        v_add_u32 v210, {2*(10240-1024)}, v208
        v_add_u32 v211, {2*(10240-1024)}, v209
        s_lshl_b32 s{sM0}, s{sW}, 12
""")
        if c.rot == 3: e(f"s_xor_b32 s{sE+1}, s{sE}, 128")
        else: e(f"s_add_u32 s{sE+1}, s{sE}, 128\ns_cmp_eq_u32 s{sE+1}, 1280\ns_cselect_b32 s{sE+1}, 0, s{sE+1}")
        for r, n in ((SX, 2048 * 1280), (SQ, 640 * 3840), (S1, 640 * 3456), (SM, 3456)): e(f"s_mov_b32 s{r+2}, {n}\ns_mov_b32 s{r+3}, 0x20000")
        e(f"s_bitcmp1_b32 s2, 7\ns_cbranch_scc1 L_QH")

    def kernarg_wait(self):
        e = self.e
        e("s_waitcnt lgkmcnt(0)"); self.pstamp(0)
        e(f"s_load_dwordx2 s[{sTAG}:{sTAG+1}], s[{pWS}:{pWS+1}], {TAG}")
        if self.c.stamps: e('s_mov_b32 s40, s98')
        if self.c.dstamp or self.c.cnt: e('s_mov_b64 s[40:41], s[0:1]')
        for r, p in ((SX, pX), (SM, pB1), (SQ, pQKV), (S1, pW1)): e(f"s_mov_b32 s{r}, s{p}\ns_and_b32 s{r+1}, s{p+1}, 0xffff")

    def pack_setup(self):
        e = self.e
        e(f"""s_lshl_b32 s{sT0}, s2, 2
        s_add_u32 s{sT0}, s{sT0}, s{sW}
        s_mul_i32 s{sT1}, s{sT0}, 6554
        s_lshr_b32 s{sT1}, s{sT1}, 16
        s_mul_i32 s{sT2}, s{sT1}, 10
        s_sub_u32 s{sT2}, s{sT0}, s{sT2}
        s_sub_u32 s{sT3}, s{sT1}, 54
        s_and_b32 s{sT3}, s{sT3}, 63
        s_mul_i32 s{sT4}, s{sT3}, 52
        s_lshr_b32 s{sT4}, s{sT4}, 8
        s_mul_i32 s{sT5}, s{sT4}, 5
        s_sub_u32 s{sT5}, s{sT3}, s{sT5}
        s_mul_i32 s{sBT}, s{sT4}, 160
        s_lshr_b32 s{sAT}, s{sT5}, 1
        s_mul_i32 s{sAT}, s{sAT}, 80
        s_and_b32 s{sT3}, s{sT5}, 1
        s_lshl_b32 s{sT3}, s{sT3}, 3
        s_add_u32 s{sAT}, s{sAT}, s{sT3}
        s_cmp_eq_u32 s{sT5}, 4
        s_cselect_b32 s{sAT}, 16, s{sAT}
        s_cselect_b32 s{sT3}, 80, 4
        s_add_u32 s{sBT}, s{sBT}, s{sAT}
        s_lshl_b32 s{sAT}, s{sT1}, 5
        s_cmp_lt_u32 s{sT1}, 54
        s_cselect_b32 s{sBT}, s{sAT}, s{sBT}
        s_cselect_b32 s{sT3}, 16, s{sT3}""")
        self.csel(sT4, 4 * 1280 - 1024, 20 * 1280 - 1024)
        self.csel(SPK + 2, 1728 * 1280, 640 * 1280)
        e(f"""s_mov_b32 s{SPK+3}, 0x20000
        s_cmp_lt_u32 s{sT0}, 740
        s_cselect_b32 s{SPK+2}, s{SPK+2}, 0
        s_mul_i32 s{sBT}, s{sBT}, 1280
        s_lshl_b32 s{sAT}, s{sT2}, 7
        s_add_u32 s32, s{sBT}, s{sAT}
        s_add_u32 s33, s32, s{sT4}
        s_add_u32 s34, s33, s{sT4}
        s_add_u32 s35, s34, s{sT4}
        v_lshrrev_b32 v9, 5, v0
        v_mul_lo_u32 v9, v9, s{sT3}
        v_and_b32 v10, 3, v5
        v_add_u32 v9, v9, v10
        v_mul_u32_u24 v9, 1280, v9
        v_and_b32 v10, 7, v0
        v_lshl_add_u32 v252, v10, 4, v9
        v_lshlrev_b32 v9, 10, v2
        v_lshl_add_u32 v9, v3, 7, v9
        v_add_u32 v9, s{sM0}, v9
        v_add_u32 v9, {L_PACK}, v9""")
        for g in range(2):
            e(f"""s_lshl_b32 s{sT3}, s{sT2}, 1
            s_add_u32 s{sT3}, s{sT3}, {g}
            s_mul_i32 s{sT4}, s{sT3}, 52
            s_lshr_b32 s{sT4}, s{sT4}, 8
            s_mul_i32 s{sT5}, s{sT4}, 5
            s_sub_u32 s{sT5}, s{sT3}, s{sT5}
            s_cmp_eq_u32 s{sT5}, 2
            s_cselect_b32 s{sT3}, 3, 4
            s_cselect_b32 s{sAT}, 32, 8
            v_lshlrev_b32 v10, s{sT3}, v4
            v_add_u32 v{PKA+2*g}, v9, v10
            v_add_u32 v{PKA+1+2*g}, s{sAT}, v{PKA+2*g}
            s_mul_i32 s{sT4}, s{sT4}, 740
            s_mul_i32 s{sAT}, s{sT1}, 5
            s_add_u32 s{sT4}, s{sT4}, s{sAT}""")
            for a_ in range(2):
                d = sPKD + 2 * g + a_
                e(f"""s_lshl_b32 s{sT3}, s{sT5}, 1
                s_add_u32 s{sT3}, s{sT3}, {a_}
                s_add_u32 s{d}, s{sT3}, 364
                s_cmp_eq_u32 s{sT3}, 5
                s_cselect_b32 s{d}, 374, s{d}
                s_cmp_lt_u32 s{sT3}, 5
                s_cselect_b32 s{d}, s{sT3}, s{d}
                s_add_u32 s{d}, s{d}, s{sT4}
                s_lshl_b32 s{d}, s{d}, 10
                s_add_u32 s{d}, s{d}, {PB}
                s_cmp_lt_u32 s{sT0}, 740
                s_cselect_b32 s{d}, s{d}, {OOB}""")
        e(f"""s_cmp_lt_u32 s{sT1}, 54
        s_cselect_b32 s{SPK}, s{pW2}, s{pWO}
        s_cselect_b32 s{SPK+1}, s{pW2+1}, s{pWO+1}
        s_and_b32 s{SPK+1}, s{SPK+1}, 0xffff""")

    def common_setup(self):
        e = self.e; c = self.c
        e(f"s_and_b32 s{sT0}, s2, 7\ns_lshr_b32 s{sT1}, s2, 3\ns_lshr_b32 s{sT2}, s{sT0}, 1\ns_and_b32 s{sT3}, s{sT1}, 3\ns_lshr_b32 s{sT4}, s{sT1}, 2")
        if c.mix: e(f"s_lshr_b32 s{sT5}, s{sT1}, 2\ns_and_b32 s{sT5}, s{sT5}, 4\ns_xor_b32 s{sT5}, s{sT5}, s{sT1}" if c.map2 else
                    f"s_lshr_b32 s{sT5}, s{sT1}, 4\ns_xor_b32 s{sT5}, s{sT5}, s{sT1}")
        if c.map2:
            if c.mix: e(f"s_and_b32 s{sRB}, s{sT5}, 7\ns_bfe_u32 s{sT5}, s{sT1}, 0x20002")
            else: e(f"s_and_b32 s{sRB}, s{sT1}, 7\ns_lshr_b32 s{sT5}, s{sT1}, 3")
            e(f"""s_lshl_b32 s{sT2}, s{sT2}, 3
            s_add_u32 s{sRB}, s{sRB}, s{sT2}
            s_and_b32 s{sNB}, s{sT0}, 1
            s_lshl_b32 s{sNB}, s{sNB}, 2
            s_add_u32 s{sNB}, s{sNB}, s{sT5}""")
        else:
            if c.mix: e(f"s_bfe_u32 s{sNB}, s{sT1}, 0x30001\ns_and_b32 s{sT3}, s{sT5}, 1\ns_lshr_b32 s{sT5}, s{sT1}, 4\ns_bfe_u32 s{sT4}, s{sT1}, 0x10001\ns_xor_b32 s{sT5}, s{sT5}, s{sT4}\ns_and_b32 s{sT3}, s{sT1}, 1\ns_lshl_b32 s{sT5}, s{sT5}, 1\ns_add_u32 s{sT3}, s{sT3}, s{sT5}")
            else: e(f"s_mov_b32 s{sNB}, s{sT4}")
            e(f"s_lshl_b32 s{sRB}, s{sT0}, 2\ns_add_u32 s{sRB}, s{sRB}, s{sT3}")
        mk_srd(e, SWS, pWS, 0x10000000); mk_srd(e, SM, pPHI, 32 * 800)
        e(f"""s_lshl_b32 s{sT3}, s{sHG}, 2
        s_add_u32 s{sT3}, s{sT3}, s{sW}
        s_mul_i32 s36, s{sT3}, 800
        s_mul_i32 s37, s{sW}, 800
        s_add_u32 s37, s37, {L_WPHI}""")
        for i in range(2, 10):
            if c.rot == 3: e(f"s_add_u32 s{sE+i}, s{sE+i-2}, 256")
            else: e(f"s_add_u32 s{sE+i}, s{sE+i-1}, 128\ns_cmp_eq_u32 s{sE+i}, 1280\ns_cselect_b32 s{sE+i}, 0, s{sE+i}")
        e(f"""s_mul_i32 s{sB}, s{sNB}, 74
        s_add_u32 s{sB}, s{sB}, s{sW}
        s_mul_i32 s{sB}, s{sB}, 5120
        s_add_u32 s{sB}, s{sB}, {PB}
        s_mul_i32 s{sA}, s{sRB}, 74
        s_add_u32 s{sA}, s{sA}, s{sW}
        s_lshl_b32 s{sA}, s{sA}, 12
        s_add_u32 s{sA}, s{sA}, {A2}
        s_xor_b32 s{sT0}, s{sRB}, s{sNB}
        s_and_b32 s{sT0}, s{sT0}, {min(c.par, 1)}
        s_mul_i32 s{sT1}, s{sT0}, {4*5120}
        s_add_u32 s{sB8}, s{sB}, {32*5120}
        s_add_u32 s{sB8}, s{sB8}, s{sT1}
        s_add_u32 s{sB9}, s{sB}, {36*5120}
        s_sub_u32 s{sB9}, s{sB9}, s{sT1}
        s_mul_i32 s{sT1}, s{sT1}, {max(c.par, 1)}
        s_sub_u32 s{sBo}, s{sB}, s{sT1}
        s_add_u32 s{sB}, s{sB}, s{sT1}
        s_lshl_b32 s{sT1}, s{sT0}, 14
        s_add_u32 s{sA8}, s{sA}, {32*4096}
        s_add_u32 s{sA8}, s{sA8}, s{sT1}
        s_add_u32 s{sA9}, s{sA}, {36*4096}
        s_sub_u32 s{sA9}, s{sA9}, s{sT1}
        s_mul_i32 s{sT1}, s{sT1}, {max(c.par, 1)}
        s_sub_u32 s{sAo}, s{sA}, s{sT1}
        s_add_u32 s{sA}, s{sA}, s{sT1}
        s_lshr_b32 s{sT1}, s{sW}, 1
        s_and_b32 s{sT3}, s{sT1}, s{sT0}
        s_cselect_b32 s{sB8}, {OOB}, s{sB8}
        s_cselect_b32 s{sA8}, {OOB}, s{sA8}
        s_andn2_b32 s{sT3}, s{sT1}, s{sT0}
        s_cselect_b32 s{sB9}, {OOB}, s{sB9}
        s_cselect_b32 s{sA9}, {OOB}, s{sA9}
        s_mul_i32 s88, s{sW}, {NL*1024}
        v_add_u32 v240, 4096, v6""")
        for j in range(4):
            e(f"s_add_u32 s{sT3}, s{sW}, {j}\ns_and_b32 s{sT3}, s{sT3}, 3\ns_lshl_b32 s{sT3}, s{sT3}, 10\nv_add_u32 v{236+j}, s{sT3}, v6")
        e(f"""s_lshl_b32 s{sF1}, s2, 3
        s_add_u32 s{sF1}, s{sF1}, {F1}
        s_cmp_eq_u32 s{sW}, 0
        s_cselect_b32 s{sF1}, s{sF1}, {OOB}
        v_mov_b32 v245, {OOB}
        v_cmp_eq_u32 vcc, 0, v0
        v_cndmask_b32 v245, v245, 0, vcc""")

    def touch(self):
        e = self.e; c = self.c
        e(f"""s_cmp_eq_u32 s{sW}, 0
        s_cselect_b64 s[28:29], s[{SX}:{SX+1}], s[{S1}:{S1+1}]
        s_cselect_b32 s30, s{SX+2}, s{S1+2}
        s_cselect_b32 s{sT0}, 12, 0
        s_add_u32 s{sT0}, s{sT0}, 68
        s_cmp_eq_u32 s{sW}, 1
        s_cselect_b64 s[28:29], s[{SQ}:{SQ+1}], s[28:29]
        s_cselect_b32 s30, s{SQ+2}, s30
        s_cselect_b32 s{sT0}, 75, s{sT0}
        s_lshl_b32 s{sT1}, 1, s{sW}
        s_and_b32 s{sT1}, s{sT1}, {c.tmask}
        s_cselect_b32 s30, s30, 0
        s_mov_b32 s31, 0x20000
        s_mul_i32 s{sT1}, s{sT0}, s2
        s_lshl_b32 s{sT1}, s{sT1}, 7
        v_lshlrev_b32 v10, 7, v0
        v_add_u32 v11, 64, v0
        v_cmp_gt_u32 vcc, s{sT0}, v11
        v_lshlrev_b32 v11, 7, v11
        v_mov_b32 v14, {OOB}
        v_cndmask_b32 v11, v14, v11, vcc""")
        e.vmop(f"buffer_load_dword v255, v10, s[28:31], s{sT1} offen", 'pf')
        e.vmop(f"buffer_load_dword v255, v11, s[28:31], s{sT1} offen", 'pf')

    def touch3_setup(self):
        e = self.e
        e(f"""s_cmp_eq_u32 s{sW}, 0
        s_cselect_b64 s[28:29], s[{SX}:{SX+1}], s[{S1}:{S1+1}]
        s_cselect_b32 s30, s{SX+2}, s{S1+2}
        s_cselect_b32 s{sT0}, 24, 21
        s_mov_b32 s44, {64*3456}
        s_cselect_b32 s44, 128, s44
        s_cselect_b64 vcc, -1, 0
        s_cmp_eq_u32 s{sW}, 1
        s_cselect_b64 s[28:29], s[{SQ}:{SQ+1}], s[28:29]
        s_cselect_b32 s30, s{SQ+2}, s30
        s_cselect_b32 s{sT0}, 23, s{sT0}
        s_cselect_b32 s44, {64*3840}, s44
        s_cmp_eq_u32 s{sW}, 3
        s_cselect_b32 s30, 0, s30
        s_mov_b32 s31, 0x20000
        s_mul_i32 s{sT1}, s{sT0}, s2
        v_add_u32 v10, s{sT1}, v0
        v_mul_u32_u24 v11, 21846, v10
        v_lshrrev_b32 v11, 16, v11
        v_mul_u32_u24 v11, {1280-384}, v11
        v_lshlrev_b32 v10, 7, v10
        v_add_u32 v11, v11, v10
        v_cndmask_b32 v10, v10, v11, vcc
        v_mov_b32 v14, {OOB}
        v_cmp_gt_u32 vcc, s{sT0}, v0
        v_cndmask_b32 v251, v14, v10, vcc""")
    def touch3(self, part):
        return [('x', f"s_mul_i32 s45, s44, {1 + 3 * part}"), ('vm', "buffer_load_dword v255, v251, s[28:31], s45 offen", 'pf')]

    def tlb_touch(self):
        e = self.e; c = self.c
        if not c.tlb: return
        if c.tlb == 1:
            e(f"v_lshlrev_b32 v10, 18, v0\nv_add_u32 v10, 0x1f800, v10")
            e.vmop(f"buffer_load_dword v255, v10, {srd(SWS)}, 0 offen sc1", 'pf')
        else:
            e(f"""s_mul_i32 s{sT0}, s{sNB}, {74*5120}
            s_add_u32 s{sT0}, s{sT0}, {PB}
            s_mul_i32 s{sT1}, s{sRB}, {74*4096}
            s_add_u32 s{sT1}, s{sT1}, {A2 - 8*65536}
            s_mul_i32 s{sT3}, s{sMT}, {2*74*4096}
            s_add_u32 s{sT3}, s{sT3}, {A2 - 16*65536}
            v_lshlrev_b32 v10, 16, v0
            v_mov_b32 v11, s{sT0}
            v_mov_b32 v14, s{sT1}
            v_cmp_le_u32 vcc, 8, v0
            v_cndmask_b32 v11, v11, v14, vcc
            v_mov_b32 v14, s{sT3}
            v_cmp_le_u32 vcc, 16, v0
            v_cndmask_b32 v11, v11, v14, vcc
            v_add_u32 v11, v11, v10
            v_subrev_u32 v14, 32, v0
            v_mul_u32_u24 v14, 0x18000, v14
            v_cmp_le_u32 vcc, 32, v0
            v_cndmask_b32 v10, v11, v14, vcc""")
            e.vmop(f"buffer_load_dword v255, v10, {srd(SWS)}, 0 offen sc1", 'pf')
        mk_srd(e, 28, pOUT, 2048 * 1280)
        e("v_lshlrev_b32 v10, 16, v0")
        e.vmop("buffer_load_dword v255, v10, s[28:31], 0 offen sc1", 'pf')
        if c.tlb2:
            for p, n in ((pB2, 1280),):
                mk_srd(e, 28, p, n); e.vmop("buffer_load_dword v255, v6, s[28:31], 0 offen", 'pf')

    def tag_wait(self):
        e = self.e
        e(f"""s_waitcnt lgkmcnt(0)
        s_add_u32 s{sTAG}, s{sTAG}, 1
        v_mov_b32 v247, s{sTAG+1}
        v_mov_b32 v246, s{sTAG}
        s_movk_i32 s42, {TBM}""")
        if self.c.xA == 2: e(f's_mov_b32 s41, {OOB}')
        e.lg = []
    def pack_loads(self):
        return [([('x', f"s_add_u32 m0, s{sM0}, {L_PACK}")] if i == 0 else []) +
                [('vm', f"buffer_load_dwordx4 v252, {srd(SPK)}, s{32+i} offen offset:{i*1024} {self.c.psc} lds", 'packld')] for i in range(4)]
    def pack_fill(self, m, nm):
        f = []
        for i in range(8):
            t, h = i >> 1, i & 1
            f.append(dict(at=m + 2 + 2 * i, ins=[('lg', f"ds_read_b64_tr_b16 a[{160+4*t+2*h}:{161+4*t+2*h}], v{PKA+t} offset:{(t>>1)*64+512*h}", 'pk')]))
        return f
    def wb_item(self):
        return [[('wvm', 'pkst'), ('vm', "buffer_wbl2 sc1", 'pkst')]] if self.c.wbl else []
    def pack_stores(self):
        return [([('wlg', 'pk')] if i == 0 else []) + [('vm', f"buffer_store_dwordx4 {ar(160+4*i)}, v6, {srd(SWS)}, s{sPKD+i} offen {self.c.pss}", 'pkst')] for i in range(4)]

    def btouch(self):
        pre = [l.strip() for l in f"""s_and_b32 s{sT0}, s{sRB}, 7
        s_lshl_b32 s{sT0}, s{sT0}, 2
        s_add_u32 s{sT0}, s{sT0}, s{sW}
        s_mul_i32 s{sT0}, s{sT0}, {93*128}
        s_mul_i32 s{sT1}, s{sNB}, {74*5120}
        s_add_u32 s{sT0}, s{sT0}, s{sT1}
        s_add_u32 s{sT0}, s{sT0}, {PB}
        v_lshlrev_b32 v248, 7, v0
        v_min_u32 v249, 28, v0
        v_lshlrev_b32 v249, 7, v249""".split("\n")]
        n = self.c.bt
        out = [[('x', l) for l in pre]]
        if n == 1:
            out[0] += [('vm', f"buffer_load_dword v255, v248, {srd(SWS)}, s{sT0} offen sc1", 'pf')]
            out.append([('x', f"s_add_u32 s{sT0}, s{sT0}, 8192"), ('vm', f"buffer_load_dword v255, v249, {srd(SWS)}, s{sT0} offen sc1", 'pf')])
        else:
            out[0] += [('x', "v_min_u32 v249, 23, v0"), ('x', "v_lshlrev_b32 v249, 7, v249")]
            for i in range(4): out.append([('vm', f"buffer_load_dword v255, v249, {srd(SWS)}, s{sT0} offen offset:0 sc1", 'pf'), ('x', f"s_add_u32 s{sT0}, s{sT0}, 3072")])
        return out
    def code_touch(self, endlab):
        Lp = self.lab('pc')
        return [('x', f"s_getpc_b64 s[30:31]\n{Lp}:"), ('x', f"s_bfe_u32 s{sT0}, s2, 0x40003"), ('x', f"s_lshl_b32 s{sT0}, s{sT0}, 2"), ('x', f"s_add_u32 s{sT0}, s{sT0}, s{sW}"),
                ('x', f"s_lshl_b32 s{sT0}, s{sT0}, 9"), ('x', "v_and_b32 v7, 3, v0"), ('x', f"v_lshl_add_u32 v7, v7, 7, s{sT0}"),
                ('x', f"v_cmp_gt_u32 vcc, {endlab}-{Lp}, v7"), ('x', "v_cndmask_b32 v7, 0, v7, vcc"), ('vm', "global_load_dword v255, v7, s[30:31]", 'pf')]
    def f1_issue(self):
        return [[('x', f"s_mov_b32 s{sT0}, {F1}"), ('x', "v_add_u32 v235, 1024, v6"), ('vm', self.poll_issue(6, 248, 4, None, f"s{sT0}"), 'f1p')],
                [('vm', self.poll_issue(235, 252, 4, None, f"s{sT0}"), 'f1p')]]
    def f1_check(self):
        chk = self.poll_check([(6, 248, 4, f"s{sT0}"), (235, 252, 4, f"s{sT0}")])
        return [('wvm', 'f1p')] + [('x', t) for t in chk] + [('x', f"s_or_b32 s{sT1}, s2, s{sW}"),
                ('x', f"s_cmp_eq_u32 s{sT1}, 0\ns_cselect_b32 s{sT1}, {TAG}, {OOB}"), ('vm', self.flag_store(245, 246, f"s{sT1}"), 'tagst')]

    def attn_voff(self, dst, cexpr_base, colbase_s):
        e = self.e
        e(f"""v_mul_u32_u24 v10, 6554, v9
        v_lshrrev_b32 v10, 16, v10
        v_mad_i32_i24 v11, v10, -10, v9""")
        self.swap23(10, 12)
        e(f"""v_mul_u32_u24 v10, 3840, v10
        v_lshl_add_u32 v10, v11, 4, v10
        v_add_u32 v{dst}, s{colbase_s}, v10""")
    def swap23(self, r, t):
        self.e(f"""v_lshrrev_b32 v{t}, 1, v{r}
        v_xor_b32 v{t}, v{t}, v{r}
        v_and_b32 v{t}, 4, v{t}
        v_mul_u32_u24 v{t}, 3, v{t}
        v_xor_b32 v{r}, v{r}, v{t}""")

    def small_dma(self, sr, vaddr, soff, ldsaddr, nlanes, tag, m0expr=None):
        e = self.e
        e(m0expr or f"s_mov_b32 m0, {ldsaddr}")
        if nlanes < 64: e(f"s_mov_b64 exec, {hex((1 << nlanes) - 1)}" if nlanes <= 32 else f"s_mov_b32 exec_hi, {hex((1 << (nlanes-32)) - 1)}")
        e.vmop(f"buffer_load_dwordx4 v{vaddr}, {srd(sr)}, {soff} offen lds", tag)
        if nlanes < 64: e("s_mov_b64 exec, -1")

    def csel(self, d, a, b):
        inl = lambda x: isinstance(x, str) or -16 <= x <= 64
        if inl(a) or inl(b): self.e(f"s_cselect_b32 s{d}, {a}, {b}")
        else: self.e(f"s_mov_b32 s{d}, {b}\ns_cselect_b32 s{d}, {a}, s{d}")

    def init_B(self):
        self.Bloc = {}; self.Bq = []
        order = [(i, t) for i in range(19) for t in range(5)]
        for u, k in enumerate(order):
            if u < 64: self.Bloc[k] = ('a', 4 * u)
            elif u < 64 + NL: self.Bloc[k] = ('l', u - 64)
            else: self.Bloc[k] = None
        self.Border = order; self.Bpend = list(range(64 + NL)); self.Bcur = None; self.Acur = None
    def koff(self, i): return 4 * i - (2 if i >= 10 else 0)
    def soff(self, d, i, w):
        e_, o_, s8, s9, unit = (sB, sBo, sB8, sB9, 5120) if w == 'B' else (sA, sAo, sA8, sA9, 4096)
        if i in (8, 9): return f"s_mov_b32 s{d}, s{s8 if i == 8 else s9}"
        if i == 18: return f"s_add_u32 s{d}, s{e_}, s{o_}\ns_lshr_b32 s{d}, s{d}, 1\ns_add_u32 s{d}, s{d}, {self.koff(i)*unit}"
        idx = i if i < 10 else i - 10 if i < 14 else i - 14
        return f"s_add_u32 s{d}, s{e_ if idx & max(self.c.par, 1) == 0 else o_}, {self.koff(i)*unit}"
    def B_items(self, k, loc):
        i, t = k; it = []
        if self.Bcur != i:
            it.append(('x', self.soff(sBT, i, 'B'))); self.Bcur = i
        va, imm = (6, t * 1024) if t < 4 else (240, 0)
        if loc[0] == 'l':
            assert L_BL + loc[1]*1024 - imm >= 0
            it.append(('x', f"s_add_u32 m0, s88, {L_BL + loc[1]*1024 - imm}"))
            it.append(('vm', f"buffer_load_dwordx4 v{va}, {srd(SWS)}, s{sBT} offen offset:{imm} sc1 lds", ('B', k)))
        else:
            it.append(('vm', f"buffer_load_dwordx4 {R(loc)}, v{va}, {srd(SWS)}, s{sBT} offen offset:{imm} sc1", ('B', k)))
        return it
    def B_take(self, us):
        out = []
        for u in us:
            k = self.Border[u]; out.append(self.B_items(k, self.Bloc[k]))
            if self.c.xB == 1: out[-1] = [('x', 's_nop 0')]
            if self.c.xB == 2: out[-1] = [(it[0], it[1].replace(f"s{sBT} offen", "s43 offen"), it[2]) if it[0] == 'vm' else it for it in out[-1]]
            if self.c.xB == 3: out[-1] = [(it[0], it[1].replace(f"s{sBT} offen", f"s{sB} offen"), it[2]) if it[0] == 'vm' else it for it in out[-1]]
        return out
    def ph2_bg(self, u): pass
    def bg_try(self, allowed, S=None):
        e = self.e
        if e.t - e.tvm < (S or self.c.S): return False
        if allowed == self.ph2_bg: return self.try_issue(self.m, True, True)
        for u in self.Bpend:
            if allowed(u):
                self.Bpend.remove(u); self.emit_items(self.B_take([u])[0]); return True
        return False
    def emit_items(self, items):
        e = self.e
        for it in items:
            if it[0] == 'vm': e.vmop(it[1], it[2])
            elif it[0] == 'lg': e.lgop(it[1], it[2])
            elif it[0] == 'wvm': e.wait(vm=it[1])
            elif it[0] == 'wlg': e.wait(lg=it[1])
            elif it[0] == 'st': self.stamp(it[1], it[2])
            else: e(it[1])
    def valu(self, lines, side=None, every=1, bg=None, S=None):
        n = 0
        for l in lines:
            if isinstance(l, str): self.e(l)
            else: self.emit_items([l])
            n += 1
            if side and n % every == 0: self.emit_items(side.pop(0))
            if bg: self.bg_try(bg, S)

    def interleave(self, items, side, every):
        W = ('s_cmp', 's_add', 's_sub', 's_and', 's_andn2', 's_or', 's_xor', 's_lshl', 's_lshr', 's_bitcmp', 's_min', 's_max')
        Rd = ('s_cselect', 's_addc', 's_subb', 's_cbranch_scc')
        live = [False] * len(items); l = False
        for i in range(len(items) - 1, -1, -1):
            live[i] = l
            t = items[i][1]
            if t.startswith(Rd): l = True
            elif t.startswith(W): l = False
        n = 0
        for i, it in enumerate(items):
            self.emit_items([it]); n += 1
            if side and n >= every and not live[i]: self.emit_items(side.pop(0)); n = 0
        for g in side: self.emit_items(g)

    def gelu_lines(self, X, Y, T, O):
        U = [X, X + 2, Y, Y + 2]; L = []
        P = lambda r: f"v[{r}:{r+1}]"
        for i in range(4): L.append(f"v_pk_mul_f32 {P(T+2*i)}, {P(U[i])}, {P(U[i])}")
        for i in range(4): L.append(f"v_pk_fma_f32 {P(T+2*i)}, {P(T+2*i)}, v[14:15], s[{sC0}:{sC1}] op_sel_hi:[1,0,0]")
        for i in range(4): L.append(f"v_pk_mul_f32 {P(T+2*i)}, {P(T+2*i)}, {P(U[i])}")
        for i in range(8): L.append(f"v_exp_f32 v{T+i}, v{T+i}")
        for i in range(4): L.append(f"v_pk_add_f32 {P(T+2*i)}, {P(T+2*i)}, 1.0 op_sel_hi:[1,0]")
        for i in range(8): L.append(f"v_rcp_f32 v{T+i}, v{T+i}")
        for i in range(4): L.append(f"v_pk_mul_f32 {P(T+2*i)}, {P(T+2*i)}, {P(U[i])}")
        for i in range(4): L.append(f"v_cvt_pk_bf16_f32 v{O+i}, v{T+2*i}, v{T+2*i+1}")
        return L if not (self.c.skip & 1) else L[-8:]
    def gelu_consts(self):
        c1 = -2.0 * math.sqrt(2.0 / math.pi) * math.log2(math.e)
        self.e(f"s_mov_b32 s{sC0}, {fl(c1)}\nv_mov_b32 v14, {fl(c1 * 0.044715)}")
    def softmax_lines(self, Pp, E, PH):
        L = []; P = lambda r: f"v[{r}:{r+1}]"
        L += [f"v_max3_f32 v8, v{Pp}, v{Pp+1}, v{Pp+2}", f"v_min3_f32 v10, v{Pp}, v{Pp+1}, v{Pp+2}"]
        for i in range(3, 19, 2): L += [f"v_max3_f32 v8, v8, v{Pp+i}, v{Pp+i+1}", f"v_min3_f32 v10, v10, v{Pp+i}, v{Pp+i+1}"]
        L += [f"v_max_f32 v8, v8, v{Pp+19}", f"v_min_f32 v10, v10, v{Pp+19}"]
        L += [f"v_mul_f32_e64 v8, -v8, s{sC0}", f"v_mul_f32 v10, s{sC0}, v10"]
        for i in range(10):
            L.append(f"v_pk_fma_f32 {P(E+2*i)}, {P(Pp+2*i)}, s[{sC0}:{sC1}], v[8:9] op_sel_hi:[1,0,0]")
            L.append(f"v_pk_fma_f32 {P(E+20+2*i)}, {P(Pp+2*i)}, s[{sC0}:{sC1}], v[10:11] op_sel_hi:[1,0,0] neg_lo:[1,0,0] neg_hi:[1,0,0]")
        for i in range(40): L.append(f"v_exp_f32 v{E+i}, v{E+i}")
        L += [f"v_pk_add_f32 v[8:9], {P(E)}, {P(E+2)}", f"v_pk_add_f32 v[10:11], {P(E+20)}, {P(E+22)}"]
        for i in range(2, 10): L += [f"v_pk_add_f32 v[8:9], v[8:9], {P(E+2*i)}", f"v_pk_add_f32 v[10:11], v[10:11], {P(E+20+2*i)}"]
        L += ["v_add_f32 v8, v8, v9", "v_add_f32 v10, v10, v11", "v_rcp_f32 v8, v8", "v_rcp_f32 v10, v10"]
        for i in range(10): L.append(f"v_pk_mul_f32 {P(E+2*i)}, {P(E+2*i)}, v[8:9] op_sel_hi:[1,0]")
        for i in range(10): L.append(f"v_pk_mul_f32 {P(E+20+2*i)}, {P(E+20+2*i)}, v[10:11] op_sel_hi:[1,0]")
        for i in range(20): L.append(f"v_cvt_pk_bf16_f32 v{PH+i}, v{E+2*i}, v{E+2*i+1}")
        return L if not (self.c.skip & 2) else [l if 'cvt' in l else '' for l in L]
    def wphi_addr(self, va):
        self.e(f"v_mul_u32_u24 v{va}, 800, v2\nv_mad_u32_u24 v{va}, v3, 40, v{va}\nv_add_u32 v{va}, {L_WPHI}, v{va}")
    def wphi_reads(self, va):
        return [[('lg', f"ds_read_b64_tr_b16 a[{AW+2*(dg*5+fg)}:{AW+1+2*(dg*5+fg)}], v{va} offset:{dg*160 + fg*8}", 'wphi')] for dg in range(5) for fg in range(5)]
    def phi_mfmas(self, KQ, Pp):
        L = []
        for dg in range(5):
            for j in range(2):
                for fg in range(5):
                    d = Pp + 20 * j + 4 * fg; w = AW + 2 * (dg * 5 + fg); b = KQ + 10 * j + 2 * dg
                    L.append(f"v_mfma_f32_4x4x4_16b_bf16 {vr(d)}, a[{w}:{w+1}], v[{b}:{b+1}], {vr(d) if dg else 0}")
        return L
    def cvt_heads(self, acc0, dst, j, n=5):
        return [f"v_cvt_pk_bf16_f32 v{dst+2*t+h}, v{acc0+(t*2+j)*4+2*h}, v{acc0+(t*2+j)*4+2*h+1}" for t in range(n) for h in range(2)]
    def rho0(self, dst):
        self.e(f"v_lshrrev_b32 v{dst}, 1, v2\nv_lshl_add_u32 v{dst}, v{dst}, 4, v3\nv_and_b32 v7, 1, v2\nv_lshl_add_u32 v{dst}, v7, 2, v{dst}")
    def x_addr(self, ST, nsl=3, base=220):
        e = self.e
        e(f"""v_lshrrev_b32 v9, 1, v1
        v_xor_b32 v9, v9, v2
        v_lshlrev_b32 v9, 4, v9
        v_lshl_add_u32 v9, v1, 7, v9
        v_add_u32 v{base}, s{sM0}, v9
        v_xor_b32 v{base+1}, 64, v{base}""")
        for sl in range(1, nsl): e(f"v_add_u32 v{base+2*sl}, {sl*ST}, v{base}\nv_add_u32 v{base+1+2*sl}, {sl*ST}, v{base+1}")
    def paced(self, groups, m0, span):
        n = len(groups)
        return [dict(at=m0 + int((k + 0.2) * span / n), chain=1, ins=list(g)) for k, g in enumerate(groups)]
    def prog_QH(self):
        e = self.e; c = self.c; self.init_B(); self.dmap = {0: 3, 1: 5, 2: 7, 3: 9, 14: 11, 7: 13, 9: 15}
        e("L_QH:")
        ST = QH_ST
        e(f"""s_mul_i32 s{sKW}, s{sHG}, 320
        s_lshl_b32 s{sT0}, s{sHG}, 8
        s_add_u32 s{sT0}, s{sT0}, 384
        s_cmp_lt_u32 s{sHG}, 6
        s_cselect_b32 s{sKW}, s{sKW}, s{sT0}
        s_cselect_b32 s{sK1}, 20, 16
        s_mul_i32 s{sT2}, s{sW}, 320""")
        def dma_x(st):
            g = []
            for j in range(4):
                it = [('x', f"s_add_u32 m0, s{sM0}, {(st%3)*ST}")] if j == 0 else []
                g.append(it + [('vm', f"buffer_load_dwordx4 v{208+j}, {srd(SX)}, s{sE+st} offen offset:{j*1024} {c.xsc} lds", ('S', st))])
            return g
        def dma_a(st, i):
            it = []
            if i == 0: it = [('x', f"s_mul_i32 s{sKA}, s{sE+st}, 1920"), ('x', f"s_add_u32 m0, s{sM0+1}, {(st%3)*ST}")]
            if i == 2: it = [('x', f"s_mov_b32 m0, s{sM0+3+st%3}")]
            return it + [('vm', f"buffer_load_dwordx4 v{212+i}, {srd(SQ)}, s{sKA} offen offset:{1024 if i == 1 else 0} {c.wsc} lds", ('S', st))]
        def dma_h(st, i):
            it = []
            if i == 0: it = [('x', f"s_mul_i32 s{sKB}, s{sE+st}, 1728"), ('x', f"s_add_u32 m0, s{sM0+2}, {(st%3)*ST}")]
            if i == 4: it = [('x', "s_add_u32 m0, m0, 4096")]
            return it + [('vm', f"buffer_load_dwordx4 v{215+i}, {srd(S1)}, s{sKB} offen offset:{(i%4)*1024} {c.wsc} lds", ('S', st))]
        def dma_stage(st): return dma_x(st) + [dma_a(st, i) for i in range(3)] + [dma_h(st, i) for i in range(5)]
        if c.fast:
            self.kernarg_wait()
            for g in dma_x(0): self.emit_items(g)
            self.small_dma(SM, 6, f"s{sKW}", None, 20, 'bias', f"s_add_u32 m0, s{sT2}, {L_BIASQH}")
        e(f"""s_mul_i32 s{sT0}, s{sW}, 3
        s_lshl_b32 s{sT1}, s{sW}, 1
        s_add_u32 s{sT1}, s{sT1}, 2
        s_cmp_lt_u32 s{sW}, 2
        s_cselect_b32 s{sT0}, s{sT0}, s{sT1}
        s_lshl_b32 s{sM0+1}, s{sT0}, 10
        s_add_u32 s{sM0+1}, s{sM0+1}, 16384""")
        for sl in range(3):
            e(f"s_add_u32 s{sM0+3+sl}, s{sM0+1}, {2048 + sl*ST}\ns_cmp_lt_u32 s{sW}, 2\ns_cselect_b32 s{sM0+3+sl}, s{sM0+3+sl}, {MISC+4608}")
        e(f"s_lshl_b32 s{sT0}, s{sT0}, 6\ns_mul_i32 s{sT1}, s{sHG}, 160\ns_mul_i32 s{sM0+2}, s{sW}, 5120\ns_add_u32 s{sM0+2}, s{sM0+2}, {16384+10240}")
        for i in range(3):
            e(f"v_add_u32 v9, {64*i}, v0\nv_add_u32 v9, s{sT0}, v9")
            self.attn_voff(212 + i, None, sT1)
            if i == 1: e("v_subrev_u32 v213, 1024, v213")
            if i == 2: e(f"s_cmp_lt_u32 s{sW}, 2\ns_cselect_b32 s{sT4}, 0, {OOB}\nv_add_u32 v214, s{sT4}, v214")
            if c.fast: self.emit_items(dma_a(0, i))
        if not c.fast:
            self.kernarg_wait()
            self.small_dma(SM, 6, f"s{sKW}", None, 20, 'bias', f"s_add_u32 m0, s{sT2}, {L_BIASQH}")
            for g in dma_x(0) + [dma_a(0, i) for i in range(3)]: self.emit_items(g)
        e(f"s_mul_i32 s{sT0}, s{sW}, 320\nv_mov_b32 v14, {OOB}")
        for i in range(5):
            e(f"""v_add_u32 v9, {64*i}, v0
            v_add_u32 v9, s{sT0}, v9
            v_mul_u32_u24 v10, 3277, v9
            v_lshrrev_b32 v10, 16, v10
            v_mul_u32_u24 v11, 20, v10
            v_sub_u32 v11, v9, v11
            v_bfe_u32 v13, v10, 2, 1
            v_lshlrev_b32 v13, 1, v13
            v_xor_b32 v11, v11, v13
            v_cmp_gt_u32 vcc, s{sK1}, v11""")
            self.swap23(10, 12)
            e(f"""v_mul_u32_u24 v10, 3456, v10
            v_lshl_add_u32 v10, v11, 4, v10
            v_add_u32 v10, s{sKW}, v10
            v_subrev_u32 v10, {(i%4)*1024}, v10
            v_cndmask_b32 v{215+i}, v14, v10, vcc""")
            self.emit_items(dma_h(0, i))
        self.pstamp(1)
        if c.pke:
            self.pack_setup()
            for g in self.pack_loads(): self.emit_items(g)
        if c.touch == 1: self.touch()
        if c.touch == 4:
            self.touch3_setup()
            for p_ in range(c.tp0): self.emit_items(self.touch3(p_))
        self.pstamp(2)
        def setup():
            e = self.e
            self.x_addr(ST); self.rho0(8)
            e(f"v_mul_u32_u24 v9, 160, v8\nv_mad_u32_u24 v9, v4, 40, v9\nv_add_u32 v226, 16384, v9")
            e(f"v_mul_u32_u24 v9, 320, v8\nv_lshl_add_u32 v9, v4, 3, v9\nv_add_u32 v9, {16384+10240}, v9\nv_lshl_add_u32 v229, v7, 5, v9\nv_xor_b32 v7, 1, v7\nv_lshl_add_u32 v232, v7, 5, v9")
            for sl in (1, 2): e(f"v_add_u32 v{226+sl}, {sl*ST}, v226\nv_add_u32 v{229+sl}, {sl*ST}, v229\nv_add_u32 v{232+sl}, {sl*ST}, v232")
            self.common_setup()
            if not c.pke: self.pack_setup()
            e(f"s_mul_i32 s{sT1}, s{sW}, 320\ns_add_u32 s{sT1}, s{sT1}, {L_BIASQH}\nv_lshl_add_u32 v13, v2, 3, s{sT1}")
            e(f"""s_lshl_b32 s{sT0}, s{sMT}, 1
            s_lshr_b32 s{sT1}, s{sW}, 1
            s_add_u32 s{sT0}, s{sT0}, s{sT1}
            s_and_b32 s{sT1}, s{sW}, 1
            s_mul_i32 s{sT2}, s{sT0}, 74
            s_lshl_b32 s{sT2}, s{sT2}, 12
            s_lshl_b32 s{sT3}, s{sT1}, 11
            s_add_u32 s{sT2}, s{sT2}, s{sT3}
            s_add_u32 s{sT2}, s{sT2}, {A2}
            s_lshr_b32 s{sT4}, s{sHG}, 1
            s_mul_i32 s{sT4}, s{sT4}, 5
            s_add_u32 s{sT4}, s{sT4}, 54
            s_lshl_b32 s{sT4}, s{sT4}, 12
            s_add_u32 s{sT4}, s{sT4}, s{sT2}
            s_and_b32 s{sT5}, s{sHG}, 1
            s_lshl_b32 s38, s{sT5}, 13
            s_add_u32 s38, s38, s{sT4}
            s_add_u32 s39, s{sT4}, {4*4096}
            s_lshl_b32 s{sT5}, s{sT5}, 3
            s_add_u32 s39, s39, s{sT5}
            s_lshl_b32 s{sT0}, s{sHG}, 4
            s_add_u32 s{sT0}, s{sT0}, s{sMT}
            s_lshl_b32 s{sT0}, s{sT0}, 2
            s_add_u32 s{sT0}, s{sT0}, s{sW}
            s_lshl_b32 s{sT0}, s{sT0}, 9
            s_add_u32 s43, s{sT0}, {GB}
            v_mov_b32 v204, -1
            v_mov_b32 v205, -1
            v_mov_b32 v206, -1
            v_mov_b32 v207, -1""")
        self.interleave(self.record(setup), dma_stage(1)[:c.n1], c.pe)
        self.pstamp(3)
        if c.n1 >= 12:
            self.small_dma(SM, 6, "s36", None, 50, 'misc', "s_mov_b32 m0, s37")
            if c.touch == 2: self.touch()
            if not c.pke:
                for g in self.pack_loads(): self.emit_items(g)
        self.tag_wait(); self.pstamp(4)
        e.wait(vm='bias')
        for s_ in range(10): e.lgop(f"ds_read_b64 v[{136+2*s_}:{137+2*s_}], v13 offset:{s_*32}", ('b', s_))
        for s_ in range(10):
            a0 = 16 + (5 + s_) * 8; e.wait(lg=('b', s_))
            for h in range(2): e(f"v_lshlrev_b32 v{a0+2*h}, 16, v{136+2*s_+h}\nv_and_b32 v{a0+2*h+1}, 0xffff0000, v{136+2*s_+h}")
        self.stamp(0)
        NS = 15; nm = NS * 4; mf = []; reads = []
        for st in range(10):
            sl = st % 3
            for t in range(NS):
                gs = st * NS + t; wr = 168 + 8 * (gs % 4); m0 = len(mf)
                for ks in range(2):
                    for rd in range(2):
                        if t < 5: ad, off = 226 + sl, ks * 5120 + rd * 1280 + t * 8
                        else: ad, off = (229 if (t - 5) % 2 == 0 else 232) + sl, ks * 10240 + rd * 2560 + ((t - 5) >> 1) * 64
                        reads.append([f"ds_read_b64_tr_b16 v[{wr+4*ks+2*rd}:{wr+4*ks+2*rd+1}], v{ad} offset:{off}", m0, st, m0 - 13])
                for j in ((1, 0) if st == 0 else (0, 1)):
                    for ks in range(2):
                        xr = 136 + (st % 2) * 16 + (j * 2 + ks) * 4; d = 16 + (t * 2 + j) * 4
                        if t == 0: reads.append([f"ds_read_b128 {vr(xr)}, v{220+2*sl+ks} offset:{j*2048}", len(mf), st, -1])
                        cc = vr(d)
                        if st == 0 and ks == 0: cc = "0" if t < 5 else vr(16 + t * 8)
                        mf.append(f"v_mfma_f32_16x16x32_bf16 {vr(d)}, {vr(wr+4*ks)}, {vr(xr)}, {cc}")
        po = lambda va, off: [('vm', f"buffer_store_dwordx4 v[204:207], v{va}, {srd(SWS)}, s38 offen offset:{off} sc1", 'hst')]
        poison = [po(6, 0), po(6, 1024), po(240, 0), po(240, 1024)] + [[('vm', f"buffer_store_dwordx2 v[204:205], v6, {srd(SWS)}, s39 offen offset:{j*1024} sc1", 'hst')] for j in range(2)]
        self.kloop(mf, reads, nm, dma_stage, poison, 'QH')
        A51 = lambda u: u < 51; A64 = lambda u: u < 64; ALL = lambda u: True
        self.gelu_consts()
        e(f"s_lshl_b32 s{sT3}, s{sKW}, 6\ns_add_u32 s{sT3}, s{sT3}, s{sT2}")
        L = []
        for p in range(5):
            for j in range(2):
                O = 152 + 4 * ((2 * p + j) % 4)
                L += self.gelu_lines(16 + ((5 + 2 * p) * 2 + j) * 4, 16 + ((6 + 2 * p) * 2 + j) * 4, 136 + 8 * j, O)
                if j == 0:
                    if p == 4: L += [f"s_add_u32 s{sT4}, s{sT3}, {4*4096}", f"s_cmp_lt_u32 s{sHG}, 6\ns_cselect_b32 s{sT4}, s{sT4}, {OOB}"]
                    else: L.append(f"s_add_u32 s{sT4}, s{sT3}, {p*4096}")
                L.append(('vm', f"buffer_store_dwordx4 {vr(O)}, v6, {srd(SWS)}, s{sT4} offen offset:{j*1024} sc1", 'hst'))
        self.valu(L, bg=A51, S=c.Sg)
        self.valu(self.cvt_heads(16, 56, 0) + self.cvt_heads(16, 66, 1), bg=A51)
        self.stamp(2)
        e.wait(lg='wphi')
        self.valu(self.phi_mfmas(56, 76), bg=A51)
        e(f"""s_lshl_b32 s{sT4}, s{sMT}, 4
        s_add_u32 s{sT4}, s{sT4}, s{sHG}
        s_lshl_b32 s{sT4}, s{sT4}, 7
        s_add_u32 s{sT4}, s{sT4}, {F4}
        s_cmp_eq_u32 s{sW}, 0
        s_cselect_b32 s{sT5}, s{sT4}, {OOB}
        s_mov_b32 s{sC0}, {fl(math.log2(math.e))}""")
        L1 = self.softmax_lines(76, 16, 116)
        self.valu(L1[:c.f4at], bg=A64)
        e.wait(vm='hst'); e("s_barrier")
        if c.stamps == 3: e(f"s_mov_b32 s{sC0}, {fl(math.log2(math.e))}")
        e.vmop(self.flag_store(245, 246, f"s{sT5}"), 'f4st')
        self.valu(L1[c.f4at:], bg=ALL)
        L2 = self.softmax_lines(96, 16, 136)
        self.valu(L2[:c.pa], bg=ALL)
        self.poll4a_issue()
        self.valu(L2[c.pa:c.pb], bg=ALL)
        pool = [[('v', r), c.mo + 1 if r < 204 else c.p3 if r < 220 else 999] for r in list(range(204, 224, 4)) + list(range(168, 204, 4))]
        while len(self.Bpend) > c.qleft: self.bg_try(ALL, -9999)
        self.ph2_begin(pool)
        if c.stamps == 3: e(f"s_mov_b32 s{sC0}, {fl(math.log2(math.e))}")
        self.valu(L2[c.pb:], bg=ALL)
        self.stamp(3)
        pool += [[('v', r), c.mo + 1] for r in range(156, 168, 4)]
        FO = (0, 1024, 2048, 2816)
        finld = [f"buffer_load_dwordx4 {vr(204+4*i)}, v6, {srd(SWS)}, s{sKW} offen offset:{FO[i]} sc1" for i in range(4)]
        finld += [f"buffer_load_dwordx4 {vr(248+4*j)}, v13, {srd(SWS)}, s43 offen offset:{j*256} sc1" for j in range(2)]
        def h_p3():
            e(f"""s_mul_i32 s{sKW}, s{sHG}, {FSZ}
            s_mul_i32 s{sK1}, s{sW}, 3840
            s_add_u32 s{sKW}, s{sKW}, s{sK1}
            s_add_u32 s{sKW}, s{sKW}, {FIN}
            v_lshlrev_b32 v13, 4, v1""")
            for l in finld: e.vmop(l, 'fin')
        def h_c3():
            it = [('st', 4, 1)] + [('x', l) for l in f"s_lshr_b32 s{sK1}, s{sK1}, 1\ns_add_u32 s{sK1}, s{sK1}, {L_FIN}\nv_lshl_add_u32 v9, v0, 3, s{sK1}".split("\n")] + [('wvm', 'fin')]
            it += [('x', l) for l in self.tag_check(finld, list(range(204, 220)) + list(range(248, 256)), 8)] + [('st', 5, 1)]
            it += [('x', self.tag_strip(r)) for r in list(range(204, 220)) + [248, 252]] + [('x', "v_mov_b32 v250, v248"), ('x', "v_mov_b32 v251, v252")]
            for i in range(4):
                it += [('x', f"v_cvt_pk_bf16_f32 v{204+4*i}, v{204+4*i}, v{205+4*i}"), ('x', f"v_cvt_pk_bf16_f32 v{205+4*i}, v{206+4*i}, v{207+4*i}"),
                       ('lg', f"ds_write_b64 v9, v[{204+4*i}:{205+4*i}] offset:{FO[i]//2}", 'fw')]
            it += [('x', l) for l in f"v_lshlrev_b32 v13, 6, v2\nv_lshl_add_u32 v13, v4, 4, v13\nv_add_u32 v13, {L_FIN}, v13".split("\n")]
            self.aq[:0] = [[self.m, c.mo - 3, x] for x in it]
        def h_o():
            if c.p1q < 0: self.poll4b_issue()
            fr = [p for p in pool if p[0][0] == 'a'][:8]; assert len(fr) == 8; self.busy = fr
            e.wait(lg='fw'); e("s_barrier")
            self.stamp(6)
            mf = []; reads = []
            for fp in range(5):
                for dg in range(6):
                    n = fp * 6 + dg; f0 = fr[n % 8][0][1]; base = (n // 2) * 8
                    reads.append([f"ds_read_b128 {ar(f0)}, v13 offset:{(dg*5+fp)*256}", base + 2 * (n % 2), -1, base - 24])
                    for h in range(2):
                        for j in range(2):
                            d = 156 + 24 * j + 4 * dg; b = 116 + 20 * j + 2 * (2 * fp + h)
                            mf.append(f"v_mfma_f32_4x4x4_16b_bf16 {vr(d)}, a[{f0+2*h}:{f0+2*h+1}], v[{b}:{b+1}], {vr(d) if (fp or h) else 0}")
            mf2 = []
            for n in range(0, 30, 2):
                a_, b_ = mf[4*n:4*n+4], mf[4*n+4:4*n+8]
                mf2 += [a_[0], a_[1], b_[0], b_[1], a_[2], a_[3], b_[2], b_[3]]
            if c.skip & 4: mf2 = mf2[:8]; reads = reads[:2]
            self.stream(mf2, reads, [], None, LA=20, bg=lambda m: self.ph2_bg)
            for j in range(2): e(f"v_add_f32 v{8+2*j}, {fl(1e-6)}, v{156+24*j+20}")
            for j in range(2): e(f"v_rcp_f32 v{8+2*j}, v{8+2*j}")
            for j in range(2): e(f"v_mul_f32 v{8+2*j}, v{8+2*j}, v{250+j}")
            for j in range(2):
                D = 156 + 24 * j
                for i in range(10): e(f"v_pk_mul_f32 v[{D+2*i}:{D+2*i+1}], v[{D+2*i}:{D+2*i+1}], v[{8+2*j}:{9+2*j}] op_sel_hi:[1,0]")
                for i in range(10): e(f"v_cvt_pk_bf16_f32 v{D+i}, v{D+2*i}, v{D+2*i+1}")
                for i in range(10): e(f"v_min_u32 v{D+i}, -2, v{D+i}")
                e.vmop(f"buffer_store_dwordx4 {vr(D)}, v6, {srd(SWS)}, s38 offen offset:{j*1024} sc1", 'ost')
                e.vmop(f"buffer_store_dwordx4 {vr(D+4)}, v240, {srd(SWS)}, s38 offen offset:{j*1024} sc1", 'ost')
                e.vmop(f"buffer_store_dwordx2 {vr(D+8, 2)}, v6, {srd(SWS)}, s39 offen offset:{j*1024} sc1", 'ost')
            self.busy = []
            for p in pool: p[1] = 999
            pool.extend([[('v', r), 999] for r in range(116, 156, 4)])
            self.stamp(14)
        self.bias2()
        self.phase2({c.p3: h_p3, c.c3: h_c3, c.mo: h_o, c.p1q: self.poll4b_issue, c.c1q: self.poll4b_check})

    def prog_KV(self):
        e = self.e; c = self.c; self.init_B(); self.dmap = {0: 2, 1: 4, 3: 6, 4: 8, 5: 10, 7: 12, 9: 14}
        ST = KV_ST
        e(f"""s_mul_i32 s{sM0+1}, s{sW}, 5120
        s_add_u32 s{sM0+1}, s{sM0+1}, 16384
        s_lshl_b32 s{sM0+2}, s{sW}, 11
        s_add_u32 s{sM0+2}, s{sM0+2}, 36864
        s_lshl_b32 s{sKW}, s{sHG}, 7
        s_add_u32 s{sKW}, s{sKW}, {19*128}""")
        def dma_x(st):
            g = []
            for j in range(4):
                it = [('x', f"s_add_u32 m0, s{sM0}, {(st%3)*ST}")] if j == 0 else []
                g.append(it + [('vm', f"buffer_load_dwordx4 v{208+j}, {srd(SX)}, s{sE+st} offen offset:{j*1024} {c.xsc} lds", ('S', st))])
            return g
        def dma_w(st, i):
            it = []
            if i == 0: it = [('x', f"s_mul_i32 s{sKA}, s{sE+st}, 1920"), ('x', f"s_add_u32 m0, s{sM0+1}, {(st%3)*ST}")]
            if i == 4: it = [('x', "s_add_u32 m0, m0, 4096")]
            return it + [('vm', f"buffer_load_dwordx4 v{212+i}, {srd(SQ)}, s{sKA} offen offset:{(i%4)*1024} {c.wsc} lds", ('S', st))]
        def dma_h(st, i):
            it = [('x', f"s_mul_i32 s{sKB}, s{sE+st}, 1728"), ('x', f"s_add_u32 m0, s{sM0+2}, {(st%3)*ST}")] if i == 0 else []
            return it + [('vm', f"buffer_load_dwordx4 v{217+i}, {srd(S1)}, s{sKB} offen offset:{i*1024} {c.wsc} lds", ('S', st))]
        def dma_stage(st): return dma_x(st) + [dma_w(st, i) for i in range(5)] + [dma_h(st, i) for i in range(2)]
        if c.fast:
            self.kernarg_wait()
            for g in dma_x(0): self.emit_items(g)
            self.small_dma(SM, 6, f"s{sKW}", L_BIASKV, 8, 'bias')
        e(f"""s_and_b32 s{sT0}, s{sW}, 1
        s_mul_i32 s{sT0}, s{sT0}, 320
        s_lshr_b32 s{sT1}, s{sW}, 1
        s_add_u32 s{sT1}, s{sT1}, 1
        s_mul_i32 s{sT1}, s{sT1}, 1280
        s_mul_i32 s{sT3}, s{sHG}, 160
        s_add_u32 s{sT1}, s{sT1}, s{sT3}""")
        for i in range(5):
            e(f"v_add_u32 v9, {64*i}, v0\nv_add_u32 v9, s{sT0}, v9")
            self.attn_voff(212 + i, None, sT1)
            if i % 4: e(f"v_subrev_u32 v{212+i}, {(i%4)*1024}, v{212+i}")
            if c.fast: self.emit_items(dma_w(0, i))
        if not c.fast:
            self.kernarg_wait()
            self.small_dma(SM, 6, f"s{sKW}", L_BIASKV, 8, 'bias')
            for g in dma_x(0) + [dma_w(0, i) for i in range(5)]: self.emit_items(g)
        e(f"s_lshl_b32 s{sT3}, s{sW}, 4\nv_lshlrev_b32 v11, 1, v2\nv_xor_b32 v11, v11, v0\nv_and_b32 v11, 7, v11")
        for pp in range(2):
            e(f"v_add_u32 v10, {8*pp}, v5\nv_add_u32 v10, s{sT3}, v10")
            self.swap23(10, 12)
            e(f"""v_mul_u32_u24 v10, 3456, v10
            v_lshl_add_u32 v10, v11, 4, v10
            v_add_u32 v10, s{sKW}, v10
            v_subrev_u32 v{217+pp}, {pp*1024}, v10""")
            self.emit_items(dma_h(0, pp))
        mk_srd(e, 28, pGATE, 1280)
        if c.rot == 3: e(f"v_xor_b32 v9, s{sE}, v6\nv_add_u32 v11, 1024, v9")
        else: e(f"v_add_u32 v9, s{sE}, v6\nv_subrev_u32 v10, 1280, v9\nv_min_u32 v9, v9, v10\nv_add_u32 v11, 1024, v9\nv_subrev_u32 v10, 1280, v11\nv_min_u32 v11, v11, v10")
        self.small_dma(28, 9, "0", L_GATE, 64, ('S', 0)); self.small_dma(28, 11, "0", L_GATE + 1024, 16, ('S', 0))
        self.pstamp(1)
        if c.pke:
            self.pack_setup()
            for g in self.pack_loads(): self.emit_items(g)
        if c.touch == 1: self.touch()
        if c.touch == 4:
            self.touch3_setup()
            for p_ in range(c.tp0): self.emit_items(self.touch3(p_))
        self.pstamp(2)
        def setup():
            e = self.e
            self.x_addr(ST); self.rho0(8)
            e(f"v_mul_u32_u24 v9, 160, v8\nv_mad_u32_u24 v9, v4, 40, v9\nv_add_u32 v226, 16384, v9")
            for sl in (1, 2): e(f"v_add_u32 v{226+sl}, {sl*ST}, v226")
            e(f"v_lshlrev_b32 v9, 7, v8\nv_lshl_add_u32 v9, v4, 3, v9\nv_add_u32 v9, 36864, v9\nv_bfe_u32 v10, v8, 1, 2")
            for t in range(4): e(f"v_xor_b32 v11, {t}, v10\nv_lshl_add_u32 v{229+t}, v11, 5, v9\nv_add_u32 v{204+t}, {2*ST}, v{229+t}")
            e(f"v_lshlrev_b32 v233, 4, v2\nv_add_u32 v233, {L_GATE}, v233\nv_lshlrev_b32 v253, 3, v2\nv_add_u32 v253, {L_BIASKV}, v253")
            self.common_setup()
            if not c.pke: self.pack_setup()
            e(f"""v_lshrrev_b32 v8, 2, v1
            v_mul_u32_u24 v8, 2560, v8
            v_lshl_add_u32 v8, v4, 5, v8
            v_lshrrev_b32 v9, 1, v2
            v_lshl_add_u32 v8, v9, 9, v8
            v_and_b32 v9, 1, v2
            v_lshl_add_u32 v8, v9, 4, v8
            s_lshl_b32 s{sT0}, s{sW}, 7
            v_add_u32 v241, s{sT0}, v8
            v_add_u32 v243, 10240, v241
            v_mov_b32 v9, {OOB}
            v_cmp_ge_u32 vcc, 7, v1
            v_cndmask_b32 v243, v9, v243, vcc
            v_cmp_gt_u32 vcc, 2, v2
            v_cndmask_b32 v242, v9, v241, vcc
            v_cndmask_b32 v244, v9, v243, vcc
            v_mul_u32_u24 v12, {PSZ}, v2
            v_min_u32 v10, 14, v1
            v_lshl_add_u32 v12, v10, 4, v12
            v_lshlrev_b32 v13, 4, v1
            v_cmp_gt_u32 vcc, 16, v0
            v_cndmask_b32 v234, v9, v13, vcc
            v_cmp_gt_u32 vcc, 15, v0
            v_cndmask_b32 v13, v9, v13, vcc""")
        self.interleave(self.record(setup), dma_stage(1)[:c.n1], c.pe2)
        self.pstamp(3)
        if c.n1 >= 12:
            self.small_dma(SM, 6, "s36", None, 50, 'misc', "s_mov_b32 m0, s37")
            if c.touch == 2: self.touch()
            if not c.pke:
                for g in self.pack_loads(): self.emit_items(g)
        self.tag_wait(); self.pstamp(4)
        e.wait(vm='bias')
        for s_ in range(4): e.lgop(f"ds_read_b64 v[{136+2*s_}:{137+2*s_}], v253 offset:{s_*32}", ('b', s_))
        for s_ in range(4):
            e.wait(lg=('b', s_))
            for h in range(2): e(f"v_lshlrev_b32 v{96+8*s_+2*h}, 16, v{136+2*s_+h}\nv_and_b32 v{97+8*s_+2*h}, 0xffff0000, v{136+2*s_+h}")
        self.stamp(0)
        NS = 15; nm = NS * 4; mf = []; reads = []
        for st in range(10):
            sl = st % 3
            for t in range(NS):
                gs = st * NS + t; wr = 168 + 8 * (gs % 4); m0 = len(mf)
                for ks in range(2):
                    if t == 14: reads.append([f"ds_read_b128 {vr(wr+4*ks)}, v233 offset:{(st*2+ks)*64}", m0, st, m0 - 13]); continue
                    for rd in range(2):
                        if t < 10: ad, off = 226 + sl, (t // 5) * 10240 + ks * 5120 + rd * 1280 + (t % 5) * 8
                        else: ad, off = (229 if sl < 2 else 204) + t - 10, (sl % 2) * ST + ks * 4096 + rd * 1024
                        reads.append([f"ds_read_b64_tr_b16 v[{wr+4*ks+2*rd}:{wr+4*ks+2*rd+1}], v{ad} offset:{off}", m0, st, m0 - 13])
                for j in ((1, 0) if st == 0 else (0, 1)):
                    for ks in range(2):
                        xr = 136 + (st % 2) * 16 + (j * 2 + ks) * 4; d = 16 + (t * 2 + j) * 4
                        if t == 0: reads.append([f"ds_read_b128 {vr(xr)}, v{220+2*sl+ks} offset:{j*2048}", len(mf), st, -1])
                        cc = vr(d)
                        if st == 0 and ks == 0: cc = vr(16 + t * 8) if 10 <= t < 14 else "0"
                        mf.append(f"v_mfma_f32_16x16x32_bf16 {vr(d)}, {vr(wr+4*ks)}, {vr(xr)}, {cc}")
        self.kloop(mf, reads, nm, dma_stage, [], 'KV')
        A64 = lambda u: u < 64; ALL = lambda u: True
        A51 = lambda u: u < 51; Sa = c.Sa
        KQ = 136; PR = 168; VT = 156
        nl2e = fl(-math.log2(math.e))
        side = [l.strip() for l in f"""v_mul_f32 v128, {nl2e}, v128
        v_mul_f32 v132, {nl2e}, v132
        v_exp_f32 v128, v128
        v_exp_f32 v132, v132
        s_lshl_b32 s{sT2}, s{sMT}, 2
        v_add_f32 v128, 1.0, v128
        v_add_f32 v132, 1.0, v132
        v_rcp_f32 v128, v128
        v_rcp_f32 v132, v132
        s_add_u32 s{sT2}, s{sT2}, s{sW}
        s_lshl_b32 s{sT3}, s{sT2}, 9
        s_lshl_b32 s{sT4}, s{sHG}, 15
        s_add_u32 s{sT3}, s{sT3}, s{sT4}
        s_add_u32 s{sT3}, s{sT3}, {GB}
        v_mul_u32_u24 v220, {RSV}, v1
        v_mad_u32_u24 v220, v2, 48, v220
        s_mul_i32 s{sT0}, s{sW}, {32*RSV}
        s_add_u32 s{sT0}, s{sT0}, {L_V}
        v_add_u32 v220, s{sT0}, v220
        v_mul_u32_u24 v221, {RSP}, v1
        s_mov_b32 s{sT0}, 80
        v_mad_u32_u24 v221, v2, s{sT0}, v221
        s_mul_i32 s{sT0}, s{sW}, {32*RSP}
        v_add_u32 v221, s{sT0}, v221
        v_lshl_add_u32 v8, v2, 2, v3
        v_mul_u32_u24 v222, {RSP}, v8
        v_lshl_add_u32 v222, v4, 3, v222
        s_mul_i32 s{sT0}, s{sW}, 80
        v_add_u32 v222, s{sT0}, v222
        v_mul_u32_u24 v223, {RSV}, v8
        v_lshl_add_u32 v223, v4, 3, v223
        s_mul_i32 s{sT0}, s{sW}, 48
        s_add_u32 s{sT0}, s{sT0}, {L_V}
        v_add_u32 v223, s{sT0}, v223
        s_lshl_b32 s{sT0}, s{sHG}, 4
        s_add_u32 s{sT0}, s{sT0}, s{sMT}
        s_mul_i32 s{sT1}, s{sT0}, {PSZ}
        s_add_u32 s{sT1}, s{sT1}, {PP}
        s_mov_b32 s{sC0}, {fl(math.log2(math.e))}""".split("\n")]
        self.valu(self.cvt_heads(16, KQ, 0) + self.cvt_heads(16, KQ + 10, 1))
        e.wait(lg='wphi')
        side = self.cvt_heads(56, VT, 0) + side[:38]; rest = [side.pop() for _ in range(0)]
        self.valu(self.phi_mfmas(KQ, PR), [[('x', l)] for l in side], 1)
        e(f"v_mov_b32 v{VT+10}, 0x3f80\nv_mov_b32 v{VT+11}, 0\ns_mov_b32 s{sC0}, {fl(math.log2(math.e))}\ns_barrier")
        for i in range(3): e.lgop(f"ds_write_b128 v220, {vr(VT+4*i)} offset:{i*16}", 'vw')
        for j in range(2):
            for i in (3, 2, 1, 0): e(self.tag_put(128 + 4 * j + i, 128 + 4 * j))
            e.vmop(f"buffer_store_dwordx4 {vr(128+4*j)}, v234, {srd(SWS)}, s{sT3} offen offset:{j*256} sc1", 'hst')
        L0 = self.softmax_lines(PR, 16, 136)
        self.valu(L0[:16], bg=ALL, S=Sa)
        self.valu(self.cvt_heads(56, 208, 1) + ["v_mov_b32 v218, 0x3f80", "v_mov_b32 v219, 0"], bg=ALL, S=Sa)
        for i in range(3): e.lgop(f"ds_write_b128 v220, {vr(208+4*i)} offset:{16*RSV + i*16}", 'vw')
        self.valu(L0[16:], bg=ALL, S=Sa)
        PH = (136, 56)
        pw = lambda j: [[('lg', f"ds_write_b128 v221, {vr(PH[j]+4*i)} offset:{j*16*RSP + i*16}", 'pw')] for i in range(5)]
        L1 = self.softmax_lines(PR + 20, 16, 56)
        self.valu(L1[:40], pw(0), 8, ALL, Sa)
        self.valu(L1[40:-20], bg=ALL, S=Sa)
        self.valu(L1[-20:], pw(1), 4)
        e.wait(lg_all=True); e("s_barrier")
        self.stamp(2)
        mf = []; reads = []; D0 = 168
        for s_ in range(4):
            b0 = 16 + s_ * 20; m0 = len(mf)
            for dt in range(2):
                for rd in range(2): reads.append([f"ds_read_b64_tr_b16 v[{b0+12+4*dt+2*rd}:{b0+13+4*dt+2*rd}], v223 offset:{(32*s_+16*rd)*RSV + dt*32}", m0 + dt, -1, -1])
            for ft in range(3):
                for rd in range(2): reads.append([f"ds_read_b64_tr_b16 v[{b0+4*ft+2*rd}:{b0+4*ft+2*rd+1}], v222 offset:{(32*s_+16*rd)*RSP + ft*32}", m0 + 2 * ft, -1, -1])
                for dt in range(2):
                    d = D0 + (ft * 2 + dt) * 4
                    mf.append(f"v_mfma_f32_16x16x32_bf16 {vr(d)}, {vr(b0+4*ft)}, {vr(b0+12+4*dt)}, {vr(d) if s_ else 0}")
        reads.sort(key=lambda r: r[1]); rp = 0
        for m in range(24):
            while rp < 40 and (len(e.lg) < 14 and (m == 0 or reads[rp][1] <= m + 8) or reads[rp][1] <= m): e.lgop(reads[rp][0], ('kv', reads[rp][1])); rp += 1
            e.wait(lg=[('kv', k) for k in range(m + 1)])
            e(mf[m])
            if c.kvb: self.bg_try(ALL, c.kvb)
        self.gelu_consts()
        e(f"""s_lshl_b32 s{sT4}, s{sMT}, 1
        s_lshr_b32 s{sT5}, s{sW}, 1
        s_add_u32 s{sT4}, s{sT4}, s{sT5}
        s_and_b32 s{sT5}, s{sW}, 1
        s_mul_i32 s{sT3}, s{sT4}, 74
        s_lshl_b32 s{sKW}, s{sHG}, 1
        s_add_u32 s{sT3}, s{sT3}, s{sKW}""")
        for ft in range(3):
            for dt in range(2):
                for i in range(4): e(self.tag_put(D0 + (ft * 2 + dt) * 4 + i))
                e.vmop(f"buffer_store_dwordx4 {vr(D0+(ft*2+dt)*4)}, v{241+2*dt+(ft==2)}, {srd(SWS)}, s{sT1} offen offset:{ft*1024} sc1", 'pst')
        self.stamp(3)
        if c.stamps: self.gelu_consts()
        e(f"""s_add_u32 s{sT3}, s{sT3}, 38
        s_lshl_b32 s{sT3}, s{sT3}, 12
        s_lshl_b32 s{sT5}, s{sT5}, 11
        s_add_u32 s{sT3}, s{sT3}, s{sT5}
        s_add_u32 s{sT3}, s{sT3}, {A2}
        s_lshl_b32 s{sKW}, s{sMT}, 4
        s_add_u32 s{sKW}, s{sKW}, s{sHG}
        s_lshl_b32 s{sKW}, s{sKW}, 7
        s_add_u32 s{sKW}, s{sKW}, {F4+1024}
        s_cmp_eq_u32 s{sW}, 0
        s_cselect_b32 s{sKW}, s{sKW}, {OOB}
        s_mul_i32 s32, s{sT2}, 240
        s_mul_i32 s{sT4}, s{sHG}, {FSZ}
        s_add_u32 s{sT1}, s32, s{sT4}
        s_add_u32 s{sT1}, s{sT1}, {FIN}
        s_lshl_b32 s{sT4}, s{sT4}, 4
        s_add_u32 s32, s32, s{sT4}
        s_add_u32 s32, s32, {PP}
        s_add_u32 s33, s32, {4*PSZ}
        s_add_u32 s34, s33, {4*PSZ}
        s_add_u32 s35, s34, {4*PSZ}""")
        L = []; hs = []
        for p in range(2):
            for j in range(2):
                O = 152 + 4 * ((2 * p + j) % 4)
                L += self.gelu_lines(96 + (4 * p + j) * 4, 96 + (4 * p + 2 + j) * 4, 136 + 8 * j, O)
                hs.append(('vm', f"buffer_store_dwordx4 {vr(O)}, v{6 if p == 0 else 240}, {srd(SWS)}, s{sT3} offen offset:{j*1024} sc1", 'hst'))
        RD = 116
        pld = [f"buffer_load_dwordx4 {vr(RD+4*i)}, v12, {srd(SWS)}, s{32+i} offen sc1" for i in range(4)]
        self.valu(L, bg=ALL if c.kgb else None, S=Sa)
        for l in pld: e.vmop(l, 'pld')
        self.poll4a_issue()
        self.emit_items(hs)
        pool = [[('v', r), 999] for r in list(range(168, 224, 4)) + list(range(136, 168, 4))]
        for _ in range(c.kb2): self.bg_try(ALL, -9999)
        self.stamp(4)
        def h_r2():
            red = [self.tag_strip(RD + i) for i in range(16)]
            red += [f"v_add_f32 v{RD+i}, v{RD+i}, v{RD+4+i}" for i in range(4)] + [f"v_add_f32 v{RD+8+i}, v{RD+8+i}, v{RD+12+i}" for i in range(4)] + [f"v_add_f32 v{RD+i}, v{RD+i}, v{RD+8+i}" for i in range(4)]
            for sw in ('32', '16'):
                red += [f"v_mov_b32 v{RD+4+i}, v{RD+i}" for i in range(4)] + [f"v_permlane{sw}_swap_b32 v{RD+i}, v{RD+4+i}" for i in range(4)] + [f"v_add_f32 v{RD+i}, v{RD+i}, v{RD+4+i}" for i in range(4)]
            red += [self.tag_put(RD + i) for i in range(4)]
            it = [('st', 14, 1), ('wvm', 'pld')] + [('x', l) for l in self.tag_check(pld, range(RD, RD + 16), 9)] + [('st', 5, 1)] + [('x', l) for l in red]
            it += [('vm', f"buffer_store_dwordx4 {vr(RD)}, v13, {srd(SWS)}, s{sT1} offen sc1", 'fst')]
            self.emit_items(it); pool.extend([[('v', r), 999] for r in range(RD, RD + 20, 4)])
        def h_f4():
            e.wait(vm='hst'); e("s_barrier"); e.vmop(self.flag_store(245, 246, f"s{sKW}"), 'f4st')
        h_r2()
        self.ph2_begin(pool)
        while len(self.Bpend) > c.kleft: self.bg_try(ALL, -9999)
        self.stamp(6)
        self.bias2()
        self.phase2({c.f4k: h_f4, c.p1: self.poll4b_issue, c.c1: self.poll4b_check})

    def kloop(self, mf, reads, nm, dma_stage, poison, name):
        e = self.e; c = self.c; back = []
        def mksync(st):
            def f(m):
                tg = [it[2] for g in back for it in (g[1] if g[0] == 'atomic' else g) if it[0] == 'vm']
                assert not (st == c.pks and 'packld' in tg) and not (st == c.pks + 3 and 'pkst' in tg) and not (st == 3 and 'misc' in tg) and ('S', st) not in tg
                e.wait(vm=[('S', st)] + (['pkst'] if st == c.pks + 3 else []) + (['misc'] if st == 3 else []) + (['packld'] if st == c.pks else []), lg_all=True); e("s_barrier")
                self.stamp(st + 1, 2)
                if st < 3: self.stamp(7 + st, 3)
                if st == 2: self.pstamp_flush()
                out = []
                if st == 0 and c.n1 < 12:
                    back.extend(dma_stage(1)[c.n1:])
                    back.append(('atomic', self.record(lambda: self.small_dma(SM, 6, "s36", None, 50, 'misc', "s_mov_b32 m0, s37"))))
                if st + 2 < 10: back.extend(dma_stage(st + 2))
                if st == c.pkl and c.n1 < 12: back.extend(self.pack_loads())
                if st == c.pks: back.extend(self.pack_stores())
                need = max([k + 1 for k, g in enumerate(back) if g[0] != 'atomic' and g[-1][2] == ('S', st + 1)], default=0)
                n = min(len(back), max(c.quota, need)) if st < 7 else len(back)
                take = back[:n]; del back[:n]
                if take:
                    pc = self.paced([g[1] if g[0] == 'atomic' else g for g in take], m, nm - c.dtail)
                    for f, g in zip(pc, take):
                        if g[0] == 'atomic': f['atomic'] = 1
                    out += pc
                if c.touch == 4: out += [dict(at=m + nm - c.dtail + 1, chain=1, ins=self.touch3(p_)) for p_ in range(c.tp0, 3) if c.tst[p_] == st]
                if st in c.cpf: out.append(dict(at=m + nm - c.dtail + 2, ins=self.code_touch('L_QH' if name == 'KV' else 'L_end')))
                if st == c.pks: out += self.pack_fill(m, nm)
                if st == c.pks + 3: out.append(dict(at=m + 1, ins=[('vm', self.flag_store(245, 246, f"s{sF1}"), 'f1st')]))
                if st == 3: out += [dict(at=m + 3 + 5 * k, ins=g) for k, g in enumerate(self.wphi_reads(254))]
                if st == c.f1s - 1: out += [dict(at=m + nm - c.dtail + 2 * k, chain=1, ins=g) for k, g in enumerate(self.f1_issue())]
                if st == c.f1s:
                    chk = [dict(at=m + c.f1c + 2 * k, ins=[it]) for k, it in enumerate(self.f1_check())]
                    out += chk
                    if c.bt: out += [dict(at=m + c.f1c + 26 + c.btsp * k, ins=g) for k, g in enumerate(self.btouch())]
                if st == 8:
                    if poison: out += self.paced(poison, m, 30)
                    self.bg0 = max(m + c.bgs, (m + c.f1c + 28) if c.f1s == 8 else 0)
                return out
            return f
        self.bg0 = 9999; self.wphi_addr(254)
        self.stream(mf, reads, [], {st: mksync(st) for st in range(10)}, name=name, bg=lambda m: (lambda u: m >= self.bg0 and u < 51))
        self.stamp(1); self.stamp(11, 2)
        self.ph2_pre()

    def ph2_pre(self):
        e = self.e
        mk_srd(e, SM, pB2, 1280); mk_srd(e, SPK, pOUT, 2048 * 1280)
        e(f"""s_mul_i32 s{sM0}, s{sNB}, 160
        s_and_b32 s{sM0+1}, s{sNB}, 1
        s_lshl_b32 s{sM0+2}, s{sM0+1}, 5
        s_add_u32 s{sM0+2}, s{sM0+2}, s{sM0}
        s_xor_b32 s{sM0+1}, s{sM0+1}, 1
        s_lshl_b32 s{sM0+1}, s{sM0+1}, 7
        s_add_u32 s{sM0+1}, s{sM0+1}, s{sM0}
        s_min_u32 s{sM0+3}, s{sW}, 1
        s_mul_i32 s{sM0+3}, s{sM0+3}, 1280
        s_sub_u32 s{SM+2}, 1280, s{sM0+3}
        s_lshr_b32 s{sM0+5}, s{sRB}, 1
        s_lshl_b32 s{sM0+3}, s{sM0+5}, 11
        s_add_u32 s{sM0+3}, s{sM0+3}, {F4}
        s_add_u32 s{sM0+4}, s{sM0+3}, 1024
        v_and_b32 v235, 7, v0
        v_lshlrev_b32 v235, 7, v235""")
        e("v_lshlrev_b32 v7, 4, v2\nv_lshlrev_b32 v8, 3, v2")
        e.vmop(f"buffer_load_dwordx4 v[224:227], v7, {srd(SM)}, s{sM0+2} offen", 'b2')
        e.vmop(f"buffer_load_dwordx4 v[228:231], v7, {srd(SM)}, s{sM0+2} offen offset:64", 'b2')
        e.vmop(f"buffer_load_dwordx2 v[232:233], v8, {srd(SM)}, s{sM0+1} offen", 'b2')
    def poll4a_issue(self): self.e.vmop(self.poll_issue(235, 252, 2, None, f"s{sM0+3}"), 'p4a')

    def poll4b_issue(self): self.e.vmop(self.poll_issue(235, 252, 2, None, f"s{sM0+4}"), 'p4b')
    def poll4b_check(self):
        e = self.e
        self.stamp(10)
        e.wait(vm='p4b')
        for l in self.poll_check([(235, 252, 2, f"s{sM0+4}")]): e(l)
        self.stamp(11)
        self.gate[1] = True; self.g_loads()
        for _ in range(self.c.burst): self.try_issue(self.m, True)
    def g_loads(self):
        e = self.e
        e(f"s_lshl_b32 s{sT0}, s{sRB}, 10\ns_add_u32 s{sT0}, s{sT0}, {GB}\nv_lshlrev_b32 v7, 4, v1")
        for jj in range(4):
            e(f"v_subrev_u32 v8, v6, v{236+jj}\nv_lshrrev_b32 v8, 2, v8\nv_add_u32 v8, v8, v7")
            e.vmop(f"buffer_load_dword v{241+jj}, v8, {srd(SWS)}, s{sT0} offen sc1", 'g')
    def bias2(self):
        e = self.e; BI = 96
        e.wait(vm='b2')
        for t in range(5):
            for h in range(2):
                s_ = 224 + 2 * t + h
                e(f"v_lshlrev_b32 v{BI+4*t+2*h}, 16, v{s_}\nv_and_b32 v{BI+4*t+2*h+1}, 0xffff0000, v{s_}")

    def ph2_begin(self, pool):
        e = self.e; c = self.c
        e.wait(vm='p4a')
        for l in self.poll_check([(235, 252, 2, f"s{sM0+3}")]): e(l)
        self.pool = pool; self.busy = []; self.Aloc = {}; self.Bl = dict(self.Bloc); self.Acur = {}
        groups = [(0, 1), (2, 3), (4, 5), (6, 7), (8, 9), (10, 11), (12, 13), (14, 15), (16, 17, 18)]
        self.mf = [(i, t, j) for g in groups for t in range(5) for j in range(4) for i in g]
        fA, lA, fB, lB = {}, {}, {}, {}
        for m, (i, t, j) in enumerate(self.mf):
            fA.setdefault((i, j), m); lA[(i, j)] = m; fB.setdefault((i, t), m); lB[(i, t)] = m
        self.lA, self.lB = lA, lB
        w = [('A', k, fA[k] if k[0] < 14 else (280 if k[0] < 16 else 320) - c.vlead - 1, lA[k]) for k in fA]
        w += [('S', k, fB[k], lB[k]) for k in fB if self.Bl[k] and self.Bl[k][0] == 'l']
        w += [('B', k, fB[k], lB[k]) for k in fB if self.Bl[k] is None]
        self.fB = fB
        self.work = sorted(w, key=lambda x: (x[2] // 40 * 40 + x[1][0] % 2 * 4 + x[1][1]) if (x[0] == 'A' and c.aord and x[1][0] < 14) else x[2]); self.gate = {0: True, 1: False, 2: False, 3: False}; self.Atxt = {}; self.lastiss = -99; self.m = 0
        for _ in range(c.a0): self.try_issue(0, True)

    def try_issue(self, m, force=False, nos=False):
        e = self.e; c = self.c; pool = self.pool
        cls = lambda i: 0 if i < 10 else (1 if i < 14 else 2 if i < 16 else 3)
        for w in self.work:
            kind, k, dl, last = w
            if kind == 'A' and not self.gate[cls(k[0])]: continue
            if kind == 'S' and (nos or dl - m > 16 or self.Border.index(k) in self.Bpend): continue
            if kind != 'S' and not force and dl - m >= 12 and e.t - e.tvm < (c.S2 if dl - m >= c.urg else c.S3): continue
            if kind == 'P':
                self.Bpend.remove(k); self.emit_items(self.B_take([k])[0]); self.work.remove(w); return True
            ok = [p for p in pool if p[1] > last and p not in self.busy and (p[0][0] == 'v' or kind != 'A' or k[0] < 14)]
            if not (kind == 'A' and k[0] >= 14): ok.sort(key=lambda p: p[0][0] == 'v' and m > 150)
            if len(ok) < (1 if dl - m <= 40 else 4 if kind == 'A' else 7): continue
            p = ok[0]; pool.remove(p); loc = p[0]; self.until[loc] = p[1]
            if kind == 'A':
                i, j = k; sr = sAT if i % 2 == 0 else sAT2
                if self.Acur.get(sr) != i:
                    e(self.soff(sr, i, 'A')); self.Acur[sr] = i
                e.vmop(f"buffer_load_dwordx4 {R(loc)}, v{236+j}, {srd(SWS)}, s{sB if c.xA == 1 and i < 14 else 41 if c.xA == 2 else sr} offen sc1", ('A', k)); self.Aloc[k] = loc
                self.Atxt[k] = self.soff(sT1, i, 'A').split("\n") + [ f"buffer_load_dwordx4 {R(loc)}, v{236+j}, {srd(SWS)}, s{sT1} offen sc1"]
            elif kind == 'B':
                self.emit_items(self.B_items(k, loc)); self.Bl[k] = loc
            else:
                e.wait(vm=('B', k))
                e.lgop(f"ds_read_b128 {R(loc)}, v234 offset:{self.Bl[k][1]*1024}", ('S', k)); self.Bl[k] = loc
            if kind != 'S': self.lastiss = m
            if c.verbose > 1: print(f'{kind}{k}@{m}->{dl}', end=' ')
            self.work.remove(w); return True
        return False

    def phase2(self, hooks):
        e = self.e; c = self.c
        ACC = 16; BI = 96; pool = self.pool; mf = self.mf; Bl = self.Bl; Aloc = self.Aloc
        mtrans = min(m for m, x in enumerate(mf) if x[0] >= 14)
        if c.verbose: print("B loads left for phase 2:", len(self.Bpend))
        hooks = {k: v for k, v in hooks.items() if k >= 0}
        for u in self.Bpend:
            k = self.Border[u]; self.work.append(('P', u, self.fB[k] - (20 if self.Bloc[k][0] == 'l' else 0), 0))
        self.work.sort(key=lambda x: (x[2] // 40 * 40 + x[1][0] % 2 * 4 + x[1][1]) if (x[0] == 'A' and c.aord and x[1][0] < 14) else x[2])
        e(f"s_add_u32 s{sT0}, s88, {L_BL}\nv_add_u32 v234, s{sT0}, v6")
        pool += [[('v', r), 999] for r in (224, 228)]
        seen = set(); vchk = {280: (14, 15), 320: (16, 17, 18)}
        aq = []
        lastH = {}; firstO = {}; lastO = {}
        for m, (i, t, j) in enumerate(mf):
            if i < 14: lastH[(j, t)] = m
            else: firstO.setdefault((j, t), m); lastO[(j, t)] = m
        g0 = min(lastH.values()) - 10
        aq.append([g0, g0 + 4, ('wvm', 'g')])
        for jj in range(4): aq += [[g0, g0 + 8, ('x', self.tag_strip(241 + jj))]]
        for jj in range(4): aq += [[g0, g0 + 12, ('x', f"v_sub_f32 v{241+jj}, 1.0, v{241+jj}")]]
        for k in sorted(lastH, key=lambda k: lastH[k]):
            jj, tt = k; d = ACC + (jj * 5 + tt) * 4
            for q in range(4): aq.append([lastH[k] + 3, firstO[k] - 2, ('x', f"v_mul_f32 v{d+q}, v{241+jj}, v{d+q}")])
        adr = []
        for jj in range(1, 4):
            adr += [f"s_add_u32 s{sT0}, s{sW}, {jj}", f"s_and_b32 s{sT0}, s{sT0}, 3", f"s_mul_i32 s{sT0}, s{sT0}, 15360",
                    f"s_add_u32 s{sT0}, s{sT0}, {L_RED + (jj-1)*5120}", f"v_add_u32 v{8+jj}, s{sT0}, v6"]
        adr += [l.strip() for l in f"""s_mul_i32 s{sT0}, s{sW}, 15360
        s_add_u32 s{sT0}, s{sT0}, {L_RED}
        v_add_u32 v8, s{sT0}, v6
        s_lshl_b32 s{sT0}, s{sRB}, 2
        s_add_u32 s{sT0}, s{sT0}, s{sW}
        s_mul_i32 s{sT0}, s{sT0}, {16*1280}
        s_add_u32 s{sT3}, s{sT0}, s{sM0+2}
        s_add_u32 s{sT2}, s{sT0}, s{sM0+1}
        v_mul_u32_u24 v12, 1280, v1
        v_lshl_add_u32 v13, v2, 3, v12
        v_lshl_add_u32 v12, v2, 4, v12""".split("\n")]
        for l in adr: aq.append([c.adr0, 325, ('x', l)])
        for k in sorted(lastO, key=lambda k: lastO[k]):
            jj, tt = k
            if jj: aq.append([lastO[k] + 3, 999, ('lg', f"ds_write_b128 v{8+jj}, {vr(ACC+(jj*5+tt)*4)} offset:{tt*1024}", 'rw')])
        self.aq = aq
        for m, (i, t, j) in enumerate(mf):
            self.m = m
            if m == mtrans: self.stamp(7)
            assert (i, j) in Aloc and Bl[(i, t)] and Bl[(i, t)][0] != 'l', (m, i, t, j)
            assert not any(a[1] < m for a in aq), (m, aq[0])
            e.wait(vm=[('A', (i, j)), ('B', (i, t))], lg=('S', (i, t)))
            d = ACC + (j * 5 + t) * 4
            cc = vr(d) if (j, t) in seen else vr(BI + 4 * t); seen.add((j, t))
            e(f"v_mfma_f32_16x16x32_bf16 {vr(d)}, {R(Bl[(i, t)])}, {R(Aloc[(i, j)])}, {cc}")
            k0 = len(e.ins)
            for loc, last in ((Aloc[(i, j)], self.lA[(i, j)]), (Bl[(i, t)], self.lB[(i, t)])):
                if last == m: pool.append([loc, self.until.get(loc, 999) if self.until.get(loc, 999) > m else 999])
            if m == 40: pool.extend([[('v', BI + 4 * k), 999] for k in range(5)])
            if m == c.o1: self.gate[2] = True
            if m == c.o2: self.gate[3] = True
            if m + 1 + c.vlead in vchk:
                mv = m + 1 + c.vlead; ks = [(ii, jj) for ii in vchk[mv] for jj in range(4)]
                assert all(k in Aloc for k in ks), (m, ks)
                vq = [('wvm', [('A', k) for k in ks])] + [('x', l) for l in self.valid_check(sum([self.Atxt[k] for k in ks], []), [Aloc[k][1] + q for k in ks for q in range(4)], 7)]
                if mv == 280: vq = [('st', 12, 1)] + vq + [('st', 13, 1), ('open',)]
                aq[:0] = [[m, mv - 1, it] for it in vq]
            if m in hooks: hooks[m]()
            self.try_issue(m)
            while any(w[2] - m < 4 for w in self.work) and self.try_issue(m): pass
            while True:
                av = [a for a in aq if a[0] <= m]
                if not av: break
                hurry = any(sum(1 for b in aq if b[1] <= a[1]) > 2 * (a[1] - m) for a in aq if a[1] < 999)
                a = min(av, key=lambda a: a[1])
                if len(e.ins) - k0 >= 2 and not hurry: break
                if a[2][0] == 'lg' and any(x.kind in ('dsw', 'dsr', 'vload', 'dma') for x in e.ins[k0:]): break
                aq.remove(a)
                if a[2][0] == 'open':
                    self.gate[3] = True
                    for _ in range(c.burst3): self.try_issue(m, True)
                elif a[2][0] == 'call': a[2][1]()
                else: self.emit_items([a[2]])
        assert not self.work, self.work
        self.stamp(8)
        for a in aq: self.emit_items([a[2]])
        e.wait(lg_all=True); e("s_barrier")
        for t in range(5):
            for s_ in range(3): e.lgop(f"ds_read_b128 {vr(116+(t*3+s_)*4)}, v8 offset:{s_*5120+t*1024}", ('rr', t))
        for t in range(5):
            e.wait(lg=('rr', t)); d = ACC + t * 4; r = 116 + t * 12
            e(f"""v_pk_add_f32 v[{d}:{d+1}], v[{d}:{d+1}], v[{r}:{r+1}]
            v_pk_add_f32 v[{d+2}:{d+3}], v[{d+2}:{d+3}], v[{r+2}:{r+3}]
            v_pk_add_f32 v[{r+4}:{r+5}], v[{r+4}:{r+5}], v[{r+8}:{r+9}]
            v_pk_add_f32 v[{r+6}:{r+7}], v[{r+6}:{r+7}], v[{r+10}:{r+11}]
            v_pk_add_f32 v[{d}:{d+1}], v[{d}:{d+1}], v[{r+4}:{r+5}]
            v_pk_add_f32 v[{d+2}:{d+3}], v[{d+2}:{d+3}], v[{r+6}:{r+7}]
            v_cvt_pk_bf16_f32 v{96+2*t}, v{d}, v{d+1}
            v_cvt_pk_bf16_f32 v{97+2*t}, v{d+2}, v{d+3}""")
            if t == 1: e.vmop(f"buffer_store_dwordx4 v[96:99], v12, {srd(SPK)}, s{sT3} offen {c.osc}", 'o')
            if t == 3: e.vmop(f"buffer_store_dwordx4 v[100:103], v12, {srd(SPK)}, s{sT3} offen offset:64 {c.osc}", 'o')
            if t == 4: e.vmop(f"buffer_store_dwordx2 v[104:105], v13, {srd(SPK)}, s{sT2} offen {c.osc}", 'o')
        self.stamp(9)
        e("s_endpgm")

    def build(self):
        e = self.e
        self.prologue()
        st = (list(e.vm), list(e.lg))
        self.until = {}
        self.prog_KV()
        e.vm, e.lg = list(st[0]), list(st[1])
        self.until = {}
        self.prog_QH()
        e("\n".join(self.tail))
        e("L_end:\ns_endpgm")
        body = e.finish()
        hdr = open('cdna_kernels/' + NAME + '.s.ref').read().split('; Override launch')[0]
        K = NAME + "_kernel"
        out = hdr + "; Generated by a hand-written Python generator (persistent fused kernel; see comments in the generator).\n"
        out += "; @launch grid=(256,1,1) block=(256,1,1) lds=163840\n"
        out += f'.amdgcn_target "amdgcn-amd-amdhsa--gfx950"\n.text\n.globl {K}\n.p2align 8\n.type {K},@function\n{K}:\n' + body
        out += f""".fill 64, 4, 0xbf800000
.section .rodata,"a"
.p2align 6
.amdhsa_kernel {K}
  .amdhsa_next_free_vgpr 512
  .amdhsa_next_free_sgpr 102
  .amdhsa_accum_offset 256
  .amdhsa_group_segment_fixed_size 0
  .amdhsa_kernarg_size 104
  .amdhsa_user_sgpr_count 2
  .amdhsa_user_sgpr_kernarg_segment_ptr 1
  .amdhsa_system_sgpr_workgroup_id_x 1
.end_amdhsa_kernel
"""
        return out

for k_, v_ in dict(rot=3, par=0, kvb=0, VC=64, cnt=0, cpf=(), aord=1, nochk=0, skip=0, fast=1, n1=12, quota=16, pkl=0, tp0=1, tst=(0, 0, 1), sp1=24, tlb=0, tlb2=0, pks=2, pke=0, f1s=8, bt=0, btsp=20, bgs=30, qleft=0, kpre=180, kord=0, kgb=1, tmask=7, wbl=0, exit_at=-1, only=0, dstamp=0, xsc='', wsc='', psc='nt', pss='sc1', xA=0, S=48, S2=32, urg=50, S3=0, kb3=8, xB=0, mix=0, perm=0, kf1=60, pe=20, pe2=20, dtail=4, qb0=14, qb1=22, se=10, a0=14, ap=4, osc='sc1 nt', touch=1, kvring=3, f1c=24,
                   f4at=40, pa=100, pb=144, p3=65, c3=95, r1=30, r2=70, rspan=24, kbeg=0, kb1=20, kpa=60, mo=119, p1q=125, c1q=150, Sa=64, kb2=6, kleft=99, Sg=64, o2=226, o1=210, vlead=14, adr0=205, burst3=12, sleep2=3, f4k=16, p1=110, c1=140, burst=4).items():
    setattr(Cfg, k_, v_)

def generate(**kw):
    c = Cfg()
    for k, v in kw.items(): setattr(c, k, v)
    g = Gen(c); g.e.VC = c.VC; t = g.build()
    return t, g

if __name__ == "__main__":
    kw = {}
    for a_ in sys.argv[2:]:
        k, v = a_.split('='); kw[k] = tuple(map(int, v.split(','))) if ',' in v else int(v, 0) if v.lstrip('-')[0].isdigit() else v.replace('+', ' ')
    t, g = generate(**kw)
    open(sys.argv[1], 'w').write(t)
    print("instructions:", len(g.e.ins), "nops added:", g.e.nop_added)
```

```python
import sys, math
from emit import Emit
NAME = "gated_mix__linear_kernel_hedgehog__dense_activation_gelu__prompt"

TAG = 0x0
F1 = 0x1000
F2 = 0x2000; F3 = 0x6000; F4 = 0xa000; F5 = 0x12000
STAMP = 0x1000000
GB = 0x280000
PP = 0x40000; PSZ = 15360
FIN = 0x240000; FSZ = 15360
PB = 0x300000
A2 = 0x600000
OOB = 0x7ff00000

K1 = 1024
QH_ST = 46 * K1; KV_ST = 44 * K1
MISC = 154 * K1
L_WPHI = MISC; L_GATE = MISC + 3200; L_BIASKV = MISC + 4480; L_BIASQH = MISC + 3200
L_PACK = 138 * K1
WH0 = 114 * K1; WH5 = 74 * K1
L_PHI = 0; RSP = 352; L_V = 128 * RSP; RSV = 224
L_BL = 72 * K1
NL = 18
L_RED = 0
L_FIN = 64 * K1

sW = 3
SX, SQ, S1, SWS, SPK, SM = 4, 8, 12, 16, 20, 24
pX, pQKV, pPHI, pWO, pBX, pW1, pB1, pW2, pB2, pGATE, pOUT, pDBG, pWS = [32 + 2 * i for i in range(13)]
sTAG = 58
sMT, sHG, sRB, sNB = 60, 61, 62, 63
sE = 64
sT0, sT1, sT2, sT3, sT4, sT5 = 74, 75, 76, 77, 78, 79
sM0 = 80
sBT, sAT, sB9, sA9, sAT2 = 100, 101, 86, 87, 55
sAo, sBo, sA8, sB8 = 44, 45, 56, 57
sKW, sK1 = 89, 90
sF1 = 91
sPKD = 92
sA, sB = 96, 97
sC0, sC1 = 98, 99
sP0 = 28

PKA = 200
TB = 10; TBM = (1 << TB) - 1; sTB = 58
AW = 204
def srd(r): return f"s[{r}:{r+3}]"
def vr(r, n=4): return f"v[{r}:{r+n-1}]" if n > 1 else f"v{r}"
def ar(r, n=4): return f"a[{r}:{r+n-1}]"
def R(loc, n=4): return (vr if loc[0] == 'v' else ar)(loc[1], n)
def fl(x):
    import struct
    return hex(struct.unpack('<I', struct.pack('<f', x))[0])

class Cfg:
    rot = 1; map2 = 1; stamps = 0; LA = 12; spin = 200000; codepf = 1; lag = 2; th1 = 2; th2 = 4; minlead = 4; verbose = 0; sleep = 3

sKA, sKB = 0, 1
def mk_srd(e, r, p, nbytes):
    e(f"s_mov_b32 s{r}, s{p}\ns_and_b32 s{r+1}, s{p+1}, 0xffff\ns_mov_b32 s{r+2}, {nbytes}\ns_mov_b32 s{r+3}, 0x20000")

class Gen:
    def __init__(self, cfg):
        self.c = cfg; self.e = Emit(); self.tail = []; self.uid = 0; self.nstamp = 0
    def record(self, fn):
        real = self.e
        class Rec:
            def __init__(r): r.items = []; r.lg = []; r.vm = []
            def __call__(r, t):
                for l in t.strip("\n").split("\n"):
                    if l.strip(): r.items.append(('x', l.strip()))
            def vmop(r, t, tag=None): r.items.append(('vm', t, tag))
            def lgop(r, t, tag=None): r.items.append(('lg', t, tag))
        rec = Rec(); self.e = rec
        try: fn()
        finally: self.e = real
        return rec.items
    def cnt(self):
        if not self.c.cnt: return [], []
        self.ncnt = getattr(self, 'ncnt', 0) + 1; k = self.ncnt - 1
        post = ["s_load_dwordx2 s[46:47], s[40:41], 88", f"s_sub_u32 s54, {self.c.spin}, s54", "s_lshl_b32 s54, s54, 12", "s_add_u32 s54, s54, 1", "s_waitcnt lgkmcnt(0)",
                "v_mov_b32 v14, s54", "v_mov_b32 v15, 0", "s_mov_b64 exec, 1", f"global_atomic_add v15, v14, s[46:47] offset:{k*4}", "s_mov_b64 exec, -1"]
        return [], post
    def lab(self, p):
        self.uid += 1; return f"L_{p}_{self.uid}"
    def stamp(self, i, grp=1):
        if self.c.dstamp and grp == 1:
            slot = self.dmap.get(i)
            if slot is None: return
            e = self.e
            e(f"s_memrealtime s[{sC0}:{sC1}]\ns_load_dwordx2 s[46:47], s[40:41], 88\ns_waitcnt lgkmcnt(0)\nv_mov_b32 v14, s{sC0}\nv_mov_b32 v15, 0"); e.lg = []
            e("s_cmp_eq_u32 s3, 0\ns_cselect_b64 exec, 1, 0")
            L = self.lab('ds'); e(f"s_cbranch_execz {L}")
            e(f"global_atomic_umax v15, v14, s[46:47] offset:{slot*4}")
            if i == 0: e(f"v_mov_b32 v14, s54\nglobal_atomic_umax v15, v14, s[46:47] offset:4\nv_not_b32 v14, v14\nglobal_atomic_umax v15, v14, s[46:47] offset:0")
            e(f"{L}:\ns_mov_b64 exec, -1")
            return
        if not self.c.stamps or (i and self.c.stamps != grp): return
        if self.c.only and i not in (0, self.c.only): return
        e = self.e
        e(f"s_memrealtime s[{sC0}:{sC1}]\ns_memtime s[46:47]\ns_waitcnt lgkmcnt(0)"); e.lg = []
        e(f"v_mov_b32 v14, s{sC0}\nv_mov_b32 v15, s46")
        e(f"s_lshl_b32 s{sC0}, s2, 2\ns_add_u32 s{sC0}, s{sC0}, s{sW}\ns_lshl_b32 s{sC0}, s{sC0}, 7\ns_add_u32 s{sC0}, s{sC0}, {STAMP}")
        e.vmop(f"buffer_store_dwordx2 v[14:15], v245, {srd(SWS)}, s{sC0} offen offset:{i*8}", 'stamp')
        if self.c.exit_at == i and grp == 1: e("s_endpgm")
        if i == 0:
            e(f"v_mov_b32 v14, s54\nv_mov_b32 v15, s40")
            e.vmop(f"buffer_store_dwordx2 v[14:15], v245, {srd(SWS)}, s{sC0} offen offset:{15*8}", 'stamp')

    def pstamp(self, i):
        if self.c.stamps == 3: self.e(f"s_memtime s[100:101]\ns_waitcnt lgkmcnt(0)\nv_mov_b32 v{(248,249,250,251,235)[i]}, s100")
    def pstamp_flush(self):
        if self.c.stamps != 3: return
        e = self.e
        e(f"s_lshl_b32 s{sC0}, s2, 2\ns_add_u32 s{sC0}, s{sC0}, s{sW}\ns_lshl_b32 s{sC0}, s{sC0}, 7\ns_add_u32 s{sC0}, s{sC0}, {STAMP}")
        for i in range(5): e.vmop(f"buffer_store_dword v{(248,249,250,251,235)[i]}, v245, {srd(SWS)}, s{sC0} offen offset:{(2+i)*8+4} sc1", 'stamp')
    def dump(self, name, regs):
        if getattr(self.c, 'dbg', None) != name: return
        e = self.e
        e(f"s_lshl_b32 s{sBT}, s2, 2\ns_add_u32 s{sBT}, s{sBT}, s{sW}\ns_lshl_b32 s{sBT}, s{sBT}, 14\ns_add_u32 s{sBT}, s{sBT}, 0x2000000\nv_lshlrev_b32 v7, 2, v0")
        for i, r in enumerate(regs):
            e.vmop(f"buffer_store_dword v{r}, v7, {srd(SWS)}, s{sBT} offen offset:{(i%16)*256}", 'dbg')
            if i % 16 == 15: e(f"s_add_u32 s{sBT}, s{sBT}, 4096")
        e.wait(vm='dbg'); self.Bcur = None

    def poll_issue(self, vaddr, vdst, n, tag, soff="0"):
        suf = {2: 'dwordx2', 4: 'dwordx4'}[n]
        return f"buffer_load_{suf} {vr(vdst, n)}, v{vaddr}, {srd(SWS)}, {soff} offen sc1"
    def poll_check(self, loads):
        Ls, Lb = self.lab('slow'), self.lab('back')
        cmps = []; ors = []; k = 0
        prs = ['vcc', 's[28:29]', 's[30:31]', 's[46:47]']
        for (va, vd, n, so) in loads:
            for h in range(n // 2):
                cmps.append(f"v_cmp_ne_u64 {prs[k]}, s[{sTAG}:{sTAG+1}], v[{vd+2*h}:{vd+2*h+1}]")
                if k: ors.append(f"s_or_b64 vcc, vcc, {prs[k]}")
                k += 1
        cmps = cmps[::-1] if False else cmps
        fast = cmps + ors + [f"s_cbranch_vccnz {Ls}\n{Lb}:" if not (self.c.nochk & 1) else f"{Lb}:"]
        t = [f"{Ls}:", f"s_mov_b32 s54, {self.c.spin}", f"{Ls}_l:"]
        if self.c.sleep: t.append(f"s_sleep {self.c.sleep}")
        for (va, vd, n, so) in loads: t.append(self.poll_issue(va, vd, n, None, so))
        t += ["s_waitcnt vmcnt(0)"] + cmps + ors
        t += ["s_sub_u32 s54, s54, 1", f"s_cbranch_vccz {Ls}_x", "s_cmp_lg_u32 s54, 0", f"s_cbranch_scc1 {Ls}_l", f"{Ls}_x:"] + self.cnt()[1] + ["s_nop 4", f"s_branch {Lb}"]
        self.tail += t
        return fast
    def tag_check(self, reload, regs, acc):
        Ls, Lb = self.lab('slow'), self.lab('back')
        regs = list(regs); L = [f"v_xor_b32 v{acc}, s{sTB}, v{regs[0]}"]
        for r in regs[1:]: L.append(f"v_bitop3_b32 v{acc}, v{r}, s{sTB}, v{acc} bitop3:0xbe")
        L += [f"v_and_b32 v{acc}, {TBM}, v{acc}", f"v_cmp_ne_u32 vcc, 0, v{acc}"]
        t = [f"{Ls}:", f"s_mov_b32 s54, {self.c.spin}", f"{Ls}_l:"]
        if self.c.sleep: t.append(f"s_sleep {self.c.sleep2}")
        t += list(reload) + ["s_waitcnt vmcnt(0)"] + L
        t += ["s_sub_u32 s54, s54, 1", f"s_cbranch_vccz {Ls}_x", "s_cmp_lg_u32 s54, 0", f"s_cbranch_scc1 {Ls}_l", f"{Ls}_x:"] + self.cnt()[1] + ["s_nop 4", f"s_branch {Lb}"]
        self.tail += t
        return L + [f"s_cbranch_vccnz {Ls}\n{Lb}:" if not (self.c.nochk & 2) else f"{Lb}:"]
    def tag_put(self, r, src=None): return f"v_bfi_b32 v{r}, s42, v246, v{r if src is None else src}"
    def tag_strip(self, r): return f"v_and_b32 v{r}, {hex(0xffffffff ^ TBM)}, v{r}"
    def valid_check(self, reload, regs, acc):
        Ls, Lb = self.lab('slow'), self.lab('back')
        regs = list(regs); L = [f"v_max3_u32 v{acc}, v{regs[0]}, v{regs[1]}, v{regs[2 if len(regs) > 2 else 1]}"]
        r = regs[3:]
        for i in range(0, len(r), 2): L.append(f"v_max3_u32 v{acc}, v{acc}, v{r[i]}, v{r[min(i+1, len(r)-1)]}")
        L.append(f"v_cmp_eq_u32 vcc, -1, v{acc}")
        t = [f"{Ls}:", f"s_mov_b32 s54, {self.c.spin}", f"{Ls}_l:"]
        if self.c.sleep: t.append(f"s_sleep {self.c.sleep2}")
        t += list(reload) + ["s_waitcnt vmcnt(0)"] + L
        t += ["s_sub_u32 s54, s54, 1", f"s_cbranch_vccz {Ls}_x", "s_cmp_lg_u32 s54, 0", f"s_cbranch_scc1 {Ls}_l", f"{Ls}_x:"] + self.cnt()[1] + ["s_nop 4", f"s_branch {Lb}"]
        self.tail += t
        return L + [f"s_cbranch_vccnz {Ls}\n{Lb}:" if not (self.c.nochk & 4) else f"{Lb}:"]
    def flag_store(self, vaddr, vtag, soff="0"):
        return f"buffer_store_dwordx2 {vr(vtag, 2)}, v{vaddr}, {srd(SWS)}, {soff} offen sc1"

    def stream(self, mf, reads, fill, syncs=None, LA=None, name='', bg=None):
        e = self.e; LA = LA or self.c.LA
        reads = sorted(reads, key=lambda r: r[1]); rp = 0; synced = -1 if syncs else 99
        fq = sorted(fill, key=lambda f: f['at'])
        self.sid = getattr(self, 'sid', 0) + 1; sid = self.sid
        start = len(e.ins)
        def add_fill(items):
            lo = max([f['at'] for f in fq if f.get('chain')], default=-99)
            for f in items:
                if f.get('chain'): f['at'] = lo = max(f['at'], lo)
            fq.extend(items); fq.sort(key=lambda f: f['at'])
        def rd():
            nonlocal rp
            e.lgop(reads[rp][0], ('rd', sid, rp)); rp += 1
        if syncs: add_fill(syncs[0](0)); synced = 0
        while rp < len(reads) and reads[rp][1] < 8 and reads[rp][2] <= synced: rd()
        last_read = -99
        dl_of = {('rd', sid, i): r[1] for i, r in enumerate(reads)}
        def due(m): return [t for t in e.lg if t in dl_of and dl_of[t] <= m]
        ismem = lambda it: it[0] in ('vm', 'lg')
        for m in range(len(mf)):
            d = due(m)
            if d: e.wait(lg=d)
            e(mf[m])
            can = lambda: rp < len(reads) and reads[rp][2] <= synced and reads[rp][3] <= m and len(e.lg) < 15
            lead = lambda: reads[rp][1] - m
            if syncs and rp < len(reads) and reads[rp][2] > synced and m - last_read >= self.c.lag and lead() <= LA:
                synced = reads[rp][2]
                assert not any(it[0] == 'vm' and it[2] == ('S', synced) for f in fq for it in f['ins'])
                add_fill(syncs[synced](m + 1))
                if can(): rd(); last_read = m
                continue
            w = 1 if due(m + 1) else 0
            n = w; mem = 0
            if fq and fq[0]['at'] <= m:
                f = fq[0]
                if f.get('atomic'):
                    self.emit_items(f['ins']); n += len(f['ins']); mem += sum(map(ismem, f['ins'])); fq.pop(0)
                elif ismem(f['ins'][0]):
                    self.emit_items([f['ins'].pop(0)]); n += 1; mem += 1
                    if not f['ins']: fq.pop(0)
            if bg and mem == 0:
                k0 = len(e.ins)
                if self.bg_try(bg(m)): n += len(e.ins) - k0; mem += 1
            if can() and lead() <= LA and (mem == 0 or (lead() <= LA - self.c.th1 and not w)):
                rd(); n += 1; mem += 1; last_read = m
            if can() and mem == 1 and not w and lead() <= LA - self.c.th2:
                rd(); n += 1; mem += 1
            while can() and lead() <= self.c.minlead: rd(); n += 1; mem += 1; last_read = m
            while (n < 2 or (fq and fq[0]['at'] <= m - 2 and n < 3)) and fq and fq[0]['at'] <= m + 2 and not fq[0].get('atomic') and not ismem(fq[0]['ins'][0]):
                f = fq[0]; self.emit_items([f['ins'].pop(0)]); n += 1
                if not f['ins']: fq.pop(0)
            assert rp >= len(reads) or reads[rp][1] > m + 1, (m, reads[rp])
        for f in fq: self.emit_items(f['ins'])
        if self.c.verbose:
            tot = 0; g = None
            for i in e.ins[start:]:
                if i.label: continue
                if i.kind == 'mfma':
                    if g is not None: tot += max(16, g)
                    g = 8; prevmem = False
                elif g is not None:
                    mm = i.kind in ('dsr', 'dsw', 'vload', 'vstore', 'dma')
                    g += 8 if (mm and prevmem) else 4; prevmem = mm
            print(f"stream {name}: {len(mf)} mfma, est clks {tot} (ideal {16*len(mf)})")

    def prologue(self):
        e = self.e; c = self.c
        if c.stamps or c.dstamp: e("s_memrealtime s[54:55]\ns_memtime s[98:99]")
        e(f"""s_cmp_ge_u32 s2, 256
        s_cbranch_scc1 L_end
        s_load_dwordx16 s[32:47], s[0:1], 0
        s_load_dwordx4 s[48:51], s[0:1], 64
        s_load_dwordx2 s[52:53], s[0:1], 80
        s_load_dwordx2 s[56:57], s[0:1], 96""")
        if c.codepf:
            e(f"""s_getpc_b64 s[{sA}:{sB}]
            L_pf:
            s_lshr_b32 s{sT0}, s2, 3
            s_lshl_b32 s{sT0}, s{sT0}, 11
            v_lshrrev_b32 v1, 4, v0
            v_lshlrev_b32 v1, 7, v1
            v_add_u32 v1, s{sT0}, v1
            v_cmp_gt_u32 vcc, L_end-L_pf, v1
            v_cndmask_b32 v1, 0, v1, vcc""")
            e.vmop(f"global_load_dword v255, v1, s[{sA}:{sB}]", 'pf')
        e(f"""v_lshrrev_b32 v1, 6, v0
        v_and_b32 v0, 63, v0
        s_and_b32 s{sT0}, s2, 7
        v_readfirstlane_b32 s{sW}, v1
        s_lshr_b32 s{sT1}, s2, 3
        s_lshr_b32 s{sT2}, s{sT0}, 1
        s_and_b32 s{sT3}, s{sT1}, 3
        s_lshl_b32 s{sMT}, s{sT2}, 2
        s_add_u32 s{sMT}, s{sMT}, s{sT3}
        s_lshr_b32 s{sT4}, s{sT1}, 2
        s_and_b32 s{sHG}, s{sT0}, 1
        s_lshl_b32 s{sHG}, s{sHG}, 2
        s_and_b32 s{sT5}, s{sT4}, 3
        s_add_u32 s{sHG}, s{sHG}, s{sT5}""")
        if c.rot == 2:
            e(f"""s_mul_i32 s{sE}, s{sT2}, 5
            s_lshr_b32 s{sE}, s{sE}, 1
            s_and_b32 s{sT5}, s{sT0}, 1
            s_mul_i32 s{sT5}, s{sT5}, 5
            s_add_u32 s{sE}, s{sE}, s{sT5}
            s_cmp_ge_u32 s{sE}, 10
            s_cselect_b32 s{sT5}, 10, 0
            s_sub_u32 s{sE}, s{sE}, s{sT5}
            s_lshl_b32 s{sE}, s{sE}, 7""")
        elif c.rot == 3:
            e(f"s_xor_b32 s{sE}, s{sT3}, s{sT4}\ns_and_b32 s{sE}, s{sE}, 1\ns_lshl_b32 s{sE}, s{sE}, 7")
        else: e(f"s_mov_b32 s{sE}, 0")
        e(f"""v_and_b32 v1, 15, v0
        v_lshrrev_b32 v2, 4, v0
        v_bfe_u32 v3, v0, 2, 2
        v_and_b32 v4, 3, v0
        v_lshrrev_b32 v5, 3, v0
        v_lshlrev_b32 v6, 4, v0
        s_lshl_b32 s{sT2}, s{sMT}, 2
        s_add_u32 s{sT2}, s{sT2}, s{sW}
        s_mul_i32 s{sT2}, s{sT2}, {32*1280}
        v_xor_b32 v7, v2, v0
        v_and_b32 v7, 7, v7
        v_lshlrev_b32 v7, 4, v7
        v_mul_u32_u24 v8, 1280, v5
        v_add_u32 v8, s{sT2}, v8
        v_add_u32 v208, v8, v7
        v_xor_b32 v7, 64, v7
        v_add_u32 v209, v8, v7
        v_add_u32 v209, {10240-1024}, v209
        v_add_u32 v210, {2*(10240-1024)}, v208
        v_add_u32 v211, {2*(10240-1024)}, v209
        s_lshl_b32 s{sM0}, s{sW}, 12
""")
        if c.rot == 3: e(f"s_xor_b32 s{sE+1}, s{sE}, 128")
        else: e(f"s_add_u32 s{sE+1}, s{sE}, 128\ns_cmp_eq_u32 s{sE+1}, 1280\ns_cselect_b32 s{sE+1}, 0, s{sE+1}")
        for r, n in ((SX, 2048 * 1280), (SQ, 640 * 3840), (S1, 640 * 3456), (SM, 3456)): e(f"s_mov_b32 s{r+2}, {n}\ns_mov_b32 s{r+3}, 0x20000")
        e(f"s_bitcmp1_b32 s2, 7\ns_cbranch_scc1 L_QH")

    def kernarg_wait(self):
        e = self.e
        e("s_waitcnt lgkmcnt(0)"); self.pstamp(0)
        e(f"s_load_dwordx2 s[{sTAG}:{sTAG+1}], s[{pWS}:{pWS+1}], {TAG}")
        if self.c.stamps: e('s_mov_b32 s40, s98')
        if self.c.dstamp or self.c.cnt: e('s_mov_b64 s[40:41], s[0:1]')
        for r, p in ((SX, pX), (SM, pB1), (SQ, pQKV), (S1, pW1)): e(f"s_mov_b32 s{r}, s{p}\ns_and_b32 s{r+1}, s{p+1}, 0xffff")

    def pack_setup(self):
        e = self.e
        e(f"""s_lshl_b32 s{sT0}, s2, 2
        s_add_u32 s{sT0}, s{sT0}, s{sW}
        s_mul_i32 s{sT1}, s{sT0}, 6554
        s_lshr_b32 s{sT1}, s{sT1}, 16
        s_mul_i32 s{sT2}, s{sT1}, 10
        s_sub_u32 s{sT2}, s{sT0}, s{sT2}
        s_sub_u32 s{sT3}, s{sT1}, 54
        s_and_b32 s{sT3}, s{sT3}, 63
        s_mul_i32 s{sT4}, s{sT3}, 52
        s_lshr_b32 s{sT4}, s{sT4}, 8
        s_mul_i32 s{sT5}, s{sT4}, 5
        s_sub_u32 s{sT5}, s{sT3}, s{sT5}
        s_mul_i32 s{sBT}, s{sT4}, 160
        s_lshr_b32 s{sAT}, s{sT5}, 1
        s_mul_i32 s{sAT}, s{sAT}, 80
        s_and_b32 s{sT3}, s{sT5}, 1
        s_lshl_b32 s{sT3}, s{sT3}, 3
        s_add_u32 s{sAT}, s{sAT}, s{sT3}
        s_cmp_eq_u32 s{sT5}, 4
        s_cselect_b32 s{sAT}, 16, s{sAT}
        s_cselect_b32 s{sT3}, 80, 4
        s_add_u32 s{sBT}, s{sBT}, s{sAT}
        s_lshl_b32 s{sAT}, s{sT1}, 5
        s_cmp_lt_u32 s{sT1}, 54
        s_cselect_b32 s{sBT}, s{sAT}, s{sBT}
        s_cselect_b32 s{sT3}, 16, s{sT3}""")
        self.csel(sT4, 4 * 1280 - 1024, 20 * 1280 - 1024)
        self.csel(SPK + 2, 1728 * 1280, 640 * 1280)
        e(f"""s_mov_b32 s{SPK+3}, 0x20000
        s_cmp_lt_u32 s{sT0}, 740
        s_cselect_b32 s{SPK+2}, s{SPK+2}, 0
        s_mul_i32 s{sBT}, s{sBT}, 1280
        s_lshl_b32 s{sAT}, s{sT2}, 7
        s_add_u32 s32, s{sBT}, s{sAT}
        s_add_u32 s33, s32, s{sT4}
        s_add_u32 s34, s33, s{sT4}
        s_add_u32 s35, s34, s{sT4}
        v_lshrrev_b32 v9, 5, v0
        v_mul_lo_u32 v9, v9, s{sT3}
        v_and_b32 v10, 3, v5
        v_add_u32 v9, v9, v10
        v_mul_u32_u24 v9, 1280, v9
        v_and_b32 v10, 7, v0
        v_lshl_add_u32 v252, v10, 4, v9
        v_lshlrev_b32 v9, 10, v2
        v_lshl_add_u32 v9, v3, 7, v9
        v_add_u32 v9, s{sM0}, v9
        v_add_u32 v9, {L_PACK}, v9""")
        for g in range(2):
            e(f"""s_lshl_b32 s{sT3}, s{sT2}, 1
            s_add_u32 s{sT3}, s{sT3}, {g}
            s_mul_i32 s{sT4}, s{sT3}, 52
            s_lshr_b32 s{sT4}, s{sT4}, 8
            s_mul_i32 s{sT5}, s{sT4}, 5
            s_sub_u32 s{sT5}, s{sT3}, s{sT5}
            s_cmp_eq_u32 s{sT5}, 2
            s_cselect_b32 s{sT3}, 3, 4
            s_cselect_b32 s{sAT}, 32, 8
            v_lshlrev_b32 v10, s{sT3}, v4
            v_add_u32 v{PKA+2*g}, v9, v10
            v_add_u32 v{PKA+1+2*g}, s{sAT}, v{PKA+2*g}
            s_mul_i32 s{sT4}, s{sT4}, 740
            s_mul_i32 s{sAT}, s{sT1}, 5
            s_add_u32 s{sT4}, s{sT4}, s{sAT}""")
            for a_ in range(2):
                d = sPKD + 2 * g + a_
                e(f"""s_lshl_b32 s{sT3}, s{sT5}, 1
                s_add_u32 s{sT3}, s{sT3}, {a_}
                s_add_u32 s{d}, s{sT3}, 364
                s_cmp_eq_u32 s{sT3}, 5
                s_cselect_b32 s{d}, 374, s{d}
                s_cmp_lt_u32 s{sT3}, 5
                s_cselect_b32 s{d}, s{sT3}, s{d}
                s_add_u32 s{d}, s{d}, s{sT4}
                s_lshl_b32 s{d}, s{d}, 10
                s_add_u32 s{d}, s{d}, {PB}
                s_cmp_lt_u32 s{sT0}, 740
                s_cselect_b32 s{d}, s{d}, {OOB}""")
        e(f"""s_cmp_lt_u32 s{sT1}, 54
        s_cselect_b32 s{SPK}, s{pW2}, s{pWO}
        s_cselect_b32 s{SPK+1}, s{pW2+1}, s{pWO+1}
        s_and_b32 s{SPK+1}, s{SPK+1}, 0xffff""")

    def common_setup(self):
        e = self.e; c = self.c
        e(f"s_and_b32 s{sT0}, s2, 7\ns_lshr_b32 s{sT1}, s2, 3\ns_lshr_b32 s{sT2}, s{sT0}, 1\ns_and_b32 s{sT3}, s{sT1}, 3\ns_lshr_b32 s{sT4}, s{sT1}, 2")
        if c.mix: e(f"s_lshr_b32 s{sT5}, s{sT1}, 2\ns_and_b32 s{sT5}, s{sT5}, 4\ns_xor_b32 s{sT5}, s{sT5}, s{sT1}" if c.map2 else
                    f"s_lshr_b32 s{sT5}, s{sT1}, 4\ns_xor_b32 s{sT5}, s{sT5}, s{sT1}")
        if c.map2:
            if c.mix: e(f"s_and_b32 s{sRB}, s{sT5}, 7\ns_bfe_u32 s{sT5}, s{sT1}, 0x20002")
            else: e(f"s_and_b32 s{sRB}, s{sT1}, 7\ns_lshr_b32 s{sT5}, s{sT1}, 3")
            e(f"""s_lshl_b32 s{sT2}, s{sT2}, 3
            s_add_u32 s{sRB}, s{sRB}, s{sT2}
            s_and_b32 s{sNB}, s{sT0}, 1
            s_lshl_b32 s{sNB}, s{sNB}, 2
            s_add_u32 s{sNB}, s{sNB}, s{sT5}""")
        else:
            if c.mix: e(f"s_bfe_u32 s{sNB}, s{sT1}, 0x30001\ns_and_b32 s{sT3}, s{sT5}, 1\ns_lshr_b32 s{sT5}, s{sT1}, 4\ns_bfe_u32 s{sT4}, s{sT1}, 0x10001\ns_xor_b32 s{sT5}, s{sT5}, s{sT4}\ns_and_b32 s{sT3}, s{sT1}, 1\ns_lshl_b32 s{sT5}, s{sT5}, 1\ns_add_u32 s{sT3}, s{sT3}, s{sT5}")
            else: e(f"s_mov_b32 s{sNB}, s{sT4}")
            e(f"s_lshl_b32 s{sRB}, s{sT0}, 2\ns_add_u32 s{sRB}, s{sRB}, s{sT3}")
        mk_srd(e, SWS, pWS, 0x10000000); mk_srd(e, SM, pPHI, 32 * 800)
        e(f"""s_lshl_b32 s{sT3}, s{sHG}, 2
        s_add_u32 s{sT3}, s{sT3}, s{sW}
        s_mul_i32 s36, s{sT3}, 800
        s_mul_i32 s37, s{sW}, 800
        s_add_u32 s37, s37, {L_WPHI}""")
        for i in range(2, 10):
            if c.rot == 3: e(f"s_add_u32 s{sE+i}, s{sE+i-2}, 256")
            else: e(f"s_add_u32 s{sE+i}, s{sE+i-1}, 128\ns_cmp_eq_u32 s{sE+i}, 1280\ns_cselect_b32 s{sE+i}, 0, s{sE+i}")
        e(f"""s_mul_i32 s{sB}, s{sNB}, 74
        s_add_u32 s{sB}, s{sB}, s{sW}
        s_mul_i32 s{sB}, s{sB}, 5120
        s_add_u32 s{sB}, s{sB}, {PB}
        s_mul_i32 s{sA}, s{sRB}, 74
        s_add_u32 s{sA}, s{sA}, s{sW}
        s_lshl_b32 s{sA}, s{sA}, 12
        s_add_u32 s{sA}, s{sA}, {A2}
        s_xor_b32 s{sT0}, s{sRB}, s{sNB}
        s_and_b32 s{sT0}, s{sT0}, {min(c.par, 1)}
        s_mul_i32 s{sT1}, s{sT0}, {4*5120}
        s_add_u32 s{sB8}, s{sB}, {32*5120}
        s_add_u32 s{sB8}, s{sB8}, s{sT1}
        s_add_u32 s{sB9}, s{sB}, {36*5120}
        s_sub_u32 s{sB9}, s{sB9}, s{sT1}
        s_mul_i32 s{sT1}, s{sT1}, {max(c.par, 1)}
        s_sub_u32 s{sBo}, s{sB}, s{sT1}
        s_add_u32 s{sB}, s{sB}, s{sT1}
        s_lshl_b32 s{sT1}, s{sT0}, 14
        s_add_u32 s{sA8}, s{sA}, {32*4096}
        s_add_u32 s{sA8}, s{sA8}, s{sT1}
        s_add_u32 s{sA9}, s{sA}, {36*4096}
        s_sub_u32 s{sA9}, s{sA9}, s{sT1}
        s_mul_i32 s{sT1}, s{sT1}, {max(c.par, 1)}
        s_sub_u32 s{sAo}, s{sA}, s{sT1}
        s_add_u32 s{sA}, s{sA}, s{sT1}
        s_lshr_b32 s{sT1}, s{sW}, 1
        s_and_b32 s{sT3}, s{sT1}, s{sT0}
        s_cselect_b32 s{sB8}, {OOB}, s{sB8}
        s_cselect_b32 s{sA8}, {OOB}, s{sA8}
        s_andn2_b32 s{sT3}, s{sT1}, s{sT0}
        s_cselect_b32 s{sB9}, {OOB}, s{sB9}
        s_cselect_b32 s{sA9}, {OOB}, s{sA9}
        s_mul_i32 s88, s{sW}, {NL*1024}
        v_add_u32 v240, 4096, v6""")
        for j in range(4):
            e(f"s_add_u32 s{sT3}, s{sW}, {j}\ns_and_b32 s{sT3}, s{sT3}, 3\ns_lshl_b32 s{sT3}, s{sT3}, 10\nv_add_u32 v{236+j}, s{sT3}, v6")
        e(f"""s_lshl_b32 s{sF1}, s2, 3
        s_add_u32 s{sF1}, s{sF1}, {F1}
        s_cmp_eq_u32 s{sW}, 0
        s_cselect_b32 s{sF1}, s{sF1}, {OOB}
        v_mov_b32 v245, {OOB}
        v_cmp_eq_u32 vcc, 0, v0
        v_cndmask_b32 v245, v245, 0, vcc""")

    def touch(self):
        e = self.e; c = self.c
        e(f"""s_cmp_eq_u32 s{sW}, 0
        s_cselect_b64 s[28:29], s[{SX}:{SX+1}], s[{S1}:{S1+1}]
        s_cselect_b32 s30, s{SX+2}, s{S1+2}
        s_cselect_b32 s{sT0}, 12, 0
        s_add_u32 s{sT0}, s{sT0}, 68
        s_cmp_eq_u32 s{sW}, 1
        s_cselect_b64 s[28:29], s[{SQ}:{SQ+1}], s[28:29]
        s_cselect_b32 s30, s{SQ+2}, s30
        s_cselect_b32 s{sT0}, 75, s{sT0}
        s_lshl_b32 s{sT1}, 1, s{sW}
        s_and_b32 s{sT1}, s{sT1}, {c.tmask}
        s_cselect_b32 s30, s30, 0
        s_mov_b32 s31, 0x20000
        s_mul_i32 s{sT1}, s{sT0}, s2
        s_lshl_b32 s{sT1}, s{sT1}, 7
        v_lshlrev_b32 v10, 7, v0
        v_add_u32 v11, 64, v0
        v_cmp_gt_u32 vcc, s{sT0}, v11
        v_lshlrev_b32 v11, 7, v11
        v_mov_b32 v14, {OOB}
        v_cndmask_b32 v11, v14, v11, vcc""")
        e.vmop(f"buffer_load_dword v255, v10, s[28:31], s{sT1} offen", 'pf')
        e.vmop(f"buffer_load_dword v255, v11, s[28:31], s{sT1} offen", 'pf')

    def touch3_setup(self):
        e = self.e
        e(f"""s_cmp_eq_u32 s{sW}, 0
        s_cselect_b64 s[28:29], s[{SX}:{SX+1}], s[{S1}:{S1+1}]
        s_cselect_b32 s30, s{SX+2}, s{S1+2}
        s_cselect_b32 s{sT0}, 24, 21
        s_mov_b32 s44, {64*3456}
        s_cselect_b32 s44, 128, s44
        s_cselect_b64 vcc, -1, 0
        s_cmp_eq_u32 s{sW}, 1
        s_cselect_b64 s[28:29], s[{SQ}:{SQ+1}], s[28:29]
        s_cselect_b32 s30, s{SQ+2}, s30
        s_cselect_b32 s{sT0}, 23, s{sT0}
        s_cselect_b32 s44, {64*3840}, s44
        s_cmp_eq_u32 s{sW}, 3
        s_cselect_b32 s30, 0, s30
        s_mov_b32 s31, 0x20000
        s_mul_i32 s{sT1}, s{sT0}, s2
        v_add_u32 v10, s{sT1}, v0
        v_mul_u32_u24 v11, 21846, v10
        v_lshrrev_b32 v11, 16, v11
        v_mul_u32_u24 v11, {1280-384}, v11
        v_lshlrev_b32 v10, 7, v10
        v_add_u32 v11, v11, v10
        v_cndmask_b32 v10, v10, v11, vcc
        v_mov_b32 v14, {OOB}
        v_cmp_gt_u32 vcc, s{sT0}, v0
        v_cndmask_b32 v251, v14, v10, vcc""")
    def touch3(self, part):
        return [('x', f"s_mul_i32 s45, s44, {1 + 3 * part}"), ('vm', "buffer_load_dword v255, v251, s[28:31], s45 offen", 'pf')]

    def tlb_touch(self):
        e = self.e; c = self.c
        if not c.tlb: return
        if c.tlb == 1:
            e(f"v_lshlrev_b32 v10, 18, v0\nv_add_u32 v10, 0x1f800, v10")
            e.vmop(f"buffer_load_dword v255, v10, {srd(SWS)}, 0 offen sc1", 'pf')
        else:
            e(f"""s_mul_i32 s{sT0}, s{sNB}, {74*5120}
            s_add_u32 s{sT0}, s{sT0}, {PB}
            s_mul_i32 s{sT1}, s{sRB}, {74*4096}
            s_add_u32 s{sT1}, s{sT1}, {A2 - 8*65536}
            s_mul_i32 s{sT3}, s{sMT}, {2*74*4096}
            s_add_u32 s{sT3}, s{sT3}, {A2 - 16*65536}
            v_lshlrev_b32 v10, 16, v0
            v_mov_b32 v11, s{sT0}
            v_mov_b32 v14, s{sT1}
            v_cmp_le_u32 vcc, 8, v0
            v_cndmask_b32 v11, v11, v14, vcc
            v_mov_b32 v14, s{sT3}
            v_cmp_le_u32 vcc, 16, v0
            v_cndmask_b32 v11, v11, v14, vcc
            v_add_u32 v11, v11, v10
            v_subrev_u32 v14, 32, v0
            v_mul_u32_u24 v14, 0x18000, v14
            v_cmp_le_u32 vcc, 32, v0
            v_cndmask_b32 v10, v11, v14, vcc""")
            e.vmop(f"buffer_load_dword v255, v10, {srd(SWS)}, 0 offen sc1", 'pf')
        mk_srd(e, 28, pOUT, 2048 * 1280)
        e("v_lshlrev_b32 v10, 16, v0")
        e.vmop("buffer_load_dword v255, v10, s[28:31], 0 offen sc1", 'pf')
        if c.tlb2:
            for p, n in ((pB2, 1280),):
                mk_srd(e, 28, p, n); e.vmop("buffer_load_dword v255, v6, s[28:31], 0 offen", 'pf')

    def tag_wait(self):
        e = self.e
        e(f"""s_waitcnt lgkmcnt(0)
        s_add_u32 s{sTAG}, s{sTAG}, 1
        v_mov_b32 v247, s{sTAG+1}
        v_mov_b32 v246, s{sTAG}
        s_movk_i32 s42, {TBM}""")
        if self.c.xA == 2: e(f's_mov_b32 s41, {OOB}')
        e.lg = []
    def pack_loads(self):
        return [([('x', f"s_add_u32 m0, s{sM0}, {L_PACK}")] if i == 0 else []) +
                [('vm', f"buffer_load_dwordx4 v252, {srd(SPK)}, s{32+i} offen offset:{i*1024} {self.c.psc} lds", 'packld')] for i in range(4)]
    def pack_fill(self, m, nm):
        f = []
        for i in range(8):
            t, h = i >> 1, i & 1
            f.append(dict(at=m + 2 + 2 * i, ins=[('lg', f"ds_read_b64_tr_b16 a[{160+4*t+2*h}:{161+4*t+2*h}], v{PKA+t} offset:{(t>>1)*64+512*h}", 'pk')]))
        return f
    def wb_item(self):
        return [[('wvm', 'pkst'), ('vm', "buffer_wbl2 sc1", 'pkst')]] if self.c.wbl else []
    def pack_stores(self):
        return [([('wlg', 'pk')] if i == 0 else []) + [('vm', f"buffer_store_dwordx4 {ar(160+4*i)}, v6, {srd(SWS)}, s{sPKD+i} offen {self.c.pss}", 'pkst')] for i in range(4)]

    def btouch(self):
        pre = [l.strip() for l in f"""s_and_b32 s{sT0}, s{sRB}, 7
        s_lshl_b32 s{sT0}, s{sT0}, 2
        s_add_u32 s{sT0}, s{sT0}, s{sW}
        s_mul_i32 s{sT0}, s{sT0}, {93*128}
        s_mul_i32 s{sT1}, s{sNB}, {74*5120}
        s_add_u32 s{sT0}, s{sT0}, s{sT1}
        s_add_u32 s{sT0}, s{sT0}, {PB}
        v_lshlrev_b32 v248, 7, v0
        v_min_u32 v249, 28, v0
        v_lshlrev_b32 v249, 7, v249""".split("\n")]
        n = self.c.bt
        out = [[('x', l) for l in pre]]
        if n == 1:
            out[0] += [('vm', f"buffer_load_dword v255, v248, {srd(SWS)}, s{sT0} offen sc1", 'pf')]
            out.append([('x', f"s_add_u32 s{sT0}, s{sT0}, 8192"), ('vm', f"buffer_load_dword v255, v249, {srd(SWS)}, s{sT0} offen sc1", 'pf')])
        else:
            out[0] += [('x', "v_min_u32 v249, 23, v0"), ('x', "v_lshlrev_b32 v249, 7, v249")]
            for i in range(4): out.append([('vm', f"buffer_load_dword v255, v249, {srd(SWS)}, s{sT0} offen offset:0 sc1", 'pf'), ('x', f"s_add_u32 s{sT0}, s{sT0}, 3072")])
        return out
    def code_touch(self, endlab):
        Lp = self.lab('pc')
        return [('x', f"s_getpc_b64 s[30:31]\n{Lp}:"), ('x', f"s_bfe_u32 s{sT0}, s2, 0x40003"), ('x', f"s_lshl_b32 s{sT0}, s{sT0}, 2"), ('x', f"s_add_u32 s{sT0}, s{sT0}, s{sW}"),
                ('x', f"s_lshl_b32 s{sT0}, s{sT0}, 9"), ('x', "v_and_b32 v7, 3, v0"), ('x', f"v_lshl_add_u32 v7, v7, 7, s{sT0}"),
                ('x', f"v_cmp_gt_u32 vcc, {endlab}-{Lp}, v7"), ('x', "v_cndmask_b32 v7, 0, v7, vcc"), ('vm', "global_load_dword v255, v7, s[30:31]", 'pf')]
    def f1_issue(self):
        return [[('x', f"s_mov_b32 s{sT0}, {F1}"), ('x', "v_add_u32 v235, 1024, v6"), ('vm', self.poll_issue(6, 248, 4, None, f"s{sT0}"), 'f1p')],
                [('vm', self.poll_issue(235, 252, 4, None, f"s{sT0}"), 'f1p')]]
    def f1_check(self):
        chk = self.poll_check([(6, 248, 4, f"s{sT0}"), (235, 252, 4, f"s{sT0}")])
        return [('wvm', 'f1p')] + [('x', t) for t in chk] + [('x', f"s_or_b32 s{sT1}, s2, s{sW}"),
                ('x', f"s_cmp_eq_u32 s{sT1}, 0\ns_cselect_b32 s{sT1}, {TAG}, {OOB}"), ('vm', self.flag_store(245, 246, f"s{sT1}"), 'tagst')]

    def attn_voff(self, dst, cexpr_base, colbase_s):
        e = self.e
        e(f"""v_mul_u32_u24 v10, 6554, v9
        v_lshrrev_b32 v10, 16, v10
        v_mad_i32_i24 v11, v10, -10, v9""")
        self.swap23(10, 12)
        e(f"""v_mul_u32_u24 v10, 3840, v10
        v_lshl_add_u32 v10, v11, 4, v10
        v_add_u32 v{dst}, s{colbase_s}, v10""")
    def swap23(self, r, t):
        self.e(f"""v_lshrrev_b32 v{t}, 1, v{r}
        v_xor_b32 v{t}, v{t}, v{r}
        v_and_b32 v{t}, 4, v{t}
        v_mul_u32_u24 v{t}, 3, v{t}
        v_xor_b32 v{r}, v{r}, v{t}""")

    def small_dma(self, sr, vaddr, soff, ldsaddr, nlanes, tag, m0expr=None):
        e = self.e
        e(m0expr or f"s_mov_b32 m0, {ldsaddr}")
        if nlanes < 64: e(f"s_mov_b64 exec, {hex((1 << nlanes) - 1)}" if nlanes <= 32 else f"s_mov_b32 exec_hi, {hex((1 << (nlanes-32)) - 1)}")
        e.vmop(f"buffer_load_dwordx4 v{vaddr}, {srd(sr)}, {soff} offen lds", tag)
        if nlanes < 64: e("s_mov_b64 exec, -1")

    def csel(self, d, a, b):
        inl = lambda x: isinstance(x, str) or -16 <= x <= 64
        if inl(a) or inl(b): self.e(f"s_cselect_b32 s{d}, {a}, {b}")
        else: self.e(f"s_mov_b32 s{d}, {b}\ns_cselect_b32 s{d}, {a}, s{d}")

    def init_B(self):
        self.Bloc = {}; self.Bq = []
        order = [(i, t) for i in range(19) for t in range(5)]
        for u, k in enumerate(order):
            if u < 64: self.Bloc[k] = ('a', 4 * u)
            elif u < 64 + NL: self.Bloc[k] = ('l', u - 64)
            else: self.Bloc[k] = None
        self.Border = order; self.Bpend = list(range(64 + NL)); self.Bcur = None; self.Acur = None
    def koff(self, i): return 4 * i - (2 if i >= 10 else 0)
    def soff(self, d, i, w):
        e_, o_, s8, s9, unit = (sB, sBo, sB8, sB9, 5120) if w == 'B' else (sA, sAo, sA8, sA9, 4096)
        if i in (8, 9): return f"s_mov_b32 s{d}, s{s8 if i == 8 else s9}"
        if i == 18: return f"s_add_u32 s{d}, s{e_}, s{o_}\ns_lshr_b32 s{d}, s{d}, 1\ns_add_u32 s{d}, s{d}, {self.koff(i)*unit}"
        idx = i if i < 10 else i - 10 if i < 14 else i - 14
        return f"s_add_u32 s{d}, s{e_ if idx & max(self.c.par, 1) == 0 else o_}, {self.koff(i)*unit}"
    def B_items(self, k, loc):
        i, t = k; it = []
        if self.Bcur != i:
            it.append(('x', self.soff(sBT, i, 'B'))); self.Bcur = i
        va, imm = (6, t * 1024) if t < 4 else (240, 0)
        if loc[0] == 'l':
            assert L_BL + loc[1]*1024 - imm >= 0
            it.append(('x', f"s_add_u32 m0, s88, {L_BL + loc[1]*1024 - imm}"))
            it.append(('vm', f"buffer_load_dwordx4 v{va}, {srd(SWS)}, s{sBT} offen offset:{imm} sc1 lds", ('B', k)))
        else:
            it.append(('vm', f"buffer_load_dwordx4 {R(loc)}, v{va}, {srd(SWS)}, s{sBT} offen offset:{imm} sc1", ('B', k)))
        return it
    def B_take(self, us):
        out = []
        for u in us:
            k = self.Border[u]; out.append(self.B_items(k, self.Bloc[k]))
            if self.c.xB == 1: out[-1] = [('x', 's_nop 0')]
            if self.c.xB == 2: out[-1] = [(it[0], it[1].replace(f"s{sBT} offen", "s43 offen"), it[2]) if it[0] == 'vm' else it for it in out[-1]]
            if self.c.xB == 3: out[-1] = [(it[0], it[1].replace(f"s{sBT} offen", f"s{sB} offen"), it[2]) if it[0] == 'vm' else it for it in out[-1]]
        return out
    def ph2_bg(self, u): pass
    def bg_try(self, allowed, S=None):
        e = self.e
        if e.t - e.tvm < (S or self.c.S): return False
        if allowed == self.ph2_bg: return self.try_issue(self.m, True, True)
        for u in self.Bpend:
            if allowed(u):
                self.Bpend.remove(u); self.emit_items(self.B_take([u])[0]); return True
        return False
    def emit_items(self, items):
        e = self.e
        for it in items:
            if it[0] == 'vm': e.vmop(it[1], it[2])
            elif it[0] == 'lg': e.lgop(it[1], it[2])
            elif it[0] == 'wvm': e.wait(vm=it[1])
            elif it[0] == 'wlg': e.wait(lg=it[1])
            elif it[0] == 'st': self.stamp(it[1], it[2])
            else: e(it[1])
    def valu(self, lines, side=None, every=1, bg=None, S=None):
        n = 0
        for l in lines:
            if isinstance(l, str): self.e(l)
            else: self.emit_items([l])
            n += 1
            if side and n % every == 0: self.emit_items(side.pop(0))
            if bg: self.bg_try(bg, S)

    def interleave(self, items, side, every):
        W = ('s_cmp', 's_add', 's_sub', 's_and', 's_andn2', 's_or', 's_xor', 's_lshl', 's_lshr', 's_bitcmp', 's_min', 's_max')
        Rd = ('s_cselect', 's_addc', 's_subb', 's_cbranch_scc')
        live = [False] * len(items); l = False
        for i in range(len(items) - 1, -1, -1):
            live[i] = l
            t = items[i][1]
            if t.startswith(Rd): l = True
            elif t.startswith(W): l = False
        n = 0
        for i, it in enumerate(items):
            self.emit_items([it]); n += 1
            if side and n >= every and not live[i]: self.emit_items(side.pop(0)); n = 0
        for g in side: self.emit_items(g)

    def gelu_lines(self, X, Y, T, O):
        U = [X, X + 2, Y, Y + 2]; L = []
        P = lambda r: f"v[{r}:{r+1}]"
        for i in range(4): L.append(f"v_pk_mul_f32 {P(T+2*i)}, {P(U[i])}, {P(U[i])}")
        for i in range(4): L.append(f"v_pk_fma_f32 {P(T+2*i)}, {P(T+2*i)}, v[14:15], s[{sC0}:{sC1}] op_sel_hi:[1,0,0]")
        for i in range(4): L.append(f"v_pk_mul_f32 {P(T+2*i)}, {P(T+2*i)}, {P(U[i])}")
        for i in range(8): L.append(f"v_exp_f32 v{T+i}, v{T+i}")
        for i in range(4): L.append(f"v_pk_add_f32 {P(T+2*i)}, {P(T+2*i)}, 1.0 op_sel_hi:[1,0]")
        for i in range(8): L.append(f"v_rcp_f32 v{T+i}, v{T+i}")
        for i in range(4): L.append(f"v_pk_mul_f32 {P(T+2*i)}, {P(T+2*i)}, {P(U[i])}")
        for i in range(4): L.append(f"v_cvt_pk_bf16_f32 v{O+i}, v{T+2*i}, v{T+2*i+1}")
        return L if not (self.c.skip & 1) else L[-8:]
    def gelu_consts(self):
        c1 = -2.0 * math.sqrt(2.0 / math.pi) * math.log2(math.e)
        self.e(f"s_mov_b32 s{sC0}, {fl(c1)}\nv_mov_b32 v14, {fl(c1 * 0.044715)}")
    def softmax_lines(self, Pp, E, PH):
        L = []; P = lambda r: f"v[{r}:{r+1}]"
        L += [f"v_max3_f32 v8, v{Pp}, v{Pp+1}, v{Pp+2}", f"v_min3_f32 v10, v{Pp}, v{Pp+1}, v{Pp+2}"]
        for i in range(3, 19, 2): L += [f"v_max3_f32 v8, v8, v{Pp+i}, v{Pp+i+1}", f"v_min3_f32 v10, v10, v{Pp+i}, v{Pp+i+1}"]
        L += [f"v_max_f32 v8, v8, v{Pp+19}", f"v_min_f32 v10, v10, v{Pp+19}"]
        L += [f"v_mul_f32_e64 v8, -v8, s{sC0}", f"v_mul_f32 v10, s{sC0}, v10"]
        for i in range(10):
            L.append(f"v_pk_fma_f32 {P(E+2*i)}, {P(Pp+2*i)}, s[{sC0}:{sC1}], v[8:9] op_sel_hi:[1,0,0]")
            L.append(f"v_pk_fma_f32 {P(E+20+2*i)}, {P(Pp+2*i)}, s[{sC0}:{sC1}], v[10:11] op_sel_hi:[1,0,0] neg_lo:[1,0,0] neg_hi:[1,0,0]")
        for i in range(40): L.append(f"v_exp_f32 v{E+i}, v{E+i}")
        L += [f"v_pk_add_f32 v[8:9], {P(E)}, {P(E+2)}", f"v_pk_add_f32 v[10:11], {P(E+20)}, {P(E+22)}"]
        for i in range(2, 10): L += [f"v_pk_add_f32 v[8:9], v[8:9], {P(E+2*i)}", f"v_pk_add_f32 v[10:11], v[10:11], {P(E+20+2*i)}"]
        L += ["v_add_f32 v8, v8, v9", "v_add_f32 v10, v10, v11", "v_rcp_f32 v8, v8", "v_rcp_f32 v10, v10"]
        for i in range(10): L.append(f"v_pk_mul_f32 {P(E+2*i)}, {P(E+2*i)}, v[8:9] op_sel_hi:[1,0]")
        for i in range(10): L.append(f"v_pk_mul_f32 {P(E+20+2*i)}, {P(E+20+2*i)}, v[10:11] op_sel_hi:[1,0]")
        for i in range(20): L.append(f"v_cvt_pk_bf16_f32 v{PH+i}, v{E+2*i}, v{E+2*i+1}")
        return L if not (self.c.skip & 2) else [l if 'cvt' in l else '' for l in L]
    def wphi_addr(self, va):
        self.e(f"v_mul_u32_u24 v{va}, 800, v2\nv_mad_u32_u24 v{va}, v3, 40, v{va}\nv_add_u32 v{va}, {L_WPHI}, v{va}")
    def wphi_reads(self, va):
        return [[('lg', f"ds_read_b64_tr_b16 a[{AW+2*(dg*5+fg)}:{AW+1+2*(dg*5+fg)}], v{va} offset:{dg*160 + fg*8}", 'wphi')] for dg in range(5) for fg in range(5)]
    def phi_mfmas(self, KQ, Pp):
        L = []
        for dg in range(5):
            for j in range(2):
                for fg in range(5):
                    d = Pp + 20 * j + 4 * fg; w = AW + 2 * (dg * 5 + fg); b = KQ + 10 * j + 2 * dg
                    L.append(f"v_mfma_f32_4x4x4_16b_bf16 {vr(d)}, a[{w}:{w+1}], v[{b}:{b+1}], {vr(d) if dg else 0}")
        return L
    def cvt_heads(self, acc0, dst, j, n=5):
        return [f"v_cvt_pk_bf16_f32 v{dst+2*t+h}, v{acc0+(t*2+j)*4+2*h}, v{acc0+(t*2+j)*4+2*h+1}" for t in range(n) for h in range(2)]
    def rho0(self, dst):
        self.e(f"v_lshrrev_b32 v{dst}, 1, v2\nv_lshl_add_u32 v{dst}, v{dst}, 4, v3\nv_and_b32 v7, 1, v2\nv_lshl_add_u32 v{dst}, v7, 2, v{dst}")
    def x_addr(self, ST, nsl=3, base=220):
        e = self.e
        e(f"""v_lshrrev_b32 v9, 1, v1
        v_xor_b32 v9, v9, v2
        v_lshlrev_b32 v9, 4, v9
        v_lshl_add_u32 v9, v1, 7, v9
        v_add_u32 v{base}, s{sM0}, v9
        v_xor_b32 v{base+1}, 64, v{base}""")
        for sl in range(1, nsl): e(f"v_add_u32 v{base+2*sl}, {sl*ST}, v{base}\nv_add_u32 v{base+1+2*sl}, {sl*ST}, v{base+1}")
    def paced(self, groups, m0, span):
        n = len(groups)
        return [dict(at=m0 + int((k + 0.2) * span / n), chain=1, ins=list(g)) for k, g in enumerate(groups)]
    def prog_QH(self):
        e = self.e; c = self.c; self.init_B(); self.dmap = {0: 3, 1: 5, 2: 7, 3: 9, 14: 11, 7: 13, 9: 15}
        e("L_QH:")
        ST = QH_ST
        e(f"""s_mul_i32 s{sKW}, s{sHG}, 320
        s_lshl_b32 s{sT0}, s{sHG}, 8
        s_add_u32 s{sT0}, s{sT0}, 384
        s_cmp_lt_u32 s{sHG}, 6
        s_cselect_b32 s{sKW}, s{sKW}, s{sT0}
        s_cselect_b32 s{sK1}, 20, 16
        s_mul_i32 s{sT2}, s{sW}, 320""")
        def dma_x(st):
            g = []
            for j in range(4):
                it = [('x', f"s_add_u32 m0, s{sM0}, {(st%3)*ST}")] if j == 0 else []
                g.append(it + [('vm', f"buffer_load_dwordx4 v{208+j}, {srd(SX)}, s{sE+st} offen offset:{j*1024} {c.xsc} lds", ('S', st))])
            return g
        def dma_a(st, i):
            it = []
            if i == 0: it = [('x', f"s_mul_i32 s{sKA}, s{sE+st}, 1920"), ('x', f"s_add_u32 m0, s{sM0+1}, {(st%3)*ST}")]
            if i == 2: it = [('x', f"s_mov_b32 m0, s{sM0+3+st%3}")]
            return it + [('vm', f"buffer_load_dwordx4 v{212+i}, {srd(SQ)}, s{sKA} offen offset:{1024 if i == 1 else 0} {c.wsc} lds", ('S', st))]
        def dma_h(st, i):
            it = []
            if i == 0: it = [('x', f"s_mul_i32 s{sKB}, s{sE+st}, 1728"), ('x', f"s_add_u32 m0, s{sM0+2}, {(st%3)*ST}")]
            if i == 4: it = [('x', "s_add_u32 m0, m0, 4096")]
            return it + [('vm', f"buffer_load_dwordx4 v{215+i}, {srd(S1)}, s{sKB} offen offset:{(i%4)*1024} {c.wsc} lds", ('S', st))]
        def dma_stage(st): return dma_x(st) + [dma_a(st, i) for i in range(3)] + [dma_h(st, i) for i in range(5)]
        if c.fast:
            self.kernarg_wait()
            for g in dma_x(0): self.emit_items(g)
            self.small_dma(SM, 6, f"s{sKW}", None, 20, 'bias', f"s_add_u32 m0, s{sT2}, {L_BIASQH}")
        e(f"""s_mul_i32 s{sT0}, s{sW}, 3
        s_lshl_b32 s{sT1}, s{sW}, 1
        s_add_u32 s{sT1}, s{sT1}, 2
        s_cmp_lt_u32 s{sW}, 2
        s_cselect_b32 s{sT0}, s{sT0}, s{sT1}
        s_lshl_b32 s{sM0+1}, s{sT0}, 10
        s_add_u32 s{sM0+1}, s{sM0+1}, 16384""")
        for sl in range(3):
            e(f"s_add_u32 s{sM0+3+sl}, s{sM0+1}, {2048 + sl*ST}\ns_cmp_lt_u32 s{sW}, 2\ns_cselect_b32 s{sM0+3+sl}, s{sM0+3+sl}, {MISC+4608}")
        e(f"s_lshl_b32 s{sT0}, s{sT0}, 6\ns_mul_i32 s{sT1}, s{sHG}, 160\ns_mul_i32 s{sM0+2}, s{sW}, 5120\ns_add_u32 s{sM0+2}, s{sM0+2}, {16384+10240}")
        for i in range(3):
            e(f"v_add_u32 v9, {64*i}, v0\nv_add_u32 v9, s{sT0}, v9")
            self.attn_voff(212 + i, None, sT1)
            if i == 1: e("v_subrev_u32 v213, 1024, v213")
            if i == 2: e(f"s_cmp_lt_u32 s{sW}, 2\ns_cselect_b32 s{sT4}, 0, {OOB}\nv_add_u32 v214, s{sT4}, v214")
            if c.fast: self.emit_items(dma_a(0, i))
        if not c.fast:
            self.kernarg_wait()
            self.small_dma(SM, 6, f"s{sKW}", None, 20, 'bias', f"s_add_u32 m0, s{sT2}, {L_BIASQH}")
            for g in dma_x(0) + [dma_a(0, i) for i in range(3)]: self.emit_items(g)
        e(f"s_mul_i32 s{sT0}, s{sW}, 320\nv_mov_b32 v14, {OOB}")
        for i in range(5):
            e(f"""v_add_u32 v9, {64*i}, v0
            v_add_u32 v9, s{sT0}, v9
            v_mul_u32_u24 v10, 3277, v9
            v_lshrrev_b32 v10, 16, v10
            v_mul_u32_u24 v11, 20, v10
            v_sub_u32 v11, v9, v11
            v_bfe_u32 v13, v10, 2, 1
            v_lshlrev_b32 v13, 1, v13
            v_xor_b32 v11, v11, v13
            v_cmp_gt_u32 vcc, s{sK1}, v11""")
            self.swap23(10, 12)
            e(f"""v_mul_u32_u24 v10, 3456, v10
            v_lshl_add_u32 v10, v11, 4, v10
            v_add_u32 v10, s{sKW}, v10
            v_subrev_u32 v10, {(i%4)*1024}, v10
            v_cndmask_b32 v{215+i}, v14, v10, vcc""")
            self.emit_items(dma_h(0, i))
        self.pstamp(1)
        if c.pke:
            self.pack_setup()
            for g in self.pack_loads(): self.emit_items(g)
        if c.touch == 1: self.touch()
        if c.touch == 4:
            self.touch3_setup()
            for p_ in range(c.tp0): self.emit_items(self.touch3(p_))
        self.pstamp(2)
        def setup():
            e = self.e
            self.x_addr(ST); self.rho0(8)
            e(f"v_mul_u32_u24 v9, 160, v8\nv_mad_u32_u24 v9, v4, 40, v9\nv_add_u32 v226, 16384, v9")
            e(f"v_mul_u32_u24 v9, 320, v8\nv_lshl_add_u32 v9, v4, 3, v9\nv_add_u32 v9, {16384+10240}, v9\nv_lshl_add_u32 v229, v7, 5, v9\nv_xor_b32 v7, 1, v7\nv_lshl_add_u32 v232, v7, 5, v9")
            for sl in (1, 2): e(f"v_add_u32 v{226+sl}, {sl*ST}, v226\nv_add_u32 v{229+sl}, {sl*ST}, v229\nv_add_u32 v{232+sl}, {sl*ST}, v232")
            self.common_setup()
            if not c.pke: self.pack_setup()
            e(f"s_mul_i32 s{sT1}, s{sW}, 320\ns_add_u32 s{sT1}, s{sT1}, {L_BIASQH}\nv_lshl_add_u32 v13, v2, 3, s{sT1}")
            e(f"""s_lshl_b32 s{sT0}, s{sMT}, 1
            s_lshr_b32 s{sT1}, s{sW}, 1
            s_add_u32 s{sT0}, s{sT0}, s{sT1}
            s_and_b32 s{sT1}, s{sW}, 1
            s_mul_i32 s{sT2}, s{sT0}, 74
            s_lshl_b32 s{sT2}, s{sT2}, 12
            s_lshl_b32 s{sT3}, s{sT1}, 11
            s_add_u32 s{sT2}, s{sT2}, s{sT3}
            s_add_u32 s{sT2}, s{sT2}, {A2}
            s_lshr_b32 s{sT4}, s{sHG}, 1
            s_mul_i32 s{sT4}, s{sT4}, 5
            s_add_u32 s{sT4}, s{sT4}, 54
            s_lshl_b32 s{sT4}, s{sT4}, 12
            s_add_u32 s{sT4}, s{sT4}, s{sT2}
            s_and_b32 s{sT5}, s{sHG}, 1
            s_lshl_b32 s38, s{sT5}, 13
            s_add_u32 s38, s38, s{sT4}
            s_add_u32 s39, s{sT4}, {4*4096}
            s_lshl_b32 s{sT5}, s{sT5}, 3
            s_add_u32 s39, s39, s{sT5}
            s_lshl_b32 s{sT0}, s{sHG}, 4
            s_add_u32 s{sT0}, s{sT0}, s{sMT}
            s_lshl_b32 s{sT0}, s{sT0}, 2
            s_add_u32 s{sT0}, s{sT0}, s{sW}
            s_lshl_b32 s{sT0}, s{sT0}, 9
            s_add_u32 s43, s{sT0}, {GB}
            v_mov_b32 v204, -1
            v_mov_b32 v205, -1
            v_mov_b32 v206, -1
            v_mov_b32 v207, -1""")
        self.interleave(self.record(setup), dma_stage(1)[:c.n1], c.pe)
        self.pstamp(3)
        if c.n1 >= 12:
            self.small_dma(SM, 6, "s36", None, 50, 'misc', "s_mov_b32 m0, s37")
            if c.touch == 2: self.touch()
            if not c.pke:
                for g in self.pack_loads(): self.emit_items(g)
        self.tag_wait(); self.pstamp(4)
        e.wait(vm='bias')
        for s_ in range(10): e.lgop(f"ds_read_b64 v[{136+2*s_}:{137+2*s_}], v13 offset:{s_*32}", ('b', s_))
        for s_ in range(10):
            a0 = 16 + (5 + s_) * 8; e.wait(lg=('b', s_))
            for h in range(2): e(f"v_lshlrev_b32 v{a0+2*h}, 16, v{136+2*s_+h}\nv_and_b32 v{a0+2*h+1}, 0xffff0000, v{136+2*s_+h}")
        self.stamp(0)
        NS = 15; nm = NS * 4; mf = []; reads = []
        for st in range(10):
            sl = st % 3
            for t in range(NS):
                gs = st * NS + t; wr = 168 + 8 * (gs % 4); m0 = len(mf)
                for ks in range(2):
                    for rd in range(2):
                        if t < 5: ad, off = 226 + sl, ks * 5120 + rd * 1280 + t * 8
                        else: ad, off = (229 if (t - 5) % 2 == 0 else 232) + sl, ks * 10240 + rd * 2560 + ((t - 5) >> 1) * 64
                        reads.append([f"ds_read_b64_tr_b16 v[{wr+4*ks+2*rd}:{wr+4*ks+2*rd+1}], v{ad} offset:{off}", m0, st, m0 - 13])
                for j in ((1, 0) if st == 0 else (0, 1)):
                    for ks in range(2):
                        xr = 136 + (st % 2) * 16 + (j * 2 + ks) * 4; d = 16 + (t * 2 + j) * 4
                        if t == 0: reads.append([f"ds_read_b128 {vr(xr)}, v{220+2*sl+ks} offset:{j*2048}", len(mf), st, -1])
                        cc = vr(d)
                        if st == 0 and ks == 0: cc = "0" if t < 5 else vr(16 + t * 8)
                        mf.append(f"v_mfma_f32_16x16x32_bf16 {vr(d)}, {vr(wr+4*ks)}, {vr(xr)}, {cc}")
        po = lambda va, off: [('vm', f"buffer_store_dwordx4 v[204:207], v{va}, {srd(SWS)}, s38 offen offset:{off} sc1", 'hst')]
        poison = [po(6, 0), po(6, 1024), po(240, 0), po(240, 1024)] + [[('vm', f"buffer_store_dwordx2 v[204:205], v6, {srd(SWS)}, s39 offen offset:{j*1024} sc1", 'hst')] for j in range(2)]
        self.kloop(mf, reads, nm, dma_stage, poison, 'QH')
        A51 = lambda u: u < 51; A64 = lambda u: u < 64; ALL = lambda u: True
        self.gelu_consts()
        e(f"s_lshl_b32 s{sT3}, s{sKW}, 6\ns_add_u32 s{sT3}, s{sT3}, s{sT2}")
        L = []
        for p in range(5):
            for j in range(2):
                O = 152 + 4 * ((2 * p + j) % 4)
                L += self.gelu_lines(16 + ((5 + 2 * p) * 2 + j) * 4, 16 + ((6 + 2 * p) * 2 + j) * 4, 136 + 8 * j, O)
                if j == 0:
                    if p == 4: L += [f"s_add_u32 s{sT4}, s{sT3}, {4*4096}", f"s_cmp_lt_u32 s{sHG}, 6\ns_cselect_b32 s{sT4}, s{sT4}, {OOB}"]
                    else: L.append(f"s_add_u32 s{sT4}, s{sT3}, {p*4096}")
                L.append(('vm', f"buffer_store_dwordx4 {vr(O)}, v6, {srd(SWS)}, s{sT4} offen offset:{j*1024} sc1", 'hst'))
        self.valu(L, bg=A51, S=c.Sg)
        self.valu(self.cvt_heads(16, 56, 0) + self.cvt_heads(16, 66, 1), bg=A51)
        self.stamp(2)
        e.wait(lg='wphi')
        self.valu(self.phi_mfmas(56, 76), bg=A51)
        e(f"""s_lshl_b32 s{sT4}, s{sMT}, 4
        s_add_u32 s{sT4}, s{sT4}, s{sHG}
        s_lshl_b32 s{sT4}, s{sT4}, 7
        s_add_u32 s{sT4}, s{sT4}, {F4}
        s_cmp_eq_u32 s{sW}, 0
        s_cselect_b32 s{sT5}, s{sT4}, {OOB}
        s_mov_b32 s{sC0}, {fl(math.log2(math.e))}""")
        L1 = self.softmax_lines(76, 16, 116)
        self.valu(L1[:c.f4at], bg=A64)
        e.wait(vm='hst'); e("s_barrier")
        if c.stamps == 3: e(f"s_mov_b32 s{sC0}, {fl(math.log2(math.e))}")
        e.vmop(self.flag_store(245, 246, f"s{sT5}"), 'f4st')
        self.valu(L1[c.f4at:], bg=ALL)
        L2 = self.softmax_lines(96, 16, 136)
        self.valu(L2[:c.pa], bg=ALL)
        self.poll4a_issue()
        self.valu(L2[c.pa:c.pb], bg=ALL)
        pool = [[('v', r), c.mo + 1 if r < 204 else c.p3 if r < 220 else 999] for r in list(range(204, 224, 4)) + list(range(168, 204, 4))]
        while len(self.Bpend) > c.qleft: self.bg_try(ALL, -9999)
        self.ph2_begin(pool)
        if c.stamps == 3: e(f"s_mov_b32 s{sC0}, {fl(math.log2(math.e))}")
        self.valu(L2[c.pb:], bg=ALL)
        self.stamp(3)
        pool += [[('v', r), c.mo + 1] for r in range(156, 168, 4)]
        FO = (0, 1024, 2048, 2816)
        finld = [f"buffer_load_dwordx4 {vr(204+4*i)}, v6, {srd(SWS)}, s{sKW} offen offset:{FO[i]} sc1" for i in range(4)]
        finld += [f"buffer_load_dwordx4 {vr(248+4*j)}, v13, {srd(SWS)}, s43 offen offset:{j*256} sc1" for j in range(2)]
        def h_p3():
            e(f"""s_mul_i32 s{sKW}, s{sHG}, {FSZ}
            s_mul_i32 s{sK1}, s{sW}, 3840
            s_add_u32 s{sKW}, s{sKW}, s{sK1}
            s_add_u32 s{sKW}, s{sKW}, {FIN}
            v_lshlrev_b32 v13, 4, v1""")
            for l in finld: e.vmop(l, 'fin')
        def h_c3():
            it = [('st', 4, 1)] + [('x', l) for l in f"s_lshr_b32 s{sK1}, s{sK1}, 1\ns_add_u32 s{sK1}, s{sK1}, {L_FIN}\nv_lshl_add_u32 v9, v0, 3, s{sK1}".split("\n")] + [('wvm', 'fin')]
            it += [('x', l) for l in self.tag_check(finld, list(range(204, 220)) + list(range(248, 256)), 8)] + [('st', 5, 1)]
            it += [('x', self.tag_strip(r)) for r in list(range(204, 220)) + [248, 252]] + [('x', "v_mov_b32 v250, v248"), ('x', "v_mov_b32 v251, v252")]
            for i in range(4):
                it += [('x', f"v_cvt_pk_bf16_f32 v{204+4*i}, v{204+4*i}, v{205+4*i}"), ('x', f"v_cvt_pk_bf16_f32 v{205+4*i}, v{206+4*i}, v{207+4*i}"),
                       ('lg', f"ds_write_b64 v9, v[{204+4*i}:{205+4*i}] offset:{FO[i]//2}", 'fw')]
            it += [('x', l) for l in f"v_lshlrev_b32 v13, 6, v2\nv_lshl_add_u32 v13, v4, 4, v13\nv_add_u32 v13, {L_FIN}, v13".split("\n")]
            self.aq[:0] = [[self.m, c.mo - 3, x] for x in it]
        def h_o():
            if c.p1q < 0: self.poll4b_issue()
            fr = [p for p in pool if p[0][0] == 'a'][:8]; assert len(fr) == 8; self.busy = fr
            e.wait(lg='fw'); e("s_barrier")
            self.stamp(6)
            mf = []; reads = []
            for fp in range(5):
                for dg in range(6):
                    n = fp * 6 + dg; f0 = fr[n % 8][0][1]; base = (n // 2) * 8
                    reads.append([f"ds_read_b128 {ar(f0)}, v13 offset:{(dg*5+fp)*256}", base + 2 * (n % 2), -1, base - 24])
                    for h in range(2):
                        for j in range(2):
                            d = 156 + 24 * j + 4 * dg; b = 116 + 20 * j + 2 * (2 * fp + h)
                            mf.append(f"v_mfma_f32_4x4x4_16b_bf16 {vr(d)}, a[{f0+2*h}:{f0+2*h+1}], v[{b}:{b+1}], {vr(d) if (fp or h) else 0}")
            mf2 = []
            for n in range(0, 30, 2):
                a_, b_ = mf[4*n:4*n+4], mf[4*n+4:4*n+8]
                mf2 += [a_[0], a_[1], b_[0], b_[1], a_[2], a_[3], b_[2], b_[3]]
            if c.skip & 4: mf2 = mf2[:8]; reads = reads[:2]
            self.stream(mf2, reads, [], None, LA=20, bg=lambda m: self.ph2_bg)
            for j in range(2): e(f"v_add_f32 v{8+2*j}, {fl(1e-6)}, v{156+24*j+20}")
            for j in range(2): e(f"v_rcp_f32 v{8+2*j}, v{8+2*j}")
            for j in range(2): e(f"v_mul_f32 v{8+2*j}, v{8+2*j}, v{250+j}")
            for j in range(2):
                D = 156 + 24 * j
                for i in range(10): e(f"v_pk_mul_f32 v[{D+2*i}:{D+2*i+1}], v[{D+2*i}:{D+2*i+1}], v[{8+2*j}:{9+2*j}] op_sel_hi:[1,0]")
                for i in range(10): e(f"v_cvt_pk_bf16_f32 v{D+i}, v{D+2*i}, v{D+2*i+1}")
                for i in range(10): e(f"v_min_u32 v{D+i}, -2, v{D+i}")
                e.vmop(f"buffer_store_dwordx4 {vr(D)}, v6, {srd(SWS)}, s38 offen offset:{j*1024} sc1", 'ost')
                e.vmop(f"buffer_store_dwordx4 {vr(D+4)}, v240, {srd(SWS)}, s38 offen offset:{j*1024} sc1", 'ost')
                e.vmop(f"buffer_store_dwordx2 {vr(D+8, 2)}, v6, {srd(SWS)}, s39 offen offset:{j*1024} sc1", 'ost')
            self.busy = []
            for p in pool: p[1] = 999
            pool.extend([[('v', r), 999] for r in range(116, 156, 4)])
            self.stamp(14)
        self.bias2()
        self.phase2({c.p3: h_p3, c.c3: h_c3, c.mo: h_o, c.p1q: self.poll4b_issue, c.c1q: self.poll4b_check})

    def prog_KV(self):
        e = self.e; c = self.c; self.init_B(); self.dmap = {0: 2, 1: 4, 3: 6, 4: 8, 5: 10, 7: 12, 9: 14}
        ST = KV_ST
        e(f"""s_mul_i32 s{sM0+1}, s{sW}, 5120
        s_add_u32 s{sM0+1}, s{sM0+1}, 16384
        s_lshl_b32 s{sM0+2}, s{sW}, 11
        s_add_u32 s{sM0+2}, s{sM0+2}, 36864
        s_lshl_b32 s{sKW}, s{sHG}, 7
        s_add_u32 s{sKW}, s{sKW}, {19*128}""")
        def dma_x(st):
            g = []
            for j in range(4):
                it = [('x', f"s_add_u32 m0, s{sM0}, {(st%3)*ST}")] if j == 0 else []
                g.append(it + [('vm', f"buffer_load_dwordx4 v{208+j}, {srd(SX)}, s{sE+st} offen offset:{j*1024} {c.xsc} lds", ('S', st))])
            return g
        def dma_w(st, i):
            it = []
            if i == 0: it = [('x', f"s_mul_i32 s{sKA}, s{sE+st}, 1920"), ('x', f"s_add_u32 m0, s{sM0+1}, {(st%3)*ST}")]
            if i == 4: it = [('x', "s_add_u32 m0, m0, 4096")]
            return it + [('vm', f"buffer_load_dwordx4 v{212+i}, {srd(SQ)}, s{sKA} offen offset:{(i%4)*1024} {c.wsc} lds", ('S', st))]
        def dma_h(st, i):
            it = [('x', f"s_mul_i32 s{sKB}, s{sE+st}, 1728"), ('x', f"s_add_u32 m0, s{sM0+2}, {(st%3)*ST}")] if i == 0 else []
            return it + [('vm', f"buffer_load_dwordx4 v{217+i}, {srd(S1)}, s{sKB} offen offset:{i*1024} {c.wsc} lds", ('S', st))]
        def dma_stage(st): return dma_x(st) + [dma_w(st, i) for i in range(5)] + [dma_h(st, i) for i in range(2)]
        if c.fast:
            self.kernarg_wait()
            for g in dma_x(0): self.emit_items(g)
            self.small_dma(SM, 6, f"s{sKW}", L_BIASKV, 8, 'bias')
        e(f"""s_and_b32 s{sT0}, s{sW}, 1
        s_mul_i32 s{sT0}, s{sT0}, 320
        s_lshr_b32 s{sT1}, s{sW}, 1
        s_add_u32 s{sT1}, s{sT1}, 1
        s_mul_i32 s{sT1}, s{sT1}, 1280
        s_mul_i32 s{sT3}, s{sHG}, 160
        s_add_u32 s{sT1}, s{sT1}, s{sT3}""")
        for i in range(5):
            e(f"v_add_u32 v9, {64*i}, v0\nv_add_u32 v9, s{sT0}, v9")
            self.attn_voff(212 + i, None, sT1)
            if i % 4: e(f"v_subrev_u32 v{212+i}, {(i%4)*1024}, v{212+i}")
            if c.fast: self.emit_items(dma_w(0, i))
        if not c.fast:
            self.kernarg_wait()
            self.small_dma(SM, 6, f"s{sKW}", L_BIASKV, 8, 'bias')
            for g in dma_x(0) + [dma_w(0, i) for i in range(5)]: self.emit_items(g)
        e(f"s_lshl_b32 s{sT3}, s{sW}, 4\nv_lshlrev_b32 v11, 1, v2\nv_xor_b32 v11, v11, v0\nv_and_b32 v11, 7, v11")
        for pp in range(2):
            e(f"v_add_u32 v10, {8*pp}, v5\nv_add_u32 v10, s{sT3}, v10")
            self.swap23(10, 12)
            e(f"""v_mul_u32_u24 v10, 3456, v10
            v_lshl_add_u32 v10, v11, 4, v10
            v_add_u32 v10, s{sKW}, v10
            v_subrev_u32 v{217+pp}, {pp*1024}, v10""")
            self.emit_items(dma_h(0, pp))
        mk_srd(e, 28, pGATE, 1280)
        if c.rot == 3: e(f"v_xor_b32 v9, s{sE}, v6\nv_add_u32 v11, 1024, v9")
        else: e(f"v_add_u32 v9, s{sE}, v6\nv_subrev_u32 v10, 1280, v9\nv_min_u32 v9, v9, v10\nv_add_u32 v11, 1024, v9\nv_subrev_u32 v10, 1280, v11\nv_min_u32 v11, v11, v10")
        self.small_dma(28, 9, "0", L_GATE, 64, ('S', 0)); self.small_dma(28, 11, "0", L_GATE + 1024, 16, ('S', 0))
        self.pstamp(1)
        if c.pke:
            self.pack_setup()
            for g in self.pack_loads(): self.emit_items(g)
        if c.touch == 1: self.touch()
        if c.touch == 4:
            self.touch3_setup()
            for p_ in range(c.tp0): self.emit_items(self.touch3(p_))
        self.pstamp(2)
        def setup():
            e = self.e
            self.x_addr(ST); self.rho0(8)
            e(f"v_mul_u32_u24 v9, 160, v8\nv_mad_u32_u24 v9, v4, 40, v9\nv_add_u32 v226, 16384, v9")
            for sl in (1, 2): e(f"v_add_u32 v{226+sl}, {sl*ST}, v226")
            e(f"v_lshlrev_b32 v9, 7, v8\nv_lshl_add_u32 v9, v4, 3, v9\nv_add_u32 v9, 36864, v9\nv_bfe_u32 v10, v8, 1, 2")
            for t in range(4): e(f"v_xor_b32 v11, {t}, v10\nv_lshl_add_u32 v{229+t}, v11, 5, v9\nv_add_u32 v{204+t}, {2*ST}, v{229+t}")
            e(f"v_lshlrev_b32 v233, 4, v2\nv_add_u32 v233, {L_GATE}, v233\nv_lshlrev_b32 v253, 3, v2\nv_add_u32 v253, {L_BIASKV}, v253")
            self.common_setup()
            if not c.pke: self.pack_setup()
            e(f"""v_lshrrev_b32 v8, 2, v1
            v_mul_u32_u24 v8, 2560, v8
            v_lshl_add_u32 v8, v4, 5, v8
            v_lshrrev_b32 v9, 1, v2
            v_lshl_add_u32 v8, v9, 9, v8
            v_and_b32 v9, 1, v2
            v_lshl_add_u32 v8, v9, 4, v8
            s_lshl_b32 s{sT0}, s{sW}, 7
            v_add_u32 v241, s{sT0}, v8
            v_add_u32 v243, 10240, v241
            v_mov_b32 v9, {OOB}
            v_cmp_ge_u32 vcc, 7, v1
            v_cndmask_b32 v243, v9, v243, vcc
            v_cmp_gt_u32 vcc, 2, v2
            v_cndmask_b32 v242, v9, v241, vcc
            v_cndmask_b32 v244, v9, v243, vcc
            v_mul_u32_u24 v12, {PSZ}, v2
            v_min_u32 v10, 14, v1
            v_lshl_add_u32 v12, v10, 4, v12
            v_lshlrev_b32 v13, 4, v1
            v_cmp_gt_u32 vcc, 16, v0
            v_cndmask_b32 v234, v9, v13, vcc
            v_cmp_gt_u32 vcc, 15, v0
            v_cndmask_b32 v13, v9, v13, vcc""")
        self.interleave(self.record(setup), dma_stage(1)[:c.n1], c.pe2)
        self.pstamp(3)
        if c.n1 >= 12:
            self.small_dma(SM, 6, "s36", None, 50, 'misc', "s_mov_b32 m0, s37")
            if c.touch == 2: self.touch()
            if not c.pke:
                for g in self.pack_loads(): self.emit_items(g)
        self.tag_wait(); self.pstamp(4)
        e.wait(vm='bias')
        for s_ in range(4): e.lgop(f"ds_read_b64 v[{136+2*s_}:{137+2*s_}], v253 offset:{s_*32}", ('b', s_))
        for s_ in range(4):
            e.wait(lg=('b', s_))
            for h in range(2): e(f"v_lshlrev_b32 v{96+8*s_+2*h}, 16, v{136+2*s_+h}\nv_and_b32 v{97+8*s_+2*h}, 0xffff0000, v{136+2*s_+h}")
        self.stamp(0)
        NS = 15; nm = NS * 4; mf = []; reads = []
        for st in range(10):
            sl = st % 3
            for t in range(NS):
                gs = st * NS + t; wr = 168 + 8 * (gs % 4); m0 = len(mf)
                for ks in range(2):
                    if t == 14: reads.append([f"ds_read_b128 {vr(wr+4*ks)}, v233 offset:{(st*2+ks)*64}", m0, st, m0 - 13]); continue
                    for rd in range(2):
                        if t < 10: ad, off = 226 + sl, (t // 5) * 10240 + ks * 5120 + rd * 1280 + (t % 5) * 8
                        else: ad, off = (229 if sl < 2 else 204) + t - 10, (sl % 2) * ST + ks * 4096 + rd * 1024
                        reads.append([f"ds_read_b64_tr_b16 v[{wr+4*ks+2*rd}:{wr+4*ks+2*rd+1}], v{ad} offset:{off}", m0, st, m0 - 13])
                for j in ((1, 0) if st == 0 else (0, 1)):
                    for ks in range(2):
                        xr = 136 + (st % 2) * 16 + (j * 2 + ks) * 4; d = 16 + (t * 2 + j) * 4
                        if t == 0: reads.append([f"ds_read_b128 {vr(xr)}, v{220+2*sl+ks} offset:{j*2048}", len(mf), st, -1])
                        cc = vr(d)
                        if st == 0 and ks == 0: cc = vr(16 + t * 8) if 10 <= t < 14 else "0"
                        mf.append(f"v_mfma_f32_16x16x32_bf16 {vr(d)}, {vr(wr+4*ks)}, {vr(xr)}, {cc}")
        self.kloop(mf, reads, nm, dma_stage, [], 'KV')
        A64 = lambda u: u < 64; ALL = lambda u: True
        A51 = lambda u: u < 51; Sa = c.Sa
        KQ = 136; PR = 168; VT = 156
        nl2e = fl(-math.log2(math.e))
        side = [l.strip() for l in f"""v_mul_f32 v128, {nl2e}, v128
        v_mul_f32 v132, {nl2e}, v132
        v_exp_f32 v128, v128
        v_exp_f32 v132, v132
        s_lshl_b32 s{sT2}, s{sMT}, 2
        v_add_f32 v128, 1.0, v128
        v_add_f32 v132, 1.0, v132
        v_rcp_f32 v128, v128
        v_rcp_f32 v132, v132
        s_add_u32 s{sT2}, s{sT2}, s{sW}
        s_lshl_b32 s{sT3}, s{sT2}, 9
        s_lshl_b32 s{sT4}, s{sHG}, 15
        s_add_u32 s{sT3}, s{sT3}, s{sT4}
        s_add_u32 s{sT3}, s{sT3}, {GB}
        v_mul_u32_u24 v220, {RSV}, v1
        v_mad_u32_u24 v220, v2, 48, v220
        s_mul_i32 s{sT0}, s{sW}, {32*RSV}
        s_add_u32 s{sT0}, s{sT0}, {L_V}
        v_add_u32 v220, s{sT0}, v220
        v_mul_u32_u24 v221, {RSP}, v1
        s_mov_b32 s{sT0}, 80
        v_mad_u32_u24 v221, v2, s{sT0}, v221
        s_mul_i32 s{sT0}, s{sW}, {32*RSP}
        v_add_u32 v221, s{sT0}, v221
        v_lshl_add_u32 v8, v2, 2, v3
        v_mul_u32_u24 v222, {RSP}, v8
        v_lshl_add_u32 v222, v4, 3, v222
        s_mul_i32 s{sT0}, s{sW}, 80
        v_add_u32 v222, s{sT0}, v222
        v_mul_u32_u24 v223, {RSV}, v8
        v_lshl_add_u32 v223, v4, 3, v223
        s_mul_i32 s{sT0}, s{sW}, 48
        s_add_u32 s{sT0}, s{sT0}, {L_V}
        v_add_u32 v223, s{sT0}, v223
        s_lshl_b32 s{sT0}, s{sHG}, 4
        s_add_u32 s{sT0}, s{sT0}, s{sMT}
        s_mul_i32 s{sT1}, s{sT0}, {PSZ}
        s_add_u32 s{sT1}, s{sT1}, {PP}
        s_mov_b32 s{sC0}, {fl(math.log2(math.e))}""".split("\n")]
        self.valu(self.cvt_heads(16, KQ, 0) + self.cvt_heads(16, KQ + 10, 1))
        e.wait(lg='wphi')
        side = self.cvt_heads(56, VT, 0) + side[:38]; rest = [side.pop() for _ in range(0)]
        self.valu(self.phi_mfmas(KQ, PR), [[('x', l)] for l in side], 1)
        e(f"v_mov_b32 v{VT+10}, 0x3f80\nv_mov_b32 v{VT+11}, 0\ns_mov_b32 s{sC0}, {fl(math.log2(math.e))}\ns_barrier")
        for i in range(3): e.lgop(f"ds_write_b128 v220, {vr(VT+4*i)} offset:{i*16}", 'vw')
        for j in range(2):
            for i in (3, 2, 1, 0): e(self.tag_put(128 + 4 * j + i, 128 + 4 * j))
            e.vmop(f"buffer_store_dwordx4 {vr(128+4*j)}, v234, {srd(SWS)}, s{sT3} offen offset:{j*256} sc1", 'hst')
        L0 = self.softmax_lines(PR, 16, 136)
        self.valu(L0[:16], bg=ALL, S=Sa)
        self.valu(self.cvt_heads(56, 208, 1) + ["v_mov_b32 v218, 0x3f80", "v_mov_b32 v219, 0"], bg=ALL, S=Sa)
        for i in range(3): e.lgop(f"ds_write_b128 v220, {vr(208+4*i)} offset:{16*RSV + i*16}", 'vw')
        self.valu(L0[16:], bg=ALL, S=Sa)
        PH = (136, 56)
        pw = lambda j: [[('lg', f"ds_write_b128 v221, {vr(PH[j]+4*i)} offset:{j*16*RSP + i*16}", 'pw')] for i in range(5)]
        L1 = self.softmax_lines(PR + 20, 16, 56)
        self.valu(L1[:40], pw(0), 8, ALL, Sa)
        self.valu(L1[40:-20], bg=ALL, S=Sa)
        self.valu(L1[-20:], pw(1), 4)
        e.wait(lg_all=True); e("s_barrier")
        self.stamp(2)
        mf = []; reads = []; D0 = 168
        for s_ in range(4):
            b0 = 16 + s_ * 20; m0 = len(mf)
            for dt in range(2):
                for rd in range(2): reads.append([f"ds_read_b64_tr_b16 v[{b0+12+4*dt+2*rd}:{b0+13+4*dt+2*rd}], v223 offset:{(32*s_+16*rd)*RSV + dt*32}", m0 + dt, -1, -1])
            for ft in range(3):
                for rd in range(2): reads.append([f"ds_read_b64_tr_b16 v[{b0+4*ft+2*rd}:{b0+4*ft+2*rd+1}], v222 offset:{(32*s_+16*rd)*RSP + ft*32}", m0 + 2 * ft, -1, -1])
                for dt in range(2):
                    d = D0 + (ft * 2 + dt) * 4
                    mf.append(f"v_mfma_f32_16x16x32_bf16 {vr(d)}, {vr(b0+4*ft)}, {vr(b0+12+4*dt)}, {vr(d) if s_ else 0}")
        reads.sort(key=lambda r: r[1]); rp = 0
        for m in range(24):
            while rp < 40 and (len(e.lg) < 14 and (m == 0 or reads[rp][1] <= m + 8) or reads[rp][1] <= m): e.lgop(reads[rp][0], ('kv', reads[rp][1])); rp += 1
            e.wait(lg=[('kv', k) for k in range(m + 1)])
            e(mf[m])
            if c.kvb: self.bg_try(ALL, c.kvb)
        self.gelu_consts()
        e(f"""s_lshl_b32 s{sT4}, s{sMT}, 1
        s_lshr_b32 s{sT5}, s{sW}, 1
        s_add_u32 s{sT4}, s{sT4}, s{sT5}
        s_and_b32 s{sT5}, s{sW}, 1
        s_mul_i32 s{sT3}, s{sT4}, 74
        s_lshl_b32 s{sKW}, s{sHG}, 1
        s_add_u32 s{sT3}, s{sT3}, s{sKW}""")
        for ft in range(3):
            for dt in range(2):
                for i in range(4): e(self.tag_put(D0 + (ft * 2 + dt) * 4 + i))
                e.vmop(f"buffer_store_dwordx4 {vr(D0+(ft*2+dt)*4)}, v{241+2*dt+(ft==2)}, {srd(SWS)}, s{sT1} offen offset:{ft*1024} sc1", 'pst')
        self.stamp(3)
        if c.stamps: self.gelu_consts()
        e(f"""s_add_u32 s{sT3}, s{sT3}, 38
        s_lshl_b32 s{sT3}, s{sT3}, 12
        s_lshl_b32 s{sT5}, s{sT5}, 11
        s_add_u32 s{sT3}, s{sT3}, s{sT5}
        s_add_u32 s{sT3}, s{sT3}, {A2}
        s_lshl_b32 s{sKW}, s{sMT}, 4
        s_add_u32 s{sKW}, s{sKW}, s{sHG}
        s_lshl_b32 s{sKW}, s{sKW}, 7
        s_add_u32 s{sKW}, s{sKW}, {F4+1024}
        s_cmp_eq_u32 s{sW}, 0
        s_cselect_b32 s{sKW}, s{sKW}, {OOB}
        s_mul_i32 s32, s{sT2}, 240
        s_mul_i32 s{sT4}, s{sHG}, {FSZ}
        s_add_u32 s{sT1}, s32, s{sT4}
        s_add_u32 s{sT1}, s{sT1}, {FIN}
        s_lshl_b32 s{sT4}, s{sT4}, 4
        s_add_u32 s32, s32, s{sT4}
        s_add_u32 s32, s32, {PP}
        s_add_u32 s33, s32, {4*PSZ}
        s_add_u32 s34, s33, {4*PSZ}
        s_add_u32 s35, s34, {4*PSZ}""")
        L = []; hs = []
        for p in range(2):
            for j in range(2):
                O = 152 + 4 * ((2 * p + j) % 4)
                L += self.gelu_lines(96 + (4 * p + j) * 4, 96 + (4 * p + 2 + j) * 4, 136 + 8 * j, O)
                hs.append(('vm', f"buffer_store_dwordx4 {vr(O)}, v{6 if p == 0 else 240}, {srd(SWS)}, s{sT3} offen offset:{j*1024} sc1", 'hst'))
        RD = 116
        pld = [f"buffer_load_dwordx4 {vr(RD+4*i)}, v12, {srd(SWS)}, s{32+i} offen sc1" for i in range(4)]
        self.valu(L, bg=ALL if c.kgb else None, S=Sa)
        for l in pld: e.vmop(l, 'pld')
        self.poll4a_issue()
        self.emit_items(hs)
        pool = [[('v', r), 999] for r in list(range(168, 224, 4)) + list(range(136, 168, 4))]
        for _ in range(c.kb2): self.bg_try(ALL, -9999)
        self.stamp(4)
        def h_r2():
            red = [self.tag_strip(RD + i) for i in range(16)]
            red += [f"v_add_f32 v{RD+i}, v{RD+i}, v{RD+4+i}" for i in range(4)] + [f"v_add_f32 v{RD+8+i}, v{RD+8+i}, v{RD+12+i}" for i in range(4)] + [f"v_add_f32 v{RD+i}, v{RD+i}, v{RD+8+i}" for i in range(4)]
            for sw in ('32', '16'):
                red += [f"v_mov_b32 v{RD+4+i}, v{RD+i}" for i in range(4)] + [f"v_permlane{sw}_swap_b32 v{RD+i}, v{RD+4+i}" for i in range(4)] + [f"v_add_f32 v{RD+i}, v{RD+i}, v{RD+4+i}" for i in range(4)]
            red += [self.tag_put(RD + i) for i in range(4)]
            it = [('st', 14, 1), ('wvm', 'pld')] + [('x', l) for l in self.tag_check(pld, range(RD, RD + 16), 9)] + [('st', 5, 1)] + [('x', l) for l in red]
            it += [('vm', f"buffer_store_dwordx4 {vr(RD)}, v13, {srd(SWS)}, s{sT1} offen sc1", 'fst')]
            self.emit_items(it); pool.extend([[('v', r), 999] for r in range(RD, RD + 20, 4)])
        def h_f4():
            e.wait(vm='hst'); e("s_barrier"); e.vmop(self.flag_store(245, 246, f"s{sKW}"), 'f4st')
        h_r2()
        self.ph2_begin(pool)
        while len(self.Bpend) > c.kleft: self.bg_try(ALL, -9999)
        self.stamp(6)
        self.bias2()
        self.phase2({c.f4k: h_f4, c.p1: self.poll4b_issue, c.c1: self.poll4b_check})

    def kloop(self, mf, reads, nm, dma_stage, poison, name):
        e = self.e; c = self.c; back = []
        def mksync(st):
            def f(m):
                tg = [it[2] for g in back for it in (g[1] if g[0] == 'atomic' else g) if it[0] == 'vm']
                assert not (st == c.pks and 'packld' in tg) and not (st == c.pks + 3 and 'pkst' in tg) and not (st == 3 and 'misc' in tg) and ('S', st) not in tg
                e.wait(vm=[('S', st)] + (['pkst'] if st == c.pks + 3 else []) + (['misc'] if st == 3 else []) + (['packld'] if st == c.pks else []), lg_all=True); e("s_barrier")
                self.stamp(st + 1, 2)
                if st < 3: self.stamp(7 + st, 3)
                if st == 2: self.pstamp_flush()
                out = []
                if st == 0 and c.n1 < 12:
                    back.extend(dma_stage(1)[c.n1:])
                    back.append(('atomic', self.record(lambda: self.small_dma(SM, 6, "s36", None, 50, 'misc', "s_mov_b32 m0, s37"))))
                if st + 2 < 10: back.extend(dma_stage(st + 2))
                if st == c.pkl and c.n1 < 12: back.extend(self.pack_loads())
                if st == c.pks: back.extend(self.pack_stores())
                need = max([k + 1 for k, g in enumerate(back) if g[0] != 'atomic' and g[-1][2] == ('S', st + 1)], default=0)
                n = min(len(back), max(c.quota, need)) if st < 7 else len(back)
                take = back[:n]; del back[:n]
                if take:
                    pc = self.paced([g[1] if g[0] == 'atomic' else g for g in take], m, nm - c.dtail)
                    for f, g in zip(pc, take):
                        if g[0] == 'atomic': f['atomic'] = 1
                    out += pc
                if c.touch == 4: out += [dict(at=m + nm - c.dtail + 1, chain=1, ins=self.touch3(p_)) for p_ in range(c.tp0, 3) if c.tst[p_] == st]
                if st in c.cpf: out.append(dict(at=m + nm - c.dtail + 2, ins=self.code_touch('L_QH' if name == 'KV' else 'L_end')))
                if st == c.pks: out += self.pack_fill(m, nm)
                if st == c.pks + 3: out.append(dict(at=m + 1, ins=[('vm', self.flag_store(245, 246, f"s{sF1}"), 'f1st')]))
                if st == 3: out += [dict(at=m + 3 + 5 * k, ins=g) for k, g in enumerate(self.wphi_reads(254))]
                if st == c.f1s - 1: out += [dict(at=m + nm - c.dtail + 2 * k, chain=1, ins=g) for k, g in enumerate(self.f1_issue())]
                if st == c.f1s:
                    chk = [dict(at=m + c.f1c + 2 * k, ins=[it]) for k, it in enumerate(self.f1_check())]
                    out += chk
                    if c.bt: out += [dict(at=m + c.f1c + 26 + c.btsp * k, ins=g) for k, g in enumerate(self.btouch())]
                if st == 8:
                    if poison: out += self.paced(poison, m, 30)
                    self.bg0 = max(m + c.bgs, (m + c.f1c + 28) if c.f1s == 8 else 0)
                return out
            return f
        self.bg0 = 9999; self.wphi_addr(254)
        self.stream(mf, reads, [], {st: mksync(st) for st in range(10)}, name=name, bg=lambda m: (lambda u: m >= self.bg0 and u < 51))
        self.stamp(1); self.stamp(11, 2)
        self.typ = name
        if c.dly == (1 if name == 'KV' else 2): e('s_sleep 16')
        self.ph2_pre()

    def ph2_pre(self):
        e = self.e
        mk_srd(e, SM, pB2, 1280); mk_srd(e, SPK, pOUT, 2048 * 1280)
        e(f"""s_mul_i32 s{sM0}, s{sNB}, 160
        s_and_b32 s{sM0+1}, s{sNB}, 1
        s_lshl_b32 s{sM0+2}, s{sM0+1}, 5
        s_add_u32 s{sM0+2}, s{sM0+2}, s{sM0}
        s_xor_b32 s{sM0+1}, s{sM0+1}, 1
        s_lshl_b32 s{sM0+1}, s{sM0+1}, 7
        s_add_u32 s{sM0+1}, s{sM0+1}, s{sM0}
        s_min_u32 s{sM0+3}, s{sW}, 1
        s_mul_i32 s{sM0+3}, s{sM0+3}, 1280
        s_sub_u32 s{SM+2}, 1280, s{sM0+3}
        s_lshr_b32 s{sM0+5}, s{sRB}, 1
        s_lshl_b32 s{sM0+3}, s{sM0+5}, 11
        s_add_u32 s{sM0+3}, s{sM0+3}, {F4}
        s_add_u32 s{sM0+4}, s{sM0+3}, 1024
        v_and_b32 v235, 7, v0
        v_lshlrev_b32 v235, 7, v235""")
        e("v_lshlrev_b32 v7, 4, v2\nv_lshlrev_b32 v8, 3, v2")
        e.vmop(f"buffer_load_dwordx4 v[224:227], v7, {srd(SM)}, s{sM0+2} offen", 'b2')
        e.vmop(f"buffer_load_dwordx4 v[228:231], v7, {srd(SM)}, s{sM0+2} offen offset:64", 'b2')
        e.vmop(f"buffer_load_dwordx2 v[232:233], v8, {srd(SM)}, s{sM0+1} offen", 'b2')
    def poll4a_issue(self): self.e.vmop(self.poll_issue(235, 252, 2, None, f"s{sM0+3}"), 'p4a')

    def poll4b_issue(self): self.e.vmop(self.poll_issue(235, 252, 2, None, f"s{sM0+4}"), 'p4b')
    def poll4b_check(self):
        e = self.e
        self.stamp(10)
        e.wait(vm='p4b')
        for l in self.poll_check([(235, 252, 2, f"s{sM0+4}")]): e(l)
        self.stamp(11)
        self.gate[1] = True; self.g_loads()
        for _ in range(self.c.burst): self.try_issue(self.m, True)
    def g_loads(self):
        e = self.e
        e(f"s_lshl_b32 s{sT0}, s{sRB}, 10\ns_add_u32 s{sT0}, s{sT0}, {GB}\nv_lshlrev_b32 v7, 4, v1")
        for jj in range(4):
            e(f"v_subrev_u32 v8, v6, v{236+jj}\nv_lshrrev_b32 v8, 2, v8\nv_add_u32 v8, v8, v7")
            e.vmop(f"buffer_load_dword v{241+jj}, v8, {srd(SWS)}, s{sT0} offen sc1", 'g')
    def bias2(self):
        e = self.e; BI = 96
        e.wait(vm='b2')
        for t in range(5):
            for h in range(2):
                s_ = 224 + 2 * t + h
                e(f"v_lshlrev_b32 v{BI+4*t+2*h}, 16, v{s_}\nv_and_b32 v{BI+4*t+2*h+1}, 0xffff0000, v{s_}")

    def ph2_begin(self, pool):
        e = self.e; c = self.c
        e.wait(vm='p4a')
        for l in self.poll_check([(235, 252, 2, f"s{sM0+3}")]): e(l)
        self.pool = pool; self.busy = []; self.Aloc = {}; self.Bl = dict(self.Bloc); self.Acur = {}
        groups = [(0, 1), (2, 3), (4, 5), (6, 7), (8, 9), (10, 11), (12, 13), (14, 15), (16, 17, 18)]
        self.mf = [(i, t, j) for g in groups for t in range(5) for j in range(4) for i in g]
        fA, lA, fB, lB = {}, {}, {}, {}
        for m, (i, t, j) in enumerate(self.mf):
            fA.setdefault((i, j), m); lA[(i, j)] = m; fB.setdefault((i, t), m); lB[(i, t)] = m
        self.lA, self.lB = lA, lB
        w = [('A', k, fA[k] if k[0] < 14 else (280 if k[0] < 16 else 320) - c.vlead - 1, lA[k]) for k in fA]
        w += [('S', k, fB[k], lB[k]) for k in fB if self.Bl[k] and self.Bl[k][0] == 'l']
        w += [('B', k, fB[k], lB[k]) for k in fB if self.Bl[k] is None]
        self.fB = fB
        self.work = sorted(w, key=lambda x: (x[2] // 40 * 40 + x[1][0] % 2 * 4 + x[1][1]) if (x[0] == 'A' and c.aord and x[1][0] < 14) else x[2]); self.gate = {0: True, 1: False, 2: False, 3: False}; self.Atxt = {}; self.lastiss = -99; self.m = 0
        for _ in range(c.a0): self.try_issue(0, True)

    def try_issue(self, m, force=False, nos=False):
        e = self.e; c = self.c; pool = self.pool
        cls = lambda i: 0 if i < 10 else (1 if i < 14 else 2 if i < 16 else 3)
        for w in self.work:
            kind, k, dl, last = w
            if kind == 'A' and not self.gate[cls(k[0])]: continue
            if kind == 'S' and (nos or dl - m > 16 or self.Border.index(k) in self.Bpend): continue
            if kind != 'S' and not force and dl - m >= 12 and e.t - e.tvm < (c.S2 if dl - m >= c.urg else c.S3): continue
            if kind == 'P':
                self.Bpend.remove(k); self.emit_items(self.B_take([k])[0]); self.work.remove(w); return True
            ok = [p for p in pool if p[1] > last and p not in self.busy and (p[0][0] == 'v' or kind != 'A' or k[0] < 14)]
            if not (kind == 'A' and k[0] >= 14): ok.sort(key=lambda p: p[0][0] == 'v' and m > 150)
            if len(ok) < (1 if dl - m <= 40 else 4 if kind == 'A' else 7): continue
            p = ok[0]; pool.remove(p); loc = p[0]; self.until[loc] = p[1]
            if kind == 'A':
                i, j = k; sr = sAT if i % 2 == 0 else sAT2
                if self.Acur.get(sr) != i:
                    e(self.soff(sr, i, 'A')); self.Acur[sr] = i
                e.vmop(f"buffer_load_dwordx4 {R(loc)}, v{236+j}, {srd(SWS)}, s{sB if c.xA == 1 and i < 14 else 41 if c.xA == 2 else sr} offen sc1", ('A', k)); self.Aloc[k] = loc
                self.Atxt[k] = self.soff(sT1, i, 'A').split("\n") + [ f"buffer_load_dwordx4 {R(loc)}, v{236+j}, {srd(SWS)}, s{sT1} offen sc1"]
            elif kind == 'B':
                self.emit_items(self.B_items(k, loc)); self.Bl[k] = loc
            else:
                e.wait(vm=('B', k))
                e.lgop(f"ds_read_b128 {R(loc)}, v234 offset:{self.Bl[k][1]*1024}", ('S', k)); self.Bl[k] = loc
            if kind != 'S': self.lastiss = m
            if c.verbose > 1: print(f'{kind}{k}@{m}->{dl}', end=' ')
            self.work.remove(w); return True
        return False

    def phase2(self, hooks):
        e = self.e; c = self.c
        ACC = 16; BI = 96; pool = self.pool; mf = self.mf; Bl = self.Bl; Aloc = self.Aloc
        mtrans = min(m for m, x in enumerate(mf) if x[0] >= 14)
        if c.verbose: print("B loads left for phase 2:", len(self.Bpend))
        hooks = {k: v for k, v in hooks.items() if k >= 0}
        for u in self.Bpend:
            k = self.Border[u]; self.work.append(('P', u, self.fB[k] - (20 if self.Bloc[k][0] == 'l' else 0), 0))
        self.work.sort(key=lambda x: (x[2] // 40 * 40 + x[1][0] % 2 * 4 + x[1][1]) if (x[0] == 'A' and c.aord and x[1][0] < 14) else x[2])
        e(f"s_add_u32 s{sT0}, s88, {L_BL}\nv_add_u32 v234, s{sT0}, v6")
        pool += [[('v', r), 999] for r in (224, 228)]
        if c.dly == (3 if self.typ == 'KV' else 4): e('s_sleep 16')
        seen = set(); vchk = {280: (14, 15), 320: (16, 17, 18)}
        aq = []
        lastH = {}; firstO = {}; lastO = {}
        for m, (i, t, j) in enumerate(mf):
            if i < 14: lastH[(j, t)] = m
            else: firstO.setdefault((j, t), m); lastO[(j, t)] = m
        g0 = min(lastH.values()) - 10
        aq.append([g0, g0 + 4, ('wvm', 'g')])
        for jj in range(4): aq += [[g0, g0 + 8, ('x', self.tag_strip(241 + jj))]]
        for jj in range(4): aq += [[g0, g0 + 12, ('x', f"v_sub_f32 v{241+jj}, 1.0, v{241+jj}")]]
        for k in sorted(lastH, key=lambda k: lastH[k]):
            jj, tt = k; d = ACC + (jj * 5 + tt) * 4
            for q in range(4): aq.append([lastH[k] + 3, firstO[k] - 2, ('x', f"v_mul_f32 v{d+q}, v{241+jj}, v{d+q}")])
        adr = []
        for jj in range(1, 4):
            adr += [f"s_add_u32 s{sT0}, s{sW}, {jj}", f"s_and_b32 s{sT0}, s{sT0}, 3", f"s_mul_i32 s{sT0}, s{sT0}, 15360",
                    f"s_add_u32 s{sT0}, s{sT0}, {L_RED + (jj-1)*5120}", f"v_add_u32 v{8+jj}, s{sT0}, v6"]
        adr += [l.strip() for l in f"""s_mul_i32 s{sT0}, s{sW}, 15360
        s_add_u32 s{sT0}, s{sT0}, {L_RED}
        v_add_u32 v8, s{sT0}, v6
        s_lshl_b32 s{sT0}, s{sRB}, 2
        s_add_u32 s{sT0}, s{sT0}, s{sW}
        s_mul_i32 s{sT0}, s{sT0}, {16*1280}
        s_add_u32 s{sT3}, s{sT0}, s{sM0+2}
        s_add_u32 s{sT2}, s{sT0}, s{sM0+1}
        v_mul_u32_u24 v12, 1280, v1
        v_lshl_add_u32 v13, v2, 3, v12
        v_lshl_add_u32 v12, v2, 4, v12""".split("\n")]
        for l in adr: aq.append([c.adr0, 325, ('x', l)])
        for k in sorted(lastO, key=lambda k: lastO[k]):
            jj, tt = k
            if jj: aq.append([lastO[k] + 3, 999, ('lg', f"ds_write_b128 v{8+jj}, {vr(ACC+(jj*5+tt)*4)} offset:{tt*1024}", 'rw')])
        self.aq = aq
        for m, (i, t, j) in enumerate(mf):
            self.m = m
            if m == mtrans: self.stamp(7)
            assert (i, j) in Aloc and Bl[(i, t)] and Bl[(i, t)][0] != 'l', (m, i, t, j)
            assert not any(a[1] < m for a in aq), (m, aq[0])
            e.wait(vm=[('A', (i, j)), ('B', (i, t))], lg=('S', (i, t)))
            d = ACC + (j * 5 + t) * 4
            cc = vr(d) if (j, t) in seen else vr(BI + 4 * t); seen.add((j, t))
            e(f"v_mfma_f32_16x16x32_bf16 {vr(d)}, {R(Bl[(i, t)])}, {R(Aloc[(i, j)])}, {cc}")
            k0 = len(e.ins)
            for loc, last in ((Aloc[(i, j)], self.lA[(i, j)]), (Bl[(i, t)], self.lB[(i, t)])):
                if last == m: pool.append([loc, self.until.get(loc, 999) if self.until.get(loc, 999) > m else 999])
            if m == 40: pool.extend([[('v', BI + 4 * k), 999] for k in range(5)])
            if m == 200 and c.dly == (5 if self.typ == 'KV' else 6): e('s_sleep 16')
            if m == c.o1: self.gate[2] = True
            if m == c.o2: self.gate[3] = True
            if m + 1 + c.vlead in vchk:
                mv = m + 1 + c.vlead; ks = [(ii, jj) for ii in vchk[mv] for jj in range(4)]
                assert all(k in Aloc for k in ks), (m, ks)
                vq = [('wvm', [('A', k) for k in ks])] + [('x', l) for l in self.valid_check(sum([self.Atxt[k] for k in ks], []), [Aloc[k][1] + q for k in ks for q in range(4)], 7)]
                if mv == 280: vq = [('st', 12, 1)] + vq + [('st', 13, 1), ('open',)]
                aq[:0] = [[m, mv - 1, it] for it in vq]
            if m in hooks: hooks[m]()
            self.try_issue(m)
            while any(w[2] - m < 4 for w in self.work) and self.try_issue(m): pass
            while True:
                av = [a for a in aq if a[0] <= m]
                if not av: break
                hurry = any(sum(1 for b in aq if b[1] <= a[1]) > 2 * (a[1] - m) for a in aq if a[1] < 999)
                a = min(av, key=lambda a: a[1])
                if len(e.ins) - k0 >= 2 and not hurry: break
                if a[2][0] == 'lg' and any(x.kind in ('dsw', 'dsr', 'vload', 'dma') for x in e.ins[k0:]): break
                aq.remove(a)
                if a[2][0] == 'open':
                    self.gate[3] = True
                    for _ in range(c.burst3): self.try_issue(m, True)
                elif a[2][0] == 'call': a[2][1]()
                else: self.emit_items([a[2]])
        assert not self.work, self.work
        self.stamp(8)
        for a in aq: self.emit_items([a[2]])
        e.wait(lg_all=True); e("s_barrier")
        for t in range(5):
            for s_ in range(3): e.lgop(f"ds_read_b128 {vr(116+(t*3+s_)*4)}, v8 offset:{s_*5120+t*1024}", ('rr', t))
        for t in range(5):
            e.wait(lg=('rr', t)); d = ACC + t * 4; r = 116 + t * 12
            e(f"""v_pk_add_f32 v[{d}:{d+1}], v[{d}:{d+1}], v[{r}:{r+1}]
            v_pk_add_f32 v[{d+2}:{d+3}], v[{d+2}:{d+3}], v[{r+2}:{r+3}]
            v_pk_add_f32 v[{r+4}:{r+5}], v[{r+4}:{r+5}], v[{r+8}:{r+9}]
            v_pk_add_f32 v[{r+6}:{r+7}], v[{r+6}:{r+7}], v[{r+10}:{r+11}]
            v_pk_add_f32 v[{d}:{d+1}], v[{d}:{d+1}], v[{r+4}:{r+5}]
            v_pk_add_f32 v[{d+2}:{d+3}], v[{d+2}:{d+3}], v[{r+6}:{r+7}]
            v_cvt_pk_bf16_f32 v{96+2*t}, v{d}, v{d+1}
            v_cvt_pk_bf16_f32 v{97+2*t}, v{d+2}, v{d+3}""")
            if t == 1: e.vmop(f"buffer_store_dwordx4 v[96:99], v12, {srd(SPK)}, s{sT3} offen {c.osc}", 'o')
            if t == 3: e.vmop(f"buffer_store_dwordx4 v[100:103], v12, {srd(SPK)}, s{sT3} offen offset:64 {c.osc}", 'o')
            if t == 4: e.vmop(f"buffer_store_dwordx2 v[104:105], v13, {srd(SPK)}, s{sT2} offen {c.osc}", 'o')
        self.stamp(9)
        e("s_endpgm")

    def build(self):
        e = self.e
        self.prologue()
        st = (list(e.vm), list(e.lg))
        self.until = {}
        self.prog_KV()
        e.vm, e.lg = list(st[0]), list(st[1])
        self.until = {}
        self.prog_QH()
        e("\n".join(self.tail))
        e("L_end:\ns_endpgm")
        body = e.finish()
        hdr = open('cdna_kernels/' + NAME + '.s.ref').read().split('; Override launch')[0]
        K = NAME + "_kernel"
        out = hdr + "; Generated by a hand-written Python generator (persistent fused kernel; see comments in the generator).\n"
        out += "; @launch grid=(256,1,1) block=(256,1,1) lds=163840\n"
        out += f'.amdgcn_target "amdgcn-amd-amdhsa--gfx950"\n.text\n.globl {K}\n.p2align 8\n.type {K},@function\n{K}:\n' + body
        out += f""".fill 64, 4, 0xbf800000
.section .rodata,"a"
.p2align 6
.amdhsa_kernel {K}
  .amdhsa_next_free_vgpr 512
  .amdhsa_next_free_sgpr 102
  .amdhsa_accum_offset 256
  .amdhsa_group_segment_fixed_size 0
  .amdhsa_kernarg_size 104
  .amdhsa_user_sgpr_count 2
  .amdhsa_user_sgpr_kernarg_segment_ptr 1
  .amdhsa_system_sgpr_workgroup_id_x 1
.end_amdhsa_kernel
"""
        return out

for k_, v_ in dict(rot=3, par=0, dly=0, kvb=0, VC=64, cnt=0, cpf=(), aord=1, nochk=0, skip=0, fast=1, n1=0, quota=28, pkl=0, tp0=1, tst=(0, 0, 1), sp1=24, tlb=0, tlb2=0, pks=3, pke=0, f1s=8, bt=0, btsp=20, bgs=30, qleft=0, kpre=180, kord=0, kgb=1, tmask=7, wbl=0, exit_at=-1, only=0, dstamp=0, xsc='', wsc='', psc='nt', pss='sc1', xA=0, S=48, S2=32, urg=50, S3=0, kb3=8, xB=0, mix=0, perm=0, kf1=60, pe=20, pe2=20, dtail=4, qb0=14, qb1=22, se=10, a0=14, ap=4, osc='sc1 nt', touch=1, kvring=3, f1c=24,
                   f4at=40, pa=100, pb=144, p3=65, c3=95, r1=30, r2=70, rspan=24, kbeg=0, kb1=20, kpa=60, mo=119, p1q=125, c1q=150, Sa=64, kb2=6, kleft=99, Sg=64, o2=226, o1=210, vlead=14, adr0=205, burst3=12, sleep2=3, f4k=16, p1=110, c1=140, burst=4).items():
    setattr(Cfg, k_, v_)

def generate(**kw):
    c = Cfg()
    for k, v in kw.items(): setattr(c, k, v)
    g = Gen(c); g.e.VC = c.VC; t = g.build()
    return t, g

if __name__ == "__main__":
    kw = {}
    for a_ in sys.argv[2:]:
        k, v = a_.split('='); kw[k] = tuple(map(int, v.split(','))) if ',' in v else int(v, 0) if v.lstrip('-')[0].isdigit() else v.replace('+', ' ')
    t, g = generate(**kw)
    open(sys.argv[1], 'w').write(t)
    print("instructions:", len(g.e.ins), "nops added:", g.e.nop_added)
```

```python
import sys, math
from emit import Emit
NAME = "gated_mix__linear_kernel_hedgehog__dense_activation_gelu__prompt"

TAG = 0x0
F1 = 0x1000
F2 = 0x2000; F3 = 0x6000; F4 = 0xa000; F5 = 0x12000
STAMP = 0x1000000
GB = 0x280000
PP = 0x40000; PSZ = 15360
FIN = 0x240000; FSZ = 15360
PB = 0x300000
A2 = 0x600000
OOB = 0x7ff00000

K1 = 1024
QH_ST = 46 * K1; KV_ST = 44 * K1
MISC = 154 * K1
L_WPHI = MISC; L_GATE = MISC + 3200; L_BIASKV = MISC + 4480; L_BIASQH = MISC + 3200
L_PACK = 138 * K1
WH0 = 114 * K1; WH5 = 74 * K1
L_PHI = 0; RSP = 352; L_V = 128 * RSP; RSV = 224
L_BL = 72 * K1
NL = 18
L_RED = 0
L_FIN = 64 * K1

sW = 3
SX, SQ, S1, SWS, SPK, SM = 4, 8, 12, 16, 20, 24
pX, pQKV, pPHI, pWO, pBX, pW1, pB1, pW2, pB2, pGATE, pOUT, pDBG, pWS = [32 + 2 * i for i in range(13)]
sTAG = 58
sMT, sHG, sRB, sNB = 60, 61, 62, 63
sE = 64
sT0, sT1, sT2, sT3, sT4, sT5 = 74, 75, 76, 77, 78, 79
sM0 = 80
sBT, sAT, sB9, sA9, sAT2 = 100, 101, 86, 87, 55
sAo, sBo, sA8, sB8 = 44, 45, 56, 57
sKW, sK1 = 89, 90
sF1 = 91
sPKD = 92
sA, sB = 96, 97
sC0, sC1 = 98, 99
sP0 = 28

PKA = 200
TB = 10; TBM = (1 << TB) - 1; sTB = 58
AW = 204
def srd(r): return f"s[{r}:{r+3}]"
def vr(r, n=4): return f"v[{r}:{r+n-1}]" if n > 1 else f"v{r}"
def ar(r, n=4): return f"a[{r}:{r+n-1}]"
def R(loc, n=4): return (vr if loc[0] == 'v' else ar)(loc[1], n)
def fl(x):
    import struct
    return hex(struct.unpack('<I', struct.pack('<f', x))[0])

class Cfg:
    rot = 1; map2 = 1; stamps = 0; LA = 12; spin = 200000; codepf = 1; lag = 2; th1 = 2; th2 = 4; minlead = 4; verbose = 0; sleep = 3

sKA, sKB = 0, 1
def mk_srd(e, r, p, nbytes):
    e(f"s_mov_b32 s{r}, s{p}\ns_and_b32 s{r+1}, s{p+1}, 0xffff\ns_mov_b32 s{r+2}, {nbytes}\ns_mov_b32 s{r+3}, 0x20000")

class Gen:
    def __init__(self, cfg):
        self.c = cfg; self.e = Emit(); self.tail = []; self.uid = 0; self.nstamp = 0
    def record(self, fn):
        real = self.e
        class Rec:
            def __init__(r): r.items = []; r.lg = []; r.vm = []
            def __call__(r, t):
                for l in t.strip("\n").split("\n"):
                    if l.strip(): r.items.append(('x', l.strip()))
            def vmop(r, t, tag=None): r.items.append(('vm', t, tag))
            def lgop(r, t, tag=None): r.items.append(('lg', t, tag))
        rec = Rec(); self.e = rec
        try: fn()
        finally: self.e = real
        return rec.items
    def cnt(self):
        if not self.c.cnt: return [], []
        self.ncnt = getattr(self, 'ncnt', 0) + 1; k = self.ncnt - 1
        post = ["s_load_dwordx2 s[46:47], s[40:41], 88", f"s_sub_u32 s54, {self.c.spin}, s54", "s_lshl_b32 s54, s54, 12", "s_add_u32 s54, s54, 1", "s_waitcnt lgkmcnt(0)",
                "v_mov_b32 v14, s54", "v_mov_b32 v15, 0", "s_mov_b64 exec, 1", f"global_atomic_add v15, v14, s[46:47] offset:{k*4}", "s_mov_b64 exec, -1"]
        return [], post
    def lab(self, p):
        self.uid += 1; return f"L_{p}_{self.uid}"
    def stamp(self, i, grp=1):
        if self.c.dstamp and grp == 1:
            slot = self.dmap.get(i)
            if slot is None: return
            e = self.e
            e(f"s_memrealtime s[{sC0}:{sC1}]\ns_load_dwordx2 s[46:47], s[40:41], 88\ns_waitcnt lgkmcnt(0)\nv_mov_b32 v14, s{sC0}\nv_mov_b32 v15, 0"); e.lg = []
            e("s_cmp_eq_u32 s3, 0\ns_cselect_b64 exec, 1, 0")
            L = self.lab('ds'); e(f"s_cbranch_execz {L}")
            e(f"global_atomic_umax v15, v14, s[46:47] offset:{slot*4}")
            if i == 0: e(f"v_mov_b32 v14, s54\nglobal_atomic_umax v15, v14, s[46:47] offset:4\nv_not_b32 v14, v14\nglobal_atomic_umax v15, v14, s[46:47] offset:0")
            e(f"{L}:\ns_mov_b64 exec, -1")
            return
        if not self.c.stamps or (i and self.c.stamps != grp): return
        if self.c.only and i not in (0, self.c.only): return
        e = self.e
        e(f"s_memrealtime s[{sC0}:{sC1}]\ns_memtime s[46:47]\ns_waitcnt lgkmcnt(0)"); e.lg = []
        e(f"v_mov_b32 v14, s{sC0}\nv_mov_b32 v15, s46")
        e(f"s_lshl_b32 s{sC0}, s2, 2\ns_add_u32 s{sC0}, s{sC0}, s{sW}\ns_lshl_b32 s{sC0}, s{sC0}, 7\ns_add_u32 s{sC0}, s{sC0}, {STAMP}")
        e.vmop(f"buffer_store_dwordx2 v[14:15], v245, {srd(SWS)}, s{sC0} offen offset:{i*8}", 'stamp')
        if self.c.exit_at == i and grp == 1: e("s_endpgm")
        if i == 0:
            e(f"v_mov_b32 v14, s54\nv_mov_b32 v15, s40")
            e.vmop(f"buffer_store_dwordx2 v[14:15], v245, {srd(SWS)}, s{sC0} offen offset:{15*8}", 'stamp')

    def pstamp(self, i):
        if self.c.stamps == 3: self.e(f"s_memtime s[100:101]\ns_waitcnt lgkmcnt(0)\nv_mov_b32 v{(248,249,250,251,235)[i]}, s100")
    def pstamp_flush(self):
        if self.c.stamps != 3: return
        e = self.e
        e(f"s_lshl_b32 s{sC0}, s2, 2\ns_add_u32 s{sC0}, s{sC0}, s{sW}\ns_lshl_b32 s{sC0}, s{sC0}, 7\ns_add_u32 s{sC0}, s{sC0}, {STAMP}")
        for i in range(5): e.vmop(f"buffer_store_dword v{(248,249,250,251,235)[i]}, v245, {srd(SWS)}, s{sC0} offen offset:{(2+i)*8+4} sc1", 'stamp')
    def dump(self, name, regs):
        if getattr(self.c, 'dbg', None) != name: return
        e = self.e
        e(f"s_lshl_b32 s{sBT}, s2, 2\ns_add_u32 s{sBT}, s{sBT}, s{sW}\ns_lshl_b32 s{sBT}, s{sBT}, 14\ns_add_u32 s{sBT}, s{sBT}, 0x2000000\nv_lshlrev_b32 v7, 2, v0")
        for i, r in enumerate(regs):
            e.vmop(f"buffer_store_dword v{r}, v7, {srd(SWS)}, s{sBT} offen offset:{(i%16)*256}", 'dbg')
            if i % 16 == 15: e(f"s_add_u32 s{sBT}, s{sBT}, 4096")
        e.wait(vm='dbg'); self.Bcur = None

    def poll_issue(self, vaddr, vdst, n, tag, soff="0"):
        suf = {2: 'dwordx2', 4: 'dwordx4'}[n]
        return f"buffer_load_{suf} {vr(vdst, n)}, v{vaddr}, {srd(SWS)}, {soff} offen sc1"
    def poll_check(self, loads):
        Ls, Lb = self.lab('slow'), self.lab('back')
        cmps = []; ors = []; k = 0
        prs = ['vcc', 's[28:29]', 's[30:31]', 's[46:47]']
        for (va, vd, n, so) in loads:
            for h in range(n // 2):
                cmps.append(f"v_cmp_ne_u64 {prs[k]}, s[{sTAG}:{sTAG+1}], v[{vd+2*h}:{vd+2*h+1}]")
                if k: ors.append(f"s_or_b64 vcc, vcc, {prs[k]}")
                k += 1
        cmps = cmps[::-1] if False else cmps
        fast = cmps + ors + [f"s_cbranch_vccnz {Ls}\n{Lb}:" if not (self.c.nochk & 1) else f"{Lb}:"]
        t = [f"{Ls}:", f"s_mov_b32 s54, {self.c.spin}", f"{Ls}_l:"]
        if self.c.sleep: t.append(f"s_sleep {self.c.sleep}")
        for (va, vd, n, so) in loads: t.append(self.poll_issue(va, vd, n, None, so))
        t += ["s_waitcnt vmcnt(0)"] + cmps + ors
        t += ["s_sub_u32 s54, s54, 1", f"s_cbranch_vccz {Ls}_x", "s_cmp_lg_u32 s54, 0", f"s_cbranch_scc1 {Ls}_l", f"{Ls}_x:"] + self.cnt()[1] + ["s_nop 4", f"s_branch {Lb}"]
        self.tail += t
        return fast
    def tag_check(self, reload, regs, acc):
        Ls, Lb = self.lab('slow'), self.lab('back')
        regs = list(regs); L = [f"v_xor_b32 v{acc}, s{sTB}, v{regs[0]}"]
        for r in regs[1:]: L.append(f"v_bitop3_b32 v{acc}, v{r}, s{sTB}, v{acc} bitop3:0xbe")
        L += [f"v_and_b32 v{acc}, {TBM}, v{acc}", f"v_cmp_ne_u32 vcc, 0, v{acc}"]
        t = [f"{Ls}:", f"s_mov_b32 s54, {self.c.spin}", f"{Ls}_l:"]
        if self.c.sleep: t.append(f"s_sleep {self.c.sleep2}")
        t += list(reload) + ["s_waitcnt vmcnt(0)"] + L
        t += ["s_sub_u32 s54, s54, 1", f"s_cbranch_vccz {Ls}_x", "s_cmp_lg_u32 s54, 0", f"s_cbranch_scc1 {Ls}_l", f"{Ls}_x:"] + self.cnt()[1] + ["s_nop 4", f"s_branch {Lb}"]
        self.tail += t
        return L + [f"s_cbranch_vccnz {Ls}\n{Lb}:" if not (self.c.nochk & 2) else f"{Lb}:"]
    def tag_put(self, r, src=None): return f"v_bfi_b32 v{r}, s42, v246, v{r if src is None else src}"
    def tag_strip(self, r): return f"v_and_b32 v{r}, {hex(0xffffffff ^ TBM)}, v{r}"
    def valid_check(self, reload, regs, acc):
        Ls, Lb = self.lab('slow'), self.lab('back')
        regs = list(regs); L = [f"v_max3_u32 v{acc}, v{regs[0]}, v{regs[1]}, v{regs[2 if len(regs) > 2 else 1]}"]
        r = regs[3:]
        for i in range(0, len(r), 2): L.append(f"v_max3_u32 v{acc}, v{acc}, v{r[i]}, v{r[min(i+1, len(r)-1)]}")
        L.append(f"v_cmp_eq_u32 vcc, -1, v{acc}")
        t = [f"{Ls}:", f"s_mov_b32 s54, {self.c.spin}", f"{Ls}_l:"]
        if self.c.sleep: t.append(f"s_sleep {self.c.sleep2}")
        t += list(reload) + ["s_waitcnt vmcnt(0)"] + L
        t += ["s_sub_u32 s54, s54, 1", f"s_cbranch_vccz {Ls}_x", "s_cmp_lg_u32 s54, 0", f"s_cbranch_scc1 {Ls}_l", f"{Ls}_x:"] + self.cnt()[1] + ["s_nop 4", f"s_branch {Lb}"]
        self.tail += t
        return L + [f"s_cbranch_vccnz {Ls}\n{Lb}:" if not (self.c.nochk & 4) else f"{Lb}:"]
    def flag_store(self, vaddr, vtag, soff="0"):
        return f"buffer_store_dwordx2 {vr(vtag, 2)}, v{vaddr}, {srd(SWS)}, {soff} offen sc1"

    def stream(self, mf, reads, fill, syncs=None, LA=None, name='', bg=None):
        e = self.e; LA = LA or self.c.LA
        reads = sorted(reads, key=lambda r: r[1]); rp = 0; synced = -1 if syncs else 99
        fq = sorted(fill, key=lambda f: f['at'])
        self.sid = getattr(self, 'sid', 0) + 1; sid = self.sid
        start = len(e.ins)
        def add_fill(items):
            lo = max([f['at'] for f in fq if f.get('chain')], default=-99)
            for f in items:
                if f.get('chain'): f['at'] = lo = max(f['at'], lo)
            fq.extend(items); fq.sort(key=lambda f: f['at'])
        def rd():
            nonlocal rp
            e.lgop(reads[rp][0], ('rd', sid, rp)); rp += 1
        if syncs: add_fill(syncs[0](0)); synced = 0
        while rp < len(reads) and reads[rp][1] < 8 and reads[rp][2] <= synced: rd()
        last_read = -99
        dl_of = {('rd', sid, i): r[1] for i, r in enumerate(reads)}
        def due(m): return [t for t in e.lg if t in dl_of and dl_of[t] <= m]
        ismem = lambda it: it[0] in ('vm', 'lg')
        for m in range(len(mf)):
            d = due(m)
            if d: e.wait(lg=d)
            e(mf[m])
            can = lambda: rp < len(reads) and reads[rp][2] <= synced and reads[rp][3] <= m and len(e.lg) < 15
            lead = lambda: reads[rp][1] - m
            if syncs and rp < len(reads) and reads[rp][2] > synced and m - last_read >= self.c.lag and lead() <= LA:
                synced = reads[rp][2]
                assert not any(it[0] == 'vm' and it[2] == ('S', synced) for f in fq for it in f['ins'])
                add_fill(syncs[synced](m + 1))
                if can(): rd(); last_read = m
                continue
            w = 1 if due(m + 1) else 0
            n = w; mem = 0
            if fq and fq[0]['at'] <= m:
                f = fq[0]
                if f.get('atomic'):
                    self.emit_items(f['ins']); n += len(f['ins']); mem += sum(map(ismem, f['ins'])); fq.pop(0)
                elif ismem(f['ins'][0]):
                    self.emit_items([f['ins'].pop(0)]); n += 1; mem += 1
                    if not f['ins']: fq.pop(0)
            if bg and mem == 0:
                k0 = len(e.ins)
                if self.bg_try(bg(m)): n += len(e.ins) - k0; mem += 1
            if can() and lead() <= LA and (mem == 0 or (lead() <= LA - self.c.th1 and not w)):
                rd(); n += 1; mem += 1; last_read = m
            if can() and mem == 1 and not w and lead() <= LA - self.c.th2:
                rd(); n += 1; mem += 1
            while can() and lead() <= self.c.minlead: rd(); n += 1; mem += 1; last_read = m
            while (n < 2 or (fq and fq[0]['at'] <= m - 2 and n < 3)) and fq and fq[0]['at'] <= m + 2 and not fq[0].get('atomic') and not ismem(fq[0]['ins'][0]):
                f = fq[0]; self.emit_items([f['ins'].pop(0)]); n += 1
                if not f['ins']: fq.pop(0)
            assert rp >= len(reads) or reads[rp][1] > m + 1, (m, reads[rp])
        for f in fq: self.emit_items(f['ins'])
        if self.c.verbose:
            tot = 0; g = None
            for i in e.ins[start:]:
                if i.label: continue
                if i.kind == 'mfma':
                    if g is not None: tot += max(16, g)
                    g = 8; prevmem = False
                elif g is not None:
                    mm = i.kind in ('dsr', 'dsw', 'vload', 'vstore', 'dma')
                    g += 8 if (mm and prevmem) else 4; prevmem = mm
            print(f"stream {name}: {len(mf)} mfma, est clks {tot} (ideal {16*len(mf)})")

    def prologue(self):
        e = self.e; c = self.c
        if c.stamps or c.dstamp: e("s_memrealtime s[54:55]\ns_memtime s[98:99]")
        e(f"""s_cmp_ge_u32 s2, 256
        s_cbranch_scc1 L_end
        s_load_dwordx16 s[32:47], s[0:1], 0
        s_load_dwordx4 s[48:51], s[0:1], 64
        s_load_dwordx2 s[52:53], s[0:1], 80
        s_load_dwordx2 s[56:57], s[0:1], 96""")
        if c.codepf:
            e(f"""s_getpc_b64 s[{sA}:{sB}]
            L_pf:
            s_lshr_b32 s{sT0}, s2, 3
            s_lshl_b32 s{sT0}, s{sT0}, 11
            v_lshrrev_b32 v1, 4, v0
            v_lshlrev_b32 v1, 7, v1
            v_add_u32 v1, s{sT0}, v1
            v_cmp_gt_u32 vcc, L_end-L_pf, v1
            v_cndmask_b32 v1, 0, v1, vcc""")
            e.vmop(f"global_load_dword v255, v1, s[{sA}:{sB}]", 'pf')
        e(f"""v_lshrrev_b32 v1, 6, v0
        v_and_b32 v0, 63, v0
        s_and_b32 s{sT0}, s2, 7
        v_readfirstlane_b32 s{sW}, v1
        s_lshr_b32 s{sT1}, s2, 3
        s_lshr_b32 s{sT2}, s{sT0}, 1
        s_and_b32 s{sT3}, s{sT1}, 3
        s_lshl_b32 s{sMT}, s{sT2}, 2
        s_add_u32 s{sMT}, s{sMT}, s{sT3}
        s_lshr_b32 s{sT4}, s{sT1}, 2
        s_and_b32 s{sHG}, s{sT0}, 1
        s_lshl_b32 s{sHG}, s{sHG}, 2
        s_and_b32 s{sT5}, s{sT4}, 3
        s_add_u32 s{sHG}, s{sHG}, s{sT5}""")
        if c.rot == 2:
            e(f"""s_mul_i32 s{sE}, s{sT2}, 5
            s_lshr_b32 s{sE}, s{sE}, 1
            s_and_b32 s{sT5}, s{sT0}, 1
            s_mul_i32 s{sT5}, s{sT5}, 5
            s_add_u32 s{sE}, s{sE}, s{sT5}
            s_cmp_ge_u32 s{sE}, 10
            s_cselect_b32 s{sT5}, 10, 0
            s_sub_u32 s{sE}, s{sE}, s{sT5}
            s_lshl_b32 s{sE}, s{sE}, 7""")
        elif c.rot == 3:
            e(f"s_xor_b32 s{sE}, s{sT3}, s{sT4}\ns_and_b32 s{sE}, s{sE}, 1\ns_lshl_b32 s{sE}, s{sE}, 7")
        else: e(f"s_mov_b32 s{sE}, 0")
        e(f"""v_and_b32 v1, 15, v0
        v_lshrrev_b32 v2, 4, v0
        v_bfe_u32 v3, v0, 2, 2
        v_and_b32 v4, 3, v0
        v_lshrrev_b32 v5, 3, v0
        v_lshlrev_b32 v6, 4, v0
        s_lshl_b32 s{sT2}, s{sMT}, 2
        s_add_u32 s{sT2}, s{sT2}, s{sW}
        s_mul_i32 s{sT2}, s{sT2}, {32*1280}
        v_xor_b32 v7, v2, v0
        v_and_b32 v7, 7, v7
        v_lshlrev_b32 v7, 4, v7
        v_mul_u32_u24 v8, 1280, v5
        v_add_u32 v8, s{sT2}, v8
        v_add_u32 v208, v8, v7
        v_xor_b32 v7, 64, v7
        v_add_u32 v209, v8, v7
        v_add_u32 v209, {10240-1024}, v209
        v_add_u32 v210, {2*(10240-1024)}, v208
        v_add_u32 v211, {2*(10240-1024)}, v209
        s_lshl_b32 s{sM0}, s{sW}, 12
""")
        if c.rot == 3: e(f"s_xor_b32 s{sE+1}, s{sE}, 128")
        else: e(f"s_add_u32 s{sE+1}, s{sE}, 128\ns_cmp_eq_u32 s{sE+1}, 1280\ns_cselect_b32 s{sE+1}, 0, s{sE+1}")
        for r, n in ((SX, 2048 * 1280), (SQ, 640 * 3840), (S1, 640 * 3456), (SM, 3456)): e(f"s_mov_b32 s{r+2}, {n}\ns_mov_b32 s{r+3}, 0x20000")
        e(f"s_bitcmp1_b32 s2, 7\ns_cbranch_scc1 L_QH")

    def kernarg_wait(self):
        e = self.e
        e("s_waitcnt lgkmcnt(0)"); self.pstamp(0)
        e(f"s_load_dwordx2 s[{sTAG}:{sTAG+1}], s[{pWS}:{pWS+1}], {TAG}")
        if self.c.stamps: e('s_mov_b32 s40, s98')
        if self.c.dstamp or self.c.cnt: e('s_mov_b64 s[40:41], s[0:1]')
        for r, p in ((SX, pX), (SM, pB1), (SQ, pQKV), (S1, pW1)): e(f"s_mov_b32 s{r}, s{p}\ns_and_b32 s{r+1}, s{p+1}, 0xffff")

    def pack_setup(self):
        e = self.e
        e(f"""s_lshl_b32 s{sT0}, s2, 2
        s_add_u32 s{sT0}, s{sT0}, s{sW}
        s_mul_i32 s{sT1}, s{sT0}, 6554
        s_lshr_b32 s{sT1}, s{sT1}, 16
        s_mul_i32 s{sT2}, s{sT1}, 10
        s_sub_u32 s{sT2}, s{sT0}, s{sT2}
        s_sub_u32 s{sT3}, s{sT1}, 54
        s_and_b32 s{sT3}, s{sT3}, 63
        s_mul_i32 s{sT4}, s{sT3}, 52
        s_lshr_b32 s{sT4}, s{sT4}, 8
        s_mul_i32 s{sT5}, s{sT4}, 5
        s_sub_u32 s{sT5}, s{sT3}, s{sT5}
        s_mul_i32 s{sBT}, s{sT4}, 160
        s_lshr_b32 s{sAT}, s{sT5}, 1
        s_mul_i32 s{sAT}, s{sAT}, 80
        s_and_b32 s{sT3}, s{sT5}, 1
        s_lshl_b32 s{sT3}, s{sT3}, 3
        s_add_u32 s{sAT}, s{sAT}, s{sT3}
        s_cmp_eq_u32 s{sT5}, 4
        s_cselect_b32 s{sAT}, 16, s{sAT}
        s_cselect_b32 s{sT3}, 80, 4
        s_add_u32 s{sBT}, s{sBT}, s{sAT}
        s_lshl_b32 s{sAT}, s{sT1}, 5
        s_cmp_lt_u32 s{sT1}, 54
        s_cselect_b32 s{sBT}, s{sAT}, s{sBT}
        s_cselect_b32 s{sT3}, 16, s{sT3}""")
        self.csel(sT4, 4 * 1280 - 1024, 20 * 1280 - 1024)
        self.csel(SPK + 2, 1728 * 1280, 640 * 1280)
        e(f"""s_mov_b32 s{SPK+3}, 0x20000
        s_cmp_lt_u32 s{sT0}, 740
        s_cselect_b32 s{SPK+2}, s{SPK+2}, 0
        s_mul_i32 s{sBT}, s{sBT}, 1280
        s_lshl_b32 s{sAT}, s{sT2}, 7
        s_add_u32 s32, s{sBT}, s{sAT}
        s_add_u32 s33, s32, s{sT4}
        s_add_u32 s34, s33, s{sT4}
        s_add_u32 s35, s34, s{sT4}
        v_lshrrev_b32 v9, 5, v0
        v_mul_lo_u32 v9, v9, s{sT3}
        v_and_b32 v10, 3, v5
        v_add_u32 v9, v9, v10
        v_mul_u32_u24 v9, 1280, v9
        v_and_b32 v10, 7, v0
        v_lshl_add_u32 v252, v10, 4, v9
        v_lshlrev_b32 v9, 10, v2
        v_lshl_add_u32 v9, v3, 7, v9
        v_add_u32 v9, s{sM0}, v9
        v_add_u32 v9, {L_PACK}, v9""")
        for g in range(2):
            e(f"""s_lshl_b32 s{sT3}, s{sT2}, 1
            s_add_u32 s{sT3}, s{sT3}, {g}
            s_mul_i32 s{sT4}, s{sT3}, 52
            s_lshr_b32 s{sT4}, s{sT4}, 8
            s_mul_i32 s{sT5}, s{sT4}, 5
            s_sub_u32 s{sT5}, s{sT3}, s{sT5}
            s_cmp_eq_u32 s{sT5}, 2
            s_cselect_b32 s{sT3}, 3, 4
            s_cselect_b32 s{sAT}, 32, 8
            v_lshlrev_b32 v10, s{sT3}, v4
            v_add_u32 v{PKA+2*g}, v9, v10
            v_add_u32 v{PKA+1+2*g}, s{sAT}, v{PKA+2*g}
            s_mul_i32 s{sT4}, s{sT4}, 740
            s_mul_i32 s{sAT}, s{sT1}, 5
            s_add_u32 s{sT4}, s{sT4}, s{sAT}""")
            for a_ in range(2):
                d = sPKD + 2 * g + a_
                e(f"""s_lshl_b32 s{sT3}, s{sT5}, 1
                s_add_u32 s{sT3}, s{sT3}, {a_}
                s_add_u32 s{d}, s{sT3}, 364
                s_cmp_eq_u32 s{sT3}, 5
                s_cselect_b32 s{d}, 374, s{d}
                s_cmp_lt_u32 s{sT3}, 5
                s_cselect_b32 s{d}, s{sT3}, s{d}
                s_add_u32 s{d}, s{d}, s{sT4}
                s_lshl_b32 s{d}, s{d}, 10
                s_add_u32 s{d}, s{d}, {PB}
                s_cmp_lt_u32 s{sT0}, 740
                s_cselect_b32 s{d}, s{d}, {OOB}""")
        e(f"""s_cmp_lt_u32 s{sT1}, 54
        s_cselect_b32 s{SPK}, s{pW2}, s{pWO}
        s_cselect_b32 s{SPK+1}, s{pW2+1}, s{pWO+1}
        s_and_b32 s{SPK+1}, s{SPK+1}, 0xffff""")

    def common_setup(self):
        e = self.e; c = self.c
        e(f"s_and_b32 s{sT0}, s2, 7\ns_lshr_b32 s{sT1}, s2, 3\ns_lshr_b32 s{sT2}, s{sT0}, 1\ns_and_b32 s{sT3}, s{sT1}, 3\ns_lshr_b32 s{sT4}, s{sT1}, 2")
        if c.mix: e(f"s_lshr_b32 s{sT5}, s{sT1}, 2\ns_and_b32 s{sT5}, s{sT5}, 4\ns_xor_b32 s{sT5}, s{sT5}, s{sT1}" if c.map2 else
                    f"s_lshr_b32 s{sT5}, s{sT1}, 4\ns_xor_b32 s{sT5}, s{sT5}, s{sT1}")
        if c.map2:
            if c.mix: e(f"s_and_b32 s{sRB}, s{sT5}, 7\ns_bfe_u32 s{sT5}, s{sT1}, 0x20002")
            else: e(f"s_and_b32 s{sRB}, s{sT1}, 7\ns_lshr_b32 s{sT5}, s{sT1}, 3")
            e(f"""s_lshl_b32 s{sT2}, s{sT2}, 3
            s_add_u32 s{sRB}, s{sRB}, s{sT2}
            s_and_b32 s{sNB}, s{sT0}, 1
            s_lshl_b32 s{sNB}, s{sNB}, 2
            s_add_u32 s{sNB}, s{sNB}, s{sT5}""")
        else:
            if c.mix: e(f"s_bfe_u32 s{sNB}, s{sT1}, 0x30001\ns_and_b32 s{sT3}, s{sT5}, 1\ns_lshr_b32 s{sT5}, s{sT1}, 4\ns_bfe_u32 s{sT4}, s{sT1}, 0x10001\ns_xor_b32 s{sT5}, s{sT5}, s{sT4}\ns_and_b32 s{sT3}, s{sT1}, 1\ns_lshl_b32 s{sT5}, s{sT5}, 1\ns_add_u32 s{sT3}, s{sT3}, s{sT5}")
            else: e(f"s_mov_b32 s{sNB}, s{sT4}")
            e(f"s_lshl_b32 s{sRB}, s{sT0}, 2\ns_add_u32 s{sRB}, s{sRB}, s{sT3}")
        mk_srd(e, SWS, pWS, 0x10000000); mk_srd(e, SM, pPHI, 32 * 800)
        e(f"""s_lshl_b32 s{sT3}, s{sHG}, 2
        s_add_u32 s{sT3}, s{sT3}, s{sW}
        s_mul_i32 s36, s{sT3}, 800
        s_mul_i32 s37, s{sW}, 800
        s_add_u32 s37, s37, {L_WPHI}""")
        for i in range(2, 10):
            if c.rot == 3: e(f"s_add_u32 s{sE+i}, s{sE+i-2}, 256")
            else: e(f"s_add_u32 s{sE+i}, s{sE+i-1}, 128\ns_cmp_eq_u32 s{sE+i}, 1280\ns_cselect_b32 s{sE+i}, 0, s{sE+i}")
        e(f"""s_mul_i32 s{sB}, s{sNB}, 74
        s_add_u32 s{sB}, s{sB}, s{sW}
        s_mul_i32 s{sB}, s{sB}, 5120
        s_add_u32 s{sB}, s{sB}, {PB}
        s_mul_i32 s{sA}, s{sRB}, 74
        s_add_u32 s{sA}, s{sA}, s{sW}
        s_lshl_b32 s{sA}, s{sA}, 12
        s_add_u32 s{sA}, s{sA}, {A2}
        s_xor_b32 s{sT0}, s{sRB}, s{sNB}
        s_and_b32 s{sT0}, s{sT0}, {min(c.par, 1)}
        s_mul_i32 s{sT1}, s{sT0}, {4*5120}
        s_add_u32 s{sB8}, s{sB}, {32*5120}
        s_add_u32 s{sB8}, s{sB8}, s{sT1}
        s_add_u32 s{sB9}, s{sB}, {36*5120}
        s_sub_u32 s{sB9}, s{sB9}, s{sT1}
        s_mul_i32 s{sT1}, s{sT1}, {max(c.par, 1)}
        s_sub_u32 s{sBo}, s{sB}, s{sT1}
        s_add_u32 s{sB}, s{sB}, s{sT1}
        s_lshl_b32 s{sT1}, s{sT0}, 14
        s_add_u32 s{sA8}, s{sA}, {32*4096}
        s_add_u32 s{sA8}, s{sA8}, s{sT1}
        s_add_u32 s{sA9}, s{sA}, {36*4096}
        s_sub_u32 s{sA9}, s{sA9}, s{sT1}
        s_mul_i32 s{sT1}, s{sT1}, {max(c.par, 1)}
        s_sub_u32 s{sAo}, s{sA}, s{sT1}
        s_add_u32 s{sA}, s{sA}, s{sT1}
        s_lshr_b32 s{sT1}, s{sW}, 1
        s_and_b32 s{sT3}, s{sT1}, s{sT0}
        s_cselect_b32 s{sB8}, {OOB}, s{sB8}
        s_cselect_b32 s{sA8}, {OOB}, s{sA8}
        s_andn2_b32 s{sT3}, s{sT1}, s{sT0}
        s_cselect_b32 s{sB9}, {OOB}, s{sB9}
        s_cselect_b32 s{sA9}, {OOB}, s{sA9}
        s_mul_i32 s88, s{sW}, {NL*1024}
        v_add_u32 v240, 4096, v6""")
        for j in range(4):
            e(f"s_add_u32 s{sT3}, s{sW}, {j}\ns_and_b32 s{sT3}, s{sT3}, 3\ns_lshl_b32 s{sT3}, s{sT3}, 10\nv_add_u32 v{236+j}, s{sT3}, v6")
        e(f"""s_lshl_b32 s{sF1}, s2, 3
        s_add_u32 s{sF1}, s{sF1}, {F1}
        s_cmp_eq_u32 s{sW}, 0
        s_cselect_b32 s{sF1}, s{sF1}, {OOB}
        v_mov_b32 v245, {OOB}
        v_cmp_eq_u32 vcc, 0, v0
        v_cndmask_b32 v245, v245, 0, vcc""")

    def touch(self):
        e = self.e; c = self.c
        e(f"""s_cmp_eq_u32 s{sW}, 0
        s_cselect_b64 s[28:29], s[{SX}:{SX+1}], s[{S1}:{S1+1}]
        s_cselect_b32 s30, s{SX+2}, s{S1+2}
        s_cselect_b32 s{sT0}, 12, 0
        s_add_u32 s{sT0}, s{sT0}, 68
        s_cmp_eq_u32 s{sW}, 1
        s_cselect_b64 s[28:29], s[{SQ}:{SQ+1}], s[28:29]
        s_cselect_b32 s30, s{SQ+2}, s30
        s_cselect_b32 s{sT0}, 75, s{sT0}
        s_lshl_b32 s{sT1}, 1, s{sW}
        s_and_b32 s{sT1}, s{sT1}, {c.tmask}
        s_cselect_b32 s30, s30, 0
        s_mov_b32 s31, 0x20000
        s_mul_i32 s{sT1}, s{sT0}, s2
        s_lshl_b32 s{sT1}, s{sT1}, 7
        v_lshlrev_b32 v10, 7, v0
        v_add_u32 v11, 64, v0
        v_cmp_gt_u32 vcc, s{sT0}, v11
        v_lshlrev_b32 v11, 7, v11
        v_mov_b32 v14, {OOB}
        v_cndmask_b32 v11, v14, v11, vcc""")
        e.vmop(f"buffer_load_dword v255, v10, s[28:31], s{sT1} offen", 'pf')
        e.vmop(f"buffer_load_dword v255, v11, s[28:31], s{sT1} offen", 'pf')

    def touch3_setup(self):
        e = self.e
        e(f"""s_cmp_eq_u32 s{sW}, 0
        s_cselect_b64 s[28:29], s[{SX}:{SX+1}], s[{S1}:{S1+1}]
        s_cselect_b32 s30, s{SX+2}, s{S1+2}
        s_cselect_b32 s{sT0}, 24, 21
        s_mov_b32 s44, {64*3456}
        s_cselect_b32 s44, 128, s44
        s_cselect_b64 vcc, -1, 0
        s_cmp_eq_u32 s{sW}, 1
        s_cselect_b64 s[28:29], s[{SQ}:{SQ+1}], s[28:29]
        s_cselect_b32 s30, s{SQ+2}, s30
        s_cselect_b32 s{sT0}, 23, s{sT0}
        s_cselect_b32 s44, {64*3840}, s44
        s_cmp_eq_u32 s{sW}, 3
        s_cselect_b32 s30, 0, s30
        s_mov_b32 s31, 0x20000
        s_mul_i32 s{sT1}, s{sT0}, s2
        v_add_u32 v10, s{sT1}, v0
        v_mul_u32_u24 v11, 21846, v10
        v_lshrrev_b32 v11, 16, v11
        v_mul_u32_u24 v11, {1280-384}, v11
        v_lshlrev_b32 v10, 7, v10
        v_add_u32 v11, v11, v10
        v_cndmask_b32 v10, v10, v11, vcc
        v_mov_b32 v14, {OOB}
        v_cmp_gt_u32 vcc, s{sT0}, v0
        v_cndmask_b32 v251, v14, v10, vcc""")
    def touch3(self, part):
        return [('x', f"s_mul_i32 s45, s44, {1 + 3 * part}"), ('vm', "buffer_load_dword v255, v251, s[28:31], s45 offen", 'pf')]

    def tlb_touch(self):
        e = self.e; c = self.c
        if not c.tlb: return
        if c.tlb == 1:
            e(f"v_lshlrev_b32 v10, 18, v0\nv_add_u32 v10, 0x1f800, v10")
            e.vmop(f"buffer_load_dword v255, v10, {srd(SWS)}, 0 offen sc1", 'pf')
        else:
            e(f"""s_mul_i32 s{sT0}, s{sNB}, {74*5120}
            s_add_u32 s{sT0}, s{sT0}, {PB}
            s_mul_i32 s{sT1}, s{sRB}, {74*4096}
            s_add_u32 s{sT1}, s{sT1}, {A2 - 8*65536}
            s_mul_i32 s{sT3}, s{sMT}, {2*74*4096}
            s_add_u32 s{sT3}, s{sT3}, {A2 - 16*65536}
            v_lshlrev_b32 v10, 16, v0
            v_mov_b32 v11, s{sT0}
            v_mov_b32 v14, s{sT1}
            v_cmp_le_u32 vcc, 8, v0
            v_cndmask_b32 v11, v11, v14, vcc
            v_mov_b32 v14, s{sT3}
            v_cmp_le_u32 vcc, 16, v0
            v_cndmask_b32 v11, v11, v14, vcc
            v_add_u32 v11, v11, v10
            v_subrev_u32 v14, 32, v0
            v_mul_u32_u24 v14, 0x18000, v14
            v_cmp_le_u32 vcc, 32, v0
            v_cndmask_b32 v10, v11, v14, vcc""")
            e.vmop(f"buffer_load_dword v255, v10, {srd(SWS)}, 0 offen sc1", 'pf')
        mk_srd(e, 28, pOUT, 2048 * 1280)
        e("v_lshlrev_b32 v10, 16, v0")
        e.vmop("buffer_load_dword v255, v10, s[28:31], 0 offen sc1", 'pf')
        if c.tlb2:
            for p, n in ((pB2, 1280),):
                mk_srd(e, 28, p, n); e.vmop("buffer_load_dword v255, v6, s[28:31], 0 offen", 'pf')

    def tag_wait(self):
        e = self.e
        e(f"""s_waitcnt lgkmcnt(0)
        s_add_u32 s{sTAG}, s{sTAG}, 1
        v_mov_b32 v247, s{sTAG+1}
        v_mov_b32 v246, s{sTAG}
        s_movk_i32 s42, {TBM}""")
        if self.c.xA == 2: e(f's_mov_b32 s41, {OOB}')
        e.lg = []
    def pack_loads(self):
        return [([('x', f"s_add_u32 m0, s{sM0}, {L_PACK}")] if i == 0 else []) +
                [('vm', f"buffer_load_dwordx4 v252, {srd(SPK)}, s{32+i} offen offset:{i*1024} {self.c.psc} lds", 'packld')] for i in range(4)]
    def pack_fill(self, m, nm):
        f = []
        for i in range(8):
            t, h = i >> 1, i & 1
            f.append(dict(at=m + 2 + 2 * i, ins=[('lg', f"ds_read_b64_tr_b16 a[{160+4*t+2*h}:{161+4*t+2*h}], v{PKA+t} offset:{(t>>1)*64+512*h}", 'pk')]))
        return f
    def wb_item(self):
        return [[('wvm', 'pkst'), ('vm', "buffer_wbl2 sc1", 'pkst')]] if self.c.wbl else []
    def pack_stores(self):
        return [([('wlg', 'pk')] if i == 0 else []) + [('vm', f"buffer_store_dwordx4 {ar(160+4*i)}, v6, {srd(SWS)}, s{sPKD+i} offen {self.c.pss}", 'pkst')] for i in range(4)]

    def btouch(self):
        pre = [l.strip() for l in f"""s_and_b32 s{sT0}, s{sRB}, 7
        s_lshl_b32 s{sT0}, s{sT0}, 2
        s_add_u32 s{sT0}, s{sT0}, s{sW}
        s_mul_i32 s{sT0}, s{sT0}, {93*128}
        s_mul_i32 s{sT1}, s{sNB}, {74*5120}
        s_add_u32 s{sT0}, s{sT0}, s{sT1}
        s_add_u32 s{sT0}, s{sT0}, {PB}
        v_lshlrev_b32 v248, 7, v0
        v_min_u32 v249, 28, v0
        v_lshlrev_b32 v249, 7, v249""".split("\n")]
        n = self.c.bt
        out = [[('x', l) for l in pre]]
        if n == 1:
            out[0] += [('vm', f"buffer_load_dword v255, v248, {srd(SWS)}, s{sT0} offen sc1", 'pf')]
            out.append([('x', f"s_add_u32 s{sT0}, s{sT0}, 8192"), ('vm', f"buffer_load_dword v255, v249, {srd(SWS)}, s{sT0} offen sc1", 'pf')])
        else:
            out[0] += [('x', "v_min_u32 v249, 23, v0"), ('x', "v_lshlrev_b32 v249, 7, v249")]
            for i in range(4): out.append([('vm', f"buffer_load_dword v255, v249, {srd(SWS)}, s{sT0} offen offset:0 sc1", 'pf'), ('x', f"s_add_u32 s{sT0}, s{sT0}, 3072")])
        return out
    def code_touch(self, endlab):
        Lp = self.lab('pc')
        return [('x', f"s_getpc_b64 s[30:31]\n{Lp}:"), ('x', f"s_bfe_u32 s{sT0}, s2, 0x40003"), ('x', f"s_lshl_b32 s{sT0}, s{sT0}, 2"), ('x', f"s_add_u32 s{sT0}, s{sT0}, s{sW}"),
                ('x', f"s_lshl_b32 s{sT0}, s{sT0}, 9"), ('x', "v_and_b32 v7, 3, v0"), ('x', f"v_lshl_add_u32 v7, v7, 7, s{sT0}"),
                ('x', f"v_cmp_gt_u32 vcc, {endlab}-{Lp}, v7"), ('x', "v_cndmask_b32 v7, 0, v7, vcc"), ('vm', "global_load_dword v255, v7, s[30:31]", 'pf')]
    def f1_issue(self):
        return [[('x', f"s_mov_b32 s{sT0}, {F1}"), ('x', "v_add_u32 v235, 1024, v6"), ('vm', self.poll_issue(6, 248, 4, None, f"s{sT0}"), 'f1p')],
                [('vm', self.poll_issue(235, 252, 4, None, f"s{sT0}"), 'f1p')]]
    def f1_check(self):
        chk = self.poll_check([(6, 248, 4, f"s{sT0}"), (235, 252, 4, f"s{sT0}")])
        return [('wvm', 'f1p')] + [('x', t) for t in chk] + [('x', f"s_or_b32 s{sT1}, s2, s{sW}"),
                ('x', f"s_cmp_eq_u32 s{sT1}, 0\ns_cselect_b32 s{sT1}, {TAG}, {OOB}"), ('vm', self.flag_store(245, 246, f"s{sT1}"), 'tagst')]

    def attn_voff(self, dst, cexpr_base, colbase_s):
        e = self.e
        e(f"""v_mul_u32_u24 v10, 6554, v9
        v_lshrrev_b32 v10, 16, v10
        v_mad_i32_i24 v11, v10, -10, v9""")
        self.swap23(10, 12)
        e(f"""v_mul_u32_u24 v10, 3840, v10
        v_lshl_add_u32 v10, v11, 4, v10
        v_add_u32 v{dst}, s{colbase_s}, v10""")
    def swap23(self, r, t):
        self.e(f"""v_lshrrev_b32 v{t}, 1, v{r}
        v_xor_b32 v{t}, v{t}, v{r}
        v_and_b32 v{t}, 4, v{t}
        v_mul_u32_u24 v{t}, 3, v{t}
        v_xor_b32 v{r}, v{r}, v{t}""")

    def small_dma(self, sr, vaddr, soff, ldsaddr, nlanes, tag, m0expr=None):
        e = self.e
        e(m0expr or f"s_mov_b32 m0, {ldsaddr}")
        if nlanes < 64: e(f"s_mov_b64 exec, {hex((1 << nlanes) - 1)}" if nlanes <= 32 else f"s_mov_b32 exec_hi, {hex((1 << (nlanes-32)) - 1)}")
        e.vmop(f"buffer_load_dwordx4 v{vaddr}, {srd(sr)}, {soff} offen lds", tag)
        if nlanes < 64: e("s_mov_b64 exec, -1")

    def csel(self, d, a, b):
        inl = lambda x: isinstance(x, str) or -16 <= x <= 64
        if inl(a) or inl(b): self.e(f"s_cselect_b32 s{d}, {a}, {b}")
        else: self.e(f"s_mov_b32 s{d}, {b}\ns_cselect_b32 s{d}, {a}, s{d}")

    def init_B(self):
        self.Bloc = {}; self.Bq = []
        order = [(i, t) for i in range(19) for t in range(5)]
        for u, k in enumerate(order):
            if u < 64: self.Bloc[k] = ('a', 4 * u)
            elif u < 64 + NL: self.Bloc[k] = ('l', u - 64)
            else: self.Bloc[k] = None
        self.Border = order; self.Bpend = list(range(64 + NL)); self.Bcur = None; self.Acur = None
    def koff(self, i): return 4 * i - (2 if i >= 10 else 0)
    def soff(self, d, i, w):
        e_, o_, s8, s9, unit = (sB, sBo, sB8, sB9, 5120) if w == 'B' else (sA, sAo, sA8, sA9, 4096)
        if i in (8, 9): return f"s_mov_b32 s{d}, s{s8 if i == 8 else s9}"
        if i == 18: return f"s_add_u32 s{d}, s{e_}, s{o_}\ns_lshr_b32 s{d}, s{d}, 1\ns_add_u32 s{d}, s{d}, {self.koff(i)*unit}"
        idx = i if i < 10 else i - 10 if i < 14 else i - 14
        return f"s_add_u32 s{d}, s{e_ if idx & max(self.c.par, 1) == 0 else o_}, {self.koff(i)*unit}"
    def B_items(self, k, loc):
        i, t = k; it = []
        if self.Bcur != i:
            it.append(('x', self.soff(sBT, i, 'B'))); self.Bcur = i
        va, imm = (6, t * 1024) if t < 4 else (240, 0)
        if loc[0] == 'l':
            assert L_BL + loc[1]*1024 - imm >= 0
            it.append(('x', f"s_add_u32 m0, s88, {L_BL + loc[1]*1024 - imm}"))
            it.append(('vm', f"buffer_load_dwordx4 v{va}, {srd(SWS)}, s{sBT} offen offset:{imm} sc1 lds", ('B', k)))
        else:
            it.append(('vm', f"buffer_load_dwordx4 {R(loc)}, v{va}, {srd(SWS)}, s{sBT} offen offset:{imm} sc1", ('B', k)))
        return it
    def B_take(self, us):
        out = []
        for u in us:
            k = self.Border[u]; out.append(self.B_items(k, self.Bloc[k]))
            if self.c.xB == 1: out[-1] = [('x', 's_nop 0')]
            if self.c.xB == 2: out[-1] = [(it[0], it[1].replace(f"s{sBT} offen", "s43 offen"), it[2]) if it[0] == 'vm' else it for it in out[-1]]
            if self.c.xB == 3: out[-1] = [(it[0], it[1].replace(f"s{sBT} offen", f"s{sB} offen"), it[2]) if it[0] == 'vm' else it for it in out[-1]]
        return out
    def ph2_bg(self, u): pass
    def bg_try(self, allowed, S=None):
        e = self.e
        if e.t - e.tvm < (S or self.c.S): return False
        if allowed == self.ph2_bg: return self.try_issue(self.m, True, True)
        for u in self.Bpend:
            if allowed(u):
                self.Bpend.remove(u); self.emit_items(self.B_take([u])[0]); return True
        return False
    def emit_items(self, items):
        e = self.e
        for it in items:
            if it[0] == 'vm': e.vmop(it[1], it[2])
            elif it[0] == 'lg': e.lgop(it[1], it[2])
            elif it[0] == 'wvm': e.wait(vm=it[1])
            elif it[0] == 'wlg': e.wait(lg=it[1])
            elif it[0] == 'st': self.stamp(it[1], it[2])
            else: e(it[1])
    def valu(self, lines, side=None, every=1, bg=None, S=None):
        n = 0
        for l in lines:
            if isinstance(l, str): self.e(l)
            else: self.emit_items([l])
            n += 1
            if side and n % every == 0: self.emit_items(side.pop(0))
            if bg: self.bg_try(bg, S)

    def interleave(self, items, side, every):
        W = ('s_cmp', 's_add', 's_sub', 's_and', 's_andn2', 's_or', 's_xor', 's_lshl', 's_lshr', 's_bitcmp', 's_min', 's_max')
        Rd = ('s_cselect', 's_addc', 's_subb', 's_cbranch_scc')
        live = [False] * len(items); l = False
        for i in range(len(items) - 1, -1, -1):
            live[i] = l
            t = items[i][1]
            if t.startswith(Rd): l = True
            elif t.startswith(W): l = False
        n = 0
        for i, it in enumerate(items):
            self.emit_items([it]); n += 1
            if side and n >= every and not live[i]: self.emit_items(side.pop(0)); n = 0
        for g in side: self.emit_items(g)

    def gelu_lines(self, X, Y, T, O):
        U = [X, X + 2, Y, Y + 2]; L = []
        P = lambda r: f"v[{r}:{r+1}]"
        for i in range(4): L.append(f"v_pk_mul_f32 {P(T+2*i)}, {P(U[i])}, {P(U[i])}")
        for i in range(4): L.append(f"v_pk_fma_f32 {P(T+2*i)}, {P(T+2*i)}, v[14:15], s[{sC0}:{sC1}] op_sel_hi:[1,0,0]")
        for i in range(4): L.append(f"v_pk_mul_f32 {P(T+2*i)}, {P(T+2*i)}, {P(U[i])}")
        for i in range(8): L.append(f"v_exp_f32 v{T+i}, v{T+i}")
        for i in range(4): L.append(f"v_pk_add_f32 {P(T+2*i)}, {P(T+2*i)}, 1.0 op_sel_hi:[1,0]")
        for i in range(8): L.append(f"v_rcp_f32 v{T+i}, v{T+i}")
        for i in range(4): L.append(f"v_pk_mul_f32 {P(T+2*i)}, {P(T+2*i)}, {P(U[i])}")
        for i in range(4): L.append(f"v_cvt_pk_bf16_f32 v{O+i}, v{T+2*i}, v{T+2*i+1}")
        return L if not (self.c.skip & 1) else L[-8:]
    def gelu_consts(self):
        c1 = -2.0 * math.sqrt(2.0 / math.pi) * math.log2(math.e)
        self.e(f"s_mov_b32 s{sC0}, {fl(c1)}\nv_mov_b32 v14, {fl(c1 * 0.044715)}")
    def softmax_lines(self, Pp, E, PH):
        L = []; P = lambda r: f"v[{r}:{r+1}]"
        L += [f"v_max3_f32 v8, v{Pp}, v{Pp+1}, v{Pp+2}", f"v_min3_f32 v10, v{Pp}, v{Pp+1}, v{Pp+2}"]
        for i in range(3, 19, 2): L += [f"v_max3_f32 v8, v8, v{Pp+i}, v{Pp+i+1}", f"v_min3_f32 v10, v10, v{Pp+i}, v{Pp+i+1}"]
        L += [f"v_max_f32 v8, v8, v{Pp+19}", f"v_min_f32 v10, v10, v{Pp+19}"]
        L += [f"v_mul_f32_e64 v8, -v8, s{sC0}", f"v_mul_f32 v10, s{sC0}, v10"]
        for i in range(10):
            L.append(f"v_pk_fma_f32 {P(E+2*i)}, {P(Pp+2*i)}, s[{sC0}:{sC1}], v[8:9] op_sel_hi:[1,0,0]")
            L.append(f"v_pk_fma_f32 {P(E+20+2*i)}, {P(Pp+2*i)}, s[{sC0}:{sC1}], v[10:11] op_sel_hi:[1,0,0] neg_lo:[1,0,0] neg_hi:[1,0,0]")
        for i in range(40): L.append(f"v_exp_f32 v{E+i}, v{E+i}")
        L += [f"v_pk_add_f32 v[8:9], {P(E)}, {P(E+2)}", f"v_pk_add_f32 v[10:11], {P(E+20)}, {P(E+22)}"]
        for i in range(2, 10): L += [f"v_pk_add_f32 v[8:9], v[8:9], {P(E+2*i)}", f"v_pk_add_f32 v[10:11], v[10:11], {P(E+20+2*i)}"]
        L += ["v_add_f32 v8, v8, v9", "v_add_f32 v10, v10, v11", "v_rcp_f32 v8, v8", "v_rcp_f32 v10, v10"]
        for i in range(10): L.append(f"v_pk_mul_f32 {P(E+2*i)}, {P(E+2*i)}, v[8:9] op_sel_hi:[1,0]")
        for i in range(10): L.append(f"v_pk_mul_f32 {P(E+20+2*i)}, {P(E+20+2*i)}, v[10:11] op_sel_hi:[1,0]")
        for i in range(20): L.append(f"v_cvt_pk_bf16_f32 v{PH+i}, v{E+2*i}, v{E+2*i+1}")
        return L if not (self.c.skip & 2) else [l if 'cvt' in l else '' for l in L]
    def wphi_addr(self, va):
        self.e(f"v_mul_u32_u24 v{va}, 800, v2\nv_mad_u32_u24 v{va}, v3, 40, v{va}\nv_add_u32 v{va}, {L_WPHI}, v{va}")
    def wphi_reads(self, va):
        return [[('lg', f"ds_read_b64_tr_b16 a[{AW+2*(dg*5+fg)}:{AW+1+2*(dg*5+fg)}], v{va} offset:{dg*160 + fg*8}", 'wphi')] for dg in range(5) for fg in range(5)]
    def phi_mfmas(self, KQ, Pp):
        L = []
        for dg in range(5):
            for j in range(2):
                for fg in range(5):
                    d = Pp + 20 * j + 4 * fg; w = AW + 2 * (dg * 5 + fg); b = KQ + 10 * j + 2 * dg
                    L.append(f"v_mfma_f32_4x4x4_16b_bf16 {vr(d)}, a[{w}:{w+1}], v[{b}:{b+1}], {vr(d) if dg else 0}")
        return L
    def cvt_heads(self, acc0, dst, j, n=5):
        return [f"v_cvt_pk_bf16_f32 v{dst+2*t+h}, v{acc0+(t*2+j)*4+2*h}, v{acc0+(t*2+j)*4+2*h+1}" for t in range(n) for h in range(2)]
    def rho0(self, dst):
        self.e(f"v_lshrrev_b32 v{dst}, 1, v2\nv_lshl_add_u32 v{dst}, v{dst}, 4, v3\nv_and_b32 v7, 1, v2\nv_lshl_add_u32 v{dst}, v7, 2, v{dst}")
    def x_addr(self, ST, nsl=3, base=220):
        e = self.e
        e(f"""v_lshrrev_b32 v9, 1, v1
        v_xor_b32 v9, v9, v2
        v_lshlrev_b32 v9, 4, v9
        v_lshl_add_u32 v9, v1, 7, v9
        v_add_u32 v{base}, s{sM0}, v9
        v_xor_b32 v{base+1}, 64, v{base}""")
        for sl in range(1, nsl): e(f"v_add_u32 v{base+2*sl}, {sl*ST}, v{base}\nv_add_u32 v{base+1+2*sl}, {sl*ST}, v{base+1}")
    def paced(self, groups, m0, span):
        n = len(groups)
        return [dict(at=m0 + int((k + 0.2) * span / n), chain=1, ins=list(g)) for k, g in enumerate(groups)]
    def prog_QH(self):
        e = self.e; c = self.c; self.init_B(); self.dmap = {0: 3, 1: 5, 2: 7, 3: 9, 14: 11, 7: 13, 9: 15}
        e("L_QH:")
        ST = QH_ST
        e(f"""s_mul_i32 s{sKW}, s{sHG}, 320
        s_lshl_b32 s{sT0}, s{sHG}, 8
        s_add_u32 s{sT0}, s{sT0}, 384
        s_cmp_lt_u32 s{sHG}, 6
        s_cselect_b32 s{sKW}, s{sKW}, s{sT0}
        s_cselect_b32 s{sK1}, 20, 16
        s_mul_i32 s{sT2}, s{sW}, 320""")
        def dma_x(st):
            g = []
            for j in range(4):
                it = [('x', f"s_add_u32 m0, s{sM0}, {(st%3)*ST}")] if j == 0 else []
                g.append(it + [('vm', f"buffer_load_dwordx4 v{208+j}, {srd(SX)}, s{sE+st} offen offset:{j*1024} {c.xsc} lds", ('S', st))])
            return g
        def dma_a(st, i):
            it = []
            if i == 0: it = [('x', f"s_mul_i32 s{sKA}, s{sE+st}, 1920"), ('x', f"s_add_u32 m0, s{sM0+1}, {(st%3)*ST}")]
            if i == 2: it = [('x', f"s_mov_b32 m0, s{sM0+3+st%3}")]
            return it + [('vm', f"buffer_load_dwordx4 v{212+i}, {srd(SQ)}, s{sKA} offen offset:{1024 if i == 1 else 0} {c.wsc} lds", ('S', st))]
        def dma_h(st, i):
            it = []
            if i == 0: it = [('x', f"s_mul_i32 s{sKB}, s{sE+st}, 1728"), ('x', f"s_add_u32 m0, s{sM0+2}, {(st%3)*ST}")]
            if i == 4: it = [('x', "s_add_u32 m0, m0, 4096")]
            return it + [('vm', f"buffer_load_dwordx4 v{215+i}, {srd(S1)}, s{sKB} offen offset:{(i%4)*1024} {c.wsc} lds", ('S', st))]
        def dma_stage(st): return dma_x(st) + [dma_a(st, i) for i in range(3)] + [dma_h(st, i) for i in range(5)]
        if c.fast:
            self.kernarg_wait()
            for g in dma_x(0): self.emit_items(g)
            self.small_dma(SM, 6, f"s{sKW}", None, 20, 'bias', f"s_add_u32 m0, s{sT2}, {L_BIASQH}")
        e(f"""s_mul_i32 s{sT0}, s{sW}, 3
        s_lshl_b32 s{sT1}, s{sW}, 1
        s_add_u32 s{sT1}, s{sT1}, 2
        s_cmp_lt_u32 s{sW}, 2
        s_cselect_b32 s{sT0}, s{sT0}, s{sT1}
        s_lshl_b32 s{sM0+1}, s{sT0}, 10
        s_add_u32 s{sM0+1}, s{sM0+1}, 16384""")
        for sl in range(3):
            e(f"s_add_u32 s{sM0+3+sl}, s{sM0+1}, {2048 + sl*ST}\ns_cmp_lt_u32 s{sW}, 2\ns_cselect_b32 s{sM0+3+sl}, s{sM0+3+sl}, {MISC+4608}")
        e(f"s_lshl_b32 s{sT0}, s{sT0}, 6\ns_mul_i32 s{sT1}, s{sHG}, 160\ns_mul_i32 s{sM0+2}, s{sW}, 5120\ns_add_u32 s{sM0+2}, s{sM0+2}, {16384+10240}")
        for i in range(3):
            e(f"v_add_u32 v9, {64*i}, v0\nv_add_u32 v9, s{sT0}, v9")
            self.attn_voff(212 + i, None, sT1)
            if i == 1: e("v_subrev_u32 v213, 1024, v213")
            if i == 2: e(f"s_cmp_lt_u32 s{sW}, 2\ns_cselect_b32 s{sT4}, 0, {OOB}\nv_add_u32 v214, s{sT4}, v214")
            if c.fast: self.emit_items(dma_a(0, i))
        if not c.fast:
            self.kernarg_wait()
            self.small_dma(SM, 6, f"s{sKW}", None, 20, 'bias', f"s_add_u32 m0, s{sT2}, {L_BIASQH}")
            for g in dma_x(0) + [dma_a(0, i) for i in range(3)]: self.emit_items(g)
        e(f"s_mul_i32 s{sT0}, s{sW}, 320\nv_mov_b32 v14, {OOB}")
        for i in range(5):
            e(f"""v_add_u32 v9, {64*i}, v0
            v_add_u32 v9, s{sT0}, v9
            v_mul_u32_u24 v10, 3277, v9
            v_lshrrev_b32 v10, 16, v10
            v_mul_u32_u24 v11, 20, v10
            v_sub_u32 v11, v9, v11
            v_bfe_u32 v13, v10, 2, 1
            v_lshlrev_b32 v13, 1, v13
            v_xor_b32 v11, v11, v13
            v_cmp_gt_u32 vcc, s{sK1}, v11""")
            self.swap23(10, 12)
            e(f"""v_mul_u32_u24 v10, 3456, v10
            v_lshl_add_u32 v10, v11, 4, v10
            v_add_u32 v10, s{sKW}, v10
            v_subrev_u32 v10, {(i%4)*1024}, v10
            v_cndmask_b32 v{215+i}, v14, v10, vcc""")
            self.emit_items(dma_h(0, i))
        self.pstamp(1)
        if c.pke:
            self.pack_setup()
            for g in self.pack_loads(): self.emit_items(g)
        if c.touch == 1: self.touch()
        if c.touch == 4:
            self.touch3_setup()
            for p_ in range(c.tp0): self.emit_items(self.touch3(p_))
        self.pstamp(2)
        def setup():
            e = self.e
            self.x_addr(ST); self.rho0(8)
            e(f"v_mul_u32_u24 v9, 160, v8\nv_mad_u32_u24 v9, v4, 40, v9\nv_add_u32 v226, 16384, v9")
            e(f"v_mul_u32_u24 v9, 320, v8\nv_lshl_add_u32 v9, v4, 3, v9\nv_add_u32 v9, {16384+10240}, v9\nv_lshl_add_u32 v229, v7, 5, v9\nv_xor_b32 v7, 1, v7\nv_lshl_add_u32 v232, v7, 5, v9")
            for sl in (1, 2): e(f"v_add_u32 v{226+sl}, {sl*ST}, v226\nv_add_u32 v{229+sl}, {sl*ST}, v229\nv_add_u32 v{232+sl}, {sl*ST}, v232")
            self.common_setup()
            if not c.pke: self.pack_setup()
            e(f"s_mul_i32 s{sT1}, s{sW}, 320\ns_add_u32 s{sT1}, s{sT1}, {L_BIASQH}\nv_lshl_add_u32 v13, v2, 3, s{sT1}")
            e(f"""s_lshl_b32 s{sT0}, s{sMT}, 1
            s_lshr_b32 s{sT1}, s{sW}, 1
            s_add_u32 s{sT0}, s{sT0}, s{sT1}
            s_and_b32 s{sT1}, s{sW}, 1
            s_mul_i32 s{sT2}, s{sT0}, 74
            s_lshl_b32 s{sT2}, s{sT2}, 12
            s_lshl_b32 s{sT3}, s{sT1}, 11
            s_add_u32 s{sT2}, s{sT2}, s{sT3}
            s_add_u32 s{sT2}, s{sT2}, {A2}
            s_lshr_b32 s{sT4}, s{sHG}, 1
            s_mul_i32 s{sT4}, s{sT4}, 5
            s_add_u32 s{sT4}, s{sT4}, 54
            s_lshl_b32 s{sT4}, s{sT4}, 12
            s_add_u32 s{sT4}, s{sT4}, s{sT2}
            s_and_b32 s{sT5}, s{sHG}, 1
            s_lshl_b32 s38, s{sT5}, 13
            s_add_u32 s38, s38, s{sT4}
            s_add_u32 s39, s{sT4}, {4*4096}
            s_lshl_b32 s{sT5}, s{sT5}, 3
            s_add_u32 s39, s39, s{sT5}
            s_lshl_b32 s{sT0}, s{sHG}, 4
            s_add_u32 s{sT0}, s{sT0}, s{sMT}
            s_lshl_b32 s{sT0}, s{sT0}, 2
            s_add_u32 s{sT0}, s{sT0}, s{sW}
            s_lshl_b32 s{sT0}, s{sT0}, 9
            s_add_u32 s43, s{sT0}, {GB}
            v_mov_b32 v204, -1
            v_mov_b32 v205, -1
            v_mov_b32 v206, -1
            v_mov_b32 v207, -1""")
        self.interleave(self.record(setup), dma_stage(1)[:c.n1], c.pe)
        self.pstamp(3)
        if c.n1 >= 12:
            self.small_dma(SM, 6, "s36", None, 50, 'misc', "s_mov_b32 m0, s37")
            if c.touch == 2: self.touch()
            if not c.pke:
                for g in self.pack_loads(): self.emit_items(g)
        self.tag_wait(); self.pstamp(4)
        e.wait(vm='bias')
        for s_ in range(10): e.lgop(f"ds_read_b64 v[{136+2*s_}:{137+2*s_}], v13 offset:{s_*32}", ('b', s_))
        for s_ in range(10):
            a0 = 16 + (5 + s_) * 8; e.wait(lg=('b', s_))
            for h in range(2): e(f"v_lshlrev_b32 v{a0+2*h}, 16, v{136+2*s_+h}\nv_and_b32 v{a0+2*h+1}, 0xffff0000, v{136+2*s_+h}")
        self.stamp(0)
        NS = 15; nm = NS * 4; mf = []; reads = []
        for st in range(10):
            sl = st % 3
            for t in range(NS):
                gs = st * NS + t; wr = 168 + 8 * (gs % 4); m0 = len(mf)
                for ks in range(2):
                    for rd in range(2):
                        if t < 5: ad, off = 226 + sl, ks * 5120 + rd * 1280 + t * 8
                        else: ad, off = (229 if (t - 5) % 2 == 0 else 232) + sl, ks * 10240 + rd * 2560 + ((t - 5) >> 1) * 64
                        reads.append([f"ds_read_b64_tr_b16 v[{wr+4*ks+2*rd}:{wr+4*ks+2*rd+1}], v{ad} offset:{off}", m0, st, m0 - 13])
                for j in ((1, 0) if st == 0 else (0, 1)):
                    for ks in range(2):
                        xr = 136 + (st % 2) * 16 + (j * 2 + ks) * 4; d = 16 + (t * 2 + j) * 4
                        if t == 0: reads.append([f"ds_read_b128 {vr(xr)}, v{220+2*sl+ks} offset:{j*2048}", len(mf), st, -1])
                        cc = vr(d)
                        if st == 0 and ks == 0: cc = "0" if t < 5 else vr(16 + t * 8)
                        mf.append(f"v_mfma_f32_16x16x32_bf16 {vr(d)}, {vr(wr+4*ks)}, {vr(xr)}, {cc}")
        po = lambda va, off: [('vm', f"buffer_store_dwordx4 v[204:207], v{va}, {srd(SWS)}, s38 offen offset:{off} sc1", 'hst')]
        poison = [po(6, 0), po(6, 1024), po(240, 0), po(240, 1024)] + [[('vm', f"buffer_store_dwordx2 v[204:205], v6, {srd(SWS)}, s39 offen offset:{j*1024} sc1", 'hst')] for j in range(2)]
        self.kloop(mf, reads, nm, dma_stage, poison, 'QH')
        A51 = lambda u: u < 51; A64 = lambda u: u < 64; ALL = lambda u: True
        self.gelu_consts()
        e(f"s_lshl_b32 s{sT3}, s{sKW}, 6\ns_add_u32 s{sT3}, s{sT3}, s{sT2}")
        L = []
        for p in range(5):
            for j in range(2):
                O = 152 + 4 * ((2 * p + j) % 4)
                L += self.gelu_lines(16 + ((5 + 2 * p) * 2 + j) * 4, 16 + ((6 + 2 * p) * 2 + j) * 4, 136 + 8 * j, O)
                if j == 0:
                    if p == 4: L += [f"s_add_u32 s{sT4}, s{sT3}, {4*4096}", f"s_cmp_lt_u32 s{sHG}, 6\ns_cselect_b32 s{sT4}, s{sT4}, {OOB}"]
                    else: L.append(f"s_add_u32 s{sT4}, s{sT3}, {p*4096}")
                L.append(('vm', f"buffer_store_dwordx4 {vr(O)}, v6, {srd(SWS)}, s{sT4} offen offset:{j*1024} sc1", 'hst'))
        self.valu(L, bg=A51, S=c.Sg)
        self.valu(self.cvt_heads(16, 56, 0) + self.cvt_heads(16, 66, 1), bg=A51)
        self.stamp(2)
        e.wait(lg='wphi')
        self.valu(self.phi_mfmas(56, 76), bg=A51)
        e(f"""s_lshl_b32 s{sT4}, s{sMT}, 4
        s_add_u32 s{sT4}, s{sT4}, s{sHG}
        s_lshl_b32 s{sT4}, s{sT4}, 7
        s_add_u32 s{sT4}, s{sT4}, {F4}
        s_cmp_eq_u32 s{sW}, 0
        s_cselect_b32 s{sT5}, s{sT4}, {OOB}
        s_mov_b32 s{sC0}, {fl(math.log2(math.e))}""")
        L1 = self.softmax_lines(76, 16, 116)
        self.valu(L1[:c.f4at], bg=A64)
        e.wait(vm='hst'); e("s_barrier")
        if c.stamps == 3: e(f"s_mov_b32 s{sC0}, {fl(math.log2(math.e))}")
        e.vmop(self.flag_store(245, 246, f"s{sT5}"), 'f4st')
        self.valu(L1[c.f4at:], bg=ALL)
        L2 = self.softmax_lines(96, 16, 136)
        self.valu(L2[:c.pa], bg=ALL)
        self.poll4a_issue()
        self.valu(L2[c.pa:c.pb], bg=ALL)
        pool = [[('v', r), c.mo + 1 if r < 204 else c.p3 if r < 220 else 999] for r in list(range(204, 224, 4)) + list(range(168, 204, 4))]
        while len(self.Bpend) > c.qleft: self.bg_try(ALL, -9999)
        self.ph2_begin(pool)
        if c.stamps == 3: e(f"s_mov_b32 s{sC0}, {fl(math.log2(math.e))}")
        self.valu(L2[c.pb:], bg=ALL)
        self.stamp(3)
        pool += [[('v', r), c.mo + 1] for r in range(156, 168, 4)]
        FO = (0, 1024, 2048, 2816)
        finld = [f"buffer_load_dwordx4 {vr(204+4*i)}, v6, {srd(SWS)}, s{sKW} offen offset:{FO[i]} sc1" for i in range(4)]
        finld += [f"buffer_load_dwordx4 {vr(248+4*j)}, v13, {srd(SWS)}, s43 offen offset:{j*256} sc1" for j in range(2)]
        def h_p3():
            e(f"""s_mul_i32 s{sKW}, s{sHG}, {FSZ}
            s_mul_i32 s{sK1}, s{sW}, 3840
            s_add_u32 s{sKW}, s{sKW}, s{sK1}
            s_add_u32 s{sKW}, s{sKW}, {FIN}
            v_lshlrev_b32 v13, 4, v1""")
            for l in finld: e.vmop(l, 'fin')
        def h_c3():
            it = [('st', 4, 1)] + [('x', l) for l in f"s_lshr_b32 s{sK1}, s{sK1}, 1\ns_add_u32 s{sK1}, s{sK1}, {L_FIN}\nv_lshl_add_u32 v9, v0, 3, s{sK1}".split("\n")] + [('wvm', 'fin')]
            it += [('x', l) for l in self.tag_check(finld, list(range(204, 220)) + list(range(248, 256)), 8)] + [('st', 5, 1)]
            it += [('x', self.tag_strip(r)) for r in list(range(204, 220)) + [248, 252]] + [('x', "v_mov_b32 v250, v248"), ('x', "v_mov_b32 v251, v252")]
            for i in range(4):
                it += [('x', f"v_cvt_pk_bf16_f32 v{204+4*i}, v{204+4*i}, v{205+4*i}"), ('x', f"v_cvt_pk_bf16_f32 v{205+4*i}, v{206+4*i}, v{207+4*i}"),
                       ('lg', f"ds_write_b64 v9, v[{204+4*i}:{205+4*i}] offset:{FO[i]//2}", 'fw')]
            it += [('x', l) for l in f"v_lshlrev_b32 v13, 6, v2\nv_lshl_add_u32 v13, v4, 4, v13\nv_add_u32 v13, {L_FIN}, v13".split("\n")]
            self.aq[:0] = [[self.m, c.mo - 3, x] for x in it]
        def h_o():
            if c.p1q < 0: self.poll4b_issue()
            fr = [p for p in pool if p[0][0] == 'a'][:8]; assert len(fr) == 8; self.busy = fr
            e.wait(lg='fw'); e("s_barrier")
            self.stamp(6)
            mf = []; reads = []
            for fp in range(5):
                for dg in range(6):
                    n = fp * 6 + dg; f0 = fr[n % 8][0][1]; base = (n // 2) * 8
                    reads.append([f"ds_read_b128 {ar(f0)}, v13 offset:{(dg*5+fp)*256}", base + 2 * (n % 2), -1, base - 24])
                    for h in range(2):
                        for j in range(2):
                            d = 156 + 24 * j + 4 * dg; b = 116 + 20 * j + 2 * (2 * fp + h)
                            mf.append(f"v_mfma_f32_4x4x4_16b_bf16 {vr(d)}, a[{f0+2*h}:{f0+2*h+1}], v[{b}:{b+1}], {vr(d) if (fp or h) else 0}")
            mf2 = []
            for n in range(0, 30, 2):
                a_, b_ = mf[4*n:4*n+4], mf[4*n+4:4*n+8]
                mf2 += [a_[0], a_[1], b_[0], b_[1], a_[2], a_[3], b_[2], b_[3]]
            if c.skip & 4: mf2 = mf2[:8]; reads = reads[:2]
            self.stream(mf2, reads, [], None, LA=20, bg=lambda m: self.ph2_bg)
            for j in range(2): e(f"v_add_f32 v{8+2*j}, {fl(1e-6)}, v{156+24*j+20}")
            for j in range(2): e(f"v_rcp_f32 v{8+2*j}, v{8+2*j}")
            for j in range(2): e(f"v_mul_f32 v{8+2*j}, v{8+2*j}, v{250+j}")
            for j in range(2):
                D = 156 + 24 * j
                for i in range(10): e(f"v_pk_mul_f32 v[{D+2*i}:{D+2*i+1}], v[{D+2*i}:{D+2*i+1}], v[{8+2*j}:{9+2*j}] op_sel_hi:[1,0]")
                for i in range(10): e(f"v_cvt_pk_bf16_f32 v{D+i}, v{D+2*i}, v{D+2*i+1}")
                for i in range(10): e(f"v_min_u32 v{D+i}, -2, v{D+i}")
                e.vmop(f"buffer_store_dwordx4 {vr(D)}, v6, {srd(SWS)}, s38 offen offset:{j*1024} sc1", 'ost')
                e.vmop(f"buffer_store_dwordx4 {vr(D+4)}, v240, {srd(SWS)}, s38 offen offset:{j*1024} sc1", 'ost')
                e.vmop(f"buffer_store_dwordx2 {vr(D+8, 2)}, v6, {srd(SWS)}, s39 offen offset:{j*1024} sc1", 'ost')
            self.busy = []
            for p in pool: p[1] = 999
            pool.extend([[('v', r), 999] for r in range(116, 156, 4)])
            self.stamp(14)
        self.bias2()
        self.phase2({c.p3: h_p3, c.c3: h_c3, c.mo: h_o, c.p1q: self.poll4b_issue, c.c1q: self.poll4b_check})

    def prog_KV(self):
        e = self.e; c = self.c; self.init_B(); self.dmap = {0: 2, 1: 4, 3: 6, 4: 8, 5: 10, 7: 12, 9: 14}
        ST = KV_ST
        e(f"""s_mul_i32 s{sM0+1}, s{sW}, 5120
        s_add_u32 s{sM0+1}, s{sM0+1}, 16384
        s_lshl_b32 s{sM0+2}, s{sW}, 11
        s_add_u32 s{sM0+2}, s{sM0+2}, 36864
        s_lshl_b32 s{sKW}, s{sHG}, 7
        s_add_u32 s{sKW}, s{sKW}, {19*128}""")
        def dma_x(st):
            g = []
            for j in range(4):
                it = [('x', f"s_add_u32 m0, s{sM0}, {(st%3)*ST}")] if j == 0 else []
                g.append(it + [('vm', f"buffer_load_dwordx4 v{208+j}, {srd(SX)}, s{sE+st} offen offset:{j*1024} {c.xsc} lds", ('S', st))])
            return g
        def dma_w(st, i):
            it = []
            if i == 0: it = [('x', f"s_mul_i32 s{sKA}, s{sE+st}, 1920"), ('x', f"s_add_u32 m0, s{sM0+1}, {(st%3)*ST}")]
            if i == 4: it = [('x', "s_add_u32 m0, m0, 4096")]
            return it + [('vm', f"buffer_load_dwordx4 v{212+i}, {srd(SQ)}, s{sKA} offen offset:{(i%4)*1024} {c.wsc} lds", ('S', st))]
        def dma_h(st, i):
            it = [('x', f"s_mul_i32 s{sKB}, s{sE+st}, 1728"), ('x', f"s_add_u32 m0, s{sM0+2}, {(st%3)*ST}")] if i == 0 else []
            return it + [('vm', f"buffer_load_dwordx4 v{217+i}, {srd(S1)}, s{sKB} offen offset:{i*1024} {c.wsc} lds", ('S', st))]
        def dma_stage(st): return dma_x(st) + [dma_w(st, i) for i in range(5)] + [dma_h(st, i) for i in range(2)]
        if c.fast:
            self.kernarg_wait()
            for g in dma_x(0): self.emit_items(g)
            self.small_dma(SM, 6, f"s{sKW}", L_BIASKV, 8, 'bias')
        e(f"""s_and_b32 s{sT0}, s{sW}, 1
        s_mul_i32 s{sT0}, s{sT0}, 320
        s_lshr_b32 s{sT1}, s{sW}, 1
        s_add_u32 s{sT1}, s{sT1}, 1
        s_mul_i32 s{sT1}, s{sT1}, 1280
        s_mul_i32 s{sT3}, s{sHG}, 160
        s_add_u32 s{sT1}, s{sT1}, s{sT3}""")
        for i in range(5):
            e(f"v_add_u32 v9, {64*i}, v0\nv_add_u32 v9, s{sT0}, v9")
            self.attn_voff(212 + i, None, sT1)
            if i % 4: e(f"v_subrev_u32 v{212+i}, {(i%4)*1024}, v{212+i}")
            if c.fast: self.emit_items(dma_w(0, i))
        if not c.fast:
            self.kernarg_wait()
            self.small_dma(SM, 6, f"s{sKW}", L_BIASKV, 8, 'bias')
            for g in dma_x(0) + [dma_w(0, i) for i in range(5)]: self.emit_items(g)
        e(f"s_lshl_b32 s{sT3}, s{sW}, 4\nv_lshlrev_b32 v11, 1, v2\nv_xor_b32 v11, v11, v0\nv_and_b32 v11, 7, v11")
        for pp in range(2):
            e(f"v_add_u32 v10, {8*pp}, v5\nv_add_u32 v10, s{sT3}, v10")
            self.swap23(10, 12)
            e(f"""v_mul_u32_u24 v10, 3456, v10
            v_lshl_add_u32 v10, v11, 4, v10
            v_add_u32 v10, s{sKW}, v10
            v_subrev_u32 v{217+pp}, {pp*1024}, v10""")
            self.emit_items(dma_h(0, pp))
        mk_srd(e, 28, pGATE, 1280)
        if c.rot == 3: e(f"v_xor_b32 v9, s{sE}, v6\nv_add_u32 v11, 1024, v9")
        else: e(f"v_add_u32 v9, s{sE}, v6\nv_subrev_u32 v10, 1280, v9\nv_min_u32 v9, v9, v10\nv_add_u32 v11, 1024, v9\nv_subrev_u32 v10, 1280, v11\nv_min_u32 v11, v11, v10")
        self.small_dma(28, 9, "0", L_GATE, 64, ('S', 0)); self.small_dma(28, 11, "0", L_GATE + 1024, 16, ('S', 0))
        self.pstamp(1)
        if c.pke:
            self.pack_setup()
            for g in self.pack_loads(): self.emit_items(g)
        if c.touch == 1: self.touch()
        if c.touch == 4:
            self.touch3_setup()
            for p_ in range(c.tp0): self.emit_items(self.touch3(p_))
        self.pstamp(2)
        def setup():
            e = self.e
            self.x_addr(ST); self.rho0(8)
            e(f"v_mul_u32_u24 v9, 160, v8\nv_mad_u32_u24 v9, v4, 40, v9\nv_add_u32 v226, 16384, v9")
            for sl in (1, 2): e(f"v_add_u32 v{226+sl}, {sl*ST}, v226")
            e(f"v_lshlrev_b32 v9, 7, v8\nv_lshl_add_u32 v9, v4, 3, v9\nv_add_u32 v9, 36864, v9\nv_bfe_u32 v10, v8, 1, 2")
            for t in range(4): e(f"v_xor_b32 v11, {t}, v10\nv_lshl_add_u32 v{229+t}, v11, 5, v9\nv_add_u32 v{204+t}, {2*ST}, v{229+t}")
            e(f"v_lshlrev_b32 v233, 4, v2\nv_add_u32 v233, {L_GATE}, v233\nv_lshlrev_b32 v253, 3, v2\nv_add_u32 v253, {L_BIASKV}, v253")
            self.common_setup()
            if not c.pke: self.pack_setup()
            e(f"""v_lshrrev_b32 v8, 2, v1
            v_mul_u32_u24 v8, 2560, v8
            v_lshl_add_u32 v8, v4, 5, v8
            v_lshrrev_b32 v9, 1, v2
            v_lshl_add_u32 v8, v9, 9, v8
            v_and_b32 v9, 1, v2
            v_lshl_add_u32 v8, v9, 4, v8
            s_lshl_b32 s{sT0}, s{sW}, 7
            v_add_u32 v241, s{sT0}, v8
            v_add_u32 v243, 10240, v241
            v_mov_b32 v9, {OOB}
            v_cmp_ge_u32 vcc, 7, v1
            v_cndmask_b32 v243, v9, v243, vcc
            v_cmp_gt_u32 vcc, 2, v2
            v_cndmask_b32 v242, v9, v241, vcc
            v_cndmask_b32 v244, v9, v243, vcc
            v_mul_u32_u24 v12, {PSZ}, v2
            v_min_u32 v10, 14, v1
            v_lshl_add_u32 v12, v10, 4, v12
            v_lshlrev_b32 v13, 4, v1
            v_cmp_gt_u32 vcc, 16, v0
            v_cndmask_b32 v234, v9, v13, vcc
            v_cmp_gt_u32 vcc, 15, v0
            v_cndmask_b32 v13, v9, v13, vcc""")
        self.interleave(self.record(setup), dma_stage(1)[:c.n1], c.pe2)
        self.pstamp(3)
        if c.n1 >= 12:
            self.small_dma(SM, 6, "s36", None, 50, 'misc', "s_mov_b32 m0, s37")
            if c.touch == 2: self.touch()
            if not c.pke:
                for g in self.pack_loads(): self.emit_items(g)
        self.tag_wait(); self.pstamp(4)
        e.wait(vm='bias')
        for s_ in range(4): e.lgop(f"ds_read_b64 v[{136+2*s_}:{137+2*s_}], v253 offset:{s_*32}", ('b', s_))
        for s_ in range(4):
            e.wait(lg=('b', s_))
            for h in range(2): e(f"v_lshlrev_b32 v{96+8*s_+2*h}, 16, v{136+2*s_+h}\nv_and_b32 v{97+8*s_+2*h}, 0xffff0000, v{136+2*s_+h}")
        self.stamp(0)
        NS = 15; nm = NS * 4; mf = []; reads = []
        for st in range(10):
            sl = st % 3
            for t in range(NS):
                gs = st * NS + t; wr = 168 + 8 * (gs % 4); m0 = len(mf)
                for ks in range(2):
                    if t == 14: reads.append([f"ds_read_b128 {vr(wr+4*ks)}, v233 offset:{(st*2+ks)*64}", m0, st, m0 - 13]); continue
                    for rd in range(2):
                        if t < 10: ad, off = 226 + sl, (t // 5) * 10240 + ks * 5120 + rd * 1280 + (t % 5) * 8
                        else: ad, off = (229 if sl < 2 else 204) + t - 10, (sl % 2) * ST + ks * 4096 + rd * 1024
                        reads.append([f"ds_read_b64_tr_b16 v[{wr+4*ks+2*rd}:{wr+4*ks+2*rd+1}], v{ad} offset:{off}", m0, st, m0 - 13])
                for j in ((1, 0) if st == 0 else (0, 1)):
                    for ks in range(2):
                        xr = 136 + (st % 2) * 16 + (j * 2 + ks) * 4; d = 16 + (t * 2 + j) * 4
                        if t == 0: reads.append([f"ds_read_b128 {vr(xr)}, v{220+2*sl+ks} offset:{j*2048}", len(mf), st, -1])
                        cc = vr(d)
                        if st == 0 and ks == 0: cc = vr(16 + t * 8) if 10 <= t < 14 else "0"
                        mf.append(f"v_mfma_f32_16x16x32_bf16 {vr(d)}, {vr(wr+4*ks)}, {vr(xr)}, {cc}")
        self.kloop(mf, reads, nm, dma_stage, [], 'KV')
        A64 = lambda u: u < 64; ALL = lambda u: True
        A51 = lambda u: u < 51; Sa = c.Sa
        KQ = 136; PR = 168; VT = 156
        nl2e = fl(-math.log2(math.e))
        side = [l.strip() for l in f"""v_mul_f32 v128, {nl2e}, v128
        v_mul_f32 v132, {nl2e}, v132
        v_exp_f32 v128, v128
        v_exp_f32 v132, v132
        s_lshl_b32 s{sT2}, s{sMT}, 2
        v_add_f32 v128, 1.0, v128
        v_add_f32 v132, 1.0, v132
        v_rcp_f32 v128, v128
        v_rcp_f32 v132, v132
        s_add_u32 s{sT2}, s{sT2}, s{sW}
        s_lshl_b32 s{sT3}, s{sT2}, 9
        s_lshl_b32 s{sT4}, s{sHG}, 15
        s_add_u32 s{sT3}, s{sT3}, s{sT4}
        s_add_u32 s{sT3}, s{sT3}, {GB}
        v_mul_u32_u24 v220, {RSV}, v1
        v_mad_u32_u24 v220, v2, 48, v220
        s_mul_i32 s{sT0}, s{sW}, {32*RSV}
        s_add_u32 s{sT0}, s{sT0}, {L_V}
        v_add_u32 v220, s{sT0}, v220
        v_mul_u32_u24 v221, {RSP}, v1
        s_mov_b32 s{sT0}, 80
        v_mad_u32_u24 v221, v2, s{sT0}, v221
        s_mul_i32 s{sT0}, s{sW}, {32*RSP}
        v_add_u32 v221, s{sT0}, v221
        v_lshl_add_u32 v8, v2, 2, v3
        v_mul_u32_u24 v222, {RSP}, v8
        v_lshl_add_u32 v222, v4, 3, v222
        s_mul_i32 s{sT0}, s{sW}, 80
        v_add_u32 v222, s{sT0}, v222
        v_mul_u32_u24 v223, {RSV}, v8
        v_lshl_add_u32 v223, v4, 3, v223
        s_mul_i32 s{sT0}, s{sW}, 48
        s_add_u32 s{sT0}, s{sT0}, {L_V}
        v_add_u32 v223, s{sT0}, v223
        s_lshl_b32 s{sT0}, s{sHG}, 4
        s_add_u32 s{sT0}, s{sT0}, s{sMT}
        s_mul_i32 s{sT1}, s{sT0}, {PSZ}
        s_add_u32 s{sT1}, s{sT1}, {PP}
        s_mov_b32 s{sC0}, {fl(math.log2(math.e))}""".split("\n")]
        self.valu(self.cvt_heads(16, KQ, 0) + self.cvt_heads(16, KQ + 10, 1))
        e.wait(lg='wphi')
        side = self.cvt_heads(56, VT, 0) + side[:38]; rest = [side.pop() for _ in range(0)]
        self.valu(self.phi_mfmas(KQ, PR), [[('x', l)] for l in side], 1)
        e(f"v_mov_b32 v{VT+10}, 0x3f80\nv_mov_b32 v{VT+11}, 0\ns_mov_b32 s{sC0}, {fl(math.log2(math.e))}\ns_barrier")
        for i in range(3): e.lgop(f"ds_write_b128 v220, {vr(VT+4*i)} offset:{i*16}", 'vw')
        for j in range(2):
            for i in (3, 2, 1, 0): e(self.tag_put(128 + 4 * j + i, 128 + 4 * j))
            e.vmop(f"buffer_store_dwordx4 {vr(128+4*j)}, v234, {srd(SWS)}, s{sT3} offen offset:{j*256} sc1", 'hst')
        L0 = self.softmax_lines(PR, 16, 136)
        self.valu(L0[:16], bg=ALL, S=Sa)
        self.valu(self.cvt_heads(56, 208, 1) + ["v_mov_b32 v218, 0x3f80", "v_mov_b32 v219, 0"], bg=ALL, S=Sa)
        for i in range(3): e.lgop(f"ds_write_b128 v220, {vr(208+4*i)} offset:{16*RSV + i*16}", 'vw')
        self.valu(L0[16:], bg=ALL, S=Sa)
        PH = (136, 56)
        pw = lambda j: [[('lg', f"ds_write_b128 v221, {vr(PH[j]+4*i)} offset:{j*16*RSP + i*16}", 'pw')] for i in range(5)]
        L1 = self.softmax_lines(PR + 20, 16, 56)
        self.valu(L1[:40], pw(0), 8, ALL, Sa)
        self.valu(L1[40:-20], bg=ALL, S=Sa)
        self.valu(L1[-20:], pw(1), 4)
        e.wait(lg_all=True); e("s_barrier")
        self.stamp(2)
        mf = []; reads = []; D0 = 168
        for s_ in range(4):
            b0 = 16 + s_ * 20; m0 = len(mf)
            for dt in range(2):
                for rd in range(2): reads.append([f"ds_read_b64_tr_b16 v[{b0+12+4*dt+2*rd}:{b0+13+4*dt+2*rd}], v223 offset:{(32*s_+16*rd)*RSV + dt*32}", m0 + dt, -1, -1])
            for ft in range(3):
                for rd in range(2): reads.append([f"ds_read_b64_tr_b16 v[{b0+4*ft+2*rd}:{b0+4*ft+2*rd+1}], v222 offset:{(32*s_+16*rd)*RSP + ft*32}", m0 + 2 * ft, -1, -1])
                for dt in range(2):
                    d = D0 + (ft * 2 + dt) * 4
                    mf.append(f"v_mfma_f32_16x16x32_bf16 {vr(d)}, {vr(b0+4*ft)}, {vr(b0+12+4*dt)}, {vr(d) if s_ else 0}")
        reads.sort(key=lambda r: r[1]); rp = 0
        for m in range(24):
            while rp < 40 and (len(e.lg) < 14 and (m == 0 or reads[rp][1] <= m + 8) or reads[rp][1] <= m): e.lgop(reads[rp][0], ('kv', reads[rp][1])); rp += 1
            e.wait(lg=[('kv', k) for k in range(m + 1)])
            e(mf[m])
            if c.kvb: self.bg_try(ALL, c.kvb)
        self.gelu_consts()
        e(f"""s_lshl_b32 s{sT4}, s{sMT}, 1
        s_lshr_b32 s{sT5}, s{sW}, 1
        s_add_u32 s{sT4}, s{sT4}, s{sT5}
        s_and_b32 s{sT5}, s{sW}, 1
        s_mul_i32 s{sT3}, s{sT4}, 74
        s_lshl_b32 s{sKW}, s{sHG}, 1
        s_add_u32 s{sT3}, s{sT3}, s{sKW}""")
        for ft in range(3):
            for dt in range(2):
                for i in range(4): e(self.tag_put(D0 + (ft * 2 + dt) * 4 + i))
                e.vmop(f"buffer_store_dwordx4 {vr(D0+(ft*2+dt)*4)}, v{241+2*dt+(ft==2)}, {srd(SWS)}, s{sT1} offen offset:{ft*1024} sc1", 'pst')
        self.stamp(3)
        if c.stamps: self.gelu_consts()
        e(f"""s_add_u32 s{sT3}, s{sT3}, 38
        s_lshl_b32 s{sT3}, s{sT3}, 12
        s_lshl_b32 s{sT5}, s{sT5}, 11
        s_add_u32 s{sT3}, s{sT3}, s{sT5}
        s_add_u32 s{sT3}, s{sT3}, {A2}
        s_lshl_b32 s{sKW}, s{sMT}, 4
        s_add_u32 s{sKW}, s{sKW}, s{sHG}
        s_lshl_b32 s{sKW}, s{sKW}, 7
        s_add_u32 s{sKW}, s{sKW}, {F4+1024}
        s_cmp_eq_u32 s{sW}, 0
        s_cselect_b32 s{sKW}, s{sKW}, {OOB}
        s_mul_i32 s32, s{sT2}, 240
        s_mul_i32 s{sT4}, s{sHG}, {FSZ}
        s_add_u32 s{sT1}, s32, s{sT4}
        s_add_u32 s{sT1}, s{sT1}, {FIN}
        s_lshl_b32 s{sT4}, s{sT4}, 4
        s_add_u32 s32, s32, s{sT4}
        s_add_u32 s32, s32, {PP}
        s_add_u32 s33, s32, {4*PSZ}
        s_add_u32 s34, s33, {4*PSZ}
        s_add_u32 s35, s34, {4*PSZ}""")
        L = []; hs = []
        for p in range(2):
            for j in range(2):
                O = 152 + 4 * ((2 * p + j) % 4)
                L += self.gelu_lines(96 + (4 * p + j) * 4, 96 + (4 * p + 2 + j) * 4, 136 + 8 * j, O)
                hs.append(('vm', f"buffer_store_dwordx4 {vr(O)}, v{6 if p == 0 else 240}, {srd(SWS)}, s{sT3} offen offset:{j*1024} sc1", 'hst'))
        RD = 116
        pld = [f"buffer_load_dwordx4 {vr(RD+4*i)}, v12, {srd(SWS)}, s{32+i} offen sc1" for i in range(4)]
        self.valu(L, bg=ALL if c.kgb else None, S=Sa)
        for l in pld: e.vmop(l, 'pld')
        if c.kp4 == 0: self.poll4a_issue()
        self.emit_items(hs)
        pool = [[('v', r), 999] for r in list(range(168, 224, 4)) + list(range(136, 168, 4))]
        for _ in range(c.kb2): self.bg_try(ALL, -9999)
        self.stamp(4)
        def h_r2():
            red = [self.tag_strip(RD + i) for i in range(16)]
            red += [f"v_add_f32 v{RD+i}, v{RD+i}, v{RD+4+i}" for i in range(4)] + [f"v_add_f32 v{RD+8+i}, v{RD+8+i}, v{RD+12+i}" for i in range(4)] + [f"v_add_f32 v{RD+i}, v{RD+i}, v{RD+8+i}" for i in range(4)]
            for sw in ('32', '16'):
                red += [f"v_mov_b32 v{RD+4+i}, v{RD+i}" for i in range(4)] + [f"v_permlane{sw}_swap_b32 v{RD+i}, v{RD+4+i}" for i in range(4)] + [f"v_add_f32 v{RD+i}, v{RD+i}, v{RD+4+i}" for i in range(4)]
            red += [self.tag_put(RD + i) for i in range(4)]
            it = [('st', 14, 1), ('wvm', 'pld')] + [('x', l) for l in self.tag_check(pld, range(RD, RD + 16), 9)] + [('st', 5, 1)] + [('x', l) for l in red]
            it += [('vm', f"buffer_store_dwordx4 {vr(RD)}, v13, {srd(SWS)}, s{sT1} offen sc1", 'fst')]
            self.emit_items(it); pool.extend([[('v', r), 999] for r in range(RD, RD + 20, 4)])
        def h_f4():
            e.wait(vm='hst'); e("s_barrier"); e.vmop(self.flag_store(245, 246, f"s{sKW}"), 'f4st')
        h_r2()
        if c.f4k < 0: h_f4()
        if c.kp4 == 1:
            self.poll4a_issue()
            for _ in range(c.kb3): self.bg_try(ALL, -9999)
        self.ph2_begin(pool)
        while len(self.Bpend) > c.kleft: self.bg_try(ALL, -9999)
        self.stamp(6)
        self.bias2()
        self.phase2({c.f4k: h_f4, c.p1: self.poll4b_issue, c.c1: self.poll4b_check})

    def kloop(self, mf, reads, nm, dma_stage, poison, name):
        e = self.e; c = self.c; back = []
        def mksync(st):
            def f(m):
                tg = [it[2] for g in back for it in (g[1] if g[0] == 'atomic' else g) if it[0] == 'vm']
                assert not (st == c.pks and 'packld' in tg) and not (st == c.pks + 3 and 'pkst' in tg) and not (st == 3 and 'misc' in tg) and ('S', st) not in tg
                e.wait(vm=[('S', st)] + (['pkst'] if st == c.pks + 3 else []) + (['misc'] if st == 3 else []) + (['packld'] if st == c.pks else []), lg_all=True); e("s_barrier")
                self.stamp(st + 1, 2)
                if st < 3: self.stamp(7 + st, 3)
                if st == 2: self.pstamp_flush()
                out = []
                if st == 0 and c.n1 < 12:
                    back.extend(dma_stage(1)[c.n1:])
                    back.append(('atomic', self.record(lambda: self.small_dma(SM, 6, "s36", None, 50, 'misc', "s_mov_b32 m0, s37"))))
                if st + 2 < 10: back.extend(dma_stage(st + 2))
                if st == c.pkl and c.n1 < 12: back.extend(self.pack_loads())
                if st == c.pks: back.extend(self.pack_stores())
                need = max([k + 1 for k, g in enumerate(back) if g[0] != 'atomic' and g[-1][2] == ('S', st + 1)], default=0)
                n = min(len(back), max(c.quota, need)) if st < 7 else len(back)
                take = back[:n]; del back[:n]
                if take:
                    pc = self.paced([g[1] if g[0] == 'atomic' else g for g in take], m, nm - c.dtail)
                    for f, g in zip(pc, take):
                        if g[0] == 'atomic': f['atomic'] = 1
                    out += pc
                if c.touch == 4: out += [dict(at=m + nm - c.dtail + 1, chain=1, ins=self.touch3(p_)) for p_ in range(c.tp0, 3) if c.tst[p_] == st]
                if st in c.cpf: out.append(dict(at=m + nm - c.dtail + 2, ins=self.code_touch('L_QH' if name == 'KV' else 'L_end')))
                if st == c.pks: out += self.pack_fill(m, nm)
                if st == c.pks + 3: out.append(dict(at=m + 1, ins=[('vm', self.flag_store(245, 246, f"s{sF1}"), 'f1st')]))
                if st == 3: out += [dict(at=m + 3 + 5 * k, ins=g) for k, g in enumerate(self.wphi_reads(254))]
                if st == c.f1s - 1: out += [dict(at=m + nm - c.dtail + 2 * k, chain=1, ins=g) for k, g in enumerate(self.f1_issue())]
                if st == c.f1s:
                    chk = [dict(at=m + c.f1c + 2 * k, ins=[it]) for k, it in enumerate(self.f1_check())]
                    out += chk
                    if c.bt: out += [dict(at=m + c.f1c + 26 + c.btsp * k, ins=g) for k, g in enumerate(self.btouch())]
                if st == 8:
                    if poison: out += self.paced(poison, m, 30)
                    self.bg0 = max(m + c.bgs, (m + c.f1c + 28) if c.f1s == 8 else 0)
                return out
            return f
        self.bg0 = 9999; self.wphi_addr(254)
        self.stream(mf, reads, [], {st: mksync(st) for st in range(10)}, name=name, bg=lambda m: (lambda u: m >= self.bg0 and u < 51))
        self.stamp(1); self.stamp(11, 2)
        self.typ = name
        if c.dly == (1 if name == 'KV' else 2): e('s_sleep 16')
        self.ph2_pre()

    def ph2_pre(self):
        e = self.e
        mk_srd(e, SM, pB2, 1280); mk_srd(e, SPK, pOUT, 2048 * 1280)
        e(f"""s_mul_i32 s{sM0}, s{sNB}, 160
        s_and_b32 s{sM0+1}, s{sNB}, 1
        s_lshl_b32 s{sM0+2}, s{sM0+1}, 5
        s_add_u32 s{sM0+2}, s{sM0+2}, s{sM0}
        s_xor_b32 s{sM0+1}, s{sM0+1}, 1
        s_lshl_b32 s{sM0+1}, s{sM0+1}, 7
        s_add_u32 s{sM0+1}, s{sM0+1}, s{sM0}
        s_min_u32 s{sM0+3}, s{sW}, 1
        s_mul_i32 s{sM0+3}, s{sM0+3}, 1280
        s_sub_u32 s{SM+2}, 1280, s{sM0+3}
        s_lshr_b32 s{sM0+5}, s{sRB}, 1
        s_lshl_b32 s{sM0+3}, s{sM0+5}, 11
        s_add_u32 s{sM0+3}, s{sM0+3}, {F4}
        s_add_u32 s{sM0+4}, s{sM0+3}, 1024
        v_and_b32 v235, 7, v0
        v_lshlrev_b32 v235, 7, v235""")
        e("v_lshlrev_b32 v7, 4, v2\nv_lshlrev_b32 v8, 3, v2")
        e.vmop(f"buffer_load_dwordx4 v[224:227], v7, {srd(SM)}, s{sM0+2} offen", 'b2')
        e.vmop(f"buffer_load_dwordx4 v[228:231], v7, {srd(SM)}, s{sM0+2} offen offset:64", 'b2')
        e.vmop(f"buffer_load_dwordx2 v[232:233], v8, {srd(SM)}, s{sM0+1} offen", 'b2')
    def poll4a_issue(self): self.e.vmop(self.poll_issue(235, 252, 2, None, f"s{sM0+3}"), 'p4a')

    def poll4b_issue(self): self.e.vmop(self.poll_issue(235, 252, 2, None, f"s{sM0+4}"), 'p4b')
    def poll4b_check(self):
        e = self.e
        self.stamp(10)
        e.wait(vm='p4b')
        for l in self.poll_check([(235, 252, 2, f"s{sM0+4}")]): e(l)
        self.stamp(11)
        self.gate[1] = True; self.g_loads()
        for _ in range(self.c.burst): self.try_issue(self.m, True)
    def g_loads(self):
        e = self.e
        e(f"s_lshl_b32 s{sT0}, s{sRB}, 10\ns_add_u32 s{sT0}, s{sT0}, {GB}\nv_lshlrev_b32 v7, 4, v1")
        for jj in range(4):
            e(f"v_subrev_u32 v8, v6, v{236+jj}\nv_lshrrev_b32 v8, 2, v8\nv_add_u32 v8, v8, v7")
            e.vmop(f"buffer_load_dword v{241+jj}, v8, {srd(SWS)}, s{sT0} offen sc1", 'g')
    def bias2(self):
        e = self.e; BI = 96
        e.wait(vm='b2')
        for t in range(5):
            for h in range(2):
                s_ = 224 + 2 * t + h
                e(f"v_lshlrev_b32 v{BI+4*t+2*h}, 16, v{s_}\nv_and_b32 v{BI+4*t+2*h+1}, 0xffff0000, v{s_}")

    def ph2_begin(self, pool):
        e = self.e; c = self.c
        e.wait(vm='p4a')
        for l in self.poll_check([(235, 252, 2, f"s{sM0+3}")]): e(l)
        self.pool = pool; self.busy = []; self.Aloc = {}; self.Bl = dict(self.Bloc); self.Acur = {}
        groups = [(0, 1), (2, 3), (4, 5), (6, 7), (8, 9), (10, 11), (12, 13), (14, 15), (16, 17, 18)]
        self.mf = [(i, t, j) for g in groups for t in range(5) for j in range(4) for i in g]
        fA, lA, fB, lB = {}, {}, {}, {}
        for m, (i, t, j) in enumerate(self.mf):
            fA.setdefault((i, j), m); lA[(i, j)] = m; fB.setdefault((i, t), m); lB[(i, t)] = m
        self.lA, self.lB = lA, lB
        w = [('A', k, fA[k] if k[0] < 14 else (280 if k[0] < 16 else 320) - c.vlead - 1, lA[k]) for k in fA]
        w += [('S', k, fB[k], lB[k]) for k in fB if self.Bl[k] and self.Bl[k][0] == 'l']
        w += [('B', k, fB[k], lB[k]) for k in fB if self.Bl[k] is None]
        self.fB = fB
        self.work = sorted(w, key=lambda x: (x[2] // 40 * 40 + x[1][0] % 2 * 4 + x[1][1]) if (x[0] == 'A' and c.aord and x[1][0] < 14) else x[2]); self.gate = {0: True, 1: False, 2: False, 3: False}; self.Atxt = {}; self.lastiss = -99; self.m = 0
        for _ in range(c.a0): self.try_issue(0, True)

    def try_issue(self, m, force=False, nos=False):
        e = self.e; c = self.c; pool = self.pool
        cls = lambda i: 0 if i < 10 else (1 if i < 14 else 2 if i < 16 else 3)
        for w in self.work:
            kind, k, dl, last = w
            if kind == 'A' and not self.gate[cls(k[0])]: continue
            if kind == 'S' and (nos or dl - m > 16 or self.Border.index(k) in self.Bpend): continue
            if kind != 'S' and not force and dl - m >= 12 and e.t - e.tvm < (c.S2 if dl - m >= c.urg else c.S3): continue
            if kind == 'P':
                self.Bpend.remove(k); self.emit_items(self.B_take([k])[0]); self.work.remove(w); return True
            ok = [p for p in pool if p[1] > last and p not in self.busy and (p[0][0] == 'v' or kind != 'A' or k[0] < 14)]
            if not (kind == 'A' and k[0] >= 14): ok.sort(key=lambda p: p[0][0] == 'v' and m > 150)
            if len(ok) < (1 if dl - m <= 40 else 4 if kind == 'A' else 7): continue
            p = ok[0]; pool.remove(p); loc = p[0]; self.until[loc] = p[1]
            if kind == 'A':
                i, j = k; sr = sAT if i % 2 == 0 else sAT2
                if self.Acur.get(sr) != i:
                    e(self.soff(sr, i, 'A')); self.Acur[sr] = i
                e.vmop(f"buffer_load_dwordx4 {R(loc)}, v{236+j}, {srd(SWS)}, s{sB if c.xA == 1 and i < 14 else 41 if c.xA == 2 else sr} offen sc1", ('A', k)); self.Aloc[k] = loc
                self.Atxt[k] = self.soff(sT1, i, 'A').split("\n") + [ f"buffer_load_dwordx4 {R(loc)}, v{236+j}, {srd(SWS)}, s{sT1} offen sc1"]
            elif kind == 'B':
                self.emit_items(self.B_items(k, loc)); self.Bl[k] = loc
            else:
                e.wait(vm=('B', k))
                e.lgop(f"ds_read_b128 {R(loc)}, v234 offset:{self.Bl[k][1]*1024}", ('S', k)); self.Bl[k] = loc
            if kind != 'S': self.lastiss = m
            if c.verbose > 1: print(f'{kind}{k}@{m}->{dl}', end=' ')
            self.work.remove(w); return True
        return False

    def phase2(self, hooks):
        e = self.e; c = self.c
        ACC = 16; BI = 96; pool = self.pool; mf = self.mf; Bl = self.Bl; Aloc = self.Aloc
        mtrans = min(m for m, x in enumerate(mf) if x[0] >= 14)
        if c.verbose: print("B loads left for phase 2:", len(self.Bpend))
        hooks = {k: v for k, v in hooks.items() if k >= 0}
        for u in self.Bpend:
            k = self.Border[u]; self.work.append(('P', u, self.fB[k] - (20 if self.Bloc[k][0] == 'l' else 0), 0))
        self.work.sort(key=lambda x: (x[2] // 40 * 40 + x[1][0] % 2 * 4 + x[1][1]) if (x[0] == 'A' and c.aord and x[1][0] < 14) else x[2])
        e(f"s_add_u32 s{sT0}, s88, {L_BL}\nv_add_u32 v234, s{sT0}, v6")
        pool += [[('v', r), 999] for r in (224, 228)]
        if c.dly == (3 if self.typ == 'KV' else 4): e('s_sleep 16')
        seen = set(); vchk = {280: (14, 15), 320: (16, 17, 18)}
        aq = []
        lastH = {}; firstO = {}; lastO = {}
        for m, (i, t, j) in enumerate(mf):
            if i < 14: lastH[(j, t)] = m
            else: firstO.setdefault((j, t), m); lastO[(j, t)] = m
        g0 = min(lastH.values()) - 10
        aq.append([g0, g0 + 4, ('wvm', 'g')])
        for jj in range(4): aq += [[g0, g0 + 8, ('x', self.tag_strip(241 + jj))]]
        for jj in range(4): aq += [[g0, g0 + 12, ('x', f"v_sub_f32 v{241+jj}, 1.0, v{241+jj}")]]
        for k in sorted(lastH, key=lambda k: lastH[k]):
            jj, tt = k; d = ACC + (jj * 5 + tt) * 4
            for q in range(4): aq.append([lastH[k] + 3, firstO[k] - 2, ('x', f"v_mul_f32 v{d+q}, v{241+jj}, v{d+q}")])
        adr = []
        for jj in range(1, 4):
            adr += [f"s_add_u32 s{sT0}, s{sW}, {jj}", f"s_and_b32 s{sT0}, s{sT0}, 3", f"s_mul_i32 s{sT0}, s{sT0}, 15360",
                    f"s_add_u32 s{sT0}, s{sT0}, {L_RED + (jj-1)*5120}", f"v_add_u32 v{8+jj}, s{sT0}, v6"]
        adr += [l.strip() for l in f"""s_mul_i32 s{sT0}, s{sW}, 15360
        s_add_u32 s{sT0}, s{sT0}, {L_RED}
        v_add_u32 v8, s{sT0}, v6
        s_lshl_b32 s{sT0}, s{sRB}, 2
        s_add_u32 s{sT0}, s{sT0}, s{sW}
        s_mul_i32 s{sT0}, s{sT0}, {16*1280}
        s_add_u32 s{sT3}, s{sT0}, s{sM0+2}
        s_add_u32 s{sT2}, s{sT0}, s{sM0+1}
        v_mul_u32_u24 v12, 1280, v1
        v_lshl_add_u32 v13, v2, 3, v12
        v_lshl_add_u32 v12, v2, 4, v12""".split("\n")]
        for l in adr: aq.append([c.adr0, 325, ('x', l)])
        for k in sorted(lastO, key=lambda k: lastO[k]):
            jj, tt = k
            if jj: aq.append([lastO[k] + 3, 999, ('lg', f"ds_write_b128 v{8+jj}, {vr(ACC+(jj*5+tt)*4)} offset:{tt*1024}", 'rw')])
        self.aq = aq
        for m, (i, t, j) in enumerate(mf):
            self.m = m
            if m == mtrans: self.stamp(7)
            assert (i, j) in Aloc and Bl[(i, t)] and Bl[(i, t)][0] != 'l', (m, i, t, j)
            assert not any(a[1] < m for a in aq), (m, aq[0])
            e.wait(vm=[('A', (i, j)), ('B', (i, t))], lg=('S', (i, t)))
            d = ACC + (j * 5 + t) * 4
            cc = vr(d) if (j, t) in seen else vr(BI + 4 * t); seen.add((j, t))
            e(f"v_mfma_f32_16x16x32_bf16 {vr(d)}, {R(Bl[(i, t)])}, {R(Aloc[(i, j)])}, {cc}")
            k0 = len(e.ins)
            for loc, last in ((Aloc[(i, j)], self.lA[(i, j)]), (Bl[(i, t)], self.lB[(i, t)])):
                if last == m: pool.append([loc, self.until.get(loc, 999) if self.until.get(loc, 999) > m else 999])
            if m == 40: pool.extend([[('v', BI + 4 * k), 999] for k in range(5)])
            if m == 200 and c.dly == (5 if self.typ == 'KV' else 6): e('s_sleep 16')
            if m == c.o1: self.gate[2] = True
            if m == c.o2: self.gate[3] = True
            if m + 1 + c.vlead in vchk:
                mv = m + 1 + c.vlead; ks = [(ii, jj) for ii in vchk[mv] for jj in range(4)]
                assert all(k in Aloc for k in ks), (m, ks)
                vq = [('wvm', [('A', k) for k in ks])] + [('x', l) for l in self.valid_check(sum([self.Atxt[k] for k in ks], []), [Aloc[k][1] + q for k in ks for q in range(4)], 7)]
                if mv == 280: vq = [('st', 12, 1)] + vq + [('st', 13, 1), ('open',)]
                aq[:0] = [[m, mv - 1, it] for it in vq]
            if m in hooks: hooks[m]()
            self.try_issue(m)
            while any(w[2] - m < 4 for w in self.work) and self.try_issue(m): pass
            while True:
                av = [a for a in aq if a[0] <= m]
                if not av: break
                hurry = any(sum(1 for b in aq if b[1] <= a[1]) > 2 * (a[1] - m) for a in aq if a[1] < 999)
                a = min(av, key=lambda a: a[1])
                if len(e.ins) - k0 >= 2 and not hurry: break
                if a[2][0] == 'lg' and any(x.kind in ('dsw', 'dsr', 'vload', 'dma') for x in e.ins[k0:]): break
                aq.remove(a)
                if a[2][0] == 'open':
                    self.gate[3] = True
                    for _ in range(c.burst3): self.try_issue(m, True)
                elif a[2][0] == 'call': a[2][1]()
                else: self.emit_items([a[2]])
        assert not self.work, self.work
        self.stamp(8)
        for a in aq: self.emit_items([a[2]])
        e.wait(lg_all=True); e("s_barrier")
        for t in range(5):
            for s_ in range(3): e.lgop(f"ds_read_b128 {vr(116+(t*3+s_)*4)}, v8 offset:{s_*5120+t*1024}", ('rr', t))
        for t in range(5):
            e.wait(lg=('rr', t)); d = ACC + t * 4; r = 116 + t * 12
            e(f"""v_pk_add_f32 v[{d}:{d+1}], v[{d}:{d+1}], v[{r}:{r+1}]
            v_pk_add_f32 v[{d+2}:{d+3}], v[{d+2}:{d+3}], v[{r+2}:{r+3}]
            v_pk_add_f32 v[{r+4}:{r+5}], v[{r+4}:{r+5}], v[{r+8}:{r+9}]
            v_pk_add_f32 v[{r+6}:{r+7}], v[{r+6}:{r+7}], v[{r+10}:{r+11}]
            v_pk_add_f32 v[{d}:{d+1}], v[{d}:{d+1}], v[{r+4}:{r+5}]
            v_pk_add_f32 v[{d+2}:{d+3}], v[{d+2}:{d+3}], v[{r+6}:{r+7}]
            v_cvt_pk_bf16_f32 v{96+2*t}, v{d}, v{d+1}
            v_cvt_pk_bf16_f32 v{97+2*t}, v{d+2}, v{d+3}""")
            if t == 1: e.vmop(f"buffer_store_dwordx4 v[96:99], v12, {srd(SPK)}, s{sT3} offen {c.osc}", 'o')
            if t == 3: e.vmop(f"buffer_store_dwordx4 v[100:103], v12, {srd(SPK)}, s{sT3} offen offset:64 {c.osc}", 'o')
            if t == 4: e.vmop(f"buffer_store_dwordx2 v[104:105], v13, {srd(SPK)}, s{sT2} offen {c.osc}", 'o')
        self.stamp(9)
        e("s_endpgm")

    def build(self):
        e = self.e
        self.prologue()
        st = (list(e.vm), list(e.lg))
        self.until = {}
        self.prog_KV()
        e.vm, e.lg = list(st[0]), list(st[1])
        self.until = {}
        self.prog_QH()
        e("\n".join(self.tail))
        e("L_end:\ns_endpgm")
        body = e.finish()
        hdr = open('cdna_kernels/' + NAME + '.s.ref').read().split('; Override launch')[0]
        K = NAME + "_kernel"
        out = hdr + "; Generated by a hand-written Python generator (persistent fused kernel; see comments in the generator).\n"
        out += "; @launch grid=(256,1,1) block=(256,1,1) lds=163840\n"
        out += f'.amdgcn_target "amdgcn-amd-amdhsa--gfx950"\n.text\n.globl {K}\n.p2align 8\n.type {K},@function\n{K}:\n' + body
        out += f""".fill 64, 4, 0xbf800000
.section .rodata,"a"
.p2align 6
.amdhsa_kernel {K}
  .amdhsa_next_free_vgpr 512
  .amdhsa_next_free_sgpr 102
  .amdhsa_accum_offset 256
  .amdhsa_group_segment_fixed_size 0
  .amdhsa_kernarg_size 104
  .amdhsa_user_sgpr_count 2
  .amdhsa_user_sgpr_kernarg_segment_ptr 1
  .amdhsa_system_sgpr_workgroup_id_x 1
.end_amdhsa_kernel
"""
        return out

for k_, v_ in dict(rot=3, par=0, kp4=1, dly=0, kvb=0, VC=64, cnt=0, cpf=(), aord=1, nochk=0, skip=0, fast=1, n1=0, quota=28, pkl=0, tp0=1, tst=(0, 0, 1), sp1=24, tlb=0, tlb2=0, pks=3, pke=0, f1s=8, bt=0, btsp=20, bgs=30, qleft=0, kpre=180, kord=0, kgb=1, tmask=7, wbl=0, exit_at=-1, only=0, dstamp=0, xsc='', wsc='', psc='nt', pss='sc1', xA=0, S=48, S2=32, urg=50, S3=0, kb3=8, xB=0, mix=0, perm=0, kf1=60, pe=20, pe2=20, dtail=4, qb0=14, qb1=22, se=10, a0=14, ap=4, osc='sc1 nt', touch=1, kvring=3, f1c=24,
                   f4at=20, pa=100, pb=144, p3=65, c3=95, r1=30, r2=70, rspan=24, kbeg=0, kb1=20, kpa=60, mo=119, p1q=125, c1q=150, Sa=64, kb2=6, kleft=99, Sg=100, o2=226, o1=210, vlead=14, adr0=205, burst3=12, sleep2=3, f4k=-1, p1=110, c1=140, burst=4).items():
    setattr(Cfg, k_, v_)

def generate(**kw):
    c = Cfg()
    for k, v in kw.items(): setattr(c, k, v)
    g = Gen(c); g.e.VC = c.VC; t = g.build()
    return t, g

if __name__ == "__main__":
    kw = {}
    for a_ in sys.argv[2:]:
        k, v = a_.split('='); kw[k] = tuple(map(int, v.split(','))) if ',' in v else int(v, 0) if v.lstrip('-')[0].isdigit() else v.replace('+', ' ')
    t, g = generate(**kw)
    open(sys.argv[1], 'w').write(t)
    print("instructions:", len(g.e.ins), "nops added:", g.e.nop_added)
```

```python
import sys, math
from emit import Emit
NAME = "gated_mix__linear_kernel_hedgehog__dense_activation_gelu__prompt"

TAG = 0x0
F1 = 0x1000
F2 = 0x2000; F3 = 0x6000; F4 = 0xa000; F5 = 0x12000
STAMP = 0x1000000
GB = 0x280000
PP = 0x40000; PSZ = 15360
FIN = 0x240000; FSZ = 15360
PB = 0x300000
A2 = 0x600000
OOB = 0x7ff00000

K1 = 1024
QH_ST = 46 * K1; KV_ST = 44 * K1
MISC = 154 * K1
L_WPHI = MISC; L_GATE = MISC + 3200; L_BIASKV = MISC + 4480; L_BIASQH = MISC + 3200
L_PACK = 138 * K1
WH0 = 114 * K1; WH5 = 74 * K1
L_PHI = 0; RSP = 352; L_V = 128 * RSP; RSV = 224
L_BL = 72 * K1
NL = 18
L_RED = 0
L_FIN = 64 * K1

sW = 3
SX, SQ, S1, SWS, SPK, SM = 4, 8, 12, 16, 20, 24
pX, pQKV, pPHI, pWO, pBX, pW1, pB1, pW2, pB2, pGATE, pOUT, pDBG, pWS = [32 + 2 * i for i in range(13)]
sTAG = 58
sMT, sHG, sRB, sNB = 60, 61, 62, 63
sE = 64
sT0, sT1, sT2, sT3, sT4, sT5 = 74, 75, 76, 77, 78, 79
sM0 = 80
sBT, sAT, sB9, sA9, sAT2 = 100, 101, 86, 87, 55
sAo, sBo, sA8, sB8 = 44, 45, 56, 57
sKW, sK1 = 89, 90
sF1 = 91
sPKD = 92
sA, sB = 96, 97
sC0, sC1 = 98, 99
sP0 = 28

PKA = 200
TB = 10; TBM = (1 << TB) - 1; sTB = 58
AW = 204
def srd(r): return f"s[{r}:{r+3}]"
def vr(r, n=4): return f"v[{r}:{r+n-1}]" if n > 1 else f"v{r}"
def ar(r, n=4): return f"a[{r}:{r+n-1}]"
def R(loc, n=4): return (vr if loc[0] == 'v' else ar)(loc[1], n)
def fl(x):
    import struct
    return hex(struct.unpack('<I', struct.pack('<f', x))[0])

class Cfg:
    rot = 1; map2 = 1; stamps = 0; LA = 12; spin = 200000; codepf = 1; lag = 2; th1 = 2; th2 = 4; minlead = 4; verbose = 0; sleep = 1

sKA, sKB = 0, 1
def mk_srd(e, r, p, nbytes):
    e(f"s_mov_b32 s{r}, s{p}\ns_and_b32 s{r+1}, s{p+1}, 0xffff\ns_mov_b32 s{r+2}, {nbytes}\ns_mov_b32 s{r+3}, 0x20000")

class Gen:
    def __init__(self, cfg):
        self.c = cfg; self.e = Emit(); self.tail = []; self.uid = 0; self.nstamp = 0
    def record(self, fn):
        real = self.e
        class Rec:
            def __init__(r): r.items = []; r.lg = []; r.vm = []
            def __call__(r, t):
                for l in t.strip("\n").split("\n"):
                    if l.strip(): r.items.append(('x', l.strip()))
            def vmop(r, t, tag=None): r.items.append(('vm', t, tag))
            def lgop(r, t, tag=None): r.items.append(('lg', t, tag))
        rec = Rec(); self.e = rec
        try: fn()
        finally: self.e = real
        return rec.items
    def cnt(self):
        if not self.c.cnt: return [], []
        self.ncnt = getattr(self, 'ncnt', 0) + 1; k = self.ncnt - 1
        post = ["s_load_dwordx2 s[46:47], s[40:41], 88", f"s_sub_u32 s54, {self.c.spin}, s54", "s_lshl_b32 s54, s54, 12", "s_add_u32 s54, s54, 1", "s_waitcnt lgkmcnt(0)",
                "v_mov_b32 v14, s54", "v_mov_b32 v15, 0", "s_mov_b64 exec, 1", f"global_atomic_add v15, v14, s[46:47] offset:{k*4}", "s_mov_b64 exec, -1"]
        return [], post
    def lab(self, p):
        self.uid += 1; return f"L_{p}_{self.uid}"
    def stamp(self, i, grp=1):
        if self.c.dstamp and grp == 1:
            slot = self.dmap.get(i)
            if slot is None: return
            e = self.e
            e(f"s_memrealtime s[{sC0}:{sC1}]\ns_load_dwordx2 s[46:47], s[40:41], 88\ns_waitcnt lgkmcnt(0)\nv_mov_b32 v14, s{sC0}\nv_mov_b32 v15, 0"); e.lg = []
            e("s_cmp_eq_u32 s3, 0\ns_cselect_b64 exec, 1, 0")
            L = self.lab('ds'); e(f"s_cbranch_execz {L}")
            e(f"global_atomic_umax v15, v14, s[46:47] offset:{slot*4}")
            if i == 0: e(f"v_mov_b32 v14, s54\nglobal_atomic_umax v15, v14, s[46:47] offset:4\nv_not_b32 v14, v14\nglobal_atomic_umax v15, v14, s[46:47] offset:0")
            e(f"{L}:\ns_mov_b64 exec, -1")
            return
        if not self.c.stamps or (i and self.c.stamps != grp): return
        if self.c.only and i not in (0, self.c.only): return
        e = self.e
        e(f"s_memrealtime s[{sC0}:{sC1}]\ns_memtime s[46:47]\ns_waitcnt lgkmcnt(0)"); e.lg = []
        e(f"v_mov_b32 v14, s{sC0}\nv_mov_b32 v15, s46")
        e(f"s_lshl_b32 s{sC0}, s2, 2\ns_add_u32 s{sC0}, s{sC0}, s{sW}\ns_lshl_b32 s{sC0}, s{sC0}, 7\ns_add_u32 s{sC0}, s{sC0}, {STAMP}")
        e.vmop(f"buffer_store_dwordx2 v[14:15], v245, {srd(SWS)}, s{sC0} offen offset:{i*8}", 'stamp')
        if self.c.exit_at == i and grp == 1: e("s_endpgm")
        if i == 0:
            e(f"v_mov_b32 v14, s54\nv_mov_b32 v15, s40")
            e.vmop(f"buffer_store_dwordx2 v[14:15], v245, {srd(SWS)}, s{sC0} offen offset:{15*8}", 'stamp')

    def pstamp(self, i):
        if self.c.stamps == 3: self.e(f"s_memtime s[100:101]\ns_waitcnt lgkmcnt(0)\nv_mov_b32 v{(248,249,250,251,235)[i]}, s100")
    def pstamp_flush(self):
        if self.c.stamps != 3: return
        e = self.e
        e(f"s_lshl_b32 s{sC0}, s2, 2\ns_add_u32 s{sC0}, s{sC0}, s{sW}\ns_lshl_b32 s{sC0}, s{sC0}, 7\ns_add_u32 s{sC0}, s{sC0}, {STAMP}")
        for i in range(5): e.vmop(f"buffer_store_dword v{(248,249,250,251,235)[i]}, v245, {srd(SWS)}, s{sC0} offen offset:{(2+i)*8+4} sc1", 'stamp')
    def dump(self, name, regs):
        if getattr(self.c, 'dbg', None) != name: return
        e = self.e
        e(f"s_lshl_b32 s{sBT}, s2, 2\ns_add_u32 s{sBT}, s{sBT}, s{sW}\ns_lshl_b32 s{sBT}, s{sBT}, 14\ns_add_u32 s{sBT}, s{sBT}, 0x2000000\nv_lshlrev_b32 v7, 2, v0")
        for i, r in enumerate(regs):
            e.vmop(f"buffer_store_dword v{r}, v7, {srd(SWS)}, s{sBT} offen offset:{(i%16)*256}", 'dbg')
            if i % 16 == 15: e(f"s_add_u32 s{sBT}, s{sBT}, 4096")
        e.wait(vm='dbg'); self.Bcur = None

    def poll_issue(self, vaddr, vdst, n, tag, soff="0"):
        suf = {2: 'dwordx2', 4: 'dwordx4'}[n]
        return f"buffer_load_{suf} {vr(vdst, n)}, v{vaddr}, {srd(SWS)}, {soff} offen sc1"
    def poll_check(self, loads):
        Ls, Lb = self.lab('slow'), self.lab('back')
        cmps = []; ors = []; k = 0
        prs = ['vcc', 's[28:29]', 's[30:31]', 's[46:47]']
        for (va, vd, n, so) in loads:
            for h in range(n // 2):
                cmps.append(f"v_cmp_ne_u64 {prs[k]}, s[{sTAG}:{sTAG+1}], v[{vd+2*h}:{vd+2*h+1}]")
                if k: ors.append(f"s_or_b64 vcc, vcc, {prs[k]}")
                k += 1
        cmps = cmps[::-1] if False else cmps
        fast = cmps + ors + [f"s_cbranch_vccnz {Ls}\n{Lb}:" if not (self.c.nochk & 1) else f"{Lb}:"]
        t = [f"{Ls}:", f"s_mov_b32 s54, {self.c.spin}", f"{Ls}_l:"]
        if self.c.sleep: t.append(f"s_sleep {self.c.sleep}")
        for (va, vd, n, so) in loads: t.append(self.poll_issue(va, vd, n, None, so))
        t += ["s_waitcnt vmcnt(0)"] + cmps + ors
        t += ["s_sub_u32 s54, s54, 1", f"s_cbranch_vccz {Ls}_x", "s_cmp_lg_u32 s54, 0", f"s_cbranch_scc1 {Ls}_l", f"{Ls}_x:"] + self.cnt()[1] + ["s_nop 4", f"s_branch {Lb}"]
        self.tail += t
        return fast
    def tag_check(self, reload, regs, acc):
        Ls, Lb = self.lab('slow'), self.lab('back')
        regs = list(regs); L = [f"v_xor_b32 v{acc}, s{sTB}, v{regs[0]}"]
        for r in regs[1:]: L.append(f"v_bitop3_b32 v{acc}, v{r}, s{sTB}, v{acc} bitop3:0xbe")
        L += [f"v_and_b32 v{acc}, {TBM}, v{acc}", f"v_cmp_ne_u32 vcc, 0, v{acc}"]
        t = [f"{Ls}:", f"s_mov_b32 s54, {self.c.spin}", f"{Ls}_l:"]
        if self.c.sleep: t.append(f"s_sleep {self.c.sleep2}")
        t += list(reload) + ["s_waitcnt vmcnt(0)"] + L
        t += ["s_sub_u32 s54, s54, 1", f"s_cbranch_vccz {Ls}_x", "s_cmp_lg_u32 s54, 0", f"s_cbranch_scc1 {Ls}_l", f"{Ls}_x:"] + self.cnt()[1] + ["s_nop 4", f"s_branch {Lb}"]
        self.tail += t
        return L + [f"s_cbranch_vccnz {Ls}\n{Lb}:" if not (self.c.nochk & 2) else f"{Lb}:"]
    def tag_put(self, r, src=None): return f"v_bfi_b32 v{r}, s42, v246, v{r if src is None else src}"
    def tag_strip(self, r): return f"v_and_b32 v{r}, {hex(0xffffffff ^ TBM)}, v{r}"
    def valid_check(self, reload, regs, acc):
        Ls, Lb = self.lab('slow'), self.lab('back')
        regs = list(regs); L = [f"v_max3_u32 v{acc}, v{regs[0]}, v{regs[1]}, v{regs[2 if len(regs) > 2 else 1]}"]
        r = regs[3:]
        for i in range(0, len(r), 2): L.append(f"v_max3_u32 v{acc}, v{acc}, v{r[i]}, v{r[min(i+1, len(r)-1)]}")
        L.append(f"v_cmp_eq_u32 vcc, -1, v{acc}")
        t = [f"{Ls}:", f"s_mov_b32 s54, {self.c.spin}", f"{Ls}_l:"]
        if self.c.sleep: t.append(f"s_sleep {self.c.sleep2}")
        t += list(reload) + ["s_waitcnt vmcnt(0)"] + L
        t += ["s_sub_u32 s54, s54, 1", f"s_cbranch_vccz {Ls}_x", "s_cmp_lg_u32 s54, 0", f"s_cbranch_scc1 {Ls}_l", f"{Ls}_x:"] + self.cnt()[1] + ["s_nop 4", f"s_branch {Lb}"]
        self.tail += t
        return L + [f"s_cbranch_vccnz {Ls}\n{Lb}:" if not (self.c.nochk & 4) else f"{Lb}:"]
    def flag_store(self, vaddr, vtag, soff="0"):
        return f"buffer_store_dwordx2 {vr(vtag, 2)}, v{vaddr}, {srd(SWS)}, {soff} offen sc1"

    def stream(self, mf, reads, fill, syncs=None, LA=None, name='', bg=None):
        e = self.e; LA = LA or self.c.LA
        reads = sorted(reads, key=lambda r: r[1]); rp = 0; synced = -1 if syncs else 99
        fq = sorted(fill, key=lambda f: f['at'])
        self.sid = getattr(self, 'sid', 0) + 1; sid = self.sid
        start = len(e.ins)
        def add_fill(items):
            lo = max([f['at'] for f in fq if f.get('chain')], default=-99)
            for f in items:
                if f.get('chain'): f['at'] = lo = max(f['at'], lo)
            fq.extend(items); fq.sort(key=lambda f: f['at'])
        def rd():
            nonlocal rp
            e.lgop(reads[rp][0], ('rd', sid, rp)); rp += 1
        if syncs: add_fill(syncs[0](0)); synced = 0
        while rp < len(reads) and reads[rp][1] < 8 and reads[rp][2] <= synced: rd()
        last_read = -99
        dl_of = {('rd', sid, i): r[1] for i, r in enumerate(reads)}
        def due(m): return [t for t in e.lg if t in dl_of and dl_of[t] <= m]
        ismem = lambda it: it[0] in ('vm', 'lg')
        for m in range(len(mf)):
            d = due(m)
            if d: e.wait(lg=d)
            e(mf[m])
            can = lambda: rp < len(reads) and reads[rp][2] <= synced and reads[rp][3] <= m and len(e.lg) < 15
            lead = lambda: reads[rp][1] - m
            if syncs and rp < len(reads) and reads[rp][2] > synced and m - last_read >= self.c.lag and lead() <= LA:
                synced = reads[rp][2]
                assert not any(it[0] == 'vm' and it[2] == ('S', synced) for f in fq for it in f['ins'])
                add_fill(syncs[synced](m + 1))
                if can(): rd(); last_read = m
                continue
            w = 1 if due(m + 1) else 0
            n = w; mem = 0
            if fq and fq[0]['at'] <= m:
                f = fq[0]
                if f.get('atomic'):
                    self.emit_items(f['ins']); n += len(f['ins']); mem += sum(map(ismem, f['ins'])); fq.pop(0)
                elif ismem(f['ins'][0]):
                    self.emit_items([f['ins'].pop(0)]); n += 1; mem += 1
                    if not f['ins']: fq.pop(0)
            if bg and mem == 0:
                k0 = len(e.ins)
                if self.bg_try(bg(m)): n += len(e.ins) - k0; mem += 1
            if can() and lead() <= LA and (mem == 0 or (lead() <= LA - self.c.th1 and not w)):
                rd(); n += 1; mem += 1; last_read = m
            if can() and mem == 1 and not w and lead() <= LA - self.c.th2:
                rd(); n += 1; mem += 1
            while can() and lead() <= self.c.minlead: rd(); n += 1; mem += 1; last_read = m
            while (n < 2 or (fq and fq[0]['at'] <= m - 2 and n < 3)) and fq and fq[0]['at'] <= m + 2 and not fq[0].get('atomic') and not ismem(fq[0]['ins'][0]):
                f = fq[0]; self.emit_items([f['ins'].pop(0)]); n += 1
                if not f['ins']: fq.pop(0)
            assert rp >= len(reads) or reads[rp][1] > m + 1, (m, reads[rp])
        for f in fq: self.emit_items(f['ins'])
        if self.c.verbose:
            tot = 0; g = None
            for i in e.ins[start:]:
                if i.label: continue
                if i.kind == 'mfma':
                    if g is not None: tot += max(16, g)
                    g = 8; prevmem = False
                elif g is not None:
                    mm = i.kind in ('dsr', 'dsw', 'vload', 'vstore', 'dma')
                    g += 8 if (mm and prevmem) else 4; prevmem = mm
            print(f"stream {name}: {len(mf)} mfma, est clks {tot} (ideal {16*len(mf)})")

    def prologue(self):
        e = self.e; c = self.c
        if c.stamps or c.dstamp: e("s_memrealtime s[54:55]\ns_memtime s[98:99]")
        e(f"""s_cmp_ge_u32 s2, 256
        s_cbranch_scc1 L_end
        s_load_dwordx16 s[32:47], s[0:1], 0
        s_load_dwordx4 s[48:51], s[0:1], 64
        s_load_dwordx2 s[52:53], s[0:1], 80
        s_load_dwordx2 s[56:57], s[0:1], 96""")
        if c.codepf:
            e(f"""s_getpc_b64 s[{sA}:{sB}]
            L_pf:
            s_lshr_b32 s{sT0}, s2, 3
            s_lshl_b32 s{sT0}, s{sT0}, 11
            v_lshrrev_b32 v1, 4, v0
            v_lshlrev_b32 v1, 7, v1
            v_add_u32 v1, s{sT0}, v1
            v_cmp_gt_u32 vcc, L_end-L_pf, v1
            v_cndmask_b32 v1, 0, v1, vcc""")
            e.vmop(f"global_load_dword v255, v1, s[{sA}:{sB}]", 'pf')
        e(f"""v_lshrrev_b32 v1, 6, v0
        v_and_b32 v0, 63, v0
        s_and_b32 s{sT0}, s2, 7
        v_readfirstlane_b32 s{sW}, v1
        s_lshr_b32 s{sT1}, s2, 3
        s_lshr_b32 s{sT2}, s{sT0}, 1
        s_and_b32 s{sT3}, s{sT1}, 3
        s_lshl_b32 s{sMT}, s{sT2}, 2
        s_add_u32 s{sMT}, s{sMT}, s{sT3}
        s_lshr_b32 s{sT4}, s{sT1}, 2
        s_and_b32 s{sHG}, s{sT0}, 1
        s_lshl_b32 s{sHG}, s{sHG}, 2
        s_and_b32 s{sT5}, s{sT4}, 3
        s_add_u32 s{sHG}, s{sHG}, s{sT5}""")
        if c.rot == 2:
            e(f"""s_mul_i32 s{sE}, s{sT2}, 5
            s_lshr_b32 s{sE}, s{sE}, 1
            s_and_b32 s{sT5}, s{sT0}, 1
            s_mul_i32 s{sT5}, s{sT5}, 5
            s_add_u32 s{sE}, s{sE}, s{sT5}
            s_cmp_ge_u32 s{sE}, 10
            s_cselect_b32 s{sT5}, 10, 0
            s_sub_u32 s{sE}, s{sE}, s{sT5}
            s_lshl_b32 s{sE}, s{sE}, 7""")
        elif c.rot == 3:
            e(f"s_xor_b32 s{sE}, s{sT3}, s{sT4}\ns_and_b32 s{sE}, s{sE}, 1\ns_lshl_b32 s{sE}, s{sE}, 7")
        else: e(f"s_mov_b32 s{sE}, 0")
        e(f"""v_and_b32 v1, 15, v0
        v_lshrrev_b32 v2, 4, v0
        v_bfe_u32 v3, v0, 2, 2
        v_and_b32 v4, 3, v0
        v_lshrrev_b32 v5, 3, v0
        v_lshlrev_b32 v6, 4, v0
        s_lshl_b32 s{sT2}, s{sMT}, 2
        s_add_u32 s{sT2}, s{sT2}, s{sW}
        s_mul_i32 s{sT2}, s{sT2}, {32*1280}
        v_xor_b32 v7, v2, v0
        v_and_b32 v7, 7, v7
        v_lshlrev_b32 v7, 4, v7
        v_mul_u32_u24 v8, 1280, v5
        v_add_u32 v8, s{sT2}, v8
        v_add_u32 v208, v8, v7
        v_xor_b32 v7, 64, v7
        v_add_u32 v209, v8, v7
        v_add_u32 v209, {10240-1024}, v209
        v_add_u32 v210, {2*(10240-1024)}, v208
        v_add_u32 v211, {2*(10240-1024)}, v209
        s_lshl_b32 s{sM0}, s{sW}, 12
""")
        if c.rot == 3: e(f"s_xor_b32 s{sE+1}, s{sE}, 128")
        else: e(f"s_add_u32 s{sE+1}, s{sE}, 128\ns_cmp_eq_u32 s{sE+1}, 1280\ns_cselect_b32 s{sE+1}, 0, s{sE+1}")
        for r, n in ((SX, 2048 * 1280), (SQ, 640 * 3840), (S1, 640 * 3456), (SM, 3456)): e(f"s_mov_b32 s{r+2}, {n}\ns_mov_b32 s{r+3}, 0x20000")
        e(f"s_bitcmp1_b32 s2, 7\ns_cbranch_scc1 L_QH")

    def kernarg_wait(self):
        e = self.e
        e("s_waitcnt lgkmcnt(0)"); self.pstamp(0)
        e(f"s_load_dwordx2 s[{sTAG}:{sTAG+1}], s[{pWS}:{pWS+1}], {TAG}")
        if self.c.stamps: e('s_mov_b32 s40, s98')
        if self.c.dstamp or self.c.cnt: e('s_mov_b64 s[40:41], s[0:1]')
        for r, p in ((SX, pX), (SM, pB1), (SQ, pQKV), (S1, pW1)): e(f"s_mov_b32 s{r}, s{p}\ns_and_b32 s{r+1}, s{p+1}, 0xffff")

    def pack_setup(self):
        e = self.e
        e(f"""s_lshl_b32 s{sT0}, s2, 2
        s_add_u32 s{sT0}, s{sT0}, s{sW}
        s_mul_i32 s{sT1}, s{sT0}, 6554
        s_lshr_b32 s{sT1}, s{sT1}, 16
        s_mul_i32 s{sT2}, s{sT1}, 10
        s_sub_u32 s{sT2}, s{sT0}, s{sT2}
        s_sub_u32 s{sT3}, s{sT1}, 54
        s_and_b32 s{sT3}, s{sT3}, 63
        s_mul_i32 s{sT4}, s{sT3}, 52
        s_lshr_b32 s{sT4}, s{sT4}, 8
        s_mul_i32 s{sT5}, s{sT4}, 5
        s_sub_u32 s{sT5}, s{sT3}, s{sT5}
        s_mul_i32 s{sBT}, s{sT4}, 160
        s_lshr_b32 s{sAT}, s{sT5}, 1
        s_mul_i32 s{sAT}, s{sAT}, 80
        s_and_b32 s{sT3}, s{sT5}, 1
        s_lshl_b32 s{sT3}, s{sT3}, 3
        s_add_u32 s{sAT}, s{sAT}, s{sT3}
        s_cmp_eq_u32 s{sT5}, 4
        s_cselect_b32 s{sAT}, 16, s{sAT}
        s_cselect_b32 s{sT3}, 80, 4
        s_add_u32 s{sBT}, s{sBT}, s{sAT}
        s_lshl_b32 s{sAT}, s{sT1}, 5
        s_cmp_lt_u32 s{sT1}, 54
        s_cselect_b32 s{sBT}, s{sAT}, s{sBT}
        s_cselect_b32 s{sT3}, 16, s{sT3}""")
        self.csel(sT4, 4 * 1280 - 1024, 20 * 1280 - 1024)
        self.csel(SPK + 2, 1728 * 1280, 640 * 1280)
        e(f"""s_mov_b32 s{SPK+3}, 0x20000
        s_cmp_lt_u32 s{sT0}, 740
        s_cselect_b32 s{SPK+2}, s{SPK+2}, 0
        s_mul_i32 s{sBT}, s{sBT}, 1280
        s_lshl_b32 s{sAT}, s{sT2}, 7
        s_add_u32 s32, s{sBT}, s{sAT}
        s_add_u32 s33, s32, s{sT4}
        s_add_u32 s34, s33, s{sT4}
        s_add_u32 s35, s34, s{sT4}
        v_lshrrev_b32 v9, 5, v0
        v_mul_lo_u32 v9, v9, s{sT3}
        v_and_b32 v10, 3, v5
        v_add_u32 v9, v9, v10
        v_mul_u32_u24 v9, 1280, v9
        v_and_b32 v10, 7, v0
        v_lshl_add_u32 v252, v10, 4, v9
        v_lshlrev_b32 v9, 10, v2
        v_lshl_add_u32 v9, v3, 7, v9
        v_add_u32 v9, s{sM0}, v9
        v_add_u32 v9, {L_PACK}, v9""")
        for g in range(2):
            e(f"""s_lshl_b32 s{sT3}, s{sT2}, 1
            s_add_u32 s{sT3}, s{sT3}, {g}
            s_mul_i32 s{sT4}, s{sT3}, 52
            s_lshr_b32 s{sT4}, s{sT4}, 8
            s_mul_i32 s{sT5}, s{sT4}, 5
            s_sub_u32 s{sT5}, s{sT3}, s{sT5}
            s_cmp_eq_u32 s{sT5}, 2
            s_cselect_b32 s{sT3}, 3, 4
            s_cselect_b32 s{sAT}, 32, 8
            v_lshlrev_b32 v10, s{sT3}, v4
            v_add_u32 v{PKA+2*g}, v9, v10
            v_add_u32 v{PKA+1+2*g}, s{sAT}, v{PKA+2*g}
            s_mul_i32 s{sT4}, s{sT4}, 740
            s_mul_i32 s{sAT}, s{sT1}, 5
            s_add_u32 s{sT4}, s{sT4}, s{sAT}""")
            for a_ in range(2):
                d = sPKD + 2 * g + a_
                e(f"""s_lshl_b32 s{sT3}, s{sT5}, 1
                s_add_u32 s{sT3}, s{sT3}, {a_}
                s_add_u32 s{d}, s{sT3}, 364
                s_cmp_eq_u32 s{sT3}, 5
                s_cselect_b32 s{d}, 374, s{d}
                s_cmp_lt_u32 s{sT3}, 5
                s_cselect_b32 s{d}, s{sT3}, s{d}
                s_add_u32 s{d}, s{d}, s{sT4}
                s_lshl_b32 s{d}, s{d}, 10
                s_add_u32 s{d}, s{d}, {PB}
                s_cmp_lt_u32 s{sT0}, 740
                s_cselect_b32 s{d}, s{d}, {OOB}""")
        e(f"""s_cmp_lt_u32 s{sT1}, 54
        s_cselect_b32 s{SPK}, s{pW2}, s{pWO}
        s_cselect_b32 s{SPK+1}, s{pW2+1}, s{pWO+1}
        s_and_b32 s{SPK+1}, s{SPK+1}, 0xffff""")

    def common_setup(self):
        e = self.e; c = self.c
        e(f"s_and_b32 s{sT0}, s2, 7\ns_lshr_b32 s{sT1}, s2, 3\ns_lshr_b32 s{sT2}, s{sT0}, 1\ns_and_b32 s{sT3}, s{sT1}, 3\ns_lshr_b32 s{sT4}, s{sT1}, 2")
        if c.mix: e(f"s_lshr_b32 s{sT5}, s{sT1}, 2\ns_and_b32 s{sT5}, s{sT5}, 4\ns_xor_b32 s{sT5}, s{sT5}, s{sT1}" if c.map2 else
                    f"s_lshr_b32 s{sT5}, s{sT1}, 4\ns_xor_b32 s{sT5}, s{sT5}, s{sT1}")
        if c.map2:
            if c.mix: e(f"s_and_b32 s{sRB}, s{sT5}, 7\ns_bfe_u32 s{sT5}, s{sT1}, 0x20002")
            else: e(f"s_and_b32 s{sRB}, s{sT1}, 7\ns_lshr_b32 s{sT5}, s{sT1}, 3")
            e(f"""s_lshl_b32 s{sT2}, s{sT2}, 3
            s_add_u32 s{sRB}, s{sRB}, s{sT2}
            s_and_b32 s{sNB}, s{sT0}, 1
            s_lshl_b32 s{sNB}, s{sNB}, 2
            s_add_u32 s{sNB}, s{sNB}, s{sT5}""")
        else:
            if c.mix: e(f"s_bfe_u32 s{sNB}, s{sT1}, 0x30001\ns_and_b32 s{sT3}, s{sT5}, 1\ns_lshr_b32 s{sT5}, s{sT1}, 4\ns_bfe_u32 s{sT4}, s{sT1}, 0x10001\ns_xor_b32 s{sT5}, s{sT5}, s{sT4}\ns_and_b32 s{sT3}, s{sT1}, 1\ns_lshl_b32 s{sT5}, s{sT5}, 1\ns_add_u32 s{sT3}, s{sT3}, s{sT5}")
            else: e(f"s_mov_b32 s{sNB}, s{sT4}")
            e(f"s_lshl_b32 s{sRB}, s{sT0}, 2\ns_add_u32 s{sRB}, s{sRB}, s{sT3}")
        mk_srd(e, SWS, pWS, 0x10000000); mk_srd(e, SM, pPHI, 32 * 800)
        e(f"""s_lshl_b32 s{sT3}, s{sHG}, 2
        s_add_u32 s{sT3}, s{sT3}, s{sW}
        s_mul_i32 s36, s{sT3}, 800
        s_mul_i32 s37, s{sW}, 800
        s_add_u32 s37, s37, {L_WPHI}""")
        for i in range(2, 10):
            if c.rot == 3: e(f"s_add_u32 s{sE+i}, s{sE+i-2}, 256")
            else: e(f"s_add_u32 s{sE+i}, s{sE+i-1}, 128\ns_cmp_eq_u32 s{sE+i}, 1280\ns_cselect_b32 s{sE+i}, 0, s{sE+i}")
        e(f"""s_mul_i32 s{sB}, s{sNB}, 74
        s_add_u32 s{sB}, s{sB}, s{sW}
        s_mul_i32 s{sB}, s{sB}, 5120
        s_add_u32 s{sB}, s{sB}, {PB}
        s_mul_i32 s{sA}, s{sRB}, 74
        s_add_u32 s{sA}, s{sA}, s{sW}
        s_lshl_b32 s{sA}, s{sA}, 12
        s_add_u32 s{sA}, s{sA}, {A2}
        s_xor_b32 s{sT0}, s{sRB}, s{sNB}
        s_and_b32 s{sT0}, s{sT0}, {min(c.par, 1)}
        s_mul_i32 s{sT1}, s{sT0}, {4*5120}
        s_add_u32 s{sB8}, s{sB}, {32*5120}
        s_add_u32 s{sB8}, s{sB8}, s{sT1}
        s_add_u32 s{sB9}, s{sB}, {36*5120}
        s_sub_u32 s{sB9}, s{sB9}, s{sT1}
        s_mul_i32 s{sT1}, s{sT1}, {max(c.par, 1)}
        s_sub_u32 s{sBo}, s{sB}, s{sT1}
        s_add_u32 s{sB}, s{sB}, s{sT1}
        s_lshl_b32 s{sT1}, s{sT0}, 14
        s_add_u32 s{sA8}, s{sA}, {32*4096}
        s_add_u32 s{sA8}, s{sA8}, s{sT1}
        s_add_u32 s{sA9}, s{sA}, {36*4096}
        s_sub_u32 s{sA9}, s{sA9}, s{sT1}
        s_mul_i32 s{sT1}, s{sT1}, {max(c.par, 1)}
        s_sub_u32 s{sAo}, s{sA}, s{sT1}
        s_add_u32 s{sA}, s{sA}, s{sT1}
        s_lshr_b32 s{sT1}, s{sW}, 1
        s_and_b32 s{sT3}, s{sT1}, s{sT0}
        s_cselect_b32 s{sB8}, {OOB}, s{sB8}
        s_cselect_b32 s{sA8}, {OOB}, s{sA8}
        s_andn2_b32 s{sT3}, s{sT1}, s{sT0}
        s_cselect_b32 s{sB9}, {OOB}, s{sB9}
        s_cselect_b32 s{sA9}, {OOB}, s{sA9}
        s_mul_i32 s88, s{sW}, {NL*1024}
        v_add_u32 v240, 4096, v6""")
        for j in range(4):
            e(f"s_add_u32 s{sT3}, s{sW}, {j}\ns_and_b32 s{sT3}, s{sT3}, 3\ns_lshl_b32 s{sT3}, s{sT3}, 10\nv_add_u32 v{236+j}, s{sT3}, v6")
        e(f"""s_lshl_b32 s{sF1}, s2, 3
        s_add_u32 s{sF1}, s{sF1}, {F1}
        s_cmp_eq_u32 s{sW}, 0
        s_cselect_b32 s{sF1}, s{sF1}, {OOB}
        v_mov_b32 v245, {OOB}
        v_cmp_eq_u32 vcc, 0, v0
        v_cndmask_b32 v245, v245, 0, vcc""")

    def touch(self):
        e = self.e; c = self.c
        e(f"""s_cmp_eq_u32 s{sW}, 0
        s_cselect_b64 s[28:29], s[{SX}:{SX+1}], s[{S1}:{S1+1}]
        s_cselect_b32 s30, s{SX+2}, s{S1+2}
        s_cselect_b32 s{sT0}, 12, 0
        s_add_u32 s{sT0}, s{sT0}, 68
        s_cmp_eq_u32 s{sW}, 1
        s_cselect_b64 s[28:29], s[{SQ}:{SQ+1}], s[28:29]
        s_cselect_b32 s30, s{SQ+2}, s30
        s_cselect_b32 s{sT0}, 75, s{sT0}
        s_lshl_b32 s{sT1}, 1, s{sW}
        s_and_b32 s{sT1}, s{sT1}, {c.tmask}
        s_cselect_b32 s30, s30, 0
        s_mov_b32 s31, 0x20000
        s_mul_i32 s{sT1}, s{sT0}, s2
        s_lshl_b32 s{sT1}, s{sT1}, 7
        v_lshlrev_b32 v10, 7, v0
        v_add_u32 v11, 64, v0
        v_cmp_gt_u32 vcc, s{sT0}, v11
        v_lshlrev_b32 v11, 7, v11
        v_mov_b32 v14, {OOB}
        v_cndmask_b32 v11, v14, v11, vcc""")
        e.vmop(f"buffer_load_dword v255, v10, s[28:31], s{sT1} offen", 'pf')
        e.vmop(f"buffer_load_dword v255, v11, s[28:31], s{sT1} offen", 'pf')

    def touch3_setup(self):
        e = self.e
        e(f"""s_cmp_eq_u32 s{sW}, 0
        s_cselect_b64 s[28:29], s[{SX}:{SX+1}], s[{S1}:{S1+1}]
        s_cselect_b32 s30, s{SX+2}, s{S1+2}
        s_cselect_b32 s{sT0}, 24, 21
        s_mov_b32 s44, {64*3456}
        s_cselect_b32 s44, 128, s44
        s_cselect_b64 vcc, -1, 0
        s_cmp_eq_u32 s{sW}, 1
        s_cselect_b64 s[28:29], s[{SQ}:{SQ+1}], s[28:29]
        s_cselect_b32 s30, s{SQ+2}, s30
        s_cselect_b32 s{sT0}, 23, s{sT0}
        s_cselect_b32 s44, {64*3840}, s44
        s_cmp_eq_u32 s{sW}, 3
        s_cselect_b32 s30, 0, s30
        s_mov_b32 s31, 0x20000
        s_mul_i32 s{sT1}, s{sT0}, s2
        v_add_u32 v10, s{sT1}, v0
        v_mul_u32_u24 v11, 21846, v10
        v_lshrrev_b32 v11, 16, v11
        v_mul_u32_u24 v11, {1280-384}, v11
        v_lshlrev_b32 v10, 7, v10
        v_add_u32 v11, v11, v10
        v_cndmask_b32 v10, v10, v11, vcc
        v_mov_b32 v14, {OOB}
        v_cmp_gt_u32 vcc, s{sT0}, v0
        v_cndmask_b32 v251, v14, v10, vcc""")
    def touch3(self, part):
        return [('x', f"s_mul_i32 s45, s44, {1 + 3 * part}"), ('vm', "buffer_load_dword v255, v251, s[28:31], s45 offen", 'pf')]

    def tlb_touch(self):
        e = self.e; c = self.c
        if not c.tlb: return
        if c.tlb == 1:
            e(f"v_lshlrev_b32 v10, 18, v0\nv_add_u32 v10, 0x1f800, v10")
            e.vmop(f"buffer_load_dword v255, v10, {srd(SWS)}, 0 offen sc1", 'pf')
        else:
            e(f"""s_mul_i32 s{sT0}, s{sNB}, {74*5120}
            s_add_u32 s{sT0}, s{sT0}, {PB}
            s_mul_i32 s{sT1}, s{sRB}, {74*4096}
            s_add_u32 s{sT1}, s{sT1}, {A2 - 8*65536}
            s_mul_i32 s{sT3}, s{sMT}, {2*74*4096}
            s_add_u32 s{sT3}, s{sT3}, {A2 - 16*65536}
            v_lshlrev_b32 v10, 16, v0
            v_mov_b32 v11, s{sT0}
            v_mov_b32 v14, s{sT1}
            v_cmp_le_u32 vcc, 8, v0
            v_cndmask_b32 v11, v11, v14, vcc
            v_mov_b32 v14, s{sT3}
            v_cmp_le_u32 vcc, 16, v0
            v_cndmask_b32 v11, v11, v14, vcc
            v_add_u32 v11, v11, v10
            v_subrev_u32 v14, 32, v0
            v_mul_u32_u24 v14, 0x18000, v14
            v_cmp_le_u32 vcc, 32, v0
            v_cndmask_b32 v10, v11, v14, vcc""")
            e.vmop(f"buffer_load_dword v255, v10, {srd(SWS)}, 0 offen sc1", 'pf')
        mk_srd(e, 28, pOUT, 2048 * 1280)
        e("v_lshlrev_b32 v10, 16, v0")
        e.vmop("buffer_load_dword v255, v10, s[28:31], 0 offen sc1", 'pf')
        if c.tlb2:
            for p, n in ((pB2, 1280),):
                mk_srd(e, 28, p, n); e.vmop("buffer_load_dword v255, v6, s[28:31], 0 offen", 'pf')

    def tag_wait(self):
        e = self.e
        e(f"""s_waitcnt lgkmcnt(0)
        s_add_u32 s{sTAG}, s{sTAG}, 1
        v_mov_b32 v247, s{sTAG+1}
        v_mov_b32 v246, s{sTAG}
        s_movk_i32 s42, {TBM}""")
        if self.c.xA == 2: e(f's_mov_b32 s41, {OOB}')
        e.lg = []
    def pack_loads(self):
        return [([('x', f"s_add_u32 m0, s{sM0}, {L_PACK}")] if i == 0 else []) +
                [('vm', f"buffer_load_dwordx4 v252, {srd(SPK)}, s{32+i} offen offset:{i*1024} {self.c.psc} lds", 'packld')] for i in range(4)]
    def pack_fill(self, m, nm):
        f = []
        for i in range(8):
            t, h = i >> 1, i & 1
            f.append(dict(at=m + 2 + 2 * i, ins=[('lg', f"ds_read_b64_tr_b16 a[{160+4*t+2*h}:{161+4*t+2*h}], v{PKA+t} offset:{(t>>1)*64+512*h}", 'pk')]))
        return f
    def wb_item(self):
        return [[('wvm', 'pkst'), ('vm', "buffer_wbl2 sc1", 'pkst')]] if self.c.wbl else []
    def pack_stores(self):
        return [([('wlg', 'pk')] if i == 0 else []) + [('vm', f"buffer_store_dwordx4 {ar(160+4*i)}, v6, {srd(SWS)}, s{sPKD+i} offen {self.c.pss}", 'pkst')] for i in range(4)]

    def btouch(self):
        pre = [l.strip() for l in f"""s_and_b32 s{sT0}, s{sRB}, 7
        s_lshl_b32 s{sT0}, s{sT0}, 2
        s_add_u32 s{sT0}, s{sT0}, s{sW}
        s_mul_i32 s{sT0}, s{sT0}, {93*128}
        s_mul_i32 s{sT1}, s{sNB}, {74*5120}
        s_add_u32 s{sT0}, s{sT0}, s{sT1}
        s_add_u32 s{sT0}, s{sT0}, {PB}
        v_lshlrev_b32 v248, 7, v0
        v_min_u32 v249, 28, v0
        v_lshlrev_b32 v249, 7, v249""".split("\n")]
        n = self.c.bt
        out = [[('x', l) for l in pre]]
        if n == 1:
            out[0] += [('vm', f"buffer_load_dword v255, v248, {srd(SWS)}, s{sT0} offen sc1", 'pf')]
            out.append([('x', f"s_add_u32 s{sT0}, s{sT0}, 8192"), ('vm', f"buffer_load_dword v255, v249, {srd(SWS)}, s{sT0} offen sc1", 'pf')])
        else:
            out[0] += [('x', "v_min_u32 v249, 23, v0"), ('x', "v_lshlrev_b32 v249, 7, v249")]
            for i in range(4): out.append([('vm', f"buffer_load_dword v255, v249, {srd(SWS)}, s{sT0} offen offset:0 sc1", 'pf'), ('x', f"s_add_u32 s{sT0}, s{sT0}, 3072")])
        return out
    def code_touch(self, endlab):
        Lp = self.lab('pc')
        return [('x', f"s_getpc_b64 s[30:31]\n{Lp}:"), ('x', f"s_bfe_u32 s{sT0}, s2, 0x40003"), ('x', f"s_lshl_b32 s{sT0}, s{sT0}, 2"), ('x', f"s_add_u32 s{sT0}, s{sT0}, s{sW}"),
                ('x', f"s_lshl_b32 s{sT0}, s{sT0}, 9"), ('x', "v_and_b32 v7, 3, v0"), ('x', f"v_lshl_add_u32 v7, v7, 7, s{sT0}"),
                ('x', f"v_cmp_gt_u32 vcc, {endlab}-{Lp}, v7"), ('x', "v_cndmask_b32 v7, 0, v7, vcc"), ('vm', "global_load_dword v255, v7, s[30:31]", 'pf')]
    def f1_issue(self):
        return [[('x', f"s_mov_b32 s{sT0}, {F1}"), ('x', "v_add_u32 v235, 1024, v6"), ('vm', self.poll_issue(6, 248, 4, None, f"s{sT0}"), 'f1p')],
                [('vm', self.poll_issue(235, 252, 4, None, f"s{sT0}"), 'f1p')]]
    def f1_check(self):
        chk = self.poll_check([(6, 248, 4, f"s{sT0}"), (235, 252, 4, f"s{sT0}")])
        return [('wvm', 'f1p')] + [('x', t) for t in chk] + [('x', f"s_or_b32 s{sT1}, s2, s{sW}"),
                ('x', f"s_cmp_eq_u32 s{sT1}, 0\ns_cselect_b32 s{sT1}, {TAG}, {OOB}"), ('vm', self.flag_store(245, 246, f"s{sT1}"), 'tagst')]

    def attn_voff(self, dst, cexpr_base, colbase_s):
        e = self.e
        e(f"""v_mul_u32_u24 v10, 6554, v9
        v_lshrrev_b32 v10, 16, v10
        v_mad_i32_i24 v11, v10, -10, v9""")
        self.swap23(10, 12)
        e(f"""v_mul_u32_u24 v10, 3840, v10
        v_lshl_add_u32 v10, v11, 4, v10
        v_add_u32 v{dst}, s{colbase_s}, v10""")
    def swap23(self, r, t):
        self.e(f"""v_lshrrev_b32 v{t}, 1, v{r}
        v_xor_b32 v{t}, v{t}, v{r}
        v_and_b32 v{t}, 4, v{t}
        v_mul_u32_u24 v{t}, 3, v{t}
        v_xor_b32 v{r}, v{r}, v{t}""")

    def small_dma(self, sr, vaddr, soff, ldsaddr, nlanes, tag, m0expr=None):
        e = self.e
        e(m0expr or f"s_mov_b32 m0, {ldsaddr}")
        if nlanes < 64: e(f"s_mov_b64 exec, {hex((1 << nlanes) - 1)}" if nlanes <= 32 else f"s_mov_b32 exec_hi, {hex((1 << (nlanes-32)) - 1)}")
        e.vmop(f"buffer_load_dwordx4 v{vaddr}, {srd(sr)}, {soff} offen lds", tag)
        if nlanes < 64: e("s_mov_b64 exec, -1")

    def csel(self, d, a, b):
        inl = lambda x: isinstance(x, str) or -16 <= x <= 64
        if inl(a) or inl(b): self.e(f"s_cselect_b32 s{d}, {a}, {b}")
        else: self.e(f"s_mov_b32 s{d}, {b}\ns_cselect_b32 s{d}, {a}, s{d}")

    def init_B(self):
        self.Bloc = {}; self.Bq = []
        order = [(i, t) for i in range(19) for t in range(5)]
        for u, k in enumerate(order):
            if u < 64: self.Bloc[k] = ('a', 4 * u)
            elif u < 64 + NL: self.Bloc[k] = ('l', u - 64)
            else: self.Bloc[k] = None
        self.Border = order; self.Bpend = list(range(64 + NL)); self.Bcur = None; self.Acur = None
    def koff(self, i): return 4 * i - (2 if i >= 10 else 0)
    def soff(self, d, i, w):
        e_, o_, s8, s9, unit = (sB, sBo, sB8, sB9, 5120) if w == 'B' else (sA, sAo, sA8, sA9, 4096)
        if i in (8, 9): return f"s_mov_b32 s{d}, s{s8 if i == 8 else s9}"
        if i == 18: return f"s_add_u32 s{d}, s{e_}, s{o_}\ns_lshr_b32 s{d}, s{d}, 1\ns_add_u32 s{d}, s{d}, {self.koff(i)*unit}"
        idx = i if i < 10 else i - 10 if i < 14 else i - 14
        return f"s_add_u32 s{d}, s{e_ if idx & max(self.c.par, 1) == 0 else o_}, {self.koff(i)*unit}"
    def B_items(self, k, loc):
        i, t = k; it = []
        if self.Bcur != i:
            it.append(('x', self.soff(sBT, i, 'B'))); self.Bcur = i
        va, imm = (6, t * 1024) if t < 4 else (240, 0)
        if loc[0] == 'l':
            assert L_BL + loc[1]*1024 - imm >= 0
            it.append(('x', f"s_add_u32 m0, s88, {L_BL + loc[1]*1024 - imm}"))
            it.append(('vm', f"buffer_load_dwordx4 v{va}, {srd(SWS)}, s{sBT} offen offset:{imm} sc1 lds", ('B', k)))
        else:
            it.append(('vm', f"buffer_load_dwordx4 {R(loc)}, v{va}, {srd(SWS)}, s{sBT} offen offset:{imm} sc1", ('B', k)))
        return it
    def B_take(self, us):
        out = []
        for u in us:
            k = self.Border[u]; out.append(self.B_items(k, self.Bloc[k]))
            if self.c.xB == 1: out[-1] = [('x', 's_nop 0')]
            if self.c.xB == 2: out[-1] = [(it[0], it[1].replace(f"s{sBT} offen", "s43 offen"), it[2]) if it[0] == 'vm' else it for it in out[-1]]
            if self.c.xB == 3: out[-1] = [(it[0], it[1].replace(f"s{sBT} offen", f"s{sB} offen"), it[2]) if it[0] == 'vm' else it for it in out[-1]]
        return out
    def ph2_bg(self, u): pass
    def bg_try(self, allowed, S=None):
        e = self.e
        if e.t - e.tvm < (S or self.c.S): return False
        if allowed == self.ph2_bg: return self.try_issue(self.m, True, True)
        for u in self.Bpend:
            if allowed(u):
                self.Bpend.remove(u); self.emit_items(self.B_take([u])[0]); return True
        return False
    def emit_items(self, items):
        e = self.e
        for it in items:
            if it[0] == 'vm': e.vmop(it[1], it[2])
            elif it[0] == 'lg': e.lgop(it[1], it[2])
            elif it[0] == 'wvm': e.wait(vm=it[1])
            elif it[0] == 'wlg': e.wait(lg=it[1])
            elif it[0] == 'st': self.stamp(it[1], it[2])
            else: e(it[1])
    def valu(self, lines, side=None, every=1, bg=None, S=None):
        n = 0
        for l in lines:
            if isinstance(l, str): self.e(l)
            else: self.emit_items([l])
            n += 1
            if side and n % every == 0: self.emit_items(side.pop(0))
            if bg: self.bg_try(bg, S)

    def interleave(self, items, side, every):
        W = ('s_cmp', 's_add', 's_sub', 's_and', 's_andn2', 's_or', 's_xor', 's_lshl', 's_lshr', 's_bitcmp', 's_min', 's_max')
        Rd = ('s_cselect', 's_addc', 's_subb', 's_cbranch_scc')
        live = [False] * len(items); l = False
        for i in range(len(items) - 1, -1, -1):
            live[i] = l
            t = items[i][1]
            if t.startswith(Rd): l = True
            elif t.startswith(W): l = False
        n = 0
        for i, it in enumerate(items):
            self.emit_items([it]); n += 1
            if side and n >= every and not live[i]: self.emit_items(side.pop(0)); n = 0
        for g in side: self.emit_items(g)

    def gelu_lines(self, X, Y, T, O):
        U = [X, X + 2, Y, Y + 2]; L = []
        P = lambda r: f"v[{r}:{r+1}]"
        for i in range(4): L.append(f"v_pk_mul_f32 {P(T+2*i)}, {P(U[i])}, {P(U[i])}")
        for i in range(4): L.append(f"v_pk_fma_f32 {P(T+2*i)}, {P(T+2*i)}, v[14:15], s[{sC0}:{sC1}] op_sel_hi:[1,0,0]")
        for i in range(4): L.append(f"v_pk_mul_f32 {P(T+2*i)}, {P(T+2*i)}, {P(U[i])}")
        for i in range(8): L.append(f"v_exp_f32 v{T+i}, v{T+i}")
        for i in range(4): L.append(f"v_pk_add_f32 {P(T+2*i)}, {P(T+2*i)}, 1.0 op_sel_hi:[1,0]")
        for i in range(8): L.append(f"v_rcp_f32 v{T+i}, v{T+i}")
        for i in range(4): L.append(f"v_pk_mul_f32 {P(T+2*i)}, {P(T+2*i)}, {P(U[i])}")
        for i in range(4): L.append(f"v_cvt_pk_bf16_f32 v{O+i}, v{T+2*i}, v{T+2*i+1}")
        return L if not (self.c.skip & 1) else L[-8:]
    def gelu_consts(self):
        c1 = -2.0 * math.sqrt(2.0 / math.pi) * math.log2(math.e)
        self.e(f"s_mov_b32 s{sC0}, {fl(c1)}\nv_mov_b32 v14, {fl(c1 * 0.044715)}")
    def softmax_lines(self, Pp, E, PH):
        L = []; P = lambda r: f"v[{r}:{r+1}]"
        L += [f"v_max3_f32 v8, v{Pp}, v{Pp+1}, v{Pp+2}", f"v_min3_f32 v10, v{Pp}, v{Pp+1}, v{Pp+2}"]
        for i in range(3, 19, 2): L += [f"v_max3_f32 v8, v8, v{Pp+i}, v{Pp+i+1}", f"v_min3_f32 v10, v10, v{Pp+i}, v{Pp+i+1}"]
        L += [f"v_max_f32 v8, v8, v{Pp+19}", f"v_min_f32 v10, v10, v{Pp+19}"]
        L += [f"v_mul_f32_e64 v8, -v8, s{sC0}", f"v_mul_f32 v10, s{sC0}, v10"]
        for i in range(10):
            L.append(f"v_pk_fma_f32 {P(E+2*i)}, {P(Pp+2*i)}, s[{sC0}:{sC1}], v[8:9] op_sel_hi:[1,0,0]")
            L.append(f"v_pk_fma_f32 {P(E+20+2*i)}, {P(Pp+2*i)}, s[{sC0}:{sC1}], v[10:11] op_sel_hi:[1,0,0] neg_lo:[1,0,0] neg_hi:[1,0,0]")
        for i in range(40): L.append(f"v_exp_f32 v{E+i}, v{E+i}")
        L += [f"v_pk_add_f32 v[8:9], {P(E)}, {P(E+2)}", f"v_pk_add_f32 v[10:11], {P(E+20)}, {P(E+22)}"]
        for i in range(2, 10): L += [f"v_pk_add_f32 v[8:9], v[8:9], {P(E+2*i)}", f"v_pk_add_f32 v[10:11], v[10:11], {P(E+20+2*i)}"]
        L += ["v_add_f32 v8, v8, v9", "v_add_f32 v10, v10, v11", "v_rcp_f32 v8, v8", "v_rcp_f32 v10, v10"]
        for i in range(10): L.append(f"v_pk_mul_f32 {P(E+2*i)}, {P(E+2*i)}, v[8:9] op_sel_hi:[1,0]")
        for i in range(10): L.append(f"v_pk_mul_f32 {P(E+20+2*i)}, {P(E+20+2*i)}, v[10:11] op_sel_hi:[1,0]")
        for i in range(20): L.append(f"v_cvt_pk_bf16_f32 v{PH+i}, v{E+2*i}, v{E+2*i+1}")
        return L if not (self.c.skip & 2) else [l if 'cvt' in l else '' for l in L]
    def wphi_addr(self, va):
        self.e(f"v_mul_u32_u24 v{va}, 800, v2\nv_mad_u32_u24 v{va}, v3, 40, v{va}\nv_add_u32 v{va}, {L_WPHI}, v{va}")
    def wphi_reads(self, va):
        return [[('lg', f"ds_read_b64_tr_b16 a[{AW+2*(dg*5+fg)}:{AW+1+2*(dg*5+fg)}], v{va} offset:{dg*160 + fg*8}", 'wphi')] for dg in range(5) for fg in range(5)]
    def phi_mfmas(self, KQ, Pp):
        L = []
        for dg in range(5):
            for j in range(2):
                for fg in range(5):
                    d = Pp + 20 * j + 4 * fg; w = AW + 2 * (dg * 5 + fg); b = KQ + 10 * j + 2 * dg
                    L.append(f"v_mfma_f32_4x4x4_16b_bf16 {vr(d)}, a[{w}:{w+1}], v[{b}:{b+1}], {vr(d) if dg else 0}")
        return L
    def cvt_heads(self, acc0, dst, j, n=5):
        return [f"v_cvt_pk_bf16_f32 v{dst+2*t+h}, v{acc0+(t*2+j)*4+2*h}, v{acc0+(t*2+j)*4+2*h+1}" for t in range(n) for h in range(2)]
    def rho0(self, dst):
        self.e(f"v_lshrrev_b32 v{dst}, 1, v2\nv_lshl_add_u32 v{dst}, v{dst}, 4, v3\nv_and_b32 v7, 1, v2\nv_lshl_add_u32 v{dst}, v7, 2, v{dst}")
    def x_addr(self, ST, nsl=3, base=220):
        e = self.e
        e(f"""v_lshrrev_b32 v9, 1, v1
        v_xor_b32 v9, v9, v2
        v_lshlrev_b32 v9, 4, v9
        v_lshl_add_u32 v9, v1, 7, v9
        v_add_u32 v{base}, s{sM0}, v9
        v_xor_b32 v{base+1}, 64, v{base}""")
        for sl in range(1, nsl): e(f"v_add_u32 v{base+2*sl}, {sl*ST}, v{base}\nv_add_u32 v{base+1+2*sl}, {sl*ST}, v{base+1}")
    def paced(self, groups, m0, span):
        n = len(groups)
        return [dict(at=m0 + int((k + 0.2) * span / n), chain=1, ins=list(g)) for k, g in enumerate(groups)]
    def prog_QH(self):
        e = self.e; c = self.c; self.init_B(); self.dmap = {0: 3, 1: 5, 2: 7, 3: 9, 14: 11, 7: 13, 9: 15}
        e("L_QH:")
        ST = QH_ST
        e(f"""s_mul_i32 s{sKW}, s{sHG}, 320
        s_lshl_b32 s{sT0}, s{sHG}, 8
        s_add_u32 s{sT0}, s{sT0}, 384
        s_cmp_lt_u32 s{sHG}, 6
        s_cselect_b32 s{sKW}, s{sKW}, s{sT0}
        s_cselect_b32 s{sK1}, 20, 16
        s_mul_i32 s{sT2}, s{sW}, 320""")
        def dma_x(st):
            g = []
            for j in range(4):
                it = [('x', f"s_add_u32 m0, s{sM0}, {(st%3)*ST}")] if j == 0 else []
                g.append(it + [('vm', f"buffer_load_dwordx4 v{208+j}, {srd(SX)}, s{sE+st} offen offset:{j*1024} {c.xsc} lds", ('S', st))])
            return g
        def dma_a(st, i):
            it = []
            if i == 0: it = [('x', f"s_mul_i32 s{sKA}, s{sE+st}, 1920"), ('x', f"s_add_u32 m0, s{sM0+1}, {(st%3)*ST}")]
            if i == 2: it = [('x', f"s_mov_b32 m0, s{sM0+3+st%3}")]
            return it + [('vm', f"buffer_load_dwordx4 v{212+i}, {srd(SQ)}, s{sKA} offen offset:{1024 if i == 1 else 0} {c.wsc} lds", ('S', st))]
        def dma_h(st, i):
            it = []
            if i == 0: it = [('x', f"s_mul_i32 s{sKB}, s{sE+st}, 1728"), ('x', f"s_add_u32 m0, s{sM0+2}, {(st%3)*ST}")]
            if i == 4: it = [('x', "s_add_u32 m0, m0, 4096")]
            return it + [('vm', f"buffer_load_dwordx4 v{215+i}, {srd(S1)}, s{sKB} offen offset:{(i%4)*1024} {c.wsc} lds", ('S', st))]
        def dma_stage(st): return dma_x(st) + [dma_a(st, i) for i in range(3)] + [dma_h(st, i) for i in range(5)]
        if c.fast:
            self.kernarg_wait()
            for g in dma_x(0): self.emit_items(g)
            self.small_dma(SM, 6, f"s{sKW}", None, 20, 'bias', f"s_add_u32 m0, s{sT2}, {L_BIASQH}")
        e(f"""s_mul_i32 s{sT0}, s{sW}, 3
        s_lshl_b32 s{sT1}, s{sW}, 1
        s_add_u32 s{sT1}, s{sT1}, 2
        s_cmp_lt_u32 s{sW}, 2
        s_cselect_b32 s{sT0}, s{sT0}, s{sT1}
        s_lshl_b32 s{sM0+1}, s{sT0}, 10
        s_add_u32 s{sM0+1}, s{sM0+1}, 16384""")
        for sl in range(3):
            e(f"s_add_u32 s{sM0+3+sl}, s{sM0+1}, {2048 + sl*ST}\ns_cmp_lt_u32 s{sW}, 2\ns_cselect_b32 s{sM0+3+sl}, s{sM0+3+sl}, {MISC+4608}")
        e(f"s_lshl_b32 s{sT0}, s{sT0}, 6\ns_mul_i32 s{sT1}, s{sHG}, 160\ns_mul_i32 s{sM0+2}, s{sW}, 5120\ns_add_u32 s{sM0+2}, s{sM0+2}, {16384+10240}")
        for i in range(3):
            e(f"v_add_u32 v9, {64*i}, v0\nv_add_u32 v9, s{sT0}, v9")
            self.attn_voff(212 + i, None, sT1)
            if i == 1: e("v_subrev_u32 v213, 1024, v213")
            if i == 2: e(f"s_cmp_lt_u32 s{sW}, 2\ns_cselect_b32 s{sT4}, 0, {OOB}\nv_add_u32 v214, s{sT4}, v214")
            if c.fast: self.emit_items(dma_a(0, i))
        if not c.fast:
            self.kernarg_wait()
            self.small_dma(SM, 6, f"s{sKW}", None, 20, 'bias', f"s_add_u32 m0, s{sT2}, {L_BIASQH}")
            for g in dma_x(0) + [dma_a(0, i) for i in range(3)]: self.emit_items(g)
        e(f"s_mul_i32 s{sT0}, s{sW}, 320\nv_mov_b32 v14, {OOB}")
        for i in range(5):
            e(f"""v_add_u32 v9, {64*i}, v0
            v_add_u32 v9, s{sT0}, v9
            v_mul_u32_u24 v10, 3277, v9
            v_lshrrev_b32 v10, 16, v10
            v_mul_u32_u24 v11, 20, v10
            v_sub_u32 v11, v9, v11
            v_bfe_u32 v13, v10, 2, 1
            v_lshlrev_b32 v13, 1, v13
            v_xor_b32 v11, v11, v13
            v_cmp_gt_u32 vcc, s{sK1}, v11""")
            self.swap23(10, 12)
            e(f"""v_mul_u32_u24 v10, 3456, v10
            v_lshl_add_u32 v10, v11, 4, v10
            v_add_u32 v10, s{sKW}, v10
            v_subrev_u32 v10, {(i%4)*1024}, v10
            v_cndmask_b32 v{215+i}, v14, v10, vcc""")
            self.emit_items(dma_h(0, i))
        self.pstamp(1)
        if c.pke:
            self.pack_setup()
            for g in self.pack_loads(): self.emit_items(g)
        if c.touch == 1: self.touch()
        if c.touch == 4:
            self.touch3_setup()
            for p_ in range(c.tp0): self.emit_items(self.touch3(p_))
        self.pstamp(2)
        def setup():
            e = self.e
            self.x_addr(ST); self.rho0(8)
            e(f"v_mul_u32_u24 v9, 160, v8\nv_mad_u32_u24 v9, v4, 40, v9\nv_add_u32 v226, 16384, v9")
            e(f"v_mul_u32_u24 v9, 320, v8\nv_lshl_add_u32 v9, v4, 3, v9\nv_add_u32 v9, {16384+10240}, v9\nv_lshl_add_u32 v229, v7, 5, v9\nv_xor_b32 v7, 1, v7\nv_lshl_add_u32 v232, v7, 5, v9")
            for sl in (1, 2): e(f"v_add_u32 v{226+sl}, {sl*ST}, v226\nv_add_u32 v{229+sl}, {sl*ST}, v229\nv_add_u32 v{232+sl}, {sl*ST}, v232")
            self.common_setup()
            if not c.pke: self.pack_setup()
            e(f"s_mul_i32 s{sT1}, s{sW}, 320\ns_add_u32 s{sT1}, s{sT1}, {L_BIASQH}\nv_lshl_add_u32 v13, v2, 3, s{sT1}")
            e(f"""s_lshl_b32 s{sT0}, s{sMT}, 1
            s_lshr_b32 s{sT1}, s{sW}, 1
            s_add_u32 s{sT0}, s{sT0}, s{sT1}
            s_and_b32 s{sT1}, s{sW}, 1
            s_mul_i32 s{sT2}, s{sT0}, 74
            s_lshl_b32 s{sT2}, s{sT2}, 12
            s_lshl_b32 s{sT3}, s{sT1}, 11
            s_add_u32 s{sT2}, s{sT2}, s{sT3}
            s_add_u32 s{sT2}, s{sT2}, {A2}
            s_lshr_b32 s{sT4}, s{sHG}, 1
            s_mul_i32 s{sT4}, s{sT4}, 5
            s_add_u32 s{sT4}, s{sT4}, 54
            s_lshl_b32 s{sT4}, s{sT4}, 12
            s_add_u32 s{sT4}, s{sT4}, s{sT2}
            s_and_b32 s{sT5}, s{sHG}, 1
            s_lshl_b32 s38, s{sT5}, 13
            s_add_u32 s38, s38, s{sT4}
            s_add_u32 s39, s{sT4}, {4*4096}
            s_lshl_b32 s{sT5}, s{sT5}, 3
            s_add_u32 s39, s39, s{sT5}
            s_lshl_b32 s{sT0}, s{sHG}, 4
            s_add_u32 s{sT0}, s{sT0}, s{sMT}
            s_lshl_b32 s{sT0}, s{sT0}, 2
            s_add_u32 s{sT0}, s{sT0}, s{sW}
            s_lshl_b32 s{sT0}, s{sT0}, 9
            s_add_u32 s43, s{sT0}, {GB}
            v_mov_b32 v204, -1
            v_mov_b32 v205, -1
            v_mov_b32 v206, -1
            v_mov_b32 v207, -1""")
        self.interleave(self.record(setup), dma_stage(1)[:c.n1], c.pe)
        self.pstamp(3)
        if c.n1 >= 12:
            self.small_dma(SM, 6, "s36", None, 50, 'misc', "s_mov_b32 m0, s37")
            if c.touch == 2: self.touch()
            if not c.pke:
                for g in self.pack_loads(): self.emit_items(g)
        self.tag_wait(); self.pstamp(4)
        e.wait(vm='bias')
        for s_ in range(10): e.lgop(f"ds_read_b64 v[{136+2*s_}:{137+2*s_}], v13 offset:{s_*32}", ('b', s_))
        for s_ in range(10):
            a0 = 16 + (5 + s_) * 8; e.wait(lg=('b', s_))
            for h in range(2): e(f"v_lshlrev_b32 v{a0+2*h}, 16, v{136+2*s_+h}\nv_and_b32 v{a0+2*h+1}, 0xffff0000, v{136+2*s_+h}")
        self.stamp(0)
        NS = 15; nm = NS * 4; mf = []; reads = []
        for st in range(10):
            sl = st % 3
            for t in range(NS):
                gs = st * NS + t; wr = 168 + 8 * (gs % 4); m0 = len(mf)
                for ks in range(2):
                    for rd in range(2):
                        if t < 5: ad, off = 226 + sl, ks * 5120 + rd * 1280 + t * 8
                        else: ad, off = (229 if (t - 5) % 2 == 0 else 232) + sl, ks * 10240 + rd * 2560 + ((t - 5) >> 1) * 64
                        reads.append([f"ds_read_b64_tr_b16 v[{wr+4*ks+2*rd}:{wr+4*ks+2*rd+1}], v{ad} offset:{off}", m0, st, m0 - 13])
                for j in ((1, 0) if st == 0 else (0, 1)):
                    for ks in range(2):
                        xr = 136 + (st % 2) * 16 + (j * 2 + ks) * 4; d = 16 + (t * 2 + j) * 4
                        if t == 0: reads.append([f"ds_read_b128 {vr(xr)}, v{220+2*sl+ks} offset:{j*2048}", len(mf), st, -1])
                        cc = vr(d)
                        if st == 0 and ks == 0: cc = "0" if t < 5 else vr(16 + t * 8)
                        mf.append(f"v_mfma_f32_16x16x32_bf16 {vr(d)}, {vr(wr+4*ks)}, {vr(xr)}, {cc}")
        po = lambda va, off: [('vm', f"buffer_store_dwordx4 v[204:207], v{va}, {srd(SWS)}, s38 offen offset:{off} sc1", 'hst')]
        poison = [po(6, 0), po(6, 1024), po(240, 0), po(240, 1024)] + [[('vm', f"buffer_store_dwordx2 v[204:205], v6, {srd(SWS)}, s39 offen offset:{j*1024} sc1", 'hst')] for j in range(2)]
        self.kloop(mf, reads, nm, dma_stage, poison, 'QH')
        A51 = lambda u: u < 51; A64 = lambda u: u < 64; ALL = lambda u: True
        self.gelu_consts()
        e(f"s_lshl_b32 s{sT3}, s{sKW}, 6\ns_add_u32 s{sT3}, s{sT3}, s{sT2}")
        L = []
        for p in range(5):
            for j in range(2):
                O = 152 + 4 * ((2 * p + j) % 4)
                L += self.gelu_lines(16 + ((5 + 2 * p) * 2 + j) * 4, 16 + ((6 + 2 * p) * 2 + j) * 4, 136 + 8 * j, O)
                if j == 0:
                    if p == 4: L += [f"s_add_u32 s{sT4}, s{sT3}, {4*4096}", f"s_cmp_lt_u32 s{sHG}, 6\ns_cselect_b32 s{sT4}, s{sT4}, {OOB}"]
                    else: L.append(f"s_add_u32 s{sT4}, s{sT3}, {p*4096}")
                L.append(('vm', f"buffer_store_dwordx4 {vr(O)}, v6, {srd(SWS)}, s{sT4} offen offset:{j*1024} sc1", 'hst'))
        self.valu(L, bg=A51, S=c.Sg)
        self.valu(self.cvt_heads(16, 56, 0) + self.cvt_heads(16, 66, 1), bg=A51)
        self.stamp(2)
        e.wait(lg='wphi')
        self.valu(self.phi_mfmas(56, 76), bg=A51)
        e(f"""s_lshl_b32 s{sT4}, s{sMT}, 4
        s_add_u32 s{sT4}, s{sT4}, s{sHG}
        s_lshl_b32 s{sT4}, s{sT4}, 7
        s_add_u32 s{sT4}, s{sT4}, {F4}
        s_cmp_eq_u32 s{sW}, 0
        s_cselect_b32 s{sT5}, s{sT4}, {OOB}
        s_mov_b32 s{sC0}, {fl(math.log2(math.e))}""")
        L1 = self.softmax_lines(76, 16, 116)
        self.valu(L1[:c.f4at], bg=A64)
        e.wait(vm='hst'); e("s_barrier")
        if c.stamps == 3: e(f"s_mov_b32 s{sC0}, {fl(math.log2(math.e))}")
        e.vmop(self.flag_store(245, 246, f"s{sT5}"), 'f4st')
        self.valu(L1[c.f4at:], bg=ALL)
        L2 = self.softmax_lines(96, 16, 136)
        self.valu(L2[:c.pa], bg=ALL)
        self.poll4a_issue()
        self.valu(L2[c.pa:c.pb], bg=ALL)
        pool = [[('v', r), c.mo + 1 if r < 204 else c.p3 if r < 220 else 999] for r in list(range(204, 224, 4)) + list(range(168, 204, 4))]
        while len(self.Bpend) > c.qleft: self.bg_try(ALL, -9999)
        self.ph2_begin(pool)
        if c.stamps == 3: e(f"s_mov_b32 s{sC0}, {fl(math.log2(math.e))}")
        self.valu(L2[c.pb:], bg=ALL)
        self.stamp(3)
        pool += [[('v', r), c.mo + 1] for r in range(156, 168, 4)]
        FO = (0, 1024, 2048, 2816)
        finld = [f"buffer_load_dwordx4 {vr(204+4*i)}, v6, {srd(SWS)}, s{sKW} offen offset:{FO[i]} sc1" for i in range(4)]
        finld += [f"buffer_load_dwordx4 {vr(248+4*j)}, v13, {srd(SWS)}, s43 offen offset:{j*256} sc1" for j in range(2)]
        def h_p3():
            e(f"""s_mul_i32 s{sKW}, s{sHG}, {FSZ}
            s_mul_i32 s{sK1}, s{sW}, 3840
            s_add_u32 s{sKW}, s{sKW}, s{sK1}
            s_add_u32 s{sKW}, s{sKW}, {FIN}
            v_lshlrev_b32 v13, 4, v1""")
            for l in finld: e.vmop(l, 'fin')
        def h_c3():
            it = [('st', 4, 1)] + [('x', l) for l in f"s_lshr_b32 s{sK1}, s{sK1}, 1\ns_add_u32 s{sK1}, s{sK1}, {L_FIN}\nv_lshl_add_u32 v9, v0, 3, s{sK1}".split("\n")] + [('wvm', 'fin')]
            it += [('x', l) for l in self.tag_check(finld, list(range(204, 220)) + list(range(248, 256)), 8)] + [('st', 5, 1)]
            it += [('x', self.tag_strip(r)) for r in list(range(204, 220)) + [248, 252]] + [('x', "v_mov_b32 v250, v248"), ('x', "v_mov_b32 v251, v252")]
            for i in range(4):
                it += [('x', f"v_cvt_pk_bf16_f32 v{204+4*i}, v{204+4*i}, v{205+4*i}"), ('x', f"v_cvt_pk_bf16_f32 v{205+4*i}, v{206+4*i}, v{207+4*i}"),
                       ('lg', f"ds_write_b64 v9, v[{204+4*i}:{205+4*i}] offset:{FO[i]//2}", 'fw')]
            it += [('x', l) for l in f"v_lshlrev_b32 v13, 6, v2\nv_lshl_add_u32 v13, v4, 4, v13\nv_add_u32 v13, {L_FIN}, v13".split("\n")]
            self.aq[:0] = [[self.m, c.mo - 3, x] for x in it]
        def h_o():
            if c.p1q < 0: self.poll4b_issue()
            fr = [p for p in pool if p[0][0] == 'a'][:8]; assert len(fr) == 8; self.busy = fr
            e.wait(lg='fw'); e("s_barrier")
            self.stamp(6)
            mf = []; reads = []
            for fp in range(5):
                for dg in range(6):
                    n = fp * 6 + dg; f0 = fr[n % 8][0][1]; base = (n // 2) * 8
                    reads.append([f"ds_read_b128 {ar(f0)}, v13 offset:{(dg*5+fp)*256}", base + 2 * (n % 2), -1, base - 24])
                    for h in range(2):
                        for j in range(2):
                            d = 156 + 24 * j + 4 * dg; b = 116 + 20 * j + 2 * (2 * fp + h)
                            mf.append(f"v_mfma_f32_4x4x4_16b_bf16 {vr(d)}, a[{f0+2*h}:{f0+2*h+1}], v[{b}:{b+1}], {vr(d) if (fp or h) else 0}")
            mf2 = []
            for n in range(0, 30, 2):
                a_, b_ = mf[4*n:4*n+4], mf[4*n+4:4*n+8]
                mf2 += [a_[0], a_[1], b_[0], b_[1], a_[2], a_[3], b_[2], b_[3]]
            if c.skip & 4: mf2 = mf2[:8]; reads = reads[:2]
            self.stream(mf2, reads, [], None, LA=20, bg=lambda m: self.ph2_bg)
            for j in range(2): e(f"v_add_f32 v{8+2*j}, {fl(1e-6)}, v{156+24*j+20}")
            for j in range(2): e(f"v_rcp_f32 v{8+2*j}, v{8+2*j}")
            for j in range(2): e(f"v_mul_f32 v{8+2*j}, v{8+2*j}, v{250+j}")
            for j in range(2):
                D = 156 + 24 * j
                for i in range(10): e(f"v_pk_mul_f32 v[{D+2*i}:{D+2*i+1}], v[{D+2*i}:{D+2*i+1}], v[{8+2*j}:{9+2*j}] op_sel_hi:[1,0]")
                for i in range(10): e(f"v_cvt_pk_bf16_f32 v{D+i}, v{D+2*i}, v{D+2*i+1}")
                for i in range(10): e(f"v_min_u32 v{D+i}, -2, v{D+i}")
                e.vmop(f"buffer_store_dwordx4 {vr(D)}, v6, {srd(SWS)}, s38 offen offset:{j*1024} sc1", 'ost')
                e.vmop(f"buffer_store_dwordx4 {vr(D+4)}, v240, {srd(SWS)}, s38 offen offset:{j*1024} sc1", 'ost')
                e.vmop(f"buffer_store_dwordx2 {vr(D+8, 2)}, v6, {srd(SWS)}, s39 offen offset:{j*1024} sc1", 'ost')
            self.busy = []
            for p in pool: p[1] = 999
            pool.extend([[('v', r), 999] for r in range(116, 156, 4)])
            self.stamp(14)
        self.bias2()
        self.phase2({c.p3: h_p3, c.c3: h_c3, c.mo: h_o, c.p1q: self.poll4b_issue, c.c1q: self.poll4b_check})

    def prog_KV(self):
        e = self.e; c = self.c; self.init_B(); self.dmap = {0: 2, 1: 4, 3: 6, 4: 8, 5: 10, 7: 12, 9: 14}
        ST = KV_ST
        e(f"""s_mul_i32 s{sM0+1}, s{sW}, 5120
        s_add_u32 s{sM0+1}, s{sM0+1}, 16384
        s_lshl_b32 s{sM0+2}, s{sW}, 11
        s_add_u32 s{sM0+2}, s{sM0+2}, 36864
        s_lshl_b32 s{sKW}, s{sHG}, 7
        s_add_u32 s{sKW}, s{sKW}, {19*128}""")
        def dma_x(st):
            g = []
            for j in range(4):
                it = [('x', f"s_add_u32 m0, s{sM0}, {(st%3)*ST}")] if j == 0 else []
                g.append(it + [('vm', f"buffer_load_dwordx4 v{208+j}, {srd(SX)}, s{sE+st} offen offset:{j*1024} {c.xsc} lds", ('S', st))])
            return g
        def dma_w(st, i):
            it = []
            if i == 0: it = [('x', f"s_mul_i32 s{sKA}, s{sE+st}, 1920"), ('x', f"s_add_u32 m0, s{sM0+1}, {(st%3)*ST}")]
            if i == 4: it = [('x', "s_add_u32 m0, m0, 4096")]
            return it + [('vm', f"buffer_load_dwordx4 v{212+i}, {srd(SQ)}, s{sKA} offen offset:{(i%4)*1024} {c.wsc} lds", ('S', st))]
        def dma_h(st, i):
            it = [('x', f"s_mul_i32 s{sKB}, s{sE+st}, 1728"), ('x', f"s_add_u32 m0, s{sM0+2}, {(st%3)*ST}")] if i == 0 else []
            return it + [('vm', f"buffer_load_dwordx4 v{217+i}, {srd(S1)}, s{sKB} offen offset:{i*1024} {c.wsc} lds", ('S', st))]
        def dma_stage(st): return dma_x(st) + [dma_w(st, i) for i in range(5)] + [dma_h(st, i) for i in range(2)]
        if c.fast:
            self.kernarg_wait()
            for g in dma_x(0): self.emit_items(g)
            self.small_dma(SM, 6, f"s{sKW}", L_BIASKV, 8, 'bias')
        e(f"""s_and_b32 s{sT0}, s{sW}, 1
        s_mul_i32 s{sT0}, s{sT0}, 320
        s_lshr_b32 s{sT1}, s{sW}, 1
        s_add_u32 s{sT1}, s{sT1}, 1
        s_mul_i32 s{sT1}, s{sT1}, 1280
        s_mul_i32 s{sT3}, s{sHG}, 160
        s_add_u32 s{sT1}, s{sT1}, s{sT3}""")
        for i in range(5):
            e(f"v_add_u32 v9, {64*i}, v0\nv_add_u32 v9, s{sT0}, v9")
            self.attn_voff(212 + i, None, sT1)
            if i % 4: e(f"v_subrev_u32 v{212+i}, {(i%4)*1024}, v{212+i}")
            if c.fast: self.emit_items(dma_w(0, i))
        if not c.fast:
            self.kernarg_wait()
            self.small_dma(SM, 6, f"s{sKW}", L_BIASKV, 8, 'bias')
            for g in dma_x(0) + [dma_w(0, i) for i in range(5)]: self.emit_items(g)
        e(f"s_lshl_b32 s{sT3}, s{sW}, 4\nv_lshlrev_b32 v11, 1, v2\nv_xor_b32 v11, v11, v0\nv_and_b32 v11, 7, v11")
        for pp in range(2):
            e(f"v_add_u32 v10, {8*pp}, v5\nv_add_u32 v10, s{sT3}, v10")
            self.swap23(10, 12)
            e(f"""v_mul_u32_u24 v10, 3456, v10
            v_lshl_add_u32 v10, v11, 4, v10
            v_add_u32 v10, s{sKW}, v10
            v_subrev_u32 v{217+pp}, {pp*1024}, v10""")
            self.emit_items(dma_h(0, pp))
        mk_srd(e, 28, pGATE, 1280)
        if c.rot == 3: e(f"v_xor_b32 v9, s{sE}, v6\nv_add_u32 v11, 1024, v9")
        else: e(f"v_add_u32 v9, s{sE}, v6\nv_subrev_u32 v10, 1280, v9\nv_min_u32 v9, v9, v10\nv_add_u32 v11, 1024, v9\nv_subrev_u32 v10, 1280, v11\nv_min_u32 v11, v11, v10")
        self.small_dma(28, 9, "0", L_GATE, 64, ('S', 0)); self.small_dma(28, 11, "0", L_GATE + 1024, 16, ('S', 0))
        self.pstamp(1)
        if c.pke:
            self.pack_setup()
            for g in self.pack_loads(): self.emit_items(g)
        if c.touch == 1: self.touch()
        if c.touch == 4:
            self.touch3_setup()
            for p_ in range(c.tp0): self.emit_items(self.touch3(p_))
        self.pstamp(2)
        def setup():
            e = self.e
            self.x_addr(ST); self.rho0(8)
            e(f"v_mul_u32_u24 v9, 160, v8\nv_mad_u32_u24 v9, v4, 40, v9\nv_add_u32 v226, 16384, v9")
            for sl in (1, 2): e(f"v_add_u32 v{226+sl}, {sl*ST}, v226")
            e(f"v_lshlrev_b32 v9, 7, v8\nv_lshl_add_u32 v9, v4, 3, v9\nv_add_u32 v9, 36864, v9\nv_bfe_u32 v10, v8, 1, 2")
            for t in range(4): e(f"v_xor_b32 v11, {t}, v10\nv_lshl_add_u32 v{229+t}, v11, 5, v9\nv_add_u32 v{204+t}, {2*ST}, v{229+t}")
            e(f"v_lshlrev_b32 v233, 4, v2\nv_add_u32 v233, {L_GATE}, v233\nv_lshlrev_b32 v253, 3, v2\nv_add_u32 v253, {L_BIASKV}, v253")
            self.common_setup()
            if not c.pke: self.pack_setup()
            e(f"""v_lshrrev_b32 v8, 2, v1
            v_mul_u32_u24 v8, 2560, v8
            v_lshl_add_u32 v8, v4, 5, v8
            v_lshrrev_b32 v9, 1, v2
            v_lshl_add_u32 v8, v9, 9, v8
            v_and_b32 v9, 1, v2
            v_lshl_add_u32 v8, v9, 4, v8
            s_lshl_b32 s{sT0}, s{sW}, 7
            v_add_u32 v241, s{sT0}, v8
            v_add_u32 v243, 10240, v241
            v_mov_b32 v9, {OOB}
            v_cmp_ge_u32 vcc, 7, v1
            v_cndmask_b32 v243, v9, v243, vcc
            v_cmp_gt_u32 vcc, 2, v2
            v_cndmask_b32 v242, v9, v241, vcc
            v_cndmask_b32 v244, v9, v243, vcc
            v_mul_u32_u24 v12, {PSZ}, v2
            v_min_u32 v10, 14, v1
            v_lshl_add_u32 v12, v10, 4, v12
            v_lshlrev_b32 v13, 4, v1
            v_cmp_gt_u32 vcc, 16, v0
            v_cndmask_b32 v234, v9, v13, vcc
            v_cmp_gt_u32 vcc, 15, v0
            v_cndmask_b32 v13, v9, v13, vcc""")
        self.interleave(self.record(setup), dma_stage(1)[:c.n1], c.pe2)
        self.pstamp(3)
        if c.n1 >= 12:
            self.small_dma(SM, 6, "s36", None, 50, 'misc', "s_mov_b32 m0, s37")
            if c.touch == 2: self.touch()
            if not c.pke:
                for g in self.pack_loads(): self.emit_items(g)
        self.tag_wait(); self.pstamp(4)
        e.wait(vm='bias')
        for s_ in range(4): e.lgop(f"ds_read_b64 v[{136+2*s_}:{137+2*s_}], v253 offset:{s_*32}", ('b', s_))
        for s_ in range(4):
            e.wait(lg=('b', s_))
            for h in range(2): e(f"v_lshlrev_b32 v{96+8*s_+2*h}, 16, v{136+2*s_+h}\nv_and_b32 v{97+8*s_+2*h}, 0xffff0000, v{136+2*s_+h}")
        self.stamp(0)
        NS = 15; nm = NS * 4; mf = []; reads = []
        for st in range(10):
            sl = st % 3
            for t in range(NS):
                gs = st * NS + t; wr = 168 + 8 * (gs % 4); m0 = len(mf)
                for ks in range(2):
                    if t == 14: reads.append([f"ds_read_b128 {vr(wr+4*ks)}, v233 offset:{(st*2+ks)*64}", m0, st, m0 - 13]); continue
                    for rd in range(2):
                        if t < 10: ad, off = 226 + sl, (t // 5) * 10240 + ks * 5120 + rd * 1280 + (t % 5) * 8
                        else: ad, off = (229 if sl < 2 else 204) + t - 10, (sl % 2) * ST + ks * 4096 + rd * 1024
                        reads.append([f"ds_read_b64_tr_b16 v[{wr+4*ks+2*rd}:{wr+4*ks+2*rd+1}], v{ad} offset:{off}", m0, st, m0 - 13])
                for j in ((1, 0) if st == 0 else (0, 1)):
                    for ks in range(2):
                        xr = 136 + (st % 2) * 16 + (j * 2 + ks) * 4; d = 16 + (t * 2 + j) * 4
                        if t == 0: reads.append([f"ds_read_b128 {vr(xr)}, v{220+2*sl+ks} offset:{j*2048}", len(mf), st, -1])
                        cc = vr(d)
                        if st == 0 and ks == 0: cc = vr(16 + t * 8) if 10 <= t < 14 else "0"
                        mf.append(f"v_mfma_f32_16x16x32_bf16 {vr(d)}, {vr(wr+4*ks)}, {vr(xr)}, {cc}")
        self.kloop(mf, reads, nm, dma_stage, [], 'KV')
        A64 = lambda u: u < 64; ALL = lambda u: True
        A51 = lambda u: u < 51; Sa = c.Sa
        KQ = 136; PR = 168; VT = 156
        nl2e = fl(-math.log2(math.e))
        side = [l.strip() for l in f"""v_mul_f32 v128, {nl2e}, v128
        v_mul_f32 v132, {nl2e}, v132
        v_exp_f32 v128, v128
        v_exp_f32 v132, v132
        s_lshl_b32 s{sT2}, s{sMT}, 2
        v_add_f32 v128, 1.0, v128
        v_add_f32 v132, 1.0, v132
        v_rcp_f32 v128, v128
        v_rcp_f32 v132, v132
        s_add_u32 s{sT2}, s{sT2}, s{sW}
        s_lshl_b32 s{sT3}, s{sT2}, 9
        s_lshl_b32 s{sT4}, s{sHG}, 15
        s_add_u32 s{sT3}, s{sT3}, s{sT4}
        s_add_u32 s{sT3}, s{sT3}, {GB}
        v_mul_u32_u24 v220, {RSV}, v1
        v_mad_u32_u24 v220, v2, 48, v220
        s_mul_i32 s{sT0}, s{sW}, {32*RSV}
        s_add_u32 s{sT0}, s{sT0}, {L_V}
        v_add_u32 v220, s{sT0}, v220
        v_mul_u32_u24 v221, {RSP}, v1
        s_mov_b32 s{sT0}, 80
        v_mad_u32_u24 v221, v2, s{sT0}, v221
        s_mul_i32 s{sT0}, s{sW}, {32*RSP}
        v_add_u32 v221, s{sT0}, v221
        v_lshl_add_u32 v8, v2, 2, v3
        v_mul_u32_u24 v222, {RSP}, v8
        v_lshl_add_u32 v222, v4, 3, v222
        s_mul_i32 s{sT0}, s{sW}, 80
        v_add_u32 v222, s{sT0}, v222
        v_mul_u32_u24 v223, {RSV}, v8
        v_lshl_add_u32 v223, v4, 3, v223
        s_mul_i32 s{sT0}, s{sW}, 48
        s_add_u32 s{sT0}, s{sT0}, {L_V}
        v_add_u32 v223, s{sT0}, v223
        s_lshl_b32 s{sT0}, s{sHG}, 4
        s_add_u32 s{sT0}, s{sT0}, s{sMT}
        s_mul_i32 s{sT1}, s{sT0}, {PSZ}
        s_add_u32 s{sT1}, s{sT1}, {PP}
        s_mov_b32 s{sC0}, {fl(math.log2(math.e))}""".split("\n")]
        self.valu(self.cvt_heads(16, KQ, 0) + self.cvt_heads(16, KQ + 10, 1))
        e.wait(lg='wphi')
        side = self.cvt_heads(56, VT, 0) + side[:38]; rest = [side.pop() for _ in range(0)]
        self.valu(self.phi_mfmas(KQ, PR), [[('x', l)] for l in side], 1)
        e(f"v_mov_b32 v{VT+10}, 0x3f80\nv_mov_b32 v{VT+11}, 0\ns_mov_b32 s{sC0}, {fl(math.log2(math.e))}\ns_barrier")
        for i in range(3): e.lgop(f"ds_write_b128 v220, {vr(VT+4*i)} offset:{i*16}", 'vw')
        for j in range(2):
            for i in (3, 2, 1, 0): e(self.tag_put(128 + 4 * j + i, 128 + 4 * j))
            e.vmop(f"buffer_store_dwordx4 {vr(128+4*j)}, v234, {srd(SWS)}, s{sT3} offen offset:{j*256} sc1", 'hst')
        L0 = self.softmax_lines(PR, 16, 136)
        self.valu(L0[:16], bg=ALL, S=Sa)
        self.valu(self.cvt_heads(56, 208, 1) + ["v_mov_b32 v218, 0x3f80", "v_mov_b32 v219, 0"], bg=ALL, S=Sa)
        for i in range(3): e.lgop(f"ds_write_b128 v220, {vr(208+4*i)} offset:{16*RSV + i*16}", 'vw')
        self.valu(L0[16:], bg=ALL, S=Sa)
        PH = (136, 56)
        pw = lambda j: [[('lg', f"ds_write_b128 v221, {vr(PH[j]+4*i)} offset:{j*16*RSP + i*16}", 'pw')] for i in range(5)]
        L1 = self.softmax_lines(PR + 20, 16, 56)
        self.valu(L1[:40], pw(0), 8, ALL, Sa)
        self.valu(L1[40:-20], bg=ALL, S=Sa)
        self.valu(L1[-20:], pw(1), 4)
        e.wait(lg_all=True); e("s_barrier")
        self.stamp(2)
        mf = []; reads = []; D0 = 168
        for s_ in range(4):
            b0 = 16 + s_ * 20; m0 = len(mf)
            for dt in range(2):
                for rd in range(2): reads.append([f"ds_read_b64_tr_b16 v[{b0+12+4*dt+2*rd}:{b0+13+4*dt+2*rd}], v223 offset:{(32*s_+16*rd)*RSV + dt*32}", m0 + dt, -1, -1])
            for ft in range(3):
                for rd in range(2): reads.append([f"ds_read_b64_tr_b16 v[{b0+4*ft+2*rd}:{b0+4*ft+2*rd+1}], v222 offset:{(32*s_+16*rd)*RSP + ft*32}", m0 + 2 * ft, -1, -1])
                for dt in range(2):
                    d = D0 + (ft * 2 + dt) * 4
                    mf.append(f"v_mfma_f32_16x16x32_bf16 {vr(d)}, {vr(b0+4*ft)}, {vr(b0+12+4*dt)}, {vr(d) if s_ else 0}")
        reads.sort(key=lambda r: r[1]); rp = 0
        for m in range(24):
            while rp < 40 and (len(e.lg) < 14 and (m == 0 or reads[rp][1] <= m + 8) or reads[rp][1] <= m): e.lgop(reads[rp][0], ('kv', reads[rp][1])); rp += 1
            e.wait(lg=[('kv', k) for k in range(m + 1)])
            e(mf[m])
            if c.kvb: self.bg_try(ALL, c.kvb)
        self.gelu_consts()
        e(f"""s_lshl_b32 s{sT4}, s{sMT}, 1
        s_lshr_b32 s{sT5}, s{sW}, 1
        s_add_u32 s{sT4}, s{sT4}, s{sT5}
        s_and_b32 s{sT5}, s{sW}, 1
        s_mul_i32 s{sT3}, s{sT4}, 74
        s_lshl_b32 s{sKW}, s{sHG}, 1
        s_add_u32 s{sT3}, s{sT3}, s{sKW}""")
        for ft in range(3):
            for dt in range(2):
                for i in range(4): e(self.tag_put(D0 + (ft * 2 + dt) * 4 + i))
                e.vmop(f"buffer_store_dwordx4 {vr(D0+(ft*2+dt)*4)}, v{241+2*dt+(ft==2)}, {srd(SWS)}, s{sT1} offen offset:{ft*1024} sc1", 'pst')
        self.stamp(3)
        if c.stamps: self.gelu_consts()
        e(f"""s_add_u32 s{sT3}, s{sT3}, 38
        s_lshl_b32 s{sT3}, s{sT3}, 12
        s_lshl_b32 s{sT5}, s{sT5}, 11
        s_add_u32 s{sT3}, s{sT3}, s{sT5}
        s_add_u32 s{sT3}, s{sT3}, {A2}
        s_lshl_b32 s{sKW}, s{sMT}, 4
        s_add_u32 s{sKW}, s{sKW}, s{sHG}
        s_lshl_b32 s{sKW}, s{sKW}, 7
        s_add_u32 s{sKW}, s{sKW}, {F4+1024}
        s_cmp_eq_u32 s{sW}, 0
        s_cselect_b32 s{sKW}, s{sKW}, {OOB}
        s_mul_i32 s32, s{sT2}, 240
        s_mul_i32 s{sT4}, s{sHG}, {FSZ}
        s_add_u32 s{sT1}, s32, s{sT4}
        s_add_u32 s{sT1}, s{sT1}, {FIN}
        s_lshl_b32 s{sT4}, s{sT4}, 4
        s_add_u32 s32, s32, s{sT4}
        s_add_u32 s32, s32, {PP}
        s_add_u32 s33, s32, {4*PSZ}
        s_add_u32 s34, s33, {4*PSZ}
        s_add_u32 s35, s34, {4*PSZ}""")
        L = []; hs = []
        for p in range(2):
            for j in range(2):
                O = 152 + 4 * ((2 * p + j) % 4)
                L += self.gelu_lines(96 + (4 * p + j) * 4, 96 + (4 * p + 2 + j) * 4, 136 + 8 * j, O)
                hs.append(('vm', f"buffer_store_dwordx4 {vr(O)}, v{6 if p == 0 else 240}, {srd(SWS)}, s{sT3} offen offset:{j*1024} sc1", 'hst'))
        RD = 116
        pld = [f"buffer_load_dwordx4 {vr(RD+4*i)}, v12, {srd(SWS)}, s{32+i} offen sc1" for i in range(4)]
        self.valu(L, bg=ALL if c.kgb else None, S=Sa)
        for l in pld: e.vmop(l, 'pld')
        if c.kp4 == 0: self.poll4a_issue()
        self.emit_items(hs)
        pool = [[('v', r), 999] for r in list(range(168, 224, 4)) + list(range(136, 168, 4))]
        for _ in range(c.kb2): self.bg_try(ALL, -9999)
        self.stamp(4)
        def h_r2():
            red = [self.tag_strip(RD + i) for i in range(16)]
            red += [f"v_add_f32 v{RD+i}, v{RD+i}, v{RD+4+i}" for i in range(4)] + [f"v_add_f32 v{RD+8+i}, v{RD+8+i}, v{RD+12+i}" for i in range(4)] + [f"v_add_f32 v{RD+i}, v{RD+i}, v{RD+8+i}" for i in range(4)]
            for sw in ('32', '16'):
                red += [f"v_mov_b32 v{RD+4+i}, v{RD+i}" for i in range(4)] + [f"v_permlane{sw}_swap_b32 v{RD+i}, v{RD+4+i}" for i in range(4)] + [f"v_add_f32 v{RD+i}, v{RD+i}, v{RD+4+i}" for i in range(4)]
            red += [self.tag_put(RD + i) for i in range(4)]
            it = [('st', 14, 1), ('wvm', 'pld')] + [('x', l) for l in self.tag_check(pld, range(RD, RD + 16), 9)] + [('st', 5, 1)] + [('x', l) for l in red]
            it += [('vm', f"buffer_store_dwordx4 {vr(RD)}, v13, {srd(SWS)}, s{sT1} offen sc1", 'fst')]
            self.emit_items(it); pool.extend([[('v', r), 999] for r in range(RD, RD + 20, 4)])
        def h_f4():
            e.wait(vm='hst'); e("s_barrier"); e.vmop(self.flag_store(245, 246, f"s{sKW}"), 'f4st')
        h_r2()
        if c.f4k < 0: h_f4()
        if c.kp4 == 1:
            self.poll4a_issue()
            for _ in range(c.kb3): self.bg_try(ALL, -9999)
        self.ph2_begin(pool)
        while len(self.Bpend) > c.kleft: self.bg_try(ALL, -9999)
        self.stamp(6)
        self.bias2()
        self.phase2({c.f4k: h_f4, c.p1: self.poll4b_issue, c.c1: self.poll4b_check})

    def kloop(self, mf, reads, nm, dma_stage, poison, name):
        e = self.e; c = self.c; back = []
        def mksync(st):
            def f(m):
                tg = [it[2] for g in back for it in (g[1] if g[0] == 'atomic' else g) if it[0] == 'vm']
                assert not (st == c.pks and 'packld' in tg) and not (st == c.pks + 3 and 'pkst' in tg) and not (st == 3 and 'misc' in tg) and ('S', st) not in tg
                e.wait(vm=[('S', st)] + (['pkst'] if st == c.pks + 3 else []) + (['misc'] if st == 3 else []) + (['packld'] if st == c.pks else []), lg_all=True); e("s_barrier")
                self.stamp(st + 1, 2)
                if st < 3: self.stamp(7 + st, 3)
                if st == 2: self.pstamp_flush()
                out = []
                if st == 0 and c.n1 < 12:
                    back.extend(dma_stage(1)[c.n1:])
                    back.append(('atomic', self.record(lambda: self.small_dma(SM, 6, "s36", None, 50, 'misc', "s_mov_b32 m0, s37"))))
                if st + 2 < 10: back.extend(dma_stage(st + 2))
                if st == c.pkl and c.n1 < 12: back.extend(self.pack_loads())
                if st == c.pks: back.extend(self.pack_stores())
                need = max([k + 1 for k, g in enumerate(back) if g[0] != 'atomic' and g[-1][2] == ('S', st + 1)], default=0)
                n = min(len(back), max(c.quota, need)) if st < 7 else len(back)
                take = back[:n]; del back[:n]
                if take:
                    pc = self.paced([g[1] if g[0] == 'atomic' else g for g in take], m, nm - c.dtail)
                    for f, g in zip(pc, take):
                        if g[0] == 'atomic': f['atomic'] = 1
                    out += pc
                if c.touch == 4: out += [dict(at=m + nm - c.dtail + 1, chain=1, ins=self.touch3(p_)) for p_ in range(c.tp0, 3) if c.tst[p_] == st]
                if st in c.cpf: out.append(dict(at=m + nm - c.dtail + 2, ins=self.code_touch('L_QH' if name == 'KV' else 'L_end')))
                if st == c.pks: out += self.pack_fill(m, nm)
                if st == c.pks + 3: out.append(dict(at=m + 1, ins=[('vm', self.flag_store(245, 246, f"s{sF1}"), 'f1st')]))
                if st == 3: out += [dict(at=m + 3 + 5 * k, ins=g) for k, g in enumerate(self.wphi_reads(254))]
                if st == c.f1s - 1: out += [dict(at=m + nm - c.dtail + 2 * k, chain=1, ins=g) for k, g in enumerate(self.f1_issue())]
                if st == c.f1s:
                    chk = [dict(at=m + c.f1c + 2 * k, ins=[it]) for k, it in enumerate(self.f1_check())]
                    out += chk
                    if c.bt: out += [dict(at=m + c.f1c + 26 + c.btsp * k, ins=g) for k, g in enumerate(self.btouch())]
                if st == 8:
                    if poison: out += self.paced(poison, m, 30)
                    self.bg0 = max(m + c.bgs, (m + c.f1c + 28) if c.f1s == 8 else 0)
                return out
            return f
        self.bg0 = 9999; self.wphi_addr(254)
        self.stream(mf, reads, [], {st: mksync(st) for st in range(10)}, name=name, bg=lambda m: (lambda u: m >= self.bg0 and u < 51))
        self.stamp(1); self.stamp(11, 2)
        self.typ = name
        if c.dly == (1 if name == 'KV' else 2): e(f's_sleep {c.dlyn}')
        self.ph2_pre()

    def ph2_pre(self):
        e = self.e
        mk_srd(e, SM, pB2, 1280); mk_srd(e, SPK, pOUT, 2048 * 1280)
        e(f"""s_mul_i32 s{sM0}, s{sNB}, 160
        s_and_b32 s{sM0+1}, s{sNB}, 1
        s_lshl_b32 s{sM0+2}, s{sM0+1}, 5
        s_add_u32 s{sM0+2}, s{sM0+2}, s{sM0}
        s_xor_b32 s{sM0+1}, s{sM0+1}, 1
        s_lshl_b32 s{sM0+1}, s{sM0+1}, 7
        s_add_u32 s{sM0+1}, s{sM0+1}, s{sM0}
        s_min_u32 s{sM0+3}, s{sW}, 1
        s_mul_i32 s{sM0+3}, s{sM0+3}, 1280
        s_sub_u32 s{SM+2}, 1280, s{sM0+3}
        s_lshr_b32 s{sM0+5}, s{sRB}, 1
        s_lshl_b32 s{sM0+3}, s{sM0+5}, 11
        s_add_u32 s{sM0+3}, s{sM0+3}, {F4}
        s_add_u32 s{sM0+4}, s{sM0+3}, 1024
        v_and_b32 v235, 7, v0
        v_lshlrev_b32 v235, 7, v235""")
        e("v_lshlrev_b32 v7, 4, v2\nv_lshlrev_b32 v8, 3, v2")
        e.vmop(f"buffer_load_dwordx4 v[224:227], v7, {srd(SM)}, s{sM0+2} offen", 'b2')
        e.vmop(f"buffer_load_dwordx4 v[228:231], v7, {srd(SM)}, s{sM0+2} offen offset:64", 'b2')
        e.vmop(f"buffer_load_dwordx2 v[232:233], v8, {srd(SM)}, s{sM0+1} offen", 'b2')
    def poll4a_issue(self): self.e.vmop(self.poll_issue(235, 252, 2, None, f"s{sM0+3}"), 'p4a')

    def poll4b_issue(self): self.e.vmop(self.poll_issue(235, 252, 2, None, f"s{sM0+4}"), 'p4b')
    def poll4b_check(self):
        e = self.e
        self.stamp(10)
        e.wait(vm='p4b')
        for l in self.poll_check([(235, 252, 2, f"s{sM0+4}")]): e(l)
        self.stamp(11)
        self.gate[1] = True; self.g_loads()
        for _ in range(self.c.burst): self.try_issue(self.m, True)
    def g_loads(self):
        e = self.e
        e(f"s_lshl_b32 s{sT0}, s{sRB}, 10\ns_add_u32 s{sT0}, s{sT0}, {GB}\nv_lshlrev_b32 v7, 4, v1")
        for jj in range(4):
            e(f"v_subrev_u32 v8, v6, v{236+jj}\nv_lshrrev_b32 v8, 2, v8\nv_add_u32 v8, v8, v7")
            e.vmop(f"buffer_load_dword v{241+jj}, v8, {srd(SWS)}, s{sT0} offen sc1", 'g')
    def bias2(self):
        e = self.e; BI = 96
        e.wait(vm='b2')
        for t in range(5):
            for h in range(2):
                s_ = 224 + 2 * t + h
                e(f"v_lshlrev_b32 v{BI+4*t+2*h}, 16, v{s_}\nv_and_b32 v{BI+4*t+2*h+1}, 0xffff0000, v{s_}")

    def ph2_begin(self, pool):
        e = self.e; c = self.c
        e.wait(vm='p4a')
        for l in self.poll_check([(235, 252, 2, f"s{sM0+3}")]): e(l)
        self.pool = pool; self.busy = []; self.Aloc = {}; self.Bl = dict(self.Bloc); self.Acur = {}
        groups = [(0, 1), (2, 3), (4, 5), (6, 7), (8, 9), (10, 11), (12, 13), (14, 15), (16, 17, 18)]
        self.mf = [(i, t, j) for g in groups for t in range(5) for j in range(4) for i in g]
        fA, lA, fB, lB = {}, {}, {}, {}
        for m, (i, t, j) in enumerate(self.mf):
            fA.setdefault((i, j), m); lA[(i, j)] = m; fB.setdefault((i, t), m); lB[(i, t)] = m
        self.lA, self.lB = lA, lB
        w = [('A', k, fA[k] if k[0] < 14 else (280 if k[0] < 16 else 320) - c.vlead - 1, lA[k]) for k in fA]
        w += [('S', k, fB[k], lB[k]) for k in fB if self.Bl[k] and self.Bl[k][0] == 'l']
        w += [('B', k, fB[k], lB[k]) for k in fB if self.Bl[k] is None]
        self.fB = fB
        self.work = sorted(w, key=lambda x: (x[2] // 40 * 40 + x[1][0] % 2 * 4 + x[1][1]) if (x[0] == 'A' and c.aord and x[1][0] < 14) else x[2]); self.gate = {0: True, 1: False, 2: False, 3: False}; self.Atxt = {}; self.lastiss = -99; self.m = 0
        for _ in range(c.a0): self.try_issue(0, True)

    def try_issue(self, m, force=False, nos=False):
        e = self.e; c = self.c; pool = self.pool
        cls = lambda i: 0 if i < 10 else (1 if i < 14 else 2 if i < 16 else 3)
        for w in self.work:
            kind, k, dl, last = w
            if kind == 'A' and not self.gate[cls(k[0])]: continue
            if kind == 'S' and (nos or dl - m > 16 or self.Border.index(k) in self.Bpend): continue
            if kind != 'S' and not force and dl - m >= 12 and e.t - e.tvm < (c.S2 if dl - m >= c.urg else c.S3): continue
            if kind == 'P':
                self.Bpend.remove(k); self.emit_items(self.B_take([k])[0]); self.work.remove(w); return True
            ok = [p for p in pool if p[1] > last and p not in self.busy and (p[0][0] == 'v' or kind != 'A' or k[0] < 14)]
            if not (kind == 'A' and k[0] >= 14): ok.sort(key=lambda p: p[0][0] == 'v' and m > 150)
            if len(ok) < (1 if dl - m <= 40 else 4 if kind == 'A' else 7): continue
            p = ok[0]; pool.remove(p); loc = p[0]; self.until[loc] = p[1]
            if kind == 'A':
                i, j = k; sr = sAT if i % 2 == 0 else sAT2
                if self.Acur.get(sr) != i:
                    e(self.soff(sr, i, 'A')); self.Acur[sr] = i
                e.vmop(f"buffer_load_dwordx4 {R(loc)}, v{236+j}, {srd(SWS)}, s{sB if c.xA == 1 and i < 14 else 41 if c.xA == 2 else sr} offen sc1", ('A', k)); self.Aloc[k] = loc
                self.Atxt[k] = self.soff(sT1, i, 'A').split("\n") + [ f"buffer_load_dwordx4 {R(loc)}, v{236+j}, {srd(SWS)}, s{sT1} offen sc1"]
            elif kind == 'B':
                self.emit_items(self.B_items(k, loc)); self.Bl[k] = loc
            else:
                e.wait(vm=('B', k))
                e.lgop(f"ds_read_b128 {R(loc)}, v234 offset:{self.Bl[k][1]*1024}", ('S', k)); self.Bl[k] = loc
            if kind != 'S': self.lastiss = m
            if c.verbose > 1: print(f'{kind}{k}@{m}->{dl}', end=' ')
            self.work.remove(w); return True
        return False

    def phase2(self, hooks):
        e = self.e; c = self.c
        ACC = 16; BI = 96; pool = self.pool; mf = self.mf; Bl = self.Bl; Aloc = self.Aloc
        mtrans = min(m for m, x in enumerate(mf) if x[0] >= 14)
        if c.verbose: print("B loads left for phase 2:", len(self.Bpend))
        hooks = {k: v for k, v in hooks.items() if k >= 0}
        for u in self.Bpend:
            k = self.Border[u]; self.work.append(('P', u, self.fB[k] - (20 if self.Bloc[k][0] == 'l' else 0), 0))
        self.work.sort(key=lambda x: (x[2] // 40 * 40 + x[1][0] % 2 * 4 + x[1][1]) if (x[0] == 'A' and c.aord and x[1][0] < 14) else x[2])
        e(f"s_add_u32 s{sT0}, s88, {L_BL}\nv_add_u32 v234, s{sT0}, v6")
        pool += [[('v', r), 999] for r in (224, 228)]
        if c.dly == (3 if self.typ == 'KV' else 4): e(f's_sleep {c.dlyn}')
        seen = set(); vchk = {280: (14, 15), 320: (16, 17, 18)}
        aq = []
        lastH = {}; firstO = {}; lastO = {}
        for m, (i, t, j) in enumerate(mf):
            if i < 14: lastH[(j, t)] = m
            else: firstO.setdefault((j, t), m); lastO[(j, t)] = m
        g0 = min(lastH.values()) - 10
        aq.append([g0, g0 + 4, ('wvm', 'g')])
        for jj in range(4): aq += [[g0, g0 + 8, ('x', self.tag_strip(241 + jj))]]
        for jj in range(4): aq += [[g0, g0 + 12, ('x', f"v_sub_f32 v{241+jj}, 1.0, v{241+jj}")]]
        for k in sorted(lastH, key=lambda k: lastH[k]):
            jj, tt = k; d = ACC + (jj * 5 + tt) * 4
            for q in range(4): aq.append([lastH[k] + 3, firstO[k] - 2, ('x', f"v_mul_f32 v{d+q}, v{241+jj}, v{d+q}")])
        adr = []
        for jj in range(1, 4):
            adr += [f"s_add_u32 s{sT0}, s{sW}, {jj}", f"s_and_b32 s{sT0}, s{sT0}, 3", f"s_mul_i32 s{sT0}, s{sT0}, 15360",
                    f"s_add_u32 s{sT0}, s{sT0}, {L_RED + (jj-1)*5120}", f"v_add_u32 v{8+jj}, s{sT0}, v6"]
        adr += [l.strip() for l in f"""s_mul_i32 s{sT0}, s{sW}, 15360
        s_add_u32 s{sT0}, s{sT0}, {L_RED}
        v_add_u32 v8, s{sT0}, v6
        s_lshl_b32 s{sT0}, s{sRB}, 2
        s_add_u32 s{sT0}, s{sT0}, s{sW}
        s_mul_i32 s{sT0}, s{sT0}, {16*1280}
        s_add_u32 s{sT3}, s{sT0}, s{sM0+2}
        s_add_u32 s{sT2}, s{sT0}, s{sM0+1}
        v_mul_u32_u24 v12, 1280, v1
        v_lshl_add_u32 v13, v2, 3, v12
        v_lshl_add_u32 v12, v2, 4, v12""".split("\n")]
        for l in adr: aq.append([c.adr0, 325, ('x', l)])
        for k in sorted(lastO, key=lambda k: lastO[k]):
            jj, tt = k
            if jj: aq.append([lastO[k] + 3, 999, ('lg', f"ds_write_b128 v{8+jj}, {vr(ACC+(jj*5+tt)*4)} offset:{tt*1024}", 'rw')])
        self.aq = aq
        for m, (i, t, j) in enumerate(mf):
            self.m = m
            if m == mtrans: self.stamp(7)
            assert (i, j) in Aloc and Bl[(i, t)] and Bl[(i, t)][0] != 'l', (m, i, t, j)
            assert not any(a[1] < m for a in aq), (m, aq[0])
            e.wait(vm=[('A', (i, j)), ('B', (i, t))], lg=('S', (i, t)))
            d = ACC + (j * 5 + t) * 4
            cc = vr(d) if (j, t) in seen else vr(BI + 4 * t); seen.add((j, t))
            e(f"v_mfma_f32_16x16x32_bf16 {vr(d)}, {R(Bl[(i, t)])}, {R(Aloc[(i, j)])}, {cc}")
            k0 = len(e.ins)
            for loc, last in ((Aloc[(i, j)], self.lA[(i, j)]), (Bl[(i, t)], self.lB[(i, t)])):
                if last == m: pool.append([loc, self.until.get(loc, 999) if self.until.get(loc, 999) > m else 999])
            if m == 40: pool.extend([[('v', BI + 4 * k), 999] for k in range(5)])
            if m == 200 and c.dly == (5 if self.typ == 'KV' else 6): e(f's_sleep {c.dlyn}')
            if m == c.o1: self.gate[2] = True
            if m == c.o2: self.gate[3] = True
            if m + 1 + c.vlead in vchk:
                mv = m + 1 + c.vlead; ks = [(ii, jj) for ii in vchk[mv] for jj in range(4)]
                assert all(k in Aloc for k in ks), (m, ks)
                vq = [('wvm', [('A', k) for k in ks])] + [('x', l) for l in self.valid_check(sum([self.Atxt[k] for k in ks], []), [Aloc[k][1] + q for k in ks for q in range(4)], 7)]
                if mv == 280: vq = [('st', 12, 1)] + vq + [('st', 13, 1), ('open',)]
                aq[:0] = [[m, mv - 1, it] for it in vq]
            if m in hooks: hooks[m]()
            self.try_issue(m)
            while any(w[2] - m < 4 for w in self.work) and self.try_issue(m): pass
            while True:
                av = [a for a in aq if a[0] <= m]
                if not av: break
                hurry = any(sum(1 for b in aq if b[1] <= a[1]) > 2 * (a[1] - m) for a in aq if a[1] < 999)
                a = min(av, key=lambda a: a[1])
                if len(e.ins) - k0 >= 2 and not hurry: break
                if a[2][0] == 'lg' and any(x.kind in ('dsw', 'dsr', 'vload', 'dma') for x in e.ins[k0:]): break
                aq.remove(a)
                if a[2][0] == 'open':
                    self.gate[3] = True
                    for _ in range(c.burst3): self.try_issue(m, True)
                elif a[2][0] == 'call': a[2][1]()
                else: self.emit_items([a[2]])
        assert not self.work, self.work
        self.stamp(8)
        for a in aq: self.emit_items([a[2]])
        e.wait(lg_all=True); e("s_barrier")
        for t in range(5):
            for s_ in range(3): e.lgop(f"ds_read_b128 {vr(116+(t*3+s_)*4)}, v8 offset:{s_*5120+t*1024}", ('rr', t))
        for t in range(5):
            e.wait(lg=('rr', t)); d = ACC + t * 4; r = 116 + t * 12
            e(f"""v_pk_add_f32 v[{d}:{d+1}], v[{d}:{d+1}], v[{r}:{r+1}]
            v_pk_add_f32 v[{d+2}:{d+3}], v[{d+2}:{d+3}], v[{r+2}:{r+3}]
            v_pk_add_f32 v[{r+4}:{r+5}], v[{r+4}:{r+5}], v[{r+8}:{r+9}]
            v_pk_add_f32 v[{r+6}:{r+7}], v[{r+6}:{r+7}], v[{r+10}:{r+11}]
            v_pk_add_f32 v[{d}:{d+1}], v[{d}:{d+1}], v[{r+4}:{r+5}]
            v_pk_add_f32 v[{d+2}:{d+3}], v[{d+2}:{d+3}], v[{r+6}:{r+7}]
            v_cvt_pk_bf16_f32 v{96+2*t}, v{d}, v{d+1}
            v_cvt_pk_bf16_f32 v{97+2*t}, v{d+2}, v{d+3}""")
            if t == 1: e.vmop(f"buffer_store_dwordx4 v[96:99], v12, {srd(SPK)}, s{sT3} offen {c.osc}", 'o')
            if t == 3: e.vmop(f"buffer_store_dwordx4 v[100:103], v12, {srd(SPK)}, s{sT3} offen offset:64 {c.osc}", 'o')
            if t == 4: e.vmop(f"buffer_store_dwordx2 v[104:105], v13, {srd(SPK)}, s{sT2} offen {c.osc}", 'o')
        self.stamp(9)
        e("s_endpgm")

    def build(self):
        e = self.e
        self.prologue()
        st = (list(e.vm), list(e.lg))
        self.until = {}
        self.prog_KV()
        e.vm, e.lg = list(st[0]), list(st[1])
        self.until = {}
        self.prog_QH()
        e("\n".join(self.tail))
        e("L_end:\ns_endpgm")
        body = e.finish()
        hdr = open('cdna_kernels/' + NAME + '.s.ref').read().split('; Override launch')[0]
        K = NAME + "_kernel"
        out = hdr + "; Generated by a hand-written Python generator (persistent fused kernel; see comments in the generator).\n"
        out += "; @launch grid=(256,1,1) block=(256,1,1) lds=163840\n"
        out += f'.amdgcn_target "amdgcn-amd-amdhsa--gfx950"\n.text\n.globl {K}\n.p2align 8\n.type {K},@function\n{K}:\n' + body
        out += f""".fill 64, 4, 0xbf800000
.section .rodata,"a"
.p2align 6
.amdhsa_kernel {K}
  .amdhsa_next_free_vgpr 512
  .amdhsa_next_free_sgpr 102
  .amdhsa_accum_offset 256
  .amdhsa_group_segment_fixed_size 0
  .amdhsa_kernarg_size 104
  .amdhsa_user_sgpr_count 2
  .amdhsa_user_sgpr_kernarg_segment_ptr 1
  .amdhsa_system_sgpr_workgroup_id_x 1
.end_amdhsa_kernel
"""
        return out

for k_, v_ in dict(rot=3, par=0, kp4=1, dly=0, dlyn=16, kvb=0, VC=64, cnt=0, cpf=(), aord=1, nochk=0, skip=0, fast=1, n1=0, quota=28, pkl=0, tp0=1, tst=(0, 0, 1), sp1=24, tlb=0, tlb2=0, pks=3, pke=0, f1s=8, bt=0, btsp=20, bgs=30, qleft=0, kpre=180, kord=0, kgb=1, tmask=7, wbl=0, exit_at=-1, only=0, dstamp=0, xsc='', wsc='', psc='nt', pss='sc1', xA=0, S=48, S2=32, urg=50, S3=0, kb3=8, xB=0, mix=0, perm=0, kf1=60, pe=20, pe2=20, dtail=4, qb0=14, qb1=22, se=10, a0=14, ap=4, osc='sc1 nt', touch=1, kvring=3, f1c=24,
                   f4at=20, pa=100, pb=144, p3=65, c3=95, r1=30, r2=70, rspan=24, kbeg=0, kb1=20, kpa=60, mo=119, p1q=135, c1q=160, Sa=64, kb2=6, kleft=99, Sg=100, o2=226, o1=210, vlead=14, adr0=205, burst3=12, sleep2=1, f4k=-1, p1=130, c1=158, burst=4).items():
    setattr(Cfg, k_, v_)

def generate(**kw):
    c = Cfg()
    for k, v in kw.items(): setattr(c, k, v)
    g = Gen(c); g.e.VC = c.VC; t = g.build()
    return t, g

if __name__ == "__main__":
    kw = {}
    for a_ in sys.argv[2:]:
        k, v = a_.split('='); kw[k] = tuple(map(int, v.split(','))) if ',' in v else int(v, 0) if v.lstrip('-')[0].isdigit() else v.replace('+', ' ')
    t, g = generate(**kw)
    open(sys.argv[1], 'w').write(t)
    print("instructions:", len(g.e.ins), "nops added:", g.e.nop_added)
```

```python
import sys, math
from emit import Emit
NAME = "gated_mix__linear_kernel_hedgehog__dense_activation_gelu__prompt"

TAG = 0x0
F1 = 0x1000
F2 = 0x2000; F3 = 0x6000; F4 = 0xa000; F5 = 0x12000
STAMP = 0x1000000
GB = 0x280000
PP = 0x40000; PSZ = 15360
FIN = 0x240000; FSZ = 15360
PB = 0x300000
A2 = 0x600000
OOB = 0x7ff00000

K1 = 1024
QH_ST = 46 * K1; KV_ST = 44 * K1
MISC = 154 * K1
L_WPHI = MISC; L_GATE = MISC + 3200; L_BIASKV = MISC + 4480; L_BIASQH = MISC + 3200
L_PACK = 138 * K1
WH0 = 114 * K1; WH5 = 74 * K1
L_PHI = 0; RSP = 352; L_V = 128 * RSP; RSV = 224
L_BL = 72 * K1
NL = 18
L_RED = 0
L_FIN = 64 * K1

sW = 3
SX, SQ, S1, SWS, SPK, SM = 4, 8, 12, 16, 20, 24
pX, pQKV, pPHI, pWO, pBX, pW1, pB1, pW2, pB2, pGATE, pOUT, pDBG, pWS = [32 + 2 * i for i in range(13)]
sTAG = 58
sMT, sHG, sRB, sNB = 60, 61, 62, 63
sE = 64
sT0, sT1, sT2, sT3, sT4, sT5 = 74, 75, 76, 77, 78, 79
sM0 = 80
sBT, sAT, sB9, sA9, sAT2 = 100, 101, 86, 87, 55
sAo, sBo, sA8, sB8 = 44, 45, 56, 57
sKW, sK1 = 89, 90
sF1 = 91
sPKD = 92
sA, sB = 96, 97
sC0, sC1 = 98, 99
sP0 = 28

PKA = 200
TB = 10; TBM = (1 << TB) - 1; sTB = 58
AW = 204
def srd(r): return f"s[{r}:{r+3}]"
def vr(r, n=4): return f"v[{r}:{r+n-1}]" if n > 1 else f"v{r}"
def ar(r, n=4): return f"a[{r}:{r+n-1}]"
def R(loc, n=4): return (vr if loc[0] == 'v' else ar)(loc[1], n)
def fl(x):
    import struct
    return hex(struct.unpack('<I', struct.pack('<f', x))[0])

class Cfg:
    rot = 1; map2 = 1; stamps = 0; LA = 12; spin = 200000; codepf = 1; lag = 2; th1 = 2; th2 = 4; minlead = 4; verbose = 0; sleep = 1

sKA, sKB = 0, 1
def mk_srd(e, r, p, nbytes):
    e(f"s_mov_b32 s{r}, s{p}\ns_and_b32 s{r+1}, s{p+1}, 0xffff\ns_mov_b32 s{r+2}, {nbytes}\ns_mov_b32 s{r+3}, 0x20000")

class Gen:
    def __init__(self, cfg):
        self.c = cfg; self.e = Emit(); self.tail = []; self.uid = 0; self.nstamp = 0
    def record(self, fn):
        real = self.e
        class Rec:
            def __init__(r): r.items = []; r.lg = []; r.vm = []
            def __call__(r, t):
                for l in t.strip("\n").split("\n"):
                    if l.strip(): r.items.append(('x', l.strip()))
            def vmop(r, t, tag=None): r.items.append(('vm', t, tag))
            def lgop(r, t, tag=None): r.items.append(('lg', t, tag))
        rec = Rec(); self.e = rec
        try: fn()
        finally: self.e = real
        return rec.items
    def cnt(self):
        if not self.c.cnt: return [], []
        self.ncnt = getattr(self, 'ncnt', 0) + 1; k = self.ncnt - 1
        post = ["s_load_dwordx2 s[46:47], s[40:41], 88", f"s_sub_u32 s54, {self.c.spin}, s54", "s_lshl_b32 s54, s54, 12", "s_add_u32 s54, s54, 1", "s_waitcnt lgkmcnt(0)",
                "v_mov_b32 v14, s54", "v_mov_b32 v15, 0", "s_mov_b64 exec, 1", f"global_atomic_add v15, v14, s[46:47] offset:{k*4}", "s_mov_b64 exec, -1"]
        return [], post
    def lab(self, p):
        self.uid += 1; return f"L_{p}_{self.uid}"
    def stamp(self, i, grp=1):
        if self.c.dstamp and grp == 1:
            slot = self.dmap.get(i)
            if slot is None: return
            e = self.e
            e(f"s_memrealtime s[{sC0}:{sC1}]\ns_load_dwordx2 s[46:47], s[40:41], 88\ns_waitcnt lgkmcnt(0)\nv_mov_b32 v14, s{sC0}\nv_mov_b32 v15, 0"); e.lg = []
            e("s_cmp_eq_u32 s3, 0\ns_cselect_b64 exec, 1, 0")
            L = self.lab('ds'); e(f"s_cbranch_execz {L}")
            e(f"global_atomic_umax v15, v14, s[46:47] offset:{slot*4}")
            if i == 0: e(f"v_mov_b32 v14, s54\nglobal_atomic_umax v15, v14, s[46:47] offset:4\nv_not_b32 v14, v14\nglobal_atomic_umax v15, v14, s[46:47] offset:0")
            e(f"{L}:\ns_mov_b64 exec, -1")
            return
        if not self.c.stamps or (i and self.c.stamps != grp): return
        if self.c.only and i not in (0, self.c.only): return
        e = self.e
        e(f"s_memrealtime s[{sC0}:{sC1}]\ns_memtime s[46:47]\ns_waitcnt lgkmcnt(0)"); e.lg = []
        e(f"v_mov_b32 v14, s{sC0}\nv_mov_b32 v15, s46")
        e(f"s_lshl_b32 s{sC0}, s2, 2\ns_add_u32 s{sC0}, s{sC0}, s{sW}\ns_lshl_b32 s{sC0}, s{sC0}, 7\ns_add_u32 s{sC0}, s{sC0}, {STAMP}")
        e.vmop(f"buffer_store_dwordx2 v[14:15], v245, {srd(SWS)}, s{sC0} offen offset:{i*8}", 'stamp')
        if self.c.exit_at == i and grp == 1: e("s_endpgm")
        if i == 0:
            e(f"v_mov_b32 v14, s54\nv_mov_b32 v15, s40")
            e.vmop(f"buffer_store_dwordx2 v[14:15], v245, {srd(SWS)}, s{sC0} offen offset:{15*8}", 'stamp')

    def pstamp(self, i):
        if self.c.stamps == 3: self.e(f"s_memtime s[100:101]\ns_waitcnt lgkmcnt(0)\nv_mov_b32 v{(248,249,250,251,235)[i]}, s100")
    def pstamp_flush(self):
        if self.c.stamps != 3: return
        e = self.e
        e(f"s_lshl_b32 s{sC0}, s2, 2\ns_add_u32 s{sC0}, s{sC0}, s{sW}\ns_lshl_b32 s{sC0}, s{sC0}, 7\ns_add_u32 s{sC0}, s{sC0}, {STAMP}")
        for i in range(5): e.vmop(f"buffer_store_dword v{(248,249,250,251,235)[i]}, v245, {srd(SWS)}, s{sC0} offen offset:{(2+i)*8+4} sc1", 'stamp')
    def dump(self, name, regs):
        if getattr(self.c, 'dbg', None) != name: return
        e = self.e
        e(f"s_lshl_b32 s{sBT}, s2, 2\ns_add_u32 s{sBT}, s{sBT}, s{sW}\ns_lshl_b32 s{sBT}, s{sBT}, 14\ns_add_u32 s{sBT}, s{sBT}, 0x2000000\nv_lshlrev_b32 v7, 2, v0")
        for i, r in enumerate(regs):
            e.vmop(f"buffer_store_dword v{r}, v7, {srd(SWS)}, s{sBT} offen offset:{(i%16)*256}", 'dbg')
            if i % 16 == 15: e(f"s_add_u32 s{sBT}, s{sBT}, 4096")
        e.wait(vm='dbg'); self.Bcur = None

    def poll_issue(self, vaddr, vdst, n, tag, soff="0"):
        suf = {2: 'dwordx2', 4: 'dwordx4'}[n]
        return f"buffer_load_{suf} {vr(vdst, n)}, v{vaddr}, {srd(SWS)}, {soff} offen sc1"
    def poll_check(self, loads):
        Ls, Lb = self.lab('slow'), self.lab('back')
        cmps = []; ors = []; k = 0
        prs = ['vcc', 's[28:29]', 's[30:31]', 's[46:47]']
        for (va, vd, n, so) in loads:
            for h in range(n // 2):
                cmps.append(f"v_cmp_ne_u64 {prs[k]}, s[{sTAG}:{sTAG+1}], v[{vd+2*h}:{vd+2*h+1}]")
                if k: ors.append(f"s_or_b64 vcc, vcc, {prs[k]}")
                k += 1
        cmps = cmps[::-1] if False else cmps
        fast = cmps + ors + [f"s_cbranch_vccnz {Ls}\n{Lb}:" if not (self.c.nochk & 1) else f"{Lb}:"]
        t = [f"{Ls}:", f"s_mov_b32 s54, {self.c.spin}", f"{Ls}_l:"]
        if self.c.sleep: t.append(f"s_sleep {self.c.sleep}")
        for (va, vd, n, so) in loads: t.append(self.poll_issue(va, vd, n, None, so))
        t += ["s_waitcnt vmcnt(0)"] + cmps + ors
        t += ["s_sub_u32 s54, s54, 1", f"s_cbranch_vccz {Ls}_x", "s_cmp_lg_u32 s54, 0", f"s_cbranch_scc1 {Ls}_l", f"{Ls}_x:"] + self.cnt()[1] + ["s_nop 4", f"s_branch {Lb}"]
        self.tail += t
        return fast
    def tag_check(self, reload, regs, acc):
        Ls, Lb = self.lab('slow'), self.lab('back')
        regs = list(regs); L = [f"v_xor_b32 v{acc}, s{sTB}, v{regs[0]}"]
        for r in regs[1:]: L.append(f"v_bitop3_b32 v{acc}, v{r}, s{sTB}, v{acc} bitop3:0xbe")
        L += [f"v_and_b32 v{acc}, {TBM}, v{acc}", f"v_cmp_ne_u32 vcc, 0, v{acc}"]
        t = [f"{Ls}:", f"s_mov_b32 s54, {self.c.spin}", f"{Ls}_l:"]
        if self.c.sleep: t.append(f"s_sleep {self.c.sleep2}")
        t += list(reload) + ["s_waitcnt vmcnt(0)"] + L
        t += ["s_sub_u32 s54, s54, 1", f"s_cbranch_vccz {Ls}_x", "s_cmp_lg_u32 s54, 0", f"s_cbranch_scc1 {Ls}_l", f"{Ls}_x:"] + self.cnt()[1] + ["s_nop 4", f"s_branch {Lb}"]
        self.tail += t
        return L + [f"s_cbranch_vccnz {Ls}\n{Lb}:" if not (self.c.nochk & 2) else f"{Lb}:"]
    def tag_put(self, r, src=None): return f"v_bfi_b32 v{r}, s42, v246, v{r if src is None else src}"
    def tag_strip(self, r): return f"v_and_b32 v{r}, {hex(0xffffffff ^ TBM)}, v{r}"
    def valid_check(self, reload, regs, acc):
        Ls, Lb = self.lab('slow'), self.lab('back')
        regs = list(regs); L = [f"v_max3_u32 v{acc}, v{regs[0]}, v{regs[1]}, v{regs[2 if len(regs) > 2 else 1]}"]
        r = regs[3:]
        for i in range(0, len(r), 2): L.append(f"v_max3_u32 v{acc}, v{acc}, v{r[i]}, v{r[min(i+1, len(r)-1)]}")
        L.append(f"v_cmp_eq_u32 vcc, -1, v{acc}")
        t = [f"{Ls}:", f"s_mov_b32 s54, {self.c.spin}", f"{Ls}_l:"]
        if self.c.sleep: t.append(f"s_sleep {self.c.sleep2}")
        t += list(reload) + ["s_waitcnt vmcnt(0)"] + L
        t += ["s_sub_u32 s54, s54, 1", f"s_cbranch_vccz {Ls}_x", "s_cmp_lg_u32 s54, 0", f"s_cbranch_scc1 {Ls}_l", f"{Ls}_x:"] + self.cnt()[1] + ["s_nop 4", f"s_branch {Lb}"]
        self.tail += t
        return L + [f"s_cbranch_vccnz {Ls}\n{Lb}:" if not (self.c.nochk & 4) else f"{Lb}:"]
    def flag_store(self, vaddr, vtag, soff="0"):
        return f"buffer_store_dwordx2 {vr(vtag, 2)}, v{vaddr}, {srd(SWS)}, {soff} offen sc1"

    def stream(self, mf, reads, fill, syncs=None, LA=None, name='', bg=None):
        e = self.e; LA = LA or self.c.LA
        reads = sorted(reads, key=lambda r: r[1]); rp = 0; synced = -1 if syncs else 99
        fq = sorted(fill, key=lambda f: f['at'])
        self.sid = getattr(self, 'sid', 0) + 1; sid = self.sid
        start = len(e.ins)
        def add_fill(items):
            lo = max([f['at'] for f in fq if f.get('chain')], default=-99)
            for f in items:
                if f.get('chain'): f['at'] = lo = max(f['at'], lo)
            fq.extend(items); fq.sort(key=lambda f: f['at'])
        def rd():
            nonlocal rp
            e.lgop(reads[rp][0], ('rd', sid, rp)); rp += 1
        if syncs: add_fill(syncs[0](0)); synced = 0
        while rp < len(reads) and reads[rp][1] < 8 and reads[rp][2] <= synced: rd()
        last_read = -99
        dl_of = {('rd', sid, i): r[1] for i, r in enumerate(reads)}
        def due(m): return [t for t in e.lg if t in dl_of and dl_of[t] <= m]
        ismem = lambda it: it[0] in ('vm', 'lg')
        for m in range(len(mf)):
            d = due(m)
            if d: e.wait(lg=d)
            e(mf[m])
            can = lambda: rp < len(reads) and reads[rp][2] <= synced and reads[rp][3] <= m and len(e.lg) < 15
            lead = lambda: reads[rp][1] - m
            if syncs and rp < len(reads) and reads[rp][2] > synced and m - last_read >= self.c.lag and lead() <= LA:
                synced = reads[rp][2]
                assert not any(it[0] == 'vm' and it[2] == ('S', synced) for f in fq for it in f['ins'])
                add_fill(syncs[synced](m + 1))
                if can(): rd(); last_read = m
                continue
            w = 1 if due(m + 1) else 0
            n = w; mem = 0
            if fq and fq[0]['at'] <= m:
                f = fq[0]
                if f.get('atomic'):
                    self.emit_items(f['ins']); n += len(f['ins']); mem += sum(map(ismem, f['ins'])); fq.pop(0)
                elif ismem(f['ins'][0]):
                    self.emit_items([f['ins'].pop(0)]); n += 1; mem += 1
                    if not f['ins']: fq.pop(0)
            if bg and mem == 0:
                k0 = len(e.ins)
                if self.bg_try(bg(m)): n += len(e.ins) - k0; mem += 1
            if can() and lead() <= LA and (mem == 0 or (lead() <= LA - self.c.th1 and not w)):
                rd(); n += 1; mem += 1; last_read = m
            if can() and mem == 1 and not w and lead() <= LA - self.c.th2:
                rd(); n += 1; mem += 1
            while can() and lead() <= self.c.minlead: rd(); n += 1; mem += 1; last_read = m
            while (n < 2 or (fq and fq[0]['at'] <= m - 2 and n < 3)) and fq and fq[0]['at'] <= m + 2 and not fq[0].get('atomic') and not ismem(fq[0]['ins'][0]):
                f = fq[0]; self.emit_items([f['ins'].pop(0)]); n += 1
                if not f['ins']: fq.pop(0)
            assert rp >= len(reads) or reads[rp][1] > m + 1, (m, reads[rp])
        for f in fq: self.emit_items(f['ins'])
        if self.c.verbose:
            tot = 0; g = None
            for i in e.ins[start:]:
                if i.label: continue
                if i.kind == 'mfma':
                    if g is not None: tot += max(16, g)
                    g = 8; prevmem = False
                elif g is not None:
                    mm = i.kind in ('dsr', 'dsw', 'vload', 'vstore', 'dma')
                    g += 8 if (mm and prevmem) else 4; prevmem = mm
            print(f"stream {name}: {len(mf)} mfma, est clks {tot} (ideal {16*len(mf)})")

    def prologue(self):
        e = self.e; c = self.c
        if c.stamps or c.dstamp: e("s_memrealtime s[54:55]\ns_memtime s[98:99]")
        e(f"""s_cmp_ge_u32 s2, 256
        s_cbranch_scc1 L_end
        s_load_dwordx16 s[32:47], s[0:1], 0
        s_load_dwordx4 s[48:51], s[0:1], 64
        s_load_dwordx2 s[52:53], s[0:1], 80
        s_load_dwordx2 s[56:57], s[0:1], 96""")
        if c.codepf:
            e(f"""s_getpc_b64 s[{sA}:{sB}]
            L_pf:
            s_lshr_b32 s{sT0}, s2, 3
            s_lshl_b32 s{sT0}, s{sT0}, 11
            v_lshrrev_b32 v1, 4, v0
            v_lshlrev_b32 v1, 7, v1
            v_add_u32 v1, s{sT0}, v1
            v_cmp_gt_u32 vcc, L_end-L_pf, v1
            v_cndmask_b32 v1, 0, v1, vcc""")
            e.vmop(f"global_load_dword v255, v1, s[{sA}:{sB}]", 'pf')
        e(f"""v_lshrrev_b32 v1, 6, v0
        v_and_b32 v0, 63, v0
        s_and_b32 s{sT0}, s2, 7
        v_readfirstlane_b32 s{sW}, v1
        s_lshr_b32 s{sT1}, s2, 3
        s_lshr_b32 s{sT2}, s{sT0}, 1
        s_and_b32 s{sT3}, s{sT1}, 3
        s_lshl_b32 s{sMT}, s{sT2}, 2
        s_add_u32 s{sMT}, s{sMT}, s{sT3}
        s_lshr_b32 s{sT4}, s{sT1}, 2
        s_and_b32 s{sHG}, s{sT0}, 1
        s_lshl_b32 s{sHG}, s{sHG}, 2
        s_and_b32 s{sT5}, s{sT4}, 3
        s_add_u32 s{sHG}, s{sHG}, s{sT5}""")
        if c.rot == 2:
            e(f"""s_mul_i32 s{sE}, s{sT2}, 5
            s_lshr_b32 s{sE}, s{sE}, 1
            s_and_b32 s{sT5}, s{sT0}, 1
            s_mul_i32 s{sT5}, s{sT5}, 5
            s_add_u32 s{sE}, s{sE}, s{sT5}
            s_cmp_ge_u32 s{sE}, 10
            s_cselect_b32 s{sT5}, 10, 0
            s_sub_u32 s{sE}, s{sE}, s{sT5}
            s_lshl_b32 s{sE}, s{sE}, 7""")
        elif c.rot == 3:
            e(f"s_xor_b32 s{sE}, s{sT3}, s{sT4}\ns_and_b32 s{sE}, s{sE}, 1\ns_lshl_b32 s{sE}, s{sE}, 7")
        else: e(f"s_mov_b32 s{sE}, 0")
        e(f"""v_and_b32 v1, 15, v0
        v_lshrrev_b32 v2, 4, v0
        v_bfe_u32 v3, v0, 2, 2
        v_and_b32 v4, 3, v0
        v_lshrrev_b32 v5, 3, v0
        v_lshlrev_b32 v6, 4, v0
        s_lshl_b32 s{sT2}, s{sMT}, 2
        s_add_u32 s{sT2}, s{sT2}, s{sW}
        s_mul_i32 s{sT2}, s{sT2}, {32*1280}
        v_xor_b32 v7, v2, v0
        v_and_b32 v7, 7, v7
        v_lshlrev_b32 v7, 4, v7
        v_mul_u32_u24 v8, 1280, v5
        v_add_u32 v8, s{sT2}, v8
        v_add_u32 v208, v8, v7
        v_xor_b32 v7, 64, v7
        v_add_u32 v209, v8, v7
        v_add_u32 v209, {10240-1024}, v209
        v_add_u32 v210, {2*(10240-1024)}, v208
        v_add_u32 v211, {2*(10240-1024)}, v209
        s_lshl_b32 s{sM0}, s{sW}, 12
""")
        if c.rot == 3: e(f"s_xor_b32 s{sE+1}, s{sE}, 128")
        else: e(f"s_add_u32 s{sE+1}, s{sE}, 128\ns_cmp_eq_u32 s{sE+1}, 1280\ns_cselect_b32 s{sE+1}, 0, s{sE+1}")
        for r, n in ((SX, 2048 * 1280), (SQ, 640 * 3840), (S1, 640 * 3456), (SM, 3456)): e(f"s_mov_b32 s{r+2}, {n}\ns_mov_b32 s{r+3}, 0x20000")
        e(f"s_bitcmp1_b32 s2, 7\ns_cbranch_scc1 L_QH")

    def kernarg_wait(self):
        e = self.e
        e("s_waitcnt lgkmcnt(0)"); self.pstamp(0)
        e(f"s_load_dwordx2 s[{sTAG}:{sTAG+1}], s[{pWS}:{pWS+1}], {TAG}")
        if self.c.stamps: e('s_mov_b32 s40, s98')
        if self.c.dstamp or self.c.cnt: e('s_mov_b64 s[40:41], s[0:1]')
        for r, p in ((SX, pX), (SM, pB1), (SQ, pQKV), (S1, pW1)): e(f"s_mov_b32 s{r}, s{p}\ns_and_b32 s{r+1}, s{p+1}, 0xffff")

    def pack_setup(self):
        e = self.e
        e(f"""s_lshl_b32 s{sT0}, s2, 2
        s_add_u32 s{sT0}, s{sT0}, s{sW}
        s_mul_i32 s{sT1}, s{sT0}, 6554
        s_lshr_b32 s{sT1}, s{sT1}, 16
        s_mul_i32 s{sT2}, s{sT1}, 10
        s_sub_u32 s{sT2}, s{sT0}, s{sT2}
        s_sub_u32 s{sT3}, s{sT1}, 54
        s_and_b32 s{sT3}, s{sT3}, 63
        s_mul_i32 s{sT4}, s{sT3}, 52
        s_lshr_b32 s{sT4}, s{sT4}, 8
        s_mul_i32 s{sT5}, s{sT4}, 5
        s_sub_u32 s{sT5}, s{sT3}, s{sT5}
        s_mul_i32 s{sBT}, s{sT4}, 160
        s_lshr_b32 s{sAT}, s{sT5}, 1
        s_mul_i32 s{sAT}, s{sAT}, 80
        s_and_b32 s{sT3}, s{sT5}, 1
        s_lshl_b32 s{sT3}, s{sT3}, 3
        s_add_u32 s{sAT}, s{sAT}, s{sT3}
        s_cmp_eq_u32 s{sT5}, 4
        s_cselect_b32 s{sAT}, 16, s{sAT}
        s_cselect_b32 s{sT3}, 80, 4
        s_add_u32 s{sBT}, s{sBT}, s{sAT}
        s_lshl_b32 s{sAT}, s{sT1}, 5
        s_cmp_lt_u32 s{sT1}, 54
        s_cselect_b32 s{sBT}, s{sAT}, s{sBT}
        s_cselect_b32 s{sT3}, 16, s{sT3}""")
        self.csel(sT4, 4 * 1280 - 1024, 20 * 1280 - 1024)
        self.csel(SPK + 2, 1728 * 1280, 640 * 1280)
        e(f"""s_mov_b32 s{SPK+3}, 0x20000
        s_cmp_lt_u32 s{sT0}, 740
        s_cselect_b32 s{SPK+2}, s{SPK+2}, 0
        s_mul_i32 s{sBT}, s{sBT}, 1280
        s_lshl_b32 s{sAT}, s{sT2}, 7
        s_add_u32 s32, s{sBT}, s{sAT}
        s_add_u32 s33, s32, s{sT4}
        s_add_u32 s34, s33, s{sT4}
        s_add_u32 s35, s34, s{sT4}
        v_lshrrev_b32 v9, 5, v0
        v_mul_lo_u32 v9, v9, s{sT3}
        v_and_b32 v10, 3, v5
        v_add_u32 v9, v9, v10
        v_mul_u32_u24 v9, 1280, v9
        v_and_b32 v10, 7, v0
        v_lshl_add_u32 v252, v10, 4, v9
        v_lshlrev_b32 v9, 10, v2
        v_lshl_add_u32 v9, v3, 7, v9
        v_add_u32 v9, s{sM0}, v9
        v_add_u32 v9, {L_PACK}, v9""")
        for g in range(2):
            e(f"""s_lshl_b32 s{sT3}, s{sT2}, 1
            s_add_u32 s{sT3}, s{sT3}, {g}
            s_mul_i32 s{sT4}, s{sT3}, 52
            s_lshr_b32 s{sT4}, s{sT4}, 8
            s_mul_i32 s{sT5}, s{sT4}, 5
            s_sub_u32 s{sT5}, s{sT3}, s{sT5}
            s_cmp_eq_u32 s{sT5}, 2
            s_cselect_b32 s{sT3}, 3, 4
            s_cselect_b32 s{sAT}, 32, 8
            v_lshlrev_b32 v10, s{sT3}, v4
            v_add_u32 v{PKA+2*g}, v9, v10
            v_add_u32 v{PKA+1+2*g}, s{sAT}, v{PKA+2*g}
            s_mul_i32 s{sT4}, s{sT4}, 740
            s_mul_i32 s{sAT}, s{sT1}, 5
            s_add_u32 s{sT4}, s{sT4}, s{sAT}""")
            for a_ in range(2):
                d = sPKD + 2 * g + a_
                e(f"""s_lshl_b32 s{sT3}, s{sT5}, 1
                s_add_u32 s{sT3}, s{sT3}, {a_}
                s_add_u32 s{d}, s{sT3}, 364
                s_cmp_eq_u32 s{sT3}, 5
                s_cselect_b32 s{d}, 374, s{d}
                s_cmp_lt_u32 s{sT3}, 5
                s_cselect_b32 s{d}, s{sT3}, s{d}
                s_add_u32 s{d}, s{d}, s{sT4}
                s_lshl_b32 s{d}, s{d}, 10
                s_add_u32 s{d}, s{d}, {PB}
                s_cmp_lt_u32 s{sT0}, 740
                s_cselect_b32 s{d}, s{d}, {OOB}""")
        e(f"""s_cmp_lt_u32 s{sT1}, 54
        s_cselect_b32 s{SPK}, s{pW2}, s{pWO}
        s_cselect_b32 s{SPK+1}, s{pW2+1}, s{pWO+1}
        s_and_b32 s{SPK+1}, s{SPK+1}, 0xffff""")

    def common_setup(self):
        e = self.e; c = self.c
        e(f"s_and_b32 s{sT0}, s2, 7\ns_lshr_b32 s{sT1}, s2, 3\ns_lshr_b32 s{sT2}, s{sT0}, 1\ns_and_b32 s{sT3}, s{sT1}, 3\ns_lshr_b32 s{sT4}, s{sT1}, 2")
        if c.mix: e(f"s_lshr_b32 s{sT5}, s{sT1}, 2\ns_and_b32 s{sT5}, s{sT5}, 4\ns_xor_b32 s{sT5}, s{sT5}, s{sT1}" if c.map2 else
                    f"s_lshr_b32 s{sT5}, s{sT1}, 4\ns_xor_b32 s{sT5}, s{sT5}, s{sT1}")
        if c.map2:
            if c.mix: e(f"s_and_b32 s{sRB}, s{sT5}, 7\ns_bfe_u32 s{sT5}, s{sT1}, 0x20002")
            else: e(f"s_and_b32 s{sRB}, s{sT1}, 7\ns_lshr_b32 s{sT5}, s{sT1}, 3")
            e(f"""s_lshl_b32 s{sT2}, s{sT2}, 3
            s_add_u32 s{sRB}, s{sRB}, s{sT2}
            s_and_b32 s{sNB}, s{sT0}, 1
            s_lshl_b32 s{sNB}, s{sNB}, 2
            s_add_u32 s{sNB}, s{sNB}, s{sT5}""")
        else:
            if c.mix: e(f"s_bfe_u32 s{sNB}, s{sT1}, 0x30001\ns_and_b32 s{sT3}, s{sT5}, 1\ns_lshr_b32 s{sT5}, s{sT1}, 4\ns_bfe_u32 s{sT4}, s{sT1}, 0x10001\ns_xor_b32 s{sT5}, s{sT5}, s{sT4}\ns_and_b32 s{sT3}, s{sT1}, 1\ns_lshl_b32 s{sT5}, s{sT5}, 1\ns_add_u32 s{sT3}, s{sT3}, s{sT5}")
            else: e(f"s_mov_b32 s{sNB}, s{sT4}")
            e(f"s_lshl_b32 s{sRB}, s{sT0}, 2\ns_add_u32 s{sRB}, s{sRB}, s{sT3}")
        mk_srd(e, SWS, pWS, 0x10000000); mk_srd(e, SM, pPHI, 32 * 800)
        e(f"""s_lshl_b32 s{sT3}, s{sHG}, 2
        s_add_u32 s{sT3}, s{sT3}, s{sW}
        s_mul_i32 s36, s{sT3}, 800
        s_mul_i32 s37, s{sW}, 800
        s_add_u32 s37, s37, {L_WPHI}""")
        for i in range(2, 10):
            if c.rot == 3: e(f"s_add_u32 s{sE+i}, s{sE+i-2}, 256")
            else: e(f"s_add_u32 s{sE+i}, s{sE+i-1}, 128\ns_cmp_eq_u32 s{sE+i}, 1280\ns_cselect_b32 s{sE+i}, 0, s{sE+i}")
        e(f"""s_mul_i32 s{sB}, s{sNB}, 74
        s_add_u32 s{sB}, s{sB}, s{sW}
        s_mul_i32 s{sB}, s{sB}, 5120
        s_add_u32 s{sB}, s{sB}, {PB}
        s_mul_i32 s{sA}, s{sRB}, 74
        s_add_u32 s{sA}, s{sA}, s{sW}
        s_lshl_b32 s{sA}, s{sA}, 12
        s_add_u32 s{sA}, s{sA}, {A2}
        s_xor_b32 s{sT0}, s{sRB}, s{sNB}
        s_and_b32 s{sT0}, s{sT0}, {min(c.par, 1)}
        s_mul_i32 s{sT1}, s{sT0}, {4*5120}
        s_add_u32 s{sB8}, s{sB}, {32*5120}
        s_add_u32 s{sB8}, s{sB8}, s{sT1}
        s_add_u32 s{sB9}, s{sB}, {36*5120}
        s_sub_u32 s{sB9}, s{sB9}, s{sT1}
        s_mul_i32 s{sT1}, s{sT1}, {max(c.par, 1)}
        s_sub_u32 s{sBo}, s{sB}, s{sT1}
        s_add_u32 s{sB}, s{sB}, s{sT1}
        s_lshl_b32 s{sT1}, s{sT0}, 14
        s_add_u32 s{sA8}, s{sA}, {32*4096}
        s_add_u32 s{sA8}, s{sA8}, s{sT1}
        s_add_u32 s{sA9}, s{sA}, {36*4096}
        s_sub_u32 s{sA9}, s{sA9}, s{sT1}
        s_mul_i32 s{sT1}, s{sT1}, {max(c.par, 1)}
        s_sub_u32 s{sAo}, s{sA}, s{sT1}
        s_add_u32 s{sA}, s{sA}, s{sT1}
        s_lshr_b32 s{sT1}, s{sW}, 1
        s_and_b32 s{sT3}, s{sT1}, s{sT0}
        s_cselect_b32 s{sB8}, {OOB}, s{sB8}
        s_cselect_b32 s{sA8}, {OOB}, s{sA8}
        s_andn2_b32 s{sT3}, s{sT1}, s{sT0}
        s_cselect_b32 s{sB9}, {OOB}, s{sB9}
        s_cselect_b32 s{sA9}, {OOB}, s{sA9}
        s_mul_i32 s88, s{sW}, {NL*1024}
        v_add_u32 v240, 4096, v6""")
        for j in range(4):
            e(f"s_add_u32 s{sT3}, s{sW}, {j}\ns_and_b32 s{sT3}, s{sT3}, 3\ns_lshl_b32 s{sT3}, s{sT3}, 10\nv_add_u32 v{236+j}, s{sT3}, v6")
        e(f"""s_lshl_b32 s{sF1}, s2, 3
        s_add_u32 s{sF1}, s{sF1}, {F1}
        s_cmp_eq_u32 s{sW}, 0
        s_cselect_b32 s{sF1}, s{sF1}, {OOB}
        v_mov_b32 v245, {OOB}
        v_cmp_eq_u32 vcc, 0, v0
        v_cndmask_b32 v245, v245, 0, vcc""")

    def touch(self):
        e = self.e; c = self.c
        e(f"""s_cmp_eq_u32 s{sW}, 0
        s_cselect_b64 s[28:29], s[{SX}:{SX+1}], s[{S1}:{S1+1}]
        s_cselect_b32 s30, s{SX+2}, s{S1+2}
        s_cselect_b32 s{sT0}, 12, 0
        s_add_u32 s{sT0}, s{sT0}, 68
        s_cmp_eq_u32 s{sW}, 1
        s_cselect_b64 s[28:29], s[{SQ}:{SQ+1}], s[28:29]
        s_cselect_b32 s30, s{SQ+2}, s30
        s_cselect_b32 s{sT0}, 75, s{sT0}
        s_lshl_b32 s{sT1}, 1, s{sW}
        s_and_b32 s{sT1}, s{sT1}, {c.tmask}
        s_cselect_b32 s30, s30, 0
        s_mov_b32 s31, 0x20000
        s_mul_i32 s{sT1}, s{sT0}, s2
        s_lshl_b32 s{sT1}, s{sT1}, 7
        v_lshlrev_b32 v10, 7, v0
        v_add_u32 v11, 64, v0
        v_cmp_gt_u32 vcc, s{sT0}, v11
        v_lshlrev_b32 v11, 7, v11
        v_mov_b32 v14, {OOB}
        v_cndmask_b32 v11, v14, v11, vcc""")
        e.vmop(f"buffer_load_dword v255, v10, s[28:31], s{sT1} offen", 'pf')
        e.vmop(f"buffer_load_dword v255, v11, s[28:31], s{sT1} offen", 'pf')

    def touch3_setup(self):
        e = self.e
        e(f"""s_cmp_eq_u32 s{sW}, 0
        s_cselect_b64 s[28:29], s[{SX}:{SX+1}], s[{S1}:{S1+1}]
        s_cselect_b32 s30, s{SX+2}, s{S1+2}
        s_cselect_b32 s{sT0}, 24, 21
        s_mov_b32 s44, {64*3456}
        s_cselect_b32 s44, 128, s44
        s_cselect_b64 vcc, -1, 0
        s_cmp_eq_u32 s{sW}, 1
        s_cselect_b64 s[28:29], s[{SQ}:{SQ+1}], s[28:29]
        s_cselect_b32 s30, s{SQ+2}, s30
        s_cselect_b32 s{sT0}, 23, s{sT0}
        s_cselect_b32 s44, {64*3840}, s44
        s_cmp_eq_u32 s{sW}, 3
        s_cselect_b32 s30, 0, s30
        s_mov_b32 s31, 0x20000
        s_mul_i32 s{sT1}, s{sT0}, s2
        v_add_u32 v10, s{sT1}, v0
        v_mul_u32_u24 v11, 21846, v10
        v_lshrrev_b32 v11, 16, v11
        v_mul_u32_u24 v11, {1280-384}, v11
        v_lshlrev_b32 v10, 7, v10
        v_add_u32 v11, v11, v10
        v_cndmask_b32 v10, v10, v11, vcc
        v_mov_b32 v14, {OOB}
        v_cmp_gt_u32 vcc, s{sT0}, v0
        v_cndmask_b32 v251, v14, v10, vcc""")
    def touch3(self, part):
        return [('x', f"s_mul_i32 s45, s44, {1 + 3 * part}"), ('vm', "buffer_load_dword v255, v251, s[28:31], s45 offen", 'pf')]

    def tlb_touch(self):
        e = self.e; c = self.c
        if not c.tlb: return
        if c.tlb == 1:
            e(f"v_lshlrev_b32 v10, 18, v0\nv_add_u32 v10, 0x1f800, v10")
            e.vmop(f"buffer_load_dword v255, v10, {srd(SWS)}, 0 offen sc1", 'pf')
        else:
            e(f"""s_mul_i32 s{sT0}, s{sNB}, {74*5120}
            s_add_u32 s{sT0}, s{sT0}, {PB}
            s_mul_i32 s{sT1}, s{sRB}, {74*4096}
            s_add_u32 s{sT1}, s{sT1}, {A2 - 8*65536}
            s_mul_i32 s{sT3}, s{sMT}, {2*74*4096}
            s_add_u32 s{sT3}, s{sT3}, {A2 - 16*65536}
            v_lshlrev_b32 v10, 16, v0
            v_mov_b32 v11, s{sT0}
            v_mov_b32 v14, s{sT1}
            v_cmp_le_u32 vcc, 8, v0
            v_cndmask_b32 v11, v11, v14, vcc
            v_mov_b32 v14, s{sT3}
            v_cmp_le_u32 vcc, 16, v0
            v_cndmask_b32 v11, v11, v14, vcc
            v_add_u32 v11, v11, v10
            v_subrev_u32 v14, 32, v0
            v_mul_u32_u24 v14, 0x18000, v14
            v_cmp_le_u32 vcc, 32, v0
            v_cndmask_b32 v10, v11, v14, vcc""")
            e.vmop(f"buffer_load_dword v255, v10, {srd(SWS)}, 0 offen sc1", 'pf')
        mk_srd(e, 28, pOUT, 2048 * 1280)
        e("v_lshlrev_b32 v10, 16, v0")
        e.vmop("buffer_load_dword v255, v10, s[28:31], 0 offen sc1", 'pf')
        if c.tlb2:
            for p, n in ((pB2, 1280),):
                mk_srd(e, 28, p, n); e.vmop("buffer_load_dword v255, v6, s[28:31], 0 offen", 'pf')

    def tag_wait(self):
        e = self.e
        e(f"""s_waitcnt lgkmcnt(0)
        s_add_u32 s{sTAG}, s{sTAG}, 1
        v_mov_b32 v247, s{sTAG+1}
        v_mov_b32 v246, s{sTAG}
        s_movk_i32 s42, {TBM}""")
        if self.c.xA == 2: e(f's_mov_b32 s41, {OOB}')
        e.lg = []
    def pack_loads(self):
        return [([('x', f"s_add_u32 m0, s{sM0}, {L_PACK}")] if i == 0 else []) +
                [('vm', f"buffer_load_dwordx4 v252, {srd(SPK)}, s{32+i} offen offset:{i*1024} {self.c.psc} lds", 'packld')] for i in range(4)]
    def pack_fill(self, m, nm):
        f = []
        for i in range(8):
            t, h = i >> 1, i & 1
            f.append(dict(at=m + 2 + 2 * i, ins=[('lg', f"ds_read_b64_tr_b16 a[{160+4*t+2*h}:{161+4*t+2*h}], v{PKA+t} offset:{(t>>1)*64+512*h}", 'pk')]))
        return f
    def wb_item(self):
        return [[('wvm', 'pkst'), ('vm', "buffer_wbl2 sc1", 'pkst')]] if self.c.wbl else []
    def pack_stores(self):
        return [([('wlg', 'pk')] if i == 0 else []) + [('vm', f"buffer_store_dwordx4 {ar(160+4*i)}, v6, {srd(SWS)}, s{sPKD+i} offen {self.c.pss}", 'pkst')] for i in range(4)]

    def btouch(self):
        pre = [l.strip() for l in f"""s_and_b32 s{sT0}, s{sRB}, 7
        s_lshl_b32 s{sT0}, s{sT0}, 2
        s_add_u32 s{sT0}, s{sT0}, s{sW}
        s_mul_i32 s{sT0}, s{sT0}, {93*128}
        s_mul_i32 s{sT1}, s{sNB}, {74*5120}
        s_add_u32 s{sT0}, s{sT0}, s{sT1}
        s_add_u32 s{sT0}, s{sT0}, {PB}
        v_lshlrev_b32 v248, 7, v0
        v_min_u32 v249, 28, v0
        v_lshlrev_b32 v249, 7, v249""".split("\n")]
        n = self.c.bt
        out = [[('x', l) for l in pre]]
        if n == 1:
            out[0] += [('vm', f"buffer_load_dword v255, v248, {srd(SWS)}, s{sT0} offen sc1", 'pf')]
            out.append([('x', f"s_add_u32 s{sT0}, s{sT0}, 8192"), ('vm', f"buffer_load_dword v255, v249, {srd(SWS)}, s{sT0} offen sc1", 'pf')])
        else:
            out[0] += [('x', "v_min_u32 v249, 23, v0"), ('x', "v_lshlrev_b32 v249, 7, v249")]
            for i in range(4): out.append([('vm', f"buffer_load_dword v255, v249, {srd(SWS)}, s{sT0} offen offset:0 sc1", 'pf'), ('x', f"s_add_u32 s{sT0}, s{sT0}, 3072")])
        return out
    def code_touch(self, endlab):
        Lp = self.lab('pc')
        return [('x', f"s_getpc_b64 s[30:31]\n{Lp}:"), ('x', f"s_bfe_u32 s{sT0}, s2, 0x40003"), ('x', f"s_lshl_b32 s{sT0}, s{sT0}, 2"), ('x', f"s_add_u32 s{sT0}, s{sT0}, s{sW}"),
                ('x', f"s_lshl_b32 s{sT0}, s{sT0}, 9"), ('x', "v_and_b32 v7, 3, v0"), ('x', f"v_lshl_add_u32 v7, v7, 7, s{sT0}"),
                ('x', f"v_cmp_gt_u32 vcc, {endlab}-{Lp}, v7"), ('x', "v_cndmask_b32 v7, 0, v7, vcc"), ('vm', "global_load_dword v255, v7, s[30:31]", 'pf')]
    def f1_issue(self):
        return [[('x', f"s_mov_b32 s{sT0}, {F1}"), ('x', "v_add_u32 v235, 1024, v6"), ('vm', self.poll_issue(6, 248, 4, None, f"s{sT0}"), 'f1p')],
                [('vm', self.poll_issue(235, 252, 4, None, f"s{sT0}"), 'f1p')]]
    def f1_check(self):
        chk = self.poll_check([(6, 248, 4, f"s{sT0}"), (235, 252, 4, f"s{sT0}")])
        return [('wvm', 'f1p')] + [('x', t) for t in chk] + [('x', f"s_or_b32 s{sT1}, s2, s{sW}"),
                ('x', f"s_cmp_eq_u32 s{sT1}, 0\ns_cselect_b32 s{sT1}, {TAG}, {OOB}"), ('vm', self.flag_store(245, 246, f"s{sT1}"), 'tagst')]

    def attn_voff(self, dst, cexpr_base, colbase_s):
        e = self.e
        e(f"""v_mul_u32_u24 v10, 6554, v9
        v_lshrrev_b32 v10, 16, v10
        v_mad_i32_i24 v11, v10, -10, v9""")
        self.swap23(10, 12)
        e(f"""v_mul_u32_u24 v10, 3840, v10
        v_lshl_add_u32 v10, v11, 4, v10
        v_add_u32 v{dst}, s{colbase_s}, v10""")
    def swap23(self, r, t):
        self.e(f"""v_lshrrev_b32 v{t}, 1, v{r}
        v_xor_b32 v{t}, v{t}, v{r}
        v_and_b32 v{t}, 4, v{t}
        v_mul_u32_u24 v{t}, 3, v{t}
        v_xor_b32 v{r}, v{r}, v{t}""")

    def small_dma(self, sr, vaddr, soff, ldsaddr, nlanes, tag, m0expr=None):
        e = self.e
        e(m0expr or f"s_mov_b32 m0, {ldsaddr}")
        if nlanes < 64: e(f"s_mov_b64 exec, {hex((1 << nlanes) - 1)}" if nlanes <= 32 else f"s_mov_b32 exec_hi, {hex((1 << (nlanes-32)) - 1)}")
        e.vmop(f"buffer_load_dwordx4 v{vaddr}, {srd(sr)}, {soff} offen lds", tag)
        if nlanes < 64: e("s_mov_b64 exec, -1")

    def csel(self, d, a, b):
        inl = lambda x: isinstance(x, str) or -16 <= x <= 64
        if inl(a) or inl(b): self.e(f"s_cselect_b32 s{d}, {a}, {b}")
        else: self.e(f"s_mov_b32 s{d}, {b}\ns_cselect_b32 s{d}, {a}, s{d}")

    def init_B(self):
        self.Bloc = {}; self.Bq = []
        order = [(i, t) for i in range(19) for t in range(5)]
        for u, k in enumerate(order):
            if u < 64: self.Bloc[k] = ('a', 4 * u)
            elif u < 64 + NL: self.Bloc[k] = ('l', u - 64)
            else: self.Bloc[k] = None
        self.Border = order; self.Bpend = list(range(64 + NL)); self.Bcur = None; self.Acur = None
    def koff(self, i): return 4 * i - (2 if i >= 10 else 0)
    def soff(self, d, i, w):
        e_, o_, s8, s9, unit = (sB, sBo, sB8, sB9, 5120) if w == 'B' else (sA, sAo, sA8, sA9, 4096)
        if i in (8, 9): return f"s_mov_b32 s{d}, s{s8 if i == 8 else s9}"
        if i == 18: return f"s_add_u32 s{d}, s{e_}, s{o_}\ns_lshr_b32 s{d}, s{d}, 1\ns_add_u32 s{d}, s{d}, {self.koff(i)*unit}"
        idx = i if i < 10 else i - 10 if i < 14 else i - 14
        return f"s_add_u32 s{d}, s{e_ if idx & max(self.c.par, 1) == 0 else o_}, {self.koff(i)*unit}"
    def B_items(self, k, loc):
        i, t = k; it = []
        if self.Bcur != i:
            it.append(('x', self.soff(sBT, i, 'B'))); self.Bcur = i
        va, imm = (6, t * 1024) if t < 4 else (240, 0)
        if loc[0] == 'l':
            assert L_BL + loc[1]*1024 - imm >= 0
            it.append(('x', f"s_add_u32 m0, s88, {L_BL + loc[1]*1024 - imm}"))
            it.append(('vm', f"buffer_load_dwordx4 v{va}, {srd(SWS)}, s{sBT} offen offset:{imm} sc1 lds", ('B', k)))
        else:
            it.append(('vm', f"buffer_load_dwordx4 {R(loc)}, v{va}, {srd(SWS)}, s{sBT} offen offset:{imm} sc1", ('B', k)))
        return it
    def B_take(self, us):
        out = []
        for u in us:
            k = self.Border[u]; out.append(self.B_items(k, self.Bloc[k]))
            if self.c.xB == 1: out[-1] = [('x', 's_nop 0')]
            if self.c.xB == 2: out[-1] = [(it[0], it[1].replace(f"s{sBT} offen", "s43 offen"), it[2]) if it[0] == 'vm' else it for it in out[-1]]
            if self.c.xB == 3: out[-1] = [(it[0], it[1].replace(f"s{sBT} offen", f"s{sB} offen"), it[2]) if it[0] == 'vm' else it for it in out[-1]]
        return out
    def ph2_bg(self, u): pass
    def bg_try(self, allowed, S=None):
        e = self.e
        if e.t - e.tvm < (S or self.c.S): return False
        if allowed == self.ph2_bg: return self.try_issue(self.m, True, True)
        for u in self.Bpend:
            if allowed(u):
                self.Bpend.remove(u); self.emit_items(self.B_take([u])[0]); return True
        return False
    def emit_items(self, items):
        e = self.e
        for it in items:
            if it[0] == 'vm': e.vmop(it[1], it[2])
            elif it[0] == 'lg': e.lgop(it[1], it[2])
            elif it[0] == 'wvm': e.wait(vm=it[1])
            elif it[0] == 'wlg': e.wait(lg=it[1])
            elif it[0] == 'st': self.stamp(it[1], it[2])
            else: e(it[1])
    def valu(self, lines, side=None, every=1, bg=None, S=None):
        n = 0
        for l in lines:
            if isinstance(l, str): self.e(l)
            else: self.emit_items([l])
            n += 1
            if side and n % every == 0: self.emit_items(side.pop(0))
            if bg: self.bg_try(bg, S)

    def interleave(self, items, side, every):
        W = ('s_cmp', 's_add', 's_sub', 's_and', 's_andn2', 's_or', 's_xor', 's_lshl', 's_lshr', 's_bitcmp', 's_min', 's_max')
        Rd = ('s_cselect', 's_addc', 's_subb', 's_cbranch_scc')
        live = [False] * len(items); l = False
        for i in range(len(items) - 1, -1, -1):
            live[i] = l
            t = items[i][1]
            if t.startswith(Rd): l = True
            elif t.startswith(W): l = False
        n = 0
        for i, it in enumerate(items):
            self.emit_items([it]); n += 1
            if side and n >= every and not live[i]: self.emit_items(side.pop(0)); n = 0
        for g in side: self.emit_items(g)

    def gelu_lines(self, X, Y, T, O):
        U = [X, X + 2, Y, Y + 2]; L = []
        P = lambda r: f"v[{r}:{r+1}]"
        for i in range(4): L.append(f"v_pk_mul_f32 {P(T+2*i)}, {P(U[i])}, {P(U[i])}")
        for i in range(4): L.append(f"v_pk_fma_f32 {P(T+2*i)}, {P(T+2*i)}, v[14:15], s[{sC0}:{sC1}] op_sel_hi:[1,0,0]")
        for i in range(4): L.append(f"v_pk_mul_f32 {P(T+2*i)}, {P(T+2*i)}, {P(U[i])}")
        for i in range(8): L.append(f"v_exp_f32 v{T+i}, v{T+i}")
        for i in range(4): L.append(f"v_pk_add_f32 {P(T+2*i)}, {P(T+2*i)}, 1.0 op_sel_hi:[1,0]")
        for i in range(8): L.append(f"v_rcp_f32 v{T+i}, v{T+i}")
        for i in range(4): L.append(f"v_pk_mul_f32 {P(T+2*i)}, {P(T+2*i)}, {P(U[i])}")
        for i in range(4): L.append(f"v_cvt_pk_bf16_f32 v{O+i}, v{T+2*i}, v{T+2*i+1}")
        return L if not (self.c.skip & 1) else L[-8:]
    def gelu_consts(self):
        c1 = -2.0 * math.sqrt(2.0 / math.pi) * math.log2(math.e)
        self.e(f"s_mov_b32 s{sC0}, {fl(c1)}\nv_mov_b32 v14, {fl(c1 * 0.044715)}")
    def softmax_lines(self, Pp, E, PH):
        L = []; P = lambda r: f"v[{r}:{r+1}]"
        L += [f"v_max3_f32 v8, v{Pp}, v{Pp+1}, v{Pp+2}", f"v_min3_f32 v10, v{Pp}, v{Pp+1}, v{Pp+2}"]
        for i in range(3, 19, 2): L += [f"v_max3_f32 v8, v8, v{Pp+i}, v{Pp+i+1}", f"v_min3_f32 v10, v10, v{Pp+i}, v{Pp+i+1}"]
        L += [f"v_max_f32 v8, v8, v{Pp+19}", f"v_min_f32 v10, v10, v{Pp+19}"]
        L += [f"v_mul_f32_e64 v8, -v8, s{sC0}", f"v_mul_f32 v10, s{sC0}, v10"]
        for i in range(10):
            L.append(f"v_pk_fma_f32 {P(E+2*i)}, {P(Pp+2*i)}, s[{sC0}:{sC1}], v[8:9] op_sel_hi:[1,0,0]")
            L.append(f"v_pk_fma_f32 {P(E+20+2*i)}, {P(Pp+2*i)}, s[{sC0}:{sC1}], v[10:11] op_sel_hi:[1,0,0] neg_lo:[1,0,0] neg_hi:[1,0,0]")
        for i in range(40): L.append(f"v_exp_f32 v{E+i}, v{E+i}")
        L += [f"v_pk_add_f32 v[8:9], {P(E)}, {P(E+2)}", f"v_pk_add_f32 v[10:11], {P(E+20)}, {P(E+22)}"]
        for i in range(2, 10): L += [f"v_pk_add_f32 v[8:9], v[8:9], {P(E+2*i)}", f"v_pk_add_f32 v[10:11], v[10:11], {P(E+20+2*i)}"]
        L += ["v_add_f32 v8, v8, v9", "v_add_f32 v10, v10, v11", "v_rcp_f32 v8, v8", "v_rcp_f32 v10, v10"]
        for i in range(10): L.append(f"v_pk_mul_f32 {P(E+2*i)}, {P(E+2*i)}, v[8:9] op_sel_hi:[1,0]")
        for i in range(10): L.append(f"v_pk_mul_f32 {P(E+20+2*i)}, {P(E+20+2*i)}, v[10:11] op_sel_hi:[1,0]")
        for i in range(20): L.append(f"v_cvt_pk_bf16_f32 v{PH+i}, v{E+2*i}, v{E+2*i+1}")
        return L if not (self.c.skip & 2) else [l if 'cvt' in l else '' for l in L]
    def wphi_addr(self, va):
        self.e(f"v_mul_u32_u24 v{va}, 800, v2\nv_mad_u32_u24 v{va}, v3, 40, v{va}\nv_add_u32 v{va}, {L_WPHI}, v{va}")
    def wphi_reads(self, va):
        return [[('lg', f"ds_read_b64_tr_b16 a[{AW+2*(dg*5+fg)}:{AW+1+2*(dg*5+fg)}], v{va} offset:{dg*160 + fg*8}", 'wphi')] for dg in range(5) for fg in range(5)]
    def phi_mfmas(self, KQ, Pp):
        L = []
        for dg in range(5):
            for j in range(2):
                for fg in range(5):
                    d = Pp + 20 * j + 4 * fg; w = AW + 2 * (dg * 5 + fg); b = KQ + 10 * j + 2 * dg
                    L.append(f"v_mfma_f32_4x4x4_16b_bf16 {vr(d)}, a[{w}:{w+1}], v[{b}:{b+1}], {vr(d) if dg else 0}")
        return L
    def cvt_heads(self, acc0, dst, j, n=5):
        return [f"v_cvt_pk_bf16_f32 v{dst+2*t+h}, v{acc0+(t*2+j)*4+2*h}, v{acc0+(t*2+j)*4+2*h+1}" for t in range(n) for h in range(2)]
    def rho0(self, dst):
        self.e(f"v_lshrrev_b32 v{dst}, 1, v2\nv_lshl_add_u32 v{dst}, v{dst}, 4, v3\nv_and_b32 v7, 1, v2\nv_lshl_add_u32 v{dst}, v7, 2, v{dst}")
    def x_addr(self, ST, nsl=3, base=220):
        e = self.e
        e(f"""v_lshrrev_b32 v9, 1, v1
        v_xor_b32 v9, v9, v2
        v_lshlrev_b32 v9, 4, v9
        v_lshl_add_u32 v9, v1, 7, v9
        v_add_u32 v{base}, s{sM0}, v9
        v_xor_b32 v{base+1}, 64, v{base}""")
        for sl in range(1, nsl): e(f"v_add_u32 v{base+2*sl}, {sl*ST}, v{base}\nv_add_u32 v{base+1+2*sl}, {sl*ST}, v{base+1}")
    def paced(self, groups, m0, span):
        n = len(groups)
        return [dict(at=m0 + int((k + 0.2) * span / n), chain=1, ins=list(g)) for k, g in enumerate(groups)]
    def prog_QH(self):
        e = self.e; c = self.c; self.init_B(); self.dmap = {0: 3, 1: 5, 2: 7, 3: 9, 14: 11, 7: 13, 9: 15}
        e("L_QH:")
        ST = QH_ST
        e(f"""s_mul_i32 s{sKW}, s{sHG}, 320
        s_lshl_b32 s{sT0}, s{sHG}, 8
        s_add_u32 s{sT0}, s{sT0}, 384
        s_cmp_lt_u32 s{sHG}, 6
        s_cselect_b32 s{sKW}, s{sKW}, s{sT0}
        s_cselect_b32 s{sK1}, 20, 16
        s_mul_i32 s{sT2}, s{sW}, 320""")
        def dma_x(st):
            g = []
            for j in range(4):
                it = [('x', f"s_add_u32 m0, s{sM0}, {(st%3)*ST}")] if j == 0 else []
                g.append(it + [('vm', f"buffer_load_dwordx4 v{208+j}, {srd(SX)}, s{sE+st} offen offset:{j*1024} {c.xsc} lds", ('S', st))])
            return g
        def dma_a(st, i):
            it = []
            if i == 0: it = [('x', f"s_mul_i32 s{sKA}, s{sE+st}, 1920"), ('x', f"s_add_u32 m0, s{sM0+1}, {(st%3)*ST}")]
            if i == 2: it = [('x', f"s_mov_b32 m0, s{sM0+3+st%3}")]
            return it + [('vm', f"buffer_load_dwordx4 v{212+i}, {srd(SQ)}, s{sKA} offen offset:{1024 if i == 1 else 0} {c.wsc} lds", ('S', st))]
        def dma_h(st, i):
            it = []
            if i == 0: it = [('x', f"s_mul_i32 s{sKB}, s{sE+st}, 1728"), ('x', f"s_add_u32 m0, s{sM0+2}, {(st%3)*ST}")]
            if i == 4: it = [('x', "s_add_u32 m0, m0, 4096")]
            return it + [('vm', f"buffer_load_dwordx4 v{215+i}, {srd(S1)}, s{sKB} offen offset:{(i%4)*1024} {c.wsc} lds", ('S', st))]
        def dma_stage(st): return dma_x(st) + [dma_a(st, i) for i in range(3)] + [dma_h(st, i) for i in range(5)]
        if c.fast:
            self.kernarg_wait()
            for g in dma_x(0): self.emit_items(g)
            self.small_dma(SM, 6, f"s{sKW}", None, 20, 'bias', f"s_add_u32 m0, s{sT2}, {L_BIASQH}")
        e(f"""s_mul_i32 s{sT0}, s{sW}, 3
        s_lshl_b32 s{sT1}, s{sW}, 1
        s_add_u32 s{sT1}, s{sT1}, 2
        s_cmp_lt_u32 s{sW}, 2
        s_cselect_b32 s{sT0}, s{sT0}, s{sT1}
        s_lshl_b32 s{sM0+1}, s{sT0}, 10
        s_add_u32 s{sM0+1}, s{sM0+1}, 16384""")
        for sl in range(3):
            e(f"s_add_u32 s{sM0+3+sl}, s{sM0+1}, {2048 + sl*ST}\ns_cmp_lt_u32 s{sW}, 2\ns_cselect_b32 s{sM0+3+sl}, s{sM0+3+sl}, {MISC+4608}")
        e(f"s_lshl_b32 s{sT0}, s{sT0}, 6\ns_mul_i32 s{sT1}, s{sHG}, 160\ns_mul_i32 s{sM0+2}, s{sW}, 5120\ns_add_u32 s{sM0+2}, s{sM0+2}, {16384+10240}")
        for i in range(3):
            e(f"v_add_u32 v9, {64*i}, v0\nv_add_u32 v9, s{sT0}, v9")
            self.attn_voff(212 + i, None, sT1)
            if i == 1: e("v_subrev_u32 v213, 1024, v213")
            if i == 2: e(f"s_cmp_lt_u32 s{sW}, 2\ns_cselect_b32 s{sT4}, 0, {OOB}\nv_add_u32 v214, s{sT4}, v214")
            if c.fast: self.emit_items(dma_a(0, i))
        if not c.fast:
            self.kernarg_wait()
            self.small_dma(SM, 6, f"s{sKW}", None, 20, 'bias', f"s_add_u32 m0, s{sT2}, {L_BIASQH}")
            for g in dma_x(0) + [dma_a(0, i) for i in range(3)]: self.emit_items(g)
        e(f"s_mul_i32 s{sT0}, s{sW}, 320\nv_mov_b32 v14, {OOB}")
        for i in range(5):
            e(f"""v_add_u32 v9, {64*i}, v0
            v_add_u32 v9, s{sT0}, v9
            v_mul_u32_u24 v10, 3277, v9
            v_lshrrev_b32 v10, 16, v10
            v_mul_u32_u24 v11, 20, v10
            v_sub_u32 v11, v9, v11
            v_bfe_u32 v13, v10, 2, 1
            v_lshlrev_b32 v13, 1, v13
            v_xor_b32 v11, v11, v13
            v_cmp_gt_u32 vcc, s{sK1}, v11""")
            self.swap23(10, 12)
            e(f"""v_mul_u32_u24 v10, 3456, v10
            v_lshl_add_u32 v10, v11, 4, v10
            v_add_u32 v10, s{sKW}, v10
            v_subrev_u32 v10, {(i%4)*1024}, v10
            v_cndmask_b32 v{215+i}, v14, v10, vcc""")
            self.emit_items(dma_h(0, i))
        self.pstamp(1)
        if c.pke:
            self.pack_setup()
            for g in self.pack_loads(): self.emit_items(g)
        if c.touch == 1: self.touch()
        if c.touch == 4:
            self.touch3_setup()
            for p_ in range(c.tp0): self.emit_items(self.touch3(p_))
        self.pstamp(2)
        def setup():
            e = self.e
            self.x_addr(ST); self.rho0(8)
            e(f"v_mul_u32_u24 v9, 160, v8\nv_mad_u32_u24 v9, v4, 40, v9\nv_add_u32 v226, 16384, v9")
            e(f"v_mul_u32_u24 v9, 320, v8\nv_lshl_add_u32 v9, v4, 3, v9\nv_add_u32 v9, {16384+10240}, v9\nv_lshl_add_u32 v229, v7, 5, v9\nv_xor_b32 v7, 1, v7\nv_lshl_add_u32 v232, v7, 5, v9")
            for sl in (1, 2): e(f"v_add_u32 v{226+sl}, {sl*ST}, v226\nv_add_u32 v{229+sl}, {sl*ST}, v229\nv_add_u32 v{232+sl}, {sl*ST}, v232")
            self.common_setup()
            if not c.pke: self.pack_setup()
            e(f"s_mul_i32 s{sT1}, s{sW}, 320\ns_add_u32 s{sT1}, s{sT1}, {L_BIASQH}\nv_lshl_add_u32 v13, v2, 3, s{sT1}")
            e(f"""s_lshl_b32 s{sT0}, s{sMT}, 1
            s_lshr_b32 s{sT1}, s{sW}, 1
            s_add_u32 s{sT0}, s{sT0}, s{sT1}
            s_and_b32 s{sT1}, s{sW}, 1
            s_mul_i32 s{sT2}, s{sT0}, 74
            s_lshl_b32 s{sT2}, s{sT2}, 12
            s_lshl_b32 s{sT3}, s{sT1}, 11
            s_add_u32 s{sT2}, s{sT2}, s{sT3}
            s_add_u32 s{sT2}, s{sT2}, {A2}
            s_lshr_b32 s{sT4}, s{sHG}, 1
            s_mul_i32 s{sT4}, s{sT4}, 5
            s_add_u32 s{sT4}, s{sT4}, 54
            s_lshl_b32 s{sT4}, s{sT4}, 12
            s_add_u32 s{sT4}, s{sT4}, s{sT2}
            s_and_b32 s{sT5}, s{sHG}, 1
            s_lshl_b32 s38, s{sT5}, 13
            s_add_u32 s38, s38, s{sT4}
            s_add_u32 s39, s{sT4}, {4*4096}
            s_lshl_b32 s{sT5}, s{sT5}, 3
            s_add_u32 s39, s39, s{sT5}
            s_lshl_b32 s{sT0}, s{sHG}, 4
            s_add_u32 s{sT0}, s{sT0}, s{sMT}
            s_lshl_b32 s{sT0}, s{sT0}, 2
            s_add_u32 s{sT0}, s{sT0}, s{sW}
            s_lshl_b32 s{sT0}, s{sT0}, 9
            s_add_u32 s43, s{sT0}, {GB}
            v_mov_b32 v204, -1
            v_mov_b32 v205, -1
            v_mov_b32 v206, -1
            v_mov_b32 v207, -1""")
        self.interleave(self.record(setup), dma_stage(1)[:c.n1], c.pe)
        self.pstamp(3)
        if c.n1 >= 12:
            self.small_dma(SM, 6, "s36", None, 50, 'misc', "s_mov_b32 m0, s37")
            if c.touch == 2: self.touch()
            if not c.pke:
                for g in self.pack_loads(): self.emit_items(g)
        self.tag_wait(); self.pstamp(4)
        e.wait(vm='bias')
        for s_ in range(10): e.lgop(f"ds_read_b64 v[{136+2*s_}:{137+2*s_}], v13 offset:{s_*32}", ('b', s_))
        for s_ in range(10):
            a0 = 16 + (5 + s_) * 8; e.wait(lg=('b', s_))
            for h in range(2): e(f"v_lshlrev_b32 v{a0+2*h}, 16, v{136+2*s_+h}\nv_and_b32 v{a0+2*h+1}, 0xffff0000, v{136+2*s_+h}")
        self.stamp(0)
        NS = 15; nm = NS * 4; mf = []; reads = []
        for st in range(10):
            sl = st % 3
            for t in range(NS):
                gs = st * NS + t; wr = 168 + 8 * (gs % 4); m0 = len(mf)
                for ks in range(2):
                    for rd in range(2):
                        if t < 5: ad, off = 226 + sl, ks * 5120 + rd * 1280 + t * 8
                        else: ad, off = (229 if (t - 5) % 2 == 0 else 232) + sl, ks * 10240 + rd * 2560 + ((t - 5) >> 1) * 64
                        reads.append([f"ds_read_b64_tr_b16 v[{wr+4*ks+2*rd}:{wr+4*ks+2*rd+1}], v{ad} offset:{off}", m0, st, m0 - 13])
                for j in ((1, 0) if st == 0 else (0, 1)):
                    for ks in range(2):
                        xr = 136 + (st % 2) * 16 + (j * 2 + ks) * 4; d = 16 + (t * 2 + j) * 4
                        if t == 0: reads.append([f"ds_read_b128 {vr(xr)}, v{220+2*sl+ks} offset:{j*2048}", len(mf), st, -1])
                        cc = vr(d)
                        if st == 0 and ks == 0: cc = "0" if t < 5 else vr(16 + t * 8)
                        mf.append(f"v_mfma_f32_16x16x32_bf16 {vr(d)}, {vr(wr+4*ks)}, {vr(xr)}, {cc}")
        po = lambda va, off: [('vm', f"buffer_store_dwordx4 v[204:207], v{va}, {srd(SWS)}, s38 offen offset:{off} sc1", 'hst')]
        poison = [po(6, 0), po(6, 1024), po(240, 0), po(240, 1024)] + [[('vm', f"buffer_store_dwordx2 v[204:205], v6, {srd(SWS)}, s39 offen offset:{j*1024} sc1", 'hst')] for j in range(2)]
        self.kloop(mf, reads, nm, dma_stage, poison, 'QH')
        A51 = lambda u: u < 51; A64 = lambda u: u < 64; ALL = lambda u: True
        self.gelu_consts()
        e(f"s_lshl_b32 s{sT3}, s{sKW}, 6\ns_add_u32 s{sT3}, s{sT3}, s{sT2}")
        L = []
        for p in range(5):
            for j in range(2):
                O = 152 + 4 * ((2 * p + j) % 4)
                L += self.gelu_lines(16 + ((5 + 2 * p) * 2 + j) * 4, 16 + ((6 + 2 * p) * 2 + j) * 4, 136 + 8 * j, O)
                if j == 0:
                    if p == 4: L += [f"s_add_u32 s{sT4}, s{sT3}, {4*4096}", f"s_cmp_lt_u32 s{sHG}, 6\ns_cselect_b32 s{sT4}, s{sT4}, {OOB}"]
                    else: L.append(f"s_add_u32 s{sT4}, s{sT3}, {p*4096}")
                L.append(('vm', f"buffer_store_dwordx4 {vr(O)}, v6, {srd(SWS)}, s{sT4} offen offset:{j*1024} sc1", 'hst'))
        self.valu(L, bg=A51, S=c.Sg)
        self.valu(self.cvt_heads(16, 56, 0) + self.cvt_heads(16, 66, 1), bg=A51)
        self.stamp(2)
        e.wait(lg='wphi')
        self.valu(self.phi_mfmas(56, 76), bg=A51)
        e(f"""s_lshl_b32 s{sT4}, s{sMT}, 4
        s_add_u32 s{sT4}, s{sT4}, s{sHG}
        s_lshl_b32 s{sT4}, s{sT4}, 7
        s_add_u32 s{sT4}, s{sT4}, {F4}
        s_cmp_eq_u32 s{sW}, 0
        s_cselect_b32 s{sT5}, s{sT4}, {OOB}
        s_mov_b32 s{sC0}, {fl(math.log2(math.e))}""")
        L1 = self.softmax_lines(76, 16, 116)
        self.valu(L1[:c.f4at], bg=A64)
        e.wait(vm='hst'); e("s_barrier")
        if c.stamps == 3: e(f"s_mov_b32 s{sC0}, {fl(math.log2(math.e))}")
        e.vmop(self.flag_store(245, 246, f"s{sT5}"), 'f4st')
        self.valu(L1[c.f4at:], bg=ALL)
        L2 = self.softmax_lines(96, 16, 136)
        self.valu(L2[:c.pa], bg=ALL)
        self.poll4a_issue()
        self.valu(L2[c.pa:c.pb], bg=ALL)
        pool = [[('v', r), c.mo + 1 if r < 204 else c.p3 if r < 220 else 999] for r in list(range(204, 224, 4)) + list(range(168, 204, 4))]
        while len(self.Bpend) > c.qleft: self.bg_try(ALL, -9999)
        self.ph2_begin(pool)
        if c.stamps == 3: e(f"s_mov_b32 s{sC0}, {fl(math.log2(math.e))}")
        self.valu(L2[c.pb:], bg=ALL)
        self.stamp(3)
        pool += [[('v', r), c.mo + 1] for r in range(156, 168, 4)]
        FO = (0, 1024, 2048, 2816)
        finld = [f"buffer_load_dwordx4 {vr(204+4*i)}, v6, {srd(SWS)}, s{sKW} offen offset:{FO[i]} sc1" for i in range(4)]
        finld += [f"buffer_load_dwordx4 {vr(248+4*j)}, v13, {srd(SWS)}, s43 offen offset:{j*256} sc1" for j in range(2)]
        def h_p3():
            e(f"""s_mul_i32 s{sKW}, s{sHG}, {FSZ}
            s_mul_i32 s{sK1}, s{sW}, 3840
            s_add_u32 s{sKW}, s{sKW}, s{sK1}
            s_add_u32 s{sKW}, s{sKW}, {FIN}
            v_lshlrev_b32 v13, 4, v1""")
            for l in finld: e.vmop(l, 'fin')
        def h_c3():
            it = [('st', 4, 1)] + [('x', l) for l in f"s_lshr_b32 s{sK1}, s{sK1}, 1\ns_add_u32 s{sK1}, s{sK1}, {L_FIN}\nv_lshl_add_u32 v9, v0, 3, s{sK1}".split("\n")] + [('wvm', 'fin')]
            it += [('x', l) for l in self.tag_check(finld, list(range(204, 220)) + list(range(248, 256)), 8)] + [('st', 5, 1)]
            it += [('x', self.tag_strip(r)) for r in list(range(204, 220)) + [248, 252]] + [('x', "v_mov_b32 v250, v248"), ('x', "v_mov_b32 v251, v252")]
            for i in range(4):
                it += [('x', f"v_cvt_pk_bf16_f32 v{204+4*i}, v{204+4*i}, v{205+4*i}"), ('x', f"v_cvt_pk_bf16_f32 v{205+4*i}, v{206+4*i}, v{207+4*i}"),
                       ('lg', f"ds_write_b64 v9, v[{204+4*i}:{205+4*i}] offset:{FO[i]//2}", 'fw')]
            it += [('x', l) for l in f"v_lshlrev_b32 v13, 6, v2\nv_lshl_add_u32 v13, v4, 4, v13\nv_add_u32 v13, {L_FIN}, v13".split("\n")]
            self.aq[:0] = [[self.m, c.mo - 3, x] for x in it]
        def h_o():
            if c.p1q < 0: self.poll4b_issue()
            fr = [p for p in pool if p[0][0] == 'a'][:8]; assert len(fr) == 8; self.busy = fr
            e.wait(lg='fw'); e("s_barrier")
            self.stamp(6)
            mf = []; reads = []
            for fp in range(5):
                for dg in range(6):
                    n = fp * 6 + dg; f0 = fr[n % 8][0][1]; base = (n // 2) * 8
                    reads.append([f"ds_read_b128 {ar(f0)}, v13 offset:{(dg*5+fp)*256}", base + 2 * (n % 2), -1, base - 24])
                    for h in range(2):
                        for j in range(2):
                            d = 156 + 24 * j + 4 * dg; b = 116 + 20 * j + 2 * (2 * fp + h)
                            mf.append(f"v_mfma_f32_4x4x4_16b_bf16 {vr(d)}, a[{f0+2*h}:{f0+2*h+1}], v[{b}:{b+1}], {vr(d) if (fp or h) else 0}")
            mf2 = []
            for n in range(0, 30, 2):
                a_, b_ = mf[4*n:4*n+4], mf[4*n+4:4*n+8]
                mf2 += [a_[0], a_[1], b_[0], b_[1], a_[2], a_[3], b_[2], b_[3]]
            if c.skip & 4: mf2 = mf2[:8]; reads = reads[:2]
            self.stream(mf2, reads, [], None, LA=20, bg=lambda m: self.ph2_bg)
            for j in range(2): e(f"v_add_f32 v{8+2*j}, {fl(1e-6)}, v{156+24*j+20}")
            for j in range(2): e(f"v_rcp_f32 v{8+2*j}, v{8+2*j}")
            for j in range(2): e(f"v_mul_f32 v{8+2*j}, v{8+2*j}, v{250+j}")
            for j in range(2):
                D = 156 + 24 * j
                for i in range(10): e(f"v_pk_mul_f32 v[{D+2*i}:{D+2*i+1}], v[{D+2*i}:{D+2*i+1}], v[{8+2*j}:{9+2*j}] op_sel_hi:[1,0]")
                for i in range(10): e(f"v_cvt_pk_bf16_f32 v{D+i}, v{D+2*i}, v{D+2*i+1}")
                for i in range(10): e(f"v_min_u32 v{D+i}, -2, v{D+i}")
                e.vmop(f"buffer_store_dwordx4 {vr(D)}, v6, {srd(SWS)}, s38 offen offset:{j*1024} sc1", 'ost')
                e.vmop(f"buffer_store_dwordx4 {vr(D+4)}, v240, {srd(SWS)}, s38 offen offset:{j*1024} sc1", 'ost')
                e.vmop(f"buffer_store_dwordx2 {vr(D+8, 2)}, v6, {srd(SWS)}, s39 offen offset:{j*1024} sc1", 'ost')
            self.busy = []
            for p in pool: p[1] = 999
            pool.extend([[('v', r), 999] for r in range(116, 156, 4)])
            self.stamp(14)
        self.bias2()
        self.phase2({c.p3: h_p3, c.c3: h_c3, c.mo: h_o, c.p1q: self.poll4b_issue, c.c1q: self.poll4b_check})

    def prog_KV(self):
        e = self.e; c = self.c; self.init_B(); self.dmap = {0: 2, 1: 4, 3: 6, 4: 8, 5: 10, 7: 12, 9: 14}
        ST = KV_ST
        e(f"""s_mul_i32 s{sM0+1}, s{sW}, 5120
        s_add_u32 s{sM0+1}, s{sM0+1}, 16384
        s_lshl_b32 s{sM0+2}, s{sW}, 11
        s_add_u32 s{sM0+2}, s{sM0+2}, 36864
        s_lshl_b32 s{sKW}, s{sHG}, 7
        s_add_u32 s{sKW}, s{sKW}, {19*128}""")
        def dma_x(st):
            g = []
            for j in range(4):
                it = [('x', f"s_add_u32 m0, s{sM0}, {(st%3)*ST}")] if j == 0 else []
                g.append(it + [('vm', f"buffer_load_dwordx4 v{208+j}, {srd(SX)}, s{sE+st} offen offset:{j*1024} {c.xsc} lds", ('S', st))])
            return g
        def dma_w(st, i):
            it = []
            if i == 0: it = [('x', f"s_mul_i32 s{sKA}, s{sE+st}, 1920"), ('x', f"s_add_u32 m0, s{sM0+1}, {(st%3)*ST}")]
            if i == 4: it = [('x', "s_add_u32 m0, m0, 4096")]
            return it + [('vm', f"buffer_load_dwordx4 v{212+i}, {srd(SQ)}, s{sKA} offen offset:{(i%4)*1024} {c.wsc} lds", ('S', st))]
        def dma_h(st, i):
            it = [('x', f"s_mul_i32 s{sKB}, s{sE+st}, 1728"), ('x', f"s_add_u32 m0, s{sM0+2}, {(st%3)*ST}")] if i == 0 else []
            return it + [('vm', f"buffer_load_dwordx4 v{217+i}, {srd(S1)}, s{sKB} offen offset:{i*1024} {c.wsc} lds", ('S', st))]
        def dma_stage(st): return dma_x(st) + [dma_w(st, i) for i in range(5)] + [dma_h(st, i) for i in range(2)]
        if c.fast:
            self.kernarg_wait()
            for g in dma_x(0): self.emit_items(g)
            self.small_dma(SM, 6, f"s{sKW}", L_BIASKV, 8, 'bias')
        e(f"""s_and_b32 s{sT0}, s{sW}, 1
        s_mul_i32 s{sT0}, s{sT0}, 320
        s_lshr_b32 s{sT1}, s{sW}, 1
        s_add_u32 s{sT1}, s{sT1}, 1
        s_mul_i32 s{sT1}, s{sT1}, 1280
        s_mul_i32 s{sT3}, s{sHG}, 160
        s_add_u32 s{sT1}, s{sT1}, s{sT3}""")
        for i in range(5):
            e(f"v_add_u32 v9, {64*i}, v0\nv_add_u32 v9, s{sT0}, v9")
            self.attn_voff(212 + i, None, sT1)
            if i % 4: e(f"v_subrev_u32 v{212+i}, {(i%4)*1024}, v{212+i}")
            if c.fast: self.emit_items(dma_w(0, i))
        if not c.fast:
            self.kernarg_wait()
            self.small_dma(SM, 6, f"s{sKW}", L_BIASKV, 8, 'bias')
            for g in dma_x(0) + [dma_w(0, i) for i in range(5)]: self.emit_items(g)
        e(f"s_lshl_b32 s{sT3}, s{sW}, 4\nv_lshlrev_b32 v11, 1, v2\nv_xor_b32 v11, v11, v0\nv_and_b32 v11, 7, v11")
        for pp in range(2):
            e(f"v_add_u32 v10, {8*pp}, v5\nv_add_u32 v10, s{sT3}, v10")
            self.swap23(10, 12)
            e(f"""v_mul_u32_u24 v10, 3456, v10
            v_lshl_add_u32 v10, v11, 4, v10
            v_add_u32 v10, s{sKW}, v10
            v_subrev_u32 v{217+pp}, {pp*1024}, v10""")
            self.emit_items(dma_h(0, pp))
        mk_srd(e, 28, pGATE, 1280)
        if c.rot == 3: e(f"v_xor_b32 v9, s{sE}, v6\nv_add_u32 v11, 1024, v9")
        else: e(f"v_add_u32 v9, s{sE}, v6\nv_subrev_u32 v10, 1280, v9\nv_min_u32 v9, v9, v10\nv_add_u32 v11, 1024, v9\nv_subrev_u32 v10, 1280, v11\nv_min_u32 v11, v11, v10")
        self.small_dma(28, 9, "0", L_GATE, 64, ('S', 0)); self.small_dma(28, 11, "0", L_GATE + 1024, 16, ('S', 0))
        self.pstamp(1)
        if c.pke:
            self.pack_setup()
            for g in self.pack_loads(): self.emit_items(g)
        if c.touch == 1: self.touch()
        if c.touch == 4:
            self.touch3_setup()
            for p_ in range(c.tp0): self.emit_items(self.touch3(p_))
        self.pstamp(2)
        def setup():
            e = self.e
            self.x_addr(ST); self.rho0(8)
            e(f"v_mul_u32_u24 v9, 160, v8\nv_mad_u32_u24 v9, v4, 40, v9\nv_add_u32 v226, 16384, v9")
            for sl in (1, 2): e(f"v_add_u32 v{226+sl}, {sl*ST}, v226")
            e(f"v_lshlrev_b32 v9, 7, v8\nv_lshl_add_u32 v9, v4, 3, v9\nv_add_u32 v9, 36864, v9\nv_bfe_u32 v10, v8, 1, 2")
            for t in range(4): e(f"v_xor_b32 v11, {t}, v10\nv_lshl_add_u32 v{229+t}, v11, 5, v9\nv_add_u32 v{204+t}, {2*ST}, v{229+t}")
            e(f"v_lshlrev_b32 v233, 4, v2\nv_add_u32 v233, {L_GATE}, v233\nv_lshlrev_b32 v253, 3, v2\nv_add_u32 v253, {L_BIASKV}, v253")
            self.common_setup()
            if not c.pke: self.pack_setup()
            e(f"""v_lshrrev_b32 v8, 2, v1
            v_mul_u32_u24 v8, 2560, v8
            v_lshl_add_u32 v8, v4, 5, v8
            v_lshrrev_b32 v9, 1, v2
            v_lshl_add_u32 v8, v9, 9, v8
            v_and_b32 v9, 1, v2
            v_lshl_add_u32 v8, v9, 4, v8
            s_lshl_b32 s{sT0}, s{sW}, 7
            v_add_u32 v241, s{sT0}, v8
            v_add_u32 v243, 10240, v241
            v_mov_b32 v9, {OOB}
            v_cmp_ge_u32 vcc, 7, v1
            v_cndmask_b32 v243, v9, v243, vcc
            v_cmp_gt_u32 vcc, 2, v2
            v_cndmask_b32 v242, v9, v241, vcc
            v_cndmask_b32 v244, v9, v243, vcc
            v_mul_u32_u24 v12, {PSZ}, v2
            v_min_u32 v10, 14, v1
            v_lshl_add_u32 v12, v10, 4, v12
            v_lshlrev_b32 v13, 4, v1
            v_cmp_gt_u32 vcc, 16, v0
            v_cndmask_b32 v234, v9, v13, vcc
            v_cmp_gt_u32 vcc, 15, v0
            v_cndmask_b32 v13, v9, v13, vcc""")
        self.interleave(self.record(setup), dma_stage(1)[:c.n1], c.pe2)
        self.pstamp(3)
        if c.n1 >= 12:
            self.small_dma(SM, 6, "s36", None, 50, 'misc', "s_mov_b32 m0, s37")
            if c.touch == 2: self.touch()
            if not c.pke:
                for g in self.pack_loads(): self.emit_items(g)
        self.tag_wait(); self.pstamp(4)
        e.wait(vm='bias')
        for s_ in range(4): e.lgop(f"ds_read_b64 v[{136+2*s_}:{137+2*s_}], v253 offset:{s_*32}", ('b', s_))
        for s_ in range(4):
            e.wait(lg=('b', s_))
            for h in range(2): e(f"v_lshlrev_b32 v{96+8*s_+2*h}, 16, v{136+2*s_+h}\nv_and_b32 v{97+8*s_+2*h}, 0xffff0000, v{136+2*s_+h}")
        self.stamp(0)
        NS = 15; nm = NS * 4; mf = []; reads = []
        for st in range(10):
            sl = st % 3
            for t in range(NS):
                gs = st * NS + t; wr = 168 + 8 * (gs % 4); m0 = len(mf)
                for ks in range(2):
                    if t == 14: reads.append([f"ds_read_b128 {vr(wr+4*ks)}, v233 offset:{(st*2+ks)*64}", m0, st, m0 - 13]); continue
                    for rd in range(2):
                        if t < 10: ad, off = 226 + sl, (t // 5) * 10240 + ks * 5120 + rd * 1280 + (t % 5) * 8
                        else: ad, off = (229 if sl < 2 else 204) + t - 10, (sl % 2) * ST + ks * 4096 + rd * 1024
                        reads.append([f"ds_read_b64_tr_b16 v[{wr+4*ks+2*rd}:{wr+4*ks+2*rd+1}], v{ad} offset:{off}", m0, st, m0 - 13])
                for j in ((1, 0) if st == 0 else (0, 1)):
                    for ks in range(2):
                        xr = 136 + (st % 2) * 16 + (j * 2 + ks) * 4; d = 16 + (t * 2 + j) * 4
                        if t == 0: reads.append([f"ds_read_b128 {vr(xr)}, v{220+2*sl+ks} offset:{j*2048}", len(mf), st, -1])
                        cc = vr(d)
                        if st == 0 and ks == 0: cc = vr(16 + t * 8) if 10 <= t < 14 else "0"
                        mf.append(f"v_mfma_f32_16x16x32_bf16 {vr(d)}, {vr(wr+4*ks)}, {vr(xr)}, {cc}")
        self.kloop(mf, reads, nm, dma_stage, [], 'KV')
        A64 = lambda u: u < 64; ALL = lambda u: True
        A51 = lambda u: u < 51; Sa = c.Sa
        KQ = 136; PR = 168; VT = 156
        nl2e = fl(-math.log2(math.e))
        side = [l.strip() for l in f"""v_mul_f32 v128, {nl2e}, v128
        v_mul_f32 v132, {nl2e}, v132
        v_exp_f32 v128, v128
        v_exp_f32 v132, v132
        s_lshl_b32 s{sT2}, s{sMT}, 2
        v_add_f32 v128, 1.0, v128
        v_add_f32 v132, 1.0, v132
        v_rcp_f32 v128, v128
        v_rcp_f32 v132, v132
        s_add_u32 s{sT2}, s{sT2}, s{sW}
        s_lshl_b32 s{sT3}, s{sT2}, 9
        s_lshl_b32 s{sT4}, s{sHG}, 15
        s_add_u32 s{sT3}, s{sT3}, s{sT4}
        s_add_u32 s{sT3}, s{sT3}, {GB}
        v_mul_u32_u24 v220, {RSV}, v1
        v_mad_u32_u24 v220, v2, 48, v220
        s_mul_i32 s{sT0}, s{sW}, {32*RSV}
        s_add_u32 s{sT0}, s{sT0}, {L_V}
        v_add_u32 v220, s{sT0}, v220
        v_mul_u32_u24 v221, {RSP}, v1
        s_mov_b32 s{sT0}, 80
        v_mad_u32_u24 v221, v2, s{sT0}, v221
        s_mul_i32 s{sT0}, s{sW}, {32*RSP}
        v_add_u32 v221, s{sT0}, v221
        v_lshl_add_u32 v8, v2, 2, v3
        v_mul_u32_u24 v222, {RSP}, v8
        v_lshl_add_u32 v222, v4, 3, v222
        s_mul_i32 s{sT0}, s{sW}, 80
        v_add_u32 v222, s{sT0}, v222
        v_mul_u32_u24 v223, {RSV}, v8
        v_lshl_add_u32 v223, v4, 3, v223
        s_mul_i32 s{sT0}, s{sW}, 48
        s_add_u32 s{sT0}, s{sT0}, {L_V}
        v_add_u32 v223, s{sT0}, v223
        s_lshl_b32 s{sT0}, s{sHG}, 4
        s_add_u32 s{sT0}, s{sT0}, s{sMT}
        s_mul_i32 s{sT1}, s{sT0}, {PSZ}
        s_add_u32 s{sT1}, s{sT1}, {PP}
        s_mov_b32 s{sC0}, {fl(math.log2(math.e))}""".split("\n")]
        self.valu(self.cvt_heads(16, KQ, 0) + self.cvt_heads(16, KQ + 10, 1))
        e.wait(lg='wphi')
        side = self.cvt_heads(56, VT, 0) + side[:38]; rest = [side.pop() for _ in range(0)]
        self.valu(self.phi_mfmas(KQ, PR), [[('x', l)] for l in side], 1)
        e(f"v_mov_b32 v{VT+10}, 0x3f80\nv_mov_b32 v{VT+11}, 0\ns_mov_b32 s{sC0}, {fl(math.log2(math.e))}\ns_barrier")
        for i in range(3): e.lgop(f"ds_write_b128 v220, {vr(VT+4*i)} offset:{i*16}", 'vw')
        for j in range(2):
            for i in (3, 2, 1, 0): e(self.tag_put(128 + 4 * j + i, 128 + 4 * j))
            e.vmop(f"buffer_store_dwordx4 {vr(128+4*j)}, v234, {srd(SWS)}, s{sT3} offen offset:{j*256} sc1", 'hst')
        L0 = self.softmax_lines(PR, 16, 136)
        self.valu(L0[:16], bg=ALL, S=Sa)
        self.valu(self.cvt_heads(56, 208, 1) + ["v_mov_b32 v218, 0x3f80", "v_mov_b32 v219, 0"], bg=ALL, S=Sa)
        for i in range(3): e.lgop(f"ds_write_b128 v220, {vr(208+4*i)} offset:{16*RSV + i*16}", 'vw')
        self.valu(L0[16:], bg=ALL, S=Sa)
        PH = (136, 56)
        pw = lambda j: [[('lg', f"ds_write_b128 v221, {vr(PH[j]+4*i)} offset:{j*16*RSP + i*16}", 'pw')] for i in range(5)]
        L1 = self.softmax_lines(PR + 20, 16, 56)
        self.valu(L1[:40], pw(0), 8, ALL, Sa)
        self.valu(L1[40:-20], bg=ALL, S=Sa)
        self.valu(L1[-20:], pw(1), 4)
        e.wait(lg_all=True); e("s_barrier")
        self.stamp(2)
        mf = []; reads = []; D0 = 168
        for s_ in range(4):
            b0 = 16 + s_ * 20; m0 = len(mf)
            for dt in range(2):
                for rd in range(2): reads.append([f"ds_read_b64_tr_b16 v[{b0+12+4*dt+2*rd}:{b0+13+4*dt+2*rd}], v223 offset:{(32*s_+16*rd)*RSV + dt*32}", m0 + dt, -1, -1])
            for ft in range(3):
                for rd in range(2): reads.append([f"ds_read_b64_tr_b16 v[{b0+4*ft+2*rd}:{b0+4*ft+2*rd+1}], v222 offset:{(32*s_+16*rd)*RSP + ft*32}", m0 + 2 * ft, -1, -1])
                for dt in range(2):
                    d = D0 + (ft * 2 + dt) * 4
                    mf.append(f"v_mfma_f32_16x16x32_bf16 {vr(d)}, {vr(b0+4*ft)}, {vr(b0+12+4*dt)}, {vr(d) if s_ else 0}")
        reads.sort(key=lambda r: r[1]); rp = 0
        for m in range(24):
            while rp < 40 and (len(e.lg) < 14 and (m == 0 or reads[rp][1] <= m + 8) or reads[rp][1] <= m): e.lgop(reads[rp][0], ('kv', reads[rp][1])); rp += 1
            e.wait(lg=[('kv', k) for k in range(m + 1)])
            e(mf[m])
            if c.kvb: self.bg_try(ALL, c.kvb)
        self.gelu_consts()
        e(f"""s_lshl_b32 s{sT4}, s{sMT}, 1
        s_lshr_b32 s{sT5}, s{sW}, 1
        s_add_u32 s{sT4}, s{sT4}, s{sT5}
        s_and_b32 s{sT5}, s{sW}, 1
        s_mul_i32 s{sT3}, s{sT4}, 74
        s_lshl_b32 s{sKW}, s{sHG}, 1
        s_add_u32 s{sT3}, s{sT3}, s{sKW}""")
        for ft in range(3):
            for dt in range(2):
                for i in range(4): e(self.tag_put(D0 + (ft * 2 + dt) * 4 + i))
                e.vmop(f"buffer_store_dwordx4 {vr(D0+(ft*2+dt)*4)}, v{241+2*dt+(ft==2)}, {srd(SWS)}, s{sT1} offen offset:{ft*1024} sc1", 'pst')
        self.stamp(3)
        if c.stamps: self.gelu_consts()
        e(f"""s_add_u32 s{sT3}, s{sT3}, 38
        s_lshl_b32 s{sT3}, s{sT3}, 12
        s_lshl_b32 s{sT5}, s{sT5}, 11
        s_add_u32 s{sT3}, s{sT3}, s{sT5}
        s_add_u32 s{sT3}, s{sT3}, {A2}
        s_lshl_b32 s{sKW}, s{sMT}, 4
        s_add_u32 s{sKW}, s{sKW}, s{sHG}
        s_lshl_b32 s{sKW}, s{sKW}, 7
        s_add_u32 s{sKW}, s{sKW}, {F4+1024}
        s_cmp_eq_u32 s{sW}, 0
        s_cselect_b32 s{sKW}, s{sKW}, {OOB}
        s_mul_i32 s32, s{sT2}, 240
        s_mul_i32 s{sT4}, s{sHG}, {FSZ}
        s_add_u32 s{sT1}, s32, s{sT4}
        s_add_u32 s{sT1}, s{sT1}, {FIN}
        s_lshl_b32 s{sT4}, s{sT4}, 4
        s_add_u32 s32, s32, s{sT4}
        s_add_u32 s32, s32, {PP}
        s_add_u32 s33, s32, {4*PSZ}
        s_add_u32 s34, s33, {4*PSZ}
        s_add_u32 s35, s34, {4*PSZ}""")
        L = []; hs = []
        for p in range(2):
            for j in range(2):
                O = 152 + 4 * ((2 * p + j) % 4)
                L += self.gelu_lines(96 + (4 * p + j) * 4, 96 + (4 * p + 2 + j) * 4, 136 + 8 * j, O)
                hs.append(('vm', f"buffer_store_dwordx4 {vr(O)}, v{6 if p == 0 else 240}, {srd(SWS)}, s{sT3} offen offset:{j*1024} sc1", 'hst'))
        RD = 116
        pld = [f"buffer_load_dwordx4 {vr(RD+4*i)}, v12, {srd(SWS)}, s{32+i} offen sc1" for i in range(4)]
        self.valu(L, bg=ALL if c.kgb else None, S=Sa)
        for l in pld: e.vmop(l, 'pld')
        if c.kp4 == 0: self.poll4a_issue()
        self.emit_items(hs)
        pool = [[('v', r), 999] for r in list(range(168, 224, 4)) + list(range(136, 168, 4))]
        for _ in range(c.kb2): self.bg_try(ALL, -9999)
        self.stamp(4)
        def h_r2():
            red = [self.tag_strip(RD + i) for i in range(16)]
            red += [f"v_add_f32 v{RD+i}, v{RD+i}, v{RD+4+i}" for i in range(4)] + [f"v_add_f32 v{RD+8+i}, v{RD+8+i}, v{RD+12+i}" for i in range(4)] + [f"v_add_f32 v{RD+i}, v{RD+i}, v{RD+8+i}" for i in range(4)]
            for sw in ('32', '16'):
                red += [f"v_mov_b32 v{RD+4+i}, v{RD+i}" for i in range(4)] + [f"v_permlane{sw}_swap_b32 v{RD+i}, v{RD+4+i}" for i in range(4)] + [f"v_add_f32 v{RD+i}, v{RD+i}, v{RD+4+i}" for i in range(4)]
            red += [self.tag_put(RD + i) for i in range(4)]
            it = [('st', 14, 1), ('wvm', 'pld')] + [('x', l) for l in self.tag_check(pld, range(RD, RD + 16), 9)] + [('st', 5, 1)] + [('x', l) for l in red]
            it += [('vm', f"buffer_store_dwordx4 {vr(RD)}, v13, {srd(SWS)}, s{sT1} offen sc1", 'fst')]
            self.emit_items(it); pool.extend([[('v', r), 999] for r in range(RD, RD + 20, 4)])
        def h_f4():
            e.wait(vm='hst'); e("s_barrier"); e.vmop(self.flag_store(245, 246, f"s{sKW}"), 'f4st')
        h_r2()
        if c.f4k < 0: h_f4()
        if c.kp4 == 1:
            self.poll4a_issue()
            for _ in range(c.kb3): self.bg_try(ALL, -9999)
        self.ph2_begin(pool)
        while len(self.Bpend) > c.kleft: self.bg_try(ALL, -9999)
        self.stamp(6)
        self.bias2()
        self.phase2({c.f4k: h_f4, c.p1: self.poll4b_issue, c.c1: self.poll4b_check})

    def kloop(self, mf, reads, nm, dma_stage, poison, name):
        e = self.e; c = self.c; back = []
        def mksync(st):
            def f(m):
                tg = [it[2] for g in back for it in (g[1] if g[0] == 'atomic' else g) if it[0] == 'vm']
                assert not (st == c.pks and 'packld' in tg) and not (st == c.pks + 3 and 'pkst' in tg) and not (st == 3 and 'misc' in tg) and ('S', st) not in tg
                e.wait(vm=[('S', st)] + (['pkst'] if st == c.pks + 3 else []) + (['misc'] if st == 3 else []) + (['packld'] if st == c.pks else []), lg_all=True); e("s_barrier")
                self.stamp(st + 1, 2)
                if st < 3: self.stamp(7 + st, 3)
                if st == 2: self.pstamp_flush()
                out = []
                if st == 0 and c.n1 < 12:
                    back.extend(dma_stage(1)[c.n1:])
                    back.append(('atomic', self.record(lambda: self.small_dma(SM, 6, "s36", None, 50, 'misc', "s_mov_b32 m0, s37"))))
                if st + 2 < 10: back.extend(dma_stage(st + 2))
                if st == c.pkl and c.n1 < 12: back.extend(self.pack_loads())
                if st == c.pks: back.extend(self.pack_stores())
                if c.f1s < st < 8 or (st == c.f1s and st < 8 and c.f1c + 26 < nm - 12):
                    for u in self.Bpend[:c.bk]: self.Bpend.remove(u); back.append(self.B_take([u])[0])
                need = max([k + 1 for k, g in enumerate(back) if g[0] != 'atomic' and g[-1][2] == ('S', st + 1)], default=0)
                n = min(len(back), max(c.quota, need)) if st < 7 else len(back)
                take = back[:n]; del back[:n]
                if take:
                    pc = self.paced([g[1] if g[0] == 'atomic' else g for g in take], m, nm - c.dtail)
                    for f, g in zip(pc, take):
                        if g[0] == 'atomic': f['atomic'] = 1
                    out += pc
                if c.touch == 4: out += [dict(at=m + nm - c.dtail + 1, chain=1, ins=self.touch3(p_)) for p_ in range(c.tp0, 3) if c.tst[p_] == st]
                if st in c.cpf: out.append(dict(at=m + nm - c.dtail + 2, ins=self.code_touch('L_QH' if name == 'KV' else 'L_end')))
                if st == c.pks: out += self.pack_fill(m, nm)
                if st == c.pks + 3: out.append(dict(at=m + 1, ins=[('vm', self.flag_store(245, 246, f"s{sF1}"), 'f1st')]))
                if st == 3: out += [dict(at=m + 3 + 5 * k, ins=g) for k, g in enumerate(self.wphi_reads(254))]
                if st == c.f1s - 1: out += [dict(at=m + nm - c.dtail + 2 * k, chain=1, ins=g) for k, g in enumerate(self.f1_issue())]
                if st == c.f1s:
                    chk = [dict(at=m + c.f1c + 2 * k, ins=[it]) for k, it in enumerate(self.f1_check())]
                    out += chk
                    if c.bt: out += [dict(at=m + c.f1c + 26 + c.btsp * k, ins=g) for k, g in enumerate(self.btouch())]
                if st == 8:
                    if poison: out += self.paced(poison, m, 30)
                    self.bg0 = max(m + c.bgs, (m + c.f1c + 28) if c.f1s == 8 else 0)
                return out
            return f
        self.bg0 = 9999; self.wphi_addr(254)
        self.stream(mf, reads, [], {st: mksync(st) for st in range(10)}, name=name, bg=lambda m: (lambda u: m >= self.bg0 and u < 51))
        self.stamp(1); self.stamp(11, 2)
        self.typ = name
        if c.dly == (1 if name == 'KV' else 2): e(f's_sleep {c.dlyn}')
        self.ph2_pre()

    def ph2_pre(self):
        e = self.e
        mk_srd(e, SM, pB2, 1280); mk_srd(e, SPK, pOUT, 2048 * 1280)
        e(f"""s_mul_i32 s{sM0}, s{sNB}, 160
        s_and_b32 s{sM0+1}, s{sNB}, 1
        s_lshl_b32 s{sM0+2}, s{sM0+1}, 5
        s_add_u32 s{sM0+2}, s{sM0+2}, s{sM0}
        s_xor_b32 s{sM0+1}, s{sM0+1}, 1
        s_lshl_b32 s{sM0+1}, s{sM0+1}, 7
        s_add_u32 s{sM0+1}, s{sM0+1}, s{sM0}
        s_min_u32 s{sM0+3}, s{sW}, 1
        s_mul_i32 s{sM0+3}, s{sM0+3}, 1280
        s_sub_u32 s{SM+2}, 1280, s{sM0+3}
        s_lshr_b32 s{sM0+5}, s{sRB}, 1
        s_lshl_b32 s{sM0+3}, s{sM0+5}, 11
        s_add_u32 s{sM0+3}, s{sM0+3}, {F4}
        s_add_u32 s{sM0+4}, s{sM0+3}, 1024
        v_and_b32 v235, 7, v0
        v_lshlrev_b32 v235, 7, v235""")
        e("v_lshlrev_b32 v7, 4, v2\nv_lshlrev_b32 v8, 3, v2")
        e.vmop(f"buffer_load_dwordx4 v[224:227], v7, {srd(SM)}, s{sM0+2} offen", 'b2')
        e.vmop(f"buffer_load_dwordx4 v[228:231], v7, {srd(SM)}, s{sM0+2} offen offset:64", 'b2')
        e.vmop(f"buffer_load_dwordx2 v[232:233], v8, {srd(SM)}, s{sM0+1} offen", 'b2')
    def poll4a_issue(self): self.e.vmop(self.poll_issue(235, 252, 2, None, f"s{sM0+3}"), 'p4a')

    def poll4b_issue(self): self.e.vmop(self.poll_issue(235, 252, 2, None, f"s{sM0+4}"), 'p4b')
    def poll4b_check(self):
        e = self.e
        self.stamp(10)
        e.wait(vm='p4b')
        for l in self.poll_check([(235, 252, 2, f"s{sM0+4}")]): e(l)
        self.stamp(11)
        self.gate[1] = True; self.g_loads()
        for _ in range(self.c.burst): self.try_issue(self.m, True)
    def g_loads(self):
        e = self.e
        e(f"s_lshl_b32 s{sT0}, s{sRB}, 10\ns_add_u32 s{sT0}, s{sT0}, {GB}\nv_lshlrev_b32 v7, 4, v1")
        for jj in range(4):
            e(f"v_subrev_u32 v8, v6, v{236+jj}\nv_lshrrev_b32 v8, 2, v8\nv_add_u32 v8, v8, v7")
            e.vmop(f"buffer_load_dword v{241+jj}, v8, {srd(SWS)}, s{sT0} offen sc1", 'g')
    def bias2(self):
        e = self.e; BI = 96
        e.wait(vm='b2')
        for t in range(5):
            for h in range(2):
                s_ = 224 + 2 * t + h
                e(f"v_lshlrev_b32 v{BI+4*t+2*h}, 16, v{s_}\nv_and_b32 v{BI+4*t+2*h+1}, 0xffff0000, v{s_}")

    def ph2_begin(self, pool):
        e = self.e; c = self.c
        e.wait(vm='p4a')
        for l in self.poll_check([(235, 252, 2, f"s{sM0+3}")]): e(l)
        self.pool = pool; self.busy = []; self.Aloc = {}; self.Bl = dict(self.Bloc); self.Acur = {}
        groups = [(0, 1), (2, 3), (4, 5), (6, 7), (8, 9), (10, 11), (12, 13), (14, 15), (16, 17, 18)]
        self.mf = [(i, t, j) for g in groups for t in range(5) for j in range(4) for i in g]
        fA, lA, fB, lB = {}, {}, {}, {}
        for m, (i, t, j) in enumerate(self.mf):
            fA.setdefault((i, j), m); lA[(i, j)] = m; fB.setdefault((i, t), m); lB[(i, t)] = m
        self.lA, self.lB = lA, lB
        w = [('A', k, fA[k] if k[0] < 14 else (280 if k[0] < 16 else 320) - c.vlead - 1, lA[k]) for k in fA]
        w += [('S', k, fB[k], lB[k]) for k in fB if self.Bl[k] and self.Bl[k][0] == 'l']
        w += [('B', k, fB[k], lB[k]) for k in fB if self.Bl[k] is None]
        self.fB = fB
        self.work = sorted(w, key=lambda x: (x[2] // 40 * 40 + x[1][0] % 2 * 4 + x[1][1]) if (x[0] == 'A' and c.aord and x[1][0] < 14) else x[2]); self.gate = {0: True, 1: False, 2: False, 3: False}; self.Atxt = {}; self.lastiss = -99; self.m = 0
        for _ in range(c.a0): self.try_issue(0, True)

    def try_issue(self, m, force=False, nos=False):
        e = self.e; c = self.c; pool = self.pool
        cls = lambda i: 0 if i < 10 else (1 if i < 14 else 2 if i < 16 else 3)
        for w in self.work:
            kind, k, dl, last = w
            if kind == 'A' and not self.gate[cls(k[0])]: continue
            if kind == 'S' and (nos or dl - m > 16 or self.Border.index(k) in self.Bpend): continue
            if kind != 'S' and not force and dl - m >= 12 and e.t - e.tvm < (c.S2 if dl - m >= c.urg else c.S3): continue
            if kind == 'P':
                self.Bpend.remove(k); self.emit_items(self.B_take([k])[0]); self.work.remove(w); return True
            ok = [p for p in pool if p[1] > last and p not in self.busy and (p[0][0] == 'v' or kind != 'A' or k[0] < 14)]
            if not (kind == 'A' and k[0] >= 14): ok.sort(key=lambda p: p[0][0] == 'v' and m > 150)
            if len(ok) < (1 if dl - m <= 40 else 4 if kind == 'A' else 7): continue
            p = ok[0]; pool.remove(p); loc = p[0]; self.until[loc] = p[1]
            if kind == 'A':
                i, j = k; sr = sAT if i % 2 == 0 else sAT2
                if self.Acur.get(sr) != i:
                    e(self.soff(sr, i, 'A')); self.Acur[sr] = i
                e.vmop(f"buffer_load_dwordx4 {R(loc)}, v{236+j}, {srd(SWS)}, s{sB if c.xA == 1 and i < 14 else 41 if c.xA == 2 else sr} offen sc1", ('A', k)); self.Aloc[k] = loc
                self.Atxt[k] = self.soff(sT1, i, 'A').split("\n") + [ f"buffer_load_dwordx4 {R(loc)}, v{236+j}, {srd(SWS)}, s{sT1} offen sc1"]
            elif kind == 'B':
                self.emit_items(self.B_items(k, loc)); self.Bl[k] = loc
            else:
                e.wait(vm=('B', k))
                e.lgop(f"ds_read_b128 {R(loc)}, v234 offset:{self.Bl[k][1]*1024}", ('S', k)); self.Bl[k] = loc
            if kind != 'S': self.lastiss = m
            if c.verbose > 1: print(f'{kind}{k}@{m}->{dl}', end=' ')
            self.work.remove(w); return True
        return False

    def phase2(self, hooks):
        e = self.e; c = self.c
        ACC = 16; BI = 96; pool = self.pool; mf = self.mf; Bl = self.Bl; Aloc = self.Aloc
        mtrans = min(m for m, x in enumerate(mf) if x[0] >= 14)
        if c.verbose: print("B loads left for phase 2:", len(self.Bpend))
        hooks = {k: v for k, v in hooks.items() if k >= 0}
        for u in self.Bpend:
            k = self.Border[u]; self.work.append(('P', u, self.fB[k] - (20 if self.Bloc[k][0] == 'l' else 0), 0))
        self.work.sort(key=lambda x: (x[2] // 40 * 40 + x[1][0] % 2 * 4 + x[1][1]) if (x[0] == 'A' and c.aord and x[1][0] < 14) else x[2])
        e(f"s_add_u32 s{sT0}, s88, {L_BL}\nv_add_u32 v234, s{sT0}, v6")
        pool += [[('v', r), 999] for r in (224, 228)]
        if c.dly == (3 if self.typ == 'KV' else 4): e(f's_sleep {c.dlyn}')
        seen = set(); vchk = {280: (14, 15), 320: (16, 17, 18)}
        aq = []
        lastH = {}; firstO = {}; lastO = {}
        for m, (i, t, j) in enumerate(mf):
            if i < 14: lastH[(j, t)] = m
            else: firstO.setdefault((j, t), m); lastO[(j, t)] = m
        g0 = min(lastH.values()) - 10
        aq.append([g0, g0 + 4, ('wvm', 'g')])
        for jj in range(4): aq += [[g0, g0 + 8, ('x', self.tag_strip(241 + jj))]]
        for jj in range(4): aq += [[g0, g0 + 12, ('x', f"v_sub_f32 v{241+jj}, 1.0, v{241+jj}")]]
        for k in sorted(lastH, key=lambda k: lastH[k]):
            jj, tt = k; d = ACC + (jj * 5 + tt) * 4
            for q in range(4): aq.append([lastH[k] + 3, firstO[k] - 2, ('x', f"v_mul_f32 v{d+q}, v{241+jj}, v{d+q}")])
        adr = []
        for jj in range(1, 4):
            adr += [f"s_add_u32 s{sT0}, s{sW}, {jj}", f"s_and_b32 s{sT0}, s{sT0}, 3", f"s_mul_i32 s{sT0}, s{sT0}, 15360",
                    f"s_add_u32 s{sT0}, s{sT0}, {L_RED + (jj-1)*5120}", f"v_add_u32 v{8+jj}, s{sT0}, v6"]
        adr += [l.strip() for l in f"""s_mul_i32 s{sT0}, s{sW}, 15360
        s_add_u32 s{sT0}, s{sT0}, {L_RED}
        v_add_u32 v8, s{sT0}, v6
        s_lshl_b32 s{sT0}, s{sRB}, 2
        s_add_u32 s{sT0}, s{sT0}, s{sW}
        s_mul_i32 s{sT0}, s{sT0}, {16*1280}
        s_add_u32 s{sT3}, s{sT0}, s{sM0+2}
        s_add_u32 s{sT2}, s{sT0}, s{sM0+1}
        v_mul_u32_u24 v12, 1280, v1
        v_lshl_add_u32 v13, v2, 3, v12
        v_lshl_add_u32 v12, v2, 4, v12""".split("\n")]
        for l in adr: aq.append([c.adr0, 325, ('x', l)])
        for k in sorted(lastO, key=lambda k: lastO[k]):
            jj, tt = k
            if jj: aq.append([lastO[k] + 3, 999, ('lg', f"ds_write_b128 v{8+jj}, {vr(ACC+(jj*5+tt)*4)} offset:{tt*1024}", 'rw')])
        self.aq = aq
        for m, (i, t, j) in enumerate(mf):
            self.m = m
            if m == mtrans: self.stamp(7)
            assert (i, j) in Aloc and Bl[(i, t)] and Bl[(i, t)][0] != 'l', (m, i, t, j)
            assert not any(a[1] < m for a in aq), (m, aq[0])
            e.wait(vm=[('A', (i, j)), ('B', (i, t))], lg=('S', (i, t)))
            d = ACC + (j * 5 + t) * 4
            cc = vr(d) if (j, t) in seen else vr(BI + 4 * t); seen.add((j, t))
            e(f"v_mfma_f32_16x16x32_bf16 {vr(d)}, {R(Bl[(i, t)])}, {R(Aloc[(i, j)])}, {cc}")
            k0 = len(e.ins)
            for loc, last in ((Aloc[(i, j)], self.lA[(i, j)]), (Bl[(i, t)], self.lB[(i, t)])):
                if last == m: pool.append([loc, self.until.get(loc, 999) if self.until.get(loc, 999) > m else 999])
            if m == 40: pool.extend([[('v', BI + 4 * k), 999] for k in range(5)])
            if m == 200 and c.dly == (5 if self.typ == 'KV' else 6): e(f's_sleep {c.dlyn}')
            if m == c.o1: self.gate[2] = True
            if m == c.o2: self.gate[3] = True
            if m + 1 + c.vlead in vchk:
                mv = m + 1 + c.vlead; ks = [(ii, jj) for ii in vchk[mv] for jj in range(4)]
                assert all(k in Aloc for k in ks), (m, ks)
                vq = [('wvm', [('A', k) for k in ks])] + [('x', l) for l in self.valid_check(sum([self.Atxt[k] for k in ks], []), [Aloc[k][1] + q for k in ks for q in range(4)], 7)]
                if mv == 280: vq = [('st', 12, 1)] + vq + [('st', 13, 1), ('open',)]
                aq[:0] = [[m, mv - 1, it] for it in vq]
            if m in hooks: hooks[m]()
            self.try_issue(m)
            while any(w[2] - m < 4 for w in self.work) and self.try_issue(m): pass
            while True:
                av = [a for a in aq if a[0] <= m]
                if not av: break
                hurry = any(sum(1 for b in aq if b[1] <= a[1]) > 2 * (a[1] - m) for a in aq if a[1] < 999)
                a = min(av, key=lambda a: a[1])
                if len(e.ins) - k0 >= 2 and not hurry: break
                if a[2][0] == 'lg' and any(x.kind in ('dsw', 'dsr', 'vload', 'dma') for x in e.ins[k0:]): break
                aq.remove(a)
                if a[2][0] == 'open':
                    self.gate[3] = True
                    for _ in range(c.burst3): self.try_issue(m, True)
                elif a[2][0] == 'call': a[2][1]()
                else: self.emit_items([a[2]])
        assert not self.work, self.work
        self.stamp(8)
        for a in aq: self.emit_items([a[2]])
        e.wait(lg_all=True); e("s_barrier")
        for t in range(5):
            for s_ in range(3): e.lgop(f"ds_read_b128 {vr(116+(t*3+s_)*4)}, v8 offset:{s_*5120+t*1024}", ('rr', t))
        for t in range(5):
            e.wait(lg=('rr', t)); d = ACC + t * 4; r = 116 + t * 12
            e(f"""v_pk_add_f32 v[{d}:{d+1}], v[{d}:{d+1}], v[{r}:{r+1}]
            v_pk_add_f32 v[{d+2}:{d+3}], v[{d+2}:{d+3}], v[{r+2}:{r+3}]
            v_pk_add_f32 v[{r+4}:{r+5}], v[{r+4}:{r+5}], v[{r+8}:{r+9}]
            v_pk_add_f32 v[{r+6}:{r+7}], v[{r+6}:{r+7}], v[{r+10}:{r+11}]
            v_pk_add_f32 v[{d}:{d+1}], v[{d}:{d+1}], v[{r+4}:{r+5}]
            v_pk_add_f32 v[{d+2}:{d+3}], v[{d+2}:{d+3}], v[{r+6}:{r+7}]
            v_cvt_pk_bf16_f32 v{96+2*t}, v{d}, v{d+1}
            v_cvt_pk_bf16_f32 v{97+2*t}, v{d+2}, v{d+3}""")
            if t == 1: e.vmop(f"buffer_store_dwordx4 v[96:99], v12, {srd(SPK)}, s{sT3} offen {c.osc}", 'o')
            if t == 3: e.vmop(f"buffer_store_dwordx4 v[100:103], v12, {srd(SPK)}, s{sT3} offen offset:64 {c.osc}", 'o')
            if t == 4: e.vmop(f"buffer_store_dwordx2 v[104:105], v13, {srd(SPK)}, s{sT2} offen {c.osc}", 'o')
        self.stamp(9)
        e("s_endpgm")

    def build(self):
        e = self.e
        self.prologue()
        st = (list(e.vm), list(e.lg))
        self.until = {}
        self.prog_KV()
        e.vm, e.lg = list(st[0]), list(st[1])
        self.until = {}
        self.prog_QH()
        e("\n".join(self.tail))
        e("L_end:\ns_endpgm")
        body = e.finish()
        hdr = open('cdna_kernels/' + NAME + '.s.ref').read().split('; Override launch')[0]
        K = NAME + "_kernel"
        out = hdr + "; Generated by a hand-written Python generator (persistent fused kernel; see comments in the generator).\n"
        out += "; @launch grid=(256,1,1) block=(256,1,1) lds=163840\n"
        out += f'.amdgcn_target "amdgcn-amd-amdhsa--gfx950"\n.text\n.globl {K}\n.p2align 8\n.type {K},@function\n{K}:\n' + body
        out += f""".fill 64, 4, 0xbf800000
.section .rodata,"a"
.p2align 6
.amdhsa_kernel {K}
  .amdhsa_next_free_vgpr 512
  .amdhsa_next_free_sgpr 102
  .amdhsa_accum_offset 256
  .amdhsa_group_segment_fixed_size 0
  .amdhsa_kernarg_size 104
  .amdhsa_user_sgpr_count 2
  .amdhsa_user_sgpr_kernarg_segment_ptr 1
  .amdhsa_system_sgpr_workgroup_id_x 1
.end_amdhsa_kernel
"""
        return out

for k_, v_ in dict(rot=3, par=0, bk=0, dfr=2, kpl=80, khs=0, kb4=10, qb2=6, qb3=6, qfo=0, a0q=12, kp4=1, dly=0, dlyn=16, kvb=0, VC=64, cnt=0, cpf=(), aord=1, nochk=0, skip=0, fast=1, n1=0, quota=28, pkl=0, tp0=1, tst=(0, 0, 1), sp1=24, tlb=0, tlb2=0, pks=3, pke=0, f1s=8, bt=0, btsp=20, bgs=30, qleft=0, kpre=180, kord=0, kgb=1, tmask=7, wbl=0, exit_at=-1, only=0, dstamp=0, xsc='', wsc='', psc='nt', pss='sc1', xA=0, S=48, S2=32, urg=50, S3=0, kb3=8, xB=0, mix=0, perm=0, kf1=60, pe=20, pe2=20, dtail=4, qb0=14, qb1=22, se=10, a0=14, ap=4, osc='sc1 nt', touch=1, kvring=3, f1c=24,
                   f4at=20, pa=100, pb=144, p3=30, c3=58, r1=30, r2=70, rspan=24, kbeg=0, kb1=20, kpa=60, mo=79, p1q=100, c1q=150, Sa=64, kb2=6, kleft=99, Sg=100, o2=226, o1=210, vlead=14, adr0=205, burst3=12, sleep2=1, f4k=-1, p1=130, c1=158, burst=4).items():
    setattr(Cfg, k_, v_)

def generate(**kw):
    c = Cfg()
    for k, v in kw.items(): setattr(c, k, v)
    g = Gen(c); g.e.VC = c.VC; t = g.build()
    return t, g

if __name__ == "__main__":
    kw = {}
    for a_ in sys.argv[2:]:
        k, v = a_.split('='); kw[k] = tuple(map(int, v.split(','))) if ',' in v else int(v, 0) if v.lstrip('-')[0].isdigit() else v.replace('+', ' ')
    t, g = generate(**kw)
    open(sys.argv[1], 'w').write(t)
    print("instructions:", len(g.e.ins), "nops added:", g.e.nop_added)
```

```python
import sys, math
from emit import Emit
NAME = "gated_mix__linear_kernel_hedgehog__dense_activation_gelu__prompt"

TAG = 0x0
F1 = 0x18000
F2 = 0x2000; F3 = 0x6000; F4 = 0xa000; F5 = 0x12000
STAMP = 0x1000000
GB = 0x280000
PP = 0x40000; PSZ = 15360
FIN = 0x240000; FSZ = 15360
PB = 0x300000
A2 = 0x600000
OOB = 0x7ff00000

K1 = 1024
QH_ST = 46 * K1; KV_ST = 44 * K1
MISC = 154 * K1
L_WPHI = MISC; L_GATE = MISC + 3200; L_BIASKV = MISC + 4480; L_BIASQH = MISC + 3200
L_PACK = 138 * K1
WH0 = 114 * K1; WH5 = 74 * K1
L_PHI = 0; RSP = 352; L_V = 128 * RSP; RSV = 224
L_BL = 72 * K1
NL = 18
L_RED = 0
L_FIN = 64 * K1

sW = 3
SX, SQ, S1, SWS, SPK, SM = 4, 8, 12, 16, 20, 24
pX, pQKV, pPHI, pWO, pBX, pW1, pB1, pW2, pB2, pGATE, pOUT, pDBG, pWS = [32 + 2 * i for i in range(13)]
sTAG = 58
sMT, sHG, sRB, sNB = 60, 61, 62, 63
sE = 64
sT0, sT1, sT2, sT3, sT4, sT5 = 74, 75, 76, 77, 78, 79
sM0 = 80
sBT, sAT, sB9, sA9, sAT2 = 100, 101, 86, 87, 55
sAo, sBo, sA8, sB8 = 44, 45, 56, 57
sKW, sK1 = 89, 90
sF1 = 91
sPKD = 92
sA, sB = 96, 97
sC0, sC1 = 98, 99
sP0 = 28

PKA = 200
TB = 10; TBM = (1 << TB) - 1; sTB = 58
AW = 204
def srd(r): return f"s[{r}:{r+3}]"
def vr(r, n=4): return f"v[{r}:{r+n-1}]" if n > 1 else f"v{r}"
def ar(r, n=4): return f"a[{r}:{r+n-1}]"
def R(loc, n=4): return (vr if loc[0] == 'v' else ar)(loc[1], n)
def fl(x):
    import struct
    return hex(struct.unpack('<I', struct.pack('<f', x))[0])

class Cfg:
    rot = 1; map2 = 1; stamps = 0; LA = 12; spin = 200000; codepf = 1; lag = 2; th1 = 2; th2 = 4; minlead = 4; verbose = 0; sleep = 1

sKA, sKB = 0, 1
def mk_srd(e, r, p, nbytes):
    e(f"s_mov_b32 s{r}, s{p}\ns_and_b32 s{r+1}, s{p+1}, 0xffff\ns_mov_b32 s{r+2}, {nbytes}\ns_mov_b32 s{r+3}, 0x20000")

class Gen:
    def __init__(self, cfg):
        self.c = cfg; self.e = Emit(); self.tail = []; self.uid = 0; self.nstamp = 0
    def record(self, fn):
        real = self.e
        class Rec:
            def __init__(r): r.items = []; r.lg = []; r.vm = []
            def __call__(r, t):
                for l in t.strip("\n").split("\n"):
                    if l.strip(): r.items.append(('x', l.strip()))
            def vmop(r, t, tag=None): r.items.append(('vm', t, tag))
            def lgop(r, t, tag=None): r.items.append(('lg', t, tag))
        rec = Rec(); self.e = rec
        try: fn()
        finally: self.e = real
        return rec.items
    def cnt(self):
        if not self.c.cnt: return [], []
        self.ncnt = getattr(self, 'ncnt', 0) + 1; k = self.ncnt - 1
        post = ["s_load_dwordx2 s[46:47], s[40:41], 88", f"s_sub_u32 s54, {self.c.spin}, s54", "s_lshl_b32 s54, s54, 12", "s_add_u32 s54, s54, 1", "s_waitcnt lgkmcnt(0)",
                "v_mov_b32 v14, s54", "v_mov_b32 v15, 0", "s_mov_b64 exec, 1", f"global_atomic_add v15, v14, s[46:47] offset:{k*4}", "s_mov_b64 exec, -1"]
        return [], post
    def lab(self, p):
        self.uid += 1; return f"L_{p}_{self.uid}"
    def stamp(self, i, grp=1):
        if self.c.dstamp and grp == 1:
            slot = self.dmap.get(i)
            if slot is None: return
            e = self.e
            e(f"s_memrealtime s[{sC0}:{sC1}]\ns_load_dwordx2 s[46:47], s[40:41], 88\ns_waitcnt lgkmcnt(0)\nv_mov_b32 v14, s{sC0}\nv_mov_b32 v15, 0"); e.lg = []
            e("s_cmp_eq_u32 s3, 0\ns_cselect_b64 exec, 1, 0")
            L = self.lab('ds'); e(f"s_cbranch_execz {L}")
            e(f"global_atomic_umax v15, v14, s[46:47] offset:{slot*4}")
            if i == 0: e(f"v_mov_b32 v14, s54\nglobal_atomic_umax v15, v14, s[46:47] offset:4\nv_not_b32 v14, v14\nglobal_atomic_umax v15, v14, s[46:47] offset:0")
            e(f"{L}:\ns_mov_b64 exec, -1")
            return
        if not self.c.stamps or (i and self.c.stamps != grp): return
        if self.c.only and i not in (0, self.c.only): return
        e = self.e
        e(f"s_memrealtime s[{sC0}:{sC1}]\ns_memtime s[46:47]\ns_waitcnt lgkmcnt(0)"); e.lg = []
        e(f"v_mov_b32 v14, s{sC0}\nv_mov_b32 v15, s46")
        e(f"s_lshl_b32 s{sC0}, s2, 2\ns_add_u32 s{sC0}, s{sC0}, s{sW}\ns_lshl_b32 s{sC0}, s{sC0}, 7\ns_add_u32 s{sC0}, s{sC0}, {STAMP}")
        e.vmop(f"buffer_store_dwordx2 v[14:15], v245, {srd(SWS)}, s{sC0} offen offset:{i*8}", 'stamp')
        if self.c.exit_at == i and grp == 1: e("s_endpgm")
        if i == 0:
            e(f"v_mov_b32 v14, s54\nv_mov_b32 v15, s40")
            e.vmop(f"buffer_store_dwordx2 v[14:15], v245, {srd(SWS)}, s{sC0} offen offset:{15*8}", 'stamp')

    def pstamp(self, i):
        if self.c.stamps == 3: self.e(f"s_memtime s[100:101]\ns_waitcnt lgkmcnt(0)\nv_mov_b32 v{(248,249,250,251,235)[i]}, s100")
    def pstamp_flush(self):
        if self.c.stamps != 3: return
        e = self.e
        e(f"s_lshl_b32 s{sC0}, s2, 2\ns_add_u32 s{sC0}, s{sC0}, s{sW}\ns_lshl_b32 s{sC0}, s{sC0}, 7\ns_add_u32 s{sC0}, s{sC0}, {STAMP}")
        for i in range(5): e.vmop(f"buffer_store_dword v{(248,249,250,251,235)[i]}, v245, {srd(SWS)}, s{sC0} offen offset:{(2+i)*8+4} sc1", 'stamp')
    def dump(self, name, regs):
        if getattr(self.c, 'dbg', None) != name: return
        e = self.e
        e(f"s_lshl_b32 s{sBT}, s2, 2\ns_add_u32 s{sBT}, s{sBT}, s{sW}\ns_lshl_b32 s{sBT}, s{sBT}, 14\ns_add_u32 s{sBT}, s{sBT}, 0x2000000\nv_lshlrev_b32 v7, 2, v0")
        for i, r in enumerate(regs):
            e.vmop(f"buffer_store_dword v{r}, v7, {srd(SWS)}, s{sBT} offen offset:{(i%16)*256}", 'dbg')
            if i % 16 == 15: e(f"s_add_u32 s{sBT}, s{sBT}, 4096")
        e.wait(vm='dbg'); self.Bcur = None

    def poll_issue(self, vaddr, vdst, n, tag, soff="0"):
        suf = {2: 'dwordx2', 4: 'dwordx4'}[n]
        return f"buffer_load_{suf} {vr(vdst, n)}, v{vaddr}, {srd(SWS)}, {soff} offen sc1"
    def poll_check(self, loads):
        Ls, Lb = self.lab('slow'), self.lab('back')
        cmps = []; ors = []; k = 0
        prs = ['vcc', 's[28:29]', 's[30:31]', 's[46:47]']
        for (va, vd, n, so) in loads:
            for h in range(n // 2):
                cmps.append(f"v_cmp_ne_u64 {prs[k]}, s[{sTAG}:{sTAG+1}], v[{vd+2*h}:{vd+2*h+1}]")
                if k: ors.append(f"s_or_b64 vcc, vcc, {prs[k]}")
                k += 1
        cmps = cmps[::-1] if False else cmps
        fast = cmps + ors + [f"s_cbranch_vccnz {Ls}\n{Lb}:" if not (self.c.nochk & 1) else f"{Lb}:"]
        t = [f"{Ls}:", f"s_mov_b32 s54, {self.c.spin}", f"{Ls}_l:"]
        if self.c.sleep: t.append(f"s_sleep {self.c.sleep}")
        for (va, vd, n, so) in loads: t.append(self.poll_issue(va, vd, n, None, so))
        t += ["s_waitcnt vmcnt(0)"] + cmps + ors
        t += ["s_sub_u32 s54, s54, 1", f"s_cbranch_vccz {Ls}_x", "s_cmp_lg_u32 s54, 0", f"s_cbranch_scc1 {Ls}_l", f"{Ls}_x:"] + self.cnt()[1] + ["s_nop 4", f"s_branch {Lb}"]
        self.tail += t
        return fast
    def tag_check(self, reload, regs, acc):
        Ls, Lb = self.lab('slow'), self.lab('back')
        regs = list(regs); L = [f"v_xor_b32 v{acc}, s{sTB}, v{regs[0]}"]
        for r in regs[1:]: L.append(f"v_bitop3_b32 v{acc}, v{r}, s{sTB}, v{acc} bitop3:0xbe")
        L += [f"v_and_b32 v{acc}, {TBM}, v{acc}", f"v_cmp_ne_u32 vcc, 0, v{acc}"]
        t = [f"{Ls}:", f"s_mov_b32 s54, {self.c.spin}", f"{Ls}_l:"]
        if self.c.sleep: t.append(f"s_sleep {self.c.sleep2}")
        t += list(reload) + ["s_waitcnt vmcnt(0)"] + L
        t += ["s_sub_u32 s54, s54, 1", f"s_cbranch_vccz {Ls}_x", "s_cmp_lg_u32 s54, 0", f"s_cbranch_scc1 {Ls}_l", f"{Ls}_x:"] + self.cnt()[1] + ["s_nop 4", f"s_branch {Lb}"]
        self.tail += t
        return L + [f"s_cbranch_vccnz {Ls}\n{Lb}:" if not (self.c.nochk & 2) else f"{Lb}:"]
    def tag_put(self, r, src=None): return f"v_bfi_b32 v{r}, s42, v246, v{r if src is None else src}"
    def tag_strip(self, r): return f"v_and_b32 v{r}, {hex(0xffffffff ^ TBM)}, v{r}"
    def valid_check(self, reload, regs, acc):
        Ls, Lb = self.lab('slow'), self.lab('back')
        regs = list(regs); L = [f"v_max3_u32 v{acc}, v{regs[0]}, v{regs[1]}, v{regs[2 if len(regs) > 2 else 1]}"]
        r = regs[3:]
        for i in range(0, len(r), 2): L.append(f"v_max3_u32 v{acc}, v{acc}, v{r[i]}, v{r[min(i+1, len(r)-1)]}")
        L.append(f"v_cmp_eq_u32 vcc, -1, v{acc}")
        t = [f"{Ls}:", f"s_mov_b32 s54, {self.c.spin}", f"{Ls}_l:"]
        if self.c.sleep: t.append(f"s_sleep {self.c.sleep2}")
        t += list(reload) + ["s_waitcnt vmcnt(0)"] + L
        t += ["s_sub_u32 s54, s54, 1", f"s_cbranch_vccz {Ls}_x", "s_cmp_lg_u32 s54, 0", f"s_cbranch_scc1 {Ls}_l", f"{Ls}_x:"] + self.cnt()[1] + ["s_nop 4", f"s_branch {Lb}"]
        self.tail += t
        return L + [f"s_cbranch_vccnz {Ls}\n{Lb}:" if not (self.c.nochk & 4) else f"{Lb}:"]
    def flag_store(self, vaddr, vtag, soff="0"):
        return f"buffer_store_dwordx2 {vr(vtag, 2)}, v{vaddr}, {srd(SWS)}, {soff} offen sc1"

    def stream(self, mf, reads, fill, syncs=None, LA=None, name='', bg=None):
        e = self.e; LA = LA or self.c.LA
        reads = sorted(reads, key=lambda r: r[1]); rp = 0; synced = -1 if syncs else 99
        fq = sorted(fill, key=lambda f: f['at'])
        self.sid = getattr(self, 'sid', 0) + 1; sid = self.sid
        start = len(e.ins)
        def add_fill(items):
            lo = max([f['at'] for f in fq if f.get('chain')], default=-99)
            for f in items:
                if f.get('chain'): f['at'] = lo = max(f['at'], lo)
            fq.extend(items); fq.sort(key=lambda f: f['at'])
        def rd():
            nonlocal rp
            e.lgop(reads[rp][0], ('rd', sid, rp)); rp += 1
        if syncs: add_fill(syncs[0](0)); synced = 0
        while rp < len(reads) and reads[rp][1] < 8 and reads[rp][2] <= synced: rd()
        last_read = -99
        dl_of = {('rd', sid, i): r[1] for i, r in enumerate(reads)}
        def due(m): return [t for t in e.lg if t in dl_of and dl_of[t] <= m]
        ismem = lambda it: it[0] in ('vm', 'lg')
        for m in range(len(mf)):
            d = due(m)
            if d: e.wait(lg=d)
            e(mf[m])
            can = lambda: rp < len(reads) and reads[rp][2] <= synced and reads[rp][3] <= m and len(e.lg) < 15
            lead = lambda: reads[rp][1] - m
            if syncs and rp < len(reads) and reads[rp][2] > synced and m - last_read >= self.c.lag and lead() <= LA:
                synced = reads[rp][2]
                assert not any(it[0] == 'vm' and it[2] == ('S', synced) for f in fq for it in f['ins'])
                add_fill(syncs[synced](m + 1))
                if can(): rd(); last_read = m
                continue
            w = 1 if due(m + 1) else 0
            n = w; mem = 0
            if fq and fq[0]['at'] <= m:
                f = fq[0]
                if f.get('atomic'):
                    self.emit_items(f['ins']); n += len(f['ins']); mem += sum(map(ismem, f['ins'])); fq.pop(0)
                elif ismem(f['ins'][0]):
                    self.emit_items([f['ins'].pop(0)]); n += 1; mem += 1
                    if not f['ins']: fq.pop(0)
            if bg and mem == 0:
                k0 = len(e.ins)
                if self.bg_try(bg(m)): n += len(e.ins) - k0; mem += 1
            if can() and lead() <= LA and (mem == 0 or (lead() <= LA - self.c.th1 and not w)):
                rd(); n += 1; mem += 1; last_read = m
            if can() and mem == 1 and not w and lead() <= LA - self.c.th2:
                rd(); n += 1; mem += 1
            while can() and lead() <= self.c.minlead: rd(); n += 1; mem += 1; last_read = m
            while (n < 2 or (fq and fq[0]['at'] <= m - 2 and n < 3)) and fq and fq[0]['at'] <= m + 2 and not fq[0].get('atomic') and not ismem(fq[0]['ins'][0]):
                f = fq[0]; self.emit_items([f['ins'].pop(0)]); n += 1
                if not f['ins']: fq.pop(0)
            assert rp >= len(reads) or reads[rp][1] > m + 1, (m, reads[rp])
        for f in fq: self.emit_items(f['ins'])
        if self.c.verbose:
            tot = 0; g = None
            for i in e.ins[start:]:
                if i.label: continue
                if i.kind == 'mfma':
                    if g is not None: tot += max(16, g)
                    g = 8; prevmem = False
                elif g is not None:
                    mm = i.kind in ('dsr', 'dsw', 'vload', 'vstore', 'dma')
                    g += 8 if (mm and prevmem) else 4; prevmem = mm
            print(f"stream {name}: {len(mf)} mfma, est clks {tot} (ideal {16*len(mf)})")

    def prologue(self):
        e = self.e; c = self.c
        if c.stamps or c.dstamp: e("s_memrealtime s[54:55]\ns_memtime s[98:99]")
        e(f"""s_cmp_ge_u32 s2, 256
        s_cbranch_scc1 L_end
        s_load_dwordx16 s[32:47], s[0:1], 0
        s_load_dwordx4 s[48:51], s[0:1], 64
        s_load_dwordx2 s[52:53], s[0:1], 80
        s_load_dwordx2 s[56:57], s[0:1], 96""")
        if c.codepf:
            e(f"""s_getpc_b64 s[{sA}:{sB}]
            L_pf:
            s_lshr_b32 s{sT0}, s2, 3
            s_lshl_b32 s{sT0}, s{sT0}, 11
            v_lshrrev_b32 v1, 4, v0
            v_lshlrev_b32 v1, 7, v1
            v_add_u32 v1, s{sT0}, v1
            v_cmp_gt_u32 vcc, L_end-L_pf, v1
            v_cndmask_b32 v1, 0, v1, vcc""")
            e.vmop(f"global_load_dword v255, v1, s[{sA}:{sB}]", 'pf')
        e(f"""v_lshrrev_b32 v1, 6, v0
        v_and_b32 v0, 63, v0
        s_and_b32 s{sT0}, s2, 7
        v_readfirstlane_b32 s{sW}, v1
        s_lshr_b32 s{sT1}, s2, 3
        s_lshr_b32 s{sT2}, s{sT0}, 1
        s_and_b32 s{sT3}, s{sT1}, 3
        s_lshl_b32 s{sMT}, s{sT2}, 2
        s_add_u32 s{sMT}, s{sMT}, s{sT3}
        s_lshr_b32 s{sT4}, s{sT1}, 2
        s_and_b32 s{sHG}, s{sT0}, 1
        s_lshl_b32 s{sHG}, s{sHG}, 2
        s_and_b32 s{sT5}, s{sT4}, 3
        s_add_u32 s{sHG}, s{sHG}, s{sT5}""")
        if c.rot == 2:
            e(f"""s_mul_i32 s{sE}, s{sT2}, 5
            s_lshr_b32 s{sE}, s{sE}, 1
            s_and_b32 s{sT5}, s{sT0}, 1
            s_mul_i32 s{sT5}, s{sT5}, 5
            s_add_u32 s{sE}, s{sE}, s{sT5}
            s_cmp_ge_u32 s{sE}, 10
            s_cselect_b32 s{sT5}, 10, 0
            s_sub_u32 s{sE}, s{sE}, s{sT5}
            s_lshl_b32 s{sE}, s{sE}, 7""")
        elif c.rot == 3:
            e(f"s_xor_b32 s{sE}, s{sT3}, s{sT4}\ns_and_b32 s{sE}, s{sE}, 1\ns_lshl_b32 s{sE}, s{sE}, 7")
        else: e(f"s_mov_b32 s{sE}, 0")
        e(f"""v_and_b32 v1, 15, v0
        v_lshrrev_b32 v2, 4, v0
        v_bfe_u32 v3, v0, 2, 2
        v_and_b32 v4, 3, v0
        v_lshrrev_b32 v5, 3, v0
        v_lshlrev_b32 v6, 4, v0
        s_lshl_b32 s{sT2}, s{sMT}, 2
        s_add_u32 s{sT2}, s{sT2}, s{sW}
        s_mul_i32 s{sT2}, s{sT2}, {32*1280}
        v_xor_b32 v7, v2, v0
        v_and_b32 v7, 7, v7
        v_lshlrev_b32 v7, 4, v7
        v_mul_u32_u24 v8, 1280, v5
        v_add_u32 v8, s{sT2}, v8
        v_add_u32 v208, v8, v7
        v_xor_b32 v7, 64, v7
        v_add_u32 v209, v8, v7
        v_add_u32 v209, {10240-1024}, v209
        v_add_u32 v210, {2*(10240-1024)}, v208
        v_add_u32 v211, {2*(10240-1024)}, v209
        s_lshl_b32 s{sM0}, s{sW}, 12
""")
        if c.rot == 3: e(f"s_xor_b32 s{sE+1}, s{sE}, 128")
        else: e(f"s_add_u32 s{sE+1}, s{sE}, 128\ns_cmp_eq_u32 s{sE+1}, 1280\ns_cselect_b32 s{sE+1}, 0, s{sE+1}")
        for r, n in ((SX, 2048 * 1280), (SQ, 640 * 3840), (S1, 640 * 3456), (SM, 3456)): e(f"s_mov_b32 s{r+2}, {n}\ns_mov_b32 s{r+3}, 0x20000")
        e(f"s_bitcmp1_b32 s2, 7\ns_cbranch_scc1 L_QH")

    def kernarg_wait(self):
        e = self.e
        e("s_waitcnt lgkmcnt(0)"); self.pstamp(0)
        e(f"s_load_dwordx2 s[{sTAG}:{sTAG+1}], s[{pWS}:{pWS+1}], {TAG}")
        if self.c.stamps: e('s_mov_b32 s40, s98')
        if self.c.dstamp or self.c.cnt: e('s_mov_b64 s[40:41], s[0:1]')
        for r, p in ((SX, pX), (SM, pB1), (SQ, pQKV), (S1, pW1)): e(f"s_mov_b32 s{r}, s{p}\ns_and_b32 s{r+1}, s{p+1}, 0xffff")

    def pack_setup(self):
        e = self.e
        e(f"""s_lshl_b32 s{sT0}, s2, 2
        s_add_u32 s{sT0}, s{sT0}, s{sW}
        s_mul_i32 s{sT2}, s{sT0}, 886
        s_lshr_b32 s{sT2}, s{sT2}, 16
        s_mul_i32 s{sT1}, s{sT2}, 74
        s_sub_u32 s{sT1}, s{sT0}, s{sT1}
        s_sub_u32 s{sT3}, s{sT1}, 54
        s_and_b32 s{sT3}, s{sT3}, 63
        s_mul_i32 s{sT4}, s{sT3}, 52
        s_lshr_b32 s{sT4}, s{sT4}, 8
        s_mul_i32 s{sT5}, s{sT4}, 5
        s_sub_u32 s{sT5}, s{sT3}, s{sT5}
        s_mul_i32 s{sBT}, s{sT4}, 160
        s_lshr_b32 s{sAT}, s{sT5}, 1
        s_mul_i32 s{sAT}, s{sAT}, 80
        s_and_b32 s{sT3}, s{sT5}, 1
        s_lshl_b32 s{sT3}, s{sT3}, 3
        s_add_u32 s{sAT}, s{sAT}, s{sT3}
        s_cmp_eq_u32 s{sT5}, 4
        s_cselect_b32 s{sAT}, 16, s{sAT}
        s_cselect_b32 s{sT3}, 80, 4
        s_add_u32 s{sBT}, s{sBT}, s{sAT}
        s_lshl_b32 s{sAT}, s{sT1}, 5
        s_cmp_lt_u32 s{sT1}, 54
        s_cselect_b32 s{sBT}, s{sAT}, s{sBT}
        s_cselect_b32 s{sT3}, 16, s{sT3}""")
        self.csel(sT4, 4 * 1280 - 1024, 20 * 1280 - 1024)
        self.csel(SPK + 2, 1728 * 1280, 640 * 1280)
        e(f"""s_mov_b32 s{SPK+3}, 0x20000
        s_cmp_lt_u32 s{sT0}, 740
        s_cselect_b32 s{SPK+2}, s{SPK+2}, 0
        s_mul_i32 s{sBT}, s{sBT}, 1280
        s_lshl_b32 s{sAT}, s{sT2}, 7
        s_add_u32 s32, s{sBT}, s{sAT}
        s_add_u32 s33, s32, s{sT4}
        s_add_u32 s34, s33, s{sT4}
        s_add_u32 s35, s34, s{sT4}
        v_lshrrev_b32 v9, 5, v0
        v_mul_lo_u32 v9, v9, s{sT3}
        v_and_b32 v10, 3, v5
        v_add_u32 v9, v9, v10
        v_mul_u32_u24 v9, 1280, v9
        v_and_b32 v10, 7, v0
        v_lshl_add_u32 v252, v10, 4, v9
        v_lshlrev_b32 v9, 10, v2
        v_lshl_add_u32 v9, v3, 7, v9
        v_add_u32 v9, s{sM0}, v9
        v_add_u32 v9, {L_PACK}, v9""")
        for g in range(2):
            e(f"""s_lshl_b32 s{sT3}, s{sT2}, 1
            s_add_u32 s{sT3}, s{sT3}, {g}
            s_mul_i32 s{sT4}, s{sT3}, 52
            s_lshr_b32 s{sT4}, s{sT4}, 8
            s_mul_i32 s{sT5}, s{sT4}, 5
            s_sub_u32 s{sT5}, s{sT3}, s{sT5}
            s_cmp_eq_u32 s{sT5}, 2
            s_cselect_b32 s{sT3}, 3, 4
            s_cselect_b32 s{sAT}, 32, 8
            v_lshlrev_b32 v10, s{sT3}, v4
            v_add_u32 v{PKA+2*g}, v9, v10
            v_add_u32 v{PKA+1+2*g}, s{sAT}, v{PKA+2*g}
            s_mul_i32 s{sT4}, s{sT4}, 740
            s_mul_i32 s{sAT}, s{sT1}, 5
            s_add_u32 s{sT4}, s{sT4}, s{sAT}""")
            for a_ in range(2):
                d = sPKD + 2 * g + a_
                e(f"""s_lshl_b32 s{sT3}, s{sT5}, 1
                s_add_u32 s{sT3}, s{sT3}, {a_}
                s_add_u32 s{d}, s{sT3}, 364
                s_cmp_eq_u32 s{sT3}, 5
                s_cselect_b32 s{d}, 374, s{d}
                s_cmp_lt_u32 s{sT3}, 5
                s_cselect_b32 s{d}, s{sT3}, s{d}
                s_add_u32 s{d}, s{d}, s{sT4}
                s_lshl_b32 s{d}, s{d}, 10
                s_add_u32 s{d}, s{d}, {PB}
                s_cmp_lt_u32 s{sT0}, 740
                s_cselect_b32 s{d}, s{d}, {OOB}""")
        e(f"""s_cmp_lt_u32 s{sT1}, 54
        s_cselect_b32 s{SPK}, s{pW2}, s{pWO}
        s_cselect_b32 s{SPK+1}, s{pW2+1}, s{pWO+1}
        s_and_b32 s{SPK+1}, s{SPK+1}, 0xffff""")

    def common_setup(self):
        e = self.e; c = self.c
        e(f"s_and_b32 s{sT0}, s2, 7\ns_lshr_b32 s{sT1}, s2, 3\ns_lshr_b32 s{sT2}, s{sT0}, 1\ns_and_b32 s{sT3}, s{sT1}, 3\ns_lshr_b32 s{sT4}, s{sT1}, 2")
        if c.mix: e(f"s_lshr_b32 s{sT5}, s{sT1}, 2\ns_and_b32 s{sT5}, s{sT5}, 4\ns_xor_b32 s{sT5}, s{sT5}, s{sT1}" if c.map2 else
                    f"s_lshr_b32 s{sT5}, s{sT1}, 4\ns_xor_b32 s{sT5}, s{sT5}, s{sT1}")
        if c.map2:
            if c.mix: e(f"s_and_b32 s{sRB}, s{sT5}, 7\ns_bfe_u32 s{sT5}, s{sT1}, 0x20002")
            else: e(f"s_and_b32 s{sRB}, s{sT1}, 7\ns_lshr_b32 s{sT5}, s{sT1}, 3")
            e(f"""s_lshl_b32 s{sT2}, s{sT2}, 3
            s_add_u32 s{sRB}, s{sRB}, s{sT2}
            s_and_b32 s{sNB}, s{sT0}, 1
            s_lshl_b32 s{sNB}, s{sNB}, 2
            s_add_u32 s{sNB}, s{sNB}, s{sT5}""")
        else:
            if c.mix: e(f"s_bfe_u32 s{sNB}, s{sT1}, 0x30001\ns_and_b32 s{sT3}, s{sT5}, 1\ns_lshr_b32 s{sT5}, s{sT1}, 4\ns_bfe_u32 s{sT4}, s{sT1}, 0x10001\ns_xor_b32 s{sT5}, s{sT5}, s{sT4}\ns_and_b32 s{sT3}, s{sT1}, 1\ns_lshl_b32 s{sT5}, s{sT5}, 1\ns_add_u32 s{sT3}, s{sT3}, s{sT5}")
            else: e(f"s_mov_b32 s{sNB}, s{sT4}")
            e(f"s_lshl_b32 s{sRB}, s{sT0}, 2\ns_add_u32 s{sRB}, s{sRB}, s{sT3}")
        mk_srd(e, SWS, pWS, 0x10000000); mk_srd(e, SM, pPHI, 32 * 800)
        e(f"""s_lshl_b32 s{sT3}, s{sHG}, 2
        s_add_u32 s{sT3}, s{sT3}, s{sW}
        s_mul_i32 s36, s{sT3}, 800
        s_mul_i32 s37, s{sW}, 800
        s_add_u32 s37, s37, {L_WPHI}""")
        for i in range(2, 10):
            if c.rot == 3: e(f"s_add_u32 s{sE+i}, s{sE+i-2}, 256")
            else: e(f"s_add_u32 s{sE+i}, s{sE+i-1}, 128\ns_cmp_eq_u32 s{sE+i}, 1280\ns_cselect_b32 s{sE+i}, 0, s{sE+i}")
        e(f"""s_mul_i32 s{sB}, s{sNB}, 74
        s_add_u32 s{sB}, s{sB}, s{sW}
        s_mul_i32 s{sB}, s{sB}, 5120
        s_add_u32 s{sB}, s{sB}, {PB}
        s_mul_i32 s{sA}, s{sRB}, 74
        s_add_u32 s{sA}, s{sA}, s{sW}
        s_lshl_b32 s{sA}, s{sA}, 12
        s_add_u32 s{sA}, s{sA}, {A2}
        s_xor_b32 s{sT0}, s{sRB}, s{sNB}
        s_and_b32 s{sT0}, s{sT0}, {min(c.par, 1)}
        s_mul_i32 s{sT1}, s{sT0}, {4*5120}
        s_add_u32 s{sB8}, s{sB}, {32*5120}
        s_add_u32 s{sB8}, s{sB8}, s{sT1}
        s_add_u32 s{sB9}, s{sB}, {36*5120}
        s_sub_u32 s{sB9}, s{sB9}, s{sT1}
        s_mul_i32 s{sT1}, s{sT1}, {max(c.par, 1)}
        s_sub_u32 s{sBo}, s{sB}, s{sT1}
        s_add_u32 s{sB}, s{sB}, s{sT1}
        s_lshl_b32 s{sT1}, s{sT0}, 14
        s_add_u32 s{sA8}, s{sA}, {32*4096}
        s_add_u32 s{sA8}, s{sA8}, s{sT1}
        s_add_u32 s{sA9}, s{sA}, {36*4096}
        s_sub_u32 s{sA9}, s{sA9}, s{sT1}
        s_mul_i32 s{sT1}, s{sT1}, {max(c.par, 1)}
        s_sub_u32 s{sAo}, s{sA}, s{sT1}
        s_add_u32 s{sA}, s{sA}, s{sT1}
        s_lshr_b32 s{sT1}, s{sW}, 1
        s_and_b32 s{sT3}, s{sT1}, s{sT0}
        s_cselect_b32 s{sB8}, {OOB}, s{sB8}
        s_cselect_b32 s{sA8}, {OOB}, s{sA8}
        s_andn2_b32 s{sT3}, s{sT1}, s{sT0}
        s_cselect_b32 s{sB9}, {OOB}, s{sB9}
        s_cselect_b32 s{sA9}, {OOB}, s{sA9}
        s_mul_i32 s88, s{sW}, {NL*1024}
        v_add_u32 v240, 4096, v6""")
        for j in range(4):
            e(f"s_add_u32 s{sT3}, s{sW}, {j}\ns_and_b32 s{sT3}, s{sT3}, 3\ns_lshl_b32 s{sT3}, s{sT3}, 10\nv_add_u32 v{236+j}, s{sT3}, v6")
        e(f"""s_lshl_b32 s{sF1}, s2, 7
        s_add_u32 s{sF1}, s{sF1}, {F1}
        s_cmp_eq_u32 s{sW}, 0
        s_cselect_b32 s{sF1}, s{sF1}, {OOB}
        v_mov_b32 v245, {OOB}
        v_cmp_eq_u32 vcc, 0, v0
        v_cndmask_b32 v245, v245, 0, vcc""")

    def touch(self):
        e = self.e; c = self.c
        e(f"""s_cmp_eq_u32 s{sW}, 0
        s_cselect_b64 s[28:29], s[{SX}:{SX+1}], s[{S1}:{S1+1}]
        s_cselect_b32 s30, s{SX+2}, s{S1+2}
        s_cselect_b32 s{sT0}, 12, 0
        s_add_u32 s{sT0}, s{sT0}, 68
        s_cmp_eq_u32 s{sW}, 1
        s_cselect_b64 s[28:29], s[{SQ}:{SQ+1}], s[28:29]
        s_cselect_b32 s30, s{SQ+2}, s30
        s_cselect_b32 s{sT0}, 75, s{sT0}
        s_lshl_b32 s{sT1}, 1, s{sW}
        s_and_b32 s{sT1}, s{sT1}, {c.tmask}
        s_cselect_b32 s30, s30, 0
        s_mov_b32 s31, 0x20000
        s_mul_i32 s{sT1}, s{sT0}, s2
        s_lshl_b32 s{sT1}, s{sT1}, 7
        v_lshlrev_b32 v10, 7, v0
        v_add_u32 v11, 64, v0
        v_cmp_gt_u32 vcc, s{sT0}, v11
        v_lshlrev_b32 v11, 7, v11
        v_mov_b32 v14, {OOB}
        v_cndmask_b32 v11, v14, v11, vcc""")
        e.vmop(f"buffer_load_dword v255, v10, s[28:31], s{sT1} offen", 'pf')
        e.vmop(f"buffer_load_dword v255, v11, s[28:31], s{sT1} offen", 'pf')

    def touch3_setup(self):
        e = self.e
        e(f"""s_cmp_eq_u32 s{sW}, 0
        s_cselect_b64 s[28:29], s[{SX}:{SX+1}], s[{S1}:{S1+1}]
        s_cselect_b32 s30, s{SX+2}, s{S1+2}
        s_cselect_b32 s{sT0}, 24, 21
        s_mov_b32 s44, {64*3456}
        s_cselect_b32 s44, 128, s44
        s_cselect_b64 vcc, -1, 0
        s_cmp_eq_u32 s{sW}, 1
        s_cselect_b64 s[28:29], s[{SQ}:{SQ+1}], s[28:29]
        s_cselect_b32 s30, s{SQ+2}, s30
        s_cselect_b32 s{sT0}, 23, s{sT0}
        s_cselect_b32 s44, {64*3840}, s44
        s_cmp_eq_u32 s{sW}, 3
        s_cselect_b32 s30, 0, s30
        s_mov_b32 s31, 0x20000
        s_mul_i32 s{sT1}, s{sT0}, s2
        v_add_u32 v10, s{sT1}, v0
        v_mul_u32_u24 v11, 21846, v10
        v_lshrrev_b32 v11, 16, v11
        v_mul_u32_u24 v11, {1280-384}, v11
        v_lshlrev_b32 v10, 7, v10
        v_add_u32 v11, v11, v10
        v_cndmask_b32 v10, v10, v11, vcc
        v_mov_b32 v14, {OOB}
        v_cmp_gt_u32 vcc, s{sT0}, v0
        v_cndmask_b32 v251, v14, v10, vcc""")
    def touch3(self, part):
        return [('x', f"s_mul_i32 s45, s44, {1 + 3 * part}"), ('vm', "buffer_load_dword v255, v251, s[28:31], s45 offen", 'pf')]

    def tlb_touch(self):
        e = self.e; c = self.c
        if not c.tlb: return
        if c.tlb == 1:
            e(f"v_lshlrev_b32 v10, 18, v0\nv_add_u32 v10, 0x1f800, v10")
            e.vmop(f"buffer_load_dword v255, v10, {srd(SWS)}, 0 offen sc1", 'pf')
        else:
            e(f"""s_mul_i32 s{sT0}, s{sNB}, {74*5120}
            s_add_u32 s{sT0}, s{sT0}, {PB}
            s_mul_i32 s{sT1}, s{sRB}, {74*4096}
            s_add_u32 s{sT1}, s{sT1}, {A2 - 8*65536}
            s_mul_i32 s{sT3}, s{sMT}, {2*74*4096}
            s_add_u32 s{sT3}, s{sT3}, {A2 - 16*65536}
            v_lshlrev_b32 v10, 16, v0
            v_mov_b32 v11, s{sT0}
            v_mov_b32 v14, s{sT1}
            v_cmp_le_u32 vcc, 8, v0
            v_cndmask_b32 v11, v11, v14, vcc
            v_mov_b32 v14, s{sT3}
            v_cmp_le_u32 vcc, 16, v0
            v_cndmask_b32 v11, v11, v14, vcc
            v_add_u32 v11, v11, v10
            v_subrev_u32 v14, 32, v0
            v_mul_u32_u24 v14, 0x18000, v14
            v_cmp_le_u32 vcc, 32, v0
            v_cndmask_b32 v10, v11, v14, vcc""")
            e.vmop(f"buffer_load_dword v255, v10, {srd(SWS)}, 0 offen sc1", 'pf')
        mk_srd(e, 28, pOUT, 2048 * 1280)
        e("v_lshlrev_b32 v10, 16, v0")
        e.vmop("buffer_load_dword v255, v10, s[28:31], 0 offen sc1", 'pf')
        if c.tlb2:
            for p, n in ((pB2, 1280),):
                mk_srd(e, 28, p, n); e.vmop("buffer_load_dword v255, v6, s[28:31], 0 offen", 'pf')

    def tag_wait(self):
        e = self.e
        e(f"""s_waitcnt lgkmcnt(0)
        s_add_u32 s{sTAG}, s{sTAG}, 1
        v_mov_b32 v247, s{sTAG+1}
        v_mov_b32 v246, s{sTAG}
        s_movk_i32 s42, {TBM}""")
        if self.c.xA == 2: e(f's_mov_b32 s41, {OOB}')
        e.lg = []
    def pack_loads(self):
        return [([('x', f"s_add_u32 m0, s{sM0}, {L_PACK}")] if i == 0 else []) +
                [('vm', f"buffer_load_dwordx4 v252, {srd(SPK)}, s{32+i} offen offset:{i*1024} {self.c.psc} lds", 'packld')] for i in range(4)]
    def pack_fill(self, m, nm):
        f = []
        for i in range(8):
            t, h = i >> 1, i & 1
            f.append(dict(at=m + 2 + 2 * i, ins=[('lg', f"ds_read_b64_tr_b16 a[{160+4*t+2*h}:{161+4*t+2*h}], v{PKA+t} offset:{(t>>1)*64+512*h}", 'pk')]))
        return f
    def wb_item(self):
        return [[('wvm', 'pkst'), ('vm', "buffer_wbl2 sc1", 'pkst')]] if self.c.wbl else []
    def pack_stores(self):
        return [([('wlg', 'pk')] if i == 0 else []) + [('vm', f"buffer_store_dwordx4 {ar(160+4*i)}, v6, {srd(SWS)}, s{sPKD+i} offen {self.c.pss}", 'pkst')] for i in range(4)]

    def btouch(self):
        pre = [l.strip() for l in f"""s_and_b32 s{sT0}, s{sRB}, 7
        s_lshl_b32 s{sT0}, s{sT0}, 2
        s_add_u32 s{sT0}, s{sT0}, s{sW}
        s_mul_i32 s{sT0}, s{sT0}, {93*128}
        s_mul_i32 s{sT1}, s{sNB}, {74*5120}
        s_add_u32 s{sT0}, s{sT0}, s{sT1}
        s_add_u32 s{sT0}, s{sT0}, {PB}
        v_lshlrev_b32 v248, 7, v0
        v_min_u32 v249, 28, v0
        v_lshlrev_b32 v249, 7, v249""".split("\n")]
        n = self.c.bt
        out = [[('x', l) for l in pre]]
        if n == 1:
            out[0] += [('vm', f"buffer_load_dword v255, v248, {srd(SWS)}, s{sT0} offen sc1", 'pf')]
            out.append([('x', f"s_add_u32 s{sT0}, s{sT0}, 8192"), ('vm', f"buffer_load_dword v255, v249, {srd(SWS)}, s{sT0} offen sc1", 'pf')])
        else:
            out[0] += [('x', "v_min_u32 v249, 23, v0"), ('x', "v_lshlrev_b32 v249, 7, v249")]
            for i in range(4): out.append([('vm', f"buffer_load_dword v255, v249, {srd(SWS)}, s{sT0} offen offset:0 sc1", 'pf'), ('x', f"s_add_u32 s{sT0}, s{sT0}, 3072")])
        return out
    def code_touch(self, endlab):
        Lp = self.lab('pc')
        return [('x', f"s_getpc_b64 s[30:31]\n{Lp}:"), ('x', f"s_bfe_u32 s{sT0}, s2, 0x40003"), ('x', f"s_lshl_b32 s{sT0}, s{sT0}, 2"), ('x', f"s_add_u32 s{sT0}, s{sT0}, s{sW}"),
                ('x', f"s_lshl_b32 s{sT0}, s{sT0}, 9"), ('x', "v_and_b32 v7, 3, v0"), ('x', f"v_lshl_add_u32 v7, v7, 7, s{sT0}"),
                ('x', f"v_cmp_gt_u32 vcc, {endlab}-{Lp}, v7"), ('x', "v_cndmask_b32 v7, 0, v7, vcc"), ('vm', "global_load_dword v255, v7, s[30:31]", 'pf')]
    def f1_issue(self):
        pre = [l.strip() for l in f"""s_mul_i32 s{sT0}, s{sNB}, 5
        s_add_u32 s{sT1}, s{sT0}, 4
        s_lshr_b32 s{sT0}, s{sT0}, 2
        s_mul_i32 s{sT0}, s{sT0}, 74
        s_lshr_b32 s{sT0}, s{sT0}, 2
        s_lshr_b32 s{sT1}, s{sT1}, 2
        s_mul_i32 s{sT1}, s{sT1}, 74
        s_add_u32 s{sT1}, s{sT1}, 73
        s_lshr_b32 s{sT1}, s{sT1}, 2
        v_add_u32 v235, s{sT0}, v0
        v_min_u32 v235, s{sT1}, v235
        v_lshlrev_b32 v235, 7, v235
        s_mov_b32 s{sT0}, {F1}""".split("\n")]
        return [[('x', l) for l in pre] + [('vm', self.poll_issue(235, 248, 2, None, f"s{sT0}"), 'f1p')]]
    def f1_check(self):
        return [('wvm', 'f1p')] + [('x', t) for t in self.poll_check([(235, 248, 2, f"s{sT0}")])]
    def tag_issue(self):
        e = self.e
        e(f"s_or_b32 s55, s2, s{sW}\ns_min_u32 s55, s55, 1\ns_mul_i32 s55, s55, {OOB}\ns_add_u32 s55, s55, {F1}\nv_lshlrev_b32 v200, 7, v0")
        for i in range(1, 4): e(f"v_add_u32 v{200+i}, {8192*i}, v200")
        self.tgl = [(200 + i, 248 + 2 * i, 2, "s55") for i in range(4)]
        for p in self.tgl: e.vmop(self.poll_issue(p[0], p[1], 2, None, p[3]), 'tg')
    def tag_update(self):
        e = self.e; L = self.lab('tg')
        e.wait(vm='tg')
        e(f"s_or_b32 s{sT0}, s2, s{sW}\ns_cbranch_scc1 {L}")
        for l in self.poll_check(self.tgl): e(l)
        e(self.flag_store(245, 246, str(TAG)))
        e(f"{L}:")

    def attn_voff(self, dst, cexpr_base, colbase_s):
        e = self.e
        e(f"""v_mul_u32_u24 v10, 6554, v9
        v_lshrrev_b32 v10, 16, v10
        v_mad_i32_i24 v11, v10, -10, v9""")
        self.swap23(10, 12)
        e(f"""v_mul_u32_u24 v10, 3840, v10
        v_lshl_add_u32 v10, v11, 4, v10
        v_add_u32 v{dst}, s{colbase_s}, v10""")
    def swap23(self, r, t):
        self.e(f"""v_lshrrev_b32 v{t}, 1, v{r}
        v_xor_b32 v{t}, v{t}, v{r}
        v_and_b32 v{t}, 4, v{t}
        v_mul_u32_u24 v{t}, 3, v{t}
        v_xor_b32 v{r}, v{r}, v{t}""")

    def small_dma(self, sr, vaddr, soff, ldsaddr, nlanes, tag, m0expr=None):
        e = self.e
        e(m0expr or f"s_mov_b32 m0, {ldsaddr}")
        if nlanes < 64: e(f"s_mov_b64 exec, {hex((1 << nlanes) - 1)}" if nlanes <= 32 else f"s_mov_b32 exec_hi, {hex((1 << (nlanes-32)) - 1)}")
        e.vmop(f"buffer_load_dwordx4 v{vaddr}, {srd(sr)}, {soff} offen lds", tag)
        if nlanes < 64: e("s_mov_b64 exec, -1")

    def csel(self, d, a, b):
        inl = lambda x: isinstance(x, str) or -16 <= x <= 64
        if inl(a) or inl(b): self.e(f"s_cselect_b32 s{d}, {a}, {b}")
        else: self.e(f"s_mov_b32 s{d}, {b}\ns_cselect_b32 s{d}, {a}, s{d}")

    def init_B(self):
        self.Bloc = {}; self.Bq = []
        order = [(i, t) for i in range(19) for t in range(5)]
        for u, k in enumerate(order):
            if u < 64: self.Bloc[k] = ('a', 4 * u)
            elif u < 64 + NL: self.Bloc[k] = ('l', u - 64)
            else: self.Bloc[k] = None
        self.Border = order; self.Bpend = list(range(64 + NL)); self.Bcur = None; self.Acur = None
    def koff(self, i): return 4 * i - (2 if i >= 10 else 0)
    def soff(self, d, i, w):
        e_, o_, s8, s9, unit = (sB, sBo, sB8, sB9, 5120) if w == 'B' else (sA, sAo, sA8, sA9, 4096)
        if i in (8, 9): return f"s_mov_b32 s{d}, s{s8 if i == 8 else s9}"
        if i == 18: return f"s_add_u32 s{d}, s{e_}, s{o_}\ns_lshr_b32 s{d}, s{d}, 1\ns_add_u32 s{d}, s{d}, {self.koff(i)*unit}"
        idx = i if i < 10 else i - 10 if i < 14 else i - 14
        return f"s_add_u32 s{d}, s{e_ if idx & max(self.c.par, 1) == 0 else o_}, {self.koff(i)*unit}"
    def B_items(self, k, loc):
        i, t = k; it = []
        if self.Bcur != i:
            it.append(('x', self.soff(sBT, i, 'B'))); self.Bcur = i
        va, imm = (6, t * 1024) if t < 4 else (240, 0)
        if loc[0] == 'l':
            assert L_BL + loc[1]*1024 - imm >= 0
            it.append(('x', f"s_add_u32 m0, s88, {L_BL + loc[1]*1024 - imm}"))
            it.append(('vm', f"buffer_load_dwordx4 v{va}, {srd(SWS)}, s{sBT} offen offset:{imm} sc1 lds", ('B', k)))
        else:
            it.append(('vm', f"buffer_load_dwordx4 {R(loc)}, v{va}, {srd(SWS)}, s{sBT} offen offset:{imm} sc1", ('B', k)))
        return it
    def B_take(self, us):
        out = []
        for u in us:
            k = self.Border[u]; out.append(self.B_items(k, self.Bloc[k]))
            if self.c.xB == 1: out[-1] = [('x', 's_nop 0')]
            if self.c.xB == 2: out[-1] = [(it[0], it[1].replace(f"s{sBT} offen", "s43 offen"), it[2]) if it[0] == 'vm' else it for it in out[-1]]
            if self.c.xB == 3: out[-1] = [(it[0], it[1].replace(f"s{sBT} offen", f"s{sB} offen"), it[2]) if it[0] == 'vm' else it for it in out[-1]]
        return out
    def ph2_bg(self, u): pass
    def bg_try(self, allowed, S=None):
        e = self.e
        if e.t - e.tvm < (S or self.c.S): return False
        if allowed == self.ph2_bg: return self.try_issue(self.m, True, True)
        for u in self.Bpend:
            if allowed(u):
                self.Bpend.remove(u); self.emit_items(self.B_take([u])[0]); return True
        return False
    def emit_items(self, items):
        e = self.e
        for it in items:
            if it[0] == 'vm': e.vmop(it[1], it[2])
            elif it[0] == 'lg': e.lgop(it[1], it[2])
            elif it[0] == 'wvm': e.wait(vm=it[1])
            elif it[0] == 'wlg': e.wait(lg=it[1])
            elif it[0] == 'st': self.stamp(it[1], it[2])
            else: e(it[1])
    def valu(self, lines, side=None, every=1, bg=None, S=None):
        n = 0
        for l in lines:
            if isinstance(l, str): self.e(l)
            else: self.emit_items([l])
            n += 1
            if side and n % every == 0: self.emit_items(side.pop(0))
            if bg: self.bg_try(bg, S)

    def interleave(self, items, side, every):
        W = ('s_cmp', 's_add', 's_sub', 's_and', 's_andn2', 's_or', 's_xor', 's_lshl', 's_lshr', 's_bitcmp', 's_min', 's_max')
        Rd = ('s_cselect', 's_addc', 's_subb', 's_cbranch_scc')
        live = [False] * len(items); l = False
        for i in range(len(items) - 1, -1, -1):
            live[i] = l
            t = items[i][1]
            if t.startswith(Rd): l = True
            elif t.startswith(W): l = False
        n = 0
        for i, it in enumerate(items):
            self.emit_items([it]); n += 1
            if side and n >= every and not live[i]: self.emit_items(side.pop(0)); n = 0
        for g in side: self.emit_items(g)

    def gelu_lines(self, X, Y, T, O):
        U = [X, X + 2, Y, Y + 2]; L = []
        P = lambda r: f"v[{r}:{r+1}]"
        for i in range(4): L.append(f"v_pk_mul_f32 {P(T+2*i)}, {P(U[i])}, {P(U[i])}")
        for i in range(4): L.append(f"v_pk_fma_f32 {P(T+2*i)}, {P(T+2*i)}, v[14:15], s[{sC0}:{sC1}] op_sel_hi:[1,0,0]")
        for i in range(4): L.append(f"v_pk_mul_f32 {P(T+2*i)}, {P(T+2*i)}, {P(U[i])}")
        for i in range(8): L.append(f"v_exp_f32 v{T+i}, v{T+i}")
        for i in range(4): L.append(f"v_pk_add_f32 {P(T+2*i)}, {P(T+2*i)}, 1.0 op_sel_hi:[1,0]")
        for i in range(8): L.append(f"v_rcp_f32 v{T+i}, v{T+i}")
        for i in range(4): L.append(f"v_pk_mul_f32 {P(T+2*i)}, {P(T+2*i)}, {P(U[i])}")
        for i in range(4): L.append(f"v_cvt_pk_bf16_f32 v{O+i}, v{T+2*i}, v{T+2*i+1}")
        return L if not (self.c.skip & 1) else L[-8:]
    def gelu_consts(self):
        c1 = -2.0 * math.sqrt(2.0 / math.pi) * math.log2(math.e)
        self.e(f"s_mov_b32 s{sC0}, {fl(c1)}\nv_mov_b32 v14, {fl(c1 * 0.044715)}")
    def softmax_lines(self, Pp, E, PH):
        L = []; P = lambda r: f"v[{r}:{r+1}]"
        L += [f"v_max3_f32 v8, v{Pp}, v{Pp+1}, v{Pp+2}", f"v_min3_f32 v10, v{Pp}, v{Pp+1}, v{Pp+2}"]
        for i in range(3, 19, 2): L += [f"v_max3_f32 v8, v8, v{Pp+i}, v{Pp+i+1}", f"v_min3_f32 v10, v10, v{Pp+i}, v{Pp+i+1}"]
        L += [f"v_max_f32 v8, v8, v{Pp+19}", f"v_min_f32 v10, v10, v{Pp+19}"]
        L += [f"v_mul_f32_e64 v8, -v8, s{sC0}", f"v_mul_f32 v10, s{sC0}, v10"]
        for i in range(10):
            L.append(f"v_pk_fma_f32 {P(E+2*i)}, {P(Pp+2*i)}, s[{sC0}:{sC1}], v[8:9] op_sel_hi:[1,0,0]")
            L.append(f"v_pk_fma_f32 {P(E+20+2*i)}, {P(Pp+2*i)}, s[{sC0}:{sC1}], v[10:11] op_sel_hi:[1,0,0] neg_lo:[1,0,0] neg_hi:[1,0,0]")
        for i in range(40): L.append(f"v_exp_f32 v{E+i}, v{E+i}")
        L += [f"v_pk_add_f32 v[8:9], {P(E)}, {P(E+2)}", f"v_pk_add_f32 v[10:11], {P(E+20)}, {P(E+22)}"]
        for i in range(2, 10): L += [f"v_pk_add_f32 v[8:9], v[8:9], {P(E+2*i)}", f"v_pk_add_f32 v[10:11], v[10:11], {P(E+20+2*i)}"]
        L += ["v_add_f32 v8, v8, v9", "v_add_f32 v10, v10, v11", "v_rcp_f32 v8, v8", "v_rcp_f32 v10, v10"]
        for i in range(10): L.append(f"v_pk_mul_f32 {P(E+2*i)}, {P(E+2*i)}, v[8:9] op_sel_hi:[1,0]")
        for i in range(10): L.append(f"v_pk_mul_f32 {P(E+20+2*i)}, {P(E+20+2*i)}, v[10:11] op_sel_hi:[1,0]")
        for i in range(20): L.append(f"v_cvt_pk_bf16_f32 v{PH+i}, v{E+2*i}, v{E+2*i+1}")
        return L if not (self.c.skip & 2) else [l if 'cvt' in l else '' for l in L]
    def wphi_addr(self, va):
        self.e(f"v_mul_u32_u24 v{va}, 800, v2\nv_mad_u32_u24 v{va}, v3, 40, v{va}\nv_add_u32 v{va}, {L_WPHI}, v{va}")
    def wphi_reads(self, va):
        return [[('lg', f"ds_read_b64_tr_b16 a[{AW+2*(dg*5+fg)}:{AW+1+2*(dg*5+fg)}], v{va} offset:{dg*160 + fg*8}", 'wphi')] for dg in range(5) for fg in range(5)]
    def phi_mfmas(self, KQ, Pp):
        L = []
        for dg in range(5):
            for j in range(2):
                for fg in range(5):
                    d = Pp + 20 * j + 4 * fg; w = AW + 2 * (dg * 5 + fg); b = KQ + 10 * j + 2 * dg
                    L.append(f"v_mfma_f32_4x4x4_16b_bf16 {vr(d)}, a[{w}:{w+1}], v[{b}:{b+1}], {vr(d) if dg else 0}")
        return L
    def cvt_heads(self, acc0, dst, j, n=5):
        return [f"v_cvt_pk_bf16_f32 v{dst+2*t+h}, v{acc0+(t*2+j)*4+2*h}, v{acc0+(t*2+j)*4+2*h+1}" for t in range(n) for h in range(2)]
    def rho0(self, dst):
        self.e(f"v_lshrrev_b32 v{dst}, 1, v2\nv_lshl_add_u32 v{dst}, v{dst}, 4, v3\nv_and_b32 v7, 1, v2\nv_lshl_add_u32 v{dst}, v7, 2, v{dst}")
    def x_addr(self, ST, nsl=3, base=220):
        e = self.e
        e(f"""v_lshrrev_b32 v9, 1, v1
        v_xor_b32 v9, v9, v2
        v_lshlrev_b32 v9, 4, v9
        v_lshl_add_u32 v9, v1, 7, v9
        v_add_u32 v{base}, s{sM0}, v9
        v_xor_b32 v{base+1}, 64, v{base}""")
        for sl in range(1, nsl): e(f"v_add_u32 v{base+2*sl}, {sl*ST}, v{base}\nv_add_u32 v{base+1+2*sl}, {sl*ST}, v{base+1}")
    def paced(self, groups, m0, span):
        n = len(groups)
        return [dict(at=m0 + int((k + 0.2) * span / n), chain=1, ins=list(g)) for k, g in enumerate(groups)]
    def prog_QH(self):
        e = self.e; c = self.c; self.init_B(); self.dmap = {0: 3, 1: 5, 2: 7, 3: 9, 14: 11, 7: 13, 9: 15}
        e("L_QH:")
        ST = QH_ST
        e(f"""s_mul_i32 s{sKW}, s{sHG}, 320
        s_lshl_b32 s{sT0}, s{sHG}, 8
        s_add_u32 s{sT0}, s{sT0}, 384
        s_cmp_lt_u32 s{sHG}, 6
        s_cselect_b32 s{sKW}, s{sKW}, s{sT0}
        s_cselect_b32 s{sK1}, 20, 16
        s_mul_i32 s{sT2}, s{sW}, 320""")
        def dma_x(st):
            g = []
            for j in range(4):
                it = [('x', f"s_add_u32 m0, s{sM0}, {(st%3)*ST}")] if j == 0 else []
                g.append(it + [('vm', f"buffer_load_dwordx4 v{208+j}, {srd(SX)}, s{sE+st} offen offset:{j*1024} {c.xsc} lds", ('S', st))])
            return g
        def dma_a(st, i):
            it = []
            if i == 0: it = [('x', f"s_mul_i32 s{sKA}, s{sE+st}, 1920"), ('x', f"s_add_u32 m0, s{sM0+1}, {(st%3)*ST}")]
            if i == 2: it = [('x', f"s_mov_b32 m0, s{sM0+3+st%3}")]
            return it + [('vm', f"buffer_load_dwordx4 v{212+i}, {srd(SQ)}, s{sKA} offen offset:{1024 if i == 1 else 0} {c.wsc} lds", ('S', st))]
        def dma_h(st, i):
            it = []
            if i == 0: it = [('x', f"s_mul_i32 s{sKB}, s{sE+st}, 1728"), ('x', f"s_add_u32 m0, s{sM0+2}, {(st%3)*ST}")]
            if i == 4: it = [('x', "s_add_u32 m0, m0, 4096")]
            return it + [('vm', f"buffer_load_dwordx4 v{215+i}, {srd(S1)}, s{sKB} offen offset:{(i%4)*1024} {c.wsc} lds", ('S', st))]
        def dma_stage(st): return dma_x(st) + [dma_a(st, i) for i in range(3)] + [dma_h(st, i) for i in range(5)]
        if c.fast:
            self.kernarg_wait()
            for g in dma_x(0): self.emit_items(g)
            self.small_dma(SM, 6, f"s{sKW}", None, 20, 'bias', f"s_add_u32 m0, s{sT2}, {L_BIASQH}")
        e(f"""s_mul_i32 s{sT0}, s{sW}, 3
        s_lshl_b32 s{sT1}, s{sW}, 1
        s_add_u32 s{sT1}, s{sT1}, 2
        s_cmp_lt_u32 s{sW}, 2
        s_cselect_b32 s{sT0}, s{sT0}, s{sT1}
        s_lshl_b32 s{sM0+1}, s{sT0}, 10
        s_add_u32 s{sM0+1}, s{sM0+1}, 16384""")
        for sl in range(3):
            e(f"s_add_u32 s{sM0+3+sl}, s{sM0+1}, {2048 + sl*ST}\ns_cmp_lt_u32 s{sW}, 2\ns_cselect_b32 s{sM0+3+sl}, s{sM0+3+sl}, {MISC+4608}")
        e(f"s_lshl_b32 s{sT0}, s{sT0}, 6\ns_mul_i32 s{sT1}, s{sHG}, 160\ns_mul_i32 s{sM0+2}, s{sW}, 5120\ns_add_u32 s{sM0+2}, s{sM0+2}, {16384+10240}")
        for i in range(3):
            e(f"v_add_u32 v9, {64*i}, v0\nv_add_u32 v9, s{sT0}, v9")
            self.attn_voff(212 + i, None, sT1)
            if i == 1: e("v_subrev_u32 v213, 1024, v213")
            if i == 2: e(f"s_cmp_lt_u32 s{sW}, 2\ns_cselect_b32 s{sT4}, 0, {OOB}\nv_add_u32 v214, s{sT4}, v214")
            if c.fast: self.emit_items(dma_a(0, i))
        if not c.fast:
            self.kernarg_wait()
            self.small_dma(SM, 6, f"s{sKW}", None, 20, 'bias', f"s_add_u32 m0, s{sT2}, {L_BIASQH}")
            for g in dma_x(0) + [dma_a(0, i) for i in range(3)]: self.emit_items(g)
        e(f"s_mul_i32 s{sT0}, s{sW}, 320\nv_mov_b32 v14, {OOB}")
        for i in range(5):
            e(f"""v_add_u32 v9, {64*i}, v0
            v_add_u32 v9, s{sT0}, v9
            v_mul_u32_u24 v10, 3277, v9
            v_lshrrev_b32 v10, 16, v10
            v_mul_u32_u24 v11, 20, v10
            v_sub_u32 v11, v9, v11
            v_bfe_u32 v13, v10, 2, 1
            v_lshlrev_b32 v13, 1, v13
            v_xor_b32 v11, v11, v13
            v_cmp_gt_u32 vcc, s{sK1}, v11""")
            self.swap23(10, 12)
            e(f"""v_mul_u32_u24 v10, 3456, v10
            v_lshl_add_u32 v10, v11, 4, v10
            v_add_u32 v10, s{sKW}, v10
            v_subrev_u32 v10, {(i%4)*1024}, v10
            v_cndmask_b32 v{215+i}, v14, v10, vcc""")
            self.emit_items(dma_h(0, i))
        self.pstamp(1)
        if c.pke:
            self.pack_setup()
            for g in self.pack_loads(): self.emit_items(g)
        if c.touch == 1: self.touch()
        if c.touch == 4:
            self.touch3_setup()
            for p_ in range(c.tp0): self.emit_items(self.touch3(p_))
        self.pstamp(2)
        def setup():
            e = self.e
            self.x_addr(ST); self.rho0(8)
            e(f"v_mul_u32_u24 v9, 160, v8\nv_mad_u32_u24 v9, v4, 40, v9\nv_add_u32 v226, 16384, v9")
            e(f"v_mul_u32_u24 v9, 320, v8\nv_lshl_add_u32 v9, v4, 3, v9\nv_add_u32 v9, {16384+10240}, v9\nv_lshl_add_u32 v229, v7, 5, v9\nv_xor_b32 v7, 1, v7\nv_lshl_add_u32 v232, v7, 5, v9")
            for sl in (1, 2): e(f"v_add_u32 v{226+sl}, {sl*ST}, v226\nv_add_u32 v{229+sl}, {sl*ST}, v229\nv_add_u32 v{232+sl}, {sl*ST}, v232")
            self.common_setup()
            if not c.pke: self.pack_setup()
            e(f"s_mul_i32 s{sT1}, s{sW}, 320\ns_add_u32 s{sT1}, s{sT1}, {L_BIASQH}\nv_lshl_add_u32 v13, v2, 3, s{sT1}")
            e(f"""s_lshl_b32 s{sT0}, s{sMT}, 1
            s_lshr_b32 s{sT1}, s{sW}, 1
            s_add_u32 s{sT0}, s{sT0}, s{sT1}
            s_and_b32 s{sT1}, s{sW}, 1
            s_mul_i32 s{sT2}, s{sT0}, 74
            s_lshl_b32 s{sT2}, s{sT2}, 12
            s_lshl_b32 s{sT3}, s{sT1}, 11
            s_add_u32 s{sT2}, s{sT2}, s{sT3}
            s_add_u32 s{sT2}, s{sT2}, {A2}
            s_lshr_b32 s{sT4}, s{sHG}, 1
            s_mul_i32 s{sT4}, s{sT4}, 5
            s_add_u32 s{sT4}, s{sT4}, 54
            s_lshl_b32 s{sT4}, s{sT4}, 12
            s_add_u32 s{sT4}, s{sT4}, s{sT2}
            s_and_b32 s{sT5}, s{sHG}, 1
            s_lshl_b32 s38, s{sT5}, 13
            s_add_u32 s38, s38, s{sT4}
            s_add_u32 s39, s{sT4}, {4*4096}
            s_lshl_b32 s{sT5}, s{sT5}, 3
            s_add_u32 s39, s39, s{sT5}
            s_lshl_b32 s{sT0}, s{sHG}, 4
            s_add_u32 s{sT0}, s{sT0}, s{sMT}
            s_lshl_b32 s{sT0}, s{sT0}, 2
            s_add_u32 s{sT0}, s{sT0}, s{sW}
            s_lshl_b32 s{sT0}, s{sT0}, 9
            s_add_u32 s43, s{sT0}, {GB}
            v_mov_b32 v204, -1
            v_mov_b32 v205, -1
            v_mov_b32 v206, -1
            v_mov_b32 v207, -1""")
        self.interleave(self.record(setup), dma_stage(1)[:c.n1], c.pe)
        self.pstamp(3)
        if c.n1 >= 12:
            self.small_dma(SM, 6, "s36", None, 50, 'misc', "s_mov_b32 m0, s37")
            if c.touch == 2: self.touch()
            if not c.pke:
                for g in self.pack_loads(): self.emit_items(g)
        self.tag_wait(); self.pstamp(4)
        e.wait(vm='bias')
        for s_ in range(10): e.lgop(f"ds_read_b64 v[{136+2*s_}:{137+2*s_}], v13 offset:{s_*32}", ('b', s_))
        for s_ in range(10):
            a0 = 16 + (5 + s_) * 8; e.wait(lg=('b', s_))
            for h in range(2): e(f"v_lshlrev_b32 v{a0+2*h}, 16, v{136+2*s_+h}\nv_and_b32 v{a0+2*h+1}, 0xffff0000, v{136+2*s_+h}")
        self.stamp(0)
        NS = 15; nm = NS * 4; mf = []; reads = []
        for st in range(10):
            sl = st % 3
            for t in range(NS):
                gs = st * NS + t; wr = 168 + 8 * (gs % 4); m0 = len(mf)
                for ks in range(2):
                    for rd in range(2):
                        if t < 5: ad, off = 226 + sl, ks * 5120 + rd * 1280 + t * 8
                        else: ad, off = (229 if (t - 5) % 2 == 0 else 232) + sl, ks * 10240 + rd * 2560 + ((t - 5) >> 1) * 64
                        reads.append([f"ds_read_b64_tr_b16 v[{wr+4*ks+2*rd}:{wr+4*ks+2*rd+1}], v{ad} offset:{off}", m0, st, m0 - 13])
                for j in ((1, 0) if st == 0 else (0, 1)):
                    for ks in range(2):
                        xr = 136 + (st % 2) * 16 + (j * 2 + ks) * 4; d = 16 + (t * 2 + j) * 4
                        if t == 0: reads.append([f"ds_read_b128 {vr(xr)}, v{220+2*sl+ks} offset:{j*2048}", len(mf), st, -1])
                        cc = vr(d)
                        if st == 0 and ks == 0: cc = "0" if t < 5 else vr(16 + t * 8)
                        mf.append(f"v_mfma_f32_16x16x32_bf16 {vr(d)}, {vr(wr+4*ks)}, {vr(xr)}, {cc}")
        po = lambda va, off: [('vm', f"buffer_store_dwordx4 v[204:207], v{va}, {srd(SWS)}, s38 offen offset:{off} sc1", 'hst')]
        poison = [po(6, 0), po(6, 1024), po(240, 0), po(240, 1024)] + [[('vm', f"buffer_store_dwordx2 v[204:205], v6, {srd(SWS)}, s39 offen offset:{j*1024} sc1", 'hst')] for j in range(2)]
        self.kloop(mf, reads, nm, dma_stage, poison, 'QH')
        A51 = lambda u: u < 51; A64 = lambda u: u < 64; ALL = lambda u: True
        self.gelu_consts()
        e(f"s_lshl_b32 s{sT3}, s{sKW}, 6\ns_add_u32 s{sT3}, s{sT3}, s{sT2}")
        L = []
        for p in range(5):
            for j in range(2):
                O = 152 + 4 * ((2 * p + j) % 4)
                L += self.gelu_lines(16 + ((5 + 2 * p) * 2 + j) * 4, 16 + ((6 + 2 * p) * 2 + j) * 4, 136 + 8 * j, O)
                if j == 0:
                    if p == 4: L += [f"s_add_u32 s{sT4}, s{sT3}, {4*4096}", f"s_cmp_lt_u32 s{sHG}, 6\ns_cselect_b32 s{sT4}, s{sT4}, {OOB}"]
                    else: L.append(f"s_add_u32 s{sT4}, s{sT3}, {p*4096}")
                L.append(('vm', f"buffer_store_dwordx4 {vr(O)}, v6, {srd(SWS)}, s{sT4} offen offset:{j*1024} sc1", 'hst'))
        self.valu(L, bg=A51, S=c.Sg)
        self.valu(self.cvt_heads(16, 56, 0) + self.cvt_heads(16, 66, 1), bg=A51)
        self.stamp(2)
        e.wait(lg='wphi')
        self.valu(self.phi_mfmas(56, 76), bg=A51)
        e(f"""s_lshl_b32 s{sT4}, s{sMT}, 4
        s_add_u32 s{sT4}, s{sT4}, s{sHG}
        s_lshl_b32 s{sT4}, s{sT4}, 7
        s_add_u32 s{sT4}, s{sT4}, {F4}
        s_cmp_eq_u32 s{sW}, 0
        s_cselect_b32 s{sT5}, s{sT4}, {OOB}
        s_mov_b32 s{sC0}, {fl(math.log2(math.e))}""")
        L1 = self.softmax_lines(76, 16, 116)
        self.valu(L1[:c.f4at], bg=A64)
        e.wait(vm='hst'); e("s_barrier")
        if c.stamps == 3: e(f"s_mov_b32 s{sC0}, {fl(math.log2(math.e))}")
        e.vmop(self.flag_store(245, 246, f"s{sT5}"), 'f4st')
        self.valu(L1[c.f4at:], bg=ALL)
        L2 = self.softmax_lines(96, 16, 136)
        self.valu(L2[:c.pa], bg=ALL)
        self.poll4a_issue()
        self.valu(L2[c.pa:c.pb], bg=ALL)
        pool = [[('v', r), c.mo + 1 if r < 204 else c.p3 if r < 220 else 999] for r in list(range(204, 224, 4)) + list(range(168, 204, 4))]
        while len(self.Bpend) > c.qleft: self.bg_try(ALL, -9999)
        self.ph2_begin(pool)
        if c.stamps == 3: e(f"s_mov_b32 s{sC0}, {fl(math.log2(math.e))}")
        self.valu(L2[c.pb:], bg=ALL)
        self.stamp(3)
        pool += [[('v', r), c.mo + 1] for r in range(156, 168, 4)]
        FO = (0, 1024, 2048, 2816)
        finld = [f"buffer_load_dwordx4 {vr(204+4*i)}, v6, {srd(SWS)}, s{sKW} offen offset:{FO[i]} sc1" for i in range(4)]
        finld += [f"buffer_load_dwordx4 {vr(248+4*j)}, v13, {srd(SWS)}, s43 offen offset:{j*256} sc1" for j in range(2)]
        def h_p3():
            e(f"""s_mul_i32 s{sKW}, s{sHG}, {FSZ}
            s_mul_i32 s{sK1}, s{sW}, 3840
            s_add_u32 s{sKW}, s{sKW}, s{sK1}
            s_add_u32 s{sKW}, s{sKW}, {FIN}
            v_lshlrev_b32 v13, 4, v1""")
            for l in finld: e.vmop(l, 'fin')
        def h_c3():
            it = [('st', 4, 1)] + [('x', l) for l in f"s_lshr_b32 s{sK1}, s{sK1}, 1\ns_add_u32 s{sK1}, s{sK1}, {L_FIN}\nv_lshl_add_u32 v9, v0, 3, s{sK1}".split("\n")] + [('wvm', 'fin')]
            it += [('x', l) for l in self.tag_check(finld, list(range(204, 220)) + list(range(248, 256)), 8)] + [('st', 5, 1)]
            it += [('x', self.tag_strip(r)) for r in list(range(204, 220)) + [248, 252]] + [('x', "v_mov_b32 v250, v248"), ('x', "v_mov_b32 v251, v252")]
            for i in range(4):
                it += [('x', f"v_cvt_pk_bf16_f32 v{204+4*i}, v{204+4*i}, v{205+4*i}"), ('x', f"v_cvt_pk_bf16_f32 v{205+4*i}, v{206+4*i}, v{207+4*i}"),
                       ('lg', f"ds_write_b64 v9, v[{204+4*i}:{205+4*i}] offset:{FO[i]//2}", 'fw')]
            it += [('x', l) for l in f"v_lshlrev_b32 v13, 6, v2\nv_lshl_add_u32 v13, v4, 4, v13\nv_add_u32 v13, {L_FIN}, v13".split("\n")]
            self.aq[:0] = [[self.m, c.mo - 3, x] for x in it]
        def h_o():
            if c.p1q < 0: self.poll4b_issue()
            fr = [p for p in pool if p[0][0] == 'a'][:8]; assert len(fr) == 8; self.busy = fr
            e.wait(lg='fw'); e("s_barrier")
            self.stamp(6)
            mf = []; reads = []
            for fp in range(5):
                for dg in range(6):
                    n = fp * 6 + dg; f0 = fr[n % 8][0][1]; base = (n // 2) * 8
                    reads.append([f"ds_read_b128 {ar(f0)}, v13 offset:{(dg*5+fp)*256}", base + 2 * (n % 2), -1, base - 24])
                    for h in range(2):
                        for j in range(2):
                            d = 156 + 24 * j + 4 * dg; b = 116 + 20 * j + 2 * (2 * fp + h)
                            mf.append(f"v_mfma_f32_4x4x4_16b_bf16 {vr(d)}, a[{f0+2*h}:{f0+2*h+1}], v[{b}:{b+1}], {vr(d) if (fp or h) else 0}")
            mf2 = []
            for n in range(0, 30, 2):
                a_, b_ = mf[4*n:4*n+4], mf[4*n+4:4*n+8]
                mf2 += [a_[0], a_[1], b_[0], b_[1], a_[2], a_[3], b_[2], b_[3]]
            if c.skip & 4: mf2 = mf2[:8]; reads = reads[:2]
            self.stream(mf2, reads, [], None, LA=20, bg=lambda m: self.ph2_bg)
            for j in range(2): e(f"v_add_f32 v{8+2*j}, {fl(1e-6)}, v{156+24*j+20}")
            for j in range(2): e(f"v_rcp_f32 v{8+2*j}, v{8+2*j}")
            for j in range(2): e(f"v_mul_f32 v{8+2*j}, v{8+2*j}, v{250+j}")
            for j in range(2):
                D = 156 + 24 * j
                for i in range(10): e(f"v_pk_mul_f32 v[{D+2*i}:{D+2*i+1}], v[{D+2*i}:{D+2*i+1}], v[{8+2*j}:{9+2*j}] op_sel_hi:[1,0]")
                for i in range(10): e(f"v_cvt_pk_bf16_f32 v{D+i}, v{D+2*i}, v{D+2*i+1}")
                for i in range(10): e(f"v_min_u32 v{D+i}, -2, v{D+i}")
                e.vmop(f"buffer_store_dwordx4 {vr(D)}, v6, {srd(SWS)}, s38 offen offset:{j*1024} sc1", 'ost')
                e.vmop(f"buffer_store_dwordx4 {vr(D+4)}, v240, {srd(SWS)}, s38 offen offset:{j*1024} sc1", 'ost')
                e.vmop(f"buffer_store_dwordx2 {vr(D+8, 2)}, v6, {srd(SWS)}, s39 offen offset:{j*1024} sc1", 'ost')
            self.busy = []
            for p in pool: p[1] = 999
            pool.extend([[('v', r), 999] for r in range(116, 156, 4)])
            self.stamp(14)
        self.bias2()
        self.phase2({c.p3: h_p3, c.c3: h_c3, c.mo: h_o, c.p1q: self.poll4b_issue, c.c1q: self.poll4b_check})

    def prog_KV(self):
        e = self.e; c = self.c; self.init_B(); self.dmap = {0: 2, 1: 4, 3: 6, 4: 8, 5: 10, 7: 12, 9: 14}
        ST = KV_ST
        e(f"""s_mul_i32 s{sM0+1}, s{sW}, 5120
        s_add_u32 s{sM0+1}, s{sM0+1}, 16384
        s_lshl_b32 s{sM0+2}, s{sW}, 11
        s_add_u32 s{sM0+2}, s{sM0+2}, 36864
        s_lshl_b32 s{sKW}, s{sHG}, 7
        s_add_u32 s{sKW}, s{sKW}, {19*128}""")
        def dma_x(st):
            g = []
            for j in range(4):
                it = [('x', f"s_add_u32 m0, s{sM0}, {(st%3)*ST}")] if j == 0 else []
                g.append(it + [('vm', f"buffer_load_dwordx4 v{208+j}, {srd(SX)}, s{sE+st} offen offset:{j*1024} {c.xsc} lds", ('S', st))])
            return g
        def dma_w(st, i):
            it = []
            if i == 0: it = [('x', f"s_mul_i32 s{sKA}, s{sE+st}, 1920"), ('x', f"s_add_u32 m0, s{sM0+1}, {(st%3)*ST}")]
            if i == 4: it = [('x', "s_add_u32 m0, m0, 4096")]
            return it + [('vm', f"buffer_load_dwordx4 v{212+i}, {srd(SQ)}, s{sKA} offen offset:{(i%4)*1024} {c.wsc} lds", ('S', st))]
        def dma_h(st, i):
            it = [('x', f"s_mul_i32 s{sKB}, s{sE+st}, 1728"), ('x', f"s_add_u32 m0, s{sM0+2}, {(st%3)*ST}")] if i == 0 else []
            return it + [('vm', f"buffer_load_dwordx4 v{217+i}, {srd(S1)}, s{sKB} offen offset:{i*1024} {c.wsc} lds", ('S', st))]
        def dma_stage(st): return dma_x(st) + [dma_w(st, i) for i in range(5)] + [dma_h(st, i) for i in range(2)]
        if c.fast:
            self.kernarg_wait()
            for g in dma_x(0): self.emit_items(g)
            self.small_dma(SM, 6, f"s{sKW}", L_BIASKV, 8, 'bias')
        e(f"""s_and_b32 s{sT0}, s{sW}, 1
        s_mul_i32 s{sT0}, s{sT0}, 320
        s_lshr_b32 s{sT1}, s{sW}, 1
        s_add_u32 s{sT1}, s{sT1}, 1
        s_mul_i32 s{sT1}, s{sT1}, 1280
        s_mul_i32 s{sT3}, s{sHG}, 160
        s_add_u32 s{sT1}, s{sT1}, s{sT3}""")
        for i in range(5):
            e(f"v_add_u32 v9, {64*i}, v0\nv_add_u32 v9, s{sT0}, v9")
            self.attn_voff(212 + i, None, sT1)
            if i % 4: e(f"v_subrev_u32 v{212+i}, {(i%4)*1024}, v{212+i}")
            if c.fast: self.emit_items(dma_w(0, i))
        if not c.fast:
            self.kernarg_wait()
            self.small_dma(SM, 6, f"s{sKW}", L_BIASKV, 8, 'bias')
            for g in dma_x(0) + [dma_w(0, i) for i in range(5)]: self.emit_items(g)
        e(f"s_lshl_b32 s{sT3}, s{sW}, 4\nv_lshlrev_b32 v11, 1, v2\nv_xor_b32 v11, v11, v0\nv_and_b32 v11, 7, v11")
        for pp in range(2):
            e(f"v_add_u32 v10, {8*pp}, v5\nv_add_u32 v10, s{sT3}, v10")
            self.swap23(10, 12)
            e(f"""v_mul_u32_u24 v10, 3456, v10
            v_lshl_add_u32 v10, v11, 4, v10
            v_add_u32 v10, s{sKW}, v10
            v_subrev_u32 v{217+pp}, {pp*1024}, v10""")
            self.emit_items(dma_h(0, pp))
        mk_srd(e, 28, pGATE, 1280)
        if c.rot == 3: e(f"v_xor_b32 v9, s{sE}, v6\nv_add_u32 v11, 1024, v9")
        else: e(f"v_add_u32 v9, s{sE}, v6\nv_subrev_u32 v10, 1280, v9\nv_min_u32 v9, v9, v10\nv_add_u32 v11, 1024, v9\nv_subrev_u32 v10, 1280, v11\nv_min_u32 v11, v11, v10")
        self.small_dma(28, 9, "0", L_GATE, 64, ('S', 0)); self.small_dma(28, 11, "0", L_GATE + 1024, 16, ('S', 0))
        self.pstamp(1)
        if c.pke:
            self.pack_setup()
            for g in self.pack_loads(): self.emit_items(g)
        if c.touch == 1: self.touch()
        if c.touch == 4:
            self.touch3_setup()
            for p_ in range(c.tp0): self.emit_items(self.touch3(p_))
        self.pstamp(2)
        def setup():
            e = self.e
            self.x_addr(ST); self.rho0(8)
            e(f"v_mul_u32_u24 v9, 160, v8\nv_mad_u32_u24 v9, v4, 40, v9\nv_add_u32 v226, 16384, v9")
            for sl in (1, 2): e(f"v_add_u32 v{226+sl}, {sl*ST}, v226")
            e(f"v_lshlrev_b32 v9, 7, v8\nv_lshl_add_u32 v9, v4, 3, v9\nv_add_u32 v9, 36864, v9\nv_bfe_u32 v10, v8, 1, 2")
            for t in range(4): e(f"v_xor_b32 v11, {t}, v10\nv_lshl_add_u32 v{229+t}, v11, 5, v9\nv_add_u32 v{204+t}, {2*ST}, v{229+t}")
            e(f"v_lshlrev_b32 v233, 4, v2\nv_add_u32 v233, {L_GATE}, v233\nv_lshlrev_b32 v253, 3, v2\nv_add_u32 v253, {L_BIASKV}, v253")
            self.common_setup()
            if not c.pke: self.pack_setup()
            e(f"""v_lshrrev_b32 v8, 2, v1
            v_mul_u32_u24 v8, 2560, v8
            v_lshl_add_u32 v8, v4, 5, v8
            v_lshrrev_b32 v9, 1, v2
            v_lshl_add_u32 v8, v9, 9, v8
            v_and_b32 v9, 1, v2
            v_lshl_add_u32 v8, v9, 4, v8
            s_lshl_b32 s{sT0}, s{sW}, 7
            v_add_u32 v241, s{sT0}, v8
            v_add_u32 v243, 10240, v241
            v_mov_b32 v9, {OOB}
            v_cmp_ge_u32 vcc, 7, v1
            v_cndmask_b32 v243, v9, v243, vcc
            v_cmp_gt_u32 vcc, 2, v2
            v_cndmask_b32 v242, v9, v241, vcc
            v_cndmask_b32 v244, v9, v243, vcc
            v_mul_u32_u24 v12, {PSZ}, v2
            v_min_u32 v10, 14, v1
            v_lshl_add_u32 v12, v10, 4, v12
            v_lshlrev_b32 v13, 4, v1
            v_cmp_gt_u32 vcc, 16, v0
            v_cndmask_b32 v234, v9, v13, vcc
            v_cmp_gt_u32 vcc, 15, v0
            v_cndmask_b32 v13, v9, v13, vcc""")
        self.interleave(self.record(setup), dma_stage(1)[:c.n1], c.pe2)
        self.pstamp(3)
        if c.n1 >= 12:
            self.small_dma(SM, 6, "s36", None, 50, 'misc', "s_mov_b32 m0, s37")
            if c.touch == 2: self.touch()
            if not c.pke:
                for g in self.pack_loads(): self.emit_items(g)
        self.tag_wait(); self.pstamp(4)
        e.wait(vm='bias')
        for s_ in range(4): e.lgop(f"ds_read_b64 v[{136+2*s_}:{137+2*s_}], v253 offset:{s_*32}", ('b', s_))
        for s_ in range(4):
            e.wait(lg=('b', s_))
            for h in range(2): e(f"v_lshlrev_b32 v{96+8*s_+2*h}, 16, v{136+2*s_+h}\nv_and_b32 v{97+8*s_+2*h}, 0xffff0000, v{136+2*s_+h}")
        self.stamp(0)
        NS = 15; nm = NS * 4; mf = []; reads = []
        for st in range(10):
            sl = st % 3
            for t in range(NS):
                gs = st * NS + t; wr = 168 + 8 * (gs % 4); m0 = len(mf)
                for ks in range(2):
                    if t == 14: reads.append([f"ds_read_b128 {vr(wr+4*ks)}, v233 offset:{(st*2+ks)*64}", m0, st, m0 - 13]); continue
                    for rd in range(2):
                        if t < 10: ad, off = 226 + sl, (t // 5) * 10240 + ks * 5120 + rd * 1280 + (t % 5) * 8
                        else: ad, off = (229 if sl < 2 else 204) + t - 10, (sl % 2) * ST + ks * 4096 + rd * 1024
                        reads.append([f"ds_read_b64_tr_b16 v[{wr+4*ks+2*rd}:{wr+4*ks+2*rd+1}], v{ad} offset:{off}", m0, st, m0 - 13])
                for j in ((1, 0) if st == 0 else (0, 1)):
                    for ks in range(2):
                        xr = 136 + (st % 2) * 16 + (j * 2 + ks) * 4; d = 16 + (t * 2 + j) * 4
                        if t == 0: reads.append([f"ds_read_b128 {vr(xr)}, v{220+2*sl+ks} offset:{j*2048}", len(mf), st, -1])
                        cc = vr(d)
                        if st == 0 and ks == 0: cc = vr(16 + t * 8) if 10 <= t < 14 else "0"
                        mf.append(f"v_mfma_f32_16x16x32_bf16 {vr(d)}, {vr(wr+4*ks)}, {vr(xr)}, {cc}")
        self.kloop(mf, reads, nm, dma_stage, [], 'KV')
        A64 = lambda u: u < 64; ALL = lambda u: True
        A51 = lambda u: u < 51; Sa = c.Sa
        KQ = 136; PR = 168; VT = 156
        nl2e = fl(-math.log2(math.e))
        side = [l.strip() for l in f"""v_mul_f32 v128, {nl2e}, v128
        v_mul_f32 v132, {nl2e}, v132
        v_exp_f32 v128, v128
        v_exp_f32 v132, v132
        s_lshl_b32 s{sT2}, s{sMT}, 2
        v_add_f32 v128, 1.0, v128
        v_add_f32 v132, 1.0, v132
        v_rcp_f32 v128, v128
        v_rcp_f32 v132, v132
        s_add_u32 s{sT2}, s{sT2}, s{sW}
        s_lshl_b32 s{sT3}, s{sT2}, 9
        s_lshl_b32 s{sT4}, s{sHG}, 15
        s_add_u32 s{sT3}, s{sT3}, s{sT4}
        s_add_u32 s{sT3}, s{sT3}, {GB}
        v_mul_u32_u24 v220, {RSV}, v1
        v_mad_u32_u24 v220, v2, 48, v220
        s_mul_i32 s{sT0}, s{sW}, {32*RSV}
        s_add_u32 s{sT0}, s{sT0}, {L_V}
        v_add_u32 v220, s{sT0}, v220
        v_mul_u32_u24 v221, {RSP}, v1
        s_mov_b32 s{sT0}, 80
        v_mad_u32_u24 v221, v2, s{sT0}, v221
        s_mul_i32 s{sT0}, s{sW}, {32*RSP}
        v_add_u32 v221, s{sT0}, v221
        v_lshl_add_u32 v8, v2, 2, v3
        v_mul_u32_u24 v222, {RSP}, v8
        v_lshl_add_u32 v222, v4, 3, v222
        s_mul_i32 s{sT0}, s{sW}, 80
        v_add_u32 v222, s{sT0}, v222
        v_mul_u32_u24 v223, {RSV}, v8
        v_lshl_add_u32 v223, v4, 3, v223
        s_mul_i32 s{sT0}, s{sW}, 48
        s_add_u32 s{sT0}, s{sT0}, {L_V}
        v_add_u32 v223, s{sT0}, v223
        s_lshl_b32 s{sT0}, s{sHG}, 4
        s_add_u32 s{sT0}, s{sT0}, s{sMT}
        s_mul_i32 s{sT1}, s{sT0}, {PSZ}
        s_add_u32 s{sT1}, s{sT1}, {PP}
        s_mov_b32 s{sC0}, {fl(math.log2(math.e))}""".split("\n")]
        self.tag_update()
        self.valu(self.cvt_heads(16, KQ, 0) + self.cvt_heads(16, KQ + 10, 1))
        e.wait(lg='wphi')
        side = self.cvt_heads(56, VT, 0) + side[:38]; rest = [side.pop() for _ in range(0)]
        self.valu(self.phi_mfmas(KQ, PR), [[('x', l)] for l in side], 1)
        e(f"v_mov_b32 v{VT+10}, 0x3f80\nv_mov_b32 v{VT+11}, 0\ns_mov_b32 s{sC0}, {fl(math.log2(math.e))}\ns_barrier")
        for i in range(3): e.lgop(f"ds_write_b128 v220, {vr(VT+4*i)} offset:{i*16}", 'vw')
        for j in range(2):
            for i in (3, 2, 1, 0): e(self.tag_put(128 + 4 * j + i, 128 + 4 * j))
            e.vmop(f"buffer_store_dwordx4 {vr(128+4*j)}, v234, {srd(SWS)}, s{sT3} offen offset:{j*256} sc1", 'hst')
        L0 = self.softmax_lines(PR, 16, 136)
        self.valu(L0[:16], bg=ALL, S=Sa)
        self.valu(self.cvt_heads(56, 208, 1) + ["v_mov_b32 v218, 0x3f80", "v_mov_b32 v219, 0"], bg=ALL, S=Sa)
        for i in range(3): e.lgop(f"ds_write_b128 v220, {vr(208+4*i)} offset:{16*RSV + i*16}", 'vw')
        self.valu(L0[16:], bg=ALL, S=Sa)
        PH = (136, 56)
        pw = lambda j: [[('lg', f"ds_write_b128 v221, {vr(PH[j]+4*i)} offset:{j*16*RSP + i*16}", 'pw')] for i in range(5)]
        L1 = self.softmax_lines(PR + 20, 16, 56)
        self.valu(L1[:40], pw(0), 8, ALL, Sa)
        self.valu(L1[40:-20], bg=ALL, S=Sa)
        self.valu(L1[-20:], pw(1), 4)
        e.wait(lg_all=True); e("s_barrier")
        self.stamp(2)
        mf = []; reads = []; D0 = 168
        for s_ in range(4):
            b0 = 16 + s_ * 20; m0 = len(mf)
            for dt in range(2):
                for rd in range(2): reads.append([f"ds_read_b64_tr_b16 v[{b0+12+4*dt+2*rd}:{b0+13+4*dt+2*rd}], v223 offset:{(32*s_+16*rd)*RSV + dt*32}", m0 + dt, -1, -1])
            for ft in range(3):
                for rd in range(2): reads.append([f"ds_read_b64_tr_b16 v[{b0+4*ft+2*rd}:{b0+4*ft+2*rd+1}], v222 offset:{(32*s_+16*rd)*RSP + ft*32}", m0 + 2 * ft, -1, -1])
                for dt in range(2):
                    d = D0 + (ft * 2 + dt) * 4
                    mf.append(f"v_mfma_f32_16x16x32_bf16 {vr(d)}, {vr(b0+4*ft)}, {vr(b0+12+4*dt)}, {vr(d) if s_ else 0}")
        reads.sort(key=lambda r: r[1]); rp = 0
        for m in range(24):
            while rp < 40 and (len(e.lg) < 14 and (m == 0 or reads[rp][1] <= m + 8) or reads[rp][1] <= m): e.lgop(reads[rp][0], ('kv', reads[rp][1])); rp += 1
            e.wait(lg=[('kv', k) for k in range(m + 1)])
            e(mf[m])
            if c.kvb: self.bg_try(ALL, c.kvb)
        self.gelu_consts()
        e(f"""s_lshl_b32 s{sT4}, s{sMT}, 1
        s_lshr_b32 s{sT5}, s{sW}, 1
        s_add_u32 s{sT4}, s{sT4}, s{sT5}
        s_and_b32 s{sT5}, s{sW}, 1
        s_mul_i32 s{sT3}, s{sT4}, 74
        s_lshl_b32 s{sKW}, s{sHG}, 1
        s_add_u32 s{sT3}, s{sT3}, s{sKW}""")
        for ft in range(3):
            for dt in range(2):
                for i in range(4): e(self.tag_put(D0 + (ft * 2 + dt) * 4 + i))
                e.vmop(f"buffer_store_dwordx4 {vr(D0+(ft*2+dt)*4)}, v{241+2*dt+(ft==2)}, {srd(SWS)}, s{sT1} offen offset:{ft*1024} sc1", 'pst')
        self.stamp(3)
        if c.stamps: self.gelu_consts()
        e(f"""s_add_u32 s{sT3}, s{sT3}, 38
        s_lshl_b32 s{sT3}, s{sT3}, 12
        s_lshl_b32 s{sT5}, s{sT5}, 11
        s_add_u32 s{sT3}, s{sT3}, s{sT5}
        s_add_u32 s{sT3}, s{sT3}, {A2}
        s_lshl_b32 s{sKW}, s{sMT}, 4
        s_add_u32 s{sKW}, s{sKW}, s{sHG}
        s_lshl_b32 s{sKW}, s{sKW}, 7
        s_add_u32 s{sKW}, s{sKW}, {F4+1024}
        s_cmp_eq_u32 s{sW}, 0
        s_cselect_b32 s{sKW}, s{sKW}, {OOB}
        s_mul_i32 s32, s{sT2}, 240
        s_mul_i32 s{sT4}, s{sHG}, {FSZ}
        s_add_u32 s{sT1}, s32, s{sT4}
        s_add_u32 s{sT1}, s{sT1}, {FIN}
        s_lshl_b32 s{sT4}, s{sT4}, 4
        s_add_u32 s32, s32, s{sT4}
        s_add_u32 s32, s32, {PP}
        s_add_u32 s33, s32, {4*PSZ}
        s_add_u32 s34, s33, {4*PSZ}
        s_add_u32 s35, s34, {4*PSZ}""")
        L = []; hs = []
        for p in range(2):
            for j in range(2):
                O = 152 + 4 * ((2 * p + j) % 4)
                L += self.gelu_lines(96 + (4 * p + j) * 4, 96 + (4 * p + 2 + j) * 4, 136 + 8 * j, O)
                hs.append(('vm', f"buffer_store_dwordx4 {vr(O)}, v{6 if p == 0 else 240}, {srd(SWS)}, s{sT3} offen offset:{j*1024} sc1", 'hst'))
        RD = 116
        pld = [f"buffer_load_dwordx4 {vr(RD+4*i)}, v12, {srd(SWS)}, s{32+i} offen sc1" for i in range(4)]
        self.valu(L, bg=ALL if c.kgb else None, S=Sa)
        for l in pld: e.vmop(l, 'pld')
        if c.kp4 == 0: self.poll4a_issue()
        self.emit_items(hs)
        pool = [[('v', r), 999] for r in list(range(168, 224, 4)) + list(range(136, 168, 4))]
        for _ in range(c.kb2): self.bg_try(ALL, -9999)
        self.stamp(4)
        def h_r2():
            red = [self.tag_strip(RD + i) for i in range(16)]
            red += [f"v_add_f32 v{RD+i}, v{RD+i}, v{RD+4+i}" for i in range(4)] + [f"v_add_f32 v{RD+8+i}, v{RD+8+i}, v{RD+12+i}" for i in range(4)] + [f"v_add_f32 v{RD+i}, v{RD+i}, v{RD+8+i}" for i in range(4)]
            for sw in ('32', '16'):
                red += [f"v_mov_b32 v{RD+4+i}, v{RD+i}" for i in range(4)] + [f"v_permlane{sw}_swap_b32 v{RD+i}, v{RD+4+i}" for i in range(4)] + [f"v_add_f32 v{RD+i}, v{RD+i}, v{RD+4+i}" for i in range(4)]
            red += [self.tag_put(RD + i) for i in range(4)]
            it = [('st', 14, 1), ('wvm', 'pld')] + [('x', l) for l in self.tag_check(pld, range(RD, RD + 16), 9)] + [('st', 5, 1)] + [('x', l) for l in red]
            it += [('vm', f"buffer_store_dwordx4 {vr(RD)}, v13, {srd(SWS)}, s{sT1} offen sc1", 'fst')]
            self.emit_items(it); pool.extend([[('v', r), 999] for r in range(RD, RD + 20, 4)])
        def h_f4():
            e.wait(vm='hst'); e("s_barrier"); e.vmop(self.flag_store(245, 246, f"s{sKW}"), 'f4st')
        h_r2()
        if c.f4k < 0: h_f4()
        if c.kp4 == 1:
            self.poll4a_issue()
            for _ in range(c.kb3): self.bg_try(ALL, -9999)
        self.ph2_begin(pool)
        while len(self.Bpend) > c.kleft: self.bg_try(ALL, -9999)
        self.stamp(6)
        self.bias2()
        self.phase2({c.f4k: h_f4, c.p1: self.poll4b_issue, c.c1: self.poll4b_check})

    def kloop(self, mf, reads, nm, dma_stage, poison, name):
        e = self.e; c = self.c; back = []
        def mksync(st):
            def f(m):
                tg = [it[2] for g in back for it in (g[1] if g[0] == 'atomic' else g) if it[0] == 'vm']
                assert not (st == c.pks and 'packld' in tg) and not (st == c.pks + 3 and 'pkst' in tg) and not (st == 3 and 'misc' in tg) and ('S', st) not in tg
                e.wait(vm=[('S', st)] + (['pkst'] if st == c.pks + 3 else []) + (['misc'] if st == 3 else []) + (['packld'] if st == c.pks else []), lg_all=True); e("s_barrier")
                self.stamp(st + 1, 2)
                if st < 3: self.stamp(7 + st, 3)
                if st == 2: self.pstamp_flush()
                out = []
                if st == 0 and c.n1 < 12:
                    back.extend(dma_stage(1)[c.n1:])
                    back.append(('atomic', self.record(lambda: self.small_dma(SM, 6, "s36", None, 50, 'misc', "s_mov_b32 m0, s37"))))
                if st + 2 < 10: back.extend(dma_stage(st + 2))
                if st == c.pkl and c.n1 < 12: back.extend(self.pack_loads())
                if st == c.pks: back.extend(self.pack_stores())
                if c.f1s < st < 8 or (st == c.f1s and st < 8 and c.f1c + 8 < nm - 16):
                    for u in self.Bpend[:c.bk]: self.Bpend.remove(u); back.append(self.B_take([u])[0])
                need = max([k + 1 for k, g in enumerate(back) if g[0] != 'atomic' and g[-1][2] == ('S', st + 1)], default=0)
                n = min(len(back), max(c.quota, need)) if st < 7 else len(back)
                take = back[:n]; del back[:n]
                if take:
                    pc = self.paced([g[1] if g[0] == 'atomic' else g for g in take], m, nm - c.dtail)
                    for f, g in zip(pc, take):
                        if g[0] == 'atomic': f['atomic'] = 1
                    out += pc
                if c.touch == 4: out += [dict(at=m + nm - c.dtail + 1, chain=1, ins=self.touch3(p_)) for p_ in range(c.tp0, 3) if c.tst[p_] == st]
                if st in c.cpf: out.append(dict(at=m + nm - c.dtail + 2, ins=self.code_touch('L_QH' if name == 'KV' else 'L_end')))
                if st == c.pks: out += self.pack_fill(m, nm)
                if st == c.pks + 3: out.append(dict(at=m + 1, ins=[('vm', self.flag_store(245, 246, f"s{sF1}"), 'f1st')]))
                if st == 3: out += [dict(at=m + 3 + 5 * k, ins=g) for k, g in enumerate(self.wphi_reads(254))]
                if st == c.f1s - 1: g = self.f1_issue()[0]; out += [dict(at=m + nm - 30, ins=g[:-1]), dict(at=m + nm - c.dtail, chain=1, ins=g[-1:])]
                if st == c.f1s:
                    chk = [dict(at=m + c.f1c + 2 * k, ins=[it]) for k, it in enumerate(self.f1_check())]
                    out += chk
                    if c.bt: out += [dict(at=m + c.f1c + 26 + c.btsp * k, ins=g) for k, g in enumerate(self.btouch())]
                if st == 9 and name == 'KV': out.append(dict(at=m + 4, ins=self.record(self.tag_issue)))
                if st == 8:
                    if poison: out += self.paced(poison, m, 30)
                    self.bg0 = max(m + c.bgs, (m + c.f1c + 8) if c.f1s == 8 else 0)
                return out
            return f
        self.bg0 = 9999; self.wphi_addr(254)
        self.stream(mf, reads, [], {st: mksync(st) for st in range(10)}, name=name, bg=lambda m: (lambda u: m >= self.bg0 and u < 51))
        self.stamp(1); self.stamp(11, 2)
        self.typ = name
        if c.dly == (1 if name == 'KV' else 2): e(f's_sleep {c.dlyn}')
        self.ph2_pre()

    def ph2_pre(self):
        e = self.e
        mk_srd(e, SM, pB2, 1280); mk_srd(e, SPK, pOUT, 2048 * 1280)
        e(f"""s_mul_i32 s{sM0}, s{sNB}, 160
        s_and_b32 s{sM0+1}, s{sNB}, 1
        s_lshl_b32 s{sM0+2}, s{sM0+1}, 5
        s_add_u32 s{sM0+2}, s{sM0+2}, s{sM0}
        s_xor_b32 s{sM0+1}, s{sM0+1}, 1
        s_lshl_b32 s{sM0+1}, s{sM0+1}, 7
        s_add_u32 s{sM0+1}, s{sM0+1}, s{sM0}
        s_min_u32 s{sM0+3}, s{sW}, 1
        s_mul_i32 s{sM0+3}, s{sM0+3}, 1280
        s_sub_u32 s{SM+2}, 1280, s{sM0+3}
        s_lshr_b32 s{sM0+5}, s{sRB}, 1
        s_lshl_b32 s{sM0+3}, s{sM0+5}, 11
        s_add_u32 s{sM0+3}, s{sM0+3}, {F4}
        s_add_u32 s{sM0+4}, s{sM0+3}, 1024
        v_and_b32 v235, 7, v0
        v_lshlrev_b32 v235, 7, v235""")
        e("v_lshlrev_b32 v7, 4, v2\nv_lshlrev_b32 v8, 3, v2")
        e.vmop(f"buffer_load_dwordx4 v[224:227], v7, {srd(SM)}, s{sM0+2} offen", 'b2')
        e.vmop(f"buffer_load_dwordx4 v[228:231], v7, {srd(SM)}, s{sM0+2} offen offset:64", 'b2')
        e.vmop(f"buffer_load_dwordx2 v[232:233], v8, {srd(SM)}, s{sM0+1} offen", 'b2')
    def poll4a_issue(self): self.e.vmop(self.poll_issue(235, 252, 2, None, f"s{sM0+3}"), 'p4a')

    def poll4b_issue(self): self.e.vmop(self.poll_issue(235, 252, 2, None, f"s{sM0+4}"), 'p4b')
    def poll4b_check(self):
        e = self.e
        self.stamp(10)
        e.wait(vm='p4b')
        for l in self.poll_check([(235, 252, 2, f"s{sM0+4}")]): e(l)
        self.stamp(11)
        self.gate[1] = True; self.g_loads()
        for _ in range(self.c.burst): self.try_issue(self.m, True)
    def g_loads(self):
        e = self.e
        e(f"s_lshl_b32 s{sT0}, s{sRB}, 10\ns_add_u32 s{sT0}, s{sT0}, {GB}\nv_lshlrev_b32 v7, 4, v1")
        for jj in range(4):
            e(f"v_subrev_u32 v8, v6, v{236+jj}\nv_lshrrev_b32 v8, 2, v8\nv_add_u32 v8, v8, v7")
            e.vmop(f"buffer_load_dword v{241+jj}, v8, {srd(SWS)}, s{sT0} offen sc1", 'g')
    def bias2(self):
        e = self.e; BI = 96
        e.wait(vm='b2')
        for t in range(5):
            for h in range(2):
                s_ = 224 + 2 * t + h
                e(f"v_lshlrev_b32 v{BI+4*t+2*h}, 16, v{s_}\nv_and_b32 v{BI+4*t+2*h+1}, 0xffff0000, v{s_}")

    def ph2_begin(self, pool):
        e = self.e; c = self.c
        e.wait(vm='p4a')
        for l in self.poll_check([(235, 252, 2, f"s{sM0+3}")]): e(l)
        self.pool = pool; self.busy = []; self.Aloc = {}; self.Bl = dict(self.Bloc); self.Acur = {}
        groups = [(0, 1), (2, 3), (4, 5), (6, 7), (8, 9), (10, 11), (12, 13), (14, 15), (16, 17, 18)]
        self.mf = [(i, t, j) for g in groups for t in range(5) for j in range(4) for i in g]
        fA, lA, fB, lB = {}, {}, {}, {}
        for m, (i, t, j) in enumerate(self.mf):
            fA.setdefault((i, j), m); lA[(i, j)] = m; fB.setdefault((i, t), m); lB[(i, t)] = m
        self.lA, self.lB = lA, lB
        w = [('A', k, fA[k] if k[0] < 14 else (280 if k[0] < 16 else 320) - c.vlead - 1, lA[k]) for k in fA]
        w += [('S', k, fB[k], lB[k]) for k in fB if self.Bl[k] and self.Bl[k][0] == 'l']
        w += [('B', k, fB[k], lB[k]) for k in fB if self.Bl[k] is None]
        self.fB = fB
        self.work = sorted(w, key=lambda x: (x[2] // 40 * 40 + x[1][0] % 2 * 4 + x[1][1]) if (x[0] == 'A' and c.aord and x[1][0] < 14) else x[2]); self.gate = {0: True, 1: False, 2: False, 3: False}; self.Atxt = {}; self.lastiss = -99; self.m = 0
        for _ in range(c.a0): self.try_issue(0, True)

    def try_issue(self, m, force=False, nos=False):
        e = self.e; c = self.c; pool = self.pool
        cls = lambda i: 0 if i < 10 else (1 if i < 14 else 2 if i < 16 else 3)
        for w in self.work:
            kind, k, dl, last = w
            if kind == 'A' and not self.gate[cls(k[0])]: continue
            if kind == 'S' and (nos or dl - m > 16 or self.Border.index(k) in self.Bpend): continue
            if kind != 'S' and not force and dl - m >= 12 and e.t - e.tvm < (c.S2 if dl - m >= c.urg else c.S3): continue
            if kind == 'P':
                self.Bpend.remove(k); self.emit_items(self.B_take([k])[0]); self.work.remove(w); return True
            ok = [p for p in pool if p[1] > last and p not in self.busy and (p[0][0] == 'v' or kind != 'A' or k[0] < 14)]
            if not (kind == 'A' and k[0] >= 14): ok.sort(key=lambda p: p[0][0] == 'v' and m > 150)
            if len(ok) < (1 if dl - m <= 40 else 4 if kind == 'A' else 7): continue
            p = ok[0]; pool.remove(p); loc = p[0]; self.until[loc] = p[1]
            if kind == 'A':
                i, j = k; sr = sAT if i % 2 == 0 else sAT2
                if self.Acur.get(sr) != i:
                    e(self.soff(sr, i, 'A')); self.Acur[sr] = i
                e.vmop(f"buffer_load_dwordx4 {R(loc)}, v{236+j}, {srd(SWS)}, s{sB if c.xA == 1 and i < 14 else 41 if c.xA == 2 else sr} offen sc1", ('A', k)); self.Aloc[k] = loc
                self.Atxt[k] = self.soff(sT1, i, 'A').split("\n") + [ f"buffer_load_dwordx4 {R(loc)}, v{236+j}, {srd(SWS)}, s{sT1} offen sc1"]
            elif kind == 'B':
                self.emit_items(self.B_items(k, loc)); self.Bl[k] = loc
            else:
                e.wait(vm=('B', k))
                e.lgop(f"ds_read_b128 {R(loc)}, v234 offset:{self.Bl[k][1]*1024}", ('S', k)); self.Bl[k] = loc
            if kind != 'S': self.lastiss = m
            if c.verbose > 1: print(f'{kind}{k}@{m}->{dl}', end=' ')
            self.work.remove(w); return True
        return False

    def phase2(self, hooks):
        e = self.e; c = self.c
        ACC = 16; BI = 96; pool = self.pool; mf = self.mf; Bl = self.Bl; Aloc = self.Aloc
        mtrans = min(m for m, x in enumerate(mf) if x[0] >= 14)
        if c.verbose: print("B loads left for phase 2:", len(self.Bpend))
        hooks = {k: v for k, v in hooks.items() if k >= 0}
        for u in self.Bpend:
            k = self.Border[u]; self.work.append(('P', u, self.fB[k] - (20 if self.Bloc[k][0] == 'l' else 0), 0))
        self.work.sort(key=lambda x: (x[2] // 40 * 40 + x[1][0] % 2 * 4 + x[1][1]) if (x[0] == 'A' and c.aord and x[1][0] < 14) else x[2])
        e(f"s_add_u32 s{sT0}, s88, {L_BL}\nv_add_u32 v234, s{sT0}, v6")
        pool += [[('v', r), 999] for r in (224, 228)]
        if c.dly == (3 if self.typ == 'KV' else 4): e(f's_sleep {c.dlyn}')
        seen = set(); vchk = {280: (14, 15), 320: (16, 17, 18)}
        aq = []
        lastH = {}; firstO = {}; lastO = {}
        for m, (i, t, j) in enumerate(mf):
            if i < 14: lastH[(j, t)] = m
            else: firstO.setdefault((j, t), m); lastO[(j, t)] = m
        g0 = min(lastH.values()) - 10
        aq.append([g0, g0 + 4, ('wvm', 'g')])
        for jj in range(4): aq += [[g0, g0 + 8, ('x', self.tag_strip(241 + jj))]]
        for jj in range(4): aq += [[g0, g0 + 12, ('x', f"v_sub_f32 v{241+jj}, 1.0, v{241+jj}")]]
        for k in sorted(lastH, key=lambda k: lastH[k]):
            jj, tt = k; d = ACC + (jj * 5 + tt) * 4
            for q in range(4): aq.append([lastH[k] + 3, firstO[k] - 2, ('x', f"v_mul_f32 v{d+q}, v{241+jj}, v{d+q}")])
        adr = []
        for jj in range(1, 4):
            adr += [f"s_add_u32 s{sT0}, s{sW}, {jj}", f"s_and_b32 s{sT0}, s{sT0}, 3", f"s_mul_i32 s{sT0}, s{sT0}, 15360",
                    f"s_add_u32 s{sT0}, s{sT0}, {L_RED + (jj-1)*5120}", f"v_add_u32 v{8+jj}, s{sT0}, v6"]
        adr += [l.strip() for l in f"""s_mul_i32 s{sT0}, s{sW}, 15360
        s_add_u32 s{sT0}, s{sT0}, {L_RED}
        v_add_u32 v8, s{sT0}, v6
        s_lshl_b32 s{sT0}, s{sRB}, 2
        s_add_u32 s{sT0}, s{sT0}, s{sW}
        s_mul_i32 s{sT0}, s{sT0}, {16*1280}
        s_add_u32 s{sT3}, s{sT0}, s{sM0+2}
        s_add_u32 s{sT2}, s{sT0}, s{sM0+1}
        v_mul_u32_u24 v12, 1280, v1
        v_lshl_add_u32 v13, v2, 3, v12
        v_lshl_add_u32 v12, v2, 4, v12""".split("\n")]
        for l in adr: aq.append([c.adr0, 325, ('x', l)])
        for k in sorted(lastO, key=lambda k: lastO[k]):
            jj, tt = k
            if jj: aq.append([lastO[k] + 3, 999, ('lg', f"ds_write_b128 v{8+jj}, {vr(ACC+(jj*5+tt)*4)} offset:{tt*1024}", 'rw')])
        self.aq = aq
        for m, (i, t, j) in enumerate(mf):
            self.m = m
            if m == mtrans: self.stamp(7)
            assert (i, j) in Aloc and Bl[(i, t)] and Bl[(i, t)][0] != 'l', (m, i, t, j)
            assert not any(a[1] < m for a in aq), (m, aq[0])
            e.wait(vm=[('A', (i, j)), ('B', (i, t))], lg=('S', (i, t)))
            d = ACC + (j * 5 + t) * 4
            cc = vr(d) if (j, t) in seen else vr(BI + 4 * t); seen.add((j, t))
            e(f"v_mfma_f32_16x16x32_bf16 {vr(d)}, {R(Bl[(i, t)])}, {R(Aloc[(i, j)])}, {cc}")
            k0 = len(e.ins)
            for loc, last in ((Aloc[(i, j)], self.lA[(i, j)]), (Bl[(i, t)], self.lB[(i, t)])):
                if last == m: pool.append([loc, self.until.get(loc, 999) if self.until.get(loc, 999) > m else 999])
            if m == 40: pool.extend([[('v', BI + 4 * k), 999] for k in range(5)])
            if m == 200 and c.dly == (5 if self.typ == 'KV' else 6): e(f's_sleep {c.dlyn}')
            if m == c.o1: self.gate[2] = True
            if m == c.o2: self.gate[3] = True
            if m + 1 + c.vlead in vchk:
                mv = m + 1 + c.vlead; ks = [(ii, jj) for ii in vchk[mv] for jj in range(4)]
                assert all(k in Aloc for k in ks), (m, ks)
                vq = [('wvm', [('A', k) for k in ks])] + [('x', l) for l in self.valid_check(sum([self.Atxt[k] for k in ks], []), [Aloc[k][1] + q for k in ks for q in range(4)], 7)]
                if mv == 280: vq = [('st', 12, 1)] + vq + [('st', 13, 1), ('open',)]
                aq[:0] = [[m, mv - 1, it] for it in vq]
            if m in hooks: hooks[m]()
            self.try_issue(m)
            while any(w[2] - m < 4 for w in self.work) and self.try_issue(m): pass
            while True:
                av = [a for a in aq if a[0] <= m]
                if not av: break
                hurry = any(sum(1 for b in aq if b[1] <= a[1]) > 2 * (a[1] - m) for a in aq if a[1] < 999)
                a = min(av, key=lambda a: a[1])
                if len(e.ins) - k0 >= 2 and not hurry: break
                if a[2][0] == 'lg' and any(x.kind in ('dsw', 'dsr', 'vload', 'dma') for x in e.ins[k0:]): break
                aq.remove(a)
                if a[2][0] == 'open':
                    self.gate[3] = True
                    for _ in range(c.burst3): self.try_issue(m, True)
                elif a[2][0] == 'call': a[2][1]()
                else: self.emit_items([a[2]])
        assert not self.work, self.work
        self.stamp(8)
        for a in aq: self.emit_items([a[2]])
        e.wait(lg_all=True); e("s_barrier")
        for t in range(5):
            for s_ in range(3): e.lgop(f"ds_read_b128 {vr(116+(t*3+s_)*4)}, v8 offset:{s_*5120+t*1024}", ('rr', t))
        for t in range(5):
            e.wait(lg=('rr', t)); d = ACC + t * 4; r = 116 + t * 12
            e(f"""v_pk_add_f32 v[{d}:{d+1}], v[{d}:{d+1}], v[{r}:{r+1}]
            v_pk_add_f32 v[{d+2}:{d+3}], v[{d+2}:{d+3}], v[{r+2}:{r+3}]
            v_pk_add_f32 v[{r+4}:{r+5}], v[{r+4}:{r+5}], v[{r+8}:{r+9}]
            v_pk_add_f32 v[{r+6}:{r+7}], v[{r+6}:{r+7}], v[{r+10}:{r+11}]
            v_pk_add_f32 v[{d}:{d+1}], v[{d}:{d+1}], v[{r+4}:{r+5}]
            v_pk_add_f32 v[{d+2}:{d+3}], v[{d+2}:{d+3}], v[{r+6}:{r+7}]
            v_cvt_pk_bf16_f32 v{96+2*t}, v{d}, v{d+1}
            v_cvt_pk_bf16_f32 v{97+2*t}, v{d+2}, v{d+3}""")
            if t == 1: e.vmop(f"buffer_store_dwordx4 v[96:99], v12, {srd(SPK)}, s{sT3} offen {c.osc}", 'o')
            if t == 3: e.vmop(f"buffer_store_dwordx4 v[100:103], v12, {srd(SPK)}, s{sT3} offen offset:64 {c.osc}", 'o')
            if t == 4: e.vmop(f"buffer_store_dwordx2 v[104:105], v13, {srd(SPK)}, s{sT2} offen {c.osc}", 'o')
        self.stamp(9)
        e("s_endpgm")

    def build(self):
        e = self.e
        self.prologue()
        st = (list(e.vm), list(e.lg))
        self.until = {}
        self.prog_KV()
        e.vm, e.lg = list(st[0]), list(st[1])
        self.until = {}
        self.prog_QH()
        e("\n".join(self.tail))
        e("L_end:\ns_endpgm")
        body = e.finish()
        hdr = open('cdna_kernels/' + NAME + '.s.ref').read().split('; Override launch')[0]
        K = NAME + "_kernel"
        out = hdr + "; Generated by a hand-written Python generator (persistent fused kernel; see comments in the generator).\n"
        out += "; @launch grid=(256,1,1) block=(256,1,1) lds=163840\n"
        out += f'.amdgcn_target "amdgcn-amd-amdhsa--gfx950"\n.text\n.globl {K}\n.p2align 8\n.type {K},@function\n{K}:\n' + body
        out += f""".fill 64, 4, 0xbf800000
.section .rodata,"a"
.p2align 6
.amdhsa_kernel {K}
  .amdhsa_next_free_vgpr 512
  .amdhsa_next_free_sgpr 102
  .amdhsa_accum_offset 256
  .amdhsa_group_segment_fixed_size 0
  .amdhsa_kernarg_size 104
  .amdhsa_user_sgpr_count 2
  .amdhsa_user_sgpr_kernarg_segment_ptr 1
  .amdhsa_system_sgpr_workgroup_id_x 1
.end_amdhsa_kernel
"""
        return out

for k_, v_ in dict(rot=3, par=0, bk=0, dfr=2, kpl=80, khs=0, kb4=10, qb2=6, qb3=6, qfo=0, a0q=12, kp4=1, dly=0, dlyn=16, kvb=0, VC=64, cnt=0, cpf=(), aord=1, nochk=0, skip=0, fast=1, n1=12, quota=16, pkl=0, tp0=1, tst=(0, 0, 1), sp1=24, tlb=0, tlb2=0, pks=2, pke=0, f1s=8, bt=0, btsp=20, bgs=4, qleft=0, kpre=180, kord=0, kgb=1, tmask=7, wbl=0, exit_at=-1, only=0, dstamp=0, xsc='', wsc='', psc='nt', pss='sc1', xA=0, S=48, S2=32, urg=50, S3=0, kb3=8, xB=0, mix=0, perm=0, kf1=60, pe=20, pe2=20, dtail=4, qb0=14, qb1=22, se=10, a0=14, ap=4, osc='sc1 nt', touch=1, kvring=3, f1c=24,
                   f4at=20, pa=100, pb=144, p3=30, c3=58, r1=30, r2=70, rspan=24, kbeg=0, kb1=20, kpa=60, mo=79, p1q=100, c1q=150, Sa=64, kb2=6, kleft=99, Sg=100, o2=226, o1=210, vlead=14, adr0=205, burst3=12, sleep2=1, f4k=-1, p1=130, c1=158, burst=4).items():
    setattr(Cfg, k_, v_)

def generate(**kw):
    c = Cfg()
    for k, v in kw.items(): setattr(c, k, v)
    g = Gen(c); g.e.VC = c.VC; t = g.build()
    return t, g

if __name__ == "__main__":
    kw = {}
    for a_ in sys.argv[2:]:
        k, v = a_.split('='); kw[k] = tuple(map(int, v.split(','))) if ',' in v else int(v, 0) if v.lstrip('-')[0].isdigit() else v.replace('+', ' ')
    t, g = generate(**kw)
    open(sys.argv[1], 'w').write(t)
    print("instructions:", len(g.e.ins), "nops added:", g.e.nop_added)
```

```python
import sys, math
from emit import Emit
NAME = "gated_mix__linear_kernel_hedgehog__dense_activation_gelu__prompt"

TAG = 0x0
F1 = 0x18000
F2 = 0x2000; F3 = 0x6000; F4 = 0xa000; F5 = 0x12000
STAMP = 0x1000000
GB = 0x280000
PP = 0x40000; PSZ = 15360
FIN = 0x240000; FSZ = 15360
PB = 0x300000
A2 = 0x600000
OOB = 0x7ff00000

K1 = 1024
QH_ST = 46 * K1; KV_ST = 44 * K1
MISC = 154 * K1
L_WPHI = MISC; L_GATE = MISC + 3200; L_BIASKV = MISC + 4480; L_BIASQH = MISC + 3200
L_PACK = 138 * K1
WH0 = 114 * K1; WH5 = 74 * K1
L_PHI = 0; RSP = 352; L_V = 128 * RSP; RSV = 224
L_BL = 72 * K1
NL = 18
L_RED = 0
L_FIN = 64 * K1

sW = 3
SX, SQ, S1, SWS, SPK, SM = 4, 8, 12, 16, 20, 24
pX, pQKV, pPHI, pWO, pBX, pW1, pB1, pW2, pB2, pGATE, pOUT, pDBG, pWS = [32 + 2 * i for i in range(13)]
sTAG = 58
sMT, sHG, sRB, sNB = 60, 61, 62, 63
sE = 64
sT0, sT1, sT2, sT3, sT4, sT5 = 74, 75, 76, 77, 78, 79
sM0 = 80
sBT, sAT, sB9, sA9, sAT2 = 100, 101, 86, 87, 55
sAo, sBo, sA8, sB8 = 44, 45, 56, 57
sKW, sK1 = 89, 90
sF1 = 91
sPKD = 92
sA, sB = 96, 97
sC0, sC1 = 98, 99
sP0 = 28

PKA = 200
TB = 10; TBM = (1 << TB) - 1; sTB = 58
AW = 204
def srd(r): return f"s[{r}:{r+3}]"
def vr(r, n=4): return f"v[{r}:{r+n-1}]" if n > 1 else f"v{r}"
def ar(r, n=4): return f"a[{r}:{r+n-1}]"
def R(loc, n=4): return (vr if loc[0] == 'v' else ar)(loc[1], n)
def fl(x):
    import struct
    return hex(struct.unpack('<I', struct.pack('<f', x))[0])

class Cfg:
    rot = 1; map2 = 1; stamps = 0; LA = 12; spin = 200000; codepf = 1; lag = 2; th1 = 2; th2 = 4; minlead = 4; verbose = 0; sleep = 1

sKA, sKB = 0, 1
def mk_srd(e, r, p, nbytes):
    e(f"s_mov_b32 s{r}, s{p}\ns_and_b32 s{r+1}, s{p+1}, 0xffff\ns_mov_b32 s{r+2}, {nbytes}\ns_mov_b32 s{r+3}, 0x20000")

class Gen:
    def __init__(self, cfg):
        self.c = cfg; self.e = Emit(); self.tail = []; self.uid = 0; self.nstamp = 0
    def record(self, fn):
        real = self.e
        class Rec:
            def __init__(r): r.items = []; r.lg = []; r.vm = []
            def __call__(r, t):
                for l in t.strip("\n").split("\n"):
                    if l.strip(): r.items.append(('x', l.strip()))
            def vmop(r, t, tag=None): r.items.append(('vm', t, tag))
            def lgop(r, t, tag=None): r.items.append(('lg', t, tag))
        rec = Rec(); self.e = rec
        try: fn()
        finally: self.e = real
        return rec.items
    def cnt(self):
        if not self.c.cnt: return [], []
        self.ncnt = getattr(self, 'ncnt', 0) + 1; k = self.ncnt - 1
        post = ["s_load_dwordx2 s[46:47], s[40:41], 88", f"s_sub_u32 s54, {self.c.spin}, s54", "s_lshl_b32 s54, s54, 12", "s_add_u32 s54, s54, 1", "s_waitcnt lgkmcnt(0)",
                "v_mov_b32 v14, s54", "v_mov_b32 v15, 0", "s_mov_b64 exec, 1", f"global_atomic_add v15, v14, s[46:47] offset:{k*4}", "s_mov_b64 exec, -1"]
        return [], post
    def lab(self, p):
        self.uid += 1; return f"L_{p}_{self.uid}"
    def stamp(self, i, grp=1):
        if self.c.dstamp and grp == 1:
            slot = self.dmap.get(i)
            if slot is None: return
            e = self.e
            e(f"s_memrealtime s[{sC0}:{sC1}]\ns_load_dwordx2 s[46:47], s[40:41], 88\ns_waitcnt lgkmcnt(0)\nv_mov_b32 v14, s{sC0}\nv_mov_b32 v15, 0"); e.lg = []
            e("s_cmp_eq_u32 s3, 0\ns_cselect_b64 exec, 1, 0")
            L = self.lab('ds'); e(f"s_cbranch_execz {L}")
            e(f"global_atomic_umax v15, v14, s[46:47] offset:{slot*4}")
            if i == 0: e(f"v_mov_b32 v14, s54\nglobal_atomic_umax v15, v14, s[46:47] offset:4\nv_not_b32 v14, v14\nglobal_atomic_umax v15, v14, s[46:47] offset:0")
            e(f"{L}:\ns_mov_b64 exec, -1")
            return
        if not self.c.stamps or (i and self.c.stamps != grp): return
        if self.c.only and i not in (0, self.c.only): return
        e = self.e
        e(f"s_memrealtime s[{sC0}:{sC1}]\ns_memtime s[46:47]\ns_waitcnt lgkmcnt(0)"); e.lg = []
        e(f"v_mov_b32 v14, s{sC0}\nv_mov_b32 v15, s46")
        e(f"s_lshl_b32 s{sC0}, s2, 2\ns_add_u32 s{sC0}, s{sC0}, s{sW}\ns_lshl_b32 s{sC0}, s{sC0}, 7\ns_add_u32 s{sC0}, s{sC0}, {STAMP}")
        e.vmop(f"buffer_store_dwordx2 v[14:15], v245, {srd(SWS)}, s{sC0} offen offset:{i*8}", 'stamp')
        if self.c.exit_at == i and grp == 1: e("s_endpgm")
        if i == 0:
            e(f"v_mov_b32 v14, s54\nv_mov_b32 v15, s40")
            e.vmop(f"buffer_store_dwordx2 v[14:15], v245, {srd(SWS)}, s{sC0} offen offset:{15*8}", 'stamp')

    def pstamp(self, i):
        if self.c.stamps == 3: self.e(f"s_memtime s[100:101]\ns_waitcnt lgkmcnt(0)\nv_mov_b32 v{(248,249,250,251,235)[i]}, s100")
    def pstamp_flush(self):
        if self.c.stamps != 3: return
        e = self.e
        e(f"s_lshl_b32 s{sC0}, s2, 2\ns_add_u32 s{sC0}, s{sC0}, s{sW}\ns_lshl_b32 s{sC0}, s{sC0}, 7\ns_add_u32 s{sC0}, s{sC0}, {STAMP}")
        for i in range(5): e.vmop(f"buffer_store_dword v{(248,249,250,251,235)[i]}, v245, {srd(SWS)}, s{sC0} offen offset:{(2+i)*8+4} sc1", 'stamp')
    def dump(self, name, regs):
        if getattr(self.c, 'dbg', None) != name: return
        e = self.e
        e(f"s_lshl_b32 s{sBT}, s2, 2\ns_add_u32 s{sBT}, s{sBT}, s{sW}\ns_lshl_b32 s{sBT}, s{sBT}, 14\ns_add_u32 s{sBT}, s{sBT}, 0x2000000\nv_lshlrev_b32 v7, 2, v0")
        for i, r in enumerate(regs):
            e.vmop(f"buffer_store_dword v{r}, v7, {srd(SWS)}, s{sBT} offen offset:{(i%16)*256}", 'dbg')
            if i % 16 == 15: e(f"s_add_u32 s{sBT}, s{sBT}, 4096")
        e.wait(vm='dbg'); self.Bcur = None

    def poll_issue(self, vaddr, vdst, n, tag, soff="0"):
        suf = {2: 'dwordx2', 4: 'dwordx4'}[n]
        return f"buffer_load_{suf} {vr(vdst, n)}, v{vaddr}, {srd(SWS)}, {soff} offen sc1"
    def poll_check(self, loads):
        Ls, Lb = self.lab('slow'), self.lab('back')
        cmps = []; ors = []; k = 0
        prs = ['vcc', 's[28:29]', 's[30:31]', 's[46:47]']
        for (va, vd, n, so) in loads:
            for h in range(n // 2):
                cmps.append(f"v_cmp_ne_u64 {prs[k]}, s[{sTAG}:{sTAG+1}], v[{vd+2*h}:{vd+2*h+1}]")
                if k: ors.append(f"s_or_b64 vcc, vcc, {prs[k]}")
                k += 1
        cmps = cmps[::-1] if False else cmps
        fast = cmps + ors + [f"s_cbranch_vccnz {Ls}\n{Lb}:" if not (self.c.nochk & 1) else f"{Lb}:"]
        t = [f"{Ls}:", f"s_mov_b32 s54, {self.c.spin}", f"{Ls}_l:"]
        if self.c.sleep: t.append(f"s_sleep {self.c.sleep}")
        for (va, vd, n, so) in loads: t.append(self.poll_issue(va, vd, n, None, so))
        t += ["s_waitcnt vmcnt(0)"] + cmps + ors
        t += ["s_sub_u32 s54, s54, 1", f"s_cbranch_vccz {Ls}_x", "s_cmp_lg_u32 s54, 0", f"s_cbranch_scc1 {Ls}_l", f"{Ls}_x:"] + self.cnt()[1] + ["s_nop 4", f"s_branch {Lb}"]
        self.tail += t
        return fast
    def tag_check(self, reload, regs, acc):
        Ls, Lb = self.lab('slow'), self.lab('back')
        regs = list(regs); L = [f"v_xor_b32 v{acc}, s{sTB}, v{regs[0]}"]
        for r in regs[1:]: L.append(f"v_bitop3_b32 v{acc}, v{r}, s{sTB}, v{acc} bitop3:0xbe")
        L += [f"v_and_b32 v{acc}, {TBM}, v{acc}", f"v_cmp_ne_u32 vcc, 0, v{acc}"]
        t = [f"{Ls}:", f"s_mov_b32 s54, {self.c.spin}", f"{Ls}_l:"]
        if self.c.sleep: t.append(f"s_sleep {self.c.sleep2}")
        t += list(reload) + ["s_waitcnt vmcnt(0)"] + L
        t += ["s_sub_u32 s54, s54, 1", f"s_cbranch_vccz {Ls}_x", "s_cmp_lg_u32 s54, 0", f"s_cbranch_scc1 {Ls}_l", f"{Ls}_x:"] + self.cnt()[1] + ["s_nop 4", f"s_branch {Lb}"]
        self.tail += t
        return L + [f"s_cbranch_vccnz {Ls}\n{Lb}:" if not (self.c.nochk & 2) else f"{Lb}:"]
    def tag_put(self, r, src=None): return f"v_bfi_b32 v{r}, s42, v246, v{r if src is None else src}"
    def tag_strip(self, r): return f"v_and_b32 v{r}, {hex(0xffffffff ^ TBM)}, v{r}"
    def valid_check(self, reload, regs, acc):
        Ls, Lb = self.lab('slow'), self.lab('back')
        regs = list(regs); L = [f"v_max3_u32 v{acc}, v{regs[0]}, v{regs[1]}, v{regs[2 if len(regs) > 2 else 1]}"]
        r = regs[3:]
        for i in range(0, len(r), 2): L.append(f"v_max3_u32 v{acc}, v{acc}, v{r[i]}, v{r[min(i+1, len(r)-1)]}")
        L.append(f"v_cmp_eq_u32 vcc, -1, v{acc}")
        t = [f"{Ls}:", f"s_mov_b32 s54, {self.c.spin}", f"{Ls}_l:"]
        if self.c.sleep: t.append(f"s_sleep {self.c.sleep2}")
        t += list(reload) + ["s_waitcnt vmcnt(0)"] + L
        t += ["s_sub_u32 s54, s54, 1", f"s_cbranch_vccz {Ls}_x", "s_cmp_lg_u32 s54, 0", f"s_cbranch_scc1 {Ls}_l", f"{Ls}_x:"] + self.cnt()[1] + ["s_nop 4", f"s_branch {Lb}"]
        self.tail += t
        return L + [f"s_cbranch_vccnz {Ls}\n{Lb}:" if not (self.c.nochk & 4) else f"{Lb}:"]
    def flag_store(self, vaddr, vtag, soff="0"):
        return f"buffer_store_dwordx2 {vr(vtag, 2)}, v{vaddr}, {srd(SWS)}, {soff} offen sc1"

    def stream(self, mf, reads, fill, syncs=None, LA=None, name='', bg=None):
        e = self.e; LA = LA or self.c.LA
        reads = sorted(reads, key=lambda r: r[1]); rp = 0; synced = -1 if syncs else 99
        fq = sorted(fill, key=lambda f: f['at'])
        self.sid = getattr(self, 'sid', 0) + 1; sid = self.sid
        start = len(e.ins)
        def add_fill(items):
            lo = max([f['at'] for f in fq if f.get('chain')], default=-99)
            for f in items:
                if f.get('chain'): f['at'] = lo = max(f['at'], lo)
            fq.extend(items); fq.sort(key=lambda f: f['at'])
        def rd():
            nonlocal rp
            e.lgop(reads[rp][0], ('rd', sid, rp)); rp += 1
        if syncs: add_fill(syncs[0](0)); synced = 0
        while rp < len(reads) and reads[rp][1] < 8 and reads[rp][2] <= synced: rd()
        last_read = -99
        dl_of = {('rd', sid, i): r[1] for i, r in enumerate(reads)}
        def due(m): return [t for t in e.lg if t in dl_of and dl_of[t] <= m]
        ismem = lambda it: it[0] in ('vm', 'lg')
        for m in range(len(mf)):
            d = due(m)
            if d: e.wait(lg=d)
            e(mf[m])
            can = lambda: rp < len(reads) and reads[rp][2] <= synced and reads[rp][3] <= m and len(e.lg) < 15
            lead = lambda: reads[rp][1] - m
            if syncs and rp < len(reads) and reads[rp][2] > synced and m - last_read >= self.c.lag and lead() <= LA:
                synced = reads[rp][2]
                assert not any(it[0] == 'vm' and it[2] == ('S', synced) for f in fq for it in f['ins'])
                add_fill(syncs[synced](m + 1))
                if can(): rd(); last_read = m
                continue
            w = 1 if due(m + 1) else 0
            n = w; mem = 0
            if fq and fq[0]['at'] <= m:
                f = fq[0]
                if f.get('atomic'):
                    self.emit_items(f['ins']); n += len(f['ins']); mem += sum(map(ismem, f['ins'])); fq.pop(0)
                elif ismem(f['ins'][0]):
                    self.emit_items([f['ins'].pop(0)]); n += 1; mem += 1
                    if not f['ins']: fq.pop(0)
            if bg and mem == 0:
                k0 = len(e.ins)
                if self.bg_try(bg(m)): n += len(e.ins) - k0; mem += 1
            if can() and lead() <= LA and (mem == 0 or (lead() <= LA - self.c.th1 and not w)):
                rd(); n += 1; mem += 1; last_read = m
            if can() and mem == 1 and not w and lead() <= LA - self.c.th2:
                rd(); n += 1; mem += 1
            while can() and lead() <= self.c.minlead: rd(); n += 1; mem += 1; last_read = m
            while (n < 2 or (fq and fq[0]['at'] <= m - 2 and n < 3)) and fq and fq[0]['at'] <= m + 2 and not fq[0].get('atomic') and not ismem(fq[0]['ins'][0]):
                f = fq[0]; self.emit_items([f['ins'].pop(0)]); n += 1
                if not f['ins']: fq.pop(0)
            assert rp >= len(reads) or reads[rp][1] > m + 1, (m, reads[rp])
        for f in fq: self.emit_items(f['ins'])
        if self.c.verbose:
            tot = 0; g = None
            for i in e.ins[start:]:
                if i.label: continue
                if i.kind == 'mfma':
                    if g is not None: tot += max(16, g)
                    g = 8; prevmem = False
                elif g is not None:
                    mm = i.kind in ('dsr', 'dsw', 'vload', 'vstore', 'dma')
                    g += 8 if (mm and prevmem) else 4; prevmem = mm
            print(f"stream {name}: {len(mf)} mfma, est clks {tot} (ideal {16*len(mf)})")

    def prologue(self):
        e = self.e; c = self.c
        if c.stamps or c.dstamp: e("s_memrealtime s[54:55]\ns_memtime s[98:99]")
        e(f"""s_cmp_ge_u32 s2, 256
        s_cbranch_scc1 L_end
        s_load_dwordx16 s[32:47], s[0:1], 0
        s_load_dwordx4 s[48:51], s[0:1], 64
        s_load_dwordx2 s[52:53], s[0:1], 80
        s_load_dwordx2 s[56:57], s[0:1], 96""")
        if c.codepf:
            e(f"""s_getpc_b64 s[{sA}:{sB}]
            L_pf:
            s_lshr_b32 s{sT0}, s2, 3
            s_lshl_b32 s{sT0}, s{sT0}, 11
            v_lshrrev_b32 v1, 4, v0
            v_lshlrev_b32 v1, 7, v1
            v_add_u32 v1, s{sT0}, v1
            v_cmp_gt_u32 vcc, L_end-L_pf, v1
            v_cndmask_b32 v1, 0, v1, vcc""")
            e.vmop(f"global_load_dword v255, v1, s[{sA}:{sB}]", 'pf')
        e(f"""v_lshrrev_b32 v1, 6, v0
        v_and_b32 v0, 63, v0
        s_and_b32 s{sT0}, s2, 7
        v_readfirstlane_b32 s{sW}, v1
        s_lshr_b32 s{sT1}, s2, 3
        s_lshr_b32 s{sT2}, s{sT0}, 1
        s_and_b32 s{sT3}, s{sT1}, 3
        s_lshl_b32 s{sMT}, s{sT2}, 2
        s_add_u32 s{sMT}, s{sMT}, s{sT3}
        s_lshr_b32 s{sT4}, s{sT1}, 2
        s_and_b32 s{sHG}, s{sT0}, 1
        s_lshl_b32 s{sHG}, s{sHG}, 2
        s_and_b32 s{sT5}, s{sT4}, 3
        s_add_u32 s{sHG}, s{sHG}, s{sT5}""")
        if c.rot == 2:
            e(f"""s_mul_i32 s{sE}, s{sT2}, 5
            s_lshr_b32 s{sE}, s{sE}, 1
            s_and_b32 s{sT5}, s{sT0}, 1
            s_mul_i32 s{sT5}, s{sT5}, 5
            s_add_u32 s{sE}, s{sE}, s{sT5}
            s_cmp_ge_u32 s{sE}, 10
            s_cselect_b32 s{sT5}, 10, 0
            s_sub_u32 s{sE}, s{sE}, s{sT5}
            s_lshl_b32 s{sE}, s{sE}, 7""")
        elif c.rot == 3:
            e(f"s_xor_b32 s{sE}, s{sT3}, s{sT4}\ns_and_b32 s{sE}, s{sE}, 1\ns_lshl_b32 s{sE}, s{sE}, 7")
        else: e(f"s_mov_b32 s{sE}, 0")
        e(f"""v_and_b32 v1, 15, v0
        v_lshrrev_b32 v2, 4, v0
        v_bfe_u32 v3, v0, 2, 2
        v_and_b32 v4, 3, v0
        v_lshrrev_b32 v5, 3, v0
        v_lshlrev_b32 v6, 4, v0
        s_lshl_b32 s{sT2}, s{sMT}, 2
        s_add_u32 s{sT2}, s{sT2}, s{sW}
        s_mul_i32 s{sT2}, s{sT2}, {32*1280}
        v_xor_b32 v7, v2, v0
        v_and_b32 v7, 7, v7
        v_lshlrev_b32 v7, 4, v7
        v_mul_u32_u24 v8, 1280, v5
        v_add_u32 v8, s{sT2}, v8
        v_add_u32 v208, v8, v7
        v_xor_b32 v7, 64, v7
        v_add_u32 v209, v8, v7
        v_add_u32 v209, {10240-1024}, v209
        v_add_u32 v210, {2*(10240-1024)}, v208
        v_add_u32 v211, {2*(10240-1024)}, v209
        s_lshl_b32 s{sM0}, s{sW}, 12
""")
        if c.rot == 3: e(f"s_xor_b32 s{sE+1}, s{sE}, 128")
        else: e(f"s_add_u32 s{sE+1}, s{sE}, 128\ns_cmp_eq_u32 s{sE+1}, 1280\ns_cselect_b32 s{sE+1}, 0, s{sE+1}")
        for r, n in ((SX, 2048 * 1280), (SQ, 640 * 3840), (S1, 640 * 3456), (SM, 3456)): e(f"s_mov_b32 s{r+2}, {n}\ns_mov_b32 s{r+3}, 0x20000")
        e(f"s_bitcmp1_b32 s2, 7\ns_cbranch_scc1 L_QH")

    def kernarg_wait(self):
        e = self.e
        e("s_waitcnt lgkmcnt(0)"); self.pstamp(0)
        e(f"s_load_dwordx2 s[{sTAG}:{sTAG+1}], s[{pWS}:{pWS+1}], {TAG}")
        if self.c.stamps: e('s_mov_b32 s40, s98')
        if self.c.dstamp or self.c.cnt: e('s_mov_b64 s[40:41], s[0:1]')
        for r, p in ((SX, pX), (SM, pB1), (SQ, pQKV), (S1, pW1)): e(f"s_mov_b32 s{r}, s{p}\ns_and_b32 s{r+1}, s{p+1}, 0xffff")

    def pack_setup(self):
        e = self.e
        e(f"""s_lshl_b32 s{sT0}, s2, 2
        s_add_u32 s{sT0}, s{sT0}, s{sW}
        s_mul_i32 s{sT2}, s{sT0}, 886
        s_lshr_b32 s{sT2}, s{sT2}, 16
        s_mul_i32 s{sT1}, s{sT2}, 74
        s_sub_u32 s{sT1}, s{sT0}, s{sT1}
        s_sub_u32 s{sT3}, s{sT1}, 54
        s_and_b32 s{sT3}, s{sT3}, 63
        s_mul_i32 s{sT4}, s{sT3}, 52
        s_lshr_b32 s{sT4}, s{sT4}, 8
        s_mul_i32 s{sT5}, s{sT4}, 5
        s_sub_u32 s{sT5}, s{sT3}, s{sT5}
        s_mul_i32 s{sBT}, s{sT4}, 160
        s_lshr_b32 s{sAT}, s{sT5}, 1
        s_mul_i32 s{sAT}, s{sAT}, 80
        s_and_b32 s{sT3}, s{sT5}, 1
        s_lshl_b32 s{sT3}, s{sT3}, 3
        s_add_u32 s{sAT}, s{sAT}, s{sT3}
        s_cmp_eq_u32 s{sT5}, 4
        s_cselect_b32 s{sAT}, 16, s{sAT}
        s_cselect_b32 s{sT3}, 80, 4
        s_add_u32 s{sBT}, s{sBT}, s{sAT}
        s_lshl_b32 s{sAT}, s{sT1}, 5
        s_cmp_lt_u32 s{sT1}, 54
        s_cselect_b32 s{sBT}, s{sAT}, s{sBT}
        s_cselect_b32 s{sT3}, 16, s{sT3}""")
        self.csel(sT4, 4 * 1280 - 1024, 20 * 1280 - 1024)
        self.csel(SPK + 2, 1728 * 1280, 640 * 1280)
        e(f"""s_mov_b32 s{SPK+3}, 0x20000
        s_cmp_lt_u32 s{sT0}, 740
        s_cselect_b32 s{SPK+2}, s{SPK+2}, 0
        s_mul_i32 s{sBT}, s{sBT}, 1280
        s_lshl_b32 s{sAT}, s{sT2}, 7
        s_add_u32 s32, s{sBT}, s{sAT}
        s_add_u32 s33, s32, s{sT4}
        s_add_u32 s34, s33, s{sT4}
        s_add_u32 s35, s34, s{sT4}
        v_lshrrev_b32 v9, 5, v0
        v_mul_lo_u32 v9, v9, s{sT3}
        v_and_b32 v10, 3, v5
        v_add_u32 v9, v9, v10
        v_mul_u32_u24 v9, 1280, v9
        v_and_b32 v10, 7, v0
        v_lshl_add_u32 v252, v10, 4, v9
        v_lshlrev_b32 v9, 10, v2
        v_lshl_add_u32 v9, v3, 7, v9
        v_add_u32 v9, s{sM0}, v9
        v_add_u32 v9, {L_PACK}, v9""")
        for g in range(2):
            e(f"""s_lshl_b32 s{sT3}, s{sT2}, 1
            s_add_u32 s{sT3}, s{sT3}, {g}
            s_mul_i32 s{sT4}, s{sT3}, 52
            s_lshr_b32 s{sT4}, s{sT4}, 8
            s_mul_i32 s{sT5}, s{sT4}, 5
            s_sub_u32 s{sT5}, s{sT3}, s{sT5}
            s_cmp_eq_u32 s{sT5}, 2
            s_cselect_b32 s{sT3}, 3, 4
            s_cselect_b32 s{sAT}, 32, 8
            v_lshlrev_b32 v10, s{sT3}, v4
            v_add_u32 v{PKA+2*g}, v9, v10
            v_add_u32 v{PKA+1+2*g}, s{sAT}, v{PKA+2*g}
            s_mul_i32 s{sT4}, s{sT4}, 740
            s_mul_i32 s{sAT}, s{sT1}, 5
            s_add_u32 s{sT4}, s{sT4}, s{sAT}""")
            for a_ in range(2):
                d = sPKD + 2 * g + a_
                e(f"""s_lshl_b32 s{sT3}, s{sT5}, 1
                s_add_u32 s{sT3}, s{sT3}, {a_}
                s_add_u32 s{d}, s{sT3}, 364
                s_cmp_eq_u32 s{sT3}, 5
                s_cselect_b32 s{d}, 374, s{d}
                s_cmp_lt_u32 s{sT3}, 5
                s_cselect_b32 s{d}, s{sT3}, s{d}
                s_add_u32 s{d}, s{d}, s{sT4}
                s_lshl_b32 s{d}, s{d}, 10
                s_add_u32 s{d}, s{d}, {PB}
                s_cmp_lt_u32 s{sT0}, 740
                s_cselect_b32 s{d}, s{d}, {OOB}""")
        e(f"""s_cmp_lt_u32 s{sT1}, 54
        s_cselect_b32 s{SPK}, s{pW2}, s{pWO}
        s_cselect_b32 s{SPK+1}, s{pW2+1}, s{pWO+1}
        s_and_b32 s{SPK+1}, s{SPK+1}, 0xffff""")

    def common_setup(self):
        e = self.e; c = self.c
        e(f"s_and_b32 s{sT0}, s2, 7\ns_lshr_b32 s{sT1}, s2, 3\ns_lshr_b32 s{sT2}, s{sT0}, 1\ns_and_b32 s{sT3}, s{sT1}, 3\ns_lshr_b32 s{sT4}, s{sT1}, 2")
        if c.mix: e(f"s_lshr_b32 s{sT5}, s{sT1}, 2\ns_and_b32 s{sT5}, s{sT5}, 4\ns_xor_b32 s{sT5}, s{sT5}, s{sT1}" if c.map2 else
                    f"s_lshr_b32 s{sT5}, s{sT1}, 4\ns_xor_b32 s{sT5}, s{sT5}, s{sT1}")
        if c.map2:
            if c.mix: e(f"s_and_b32 s{sRB}, s{sT5}, 7\ns_bfe_u32 s{sT5}, s{sT1}, 0x20002")
            else: e(f"s_and_b32 s{sRB}, s{sT1}, 7\ns_lshr_b32 s{sT5}, s{sT1}, 3")
            e(f"""s_lshl_b32 s{sT2}, s{sT2}, 3
            s_add_u32 s{sRB}, s{sRB}, s{sT2}
            s_and_b32 s{sNB}, s{sT0}, 1
            s_lshl_b32 s{sNB}, s{sNB}, 2
            s_add_u32 s{sNB}, s{sNB}, s{sT5}""")
        else:
            if c.mix: e(f"s_bfe_u32 s{sNB}, s{sT1}, 0x30001\ns_and_b32 s{sT3}, s{sT5}, 1\ns_lshr_b32 s{sT5}, s{sT1}, 4\ns_bfe_u32 s{sT4}, s{sT1}, 0x10001\ns_xor_b32 s{sT5}, s{sT5}, s{sT4}\ns_and_b32 s{sT3}, s{sT1}, 1\ns_lshl_b32 s{sT5}, s{sT5}, 1\ns_add_u32 s{sT3}, s{sT3}, s{sT5}")
            else: e(f"s_mov_b32 s{sNB}, s{sT4}")
            e(f"s_lshl_b32 s{sRB}, s{sT0}, 2\ns_add_u32 s{sRB}, s{sRB}, s{sT3}")
        mk_srd(e, SWS, pWS, 0x10000000); mk_srd(e, SM, pPHI, 32 * 800)
        e(f"""s_lshl_b32 s{sT3}, s{sHG}, 2
        s_add_u32 s{sT3}, s{sT3}, s{sW}
        s_mul_i32 s36, s{sT3}, 800
        s_mul_i32 s37, s{sW}, 800
        s_add_u32 s37, s37, {L_WPHI}""")
        for i in range(2, 10):
            if c.rot == 3: e(f"s_add_u32 s{sE+i}, s{sE+i-2}, 256")
            else: e(f"s_add_u32 s{sE+i}, s{sE+i-1}, 128\ns_cmp_eq_u32 s{sE+i}, 1280\ns_cselect_b32 s{sE+i}, 0, s{sE+i}")
        e(f"""s_mul_i32 s{sB}, s{sNB}, 74
        s_add_u32 s{sB}, s{sB}, s{sW}
        s_mul_i32 s{sB}, s{sB}, 5120
        s_add_u32 s{sB}, s{sB}, {PB}
        s_mul_i32 s{sA}, s{sRB}, 74
        s_add_u32 s{sA}, s{sA}, s{sW}
        s_lshl_b32 s{sA}, s{sA}, 12
        s_add_u32 s{sA}, s{sA}, {A2}
        s_xor_b32 s{sT0}, s{sRB}, s{sNB}
        s_and_b32 s{sT0}, s{sT0}, {min(c.par, 1)}
        s_mul_i32 s{sT1}, s{sT0}, {4*5120}
        s_add_u32 s{sB8}, s{sB}, {32*5120}
        s_add_u32 s{sB8}, s{sB8}, s{sT1}
        s_add_u32 s{sB9}, s{sB}, {36*5120}
        s_sub_u32 s{sB9}, s{sB9}, s{sT1}
        s_mul_i32 s{sT1}, s{sT1}, {max(c.par, 1)}
        s_sub_u32 s{sBo}, s{sB}, s{sT1}
        s_add_u32 s{sB}, s{sB}, s{sT1}
        s_lshl_b32 s{sT1}, s{sT0}, 14
        s_add_u32 s{sA8}, s{sA}, {32*4096}
        s_add_u32 s{sA8}, s{sA8}, s{sT1}
        s_add_u32 s{sA9}, s{sA}, {36*4096}
        s_sub_u32 s{sA9}, s{sA9}, s{sT1}
        s_mul_i32 s{sT1}, s{sT1}, {max(c.par, 1)}
        s_sub_u32 s{sAo}, s{sA}, s{sT1}
        s_add_u32 s{sA}, s{sA}, s{sT1}
        s_lshr_b32 s{sT1}, s{sW}, 1
        s_and_b32 s{sT3}, s{sT1}, s{sT0}
        s_cselect_b32 s{sB8}, {OOB}, s{sB8}
        s_cselect_b32 s{sA8}, {OOB}, s{sA8}
        s_andn2_b32 s{sT3}, s{sT1}, s{sT0}
        s_cselect_b32 s{sB9}, {OOB}, s{sB9}
        s_cselect_b32 s{sA9}, {OOB}, s{sA9}
        s_mul_i32 s88, s{sW}, {NL*1024}
        v_add_u32 v240, 4096, v6""")
        for j in range(4):
            e(f"s_add_u32 s{sT3}, s{sW}, {j}\ns_and_b32 s{sT3}, s{sT3}, 3\ns_lshl_b32 s{sT3}, s{sT3}, 10\nv_add_u32 v{236+j}, s{sT3}, v6")
        e(f"""s_lshl_b32 s{sF1}, s2, 7
        s_add_u32 s{sF1}, s{sF1}, {F1}
        s_cmp_eq_u32 s{sW}, 0
        s_cselect_b32 s{sF1}, s{sF1}, {OOB}
        v_mov_b32 v245, {OOB}
        v_cmp_eq_u32 vcc, 0, v0
        v_cndmask_b32 v245, v245, 0, vcc""")

    def touch(self):
        e = self.e; c = self.c
        e(f"""s_cmp_eq_u32 s{sW}, 0
        s_cselect_b64 s[28:29], s[{SX}:{SX+1}], s[{S1}:{S1+1}]
        s_cselect_b32 s30, s{SX+2}, s{S1+2}
        s_cselect_b32 s{sT0}, 12, 0
        s_add_u32 s{sT0}, s{sT0}, 68
        s_cmp_eq_u32 s{sW}, 1
        s_cselect_b64 s[28:29], s[{SQ}:{SQ+1}], s[28:29]
        s_cselect_b32 s30, s{SQ+2}, s30
        s_cselect_b32 s{sT0}, 75, s{sT0}
        s_lshl_b32 s{sT1}, 1, s{sW}
        s_and_b32 s{sT1}, s{sT1}, {c.tmask}
        s_cselect_b32 s30, s30, 0
        s_mov_b32 s31, 0x20000
        s_mul_i32 s{sT1}, s{sT0}, s2
        s_lshl_b32 s{sT1}, s{sT1}, 7
        v_lshlrev_b32 v10, 7, v0
        v_add_u32 v11, 64, v0
        v_cmp_gt_u32 vcc, s{sT0}, v11
        v_lshlrev_b32 v11, 7, v11
        v_mov_b32 v14, {OOB}
        v_cndmask_b32 v11, v14, v11, vcc""")
        e.vmop(f"buffer_load_dword v255, v10, s[28:31], s{sT1} offen", 'pf')
        e.vmop(f"buffer_load_dword v255, v11, s[28:31], s{sT1} offen", 'pf')

    def touch3_setup(self):
        e = self.e
        e(f"""s_cmp_eq_u32 s{sW}, 0
        s_cselect_b64 s[28:29], s[{SX}:{SX+1}], s[{S1}:{S1+1}]
        s_cselect_b32 s30, s{SX+2}, s{S1+2}
        s_cselect_b32 s{sT0}, 24, 21
        s_mov_b32 s44, {64*3456}
        s_cselect_b32 s44, 128, s44
        s_cselect_b64 vcc, -1, 0
        s_cmp_eq_u32 s{sW}, 1
        s_cselect_b64 s[28:29], s[{SQ}:{SQ+1}], s[28:29]
        s_cselect_b32 s30, s{SQ+2}, s30
        s_cselect_b32 s{sT0}, 23, s{sT0}
        s_cselect_b32 s44, {64*3840}, s44
        s_cmp_eq_u32 s{sW}, 3
        s_cselect_b32 s30, 0, s30
        s_mov_b32 s31, 0x20000
        s_mul_i32 s{sT1}, s{sT0}, s2
        v_add_u32 v10, s{sT1}, v0
        v_mul_u32_u24 v11, 21846, v10
        v_lshrrev_b32 v11, 16, v11
        v_mul_u32_u24 v11, {1280-384}, v11
        v_lshlrev_b32 v10, 7, v10
        v_add_u32 v11, v11, v10
        v_cndmask_b32 v10, v10, v11, vcc
        v_mov_b32 v14, {OOB}
        v_cmp_gt_u32 vcc, s{sT0}, v0
        v_cndmask_b32 v251, v14, v10, vcc""")
    def touch3(self, part):
        return [('x', f"s_mul_i32 s45, s44, {1 + 3 * part}"), ('vm', "buffer_load_dword v255, v251, s[28:31], s45 offen", 'pf')]

    def tlb_touch(self):
        e = self.e; c = self.c
        if not c.tlb: return
        if c.tlb == 1:
            e(f"v_lshlrev_b32 v10, 18, v0\nv_add_u32 v10, 0x1f800, v10")
            e.vmop(f"buffer_load_dword v255, v10, {srd(SWS)}, 0 offen sc1", 'pf')
        else:
            e(f"""s_mul_i32 s{sT0}, s{sNB}, {74*5120}
            s_add_u32 s{sT0}, s{sT0}, {PB}
            s_mul_i32 s{sT1}, s{sRB}, {74*4096}
            s_add_u32 s{sT1}, s{sT1}, {A2 - 8*65536}
            s_mul_i32 s{sT3}, s{sMT}, {2*74*4096}
            s_add_u32 s{sT3}, s{sT3}, {A2 - 16*65536}
            v_lshlrev_b32 v10, 16, v0
            v_mov_b32 v11, s{sT0}
            v_mov_b32 v14, s{sT1}
            v_cmp_le_u32 vcc, 8, v0
            v_cndmask_b32 v11, v11, v14, vcc
            v_mov_b32 v14, s{sT3}
            v_cmp_le_u32 vcc, 16, v0
            v_cndmask_b32 v11, v11, v14, vcc
            v_add_u32 v11, v11, v10
            v_subrev_u32 v14, 32, v0
            v_mul_u32_u24 v14, 0x18000, v14
            v_cmp_le_u32 vcc, 32, v0
            v_cndmask_b32 v10, v11, v14, vcc""")
            e.vmop(f"buffer_load_dword v255, v10, {srd(SWS)}, 0 offen sc1", 'pf')
        mk_srd(e, 28, pOUT, 2048 * 1280)
        e("v_lshlrev_b32 v10, 16, v0")
        e.vmop("buffer_load_dword v255, v10, s[28:31], 0 offen sc1", 'pf')
        if c.tlb2:
            for p, n in ((pB2, 1280),):
                mk_srd(e, 28, p, n); e.vmop("buffer_load_dword v255, v6, s[28:31], 0 offen", 'pf')

    def tag_wait(self):
        e = self.e
        e(f"""s_waitcnt lgkmcnt(0)
        s_add_u32 s{sTAG}, s{sTAG}, 1
        v_mov_b32 v247, s{sTAG+1}
        v_mov_b32 v246, s{sTAG}
        s_movk_i32 s42, {TBM}""")
        if self.c.xA == 2: e(f's_mov_b32 s41, {OOB}')
        e.lg = []
    def pack_loads(self):
        return [([('x', f"s_add_u32 m0, s{sM0}, {L_PACK}")] if i == 0 else []) +
                [('vm', f"buffer_load_dwordx4 v252, {srd(SPK)}, s{32+i} offen offset:{i*1024} {self.c.psc} lds", 'packld')] for i in range(4)]
    def pack_fill(self, m, nm):
        f = []
        for i in range(8):
            t, h = i >> 1, i & 1
            f.append(dict(at=m + 2 + 2 * i, ins=[('lg', f"ds_read_b64_tr_b16 a[{160+4*t+2*h}:{161+4*t+2*h}], v{PKA+t} offset:{(t>>1)*64+512*h}", 'pk')]))
        return f
    def wb_item(self):
        return [[('wvm', 'pkst'), ('vm', "buffer_wbl2 sc1", 'pkst')]] if self.c.wbl else []
    def pack_stores(self):
        return [([('wlg', 'pk')] if i == 0 else []) + [('vm', f"buffer_store_dwordx4 {ar(160+4*i)}, v6, {srd(SWS)}, s{sPKD+i} offen {self.c.pss}", 'pkst')] for i in range(4)]

    def btouch(self):
        pre = [l.strip() for l in f"""s_and_b32 s{sT0}, s{sRB}, 7
        s_lshl_b32 s{sT0}, s{sT0}, 2
        s_add_u32 s{sT0}, s{sT0}, s{sW}
        s_mul_i32 s{sT0}, s{sT0}, {93*128}
        s_mul_i32 s{sT1}, s{sNB}, {74*5120}
        s_add_u32 s{sT0}, s{sT0}, s{sT1}
        s_add_u32 s{sT0}, s{sT0}, {PB}
        v_lshlrev_b32 v248, 7, v0
        v_min_u32 v249, 28, v0
        v_lshlrev_b32 v249, 7, v249""".split("\n")]
        n = self.c.bt
        out = [[('x', l) for l in pre]]
        if n == 1:
            out[0] += [('vm', f"buffer_load_dword v255, v248, {srd(SWS)}, s{sT0} offen sc1", 'pf')]
            out.append([('x', f"s_add_u32 s{sT0}, s{sT0}, 8192"), ('vm', f"buffer_load_dword v255, v249, {srd(SWS)}, s{sT0} offen sc1", 'pf')])
        else:
            out[0] += [('x', "v_min_u32 v249, 23, v0"), ('x', "v_lshlrev_b32 v249, 7, v249")]
            for i in range(4): out.append([('vm', f"buffer_load_dword v255, v249, {srd(SWS)}, s{sT0} offen offset:0 sc1", 'pf'), ('x', f"s_add_u32 s{sT0}, s{sT0}, 3072")])
        return out
    def code_touch(self, endlab):
        Lp = self.lab('pc')
        return [('x', f"s_getpc_b64 s[30:31]\n{Lp}:"), ('x', f"s_bfe_u32 s{sT0}, s2, 0x40003"), ('x', f"s_lshl_b32 s{sT0}, s{sT0}, 2"), ('x', f"s_add_u32 s{sT0}, s{sT0}, s{sW}"),
                ('x', f"s_lshl_b32 s{sT0}, s{sT0}, 9"), ('x', "v_and_b32 v7, 3, v0"), ('x', f"v_lshl_add_u32 v7, v7, 7, s{sT0}"),
                ('x', f"v_cmp_gt_u32 vcc, {endlab}-{Lp}, v7"), ('x', "v_cndmask_b32 v7, 0, v7, vcc"), ('vm', "global_load_dword v255, v7, s[30:31]", 'pf')]
    def f1_issue(self):
        pre = [l.strip() for l in f"""s_mul_i32 s{sT0}, s{sNB}, 5
        s_add_u32 s{sT1}, s{sT0}, 4
        s_lshr_b32 s{sT0}, s{sT0}, 2
        s_mul_i32 s{sT0}, s{sT0}, 74
        s_lshr_b32 s{sT0}, s{sT0}, 2
        s_lshr_b32 s{sT1}, s{sT1}, 2
        s_mul_i32 s{sT1}, s{sT1}, 74
        s_add_u32 s{sT1}, s{sT1}, 73
        s_lshr_b32 s{sT1}, s{sT1}, 2
        v_add_u32 v235, s{sT0}, v0
        v_min_u32 v235, s{sT1}, v235
        v_lshlrev_b32 v235, 7, v235
        s_mov_b32 s{sT0}, {F1}""".split("\n")]
        return [[('x', l) for l in pre] + [('vm', self.poll_issue(235, 248, 2, None, f"s{sT0}"), 'f1p')]]
    def f1_check(self):
        return [('wvm', 'f1p')] + [('x', t) for t in self.poll_check([(235, 248, 2, f"s{sT0}")])]
    def tag_issue(self):
        e = self.e
        e(f"s_or_b32 s55, s2, s{sW}\ns_min_u32 s55, s55, 1\ns_mul_i32 s55, s55, {OOB}\ns_add_u32 s55, s55, {F1}\nv_lshlrev_b32 v200, 7, v0")
        for i in range(1, 4): e(f"v_add_u32 v{200+i}, {8192*i}, v200")
        self.tgl = [(200 + i, 248 + 2 * i, 2, "s55") for i in range(4)]
        for p in self.tgl: e.vmop(self.poll_issue(p[0], p[1], 2, None, p[3]), 'tg')
    def tag_update(self):
        e = self.e; L = self.lab('tg')
        e.wait(vm='tg')
        e(f"s_or_b32 s{sT0}, s2, s{sW}\ns_cbranch_scc1 {L}")
        for l in self.poll_check(self.tgl): e(l)
        e(self.flag_store(245, 246, str(TAG)))
        e(f"{L}:")

    def attn_voff(self, dst, cexpr_base, colbase_s):
        e = self.e
        e(f"""v_mul_u32_u24 v10, 6554, v9
        v_lshrrev_b32 v10, 16, v10
        v_mad_i32_i24 v11, v10, -10, v9""")
        self.swap23(10, 12)
        e(f"""v_mul_u32_u24 v10, 3840, v10
        v_lshl_add_u32 v10, v11, 4, v10
        v_add_u32 v{dst}, s{colbase_s}, v10""")
    def swap23(self, r, t):
        self.e(f"""v_lshrrev_b32 v{t}, 1, v{r}
        v_xor_b32 v{t}, v{t}, v{r}
        v_and_b32 v{t}, 4, v{t}
        v_mul_u32_u24 v{t}, 3, v{t}
        v_xor_b32 v{r}, v{r}, v{t}""")

    def small_dma(self, sr, vaddr, soff, ldsaddr, nlanes, tag, m0expr=None):
        e = self.e
        e(m0expr or f"s_mov_b32 m0, {ldsaddr}")
        if nlanes < 64: e(f"s_mov_b64 exec, {hex((1 << nlanes) - 1)}" if nlanes <= 32 else f"s_mov_b32 exec_hi, {hex((1 << (nlanes-32)) - 1)}")
        e.vmop(f"buffer_load_dwordx4 v{vaddr}, {srd(sr)}, {soff} offen lds", tag)
        if nlanes < 64: e("s_mov_b64 exec, -1")

    def csel(self, d, a, b):
        inl = lambda x: isinstance(x, str) or -16 <= x <= 64
        if inl(a) or inl(b): self.e(f"s_cselect_b32 s{d}, {a}, {b}")
        else: self.e(f"s_mov_b32 s{d}, {b}\ns_cselect_b32 s{d}, {a}, s{d}")

    def init_B(self):
        self.Bloc = {}; self.Bq = []
        order = [(i, t) for i in range(19) for t in range(5)]
        for u, k in enumerate(order):
            if u < 64: self.Bloc[k] = ('a', 4 * u)
            elif u < 64 + NL: self.Bloc[k] = ('l', u - 64)
            else: self.Bloc[k] = None
        self.Border = order; self.Bpend = list(range(64 + NL)); self.Bcur = None; self.Acur = None
    def koff(self, i): return 4 * i - (2 if i >= 10 else 0)
    def soff(self, d, i, w):
        e_, o_, s8, s9, unit = (sB, sBo, sB8, sB9, 5120) if w == 'B' else (sA, sAo, sA8, sA9, 4096)
        if i in (8, 9): return f"s_mov_b32 s{d}, s{s8 if i == 8 else s9}"
        if i == 18: return f"s_add_u32 s{d}, s{e_}, s{o_}\ns_lshr_b32 s{d}, s{d}, 1\ns_add_u32 s{d}, s{d}, {self.koff(i)*unit}"
        idx = i if i < 10 else i - 10 if i < 14 else i - 14
        return f"s_add_u32 s{d}, s{e_ if idx & max(self.c.par, 1) == 0 else o_}, {self.koff(i)*unit}"
    def B_items(self, k, loc):
        i, t = k; it = []
        if self.Bcur != i:
            it.append(('x', self.soff(sBT, i, 'B'))); self.Bcur = i
        va, imm = (6, t * 1024) if t < 4 else (240, 0)
        if loc[0] == 'l':
            assert L_BL + loc[1]*1024 - imm >= 0
            it.append(('x', f"s_add_u32 m0, s88, {L_BL + loc[1]*1024 - imm}"))
            it.append(('vm', f"buffer_load_dwordx4 v{va}, {srd(SWS)}, s{sBT} offen offset:{imm} sc1 lds", ('B', k)))
        else:
            it.append(('vm', f"buffer_load_dwordx4 {R(loc)}, v{va}, {srd(SWS)}, s{sBT} offen offset:{imm} sc1", ('B', k)))
        return it
    def B_take(self, us):
        out = []
        for u in us:
            k = self.Border[u]; out.append(self.B_items(k, self.Bloc[k]))
            if self.c.xB == 1: out[-1] = [('x', 's_nop 0')]
            if self.c.xB == 2: out[-1] = [(it[0], it[1].replace(f"s{sBT} offen", "s43 offen"), it[2]) if it[0] == 'vm' else it for it in out[-1]]
            if self.c.xB == 3: out[-1] = [(it[0], it[1].replace(f"s{sBT} offen", f"s{sB} offen"), it[2]) if it[0] == 'vm' else it for it in out[-1]]
        return out
    def ph2_bg(self, u): pass
    def bg_try(self, allowed, S=None):
        e = self.e
        if e.t - e.tvm < (S or self.c.S): return False
        if allowed == self.ph2_bg: return self.try_issue(self.m, True, True)
        for u in self.Bpend:
            if allowed(u):
                self.Bpend.remove(u); self.emit_items(self.B_take([u])[0]); return True
        return False
    def emit_items(self, items):
        e = self.e
        for it in items:
            if it[0] == 'vm': e.vmop(it[1], it[2])
            elif it[0] == 'lg': e.lgop(it[1], it[2])
            elif it[0] == 'wvm': e.wait(vm=it[1])
            elif it[0] == 'wlg': e.wait(lg=it[1])
            elif it[0] == 'st': self.stamp(it[1], it[2])
            else: e(it[1])
    def valu(self, lines, side=None, every=1, bg=None, S=None):
        n = 0
        for l in lines:
            if isinstance(l, str): self.e(l)
            else: self.emit_items([l])
            n += 1
            if side and n % every == 0: self.emit_items(side.pop(0))
            if bg: self.bg_try(bg, S)

    def interleave(self, items, side, every):
        W = ('s_cmp', 's_add', 's_sub', 's_and', 's_andn2', 's_or', 's_xor', 's_lshl', 's_lshr', 's_bitcmp', 's_min', 's_max')
        Rd = ('s_cselect', 's_addc', 's_subb', 's_cbranch_scc')
        live = [False] * len(items); l = False
        for i in range(len(items) - 1, -1, -1):
            live[i] = l
            t = items[i][1]
            if t.startswith(Rd): l = True
            elif t.startswith(W): l = False
        n = 0
        for i, it in enumerate(items):
            self.emit_items([it]); n += 1
            if side and n >= every and not live[i]: self.emit_items(side.pop(0)); n = 0
        for g in side: self.emit_items(g)

    def gelu_lines(self, X, Y, T, O):
        U = [X, X + 2, Y, Y + 2]; L = []
        P = lambda r: f"v[{r}:{r+1}]"
        for i in range(4): L.append(f"v_pk_mul_f32 {P(T+2*i)}, {P(U[i])}, {P(U[i])}")
        for i in range(4): L.append(f"v_pk_fma_f32 {P(T+2*i)}, {P(T+2*i)}, v[14:15], s[{sC0}:{sC1}] op_sel_hi:[1,0,0]")
        for i in range(4): L.append(f"v_pk_mul_f32 {P(T+2*i)}, {P(T+2*i)}, {P(U[i])}")
        for i in range(8): L.append(f"v_exp_f32 v{T+i}, v{T+i}")
        for i in range(4): L.append(f"v_pk_add_f32 {P(T+2*i)}, {P(T+2*i)}, 1.0 op_sel_hi:[1,0]")
        for i in range(8): L.append(f"v_rcp_f32 v{T+i}, v{T+i}")
        for i in range(4): L.append(f"v_pk_mul_f32 {P(T+2*i)}, {P(T+2*i)}, {P(U[i])}")
        for i in range(4): L.append(f"v_cvt_pk_bf16_f32 v{O+i}, v{T+2*i}, v{T+2*i+1}")
        return L if not (self.c.skip & 1) else L[-8:]
    def gelu_consts(self):
        c1 = -2.0 * math.sqrt(2.0 / math.pi) * math.log2(math.e)
        self.e(f"s_mov_b32 s{sC0}, {fl(c1)}\nv_mov_b32 v14, {fl(c1 * 0.044715)}")
    def softmax_lines(self, Pp, E, PH):
        L = []; P = lambda r: f"v[{r}:{r+1}]"
        L += [f"v_max3_f32 v8, v{Pp}, v{Pp+1}, v{Pp+2}", f"v_min3_f32 v10, v{Pp}, v{Pp+1}, v{Pp+2}"]
        for i in range(3, 19, 2): L += [f"v_max3_f32 v8, v8, v{Pp+i}, v{Pp+i+1}", f"v_min3_f32 v10, v10, v{Pp+i}, v{Pp+i+1}"]
        L += [f"v_max_f32 v8, v8, v{Pp+19}", f"v_min_f32 v10, v10, v{Pp+19}"]
        L += [f"v_mul_f32_e64 v8, -v8, s{sC0}", f"v_mul_f32 v10, s{sC0}, v10"]
        for i in range(10):
            L.append(f"v_pk_fma_f32 {P(E+2*i)}, {P(Pp+2*i)}, s[{sC0}:{sC1}], v[8:9] op_sel_hi:[1,0,0]")
            L.append(f"v_pk_fma_f32 {P(E+20+2*i)}, {P(Pp+2*i)}, s[{sC0}:{sC1}], v[10:11] op_sel_hi:[1,0,0] neg_lo:[1,0,0] neg_hi:[1,0,0]")
        for i in range(40): L.append(f"v_exp_f32 v{E+i}, v{E+i}")
        L += [f"v_pk_add_f32 v[8:9], {P(E)}, {P(E+2)}", f"v_pk_add_f32 v[10:11], {P(E+20)}, {P(E+22)}"]
        for i in range(2, 10): L += [f"v_pk_add_f32 v[8:9], v[8:9], {P(E+2*i)}", f"v_pk_add_f32 v[10:11], v[10:11], {P(E+20+2*i)}"]
        L += ["v_add_f32 v8, v8, v9", "v_add_f32 v10, v10, v11", "v_rcp_f32 v8, v8", "v_rcp_f32 v10, v10"]
        for i in range(10): L.append(f"v_pk_mul_f32 {P(E+2*i)}, {P(E+2*i)}, v[8:9] op_sel_hi:[1,0]")
        for i in range(10): L.append(f"v_pk_mul_f32 {P(E+20+2*i)}, {P(E+20+2*i)}, v[10:11] op_sel_hi:[1,0]")
        for i in range(20): L.append(f"v_cvt_pk_bf16_f32 v{PH+i}, v{E+2*i}, v{E+2*i+1}")
        return L if not (self.c.skip & 2) else [l if 'cvt' in l else '' for l in L]
    def wphi_addr(self, va):
        self.e(f"v_mul_u32_u24 v{va}, 800, v2\nv_mad_u32_u24 v{va}, v3, 40, v{va}\nv_add_u32 v{va}, {L_WPHI}, v{va}")
    def wphi_reads(self, va):
        return [[('lg', f"ds_read_b64_tr_b16 a[{AW+2*(dg*5+fg)}:{AW+1+2*(dg*5+fg)}], v{va} offset:{dg*160 + fg*8}", 'wphi')] for dg in range(5) for fg in range(5)]
    def phi_mfmas(self, KQ, Pp):
        L = []
        for dg in range(5):
            for j in range(2):
                for fg in range(5):
                    d = Pp + 20 * j + 4 * fg; w = AW + 2 * (dg * 5 + fg); b = KQ + 10 * j + 2 * dg
                    L.append(f"v_mfma_f32_4x4x4_16b_bf16 {vr(d)}, a[{w}:{w+1}], v[{b}:{b+1}], {vr(d) if dg else 0}")
        return L
    def cvt_heads(self, acc0, dst, j, n=5):
        return [f"v_cvt_pk_bf16_f32 v{dst+2*t+h}, v{acc0+(t*2+j)*4+2*h}, v{acc0+(t*2+j)*4+2*h+1}" for t in range(n) for h in range(2)]
    def rho0(self, dst):
        self.e(f"v_lshrrev_b32 v{dst}, 1, v2\nv_lshl_add_u32 v{dst}, v{dst}, 4, v3\nv_and_b32 v7, 1, v2\nv_lshl_add_u32 v{dst}, v7, 2, v{dst}")
    def x_addr(self, ST, nsl=3, base=220):
        e = self.e
        e(f"""v_lshrrev_b32 v9, 1, v1
        v_xor_b32 v9, v9, v2
        v_lshlrev_b32 v9, 4, v9
        v_lshl_add_u32 v9, v1, 7, v9
        v_add_u32 v{base}, s{sM0}, v9
        v_xor_b32 v{base+1}, 64, v{base}""")
        for sl in range(1, nsl): e(f"v_add_u32 v{base+2*sl}, {sl*ST}, v{base}\nv_add_u32 v{base+1+2*sl}, {sl*ST}, v{base+1}")
    def paced(self, groups, m0, span):
        n = len(groups)
        return [dict(at=m0 + int((k + 0.2) * span / n), chain=1, ins=list(g)) for k, g in enumerate(groups)]
    def prog_QH(self):
        e = self.e; c = self.c; self.init_B(); self.dmap = {0: 3, 1: 5, 2: 7, 3: 9, 14: 11, 7: 13, 9: 15}
        e("L_QH:")
        ST = QH_ST
        e(f"""s_mul_i32 s{sKW}, s{sHG}, 320
        s_lshl_b32 s{sT0}, s{sHG}, 8
        s_add_u32 s{sT0}, s{sT0}, 384
        s_cmp_lt_u32 s{sHG}, 6
        s_cselect_b32 s{sKW}, s{sKW}, s{sT0}
        s_cselect_b32 s{sK1}, 20, 16
        s_mul_i32 s{sT2}, s{sW}, 320""")
        def dma_x(st):
            g = []
            for j in range(4):
                it = [('x', f"s_add_u32 m0, s{sM0}, {(st%3)*ST}")] if j == 0 else []
                g.append(it + [('vm', f"buffer_load_dwordx4 v{208+j}, {srd(SX)}, s{sE+st} offen offset:{j*1024} {c.xsc} lds", ('S', st))])
            return g
        def dma_a(st, i):
            it = []
            if i == 0: it = [('x', f"s_mul_i32 s{sKA}, s{sE+st}, 1920"), ('x', f"s_add_u32 m0, s{sM0+1}, {(st%3)*ST}")]
            if i == 2: it = [('x', f"s_mov_b32 m0, s{sM0+3+st%3}")]
            return it + [('vm', f"buffer_load_dwordx4 v{212+i}, {srd(SQ)}, s{sKA} offen offset:{1024 if i == 1 else 0} {c.wsc} lds", ('S', st))]
        def dma_h(st, i):
            it = []
            if i == 0: it = [('x', f"s_mul_i32 s{sKB}, s{sE+st}, 1728"), ('x', f"s_add_u32 m0, s{sM0+2}, {(st%3)*ST}")]
            if i == 4: it = [('x', "s_add_u32 m0, m0, 4096")]
            return it + [('vm', f"buffer_load_dwordx4 v{215+i}, {srd(S1)}, s{sKB} offen offset:{(i%4)*1024} {c.wsc} lds", ('S', st))]
        def dma_stage(st): return dma_x(st) + [dma_a(st, i) for i in range(3)] + [dma_h(st, i) for i in range(5)]
        if c.fast:
            self.kernarg_wait()
            if c.touch == 3: self.touch()
            for g in dma_x(0): self.emit_items(g)
            if c.touch == 5: self.touch()
            self.small_dma(SM, 6, f"s{sKW}", None, 20, 'bias', f"s_add_u32 m0, s{sT2}, {L_BIASQH}")
        e(f"""s_mul_i32 s{sT0}, s{sW}, 3
        s_lshl_b32 s{sT1}, s{sW}, 1
        s_add_u32 s{sT1}, s{sT1}, 2
        s_cmp_lt_u32 s{sW}, 2
        s_cselect_b32 s{sT0}, s{sT0}, s{sT1}
        s_lshl_b32 s{sM0+1}, s{sT0}, 10
        s_add_u32 s{sM0+1}, s{sM0+1}, 16384""")
        for sl in range(3):
            e(f"s_add_u32 s{sM0+3+sl}, s{sM0+1}, {2048 + sl*ST}\ns_cmp_lt_u32 s{sW}, 2\ns_cselect_b32 s{sM0+3+sl}, s{sM0+3+sl}, {MISC+4608}")
        e(f"s_lshl_b32 s{sT0}, s{sT0}, 6\ns_mul_i32 s{sT1}, s{sHG}, 160\ns_mul_i32 s{sM0+2}, s{sW}, 5120\ns_add_u32 s{sM0+2}, s{sM0+2}, {16384+10240}")
        for i in range(3):
            e(f"v_add_u32 v9, {64*i}, v0\nv_add_u32 v9, s{sT0}, v9")
            self.attn_voff(212 + i, None, sT1)
            if i == 1: e("v_subrev_u32 v213, 1024, v213")
            if i == 2: e(f"s_cmp_lt_u32 s{sW}, 2\ns_cselect_b32 s{sT4}, 0, {OOB}\nv_add_u32 v214, s{sT4}, v214")
            if c.fast: self.emit_items(dma_a(0, i))
        if not c.fast:
            self.kernarg_wait()
            self.small_dma(SM, 6, f"s{sKW}", None, 20, 'bias', f"s_add_u32 m0, s{sT2}, {L_BIASQH}")
            for g in dma_x(0) + [dma_a(0, i) for i in range(3)]: self.emit_items(g)
        e(f"s_mul_i32 s{sT0}, s{sW}, 320\nv_mov_b32 v14, {OOB}")
        for i in range(5):
            e(f"""v_add_u32 v9, {64*i}, v0
            v_add_u32 v9, s{sT0}, v9
            v_mul_u32_u24 v10, 3277, v9
            v_lshrrev_b32 v10, 16, v10
            v_mul_u32_u24 v11, 20, v10
            v_sub_u32 v11, v9, v11
            v_bfe_u32 v13, v10, 2, 1
            v_lshlrev_b32 v13, 1, v13
            v_xor_b32 v11, v11, v13
            v_cmp_gt_u32 vcc, s{sK1}, v11""")
            self.swap23(10, 12)
            e(f"""v_mul_u32_u24 v10, 3456, v10
            v_lshl_add_u32 v10, v11, 4, v10
            v_add_u32 v10, s{sKW}, v10
            v_subrev_u32 v10, {(i%4)*1024}, v10
            v_cndmask_b32 v{215+i}, v14, v10, vcc""")
            self.emit_items(dma_h(0, i))
        self.pstamp(1)
        if c.pke:
            self.pack_setup()
            for g in self.pack_loads(): self.emit_items(g)
        if c.touch == 1: self.touch()
        if c.touch == 4:
            self.touch3_setup()
            for p_ in range(c.tp0): self.emit_items(self.touch3(p_))
        self.pstamp(2)
        def setup():
            e = self.e
            self.x_addr(ST); self.rho0(8)
            e(f"v_mul_u32_u24 v9, 160, v8\nv_mad_u32_u24 v9, v4, 40, v9\nv_add_u32 v226, 16384, v9")
            e(f"v_mul_u32_u24 v9, 320, v8\nv_lshl_add_u32 v9, v4, 3, v9\nv_add_u32 v9, {16384+10240}, v9\nv_lshl_add_u32 v229, v7, 5, v9\nv_xor_b32 v7, 1, v7\nv_lshl_add_u32 v232, v7, 5, v9")
            for sl in (1, 2): e(f"v_add_u32 v{226+sl}, {sl*ST}, v226\nv_add_u32 v{229+sl}, {sl*ST}, v229\nv_add_u32 v{232+sl}, {sl*ST}, v232")
            self.common_setup()
            if not c.pke: self.pack_setup()
            e(f"s_mul_i32 s{sT1}, s{sW}, 320\ns_add_u32 s{sT1}, s{sT1}, {L_BIASQH}\nv_lshl_add_u32 v13, v2, 3, s{sT1}")
            e(f"""s_lshl_b32 s{sT0}, s{sMT}, 1
            s_lshr_b32 s{sT1}, s{sW}, 1
            s_add_u32 s{sT0}, s{sT0}, s{sT1}
            s_and_b32 s{sT1}, s{sW}, 1
            s_mul_i32 s{sT2}, s{sT0}, 74
            s_lshl_b32 s{sT2}, s{sT2}, 12
            s_lshl_b32 s{sT3}, s{sT1}, 11
            s_add_u32 s{sT2}, s{sT2}, s{sT3}
            s_add_u32 s{sT2}, s{sT2}, {A2}
            s_lshr_b32 s{sT4}, s{sHG}, 1
            s_mul_i32 s{sT4}, s{sT4}, 5
            s_add_u32 s{sT4}, s{sT4}, 54
            s_lshl_b32 s{sT4}, s{sT4}, 12
            s_add_u32 s{sT4}, s{sT4}, s{sT2}
            s_and_b32 s{sT5}, s{sHG}, 1
            s_lshl_b32 s38, s{sT5}, 13
            s_add_u32 s38, s38, s{sT4}
            s_add_u32 s39, s{sT4}, {4*4096}
            s_lshl_b32 s{sT5}, s{sT5}, 3
            s_add_u32 s39, s39, s{sT5}
            s_lshl_b32 s{sT0}, s{sHG}, 4
            s_add_u32 s{sT0}, s{sT0}, s{sMT}
            s_lshl_b32 s{sT0}, s{sT0}, 2
            s_add_u32 s{sT0}, s{sT0}, s{sW}
            s_lshl_b32 s{sT0}, s{sT0}, 9
            s_add_u32 s43, s{sT0}, {GB}
            v_mov_b32 v204, -1
            v_mov_b32 v205, -1
            v_mov_b32 v206, -1
            v_mov_b32 v207, -1""")
        self.interleave(self.record(setup), dma_stage(1)[:c.n1], c.pe)
        self.pstamp(3)
        if c.n1 >= 12:
            self.small_dma(SM, 6, "s36", None, 50, 'misc', "s_mov_b32 m0, s37")
            if c.touch == 2: self.touch()
            if not c.pke:
                for g in self.pack_loads(): self.emit_items(g)
        self.tag_wait(); self.pstamp(4)
        e.wait(vm='bias')
        for s_ in range(10): e.lgop(f"ds_read_b64 v[{136+2*s_}:{137+2*s_}], v13 offset:{s_*32}", ('b', s_))
        for s_ in range(10):
            a0 = 16 + (5 + s_) * 8; e.wait(lg=('b', s_))
            for h in range(2): e(f"v_lshlrev_b32 v{a0+2*h}, 16, v{136+2*s_+h}\nv_and_b32 v{a0+2*h+1}, 0xffff0000, v{136+2*s_+h}")
        self.stamp(0)
        NS = 15; nm = NS * 4; mf = []; reads = []
        for st in range(10):
            sl = st % 3
            for t in range(NS):
                gs = st * NS + t; wr = 168 + 8 * (gs % 4); m0 = len(mf)
                for ks in range(2):
                    for rd in range(2):
                        if t < 5: ad, off = 226 + sl, ks * 5120 + rd * 1280 + t * 8
                        else: ad, off = (229 if (t - 5) % 2 == 0 else 232) + sl, ks * 10240 + rd * 2560 + ((t - 5) >> 1) * 64
                        reads.append([f"ds_read_b64_tr_b16 v[{wr+4*ks+2*rd}:{wr+4*ks+2*rd+1}], v{ad} offset:{off}", m0, st, m0 - 13])
                for j in ((1, 0) if st == 0 else (0, 1)):
                    for ks in range(2):
                        xr = 136 + (st % 2) * 16 + (j * 2 + ks) * 4; d = 16 + (t * 2 + j) * 4
                        if t == 0: reads.append([f"ds_read_b128 {vr(xr)}, v{220+2*sl+ks} offset:{j*2048}", len(mf), st, -1])
                        cc = vr(d)
                        if st == 0 and ks == 0: cc = "0" if t < 5 else vr(16 + t * 8)
                        mf.append(f"v_mfma_f32_16x16x32_bf16 {vr(d)}, {vr(wr+4*ks)}, {vr(xr)}, {cc}")
        po = lambda va, off: [('vm', f"buffer_store_dwordx4 v[204:207], v{va}, {srd(SWS)}, s38 offen offset:{off} sc1", 'hst')]
        poison = [po(6, 0), po(6, 1024), po(240, 0), po(240, 1024)] + [[('vm', f"buffer_store_dwordx2 v[204:205], v6, {srd(SWS)}, s39 offen offset:{j*1024} sc1", 'hst')] for j in range(2)]
        self.kloop(mf, reads, nm, dma_stage, poison, 'QH')
        A51 = lambda u: u < 51; A64 = lambda u: u < 64; ALL = lambda u: True
        self.gelu_consts()
        e(f"s_lshl_b32 s{sT3}, s{sKW}, 6\ns_add_u32 s{sT3}, s{sT3}, s{sT2}")
        L = []
        for p in range(5):
            for j in range(2):
                O = 152 + 4 * ((2 * p + j) % 4)
                L += self.gelu_lines(16 + ((5 + 2 * p) * 2 + j) * 4, 16 + ((6 + 2 * p) * 2 + j) * 4, 136 + 8 * j, O)
                if j == 0:
                    if p == 4: L += [f"s_add_u32 s{sT4}, s{sT3}, {4*4096}", f"s_cmp_lt_u32 s{sHG}, 6\ns_cselect_b32 s{sT4}, s{sT4}, {OOB}"]
                    else: L.append(f"s_add_u32 s{sT4}, s{sT3}, {p*4096}")
                L.append(('vm', f"buffer_store_dwordx4 {vr(O)}, v6, {srd(SWS)}, s{sT4} offen offset:{j*1024} sc1", 'hst'))
        self.valu(L, bg=A51, S=c.Sg)
        self.valu(self.cvt_heads(16, 56, 0) + self.cvt_heads(16, 66, 1), bg=A51)
        self.stamp(2)
        e.wait(lg='wphi')
        self.valu(self.phi_mfmas(56, 76), bg=A51)
        e(f"""s_lshl_b32 s{sT4}, s{sMT}, 4
        s_add_u32 s{sT4}, s{sT4}, s{sHG}
        s_lshl_b32 s{sT4}, s{sT4}, 7
        s_add_u32 s{sT4}, s{sT4}, {F4}
        s_cmp_eq_u32 s{sW}, 0
        s_cselect_b32 s{sT5}, s{sT4}, {OOB}
        s_mov_b32 s{sC0}, {fl(math.log2(math.e))}""")
        L1 = self.softmax_lines(76, 16, 116)
        self.valu(L1[:c.f4at], bg=A64)
        e.wait(vm='hst'); e("s_barrier")
        if c.stamps == 3: e(f"s_mov_b32 s{sC0}, {fl(math.log2(math.e))}")
        e.vmop(self.flag_store(245, 246, f"s{sT5}"), 'f4st')
        self.valu(L1[c.f4at:], bg=ALL)
        L2 = self.softmax_lines(96, 16, 136)
        self.valu(L2[:c.pa], bg=ALL)
        self.poll4a_issue()
        self.valu(L2[c.pa:c.pb], bg=ALL)
        pool = [[('v', r), c.mo + 1 if r < 204 else c.p3 if r < 220 else 999] for r in list(range(204, 224, 4)) + list(range(168, 204, 4))]
        while len(self.Bpend) > c.qleft: self.bg_try(ALL, -9999)
        self.ph2_begin(pool)
        if c.stamps == 3: e(f"s_mov_b32 s{sC0}, {fl(math.log2(math.e))}")
        self.valu(L2[c.pb:], bg=ALL)
        self.stamp(3)
        pool += [[('v', r), c.mo + 1] for r in range(156, 168, 4)]
        FO = (0, 1024, 2048, 2816)
        finld = [f"buffer_load_dwordx4 {vr(204+4*i)}, v6, {srd(SWS)}, s{sKW} offen offset:{FO[i]} sc1" for i in range(4)]
        finld += [f"buffer_load_dwordx4 {vr(248+4*j)}, v13, {srd(SWS)}, s43 offen offset:{j*256} sc1" for j in range(2)]
        def h_p3():
            e(f"""s_mul_i32 s{sKW}, s{sHG}, {FSZ}
            s_mul_i32 s{sK1}, s{sW}, 3840
            s_add_u32 s{sKW}, s{sKW}, s{sK1}
            s_add_u32 s{sKW}, s{sKW}, {FIN}
            v_lshlrev_b32 v13, 4, v1""")
            for l in finld: e.vmop(l, 'fin')
        def h_c3():
            it = [('st', 4, 1)] + [('x', l) for l in f"s_lshr_b32 s{sK1}, s{sK1}, 1\ns_add_u32 s{sK1}, s{sK1}, {L_FIN}\nv_lshl_add_u32 v9, v0, 3, s{sK1}".split("\n")] + [('wvm', 'fin')]
            it += [('x', l) for l in self.tag_check(finld, list(range(204, 220)) + list(range(248, 256)), 8)] + [('st', 5, 1)]
            it += [('x', self.tag_strip(r)) for r in list(range(204, 220)) + [248, 252]] + [('x', "v_mov_b32 v250, v248"), ('x', "v_mov_b32 v251, v252")]
            for i in range(4):
                it += [('x', f"v_cvt_pk_bf16_f32 v{204+4*i}, v{204+4*i}, v{205+4*i}"), ('x', f"v_cvt_pk_bf16_f32 v{205+4*i}, v{206+4*i}, v{207+4*i}"),
                       ('lg', f"ds_write_b64 v9, v[{204+4*i}:{205+4*i}] offset:{FO[i]//2}", 'fw')]
            it += [('x', l) for l in f"v_lshlrev_b32 v13, 6, v2\nv_lshl_add_u32 v13, v4, 4, v13\nv_add_u32 v13, {L_FIN}, v13".split("\n")]
            self.aq[:0] = [[self.m, c.mo - 3, x] for x in it]
        def h_o():
            if c.p1q < 0: self.poll4b_issue()
            fr = [p for p in pool if p[0][0] == 'a'][:8]; assert len(fr) == 8; self.busy = fr
            e.wait(lg='fw'); e("s_barrier")
            self.stamp(6)
            mf = []; reads = []
            for fp in range(5):
                for dg in range(6):
                    n = fp * 6 + dg; f0 = fr[n % 8][0][1]; base = (n // 2) * 8
                    reads.append([f"ds_read_b128 {ar(f0)}, v13 offset:{(dg*5+fp)*256}", base + 2 * (n % 2), -1, base - 24])
                    for h in range(2):
                        for j in range(2):
                            d = 156 + 24 * j + 4 * dg; b = 116 + 20 * j + 2 * (2 * fp + h)
                            mf.append(f"v_mfma_f32_4x4x4_16b_bf16 {vr(d)}, a[{f0+2*h}:{f0+2*h+1}], v[{b}:{b+1}], {vr(d) if (fp or h) else 0}")
            mf2 = []
            for n in range(0, 30, 2):
                a_, b_ = mf[4*n:4*n+4], mf[4*n+4:4*n+8]
                mf2 += [a_[0], a_[1], b_[0], b_[1], a_[2], a_[3], b_[2], b_[3]]
            if c.skip & 4: mf2 = mf2[:8]; reads = reads[:2]
            self.stream(mf2, reads, [], None, LA=20, bg=lambda m: self.ph2_bg)
            for j in range(2): e(f"v_add_f32 v{8+2*j}, {fl(1e-6)}, v{156+24*j+20}")
            for j in range(2): e(f"v_rcp_f32 v{8+2*j}, v{8+2*j}")
            for j in range(2): e(f"v_mul_f32 v{8+2*j}, v{8+2*j}, v{250+j}")
            for j in range(2):
                D = 156 + 24 * j
                for i in range(10): e(f"v_pk_mul_f32 v[{D+2*i}:{D+2*i+1}], v[{D+2*i}:{D+2*i+1}], v[{8+2*j}:{9+2*j}] op_sel_hi:[1,0]")
                for i in range(10): e(f"v_cvt_pk_bf16_f32 v{D+i}, v{D+2*i}, v{D+2*i+1}")
                for i in range(10): e(f"v_min_u32 v{D+i}, -2, v{D+i}")
                e.vmop(f"buffer_store_dwordx4 {vr(D)}, v6, {srd(SWS)}, s38 offen offset:{j*1024} sc1", 'ost')
                e.vmop(f"buffer_store_dwordx4 {vr(D+4)}, v240, {srd(SWS)}, s38 offen offset:{j*1024} sc1", 'ost')
                e.vmop(f"buffer_store_dwordx2 {vr(D+8, 2)}, v6, {srd(SWS)}, s39 offen offset:{j*1024} sc1", 'ost')
            self.busy = []
            for p in pool: p[1] = 999
            pool.extend([[('v', r), 999] for r in range(116, 156, 4)])
            self.stamp(14)
        self.bias2()
        self.phase2({c.p3: h_p3, c.c3: h_c3, c.mo: h_o, c.p1q: self.poll4b_issue, c.c1q: self.poll4b_check})

    def prog_KV(self):
        e = self.e; c = self.c; self.init_B(); self.dmap = {0: 2, 1: 4, 3: 6, 4: 8, 5: 10, 7: 12, 9: 14}
        ST = KV_ST
        e(f"""s_mul_i32 s{sM0+1}, s{sW}, 5120
        s_add_u32 s{sM0+1}, s{sM0+1}, 16384
        s_lshl_b32 s{sM0+2}, s{sW}, 11
        s_add_u32 s{sM0+2}, s{sM0+2}, 36864
        s_lshl_b32 s{sKW}, s{sHG}, 7
        s_add_u32 s{sKW}, s{sKW}, {19*128}""")
        def dma_x(st):
            g = []
            for j in range(4):
                it = [('x', f"s_add_u32 m0, s{sM0}, {(st%3)*ST}")] if j == 0 else []
                g.append(it + [('vm', f"buffer_load_dwordx4 v{208+j}, {srd(SX)}, s{sE+st} offen offset:{j*1024} {c.xsc} lds", ('S', st))])
            return g
        def dma_w(st, i):
            it = []
            if i == 0: it = [('x', f"s_mul_i32 s{sKA}, s{sE+st}, 1920"), ('x', f"s_add_u32 m0, s{sM0+1}, {(st%3)*ST}")]
            if i == 4: it = [('x', "s_add_u32 m0, m0, 4096")]
            return it + [('vm', f"buffer_load_dwordx4 v{212+i}, {srd(SQ)}, s{sKA} offen offset:{(i%4)*1024} {c.wsc} lds", ('S', st))]
        def dma_h(st, i):
            it = [('x', f"s_mul_i32 s{sKB}, s{sE+st}, 1728"), ('x', f"s_add_u32 m0, s{sM0+2}, {(st%3)*ST}")] if i == 0 else []
            return it + [('vm', f"buffer_load_dwordx4 v{217+i}, {srd(S1)}, s{sKB} offen offset:{i*1024} {c.wsc} lds", ('S', st))]
        def dma_stage(st): return dma_x(st) + [dma_w(st, i) for i in range(5)] + [dma_h(st, i) for i in range(2)]
        if c.fast:
            self.kernarg_wait()
            if c.touch == 3: self.touch()
            for g in dma_x(0): self.emit_items(g)
            if c.touch == 5: self.touch()
            self.small_dma(SM, 6, f"s{sKW}", L_BIASKV, 8, 'bias')
        e(f"""s_and_b32 s{sT0}, s{sW}, 1
        s_mul_i32 s{sT0}, s{sT0}, 320
        s_lshr_b32 s{sT1}, s{sW}, 1
        s_add_u32 s{sT1}, s{sT1}, 1
        s_mul_i32 s{sT1}, s{sT1}, 1280
        s_mul_i32 s{sT3}, s{sHG}, 160
        s_add_u32 s{sT1}, s{sT1}, s{sT3}""")
        for i in range(5):
            e(f"v_add_u32 v9, {64*i}, v0\nv_add_u32 v9, s{sT0}, v9")
            self.attn_voff(212 + i, None, sT1)
            if i % 4: e(f"v_subrev_u32 v{212+i}, {(i%4)*1024}, v{212+i}")
            if c.fast: self.emit_items(dma_w(0, i))
        if not c.fast:
            self.kernarg_wait()
            self.small_dma(SM, 6, f"s{sKW}", L_BIASKV, 8, 'bias')
            for g in dma_x(0) + [dma_w(0, i) for i in range(5)]: self.emit_items(g)
        e(f"s_lshl_b32 s{sT3}, s{sW}, 4\nv_lshlrev_b32 v11, 1, v2\nv_xor_b32 v11, v11, v0\nv_and_b32 v11, 7, v11")
        for pp in range(2):
            e(f"v_add_u32 v10, {8*pp}, v5\nv_add_u32 v10, s{sT3}, v10")
            self.swap23(10, 12)
            e(f"""v_mul_u32_u24 v10, 3456, v10
            v_lshl_add_u32 v10, v11, 4, v10
            v_add_u32 v10, s{sKW}, v10
            v_subrev_u32 v{217+pp}, {pp*1024}, v10""")
            self.emit_items(dma_h(0, pp))
        mk_srd(e, 28, pGATE, 1280)
        if c.rot == 3: e(f"v_xor_b32 v9, s{sE}, v6\nv_add_u32 v11, 1024, v9")
        else: e(f"v_add_u32 v9, s{sE}, v6\nv_subrev_u32 v10, 1280, v9\nv_min_u32 v9, v9, v10\nv_add_u32 v11, 1024, v9\nv_subrev_u32 v10, 1280, v11\nv_min_u32 v11, v11, v10")
        self.small_dma(28, 9, "0", L_GATE, 64, ('S', 0)); self.small_dma(28, 11, "0", L_GATE + 1024, 16, ('S', 0))
        self.pstamp(1)
        if c.pke:
            self.pack_setup()
            for g in self.pack_loads(): self.emit_items(g)
        if c.touch == 1: self.touch()
        if c.touch == 4:
            self.touch3_setup()
            for p_ in range(c.tp0): self.emit_items(self.touch3(p_))
        self.pstamp(2)
        def setup():
            e = self.e
            self.x_addr(ST); self.rho0(8)
            e(f"v_mul_u32_u24 v9, 160, v8\nv_mad_u32_u24 v9, v4, 40, v9\nv_add_u32 v226, 16384, v9")
            for sl in (1, 2): e(f"v_add_u32 v{226+sl}, {sl*ST}, v226")
            e(f"v_lshlrev_b32 v9, 7, v8\nv_lshl_add_u32 v9, v4, 3, v9\nv_add_u32 v9, 36864, v9\nv_bfe_u32 v10, v8, 1, 2")
            for t in range(4): e(f"v_xor_b32 v11, {t}, v10\nv_lshl_add_u32 v{229+t}, v11, 5, v9\nv_add_u32 v{204+t}, {2*ST}, v{229+t}")
            e(f"v_lshlrev_b32 v233, 4, v2\nv_add_u32 v233, {L_GATE}, v233\nv_lshlrev_b32 v253, 3, v2\nv_add_u32 v253, {L_BIASKV}, v253")
            self.common_setup()
            if not c.pke: self.pack_setup()
            e(f"""v_lshrrev_b32 v8, 2, v1
            v_mul_u32_u24 v8, 2560, v8
            v_lshl_add_u32 v8, v4, 5, v8
            v_lshrrev_b32 v9, 1, v2
            v_lshl_add_u32 v8, v9, 9, v8
            v_and_b32 v9, 1, v2
            v_lshl_add_u32 v8, v9, 4, v8
            s_lshl_b32 s{sT0}, s{sW}, 7
            v_add_u32 v241, s{sT0}, v8
            v_add_u32 v243, 10240, v241
            v_mov_b32 v9, {OOB}
            v_cmp_ge_u32 vcc, 7, v1
            v_cndmask_b32 v243, v9, v243, vcc
            v_cmp_gt_u32 vcc, 2, v2
            v_cndmask_b32 v242, v9, v241, vcc
            v_cndmask_b32 v244, v9, v243, vcc
            v_mul_u32_u24 v12, {PSZ}, v2
            v_min_u32 v10, 14, v1
            v_lshl_add_u32 v12, v10, 4, v12
            v_lshlrev_b32 v13, 4, v1
            v_cmp_gt_u32 vcc, 16, v0
            v_cndmask_b32 v234, v9, v13, vcc
            v_cmp_gt_u32 vcc, 15, v0
            v_cndmask_b32 v13, v9, v13, vcc""")
        self.interleave(self.record(setup), dma_stage(1)[:c.n1], c.pe2)
        self.pstamp(3)
        if c.n1 >= 12:
            self.small_dma(SM, 6, "s36", None, 50, 'misc', "s_mov_b32 m0, s37")
            if c.touch == 2: self.touch()
            if not c.pke:
                for g in self.pack_loads(): self.emit_items(g)
        self.tag_wait(); self.pstamp(4)
        e.wait(vm='bias')
        for s_ in range(4): e.lgop(f"ds_read_b64 v[{136+2*s_}:{137+2*s_}], v253 offset:{s_*32}", ('b', s_))
        for s_ in range(4):
            e.wait(lg=('b', s_))
            for h in range(2): e(f"v_lshlrev_b32 v{96+8*s_+2*h}, 16, v{136+2*s_+h}\nv_and_b32 v{97+8*s_+2*h}, 0xffff0000, v{136+2*s_+h}")
        self.stamp(0)
        NS = 15; nm = NS * 4; mf = []; reads = []
        for st in range(10):
            sl = st % 3
            for t in range(NS):
                gs = st * NS + t; wr = 168 + 8 * (gs % 4); m0 = len(mf)
                for ks in range(2):
                    if t == 14: reads.append([f"ds_read_b128 {vr(wr+4*ks)}, v233 offset:{(st*2+ks)*64}", m0, st, m0 - 13]); continue
                    for rd in range(2):
                        if t < 10: ad, off = 226 + sl, (t // 5) * 10240 + ks * 5120 + rd * 1280 + (t % 5) * 8
                        else: ad, off = (229 if sl < 2 else 204) + t - 10, (sl % 2) * ST + ks * 4096 + rd * 1024
                        reads.append([f"ds_read_b64_tr_b16 v[{wr+4*ks+2*rd}:{wr+4*ks+2*rd+1}], v{ad} offset:{off}", m0, st, m0 - 13])
                for j in ((1, 0) if st == 0 else (0, 1)):
                    for ks in range(2):
                        xr = 136 + (st % 2) * 16 + (j * 2 + ks) * 4; d = 16 + (t * 2 + j) * 4
                        if t == 0: reads.append([f"ds_read_b128 {vr(xr)}, v{220+2*sl+ks} offset:{j*2048}", len(mf), st, -1])
                        cc = vr(d)
                        if st == 0 and ks == 0: cc = vr(16 + t * 8) if 10 <= t < 14 else "0"
                        mf.append(f"v_mfma_f32_16x16x32_bf16 {vr(d)}, {vr(wr+4*ks)}, {vr(xr)}, {cc}")
        self.kloop(mf, reads, nm, dma_stage, [], 'KV')
        A64 = lambda u: u < 64; ALL = lambda u: True
        A51 = lambda u: u < 51; Sa = c.Sa
        KQ = 136; PR = 168; VT = 156
        nl2e = fl(-math.log2(math.e))
        side = [l.strip() for l in f"""v_mul_f32 v128, {nl2e}, v128
        v_mul_f32 v132, {nl2e}, v132
        v_exp_f32 v128, v128
        v_exp_f32 v132, v132
        s_lshl_b32 s{sT2}, s{sMT}, 2
        v_add_f32 v128, 1.0, v128
        v_add_f32 v132, 1.0, v132
        v_rcp_f32 v128, v128
        v_rcp_f32 v132, v132
        s_add_u32 s{sT2}, s{sT2}, s{sW}
        s_lshl_b32 s{sT3}, s{sT2}, 9
        s_lshl_b32 s{sT4}, s{sHG}, 15
        s_add_u32 s{sT3}, s{sT3}, s{sT4}
        s_add_u32 s{sT3}, s{sT3}, {GB}
        v_mul_u32_u24 v220, {RSV}, v1
        v_mad_u32_u24 v220, v2, 48, v220
        s_mul_i32 s{sT0}, s{sW}, {32*RSV}
        s_add_u32 s{sT0}, s{sT0}, {L_V}
        v_add_u32 v220, s{sT0}, v220
        v_mul_u32_u24 v221, {RSP}, v1
        s_mov_b32 s{sT0}, 80
        v_mad_u32_u24 v221, v2, s{sT0}, v221
        s_mul_i32 s{sT0}, s{sW}, {32*RSP}
        v_add_u32 v221, s{sT0}, v221
        v_lshl_add_u32 v8, v2, 2, v3
        v_mul_u32_u24 v222, {RSP}, v8
        v_lshl_add_u32 v222, v4, 3, v222
        s_mul_i32 s{sT0}, s{sW}, 80
        v_add_u32 v222, s{sT0}, v222
        v_mul_u32_u24 v223, {RSV}, v8
        v_lshl_add_u32 v223, v4, 3, v223
        s_mul_i32 s{sT0}, s{sW}, 48
        s_add_u32 s{sT0}, s{sT0}, {L_V}
        v_add_u32 v223, s{sT0}, v223
        s_lshl_b32 s{sT0}, s{sHG}, 4
        s_add_u32 s{sT0}, s{sT0}, s{sMT}
        s_mul_i32 s{sT1}, s{sT0}, {PSZ}
        s_add_u32 s{sT1}, s{sT1}, {PP}
        s_mov_b32 s{sC0}, {fl(math.log2(math.e))}""".split("\n")]
        self.tag_update()
        self.valu(self.cvt_heads(16, KQ, 0) + self.cvt_heads(16, KQ + 10, 1))
        e.wait(lg='wphi')
        side = self.cvt_heads(56, VT, 0) + side[:38]; rest = [side.pop() for _ in range(0)]
        self.valu(self.phi_mfmas(KQ, PR), [[('x', l)] for l in side], 1)
        e(f"v_mov_b32 v{VT+10}, 0x3f80\nv_mov_b32 v{VT+11}, 0\ns_mov_b32 s{sC0}, {fl(math.log2(math.e))}\ns_barrier")
        for i in range(3): e.lgop(f"ds_write_b128 v220, {vr(VT+4*i)} offset:{i*16}", 'vw')
        for j in range(2):
            for i in (3, 2, 1, 0): e(self.tag_put(128 + 4 * j + i, 128 + 4 * j))
            e.vmop(f"buffer_store_dwordx4 {vr(128+4*j)}, v234, {srd(SWS)}, s{sT3} offen offset:{j*256} sc1", 'hst')
        L0 = self.softmax_lines(PR, 16, 136)
        self.valu(L0[:16], bg=ALL, S=Sa)
        self.valu(self.cvt_heads(56, 208, 1) + ["v_mov_b32 v218, 0x3f80", "v_mov_b32 v219, 0"], bg=ALL, S=Sa)
        for i in range(3): e.lgop(f"ds_write_b128 v220, {vr(208+4*i)} offset:{16*RSV + i*16}", 'vw')
        self.valu(L0[16:], bg=ALL, S=Sa)
        PH = (136, 56)
        pw = lambda j: [[('lg', f"ds_write_b128 v221, {vr(PH[j]+4*i)} offset:{j*16*RSP + i*16}", 'pw')] for i in range(5)]
        L1 = self.softmax_lines(PR + 20, 16, 56)
        self.valu(L1[:40], pw(0), 8, ALL, Sa)
        self.valu(L1[40:-20], bg=ALL, S=Sa)
        self.valu(L1[-20:], pw(1), 4)
        e.wait(lg_all=True); e("s_barrier")
        self.stamp(2)
        mf = []; reads = []; D0 = 168
        for s_ in range(4):
            b0 = 16 + s_ * 20; m0 = len(mf)
            for dt in range(2):
                for rd in range(2): reads.append([f"ds_read_b64_tr_b16 v[{b0+12+4*dt+2*rd}:{b0+13+4*dt+2*rd}], v223 offset:{(32*s_+16*rd)*RSV + dt*32}", m0 + dt, -1, -1])
            for ft in range(3):
                for rd in range(2): reads.append([f"ds_read_b64_tr_b16 v[{b0+4*ft+2*rd}:{b0+4*ft+2*rd+1}], v222 offset:{(32*s_+16*rd)*RSP + ft*32}", m0 + 2 * ft, -1, -1])
                for dt in range(2):
                    d = D0 + (ft * 2 + dt) * 4
                    mf.append(f"v_mfma_f32_16x16x32_bf16 {vr(d)}, {vr(b0+4*ft)}, {vr(b0+12+4*dt)}, {vr(d) if s_ else 0}")
        reads.sort(key=lambda r: r[1]); rp = 0
        for m in range(24):
            while rp < 40 and (len(e.lg) < 14 and (m == 0 or reads[rp][1] <= m + 8) or reads[rp][1] <= m): e.lgop(reads[rp][0], ('kv', reads[rp][1])); rp += 1
            e.wait(lg=[('kv', k) for k in range(m + 1)])
            e(mf[m])
            if c.kvb: self.bg_try(ALL, c.kvb)
        self.gelu_consts()
        e(f"""s_lshl_b32 s{sT4}, s{sMT}, 1
        s_lshr_b32 s{sT5}, s{sW}, 1
        s_add_u32 s{sT4}, s{sT4}, s{sT5}
        s_and_b32 s{sT5}, s{sW}, 1
        s_mul_i32 s{sT3}, s{sT4}, 74
        s_lshl_b32 s{sKW}, s{sHG}, 1
        s_add_u32 s{sT3}, s{sT3}, s{sKW}""")
        for ft in range(3):
            for dt in range(2):
                for i in range(4): e(self.tag_put(D0 + (ft * 2 + dt) * 4 + i))
                e.vmop(f"buffer_store_dwordx4 {vr(D0+(ft*2+dt)*4)}, v{241+2*dt+(ft==2)}, {srd(SWS)}, s{sT1} offen offset:{ft*1024} sc1", 'pst')
        self.stamp(3)
        if c.stamps: self.gelu_consts()
        e(f"""s_add_u32 s{sT3}, s{sT3}, 38
        s_lshl_b32 s{sT3}, s{sT3}, 12
        s_lshl_b32 s{sT5}, s{sT5}, 11
        s_add_u32 s{sT3}, s{sT3}, s{sT5}
        s_add_u32 s{sT3}, s{sT3}, {A2}
        s_lshl_b32 s{sKW}, s{sMT}, 4
        s_add_u32 s{sKW}, s{sKW}, s{sHG}
        s_lshl_b32 s{sKW}, s{sKW}, 7
        s_add_u32 s{sKW}, s{sKW}, {F4+1024}
        s_cmp_eq_u32 s{sW}, 0
        s_cselect_b32 s{sKW}, s{sKW}, {OOB}
        s_mul_i32 s32, s{sT2}, 240
        s_mul_i32 s{sT4}, s{sHG}, {FSZ}
        s_add_u32 s{sT1}, s32, s{sT4}
        s_add_u32 s{sT1}, s{sT1}, {FIN}
        s_lshl_b32 s{sT4}, s{sT4}, 4
        s_add_u32 s32, s32, s{sT4}
        s_add_u32 s32, s32, {PP}
        s_add_u32 s33, s32, {4*PSZ}
        s_add_u32 s34, s33, {4*PSZ}
        s_add_u32 s35, s34, {4*PSZ}""")
        L = []; hs = []
        for p in range(2):
            for j in range(2):
                O = 152 + 4 * ((2 * p + j) % 4)
                L += self.gelu_lines(96 + (4 * p + j) * 4, 96 + (4 * p + 2 + j) * 4, 136 + 8 * j, O)
                hs.append(('vm', f"buffer_store_dwordx4 {vr(O)}, v{6 if p == 0 else 240}, {srd(SWS)}, s{sT3} offen offset:{j*1024} sc1", 'hst'))
        RD = 116
        pld = [f"buffer_load_dwordx4 {vr(RD+4*i)}, v12, {srd(SWS)}, s{32+i} offen sc1" for i in range(4)]
        self.valu(L, bg=ALL if c.kgb else None, S=Sa)
        for l in pld: e.vmop(l, 'pld')
        if c.kp4 == 0: self.poll4a_issue()
        self.emit_items(hs)
        pool = [[('v', r), 999] for r in list(range(168, 224, 4)) + list(range(136, 168, 4))]
        for _ in range(c.kb2): self.bg_try(ALL, -9999)
        self.stamp(4)
        def h_r2():
            red = [self.tag_strip(RD + i) for i in range(16)]
            red += [f"v_add_f32 v{RD+i}, v{RD+i}, v{RD+4+i}" for i in range(4)] + [f"v_add_f32 v{RD+8+i}, v{RD+8+i}, v{RD+12+i}" for i in range(4)] + [f"v_add_f32 v{RD+i}, v{RD+i}, v{RD+8+i}" for i in range(4)]
            for sw in ('32', '16'):
                red += [f"v_mov_b32 v{RD+4+i}, v{RD+i}" for i in range(4)] + [f"v_permlane{sw}_swap_b32 v{RD+i}, v{RD+4+i}" for i in range(4)] + [f"v_add_f32 v{RD+i}, v{RD+i}, v{RD+4+i}" for i in range(4)]
            red += [self.tag_put(RD + i) for i in range(4)]
            it = [('st', 14, 1), ('wvm', 'pld')] + [('x', l) for l in self.tag_check(pld, range(RD, RD + 16), 9)] + [('st', 5, 1)] + [('x', l) for l in red]
            it += [('vm', f"buffer_store_dwordx4 {vr(RD)}, v13, {srd(SWS)}, s{sT1} offen sc1", 'fst')]
            self.emit_items(it); pool.extend([[('v', r), 999] for r in range(RD, RD + 20, 4)])
        def h_f4():
            e.wait(vm='hst'); e("s_barrier"); e.vmop(self.flag_store(245, 246, f"s{sKW}"), 'f4st')
        h_r2()
        if c.f4k < 0: h_f4()
        if c.kp4 == 1:
            self.poll4a_issue()
            for _ in range(c.kb3): self.bg_try(ALL, -9999)
        self.ph2_begin(pool)
        while len(self.Bpend) > c.kleft: self.bg_try(ALL, -9999)
        self.stamp(6)
        self.bias2()
        self.phase2({c.f4k: h_f4, c.p1: self.poll4b_issue, c.c1: self.poll4b_check})

    def kloop(self, mf, reads, nm, dma_stage, poison, name):
        e = self.e; c = self.c; back = []
        def mksync(st):
            def f(m):
                tg = [it[2] for g in back for it in (g[1] if g[0] == 'atomic' else g) if it[0] == 'vm']
                assert not (st == c.pks and 'packld' in tg) and not (st == c.pks + 3 and 'pkst' in tg) and not (st == 3 and 'misc' in tg) and ('S', st) not in tg
                e.wait(vm=[('S', st)] + (['pkst'] if st == c.pks + 3 else []) + (['misc'] if st == 3 else []) + (['packld'] if st == c.pks else []), lg_all=True); e("s_barrier")
                self.stamp(st + 1, 2)
                if st < 3: self.stamp(7 + st, 3)
                if st == 2: self.pstamp_flush()
                out = []
                if st == 0 and c.n1 < 12:
                    back.extend(dma_stage(1)[c.n1:])
                    back.append(('atomic', self.record(lambda: self.small_dma(SM, 6, "s36", None, 50, 'misc', "s_mov_b32 m0, s37"))))
                if st + 2 < 10: back.extend(dma_stage(st + 2))
                if st == c.pkl and c.n1 < 12: back.extend(self.pack_loads())
                if st == c.pks: back.extend(self.pack_stores())
                if c.f1s < st < 8 or (st == c.f1s and st < 8 and c.f1c + 8 < nm - 16):
                    for u in self.Bpend[:c.bk]: self.Bpend.remove(u); back.append(self.B_take([u])[0])
                need = max([k + 1 for k, g in enumerate(back) if g[0] != 'atomic' and g[-1][2] == ('S', st + 1)], default=0)
                n = min(len(back), max(c.quota, need)) if st < 7 else len(back)
                take = back[:n]; del back[:n]
                if take:
                    pc = self.paced([g[1] if g[0] == 'atomic' else g for g in take], m, nm - c.dtail)
                    for f, g in zip(pc, take):
                        if g[0] == 'atomic': f['atomic'] = 1
                    out += pc
                if c.touch == 4: out += [dict(at=m + nm - c.dtail + 1, chain=1, ins=self.touch3(p_)) for p_ in range(c.tp0, 3) if c.tst[p_] == st]
                if st in c.cpf: out.append(dict(at=m + nm - c.dtail + 2, ins=self.code_touch('L_QH' if name == 'KV' else 'L_end')))
                if st == c.pks: out += self.pack_fill(m, nm)
                if st == c.pks + 3: out.append(dict(at=m + 1, ins=[('vm', self.flag_store(245, 246, f"s{sF1}"), 'f1st')]))
                if st == 3: out += [dict(at=m + 3 + 5 * k, ins=g) for k, g in enumerate(self.wphi_reads(254))]
                if st == c.f1s - 1: g = self.f1_issue()[0]; out += [dict(at=m + nm - 30, ins=g[:-1]), dict(at=m + nm - c.dtail, chain=1, ins=g[-1:])]
                if st == c.f1s:
                    chk = [dict(at=m + c.f1c + 2 * k, ins=[it]) for k, it in enumerate(self.f1_check())]
                    out += chk
                    if c.bt: out += [dict(at=m + c.f1c + 26 + c.btsp * k, ins=g) for k, g in enumerate(self.btouch())]
                if st == 9 and name == 'KV': out.append(dict(at=m + 4, ins=self.record(self.tag_issue)))
                if st == 8:
                    if poison: out += self.paced(poison, m, 30)
                    self.bg0 = max(m + c.bgs, (m + c.f1c + 8) if c.f1s == 8 else 0)
                return out
            return f
        self.bg0 = 9999; self.wphi_addr(254)
        self.stream(mf, reads, [], {st: mksync(st) for st in range(10)}, name=name, bg=lambda m: (lambda u: m >= self.bg0 and u < 51))
        self.stamp(1); self.stamp(11, 2)
        self.typ = name
        if c.dly == (1 if name == 'KV' else 2): e(f's_sleep {c.dlyn}')
        self.ph2_pre()

    def ph2_pre(self):
        e = self.e
        mk_srd(e, SM, pB2, 1280); mk_srd(e, SPK, pOUT, 2048 * 1280)
        e(f"""s_mul_i32 s{sM0}, s{sNB}, 160
        s_and_b32 s{sM0+1}, s{sNB}, 1
        s_lshl_b32 s{sM0+2}, s{sM0+1}, 5
        s_add_u32 s{sM0+2}, s{sM0+2}, s{sM0}
        s_xor_b32 s{sM0+1}, s{sM0+1}, 1
        s_lshl_b32 s{sM0+1}, s{sM0+1}, 7
        s_add_u32 s{sM0+1}, s{sM0+1}, s{sM0}
        s_min_u32 s{sM0+3}, s{sW}, 1
        s_mul_i32 s{sM0+3}, s{sM0+3}, 1280
        s_sub_u32 s{SM+2}, 1280, s{sM0+3}
        s_lshr_b32 s{sM0+5}, s{sRB}, 1
        s_lshl_b32 s{sM0+3}, s{sM0+5}, 11
        s_add_u32 s{sM0+3}, s{sM0+3}, {F4}
        s_add_u32 s{sM0+4}, s{sM0+3}, 1024
        v_and_b32 v235, 7, v0
        v_lshlrev_b32 v235, 7, v235""")
        e("v_lshlrev_b32 v7, 4, v2\nv_lshlrev_b32 v8, 3, v2")
        e.vmop(f"buffer_load_dwordx4 v[224:227], v7, {srd(SM)}, s{sM0+2} offen", 'b2')
        e.vmop(f"buffer_load_dwordx4 v[228:231], v7, {srd(SM)}, s{sM0+2} offen offset:64", 'b2')
        e.vmop(f"buffer_load_dwordx2 v[232:233], v8, {srd(SM)}, s{sM0+1} offen", 'b2')
    def poll4a_issue(self): self.e.vmop(self.poll_issue(235, 252, 2, None, f"s{sM0+3}"), 'p4a')

    def poll4b_issue(self): self.e.vmop(self.poll_issue(235, 252, 2, None, f"s{sM0+4}"), 'p4b')
    def poll4b_check(self):
        e = self.e
        self.stamp(10)
        e.wait(vm='p4b')
        for l in self.poll_check([(235, 252, 2, f"s{sM0+4}")]): e(l)
        self.stamp(11)
        self.gate[1] = True; self.g_loads()
        for _ in range(self.c.burst): self.try_issue(self.m, True)
    def g_loads(self):
        e = self.e
        e(f"s_lshl_b32 s{sT0}, s{sRB}, 10\ns_add_u32 s{sT0}, s{sT0}, {GB}\nv_lshlrev_b32 v7, 4, v1")
        for jj in range(4):
            e(f"v_subrev_u32 v8, v6, v{236+jj}\nv_lshrrev_b32 v8, 2, v8\nv_add_u32 v8, v8, v7")
            e.vmop(f"buffer_load_dword v{241+jj}, v8, {srd(SWS)}, s{sT0} offen sc1", 'g')
    def bias2(self):
        e = self.e; BI = 96
        e.wait(vm='b2')
        for t in range(5):
            for h in range(2):
                s_ = 224 + 2 * t + h
                e(f"v_lshlrev_b32 v{BI+4*t+2*h}, 16, v{s_}\nv_and_b32 v{BI+4*t+2*h+1}, 0xffff0000, v{s_}")

    def ph2_begin(self, pool):
        e = self.e; c = self.c
        e.wait(vm='p4a')
        for l in self.poll_check([(235, 252, 2, f"s{sM0+3}")]): e(l)
        self.pool = pool; self.busy = []; self.Aloc = {}; self.Bl = dict(self.Bloc); self.Acur = {}
        groups = [(0, 1), (2, 3), (4, 5), (6, 7), (8, 9), (10, 11), (12, 13), (14, 15), (16, 17, 18)]
        self.mf = [(i, t, j) for g in groups for t in range(5) for j in range(4) for i in g]
        fA, lA, fB, lB = {}, {}, {}, {}
        for m, (i, t, j) in enumerate(self.mf):
            fA.setdefault((i, j), m); lA[(i, j)] = m; fB.setdefault((i, t), m); lB[(i, t)] = m
        self.lA, self.lB = lA, lB
        w = [('A', k, fA[k] if k[0] < 14 else (280 if k[0] < 16 else 320) - c.vlead - 1, lA[k]) for k in fA]
        w += [('S', k, fB[k], lB[k]) for k in fB if self.Bl[k] and self.Bl[k][0] == 'l']
        w += [('B', k, fB[k], lB[k]) for k in fB if self.Bl[k] is None]
        self.fB = fB
        self.work = sorted(w, key=lambda x: (x[2] // 40 * 40 + x[1][0] % 2 * 4 + x[1][1]) if (x[0] == 'A' and c.aord and x[1][0] < 14) else x[2]); self.gate = {0: True, 1: False, 2: False, 3: False}; self.Atxt = {}; self.lastiss = -99; self.m = 0
        for _ in range(c.a0): self.try_issue(0, True)

    def try_issue(self, m, force=False, nos=False):
        e = self.e; c = self.c; pool = self.pool
        cls = lambda i: 0 if i < 10 else (1 if i < 14 else 2 if i < 16 else 3)
        for w in self.work:
            kind, k, dl, last = w
            if kind == 'A' and not self.gate[cls(k[0])]: continue
            if kind == 'S' and (nos or dl - m > 16 or self.Border.index(k) in self.Bpend): continue
            if kind != 'S' and not force and dl - m >= 12 and e.t - e.tvm < (c.S2 if dl - m >= c.urg else c.S3): continue
            if kind == 'P':
                self.Bpend.remove(k); self.emit_items(self.B_take([k])[0]); self.work.remove(w); return True
            ok = [p for p in pool if p[1] > last and p not in self.busy and (p[0][0] == 'v' or kind != 'A' or k[0] < 14)]
            if not (kind == 'A' and k[0] >= 14): ok.sort(key=lambda p: p[0][0] == 'v' and m > 150)
            if len(ok) < (1 if dl - m <= 40 else 4 if kind == 'A' else 7): continue
            p = ok[0]; pool.remove(p); loc = p[0]; self.until[loc] = p[1]
            if kind == 'A':
                i, j = k; sr = sAT if i % 2 == 0 else sAT2
                if self.Acur.get(sr) != i:
                    e(self.soff(sr, i, 'A')); self.Acur[sr] = i
                e.vmop(f"buffer_load_dwordx4 {R(loc)}, v{236+j}, {srd(SWS)}, s{sB if c.xA == 1 and i < 14 else 41 if c.xA == 2 else sr} offen sc1", ('A', k)); self.Aloc[k] = loc
                self.Atxt[k] = self.soff(sT1, i, 'A').split("\n") + [ f"buffer_load_dwordx4 {R(loc)}, v{236+j}, {srd(SWS)}, s{sT1} offen sc1"]
            elif kind == 'B':
                self.emit_items(self.B_items(k, loc)); self.Bl[k] = loc
            else:
                e.wait(vm=('B', k))
                e.lgop(f"ds_read_b128 {R(loc)}, v234 offset:{self.Bl[k][1]*1024}", ('S', k)); self.Bl[k] = loc
            if kind != 'S': self.lastiss = m
            if c.verbose > 1: print(f'{kind}{k}@{m}->{dl}', end=' ')
            self.work.remove(w); return True
        return False

    def phase2(self, hooks):
        e = self.e; c = self.c
        ACC = 16; BI = 96; pool = self.pool; mf = self.mf; Bl = self.Bl; Aloc = self.Aloc
        mtrans = min(m for m, x in enumerate(mf) if x[0] >= 14)
        if c.verbose: print("B loads left for phase 2:", len(self.Bpend))
        hooks = {k: v for k, v in hooks.items() if k >= 0}
        for u in self.Bpend:
            k = self.Border[u]; self.work.append(('P', u, self.fB[k] - (20 if self.Bloc[k][0] == 'l' else 0), 0))
        self.work.sort(key=lambda x: (x[2] // 40 * 40 + x[1][0] % 2 * 4 + x[1][1]) if (x[0] == 'A' and c.aord and x[1][0] < 14) else x[2])
        e(f"s_add_u32 s{sT0}, s88, {L_BL}\nv_add_u32 v234, s{sT0}, v6")
        pool += [[('v', r), 999] for r in (224, 228)]
        if c.dly == (3 if self.typ == 'KV' else 4): e(f's_sleep {c.dlyn}')
        seen = set(); vchk = {280: (14, 15), 320: (16, 17, 18)}
        aq = []
        lastH = {}; firstO = {}; lastO = {}
        for m, (i, t, j) in enumerate(mf):
            if i < 14: lastH[(j, t)] = m
            else: firstO.setdefault((j, t), m); lastO[(j, t)] = m
        g0 = min(lastH.values()) - 10
        aq.append([g0, g0 + 4, ('wvm', 'g')])
        for jj in range(4): aq += [[g0, g0 + 8, ('x', self.tag_strip(241 + jj))]]
        for jj in range(4): aq += [[g0, g0 + 12, ('x', f"v_sub_f32 v{241+jj}, 1.0, v{241+jj}")]]
        for k in sorted(lastH, key=lambda k: lastH[k]):
            jj, tt = k; d = ACC + (jj * 5 + tt) * 4
            for q in range(4): aq.append([lastH[k] + 3, firstO[k] - 2, ('x', f"v_mul_f32 v{d+q}, v{241+jj}, v{d+q}")])
        adr = []
        for jj in range(1, 4):
            adr += [f"s_add_u32 s{sT0}, s{sW}, {jj}", f"s_and_b32 s{sT0}, s{sT0}, 3", f"s_mul_i32 s{sT0}, s{sT0}, 15360",
                    f"s_add_u32 s{sT0}, s{sT0}, {L_RED + (jj-1)*5120}", f"v_add_u32 v{8+jj}, s{sT0}, v6"]
        adr += [l.strip() for l in f"""s_mul_i32 s{sT0}, s{sW}, 15360
        s_add_u32 s{sT0}, s{sT0}, {L_RED}
        v_add_u32 v8, s{sT0}, v6
        s_lshl_b32 s{sT0}, s{sRB}, 2
        s_add_u32 s{sT0}, s{sT0}, s{sW}
        s_mul_i32 s{sT0}, s{sT0}, {16*1280}
        s_add_u32 s{sT3}, s{sT0}, s{sM0+2}
        s_add_u32 s{sT2}, s{sT0}, s{sM0+1}
        v_mul_u32_u24 v12, 1280, v1
        v_lshl_add_u32 v13, v2, 3, v12
        v_lshl_add_u32 v12, v2, 4, v12""".split("\n")]
        for l in adr: aq.append([c.adr0, 325, ('x', l)])
        for k in sorted(lastO, key=lambda k: lastO[k]):
            jj, tt = k
            if jj: aq.append([lastO[k] + 3, 999, ('lg', f"ds_write_b128 v{8+jj}, {vr(ACC+(jj*5+tt)*4)} offset:{tt*1024}", 'rw')])
        self.aq = aq
        for m, (i, t, j) in enumerate(mf):
            self.m = m
            if m == mtrans: self.stamp(7)
            assert (i, j) in Aloc and Bl[(i, t)] and Bl[(i, t)][0] != 'l', (m, i, t, j)
            assert not any(a[1] < m for a in aq), (m, aq[0])
            e.wait(vm=[('A', (i, j)), ('B', (i, t))], lg=('S', (i, t)))
            d = ACC + (j * 5 + t) * 4
            cc = vr(d) if (j, t) in seen else vr(BI + 4 * t); seen.add((j, t))
            e(f"v_mfma_f32_16x16x32_bf16 {vr(d)}, {R(Bl[(i, t)])}, {R(Aloc[(i, j)])}, {cc}")
            k0 = len(e.ins)
            for loc, last in ((Aloc[(i, j)], self.lA[(i, j)]), (Bl[(i, t)], self.lB[(i, t)])):
                if last == m: pool.append([loc, self.until.get(loc, 999) if self.until.get(loc, 999) > m else 999])
            if m == 40: pool.extend([[('v', BI + 4 * k), 999] for k in range(5)])
            if m == 200 and c.dly == (5 if self.typ == 'KV' else 6): e(f's_sleep {c.dlyn}')
            if m == c.o1: self.gate[2] = True
            if m == c.o2: self.gate[3] = True
            if m + 1 + c.vlead in vchk:
                mv = m + 1 + c.vlead; ks = [(ii, jj) for ii in vchk[mv] for jj in range(4)]
                assert all(k in Aloc for k in ks), (m, ks)
                vq = [('wvm', [('A', k) for k in ks])] + [('x', l) for l in self.valid_check(sum([self.Atxt[k] for k in ks], []), [Aloc[k][1] + q for k in ks for q in range(4)], 7)]
                if mv == 280: vq = [('st', 12, 1)] + vq + [('st', 13, 1), ('open',)]
                aq[:0] = [[m, mv - 1, it] for it in vq]
            if m in hooks: hooks[m]()
            self.try_issue(m)
            while any(w[2] - m < 4 for w in self.work) and self.try_issue(m): pass
            while True:
                av = [a for a in aq if a[0] <= m]
                if not av: break
                hurry = any(sum(1 for b in aq if b[1] <= a[1]) > 2 * (a[1] - m) for a in aq if a[1] < 999)
                a = min(av, key=lambda a: a[1])
                if len(e.ins) - k0 >= 2 and not hurry: break
                if a[2][0] == 'lg' and any(x.kind in ('dsw', 'dsr', 'vload', 'dma') for x in e.ins[k0:]): break
                aq.remove(a)
                if a[2][0] == 'open':
                    self.gate[3] = True
                    for _ in range(c.burst3): self.try_issue(m, True)
                elif a[2][0] == 'call': a[2][1]()
                else: self.emit_items([a[2]])
        assert not self.work, self.work
        self.stamp(8)
        for a in aq: self.emit_items([a[2]])
        e.wait(lg_all=True); e("s_barrier")
        for t in range(5):
            for s_ in range(3): e.lgop(f"ds_read_b128 {vr(116+(t*3+s_)*4)}, v8 offset:{s_*5120+t*1024}", ('rr', t))
        for t in range(5):
            e.wait(lg=('rr', t)); d = ACC + t * 4; r = 116 + t * 12
            e(f"""v_pk_add_f32 v[{d}:{d+1}], v[{d}:{d+1}], v[{r}:{r+1}]
            v_pk_add_f32 v[{d+2}:{d+3}], v[{d+2}:{d+3}], v[{r+2}:{r+3}]
            v_pk_add_f32 v[{r+4}:{r+5}], v[{r+4}:{r+5}], v[{r+8}:{r+9}]
            v_pk_add_f32 v[{r+6}:{r+7}], v[{r+6}:{r+7}], v[{r+10}:{r+11}]
            v_pk_add_f32 v[{d}:{d+1}], v[{d}:{d+1}], v[{r+4}:{r+5}]
            v_pk_add_f32 v[{d+2}:{d+3}], v[{d+2}:{d+3}], v[{r+6}:{r+7}]
            v_cvt_pk_bf16_f32 v{96+2*t}, v{d}, v{d+1}
            v_cvt_pk_bf16_f32 v{97+2*t}, v{d+2}, v{d+3}""")
            if t == 1: e.vmop(f"buffer_store_dwordx4 v[96:99], v12, {srd(SPK)}, s{sT3} offen {c.osc}", 'o')
            if t == 3: e.vmop(f"buffer_store_dwordx4 v[100:103], v12, {srd(SPK)}, s{sT3} offen offset:64 {c.osc}", 'o')
            if t == 4: e.vmop(f"buffer_store_dwordx2 v[104:105], v13, {srd(SPK)}, s{sT2} offen {c.osc}", 'o')
        self.stamp(9)
        e("s_endpgm")

    def build(self):
        e = self.e
        self.prologue()
        st = (list(e.vm), list(e.lg))
        self.until = {}
        self.prog_KV()
        e.vm, e.lg = list(st[0]), list(st[1])
        self.until = {}
        self.prog_QH()
        e("\n".join(self.tail))
        e("L_end:\ns_endpgm")
        body = e.finish()
        hdr = open('cdna_kernels/' + NAME + '.s.ref').read().split('; Override launch')[0]
        K = NAME + "_kernel"
        out = hdr + "; Generated by a hand-written Python generator (persistent fused kernel; see comments in the generator).\n"
        out += "; @launch grid=(256,1,1) block=(256,1,1) lds=163840\n"
        out += f'.amdgcn_target "amdgcn-amd-amdhsa--gfx950"\n.text\n.globl {K}\n.p2align 8\n.type {K},@function\n{K}:\n' + body
        out += f""".fill 64, 4, 0xbf800000
.section .rodata,"a"
.p2align 6
.amdhsa_kernel {K}
  .amdhsa_next_free_vgpr 512
  .amdhsa_next_free_sgpr 102
  .amdhsa_accum_offset 256
  .amdhsa_group_segment_fixed_size 0
  .amdhsa_kernarg_size 104
  .amdhsa_user_sgpr_count 2
  .amdhsa_user_sgpr_kernarg_segment_ptr 1
  .amdhsa_system_sgpr_workgroup_id_x 1
.end_amdhsa_kernel
"""
        return out

for k_, v_ in dict(rot=3, par=0, bk=0, dfr=2, kpl=80, khs=0, kb4=10, qb2=6, qb3=6, qfo=0, a0q=12, kp4=1, dly=0, dlyn=16, kvb=0, VC=64, cnt=0, cpf=(), aord=1, nochk=0, skip=0, fast=1, n1=0, quota=28, pkl=0, tp0=1, tst=(0, 0, 1), sp1=24, tlb=0, tlb2=0, pks=3, pke=0, f1s=8, bt=0, btsp=20, bgs=4, qleft=0, kpre=180, kord=0, kgb=1, tmask=7, wbl=0, exit_at=-1, only=0, dstamp=0, xsc='', wsc='', psc='nt', pss='sc1', xA=0, S=48, S2=32, urg=50, S3=0, kb3=8, xB=0, mix=0, perm=0, kf1=60, pe=20, pe2=20, dtail=4, qb0=14, qb1=22, se=10, a0=14, ap=4, osc='sc1 nt', touch=1, kvring=3, f1c=10,
                   f4at=20, pa=100, pb=144, p3=30, c3=58, r1=30, r2=70, rspan=24, kbeg=0, kb1=20, kpa=60, mo=79, p1q=100, c1q=150, Sa=64, kb2=6, kleft=99, Sg=100, o2=226, o1=210, vlead=14, adr0=205, burst3=12, sleep2=1, f4k=-1, p1=130, c1=158, burst=4).items():
    setattr(Cfg, k_, v_)

def generate(**kw):
    c = Cfg()
    for k, v in kw.items(): setattr(c, k, v)
    g = Gen(c); g.e.VC = c.VC; t = g.build()
    return t, g

if __name__ == "__main__":
    kw = {}
    for a_ in sys.argv[2:]:
        k, v = a_.split('='); kw[k] = tuple(map(int, v.split(','))) if ',' in v else int(v, 0) if v.lstrip('-')[0].isdigit() else v.replace('+', ' ')
    t, g = generate(**kw)
    open(sys.argv[1], 'w').write(t)
    print("instructions:", len(g.e.ins), "nops added:", g.e.nop_added)
```

```python
import sys, math
from emit import Emit
NAME = "gated_mix__linear_kernel_hedgehog__dense_activation_gelu__prompt"

TAG = 0x0
F1 = 0x18000
F2 = 0x2000; F3 = 0x6000; F4 = 0xa000; F5 = 0x12000
STAMP = 0x1000000
GB = 0x280000
PP = 0x40000; PSZ = 15360
FIN = 0x240000; FSZ = 15360
PB = 0x300000
A2 = 0x600000
OOB = 0x7ff00000

K1 = 1024
QH_ST = 46 * K1; KV_ST = 44 * K1
MISC = 154 * K1
L_WPHI = MISC; L_GATE = MISC + 3200; L_BIASKV = MISC + 4480; L_BIASQH = MISC + 3200
L_PACK = 138 * K1
WH0 = 114 * K1; WH5 = 74 * K1
L_PHI = 0; RSP = 352; L_V = 128 * RSP; RSV = 224
L_BL = 72 * K1
NL = 18
L_RED = 0
L_FIN = 64 * K1

sW = 3
SX, SQ, S1, SWS, SPK, SM = 4, 8, 12, 16, 20, 24
pX, pQKV, pPHI, pWO, pBX, pW1, pB1, pW2, pB2, pGATE, pOUT, pDBG, pWS = [32 + 2 * i for i in range(13)]
sTAG = 58
sMT, sHG, sRB, sNB = 60, 61, 62, 63
sE = 64
sT0, sT1, sT2, sT3, sT4, sT5 = 74, 75, 76, 77, 78, 79
sM0 = 80
sBT, sAT, sB9, sA9, sAT2 = 100, 101, 86, 87, 55
sAo, sBo, sA8, sB8 = 44, 45, 56, 57
sKW, sK1 = 89, 90
sF1 = 91
sPKD = 92
sA, sB = 96, 97
sC0, sC1 = 98, 99
sP0 = 28

PKA = 200
TB = 10; TBM = (1 << TB) - 1; sTB = 58
AW = 204
def srd(r): return f"s[{r}:{r+3}]"
def vr(r, n=4): return f"v[{r}:{r+n-1}]" if n > 1 else f"v{r}"
def ar(r, n=4): return f"a[{r}:{r+n-1}]"
def R(loc, n=4): return (vr if loc[0] == 'v' else ar)(loc[1], n)
def fl(x):
    import struct
    return hex(struct.unpack('<I', struct.pack('<f', x))[0])

class Cfg:
    rot = 1; map2 = 1; stamps = 0; LA = 12; spin = 200000; codepf = 1; lag = 2; th1 = 2; th2 = 4; minlead = 4; verbose = 0; sleep = 1

sKA, sKB = 0, 1
def mk_srd(e, r, p, nbytes):
    e(f"s_mov_b32 s{r}, s{p}\ns_and_b32 s{r+1}, s{p+1}, 0xffff\ns_mov_b32 s{r+2}, {nbytes}\ns_mov_b32 s{r+3}, 0x20000")

class Gen:
    def __init__(self, cfg):
        self.c = cfg; self.e = Emit(); self.tail = []; self.uid = 0; self.nstamp = 0
    def record(self, fn):
        real = self.e
        class Rec:
            def __init__(r): r.items = []; r.lg = []; r.vm = []
            def __call__(r, t):
                for l in t.strip("\n").split("\n"):
                    if l.strip(): r.items.append(('x', l.strip()))
            def vmop(r, t, tag=None): r.items.append(('vm', t, tag))
            def lgop(r, t, tag=None): r.items.append(('lg', t, tag))
        rec = Rec(); self.e = rec
        try: fn()
        finally: self.e = real
        return rec.items
    def cnt(self):
        if not self.c.cnt: return [], []
        self.ncnt = getattr(self, 'ncnt', 0) + 1; k = self.ncnt - 1
        post = ["s_load_dwordx2 s[46:47], s[40:41], 88", f"s_sub_u32 s54, {self.c.spin}, s54", "s_lshl_b32 s54, s54, 12", "s_add_u32 s54, s54, 1", "s_waitcnt lgkmcnt(0)",
                "v_mov_b32 v14, s54", "v_mov_b32 v15, 0", "s_mov_b64 exec, 1", f"global_atomic_add v15, v14, s[46:47] offset:{k*4}", "s_mov_b64 exec, -1"]
        return [], post
    def lab(self, p):
        self.uid += 1; return f"L_{p}_{self.uid}"
    def stamp(self, i, grp=1):
        if self.c.dstamp and grp == 1:
            slot = self.dmap.get(i)
            if slot is None: return
            e = self.e
            e(f"s_memrealtime s[{sC0}:{sC1}]\ns_load_dwordx2 s[46:47], s[40:41], 88\ns_waitcnt lgkmcnt(0)\nv_mov_b32 v14, s{sC0}\nv_mov_b32 v15, 0"); e.lg = []
            e("s_cmp_eq_u32 s3, 0\ns_cselect_b64 exec, 1, 0")
            L = self.lab('ds'); e(f"s_cbranch_execz {L}")
            e(f"global_atomic_umax v15, v14, s[46:47] offset:{slot*4}")
            if i == 0: e(f"v_mov_b32 v14, s54\nglobal_atomic_umax v15, v14, s[46:47] offset:4\nv_not_b32 v14, v14\nglobal_atomic_umax v15, v14, s[46:47] offset:0")
            e(f"{L}:\ns_mov_b64 exec, -1")
            return
        if not self.c.stamps or (i and self.c.stamps != grp): return
        if self.c.only and i not in (0, self.c.only): return
        e = self.e
        e(f"s_memrealtime s[{sC0}:{sC1}]\ns_memtime s[46:47]\ns_waitcnt lgkmcnt(0)"); e.lg = []
        e(f"v_mov_b32 v14, s{sC0}\nv_mov_b32 v15, s46")
        e(f"s_lshl_b32 s{sC0}, s2, 2\ns_add_u32 s{sC0}, s{sC0}, s{sW}\ns_lshl_b32 s{sC0}, s{sC0}, 7\ns_add_u32 s{sC0}, s{sC0}, {STAMP}")
        e.vmop(f"buffer_store_dwordx2 v[14:15], v245, {srd(SWS)}, s{sC0} offen offset:{i*8}", 'stamp')
        if self.c.exit_at == i and grp == 1: e("s_endpgm")
        if i == 0:
            e(f"v_mov_b32 v14, s54\nv_mov_b32 v15, s40")
            e.vmop(f"buffer_store_dwordx2 v[14:15], v245, {srd(SWS)}, s{sC0} offen offset:{15*8}", 'stamp')

    def pstamp(self, i):
        if self.c.stamps == 3: self.e(f"s_memtime s[100:101]\ns_waitcnt lgkmcnt(0)\nv_mov_b32 v{(248,249,250,251,235)[i]}, s100")
    def pstamp_flush(self):
        if self.c.stamps != 3: return
        e = self.e
        e(f"s_lshl_b32 s{sC0}, s2, 2\ns_add_u32 s{sC0}, s{sC0}, s{sW}\ns_lshl_b32 s{sC0}, s{sC0}, 7\ns_add_u32 s{sC0}, s{sC0}, {STAMP}")
        for i in range(5): e.vmop(f"buffer_store_dword v{(248,249,250,251,235)[i]}, v245, {srd(SWS)}, s{sC0} offen offset:{(2+i)*8+4} sc1", 'stamp')
    def dump(self, name, regs):
        if getattr(self.c, 'dbg', None) != name: return
        e = self.e
        e(f"s_lshl_b32 s{sBT}, s2, 2\ns_add_u32 s{sBT}, s{sBT}, s{sW}\ns_lshl_b32 s{sBT}, s{sBT}, 14\ns_add_u32 s{sBT}, s{sBT}, 0x2000000\nv_lshlrev_b32 v7, 2, v0")
        for i, r in enumerate(regs):
            e.vmop(f"buffer_store_dword v{r}, v7, {srd(SWS)}, s{sBT} offen offset:{(i%16)*256}", 'dbg')
            if i % 16 == 15: e(f"s_add_u32 s{sBT}, s{sBT}, 4096")
        e.wait(vm='dbg'); self.Bcur = None

    def poll_issue(self, vaddr, vdst, n, tag, soff="0"):
        suf = {2: 'dwordx2', 4: 'dwordx4'}[n]
        return f"buffer_load_{suf} {vr(vdst, n)}, v{vaddr}, {srd(SWS)}, {soff} offen sc1"
    def poll_check(self, loads):
        Ls, Lb = self.lab('slow'), self.lab('back')
        cmps = []; ors = []; k = 0
        prs = ['vcc', 's[28:29]', 's[30:31]', 's[46:47]']
        for (va, vd, n, so) in loads:
            for h in range(n // 2):
                cmps.append(f"v_cmp_ne_u64 {prs[k]}, s[{sTAG}:{sTAG+1}], v[{vd+2*h}:{vd+2*h+1}]")
                if k: ors.append(f"s_or_b64 vcc, vcc, {prs[k]}")
                k += 1
        cmps = cmps[::-1] if False else cmps
        fast = cmps + ors + [f"s_cbranch_vccnz {Ls}\n{Lb}:" if not (self.c.nochk & 1) else f"{Lb}:"]
        t = [f"{Ls}:", f"s_mov_b32 s54, {self.c.spin}", f"{Ls}_l:"]
        if self.c.sleep: t.append(f"s_sleep {self.c.sleep}")
        for (va, vd, n, so) in loads: t.append(self.poll_issue(va, vd, n, None, so))
        t += ["s_waitcnt vmcnt(0)"] + cmps + ors
        t += ["s_sub_u32 s54, s54, 1", f"s_cbranch_vccz {Ls}_x", "s_cmp_lg_u32 s54, 0", f"s_cbranch_scc1 {Ls}_l", f"{Ls}_x:"] + self.cnt()[1] + ["s_nop 4", f"s_branch {Lb}"]
        self.tail += t
        return fast
    def tag_check(self, reload, regs, acc):
        Ls, Lb = self.lab('slow'), self.lab('back')
        regs = list(regs); L = [f"v_xor_b32 v{acc}, s{sTB}, v{regs[0]}"]
        for r in regs[1:]: L.append(f"v_bitop3_b32 v{acc}, v{r}, s{sTB}, v{acc} bitop3:0xbe")
        L += [f"v_and_b32 v{acc}, {TBM}, v{acc}", f"v_cmp_ne_u32 vcc, 0, v{acc}"]
        t = [f"{Ls}:", f"s_mov_b32 s54, {self.c.spin}", f"{Ls}_l:"]
        if self.c.sleep: t.append(f"s_sleep {self.c.sleep2}")
        t += list(reload) + ["s_waitcnt vmcnt(0)"] + L
        t += ["s_sub_u32 s54, s54, 1", f"s_cbranch_vccz {Ls}_x", "s_cmp_lg_u32 s54, 0", f"s_cbranch_scc1 {Ls}_l", f"{Ls}_x:"] + self.cnt()[1] + ["s_nop 4", f"s_branch {Lb}"]
        self.tail += t
        return L + [f"s_cbranch_vccnz {Ls}\n{Lb}:" if not (self.c.nochk & 2) else f"{Lb}:"]
    def tag_put(self, r, src=None): return f"v_bfi_b32 v{r}, s42, v246, v{r if src is None else src}"
    def tag_strip(self, r): return f"v_and_b32 v{r}, {hex(0xffffffff ^ TBM)}, v{r}"
    def valid_check(self, reload, regs, acc):
        Ls, Lb = self.lab('slow'), self.lab('back')
        regs = list(regs); L = [f"v_max3_u32 v{acc}, v{regs[0]}, v{regs[1]}, v{regs[2 if len(regs) > 2 else 1]}"]
        r = regs[3:]
        for i in range(0, len(r), 2): L.append(f"v_max3_u32 v{acc}, v{acc}, v{r[i]}, v{r[min(i+1, len(r)-1)]}")
        L.append(f"v_cmp_eq_u32 vcc, -1, v{acc}")
        t = [f"{Ls}:", f"s_mov_b32 s54, {self.c.spin}", f"{Ls}_l:"]
        if self.c.sleep: t.append(f"s_sleep {self.c.sleep2}")
        t += list(reload) + ["s_waitcnt vmcnt(0)"] + L
        t += ["s_sub_u32 s54, s54, 1", f"s_cbranch_vccz {Ls}_x", "s_cmp_lg_u32 s54, 0", f"s_cbranch_scc1 {Ls}_l", f"{Ls}_x:"] + self.cnt()[1] + ["s_nop 4", f"s_branch {Lb}"]
        self.tail += t
        return L + [f"s_cbranch_vccnz {Ls}\n{Lb}:" if not (self.c.nochk & 4) else f"{Lb}:"]
    def flag_store(self, vaddr, vtag, soff="0"):
        return f"buffer_store_dwordx2 {vr(vtag, 2)}, v{vaddr}, {srd(SWS)}, {soff} offen sc1"

    def stream(self, mf, reads, fill, syncs=None, LA=None, name='', bg=None):
        e = self.e; LA = LA or self.c.LA
        reads = sorted(reads, key=lambda r: r[1]); rp = 0; synced = -1 if syncs else 99
        fq = sorted(fill, key=lambda f: f['at'])
        self.sid = getattr(self, 'sid', 0) + 1; sid = self.sid
        start = len(e.ins)
        def add_fill(items):
            lo = max([f['at'] for f in fq if f.get('chain')], default=-99)
            for f in items:
                if f.get('chain'): f['at'] = lo = max(f['at'], lo)
            fq.extend(items); fq.sort(key=lambda f: f['at'])
        def rd():
            nonlocal rp
            e.lgop(reads[rp][0], ('rd', sid, rp)); rp += 1
        if syncs: add_fill(syncs[0](0)); synced = 0
        while rp < len(reads) and reads[rp][1] < 8 and reads[rp][2] <= synced: rd()
        last_read = -99
        dl_of = {('rd', sid, i): r[1] for i, r in enumerate(reads)}
        def due(m): return [t for t in e.lg if t in dl_of and dl_of[t] <= m]
        ismem = lambda it: it[0] in ('vm', 'lg')
        for m in range(len(mf)):
            d = due(m)
            if d: e.wait(lg=d)
            e(mf[m])
            can = lambda: rp < len(reads) and reads[rp][2] <= synced and reads[rp][3] <= m and len(e.lg) < 15
            lead = lambda: reads[rp][1] - m
            if syncs and rp < len(reads) and reads[rp][2] > synced and m - last_read >= self.c.lag and lead() <= LA:
                synced = reads[rp][2]
                assert not any(it[0] == 'vm' and it[2] == ('S', synced) for f in fq for it in f['ins'])
                add_fill(syncs[synced](m + 1))
                if can(): rd(); last_read = m
                continue
            w = 1 if due(m + 1) else 0
            n = w; mem = 0
            if fq and fq[0]['at'] <= m:
                f = fq[0]
                if f.get('atomic'):
                    self.emit_items(f['ins']); n += len(f['ins']); mem += sum(map(ismem, f['ins'])); fq.pop(0)
                elif ismem(f['ins'][0]):
                    self.emit_items([f['ins'].pop(0)]); n += 1; mem += 1
                    if not f['ins']: fq.pop(0)
            if bg and mem == 0:
                k0 = len(e.ins)
                if self.bg_try(bg(m)): n += len(e.ins) - k0; mem += 1
            if can() and lead() <= LA and (mem == 0 or (lead() <= LA - self.c.th1 and not w)):
                rd(); n += 1; mem += 1; last_read = m
            if can() and mem == 1 and not w and lead() <= LA - self.c.th2:
                rd(); n += 1; mem += 1
            while can() and lead() <= self.c.minlead: rd(); n += 1; mem += 1; last_read = m
            while (n < 2 or (fq and fq[0]['at'] <= m - 2 and n < 3)) and fq and fq[0]['at'] <= m + 2 and not fq[0].get('atomic') and not ismem(fq[0]['ins'][0]):
                f = fq[0]; self.emit_items([f['ins'].pop(0)]); n += 1
                if not f['ins']: fq.pop(0)
            assert rp >= len(reads) or reads[rp][1] > m + 1, (m, reads[rp])
        for f in fq: self.emit_items(f['ins'])
        if self.c.verbose:
            tot = 0; g = None
            for i in e.ins[start:]:
                if i.label: continue
                if i.kind == 'mfma':
                    if g is not None: tot += max(16, g)
                    g = 8; prevmem = False
                elif g is not None:
                    mm = i.kind in ('dsr', 'dsw', 'vload', 'vstore', 'dma')
                    g += 8 if (mm and prevmem) else 4; prevmem = mm
            print(f"stream {name}: {len(mf)} mfma, est clks {tot} (ideal {16*len(mf)})")

    def prologue(self):
        e = self.e; c = self.c
        if c.stamps or c.dstamp: e("s_memrealtime s[54:55]\ns_memtime s[98:99]")
        e(f"""s_cmp_ge_u32 s2, 256
        s_cbranch_scc1 L_end
        s_load_dwordx16 s[32:47], s[0:1], 0
        s_load_dwordx4 s[48:51], s[0:1], 64
        s_load_dwordx2 s[52:53], s[0:1], 80
        s_load_dwordx2 s[56:57], s[0:1], 96""")
        if c.codepf:
            e(f"""s_getpc_b64 s[{sA}:{sB}]
            L_pf:
            s_lshr_b32 s{sT0}, s2, 3
            s_lshl_b32 s{sT0}, s{sT0}, 11
            v_lshrrev_b32 v1, 4, v0
            v_lshlrev_b32 v1, 7, v1
            v_add_u32 v1, s{sT0}, v1
            v_cmp_gt_u32 vcc, L_end-L_pf, v1
            v_cndmask_b32 v1, 0, v1, vcc""")
            e.vmop(f"global_load_dword v255, v1, s[{sA}:{sB}]", 'pf')
        e(f"""v_lshrrev_b32 v1, 6, v0
        v_and_b32 v0, 63, v0
        s_and_b32 s{sT0}, s2, 7
        v_readfirstlane_b32 s{sW}, v1
        s_lshr_b32 s{sT1}, s2, 3
        s_lshr_b32 s{sT2}, s{sT0}, 1
        s_and_b32 s{sT3}, s{sT1}, 3
        s_lshl_b32 s{sMT}, s{sT2}, 2
        s_add_u32 s{sMT}, s{sMT}, s{sT3}
        s_lshr_b32 s{sT4}, s{sT1}, 2
        s_and_b32 s{sHG}, s{sT0}, 1
        s_lshl_b32 s{sHG}, s{sHG}, 2
        s_and_b32 s{sT5}, s{sT4}, 3
        s_add_u32 s{sHG}, s{sHG}, s{sT5}""")
        if c.rot == 2:
            e(f"""s_mul_i32 s{sE}, s{sT2}, 5
            s_lshr_b32 s{sE}, s{sE}, 1
            s_and_b32 s{sT5}, s{sT0}, 1
            s_mul_i32 s{sT5}, s{sT5}, 5
            s_add_u32 s{sE}, s{sE}, s{sT5}
            s_cmp_ge_u32 s{sE}, 10
            s_cselect_b32 s{sT5}, 10, 0
            s_sub_u32 s{sE}, s{sE}, s{sT5}
            s_lshl_b32 s{sE}, s{sE}, 7""")
        elif c.rot == 3:
            e(f"s_xor_b32 s{sE}, s{sT3}, s{sT4}\ns_and_b32 s{sE}, s{sE}, 1\ns_lshl_b32 s{sE}, s{sE}, 7")
        else: e(f"s_mov_b32 s{sE}, 0")
        e(f"""v_and_b32 v1, 15, v0
        v_lshrrev_b32 v2, 4, v0
        v_bfe_u32 v3, v0, 2, 2
        v_and_b32 v4, 3, v0
        v_lshrrev_b32 v5, 3, v0
        v_lshlrev_b32 v6, 4, v0
        s_lshl_b32 s{sT2}, s{sMT}, 2
        s_add_u32 s{sT2}, s{sT2}, s{sW}
        s_mul_i32 s{sT2}, s{sT2}, {32*1280}
        v_xor_b32 v7, v2, v0
        v_and_b32 v7, 7, v7
        v_lshlrev_b32 v7, 4, v7
        v_mul_u32_u24 v8, 1280, v5
        v_add_u32 v8, s{sT2}, v8
        v_add_u32 v208, v8, v7
        v_xor_b32 v7, 64, v7
        v_add_u32 v209, v8, v7
        v_add_u32 v209, {10240-1024}, v209
        v_add_u32 v210, {2*(10240-1024)}, v208
        v_add_u32 v211, {2*(10240-1024)}, v209
        s_lshl_b32 s{sM0}, s{sW}, 12
""")
        if c.rot == 3: e(f"s_xor_b32 s{sE+1}, s{sE}, 128")
        else: e(f"s_add_u32 s{sE+1}, s{sE}, 128\ns_cmp_eq_u32 s{sE+1}, 1280\ns_cselect_b32 s{sE+1}, 0, s{sE+1}")
        for r, n in ((SX, 2048 * 1280), (SQ, 640 * 3840), (S1, 640 * 3456), (SM, 3456)): e(f"s_mov_b32 s{r+2}, {n}\ns_mov_b32 s{r+3}, 0x20000")
        e(f"s_bitcmp1_b32 s2, 7\ns_cbranch_scc1 L_QH")

    def kernarg_wait(self):
        e = self.e
        e("s_waitcnt lgkmcnt(0)"); self.pstamp(0)
        e(f"s_load_dwordx2 s[{sTAG}:{sTAG+1}], s[{pWS}:{pWS+1}], {TAG}")
        if self.c.stamps: e('s_mov_b32 s40, s98')
        if self.c.dstamp or self.c.cnt: e('s_mov_b64 s[40:41], s[0:1]')
        for r, p in ((SX, pX), (SM, pB1), (SQ, pQKV), (S1, pW1)): e(f"s_mov_b32 s{r}, s{p}\ns_and_b32 s{r+1}, s{p+1}, 0xffff")

    def pack_setup(self):
        e = self.e
        e(f"""s_lshl_b32 s{sT0}, s2, 2
        s_add_u32 s{sT0}, s{sT0}, s{sW}
        s_mul_i32 s{sT2}, s{sT0}, 886
        s_lshr_b32 s{sT2}, s{sT2}, 16
        s_mul_i32 s{sT1}, s{sT2}, 74
        s_sub_u32 s{sT1}, s{sT0}, s{sT1}
        s_sub_u32 s{sT3}, s{sT1}, 54
        s_and_b32 s{sT3}, s{sT3}, 63
        s_mul_i32 s{sT4}, s{sT3}, 52
        s_lshr_b32 s{sT4}, s{sT4}, 8
        s_mul_i32 s{sT5}, s{sT4}, 5
        s_sub_u32 s{sT5}, s{sT3}, s{sT5}
        s_mul_i32 s{sBT}, s{sT4}, 160
        s_lshr_b32 s{sAT}, s{sT5}, 1
        s_mul_i32 s{sAT}, s{sAT}, 80
        s_and_b32 s{sT3}, s{sT5}, 1
        s_lshl_b32 s{sT3}, s{sT3}, 3
        s_add_u32 s{sAT}, s{sAT}, s{sT3}
        s_cmp_eq_u32 s{sT5}, 4
        s_cselect_b32 s{sAT}, 16, s{sAT}
        s_cselect_b32 s{sT3}, 80, 4
        s_add_u32 s{sBT}, s{sBT}, s{sAT}
        s_lshl_b32 s{sAT}, s{sT1}, 5
        s_cmp_lt_u32 s{sT1}, 54
        s_cselect_b32 s{sBT}, s{sAT}, s{sBT}
        s_cselect_b32 s{sT3}, 16, s{sT3}""")
        self.csel(sT4, 4 * 1280 - 1024, 20 * 1280 - 1024)
        self.csel(SPK + 2, 1728 * 1280, 640 * 1280)
        e(f"""s_mov_b32 s{SPK+3}, 0x20000
        s_cmp_lt_u32 s{sT0}, 740
        s_cselect_b32 s{SPK+2}, s{SPK+2}, 0
        s_mul_i32 s{sBT}, s{sBT}, 1280
        s_lshl_b32 s{sAT}, s{sT2}, 7
        s_add_u32 s32, s{sBT}, s{sAT}
        s_add_u32 s33, s32, s{sT4}
        s_add_u32 s34, s33, s{sT4}
        s_add_u32 s35, s34, s{sT4}
        v_lshrrev_b32 v9, 5, v0
        v_mul_lo_u32 v9, v9, s{sT3}
        v_and_b32 v10, 3, v5
        v_add_u32 v9, v9, v10
        v_mul_u32_u24 v9, 1280, v9
        v_and_b32 v10, 7, v0
        v_lshl_add_u32 v252, v10, 4, v9
        v_lshlrev_b32 v9, 10, v2
        v_lshl_add_u32 v9, v3, 7, v9
        v_add_u32 v9, s{sM0}, v9
        v_add_u32 v9, {L_PACK}, v9""")
        for g in range(2):
            e(f"""s_lshl_b32 s{sT3}, s{sT2}, 1
            s_add_u32 s{sT3}, s{sT3}, {g}
            s_mul_i32 s{sT4}, s{sT3}, 52
            s_lshr_b32 s{sT4}, s{sT4}, 8
            s_mul_i32 s{sT5}, s{sT4}, 5
            s_sub_u32 s{sT5}, s{sT3}, s{sT5}
            s_cmp_eq_u32 s{sT5}, 2
            s_cselect_b32 s{sT3}, 3, 4
            s_cselect_b32 s{sAT}, 32, 8
            v_lshlrev_b32 v10, s{sT3}, v4
            v_add_u32 v{PKA+2*g}, v9, v10
            v_add_u32 v{PKA+1+2*g}, s{sAT}, v{PKA+2*g}
            s_mul_i32 s{sT4}, s{sT4}, 740
            s_mul_i32 s{sAT}, s{sT1}, 5
            s_add_u32 s{sT4}, s{sT4}, s{sAT}""")
            for a_ in range(2):
                d = sPKD + 2 * g + a_
                e(f"""s_lshl_b32 s{sT3}, s{sT5}, 1
                s_add_u32 s{sT3}, s{sT3}, {a_}
                s_add_u32 s{d}, s{sT3}, 364
                s_cmp_eq_u32 s{sT3}, 5
                s_cselect_b32 s{d}, 374, s{d}
                s_cmp_lt_u32 s{sT3}, 5
                s_cselect_b32 s{d}, s{sT3}, s{d}
                s_add_u32 s{d}, s{d}, s{sT4}
                s_lshl_b32 s{d}, s{d}, 10
                s_add_u32 s{d}, s{d}, {PB}
                s_cmp_lt_u32 s{sT0}, 740
                s_cselect_b32 s{d}, s{d}, {OOB}""")
        e(f"""s_cmp_lt_u32 s{sT1}, 54
        s_cselect_b32 s{SPK}, s{pW2}, s{pWO}
        s_cselect_b32 s{SPK+1}, s{pW2+1}, s{pWO+1}
        s_and_b32 s{SPK+1}, s{SPK+1}, 0xffff""")

    def common_setup(self):
        e = self.e; c = self.c
        e(f"s_and_b32 s{sT0}, s2, 7\ns_lshr_b32 s{sT1}, s2, 3\ns_lshr_b32 s{sT2}, s{sT0}, 1\ns_and_b32 s{sT3}, s{sT1}, 3\ns_lshr_b32 s{sT4}, s{sT1}, 2")
        if c.mix: e(f"s_lshr_b32 s{sT5}, s{sT1}, 2\ns_and_b32 s{sT5}, s{sT5}, 4\ns_xor_b32 s{sT5}, s{sT5}, s{sT1}" if c.map2 else
                    f"s_lshr_b32 s{sT5}, s{sT1}, 4\ns_xor_b32 s{sT5}, s{sT5}, s{sT1}")
        if c.map2:
            if c.mix: e(f"s_and_b32 s{sRB}, s{sT5}, 7\ns_bfe_u32 s{sT5}, s{sT1}, 0x20002")
            else: e(f"s_and_b32 s{sRB}, s{sT1}, 7\ns_lshr_b32 s{sT5}, s{sT1}, 3")
            e(f"""s_lshl_b32 s{sT2}, s{sT2}, 3
            s_add_u32 s{sRB}, s{sRB}, s{sT2}
            s_and_b32 s{sNB}, s{sT0}, 1
            s_lshl_b32 s{sNB}, s{sNB}, 2
            s_add_u32 s{sNB}, s{sNB}, s{sT5}""")
        else:
            if c.mix: e(f"s_bfe_u32 s{sNB}, s{sT1}, 0x30001\ns_and_b32 s{sT3}, s{sT5}, 1\ns_lshr_b32 s{sT5}, s{sT1}, 4\ns_bfe_u32 s{sT4}, s{sT1}, 0x10001\ns_xor_b32 s{sT5}, s{sT5}, s{sT4}\ns_and_b32 s{sT3}, s{sT1}, 1\ns_lshl_b32 s{sT5}, s{sT5}, 1\ns_add_u32 s{sT3}, s{sT3}, s{sT5}")
            else: e(f"s_mov_b32 s{sNB}, s{sT4}")
            e(f"s_lshl_b32 s{sRB}, s{sT0}, 2\ns_add_u32 s{sRB}, s{sRB}, s{sT3}")
        mk_srd(e, SWS, pWS, 0x10000000); mk_srd(e, SM, pPHI, 32 * 800)
        e(f"""s_lshl_b32 s{sT3}, s{sHG}, 2
        s_add_u32 s{sT3}, s{sT3}, s{sW}
        s_mul_i32 s36, s{sT3}, 800
        s_mul_i32 s37, s{sW}, 800
        s_add_u32 s37, s37, {L_WPHI}""")
        for i in range(2, 10):
            if c.rot == 3: e(f"s_add_u32 s{sE+i}, s{sE+i-2}, 256")
            else: e(f"s_add_u32 s{sE+i}, s{sE+i-1}, 128\ns_cmp_eq_u32 s{sE+i}, 1280\ns_cselect_b32 s{sE+i}, 0, s{sE+i}")
        e(f"""s_mul_i32 s{sB}, s{sNB}, 74
        s_add_u32 s{sB}, s{sB}, s{sW}
        s_mul_i32 s{sB}, s{sB}, 5120
        s_add_u32 s{sB}, s{sB}, {PB}
        s_mul_i32 s{sA}, s{sRB}, 74
        s_add_u32 s{sA}, s{sA}, s{sW}
        s_lshl_b32 s{sA}, s{sA}, 12
        s_add_u32 s{sA}, s{sA}, {A2}
        s_xor_b32 s{sT0}, s{sRB}, s{sNB}
        s_and_b32 s{sT0}, s{sT0}, {min(c.par, 1)}
        s_mul_i32 s{sT1}, s{sT0}, {4*5120}
        s_add_u32 s{sB8}, s{sB}, {32*5120}
        s_add_u32 s{sB8}, s{sB8}, s{sT1}
        s_add_u32 s{sB9}, s{sB}, {36*5120}
        s_sub_u32 s{sB9}, s{sB9}, s{sT1}
        s_mul_i32 s{sT1}, s{sT1}, {max(c.par, 1)}
        s_sub_u32 s{sBo}, s{sB}, s{sT1}
        s_add_u32 s{sB}, s{sB}, s{sT1}
        s_lshl_b32 s{sT1}, s{sT0}, 14
        s_add_u32 s{sA8}, s{sA}, {32*4096}
        s_add_u32 s{sA8}, s{sA8}, s{sT1}
        s_add_u32 s{sA9}, s{sA}, {36*4096}
        s_sub_u32 s{sA9}, s{sA9}, s{sT1}
        s_mul_i32 s{sT1}, s{sT1}, {max(c.par, 1)}
        s_sub_u32 s{sAo}, s{sA}, s{sT1}
        s_add_u32 s{sA}, s{sA}, s{sT1}
        s_lshr_b32 s{sT1}, s{sW}, 1
        s_and_b32 s{sT3}, s{sT1}, s{sT0}
        s_cselect_b32 s{sB8}, {OOB}, s{sB8}
        s_cselect_b32 s{sA8}, {OOB}, s{sA8}
        s_andn2_b32 s{sT3}, s{sT1}, s{sT0}
        s_cselect_b32 s{sB9}, {OOB}, s{sB9}
        s_cselect_b32 s{sA9}, {OOB}, s{sA9}
        s_mul_i32 s88, s{sW}, {NL*1024}
        v_add_u32 v240, 4096, v6""")
        for j in range(4):
            e(f"s_add_u32 s{sT3}, s{sW}, {j}\ns_and_b32 s{sT3}, s{sT3}, 3\ns_lshl_b32 s{sT3}, s{sT3}, 10\nv_add_u32 v{236+j}, s{sT3}, v6")
        e(f"""s_lshl_b32 s{sF1}, s2, 7
        s_add_u32 s{sF1}, s{sF1}, {F1}
        s_cmp_eq_u32 s{sW}, 0
        s_cselect_b32 s{sF1}, s{sF1}, {OOB}
        v_mov_b32 v245, {OOB}
        v_cmp_eq_u32 vcc, 0, v0
        v_cndmask_b32 v245, v245, 0, vcc""")

    def touch(self):
        e = self.e; c = self.c
        e(f"""s_cmp_eq_u32 s{sW}, 0
        s_cselect_b64 s[28:29], s[{SX}:{SX+1}], s[{S1}:{S1+1}]
        s_cselect_b32 s30, s{SX+2}, s{S1+2}
        s_cselect_b32 s{sT0}, 12, 0
        s_add_u32 s{sT0}, s{sT0}, 68
        s_cmp_eq_u32 s{sW}, 1
        s_cselect_b64 s[28:29], s[{SQ}:{SQ+1}], s[28:29]
        s_cselect_b32 s30, s{SQ+2}, s30
        s_cselect_b32 s{sT0}, 75, s{sT0}
        s_lshl_b32 s{sT1}, 1, s{sW}
        s_and_b32 s{sT1}, s{sT1}, {c.tmask}
        s_cselect_b32 s30, s30, 0
        s_mov_b32 s31, 0x20000
        s_mul_i32 s{sT1}, s{sT0}, s2
        s_lshl_b32 s{sT1}, s{sT1}, 7
        v_lshlrev_b32 v10, 7, v0
        v_add_u32 v11, 64, v0
        v_cmp_gt_u32 vcc, s{sT0}, v11
        v_lshlrev_b32 v11, 7, v11
        v_mov_b32 v14, {OOB}
        v_cndmask_b32 v11, v14, v11, vcc""")
        e.vmop(f"buffer_load_dword v255, v10, s[28:31], s{sT1} offen", 'pf')
        e.vmop(f"buffer_load_dword v255, v11, s[28:31], s{sT1} offen", 'pf')

    def touch3_setup(self):
        e = self.e
        e(f"""s_cmp_eq_u32 s{sW}, 0
        s_cselect_b64 s[28:29], s[{SX}:{SX+1}], s[{S1}:{S1+1}]
        s_cselect_b32 s30, s{SX+2}, s{S1+2}
        s_cselect_b32 s{sT0}, 24, 21
        s_mov_b32 s44, {64*3456}
        s_cselect_b32 s44, 128, s44
        s_cselect_b64 vcc, -1, 0
        s_cmp_eq_u32 s{sW}, 1
        s_cselect_b64 s[28:29], s[{SQ}:{SQ+1}], s[28:29]
        s_cselect_b32 s30, s{SQ+2}, s30
        s_cselect_b32 s{sT0}, 23, s{sT0}
        s_cselect_b32 s44, {64*3840}, s44
        s_cmp_eq_u32 s{sW}, 3
        s_cselect_b32 s30, 0, s30
        s_mov_b32 s31, 0x20000
        s_mul_i32 s{sT1}, s{sT0}, s2
        v_add_u32 v10, s{sT1}, v0
        v_mul_u32_u24 v11, 21846, v10
        v_lshrrev_b32 v11, 16, v11
        v_mul_u32_u24 v11, {1280-384}, v11
        v_lshlrev_b32 v10, 7, v10
        v_add_u32 v11, v11, v10
        v_cndmask_b32 v10, v10, v11, vcc
        v_mov_b32 v14, {OOB}
        v_cmp_gt_u32 vcc, s{sT0}, v0
        v_cndmask_b32 v251, v14, v10, vcc""")
    def touch3(self, part):
        return [('x', f"s_mul_i32 s45, s44, {1 + 3 * part}"), ('vm', "buffer_load_dword v255, v251, s[28:31], s45 offen", 'pf')]

    def tlb_touch(self):
        e = self.e; c = self.c
        if not c.tlb: return
        if c.tlb == 1:
            e(f"v_lshlrev_b32 v10, 18, v0\nv_add_u32 v10, 0x1f800, v10")
            e.vmop(f"buffer_load_dword v255, v10, {srd(SWS)}, 0 offen sc1", 'pf')
        else:
            e(f"""s_mul_i32 s{sT0}, s{sNB}, {74*5120}
            s_add_u32 s{sT0}, s{sT0}, {PB}
            s_mul_i32 s{sT1}, s{sRB}, {74*4096}
            s_add_u32 s{sT1}, s{sT1}, {A2 - 8*65536}
            s_mul_i32 s{sT3}, s{sMT}, {2*74*4096}
            s_add_u32 s{sT3}, s{sT3}, {A2 - 16*65536}
            v_lshlrev_b32 v10, 16, v0
            v_mov_b32 v11, s{sT0}
            v_mov_b32 v14, s{sT1}
            v_cmp_le_u32 vcc, 8, v0
            v_cndmask_b32 v11, v11, v14, vcc
            v_mov_b32 v14, s{sT3}
            v_cmp_le_u32 vcc, 16, v0
            v_cndmask_b32 v11, v11, v14, vcc
            v_add_u32 v11, v11, v10
            v_subrev_u32 v14, 32, v0
            v_mul_u32_u24 v14, 0x18000, v14
            v_cmp_le_u32 vcc, 32, v0
            v_cndmask_b32 v10, v11, v14, vcc""")
            e.vmop(f"buffer_load_dword v255, v10, {srd(SWS)}, 0 offen sc1", 'pf')
        mk_srd(e, 28, pOUT, 2048 * 1280)
        e("v_lshlrev_b32 v10, 16, v0")
        e.vmop("buffer_load_dword v255, v10, s[28:31], 0 offen sc1", 'pf')
        if c.tlb2:
            for p, n in ((pB2, 1280),):
                mk_srd(e, 28, p, n); e.vmop("buffer_load_dword v255, v6, s[28:31], 0 offen", 'pf')

    def tag_wait(self):
        e = self.e
        e(f"""s_waitcnt lgkmcnt(0)
        s_add_u32 s{sTAG}, s{sTAG}, 1
        v_mov_b32 v247, s{sTAG+1}
        v_mov_b32 v246, s{sTAG}
        s_movk_i32 s42, {TBM}""")
        if self.c.xA == 2: e(f's_mov_b32 s41, {OOB}')
        e.lg = []
    def pack_loads(self):
        return [([('x', f"s_add_u32 m0, s{sM0}, {L_PACK}")] if i == 0 else []) +
                [('vm', f"buffer_load_dwordx4 v252, {srd(SPK)}, s{32+i} offen offset:{i*1024} {self.c.psc} lds", 'packld')] for i in range(4)]
    def pack_fill(self, m, nm):
        f = []
        for i in range(8):
            t, h = i >> 1, i & 1
            f.append(dict(at=m + 2 + 2 * i, ins=[('lg', f"ds_read_b64_tr_b16 a[{160+4*t+2*h}:{161+4*t+2*h}], v{PKA+t} offset:{(t>>1)*64+512*h}", 'pk')]))
        return f
    def wb_item(self):
        return [[('wvm', 'pkst'), ('vm', "buffer_wbl2 sc1", 'pkst')]] if self.c.wbl else []
    def pack_stores(self):
        return [([('wlg', 'pk')] if i == 0 else []) + [('vm', f"buffer_store_dwordx4 {ar(160+4*i)}, v6, {srd(SWS)}, s{sPKD+i} offen {self.c.pss}", 'pkst')] for i in range(4)]

    def btouch(self):
        pre = [l.strip() for l in f"""s_and_b32 s{sT0}, s{sRB}, 7
        s_lshl_b32 s{sT0}, s{sT0}, 2
        s_add_u32 s{sT0}, s{sT0}, s{sW}
        s_mul_i32 s{sT0}, s{sT0}, {93*128}
        s_mul_i32 s{sT1}, s{sNB}, {74*5120}
        s_add_u32 s{sT0}, s{sT0}, s{sT1}
        s_add_u32 s{sT0}, s{sT0}, {PB}
        v_lshlrev_b32 v248, 7, v0
        v_min_u32 v249, 28, v0
        v_lshlrev_b32 v249, 7, v249""".split("\n")]
        n = self.c.bt
        out = [[('x', l) for l in pre]]
        if n == 1:
            out[0] += [('vm', f"buffer_load_dword v255, v248, {srd(SWS)}, s{sT0} offen sc1", 'pf')]
            out.append([('x', f"s_add_u32 s{sT0}, s{sT0}, 8192"), ('vm', f"buffer_load_dword v255, v249, {srd(SWS)}, s{sT0} offen sc1", 'pf')])
        else:
            out[0] += [('x', "v_min_u32 v249, 23, v0"), ('x', "v_lshlrev_b32 v249, 7, v249")]
            for i in range(4): out.append([('vm', f"buffer_load_dword v255, v249, {srd(SWS)}, s{sT0} offen offset:0 sc1", 'pf'), ('x', f"s_add_u32 s{sT0}, s{sT0}, 3072")])
        return out
    def code_touch(self, endlab):
        Lp = self.lab('pc')
        return [('x', f"s_getpc_b64 s[30:31]\n{Lp}:"), ('x', f"s_bfe_u32 s{sT0}, s2, 0x40003"), ('x', f"s_lshl_b32 s{sT0}, s{sT0}, 2"), ('x', f"s_add_u32 s{sT0}, s{sT0}, s{sW}"),
                ('x', f"s_lshl_b32 s{sT0}, s{sT0}, 9"), ('x', "v_and_b32 v7, 3, v0"), ('x', f"v_lshl_add_u32 v7, v7, 7, s{sT0}"),
                ('x', f"v_cmp_gt_u32 vcc, {endlab}-{Lp}, v7"), ('x', "v_cndmask_b32 v7, 0, v7, vcc"), ('vm', "global_load_dword v255, v7, s[30:31]", 'pf')]
    def f1_issue(self):
        pre = [l.strip() for l in f"""s_mul_i32 s{sT0}, s{sNB}, 5
        s_add_u32 s{sT1}, s{sT0}, 4
        s_lshr_b32 s{sT0}, s{sT0}, 2
        s_mul_i32 s{sT0}, s{sT0}, 74
        s_lshr_b32 s{sT0}, s{sT0}, 2
        s_lshr_b32 s{sT1}, s{sT1}, 2
        s_mul_i32 s{sT1}, s{sT1}, 74
        s_add_u32 s{sT1}, s{sT1}, 73
        s_lshr_b32 s{sT1}, s{sT1}, 2
        v_add_u32 v235, s{sT0}, v0
        v_min_u32 v235, s{sT1}, v235
        v_lshlrev_b32 v235, 7, v235
        s_mov_b32 s{sT0}, {F1}""".split("\n")]
        return [[('x', l) for l in pre] + [('vm', self.poll_issue(235, 248, 2, None, f"s{sT0}"), 'f1p')]]
    def f1_check(self):
        return [('wvm', 'f1p')] + [('x', t) for t in self.poll_check([(235, 248, 2, f"s{sT0}")])]
    def tag_issue(self):
        e = self.e
        e(f"s_or_b32 s55, s2, s{sW}\ns_min_u32 s55, s55, 1\ns_mul_i32 s55, s55, {OOB}\ns_add_u32 s55, s55, {F1}\nv_lshlrev_b32 v200, 7, v0")
        for i in range(1, 4): e(f"v_add_u32 v{200+i}, {8192*i}, v200")
        self.tgl = [(200 + i, 248 + 2 * i, 2, "s55") for i in range(4)]
        for p in self.tgl: e.vmop(self.poll_issue(p[0], p[1], 2, None, p[3]), 'tg')
    def tag_update(self):
        e = self.e; L = self.lab('tg')
        e.wait(vm='tg')
        e(f"s_or_b32 s{sT0}, s2, s{sW}\ns_cbranch_scc1 {L}")
        for l in self.poll_check(self.tgl): e(l)
        e(self.flag_store(245, 246, str(TAG)))
        e(f"{L}:")

    def attn_voff(self, dst, cexpr_base, colbase_s):
        e = self.e
        e(f"""v_mul_u32_u24 v10, 6554, v9
        v_lshrrev_b32 v10, 16, v10
        v_mad_i32_i24 v11, v10, -10, v9""")
        self.swap23(10, 12)
        e(f"""v_mul_u32_u24 v10, 3840, v10
        v_lshl_add_u32 v10, v11, 4, v10
        v_add_u32 v{dst}, s{colbase_s}, v10""")
    def swap23(self, r, t):
        self.e(f"""v_lshrrev_b32 v{t}, 1, v{r}
        v_xor_b32 v{t}, v{t}, v{r}
        v_and_b32 v{t}, 4, v{t}
        v_mul_u32_u24 v{t}, 3, v{t}
        v_xor_b32 v{r}, v{r}, v{t}""")

    def small_dma(self, sr, vaddr, soff, ldsaddr, nlanes, tag, m0expr=None):
        e = self.e
        e(m0expr or f"s_mov_b32 m0, {ldsaddr}")
        if nlanes < 64: e(f"s_mov_b64 exec, {hex((1 << nlanes) - 1)}" if nlanes <= 32 else f"s_mov_b32 exec_hi, {hex((1 << (nlanes-32)) - 1)}")
        e.vmop(f"buffer_load_dwordx4 v{vaddr}, {srd(sr)}, {soff} offen lds", tag)
        if nlanes < 64: e("s_mov_b64 exec, -1")

    def csel(self, d, a, b):
        inl = lambda x: isinstance(x, str) or -16 <= x <= 64
        if inl(a) or inl(b): self.e(f"s_cselect_b32 s{d}, {a}, {b}")
        else: self.e(f"s_mov_b32 s{d}, {b}\ns_cselect_b32 s{d}, {a}, s{d}")

    def init_B(self):
        self.Bloc = {}; self.Bq = []
        order = [(i, t) for i in range(19) for t in range(5)]
        for u, k in enumerate(order):
            if u < 64: self.Bloc[k] = ('a', 4 * u)
            elif u < 64 + NL: self.Bloc[k] = ('l', u - 64)
            else: self.Bloc[k] = None
        self.Border = order; self.Bpend = list(range(64 + NL)); self.Bcur = None; self.Acur = None
    def koff(self, i): return 4 * i - (2 if i >= 10 else 0)
    def soff(self, d, i, w):
        e_, o_, s8, s9, unit = (sB, sBo, sB8, sB9, 5120) if w == 'B' else (sA, sAo, sA8, sA9, 4096)
        if i in (8, 9): return f"s_mov_b32 s{d}, s{s8 if i == 8 else s9}"
        if i == 18: return f"s_add_u32 s{d}, s{e_}, s{o_}\ns_lshr_b32 s{d}, s{d}, 1\ns_add_u32 s{d}, s{d}, {self.koff(i)*unit}"
        idx = i if i < 10 else i - 10 if i < 14 else i - 14
        return f"s_add_u32 s{d}, s{e_ if idx & max(self.c.par, 1) == 0 else o_}, {self.koff(i)*unit}"
    def B_items(self, k, loc):
        i, t = k; it = []
        if self.Bcur != i:
            it.append(('x', self.soff(sBT, i, 'B'))); self.Bcur = i
        va, imm = (6, t * 1024) if t < 4 else (240, 0)
        if loc[0] == 'l':
            assert L_BL + loc[1]*1024 - imm >= 0
            it.append(('x', f"s_add_u32 m0, s88, {L_BL + loc[1]*1024 - imm}"))
            it.append(('vm', f"buffer_load_dwordx4 v{va}, {srd(SWS)}, s{sBT} offen offset:{imm} sc1 lds", ('B', k)))
        else:
            it.append(('vm', f"buffer_load_dwordx4 {R(loc)}, v{va}, {srd(SWS)}, s{sBT} offen offset:{imm} sc1", ('B', k)))
        return it
    def B_take(self, us):
        out = []
        for u in us:
            k = self.Border[u]; out.append(self.B_items(k, self.Bloc[k]))
            if self.c.xB == 1: out[-1] = [('x', 's_nop 0')]
            if self.c.xB == 2: out[-1] = [(it[0], it[1].replace(f"s{sBT} offen", "s43 offen"), it[2]) if it[0] == 'vm' else it for it in out[-1]]
            if self.c.xB == 3: out[-1] = [(it[0], it[1].replace(f"s{sBT} offen", f"s{sB} offen"), it[2]) if it[0] == 'vm' else it for it in out[-1]]
        return out
    def ph2_bg(self, u): pass
    def bg_try(self, allowed, S=None):
        e = self.e
        if e.t - e.tvm < (S or self.c.S): return False
        if allowed == self.ph2_bg: return self.try_issue(self.m, True, True)
        for u in self.Bpend:
            if allowed(u):
                self.Bpend.remove(u); self.emit_items(self.B_take([u])[0]); return True
        return False
    def emit_items(self, items):
        e = self.e
        for it in items:
            if it[0] == 'vm': e.vmop(it[1], it[2])
            elif it[0] == 'lg': e.lgop(it[1], it[2])
            elif it[0] == 'wvm': e.wait(vm=it[1])
            elif it[0] == 'wlg': e.wait(lg=it[1])
            elif it[0] == 'st': self.stamp(it[1], it[2])
            else: e(it[1])
    def valu(self, lines, side=None, every=1, bg=None, S=None):
        n = 0
        for l in lines:
            if isinstance(l, str): self.e(l)
            else: self.emit_items([l])
            n += 1
            if side and n % every == 0: self.emit_items(side.pop(0))
            if bg: self.bg_try(bg, S)

    def interleave(self, items, side, every):
        W = ('s_cmp', 's_add', 's_sub', 's_and', 's_andn2', 's_or', 's_xor', 's_lshl', 's_lshr', 's_bitcmp', 's_min', 's_max')
        Rd = ('s_cselect', 's_addc', 's_subb', 's_cbranch_scc')
        live = [False] * len(items); l = False
        for i in range(len(items) - 1, -1, -1):
            live[i] = l
            t = items[i][1]
            if t.startswith(Rd): l = True
            elif t.startswith(W): l = False
        n = 0
        for i, it in enumerate(items):
            self.emit_items([it]); n += 1
            if side and n >= every and not live[i]: self.emit_items(side.pop(0)); n = 0
        for g in side: self.emit_items(g)

    def gelu_lines(self, X, Y, T, O):
        U = [X, X + 2, Y, Y + 2]; L = []
        P = lambda r: f"v[{r}:{r+1}]"
        for i in range(4): L.append(f"v_pk_mul_f32 {P(T+2*i)}, {P(U[i])}, {P(U[i])}")
        for i in range(4): L.append(f"v_pk_fma_f32 {P(T+2*i)}, {P(T+2*i)}, v[14:15], s[{sC0}:{sC1}] op_sel_hi:[1,0,0]")
        for i in range(4): L.append(f"v_pk_mul_f32 {P(T+2*i)}, {P(T+2*i)}, {P(U[i])}")
        for i in range(8): L.append(f"v_exp_f32 v{T+i}, v{T+i}")
        for i in range(4): L.append(f"v_pk_add_f32 {P(T+2*i)}, {P(T+2*i)}, 1.0 op_sel_hi:[1,0]")
        for i in range(8): L.append(f"v_rcp_f32 v{T+i}, v{T+i}")
        for i in range(4): L.append(f"v_pk_mul_f32 {P(T+2*i)}, {P(T+2*i)}, {P(U[i])}")
        for i in range(4): L.append(f"v_cvt_pk_bf16_f32 v{O+i}, v{T+2*i}, v{T+2*i+1}")
        return L if not (self.c.skip & 1) else L[-8:]
    def gelu_consts(self):
        c1 = -2.0 * math.sqrt(2.0 / math.pi) * math.log2(math.e)
        self.e(f"s_mov_b32 s{sC0}, {fl(c1)}\nv_mov_b32 v14, {fl(c1 * 0.044715)}")
    def softmax_lines(self, Pp, E, PH):
        L = []; P = lambda r: f"v[{r}:{r+1}]"
        L += [f"v_max3_f32 v8, v{Pp}, v{Pp+1}, v{Pp+2}", f"v_min3_f32 v10, v{Pp}, v{Pp+1}, v{Pp+2}"]
        for i in range(3, 19, 2): L += [f"v_max3_f32 v8, v8, v{Pp+i}, v{Pp+i+1}", f"v_min3_f32 v10, v10, v{Pp+i}, v{Pp+i+1}"]
        L += [f"v_max_f32 v8, v8, v{Pp+19}", f"v_min_f32 v10, v10, v{Pp+19}"]
        L += [f"v_mul_f32_e64 v8, -v8, s{sC0}", f"v_mul_f32 v10, s{sC0}, v10"]
        for i in range(10):
            L.append(f"v_pk_fma_f32 {P(E+2*i)}, {P(Pp+2*i)}, s[{sC0}:{sC1}], v[8:9] op_sel_hi:[1,0,0]")
            L.append(f"v_pk_fma_f32 {P(E+20+2*i)}, {P(Pp+2*i)}, s[{sC0}:{sC1}], v[10:11] op_sel_hi:[1,0,0] neg_lo:[1,0,0] neg_hi:[1,0,0]")
        for i in range(40): L.append(f"v_exp_f32 v{E+i}, v{E+i}")
        L += [f"v_pk_add_f32 v[8:9], {P(E)}, {P(E+2)}", f"v_pk_add_f32 v[10:11], {P(E+20)}, {P(E+22)}"]
        for i in range(2, 10): L += [f"v_pk_add_f32 v[8:9], v[8:9], {P(E+2*i)}", f"v_pk_add_f32 v[10:11], v[10:11], {P(E+20+2*i)}"]
        L += ["v_add_f32 v8, v8, v9", "v_add_f32 v10, v10, v11", "v_rcp_f32 v8, v8", "v_rcp_f32 v10, v10"]
        for i in range(10): L.append(f"v_pk_mul_f32 {P(E+2*i)}, {P(E+2*i)}, v[8:9] op_sel_hi:[1,0]")
        for i in range(10): L.append(f"v_pk_mul_f32 {P(E+20+2*i)}, {P(E+20+2*i)}, v[10:11] op_sel_hi:[1,0]")
        for i in range(20): L.append(f"v_cvt_pk_bf16_f32 v{PH+i}, v{E+2*i}, v{E+2*i+1}")
        return L if not (self.c.skip & 2) else [l if 'cvt' in l else '' for l in L]
    def wphi_addr(self, va):
        self.e(f"v_mul_u32_u24 v{va}, 800, v2\nv_mad_u32_u24 v{va}, v3, 40, v{va}\nv_add_u32 v{va}, {L_WPHI}, v{va}")
    def wphi_reads(self, va):
        return [[('lg', f"ds_read_b64_tr_b16 a[{AW+2*(dg*5+fg)}:{AW+1+2*(dg*5+fg)}], v{va} offset:{dg*160 + fg*8}", 'wphi')] for dg in range(5) for fg in range(5)]
    def phi_mfmas(self, KQ, Pp):
        L = []
        for dg in range(5):
            for j in range(2):
                for fg in range(5):
                    d = Pp + 20 * j + 4 * fg; w = AW + 2 * (dg * 5 + fg); b = KQ + 10 * j + 2 * dg
                    L.append(f"v_mfma_f32_4x4x4_16b_bf16 {vr(d)}, a[{w}:{w+1}], v[{b}:{b+1}], {vr(d) if dg else 0}")
        return L
    def cvt_heads(self, acc0, dst, j, n=5):
        return [f"v_cvt_pk_bf16_f32 v{dst+2*t+h}, v{acc0+(t*2+j)*4+2*h}, v{acc0+(t*2+j)*4+2*h+1}" for t in range(n) for h in range(2)]
    def rho0(self, dst):
        self.e(f"v_lshrrev_b32 v{dst}, 1, v2\nv_lshl_add_u32 v{dst}, v{dst}, 4, v3\nv_and_b32 v7, 1, v2\nv_lshl_add_u32 v{dst}, v7, 2, v{dst}")
    def x_addr(self, ST, nsl=3, base=220):
        e = self.e
        e(f"""v_lshrrev_b32 v9, 1, v1
        v_xor_b32 v9, v9, v2
        v_lshlrev_b32 v9, 4, v9
        v_lshl_add_u32 v9, v1, 7, v9
        v_add_u32 v{base}, s{sM0}, v9
        v_xor_b32 v{base+1}, 64, v{base}""")
        for sl in range(1, nsl): e(f"v_add_u32 v{base+2*sl}, {sl*ST}, v{base}\nv_add_u32 v{base+1+2*sl}, {sl*ST}, v{base+1}")
    def paced(self, groups, m0, span):
        n = len(groups)
        return [dict(at=m0 + int((k + 0.2) * span / n), chain=1, ins=list(g)) for k, g in enumerate(groups)]
    def prog_QH(self):
        e = self.e; c = self.c; self.init_B(); self.dmap = {0: 3, 1: 5, 2: 7, 3: 9, 14: 11, 7: 13, 9: 15}
        e("L_QH:")
        ST = QH_ST
        e(f"""s_mul_i32 s{sKW}, s{sHG}, 320
        s_lshl_b32 s{sT0}, s{sHG}, 8
        s_add_u32 s{sT0}, s{sT0}, 384
        s_cmp_lt_u32 s{sHG}, 6
        s_cselect_b32 s{sKW}, s{sKW}, s{sT0}
        s_cselect_b32 s{sK1}, 20, 16
        s_mul_i32 s{sT2}, s{sW}, 320""")
        def dma_x(st):
            g = []
            for j in range(4):
                it = [('x', f"s_add_u32 m0, s{sM0}, {(st%3)*ST}")] if j == 0 else []
                g.append(it + [('vm', f"buffer_load_dwordx4 v{208+j}, {srd(SX)}, s{sE+st} offen offset:{j*1024} {c.xsc} lds", ('S', st))])
            return g
        def dma_a(st, i):
            it = []
            if i == 0: it = [('x', f"s_mul_i32 s{sKA}, s{sE+st}, 1920"), ('x', f"s_add_u32 m0, s{sM0+1}, {(st%3)*ST}")]
            if i == 2: it = [('x', f"s_mov_b32 m0, s{sM0+3+st%3}")]
            return it + [('vm', f"buffer_load_dwordx4 v{212+i}, {srd(SQ)}, s{sKA} offen offset:{1024 if i == 1 else 0} {c.wsc} lds", ('S', st))]
        def dma_h(st, i):
            it = []
            if i == 0: it = [('x', f"s_mul_i32 s{sKB}, s{sE+st}, 1728"), ('x', f"s_add_u32 m0, s{sM0+2}, {(st%3)*ST}")]
            if i == 4: it = [('x', "s_add_u32 m0, m0, 4096")]
            return it + [('vm', f"buffer_load_dwordx4 v{215+i}, {srd(S1)}, s{sKB} offen offset:{(i%4)*1024} {c.wsc} lds", ('S', st))]
        def dma_stage(st): return dma_x(st) + [dma_a(st, i) for i in range(3)] + [dma_h(st, i) for i in range(5)]
        if c.fast:
            self.kernarg_wait()
            if c.touch == 3: self.touch()
            for g in dma_x(0): self.emit_items(g)
            if c.touch == 5: self.touch()
            self.small_dma(SM, 6, f"s{sKW}", None, 20, 'bias', f"s_add_u32 m0, s{sT2}, {L_BIASQH}")
        e(f"""s_mul_i32 s{sT0}, s{sW}, 3
        s_lshl_b32 s{sT1}, s{sW}, 1
        s_add_u32 s{sT1}, s{sT1}, 2
        s_cmp_lt_u32 s{sW}, 2
        s_cselect_b32 s{sT0}, s{sT0}, s{sT1}
        s_lshl_b32 s{sM0+1}, s{sT0}, 10
        s_add_u32 s{sM0+1}, s{sM0+1}, 16384""")
        for sl in range(3):
            e(f"s_add_u32 s{sM0+3+sl}, s{sM0+1}, {2048 + sl*ST}\ns_cmp_lt_u32 s{sW}, 2\ns_cselect_b32 s{sM0+3+sl}, s{sM0+3+sl}, {MISC+4608}")
        e(f"s_lshl_b32 s{sT0}, s{sT0}, 6\ns_mul_i32 s{sT1}, s{sHG}, 160\ns_mul_i32 s{sM0+2}, s{sW}, 5120\ns_add_u32 s{sM0+2}, s{sM0+2}, {16384+10240}")
        for i in range(3):
            e(f"v_add_u32 v9, {64*i}, v0\nv_add_u32 v9, s{sT0}, v9")
            self.attn_voff(212 + i, None, sT1)
            if i == 1: e("v_subrev_u32 v213, 1024, v213")
            if i == 2: e(f"s_cmp_lt_u32 s{sW}, 2\ns_cselect_b32 s{sT4}, 0, {OOB}\nv_add_u32 v214, s{sT4}, v214")
            if c.fast: self.emit_items(dma_a(0, i))
        if not c.fast:
            self.kernarg_wait()
            self.small_dma(SM, 6, f"s{sKW}", None, 20, 'bias', f"s_add_u32 m0, s{sT2}, {L_BIASQH}")
            for g in dma_x(0) + [dma_a(0, i) for i in range(3)]: self.emit_items(g)
        e(f"s_mul_i32 s{sT0}, s{sW}, 320\nv_mov_b32 v14, {OOB}")
        for i in range(5):
            e(f"""v_add_u32 v9, {64*i}, v0
            v_add_u32 v9, s{sT0}, v9
            v_mul_u32_u24 v10, 3277, v9
            v_lshrrev_b32 v10, 16, v10
            v_mul_u32_u24 v11, 20, v10
            v_sub_u32 v11, v9, v11
            v_bfe_u32 v13, v10, 2, 1
            v_lshlrev_b32 v13, 1, v13
            v_xor_b32 v11, v11, v13
            v_cmp_gt_u32 vcc, s{sK1}, v11""")
            self.swap23(10, 12)
            e(f"""v_mul_u32_u24 v10, 3456, v10
            v_lshl_add_u32 v10, v11, 4, v10
            v_add_u32 v10, s{sKW}, v10
            v_subrev_u32 v10, {(i%4)*1024}, v10
            v_cndmask_b32 v{215+i}, v14, v10, vcc""")
            self.emit_items(dma_h(0, i))
        self.pstamp(1)
        if c.pke:
            self.pack_setup()
            for g in self.pack_loads(): self.emit_items(g)
        if c.touch == 1: self.touch()
        if c.touch == 4:
            self.touch3_setup()
            for p_ in range(c.tp0): self.emit_items(self.touch3(p_))
        self.pstamp(2)
        def setup():
            e = self.e
            self.x_addr(ST); self.rho0(8)
            e(f"v_mul_u32_u24 v9, 160, v8\nv_mad_u32_u24 v9, v4, 40, v9\nv_add_u32 v226, 16384, v9")
            e(f"v_mul_u32_u24 v9, 320, v8\nv_lshl_add_u32 v9, v4, 3, v9\nv_add_u32 v9, {16384+10240}, v9\nv_lshl_add_u32 v229, v7, 5, v9\nv_xor_b32 v7, 1, v7\nv_lshl_add_u32 v232, v7, 5, v9")
            for sl in (1, 2): e(f"v_add_u32 v{226+sl}, {sl*ST}, v226\nv_add_u32 v{229+sl}, {sl*ST}, v229\nv_add_u32 v{232+sl}, {sl*ST}, v232")
            self.common_setup()
            if not c.pke: self.pack_setup()
            e(f"s_mul_i32 s{sT1}, s{sW}, 320\ns_add_u32 s{sT1}, s{sT1}, {L_BIASQH}\nv_lshl_add_u32 v13, v2, 3, s{sT1}")
            e(f"""s_lshl_b32 s{sT0}, s{sMT}, 1
            s_lshr_b32 s{sT1}, s{sW}, 1
            s_add_u32 s{sT0}, s{sT0}, s{sT1}
            s_and_b32 s{sT1}, s{sW}, 1
            s_mul_i32 s{sT2}, s{sT0}, 74
            s_lshl_b32 s{sT2}, s{sT2}, 12
            s_lshl_b32 s{sT3}, s{sT1}, 11
            s_add_u32 s{sT2}, s{sT2}, s{sT3}
            s_add_u32 s{sT2}, s{sT2}, {A2}
            s_lshr_b32 s{sT4}, s{sHG}, 1
            s_mul_i32 s{sT4}, s{sT4}, 5
            s_add_u32 s{sT4}, s{sT4}, 54
            s_lshl_b32 s{sT4}, s{sT4}, 12
            s_add_u32 s{sT4}, s{sT4}, s{sT2}
            s_and_b32 s{sT5}, s{sHG}, 1
            s_lshl_b32 s38, s{sT5}, 13
            s_add_u32 s38, s38, s{sT4}
            s_add_u32 s39, s{sT4}, {4*4096}
            s_lshl_b32 s{sT5}, s{sT5}, 3
            s_add_u32 s39, s39, s{sT5}
            s_lshl_b32 s{sT0}, s{sHG}, 4
            s_add_u32 s{sT0}, s{sT0}, s{sMT}
            s_lshl_b32 s{sT0}, s{sT0}, 2
            s_add_u32 s{sT0}, s{sT0}, s{sW}
            s_lshl_b32 s{sT0}, s{sT0}, 9
            s_add_u32 s43, s{sT0}, {GB}
            v_mov_b32 v204, -1
            v_mov_b32 v205, -1
            v_mov_b32 v206, -1
            v_mov_b32 v207, -1""")
        self.interleave(self.record(setup), dma_stage(1)[:c.n1], c.pe)
        self.pstamp(3)
        if c.n1 >= 12:
            self.small_dma(SM, 6, "s36", None, 50, 'misc', "s_mov_b32 m0, s37")
            if c.touch == 2: self.touch()
            if not c.pke:
                for g in self.pack_loads(): self.emit_items(g)
        self.tag_wait(); self.pstamp(4)
        e.wait(vm='bias')
        for s_ in range(10): e.lgop(f"ds_read_b64 v[{136+2*s_}:{137+2*s_}], v13 offset:{s_*32}", ('b', s_))
        for s_ in range(10):
            a0 = 16 + (5 + s_) * 8; e.wait(lg=('b', s_))
            for h in range(2): e(f"v_lshlrev_b32 v{a0+2*h}, 16, v{136+2*s_+h}\nv_and_b32 v{a0+2*h+1}, 0xffff0000, v{136+2*s_+h}")
        self.stamp(0)
        NS = 15; nm = NS * 4; mf = []; reads = []
        for st in range(10):
            sl = st % 3
            for t in range(NS):
                gs = st * NS + t; wr = 168 + 8 * (gs % 4); m0 = len(mf)
                for ks in range(2):
                    for rd in range(2):
                        if t < 5: ad, off = 226 + sl, ks * 5120 + rd * 1280 + t * 8
                        else: ad, off = (229 if (t - 5) % 2 == 0 else 232) + sl, ks * 10240 + rd * 2560 + ((t - 5) >> 1) * 64
                        reads.append([f"ds_read_b64_tr_b16 v[{wr+4*ks+2*rd}:{wr+4*ks+2*rd+1}], v{ad} offset:{off}", m0, st, m0 - 13])
                for j in ((1, 0) if st == 0 else (0, 1)):
                    for ks in range(2):
                        xr = 136 + (st % 2) * 16 + (j * 2 + ks) * 4; d = 16 + (t * 2 + j) * 4
                        if t == 0: reads.append([f"ds_read_b128 {vr(xr)}, v{220+2*sl+ks} offset:{j*2048}", len(mf), st, -1])
                        cc = vr(d)
                        if st == 0 and ks == 0: cc = "0" if t < 5 else vr(16 + t * 8)
                        mf.append(f"v_mfma_f32_16x16x32_bf16 {vr(d)}, {vr(wr+4*ks)}, {vr(xr)}, {cc}")
        po = lambda va, off: [('vm', f"buffer_store_dwordx4 v[204:207], v{va}, {srd(SWS)}, s38 offen offset:{off} sc1", 'hst')]
        poison = [po(6, 0), po(6, 1024), po(240, 0), po(240, 1024)] + [[('vm', f"buffer_store_dwordx2 v[204:205], v6, {srd(SWS)}, s39 offen offset:{j*1024} sc1", 'hst')] for j in range(2)]
        self.ulim = 51
        self.kloop(mf, reads, nm, dma_stage, poison, 'QH')
        A51 = lambda u: u < 51; A64 = lambda u: u < 64; ALL = lambda u: True
        self.gelu_consts()
        e(f"s_lshl_b32 s{sT3}, s{sKW}, 6\ns_add_u32 s{sT3}, s{sT3}, s{sT2}")
        L = []
        for p in range(5):
            for j in range(2):
                O = 152 + 4 * ((2 * p + j) % 4)
                L += self.gelu_lines(16 + ((5 + 2 * p) * 2 + j) * 4, 16 + ((6 + 2 * p) * 2 + j) * 4, 136 + 8 * j, O)
                if j == 0:
                    if p == 4: L += [f"s_add_u32 s{sT4}, s{sT3}, {4*4096}", f"s_cmp_lt_u32 s{sHG}, 6\ns_cselect_b32 s{sT4}, s{sT4}, {OOB}"]
                    else: L.append(f"s_add_u32 s{sT4}, s{sT3}, {p*4096}")
                L.append(('vm', f"buffer_store_dwordx4 {vr(O)}, v6, {srd(SWS)}, s{sT4} offen offset:{j*1024} sc1", 'hst'))
        self.valu(L, bg=A51, S=c.Sg)
        self.valu(self.cvt_heads(16, 56, 0) + self.cvt_heads(16, 66, 1), bg=A51)
        self.stamp(2)
        e.wait(lg='wphi')
        self.valu(self.phi_mfmas(56, 76), bg=A51)
        e(f"""s_lshl_b32 s{sT4}, s{sMT}, 4
        s_add_u32 s{sT4}, s{sT4}, s{sHG}
        s_lshl_b32 s{sT4}, s{sT4}, 7
        s_add_u32 s{sT4}, s{sT4}, {F4}
        s_cmp_eq_u32 s{sW}, 0
        s_cselect_b32 s{sT5}, s{sT4}, {OOB}
        s_mov_b32 s{sC0}, {fl(math.log2(math.e))}""")
        L1 = self.softmax_lines(76, 16, 116)
        self.valu(L1[:c.f4at], bg=A64)
        e.wait(vm='hst'); e("s_barrier")
        if c.stamps == 3: e(f"s_mov_b32 s{sC0}, {fl(math.log2(math.e))}")
        e.vmop(self.flag_store(245, 246, f"s{sT5}"), 'f4st')
        self.valu(L1[c.f4at:], bg=ALL)
        L2 = self.softmax_lines(96, 16, 136)
        self.valu(L2[:c.pa], bg=ALL)
        self.poll4a_issue()
        self.valu(L2[c.pa:c.pb], bg=ALL)
        pool = [[('v', r), c.mo + 1 if r < 204 else c.p3 if r < 220 else 999] for r in list(range(204, 224, 4)) + list(range(168, 204, 4))]
        while len(self.Bpend) > c.qleft: self.bg_try(ALL, -9999)
        self.ph2_begin(pool)
        if c.stamps == 3: e(f"s_mov_b32 s{sC0}, {fl(math.log2(math.e))}")
        self.valu(L2[c.pb:], bg=ALL)
        self.stamp(3)
        pool += [[('v', r), c.mo + 1] for r in range(156, 168, 4)]
        FO = (0, 1024, 2048, 2816)
        finld = [f"buffer_load_dwordx4 {vr(204+4*i)}, v6, {srd(SWS)}, s{sKW} offen offset:{FO[i]} sc1" for i in range(4)]
        finld += [f"buffer_load_dwordx4 {vr(248+4*j)}, v13, {srd(SWS)}, s43 offen offset:{j*256} sc1" for j in range(2)]
        def h_p3():
            e(f"""s_mul_i32 s{sKW}, s{sHG}, {FSZ}
            s_mul_i32 s{sK1}, s{sW}, 3840
            s_add_u32 s{sKW}, s{sKW}, s{sK1}
            s_add_u32 s{sKW}, s{sKW}, {FIN}
            v_lshlrev_b32 v13, 4, v1""")
            for l in finld: e.vmop(l, 'fin')
        def h_c3():
            it = [('st', 4, 1)] + [('x', l) for l in f"s_lshr_b32 s{sK1}, s{sK1}, 1\ns_add_u32 s{sK1}, s{sK1}, {L_FIN}\nv_lshl_add_u32 v9, v0, 3, s{sK1}".split("\n")] + [('wvm', 'fin')]
            it += [('x', l) for l in self.tag_check(finld, list(range(204, 220)) + list(range(248, 256)), 8)] + [('st', 5, 1)]
            it += [('x', self.tag_strip(r)) for r in list(range(204, 220)) + [248, 252]] + [('x', "v_mov_b32 v250, v248"), ('x', "v_mov_b32 v251, v252")]
            for i in range(4):
                it += [('x', f"v_cvt_pk_bf16_f32 v{204+4*i}, v{204+4*i}, v{205+4*i}"), ('x', f"v_cvt_pk_bf16_f32 v{205+4*i}, v{206+4*i}, v{207+4*i}"),
                       ('lg', f"ds_write_b64 v9, v[{204+4*i}:{205+4*i}] offset:{FO[i]//2}", 'fw')]
            it += [('x', l) for l in f"v_lshlrev_b32 v13, 6, v2\nv_lshl_add_u32 v13, v4, 4, v13\nv_add_u32 v13, {L_FIN}, v13".split("\n")]
            self.aq[:0] = [[self.m, c.mo - 3, x] for x in it]
        def h_o():
            if c.p1q < 0: self.poll4b_issue()
            fr = [p for p in pool if p[0][0] == 'a'][:8]; assert len(fr) == 8; self.busy = fr
            e.wait(lg='fw'); e("s_barrier")
            self.stamp(6)
            mf = []; reads = []
            for fp in range(5):
                for dg in range(6):
                    n = fp * 6 + dg; f0 = fr[n % 8][0][1]; base = (n // 2) * 8
                    reads.append([f"ds_read_b128 {ar(f0)}, v13 offset:{(dg*5+fp)*256}", base + 2 * (n % 2), -1, base - 24])
                    for h in range(2):
                        for j in range(2):
                            d = 156 + 24 * j + 4 * dg; b = 116 + 20 * j + 2 * (2 * fp + h)
                            mf.append(f"v_mfma_f32_4x4x4_16b_bf16 {vr(d)}, a[{f0+2*h}:{f0+2*h+1}], v[{b}:{b+1}], {vr(d) if (fp or h) else 0}")
            mf2 = []
            for n in range(0, 30, 2):
                a_, b_ = mf[4*n:4*n+4], mf[4*n+4:4*n+8]
                mf2 += [a_[0], a_[1], b_[0], b_[1], a_[2], a_[3], b_[2], b_[3]]
            if c.skip & 4: mf2 = mf2[:8]; reads = reads[:2]
            self.stream(mf2, reads, [], None, LA=20, bg=lambda m: self.ph2_bg)
            for j in range(2): e(f"v_add_f32 v{8+2*j}, {fl(1e-6)}, v{156+24*j+20}")
            for j in range(2): e(f"v_rcp_f32 v{8+2*j}, v{8+2*j}")
            for j in range(2): e(f"v_mul_f32 v{8+2*j}, v{8+2*j}, v{250+j}")
            for j in range(2):
                D = 156 + 24 * j
                for i in range(10): e(f"v_pk_mul_f32 v[{D+2*i}:{D+2*i+1}], v[{D+2*i}:{D+2*i+1}], v[{8+2*j}:{9+2*j}] op_sel_hi:[1,0]")
                for i in range(10): e(f"v_cvt_pk_bf16_f32 v{D+i}, v{D+2*i}, v{D+2*i+1}")
                for i in range(10): e(f"v_min_u32 v{D+i}, -2, v{D+i}")
                e.vmop(f"buffer_store_dwordx4 {vr(D)}, v6, {srd(SWS)}, s38 offen offset:{j*1024} sc1", 'ost')
                e.vmop(f"buffer_store_dwordx4 {vr(D+4)}, v240, {srd(SWS)}, s38 offen offset:{j*1024} sc1", 'ost')
                e.vmop(f"buffer_store_dwordx2 {vr(D+8, 2)}, v6, {srd(SWS)}, s39 offen offset:{j*1024} sc1", 'ost')
            self.busy = []
            for p in pool: p[1] = 999
            pool.extend([[('v', r), 999] for r in range(116, 156, 4)])
            self.stamp(14)
        self.bias2()
        self.phase2({c.p3: h_p3, c.c3: h_c3, c.mo: h_o, c.p1q: self.poll4b_issue, c.c1q: self.poll4b_check})

    def prog_KV(self):
        e = self.e; c = self.c; self.init_B(); self.dmap = {0: 2, 1: 4, 3: 6, 4: 8, 5: 10, 7: 12, 9: 14}
        ST = KV_ST
        e(f"""s_mul_i32 s{sM0+1}, s{sW}, 5120
        s_add_u32 s{sM0+1}, s{sM0+1}, 16384
        s_lshl_b32 s{sM0+2}, s{sW}, 11
        s_add_u32 s{sM0+2}, s{sM0+2}, 36864
        s_lshl_b32 s{sKW}, s{sHG}, 7
        s_add_u32 s{sKW}, s{sKW}, {19*128}""")
        def dma_x(st):
            g = []
            for j in range(4):
                it = [('x', f"s_add_u32 m0, s{sM0}, {(st%3)*ST}")] if j == 0 else []
                g.append(it + [('vm', f"buffer_load_dwordx4 v{208+j}, {srd(SX)}, s{sE+st} offen offset:{j*1024} {c.xsc} lds", ('S', st))])
            return g
        def dma_w(st, i):
            it = []
            if i == 0: it = [('x', f"s_mul_i32 s{sKA}, s{sE+st}, 1920"), ('x', f"s_add_u32 m0, s{sM0+1}, {(st%3)*ST}")]
            if i == 4: it = [('x', "s_add_u32 m0, m0, 4096")]
            return it + [('vm', f"buffer_load_dwordx4 v{212+i}, {srd(SQ)}, s{sKA} offen offset:{(i%4)*1024} {c.wsc} lds", ('S', st))]
        def dma_h(st, i):
            it = [('x', f"s_mul_i32 s{sKB}, s{sE+st}, 1728"), ('x', f"s_add_u32 m0, s{sM0+2}, {(st%3)*ST}")] if i == 0 else []
            return it + [('vm', f"buffer_load_dwordx4 v{217+i}, {srd(S1)}, s{sKB} offen offset:{i*1024} {c.wsc} lds", ('S', st))]
        def dma_stage(st): return dma_x(st) + [dma_w(st, i) for i in range(5)] + [dma_h(st, i) for i in range(2)]
        if c.fast:
            self.kernarg_wait()
            if c.touch == 3: self.touch()
            for g in dma_x(0): self.emit_items(g)
            if c.touch == 5: self.touch()
            self.small_dma(SM, 6, f"s{sKW}", L_BIASKV, 8, 'bias')
        e(f"""s_and_b32 s{sT0}, s{sW}, 1
        s_mul_i32 s{sT0}, s{sT0}, 320
        s_lshr_b32 s{sT1}, s{sW}, 1
        s_add_u32 s{sT1}, s{sT1}, 1
        s_mul_i32 s{sT1}, s{sT1}, 1280
        s_mul_i32 s{sT3}, s{sHG}, 160
        s_add_u32 s{sT1}, s{sT1}, s{sT3}""")
        for i in range(5):
            e(f"v_add_u32 v9, {64*i}, v0\nv_add_u32 v9, s{sT0}, v9")
            self.attn_voff(212 + i, None, sT1)
            if i % 4: e(f"v_subrev_u32 v{212+i}, {(i%4)*1024}, v{212+i}")
            if c.fast: self.emit_items(dma_w(0, i))
        if not c.fast:
            self.kernarg_wait()
            self.small_dma(SM, 6, f"s{sKW}", L_BIASKV, 8, 'bias')
            for g in dma_x(0) + [dma_w(0, i) for i in range(5)]: self.emit_items(g)
        e(f"s_lshl_b32 s{sT3}, s{sW}, 4\nv_lshlrev_b32 v11, 1, v2\nv_xor_b32 v11, v11, v0\nv_and_b32 v11, 7, v11")
        for pp in range(2):
            e(f"v_add_u32 v10, {8*pp}, v5\nv_add_u32 v10, s{sT3}, v10")
            self.swap23(10, 12)
            e(f"""v_mul_u32_u24 v10, 3456, v10
            v_lshl_add_u32 v10, v11, 4, v10
            v_add_u32 v10, s{sKW}, v10
            v_subrev_u32 v{217+pp}, {pp*1024}, v10""")
            self.emit_items(dma_h(0, pp))
        mk_srd(e, 28, pGATE, 1280)
        if c.rot == 3: e(f"v_xor_b32 v9, s{sE}, v6\nv_add_u32 v11, 1024, v9")
        else: e(f"v_add_u32 v9, s{sE}, v6\nv_subrev_u32 v10, 1280, v9\nv_min_u32 v9, v9, v10\nv_add_u32 v11, 1024, v9\nv_subrev_u32 v10, 1280, v11\nv_min_u32 v11, v11, v10")
        self.small_dma(28, 9, "0", L_GATE, 64, ('S', 0)); self.small_dma(28, 11, "0", L_GATE + 1024, 16, ('S', 0))
        self.pstamp(1)
        if c.pke:
            self.pack_setup()
            for g in self.pack_loads(): self.emit_items(g)
        if c.touch == 1: self.touch()
        if c.touch == 4:
            self.touch3_setup()
            for p_ in range(c.tp0): self.emit_items(self.touch3(p_))
        self.pstamp(2)
        def setup():
            e = self.e
            self.x_addr(ST); self.rho0(8)
            e(f"v_mul_u32_u24 v9, 160, v8\nv_mad_u32_u24 v9, v4, 40, v9\nv_add_u32 v226, 16384, v9")
            for sl in (1, 2): e(f"v_add_u32 v{226+sl}, {sl*ST}, v226")
            e(f"v_lshlrev_b32 v9, 7, v8\nv_lshl_add_u32 v9, v4, 3, v9\nv_add_u32 v9, 36864, v9\nv_bfe_u32 v10, v8, 1, 2")
            for t in range(4): e(f"v_xor_b32 v11, {t}, v10\nv_lshl_add_u32 v{229+t}, v11, 5, v9\nv_add_u32 v{204+t}, {2*ST}, v{229+t}")
            e(f"v_lshlrev_b32 v233, 4, v2\nv_add_u32 v233, {L_GATE}, v233\nv_lshlrev_b32 v253, 3, v2\nv_add_u32 v253, {L_BIASKV}, v253")
            self.common_setup()
            if not c.pke: self.pack_setup()
            e(f"""v_lshrrev_b32 v8, 2, v1
            v_mul_u32_u24 v8, 2560, v8
            v_lshl_add_u32 v8, v4, 5, v8
            v_lshrrev_b32 v9, 1, v2
            v_lshl_add_u32 v8, v9, 9, v8
            v_and_b32 v9, 1, v2
            v_lshl_add_u32 v8, v9, 4, v8
            s_lshl_b32 s{sT0}, s{sW}, 7
            v_add_u32 v241, s{sT0}, v8
            v_add_u32 v243, 10240, v241
            v_mov_b32 v9, {OOB}
            v_cmp_ge_u32 vcc, 7, v1
            v_cndmask_b32 v243, v9, v243, vcc
            v_cmp_gt_u32 vcc, 2, v2
            v_cndmask_b32 v242, v9, v241, vcc
            v_cndmask_b32 v244, v9, v243, vcc
            v_mul_u32_u24 v12, {PSZ}, v2
            v_min_u32 v10, 14, v1
            v_lshl_add_u32 v12, v10, 4, v12
            v_lshlrev_b32 v13, 4, v1
            v_cmp_gt_u32 vcc, 16, v0
            v_cndmask_b32 v234, v9, v13, vcc
            v_cmp_gt_u32 vcc, 15, v0
            v_cndmask_b32 v13, v9, v13, vcc""")
        self.interleave(self.record(setup), dma_stage(1)[:c.n1], c.pe2)
        self.pstamp(3)
        if c.n1 >= 12:
            self.small_dma(SM, 6, "s36", None, 50, 'misc', "s_mov_b32 m0, s37")
            if c.touch == 2: self.touch()
            if not c.pke:
                for g in self.pack_loads(): self.emit_items(g)
        self.tag_wait(); self.pstamp(4)
        e.wait(vm='bias')
        for s_ in range(4): e.lgop(f"ds_read_b64 v[{136+2*s_}:{137+2*s_}], v253 offset:{s_*32}", ('b', s_))
        for s_ in range(4):
            e.wait(lg=('b', s_))
            for h in range(2): e(f"v_lshlrev_b32 v{96+8*s_+2*h}, 16, v{136+2*s_+h}\nv_and_b32 v{97+8*s_+2*h}, 0xffff0000, v{136+2*s_+h}")
        self.stamp(0)
        NS = 15; nm = NS * 4; mf = []; reads = []; late = []; gs = 0
        S0 = 10 - c.dfr; AD = AW - 56 * c.dfr
        for st in range(10):
            sl = st % 3; mst = len(mf)
            for t in range(NS):
                dfr = st >= S0 and t >= 10
                wr = (('a', AD + (st - S0) * 56 + 16 + (t - 10) * 8) if dfr else ('v', 168 + 8 * (gs % 4))); m0 = len(mf)
                dl, ea = (mst + 6 + 6 * (t - 10), -1) if dfr else (m0, m0 - 13)
                RR = lambda o, n: R((wr[0], wr[1] + o), n)
                for ks in range(2):
                    if t == 14: reads.append([f"ds_read_b128 {RR(4*ks, 4)}, v233 offset:{(st*2+ks)*64}", dl, st, ea]); continue
                    for rd in range(2):
                        if t < 10: ad, off = 226 + sl, (t // 5) * 10240 + ks * 5120 + rd * 1280 + (t % 5) * 8
                        else: ad, off = (229 if sl < 2 else 204) + t - 10, (sl % 2) * ST + ks * 4096 + rd * 1024
                        reads.append([f"ds_read_b64_tr_b16 {RR(4*ks+2*rd, 2)}, v{ad} offset:{off}", dl, st, ea])
                for j in ((1, 0) if st == 0 else (0, 1)):
                    for ks in range(2):
                        xr = ('a', AD + (st - S0) * 56 + (j * 2 + ks) * 4) if st >= S0 else ('v', 136 + (st % 2) * 16 + (j * 2 + ks) * 4)
                        d = 16 + (t * 2 + j) * 4
                        if t == 0: reads.append([f"ds_read_b128 {R(xr)}, v{220+2*sl+ks} offset:{j*2048}", len(mf), st, -1])
                        cc = vr(d)
                        if st == 0 and ks == 0: cc = vr(16 + t * 8) if 10 <= t < 14 else "0"
                        (late if dfr else mf).append(f"v_mfma_f32_16x16x32_bf16 {vr(d)}, {RR(4*ks, 4)}, {R(xr)}, {cc}")
                if not dfr: gs += 1
        self.ulim = AD // 4
        self.kloop(mf, reads, nm, dma_stage, [], 'KV')
        e.wait(lg_all=True)
        A64 = lambda u: u < 64; ALL = lambda u: True
        A51 = lambda u: u < 51; Sa = c.Sa
        ALL0 = ALL; ALL = lambda u: u < self.ulim or u >= 51
        KQ = 136; PR = 168; VT = 156
        nl2e = fl(-math.log2(math.e))
        side = [l.strip() for l in f"""v_mul_f32 v128, {nl2e}, v128
        v_mul_f32 v132, {nl2e}, v132
        v_exp_f32 v128, v128
        v_exp_f32 v132, v132
        s_lshl_b32 s{sT2}, s{sMT}, 2
        v_add_f32 v128, 1.0, v128
        v_add_f32 v132, 1.0, v132
        v_rcp_f32 v128, v128
        v_rcp_f32 v132, v132
        s_add_u32 s{sT2}, s{sT2}, s{sW}
        s_lshl_b32 s{sT3}, s{sT2}, 9
        s_lshl_b32 s{sT4}, s{sHG}, 15
        s_add_u32 s{sT3}, s{sT3}, s{sT4}
        s_add_u32 s{sT3}, s{sT3}, {GB}
        v_mul_u32_u24 v220, {RSV}, v1
        v_mad_u32_u24 v220, v2, 48, v220
        s_mul_i32 s{sT0}, s{sW}, {32*RSV}
        s_add_u32 s{sT0}, s{sT0}, {L_V}
        v_add_u32 v220, s{sT0}, v220
        v_mul_u32_u24 v221, {RSP}, v1
        s_mov_b32 s{sT0}, 80
        v_mad_u32_u24 v221, v2, s{sT0}, v221
        s_mul_i32 s{sT0}, s{sW}, {32*RSP}
        v_add_u32 v221, s{sT0}, v221
        v_lshl_add_u32 v8, v2, 2, v3
        v_mul_u32_u24 v222, {RSP}, v8
        v_lshl_add_u32 v222, v4, 3, v222
        s_mul_i32 s{sT0}, s{sW}, 80
        v_add_u32 v222, s{sT0}, v222
        v_mul_u32_u24 v223, {RSV}, v8
        v_lshl_add_u32 v223, v4, 3, v223
        s_mul_i32 s{sT0}, s{sW}, 48
        s_add_u32 s{sT0}, s{sT0}, {L_V}
        v_add_u32 v223, s{sT0}, v223
        s_lshl_b32 s{sT0}, s{sHG}, 4
        s_add_u32 s{sT0}, s{sT0}, s{sMT}
        s_mul_i32 s{sT1}, s{sT0}, {PSZ}
        s_add_u32 s{sT1}, s{sT1}, {PP}
        s_mov_b32 s{sC0}, {fl(math.log2(math.e))}""".split("\n")]
        self.tag_update()
        self.valu(self.cvt_heads(16, KQ, 0) + self.cvt_heads(16, KQ + 10, 1))
        e.wait(lg='wphi')
        gate = side[:14]; side = self.cvt_heads(56, VT, 0) + side[14:38]
        self.valu(self.phi_mfmas(KQ, PR), [[('x', l)] for l in side], 1)
        e(f"v_mov_b32 v{VT+10}, 0x3f80\nv_mov_b32 v{VT+11}, 0\ns_mov_b32 s{sC0}, {fl(math.log2(math.e))}\ns_barrier")
        for i in range(3): e.lgop(f"ds_write_b128 v220, {vr(VT+4*i)} offset:{i*16}", 'vw')
        L0 = self.softmax_lines(PR, 16, 136)
        self.valu(L0[:16], bg=ALL, S=Sa)
        self.valu(self.cvt_heads(56, 208, 1) + ["v_mov_b32 v218, 0x3f80", "v_mov_b32 v219, 0"], bg=ALL, S=Sa)
        for i in range(3): e.lgop(f"ds_write_b128 v220, {vr(208+4*i)} offset:{16*RSV + i*16}", 'vw')
        self.valu(L0[16:], bg=ALL, S=Sa)
        PH = (136, 56)
        pw = lambda j: [[('lg', f"ds_write_b128 v221, {vr(PH[j]+4*i)} offset:{j*16*RSP + i*16}", 'pw')] for i in range(5)]
        L1 = self.softmax_lines(PR + 20, 16, 56)
        self.valu(L1[:40], pw(0), 8, ALL, Sa)
        self.valu(L1[40:-20], bg=ALL, S=Sa)
        self.valu(L1[-20:], pw(1), 4)
        e.wait(lg_all=True); e("s_barrier")
        self.stamp(2)
        mf = []; reads = []; D0 = 168
        for s_ in range(4):
            b0 = 16 + s_ * 20; m0 = len(mf)
            for dt in range(2):
                for rd in range(2): reads.append([f"ds_read_b64_tr_b16 v[{b0+12+4*dt+2*rd}:{b0+13+4*dt+2*rd}], v223 offset:{(32*s_+16*rd)*RSV + dt*32}", m0 + dt, -1, -1])
            for ft in range(3):
                for rd in range(2): reads.append([f"ds_read_b64_tr_b16 v[{b0+4*ft+2*rd}:{b0+4*ft+2*rd+1}], v222 offset:{(32*s_+16*rd)*RSP + ft*32}", m0 + 2 * ft, -1, -1])
                for dt in range(2):
                    d = D0 + (ft * 2 + dt) * 4
                    mf.append(f"v_mfma_f32_16x16x32_bf16 {vr(d)}, {vr(b0+4*ft)}, {vr(b0+12+4*dt)}, {vr(d) if s_ else 0}")
        reads.sort(key=lambda r: r[1]); rp = 0
        for m in range(24):
            while rp < 40 and (len(e.lg) < 14 and (m == 0 or reads[rp][1] <= m + 8) or reads[rp][1] <= m): e.lgop(reads[rp][0], ('kv', reads[rp][1])); rp += 1
            e.wait(lg=[('kv', k) for k in range(m + 1)])
            e(mf[m])
            if c.kvb: self.bg_try(ALL, c.kvb)
        e("s_nop 4")
        for ft in range(3):
            for dt in range(2):
                for i in range(4): e(self.tag_put(D0 + (ft * 2 + dt) * 4 + i))
                e.vmop(f"buffer_store_dwordx4 {vr(D0+(ft*2+dt)*4)}, v{241+2*dt+(ft==2)}, {srd(SWS)}, s{sT1} offen offset:{ft*1024} sc1", 'pst')
        self.stamp(3)
        sc = [l.strip() for l in f"""s_lshl_b32 s{sT2}, s{sMT}, 2
        s_add_u32 s{sT2}, s{sT2}, s{sW}
        s_lshl_b32 s{sT4}, s{sMT}, 1
        s_lshr_b32 s{sT5}, s{sW}, 1
        s_add_u32 s{sT4}, s{sT4}, s{sT5}
        s_and_b32 s{sT5}, s{sW}, 1
        s_mul_i32 s{sT0}, s{sT4}, 74
        s_lshl_b32 s{sKW}, s{sHG}, 1
        s_add_u32 s{sT0}, s{sT0}, s{sKW}
        s_add_u32 s{sT0}, s{sT0}, 38
        s_lshl_b32 s{sT0}, s{sT0}, 12
        s_lshl_b32 s{sT5}, s{sT5}, 11
        s_add_u32 s{sT0}, s{sT0}, s{sT5}
        s_add_u32 s{sT0}, s{sT0}, {A2}
        s_lshl_b32 s{sKW}, s{sMT}, 4
        s_add_u32 s{sKW}, s{sKW}, s{sHG}
        s_lshl_b32 s{sKW}, s{sKW}, 7
        s_add_u32 s{sKW}, s{sKW}, {F4+1024}
        s_mul_i32 s32, s{sT2}, 240
        s_mul_i32 s{sT4}, s{sHG}, {FSZ}
        s_add_u32 s{sT1}, s32, s{sT4}
        s_add_u32 s{sT1}, s{sT1}, {FIN}
        s_lshl_b32 s{sT4}, s{sT4}, 4
        s_add_u32 s32, s32, s{sT4}
        s_add_u32 s32, s32, {PP}
        s_add_u32 s33, s32, {4*PSZ}
        s_add_u32 s34, s33, {4*PSZ}
        s_add_u32 s35, s34, {4*PSZ}""".split("\n")] + [f"s_cmp_eq_u32 s{sW}, 0\ns_cselect_b32 s{sKW}, s{sKW}, {OOB}"]
        sd = [[('x', l)] for l in sc]
        self.valu(late, sd, 1, ALL if c.kvb else None, c.kvb)
        for g in sd: self.emit_items(g)
        ALL = ALL0
        for l in gate: e(l)
        for j in range(2):
            for i in (3, 2, 1, 0): e(self.tag_put(128 + 4 * j + i, 128 + 4 * j))
            e.vmop(f"buffer_store_dwordx4 {vr(128+4*j)}, v234, {srd(SWS)}, s{sT3} offen offset:{j*256} sc1", 'hst')
        self.gelu_consts()
        L = []; hs = []
        for p in range(2):
            for j in range(2):
                O = 152 + 4 * ((2 * p + j) % 4)
                L += self.gelu_lines(96 + (4 * p + j) * 4, 96 + (4 * p + 2 + j) * 4, 136 + 8 * j, O)
                hs.append(('vm', f"buffer_store_dwordx4 {vr(O)}, v{6 if p == 0 else 240}, {srd(SWS)}, s{sT0} offen offset:{j*1024} sc1", 'hst'))
        RD = 16
        pld = [f"buffer_load_dwordx4 {vr(RD+4*i)}, v12, {srd(SWS)}, s{32+i} offen sc1" for i in range(4)]
        self.valu(L[:c.kpl], bg=ALL if c.kgb else None, S=Sa)
        for l in pld: e.vmop(l, 'pld')
        if c.kp4 == 0: self.poll4a_issue()
        self.valu(L[c.kpl:], bg=ALL if c.kgb else None, S=Sa)
        if c.khs == 0: self.emit_items(hs)
        pool = [[('v', r), 999] for r in list(range(168, 224, 4)) + list(range(116, 152, 4))]
        for _ in range(c.kb2): self.bg_try(ALL, -9999)
        self.stamp(4)
        def h_r2():
            red = [self.tag_strip(RD + i) for i in range(16)]
            red += [f"v_add_f32 v{RD+i}, v{RD+i}, v{RD+4+i}" for i in range(4)] + [f"v_add_f32 v{RD+8+i}, v{RD+8+i}, v{RD+12+i}" for i in range(4)] + [f"v_add_f32 v{RD+i}, v{RD+i}, v{RD+8+i}" for i in range(4)]
            for sw in ('32', '16'):
                red += [f"v_mov_b32 v{RD+4+i}, v{RD+i}" for i in range(4)] + [f"v_permlane{sw}_swap_b32 v{RD+i}, v{RD+4+i}" for i in range(4)] + [f"v_add_f32 v{RD+i}, v{RD+i}, v{RD+4+i}" for i in range(4)]
            red += [self.tag_put(RD + i) for i in range(4)]
            it = [('st', 14, 1), ('wvm', 'pld')] + [('x', l) for l in self.tag_check(pld, range(RD, RD + 16), 9)] + [('st', 5, 1)] + [('x', l) for l in red]
            it += [('vm', f"buffer_store_dwordx4 {vr(RD)}, v13, {srd(SWS)}, s{sT1} offen sc1", 'fst')]
            self.emit_items(it)
        def h_f4():
            e.wait(vm='hst'); e("s_barrier"); e.vmop(self.flag_store(245, 246, f"s{sKW}"), 'f4st')
        h_r2()
        if c.khs == 1:
            self.emit_items(hs)
            for _ in range(c.kb4): self.bg_try(ALL, -9999)
        pool += [[('v', r), 999] for r in range(152, 168, 4)]
        if c.f4k < 0: h_f4()
        if c.kp4 == 1:
            self.poll4a_issue()
            for _ in range(c.kb3): self.bg_try(ALL, -9999)
        self.ph2_begin(pool)
        while len(self.Bpend) > c.kleft: self.bg_try(ALL, -9999)
        self.stamp(6)
        self.bias2()
        self.phase2({c.f4k: h_f4, c.p1: self.poll4b_issue, c.c1: self.poll4b_check})

    def kloop(self, mf, reads, nm, dma_stage, poison, name):
        e = self.e; c = self.c; back = []
        def mksync(st):
            def f(m):
                tg = [it[2] for g in back for it in (g[1] if g[0] == 'atomic' else g) if it[0] == 'vm']
                assert not (st == c.pks and 'packld' in tg) and not (st == c.pks + 3 and 'pkst' in tg) and not (st == 3 and 'misc' in tg) and ('S', st) not in tg
                e.wait(vm=[('S', st)] + (['pkst'] if st == c.pks + 3 else []) + (['misc'] if st == 3 else []) + (['packld'] if st == c.pks else []), lg_all=True); e("s_barrier")
                self.stamp(st + 1, 2)
                if st < 3: self.stamp(7 + st, 3)
                if st == 2: self.pstamp_flush()
                out = []
                if st == 0 and c.n1 < 12:
                    back.extend(dma_stage(1)[c.n1:])
                    back.append(('atomic', self.record(lambda: self.small_dma(SM, 6, "s36", None, 50, 'misc', "s_mov_b32 m0, s37"))))
                if st + 2 < 10: back.extend(dma_stage(st + 2))
                if st == c.pkl and c.n1 < 12: back.extend(self.pack_loads())
                if st == c.pks: back.extend(self.pack_stores())
                if c.f1s < st < 8 or (st == c.f1s and st < 8 and c.f1c + 8 < nm - 16):
                    for u in self.Bpend[:c.bk]: self.Bpend.remove(u); back.append(self.B_take([u])[0])
                need = max([k + 1 for k, g in enumerate(back) if g[0] != 'atomic' and g[-1][2] == ('S', st + 1)], default=0)
                n = min(len(back), max(c.quota, need)) if st < 7 else len(back)
                take = back[:n]; del back[:n]
                if take:
                    pc = self.paced([g[1] if g[0] == 'atomic' else g for g in take], m, nm - c.dtail)
                    for f, g in zip(pc, take):
                        if g[0] == 'atomic': f['atomic'] = 1
                    out += pc
                if c.touch == 4: out += [dict(at=m + nm - c.dtail + 1, chain=1, ins=self.touch3(p_)) for p_ in range(c.tp0, 3) if c.tst[p_] == st]
                if st in c.cpf: out.append(dict(at=m + nm - c.dtail + 2, ins=self.code_touch('L_QH' if name == 'KV' else 'L_end')))
                if st == c.pks: out += self.pack_fill(m, nm)
                if st == c.pks + 3: out.append(dict(at=m + 1, ins=[('vm', self.flag_store(245, 246, f"s{sF1}"), 'f1st')]))
                if st == 3: out += [dict(at=m + 3 + 5 * k, ins=g) for k, g in enumerate(self.wphi_reads(254))]
                if st == c.f1s - 1: g = self.f1_issue()[0]; out += [dict(at=m + nm - 30, ins=g[:-1]), dict(at=m + nm - c.dtail, chain=1, ins=g[-1:])]
                if st == c.f1s:
                    chk = [dict(at=m + c.f1c + 2 * k, ins=[it]) for k, it in enumerate(self.f1_check())]
                    out += chk
                    if c.bt: out += [dict(at=m + c.f1c + 26 + c.btsp * k, ins=g) for k, g in enumerate(self.btouch())]
                if st == 9 and name == 'KV': out.append(dict(at=m + 4, ins=self.record(self.tag_issue)))
                if st == 8:
                    if poison: out += self.paced(poison, m, 30)
                    self.bg0 = max(m + c.bgs, (m + c.f1c + 8) if c.f1s == 8 else 0)
                return out
            return f
        self.bg0 = 9999; self.wphi_addr(254)
        self.stream(mf, reads, [], {st: mksync(st) for st in range(10)}, name=name, bg=lambda m: (lambda u: m >= self.bg0 and u < self.ulim))
        self.stamp(1); self.stamp(11, 2)
        self.typ = name
        if c.dly == (1 if name == 'KV' else 2): e(f's_sleep {c.dlyn}')
        self.ph2_pre()

    def ph2_pre(self):
        e = self.e
        mk_srd(e, SM, pB2, 1280); mk_srd(e, SPK, pOUT, 2048 * 1280)
        e(f"""s_mul_i32 s{sM0}, s{sNB}, 160
        s_and_b32 s{sM0+1}, s{sNB}, 1
        s_lshl_b32 s{sM0+2}, s{sM0+1}, 5
        s_add_u32 s{sM0+2}, s{sM0+2}, s{sM0}
        s_xor_b32 s{sM0+1}, s{sM0+1}, 1
        s_lshl_b32 s{sM0+1}, s{sM0+1}, 7
        s_add_u32 s{sM0+1}, s{sM0+1}, s{sM0}
        s_min_u32 s{sM0+3}, s{sW}, 1
        s_mul_i32 s{sM0+3}, s{sM0+3}, 1280
        s_sub_u32 s{SM+2}, 1280, s{sM0+3}
        s_lshr_b32 s{sM0+5}, s{sRB}, 1
        s_lshl_b32 s{sM0+3}, s{sM0+5}, 11
        s_add_u32 s{sM0+3}, s{sM0+3}, {F4}
        s_add_u32 s{sM0+4}, s{sM0+3}, 1024
        v_and_b32 v235, 7, v0
        v_lshlrev_b32 v235, 7, v235""")
        e("v_lshlrev_b32 v7, 4, v2\nv_lshlrev_b32 v8, 3, v2")
        e.vmop(f"buffer_load_dwordx4 v[224:227], v7, {srd(SM)}, s{sM0+2} offen", 'b2')
        e.vmop(f"buffer_load_dwordx4 v[228:231], v7, {srd(SM)}, s{sM0+2} offen offset:64", 'b2')
        e.vmop(f"buffer_load_dwordx2 v[232:233], v8, {srd(SM)}, s{sM0+1} offen", 'b2')
    def poll4a_issue(self): self.e.vmop(self.poll_issue(235, 252, 2, None, f"s{sM0+3}"), 'p4a')

    def poll4b_issue(self): self.e.vmop(self.poll_issue(235, 252, 2, None, f"s{sM0+4}"), 'p4b')
    def poll4b_check(self):
        e = self.e
        self.stamp(10)
        e.wait(vm='p4b')
        for l in self.poll_check([(235, 252, 2, f"s{sM0+4}")]): e(l)
        self.stamp(11)
        self.gate[1] = True; self.g_loads()
        for _ in range(self.c.burst): self.try_issue(self.m, True)
    def g_loads(self):
        e = self.e
        e(f"s_lshl_b32 s{sT0}, s{sRB}, 10\ns_add_u32 s{sT0}, s{sT0}, {GB}\nv_lshlrev_b32 v7, 4, v1")
        for jj in range(4):
            e(f"v_subrev_u32 v8, v6, v{236+jj}\nv_lshrrev_b32 v8, 2, v8\nv_add_u32 v8, v8, v7")
            e.vmop(f"buffer_load_dword v{241+jj}, v8, {srd(SWS)}, s{sT0} offen sc1", 'g')
    def bias2(self):
        e = self.e; BI = 96
        e.wait(vm='b2')
        for t in range(5):
            for h in range(2):
                s_ = 224 + 2 * t + h
                e(f"v_lshlrev_b32 v{BI+4*t+2*h}, 16, v{s_}\nv_and_b32 v{BI+4*t+2*h+1}, 0xffff0000, v{s_}")

    def ph2_begin(self, pool):
        e = self.e; c = self.c
        e.wait(vm='p4a')
        for l in self.poll_check([(235, 252, 2, f"s{sM0+3}")]): e(l)
        self.pool = pool; self.busy = []; self.Aloc = {}; self.Bl = dict(self.Bloc); self.Acur = {}
        groups = [(0, 1), (2, 3), (4, 5), (6, 7), (8, 9), (10, 11), (12, 13), (14, 15), (16, 17, 18)]
        self.mf = [(i, t, j) for g in groups for t in range(5) for j in range(4) for i in g]
        fA, lA, fB, lB = {}, {}, {}, {}
        for m, (i, t, j) in enumerate(self.mf):
            fA.setdefault((i, j), m); lA[(i, j)] = m; fB.setdefault((i, t), m); lB[(i, t)] = m
        self.lA, self.lB = lA, lB
        w = [('A', k, fA[k] if k[0] < 14 else (280 if k[0] < 16 else 320) - c.vlead - 1, lA[k]) for k in fA]
        w += [('S', k, fB[k], lB[k]) for k in fB if self.Bl[k] and self.Bl[k][0] == 'l']
        w += [('B', k, fB[k], lB[k]) for k in fB if self.Bl[k] is None]
        self.fB = fB
        self.work = sorted(w, key=lambda x: (x[2] // 40 * 40 + x[1][0] % 2 * 4 + x[1][1]) if (x[0] == 'A' and c.aord and x[1][0] < 14) else x[2]); self.gate = {0: True, 1: False, 2: False, 3: False}; self.Atxt = {}; self.lastiss = -99; self.m = 0
        for _ in range(c.a0): self.try_issue(0, True)

    def try_issue(self, m, force=False, nos=False):
        e = self.e; c = self.c; pool = self.pool
        cls = lambda i: 0 if i < 10 else (1 if i < 14 else 2 if i < 16 else 3)
        for w in self.work:
            kind, k, dl, last = w
            if kind == 'A' and not self.gate[cls(k[0])]: continue
            if kind == 'S' and (nos or dl - m > 16 or self.Border.index(k) in self.Bpend): continue
            if kind != 'S' and not force and dl - m >= 12 and e.t - e.tvm < (c.S2 if dl - m >= c.urg else c.S3): continue
            if kind == 'P':
                self.Bpend.remove(k); self.emit_items(self.B_take([k])[0]); self.work.remove(w); return True
            ok = [p for p in pool if p[1] > last and p not in self.busy and (p[0][0] == 'v' or kind != 'A' or k[0] < 14)]
            if not (kind == 'A' and k[0] >= 14): ok.sort(key=lambda p: p[0][0] == 'v' and m > 150)
            if len(ok) < (1 if dl - m <= 40 else 4 if kind == 'A' else 7): continue
            p = ok[0]; pool.remove(p); loc = p[0]; self.until[loc] = p[1]
            if kind == 'A':
                i, j = k; sr = sAT if i % 2 == 0 else sAT2
                if self.Acur.get(sr) != i:
                    e(self.soff(sr, i, 'A')); self.Acur[sr] = i
                e.vmop(f"buffer_load_dwordx4 {R(loc)}, v{236+j}, {srd(SWS)}, s{sB if c.xA == 1 and i < 14 else 41 if c.xA == 2 else sr} offen sc1", ('A', k)); self.Aloc[k] = loc
                self.Atxt[k] = self.soff(sT1, i, 'A').split("\n") + [ f"buffer_load_dwordx4 {R(loc)}, v{236+j}, {srd(SWS)}, s{sT1} offen sc1"]
            elif kind == 'B':
                self.emit_items(self.B_items(k, loc)); self.Bl[k] = loc
            else:
                e.wait(vm=('B', k))
                e.lgop(f"ds_read_b128 {R(loc)}, v234 offset:{self.Bl[k][1]*1024}", ('S', k)); self.Bl[k] = loc
            if kind != 'S': self.lastiss = m
            if c.verbose > 1: print(f'{kind}{k}@{m}->{dl}', end=' ')
            self.work.remove(w); return True
        return False

    def phase2(self, hooks):
        e = self.e; c = self.c
        ACC = 16; BI = 96; pool = self.pool; mf = self.mf; Bl = self.Bl; Aloc = self.Aloc
        mtrans = min(m for m, x in enumerate(mf) if x[0] >= 14)
        if c.verbose: print("B loads left for phase 2:", len(self.Bpend))
        hooks = {k: v for k, v in hooks.items() if k >= 0}
        for u in self.Bpend:
            k = self.Border[u]; self.work.append(('P', u, self.fB[k] - (20 if self.Bloc[k][0] == 'l' else 0), 0))
        self.work.sort(key=lambda x: (x[2] // 40 * 40 + x[1][0] % 2 * 4 + x[1][1]) if (x[0] == 'A' and c.aord and x[1][0] < 14) else x[2])
        e(f"s_add_u32 s{sT0}, s88, {L_BL}\nv_add_u32 v234, s{sT0}, v6")
        pool += [[('v', r), 999] for r in (224, 228)]
        if c.dly == (3 if self.typ == 'KV' else 4): e(f's_sleep {c.dlyn}')
        seen = set(); vchk = {280: (14, 15), 320: (16, 17, 18)}
        aq = []
        lastH = {}; firstO = {}; lastO = {}
        for m, (i, t, j) in enumerate(mf):
            if i < 14: lastH[(j, t)] = m
            else: firstO.setdefault((j, t), m); lastO[(j, t)] = m
        g0 = min(lastH.values()) - 10
        aq.append([g0, g0 + 4, ('wvm', 'g')])
        for jj in range(4): aq += [[g0, g0 + 8, ('x', self.tag_strip(241 + jj))]]
        for jj in range(4): aq += [[g0, g0 + 12, ('x', f"v_sub_f32 v{241+jj}, 1.0, v{241+jj}")]]
        for k in sorted(lastH, key=lambda k: lastH[k]):
            jj, tt = k; d = ACC + (jj * 5 + tt) * 4
            for q in range(4): aq.append([lastH[k] + 3, firstO[k] - 2, ('x', f"v_mul_f32 v{d+q}, v{241+jj}, v{d+q}")])
        adr = []
        for jj in range(1, 4):
            adr += [f"s_add_u32 s{sT0}, s{sW}, {jj}", f"s_and_b32 s{sT0}, s{sT0}, 3", f"s_mul_i32 s{sT0}, s{sT0}, 15360",
                    f"s_add_u32 s{sT0}, s{sT0}, {L_RED + (jj-1)*5120}", f"v_add_u32 v{8+jj}, s{sT0}, v6"]
        adr += [l.strip() for l in f"""s_mul_i32 s{sT0}, s{sW}, 15360
        s_add_u32 s{sT0}, s{sT0}, {L_RED}
        v_add_u32 v8, s{sT0}, v6
        s_lshl_b32 s{sT0}, s{sRB}, 2
        s_add_u32 s{sT0}, s{sT0}, s{sW}
        s_mul_i32 s{sT0}, s{sT0}, {16*1280}
        s_add_u32 s{sT3}, s{sT0}, s{sM0+2}
        s_add_u32 s{sT2}, s{sT0}, s{sM0+1}
        v_mul_u32_u24 v12, 1280, v1
        v_lshl_add_u32 v13, v2, 3, v12
        v_lshl_add_u32 v12, v2, 4, v12""".split("\n")]
        for l in adr: aq.append([c.adr0, 325, ('x', l)])
        for k in sorted(lastO, key=lambda k: lastO[k]):
            jj, tt = k
            if jj: aq.append([lastO[k] + 3, 999, ('lg', f"ds_write_b128 v{8+jj}, {vr(ACC+(jj*5+tt)*4)} offset:{tt*1024}", 'rw')])
        self.aq = aq
        for m, (i, t, j) in enumerate(mf):
            self.m = m
            if m == mtrans: self.stamp(7)
            assert (i, j) in Aloc and Bl[(i, t)] and Bl[(i, t)][0] != 'l', (m, i, t, j)
            assert not any(a[1] < m for a in aq), (m, aq[0])
            e.wait(vm=[('A', (i, j)), ('B', (i, t))], lg=('S', (i, t)))
            d = ACC + (j * 5 + t) * 4
            cc = vr(d) if (j, t) in seen else vr(BI + 4 * t); seen.add((j, t))
            e(f"v_mfma_f32_16x16x32_bf16 {vr(d)}, {R(Bl[(i, t)])}, {R(Aloc[(i, j)])}, {cc}")
            k0 = len(e.ins)
            for loc, last in ((Aloc[(i, j)], self.lA[(i, j)]), (Bl[(i, t)], self.lB[(i, t)])):
                if last == m: pool.append([loc, self.until.get(loc, 999) if self.until.get(loc, 999) > m else 999])
            if m == 40: pool.extend([[('v', BI + 4 * k), 999] for k in range(5)])
            if m == 200 and c.dly == (5 if self.typ == 'KV' else 6): e(f's_sleep {c.dlyn}')
            if m == c.o1: self.gate[2] = True
            if m == c.o2: self.gate[3] = True
            if m + 1 + c.vlead in vchk:
                mv = m + 1 + c.vlead; ks = [(ii, jj) for ii in vchk[mv] for jj in range(4)]
                assert all(k in Aloc for k in ks), (m, ks)
                vq = [('wvm', [('A', k) for k in ks])] + [('x', l) for l in self.valid_check(sum([self.Atxt[k] for k in ks], []), [Aloc[k][1] + q for k in ks for q in range(4)], 7)]
                if mv == 280: vq = [('st', 12, 1)] + vq + [('st', 13, 1), ('open',)]
                aq[:0] = [[m, mv - 1, it] for it in vq]
            if m in hooks: hooks[m]()
            self.try_issue(m)
            while any(w[2] - m < 4 for w in self.work) and self.try_issue(m): pass
            while True:
                av = [a for a in aq if a[0] <= m]
                if not av: break
                hurry = any(sum(1 for b in aq if b[1] <= a[1]) > 2 * (a[1] - m) for a in aq if a[1] < 999)
                a = min(av, key=lambda a: a[1])
                if len(e.ins) - k0 >= 2 and not hurry: break
                if a[2][0] == 'lg' and any(x.kind in ('dsw', 'dsr', 'vload', 'dma') for x in e.ins[k0:]): break
                aq.remove(a)
                if a[2][0] == 'open':
                    self.gate[3] = True
                    for _ in range(c.burst3): self.try_issue(m, True)
                elif a[2][0] == 'call': a[2][1]()
                else: self.emit_items([a[2]])
        assert not self.work, self.work
        self.stamp(8)
        for a in aq: self.emit_items([a[2]])
        e.wait(lg_all=True); e("s_barrier")
        for t in range(5):
            for s_ in range(3): e.lgop(f"ds_read_b128 {vr(116+(t*3+s_)*4)}, v8 offset:{s_*5120+t*1024}", ('rr', t))
        for t in range(5):
            e.wait(lg=('rr', t)); d = ACC + t * 4; r = 116 + t * 12
            e(f"""v_pk_add_f32 v[{d}:{d+1}], v[{d}:{d+1}], v[{r}:{r+1}]
            v_pk_add_f32 v[{d+2}:{d+3}], v[{d+2}:{d+3}], v[{r+2}:{r+3}]
            v_pk_add_f32 v[{r+4}:{r+5}], v[{r+4}:{r+5}], v[{r+8}:{r+9}]
            v_pk_add_f32 v[{r+6}:{r+7}], v[{r+6}:{r+7}], v[{r+10}:{r+11}]
            v_pk_add_f32 v[{d}:{d+1}], v[{d}:{d+1}], v[{r+4}:{r+5}]
            v_pk_add_f32 v[{d+2}:{d+3}], v[{d+2}:{d+3}], v[{r+6}:{r+7}]
            v_cvt_pk_bf16_f32 v{96+2*t}, v{d}, v{d+1}
            v_cvt_pk_bf16_f32 v{97+2*t}, v{d+2}, v{d+3}""")
            if t == 1: e.vmop(f"buffer_store_dwordx4 v[96:99], v12, {srd(SPK)}, s{sT3} offen {c.osc}", 'o')
            if t == 3: e.vmop(f"buffer_store_dwordx4 v[100:103], v12, {srd(SPK)}, s{sT3} offen offset:64 {c.osc}", 'o')
            if t == 4: e.vmop(f"buffer_store_dwordx2 v[104:105], v13, {srd(SPK)}, s{sT2} offen {c.osc}", 'o')
        self.stamp(9)
        e("s_endpgm")

    def build(self):
        e = self.e
        self.prologue()
        st = (list(e.vm), list(e.lg))
        self.until = {}
        self.prog_KV()
        e.vm, e.lg = list(st[0]), list(st[1])
        self.until = {}
        self.prog_QH()
        e("\n".join(self.tail))
        e("L_end:\ns_endpgm")
        body = e.finish()
        hdr = open('cdna_kernels/' + NAME + '.s.ref').read().split('; Override launch')[0]
        K = NAME + "_kernel"
        out = hdr + "; Generated by a hand-written Python generator (persistent fused kernel; see comments in the generator).\n"
        out += "; @launch grid=(256,1,1) block=(256,1,1) lds=163840\n"
        out += f'.amdgcn_target "amdgcn-amd-amdhsa--gfx950"\n.text\n.globl {K}\n.p2align 8\n.type {K},@function\n{K}:\n' + body
        out += f""".fill 64, 4, 0xbf800000
.section .rodata,"a"
.p2align 6
.amdhsa_kernel {K}
  .amdhsa_next_free_vgpr 512
  .amdhsa_next_free_sgpr 102
  .amdhsa_accum_offset 256
  .amdhsa_group_segment_fixed_size 0
  .amdhsa_kernarg_size 104
  .amdhsa_user_sgpr_count 2
  .amdhsa_user_sgpr_kernarg_segment_ptr 1
  .amdhsa_system_sgpr_workgroup_id_x 1
.end_amdhsa_kernel
"""
        return out

for k_, v_ in dict(rot=3, par=0, bk=0, dfr=1, kpl=120, khs=0, kb4=10, qb2=6, qb3=6, qfo=0, a0q=12, kp4=1, dly=0, dlyn=16, kvb=64, VC=64, cnt=0, cpf=(), aord=1, nochk=0, skip=0, fast=1, n1=0, quota=28, pkl=0, tp0=1, tst=(0, 0, 1), sp1=24, tlb=0, tlb2=0, pks=3, pke=0, f1s=8, bt=0, btsp=20, bgs=4, qleft=0, kpre=180, kord=0, kgb=1, tmask=7, wbl=0, exit_at=-1, only=0, dstamp=0, xsc='', wsc='', psc='nt', pss='sc1', xA=0, S=48, S2=32, urg=50, S3=0, kb3=8, xB=0, mix=0, perm=0, kf1=60, pe=20, pe2=20, dtail=4, qb0=14, qb1=22, se=10, a0=14, ap=4, osc='sc1 nt', touch=1, kvring=3, f1c=10,
                   f4at=20, pa=100, pb=144, p3=30, c3=58, r1=30, r2=70, rspan=24, kbeg=0, kb1=20, kpa=60, mo=79, p1q=100, c1q=150, Sa=64, kb2=6, kleft=99, Sg=100, o2=226, o1=210, vlead=14, adr0=205, burst3=12, sleep2=1, f4k=-1, p1=130, c1=158, burst=4).items():
    setattr(Cfg, k_, v_)

def generate(**kw):
    c = Cfg()
    for k, v in kw.items(): setattr(c, k, v)
    g = Gen(c); g.e.VC = c.VC; t = g.build()
    return t, g

if __name__ == "__main__":
    kw = {}
    for a_ in sys.argv[2:]:
        k, v = a_.split('='); kw[k] = tuple(map(int, v.split(','))) if ',' in v else int(v, 0) if v.lstrip('-')[0].isdigit() else v.replace('+', ' ')
    t, g = generate(**kw)
    open(sys.argv[1], 'w').write(t)
    print("instructions:", len(g.e.ins), "nops added:", g.e.nop_added)
```

```python
import sys, math
from emit import Emit
NAME = "gated_mix__linear_kernel_hedgehog__dense_activation_gelu__prompt"

TAG = 0x0
F1 = 0x18000
F2 = 0x2000; F3 = 0x6000; F4 = 0xa000; F5 = 0x12000
STAMP = 0x1000000
GB = 0x280000
PP = 0x40000; PSZ = 15360
FIN = 0x240000; FSZ = 15360
PB = 0x300000
A2 = 0x600000
OOB = 0x7ff00000

K1 = 1024
QH_ST = 46 * K1; KV_ST = 44 * K1
MISC = 154 * K1
L_WPHI = MISC; L_GATE = MISC + 3200; L_BIASKV = MISC + 4480; L_BIASQH = MISC + 3200
L_PACK = 138 * K1
WH0 = 114 * K1; WH5 = 74 * K1
L_PHI = 0; RSP = 352; L_V = 128 * RSP; RSV = 224
L_BL = 72 * K1
NL = 18
L_RED = 0
L_FIN = 64 * K1

sW = 3
SX, SQ, S1, SWS, SPK, SM = 4, 8, 12, 16, 20, 24
pX, pQKV, pPHI, pWO, pBX, pW1, pB1, pW2, pB2, pGATE, pOUT, pDBG, pWS = [32 + 2 * i for i in range(13)]
sTAG = 58
sMT, sHG, sRB, sNB = 60, 61, 62, 63
sE = 64
sT0, sT1, sT2, sT3, sT4, sT5 = 74, 75, 76, 77, 78, 79
sM0 = 80
sBT, sAT, sB9, sA9, sAT2 = 100, 101, 86, 87, 55
sAo, sBo, sA8, sB8 = 44, 45, 56, 57
sKW, sK1 = 89, 90
sF1 = 91
sPKD = 92
sA, sB = 96, 97
sC0, sC1 = 98, 99
sP0 = 28

PKA = 200
TB = 10; TBM = (1 << TB) - 1; sTB = 58
AW = 204
def srd(r): return f"s[{r}:{r+3}]"
def vr(r, n=4): return f"v[{r}:{r+n-1}]" if n > 1 else f"v{r}"
def ar(r, n=4): return f"a[{r}:{r+n-1}]"
def R(loc, n=4): return (vr if loc[0] == 'v' else ar)(loc[1], n)
def fl(x):
    import struct
    return hex(struct.unpack('<I', struct.pack('<f', x))[0])

class Cfg:
    rot = 1; map2 = 1; stamps = 0; LA = 12; spin = 200000; codepf = 1; lag = 2; th1 = 2; th2 = 4; minlead = 4; verbose = 0; sleep = 1

sKA, sKB = 0, 1
def mk_srd(e, r, p, nbytes):
    e(f"s_mov_b32 s{r}, s{p}\ns_and_b32 s{r+1}, s{p+1}, 0xffff\ns_mov_b32 s{r+2}, {nbytes}\ns_mov_b32 s{r+3}, 0x20000")

class Gen:
    def __init__(self, cfg):
        self.c = cfg; self.e = Emit(); self.tail = []; self.uid = 0; self.nstamp = 0
    def record(self, fn):
        real = self.e
        class Rec:
            def __init__(r): r.items = []; r.lg = []; r.vm = []
            def __call__(r, t):
                for l in t.strip("\n").split("\n"):
                    if l.strip(): r.items.append(('x', l.strip()))
            def vmop(r, t, tag=None): r.items.append(('vm', t, tag))
            def lgop(r, t, tag=None): r.items.append(('lg', t, tag))
        rec = Rec(); self.e = rec
        try: fn()
        finally: self.e = real
        return rec.items
    def cnt(self):
        if not self.c.cnt: return [], []
        self.ncnt = getattr(self, 'ncnt', 0) + 1; k = self.ncnt - 1
        post = ["s_load_dwordx2 s[46:47], s[40:41], 88", f"s_sub_u32 s54, {self.c.spin}, s54", "s_lshl_b32 s54, s54, 12", "s_add_u32 s54, s54, 1", "s_waitcnt lgkmcnt(0)",
                "v_mov_b32 v14, s54", "v_mov_b32 v15, 0", "s_mov_b64 exec, 1", f"global_atomic_add v15, v14, s[46:47] offset:{k*4}", "s_mov_b64 exec, -1"]
        return [], post
    def lab(self, p):
        self.uid += 1; return f"L_{p}_{self.uid}"
    def stamp(self, i, grp=1):
        if self.c.dstamp and grp == 1:
            slot = self.dmap.get(i)
            if slot is None: return
            e = self.e
            e(f"s_memrealtime s[{sC0}:{sC1}]\ns_load_dwordx2 s[46:47], s[40:41], 88\ns_waitcnt lgkmcnt(0)\nv_mov_b32 v14, s{sC0}\nv_mov_b32 v15, 0"); e.lg = []
            e("s_cmp_eq_u32 s3, 0\ns_cselect_b64 exec, 1, 0")
            L = self.lab('ds'); e(f"s_cbranch_execz {L}")
            e(f"global_atomic_umax v15, v14, s[46:47] offset:{slot*4}")
            if i == 0: e(f"v_mov_b32 v14, s54\nglobal_atomic_umax v15, v14, s[46:47] offset:4\nv_not_b32 v14, v14\nglobal_atomic_umax v15, v14, s[46:47] offset:0")
            e(f"{L}:\ns_mov_b64 exec, -1")
            return
        if not self.c.stamps or (i and self.c.stamps != grp): return
        if self.c.only and i not in (0, self.c.only): return
        e = self.e
        e(f"s_memrealtime s[{sC0}:{sC1}]\ns_memtime s[46:47]\ns_waitcnt lgkmcnt(0)"); e.lg = []
        e(f"v_mov_b32 v14, s{sC0}\nv_mov_b32 v15, s46")
        e(f"s_lshl_b32 s{sC0}, s2, 2\ns_add_u32 s{sC0}, s{sC0}, s{sW}\ns_lshl_b32 s{sC0}, s{sC0}, 7\ns_add_u32 s{sC0}, s{sC0}, {STAMP}")
        e.vmop(f"buffer_store_dwordx2 v[14:15], v245, {srd(SWS)}, s{sC0} offen offset:{i*8}", 'stamp')
        if self.c.exit_at == i and grp == 1: e("s_endpgm")
        if i == 0:
            e(f"v_mov_b32 v14, s54\nv_mov_b32 v15, s40")
            e.vmop(f"buffer_store_dwordx2 v[14:15], v245, {srd(SWS)}, s{sC0} offen offset:{15*8}", 'stamp')

    def pstamp(self, i):
        if self.c.stamps == 3: self.e(f"s_memtime s[100:101]\ns_waitcnt lgkmcnt(0)\nv_mov_b32 v{(248,249,250,251,235)[i]}, s100")
    def pstamp_flush(self):
        if self.c.stamps != 3: return
        e = self.e
        e(f"s_lshl_b32 s{sC0}, s2, 2\ns_add_u32 s{sC0}, s{sC0}, s{sW}\ns_lshl_b32 s{sC0}, s{sC0}, 7\ns_add_u32 s{sC0}, s{sC0}, {STAMP}")
        for i in range(5): e.vmop(f"buffer_store_dword v{(248,249,250,251,235)[i]}, v245, {srd(SWS)}, s{sC0} offen offset:{(2+i)*8+4} sc1", 'stamp')
    def dump(self, name, regs):
        if getattr(self.c, 'dbg', None) != name: return
        e = self.e
        e(f"s_lshl_b32 s{sBT}, s2, 2\ns_add_u32 s{sBT}, s{sBT}, s{sW}\ns_lshl_b32 s{sBT}, s{sBT}, 14\ns_add_u32 s{sBT}, s{sBT}, 0x2000000\nv_lshlrev_b32 v7, 2, v0")
        for i, r in enumerate(regs):
            e.vmop(f"buffer_store_dword v{r}, v7, {srd(SWS)}, s{sBT} offen offset:{(i%16)*256}", 'dbg')
            if i % 16 == 15: e(f"s_add_u32 s{sBT}, s{sBT}, 4096")
        e.wait(vm='dbg'); self.Bcur = None

    def poll_issue(self, vaddr, vdst, n, tag, soff="0"):
        suf = {2: 'dwordx2', 4: 'dwordx4'}[n]
        return f"buffer_load_{suf} {vr(vdst, n)}, v{vaddr}, {srd(SWS)}, {soff} offen sc1"
    def poll_check(self, loads):
        Ls, Lb = self.lab('slow'), self.lab('back')
        cmps = []; ors = []; k = 0
        prs = ['vcc', 's[28:29]', 's[30:31]', 's[46:47]']
        for (va, vd, n, so) in loads:
            for h in range(n // 2):
                cmps.append(f"v_cmp_ne_u64 {prs[k]}, s[{sTAG}:{sTAG+1}], v[{vd+2*h}:{vd+2*h+1}]")
                if k: ors.append(f"s_or_b64 vcc, vcc, {prs[k]}")
                k += 1
        cmps = cmps[::-1] if False else cmps
        fast = cmps + ors + [f"s_cbranch_vccnz {Ls}\n{Lb}:" if not (self.c.nochk & 1) else f"{Lb}:"]
        t = [f"{Ls}:", f"s_mov_b32 s54, {self.c.spin}", f"{Ls}_l:"]
        if self.c.sleep: t.append(f"s_sleep {self.c.sleep}")
        for (va, vd, n, so) in loads: t.append(self.poll_issue(va, vd, n, None, so))
        t += ["s_waitcnt vmcnt(0)"] + cmps + ors
        t += ["s_sub_u32 s54, s54, 1", f"s_cbranch_vccz {Ls}_x", "s_cmp_lg_u32 s54, 0", f"s_cbranch_scc1 {Ls}_l", f"{Ls}_x:"] + self.cnt()[1] + ["s_nop 4", f"s_branch {Lb}"]
        self.tail += t
        return fast
    def tag_check(self, reload, regs, acc):
        Ls, Lb = self.lab('slow'), self.lab('back')
        regs = list(regs); L = [f"v_xor_b32 v{acc}, s{sTB}, v{regs[0]}"]
        for r in regs[1:]: L.append(f"v_bitop3_b32 v{acc}, v{r}, s{sTB}, v{acc} bitop3:0xbe")
        L += [f"v_and_b32 v{acc}, {TBM}, v{acc}", f"v_cmp_ne_u32 vcc, 0, v{acc}"]
        t = [f"{Ls}:", f"s_mov_b32 s54, {self.c.spin}", f"{Ls}_l:"]
        if self.c.sleep: t.append(f"s_sleep {self.c.sleep2}")
        t += list(reload) + ["s_waitcnt vmcnt(0)"] + L
        t += ["s_sub_u32 s54, s54, 1", f"s_cbranch_vccz {Ls}_x", "s_cmp_lg_u32 s54, 0", f"s_cbranch_scc1 {Ls}_l", f"{Ls}_x:"] + self.cnt()[1] + ["s_nop 4", f"s_branch {Lb}"]
        self.tail += t
        return L + [f"s_cbranch_vccnz {Ls}\n{Lb}:" if not (self.c.nochk & 2) else f"{Lb}:"]
    def tag_put(self, r, src=None): return f"v_bfi_b32 v{r}, s42, v246, v{r if src is None else src}"
    def tag_strip(self, r): return f"v_and_b32 v{r}, {hex(0xffffffff ^ TBM)}, v{r}"
    def valid_check(self, reload, regs, acc):
        Ls, Lb = self.lab('slow'), self.lab('back')
        regs = list(regs); L = [f"v_max3_u32 v{acc}, v{regs[0]}, v{regs[1]}, v{regs[2 if len(regs) > 2 else 1]}"]
        r = regs[3:]
        for i in range(0, len(r), 2): L.append(f"v_max3_u32 v{acc}, v{acc}, v{r[i]}, v{r[min(i+1, len(r)-1)]}")
        L.append(f"v_cmp_eq_u32 vcc, -1, v{acc}")
        t = [f"{Ls}:", f"s_mov_b32 s54, {self.c.spin}", f"{Ls}_l:"]
        if self.c.sleep: t.append(f"s_sleep {self.c.sleep2}")
        t += list(reload) + ["s_waitcnt vmcnt(0)"] + L
        t += ["s_sub_u32 s54, s54, 1", f"s_cbranch_vccz {Ls}_x", "s_cmp_lg_u32 s54, 0", f"s_cbranch_scc1 {Ls}_l", f"{Ls}_x:"] + self.cnt()[1] + ["s_nop 4", f"s_branch {Lb}"]
        self.tail += t
        return L + [f"s_cbranch_vccnz {Ls}\n{Lb}:" if not (self.c.nochk & 4) else f"{Lb}:"]
    def flag_store(self, vaddr, vtag, soff="0"):
        return f"buffer_store_dwordx2 {vr(vtag, 2)}, v{vaddr}, {srd(SWS)}, {soff} offen sc1"

    def stream(self, mf, reads, fill, syncs=None, LA=None, name='', bg=None):
        e = self.e; LA = LA or self.c.LA
        reads = sorted(reads, key=lambda r: r[1]); rp = 0; synced = -1 if syncs else 99
        fq = sorted(fill, key=lambda f: f['at'])
        self.sid = getattr(self, 'sid', 0) + 1; sid = self.sid
        start = len(e.ins)
        def add_fill(items):
            lo = max([f['at'] for f in fq if f.get('chain')], default=-99)
            for f in items:
                if f.get('chain'): f['at'] = lo = max(f['at'], lo)
            fq.extend(items); fq.sort(key=lambda f: f['at'])
        def rd():
            nonlocal rp
            e.lgop(reads[rp][0], ('rd', sid, rp)); rp += 1
        if syncs: add_fill(syncs[0](0)); synced = 0
        while rp < len(reads) and reads[rp][1] < 8 and reads[rp][2] <= synced: rd()
        last_read = -99
        dl_of = {('rd', sid, i): r[1] for i, r in enumerate(reads)}
        def due(m): return [t for t in e.lg if t in dl_of and dl_of[t] <= m]
        ismem = lambda it: it[0] in ('vm', 'lg')
        for m in range(len(mf)):
            d = due(m)
            if d: e.wait(lg=d)
            e(mf[m])
            can = lambda: rp < len(reads) and reads[rp][2] <= synced and reads[rp][3] <= m and len(e.lg) < 15
            lead = lambda: reads[rp][1] - m
            if syncs and rp < len(reads) and reads[rp][2] > synced and m - last_read >= self.c.lag and lead() <= LA:
                synced = reads[rp][2]
                assert not any(it[0] == 'vm' and it[2] == ('S', synced) for f in fq for it in f['ins'])
                add_fill(syncs[synced](m + 1))
                if can(): rd(); last_read = m
                continue
            w = 1 if due(m + 1) else 0
            n = w; mem = 0
            if fq and fq[0]['at'] <= m:
                f = fq[0]
                if f.get('atomic'):
                    self.emit_items(f['ins']); n += len(f['ins']); mem += sum(map(ismem, f['ins'])); fq.pop(0)
                elif ismem(f['ins'][0]):
                    self.emit_items([f['ins'].pop(0)]); n += 1; mem += 1
                    if not f['ins']: fq.pop(0)
            if bg and mem == 0:
                k0 = len(e.ins)
                if self.bg_try(bg(m)): n += len(e.ins) - k0; mem += 1
            if can() and lead() <= LA and (mem == 0 or (lead() <= LA - self.c.th1 and not w)):
                rd(); n += 1; mem += 1; last_read = m
            if can() and mem == 1 and not w and lead() <= LA - self.c.th2:
                rd(); n += 1; mem += 1
            while can() and lead() <= self.c.minlead: rd(); n += 1; mem += 1; last_read = m
            while (n < 2 or (fq and fq[0]['at'] <= m - 2 and n < 3)) and fq and fq[0]['at'] <= m + 2 and not fq[0].get('atomic') and not ismem(fq[0]['ins'][0]):
                f = fq[0]; self.emit_items([f['ins'].pop(0)]); n += 1
                if not f['ins']: fq.pop(0)
            assert rp >= len(reads) or reads[rp][1] > m + 1, (m, reads[rp])
        for f in fq: self.emit_items(f['ins'])
        if self.c.verbose:
            tot = 0; g = None
            for i in e.ins[start:]:
                if i.label: continue
                if i.kind == 'mfma':
                    if g is not None: tot += max(16, g)
                    g = 8; prevmem = False
                elif g is not None:
                    mm = i.kind in ('dsr', 'dsw', 'vload', 'vstore', 'dma')
                    g += 8 if (mm and prevmem) else 4; prevmem = mm
            print(f"stream {name}: {len(mf)} mfma, est clks {tot} (ideal {16*len(mf)})")

    def prologue(self):
        e = self.e; c = self.c
        if c.stamps or c.dstamp: e("s_memrealtime s[54:55]\ns_memtime s[98:99]")
        e(f"""s_cmp_ge_u32 s2, 256
        s_cbranch_scc1 L_end
        s_load_dwordx16 s[32:47], s[0:1], 0
        s_load_dwordx4 s[48:51], s[0:1], 64
        s_load_dwordx2 s[52:53], s[0:1], 80
        s_load_dwordx2 s[56:57], s[0:1], 96""")
        if c.codepf:
            e(f"""s_getpc_b64 s[{sA}:{sB}]
            L_pf:
            s_lshr_b32 s{sT0}, s2, 3
            s_lshl_b32 s{sT0}, s{sT0}, 11
            v_lshrrev_b32 v1, 4, v0
            v_lshlrev_b32 v1, 7, v1
            v_add_u32 v1, s{sT0}, v1
            v_cmp_gt_u32 vcc, L_end-L_pf, v1
            v_cndmask_b32 v1, 0, v1, vcc""")
            e.vmop(f"global_load_dword v255, v1, s[{sA}:{sB}]", 'pf')
        e(f"""v_lshrrev_b32 v1, 6, v0
        v_and_b32 v0, 63, v0
        s_and_b32 s{sT0}, s2, 7
        v_readfirstlane_b32 s{sW}, v1
        s_lshr_b32 s{sT1}, s2, 3
        s_lshr_b32 s{sT2}, s{sT0}, 1
        s_and_b32 s{sT3}, s{sT1}, 3
        s_lshl_b32 s{sMT}, s{sT2}, 2
        s_add_u32 s{sMT}, s{sMT}, s{sT3}
        s_lshr_b32 s{sT4}, s{sT1}, 2
        s_and_b32 s{sHG}, s{sT0}, 1
        s_lshl_b32 s{sHG}, s{sHG}, 2
        s_and_b32 s{sT5}, s{sT4}, 3
        s_add_u32 s{sHG}, s{sHG}, s{sT5}""")
        if c.rot == 2:
            e(f"""s_mul_i32 s{sE}, s{sT2}, 5
            s_lshr_b32 s{sE}, s{sE}, 1
            s_and_b32 s{sT5}, s{sT0}, 1
            s_mul_i32 s{sT5}, s{sT5}, 5
            s_add_u32 s{sE}, s{sE}, s{sT5}
            s_cmp_ge_u32 s{sE}, 10
            s_cselect_b32 s{sT5}, 10, 0
            s_sub_u32 s{sE}, s{sE}, s{sT5}
            s_lshl_b32 s{sE}, s{sE}, 7""")
        elif c.rot == 3:
            e(f"s_xor_b32 s{sE}, s{sT3}, s{sT4}\ns_and_b32 s{sE}, s{sE}, 1\ns_lshl_b32 s{sE}, s{sE}, 7")
        else: e(f"s_mov_b32 s{sE}, 0")
        e(f"""v_and_b32 v1, 15, v0
        v_lshrrev_b32 v2, 4, v0
        v_bfe_u32 v3, v0, 2, 2
        v_and_b32 v4, 3, v0
        v_lshrrev_b32 v5, 3, v0
        v_lshlrev_b32 v6, 4, v0
        s_lshl_b32 s{sT2}, s{sMT}, 2
        s_add_u32 s{sT2}, s{sT2}, s{sW}
        s_mul_i32 s{sT2}, s{sT2}, {32*1280}
        v_xor_b32 v7, v2, v0
        v_and_b32 v7, 7, v7
        v_lshlrev_b32 v7, 4, v7
        v_mul_u32_u24 v8, 1280, v5
        v_add_u32 v8, s{sT2}, v8
        v_add_u32 v208, v8, v7
        v_xor_b32 v7, 64, v7
        v_add_u32 v209, v8, v7
        v_add_u32 v209, {10240-1024}, v209
        v_add_u32 v210, {2*(10240-1024)}, v208
        v_add_u32 v211, {2*(10240-1024)}, v209
        s_lshl_b32 s{sM0}, s{sW}, 12
""")
        if c.rot == 3: e(f"s_xor_b32 s{sE+1}, s{sE}, 128")
        else: e(f"s_add_u32 s{sE+1}, s{sE}, 128\ns_cmp_eq_u32 s{sE+1}, 1280\ns_cselect_b32 s{sE+1}, 0, s{sE+1}")
        for r, n in ((SX, 2048 * 1280), (SQ, 640 * 3840), (S1, 640 * 3456), (SM, 3456)): e(f"s_mov_b32 s{r+2}, {n}\ns_mov_b32 s{r+3}, 0x20000")
        e(f"s_bitcmp1_b32 s2, 7\ns_cbranch_scc1 L_QH")

    def kernarg_wait(self):
        e = self.e
        e("s_waitcnt lgkmcnt(0)"); self.pstamp(0)
        e(f"s_load_dwordx2 s[{sTAG}:{sTAG+1}], s[{pWS}:{pWS+1}], {TAG}")
        if self.c.stamps: e('s_mov_b32 s40, s98')
        if self.c.dstamp or self.c.cnt: e('s_mov_b64 s[40:41], s[0:1]')
        for r, p in ((SX, pX), (SM, pB1), (SQ, pQKV), (S1, pW1)): e(f"s_mov_b32 s{r}, s{p}\ns_and_b32 s{r+1}, s{p+1}, 0xffff")

    def pack_setup(self):
        e = self.e
        e(f"""s_lshl_b32 s{sT0}, s2, 2
        s_add_u32 s{sT0}, s{sT0}, s{sW}
        s_mul_i32 s{sT2}, s{sT0}, 886
        s_lshr_b32 s{sT2}, s{sT2}, 16
        s_mul_i32 s{sT1}, s{sT2}, 74
        s_sub_u32 s{sT1}, s{sT0}, s{sT1}
        s_sub_u32 s{sT3}, s{sT1}, 54
        s_and_b32 s{sT3}, s{sT3}, 63
        s_mul_i32 s{sT4}, s{sT3}, 52
        s_lshr_b32 s{sT4}, s{sT4}, 8
        s_mul_i32 s{sT5}, s{sT4}, 5
        s_sub_u32 s{sT5}, s{sT3}, s{sT5}
        s_mul_i32 s{sBT}, s{sT4}, 160
        s_lshr_b32 s{sAT}, s{sT5}, 1
        s_mul_i32 s{sAT}, s{sAT}, 80
        s_and_b32 s{sT3}, s{sT5}, 1
        s_lshl_b32 s{sT3}, s{sT3}, 3
        s_add_u32 s{sAT}, s{sAT}, s{sT3}
        s_cmp_eq_u32 s{sT5}, 4
        s_cselect_b32 s{sAT}, 16, s{sAT}
        s_cselect_b32 s{sT3}, 80, 4
        s_add_u32 s{sBT}, s{sBT}, s{sAT}
        s_lshl_b32 s{sAT}, s{sT1}, 5
        s_cmp_lt_u32 s{sT1}, 54
        s_cselect_b32 s{sBT}, s{sAT}, s{sBT}
        s_cselect_b32 s{sT3}, 16, s{sT3}""")
        self.csel(sT4, 4 * 1280 - 1024, 20 * 1280 - 1024)
        self.csel(SPK + 2, 1728 * 1280, 640 * 1280)
        e(f"""s_mov_b32 s{SPK+3}, 0x20000
        s_cmp_lt_u32 s{sT0}, 740
        s_cselect_b32 s{SPK+2}, s{SPK+2}, 0
        s_mul_i32 s{sBT}, s{sBT}, 1280
        s_lshl_b32 s{sAT}, s{sT2}, 7
        s_add_u32 s32, s{sBT}, s{sAT}
        s_add_u32 s33, s32, s{sT4}
        s_add_u32 s34, s33, s{sT4}
        s_add_u32 s35, s34, s{sT4}
        v_lshrrev_b32 v9, 5, v0
        v_mul_lo_u32 v9, v9, s{sT3}
        v_and_b32 v10, 3, v5
        v_add_u32 v9, v9, v10
        v_mul_u32_u24 v9, 1280, v9
        v_and_b32 v10, 7, v0
        v_lshl_add_u32 v252, v10, 4, v9
        v_lshlrev_b32 v9, 10, v2
        v_lshl_add_u32 v9, v3, 7, v9
        v_add_u32 v9, s{sM0}, v9
        v_add_u32 v9, {L_PACK}, v9""")
        for g in range(2):
            e(f"""s_lshl_b32 s{sT3}, s{sT2}, 1
            s_add_u32 s{sT3}, s{sT3}, {g}
            s_mul_i32 s{sT4}, s{sT3}, 52
            s_lshr_b32 s{sT4}, s{sT4}, 8
            s_mul_i32 s{sT5}, s{sT4}, 5
            s_sub_u32 s{sT5}, s{sT3}, s{sT5}
            s_cmp_eq_u32 s{sT5}, 2
            s_cselect_b32 s{sT3}, 3, 4
            s_cselect_b32 s{sAT}, 32, 8
            v_lshlrev_b32 v10, s{sT3}, v4
            v_add_u32 v{PKA+2*g}, v9, v10
            v_add_u32 v{PKA+1+2*g}, s{sAT}, v{PKA+2*g}
            s_mul_i32 s{sT4}, s{sT4}, 740
            s_mul_i32 s{sAT}, s{sT1}, 5
            s_add_u32 s{sT4}, s{sT4}, s{sAT}""")
            for a_ in range(2):
                d = sPKD + 2 * g + a_
                e(f"""s_lshl_b32 s{sT3}, s{sT5}, 1
                s_add_u32 s{sT3}, s{sT3}, {a_}
                s_add_u32 s{d}, s{sT3}, 364
                s_cmp_eq_u32 s{sT3}, 5
                s_cselect_b32 s{d}, 374, s{d}
                s_cmp_lt_u32 s{sT3}, 5
                s_cselect_b32 s{d}, s{sT3}, s{d}
                s_add_u32 s{d}, s{d}, s{sT4}
                s_lshl_b32 s{d}, s{d}, 10
                s_add_u32 s{d}, s{d}, {PB}
                s_cmp_lt_u32 s{sT0}, 740
                s_cselect_b32 s{d}, s{d}, {OOB}""")
        e(f"""s_cmp_lt_u32 s{sT1}, 54
        s_cselect_b32 s{SPK}, s{pW2}, s{pWO}
        s_cselect_b32 s{SPK+1}, s{pW2+1}, s{pWO+1}
        s_and_b32 s{SPK+1}, s{SPK+1}, 0xffff""")

    def common_setup(self):
        e = self.e; c = self.c
        e(f"s_and_b32 s{sT0}, s2, 7\ns_lshr_b32 s{sT1}, s2, 3\ns_lshr_b32 s{sT2}, s{sT0}, 1\ns_and_b32 s{sT3}, s{sT1}, 3\ns_lshr_b32 s{sT4}, s{sT1}, 2")
        if c.mix: e(f"s_lshr_b32 s{sT5}, s{sT1}, 2\ns_and_b32 s{sT5}, s{sT5}, 4\ns_xor_b32 s{sT5}, s{sT5}, s{sT1}" if c.map2 else
                    f"s_lshr_b32 s{sT5}, s{sT1}, 4\ns_xor_b32 s{sT5}, s{sT5}, s{sT1}")
        if c.map2:
            if c.mix: e(f"s_and_b32 s{sRB}, s{sT5}, 7\ns_bfe_u32 s{sT5}, s{sT1}, 0x20002")
            else: e(f"s_and_b32 s{sRB}, s{sT1}, 7\ns_lshr_b32 s{sT5}, s{sT1}, 3")
            e(f"""s_lshl_b32 s{sT2}, s{sT2}, 3
            s_add_u32 s{sRB}, s{sRB}, s{sT2}
            s_and_b32 s{sNB}, s{sT0}, 1
            s_lshl_b32 s{sNB}, s{sNB}, 2
            s_add_u32 s{sNB}, s{sNB}, s{sT5}""")
        else:
            if c.mix: e(f"s_bfe_u32 s{sNB}, s{sT1}, 0x30001\ns_and_b32 s{sT3}, s{sT5}, 1\ns_lshr_b32 s{sT5}, s{sT1}, 4\ns_bfe_u32 s{sT4}, s{sT1}, 0x10001\ns_xor_b32 s{sT5}, s{sT5}, s{sT4}\ns_and_b32 s{sT3}, s{sT1}, 1\ns_lshl_b32 s{sT5}, s{sT5}, 1\ns_add_u32 s{sT3}, s{sT3}, s{sT5}")
            else: e(f"s_mov_b32 s{sNB}, s{sT4}")
            e(f"s_lshl_b32 s{sRB}, s{sT0}, 2\ns_add_u32 s{sRB}, s{sRB}, s{sT3}")
        mk_srd(e, SWS, pWS, 0x10000000); mk_srd(e, SM, pPHI, 32 * 800)
        e(f"""s_lshl_b32 s{sT3}, s{sHG}, 2
        s_add_u32 s{sT3}, s{sT3}, s{sW}
        s_mul_i32 s36, s{sT3}, 800
        s_mul_i32 s37, s{sW}, 800
        s_add_u32 s37, s37, {L_WPHI}""")
        for i in range(2, 10):
            if c.rot == 3: e(f"s_add_u32 s{sE+i}, s{sE+i-2}, 256")
            else: e(f"s_add_u32 s{sE+i}, s{sE+i-1}, 128\ns_cmp_eq_u32 s{sE+i}, 1280\ns_cselect_b32 s{sE+i}, 0, s{sE+i}")
        e(f"""s_mul_i32 s{sB}, s{sNB}, 74
        s_add_u32 s{sB}, s{sB}, s{sW}
        s_mul_i32 s{sB}, s{sB}, 5120
        s_add_u32 s{sB}, s{sB}, {PB}
        s_mul_i32 s{sA}, s{sRB}, 74
        s_add_u32 s{sA}, s{sA}, s{sW}
        s_lshl_b32 s{sA}, s{sA}, 12
        s_add_u32 s{sA}, s{sA}, {A2}
        s_xor_b32 s{sT0}, s{sRB}, s{sNB}
        s_and_b32 s{sT0}, s{sT0}, {min(c.par, 1)}
        s_mul_i32 s{sT1}, s{sT0}, {4*5120}
        s_add_u32 s{sB8}, s{sB}, {32*5120}
        s_add_u32 s{sB8}, s{sB8}, s{sT1}
        s_add_u32 s{sB9}, s{sB}, {36*5120}
        s_sub_u32 s{sB9}, s{sB9}, s{sT1}
        s_mul_i32 s{sT1}, s{sT1}, {max(c.par, 1)}
        s_sub_u32 s{sBo}, s{sB}, s{sT1}
        s_add_u32 s{sB}, s{sB}, s{sT1}
        s_lshl_b32 s{sT1}, s{sT0}, 14
        s_add_u32 s{sA8}, s{sA}, {32*4096}
        s_add_u32 s{sA8}, s{sA8}, s{sT1}
        s_add_u32 s{sA9}, s{sA}, {36*4096}
        s_sub_u32 s{sA9}, s{sA9}, s{sT1}
        s_mul_i32 s{sT1}, s{sT1}, {max(c.par, 1)}
        s_sub_u32 s{sAo}, s{sA}, s{sT1}
        s_add_u32 s{sA}, s{sA}, s{sT1}
        s_lshr_b32 s{sT1}, s{sW}, 1
        s_and_b32 s{sT3}, s{sT1}, s{sT0}
        s_cselect_b32 s{sB8}, {OOB}, s{sB8}
        s_cselect_b32 s{sA8}, {OOB}, s{sA8}
        s_andn2_b32 s{sT3}, s{sT1}, s{sT0}
        s_cselect_b32 s{sB9}, {OOB}, s{sB9}
        s_cselect_b32 s{sA9}, {OOB}, s{sA9}
        s_mul_i32 s88, s{sW}, {NL*1024}
        v_add_u32 v240, 4096, v6""")
        for j in range(4):
            e(f"s_add_u32 s{sT3}, s{sW}, {j}\ns_and_b32 s{sT3}, s{sT3}, 3\ns_lshl_b32 s{sT3}, s{sT3}, 10\nv_add_u32 v{236+j}, s{sT3}, v6")
        e(f"""s_lshl_b32 s{sF1}, s2, 7
        s_add_u32 s{sF1}, s{sF1}, {F1}
        s_cmp_eq_u32 s{sW}, 0
        s_cselect_b32 s{sF1}, s{sF1}, {OOB}
        v_mov_b32 v245, {OOB}
        v_cmp_eq_u32 vcc, 0, v0
        v_cndmask_b32 v245, v245, 0, vcc""")

    def touch(self):
        e = self.e; c = self.c
        e(f"""s_cmp_eq_u32 s{sW}, 0
        s_cselect_b64 s[28:29], s[{SX}:{SX+1}], s[{S1}:{S1+1}]
        s_cselect_b32 s30, s{SX+2}, s{S1+2}
        s_cselect_b32 s{sT0}, 12, 0
        s_add_u32 s{sT0}, s{sT0}, 68
        s_cmp_eq_u32 s{sW}, 1
        s_cselect_b64 s[28:29], s[{SQ}:{SQ+1}], s[28:29]
        s_cselect_b32 s30, s{SQ+2}, s30
        s_cselect_b32 s{sT0}, 75, s{sT0}
        s_lshl_b32 s{sT1}, 1, s{sW}
        s_and_b32 s{sT1}, s{sT1}, {c.tmask}
        s_cselect_b32 s30, s30, 0
        s_mov_b32 s31, 0x20000
        s_mul_i32 s{sT1}, s{sT0}, s2
        s_lshl_b32 s{sT1}, s{sT1}, 7
        v_lshlrev_b32 v10, 7, v0
        v_add_u32 v11, 64, v0
        v_cmp_gt_u32 vcc, s{sT0}, v11
        v_lshlrev_b32 v11, 7, v11
        v_mov_b32 v14, {OOB}
        v_cndmask_b32 v11, v14, v11, vcc""")
        e.vmop(f"buffer_load_dword v255, v10, s[28:31], s{sT1} offen", 'pf')
        e.vmop(f"buffer_load_dword v255, v11, s[28:31], s{sT1} offen", 'pf')

    def touch3_setup(self):
        e = self.e
        e(f"""s_cmp_eq_u32 s{sW}, 0
        s_cselect_b64 s[28:29], s[{SX}:{SX+1}], s[{S1}:{S1+1}]
        s_cselect_b32 s30, s{SX+2}, s{S1+2}
        s_cselect_b32 s{sT0}, 24, 21
        s_mov_b32 s44, {64*3456}
        s_cselect_b32 s44, 128, s44
        s_cselect_b64 vcc, -1, 0
        s_cmp_eq_u32 s{sW}, 1
        s_cselect_b64 s[28:29], s[{SQ}:{SQ+1}], s[28:29]
        s_cselect_b32 s30, s{SQ+2}, s30
        s_cselect_b32 s{sT0}, 23, s{sT0}
        s_cselect_b32 s44, {64*3840}, s44
        s_cmp_eq_u32 s{sW}, 3
        s_cselect_b32 s30, 0, s30
        s_mov_b32 s31, 0x20000
        s_mul_i32 s{sT1}, s{sT0}, s2
        v_add_u32 v10, s{sT1}, v0
        v_mul_u32_u24 v11, 21846, v10
        v_lshrrev_b32 v11, 16, v11
        v_mul_u32_u24 v11, {1280-384}, v11
        v_lshlrev_b32 v10, 7, v10
        v_add_u32 v11, v11, v10
        v_cndmask_b32 v10, v10, v11, vcc
        v_mov_b32 v14, {OOB}
        v_cmp_gt_u32 vcc, s{sT0}, v0
        v_cndmask_b32 v251, v14, v10, vcc""")
    def touch3(self, part):
        return [('x', f"s_mul_i32 s45, s44, {1 + 3 * part}"), ('vm', "buffer_load_dword v255, v251, s[28:31], s45 offen", 'pf')]

    def tlb_touch(self):
        e = self.e; c = self.c
        if not c.tlb: return
        if c.tlb == 1:
            e(f"v_lshlrev_b32 v10, 18, v0\nv_add_u32 v10, 0x1f800, v10")
            e.vmop(f"buffer_load_dword v255, v10, {srd(SWS)}, 0 offen sc1", 'pf')
        else:
            e(f"""s_mul_i32 s{sT0}, s{sNB}, {74*5120}
            s_add_u32 s{sT0}, s{sT0}, {PB}
            s_mul_i32 s{sT1}, s{sRB}, {74*4096}
            s_add_u32 s{sT1}, s{sT1}, {A2 - 8*65536}
            s_mul_i32 s{sT3}, s{sMT}, {2*74*4096}
            s_add_u32 s{sT3}, s{sT3}, {A2 - 16*65536}
            v_lshlrev_b32 v10, 16, v0
            v_mov_b32 v11, s{sT0}
            v_mov_b32 v14, s{sT1}
            v_cmp_le_u32 vcc, 8, v0
            v_cndmask_b32 v11, v11, v14, vcc
            v_mov_b32 v14, s{sT3}
            v_cmp_le_u32 vcc, 16, v0
            v_cndmask_b32 v11, v11, v14, vcc
            v_add_u32 v11, v11, v10
            v_subrev_u32 v14, 32, v0
            v_mul_u32_u24 v14, 0x18000, v14
            v_cmp_le_u32 vcc, 32, v0
            v_cndmask_b32 v10, v11, v14, vcc""")
            e.vmop(f"buffer_load_dword v255, v10, {srd(SWS)}, 0 offen sc1", 'pf')
        mk_srd(e, 28, pOUT, 2048 * 1280)
        e("v_lshlrev_b32 v10, 16, v0")
        e.vmop("buffer_load_dword v255, v10, s[28:31], 0 offen sc1", 'pf')
        if c.tlb2:
            for p, n in ((pB2, 1280),):
                mk_srd(e, 28, p, n); e.vmop("buffer_load_dword v255, v6, s[28:31], 0 offen", 'pf')

    def tag_wait(self):
        e = self.e
        e(f"""s_waitcnt lgkmcnt(0)
        s_add_u32 s{sTAG}, s{sTAG}, 1
        v_mov_b32 v247, s{sTAG+1}
        v_mov_b32 v246, s{sTAG}
        s_movk_i32 s42, {TBM}""")
        if self.c.xA == 2: e(f's_mov_b32 s41, {OOB}')
        e.lg = []
    def pack_loads(self):
        return [([('x', f"s_add_u32 m0, s{sM0}, {L_PACK}")] if i == 0 else []) +
                [('vm', f"buffer_load_dwordx4 v252, {srd(SPK)}, s{32+i} offen offset:{i*1024} {self.c.psc} lds", 'packld')] for i in range(4)]
    def pack_fill(self, m, nm):
        f = []
        for i in range(8):
            t, h = i >> 1, i & 1
            f.append(dict(at=m + 2 + 2 * i, ins=[('lg', f"ds_read_b64_tr_b16 a[{160+4*t+2*h}:{161+4*t+2*h}], v{PKA+t} offset:{(t>>1)*64+512*h}", 'pk')]))
        return f
    def wb_item(self):
        return [[('wvm', 'pkst'), ('vm', "buffer_wbl2 sc1", 'pkst')]] if self.c.wbl else []
    def pack_stores(self):
        return [([('wlg', 'pk')] if i == 0 else []) + [('vm', f"buffer_store_dwordx4 {ar(160+4*i)}, v6, {srd(SWS)}, s{sPKD+i} offen {self.c.pss}", 'pkst')] for i in range(4)]

    def btouch(self):
        pre = [l.strip() for l in f"""s_and_b32 s{sT0}, s{sRB}, 7
        s_lshl_b32 s{sT0}, s{sT0}, 2
        s_add_u32 s{sT0}, s{sT0}, s{sW}
        s_mul_i32 s{sT0}, s{sT0}, {93*128}
        s_mul_i32 s{sT1}, s{sNB}, {74*5120}
        s_add_u32 s{sT0}, s{sT0}, s{sT1}
        s_add_u32 s{sT0}, s{sT0}, {PB}
        v_lshlrev_b32 v248, 7, v0
        v_min_u32 v249, 28, v0
        v_lshlrev_b32 v249, 7, v249""".split("\n")]
        n = self.c.bt
        out = [[('x', l) for l in pre]]
        if n == 1:
            out[0] += [('vm', f"buffer_load_dword v255, v248, {srd(SWS)}, s{sT0} offen sc1", 'pf')]
            out.append([('x', f"s_add_u32 s{sT0}, s{sT0}, 8192"), ('vm', f"buffer_load_dword v255, v249, {srd(SWS)}, s{sT0} offen sc1", 'pf')])
        else:
            out[0] += [('x', "v_min_u32 v249, 23, v0"), ('x', "v_lshlrev_b32 v249, 7, v249")]
            for i in range(4): out.append([('vm', f"buffer_load_dword v255, v249, {srd(SWS)}, s{sT0} offen offset:0 sc1", 'pf'), ('x', f"s_add_u32 s{sT0}, s{sT0}, 3072")])
        return out
    def code_touch(self, endlab):
        Lp = self.lab('pc')
        return [('x', f"s_getpc_b64 s[30:31]\n{Lp}:"), ('x', f"s_bfe_u32 s{sT0}, s2, 0x40003"), ('x', f"s_lshl_b32 s{sT0}, s{sT0}, 2"), ('x', f"s_add_u32 s{sT0}, s{sT0}, s{sW}"),
                ('x', f"s_lshl_b32 s{sT0}, s{sT0}, 9"), ('x', "v_and_b32 v7, 3, v0"), ('x', f"v_lshl_add_u32 v7, v7, 7, s{sT0}"),
                ('x', f"v_cmp_gt_u32 vcc, {endlab}-{Lp}, v7"), ('x', "v_cndmask_b32 v7, 0, v7, vcc"), ('vm', "global_load_dword v255, v7, s[30:31]", 'pf')]
    def f1_issue(self):
        pre = [l.strip() for l in f"""s_mul_i32 s{sT0}, s{sNB}, 5
        s_add_u32 s{sT1}, s{sT0}, 4
        s_lshr_b32 s{sT0}, s{sT0}, 2
        s_mul_i32 s{sT0}, s{sT0}, 74
        s_lshr_b32 s{sT0}, s{sT0}, 2
        s_lshr_b32 s{sT1}, s{sT1}, 2
        s_mul_i32 s{sT1}, s{sT1}, 74
        s_add_u32 s{sT1}, s{sT1}, 73
        s_lshr_b32 s{sT1}, s{sT1}, 2
        v_add_u32 v235, s{sT0}, v0
        v_min_u32 v235, s{sT1}, v235
        v_lshlrev_b32 v235, 7, v235
        s_mov_b32 s{sT0}, {F1}""".split("\n")]
        return [[('x', l) for l in pre] + [('vm', self.poll_issue(235, 248, 2, None, f"s{sT0}"), 'f1p')]]
    def f1_check(self):
        return [('wvm', 'f1p')] + [('x', t) for t in self.poll_check([(235, 248, 2, f"s{sT0}")])]
    def tag_issue(self):
        e = self.e
        e(f"s_or_b32 s55, s2, s{sW}\ns_min_u32 s55, s55, 1\ns_mul_i32 s55, s55, {OOB}\ns_add_u32 s55, s55, {F1}\nv_lshlrev_b32 v200, 7, v0")
        for i in range(1, 4): e(f"v_add_u32 v{200+i}, {8192*i}, v200")
        self.tgl = [(200 + i, 248 + 2 * i, 2, "s55") for i in range(4)]
        for p in self.tgl: e.vmop(self.poll_issue(p[0], p[1], 2, None, p[3]), 'tg')
    def tag_update(self):
        e = self.e; L = self.lab('tg')
        e.wait(vm='tg')
        e(f"s_or_b32 s{sT0}, s2, s{sW}\ns_cbranch_scc1 {L}")
        for l in self.poll_check(self.tgl): e(l)
        e(self.flag_store(245, 246, str(TAG)))
        e(f"{L}:")

    def attn_voff(self, dst, cexpr_base, colbase_s):
        e = self.e
        e(f"""v_mul_u32_u24 v10, 6554, v9
        v_lshrrev_b32 v10, 16, v10
        v_mad_i32_i24 v11, v10, -10, v9""")
        self.swap23(10, 12)
        e(f"""v_mul_u32_u24 v10, 3840, v10
        v_lshl_add_u32 v10, v11, 4, v10
        v_add_u32 v{dst}, s{colbase_s}, v10""")
    def swap23(self, r, t):
        self.e(f"""v_lshrrev_b32 v{t}, 1, v{r}
        v_xor_b32 v{t}, v{t}, v{r}
        v_and_b32 v{t}, 4, v{t}
        v_mul_u32_u24 v{t}, 3, v{t}
        v_xor_b32 v{r}, v{r}, v{t}""")

    def small_dma(self, sr, vaddr, soff, ldsaddr, nlanes, tag, m0expr=None):
        e = self.e
        e(m0expr or f"s_mov_b32 m0, {ldsaddr}")
        if nlanes < 64: e(f"s_mov_b64 exec, {hex((1 << nlanes) - 1)}" if nlanes <= 32 else f"s_mov_b32 exec_hi, {hex((1 << (nlanes-32)) - 1)}")
        e.vmop(f"buffer_load_dwordx4 v{vaddr}, {srd(sr)}, {soff} offen lds", tag)
        if nlanes < 64: e("s_mov_b64 exec, -1")

    def csel(self, d, a, b):
        inl = lambda x: isinstance(x, str) or -16 <= x <= 64
        if inl(a) or inl(b): self.e(f"s_cselect_b32 s{d}, {a}, {b}")
        else: self.e(f"s_mov_b32 s{d}, {b}\ns_cselect_b32 s{d}, {a}, s{d}")

    def init_B(self):
        self.Bloc = {}; self.Bq = []
        order = [(i, t) for i in range(19) for t in range(5)]
        for u, k in enumerate(order):
            if u < 64: self.Bloc[k] = ('a', 4 * u)
            elif u < 64 + NL: self.Bloc[k] = ('l', u - 64)
            else: self.Bloc[k] = None
        self.Border = order; self.Bpend = list(range(64 + NL)); self.Bcur = None; self.Acur = None
    def koff(self, i): return 4 * i - (2 if i >= 10 else 0)
    def soff(self, d, i, w):
        e_, o_, s8, s9, unit = (sB, sBo, sB8, sB9, 5120) if w == 'B' else (sA, sAo, sA8, sA9, 4096)
        if i in (8, 9): return f"s_mov_b32 s{d}, s{s8 if i == 8 else s9}"
        if i == 18: return f"s_add_u32 s{d}, s{e_}, s{o_}\ns_lshr_b32 s{d}, s{d}, 1\ns_add_u32 s{d}, s{d}, {self.koff(i)*unit}"
        idx = i if i < 10 else i - 10 if i < 14 else i - 14
        return f"s_add_u32 s{d}, s{e_ if idx & max(self.c.par, 1) == 0 else o_}, {self.koff(i)*unit}"
    def B_items(self, k, loc):
        i, t = k; it = []
        if self.Bcur != i:
            it.append(('x', self.soff(sBT, i, 'B'))); self.Bcur = i
        va, imm = (6, t * 1024) if t < 4 else (240, 0)
        if loc[0] == 'l':
            assert L_BL + loc[1]*1024 - imm >= 0
            it.append(('x', f"s_add_u32 m0, s88, {L_BL + loc[1]*1024 - imm}"))
            it.append(('vm', f"buffer_load_dwordx4 v{va}, {srd(SWS)}, s{sBT} offen offset:{imm} sc1 lds", ('B', k)))
        else:
            it.append(('vm', f"buffer_load_dwordx4 {R(loc)}, v{va}, {srd(SWS)}, s{sBT} offen offset:{imm} sc1", ('B', k)))
        return it
    def B_take(self, us):
        out = []
        for u in us:
            k = self.Border[u]; out.append(self.B_items(k, self.Bloc[k]))
            if self.c.xB == 1: out[-1] = [('x', 's_nop 0')]
            if self.c.xB == 2: out[-1] = [(it[0], it[1].replace(f"s{sBT} offen", "s43 offen"), it[2]) if it[0] == 'vm' else it for it in out[-1]]
            if self.c.xB == 3: out[-1] = [(it[0], it[1].replace(f"s{sBT} offen", f"s{sB} offen"), it[2]) if it[0] == 'vm' else it for it in out[-1]]
        return out
    def ph2_bg(self, u): pass
    def bg_try(self, allowed, S=None):
        e = self.e
        if e.t - e.tvm < (S or self.c.S): return False
        if allowed == self.ph2_bg: return self.try_issue(self.m, True, True)
        for u in self.Bpend:
            if allowed(u):
                self.Bpend.remove(u); self.emit_items(self.B_take([u])[0]); return True
        return False
    def emit_items(self, items):
        e = self.e
        for it in items:
            if it[0] == 'vm': e.vmop(it[1], it[2])
            elif it[0] == 'lg': e.lgop(it[1], it[2])
            elif it[0] == 'wvm': e.wait(vm=it[1])
            elif it[0] == 'wlg': e.wait(lg=it[1])
            elif it[0] == 'st': self.stamp(it[1], it[2])
            else: e(it[1])
    def valu(self, lines, side=None, every=1, bg=None, S=None):
        n = 0
        for l in lines:
            if isinstance(l, str): self.e(l)
            else: self.emit_items([l])
            n += 1
            if side and n % every == 0: self.emit_items(side.pop(0))
            if bg: self.bg_try(bg, S)

    def interleave(self, items, side, every):
        W = ('s_cmp', 's_add', 's_sub', 's_and', 's_andn2', 's_or', 's_xor', 's_lshl', 's_lshr', 's_bitcmp', 's_min', 's_max')
        Rd = ('s_cselect', 's_addc', 's_subb', 's_cbranch_scc')
        live = [False] * len(items); l = False
        for i in range(len(items) - 1, -1, -1):
            live[i] = l
            t = items[i][1]
            if t.startswith(Rd): l = True
            elif t.startswith(W): l = False
        n = 0
        for i, it in enumerate(items):
            self.emit_items([it]); n += 1
            if side and n >= every and not live[i]: self.emit_items(side.pop(0)); n = 0
        for g in side: self.emit_items(g)

    def gelu_lines(self, X, Y, T, O):
        U = [X, X + 2, Y, Y + 2]; L = []
        P = lambda r: f"v[{r}:{r+1}]"
        for i in range(4): L.append(f"v_pk_mul_f32 {P(T+2*i)}, {P(U[i])}, {P(U[i])}")
        for i in range(4): L.append(f"v_pk_fma_f32 {P(T+2*i)}, {P(T+2*i)}, v[14:15], s[{sC0}:{sC1}] op_sel_hi:[1,0,0]")
        for i in range(4): L.append(f"v_pk_mul_f32 {P(T+2*i)}, {P(T+2*i)}, {P(U[i])}")
        for i in range(8): L.append(f"v_exp_f32 v{T+i}, v{T+i}")
        for i in range(4): L.append(f"v_pk_add_f32 {P(T+2*i)}, {P(T+2*i)}, 1.0 op_sel_hi:[1,0]")
        for i in range(8): L.append(f"v_rcp_f32 v{T+i}, v{T+i}")
        for i in range(4): L.append(f"v_pk_mul_f32 {P(T+2*i)}, {P(T+2*i)}, {P(U[i])}")
        for i in range(4): L.append(f"v_cvt_pk_bf16_f32 v{O+i}, v{T+2*i}, v{T+2*i+1}")
        return L if not (self.c.skip & 1) else L[-8:]
    def gelu_consts(self):
        c1 = -2.0 * math.sqrt(2.0 / math.pi) * math.log2(math.e)
        self.e(f"s_mov_b32 s{sC0}, {fl(c1)}\nv_mov_b32 v14, {fl(c1 * 0.044715)}")
    def softmax_lines(self, Pp, E, PH):
        L = []; P = lambda r: f"v[{r}:{r+1}]"
        L += [f"v_max3_f32 v8, v{Pp}, v{Pp+1}, v{Pp+2}", f"v_min3_f32 v10, v{Pp}, v{Pp+1}, v{Pp+2}"]
        for i in range(3, 19, 2): L += [f"v_max3_f32 v8, v8, v{Pp+i}, v{Pp+i+1}", f"v_min3_f32 v10, v10, v{Pp+i}, v{Pp+i+1}"]
        L += [f"v_max_f32 v8, v8, v{Pp+19}", f"v_min_f32 v10, v10, v{Pp+19}"]
        L += [f"v_mul_f32_e64 v8, -v8, s{sC0}", f"v_mul_f32 v10, s{sC0}, v10"]
        for i in range(10):
            L.append(f"v_pk_fma_f32 {P(E+2*i)}, {P(Pp+2*i)}, s[{sC0}:{sC1}], v[8:9] op_sel_hi:[1,0,0]")
            L.append(f"v_pk_fma_f32 {P(E+20+2*i)}, {P(Pp+2*i)}, s[{sC0}:{sC1}], v[10:11] op_sel_hi:[1,0,0] neg_lo:[1,0,0] neg_hi:[1,0,0]")
        for i in range(40): L.append(f"v_exp_f32 v{E+i}, v{E+i}")
        L += [f"v_pk_add_f32 v[8:9], {P(E)}, {P(E+2)}", f"v_pk_add_f32 v[10:11], {P(E+20)}, {P(E+22)}"]
        for i in range(2, 10): L += [f"v_pk_add_f32 v[8:9], v[8:9], {P(E+2*i)}", f"v_pk_add_f32 v[10:11], v[10:11], {P(E+20+2*i)}"]
        L += ["v_add_f32 v8, v8, v9", "v_add_f32 v10, v10, v11", "v_rcp_f32 v8, v8", "v_rcp_f32 v10, v10"]
        for i in range(10): L.append(f"v_pk_mul_f32 {P(E+2*i)}, {P(E+2*i)}, v[8:9] op_sel_hi:[1,0]")
        for i in range(10): L.append(f"v_pk_mul_f32 {P(E+20+2*i)}, {P(E+20+2*i)}, v[10:11] op_sel_hi:[1,0]")
        for i in range(20): L.append(f"v_cvt_pk_bf16_f32 v{PH+i}, v{E+2*i}, v{E+2*i+1}")
        return L if not (self.c.skip & 2) else [l if 'cvt' in l else '' for l in L]
    def wphi_addr(self, va):
        self.e(f"v_mul_u32_u24 v{va}, 800, v2\nv_mad_u32_u24 v{va}, v3, 40, v{va}\nv_add_u32 v{va}, {L_WPHI}, v{va}")
    def wphi_reads(self, va):
        return [[('lg', f"ds_read_b64_tr_b16 a[{AW+2*(dg*5+fg)}:{AW+1+2*(dg*5+fg)}], v{va} offset:{dg*160 + fg*8}", 'wphi')] for dg in range(5) for fg in range(5)]
    def phi_mfmas(self, KQ, Pp):
        L = []
        for dg in range(5):
            for j in range(2):
                for fg in range(5):
                    d = Pp + 20 * j + 4 * fg; w = AW + 2 * (dg * 5 + fg); b = KQ + 10 * j + 2 * dg
                    L.append(f"v_mfma_f32_4x4x4_16b_bf16 {vr(d)}, a[{w}:{w+1}], v[{b}:{b+1}], {vr(d) if dg else 0}")
        return L
    def cvt_heads(self, acc0, dst, j, n=5):
        return [f"v_cvt_pk_bf16_f32 v{dst+2*t+h}, v{acc0+(t*2+j)*4+2*h}, v{acc0+(t*2+j)*4+2*h+1}" for t in range(n) for h in range(2)]
    def rho0(self, dst):
        self.e(f"v_lshrrev_b32 v{dst}, 1, v2\nv_lshl_add_u32 v{dst}, v{dst}, 4, v3\nv_and_b32 v7, 1, v2\nv_lshl_add_u32 v{dst}, v7, 2, v{dst}")
    def x_addr(self, ST, nsl=3, base=220):
        e = self.e
        e(f"""v_lshrrev_b32 v9, 1, v1
        v_xor_b32 v9, v9, v2
        v_lshlrev_b32 v9, 4, v9
        v_lshl_add_u32 v9, v1, 7, v9
        v_add_u32 v{base}, s{sM0}, v9
        v_xor_b32 v{base+1}, 64, v{base}""")
        for sl in range(1, nsl): e(f"v_add_u32 v{base+2*sl}, {sl*ST}, v{base}\nv_add_u32 v{base+1+2*sl}, {sl*ST}, v{base+1}")
    def paced(self, groups, m0, span):
        n = len(groups)
        return [dict(at=m0 + int((k + 0.2) * span / n), chain=1, ins=list(g)) for k, g in enumerate(groups)]
    def prog_QH(self):
        e = self.e; c = self.c; self.init_B(); self.dmap = {0: 3, 1: 5, 2: 7, 3: 9, 14: 11, 7: 13, 9: 15}
        e("L_QH:")
        ST = QH_ST
        e(f"""s_mul_i32 s{sKW}, s{sHG}, 320
        s_lshl_b32 s{sT0}, s{sHG}, 8
        s_add_u32 s{sT0}, s{sT0}, 384
        s_cmp_lt_u32 s{sHG}, 6
        s_cselect_b32 s{sKW}, s{sKW}, s{sT0}
        s_cselect_b32 s{sK1}, 20, 16
        s_mul_i32 s{sT2}, s{sW}, 320""")
        def dma_x(st):
            g = []
            for j in range(4):
                it = [('x', f"s_add_u32 m0, s{sM0}, {(st%3)*ST}")] if j == 0 else []
                g.append(it + [('vm', f"buffer_load_dwordx4 v{208+j}, {srd(SX)}, s{sE+st} offen offset:{j*1024} {c.xsc} lds", ('S', st))])
            return g
        def dma_a(st, i):
            it = []
            if i == 0: it = [('x', f"s_mul_i32 s{sKA}, s{sE+st}, 1920"), ('x', f"s_add_u32 m0, s{sM0+1}, {(st%3)*ST}")]
            if i == 2: it = [('x', f"s_mov_b32 m0, s{sM0+3+st%3}")]
            return it + [('vm', f"buffer_load_dwordx4 v{212+i}, {srd(SQ)}, s{sKA} offen offset:{1024 if i == 1 else 0} {c.wsc} lds", ('S', st))]
        def dma_h(st, i):
            it = []
            if i == 0: it = [('x', f"s_mul_i32 s{sKB}, s{sE+st}, 1728"), ('x', f"s_add_u32 m0, s{sM0+2}, {(st%3)*ST}")]
            if i == 4: it = [('x', "s_add_u32 m0, m0, 4096")]
            return it + [('vm', f"buffer_load_dwordx4 v{215+i}, {srd(S1)}, s{sKB} offen offset:{(i%4)*1024} {c.wsc} lds", ('S', st))]
        def dma_stage(st): return dma_x(st) + [dma_a(st, i) for i in range(3)] + [dma_h(st, i) for i in range(5)]
        if c.fast:
            self.kernarg_wait()
            if c.touch == 3: self.touch()
            for g in dma_x(0): self.emit_items(g)
            if c.touch == 5: self.touch()
            self.small_dma(SM, 6, f"s{sKW}", None, 20, 'bias', f"s_add_u32 m0, s{sT2}, {L_BIASQH}")
        e(f"""s_mul_i32 s{sT0}, s{sW}, 3
        s_lshl_b32 s{sT1}, s{sW}, 1
        s_add_u32 s{sT1}, s{sT1}, 2
        s_cmp_lt_u32 s{sW}, 2
        s_cselect_b32 s{sT0}, s{sT0}, s{sT1}
        s_lshl_b32 s{sM0+1}, s{sT0}, 10
        s_add_u32 s{sM0+1}, s{sM0+1}, 16384""")
        for sl in range(3):
            e(f"s_add_u32 s{sM0+3+sl}, s{sM0+1}, {2048 + sl*ST}\ns_cmp_lt_u32 s{sW}, 2\ns_cselect_b32 s{sM0+3+sl}, s{sM0+3+sl}, {MISC+4608}")
        e(f"s_lshl_b32 s{sT0}, s{sT0}, 6\ns_mul_i32 s{sT1}, s{sHG}, 160\ns_mul_i32 s{sM0+2}, s{sW}, 5120\ns_add_u32 s{sM0+2}, s{sM0+2}, {16384+10240}")
        for i in range(3):
            e(f"v_add_u32 v9, {64*i}, v0\nv_add_u32 v9, s{sT0}, v9")
            self.attn_voff(212 + i, None, sT1)
            if i == 1: e("v_subrev_u32 v213, 1024, v213")
            if i == 2: e(f"s_cmp_lt_u32 s{sW}, 2\ns_cselect_b32 s{sT4}, 0, {OOB}\nv_add_u32 v214, s{sT4}, v214")
            if c.fast: self.emit_items(dma_a(0, i))
        if not c.fast:
            self.kernarg_wait()
            self.small_dma(SM, 6, f"s{sKW}", None, 20, 'bias', f"s_add_u32 m0, s{sT2}, {L_BIASQH}")
            for g in dma_x(0) + [dma_a(0, i) for i in range(3)]: self.emit_items(g)
        e(f"s_mul_i32 s{sT0}, s{sW}, 320\nv_mov_b32 v14, {OOB}")
        for i in range(5):
            e(f"""v_add_u32 v9, {64*i}, v0
            v_add_u32 v9, s{sT0}, v9
            v_mul_u32_u24 v10, 3277, v9
            v_lshrrev_b32 v10, 16, v10
            v_mul_u32_u24 v11, 20, v10
            v_sub_u32 v11, v9, v11
            v_bfe_u32 v13, v10, 2, 1
            v_lshlrev_b32 v13, 1, v13
            v_xor_b32 v11, v11, v13
            v_cmp_gt_u32 vcc, s{sK1}, v11""")
            self.swap23(10, 12)
            e(f"""v_mul_u32_u24 v10, 3456, v10
            v_lshl_add_u32 v10, v11, 4, v10
            v_add_u32 v10, s{sKW}, v10
            v_subrev_u32 v10, {(i%4)*1024}, v10
            v_cndmask_b32 v{215+i}, v14, v10, vcc""")
            self.emit_items(dma_h(0, i))
        self.pstamp(1)
        if c.pke:
            self.pack_setup()
            for g in self.pack_loads(): self.emit_items(g)
        if c.touch == 1: self.touch()
        if c.touch == 4:
            self.touch3_setup()
            for p_ in range(c.tp0): self.emit_items(self.touch3(p_))
        self.pstamp(2)
        def setup():
            e = self.e
            self.x_addr(ST); self.rho0(8)
            e(f"v_mul_u32_u24 v9, 160, v8\nv_mad_u32_u24 v9, v4, 40, v9\nv_add_u32 v226, 16384, v9")
            e(f"v_mul_u32_u24 v9, 320, v8\nv_lshl_add_u32 v9, v4, 3, v9\nv_add_u32 v9, {16384+10240}, v9\nv_lshl_add_u32 v229, v7, 5, v9\nv_xor_b32 v7, 1, v7\nv_lshl_add_u32 v232, v7, 5, v9")
            for sl in (1, 2): e(f"v_add_u32 v{226+sl}, {sl*ST}, v226\nv_add_u32 v{229+sl}, {sl*ST}, v229\nv_add_u32 v{232+sl}, {sl*ST}, v232")
            self.common_setup()
            if not c.pke: self.pack_setup()
            e(f"s_mul_i32 s{sT1}, s{sW}, 320\ns_add_u32 s{sT1}, s{sT1}, {L_BIASQH}\nv_lshl_add_u32 v13, v2, 3, s{sT1}")
            e(f"""s_lshl_b32 s{sT0}, s{sMT}, 1
            s_lshr_b32 s{sT1}, s{sW}, 1
            s_add_u32 s{sT0}, s{sT0}, s{sT1}
            s_and_b32 s{sT1}, s{sW}, 1
            s_mul_i32 s{sT2}, s{sT0}, 74
            s_lshl_b32 s{sT2}, s{sT2}, 12
            s_lshl_b32 s{sT3}, s{sT1}, 11
            s_add_u32 s{sT2}, s{sT2}, s{sT3}
            s_add_u32 s{sT2}, s{sT2}, {A2}
            s_lshr_b32 s{sT4}, s{sHG}, 1
            s_mul_i32 s{sT4}, s{sT4}, 5
            s_add_u32 s{sT4}, s{sT4}, 54
            s_lshl_b32 s{sT4}, s{sT4}, 12
            s_add_u32 s{sT4}, s{sT4}, s{sT2}
            s_and_b32 s{sT5}, s{sHG}, 1
            s_lshl_b32 s38, s{sT5}, 13
            s_add_u32 s38, s38, s{sT4}
            s_add_u32 s39, s{sT4}, {4*4096}
            s_lshl_b32 s{sT5}, s{sT5}, 3
            s_add_u32 s39, s39, s{sT5}
            s_lshl_b32 s{sT0}, s{sHG}, 4
            s_add_u32 s{sT0}, s{sT0}, s{sMT}
            s_lshl_b32 s{sT0}, s{sT0}, 2
            s_add_u32 s{sT0}, s{sT0}, s{sW}
            s_lshl_b32 s{sT0}, s{sT0}, 9
            s_add_u32 s43, s{sT0}, {GB}
            v_mov_b32 v204, -1
            v_mov_b32 v205, -1
            v_mov_b32 v206, -1
            v_mov_b32 v207, -1""")
        self.interleave(self.record(setup), dma_stage(1)[:c.n1], c.pe)
        self.pstamp(3)
        if c.n1 >= 12:
            self.small_dma(SM, 6, "s36", None, 50, 'misc', "s_mov_b32 m0, s37")
            if c.touch == 2: self.touch()
            if not c.pke:
                for g in self.pack_loads(): self.emit_items(g)
        self.tag_wait(); self.pstamp(4)
        e.wait(vm='bias')
        for s_ in range(10): e.lgop(f"ds_read_b64 v[{136+2*s_}:{137+2*s_}], v13 offset:{s_*32}", ('b', s_))
        for s_ in range(10):
            a0 = 16 + (5 + s_) * 8; e.wait(lg=('b', s_))
            for h in range(2): e(f"v_lshlrev_b32 v{a0+2*h}, 16, v{136+2*s_+h}\nv_and_b32 v{a0+2*h+1}, 0xffff0000, v{136+2*s_+h}")
        self.stamp(0)
        NS = 15; nm = NS * 4; mf = []; reads = []; mfl = []; readsl = []; gs = [0, 0]
        for st in range(10):
            sl = st % 3; seen = set()
            for t in range(NS):
                lt = int(st >= 10 - c.dfq and t < 5); M, RD_ = (mf, mfl)[lt], (reads, readsl)[lt]; stg = -1 if lt else st
                wr = 168 + 8 * (gs[lt] % 4); gs[lt] += 1; m0 = len(M)
                for ks in range(2):
                    for rd in range(2):
                        if t < 5: ad, off = 226 + sl, ks * 5120 + rd * 1280 + t * 8
                        else: ad, off = (229 if (t - 5) % 2 == 0 else 232) + sl, ks * 10240 + rd * 2560 + ((t - 5) >> 1) * 64
                        RD_.append([f"ds_read_b64_tr_b16 v[{wr+4*ks+2*rd}:{wr+4*ks+2*rd+1}], v{ad} offset:{off}", m0, stg, m0 - 13])
                for j in ((1, 0) if st == 0 else (0, 1)):
                    for ks in range(2):
                        xr = 136 + (st % 2) * 16 + (j * 2 + ks) * 4; d = 16 + (t * 2 + j) * 4
                        if (lt, j, ks) not in seen:
                            seen.add((lt, j, ks)); RD_.append([f"ds_read_b128 {vr(xr)}, v{220+2*sl+ks} offset:{j*2048}", len(M), stg, (len(M) // 20) * 20 - 21 if lt else -1])
                        cc = vr(d)
                        if st == 0 and ks == 0: cc = "0" if t < 5 else vr(16 + t * 8)
                        M.append(f"v_mfma_f32_16x16x32_bf16 {vr(d)}, {vr(wr+4*ks)}, {vr(xr)}, {cc}")
        po = lambda va, off: [('vm', f"buffer_store_dwordx4 v[204:207], v{va}, {srd(SWS)}, s38 offen offset:{off} sc1", 'hst')]
        poison = [po(6, 0), po(6, 1024), po(240, 0), po(240, 1024)] + [[('vm', f"buffer_store_dwordx2 v[204:205], v6, {srd(SWS)}, s39 offen offset:{j*1024} sc1", 'hst')] for j in range(2)]
        self.ulim = 51
        self.kloop(mf, reads, nm, dma_stage, poison, 'QH')
        A51 = lambda u: u < 51; A64 = lambda u: u < 64; ALL = lambda u: True
        self.gelu_consts()
        e(f"s_lshl_b32 s{sT3}, s{sKW}, 6\ns_add_u32 s{sT3}, s{sT3}, s{sT2}")
        L = []
        for p in range(5):
            for j in range(2):
                O = 152 + 4 * ((2 * p + j) % 4)
                L += self.gelu_lines(16 + ((5 + 2 * p) * 2 + j) * 4, 16 + ((6 + 2 * p) * 2 + j) * 4, 136 + 8 * j, O)
                if j == 0:
                    if p == 4: L += [f"s_add_u32 s{sT4}, s{sT3}, {4*4096}", f"s_cmp_lt_u32 s{sHG}, 6\ns_cselect_b32 s{sT4}, s{sT4}, {OOB}"]
                    else: L.append(f"s_add_u32 s{sT4}, s{sT3}, {p*4096}")
                L.append(('vm', f"buffer_store_dwordx4 {vr(O)}, v6, {srd(SWS)}, s{sT4} offen offset:{j*1024} sc1", 'hst'))
        self.valu(L, bg=A51, S=c.Sg)
        if mfl: self.stream(mfl, readsl, [], None, name='QHlate', bg=lambda m: A51)
        e(f"""s_lshl_b32 s{sT4}, s{sMT}, 4
        s_add_u32 s{sT4}, s{sT4}, s{sHG}
        s_lshl_b32 s{sT4}, s{sT4}, 7
        s_add_u32 s{sT4}, s{sT4}, {F4}
        s_cmp_eq_u32 s{sW}, 0
        s_cselect_b32 s{sT5}, s{sT4}, {OOB}
        s_mov_b32 s{sC0}, {fl(math.log2(math.e))}""")
        def pub():
            e.wait(vm='hst'); e("s_barrier")
            e.vmop(self.flag_store(245, 246, f"s{sT5}"), 'f4st')
        if c.f4at < 0: pub(); A51 = lambda u: u < 51 or u >= 64
        self.b2_loads()
        self.valu(self.cvt_heads(16, 56, 0) + self.cvt_heads(16, 66, 1), bg=A51)
        self.stamp(2)
        if c.stamps: e(f"s_mov_b32 s{sC0}, {fl(math.log2(math.e))}")
        e.wait(lg='wphi')
        self.valu(self.phi_mfmas(56, 76), bg=A51)
        L1 = self.softmax_lines(76, 16, 116)
        if c.f4at >= 0:
            self.valu(L1[:c.f4at], bg=A64); pub()
        self.valu(L1[max(c.f4at, 0):], bg=ALL)
        L2 = self.softmax_lines(96, 16, 136)
        self.valu(L2[:c.pa], bg=ALL)
        self.poll4a_issue()
        self.valu(L2[c.pa:c.pb], bg=ALL)
        pool = [[('v', r), c.mo + 1 if r < 204 else c.p3 if r < 220 else 999] for r in list(range(204, 224, 4)) + list(range(168, 204, 4))]
        while len(self.Bpend) > c.qleft: self.bg_try(ALL, -9999)
        self.ph2_begin(pool)
        if c.stamps == 3: e(f"s_mov_b32 s{sC0}, {fl(math.log2(math.e))}")
        self.valu(L2[c.pb:], bg=ALL)
        self.stamp(3)
        pool += [[('v', r), c.mo + 1] for r in range(156, 168, 4)]
        FO = (0, 1024, 2048, 2816)
        finld = [f"buffer_load_dwordx4 {vr(204+4*i)}, v6, {srd(SWS)}, s{sKW} offen offset:{FO[i]} sc1" for i in range(4)]
        finld += [f"buffer_load_dwordx4 {vr(248+4*j)}, v13, {srd(SWS)}, s43 offen offset:{j*256} sc1" for j in range(2)]
        def h_p3():
            e(f"""s_mul_i32 s{sKW}, s{sHG}, {FSZ}
            s_mul_i32 s{sK1}, s{sW}, 3840
            s_add_u32 s{sKW}, s{sKW}, s{sK1}
            s_add_u32 s{sKW}, s{sKW}, {FIN}
            v_lshlrev_b32 v13, 4, v1""")
            for l in finld: e.vmop(l, 'fin')
        def h_c3():
            it = [('st', 4, 1)] + [('x', l) for l in f"s_lshr_b32 s{sK1}, s{sK1}, 1\ns_add_u32 s{sK1}, s{sK1}, {L_FIN}\nv_lshl_add_u32 v9, v0, 3, s{sK1}".split("\n")] + [('wvm', 'fin')]
            it += [('x', l) for l in self.tag_check(finld, list(range(204, 220)) + list(range(248, 256)), 8)] + [('st', 5, 1)]
            it += [('x', self.tag_strip(r)) for r in list(range(204, 220)) + [248, 252]] + [('x', "v_mov_b32 v250, v248"), ('x', "v_mov_b32 v251, v252")]
            for i in range(4):
                it += [('x', f"v_cvt_pk_bf16_f32 v{204+4*i}, v{204+4*i}, v{205+4*i}"), ('x', f"v_cvt_pk_bf16_f32 v{205+4*i}, v{206+4*i}, v{207+4*i}"),
                       ('lg', f"ds_write_b64 v9, v[{204+4*i}:{205+4*i}] offset:{FO[i]//2}", 'fw')]
            it += [('x', l) for l in f"v_lshlrev_b32 v13, 6, v2\nv_lshl_add_u32 v13, v4, 4, v13\nv_add_u32 v13, {L_FIN}, v13".split("\n")]
            self.aq[:0] = [[self.m, c.mo - 3, x] for x in it]
        def h_o():
            if c.p1q < 0: self.poll4b_issue()
            fr = [p for p in pool if p[0][0] == 'a'][:8]; assert len(fr) == 8; self.busy = fr
            e.wait(lg='fw'); e("s_barrier")
            self.stamp(6)
            mf = []; reads = []
            for fp in range(5):
                for dg in range(6):
                    n = fp * 6 + dg; f0 = fr[n % 8][0][1]; base = (n // 2) * 8
                    reads.append([f"ds_read_b128 {ar(f0)}, v13 offset:{(dg*5+fp)*256}", base + 2 * (n % 2), -1, base - 24])
                    for h in range(2):
                        for j in range(2):
                            d = 156 + 24 * j + 4 * dg; b = 116 + 20 * j + 2 * (2 * fp + h)
                            mf.append(f"v_mfma_f32_4x4x4_16b_bf16 {vr(d)}, a[{f0+2*h}:{f0+2*h+1}], v[{b}:{b+1}], {vr(d) if (fp or h) else 0}")
            mf2 = []
            for n in range(0, 30, 2):
                a_, b_ = mf[4*n:4*n+4], mf[4*n+4:4*n+8]
                mf2 += [a_[0], a_[1], b_[0], b_[1], a_[2], a_[3], b_[2], b_[3]]
            if c.skip & 4: mf2 = mf2[:8]; reads = reads[:2]
            self.stream(mf2, reads, [], None, LA=20, bg=lambda m: self.ph2_bg)
            for j in range(2): e(f"v_add_f32 v{8+2*j}, {fl(1e-6)}, v{156+24*j+20}")
            for j in range(2): e(f"v_rcp_f32 v{8+2*j}, v{8+2*j}")
            for j in range(2): e(f"v_mul_f32 v{8+2*j}, v{8+2*j}, v{250+j}")
            for j in range(2):
                D = 156 + 24 * j
                for i in range(10): e(f"v_pk_mul_f32 v[{D+2*i}:{D+2*i+1}], v[{D+2*i}:{D+2*i+1}], v[{8+2*j}:{9+2*j}] op_sel_hi:[1,0]")
                for i in range(10): e(f"v_cvt_pk_bf16_f32 v{D+i}, v{D+2*i}, v{D+2*i+1}")
                for i in range(10): e(f"v_min_u32 v{D+i}, -2, v{D+i}")
                e.vmop(f"buffer_store_dwordx4 {vr(D)}, v6, {srd(SWS)}, s38 offen offset:{j*1024} sc1", 'ost')
                e.vmop(f"buffer_store_dwordx4 {vr(D+4)}, v240, {srd(SWS)}, s38 offen offset:{j*1024} sc1", 'ost')
                e.vmop(f"buffer_store_dwordx2 {vr(D+8, 2)}, v6, {srd(SWS)}, s39 offen offset:{j*1024} sc1", 'ost')
            self.busy = []
            for p in pool: p[1] = 999
            pool.extend([[('v', r), 999] for r in range(116, 156, 4)])
            self.stamp(14)
        self.bias2()
        self.phase2({c.p3: h_p3, c.c3: h_c3, c.mo: h_o, c.p1q: self.poll4b_issue, c.c1q: self.poll4b_check})

    def prog_KV(self):
        e = self.e; c = self.c; self.init_B(); self.dmap = {0: 2, 1: 4, 3: 6, 4: 8, 5: 10, 7: 12, 9: 14}
        ST = KV_ST
        e(f"""s_mul_i32 s{sM0+1}, s{sW}, 5120
        s_add_u32 s{sM0+1}, s{sM0+1}, 16384
        s_lshl_b32 s{sM0+2}, s{sW}, 11
        s_add_u32 s{sM0+2}, s{sM0+2}, 36864
        s_lshl_b32 s{sKW}, s{sHG}, 7
        s_add_u32 s{sKW}, s{sKW}, {19*128}""")
        def dma_x(st):
            g = []
            for j in range(4):
                it = [('x', f"s_add_u32 m0, s{sM0}, {(st%3)*ST}")] if j == 0 else []
                g.append(it + [('vm', f"buffer_load_dwordx4 v{208+j}, {srd(SX)}, s{sE+st} offen offset:{j*1024} {c.xsc} lds", ('S', st))])
            return g
        def dma_w(st, i):
            it = []
            if i == 0: it = [('x', f"s_mul_i32 s{sKA}, s{sE+st}, 1920"), ('x', f"s_add_u32 m0, s{sM0+1}, {(st%3)*ST}")]
            if i == 4: it = [('x', "s_add_u32 m0, m0, 4096")]
            return it + [('vm', f"buffer_load_dwordx4 v{212+i}, {srd(SQ)}, s{sKA} offen offset:{(i%4)*1024} {c.wsc} lds", ('S', st))]
        def dma_h(st, i):
            it = [('x', f"s_mul_i32 s{sKB}, s{sE+st}, 1728"), ('x', f"s_add_u32 m0, s{sM0+2}, {(st%3)*ST}")] if i == 0 else []
            return it + [('vm', f"buffer_load_dwordx4 v{217+i}, {srd(S1)}, s{sKB} offen offset:{i*1024} {c.wsc} lds", ('S', st))]
        def dma_stage(st): return dma_x(st) + [dma_w(st, i) for i in range(5)] + [dma_h(st, i) for i in range(2)]
        if c.fast:
            self.kernarg_wait()
            if c.touch == 3: self.touch()
            for g in dma_x(0): self.emit_items(g)
            if c.touch == 5: self.touch()
            self.small_dma(SM, 6, f"s{sKW}", L_BIASKV, 8, 'bias')
        e(f"""s_and_b32 s{sT0}, s{sW}, 1
        s_mul_i32 s{sT0}, s{sT0}, 320
        s_lshr_b32 s{sT1}, s{sW}, 1
        s_add_u32 s{sT1}, s{sT1}, 1
        s_mul_i32 s{sT1}, s{sT1}, 1280
        s_mul_i32 s{sT3}, s{sHG}, 160
        s_add_u32 s{sT1}, s{sT1}, s{sT3}""")
        for i in range(5):
            e(f"v_add_u32 v9, {64*i}, v0\nv_add_u32 v9, s{sT0}, v9")
            self.attn_voff(212 + i, None, sT1)
            if i % 4: e(f"v_subrev_u32 v{212+i}, {(i%4)*1024}, v{212+i}")
            if c.fast: self.emit_items(dma_w(0, i))
        if not c.fast:
            self.kernarg_wait()
            self.small_dma(SM, 6, f"s{sKW}", L_BIASKV, 8, 'bias')
            for g in dma_x(0) + [dma_w(0, i) for i in range(5)]: self.emit_items(g)
        e(f"s_lshl_b32 s{sT3}, s{sW}, 4\nv_lshlrev_b32 v11, 1, v2\nv_xor_b32 v11, v11, v0\nv_and_b32 v11, 7, v11")
        for pp in range(2):
            e(f"v_add_u32 v10, {8*pp}, v5\nv_add_u32 v10, s{sT3}, v10")
            self.swap23(10, 12)
            e(f"""v_mul_u32_u24 v10, 3456, v10
            v_lshl_add_u32 v10, v11, 4, v10
            v_add_u32 v10, s{sKW}, v10
            v_subrev_u32 v{217+pp}, {pp*1024}, v10""")
            self.emit_items(dma_h(0, pp))
        mk_srd(e, 28, pGATE, 1280)
        if c.rot == 3: e(f"v_xor_b32 v9, s{sE}, v6\nv_add_u32 v11, 1024, v9")
        else: e(f"v_add_u32 v9, s{sE}, v6\nv_subrev_u32 v10, 1280, v9\nv_min_u32 v9, v9, v10\nv_add_u32 v11, 1024, v9\nv_subrev_u32 v10, 1280, v11\nv_min_u32 v11, v11, v10")
        self.small_dma(28, 9, "0", L_GATE, 64, ('S', 0)); self.small_dma(28, 11, "0", L_GATE + 1024, 16, ('S', 0))
        self.pstamp(1)
        if c.pke:
            self.pack_setup()
            for g in self.pack_loads(): self.emit_items(g)
        if c.touch == 1: self.touch()
        if c.touch == 4:
            self.touch3_setup()
            for p_ in range(c.tp0): self.emit_items(self.touch3(p_))
        self.pstamp(2)
        def setup():
            e = self.e
            self.x_addr(ST); self.rho0(8)
            e(f"v_mul_u32_u24 v9, 160, v8\nv_mad_u32_u24 v9, v4, 40, v9\nv_add_u32 v226, 16384, v9")
            for sl in (1, 2): e(f"v_add_u32 v{226+sl}, {sl*ST}, v226")
            e(f"v_lshlrev_b32 v9, 7, v8\nv_lshl_add_u32 v9, v4, 3, v9\nv_add_u32 v9, 36864, v9\nv_bfe_u32 v10, v8, 1, 2")
            for t in range(4): e(f"v_xor_b32 v11, {t}, v10\nv_lshl_add_u32 v{229+t}, v11, 5, v9\nv_add_u32 v{204+t}, {2*ST}, v{229+t}")
            e(f"v_lshlrev_b32 v233, 4, v2\nv_add_u32 v233, {L_GATE}, v233\nv_lshlrev_b32 v253, 3, v2\nv_add_u32 v253, {L_BIASKV}, v253")
            self.common_setup()
            if not c.pke: self.pack_setup()
            e(f"""v_lshrrev_b32 v8, 2, v1
            v_mul_u32_u24 v8, 2560, v8
            v_lshl_add_u32 v8, v4, 5, v8
            v_lshrrev_b32 v9, 1, v2
            v_lshl_add_u32 v8, v9, 9, v8
            v_and_b32 v9, 1, v2
            v_lshl_add_u32 v8, v9, 4, v8
            s_lshl_b32 s{sT0}, s{sW}, 7
            v_add_u32 v241, s{sT0}, v8
            v_add_u32 v243, 10240, v241
            v_mov_b32 v9, {OOB}
            v_cmp_ge_u32 vcc, 7, v1
            v_cndmask_b32 v243, v9, v243, vcc
            v_cmp_gt_u32 vcc, 2, v2
            v_cndmask_b32 v242, v9, v241, vcc
            v_cndmask_b32 v244, v9, v243, vcc
            v_mul_u32_u24 v12, {PSZ}, v2
            v_min_u32 v10, 14, v1
            v_lshl_add_u32 v12, v10, 4, v12
            v_lshlrev_b32 v13, 4, v1
            v_cmp_gt_u32 vcc, 16, v0
            v_cndmask_b32 v234, v9, v13, vcc
            v_cmp_gt_u32 vcc, 15, v0
            v_cndmask_b32 v13, v9, v13, vcc""")
        self.interleave(self.record(setup), dma_stage(1)[:c.n1], c.pe2)
        self.pstamp(3)
        if c.n1 >= 12:
            self.small_dma(SM, 6, "s36", None, 50, 'misc', "s_mov_b32 m0, s37")
            if c.touch == 2: self.touch()
            if not c.pke:
                for g in self.pack_loads(): self.emit_items(g)
        self.tag_wait(); self.pstamp(4)
        e.wait(vm='bias')
        for s_ in range(4): e.lgop(f"ds_read_b64 v[{136+2*s_}:{137+2*s_}], v253 offset:{s_*32}", ('b', s_))
        for s_ in range(4):
            e.wait(lg=('b', s_))
            for h in range(2): e(f"v_lshlrev_b32 v{96+8*s_+2*h}, 16, v{136+2*s_+h}\nv_and_b32 v{97+8*s_+2*h}, 0xffff0000, v{136+2*s_+h}")
        self.stamp(0)
        NS = 15; nm = NS * 4; mf = []; reads = []; late = []; gs = 0
        S0 = 10 - c.dfr; AD = AW - 56 * c.dfr
        for st in range(10):
            sl = st % 3; mst = len(mf)
            for t in range(NS):
                dfr = st >= S0 and t >= 10
                wr = (('a', AD + (st - S0) * 56 + 16 + (t - 10) * 8) if dfr else ('v', 168 + 8 * (gs % 4))); m0 = len(mf)
                dl, ea = (mst + 6 + 6 * (t - 10), -1) if dfr else (m0, m0 - 13)
                RR = lambda o, n: R((wr[0], wr[1] + o), n)
                for ks in range(2):
                    if t == 14: reads.append([f"ds_read_b128 {RR(4*ks, 4)}, v233 offset:{(st*2+ks)*64}", dl, st, ea]); continue
                    for rd in range(2):
                        if t < 10: ad, off = 226 + sl, (t // 5) * 10240 + ks * 5120 + rd * 1280 + (t % 5) * 8
                        else: ad, off = (229 if sl < 2 else 204) + t - 10, (sl % 2) * ST + ks * 4096 + rd * 1024
                        reads.append([f"ds_read_b64_tr_b16 {RR(4*ks+2*rd, 2)}, v{ad} offset:{off}", dl, st, ea])
                for j in ((1, 0) if st == 0 else (0, 1)):
                    for ks in range(2):
                        xr = ('a', AD + (st - S0) * 56 + (j * 2 + ks) * 4) if st >= S0 else ('v', 136 + (st % 2) * 16 + (j * 2 + ks) * 4)
                        d = 16 + (t * 2 + j) * 4
                        if t == 0: reads.append([f"ds_read_b128 {R(xr)}, v{220+2*sl+ks} offset:{j*2048}", len(mf), st, -1])
                        cc = vr(d)
                        if st == 0 and ks == 0: cc = vr(16 + t * 8) if 10 <= t < 14 else "0"
                        (late if dfr else mf).append(f"v_mfma_f32_16x16x32_bf16 {vr(d)}, {RR(4*ks, 4)}, {R(xr)}, {cc}")
                if not dfr: gs += 1
        self.ulim = AD // 4
        self.kloop(mf, reads, nm, dma_stage, [], 'KV')
        e.wait(lg_all=True)
        A64 = lambda u: u < 64; ALL = lambda u: True
        A51 = lambda u: u < 51; Sa = c.Sa
        ALL0 = ALL; ALL = lambda u: u < self.ulim or u >= 51
        KQ = 136; PR = 168; VT = 156
        nl2e = fl(-math.log2(math.e))
        side = [l.strip() for l in f"""v_mul_f32 v128, {nl2e}, v128
        v_mul_f32 v132, {nl2e}, v132
        v_exp_f32 v128, v128
        v_exp_f32 v132, v132
        s_lshl_b32 s{sT2}, s{sMT}, 2
        v_add_f32 v128, 1.0, v128
        v_add_f32 v132, 1.0, v132
        v_rcp_f32 v128, v128
        v_rcp_f32 v132, v132
        s_add_u32 s{sT2}, s{sT2}, s{sW}
        s_lshl_b32 s{sT3}, s{sT2}, 9
        s_lshl_b32 s{sT4}, s{sHG}, 15
        s_add_u32 s{sT3}, s{sT3}, s{sT4}
        s_add_u32 s{sT3}, s{sT3}, {GB}
        v_mul_u32_u24 v220, {RSV}, v1
        v_mad_u32_u24 v220, v2, 48, v220
        s_mul_i32 s{sT0}, s{sW}, {32*RSV}
        s_add_u32 s{sT0}, s{sT0}, {L_V}
        v_add_u32 v220, s{sT0}, v220
        v_mul_u32_u24 v221, {RSP}, v1
        s_mov_b32 s{sT0}, 80
        v_mad_u32_u24 v221, v2, s{sT0}, v221
        s_mul_i32 s{sT0}, s{sW}, {32*RSP}
        v_add_u32 v221, s{sT0}, v221
        v_lshl_add_u32 v8, v2, 2, v3
        v_mul_u32_u24 v222, {RSP}, v8
        v_lshl_add_u32 v222, v4, 3, v222
        s_mul_i32 s{sT0}, s{sW}, 80
        v_add_u32 v222, s{sT0}, v222
        v_mul_u32_u24 v223, {RSV}, v8
        v_lshl_add_u32 v223, v4, 3, v223
        s_mul_i32 s{sT0}, s{sW}, 48
        s_add_u32 s{sT0}, s{sT0}, {L_V}
        v_add_u32 v223, s{sT0}, v223
        s_lshl_b32 s{sT0}, s{sHG}, 4
        s_add_u32 s{sT0}, s{sT0}, s{sMT}
        s_mul_i32 s{sT1}, s{sT0}, {PSZ}
        s_add_u32 s{sT1}, s{sT1}, {PP}
        s_mov_b32 s{sC0}, {fl(math.log2(math.e))}""".split("\n")]
        self.b2_loads(); self.tag_update()
        self.valu(self.cvt_heads(16, KQ, 0) + self.cvt_heads(16, KQ + 10, 1))
        e.wait(lg='wphi')
        gate = side[:14]; side = self.cvt_heads(56, VT, 0) + side[14:38]
        self.valu(self.phi_mfmas(KQ, PR), [[('x', l)] for l in side], 1)
        e(f"v_mov_b32 v{VT+10}, 0x3f80\nv_mov_b32 v{VT+11}, 0\ns_mov_b32 s{sC0}, {fl(math.log2(math.e))}\ns_barrier")
        for i in range(3): e.lgop(f"ds_write_b128 v220, {vr(VT+4*i)} offset:{i*16}", 'vw')
        L0 = self.softmax_lines(PR, 16, 136)
        self.valu(L0[:16], bg=ALL, S=Sa)
        self.valu(self.cvt_heads(56, 208, 1) + ["v_mov_b32 v218, 0x3f80", "v_mov_b32 v219, 0"], bg=ALL, S=Sa)
        for i in range(3): e.lgop(f"ds_write_b128 v220, {vr(208+4*i)} offset:{16*RSV + i*16}", 'vw')
        self.valu(L0[16:], bg=ALL, S=Sa)
        PH = (136, 56)
        pw = lambda j: [[('lg', f"ds_write_b128 v221, {vr(PH[j]+4*i)} offset:{j*16*RSP + i*16}", 'pw')] for i in range(5)]
        L1 = self.softmax_lines(PR + 20, 16, 56)
        self.valu(L1[:40], pw(0), 8, ALL, Sa)
        self.valu(L1[40:-20], bg=ALL, S=Sa)
        self.valu(L1[-20:], pw(1), 4)
        e.wait(lg_all=True); e("s_barrier")
        self.stamp(2)
        mf = []; reads = []; D0 = 168
        for s_ in range(4):
            b0 = 16 + s_ * 20; m0 = len(mf)
            for dt in range(2):
                for rd in range(2): reads.append([f"ds_read_b64_tr_b16 v[{b0+12+4*dt+2*rd}:{b0+13+4*dt+2*rd}], v223 offset:{(32*s_+16*rd)*RSV + dt*32}", m0 + dt, -1, -1])
            for ft in range(3):
                for rd in range(2): reads.append([f"ds_read_b64_tr_b16 v[{b0+4*ft+2*rd}:{b0+4*ft+2*rd+1}], v222 offset:{(32*s_+16*rd)*RSP + ft*32}", m0 + 2 * ft, -1, -1])
                for dt in range(2):
                    d = D0 + (ft * 2 + dt) * 4
                    mf.append(f"v_mfma_f32_16x16x32_bf16 {vr(d)}, {vr(b0+4*ft)}, {vr(b0+12+4*dt)}, {vr(d) if s_ else 0}")
        reads.sort(key=lambda r: r[1]); rp = 0
        for m in range(24):
            while rp < 40 and (len(e.lg) < 14 and (m == 0 or reads[rp][1] <= m + 8) or reads[rp][1] <= m): e.lgop(reads[rp][0], ('kv', reads[rp][1])); rp += 1
            e.wait(lg=[('kv', k) for k in range(m + 1)])
            e(mf[m])
            if c.kvb: self.bg_try(ALL, c.kvb)
        e("s_nop 4")
        for ft in range(3):
            for dt in range(2):
                for i in range(4): e(self.tag_put(D0 + (ft * 2 + dt) * 4 + i))
                e.vmop(f"buffer_store_dwordx4 {vr(D0+(ft*2+dt)*4)}, v{241+2*dt+(ft==2)}, {srd(SWS)}, s{sT1} offen offset:{ft*1024} sc1", 'pst')
        self.stamp(3)
        sc = [l.strip() for l in f"""s_lshl_b32 s{sT2}, s{sMT}, 2
        s_add_u32 s{sT2}, s{sT2}, s{sW}
        s_lshl_b32 s{sT4}, s{sMT}, 1
        s_lshr_b32 s{sT5}, s{sW}, 1
        s_add_u32 s{sT4}, s{sT4}, s{sT5}
        s_and_b32 s{sT5}, s{sW}, 1
        s_mul_i32 s{sT0}, s{sT4}, 74
        s_lshl_b32 s{sKW}, s{sHG}, 1
        s_add_u32 s{sT0}, s{sT0}, s{sKW}
        s_add_u32 s{sT0}, s{sT0}, 38
        s_lshl_b32 s{sT0}, s{sT0}, 12
        s_lshl_b32 s{sT5}, s{sT5}, 11
        s_add_u32 s{sT0}, s{sT0}, s{sT5}
        s_add_u32 s{sT0}, s{sT0}, {A2}
        s_lshl_b32 s{sKW}, s{sMT}, 4
        s_add_u32 s{sKW}, s{sKW}, s{sHG}
        s_lshl_b32 s{sKW}, s{sKW}, 7
        s_add_u32 s{sKW}, s{sKW}, {F4+1024}
        s_mul_i32 s32, s{sT2}, 240
        s_mul_i32 s{sT4}, s{sHG}, {FSZ}
        s_add_u32 s{sT1}, s32, s{sT4}
        s_add_u32 s{sT1}, s{sT1}, {FIN}
        s_lshl_b32 s{sT4}, s{sT4}, 4
        s_add_u32 s32, s32, s{sT4}
        s_add_u32 s32, s32, {PP}
        s_add_u32 s33, s32, {4*PSZ}
        s_add_u32 s34, s33, {4*PSZ}
        s_add_u32 s35, s34, {4*PSZ}""".split("\n")] + [f"s_cmp_eq_u32 s{sW}, 0\ns_cselect_b32 s{sKW}, s{sKW}, {OOB}"]
        sd = [[('x', l)] for l in sc]
        self.valu(late, sd, 1, ALL if c.kvb else None, c.kvb)
        for g in sd: self.emit_items(g)
        ALL = ALL0
        for l in gate: e(l)
        for j in range(2):
            for i in (3, 2, 1, 0): e(self.tag_put(128 + 4 * j + i, 128 + 4 * j))
            e.vmop(f"buffer_store_dwordx4 {vr(128+4*j)}, v234, {srd(SWS)}, s{sT3} offen offset:{j*256} sc1", 'hst')
        self.gelu_consts()
        L = []; hs = []
        for p in range(2):
            for j in range(2):
                O = 152 + 4 * ((2 * p + j) % 4)
                L += self.gelu_lines(96 + (4 * p + j) * 4, 96 + (4 * p + 2 + j) * 4, 136 + 8 * j, O)
                hs.append(('vm', f"buffer_store_dwordx4 {vr(O)}, v{6 if p == 0 else 240}, {srd(SWS)}, s{sT0} offen offset:{j*1024} sc1", 'hst'))
        RD = 16
        pld = [f"buffer_load_dwordx4 {vr(RD+4*i)}, v12, {srd(SWS)}, s{32+i} offen sc1" for i in range(4)]
        self.valu(L[:c.kpl], bg=ALL if c.kgb else None, S=Sa)
        for l in pld: e.vmop(l, 'pld')
        if c.kp4 == 0: self.poll4a_issue()
        self.valu(L[c.kpl:], bg=ALL if c.kgb else None, S=Sa)
        if c.khs == 0: self.emit_items(hs)
        pool = [[('v', r), 999] for r in list(range(168, 224, 4)) + list(range(116, 152, 4))]
        for _ in range(c.kb2): self.bg_try(ALL, -9999)
        self.stamp(4)
        def h_r2():
            red = [self.tag_strip(RD + i) for i in range(16)]
            red += [f"v_add_f32 v{RD+i}, v{RD+i}, v{RD+4+i}" for i in range(4)] + [f"v_add_f32 v{RD+8+i}, v{RD+8+i}, v{RD+12+i}" for i in range(4)] + [f"v_add_f32 v{RD+i}, v{RD+i}, v{RD+8+i}" for i in range(4)]
            for sw in ('32', '16'):
                red += [f"v_mov_b32 v{RD+4+i}, v{RD+i}" for i in range(4)] + [f"v_permlane{sw}_swap_b32 v{RD+i}, v{RD+4+i}" for i in range(4)] + [f"v_add_f32 v{RD+i}, v{RD+i}, v{RD+4+i}" for i in range(4)]
            red += [self.tag_put(RD + i) for i in range(4)]
            it = [('st', 14, 1), ('wvm', 'pld')] + [('x', l) for l in self.tag_check(pld, range(RD, RD + 16), 9)] + [('st', 5, 1)] + [('x', l) for l in red]
            it += [('vm', f"buffer_store_dwordx4 {vr(RD)}, v13, {srd(SWS)}, s{sT1} offen sc1", 'fst')]
            self.emit_items(it)
        def h_f4():
            e.wait(vm='hst'); e("s_barrier"); e.vmop(self.flag_store(245, 246, f"s{sKW}"), 'f4st')
        h_r2()
        if c.khs == 1:
            self.emit_items(hs)
            for _ in range(c.kb4): self.bg_try(ALL, -9999)
        pool += [[('v', r), 999] for r in range(152, 168, 4)]
        if c.f4k < 0: h_f4()
        if c.kp4 == 1:
            self.poll4a_issue()
            for _ in range(c.kb3): self.bg_try(ALL, -9999)
        self.ph2_begin(pool)
        while len(self.Bpend) > c.kleft: self.bg_try(ALL, -9999)
        self.stamp(6)
        self.bias2()
        self.phase2({c.f4k: h_f4, c.p1: self.poll4b_issue, c.c1: self.poll4b_check})

    def kloop(self, mf, reads, nm0, dma_stage, poison, name):
        e = self.e; c = self.c; back = []
        def mksync(st):
            def f(m):
                nm = nm0 - (20 if st >= 10 - (c.dfr if name == 'KV' else c.dfq) else 0)
                tg = [it[2] for g in back for it in (g[1] if g[0] == 'atomic' else g) if it[0] == 'vm']
                assert not (st == c.pks and 'packld' in tg) and not (st == c.pks + 3 and 'pkst' in tg) and not (st == 3 and 'misc' in tg) and ('S', st) not in tg
                e.wait(vm=[('S', st)] + (['pkst'] if st == c.pks + 3 else []) + (['misc'] if st == 3 else []) + (['packld'] if st == c.pks else []), lg_all=True); e("s_barrier")
                self.stamp(st + 1, 2)
                if st < 3: self.stamp(7 + st, 3)
                if st == 2: self.pstamp_flush()
                out = []
                if st == 0 and c.n1 < 12:
                    back.extend(dma_stage(1)[c.n1:])
                    back.append(('atomic', self.record(lambda: self.small_dma(SM, 6, "s36", None, 50, 'misc', "s_mov_b32 m0, s37"))))
                if st + 2 < 10: back.extend(dma_stage(st + 2))
                if st == c.pkl and c.n1 < 12: back.extend(self.pack_loads())
                if st == c.pks: back.extend(self.pack_stores())
                if c.f1s < st < 8 or (st == c.f1s and st < 8 and c.f1c + 8 < nm - 16):
                    for u in self.Bpend[:c.bk]: self.Bpend.remove(u); back.append(self.B_take([u])[0])
                need = max([k + 1 for k, g in enumerate(back) if g[0] != 'atomic' and g[-1][2] == ('S', st + 1)], default=0)
                n = min(len(back), max(c.quota, need)) if st < 7 else len(back)
                take = back[:n]; del back[:n]
                if take:
                    pc = self.paced([g[1] if g[0] == 'atomic' else g for g in take], m, nm - c.dtail)
                    for f, g in zip(pc, take):
                        if g[0] == 'atomic': f['atomic'] = 1
                    out += pc
                if c.touch == 4: out += [dict(at=m + nm - c.dtail + 1, chain=1, ins=self.touch3(p_)) for p_ in range(c.tp0, 3) if c.tst[p_] == st]
                if st in c.cpf: out.append(dict(at=m + nm - c.dtail + 2, ins=self.code_touch('L_QH' if name == 'KV' else 'L_end')))
                if st == c.pks: out += self.pack_fill(m, nm)
                if st == c.pks + 3: out.append(dict(at=m + 1, ins=[('vm', self.flag_store(245, 246, f"s{sF1}"), 'f1st')]))
                if st == 3: out += [dict(at=m + 3 + 5 * k, ins=g) for k, g in enumerate(self.wphi_reads(254))]
                if st == c.f1s - 1: g = self.f1_issue()[0]; out += [dict(at=m + nm - 30, ins=g[:-1]), dict(at=m + nm - c.dtail, chain=1, ins=g[-1:])]
                if st == c.f1s:
                    chk = [dict(at=m + c.f1c + 2 * k, ins=[it]) for k, it in enumerate(self.f1_check())]
                    out += chk
                    if c.bt: out += [dict(at=m + c.f1c + 26 + c.btsp * k, ins=g) for k, g in enumerate(self.btouch())]
                if st == 9 and name == 'KV': out.append(dict(at=m + 4, ins=self.record(self.tag_issue)))
                if st == 8:
                    if poison: out += self.paced(poison, m, 30)
                    self.bg0 = max(m + c.bgs, (m + c.f1c + 8) if c.f1s == 8 else 0)
                return out
            return f
        self.bg0 = 9999; self.wphi_addr(254)
        self.stream(mf, reads, [], {st: mksync(st) for st in range(10)}, name=name, bg=lambda m: (lambda u: m >= self.bg0 and u < self.ulim))
        self.stamp(1); self.stamp(11, 2)
        self.typ = name
        if c.dly == (1 if name == 'KV' else 2): e(f's_sleep {c.dlyn}')
        self.ph2_pre()

    def ph2_pre(self):
        e = self.e
        mk_srd(e, SM, pB2, 1280); mk_srd(e, SPK, pOUT, 2048 * 1280)
        e(f"""s_mul_i32 s{sM0}, s{sNB}, 160
        s_and_b32 s{sM0+1}, s{sNB}, 1
        s_lshl_b32 s{sM0+2}, s{sM0+1}, 5
        s_add_u32 s{sM0+2}, s{sM0+2}, s{sM0}
        s_xor_b32 s{sM0+1}, s{sM0+1}, 1
        s_lshl_b32 s{sM0+1}, s{sM0+1}, 7
        s_add_u32 s{sM0+1}, s{sM0+1}, s{sM0}
        s_min_u32 s{sM0+3}, s{sW}, 1
        s_mul_i32 s{sM0+3}, s{sM0+3}, 1280
        s_sub_u32 s{SM+2}, 1280, s{sM0+3}
        s_lshr_b32 s{sM0+5}, s{sRB}, 1
        s_lshl_b32 s{sM0+3}, s{sM0+5}, 11
        s_add_u32 s{sM0+3}, s{sM0+3}, {F4}
        s_add_u32 s{sM0+4}, s{sM0+3}, 1024
        v_and_b32 v235, 7, v0
        v_lshlrev_b32 v235, 7, v235""")
    def b2_loads(self):
        e = self.e
        e("v_lshlrev_b32 v7, 4, v2\nv_lshlrev_b32 v8, 3, v2")
        e.vmop(f"buffer_load_dwordx4 v[224:227], v7, {srd(SM)}, s{sM0+2} offen", 'b2')
        e.vmop(f"buffer_load_dwordx4 v[228:231], v7, {srd(SM)}, s{sM0+2} offen offset:64", 'b2')
        e.vmop(f"buffer_load_dwordx2 v[232:233], v8, {srd(SM)}, s{sM0+1} offen", 'b2')
    def poll4a_issue(self): self.e.vmop(self.poll_issue(235, 252, 2, None, f"s{sM0+3}"), 'p4a')

    def poll4b_issue(self): self.e.vmop(self.poll_issue(235, 252, 2, None, f"s{sM0+4}"), 'p4b')
    def poll4b_check(self):
        e = self.e
        self.stamp(10)
        e.wait(vm='p4b')
        for l in self.poll_check([(235, 252, 2, f"s{sM0+4}")]): e(l)
        self.stamp(11)
        self.gate[1] = True; self.g_loads()
        for _ in range(self.c.burst): self.try_issue(self.m, True)
    def g_loads(self):
        e = self.e
        e(f"s_lshl_b32 s{sT0}, s{sRB}, 10\ns_add_u32 s{sT0}, s{sT0}, {GB}\nv_lshlrev_b32 v7, 4, v1")
        for jj in range(4):
            e(f"v_subrev_u32 v8, v6, v{236+jj}\nv_lshrrev_b32 v8, 2, v8\nv_add_u32 v8, v8, v7")
            e.vmop(f"buffer_load_dword v{241+jj}, v8, {srd(SWS)}, s{sT0} offen sc1", 'g')
    def bias2(self):
        e = self.e; BI = 96
        e.wait(vm='b2')
        for t in range(5):
            for h in range(2):
                s_ = 224 + 2 * t + h
                e(f"v_lshlrev_b32 v{BI+4*t+2*h}, 16, v{s_}\nv_and_b32 v{BI+4*t+2*h+1}, 0xffff0000, v{s_}")

    def ph2_begin(self, pool):
        e = self.e; c = self.c
        e.wait(vm='p4a')
        for l in self.poll_check([(235, 252, 2, f"s{sM0+3}")]): e(l)
        self.pool = pool; self.busy = []; self.Aloc = {}; self.Bl = dict(self.Bloc); self.Acur = {}
        groups = [(0, 1), (2, 3), (4, 5), (6, 7), (8, 9), (10, 11), (12, 13), (14, 15), (16, 17, 18)]
        self.mf = [(i, t, j) for g in groups for t in range(5) for j in range(4) for i in g]
        fA, lA, fB, lB = {}, {}, {}, {}
        for m, (i, t, j) in enumerate(self.mf):
            fA.setdefault((i, j), m); lA[(i, j)] = m; fB.setdefault((i, t), m); lB[(i, t)] = m
        self.lA, self.lB = lA, lB
        w = [('A', k, fA[k] if k[0] < 14 else (280 if k[0] < 16 else 320) - c.vlead - 1, lA[k]) for k in fA]
        w += [('S', k, fB[k], lB[k]) for k in fB if self.Bl[k] and self.Bl[k][0] == 'l']
        w += [('B', k, fB[k], lB[k]) for k in fB if self.Bl[k] is None]
        self.fB = fB
        self.work = sorted(w, key=lambda x: (x[2] // 40 * 40 + x[1][0] % 2 * 4 + x[1][1]) if (x[0] == 'A' and c.aord and x[1][0] < 14) else x[2]); self.gate = {0: True, 1: False, 2: False, 3: False}; self.Atxt = {}; self.lastiss = -99; self.m = 0
        for _ in range(c.a0): self.try_issue(0, True)

    def try_issue(self, m, force=False, nos=False):
        e = self.e; c = self.c; pool = self.pool
        cls = lambda i: 0 if i < 10 else (1 if i < 14 else 2 if i < 16 else 3)
        for w in self.work:
            kind, k, dl, last = w
            if kind == 'A' and not self.gate[cls(k[0])]: continue
            if kind == 'S' and (nos or dl - m > 16 or self.Border.index(k) in self.Bpend): continue
            if kind != 'S' and not force and dl - m >= 12 and e.t - e.tvm < (c.S2 if dl - m >= c.urg else c.S3): continue
            if kind == 'P':
                self.Bpend.remove(k); self.emit_items(self.B_take([k])[0]); self.work.remove(w); return True
            ok = [p for p in pool if p[1] > last and p not in self.busy and (p[0][0] == 'v' or kind != 'A' or k[0] < 14)]
            if not (kind == 'A' and k[0] >= 14): ok.sort(key=lambda p: p[0][0] == 'v' and m > 150)
            if len(ok) < (1 if dl - m <= 40 else 4 if kind == 'A' else 7): continue
            p = ok[0]; pool.remove(p); loc = p[0]; self.until[loc] = p[1]
            if kind == 'A':
                i, j = k; sr = sAT if i % 2 == 0 else sAT2
                if self.Acur.get(sr) != i:
                    e(self.soff(sr, i, 'A')); self.Acur[sr] = i
                e.vmop(f"buffer_load_dwordx4 {R(loc)}, v{236+j}, {srd(SWS)}, s{sB if c.xA == 1 and i < 14 else 41 if c.xA == 2 else sr} offen sc1", ('A', k)); self.Aloc[k] = loc
                self.Atxt[k] = self.soff(sT1, i, 'A').split("\n") + [ f"buffer_load_dwordx4 {R(loc)}, v{236+j}, {srd(SWS)}, s{sT1} offen sc1"]
            elif kind == 'B':
                self.emit_items(self.B_items(k, loc)); self.Bl[k] = loc
            else:
                e.wait(vm=('B', k))
                e.lgop(f"ds_read_b128 {R(loc)}, v234 offset:{self.Bl[k][1]*1024}", ('S', k)); self.Bl[k] = loc
            if kind != 'S': self.lastiss = m
            if c.verbose > 1: print(f'{kind}{k}@{m}->{dl}', end=' ')
            self.work.remove(w); return True
        return False

    def phase2(self, hooks):
        e = self.e; c = self.c
        ACC = 16; BI = 96; pool = self.pool; mf = self.mf; Bl = self.Bl; Aloc = self.Aloc
        mtrans = min(m for m, x in enumerate(mf) if x[0] >= 14)
        if c.verbose: print("B loads left for phase 2:", len(self.Bpend))
        hooks = {k: v for k, v in hooks.items() if k >= 0}
        for u in self.Bpend:
            k = self.Border[u]; self.work.append(('P', u, self.fB[k] - (20 if self.Bloc[k][0] == 'l' else 0), 0))
        self.work.sort(key=lambda x: (x[2] // 40 * 40 + x[1][0] % 2 * 4 + x[1][1]) if (x[0] == 'A' and c.aord and x[1][0] < 14) else x[2])
        e(f"s_add_u32 s{sT0}, s88, {L_BL}\nv_add_u32 v234, s{sT0}, v6")
        pool += [[('v', r), 999] for r in (224, 228)]
        if c.dly == (3 if self.typ == 'KV' else 4): e(f's_sleep {c.dlyn}')
        seen = set(); vchk = {280: (14, 15), 320: (16, 17, 18)}
        aq = []
        lastH = {}; firstO = {}; lastO = {}
        for m, (i, t, j) in enumerate(mf):
            if i < 14: lastH[(j, t)] = m
            else: firstO.setdefault((j, t), m); lastO[(j, t)] = m
        g0 = min(lastH.values()) - 10
        aq.append([g0, g0 + 4, ('wvm', 'g')])
        for jj in range(4): aq += [[g0, g0 + 8, ('x', self.tag_strip(241 + jj))]]
        for jj in range(4): aq += [[g0, g0 + 12, ('x', f"v_sub_f32 v{241+jj}, 1.0, v{241+jj}")]]
        for k in sorted(lastH, key=lambda k: lastH[k]):
            jj, tt = k; d = ACC + (jj * 5 + tt) * 4
            for q in range(4): aq.append([lastH[k] + 3, firstO[k] - 2, ('x', f"v_mul_f32 v{d+q}, v{241+jj}, v{d+q}")])
        adr = []
        for jj in range(1, 4):
            adr += [f"s_add_u32 s{sT0}, s{sW}, {jj}", f"s_and_b32 s{sT0}, s{sT0}, 3", f"s_mul_i32 s{sT0}, s{sT0}, 15360",
                    f"s_add_u32 s{sT0}, s{sT0}, {L_RED + (jj-1)*5120}", f"v_add_u32 v{8+jj}, s{sT0}, v6"]
        adr += [l.strip() for l in f"""s_mul_i32 s{sT0}, s{sW}, 15360
        s_add_u32 s{sT0}, s{sT0}, {L_RED}
        v_add_u32 v8, s{sT0}, v6
        s_lshl_b32 s{sT0}, s{sRB}, 2
        s_add_u32 s{sT0}, s{sT0}, s{sW}
        s_mul_i32 s{sT0}, s{sT0}, {16*1280}
        s_add_u32 s{sT3}, s{sT0}, s{sM0+2}
        s_add_u32 s{sT2}, s{sT0}, s{sM0+1}
        v_mul_u32_u24 v12, 1280, v1
        v_lshl_add_u32 v13, v2, 3, v12
        v_lshl_add_u32 v12, v2, 4, v12""".split("\n")]
        for l in adr: aq.append([c.adr0, 325, ('x', l)])
        for k in sorted(lastO, key=lambda k: lastO[k]):
            jj, tt = k
            if jj: aq.append([lastO[k] + 3, 999, ('lg', f"ds_write_b128 v{8+jj}, {vr(ACC+(jj*5+tt)*4)} offset:{tt*1024}", 'rw')])
        self.aq = aq
        for m, (i, t, j) in enumerate(mf):
            self.m = m
            if m == mtrans: self.stamp(7)
            assert (i, j) in Aloc and Bl[(i, t)] and Bl[(i, t)][0] != 'l', (m, i, t, j)
            assert not any(a[1] < m for a in aq), (m, aq[0])
            e.wait(vm=[('A', (i, j)), ('B', (i, t))], lg=('S', (i, t)))
            d = ACC + (j * 5 + t) * 4
            cc = vr(d) if (j, t) in seen else vr(BI + 4 * t); seen.add((j, t))
            e(f"v_mfma_f32_16x16x32_bf16 {vr(d)}, {R(Bl[(i, t)])}, {R(Aloc[(i, j)])}, {cc}")
            k0 = len(e.ins)
            for loc, last in ((Aloc[(i, j)], self.lA[(i, j)]), (Bl[(i, t)], self.lB[(i, t)])):
                if last == m: pool.append([loc, self.until.get(loc, 999) if self.until.get(loc, 999) > m else 999])
            if m == 40: pool.extend([[('v', BI + 4 * k), 999] for k in range(5)])
            if m == 200 and c.dly == (5 if self.typ == 'KV' else 6): e(f's_sleep {c.dlyn}')
            if m == c.o1: self.gate[2] = True
            if m == c.o2: self.gate[3] = True
            if m + 1 + c.vlead in vchk:
                mv = m + 1 + c.vlead; ks = [(ii, jj) for ii in vchk[mv] for jj in range(4)]
                assert all(k in Aloc for k in ks), (m, ks)
                vq = [('wvm', [('A', k) for k in ks])] + [('x', l) for l in self.valid_check(sum([self.Atxt[k] for k in ks], []), [Aloc[k][1] + q for k in ks for q in range(4)], 7)]
                if mv == 280: vq = [('st', 12, 1)] + vq + [('st', 13, 1), ('open',)]
                aq[:0] = [[m, mv - 1, it] for it in vq]
            if m in hooks: hooks[m]()
            self.try_issue(m)
            while any(w[2] - m < 4 for w in self.work) and self.try_issue(m): pass
            while True:
                av = [a for a in aq if a[0] <= m]
                if not av: break
                hurry = any(sum(1 for b in aq if b[1] <= a[1]) > 2 * (a[1] - m) for a in aq if a[1] < 999)
                a = min(av, key=lambda a: a[1])
                if len(e.ins) - k0 >= 2 and not hurry: break
                if a[2][0] == 'lg' and any(x.kind in ('dsw', 'dsr', 'vload', 'dma') for x in e.ins[k0:]): break
                aq.remove(a)
                if a[2][0] == 'open':
                    self.gate[3] = True
                    for _ in range(c.burst3): self.try_issue(m, True)
                elif a[2][0] == 'call': a[2][1]()
                else: self.emit_items([a[2]])
        assert not self.work, self.work
        self.stamp(8)
        for a in aq: self.emit_items([a[2]])
        e.wait(lg_all=True); e("s_barrier")
        for t in range(5):
            for s_ in range(3): e.lgop(f"ds_read_b128 {vr(116+(t*3+s_)*4)}, v8 offset:{s_*5120+t*1024}", ('rr', t))
        for t in range(5):
            e.wait(lg=('rr', t)); d = ACC + t * 4; r = 116 + t * 12
            e(f"""v_pk_add_f32 v[{d}:{d+1}], v[{d}:{d+1}], v[{r}:{r+1}]
            v_pk_add_f32 v[{d+2}:{d+3}], v[{d+2}:{d+3}], v[{r+2}:{r+3}]
            v_pk_add_f32 v[{r+4}:{r+5}], v[{r+4}:{r+5}], v[{r+8}:{r+9}]
            v_pk_add_f32 v[{r+6}:{r+7}], v[{r+6}:{r+7}], v[{r+10}:{r+11}]
            v_pk_add_f32 v[{d}:{d+1}], v[{d}:{d+1}], v[{r+4}:{r+5}]
            v_pk_add_f32 v[{d+2}:{d+3}], v[{d+2}:{d+3}], v[{r+6}:{r+7}]
            v_cvt_pk_bf16_f32 v{96+2*t}, v{d}, v{d+1}
            v_cvt_pk_bf16_f32 v{97+2*t}, v{d+2}, v{d+3}""")
            if t == 1: e.vmop(f"buffer_store_dwordx4 v[96:99], v12, {srd(SPK)}, s{sT3} offen {c.osc}", 'o')
            if t == 3: e.vmop(f"buffer_store_dwordx4 v[100:103], v12, {srd(SPK)}, s{sT3} offen offset:64 {c.osc}", 'o')
            if t == 4: e.vmop(f"buffer_store_dwordx2 v[104:105], v13, {srd(SPK)}, s{sT2} offen {c.osc}", 'o')
        self.stamp(9)
        e("s_endpgm")

    def build(self):
        e = self.e
        self.prologue()
        st = (list(e.vm), list(e.lg))
        self.until = {}
        self.prog_KV()
        e.vm, e.lg = list(st[0]), list(st[1])
        self.until = {}
        self.prog_QH()
        e("\n".join(self.tail))
        e("L_end:\ns_endpgm")
        body = e.finish()
        hdr = open('cdna_kernels/' + NAME + '.s.ref').read().split('; Override launch')[0]
        K = NAME + "_kernel"
        out = hdr + "; Generated by a hand-written Python generator (persistent fused kernel; see comments in the generator).\n"
        out += "; @launch grid=(256,1,1) block=(256,1,1) lds=163840\n"
        out += f'.amdgcn_target "amdgcn-amd-amdhsa--gfx950"\n.text\n.globl {K}\n.p2align 8\n.type {K},@function\n{K}:\n' + body
        out += f""".fill 64, 4, 0xbf800000
.section .rodata,"a"
.p2align 6
.amdhsa_kernel {K}
  .amdhsa_next_free_vgpr 512
  .amdhsa_next_free_sgpr 102
  .amdhsa_accum_offset 256
  .amdhsa_group_segment_fixed_size 0
  .amdhsa_kernarg_size 104
  .amdhsa_user_sgpr_count 2
  .amdhsa_user_sgpr_kernarg_segment_ptr 1
  .amdhsa_system_sgpr_workgroup_id_x 1
.end_amdhsa_kernel
"""
        return out

for k_, v_ in dict(rot=3, par=0, bk=0, dfr=1, dfq=0, kpl=120, khs=0, kb4=10, qb2=6, qb3=6, qfo=0, a0q=12, kp4=1, dly=0, dlyn=16, kvb=64, VC=64, cnt=0, cpf=(), aord=1, nochk=0, skip=0, fast=1, n1=0, quota=28, pkl=0, tp0=1, tst=(0, 0, 1), sp1=24, tlb=0, tlb2=0, pks=3, pke=0, f1s=8, bt=0, btsp=20, bgs=4, qleft=0, kpre=180, kord=0, kgb=1, tmask=7, wbl=0, exit_at=-1, only=0, dstamp=0, xsc='', wsc='', psc='nt', pss='sc1', xA=0, S=48, S2=32, urg=50, S3=0, kb3=8, xB=0, mix=0, perm=0, kf1=60, pe=20, pe2=20, dtail=4, qb0=14, qb1=22, se=10, a0=14, ap=4, osc='sc1 nt', touch=1, kvring=3, f1c=10,
                   f4at=20, pa=100, pb=144, p3=30, c3=58, r1=30, r2=70, rspan=24, kbeg=0, kb1=20, kpa=60, mo=79, p1q=100, c1q=150, Sa=64, kb2=6, kleft=99, Sg=100, o2=226, o1=210, vlead=14, adr0=205, burst3=12, sleep2=1, f4k=-1, p1=130, c1=158, burst=4).items():
    setattr(Cfg, k_, v_)

def generate(**kw):
    c = Cfg()
    for k, v in kw.items(): setattr(c, k, v)
    g = Gen(c); g.e.VC = c.VC; t = g.build()
    return t, g

if __name__ == "__main__":
    kw = {}
    for a_ in sys.argv[2:]:
        k, v = a_.split('='); kw[k] = tuple(map(int, v.split(','))) if ',' in v else int(v, 0) if v.lstrip('-')[0].isdigit() else v.replace('+', ' ')
    t, g = generate(**kw)
    open(sys.argv[1], 'w').write(t)
    print("instructions:", len(g.e.ins), "nops added:", g.e.nop_added)
```

```python
import sys, math
from emit import Emit
NAME = "gated_mix__linear_kernel_hedgehog__dense_activation_gelu__prompt"

TAG = 0x0
F1 = 0x18000
F2 = 0x2000; F3 = 0x6000; F4 = 0xa000; F5 = 0x12000
STAMP = 0x1000000
GB = 0x280000
PP = 0x40000; PSZ = 15360
FIN = 0x240000; FSZ = 15360
PB = 0x300000
A2 = 0x600000
OOB = 0x7ff00000

K1 = 1024
QH_ST = 46 * K1; KV_ST = 44 * K1
MISC = 154 * K1
L_WPHI = MISC; L_GATE = MISC + 3200; L_BIASKV = MISC + 4480; L_BIASQH = MISC + 3200
L_PACK = 138 * K1
WH0 = 114 * K1; WH5 = 74 * K1
L_PHI = 0; RSP = 352; L_V = 128 * RSP; RSV = 224
L_BL = 72 * K1
NL = 18
L_RED = 0
L_FIN = 64 * K1

sW = 3
SX, SQ, S1, SWS, SPK, SM = 4, 8, 12, 16, 20, 24
pX, pQKV, pPHI, pWO, pBX, pW1, pB1, pW2, pB2, pGATE, pOUT, pDBG, pWS = [32 + 2 * i for i in range(13)]
sTAG = 58
sMT, sHG, sRB, sNB = 60, 61, 62, 63
sE = 64
sT0, sT1, sT2, sT3, sT4, sT5 = 74, 75, 76, 77, 78, 79
sM0 = 80
sBT, sAT, sB9, sA9, sAT2 = 100, 101, 86, 87, 55
sAo, sBo, sA8, sB8 = 44, 45, 56, 57
sKW, sK1 = 89, 90
sF1 = 91
sPKD = 92
sA, sB = 96, 97
sC0, sC1 = 98, 99
sP0 = 28

PKA = 200
TB = 10; TBM = (1 << TB) - 1; sTB = 58
AW = 204
def srd(r): return f"s[{r}:{r+3}]"
def vr(r, n=4): return f"v[{r}:{r+n-1}]" if n > 1 else f"v{r}"
def ar(r, n=4): return f"a[{r}:{r+n-1}]"
def R(loc, n=4): return (vr if loc[0] == 'v' else ar)(loc[1], n)
def fl(x):
    import struct
    return hex(struct.unpack('<I', struct.pack('<f', x))[0])

class Cfg:
    rot = 1; map2 = 1; stamps = 0; LA = 12; spin = 200000; codepf = 1; lag = 2; th1 = 2; th2 = 4; minlead = 4; verbose = 0; sleep = 1

sKA, sKB = 0, 1
def mk_srd(e, r, p, nbytes):
    e(f"s_mov_b32 s{r}, s{p}\ns_and_b32 s{r+1}, s{p+1}, 0xffff\ns_mov_b32 s{r+2}, {nbytes}\ns_mov_b32 s{r+3}, 0x20000")

class Gen:
    def __init__(self, cfg):
        self.c = cfg; self.e = Emit(); self.tail = []; self.uid = 0; self.nstamp = 0
    def record(self, fn):
        real = self.e
        class Rec:
            def __init__(r): r.items = []; r.lg = []; r.vm = []
            def __call__(r, t):
                for l in t.strip("\n").split("\n"):
                    if l.strip(): r.items.append(('x', l.strip()))
            def vmop(r, t, tag=None): r.items.append(('vm', t, tag))
            def lgop(r, t, tag=None): r.items.append(('lg', t, tag))
        rec = Rec(); self.e = rec
        try: fn()
        finally: self.e = real
        return rec.items
    def cnt(self):
        if not self.c.cnt: return [], []
        self.ncnt = getattr(self, 'ncnt', 0) + 1; k = self.ncnt - 1
        post = ["s_load_dwordx2 s[46:47], s[40:41], 88", f"s_sub_u32 s54, {self.c.spin}, s54", "s_lshl_b32 s54, s54, 12", "s_add_u32 s54, s54, 1", "s_waitcnt lgkmcnt(0)",
                "v_mov_b32 v14, s54", "v_mov_b32 v15, 0", "s_mov_b64 exec, 1", f"global_atomic_add v15, v14, s[46:47] offset:{k*4}", "s_mov_b64 exec, -1"]
        return [], post
    def lab(self, p):
        self.uid += 1; return f"L_{p}_{self.uid}"
    def stamp(self, i, grp=1):
        if self.c.dstamp and grp == 1:
            slot = self.dmap.get(i)
            if slot is None: return
            e = self.e
            e(f"s_memrealtime s[{sC0}:{sC1}]\ns_load_dwordx2 s[46:47], s[40:41], 88\ns_waitcnt lgkmcnt(0)\nv_mov_b32 v14, s{sC0}\nv_mov_b32 v15, 0"); e.lg = []
            e("s_cmp_eq_u32 s3, 0\ns_cselect_b64 exec, 1, 0")
            L = self.lab('ds'); e(f"s_cbranch_execz {L}")
            e(f"global_atomic_umax v15, v14, s[46:47] offset:{slot*4}")
            if i == 0: e(f"v_mov_b32 v14, s54\nglobal_atomic_umax v15, v14, s[46:47] offset:4\nv_not_b32 v14, v14\nglobal_atomic_umax v15, v14, s[46:47] offset:0")
            e(f"{L}:\ns_mov_b64 exec, -1")
            return
        if not self.c.stamps or (i and self.c.stamps != grp): return
        if self.c.only and i not in (0, self.c.only): return
        e = self.e
        e(f"s_memrealtime s[{sC0}:{sC1}]\ns_memtime s[46:47]\ns_waitcnt lgkmcnt(0)"); e.lg = []
        e(f"v_mov_b32 v14, s{sC0}\nv_mov_b32 v15, s46")
        e(f"s_lshl_b32 s{sC0}, s2, 2\ns_add_u32 s{sC0}, s{sC0}, s{sW}\ns_lshl_b32 s{sC0}, s{sC0}, 7\ns_add_u32 s{sC0}, s{sC0}, {STAMP}")
        e.vmop(f"buffer_store_dwordx2 v[14:15], v245, {srd(SWS)}, s{sC0} offen offset:{i*8}", 'stamp')
        if self.c.exit_at == i and grp == 1: e("s_endpgm")
        if i == 0:
            e(f"v_mov_b32 v14, s54\nv_mov_b32 v15, s40")
            e.vmop(f"buffer_store_dwordx2 v[14:15], v245, {srd(SWS)}, s{sC0} offen offset:{15*8}", 'stamp')

    def pstamp(self, i):
        if self.c.stamps == 3: self.e(f"s_memtime s[100:101]\ns_waitcnt lgkmcnt(0)\nv_mov_b32 v{(248,249,250,251,235)[i]}, s100")
    def pstamp_flush(self):
        if self.c.stamps != 3: return
        e = self.e
        e(f"s_lshl_b32 s{sC0}, s2, 2\ns_add_u32 s{sC0}, s{sC0}, s{sW}\ns_lshl_b32 s{sC0}, s{sC0}, 7\ns_add_u32 s{sC0}, s{sC0}, {STAMP}")
        for i in range(5): e.vmop(f"buffer_store_dword v{(248,249,250,251,235)[i]}, v245, {srd(SWS)}, s{sC0} offen offset:{(2+i)*8+4} sc1", 'stamp')
    def dump(self, name, regs):
        if getattr(self.c, 'dbg', None) != name: return
        e = self.e
        e(f"s_lshl_b32 s{sBT}, s2, 2\ns_add_u32 s{sBT}, s{sBT}, s{sW}\ns_lshl_b32 s{sBT}, s{sBT}, 14\ns_add_u32 s{sBT}, s{sBT}, 0x2000000\nv_lshlrev_b32 v7, 2, v0")
        for i, r in enumerate(regs):
            e.vmop(f"buffer_store_dword v{r}, v7, {srd(SWS)}, s{sBT} offen offset:{(i%16)*256}", 'dbg')
            if i % 16 == 15: e(f"s_add_u32 s{sBT}, s{sBT}, 4096")
        e.wait(vm='dbg'); self.Bcur = None

    def poll_issue(self, vaddr, vdst, n, tag, soff="0"):
        suf = {2: 'dwordx2', 4: 'dwordx4'}[n]
        return f"buffer_load_{suf} {vr(vdst, n)}, v{vaddr}, {srd(SWS)}, {soff} offen sc1"
    def poll_check(self, loads):
        Ls, Lb = self.lab('slow'), self.lab('back')
        cmps = []; ors = []; k = 0
        prs = ['vcc', 's[28:29]', 's[30:31]', 's[46:47]']
        for (va, vd, n, so) in loads:
            for h in range(n // 2):
                cmps.append(f"v_cmp_ne_u64 {prs[k]}, s[{sTAG}:{sTAG+1}], v[{vd+2*h}:{vd+2*h+1}]")
                if k: ors.append(f"s_or_b64 vcc, vcc, {prs[k]}")
                k += 1
        cmps = cmps[::-1] if False else cmps
        fast = cmps + ors + [f"s_cbranch_vccnz {Ls}\n{Lb}:" if not (self.c.nochk & 1) else f"{Lb}:"]
        t = [f"{Ls}:", f"s_mov_b32 s54, {self.c.spin}", f"{Ls}_l:"]
        if self.c.sleep: t.append(f"s_sleep {self.c.sleep}")
        for (va, vd, n, so) in loads: t.append(self.poll_issue(va, vd, n, None, so))
        t += ["s_waitcnt vmcnt(0)"] + cmps + ors
        t += ["s_sub_u32 s54, s54, 1", f"s_cbranch_vccz {Ls}_x", "s_cmp_lg_u32 s54, 0", f"s_cbranch_scc1 {Ls}_l", f"{Ls}_x:"] + self.cnt()[1] + ["s_nop 4", f"s_branch {Lb}"]
        self.tail += t
        return fast
    def tag_check(self, reload, regs, acc):
        Ls, Lb = self.lab('slow'), self.lab('back')
        regs = list(regs); L = [f"v_xor_b32 v{acc}, s{sTB}, v{regs[0]}"]
        for r in regs[1:]: L.append(f"v_bitop3_b32 v{acc}, v{r}, s{sTB}, v{acc} bitop3:0xbe")
        L += [f"v_and_b32 v{acc}, {TBM}, v{acc}", f"v_cmp_ne_u32 vcc, 0, v{acc}"]
        t = [f"{Ls}:", f"s_mov_b32 s54, {self.c.spin}", f"{Ls}_l:"]
        if self.c.sleep: t.append(f"s_sleep {self.c.sleep2}")
        t += list(reload) + ["s_waitcnt vmcnt(0)"] + L
        t += ["s_sub_u32 s54, s54, 1", f"s_cbranch_vccz {Ls}_x", "s_cmp_lg_u32 s54, 0", f"s_cbranch_scc1 {Ls}_l", f"{Ls}_x:"] + self.cnt()[1] + ["s_nop 4", f"s_branch {Lb}"]
        self.tail += t
        return L + [f"s_cbranch_vccnz {Ls}\n{Lb}:" if not (self.c.nochk & 2) else f"{Lb}:"]
    def tag_put(self, r, src=None): return f"v_bfi_b32 v{r}, s42, v246, v{r if src is None else src}"
    def tag_strip(self, r): return f"v_and_b32 v{r}, {hex(0xffffffff ^ TBM)}, v{r}"
    def valid_check(self, reload, regs, acc):
        Ls, Lb = self.lab('slow'), self.lab('back')
        regs = list(regs); L = [f"v_max3_u32 v{acc}, v{regs[0]}, v{regs[1]}, v{regs[2 if len(regs) > 2 else 1]}"]
        r = regs[3:]
        for i in range(0, len(r), 2): L.append(f"v_max3_u32 v{acc}, v{acc}, v{r[i]}, v{r[min(i+1, len(r)-1)]}")
        L.append(f"v_cmp_eq_u32 vcc, -1, v{acc}")
        t = [f"{Ls}:", f"s_mov_b32 s54, {self.c.spin}", f"{Ls}_l:"]
        if self.c.sleep: t.append(f"s_sleep {self.c.sleep2}")
        t += list(reload) + ["s_waitcnt vmcnt(0)"] + L
        t += ["s_sub_u32 s54, s54, 1", f"s_cbranch_vccz {Ls}_x", "s_cmp_lg_u32 s54, 0", f"s_cbranch_scc1 {Ls}_l", f"{Ls}_x:"] + self.cnt()[1] + ["s_nop 4", f"s_branch {Lb}"]
        self.tail += t
        return L + [f"s_cbranch_vccnz {Ls}\n{Lb}:" if not (self.c.nochk & 4) else f"{Lb}:"]
    def flag_store(self, vaddr, vtag, soff="0"):
        return f"buffer_store_dwordx2 {vr(vtag, 2)}, v{vaddr}, {srd(SWS)}, {soff} offen sc1"

    def stream(self, mf, reads, fill, syncs=None, LA=None, name='', bg=None):
        e = self.e; LA = LA or self.c.LA
        reads = sorted(reads, key=lambda r: r[1]); rp = 0; synced = -1 if syncs else 99
        fq = sorted(fill, key=lambda f: f['at'])
        self.sid = getattr(self, 'sid', 0) + 1; sid = self.sid
        start = len(e.ins)
        def add_fill(items):
            lo = max([f['at'] for f in fq if f.get('chain')], default=-99)
            for f in items:
                if f.get('chain'): f['at'] = lo = max(f['at'], lo)
            fq.extend(items); fq.sort(key=lambda f: f['at'])
        def rd():
            nonlocal rp
            e.lgop(reads[rp][0], ('rd', sid, rp)); rp += 1
        if syncs: add_fill(syncs[0](0)); synced = 0
        while rp < len(reads) and reads[rp][1] < 8 and reads[rp][2] <= synced: rd()
        last_read = -99
        dl_of = {('rd', sid, i): r[1] for i, r in enumerate(reads)}
        def due(m): return [t for t in e.lg if t in dl_of and dl_of[t] <= m]
        ismem = lambda it: it[0] in ('vm', 'lg')
        for m in range(len(mf)):
            d = due(m)
            if d: e.wait(lg=d)
            e(mf[m])
            can = lambda: rp < len(reads) and reads[rp][2] <= synced and reads[rp][3] <= m and len(e.lg) < 15
            lead = lambda: reads[rp][1] - m
            if syncs and rp < len(reads) and reads[rp][2] > synced and m - last_read >= self.c.lag and lead() <= LA:
                synced = reads[rp][2]
                assert not any(it[0] == 'vm' and it[2] == ('S', synced) for f in fq for it in f['ins'])
                add_fill(syncs[synced](m + 1))
                if can(): rd(); last_read = m
                continue
            w = 1 if due(m + 1) else 0
            n = w; mem = 0
            if fq and fq[0]['at'] <= m:
                f = fq[0]
                if f.get('atomic'):
                    self.emit_items(f['ins']); n += len(f['ins']); mem += sum(map(ismem, f['ins'])); fq.pop(0)
                elif ismem(f['ins'][0]):
                    self.emit_items([f['ins'].pop(0)]); n += 1; mem += 1
                    if not f['ins']: fq.pop(0)
            if bg and mem == 0:
                k0 = len(e.ins)
                if self.bg_try(bg(m)): n += len(e.ins) - k0; mem += 1
            if can() and lead() <= LA and (mem == 0 or (lead() <= LA - self.c.th1 and not w)):
                rd(); n += 1; mem += 1; last_read = m
            if can() and mem == 1 and not w and lead() <= LA - self.c.th2:
                rd(); n += 1; mem += 1
            while can() and lead() <= self.c.minlead: rd(); n += 1; mem += 1; last_read = m
            while (n < 2 or (fq and fq[0]['at'] <= m - 2 and n < 3)) and fq and fq[0]['at'] <= m + 2 and not fq[0].get('atomic') and not ismem(fq[0]['ins'][0]):
                f = fq[0]; self.emit_items([f['ins'].pop(0)]); n += 1
                if not f['ins']: fq.pop(0)
            assert rp >= len(reads) or reads[rp][1] > m + 1, (m, reads[rp])
        for f in fq: self.emit_items(f['ins'])
        if self.c.verbose:
            tot = 0; g = None
            for i in e.ins[start:]:
                if i.label: continue
                if i.kind == 'mfma':
                    if g is not None: tot += max(16, g)
                    g = 8; prevmem = False
                elif g is not None:
                    mm = i.kind in ('dsr', 'dsw', 'vload', 'vstore', 'dma')
                    g += 8 if (mm and prevmem) else 4; prevmem = mm
            print(f"stream {name}: {len(mf)} mfma, est clks {tot} (ideal {16*len(mf)})")

    def prologue(self):
        e = self.e; c = self.c
        if c.stamps or c.dstamp: e("s_memrealtime s[54:55]\ns_memtime s[98:99]")
        e(f"""s_cmp_ge_u32 s2, 256
        s_cbranch_scc1 L_end
        s_load_dwordx16 s[32:47], s[0:1], 0
        s_load_dwordx4 s[48:51], s[0:1], 64
        s_load_dwordx2 s[52:53], s[0:1], 80
        s_load_dwordx2 s[56:57], s[0:1], 96""")
        if c.codepf:
            e(f"""s_getpc_b64 s[{sA}:{sB}]
            L_pf:
            s_lshr_b32 s{sT0}, s2, 3
            s_lshl_b32 s{sT0}, s{sT0}, 11
            v_lshrrev_b32 v1, 4, v0
            v_lshlrev_b32 v1, 7, v1
            v_add_u32 v1, s{sT0}, v1
            v_cmp_gt_u32 vcc, L_end-L_pf, v1
            v_cndmask_b32 v1, 0, v1, vcc""")
            e.vmop(f"global_load_dword v255, v1, s[{sA}:{sB}]", 'pf')
        e(f"""v_lshrrev_b32 v1, 6, v0
        v_and_b32 v0, 63, v0
        s_and_b32 s{sT0}, s2, 7
        v_readfirstlane_b32 s{sW}, v1
        s_lshr_b32 s{sT1}, s2, 3
        s_lshr_b32 s{sT2}, s{sT0}, 1
        s_and_b32 s{sT3}, s{sT1}, 3
        s_lshl_b32 s{sMT}, s{sT2}, 2
        s_add_u32 s{sMT}, s{sMT}, s{sT3}
        s_lshr_b32 s{sT4}, s{sT1}, 2
        s_and_b32 s{sHG}, s{sT0}, 1
        s_lshl_b32 s{sHG}, s{sHG}, 2
        s_and_b32 s{sT5}, s{sT4}, 3
        s_add_u32 s{sHG}, s{sHG}, s{sT5}""")
        if c.rot == 2:
            e(f"""s_mul_i32 s{sE}, s{sT2}, 5
            s_lshr_b32 s{sE}, s{sE}, 1
            s_and_b32 s{sT5}, s{sT0}, 1
            s_mul_i32 s{sT5}, s{sT5}, 5
            s_add_u32 s{sE}, s{sE}, s{sT5}
            s_cmp_ge_u32 s{sE}, 10
            s_cselect_b32 s{sT5}, 10, 0
            s_sub_u32 s{sE}, s{sE}, s{sT5}
            s_lshl_b32 s{sE}, s{sE}, 7""")
        elif c.rot == 3:
            e(f"s_xor_b32 s{sE}, s{sT3}, s{sT4}\ns_and_b32 s{sE}, s{sE}, 1\ns_lshl_b32 s{sE}, s{sE}, 7")
        elif c.rot == 4:
            e(f"s_xor_b32 s{sE}, s{sT3}, s{sT4}\ns_and_b32 s{sE}, s{sE}, 3\ns_lshl_b32 s{sE}, s{sE}, 7")
        else: e(f"s_mov_b32 s{sE}, 0")
        e(f"""v_and_b32 v1, 15, v0
        v_lshrrev_b32 v2, 4, v0
        v_bfe_u32 v3, v0, 2, 2
        v_and_b32 v4, 3, v0
        v_lshrrev_b32 v5, 3, v0
        v_lshlrev_b32 v6, 4, v0
        s_lshl_b32 s{sT2}, s{sMT}, 2
        s_add_u32 s{sT2}, s{sT2}, s{sW}
        s_mul_i32 s{sT2}, s{sT2}, {32*1280}
        v_xor_b32 v7, v2, v0
        v_and_b32 v7, 7, v7
        v_lshlrev_b32 v7, 4, v7
        v_mul_u32_u24 v8, 1280, v5
        v_add_u32 v8, s{sT2}, v8
        v_add_u32 v208, v8, v7
        v_xor_b32 v7, 64, v7
        v_add_u32 v209, v8, v7
        v_add_u32 v209, {10240-1024}, v209
        v_add_u32 v210, {2*(10240-1024)}, v208
        v_add_u32 v211, {2*(10240-1024)}, v209
        s_lshl_b32 s{sM0}, s{sW}, 12
""")
        if c.rot >= 3: e(f"s_xor_b32 s{sE+1}, s{sE}, 128")
        else: e(f"s_add_u32 s{sE+1}, s{sE}, 128\ns_cmp_eq_u32 s{sE+1}, 1280\ns_cselect_b32 s{sE+1}, 0, s{sE+1}")
        for r, n in ((SX, 2048 * 1280), (SQ, 640 * 3840), (S1, 640 * 3456), (SM, 3456)): e(f"s_mov_b32 s{r+2}, {n}\ns_mov_b32 s{r+3}, 0x20000")
        e(f"s_bitcmp1_b32 s2, 7\ns_cbranch_scc1 L_QH")

    def kernarg_wait(self):
        e = self.e
        e("s_waitcnt lgkmcnt(0)"); self.pstamp(0)
        e(f"s_load_dwordx2 s[{sTAG}:{sTAG+1}], s[{pWS}:{pWS+1}], {TAG}")
        if self.c.stamps: e('s_mov_b32 s40, s98')
        if self.c.dstamp or self.c.cnt: e('s_mov_b64 s[40:41], s[0:1]')
        for r, p in ((SX, pX), (SM, pB1), (SQ, pQKV), (S1, pW1)): e(f"s_mov_b32 s{r}, s{p}\ns_and_b32 s{r+1}, s{p+1}, 0xffff")

    def pack_setup(self):
        e = self.e
        e(f"""s_lshl_b32 s{sT0}, s2, 2
        s_add_u32 s{sT0}, s{sT0}, s{sW}
        s_mul_i32 s{sT2}, s{sT0}, 886
        s_lshr_b32 s{sT2}, s{sT2}, 16
        s_mul_i32 s{sT1}, s{sT2}, 74
        s_sub_u32 s{sT1}, s{sT0}, s{sT1}
        s_sub_u32 s{sT3}, s{sT1}, 54
        s_and_b32 s{sT3}, s{sT3}, 63
        s_mul_i32 s{sT4}, s{sT3}, 52
        s_lshr_b32 s{sT4}, s{sT4}, 8
        s_mul_i32 s{sT5}, s{sT4}, 5
        s_sub_u32 s{sT5}, s{sT3}, s{sT5}
        s_mul_i32 s{sBT}, s{sT4}, 160
        s_lshr_b32 s{sAT}, s{sT5}, 1
        s_mul_i32 s{sAT}, s{sAT}, 80
        s_and_b32 s{sT3}, s{sT5}, 1
        s_lshl_b32 s{sT3}, s{sT3}, 3
        s_add_u32 s{sAT}, s{sAT}, s{sT3}
        s_cmp_eq_u32 s{sT5}, 4
        s_cselect_b32 s{sAT}, 16, s{sAT}
        s_cselect_b32 s{sT3}, 80, 4
        s_add_u32 s{sBT}, s{sBT}, s{sAT}
        s_lshl_b32 s{sAT}, s{sT1}, 5
        s_cmp_lt_u32 s{sT1}, 54
        s_cselect_b32 s{sBT}, s{sAT}, s{sBT}
        s_cselect_b32 s{sT3}, 16, s{sT3}""")
        self.csel(sT4, 4 * 1280 - 1024, 20 * 1280 - 1024)
        self.csel(SPK + 2, 1728 * 1280, 640 * 1280)
        e(f"""s_mov_b32 s{SPK+3}, 0x20000
        s_cmp_lt_u32 s{sT0}, 740
        s_cselect_b32 s{SPK+2}, s{SPK+2}, 0
        s_mul_i32 s{sBT}, s{sBT}, 1280
        s_lshl_b32 s{sAT}, s{sT2}, 7
        s_add_u32 s32, s{sBT}, s{sAT}
        s_add_u32 s33, s32, s{sT4}
        s_add_u32 s34, s33, s{sT4}
        s_add_u32 s35, s34, s{sT4}
        v_lshrrev_b32 v9, 5, v0
        v_mul_lo_u32 v9, v9, s{sT3}
        v_and_b32 v10, 3, v5
        v_add_u32 v9, v9, v10
        v_mul_u32_u24 v9, 1280, v9
        v_and_b32 v10, 7, v0
        v_lshl_add_u32 v252, v10, 4, v9
        v_lshlrev_b32 v9, 10, v2
        v_lshl_add_u32 v9, v3, 7, v9
        v_add_u32 v9, s{sM0}, v9
        v_add_u32 v9, {L_PACK}, v9""")
        for g in range(2):
            e(f"""s_lshl_b32 s{sT3}, s{sT2}, 1
            s_add_u32 s{sT3}, s{sT3}, {g}
            s_mul_i32 s{sT4}, s{sT3}, 52
            s_lshr_b32 s{sT4}, s{sT4}, 8
            s_mul_i32 s{sT5}, s{sT4}, 5
            s_sub_u32 s{sT5}, s{sT3}, s{sT5}
            s_cmp_eq_u32 s{sT5}, 2
            s_cselect_b32 s{sT3}, 3, 4
            s_cselect_b32 s{sAT}, 32, 8
            v_lshlrev_b32 v10, s{sT3}, v4
            v_add_u32 v{PKA+2*g}, v9, v10
            v_add_u32 v{PKA+1+2*g}, s{sAT}, v{PKA+2*g}
            s_mul_i32 s{sT4}, s{sT4}, 740
            s_mul_i32 s{sAT}, s{sT1}, 5
            s_add_u32 s{sT4}, s{sT4}, s{sAT}""")
            for a_ in range(2):
                d = sPKD + 2 * g + a_
                e(f"""s_lshl_b32 s{sT3}, s{sT5}, 1
                s_add_u32 s{sT3}, s{sT3}, {a_}
                s_add_u32 s{d}, s{sT3}, 364
                s_cmp_eq_u32 s{sT3}, 5
                s_cselect_b32 s{d}, 374, s{d}
                s_cmp_lt_u32 s{sT3}, 5
                s_cselect_b32 s{d}, s{sT3}, s{d}
                s_add_u32 s{d}, s{d}, s{sT4}
                s_lshl_b32 s{d}, s{d}, 10
                s_add_u32 s{d}, s{d}, {PB}
                s_cmp_lt_u32 s{sT0}, 740
                s_cselect_b32 s{d}, s{d}, {OOB}""")
        e(f"""s_cmp_lt_u32 s{sT1}, 54
        s_cselect_b32 s{SPK}, s{pW2}, s{pWO}
        s_cselect_b32 s{SPK+1}, s{pW2+1}, s{pWO+1}
        s_and_b32 s{SPK+1}, s{SPK+1}, 0xffff""")

    def common_setup(self):
        e = self.e; c = self.c
        e(f"s_and_b32 s{sT0}, s2, 7\ns_lshr_b32 s{sT1}, s2, 3\ns_lshr_b32 s{sT2}, s{sT0}, 1\ns_and_b32 s{sT3}, s{sT1}, 3\ns_lshr_b32 s{sT4}, s{sT1}, 2")
        if c.mix: e(f"s_lshr_b32 s{sT5}, s{sT1}, 2\ns_and_b32 s{sT5}, s{sT5}, 4\ns_xor_b32 s{sT5}, s{sT5}, s{sT1}" if c.map2 else
                    f"s_lshr_b32 s{sT5}, s{sT1}, 4\ns_xor_b32 s{sT5}, s{sT5}, s{sT1}")
        if c.map2:
            if c.mix: e(f"s_and_b32 s{sRB}, s{sT5}, 7\ns_bfe_u32 s{sT5}, s{sT1}, 0x20002")
            else: e(f"s_and_b32 s{sRB}, s{sT1}, 7\ns_lshr_b32 s{sT5}, s{sT1}, 3")
            e(f"""s_lshl_b32 s{sT2}, s{sT2}, 3
            s_add_u32 s{sRB}, s{sRB}, s{sT2}
            s_and_b32 s{sNB}, s{sT0}, 1
            s_lshl_b32 s{sNB}, s{sNB}, 2
            s_add_u32 s{sNB}, s{sNB}, s{sT5}""")
        else:
            if c.mix: e(f"s_bfe_u32 s{sNB}, s{sT1}, 0x30001\ns_and_b32 s{sT3}, s{sT5}, 1\ns_lshr_b32 s{sT5}, s{sT1}, 4\ns_bfe_u32 s{sT4}, s{sT1}, 0x10001\ns_xor_b32 s{sT5}, s{sT5}, s{sT4}\ns_and_b32 s{sT3}, s{sT1}, 1\ns_lshl_b32 s{sT5}, s{sT5}, 1\ns_add_u32 s{sT3}, s{sT3}, s{sT5}")
            else: e(f"s_mov_b32 s{sNB}, s{sT4}")
            e(f"s_lshl_b32 s{sRB}, s{sT0}, 2\ns_add_u32 s{sRB}, s{sRB}, s{sT3}")
        mk_srd(e, SWS, pWS, 0x10000000); mk_srd(e, SM, pPHI, 32 * 800)
        e(f"""s_lshl_b32 s{sT3}, s{sHG}, 2
        s_add_u32 s{sT3}, s{sT3}, s{sW}
        s_mul_i32 s36, s{sT3}, 800
        s_mul_i32 s37, s{sW}, 800
        s_add_u32 s37, s37, {L_WPHI}""")
        for i in range(2, 10):
            if c.rot == 4: e(f"s_xor_b32 s{sE+i}, s{sE}, {i*128}" if i < 8 else f"s_and_b32 s{sE+i}, s{sE+i-8}, 128\ns_add_u32 s{sE+i}, s{sE+i}, 1024")
            elif c.rot == 3: e(f"s_add_u32 s{sE+i}, s{sE+i-2}, 256")
            else: e(f"s_add_u32 s{sE+i}, s{sE+i-1}, 128\ns_cmp_eq_u32 s{sE+i}, 1280\ns_cselect_b32 s{sE+i}, 0, s{sE+i}")
        e(f"""s_mul_i32 s{sB}, s{sNB}, 74
        s_add_u32 s{sB}, s{sB}, s{sW}
        s_mul_i32 s{sB}, s{sB}, 5120
        s_add_u32 s{sB}, s{sB}, {PB}
        s_mul_i32 s{sA}, s{sRB}, 74
        s_add_u32 s{sA}, s{sA}, s{sW}
        s_lshl_b32 s{sA}, s{sA}, 12
        s_add_u32 s{sA}, s{sA}, {A2}
        s_xor_b32 s{sT0}, s{sRB}, s{sNB}
        s_and_b32 s{sT0}, s{sT0}, {min(c.par, 1)}
        s_mul_i32 s{sT1}, s{sT0}, {4*5120}
        s_add_u32 s{sB8}, s{sB}, {32*5120}
        s_add_u32 s{sB8}, s{sB8}, s{sT1}
        s_add_u32 s{sB9}, s{sB}, {36*5120}
        s_sub_u32 s{sB9}, s{sB9}, s{sT1}
        s_mul_i32 s{sT1}, s{sT1}, {max(c.par, 1)}
        s_sub_u32 s{sBo}, s{sB}, s{sT1}
        s_add_u32 s{sB}, s{sB}, s{sT1}
        s_lshl_b32 s{sT1}, s{sT0}, 14
        s_add_u32 s{sA8}, s{sA}, {32*4096}
        s_add_u32 s{sA8}, s{sA8}, s{sT1}
        s_add_u32 s{sA9}, s{sA}, {36*4096}
        s_sub_u32 s{sA9}, s{sA9}, s{sT1}
        s_mul_i32 s{sT1}, s{sT1}, {max(c.par, 1)}
        s_sub_u32 s{sAo}, s{sA}, s{sT1}
        s_add_u32 s{sA}, s{sA}, s{sT1}
        s_lshr_b32 s{sT1}, s{sW}, 1
        s_and_b32 s{sT3}, s{sT1}, s{sT0}
        s_cselect_b32 s{sB8}, {OOB}, s{sB8}
        s_cselect_b32 s{sA8}, {OOB}, s{sA8}
        s_andn2_b32 s{sT3}, s{sT1}, s{sT0}
        s_cselect_b32 s{sB9}, {OOB}, s{sB9}
        s_cselect_b32 s{sA9}, {OOB}, s{sA9}
        s_mul_i32 s88, s{sW}, {NL*1024}
        v_add_u32 v240, 4096, v6""")
        for j in range(4):
            e(f"s_add_u32 s{sT3}, s{sW}, {j}\ns_and_b32 s{sT3}, s{sT3}, 3\ns_lshl_b32 s{sT3}, s{sT3}, 10\nv_add_u32 v{236+j}, s{sT3}, v6")
        e(f"""s_lshl_b32 s{sF1}, s2, 7
        s_add_u32 s{sF1}, s{sF1}, {F1}
        s_cmp_eq_u32 s{sW}, 0
        s_cselect_b32 s{sF1}, s{sF1}, {OOB}
        v_mov_b32 v245, {OOB}
        v_cmp_eq_u32 vcc, 0, v0
        v_cndmask_b32 v245, v245, 0, vcc""")

    def touch(self):
        e = self.e; c = self.c
        e(f"""s_cmp_eq_u32 s{sW}, 0
        s_cselect_b64 s[28:29], s[{SX}:{SX+1}], s[{S1}:{S1+1}]
        s_cselect_b32 s30, s{SX+2}, s{S1+2}
        s_cselect_b32 s{sT0}, 12, 0
        s_add_u32 s{sT0}, s{sT0}, 68
        s_cmp_eq_u32 s{sW}, 1
        s_cselect_b64 s[28:29], s[{SQ}:{SQ+1}], s[28:29]
        s_cselect_b32 s30, s{SQ+2}, s30
        s_cselect_b32 s{sT0}, 75, s{sT0}
        s_lshl_b32 s{sT1}, 1, s{sW}
        s_and_b32 s{sT1}, s{sT1}, {c.tmask}
        s_cselect_b32 s30, s30, 0
        s_mov_b32 s31, 0x20000
        s_mul_i32 s{sT1}, s{sT0}, s2
        s_lshl_b32 s{sT1}, s{sT1}, 7
        v_lshlrev_b32 v10, 7, v0
        v_add_u32 v11, 64, v0
        v_cmp_gt_u32 vcc, s{sT0}, v11
        v_lshlrev_b32 v11, 7, v11
        v_mov_b32 v14, {OOB}
        v_cndmask_b32 v11, v14, v11, vcc""")
        e.vmop(f"buffer_load_dword v255, v10, s[28:31], s{sT1} offen", 'pf')
        e.vmop(f"buffer_load_dword v255, v11, s[28:31], s{sT1} offen", 'pf')

    def touch3_setup(self):
        e = self.e
        e(f"""s_cmp_eq_u32 s{sW}, 0
        s_cselect_b64 s[28:29], s[{SX}:{SX+1}], s[{S1}:{S1+1}]
        s_cselect_b32 s30, s{SX+2}, s{S1+2}
        s_cselect_b32 s{sT0}, 24, 21
        s_mov_b32 s44, {64*3456}
        s_cselect_b32 s44, 128, s44
        s_cselect_b64 vcc, -1, 0
        s_cmp_eq_u32 s{sW}, 1
        s_cselect_b64 s[28:29], s[{SQ}:{SQ+1}], s[28:29]
        s_cselect_b32 s30, s{SQ+2}, s30
        s_cselect_b32 s{sT0}, 23, s{sT0}
        s_cselect_b32 s44, {64*3840}, s44
        s_cmp_eq_u32 s{sW}, 3
        s_cselect_b32 s30, 0, s30
        s_mov_b32 s31, 0x20000
        s_mul_i32 s{sT1}, s{sT0}, s2
        v_add_u32 v10, s{sT1}, v0
        v_mul_u32_u24 v11, 21846, v10
        v_lshrrev_b32 v11, 16, v11
        v_mul_u32_u24 v11, {1280-384}, v11
        v_lshlrev_b32 v10, 7, v10
        v_add_u32 v11, v11, v10
        v_cndmask_b32 v10, v10, v11, vcc
        v_mov_b32 v14, {OOB}
        v_cmp_gt_u32 vcc, s{sT0}, v0
        v_cndmask_b32 v251, v14, v10, vcc""")
    def touch3(self, part):
        return [('x', f"s_mul_i32 s45, s44, {1 + 3 * part}"), ('vm', "buffer_load_dword v255, v251, s[28:31], s45 offen", 'pf')]

    def tlb_touch(self):
        e = self.e; c = self.c
        if not c.tlb: return
        if c.tlb == 1:
            e(f"v_lshlrev_b32 v10, 18, v0\nv_add_u32 v10, 0x1f800, v10")
            e.vmop(f"buffer_load_dword v255, v10, {srd(SWS)}, 0 offen sc1", 'pf')
        else:
            e(f"""s_mul_i32 s{sT0}, s{sNB}, {74*5120}
            s_add_u32 s{sT0}, s{sT0}, {PB}
            s_mul_i32 s{sT1}, s{sRB}, {74*4096}
            s_add_u32 s{sT1}, s{sT1}, {A2 - 8*65536}
            s_mul_i32 s{sT3}, s{sMT}, {2*74*4096}
            s_add_u32 s{sT3}, s{sT3}, {A2 - 16*65536}
            v_lshlrev_b32 v10, 16, v0
            v_mov_b32 v11, s{sT0}
            v_mov_b32 v14, s{sT1}
            v_cmp_le_u32 vcc, 8, v0
            v_cndmask_b32 v11, v11, v14, vcc
            v_mov_b32 v14, s{sT3}
            v_cmp_le_u32 vcc, 16, v0
            v_cndmask_b32 v11, v11, v14, vcc
            v_add_u32 v11, v11, v10
            v_subrev_u32 v14, 32, v0
            v_mul_u32_u24 v14, 0x18000, v14
            v_cmp_le_u32 vcc, 32, v0
            v_cndmask_b32 v10, v11, v14, vcc""")
            e.vmop(f"buffer_load_dword v255, v10, {srd(SWS)}, 0 offen sc1", 'pf')
        mk_srd(e, 28, pOUT, 2048 * 1280)
        e("v_lshlrev_b32 v10, 16, v0")
        e.vmop("buffer_load_dword v255, v10, s[28:31], 0 offen sc1", 'pf')
        if c.tlb2:
            for p, n in ((pB2, 1280),):
                mk_srd(e, 28, p, n); e.vmop("buffer_load_dword v255, v6, s[28:31], 0 offen", 'pf')

    def tag_wait(self):
        e = self.e
        e(f"""s_waitcnt lgkmcnt(0)
        s_add_u32 s{sTAG}, s{sTAG}, 1
        v_mov_b32 v247, s{sTAG+1}
        v_mov_b32 v246, s{sTAG}
        s_movk_i32 s42, {TBM}""")
        if self.c.xA == 2: e(f's_mov_b32 s41, {OOB}')
        e.lg = []
    def pack_loads(self):
        return [([('x', f"s_add_u32 m0, s{sM0}, {L_PACK}")] if i == 0 else []) +
                [('vm', f"buffer_load_dwordx4 v252, {srd(SPK)}, s{32+i} offen offset:{i*1024} {self.c.psc} lds", 'packld')] for i in range(4)]
    def pack_fill(self, m, nm):
        f = []
        for i in range(8):
            t, h = i >> 1, i & 1
            f.append(dict(at=m + 2 + 2 * i, ins=[('lg', f"ds_read_b64_tr_b16 a[{160+4*t+2*h}:{161+4*t+2*h}], v{PKA+t} offset:{(t>>1)*64+512*h}", 'pk')]))
        return f
    def wb_item(self):
        return [[('wvm', 'pkst'), ('vm', "buffer_wbl2 sc1", 'pkst')]] if self.c.wbl else []
    def pack_stores(self):
        return [([('wlg', 'pk')] if i == 0 else []) + [('vm', f"buffer_store_dwordx4 {ar(160+4*i)}, v6, {srd(SWS)}, s{sPKD+i} offen {self.c.pss}", 'pkst')] for i in range(4)]

    def btouch(self):
        pre = [l.strip() for l in f"""s_and_b32 s{sT0}, s{sRB}, 7
        s_lshl_b32 s{sT0}, s{sT0}, 2
        s_add_u32 s{sT0}, s{sT0}, s{sW}
        s_mul_i32 s{sT0}, s{sT0}, {93*128}
        s_mul_i32 s{sT1}, s{sNB}, {74*5120}
        s_add_u32 s{sT0}, s{sT0}, s{sT1}
        s_add_u32 s{sT0}, s{sT0}, {PB}
        v_lshlrev_b32 v248, 7, v0
        v_min_u32 v249, 28, v0
        v_lshlrev_b32 v249, 7, v249""".split("\n")]
        n = self.c.bt
        out = [[('x', l) for l in pre]]
        if n == 1:
            out[0] += [('vm', f"buffer_load_dword v255, v248, {srd(SWS)}, s{sT0} offen sc1", 'pf')]
            out.append([('x', f"s_add_u32 s{sT0}, s{sT0}, 8192"), ('vm', f"buffer_load_dword v255, v249, {srd(SWS)}, s{sT0} offen sc1", 'pf')])
        else:
            out[0] += [('x', "v_min_u32 v249, 23, v0"), ('x', "v_lshlrev_b32 v249, 7, v249")]
            for i in range(4): out.append([('vm', f"buffer_load_dword v255, v249, {srd(SWS)}, s{sT0} offen offset:0 sc1", 'pf'), ('x', f"s_add_u32 s{sT0}, s{sT0}, 3072")])
        return out
    def code_touch(self, endlab):
        Lp = self.lab('pc')
        return [('x', f"s_getpc_b64 s[30:31]\n{Lp}:"), ('x', f"s_bfe_u32 s{sT0}, s2, 0x40003"), ('x', f"s_lshl_b32 s{sT0}, s{sT0}, 2"), ('x', f"s_add_u32 s{sT0}, s{sT0}, s{sW}"),
                ('x', f"s_lshl_b32 s{sT0}, s{sT0}, 9"), ('x', "v_and_b32 v7, 3, v0"), ('x', f"v_lshl_add_u32 v7, v7, 7, s{sT0}"),
                ('x', f"v_cmp_gt_u32 vcc, {endlab}-{Lp}, v7"), ('x', "v_cndmask_b32 v7, 0, v7, vcc"), ('vm', "global_load_dword v255, v7, s[30:31]", 'pf')]
    def f1_issue(self):
        pre = [l.strip() for l in f"""s_mul_i32 s{sT0}, s{sNB}, 5
        s_add_u32 s{sT1}, s{sT0}, 4
        s_lshr_b32 s{sT0}, s{sT0}, 2
        s_mul_i32 s{sT0}, s{sT0}, 74
        s_lshr_b32 s{sT0}, s{sT0}, 2
        s_lshr_b32 s{sT1}, s{sT1}, 2
        s_mul_i32 s{sT1}, s{sT1}, 74
        s_add_u32 s{sT1}, s{sT1}, 73
        s_lshr_b32 s{sT1}, s{sT1}, 2
        v_add_u32 v235, s{sT0}, v0
        v_min_u32 v235, s{sT1}, v235
        v_lshlrev_b32 v235, 7, v235
        s_mov_b32 s{sT0}, {F1}""".split("\n")]
        return [[('x', l) for l in pre] + [('vm', self.poll_issue(235, 248, 2, None, f"s{sT0}"), 'f1p')]]
    def f1_check(self):
        return [('wvm', 'f1p')] + [('x', t) for t in self.poll_check([(235, 248, 2, f"s{sT0}")])]
    def tag_issue(self):
        e = self.e
        e(f"s_or_b32 s55, s2, s{sW}\ns_min_u32 s55, s55, 1\ns_mul_i32 s55, s55, {OOB}\ns_add_u32 s55, s55, {F1}\nv_lshlrev_b32 v200, 7, v0")
        for i in range(1, 4): e(f"v_add_u32 v{200+i}, {8192*i}, v200")
        self.tgl = [(200 + i, 248 + 2 * i, 2, "s55") for i in range(4)]
        for p in self.tgl: e.vmop(self.poll_issue(p[0], p[1], 2, None, p[3]), 'tg')
    def tag_update(self):
        e = self.e; L = self.lab('tg')
        e.wait(vm='tg')
        e(f"s_or_b32 s{sT0}, s2, s{sW}\ns_cbranch_scc1 {L}")
        for l in self.poll_check(self.tgl): e(l)
        e(self.flag_store(245, 246, str(TAG)))
        e(f"{L}:")

    def attn_voff(self, dst, cexpr_base, colbase_s):
        e = self.e
        e(f"""v_mul_u32_u24 v10, 6554, v9
        v_lshrrev_b32 v10, 16, v10
        v_mad_i32_i24 v11, v10, -10, v9""")
        self.swap23(10, 12)
        e(f"""v_mul_u32_u24 v10, 3840, v10
        v_lshl_add_u32 v10, v11, 4, v10
        v_add_u32 v{dst}, s{colbase_s}, v10""")
    def swap23(self, r, t):
        self.e(f"""v_lshrrev_b32 v{t}, 1, v{r}
        v_xor_b32 v{t}, v{t}, v{r}
        v_and_b32 v{t}, 4, v{t}
        v_mul_u32_u24 v{t}, 3, v{t}
        v_xor_b32 v{r}, v{r}, v{t}""")

    def small_dma(self, sr, vaddr, soff, ldsaddr, nlanes, tag, m0expr=None):
        e = self.e
        e(m0expr or f"s_mov_b32 m0, {ldsaddr}")
        if nlanes < 64: e(f"s_mov_b64 exec, {hex((1 << nlanes) - 1)}" if nlanes <= 32 else f"s_mov_b32 exec_hi, {hex((1 << (nlanes-32)) - 1)}")
        e.vmop(f"buffer_load_dwordx4 v{vaddr}, {srd(sr)}, {soff} offen lds", tag)
        if nlanes < 64: e("s_mov_b64 exec, -1")

    def csel(self, d, a, b):
        inl = lambda x: isinstance(x, str) or -16 <= x <= 64
        if inl(a) or inl(b): self.e(f"s_cselect_b32 s{d}, {a}, {b}")
        else: self.e(f"s_mov_b32 s{d}, {b}\ns_cselect_b32 s{d}, {a}, s{d}")

    def init_B(self):
        self.Bloc = {}; self.Bq = []
        order = [(i, t) for i in range(19) for t in range(5)]
        for u, k in enumerate(order):
            if u < 64: self.Bloc[k] = ('a', 4 * u)
            elif u < 64 + NL: self.Bloc[k] = ('l', u - 64)
            else: self.Bloc[k] = None
        self.Border = order; self.Bpend = list(range(64 + NL)); self.Bcur = None; self.Acur = None
    def koff(self, i): return 4 * i - (2 if i >= 10 else 0)
    def soff(self, d, i, w):
        e_, o_, s8, s9, unit = (sB, sBo, sB8, sB9, 5120) if w == 'B' else (sA, sAo, sA8, sA9, 4096)
        if i in (8, 9): return f"s_mov_b32 s{d}, s{s8 if i == 8 else s9}"
        if i == 18: return f"s_add_u32 s{d}, s{e_}, s{o_}\ns_lshr_b32 s{d}, s{d}, 1\ns_add_u32 s{d}, s{d}, {self.koff(i)*unit}"
        idx = i if i < 10 else i - 10 if i < 14 else i - 14
        return f"s_add_u32 s{d}, s{e_ if idx & max(self.c.par, 1) == 0 else o_}, {self.koff(i)*unit}"
    def B_items(self, k, loc):
        i, t = k; it = []
        if self.Bcur != i:
            it.append(('x', self.soff(sBT, i, 'B'))); self.Bcur = i
        va, imm = (6, t * 1024) if t < 4 else (240, 0)
        if loc[0] == 'l':
            assert L_BL + loc[1]*1024 - imm >= 0
            it.append(('x', f"s_add_u32 m0, s88, {L_BL + loc[1]*1024 - imm}"))
            it.append(('vm', f"buffer_load_dwordx4 v{va}, {srd(SWS)}, s{sBT} offen offset:{imm} sc1 lds", ('B', k)))
        else:
            it.append(('vm', f"buffer_load_dwordx4 {R(loc)}, v{va}, {srd(SWS)}, s{sBT} offen offset:{imm} sc1", ('B', k)))
        return it
    def B_take(self, us):
        out = []
        for u in us:
            k = self.Border[u]; out.append(self.B_items(k, self.Bloc[k]))
            if self.c.xB == 1: out[-1] = [('x', 's_nop 0')]
            if self.c.xB == 2: out[-1] = [(it[0], it[1].replace(f"s{sBT} offen", "s43 offen"), it[2]) if it[0] == 'vm' else it for it in out[-1]]
            if self.c.xB == 3: out[-1] = [(it[0], it[1].replace(f"s{sBT} offen", f"s{sB} offen"), it[2]) if it[0] == 'vm' else it for it in out[-1]]
        return out
    def ph2_bg(self, u): pass
    def bg_try(self, allowed, S=None):
        e = self.e
        if e.t - e.tvm < (S or self.c.S): return False
        if allowed == self.ph2_bg: return self.try_issue(self.m, True, True)
        for u in self.Bpend:
            if allowed(u):
                self.Bpend.remove(u); self.emit_items(self.B_take([u])[0]); return True
        return False
    def emit_items(self, items):
        e = self.e
        for it in items:
            if it[0] == 'vm': e.vmop(it[1], it[2])
            elif it[0] == 'lg': e.lgop(it[1], it[2])
            elif it[0] == 'wvm': e.wait(vm=it[1])
            elif it[0] == 'wlg': e.wait(lg=it[1])
            elif it[0] == 'st': self.stamp(it[1], it[2])
            else: e(it[1])
    def valu(self, lines, side=None, every=1, bg=None, S=None):
        n = 0
        for l in lines:
            if isinstance(l, str): self.e(l)
            else: self.emit_items([l])
            n += 1
            if side and n % every == 0: self.emit_items(side.pop(0))
            if bg: self.bg_try(bg, S)

    def interleave(self, items, side, every):
        W = ('s_cmp', 's_add', 's_sub', 's_and', 's_andn2', 's_or', 's_xor', 's_lshl', 's_lshr', 's_bitcmp', 's_min', 's_max')
        Rd = ('s_cselect', 's_addc', 's_subb', 's_cbranch_scc')
        live = [False] * len(items); l = False
        for i in range(len(items) - 1, -1, -1):
            live[i] = l
            t = items[i][1]
            if t.startswith(Rd): l = True
            elif t.startswith(W): l = False
        n = 0
        for i, it in enumerate(items):
            self.emit_items([it]); n += 1
            if side and n >= every and not live[i]: self.emit_items(side.pop(0)); n = 0
        for g in side: self.emit_items(g)

    def gelu_lines(self, X, Y, T, O):
        U = [X, X + 2, Y, Y + 2]; L = []
        P = lambda r: f"v[{r}:{r+1}]"
        for i in range(4): L.append(f"v_pk_mul_f32 {P(T+2*i)}, {P(U[i])}, {P(U[i])}")
        for i in range(4): L.append(f"v_pk_fma_f32 {P(T+2*i)}, {P(T+2*i)}, v[14:15], s[{sC0}:{sC1}] op_sel_hi:[1,0,0]")
        for i in range(4): L.append(f"v_pk_mul_f32 {P(T+2*i)}, {P(T+2*i)}, {P(U[i])}")
        for i in range(8): L.append(f"v_exp_f32 v{T+i}, v{T+i}")
        for i in range(4): L.append(f"v_pk_add_f32 {P(T+2*i)}, {P(T+2*i)}, 1.0 op_sel_hi:[1,0]")
        for i in range(8): L.append(f"v_rcp_f32 v{T+i}, v{T+i}")
        for i in range(4): L.append(f"v_pk_mul_f32 {P(T+2*i)}, {P(T+2*i)}, {P(U[i])}")
        for i in range(4): L.append(f"v_cvt_pk_bf16_f32 v{O+i}, v{T+2*i}, v{T+2*i+1}")
        return L if not (self.c.skip & 1) else L[-8:]
    def gelu_consts(self):
        c1 = -2.0 * math.sqrt(2.0 / math.pi) * math.log2(math.e)
        self.e(f"s_mov_b32 s{sC0}, {fl(c1)}\nv_mov_b32 v14, {fl(c1 * 0.044715)}")
    def softmax_lines(self, Pp, E, PH):
        L = []; P = lambda r: f"v[{r}:{r+1}]"
        L += [f"v_max3_f32 v8, v{Pp}, v{Pp+1}, v{Pp+2}", f"v_min3_f32 v10, v{Pp}, v{Pp+1}, v{Pp+2}"]
        for i in range(3, 19, 2): L += [f"v_max3_f32 v8, v8, v{Pp+i}, v{Pp+i+1}", f"v_min3_f32 v10, v10, v{Pp+i}, v{Pp+i+1}"]
        L += [f"v_max_f32 v8, v8, v{Pp+19}", f"v_min_f32 v10, v10, v{Pp+19}"]
        L += [f"v_mul_f32_e64 v8, -v8, s{sC0}", f"v_mul_f32 v10, s{sC0}, v10"]
        for i in range(10):
            L.append(f"v_pk_fma_f32 {P(E+2*i)}, {P(Pp+2*i)}, s[{sC0}:{sC1}], v[8:9] op_sel_hi:[1,0,0]")
            L.append(f"v_pk_fma_f32 {P(E+20+2*i)}, {P(Pp+2*i)}, s[{sC0}:{sC1}], v[10:11] op_sel_hi:[1,0,0] neg_lo:[1,0,0] neg_hi:[1,0,0]")
        for i in range(40): L.append(f"v_exp_f32 v{E+i}, v{E+i}")
        L += [f"v_pk_add_f32 v[8:9], {P(E)}, {P(E+2)}", f"v_pk_add_f32 v[10:11], {P(E+20)}, {P(E+22)}"]
        for i in range(2, 10): L += [f"v_pk_add_f32 v[8:9], v[8:9], {P(E+2*i)}", f"v_pk_add_f32 v[10:11], v[10:11], {P(E+20+2*i)}"]
        L += ["v_add_f32 v8, v8, v9", "v_add_f32 v10, v10, v11", "v_rcp_f32 v8, v8", "v_rcp_f32 v10, v10"]
        for i in range(10): L.append(f"v_pk_mul_f32 {P(E+2*i)}, {P(E+2*i)}, v[8:9] op_sel_hi:[1,0]")
        for i in range(10): L.append(f"v_pk_mul_f32 {P(E+20+2*i)}, {P(E+20+2*i)}, v[10:11] op_sel_hi:[1,0]")
        for i in range(20): L.append(f"v_cvt_pk_bf16_f32 v{PH+i}, v{E+2*i}, v{E+2*i+1}")
        return L if not (self.c.skip & 2) else [l if 'cvt' in l else '' for l in L]
    def wphi_addr(self, va):
        self.e(f"v_mul_u32_u24 v{va}, 800, v2\nv_mad_u32_u24 v{va}, v3, 40, v{va}\nv_add_u32 v{va}, {L_WPHI}, v{va}")
    def wphi_reads(self, va):
        return [[('lg', f"ds_read_b64_tr_b16 a[{AW+2*(dg*5+fg)}:{AW+1+2*(dg*5+fg)}], v{va} offset:{dg*160 + fg*8}", 'wphi')] for dg in range(5) for fg in range(5)]
    def phi_mfmas(self, KQ, Pp):
        L = []
        for dg in range(5):
            for j in range(2):
                for fg in range(5):
                    d = Pp + 20 * j + 4 * fg; w = AW + 2 * (dg * 5 + fg); b = KQ + 10 * j + 2 * dg
                    L.append(f"v_mfma_f32_4x4x4_16b_bf16 {vr(d)}, a[{w}:{w+1}], v[{b}:{b+1}], {vr(d) if dg else 0}")
        return L
    def cvt_heads(self, acc0, dst, j, n=5):
        return [f"v_cvt_pk_bf16_f32 v{dst+2*t+h}, v{acc0+(t*2+j)*4+2*h}, v{acc0+(t*2+j)*4+2*h+1}" for t in range(n) for h in range(2)]
    def rho0(self, dst):
        self.e(f"v_lshrrev_b32 v{dst}, 1, v2\nv_lshl_add_u32 v{dst}, v{dst}, 4, v3\nv_and_b32 v7, 1, v2\nv_lshl_add_u32 v{dst}, v7, 2, v{dst}")
    def x_addr(self, ST, nsl=3, base=220):
        e = self.e
        e(f"""v_lshrrev_b32 v9, 1, v1
        v_xor_b32 v9, v9, v2
        v_lshlrev_b32 v9, 4, v9
        v_lshl_add_u32 v9, v1, 7, v9
        v_add_u32 v{base}, s{sM0}, v9
        v_xor_b32 v{base+1}, 64, v{base}""")
        for sl in range(1, nsl): e(f"v_add_u32 v{base+2*sl}, {sl*ST}, v{base}\nv_add_u32 v{base+1+2*sl}, {sl*ST}, v{base+1}")
    def paced(self, groups, m0, span):
        n = len(groups)
        return [dict(at=m0 + int((k + 0.2) * span / n), chain=1, ins=list(g)) for k, g in enumerate(groups)]
    def prog_QH(self):
        e = self.e; c = self.c; self.init_B(); self.dmap = {0: 3, 1: 5, 2: 7, 3: 9, 14: 11, 7: 13, 9: 15}
        e("L_QH:")
        ST = QH_ST
        e(f"""s_mul_i32 s{sKW}, s{sHG}, 320
        s_lshl_b32 s{sT0}, s{sHG}, 8
        s_add_u32 s{sT0}, s{sT0}, 384
        s_cmp_lt_u32 s{sHG}, 6
        s_cselect_b32 s{sKW}, s{sKW}, s{sT0}
        s_cselect_b32 s{sK1}, 20, 16
        s_mul_i32 s{sT2}, s{sW}, 320""")
        def dma_x(st):
            g = []
            for j in range(4):
                it = [('x', f"s_add_u32 m0, s{sM0}, {(st%3)*ST}")] if j == 0 else []
                g.append(it + [('vm', f"buffer_load_dwordx4 v{208+j}, {srd(SX)}, s{sE+st} offen offset:{j*1024} {c.xsc} lds", ('S', st))])
            return g
        def dma_a(st, i):
            it = []
            if i == 0: it = [('x', f"s_mul_i32 s{sKA}, s{sE+st}, 1920"), ('x', f"s_add_u32 m0, s{sM0+1}, {(st%3)*ST}")]
            if i == 2: it = [('x', f"s_mov_b32 m0, s{sM0+3+st%3}")]
            return it + [('vm', f"buffer_load_dwordx4 v{212+i}, {srd(SQ)}, s{sKA} offen offset:{1024 if i == 1 else 0} {c.wsc} lds", ('S', st))]
        def dma_h(st, i):
            it = []
            if i == 0: it = [('x', f"s_mul_i32 s{sKB}, s{sE+st}, 1728"), ('x', f"s_add_u32 m0, s{sM0+2}, {(st%3)*ST}")]
            if i == 4: it = [('x', "s_add_u32 m0, m0, 4096")]
            return it + [('vm', f"buffer_load_dwordx4 v{215+i}, {srd(S1)}, s{sKB} offen offset:{(i%4)*1024} {c.wsc} lds", ('S', st))]
        def dma_stage(st): return dma_x(st) + [dma_a(st, i) for i in range(3)] + [dma_h(st, i) for i in range(5)]
        if c.fast:
            self.kernarg_wait()
            if c.touch == 3: self.touch()
            for g in dma_x(0): self.emit_items(g)
            if c.touch == 5: self.touch()
            self.small_dma(SM, 6, f"s{sKW}", None, 20, 'bias', f"s_add_u32 m0, s{sT2}, {L_BIASQH}")
        e(f"""s_mul_i32 s{sT0}, s{sW}, 3
        s_lshl_b32 s{sT1}, s{sW}, 1
        s_add_u32 s{sT1}, s{sT1}, 2
        s_cmp_lt_u32 s{sW}, 2
        s_cselect_b32 s{sT0}, s{sT0}, s{sT1}
        s_lshl_b32 s{sM0+1}, s{sT0}, 10
        s_add_u32 s{sM0+1}, s{sM0+1}, 16384""")
        for sl in range(3):
            e(f"s_add_u32 s{sM0+3+sl}, s{sM0+1}, {2048 + sl*ST}\ns_cmp_lt_u32 s{sW}, 2\ns_cselect_b32 s{sM0+3+sl}, s{sM0+3+sl}, {MISC+4608}")
        e(f"s_lshl_b32 s{sT0}, s{sT0}, 6\ns_mul_i32 s{sT1}, s{sHG}, 160\ns_mul_i32 s{sM0+2}, s{sW}, 5120\ns_add_u32 s{sM0+2}, s{sM0+2}, {16384+10240}")
        for i in range(3):
            e(f"v_add_u32 v9, {64*i}, v0\nv_add_u32 v9, s{sT0}, v9")
            self.attn_voff(212 + i, None, sT1)
            if i == 1: e("v_subrev_u32 v213, 1024, v213")
            if i == 2: e(f"s_cmp_lt_u32 s{sW}, 2\ns_cselect_b32 s{sT4}, 0, {OOB}\nv_add_u32 v214, s{sT4}, v214")
            if c.fast: self.emit_items(dma_a(0, i))
        if not c.fast:
            self.kernarg_wait()
            self.small_dma(SM, 6, f"s{sKW}", None, 20, 'bias', f"s_add_u32 m0, s{sT2}, {L_BIASQH}")
            for g in dma_x(0) + [dma_a(0, i) for i in range(3)]: self.emit_items(g)
        e(f"s_mul_i32 s{sT0}, s{sW}, 320\nv_mov_b32 v14, {OOB}")
        for i in range(5):
            e(f"""v_add_u32 v9, {64*i}, v0
            v_add_u32 v9, s{sT0}, v9
            v_mul_u32_u24 v10, 3277, v9
            v_lshrrev_b32 v10, 16, v10
            v_mul_u32_u24 v11, 20, v10
            v_sub_u32 v11, v9, v11
            v_bfe_u32 v13, v10, 2, 1
            v_lshlrev_b32 v13, 1, v13
            v_xor_b32 v11, v11, v13
            v_cmp_gt_u32 vcc, s{sK1}, v11""")
            self.swap23(10, 12)
            e(f"""v_mul_u32_u24 v10, 3456, v10
            v_lshl_add_u32 v10, v11, 4, v10
            v_add_u32 v10, s{sKW}, v10
            v_subrev_u32 v10, {(i%4)*1024}, v10
            v_cndmask_b32 v{215+i}, v14, v10, vcc""")
            self.emit_items(dma_h(0, i))
        self.pstamp(1)
        if c.pke:
            self.pack_setup()
            for g in self.pack_loads(): self.emit_items(g)
        if c.touch == 1: self.touch()
        if c.touch == 4:
            self.touch3_setup()
            for p_ in range(c.tp0): self.emit_items(self.touch3(p_))
        self.pstamp(2)
        def setup():
            e = self.e
            self.x_addr(ST); self.rho0(8)
            e(f"v_mul_u32_u24 v9, 160, v8\nv_mad_u32_u24 v9, v4, 40, v9\nv_add_u32 v226, 16384, v9")
            e(f"v_mul_u32_u24 v9, 320, v8\nv_lshl_add_u32 v9, v4, 3, v9\nv_add_u32 v9, {16384+10240}, v9\nv_lshl_add_u32 v229, v7, 5, v9\nv_xor_b32 v7, 1, v7\nv_lshl_add_u32 v232, v7, 5, v9")
            for sl in (1, 2): e(f"v_add_u32 v{226+sl}, {sl*ST}, v226\nv_add_u32 v{229+sl}, {sl*ST}, v229\nv_add_u32 v{232+sl}, {sl*ST}, v232")
            self.common_setup()
            if not c.pke: self.pack_setup()
            e(f"s_mul_i32 s{sT1}, s{sW}, 320\ns_add_u32 s{sT1}, s{sT1}, {L_BIASQH}\nv_lshl_add_u32 v13, v2, 3, s{sT1}")
            e(f"""s_lshl_b32 s{sT0}, s{sMT}, 1
            s_lshr_b32 s{sT1}, s{sW}, 1
            s_add_u32 s{sT0}, s{sT0}, s{sT1}
            s_and_b32 s{sT1}, s{sW}, 1
            s_mul_i32 s{sT2}, s{sT0}, 74
            s_lshl_b32 s{sT2}, s{sT2}, 12
            s_lshl_b32 s{sT3}, s{sT1}, 11
            s_add_u32 s{sT2}, s{sT2}, s{sT3}
            s_add_u32 s{sT2}, s{sT2}, {A2}
            s_lshr_b32 s{sT4}, s{sHG}, 1
            s_mul_i32 s{sT4}, s{sT4}, 5
            s_add_u32 s{sT4}, s{sT4}, 54
            s_lshl_b32 s{sT4}, s{sT4}, 12
            s_add_u32 s{sT4}, s{sT4}, s{sT2}
            s_and_b32 s{sT5}, s{sHG}, 1
            s_lshl_b32 s38, s{sT5}, 13
            s_add_u32 s38, s38, s{sT4}
            s_add_u32 s39, s{sT4}, {4*4096}
            s_lshl_b32 s{sT5}, s{sT5}, 3
            s_add_u32 s39, s39, s{sT5}
            s_lshl_b32 s{sT0}, s{sHG}, 4
            s_add_u32 s{sT0}, s{sT0}, s{sMT}
            s_lshl_b32 s{sT0}, s{sT0}, 2
            s_add_u32 s{sT0}, s{sT0}, s{sW}
            s_lshl_b32 s{sT0}, s{sT0}, 9
            s_add_u32 s43, s{sT0}, {GB}
            v_mov_b32 v204, -1
            v_mov_b32 v205, -1
            v_mov_b32 v206, -1
            v_mov_b32 v207, -1""")
        self.interleave(self.record(setup), dma_stage(1)[:c.n1], c.pe)
        self.pstamp(3)
        if c.n1 >= 12:
            self.small_dma(SM, 6, "s36", None, 50, 'misc', "s_mov_b32 m0, s37")
            if c.touch == 2: self.touch()
            if not c.pke:
                for g in self.pack_loads(): self.emit_items(g)
        self.tag_wait(); self.pstamp(4)
        e.wait(vm='bias')
        for s_ in range(10): e.lgop(f"ds_read_b64 v[{136+2*s_}:{137+2*s_}], v13 offset:{s_*32}", ('b', s_))
        for s_ in range(10):
            a0 = 16 + (5 + s_) * 8; e.wait(lg=('b', s_))
            for h in range(2): e(f"v_lshlrev_b32 v{a0+2*h}, 16, v{136+2*s_+h}\nv_and_b32 v{a0+2*h+1}, 0xffff0000, v{136+2*s_+h}")
        self.stamp(0)
        NS = 15; nm = NS * 4; mf = []; reads = []; mfl = []; readsl = []; gs = [0, 0]
        for st in range(10):
            sl = st % 3; seen = set()
            for t in range(NS):
                lt = int(st >= 10 - c.dfq and t < 5); M, RD_ = (mf, mfl)[lt], (reads, readsl)[lt]; stg = -1 if lt else st
                wr = 168 + 8 * (gs[lt] % 4); gs[lt] += 1; m0 = len(M)
                for ks in range(2):
                    for rd in range(2):
                        if t < 5: ad, off = 226 + sl, ks * 5120 + rd * 1280 + t * 8
                        else: ad, off = (229 if (t - 5) % 2 == 0 else 232) + sl, ks * 10240 + rd * 2560 + ((t - 5) >> 1) * 64
                        RD_.append([f"ds_read_b64_tr_b16 v[{wr+4*ks+2*rd}:{wr+4*ks+2*rd+1}], v{ad} offset:{off}", m0, stg, m0 - 13])
                for j in ((1, 0) if st == 0 else (0, 1)):
                    for ks in range(2):
                        xr = 136 + (st % 2) * 16 + (j * 2 + ks) * 4; d = 16 + (t * 2 + j) * 4
                        if (lt, j, ks) not in seen:
                            seen.add((lt, j, ks)); RD_.append([f"ds_read_b128 {vr(xr)}, v{220+2*sl+ks} offset:{j*2048}", len(M), stg, (len(M) // 20) * 20 - 21 if lt else -1])
                        cc = vr(d)
                        if st == 0 and ks == 0: cc = "0" if t < 5 else vr(16 + t * 8)
                        M.append(f"v_mfma_f32_16x16x32_bf16 {vr(d)}, {vr(wr+4*ks)}, {vr(xr)}, {cc}")
        po = lambda va, off: [('vm', f"buffer_store_dwordx4 v[204:207], v{va}, {srd(SWS)}, s38 offen offset:{off} sc1", 'hst')]
        poison = [po(6, 0), po(6, 1024), po(240, 0), po(240, 1024)] + [[('vm', f"buffer_store_dwordx2 v[204:205], v6, {srd(SWS)}, s39 offen offset:{j*1024} sc1", 'hst')] for j in range(2)]
        self.ulim = 51
        self.kloop(mf, reads, nm, dma_stage, poison, 'QH')
        A51 = lambda u: u < 51; A64 = lambda u: u < 64; ALL = lambda u: True
        self.gelu_consts()
        e(f"s_lshl_b32 s{sT3}, s{sKW}, 6\ns_add_u32 s{sT3}, s{sT3}, s{sT2}")
        L = []
        for p in range(5):
            for j in range(2):
                O = 152 + 4 * ((2 * p + j) % 4)
                L += self.gelu_lines(16 + ((5 + 2 * p) * 2 + j) * 4, 16 + ((6 + 2 * p) * 2 + j) * 4, 136 + 8 * j, O)
                if j == 0:
                    if p == 4: L += [f"s_add_u32 s{sT4}, s{sT3}, {4*4096}", f"s_cmp_lt_u32 s{sHG}, 6\ns_cselect_b32 s{sT4}, s{sT4}, {OOB}"]
                    else: L.append(f"s_add_u32 s{sT4}, s{sT3}, {p*4096}")
                L.append(('vm', f"buffer_store_dwordx4 {vr(O)}, v6, {srd(SWS)}, s{sT4} offen offset:{j*1024} sc1", 'hst'))
        self.valu(L, bg=A51, S=c.Sg)
        if mfl: self.stream(mfl, readsl, [], None, name='QHlate', bg=lambda m: A51)
        e(f"""s_lshl_b32 s{sT4}, s{sMT}, 4
        s_add_u32 s{sT4}, s{sT4}, s{sHG}
        s_lshl_b32 s{sT4}, s{sT4}, 7
        s_add_u32 s{sT4}, s{sT4}, {F4}
        s_cmp_eq_u32 s{sW}, 0
        s_cselect_b32 s{sT5}, s{sT4}, {OOB}
        s_mov_b32 s{sC0}, {fl(math.log2(math.e))}""")
        def pub():
            e.wait(vm='hst'); e("s_barrier")
            e.vmop(self.flag_store(245, 246, f"s{sT5}"), 'f4st')
        if c.f4at < 0: pub(); A51 = lambda u: u < 51 or u >= 64
        self.b2_loads()
        self.valu(self.cvt_heads(16, 56, 0) + self.cvt_heads(16, 66, 1), bg=A51)
        self.stamp(2)
        if c.stamps: e(f"s_mov_b32 s{sC0}, {fl(math.log2(math.e))}")
        e.wait(lg='wphi')
        self.valu(self.phi_mfmas(56, 76), bg=A51)
        L1 = self.softmax_lines(76, 16, 116)
        if c.f4at >= 0:
            self.valu(L1[:c.f4at], bg=A64); pub()
        self.valu(L1[max(c.f4at, 0):], bg=ALL)
        L2 = self.softmax_lines(96, 16, 136)
        self.valu(L2[:c.pa], bg=ALL)
        self.poll4a_issue()
        self.valu(L2[c.pa:c.pb], bg=ALL)
        pool = [[('v', r), c.mo + 1 if r < 204 else c.p3 if r < 220 else 999] for r in list(range(204, 224, 4)) + list(range(168, 204, 4))]
        while len(self.Bpend) > c.qleft: self.bg_try(ALL, -9999)
        self.ph2_begin(pool)
        if c.stamps == 3: e(f"s_mov_b32 s{sC0}, {fl(math.log2(math.e))}")
        self.valu(L2[c.pb:], bg=ALL)
        self.stamp(3)
        pool += [[('v', r), c.mo + 1] for r in range(156, 168, 4)]
        FO = (0, 1024, 2048, 2816)
        finld = [f"buffer_load_dwordx4 {vr(204+4*i)}, v6, {srd(SWS)}, s{sKW} offen offset:{FO[i]} sc1" for i in range(4)]
        finld += [f"buffer_load_dwordx4 {vr(248+4*j)}, v13, {srd(SWS)}, s43 offen offset:{j*256} sc1" for j in range(2)]
        def h_p3():
            e(f"""s_mul_i32 s{sKW}, s{sHG}, {FSZ}
            s_mul_i32 s{sK1}, s{sW}, 3840
            s_add_u32 s{sKW}, s{sKW}, s{sK1}
            s_add_u32 s{sKW}, s{sKW}, {FIN}
            v_lshlrev_b32 v13, 4, v1""")
            for l in finld: e.vmop(l, 'fin')
        def h_c3():
            it = [('st', 4, 1)] + [('x', l) for l in f"s_lshr_b32 s{sK1}, s{sK1}, 1\ns_add_u32 s{sK1}, s{sK1}, {L_FIN}\nv_lshl_add_u32 v9, v0, 3, s{sK1}".split("\n")] + [('wvm', 'fin')]
            it += [('x', l) for l in self.tag_check(finld, list(range(204, 220)) + list(range(248, 256)), 8)] + [('st', 5, 1)]
            it += [('x', self.tag_strip(r)) for r in list(range(204, 220)) + [248, 252]] + [('x', "v_mov_b32 v250, v248"), ('x', "v_mov_b32 v251, v252")]
            for i in range(4):
                it += [('x', f"v_cvt_pk_bf16_f32 v{204+4*i}, v{204+4*i}, v{205+4*i}"), ('x', f"v_cvt_pk_bf16_f32 v{205+4*i}, v{206+4*i}, v{207+4*i}"),
                       ('lg', f"ds_write_b64 v9, v[{204+4*i}:{205+4*i}] offset:{FO[i]//2}", 'fw')]
            it += [('x', l) for l in f"v_lshlrev_b32 v13, 6, v2\nv_lshl_add_u32 v13, v4, 4, v13\nv_add_u32 v13, {L_FIN}, v13".split("\n")]
            self.aq[:0] = [[self.m, c.mo - 3, x] for x in it]
        def h_o():
            if c.p1q < 0: self.poll4b_issue()
            fr = [p for p in pool if p[0][0] == 'a'][:8]; assert len(fr) == 8; self.busy = fr
            e.wait(lg='fw'); e("s_barrier")
            self.stamp(6)
            mf = []; reads = []
            for fp in range(5):
                for dg in range(6):
                    n = fp * 6 + dg; f0 = fr[n % 8][0][1]; base = (n // 2) * 8
                    reads.append([f"ds_read_b128 {ar(f0)}, v13 offset:{(dg*5+fp)*256}", base + 2 * (n % 2), -1, base - 24])
                    for h in range(2):
                        for j in range(2):
                            d = 156 + 24 * j + 4 * dg; b = 116 + 20 * j + 2 * (2 * fp + h)
                            mf.append(f"v_mfma_f32_4x4x4_16b_bf16 {vr(d)}, a[{f0+2*h}:{f0+2*h+1}], v[{b}:{b+1}], {vr(d) if (fp or h) else 0}")
            mf2 = []
            for n in range(0, 30, 2):
                a_, b_ = mf[4*n:4*n+4], mf[4*n+4:4*n+8]
                mf2 += [a_[0], a_[1], b_[0], b_[1], a_[2], a_[3], b_[2], b_[3]]
            if c.skip & 4: mf2 = mf2[:8]; reads = reads[:2]
            self.stream(mf2, reads, [], None, LA=20, bg=lambda m: self.ph2_bg)
            for j in range(2): e(f"v_add_f32 v{8+2*j}, {fl(1e-6)}, v{156+24*j+20}")
            for j in range(2): e(f"v_rcp_f32 v{8+2*j}, v{8+2*j}")
            for j in range(2): e(f"v_mul_f32 v{8+2*j}, v{8+2*j}, v{250+j}")
            for j in range(2):
                D = 156 + 24 * j
                for i in range(10): e(f"v_pk_mul_f32 v[{D+2*i}:{D+2*i+1}], v[{D+2*i}:{D+2*i+1}], v[{8+2*j}:{9+2*j}] op_sel_hi:[1,0]")
                for i in range(10): e(f"v_cvt_pk_bf16_f32 v{D+i}, v{D+2*i}, v{D+2*i+1}")
                for i in range(10): e(f"v_min_u32 v{D+i}, -2, v{D+i}")
                e.vmop(f"buffer_store_dwordx4 {vr(D)}, v6, {srd(SWS)}, s38 offen offset:{j*1024} sc1", 'ost')
                e.vmop(f"buffer_store_dwordx4 {vr(D+4)}, v240, {srd(SWS)}, s38 offen offset:{j*1024} sc1", 'ost')
                e.vmop(f"buffer_store_dwordx2 {vr(D+8, 2)}, v6, {srd(SWS)}, s39 offen offset:{j*1024} sc1", 'ost')
            self.busy = []
            for p in pool: p[1] = 999
            pool.extend([[('v', r), 999] for r in range(116, 156, 4)])
            self.stamp(14)
        self.bias2()
        self.phase2({c.p3: h_p3, c.c3: h_c3, c.mo: h_o, c.p1q: self.poll4b_issue, c.c1q: self.poll4b_check})

    def prog_KV(self):
        e = self.e; c = self.c; self.init_B(); self.dmap = {0: 2, 1: 4, 3: 6, 4: 8, 5: 10, 7: 12, 9: 14}
        ST = KV_ST
        e(f"""s_mul_i32 s{sM0+1}, s{sW}, 5120
        s_add_u32 s{sM0+1}, s{sM0+1}, 16384
        s_lshl_b32 s{sM0+2}, s{sW}, 11
        s_add_u32 s{sM0+2}, s{sM0+2}, 36864
        s_lshl_b32 s{sKW}, s{sHG}, 7
        s_add_u32 s{sKW}, s{sKW}, {19*128}""")
        def dma_x(st):
            g = []
            for j in range(4):
                it = [('x', f"s_add_u32 m0, s{sM0}, {(st%3)*ST}")] if j == 0 else []
                g.append(it + [('vm', f"buffer_load_dwordx4 v{208+j}, {srd(SX)}, s{sE+st} offen offset:{j*1024} {c.xsc} lds", ('S', st))])
            return g
        def dma_w(st, i):
            it = []
            if i == 0: it = [('x', f"s_mul_i32 s{sKA}, s{sE+st}, 1920"), ('x', f"s_add_u32 m0, s{sM0+1}, {(st%3)*ST}")]
            if i == 4: it = [('x', "s_add_u32 m0, m0, 4096")]
            return it + [('vm', f"buffer_load_dwordx4 v{212+i}, {srd(SQ)}, s{sKA} offen offset:{(i%4)*1024} {c.wsc} lds", ('S', st))]
        def dma_h(st, i):
            it = [('x', f"s_mul_i32 s{sKB}, s{sE+st}, 1728"), ('x', f"s_add_u32 m0, s{sM0+2}, {(st%3)*ST}")] if i == 0 else []
            return it + [('vm', f"buffer_load_dwordx4 v{217+i}, {srd(S1)}, s{sKB} offen offset:{i*1024} {c.wsc} lds", ('S', st))]
        def dma_stage(st): return dma_x(st) + [dma_w(st, i) for i in range(5)] + [dma_h(st, i) for i in range(2)]
        if c.fast:
            self.kernarg_wait()
            if c.touch == 3: self.touch()
            for g in dma_x(0): self.emit_items(g)
            if c.touch == 5: self.touch()
            self.small_dma(SM, 6, f"s{sKW}", L_BIASKV, 8, 'bias')
        e(f"""s_and_b32 s{sT0}, s{sW}, 1
        s_mul_i32 s{sT0}, s{sT0}, 320
        s_lshr_b32 s{sT1}, s{sW}, 1
        s_add_u32 s{sT1}, s{sT1}, 1
        s_mul_i32 s{sT1}, s{sT1}, 1280
        s_mul_i32 s{sT3}, s{sHG}, 160
        s_add_u32 s{sT1}, s{sT1}, s{sT3}""")
        for i in range(5):
            e(f"v_add_u32 v9, {64*i}, v0\nv_add_u32 v9, s{sT0}, v9")
            self.attn_voff(212 + i, None, sT1)
            if i % 4: e(f"v_subrev_u32 v{212+i}, {(i%4)*1024}, v{212+i}")
            if c.fast: self.emit_items(dma_w(0, i))
        if not c.fast:
            self.kernarg_wait()
            self.small_dma(SM, 6, f"s{sKW}", L_BIASKV, 8, 'bias')
            for g in dma_x(0) + [dma_w(0, i) for i in range(5)]: self.emit_items(g)
        e(f"s_lshl_b32 s{sT3}, s{sW}, 4\nv_lshlrev_b32 v11, 1, v2\nv_xor_b32 v11, v11, v0\nv_and_b32 v11, 7, v11")
        for pp in range(2):
            e(f"v_add_u32 v10, {8*pp}, v5\nv_add_u32 v10, s{sT3}, v10")
            self.swap23(10, 12)
            e(f"""v_mul_u32_u24 v10, 3456, v10
            v_lshl_add_u32 v10, v11, 4, v10
            v_add_u32 v10, s{sKW}, v10
            v_subrev_u32 v{217+pp}, {pp*1024}, v10""")
            self.emit_items(dma_h(0, pp))
        mk_srd(e, 28, pGATE, 1280)
        if c.rot == 4: e(f"v_xor_b32 v9, s{sE}, v6\ns_and_b32 s{sT3}, s{sE}, 128\nv_xor_b32 v11, s{sT3}, v6\nv_add_u32 v11, 1024, v11")
        elif c.rot == 3: e(f"v_xor_b32 v9, s{sE}, v6\nv_add_u32 v11, 1024, v9")
        else: e(f"v_add_u32 v9, s{sE}, v6\nv_subrev_u32 v10, 1280, v9\nv_min_u32 v9, v9, v10\nv_add_u32 v11, 1024, v9\nv_subrev_u32 v10, 1280, v11\nv_min_u32 v11, v11, v10")
        self.small_dma(28, 9, "0", L_GATE, 64, ('S', 0)); self.small_dma(28, 11, "0", L_GATE + 1024, 16, ('S', 0))
        self.pstamp(1)
        if c.pke:
            self.pack_setup()
            for g in self.pack_loads(): self.emit_items(g)
        if c.touch == 1: self.touch()
        if c.touch == 4:
            self.touch3_setup()
            for p_ in range(c.tp0): self.emit_items(self.touch3(p_))
        self.pstamp(2)
        def setup():
            e = self.e
            self.x_addr(ST); self.rho0(8)
            e(f"v_mul_u32_u24 v9, 160, v8\nv_mad_u32_u24 v9, v4, 40, v9\nv_add_u32 v226, 16384, v9")
            for sl in (1, 2): e(f"v_add_u32 v{226+sl}, {sl*ST}, v226")
            e(f"v_lshlrev_b32 v9, 7, v8\nv_lshl_add_u32 v9, v4, 3, v9\nv_add_u32 v9, 36864, v9\nv_bfe_u32 v10, v8, 1, 2")
            for t in range(4): e(f"v_xor_b32 v11, {t}, v10\nv_lshl_add_u32 v{229+t}, v11, 5, v9\nv_add_u32 v{204+t}, {2*ST}, v{229+t}")
            e(f"v_lshlrev_b32 v233, 4, v2\nv_add_u32 v233, {L_GATE}, v233\nv_lshlrev_b32 v253, 3, v2\nv_add_u32 v253, {L_BIASKV}, v253")
            self.common_setup()
            if not c.pke: self.pack_setup()
            e(f"""v_lshrrev_b32 v8, 2, v1
            v_mul_u32_u24 v8, 2560, v8
            v_lshl_add_u32 v8, v4, 5, v8
            v_lshrrev_b32 v9, 1, v2
            v_lshl_add_u32 v8, v9, 9, v8
            v_and_b32 v9, 1, v2
            v_lshl_add_u32 v8, v9, 4, v8
            s_lshl_b32 s{sT0}, s{sW}, 7
            v_add_u32 v241, s{sT0}, v8
            v_add_u32 v243, 10240, v241
            v_mov_b32 v9, {OOB}
            v_cmp_ge_u32 vcc, 7, v1
            v_cndmask_b32 v243, v9, v243, vcc
            v_cmp_gt_u32 vcc, 2, v2
            v_cndmask_b32 v242, v9, v241, vcc
            v_cndmask_b32 v244, v9, v243, vcc
            v_mul_u32_u24 v12, {PSZ}, v2
            v_min_u32 v10, 14, v1
            v_lshl_add_u32 v12, v10, 4, v12
            v_lshlrev_b32 v13, 4, v1
            v_cmp_gt_u32 vcc, 16, v0
            v_cndmask_b32 v234, v9, v13, vcc
            v_cmp_gt_u32 vcc, 15, v0
            v_cndmask_b32 v13, v9, v13, vcc""")
        self.interleave(self.record(setup), dma_stage(1)[:c.n1], c.pe2)
        self.pstamp(3)
        if c.n1 >= 12:
            self.small_dma(SM, 6, "s36", None, 50, 'misc', "s_mov_b32 m0, s37")
            if c.touch == 2: self.touch()
            if not c.pke:
                for g in self.pack_loads(): self.emit_items(g)
        self.tag_wait(); self.pstamp(4)
        e.wait(vm='bias')
        for s_ in range(4): e.lgop(f"ds_read_b64 v[{136+2*s_}:{137+2*s_}], v253 offset:{s_*32}", ('b', s_))
        for s_ in range(4):
            e.wait(lg=('b', s_))
            for h in range(2): e(f"v_lshlrev_b32 v{96+8*s_+2*h}, 16, v{136+2*s_+h}\nv_and_b32 v{97+8*s_+2*h}, 0xffff0000, v{136+2*s_+h}")
        self.stamp(0)
        NS = 15; nm = NS * 4; mf = []; reads = []; late = []; gs = 0
        S0 = 10 - c.dfr; AD = AW - 56 * c.dfr
        for st in range(10):
            sl = st % 3; mst = len(mf)
            for t in range(NS):
                dfr = st >= S0 and t >= 10
                wr = (('a', AD + (st - S0) * 56 + 16 + (t - 10) * 8) if dfr else ('v', 168 + 8 * (gs % 4))); m0 = len(mf)
                dl, ea = (mst + 6 + 6 * (t - 10), -1) if dfr else (m0, m0 - 13)
                RR = lambda o, n: R((wr[0], wr[1] + o), n)
                for ks in range(2):
                    if t == 14: reads.append([f"ds_read_b128 {RR(4*ks, 4)}, v233 offset:{(st*2+ks)*64}", dl, st, ea]); continue
                    for rd in range(2):
                        if t < 10: ad, off = 226 + sl, (t // 5) * 10240 + ks * 5120 + rd * 1280 + (t % 5) * 8
                        else: ad, off = (229 if sl < 2 else 204) + t - 10, (sl % 2) * ST + ks * 4096 + rd * 1024
                        reads.append([f"ds_read_b64_tr_b16 {RR(4*ks+2*rd, 2)}, v{ad} offset:{off}", dl, st, ea])
                for j in ((1, 0) if st == 0 else (0, 1)):
                    for ks in range(2):
                        xr = ('a', AD + (st - S0) * 56 + (j * 2 + ks) * 4) if st >= S0 else ('v', 136 + (st % 2) * 16 + (j * 2 + ks) * 4)
                        d = 16 + (t * 2 + j) * 4
                        if t == 0: reads.append([f"ds_read_b128 {R(xr)}, v{220+2*sl+ks} offset:{j*2048}", len(mf), st, -1])
                        cc = vr(d)
                        if st == 0 and ks == 0: cc = vr(16 + t * 8) if 10 <= t < 14 else "0"
                        (late if dfr else mf).append(f"v_mfma_f32_16x16x32_bf16 {vr(d)}, {RR(4*ks, 4)}, {R(xr)}, {cc}")
                if not dfr: gs += 1
        self.ulim = AD // 4
        self.kloop(mf, reads, nm, dma_stage, [], 'KV')
        e.wait(lg_all=True)
        A64 = lambda u: u < 64; ALL = lambda u: True
        A51 = lambda u: u < 51; Sa = c.Sa
        ALL0 = ALL; ALL = lambda u: u < self.ulim or u >= 51
        KQ = 136; PR = 168; VT = 156
        nl2e = fl(-math.log2(math.e))
        side = [l.strip() for l in f"""v_mul_f32 v128, {nl2e}, v128
        v_mul_f32 v132, {nl2e}, v132
        v_exp_f32 v128, v128
        v_exp_f32 v132, v132
        s_lshl_b32 s{sT2}, s{sMT}, 2
        v_add_f32 v128, 1.0, v128
        v_add_f32 v132, 1.0, v132
        v_rcp_f32 v128, v128
        v_rcp_f32 v132, v132
        s_add_u32 s{sT2}, s{sT2}, s{sW}
        s_lshl_b32 s{sT3}, s{sT2}, 9
        s_lshl_b32 s{sT4}, s{sHG}, 15
        s_add_u32 s{sT3}, s{sT3}, s{sT4}
        s_add_u32 s{sT3}, s{sT3}, {GB}
        v_mul_u32_u24 v220, {RSV}, v1
        v_mad_u32_u24 v220, v2, 48, v220
        s_mul_i32 s{sT0}, s{sW}, {32*RSV}
        s_add_u32 s{sT0}, s{sT0}, {L_V}
        v_add_u32 v220, s{sT0}, v220
        v_mul_u32_u24 v221, {RSP}, v1
        s_mov_b32 s{sT0}, 80
        v_mad_u32_u24 v221, v2, s{sT0}, v221
        s_mul_i32 s{sT0}, s{sW}, {32*RSP}
        v_add_u32 v221, s{sT0}, v221
        v_lshl_add_u32 v8, v2, 2, v3
        v_mul_u32_u24 v222, {RSP}, v8
        v_lshl_add_u32 v222, v4, 3, v222
        s_mul_i32 s{sT0}, s{sW}, 80
        v_add_u32 v222, s{sT0}, v222
        v_mul_u32_u24 v223, {RSV}, v8
        v_lshl_add_u32 v223, v4, 3, v223
        s_mul_i32 s{sT0}, s{sW}, 48
        s_add_u32 s{sT0}, s{sT0}, {L_V}
        v_add_u32 v223, s{sT0}, v223
        s_lshl_b32 s{sT0}, s{sHG}, 4
        s_add_u32 s{sT0}, s{sT0}, s{sMT}
        s_mul_i32 s{sT1}, s{sT0}, {PSZ}
        s_add_u32 s{sT1}, s{sT1}, {PP}
        s_mov_b32 s{sC0}, {fl(math.log2(math.e))}""".split("\n")]
        self.b2_loads(); self.tag_update()
        self.valu(self.cvt_heads(16, KQ, 0) + self.cvt_heads(16, KQ + 10, 1))
        e.wait(lg='wphi')
        gate = side[:14]; side = self.cvt_heads(56, VT, 0) + side[14:38]
        self.valu(self.phi_mfmas(KQ, PR), [[('x', l)] for l in side], 1)
        e(f"v_mov_b32 v{VT+10}, 0x3f80\nv_mov_b32 v{VT+11}, 0\ns_mov_b32 s{sC0}, {fl(math.log2(math.e))}\ns_barrier")
        for i in range(3): e.lgop(f"ds_write_b128 v220, {vr(VT+4*i)} offset:{i*16}", 'vw')
        L0 = self.softmax_lines(PR, 16, 136)
        self.valu(L0[:16], bg=ALL, S=Sa)
        self.valu(self.cvt_heads(56, 208, 1) + ["v_mov_b32 v218, 0x3f80", "v_mov_b32 v219, 0"], bg=ALL, S=Sa)
        for i in range(3): e.lgop(f"ds_write_b128 v220, {vr(208+4*i)} offset:{16*RSV + i*16}", 'vw')
        self.valu(L0[16:], bg=ALL, S=Sa)
        PH = (136, 56)
        pw = lambda j: [[('lg', f"ds_write_b128 v221, {vr(PH[j]+4*i)} offset:{j*16*RSP + i*16}", 'pw')] for i in range(5)]
        L1 = self.softmax_lines(PR + 20, 16, 56)
        self.valu(L1[:40], pw(0), 8, ALL, Sa)
        self.valu(L1[40:-20], bg=ALL, S=Sa)
        self.valu(L1[-20:], pw(1), 4)
        e.wait(lg_all=True); e("s_barrier")
        self.stamp(2)
        mf = []; reads = []; D0 = 168
        for s_ in range(4):
            b0 = 16 + s_ * 20; m0 = len(mf)
            for dt in range(2):
                for rd in range(2): reads.append([f"ds_read_b64_tr_b16 v[{b0+12+4*dt+2*rd}:{b0+13+4*dt+2*rd}], v223 offset:{(32*s_+16*rd)*RSV + dt*32}", m0 + dt, -1, -1])
            for ft in range(3):
                for rd in range(2): reads.append([f"ds_read_b64_tr_b16 v[{b0+4*ft+2*rd}:{b0+4*ft+2*rd+1}], v222 offset:{(32*s_+16*rd)*RSP + ft*32}", m0 + 2 * ft, -1, -1])
                for dt in range(2):
                    d = D0 + (ft * 2 + dt) * 4
                    mf.append(f"v_mfma_f32_16x16x32_bf16 {vr(d)}, {vr(b0+4*ft)}, {vr(b0+12+4*dt)}, {vr(d) if s_ else 0}")
        reads.sort(key=lambda r: r[1]); rp = 0
        for m in range(24):
            while rp < 40 and (len(e.lg) < 14 and (m == 0 or reads[rp][1] <= m + 8) or reads[rp][1] <= m): e.lgop(reads[rp][0], ('kv', reads[rp][1])); rp += 1
            e.wait(lg=[('kv', k) for k in range(m + 1)])
            e(mf[m])
            if c.kvb: self.bg_try(ALL, c.kvb)
        e("s_nop 4")
        for ft in range(3):
            for dt in range(2):
                for i in range(4): e(self.tag_put(D0 + (ft * 2 + dt) * 4 + i))
                e.vmop(f"buffer_store_dwordx4 {vr(D0+(ft*2+dt)*4)}, v{241+2*dt+(ft==2)}, {srd(SWS)}, s{sT1} offen offset:{ft*1024} sc1", 'pst')
        self.stamp(3)
        sc = [l.strip() for l in f"""s_lshl_b32 s{sT2}, s{sMT}, 2
        s_add_u32 s{sT2}, s{sT2}, s{sW}
        s_lshl_b32 s{sT4}, s{sMT}, 1
        s_lshr_b32 s{sT5}, s{sW}, 1
        s_add_u32 s{sT4}, s{sT4}, s{sT5}
        s_and_b32 s{sT5}, s{sW}, 1
        s_mul_i32 s{sT0}, s{sT4}, 74
        s_lshl_b32 s{sKW}, s{sHG}, 1
        s_add_u32 s{sT0}, s{sT0}, s{sKW}
        s_add_u32 s{sT0}, s{sT0}, 38
        s_lshl_b32 s{sT0}, s{sT0}, 12
        s_lshl_b32 s{sT5}, s{sT5}, 11
        s_add_u32 s{sT0}, s{sT0}, s{sT5}
        s_add_u32 s{sT0}, s{sT0}, {A2}
        s_lshl_b32 s{sKW}, s{sMT}, 4
        s_add_u32 s{sKW}, s{sKW}, s{sHG}
        s_lshl_b32 s{sKW}, s{sKW}, 7
        s_add_u32 s{sKW}, s{sKW}, {F4+1024}
        s_mul_i32 s32, s{sT2}, 240
        s_mul_i32 s{sT4}, s{sHG}, {FSZ}
        s_add_u32 s{sT1}, s32, s{sT4}
        s_add_u32 s{sT1}, s{sT1}, {FIN}
        s_lshl_b32 s{sT4}, s{sT4}, 4
        s_add_u32 s32, s32, s{sT4}
        s_add_u32 s32, s32, {PP}
        s_add_u32 s33, s32, {4*PSZ}
        s_add_u32 s34, s33, {4*PSZ}
        s_add_u32 s35, s34, {4*PSZ}""".split("\n")] + [f"s_cmp_eq_u32 s{sW}, 0\ns_cselect_b32 s{sKW}, s{sKW}, {OOB}"]
        sd = [[('x', l)] for l in sc]
        self.valu(late, sd, 1, ALL if c.kvb else None, c.kvb)
        for g in sd: self.emit_items(g)
        ALL = ALL0
        for l in gate: e(l)
        for j in range(2):
            for i in (3, 2, 1, 0): e(self.tag_put(128 + 4 * j + i, 128 + 4 * j))
            e.vmop(f"buffer_store_dwordx4 {vr(128+4*j)}, v234, {srd(SWS)}, s{sT3} offen offset:{j*256} sc1", 'hst')
        self.gelu_consts()
        L = []; hs = []
        for p in range(2):
            for j in range(2):
                O = 152 + 4 * ((2 * p + j) % 4)
                L += self.gelu_lines(96 + (4 * p + j) * 4, 96 + (4 * p + 2 + j) * 4, 136 + 8 * j, O)
                hs.append(('vm', f"buffer_store_dwordx4 {vr(O)}, v{6 if p == 0 else 240}, {srd(SWS)}, s{sT0} offen offset:{j*1024} sc1", 'hst'))
        RD = 16
        pld = [f"buffer_load_dwordx4 {vr(RD+4*i)}, v12, {srd(SWS)}, s{32+i} offen sc1" for i in range(4)]
        self.valu(L[:c.kpl], bg=ALL if c.kgb else None, S=Sa)
        for l in pld: e.vmop(l, 'pld')
        if c.kp4 == 0: self.poll4a_issue()
        self.valu(L[c.kpl:], bg=ALL if c.kgb else None, S=Sa)
        if c.khs == 0: self.emit_items(hs)
        pool = [[('v', r), 999] for r in list(range(168, 224, 4)) + list(range(116, 152, 4))]
        for _ in range(c.kb2): self.bg_try(ALL, -9999)
        self.stamp(4)
        def h_r2():
            red = [self.tag_strip(RD + i) for i in range(16)]
            red += [f"v_add_f32 v{RD+i}, v{RD+i}, v{RD+4+i}" for i in range(4)] + [f"v_add_f32 v{RD+8+i}, v{RD+8+i}, v{RD+12+i}" for i in range(4)] + [f"v_add_f32 v{RD+i}, v{RD+i}, v{RD+8+i}" for i in range(4)]
            for sw in ('32', '16'):
                red += [f"v_mov_b32 v{RD+4+i}, v{RD+i}" for i in range(4)] + [f"v_permlane{sw}_swap_b32 v{RD+i}, v{RD+4+i}" for i in range(4)] + [f"v_add_f32 v{RD+i}, v{RD+i}, v{RD+4+i}" for i in range(4)]
            red += [self.tag_put(RD + i) for i in range(4)]
            it = [('st', 14, 1), ('wvm', 'pld')] + [('x', l) for l in self.tag_check(pld, range(RD, RD + 16), 9)] + [('st', 5, 1)] + [('x', l) for l in red]
            it += [('vm', f"buffer_store_dwordx4 {vr(RD)}, v13, {srd(SWS)}, s{sT1} offen sc1", 'fst')]
            self.emit_items(it)
        def h_f4():
            e.wait(vm='hst'); e("s_barrier"); e.vmop(self.flag_store(245, 246, f"s{sKW}"), 'f4st')
        h_r2()
        if c.khs == 1:
            self.emit_items(hs)
            for _ in range(c.kb4): self.bg_try(ALL, -9999)
        pool += [[('v', r), 999] for r in range(152, 168, 4)]
        if c.f4k < 0: h_f4()
        if c.kp4 == 1:
            self.poll4a_issue()
            for _ in range(c.kb3): self.bg_try(ALL, -9999)
        self.ph2_begin(pool)
        while len(self.Bpend) > c.kleft: self.bg_try(ALL, -9999)
        self.stamp(6)
        self.bias2()
        self.phase2({c.f4k: h_f4, c.p1: self.poll4b_issue, c.c1: self.poll4b_check})

    def kloop(self, mf, reads, nm0, dma_stage, poison, name):
        e = self.e; c = self.c; back = []
        def mksync(st):
            def f(m):
                nm = nm0 - (20 if st >= 10 - (c.dfr if name == 'KV' else c.dfq) else 0)
                tg = [it[2] for g in back for it in (g[1] if g[0] == 'atomic' else g) if it[0] == 'vm']
                assert not (st == c.pks and 'packld' in tg) and not (st == c.pks + 3 and 'pkst' in tg) and not (st == 3 and 'misc' in tg) and ('S', st) not in tg
                e.wait(vm=[('S', st)] + (['pkst'] if st == c.pks + 3 else []) + (['misc'] if st == 3 else []) + (['packld'] if st == c.pks else []), lg_all=True); e("s_barrier")
                self.stamp(st + 1, 2)
                if st < 3: self.stamp(7 + st, 3)
                if st == 2: self.pstamp_flush()
                out = []
                if st == 0 and c.n1 < 12:
                    back.extend(dma_stage(1)[c.n1:])
                    back.append(('atomic', self.record(lambda: self.small_dma(SM, 6, "s36", None, 50, 'misc', "s_mov_b32 m0, s37"))))
                if st + 2 < 10: back.extend(dma_stage(st + 2))
                if st == c.pkl and c.n1 < 12: back.extend(self.pack_loads())
                if st == c.pks: back.extend(self.pack_stores())
                if c.f1s < st < 8 or (st == c.f1s and st < 8 and c.f1c + 8 < nm - 16):
                    for u in self.Bpend[:c.bk]: self.Bpend.remove(u); back.append(self.B_take([u])[0])
                need = max([k + 1 for k, g in enumerate(back) if g[0] != 'atomic' and g[-1][2] == ('S', st + 1)], default=0)
                n = min(len(back), max(c.quota, need)) if st < 7 else len(back)
                take = back[:n]; del back[:n]
                if take:
                    pc = self.paced([g[1] if g[0] == 'atomic' else g for g in take], m, nm - c.dtail)
                    for f, g in zip(pc, take):
                        if g[0] == 'atomic': f['atomic'] = 1
                    out += pc
                if c.touch == 4: out += [dict(at=m + nm - c.dtail + 1, chain=1, ins=self.touch3(p_)) for p_ in range(c.tp0, 3) if c.tst[p_] == st]
                if st in c.cpf: out.append(dict(at=m + nm - c.dtail + 2, ins=self.code_touch('L_QH' if name == 'KV' else 'L_end')))
                if st == c.pks: out += self.pack_fill(m, nm)
                if st == c.pks + 3: out.append(dict(at=m + 1, ins=[('vm', self.flag_store(245, 246, f"s{sF1}"), 'f1st')]))
                if st == 3: out += [dict(at=m + 3 + 5 * k, ins=g) for k, g in enumerate(self.wphi_reads(254))]
                if st == c.f1s - 1: g = self.f1_issue()[0]; out += [dict(at=m + nm - 30, ins=g[:-1]), dict(at=m + nm - c.dtail, chain=1, ins=g[-1:])]
                if st == c.f1s:
                    chk = [dict(at=m + c.f1c + 2 * k, ins=[it]) for k, it in enumerate(self.f1_check())]
                    out += chk
                    if c.bt: out += [dict(at=m + c.f1c + 26 + c.btsp * k, ins=g) for k, g in enumerate(self.btouch())]
                if st == 9 and name == 'KV': out.append(dict(at=m + 4, ins=self.record(self.tag_issue)))
                if st == 8:
                    if poison: out += self.paced(poison, m, 30)
                    self.bg0 = max(m + c.bgs, (m + c.f1c + 8) if c.f1s == 8 else 0)
                return out
            return f
        self.bg0 = 9999; self.wphi_addr(254)
        self.stream(mf, reads, [], {st: mksync(st) for st in range(10)}, name=name, bg=lambda m: (lambda u: m >= self.bg0 and u < self.ulim))
        self.stamp(1); self.stamp(11, 2)
        self.typ = name
        if c.dly == (1 if name == 'KV' else 2): e(f's_sleep {c.dlyn}')
        self.ph2_pre()

    def ph2_pre(self):
        e = self.e
        mk_srd(e, SM, pB2, 1280); mk_srd(e, SPK, pOUT, 2048 * 1280)
        e(f"""s_mul_i32 s{sM0}, s{sNB}, 160
        s_and_b32 s{sM0+1}, s{sNB}, 1
        s_lshl_b32 s{sM0+2}, s{sM0+1}, 5
        s_add_u32 s{sM0+2}, s{sM0+2}, s{sM0}
        s_xor_b32 s{sM0+1}, s{sM0+1}, 1
        s_lshl_b32 s{sM0+1}, s{sM0+1}, 7
        s_add_u32 s{sM0+1}, s{sM0+1}, s{sM0}
        s_min_u32 s{sM0+3}, s{sW}, 1
        s_mul_i32 s{sM0+3}, s{sM0+3}, 1280
        s_sub_u32 s{SM+2}, 1280, s{sM0+3}
        s_lshr_b32 s{sM0+5}, s{sRB}, 1
        s_lshl_b32 s{sM0+3}, s{sM0+5}, 11
        s_add_u32 s{sM0+3}, s{sM0+3}, {F4}
        s_add_u32 s{sM0+4}, s{sM0+3}, 1024
        v_and_b32 v235, 7, v0
        v_lshlrev_b32 v235, 7, v235""")
    def b2_loads(self):
        e = self.e
        e("v_lshlrev_b32 v7, 4, v2\nv_lshlrev_b32 v8, 3, v2")
        e.vmop(f"buffer_load_dwordx4 v[224:227], v7, {srd(SM)}, s{sM0+2} offen", 'b2')
        e.vmop(f"buffer_load_dwordx4 v[228:231], v7, {srd(SM)}, s{sM0+2} offen offset:64", 'b2')
        e.vmop(f"buffer_load_dwordx2 v[232:233], v8, {srd(SM)}, s{sM0+1} offen", 'b2')
    def poll4a_issue(self): self.e.vmop(self.poll_issue(235, 252, 2, None, f"s{sM0+3}"), 'p4a')

    def poll4b_issue(self): self.e.vmop(self.poll_issue(235, 252, 2, None, f"s{sM0+4}"), 'p4b')
    def poll4b_check(self):
        e = self.e
        self.stamp(10)
        e.wait(vm='p4b')
        for l in self.poll_check([(235, 252, 2, f"s{sM0+4}")]): e(l)
        self.stamp(11)
        self.gate[1] = True; self.g_loads()
        for _ in range(self.c.burst): self.try_issue(self.m, True)
    def g_loads(self):
        e = self.e
        e(f"s_lshl_b32 s{sT0}, s{sRB}, 10\ns_add_u32 s{sT0}, s{sT0}, {GB}\nv_lshlrev_b32 v7, 4, v1")
        for jj in range(4):
            e(f"v_subrev_u32 v8, v6, v{236+jj}\nv_lshrrev_b32 v8, 2, v8\nv_add_u32 v8, v8, v7")
            e.vmop(f"buffer_load_dword v{241+jj}, v8, {srd(SWS)}, s{sT0} offen sc1", 'g')
    def bias2(self):
        e = self.e; BI = 96
        e.wait(vm='b2')
        for t in range(5):
            for h in range(2):
                s_ = 224 + 2 * t + h
                e(f"v_lshlrev_b32 v{BI+4*t+2*h}, 16, v{s_}\nv_and_b32 v{BI+4*t+2*h+1}, 0xffff0000, v{s_}")

    def ph2_begin(self, pool):
        e = self.e; c = self.c
        e.wait(vm='p4a')
        for l in self.poll_check([(235, 252, 2, f"s{sM0+3}")]): e(l)
        self.pool = pool; self.busy = []; self.Aloc = {}; self.Bl = dict(self.Bloc); self.Acur = {}
        groups = [(0, 1), (2, 3), (4, 5), (6, 7), (8, 9), (10, 11), (12, 13), (14, 15), (16, 17, 18)]
        self.mf = [(i, t, j) for g in groups for t in range(5) for j in range(4) for i in g]
        fA, lA, fB, lB = {}, {}, {}, {}
        for m, (i, t, j) in enumerate(self.mf):
            fA.setdefault((i, j), m); lA[(i, j)] = m; fB.setdefault((i, t), m); lB[(i, t)] = m
        self.lA, self.lB = lA, lB
        w = [('A', k, fA[k] if k[0] < 14 else (280 if k[0] < 16 else 320) - c.vlead - 1, lA[k]) for k in fA]
        w += [('S', k, fB[k], lB[k]) for k in fB if self.Bl[k] and self.Bl[k][0] == 'l']
        w += [('B', k, fB[k], lB[k]) for k in fB if self.Bl[k] is None]
        self.fB = fB
        self.work = sorted(w, key=lambda x: (x[2] // 40 * 40 + x[1][0] % 2 * 4 + x[1][1]) if (x[0] == 'A' and c.aord and x[1][0] < 14) else x[2]); self.gate = {0: True, 1: False, 2: False, 3: False}; self.Atxt = {}; self.lastiss = -99; self.m = 0
        for _ in range(c.a0): self.try_issue(0, True)

    def try_issue(self, m, force=False, nos=False):
        e = self.e; c = self.c; pool = self.pool
        cls = lambda i: 0 if i < 10 else (1 if i < 14 else 2 if i < 16 else 3)
        for w in self.work:
            kind, k, dl, last = w
            if kind == 'A' and not self.gate[cls(k[0])]: continue
            if kind == 'S' and (nos or dl - m > 16 or self.Border.index(k) in self.Bpend): continue
            if kind != 'S' and not force and dl - m >= 12 and e.t - e.tvm < (c.S2 if dl - m >= c.urg else c.S3): continue
            if kind == 'P':
                self.Bpend.remove(k); self.emit_items(self.B_take([k])[0]); self.work.remove(w); return True
            ok = [p for p in pool if p[1] > last and p not in self.busy and (p[0][0] == 'v' or kind != 'A' or k[0] < 14)]
            if not (kind == 'A' and k[0] >= 14): ok.sort(key=lambda p: p[0][0] == 'v' and m > 150)
            if len(ok) < (1 if dl - m <= 40 else 4 if kind == 'A' else 7): continue
            p = ok[0]; pool.remove(p); loc = p[0]; self.until[loc] = p[1]
            if kind == 'A':
                i, j = k; sr = sAT if i % 2 == 0 else sAT2
                if self.Acur.get(sr) != i:
                    e(self.soff(sr, i, 'A')); self.Acur[sr] = i
                e.vmop(f"buffer_load_dwordx4 {R(loc)}, v{236+j}, {srd(SWS)}, s{sB if c.xA == 1 and i < 14 else 41 if c.xA == 2 else sr} offen sc1", ('A', k)); self.Aloc[k] = loc
                self.Atxt[k] = self.soff(sT1, i, 'A').split("\n") + [ f"buffer_load_dwordx4 {R(loc)}, v{236+j}, {srd(SWS)}, s{sT1} offen sc1"]
            elif kind == 'B':
                self.emit_items(self.B_items(k, loc)); self.Bl[k] = loc
            else:
                e.wait(vm=('B', k))
                e.lgop(f"ds_read_b128 {R(loc)}, v234 offset:{self.Bl[k][1]*1024}", ('S', k)); self.Bl[k] = loc
            if kind != 'S': self.lastiss = m
            if c.verbose > 1: print(f'{kind}{k}@{m}->{dl}', end=' ')
            self.work.remove(w); return True
        return False

    def phase2(self, hooks):
        e = self.e; c = self.c
        ACC = 16; BI = 96; pool = self.pool; mf = self.mf; Bl = self.Bl; Aloc = self.Aloc
        mtrans = min(m for m, x in enumerate(mf) if x[0] >= 14)
        if c.verbose: print("B loads left for phase 2:", len(self.Bpend))
        hooks = {k: v for k, v in hooks.items() if k >= 0}
        for u in self.Bpend:
            k = self.Border[u]; self.work.append(('P', u, self.fB[k] - (20 if self.Bloc[k][0] == 'l' else 0), 0))
        self.work.sort(key=lambda x: (x[2] // 40 * 40 + x[1][0] % 2 * 4 + x[1][1]) if (x[0] == 'A' and c.aord and x[1][0] < 14) else x[2])
        e(f"s_add_u32 s{sT0}, s88, {L_BL}\nv_add_u32 v234, s{sT0}, v6")
        pool += [[('v', r), 999] for r in (224, 228)]
        if c.dly == (3 if self.typ == 'KV' else 4): e(f's_sleep {c.dlyn}')
        seen = set(); vchk = {280: (14, 15), 320: (16, 17, 18)}
        aq = []
        lastH = {}; firstO = {}; lastO = {}
        for m, (i, t, j) in enumerate(mf):
            if i < 14: lastH[(j, t)] = m
            else: firstO.setdefault((j, t), m); lastO[(j, t)] = m
        g0 = min(lastH.values()) - 10
        aq.append([g0, g0 + 4, ('wvm', 'g')])
        for jj in range(4): aq += [[g0, g0 + 8, ('x', self.tag_strip(241 + jj))]]
        for jj in range(4): aq += [[g0, g0 + 12, ('x', f"v_sub_f32 v{241+jj}, 1.0, v{241+jj}")]]
        for k in sorted(lastH, key=lambda k: lastH[k]):
            jj, tt = k; d = ACC + (jj * 5 + tt) * 4
            for q in range(4): aq.append([lastH[k] + 3, firstO[k] - 2, ('x', f"v_mul_f32 v{d+q}, v{241+jj}, v{d+q}")])
        adr = []
        for jj in range(1, 4):
            adr += [f"s_add_u32 s{sT0}, s{sW}, {jj}", f"s_and_b32 s{sT0}, s{sT0}, 3", f"s_mul_i32 s{sT0}, s{sT0}, 15360",
                    f"s_add_u32 s{sT0}, s{sT0}, {L_RED + (jj-1)*5120}", f"v_add_u32 v{8+jj}, s{sT0}, v6"]
        adr += [l.strip() for l in f"""s_mul_i32 s{sT0}, s{sW}, 15360
        s_add_u32 s{sT0}, s{sT0}, {L_RED}
        v_add_u32 v8, s{sT0}, v6
        s_lshl_b32 s{sT0}, s{sRB}, 2
        s_add_u32 s{sT0}, s{sT0}, s{sW}
        s_mul_i32 s{sT0}, s{sT0}, {16*1280}
        s_add_u32 s{sT3}, s{sT0}, s{sM0+2}
        s_add_u32 s{sT2}, s{sT0}, s{sM0+1}
        v_mul_u32_u24 v12, 1280, v1
        v_lshl_add_u32 v13, v2, 3, v12
        v_lshl_add_u32 v12, v2, 4, v12""".split("\n")]
        for l in adr: aq.append([c.adr0, 325, ('x', l)])
        for k in sorted(lastO, key=lambda k: lastO[k]):
            jj, tt = k
            if jj: aq.append([lastO[k] + 3, 999, ('lg', f"ds_write_b128 v{8+jj}, {vr(ACC+(jj*5+tt)*4)} offset:{tt*1024}", 'rw')])
        self.aq = aq
        for m, (i, t, j) in enumerate(mf):
            self.m = m
            if m == mtrans: self.stamp(7)
            assert (i, j) in Aloc and Bl[(i, t)] and Bl[(i, t)][0] != 'l', (m, i, t, j)
            assert not any(a[1] < m for a in aq), (m, aq[0])
            e.wait(vm=[('A', (i, j)), ('B', (i, t))], lg=('S', (i, t)))
            d = ACC + (j * 5 + t) * 4
            cc = vr(d) if (j, t) in seen else vr(BI + 4 * t); seen.add((j, t))
            e(f"v_mfma_f32_16x16x32_bf16 {vr(d)}, {R(Bl[(i, t)])}, {R(Aloc[(i, j)])}, {cc}")
            k0 = len(e.ins)
            for loc, last in ((Aloc[(i, j)], self.lA[(i, j)]), (Bl[(i, t)], self.lB[(i, t)])):
                if last == m: pool.append([loc, self.until.get(loc, 999) if self.until.get(loc, 999) > m else 999])
            if m == 40: pool.extend([[('v', BI + 4 * k), 999] for k in range(5)])
            if m == 200 and c.dly == (5 if self.typ == 'KV' else 6): e(f's_sleep {c.dlyn}')
            if m == c.o1: self.gate[2] = True
            if m == c.o2: self.gate[3] = True
            if m + 1 + c.vlead in vchk:
                mv = m + 1 + c.vlead; ks = [(ii, jj) for ii in vchk[mv] for jj in range(4)]
                assert all(k in Aloc for k in ks), (m, ks)
                vq = [('wvm', [('A', k) for k in ks])] + [('x', l) for l in self.valid_check(sum([self.Atxt[k] for k in ks], []), [Aloc[k][1] + q for k in ks for q in range(4)], 7)]
                if mv == 280: vq = [('st', 12, 1)] + vq + [('st', 13, 1), ('open',)]
                aq[:0] = [[m, mv - 1, it] for it in vq]
            if m in hooks: hooks[m]()
            self.try_issue(m)
            while any(w[2] - m < 4 for w in self.work) and self.try_issue(m): pass
            while True:
                av = [a for a in aq if a[0] <= m]
                if not av: break
                hurry = any(sum(1 for b in aq if b[1] <= a[1]) > 2 * (a[1] - m) for a in aq if a[1] < 999)
                a = min(av, key=lambda a: a[1])
                if len(e.ins) - k0 >= 2 and not hurry: break
                if a[2][0] == 'lg' and any(x.kind in ('dsw', 'dsr', 'vload', 'dma') for x in e.ins[k0:]): break
                aq.remove(a)
                if a[2][0] == 'open':
                    self.gate[3] = True
                    for _ in range(c.burst3): self.try_issue(m, True)
                elif a[2][0] == 'call': a[2][1]()
                else: self.emit_items([a[2]])
        assert not self.work, self.work
        self.stamp(8)
        for a in aq: self.emit_items([a[2]])
        e.wait(lg_all=True); e("s_barrier")
        for t in range(5):
            for s_ in range(3): e.lgop(f"ds_read_b128 {vr(116+(t*3+s_)*4)}, v8 offset:{s_*5120+t*1024}", ('rr', t))
        for t in range(5):
            e.wait(lg=('rr', t)); d = ACC + t * 4; r = 116 + t * 12
            e(f"""v_pk_add_f32 v[{d}:{d+1}], v[{d}:{d+1}], v[{r}:{r+1}]
            v_pk_add_f32 v[{d+2}:{d+3}], v[{d+2}:{d+3}], v[{r+2}:{r+3}]
            v_pk_add_f32 v[{r+4}:{r+5}], v[{r+4}:{r+5}], v[{r+8}:{r+9}]
            v_pk_add_f32 v[{r+6}:{r+7}], v[{r+6}:{r+7}], v[{r+10}:{r+11}]
            v_pk_add_f32 v[{d}:{d+1}], v[{d}:{d+1}], v[{r+4}:{r+5}]
            v_pk_add_f32 v[{d+2}:{d+3}], v[{d+2}:{d+3}], v[{r+6}:{r+7}]
            v_cvt_pk_bf16_f32 v{96+2*t}, v{d}, v{d+1}
            v_cvt_pk_bf16_f32 v{97+2*t}, v{d+2}, v{d+3}""")
            if t == 1: e.vmop(f"buffer_store_dwordx4 v[96:99], v12, {srd(SPK)}, s{sT3} offen {c.osc}", 'o')
            if t == 3: e.vmop(f"buffer_store_dwordx4 v[100:103], v12, {srd(SPK)}, s{sT3} offen offset:64 {c.osc}", 'o')
            if t == 4: e.vmop(f"buffer_store_dwordx2 v[104:105], v13, {srd(SPK)}, s{sT2} offen {c.osc}", 'o')
        self.stamp(9)
        e("s_endpgm")

    def build(self):
        e = self.e
        self.prologue()
        st = (list(e.vm), list(e.lg))
        self.until = {}
        self.prog_KV()
        e.vm, e.lg = list(st[0]), list(st[1])
        self.until = {}
        self.prog_QH()
        e("\n".join(self.tail))
        e("L_end:\ns_endpgm")
        body = e.finish()
        hdr = open('cdna_kernels/' + NAME + '.s.ref').read().split('; Override launch')[0]
        K = NAME + "_kernel"
        out = hdr + "; Generated by a hand-written Python generator (persistent fused kernel; see comments in the generator).\n"
        out += "; @launch grid=(256,1,1) block=(256,1,1) lds=163840\n"
        out += f'.amdgcn_target "amdgcn-amd-amdhsa--gfx950"\n.text\n.globl {K}\n.p2align 8\n.type {K},@function\n{K}:\n' + body
        out += f""".fill 64, 4, 0xbf800000
.section .rodata,"a"
.p2align 6
.amdhsa_kernel {K}
  .amdhsa_next_free_vgpr 512
  .amdhsa_next_free_sgpr 102
  .amdhsa_accum_offset 256
  .amdhsa_group_segment_fixed_size 0
  .amdhsa_kernarg_size 104
  .amdhsa_user_sgpr_count 2
  .amdhsa_user_sgpr_kernarg_segment_ptr 1
  .amdhsa_system_sgpr_workgroup_id_x 1
.end_amdhsa_kernel
"""
        return out

for k_, v_ in dict(rot=3, par=0, bk=0, dfr=1, dfq=0, kpl=120, khs=0, kb4=10, qb2=6, qb3=6, qfo=0, a0q=12, kp4=1, dly=0, dlyn=16, kvb=64, VC=64, cnt=0, cpf=(), aord=1, nochk=0, skip=0, fast=1, n1=0, quota=28, pkl=0, tp0=1, tst=(0, 0, 1), sp1=24, tlb=0, tlb2=0, pks=3, pke=0, f1s=8, bt=0, btsp=20, bgs=4, qleft=0, kpre=180, kord=0, kgb=1, tmask=7, wbl=0, exit_at=-1, only=0, dstamp=0, xsc='', wsc='', psc='nt', pss='sc1', xA=0, S=48, S2=32, urg=50, S3=0, kb3=8, xB=0, mix=1, perm=0, kf1=60, pe=20, pe2=20, dtail=4, qb0=14, qb1=22, se=10, a0=14, ap=4, osc='sc1 nt', touch=1, kvring=3, f1c=10,
                   f4at=20, pa=100, pb=144, p3=30, c3=58, r1=30, r2=70, rspan=24, kbeg=0, kb1=20, kpa=60, mo=79, p1q=100, c1q=150, Sa=64, kb2=6, kleft=99, Sg=100, o2=226, o1=210, vlead=14, adr0=205, burst3=12, sleep2=1, f4k=-1, p1=130, c1=158, burst=4).items():
    setattr(Cfg, k_, v_)

def generate(**kw):
    c = Cfg()
    for k, v in kw.items(): setattr(c, k, v)
    g = Gen(c); g.e.VC = c.VC; t = g.build()
    return t, g

if __name__ == "__main__":
    kw = {}
    for a_ in sys.argv[2:]:
        k, v = a_.split('='); kw[k] = tuple(map(int, v.split(','))) if ',' in v else int(v, 0) if v.lstrip('-')[0].isdigit() else v.replace('+', ' ')
    t, g = generate(**kw)
    open(sys.argv[1], 'w').write(t)
    print("instructions:", len(g.e.ins), "nops added:", g.e.nop_added)
```

```python
import sys, math
from emit import Emit
NAME = "gated_mix__linear_kernel_hedgehog__dense_activation_gelu__prompt"

TAG = 0x0
F1 = 0x18000
F2 = 0x2000; F3 = 0x6000; F4 = 0xa000; F5 = 0x12000
STAMP = 0x1000000
GB = 0x280000
PP = 0x40000; PSZ = 15360
FIN = 0x240000; FSZ = 15360
PB = 0x300000
A2 = 0x600000
OOB = 0x7ff00000

K1 = 1024
QH_ST = 46 * K1; KV_ST = 44 * K1
MISC = 154 * K1
L_WPHI = MISC; L_GATE = MISC + 3200; L_BIASKV = MISC + 4480; L_BIASQH = MISC + 3200
L_PACK = 138 * K1
WH0 = 114 * K1; WH5 = 74 * K1
L_PHI = 0; RSP = 352; L_V = 128 * RSP; RSV = 224
L_BL = 72 * K1
NL = 18
L_RED = 0
L_FIN = 64 * K1

sW = 3
SX, SQ, S1, SWS, SPK, SM = 4, 8, 12, 16, 20, 24
pX, pQKV, pPHI, pWO, pBX, pW1, pB1, pW2, pB2, pGATE, pOUT, pDBG, pWS = [32 + 2 * i for i in range(13)]
sTAG = 58
sMT, sHG, sRB, sNB = 60, 61, 62, 63
sE = 64
sT0, sT1, sT2, sT3, sT4, sT5 = 74, 75, 76, 77, 78, 79
sM0 = 80
sBT, sAT, sB9, sA9, sAT2 = 100, 101, 86, 87, 55
sAo, sBo, sA8, sB8 = 44, 45, 56, 57
sKW, sK1 = 89, 90
sF1 = 91
sPKD = 92
sA, sB = 96, 97
sC0, sC1 = 98, 99
sP0 = 28

PKA = 200
TB = 10; TBM = (1 << TB) - 1; sTB = 58
AW = 204
def srd(r): return f"s[{r}:{r+3}]"
def vr(r, n=4): return f"v[{r}:{r+n-1}]" if n > 1 else f"v{r}"
def ar(r, n=4): return f"a[{r}:{r+n-1}]"
def R(loc, n=4): return (vr if loc[0] == 'v' else ar)(loc[1], n)
def fl(x):
    import struct
    return hex(struct.unpack('<I', struct.pack('<f', x))[0])

class Cfg:
    rot = 1; map2 = 1; stamps = 0; LA = 12; spin = 200000; codepf = 1; lag = 2; th1 = 2; th2 = 4; minlead = 4; verbose = 0; sleep = 1

sKA, sKB = 0, 1
def mk_srd(e, r, p, nbytes):
    e(f"s_mov_b32 s{r}, s{p}\ns_and_b32 s{r+1}, s{p+1}, 0xffff\ns_mov_b32 s{r+2}, {nbytes}\ns_mov_b32 s{r+3}, 0x20000")

class Gen:
    def __init__(self, cfg):
        self.c = cfg; self.e = Emit(); self.tail = []; self.uid = 0; self.nstamp = 0
    def record(self, fn):
        real = self.e
        class Rec:
            def __init__(r): r.items = []; r.lg = []; r.vm = []
            def __call__(r, t):
                for l in t.strip("\n").split("\n"):
                    if l.strip(): r.items.append(('x', l.strip()))
            def vmop(r, t, tag=None): r.items.append(('vm', t, tag))
            def lgop(r, t, tag=None): r.items.append(('lg', t, tag))
        rec = Rec(); self.e = rec
        try: fn()
        finally: self.e = real
        return rec.items
    def cnt(self):
        if not self.c.cnt: return [], []
        self.ncnt = getattr(self, 'ncnt', 0) + 1; k = self.ncnt - 1
        post = ["s_load_dwordx2 s[46:47], s[40:41], 88", f"s_sub_u32 s54, {self.c.spin}, s54", "s_lshl_b32 s54, s54, 12", "s_add_u32 s54, s54, 1", "s_waitcnt lgkmcnt(0)",
                "v_mov_b32 v14, s54", "v_mov_b32 v15, 0", "s_mov_b64 exec, 1", f"global_atomic_add v15, v14, s[46:47] offset:{k*4}", "s_mov_b64 exec, -1"]
        return [], post
    def lab(self, p):
        self.uid += 1; return f"L_{p}_{self.uid}"
    def stamp(self, i, grp=1):
        if self.c.dstamp and grp == 1:
            slot = self.dmap.get(i)
            if slot is None: return
            e = self.e
            e(f"s_memrealtime s[{sC0}:{sC1}]\ns_load_dwordx2 s[46:47], s[40:41], 88\ns_waitcnt lgkmcnt(0)\nv_mov_b32 v14, s{sC0}\nv_mov_b32 v15, 0"); e.lg = []
            e("s_cmp_eq_u32 s3, 0\ns_cselect_b64 exec, 1, 0")
            L = self.lab('ds'); e(f"s_cbranch_execz {L}")
            e(f"global_atomic_umax v15, v14, s[46:47] offset:{slot*4}")
            if i == 0: e(f"v_mov_b32 v14, s54\nglobal_atomic_umax v15, v14, s[46:47] offset:4\nv_not_b32 v14, v14\nglobal_atomic_umax v15, v14, s[46:47] offset:0")
            e(f"{L}:\ns_mov_b64 exec, -1")
            return
        if not self.c.stamps or (i and self.c.stamps != grp): return
        if self.c.only and i not in (0, self.c.only): return
        e = self.e
        e(f"s_memrealtime s[{sC0}:{sC1}]\ns_memtime s[46:47]\ns_waitcnt lgkmcnt(0)"); e.lg = []
        e(f"v_mov_b32 v14, s{sC0}\nv_mov_b32 v15, s46")
        e(f"s_lshl_b32 s{sC0}, s2, 2\ns_add_u32 s{sC0}, s{sC0}, s{sW}\ns_lshl_b32 s{sC0}, s{sC0}, 7\ns_add_u32 s{sC0}, s{sC0}, {STAMP}")
        e.vmop(f"buffer_store_dwordx2 v[14:15], v245, {srd(SWS)}, s{sC0} offen offset:{i*8}", 'stamp')
        if self.c.exit_at == i and grp == 1: e("s_endpgm")
        if i == 0:
            e(f"v_mov_b32 v14, s54\nv_mov_b32 v15, s40")
            e.vmop(f"buffer_store_dwordx2 v[14:15], v245, {srd(SWS)}, s{sC0} offen offset:{15*8}", 'stamp')

    def pstamp(self, i):
        if self.c.stamps == 3: self.e(f"s_memtime s[100:101]\ns_waitcnt lgkmcnt(0)\nv_mov_b32 v{(248,249,250,251,235)[i]}, s100")
    def pstamp_flush(self):
        if self.c.stamps != 3: return
        e = self.e
        e(f"s_lshl_b32 s{sC0}, s2, 2\ns_add_u32 s{sC0}, s{sC0}, s{sW}\ns_lshl_b32 s{sC0}, s{sC0}, 7\ns_add_u32 s{sC0}, s{sC0}, {STAMP}")
        for i in range(5): e.vmop(f"buffer_store_dword v{(248,249,250,251,235)[i]}, v245, {srd(SWS)}, s{sC0} offen offset:{(2+i)*8+4} sc1", 'stamp')
    def dump(self, name, regs):
        if getattr(self.c, 'dbg', None) != name: return
        e = self.e
        e(f"s_lshl_b32 s{sBT}, s2, 2\ns_add_u32 s{sBT}, s{sBT}, s{sW}\ns_lshl_b32 s{sBT}, s{sBT}, 14\ns_add_u32 s{sBT}, s{sBT}, 0x2000000\nv_lshlrev_b32 v7, 2, v0")
        for i, r in enumerate(regs):
            e.vmop(f"buffer_store_dword v{r}, v7, {srd(SWS)}, s{sBT} offen offset:{(i%16)*256}", 'dbg')
            if i % 16 == 15: e(f"s_add_u32 s{sBT}, s{sBT}, 4096")
        e.wait(vm='dbg'); self.Bcur = None

    def poll_issue(self, vaddr, vdst, n, tag, soff="0"):
        suf = {2: 'dwordx2', 4: 'dwordx4'}[n]
        return f"buffer_load_{suf} {vr(vdst, n)}, v{vaddr}, {srd(SWS)}, {soff} offen sc1"
    def poll_check(self, loads):
        Ls, Lb = self.lab('slow'), self.lab('back')
        cmps = []; ors = []; k = 0
        prs = ['vcc', 's[28:29]', 's[30:31]', 's[46:47]']
        for (va, vd, n, so) in loads:
            for h in range(n // 2):
                cmps.append(f"v_cmp_ne_u64 {prs[k]}, s[{sTAG}:{sTAG+1}], v[{vd+2*h}:{vd+2*h+1}]")
                if k: ors.append(f"s_or_b64 vcc, vcc, {prs[k]}")
                k += 1
        cmps = cmps[::-1] if False else cmps
        fast = cmps + ors + [f"s_cbranch_vccnz {Ls}\n{Lb}:" if not (self.c.nochk & 1) else f"{Lb}:"]
        t = [f"{Ls}:", f"s_mov_b32 s54, {self.c.spin}", f"{Ls}_l:"]
        if self.c.sleep: t.append(f"s_sleep {self.c.sleep}")
        for (va, vd, n, so) in loads: t.append(self.poll_issue(va, vd, n, None, so))
        t += ["s_waitcnt vmcnt(0)"] + cmps + ors
        t += ["s_sub_u32 s54, s54, 1", f"s_cbranch_vccz {Ls}_x", "s_cmp_lg_u32 s54, 0", f"s_cbranch_scc1 {Ls}_l", f"{Ls}_x:"] + self.cnt()[1] + ["s_nop 4", f"s_branch {Lb}"]
        self.tail += t
        return fast
    def tag_check(self, reload, regs, acc):
        Ls, Lb = self.lab('slow'), self.lab('back')
        regs = list(regs); L = [f"v_xor_b32 v{acc}, s{sTB}, v{regs[0]}"]
        for r in regs[1:]: L.append(f"v_bitop3_b32 v{acc}, v{r}, s{sTB}, v{acc} bitop3:0xbe")
        L += [f"v_and_b32 v{acc}, {TBM}, v{acc}", f"v_cmp_ne_u32 vcc, 0, v{acc}"]
        t = [f"{Ls}:", f"s_mov_b32 s54, {self.c.spin}", f"{Ls}_l:"]
        if self.c.sleep: t.append(f"s_sleep {self.c.sleep2}")
        t += list(reload) + ["s_waitcnt vmcnt(0)"] + L
        t += ["s_sub_u32 s54, s54, 1", f"s_cbranch_vccz {Ls}_x", "s_cmp_lg_u32 s54, 0", f"s_cbranch_scc1 {Ls}_l", f"{Ls}_x:"] + self.cnt()[1] + ["s_nop 4", f"s_branch {Lb}"]
        self.tail += t
        return L + [f"s_cbranch_vccnz {Ls}\n{Lb}:" if not (self.c.nochk & 2) else f"{Lb}:"]
    def tag_put(self, r, src=None): return f"v_bfi_b32 v{r}, s42, v246, v{r if src is None else src}"
    def tag_strip(self, r): return f"v_and_b32 v{r}, {hex(0xffffffff ^ TBM)}, v{r}"
    def valid_check(self, reload, regs, acc):
        Ls, Lb = self.lab('slow'), self.lab('back')
        regs = list(regs); L = [f"v_max3_u32 v{acc}, v{regs[0]}, v{regs[1]}, v{regs[2 if len(regs) > 2 else 1]}"]
        r = regs[3:]
        for i in range(0, len(r), 2): L.append(f"v_max3_u32 v{acc}, v{acc}, v{r[i]}, v{r[min(i+1, len(r)-1)]}")
        L.append(f"v_cmp_eq_u32 vcc, -1, v{acc}")
        t = [f"{Ls}:", f"s_mov_b32 s54, {self.c.spin}", f"{Ls}_l:"]
        if self.c.sleep: t.append(f"s_sleep {self.c.sleep2}")
        t += list(reload) + ["s_waitcnt vmcnt(0)"] + L
        t += ["s_sub_u32 s54, s54, 1", f"s_cbranch_vccz {Ls}_x", "s_cmp_lg_u32 s54, 0", f"s_cbranch_scc1 {Ls}_l", f"{Ls}_x:"] + self.cnt()[1] + ["s_nop 4", f"s_branch {Lb}"]
        self.tail += t
        return L + [f"s_cbranch_vccnz {Ls}\n{Lb}:" if not (self.c.nochk & 4) else f"{Lb}:"]
    def flag_store(self, vaddr, vtag, soff="0"):
        return f"buffer_store_dwordx2 {vr(vtag, 2)}, v{vaddr}, {srd(SWS)}, {soff} offen sc1"

    def stream(self, mf, reads, fill, syncs=None, LA=None, name='', bg=None):
        e = self.e; LA = LA or self.c.LA
        reads = sorted(reads, key=lambda r: r[1]); rp = 0; synced = -1 if syncs else 99
        fq = sorted(fill, key=lambda f: f['at'])
        self.sid = getattr(self, 'sid', 0) + 1; sid = self.sid
        start = len(e.ins)
        def add_fill(items):
            lo = max([f['at'] for f in fq if f.get('chain')], default=-99)
            for f in items:
                if f.get('chain'): f['at'] = lo = max(f['at'], lo)
            fq.extend(items); fq.sort(key=lambda f: f['at'])
        def rd():
            nonlocal rp
            e.lgop(reads[rp][0], ('rd', sid, rp)); rp += 1
        if syncs: add_fill(syncs[0](0)); synced = 0
        while rp < len(reads) and reads[rp][1] < 8 and reads[rp][2] <= synced: rd()
        last_read = -99
        dl_of = {('rd', sid, i): r[1] for i, r in enumerate(reads)}
        def due(m): return [t for t in e.lg if t in dl_of and dl_of[t] <= m]
        ismem = lambda it: it[0] in ('vm', 'lg')
        for m in range(len(mf)):
            d = due(m)
            if d: e.wait(lg=d)
            e(mf[m])
            can = lambda: rp < len(reads) and reads[rp][2] <= synced and reads[rp][3] <= m and len(e.lg) < 15
            lead = lambda: reads[rp][1] - m
            if syncs and rp < len(reads) and reads[rp][2] > synced and m - last_read >= self.c.lag and lead() <= LA:
                synced = reads[rp][2]
                assert not any(it[0] == 'vm' and it[2] == ('S', synced) for f in fq for it in f['ins'])
                add_fill(syncs[synced](m + 1))
                if can(): rd(); last_read = m
                continue
            w = 1 if due(m + 1) else 0
            n = w; mem = 0
            if fq and fq[0]['at'] <= m:
                f = fq[0]
                if f.get('atomic'):
                    self.emit_items(f['ins']); n += len(f['ins']); mem += sum(map(ismem, f['ins'])); fq.pop(0)
                elif ismem(f['ins'][0]):
                    self.emit_items([f['ins'].pop(0)]); n += 1; mem += 1
                    if not f['ins']: fq.pop(0)
            if bg and mem == 0:
                k0 = len(e.ins)
                if self.bg_try(bg(m)): n += len(e.ins) - k0; mem += 1
            if can() and lead() <= LA and (mem == 0 or (lead() <= LA - self.c.th1 and not w)):
                rd(); n += 1; mem += 1; last_read = m
            if can() and mem == 1 and not w and lead() <= LA - self.c.th2:
                rd(); n += 1; mem += 1
            while can() and lead() <= self.c.minlead: rd(); n += 1; mem += 1; last_read = m
            while (n < 2 or (fq and fq[0]['at'] <= m - 2 and n < 3)) and fq and fq[0]['at'] <= m + 2 and not fq[0].get('atomic') and not ismem(fq[0]['ins'][0]):
                f = fq[0]; self.emit_items([f['ins'].pop(0)]); n += 1
                if not f['ins']: fq.pop(0)
            assert rp >= len(reads) or reads[rp][1] > m + 1, (m, reads[rp])
        for f in fq: self.emit_items(f['ins'])
        if self.c.verbose:
            tot = 0; g = None
            for i in e.ins[start:]:
                if i.label: continue
                if i.kind == 'mfma':
                    if g is not None: tot += max(16, g)
                    g = 8; prevmem = False
                elif g is not None:
                    mm = i.kind in ('dsr', 'dsw', 'vload', 'vstore', 'dma')
                    g += 8 if (mm and prevmem) else 4; prevmem = mm
            print(f"stream {name}: {len(mf)} mfma, est clks {tot} (ideal {16*len(mf)})")

    def prologue(self):
        e = self.e; c = self.c
        if c.stamps or c.dstamp: e("s_memrealtime s[54:55]\ns_memtime s[98:99]")
        e(f"""s_cmp_ge_u32 s2, 256
        s_cbranch_scc1 L_end
        s_load_dwordx16 s[32:47], s[0:1], 0
        s_load_dwordx4 s[48:51], s[0:1], 64
        s_load_dwordx2 s[52:53], s[0:1], 80
        s_load_dwordx2 s[56:57], s[0:1], 96""")
        if c.codepf:
            e(f"""s_getpc_b64 s[{sA}:{sB}]
            L_pf:
            s_lshr_b32 s{sT0}, s2, 3
            s_lshl_b32 s{sT0}, s{sT0}, 11
            v_lshrrev_b32 v1, 4, v0
            v_lshlrev_b32 v1, 7, v1
            v_add_u32 v1, s{sT0}, v1
            v_cmp_gt_u32 vcc, L_end-L_pf, v1
            v_cndmask_b32 v1, 0, v1, vcc""")
            e.vmop(f"global_load_dword v255, v1, s[{sA}:{sB}]", 'pf')
        e(f"""v_lshrrev_b32 v1, 6, v0
        v_and_b32 v0, 63, v0
        s_and_b32 s{sT0}, s2, 7
        v_readfirstlane_b32 s{sW}, v1
        s_lshr_b32 s{sT1}, s2, 3
        s_lshr_b32 s{sT2}, s{sT0}, 1
        s_and_b32 s{sT3}, s{sT1}, 3
        s_lshl_b32 s{sMT}, s{sT2}, 2
        s_add_u32 s{sMT}, s{sMT}, s{sT3}
        s_lshr_b32 s{sT4}, s{sT1}, 2
        s_and_b32 s{sHG}, s{sT0}, 1
        s_lshl_b32 s{sHG}, s{sHG}, 2
        s_and_b32 s{sT5}, s{sT4}, 3
        s_add_u32 s{sHG}, s{sHG}, s{sT5}""")
        if c.rot == 2:
            e(f"""s_mul_i32 s{sE}, s{sT2}, 5
            s_lshr_b32 s{sE}, s{sE}, 1
            s_and_b32 s{sT5}, s{sT0}, 1
            s_mul_i32 s{sT5}, s{sT5}, 5
            s_add_u32 s{sE}, s{sE}, s{sT5}
            s_cmp_ge_u32 s{sE}, 10
            s_cselect_b32 s{sT5}, 10, 0
            s_sub_u32 s{sE}, s{sE}, s{sT5}
            s_lshl_b32 s{sE}, s{sE}, 7""")
        elif c.rot == 3:
            e(f"s_xor_b32 s{sE}, s{sT3}, s{sT4}\ns_and_b32 s{sE}, s{sE}, 1\ns_lshl_b32 s{sE}, s{sE}, 7")
        elif c.rot == 4:
            e(f"s_xor_b32 s{sE}, s{sT3}, s{sT4}\ns_and_b32 s{sE}, s{sE}, 3\ns_lshl_b32 s{sE}, s{sE}, 7")
        else: e(f"s_mov_b32 s{sE}, 0")
        e(f"""v_and_b32 v1, 15, v0
        v_lshrrev_b32 v2, 4, v0
        v_bfe_u32 v3, v0, 2, 2
        v_and_b32 v4, 3, v0
        v_lshrrev_b32 v5, 3, v0
        v_lshlrev_b32 v6, 4, v0
        s_lshl_b32 s{sT2}, s{sMT}, 2
        s_add_u32 s{sT2}, s{sT2}, s{sW}
        s_mul_i32 s{sT2}, s{sT2}, {32*1280}
        v_xor_b32 v7, v2, v0
        v_and_b32 v7, 7, v7
        v_lshlrev_b32 v7, 4, v7
        v_mul_u32_u24 v8, 1280, v5
        v_add_u32 v8, s{sT2}, v8
        v_add_u32 v208, v8, v7
        v_xor_b32 v7, 64, v7
        v_add_u32 v209, v8, v7
        v_add_u32 v209, {10240-1024}, v209
        v_add_u32 v210, {2*(10240-1024)}, v208
        v_add_u32 v211, {2*(10240-1024)}, v209
        s_lshl_b32 s{sM0}, s{sW}, 12
""")
        if c.rot >= 3: e(f"s_xor_b32 s{sE+1}, s{sE}, 128")
        else: e(f"s_add_u32 s{sE+1}, s{sE}, 128\ns_cmp_eq_u32 s{sE+1}, 1280\ns_cselect_b32 s{sE+1}, 0, s{sE+1}")
        for r, n in ((SX, 2048 * 1280), (SQ, 640 * 3840), (S1, 640 * 3456), (SM, 3456)): e(f"s_mov_b32 s{r+2}, {n}\ns_mov_b32 s{r+3}, 0x20000")
        e(f"s_bitcmp1_b32 s2, 7\ns_cbranch_scc1 L_QH")

    def kernarg_wait(self):
        e = self.e
        e("s_waitcnt lgkmcnt(0)"); self.pstamp(0)
        e(f"s_load_dwordx2 s[{sTAG}:{sTAG+1}], s[{pWS}:{pWS+1}], {TAG}")
        if self.c.stamps: e('s_mov_b32 s40, s98')
        if self.c.dstamp or self.c.cnt: e('s_mov_b64 s[40:41], s[0:1]')
        for r, p in ((SX, pX), (SM, pB1), (SQ, pQKV), (S1, pW1)): e(f"s_mov_b32 s{r}, s{p}\ns_and_b32 s{r+1}, s{p+1}, 0xffff")

    def pack_setup(self):
        e = self.e
        e(f"""s_lshl_b32 s{sT0}, s2, 2
        s_add_u32 s{sT0}, s{sT0}, s{sW}
        s_mul_i32 s{sT2}, s{sT0}, 886
        s_lshr_b32 s{sT2}, s{sT2}, 16
        s_mul_i32 s{sT1}, s{sT2}, 74
        s_sub_u32 s{sT1}, s{sT0}, s{sT1}
        s_sub_u32 s{sT3}, s{sT1}, 54
        s_and_b32 s{sT3}, s{sT3}, 63
        s_mul_i32 s{sT4}, s{sT3}, 52
        s_lshr_b32 s{sT4}, s{sT4}, 8
        s_mul_i32 s{sT5}, s{sT4}, 5
        s_sub_u32 s{sT5}, s{sT3}, s{sT5}
        s_mul_i32 s{sBT}, s{sT4}, 160
        s_lshr_b32 s{sAT}, s{sT5}, 1
        s_mul_i32 s{sAT}, s{sAT}, 80
        s_and_b32 s{sT3}, s{sT5}, 1
        s_lshl_b32 s{sT3}, s{sT3}, 3
        s_add_u32 s{sAT}, s{sAT}, s{sT3}
        s_cmp_eq_u32 s{sT5}, 4
        s_cselect_b32 s{sAT}, 16, s{sAT}
        s_cselect_b32 s{sT3}, 80, 4
        s_add_u32 s{sBT}, s{sBT}, s{sAT}
        s_lshl_b32 s{sAT}, s{sT1}, 5
        s_cmp_lt_u32 s{sT1}, 54
        s_cselect_b32 s{sBT}, s{sAT}, s{sBT}
        s_cselect_b32 s{sT3}, 16, s{sT3}""")
        self.csel(sT4, 4 * 1280 - 1024, 20 * 1280 - 1024)
        self.csel(SPK + 2, 1728 * 1280, 640 * 1280)
        e(f"""s_mov_b32 s{SPK+3}, 0x20000
        s_cmp_lt_u32 s{sT0}, 740
        s_cselect_b32 s{SPK+2}, s{SPK+2}, 0
        s_mul_i32 s{sBT}, s{sBT}, 1280
        s_lshl_b32 s{sAT}, s{sT2}, 7
        s_add_u32 s32, s{sBT}, s{sAT}
        s_add_u32 s33, s32, s{sT4}
        s_add_u32 s34, s33, s{sT4}
        s_add_u32 s35, s34, s{sT4}
        v_lshrrev_b32 v9, 5, v0
        v_mul_lo_u32 v9, v9, s{sT3}
        v_and_b32 v10, 3, v5
        v_add_u32 v9, v9, v10
        v_mul_u32_u24 v9, 1280, v9
        v_and_b32 v10, 7, v0
        v_lshl_add_u32 v252, v10, 4, v9
        v_lshlrev_b32 v9, 10, v2
        v_lshl_add_u32 v9, v3, 7, v9
        v_add_u32 v9, s{sM0}, v9
        v_add_u32 v9, {L_PACK}, v9""")
        for g in range(2):
            e(f"""s_lshl_b32 s{sT3}, s{sT2}, 1
            s_add_u32 s{sT3}, s{sT3}, {g}
            s_mul_i32 s{sT4}, s{sT3}, 52
            s_lshr_b32 s{sT4}, s{sT4}, 8
            s_mul_i32 s{sT5}, s{sT4}, 5
            s_sub_u32 s{sT5}, s{sT3}, s{sT5}
            s_cmp_eq_u32 s{sT5}, 2
            s_cselect_b32 s{sT3}, 3, 4
            s_cselect_b32 s{sAT}, 32, 8
            v_lshlrev_b32 v10, s{sT3}, v4
            v_add_u32 v{PKA+2*g}, v9, v10
            v_add_u32 v{PKA+1+2*g}, s{sAT}, v{PKA+2*g}
            s_mul_i32 s{sT4}, s{sT4}, 740
            s_mul_i32 s{sAT}, s{sT1}, 5
            s_add_u32 s{sT4}, s{sT4}, s{sAT}""")
            for a_ in range(2):
                d = sPKD + 2 * g + a_
                e(f"""s_lshl_b32 s{sT3}, s{sT5}, 1
                s_add_u32 s{sT3}, s{sT3}, {a_}
                s_add_u32 s{d}, s{sT3}, 364
                s_cmp_eq_u32 s{sT3}, 5
                s_cselect_b32 s{d}, 374, s{d}
                s_cmp_lt_u32 s{sT3}, 5
                s_cselect_b32 s{d}, s{sT3}, s{d}
                s_add_u32 s{d}, s{d}, s{sT4}
                s_lshl_b32 s{d}, s{d}, 10
                s_add_u32 s{d}, s{d}, {PB}
                s_cmp_lt_u32 s{sT0}, 740
                s_cselect_b32 s{d}, s{d}, {OOB}""")
        e(f"""s_cmp_lt_u32 s{sT1}, 54
        s_cselect_b32 s{SPK}, s{pW2}, s{pWO}
        s_cselect_b32 s{SPK+1}, s{pW2+1}, s{pWO+1}
        s_and_b32 s{SPK+1}, s{SPK+1}, 0xffff""")

    def common_setup(self):
        e = self.e; c = self.c
        e(f"s_and_b32 s{sT0}, s2, 7\ns_lshr_b32 s{sT1}, s2, 3\ns_lshr_b32 s{sT2}, s{sT0}, 1\ns_and_b32 s{sT3}, s{sT1}, 3\ns_lshr_b32 s{sT4}, s{sT1}, 2")
        if c.mix: e(f"s_lshr_b32 s{sT5}, s{sT1}, 2\ns_and_b32 s{sT5}, s{sT5}, 4\ns_xor_b32 s{sT5}, s{sT5}, s{sT1}" if c.map2 else
                    f"s_lshr_b32 s{sT5}, s{sT1}, 4\ns_xor_b32 s{sT5}, s{sT5}, s{sT1}")
        if c.map2:
            if c.mix: e(f"s_and_b32 s{sRB}, s{sT5}, 7\ns_bfe_u32 s{sT5}, s{sT1}, 0x20002")
            else: e(f"s_and_b32 s{sRB}, s{sT1}, 7\ns_lshr_b32 s{sT5}, s{sT1}, 3")
            e(f"""s_lshl_b32 s{sT2}, s{sT2}, 3
            s_add_u32 s{sRB}, s{sRB}, s{sT2}
            s_and_b32 s{sNB}, s{sT0}, 1
            s_lshl_b32 s{sNB}, s{sNB}, 2
            s_add_u32 s{sNB}, s{sNB}, s{sT5}""")
        else:
            if c.mix: e(f"s_bfe_u32 s{sNB}, s{sT1}, 0x30001\ns_and_b32 s{sT3}, s{sT5}, 1\ns_lshr_b32 s{sT5}, s{sT1}, 4\ns_bfe_u32 s{sT4}, s{sT1}, 0x10001\ns_xor_b32 s{sT5}, s{sT5}, s{sT4}\ns_and_b32 s{sT3}, s{sT1}, 1\ns_lshl_b32 s{sT5}, s{sT5}, 1\ns_add_u32 s{sT3}, s{sT3}, s{sT5}")
            else: e(f"s_mov_b32 s{sNB}, s{sT4}")
            e(f"s_lshl_b32 s{sRB}, s{sT0}, 2\ns_add_u32 s{sRB}, s{sRB}, s{sT3}")
        mk_srd(e, SWS, pWS, 0x10000000); mk_srd(e, SM, pPHI, 32 * 800)
        e(f"""s_lshl_b32 s{sT3}, s{sHG}, 2
        s_add_u32 s{sT3}, s{sT3}, s{sW}
        s_mul_i32 s36, s{sT3}, 800
        s_mul_i32 s37, s{sW}, 800
        s_add_u32 s37, s37, {L_WPHI}""")
        for i in range(2, 10):
            if c.rot == 4: e(f"s_xor_b32 s{sE+i}, s{sE}, {i*128}" if i < 8 else f"s_and_b32 s{sE+i}, s{sE+i-8}, 128\ns_add_u32 s{sE+i}, s{sE+i}, 1024")
            elif c.rot == 3: e(f"s_add_u32 s{sE+i}, s{sE+i-2}, 256")
            else: e(f"s_add_u32 s{sE+i}, s{sE+i-1}, 128\ns_cmp_eq_u32 s{sE+i}, 1280\ns_cselect_b32 s{sE+i}, 0, s{sE+i}")
        e(f"""s_mul_i32 s{sB}, s{sNB}, 74
        s_add_u32 s{sB}, s{sB}, s{sW}
        s_mul_i32 s{sB}, s{sB}, 5120
        s_add_u32 s{sB}, s{sB}, {PB}
        s_mul_i32 s{sA}, s{sRB}, 74
        s_add_u32 s{sA}, s{sA}, s{sW}
        s_lshl_b32 s{sA}, s{sA}, 12
        s_add_u32 s{sA}, s{sA}, {A2}
        s_xor_b32 s{sT0}, s{sRB}, s{sNB}
        s_and_b32 s{sT0}, s{sT0}, {min(c.par, 1)}
        s_mul_i32 s{sT1}, s{sT0}, {4*5120}
        s_add_u32 s{sB8}, s{sB}, {32*5120}
        s_add_u32 s{sB8}, s{sB8}, s{sT1}
        s_add_u32 s{sB9}, s{sB}, {36*5120}
        s_sub_u32 s{sB9}, s{sB9}, s{sT1}
        s_mul_i32 s{sT1}, s{sT1}, {max(c.par, 1)}
        s_sub_u32 s{sBo}, s{sB}, s{sT1}
        s_add_u32 s{sB}, s{sB}, s{sT1}
        s_lshl_b32 s{sT1}, s{sT0}, 14
        s_add_u32 s{sA8}, s{sA}, {32*4096}
        s_add_u32 s{sA8}, s{sA8}, s{sT1}
        s_add_u32 s{sA9}, s{sA}, {36*4096}
        s_sub_u32 s{sA9}, s{sA9}, s{sT1}
        s_mul_i32 s{sT1}, s{sT1}, {max(c.par, 1)}
        s_sub_u32 s{sAo}, s{sA}, s{sT1}
        s_add_u32 s{sA}, s{sA}, s{sT1}
        s_lshr_b32 s{sT1}, s{sW}, 1
        s_and_b32 s{sT3}, s{sT1}, s{sT0}
        s_cselect_b32 s{sB8}, {OOB}, s{sB8}
        s_cselect_b32 s{sA8}, {OOB}, s{sA8}
        s_andn2_b32 s{sT3}, s{sT1}, s{sT0}
        s_cselect_b32 s{sB9}, {OOB}, s{sB9}
        s_cselect_b32 s{sA9}, {OOB}, s{sA9}
        s_mul_i32 s88, s{sW}, {NL*1024}
        v_add_u32 v240, 4096, v6""")
        for j in range(4):
            e(f"s_add_u32 s{sT3}, s{sW}, {j}\ns_and_b32 s{sT3}, s{sT3}, 3\ns_lshl_b32 s{sT3}, s{sT3}, 10\nv_add_u32 v{236+j}, s{sT3}, v6")
        e(f"""s_lshl_b32 s{sF1}, s2, 7
        s_add_u32 s{sF1}, s{sF1}, {F1}
        s_cmp_eq_u32 s{sW}, 0
        s_cselect_b32 s{sF1}, s{sF1}, {OOB}
        v_mov_b32 v245, {OOB}
        v_cmp_eq_u32 vcc, 0, v0
        v_cndmask_b32 v245, v245, 0, vcc""")

    def touch(self):
        e = self.e; c = self.c
        e(f"""s_cmp_eq_u32 s{sW}, 0
        s_cselect_b64 s[28:29], s[{SX}:{SX+1}], s[{S1}:{S1+1}]
        s_cselect_b32 s30, s{SX+2}, s{S1+2}
        s_cselect_b32 s{sT0}, 12, 0
        s_add_u32 s{sT0}, s{sT0}, 68
        s_cmp_eq_u32 s{sW}, 1
        s_cselect_b64 s[28:29], s[{SQ}:{SQ+1}], s[28:29]
        s_cselect_b32 s30, s{SQ+2}, s30
        s_cselect_b32 s{sT0}, 75, s{sT0}
        s_lshl_b32 s{sT1}, 1, s{sW}
        s_and_b32 s{sT1}, s{sT1}, {c.tmask}
        s_cselect_b32 s30, s30, 0
        s_mov_b32 s31, 0x20000
        s_mul_i32 s{sT1}, s{sT0}, s2
        s_lshl_b32 s{sT1}, s{sT1}, 7
        v_lshlrev_b32 v10, 7, v0
        v_add_u32 v11, 64, v0
        v_cmp_gt_u32 vcc, s{sT0}, v11
        v_lshlrev_b32 v11, 7, v11
        v_mov_b32 v14, {OOB}
        v_cndmask_b32 v11, v14, v11, vcc""")
        e.vmop(f"buffer_load_dword v255, v10, s[28:31], s{sT1} offen", 'pf')
        e.vmop(f"buffer_load_dword v255, v11, s[28:31], s{sT1} offen", 'pf')

    def touch3_setup(self):
        e = self.e
        e(f"""s_cmp_eq_u32 s{sW}, 0
        s_cselect_b64 s[28:29], s[{SX}:{SX+1}], s[{S1}:{S1+1}]
        s_cselect_b32 s30, s{SX+2}, s{S1+2}
        s_cselect_b32 s{sT0}, 24, 21
        s_mov_b32 s44, {64*3456}
        s_cselect_b32 s44, 128, s44
        s_cselect_b64 vcc, -1, 0
        s_cmp_eq_u32 s{sW}, 1
        s_cselect_b64 s[28:29], s[{SQ}:{SQ+1}], s[28:29]
        s_cselect_b32 s30, s{SQ+2}, s30
        s_cselect_b32 s{sT0}, 23, s{sT0}
        s_cselect_b32 s44, {64*3840}, s44
        s_cmp_eq_u32 s{sW}, 3
        s_cselect_b32 s30, 0, s30
        s_mov_b32 s31, 0x20000
        s_mul_i32 s{sT1}, s{sT0}, s2
        v_add_u32 v10, s{sT1}, v0
        v_mul_u32_u24 v11, 21846, v10
        v_lshrrev_b32 v11, 16, v11
        v_mul_u32_u24 v11, {1280-384}, v11
        v_lshlrev_b32 v10, 7, v10
        v_add_u32 v11, v11, v10
        v_cndmask_b32 v10, v10, v11, vcc
        v_mov_b32 v14, {OOB}
        v_cmp_gt_u32 vcc, s{sT0}, v0
        v_cndmask_b32 v251, v14, v10, vcc""")
    def touch3(self, part):
        return [('x', f"s_mul_i32 s45, s44, {1 + 3 * part}"), ('vm', "buffer_load_dword v255, v251, s[28:31], s45 offen", 'pf')]

    def tlb_touch(self):
        e = self.e; c = self.c
        if not c.tlb: return
        if c.tlb == 1:
            e(f"v_lshlrev_b32 v10, 18, v0\nv_add_u32 v10, 0x1f800, v10")
            e.vmop(f"buffer_load_dword v255, v10, {srd(SWS)}, 0 offen sc1", 'pf')
        else:
            e(f"""s_mul_i32 s{sT0}, s{sNB}, {74*5120}
            s_add_u32 s{sT0}, s{sT0}, {PB}
            s_mul_i32 s{sT1}, s{sRB}, {74*4096}
            s_add_u32 s{sT1}, s{sT1}, {A2 - 8*65536}
            s_mul_i32 s{sT3}, s{sMT}, {2*74*4096}
            s_add_u32 s{sT3}, s{sT3}, {A2 - 16*65536}
            v_lshlrev_b32 v10, 16, v0
            v_mov_b32 v11, s{sT0}
            v_mov_b32 v14, s{sT1}
            v_cmp_le_u32 vcc, 8, v0
            v_cndmask_b32 v11, v11, v14, vcc
            v_mov_b32 v14, s{sT3}
            v_cmp_le_u32 vcc, 16, v0
            v_cndmask_b32 v11, v11, v14, vcc
            v_add_u32 v11, v11, v10
            v_subrev_u32 v14, 32, v0
            v_mul_u32_u24 v14, 0x18000, v14
            v_cmp_le_u32 vcc, 32, v0
            v_cndmask_b32 v10, v11, v14, vcc""")
            e.vmop(f"buffer_load_dword v255, v10, {srd(SWS)}, 0 offen sc1", 'pf')
        mk_srd(e, 28, pOUT, 2048 * 1280)
        e("v_lshlrev_b32 v10, 16, v0")
        e.vmop("buffer_load_dword v255, v10, s[28:31], 0 offen sc1", 'pf')
        if c.tlb2:
            for p, n in ((pB2, 1280),):
                mk_srd(e, 28, p, n); e.vmop("buffer_load_dword v255, v6, s[28:31], 0 offen", 'pf')

    def tag_wait(self):
        e = self.e
        e(f"""s_waitcnt lgkmcnt(0)
        s_add_u32 s{sTAG}, s{sTAG}, 1
        v_mov_b32 v247, s{sTAG+1}
        v_mov_b32 v246, s{sTAG}
        s_movk_i32 s42, {TBM}""")
        if self.c.xA == 2: e(f's_mov_b32 s41, {OOB}')
        e.lg = []
    def pack_loads(self):
        return [([('x', f"s_add_u32 m0, s{sM0}, {L_PACK}")] if i == 0 else []) +
                [('vm', f"buffer_load_dwordx4 v252, {srd(SPK)}, s{32+i} offen offset:{i*1024} {self.c.psc} lds", 'packld')] for i in range(4)]
    def pack_fill(self, m, nm):
        f = []
        for i in range(8):
            t, h = i >> 1, i & 1
            f.append(dict(at=m + 2 + 2 * i, ins=[('lg', f"ds_read_b64_tr_b16 a[{160+4*t+2*h}:{161+4*t+2*h}], v{PKA+t} offset:{(t>>1)*64+512*h}", 'pk')]))
        return f
    def wb_item(self):
        return [[('wvm', 'pkst'), ('vm', "buffer_wbl2 sc1", 'pkst')]] if self.c.wbl else []
    def pack_stores(self):
        return [([('wlg', 'pk')] if i == 0 else []) + [('vm', f"buffer_store_dwordx4 {ar(160+4*i)}, v6, {srd(SWS)}, s{sPKD+i} offen {self.c.pss}", 'pkst')] for i in range(4)]

    def btouch(self):
        pre = [l.strip() for l in f"""s_and_b32 s{sT0}, s{sRB}, 7
        s_lshl_b32 s{sT0}, s{sT0}, 2
        s_add_u32 s{sT0}, s{sT0}, s{sW}
        s_mul_i32 s{sT0}, s{sT0}, {93*128}
        s_mul_i32 s{sT1}, s{sNB}, {74*5120}
        s_add_u32 s{sT0}, s{sT0}, s{sT1}
        s_add_u32 s{sT0}, s{sT0}, {PB}
        v_lshlrev_b32 v248, 7, v0
        v_min_u32 v249, 28, v0
        v_lshlrev_b32 v249, 7, v249""".split("\n")]
        n = self.c.bt
        out = [[('x', l) for l in pre]]
        if n == 1:
            out[0] += [('vm', f"buffer_load_dword v255, v248, {srd(SWS)}, s{sT0} offen sc1", 'pf')]
            out.append([('x', f"s_add_u32 s{sT0}, s{sT0}, 8192"), ('vm', f"buffer_load_dword v255, v249, {srd(SWS)}, s{sT0} offen sc1", 'pf')])
        else:
            out[0] += [('x', "v_min_u32 v249, 23, v0"), ('x', "v_lshlrev_b32 v249, 7, v249")]
            for i in range(4): out.append([('vm', f"buffer_load_dword v255, v249, {srd(SWS)}, s{sT0} offen offset:0 sc1", 'pf'), ('x', f"s_add_u32 s{sT0}, s{sT0}, 3072")])
        return out
    def code_touch(self, endlab):
        Lp = self.lab('pc')
        return [('x', f"s_getpc_b64 s[30:31]\n{Lp}:"), ('x', f"s_bfe_u32 s{sT0}, s2, 0x40003"), ('x', f"s_lshl_b32 s{sT0}, s{sT0}, 2"), ('x', f"s_add_u32 s{sT0}, s{sT0}, s{sW}"),
                ('x', f"s_lshl_b32 s{sT0}, s{sT0}, 9"), ('x', "v_and_b32 v7, 3, v0"), ('x', f"v_lshl_add_u32 v7, v7, 7, s{sT0}"),
                ('x', f"v_cmp_gt_u32 vcc, {endlab}-{Lp}, v7"), ('x', "v_cndmask_b32 v7, 0, v7, vcc"), ('vm', "global_load_dword v255, v7, s[30:31]", 'pf')]
    def f1_issue(self):
        pre = [l.strip() for l in f"""s_mul_i32 s{sT0}, s{sNB}, 5
        s_add_u32 s{sT1}, s{sT0}, 4
        s_lshr_b32 s{sT0}, s{sT0}, 2
        s_mul_i32 s{sT0}, s{sT0}, 74
        s_lshr_b32 s{sT0}, s{sT0}, 2
        s_lshr_b32 s{sT1}, s{sT1}, 2
        s_mul_i32 s{sT1}, s{sT1}, 74
        s_add_u32 s{sT1}, s{sT1}, 73
        s_lshr_b32 s{sT1}, s{sT1}, 2
        v_add_u32 v235, s{sT0}, v0
        v_min_u32 v235, s{sT1}, v235
        v_lshlrev_b32 v235, 7, v235
        s_mov_b32 s{sT0}, {F1}""".split("\n")]
        return [[('x', l) for l in pre] + [('vm', self.poll_issue(235, 248, 2, None, f"s{sT0}"), 'f1p')]]
    def f1_check(self):
        return [('wvm', 'f1p')] + [('x', t) for t in self.poll_check([(235, 248, 2, f"s{sT0}")])]
    def tag_issue(self):
        e = self.e
        e(f"s_or_b32 s55, s2, s{sW}\ns_min_u32 s55, s55, 1\ns_mul_i32 s55, s55, {OOB}\ns_add_u32 s55, s55, {F1}\nv_lshlrev_b32 v200, 7, v0")
        for i in range(1, 4): e(f"v_add_u32 v{200+i}, {8192*i}, v200")
        self.tgl = [(200 + i, 248 + 2 * i, 2, "s55") for i in range(4)]
        for p in self.tgl: e.vmop(self.poll_issue(p[0], p[1], 2, None, p[3]), 'tg')
    def tag_update(self):
        e = self.e; L = self.lab('tg')
        e.wait(vm='tg')
        e(f"s_or_b32 s{sT0}, s2, s{sW}\ns_cbranch_scc1 {L}")
        for l in self.poll_check(self.tgl): e(l)
        e(self.flag_store(245, 246, str(TAG)))
        e(f"{L}:")

    def attn_voff(self, dst, cexpr_base, colbase_s):
        e = self.e
        e(f"""v_mul_u32_u24 v10, 6554, v9
        v_lshrrev_b32 v10, 16, v10
        v_mad_i32_i24 v11, v10, -10, v9""")
        self.swap23(10, 12)
        e(f"""v_mul_u32_u24 v10, 3840, v10
        v_lshl_add_u32 v10, v11, 4, v10
        v_add_u32 v{dst}, s{colbase_s}, v10""")
    def swap23(self, r, t):
        self.e(f"""v_lshrrev_b32 v{t}, 1, v{r}
        v_xor_b32 v{t}, v{t}, v{r}
        v_and_b32 v{t}, 4, v{t}
        v_mul_u32_u24 v{t}, 3, v{t}
        v_xor_b32 v{r}, v{r}, v{t}""")

    def small_dma(self, sr, vaddr, soff, ldsaddr, nlanes, tag, m0expr=None):
        e = self.e
        e(m0expr or f"s_mov_b32 m0, {ldsaddr}")
        if nlanes < 64: e(f"s_mov_b64 exec, {hex((1 << nlanes) - 1)}" if nlanes <= 32 else f"s_mov_b32 exec_hi, {hex((1 << (nlanes-32)) - 1)}")
        e.vmop(f"buffer_load_dwordx4 v{vaddr}, {srd(sr)}, {soff} offen lds", tag)
        if nlanes < 64: e("s_mov_b64 exec, -1")

    def csel(self, d, a, b):
        inl = lambda x: isinstance(x, str) or -16 <= x <= 64
        if inl(a) or inl(b): self.e(f"s_cselect_b32 s{d}, {a}, {b}")
        else: self.e(f"s_mov_b32 s{d}, {b}\ns_cselect_b32 s{d}, {a}, s{d}")

    def init_B(self):
        self.Bloc = {}; self.Bq = []
        order = [(i, t) for i in range(19) for t in range(5)]
        for u, k in enumerate(order):
            if u < 64: self.Bloc[k] = ('a', 4 * u)
            elif u < 64 + NL: self.Bloc[k] = ('l', u - 64)
            else: self.Bloc[k] = None
        self.Border = order; self.Bpend = list(range(64 + NL)); self.Bcur = None; self.Acur = None
    def koff(self, i):
        r0, r1, r2 = self.perm
        if i < 10: return 4 * ((i + r0) % 10)
        if i < 14: return 38 + 4 * ((i - 10 + r1) % 4)
        return 54 + 4 * ((i - 14 + r2) % 5)
    def soff(self, d, i, w):
        e_, o_, s8, s9, unit = (sB, sBo, sB8, sB9, 5120) if w == 'B' else (sA, sAo, sA8, sA9, 4096)
        if not self.c.par: return f"s_mov_b32 s{d}, s{s9}" if self.koff(i) == 36 else f"s_add_u32 s{d}, s{e_}, {self.koff(i)*unit}"
        if i in (8, 9): return f"s_mov_b32 s{d}, s{s8 if i == 8 else s9}"
        if i == 18: return f"s_add_u32 s{d}, s{e_}, s{o_}\ns_lshr_b32 s{d}, s{d}, 1\ns_add_u32 s{d}, s{d}, {self.koff(i)*unit}"
        idx = i if i < 10 else i - 10 if i < 14 else i - 14
        return f"s_add_u32 s{d}, s{e_ if idx & max(self.c.par, 1) == 0 else o_}, {self.koff(i)*unit}"
    def B_items(self, k, loc):
        i, t = k; it = []
        if self.Bcur != i:
            it.append(('x', self.soff(sBT, i, 'B'))); self.Bcur = i
        va, imm = (6, t * 1024) if t < 4 else (240, 0)
        if loc[0] == 'l':
            assert L_BL + loc[1]*1024 - imm >= 0
            it.append(('x', f"s_add_u32 m0, s88, {L_BL + loc[1]*1024 - imm}"))
            it.append(('vm', f"buffer_load_dwordx4 v{va}, {srd(SWS)}, s{sBT} offen offset:{imm} sc1 lds", ('B', k)))
        else:
            it.append(('vm', f"buffer_load_dwordx4 {R(loc)}, v{va}, {srd(SWS)}, s{sBT} offen offset:{imm} sc1", ('B', k)))
        return it
    def B_take(self, us):
        out = []
        for u in us:
            k = self.Border[u]; out.append(self.B_items(k, self.Bloc[k]))
            if self.c.xB == 1: out[-1] = [('x', 's_nop 0')]
            if self.c.xB == 2: out[-1] = [(it[0], it[1].replace(f"s{sBT} offen", "s43 offen"), it[2]) if it[0] == 'vm' else it for it in out[-1]]
            if self.c.xB == 3: out[-1] = [(it[0], it[1].replace(f"s{sBT} offen", f"s{sB} offen"), it[2]) if it[0] == 'vm' else it for it in out[-1]]
        return out
    def ph2_bg(self, u): pass
    def bg_try(self, allowed, S=None):
        e = self.e
        if e.t - e.tvm < (S or self.c.S): return False
        if allowed == self.ph2_bg: return self.try_issue(self.m, True, True)
        for u in self.Bpend:
            if allowed(u):
                self.Bpend.remove(u); self.emit_items(self.B_take([u])[0]); return True
        return False
    def emit_items(self, items):
        e = self.e
        for it in items:
            if it[0] == 'vm': e.vmop(it[1], it[2])
            elif it[0] == 'lg': e.lgop(it[1], it[2])
            elif it[0] == 'wvm': e.wait(vm=it[1])
            elif it[0] == 'wlg': e.wait(lg=it[1])
            elif it[0] == 'st': self.stamp(it[1], it[2])
            else: e(it[1])
    def valu(self, lines, side=None, every=1, bg=None, S=None):
        n = 0
        for l in lines:
            if isinstance(l, str): self.e(l)
            else: self.emit_items([l])
            n += 1
            if side and n % every == 0: self.emit_items(side.pop(0))
            if bg: self.bg_try(bg, S)

    def interleave(self, items, side, every):
        W = ('s_cmp', 's_add', 's_sub', 's_and', 's_andn2', 's_or', 's_xor', 's_lshl', 's_lshr', 's_bitcmp', 's_min', 's_max')
        Rd = ('s_cselect', 's_addc', 's_subb', 's_cbranch_scc')
        live = [False] * len(items); l = False
        for i in range(len(items) - 1, -1, -1):
            live[i] = l
            t = items[i][1]
            if t.startswith(Rd): l = True
            elif t.startswith(W): l = False
        n = 0
        for i, it in enumerate(items):
            self.emit_items([it]); n += 1
            if side and n >= every and not live[i]: self.emit_items(side.pop(0)); n = 0
        for g in side: self.emit_items(g)

    def gelu_lines(self, X, Y, T, O):
        U = [X, X + 2, Y, Y + 2]; L = []
        P = lambda r: f"v[{r}:{r+1}]"
        for i in range(4): L.append(f"v_pk_mul_f32 {P(T+2*i)}, {P(U[i])}, {P(U[i])}")
        for i in range(4): L.append(f"v_pk_fma_f32 {P(T+2*i)}, {P(T+2*i)}, v[14:15], s[{sC0}:{sC1}] op_sel_hi:[1,0,0]")
        for i in range(4): L.append(f"v_pk_mul_f32 {P(T+2*i)}, {P(T+2*i)}, {P(U[i])}")
        for i in range(8): L.append(f"v_exp_f32 v{T+i}, v{T+i}")
        for i in range(4): L.append(f"v_pk_add_f32 {P(T+2*i)}, {P(T+2*i)}, 1.0 op_sel_hi:[1,0]")
        for i in range(8): L.append(f"v_rcp_f32 v{T+i}, v{T+i}")
        for i in range(4): L.append(f"v_pk_mul_f32 {P(T+2*i)}, {P(T+2*i)}, {P(U[i])}")
        for i in range(4): L.append(f"v_cvt_pk_bf16_f32 v{O+i}, v{T+2*i}, v{T+2*i+1}")
        return L if not (self.c.skip & 1) else L[-8:]
    def gelu_consts(self):
        c1 = -2.0 * math.sqrt(2.0 / math.pi) * math.log2(math.e)
        self.e(f"s_mov_b32 s{sC0}, {fl(c1)}\nv_mov_b32 v14, {fl(c1 * 0.044715)}")
    def softmax_lines(self, Pp, E, PH):
        L = []; P = lambda r: f"v[{r}:{r+1}]"
        L += [f"v_max3_f32 v8, v{Pp}, v{Pp+1}, v{Pp+2}", f"v_min3_f32 v10, v{Pp}, v{Pp+1}, v{Pp+2}"]
        for i in range(3, 19, 2): L += [f"v_max3_f32 v8, v8, v{Pp+i}, v{Pp+i+1}", f"v_min3_f32 v10, v10, v{Pp+i}, v{Pp+i+1}"]
        L += [f"v_max_f32 v8, v8, v{Pp+19}", f"v_min_f32 v10, v10, v{Pp+19}"]
        L += [f"v_mul_f32_e64 v8, -v8, s{sC0}", f"v_mul_f32 v10, s{sC0}, v10"]
        for i in range(10):
            L.append(f"v_pk_fma_f32 {P(E+2*i)}, {P(Pp+2*i)}, s[{sC0}:{sC1}], v[8:9] op_sel_hi:[1,0,0]")
            L.append(f"v_pk_fma_f32 {P(E+20+2*i)}, {P(Pp+2*i)}, s[{sC0}:{sC1}], v[10:11] op_sel_hi:[1,0,0] neg_lo:[1,0,0] neg_hi:[1,0,0]")
        for i in range(40): L.append(f"v_exp_f32 v{E+i}, v{E+i}")
        L += [f"v_pk_add_f32 v[8:9], {P(E)}, {P(E+2)}", f"v_pk_add_f32 v[10:11], {P(E+20)}, {P(E+22)}"]
        for i in range(2, 10): L += [f"v_pk_add_f32 v[8:9], v[8:9], {P(E+2*i)}", f"v_pk_add_f32 v[10:11], v[10:11], {P(E+20+2*i)}"]
        L += ["v_add_f32 v8, v8, v9", "v_add_f32 v10, v10, v11", "v_rcp_f32 v8, v8", "v_rcp_f32 v10, v10"]
        for i in range(10): L.append(f"v_pk_mul_f32 {P(E+2*i)}, {P(E+2*i)}, v[8:9] op_sel_hi:[1,0]")
        for i in range(10): L.append(f"v_pk_mul_f32 {P(E+20+2*i)}, {P(E+20+2*i)}, v[10:11] op_sel_hi:[1,0]")
        for i in range(20): L.append(f"v_cvt_pk_bf16_f32 v{PH+i}, v{E+2*i}, v{E+2*i+1}")
        return L if not (self.c.skip & 2) else [l if 'cvt' in l else '' for l in L]
    def wphi_addr(self, va):
        self.e(f"v_mul_u32_u24 v{va}, 800, v2\nv_mad_u32_u24 v{va}, v3, 40, v{va}\nv_add_u32 v{va}, {L_WPHI}, v{va}")
    def wphi_reads(self, va):
        return [[('lg', f"ds_read_b64_tr_b16 a[{AW+2*(dg*5+fg)}:{AW+1+2*(dg*5+fg)}], v{va} offset:{dg*160 + fg*8}", 'wphi')] for dg in range(5) for fg in range(5)]
    def phi_mfmas(self, KQ, Pp):
        L = []
        for dg in range(5):
            for j in range(2):
                for fg in range(5):
                    d = Pp + 20 * j + 4 * fg; w = AW + 2 * (dg * 5 + fg); b = KQ + 10 * j + 2 * dg
                    L.append(f"v_mfma_f32_4x4x4_16b_bf16 {vr(d)}, a[{w}:{w+1}], v[{b}:{b+1}], {vr(d) if dg else 0}")
        return L
    def cvt_heads(self, acc0, dst, j, n=5):
        return [f"v_cvt_pk_bf16_f32 v{dst+2*t+h}, v{acc0+(t*2+j)*4+2*h}, v{acc0+(t*2+j)*4+2*h+1}" for t in range(n) for h in range(2)]
    def rho0(self, dst):
        self.e(f"v_lshrrev_b32 v{dst}, 1, v2\nv_lshl_add_u32 v{dst}, v{dst}, 4, v3\nv_and_b32 v7, 1, v2\nv_lshl_add_u32 v{dst}, v7, 2, v{dst}")
    def x_addr(self, ST, nsl=3, base=220):
        e = self.e
        e(f"""v_lshrrev_b32 v9, 1, v1
        v_xor_b32 v9, v9, v2
        v_lshlrev_b32 v9, 4, v9
        v_lshl_add_u32 v9, v1, 7, v9
        v_add_u32 v{base}, s{sM0}, v9
        v_xor_b32 v{base+1}, 64, v{base}""")
        for sl in range(1, nsl): e(f"v_add_u32 v{base+2*sl}, {sl*ST}, v{base}\nv_add_u32 v{base+1+2*sl}, {sl*ST}, v{base+1}")
    def paced(self, groups, m0, span):
        n = len(groups)
        return [dict(at=m0 + int((k + 0.2) * span / n), chain=1, ins=list(g)) for k, g in enumerate(groups)]
    def prog_QH(self):
        e = self.e; c = self.c; self.init_B(); self.perm = (0, 0, 0); self.dmap = {0: 3, 1: 5, 2: 7, 3: 9, 14: 11, 7: 13, 9: 15}
        e("L_QH:")
        ST = QH_ST
        e(f"""s_mul_i32 s{sKW}, s{sHG}, 320
        s_lshl_b32 s{sT0}, s{sHG}, 8
        s_add_u32 s{sT0}, s{sT0}, 384
        s_cmp_lt_u32 s{sHG}, 6
        s_cselect_b32 s{sKW}, s{sKW}, s{sT0}
        s_cselect_b32 s{sK1}, 20, 16
        s_mul_i32 s{sT2}, s{sW}, 320""")
        def dma_x(st):
            g = []
            for j in range(4):
                it = [('x', f"s_add_u32 m0, s{sM0}, {(st%3)*ST}")] if j == 0 else []
                g.append(it + [('vm', f"buffer_load_dwordx4 v{208+j}, {srd(SX)}, s{sE+st} offen offset:{j*1024} {c.xsc} lds", ('S', st))])
            return g
        def dma_a(st, i):
            it = []
            if i == 0: it = [('x', f"s_mul_i32 s{sKA}, s{sE+st}, 1920"), ('x', f"s_add_u32 m0, s{sM0+1}, {(st%3)*ST}")]
            if i == 2: it = [('x', f"s_mov_b32 m0, s{sM0+3+st%3}")]
            return it + [('vm', f"buffer_load_dwordx4 v{212+i}, {srd(SQ)}, s{sKA} offen offset:{1024 if i == 1 else 0} {c.wsc} lds", ('S', st))]
        def dma_h(st, i):
            it = []
            if i == 0: it = [('x', f"s_mul_i32 s{sKB}, s{sE+st}, 1728"), ('x', f"s_add_u32 m0, s{sM0+2}, {(st%3)*ST}")]
            if i == 4: it = [('x', "s_add_u32 m0, m0, 4096")]
            return it + [('vm', f"buffer_load_dwordx4 v{215+i}, {srd(S1)}, s{sKB} offen offset:{(i%4)*1024} {c.wsc} lds", ('S', st))]
        def dma_stage(st): return dma_x(st) + [dma_a(st, i) for i in range(3)] + [dma_h(st, i) for i in range(5)]
        if c.fast:
            self.kernarg_wait()
            if c.touch == 3: self.touch()
            for g in dma_x(0): self.emit_items(g)
            if c.touch == 5: self.touch()
            self.small_dma(SM, 6, f"s{sKW}", None, 20, 'bias', f"s_add_u32 m0, s{sT2}, {L_BIASQH}")
        e(f"""s_mul_i32 s{sT0}, s{sW}, 3
        s_lshl_b32 s{sT1}, s{sW}, 1
        s_add_u32 s{sT1}, s{sT1}, 2
        s_cmp_lt_u32 s{sW}, 2
        s_cselect_b32 s{sT0}, s{sT0}, s{sT1}
        s_lshl_b32 s{sM0+1}, s{sT0}, 10
        s_add_u32 s{sM0+1}, s{sM0+1}, 16384""")
        for sl in range(3):
            e(f"s_add_u32 s{sM0+3+sl}, s{sM0+1}, {2048 + sl*ST}\ns_cmp_lt_u32 s{sW}, 2\ns_cselect_b32 s{sM0+3+sl}, s{sM0+3+sl}, {MISC+4608}")
        e(f"s_lshl_b32 s{sT0}, s{sT0}, 6\ns_mul_i32 s{sT1}, s{sHG}, 160\ns_mul_i32 s{sM0+2}, s{sW}, 5120\ns_add_u32 s{sM0+2}, s{sM0+2}, {16384+10240}")
        for i in range(3):
            e(f"v_add_u32 v9, {64*i}, v0\nv_add_u32 v9, s{sT0}, v9")
            self.attn_voff(212 + i, None, sT1)
            if i == 1: e("v_subrev_u32 v213, 1024, v213")
            if i == 2: e(f"s_cmp_lt_u32 s{sW}, 2\ns_cselect_b32 s{sT4}, 0, {OOB}\nv_add_u32 v214, s{sT4}, v214")
            if c.fast: self.emit_items(dma_a(0, i))
        if not c.fast:
            self.kernarg_wait()
            self.small_dma(SM, 6, f"s{sKW}", None, 20, 'bias', f"s_add_u32 m0, s{sT2}, {L_BIASQH}")
            for g in dma_x(0) + [dma_a(0, i) for i in range(3)]: self.emit_items(g)
        e(f"s_mul_i32 s{sT0}, s{sW}, 320\nv_mov_b32 v14, {OOB}")
        for i in range(5):
            e(f"""v_add_u32 v9, {64*i}, v0
            v_add_u32 v9, s{sT0}, v9
            v_mul_u32_u24 v10, 3277, v9
            v_lshrrev_b32 v10, 16, v10
            v_mul_u32_u24 v11, 20, v10
            v_sub_u32 v11, v9, v11
            v_bfe_u32 v13, v10, 2, 1
            v_lshlrev_b32 v13, 1, v13
            v_xor_b32 v11, v11, v13
            v_cmp_gt_u32 vcc, s{sK1}, v11""")
            self.swap23(10, 12)
            e(f"""v_mul_u32_u24 v10, 3456, v10
            v_lshl_add_u32 v10, v11, 4, v10
            v_add_u32 v10, s{sKW}, v10
            v_subrev_u32 v10, {(i%4)*1024}, v10
            v_cndmask_b32 v{215+i}, v14, v10, vcc""")
            self.emit_items(dma_h(0, i))
        self.pstamp(1)
        if c.pke:
            self.pack_setup()
            for g in self.pack_loads(): self.emit_items(g)
        if c.touch == 1: self.touch()
        if c.touch == 4:
            self.touch3_setup()
            for p_ in range(c.tp0): self.emit_items(self.touch3(p_))
        self.pstamp(2)
        def setup():
            e = self.e
            self.x_addr(ST); self.rho0(8)
            e(f"v_mul_u32_u24 v9, 160, v8\nv_mad_u32_u24 v9, v4, 40, v9\nv_add_u32 v226, 16384, v9")
            e(f"v_mul_u32_u24 v9, 320, v8\nv_lshl_add_u32 v9, v4, 3, v9\nv_add_u32 v9, {16384+10240}, v9\nv_lshl_add_u32 v229, v7, 5, v9\nv_xor_b32 v7, 1, v7\nv_lshl_add_u32 v232, v7, 5, v9")
            for sl in (1, 2): e(f"v_add_u32 v{226+sl}, {sl*ST}, v226\nv_add_u32 v{229+sl}, {sl*ST}, v229\nv_add_u32 v{232+sl}, {sl*ST}, v232")
            self.common_setup()
            if not c.pke: self.pack_setup()
            e(f"s_mul_i32 s{sT1}, s{sW}, 320\ns_add_u32 s{sT1}, s{sT1}, {L_BIASQH}\nv_lshl_add_u32 v13, v2, 3, s{sT1}")
            e(f"""s_lshl_b32 s{sT0}, s{sMT}, 1
            s_lshr_b32 s{sT1}, s{sW}, 1
            s_add_u32 s{sT0}, s{sT0}, s{sT1}
            s_and_b32 s{sT1}, s{sW}, 1
            s_mul_i32 s{sT2}, s{sT0}, 74
            s_lshl_b32 s{sT2}, s{sT2}, 12
            s_lshl_b32 s{sT3}, s{sT1}, 11
            s_add_u32 s{sT2}, s{sT2}, s{sT3}
            s_add_u32 s{sT2}, s{sT2}, {A2}
            s_lshr_b32 s{sT4}, s{sHG}, 1
            s_mul_i32 s{sT4}, s{sT4}, 5
            s_add_u32 s{sT4}, s{sT4}, 54
            s_lshl_b32 s{sT4}, s{sT4}, 12
            s_add_u32 s{sT4}, s{sT4}, s{sT2}
            s_and_b32 s{sT5}, s{sHG}, 1
            s_lshl_b32 s38, s{sT5}, 13
            s_add_u32 s38, s38, s{sT4}
            s_add_u32 s39, s{sT4}, {4*4096}
            s_lshl_b32 s{sT5}, s{sT5}, 3
            s_add_u32 s39, s39, s{sT5}
            s_lshl_b32 s{sT0}, s{sHG}, 4
            s_add_u32 s{sT0}, s{sT0}, s{sMT}
            s_lshl_b32 s{sT0}, s{sT0}, 2
            s_add_u32 s{sT0}, s{sT0}, s{sW}
            s_lshl_b32 s{sT0}, s{sT0}, 9
            s_add_u32 s43, s{sT0}, {GB}
            v_mov_b32 v204, -1
            v_mov_b32 v205, -1
            v_mov_b32 v206, -1
            v_mov_b32 v207, -1""")
        self.interleave(self.record(setup), dma_stage(1)[:c.n1], c.pe)
        self.pstamp(3)
        if c.n1 >= 12:
            self.small_dma(SM, 6, "s36", None, 50, 'misc', "s_mov_b32 m0, s37")
            if c.touch == 2: self.touch()
            if not c.pke:
                for g in self.pack_loads(): self.emit_items(g)
        self.tag_wait(); self.pstamp(4)
        e.wait(vm='bias')
        for s_ in range(10): e.lgop(f"ds_read_b64 v[{136+2*s_}:{137+2*s_}], v13 offset:{s_*32}", ('b', s_))
        for s_ in range(10):
            a0 = 16 + (5 + s_) * 8; e.wait(lg=('b', s_))
            for h in range(2): e(f"v_lshlrev_b32 v{a0+2*h}, 16, v{136+2*s_+h}\nv_and_b32 v{a0+2*h+1}, 0xffff0000, v{136+2*s_+h}")
        self.stamp(0)
        NS = 15; nm = NS * 4; mf = []; reads = []; mfl = []; readsl = []; gs = [0, 0]
        for st in range(10):
            sl = st % 3; seen = set()
            for t in range(NS):
                lt = int(st >= 10 - c.dfq and t < 5); M, RD_ = (mf, mfl)[lt], (reads, readsl)[lt]; stg = -1 if lt else st
                wr = 168 + 8 * (gs[lt] % 4); gs[lt] += 1; m0 = len(M)
                for ks in range(2):
                    for rd in range(2):
                        if t < 5: ad, off = 226 + sl, ks * 5120 + rd * 1280 + t * 8
                        else: ad, off = (229 if (t - 5) % 2 == 0 else 232) + sl, ks * 10240 + rd * 2560 + ((t - 5) >> 1) * 64
                        RD_.append([f"ds_read_b64_tr_b16 v[{wr+4*ks+2*rd}:{wr+4*ks+2*rd+1}], v{ad} offset:{off}", m0, stg, m0 - 13])
                for j in ((1, 0) if st == 0 else (0, 1)):
                    for ks in range(2):
                        xr = 136 + (st % 2) * 16 + (j * 2 + ks) * 4; d = 16 + (t * 2 + j) * 4
                        if (lt, j, ks) not in seen:
                            seen.add((lt, j, ks)); RD_.append([f"ds_read_b128 {vr(xr)}, v{220+2*sl+ks} offset:{j*2048}", len(M), stg, (len(M) // 20) * 20 - 21 if lt else -1])
                        cc = vr(d)
                        if st == 0 and ks == 0: cc = "0" if t < 5 else vr(16 + t * 8)
                        M.append(f"v_mfma_f32_16x16x32_bf16 {vr(d)}, {vr(wr+4*ks)}, {vr(xr)}, {cc}")
        po = lambda va, off: [('vm', f"buffer_store_dwordx4 v[204:207], v{va}, {srd(SWS)}, s38 offen offset:{off} sc1", 'hst')]
        poison = [po(6, 0), po(6, 1024), po(240, 0), po(240, 1024)] + [[('vm', f"buffer_store_dwordx2 v[204:205], v6, {srd(SWS)}, s39 offen offset:{j*1024} sc1", 'hst')] for j in range(2)]
        self.ulim = 51
        self.kloop(mf, reads, nm, dma_stage, poison, 'QH')
        A51 = lambda u: u < 51; A64 = lambda u: u < 64; ALL = lambda u: True
        self.gelu_consts()
        e(f"s_lshl_b32 s{sT3}, s{sKW}, 6\ns_add_u32 s{sT3}, s{sT3}, s{sT2}")
        L = []
        for p in range(5):
            for j in range(2):
                O = 152 + 4 * ((2 * p + j) % 4)
                L += self.gelu_lines(16 + ((5 + 2 * p) * 2 + j) * 4, 16 + ((6 + 2 * p) * 2 + j) * 4, 136 + 8 * j, O)
                if j == 0:
                    if p == 4: L += [f"s_add_u32 s{sT4}, s{sT3}, {4*4096}", f"s_cmp_lt_u32 s{sHG}, 6\ns_cselect_b32 s{sT4}, s{sT4}, {OOB}"]
                    else: L.append(f"s_add_u32 s{sT4}, s{sT3}, {p*4096}")
                L.append(('vm', f"buffer_store_dwordx4 {vr(O)}, v6, {srd(SWS)}, s{sT4} offen offset:{j*1024} sc1", 'hst'))
        self.valu(L, bg=A51, S=c.Sg)
        if mfl: self.stream(mfl, readsl, [], None, name='QHlate', bg=lambda m: A51)
        e(f"""s_lshl_b32 s{sT4}, s{sMT}, 4
        s_add_u32 s{sT4}, s{sT4}, s{sHG}
        s_lshl_b32 s{sT4}, s{sT4}, 7
        s_add_u32 s{sT4}, s{sT4}, {F4}
        s_cmp_eq_u32 s{sW}, 0
        s_cselect_b32 s{sT5}, s{sT4}, {OOB}
        s_mov_b32 s{sC0}, {fl(math.log2(math.e))}""")
        def pub():
            e.wait(vm='hst'); e("s_barrier")
            e.vmop(self.flag_store(245, 246, f"s{sT5}"), 'f4st')
        if c.f4at < 0: pub(); A51 = lambda u: u < 51 or u >= 64
        self.b2_loads()
        self.valu(self.cvt_heads(16, 56, 0) + self.cvt_heads(16, 66, 1), bg=A51)
        self.stamp(2)
        if c.stamps: e(f"s_mov_b32 s{sC0}, {fl(math.log2(math.e))}")
        e.wait(lg='wphi')
        self.valu(self.phi_mfmas(56, 76), bg=A51)
        L1 = self.softmax_lines(76, 16, 116)
        if c.f4at >= 0:
            self.valu(L1[:c.f4at], bg=A64); pub()
        self.valu(L1[max(c.f4at, 0):], bg=ALL)
        L2 = self.softmax_lines(96, 16, 136)
        self.valu(L2[:c.pa], bg=ALL)
        self.poll4a_issue()
        self.valu(L2[c.pa:c.pb], bg=ALL)
        pool = [[('v', r), c.mo + 1 if r < 204 else c.p3 if r < 220 else 999] for r in list(range(204, 224, 4)) + list(range(168, 204, 4))]
        while len(self.Bpend) > c.qleft: self.bg_try(ALL, -9999)
        self.ph2_begin(pool)
        if c.stamps == 3: e(f"s_mov_b32 s{sC0}, {fl(math.log2(math.e))}")
        self.valu(L2[c.pb:], bg=ALL)
        self.stamp(3)
        pool += [[('v', r), c.mo + 1] for r in range(156, 168, 4)]
        FO = (0, 1024, 2048, 2816)
        finld = [f"buffer_load_dwordx4 {vr(204+4*i)}, v6, {srd(SWS)}, s{sKW} offen offset:{FO[i]} sc1" for i in range(4)]
        finld += [f"buffer_load_dwordx4 {vr(248+4*j)}, v13, {srd(SWS)}, s43 offen offset:{j*256} sc1" for j in range(2)]
        def h_p3():
            e(f"""s_mul_i32 s{sKW}, s{sHG}, {FSZ}
            s_mul_i32 s{sK1}, s{sW}, 3840
            s_add_u32 s{sKW}, s{sKW}, s{sK1}
            s_add_u32 s{sKW}, s{sKW}, {FIN}
            v_lshlrev_b32 v13, 4, v1""")
            for l in finld: e.vmop(l, 'fin')
        def h_c3():
            it = [('st', 4, 1)] + [('x', l) for l in f"s_lshr_b32 s{sK1}, s{sK1}, 1\ns_add_u32 s{sK1}, s{sK1}, {L_FIN}\nv_lshl_add_u32 v9, v0, 3, s{sK1}".split("\n")] + [('wvm', 'fin')]
            it += [('x', l) for l in self.tag_check(finld, list(range(204, 220)) + list(range(248, 256)), 8)] + [('st', 5, 1)]
            it += [('x', self.tag_strip(r)) for r in list(range(204, 220)) + [248, 252]] + [('x', "v_mov_b32 v250, v248"), ('x', "v_mov_b32 v251, v252")]
            for i in range(4):
                it += [('x', f"v_cvt_pk_bf16_f32 v{204+4*i}, v{204+4*i}, v{205+4*i}"), ('x', f"v_cvt_pk_bf16_f32 v{205+4*i}, v{206+4*i}, v{207+4*i}"),
                       ('lg', f"ds_write_b64 v9, v[{204+4*i}:{205+4*i}] offset:{FO[i]//2}", 'fw')]
            it += [('x', l) for l in f"v_lshlrev_b32 v13, 6, v2\nv_lshl_add_u32 v13, v4, 4, v13\nv_add_u32 v13, {L_FIN}, v13".split("\n")]
            self.aq[:0] = [[self.m, c.mo - 3, x] for x in it]
        def h_o():
            if c.p1q < 0: self.poll4b_issue()
            fr = [p for p in pool if p[0][0] == 'a'][:8]; assert len(fr) == 8; self.busy = fr
            e.wait(lg='fw'); e("s_barrier")
            self.stamp(6)
            mf = []; reads = []
            for fp in range(5):
                for dg in range(6):
                    n = fp * 6 + dg; f0 = fr[n % 8][0][1]; base = (n // 2) * 8
                    reads.append([f"ds_read_b128 {ar(f0)}, v13 offset:{(dg*5+fp)*256}", base + 2 * (n % 2), -1, base - 24])
                    for h in range(2):
                        for j in range(2):
                            d = 156 + 24 * j + 4 * dg; b = 116 + 20 * j + 2 * (2 * fp + h)
                            mf.append(f"v_mfma_f32_4x4x4_16b_bf16 {vr(d)}, a[{f0+2*h}:{f0+2*h+1}], v[{b}:{b+1}], {vr(d) if (fp or h) else 0}")
            mf2 = []
            for n in range(0, 30, 2):
                a_, b_ = mf[4*n:4*n+4], mf[4*n+4:4*n+8]
                mf2 += [a_[0], a_[1], b_[0], b_[1], a_[2], a_[3], b_[2], b_[3]]
            if c.skip & 4: mf2 = mf2[:8]; reads = reads[:2]
            self.stream(mf2, reads, [], None, LA=20, bg=lambda m: self.ph2_bg)
            for j in range(2): e(f"v_add_f32 v{8+2*j}, {fl(1e-6)}, v{156+24*j+20}")
            for j in range(2): e(f"v_rcp_f32 v{8+2*j}, v{8+2*j}")
            for j in range(2): e(f"v_mul_f32 v{8+2*j}, v{8+2*j}, v{250+j}")
            for j in range(2):
                D = 156 + 24 * j
                for i in range(10): e(f"v_pk_mul_f32 v[{D+2*i}:{D+2*i+1}], v[{D+2*i}:{D+2*i+1}], v[{8+2*j}:{9+2*j}] op_sel_hi:[1,0]")
                for i in range(10): e(f"v_cvt_pk_bf16_f32 v{D+i}, v{D+2*i}, v{D+2*i+1}")
                for i in range(10): e(f"v_min_u32 v{D+i}, -2, v{D+i}")
                e.vmop(f"buffer_store_dwordx4 {vr(D)}, v6, {srd(SWS)}, s38 offen offset:{j*1024} sc1", 'ost')
                e.vmop(f"buffer_store_dwordx4 {vr(D+4)}, v240, {srd(SWS)}, s38 offen offset:{j*1024} sc1", 'ost')
                e.vmop(f"buffer_store_dwordx2 {vr(D+8, 2)}, v6, {srd(SWS)}, s39 offen offset:{j*1024} sc1", 'ost')
            self.busy = []
            for p in pool: p[1] = 999
            pool.extend([[('v', r), 999] for r in range(116, 156, 4)])
            self.stamp(14)
        self.bias2()
        self.phase2({c.p3: h_p3, c.c3: h_c3, c.mo: h_o, c.p1q: self.poll4b_issue, c.c1q: self.poll4b_check})

    def prog_KV(self):
        e = self.e; c = self.c; self.init_B(); self.perm = c.perm or (0, 0, 0); self.dmap = {0: 2, 1: 4, 3: 6, 4: 8, 5: 10, 7: 12, 9: 14}
        ST = KV_ST
        e(f"""s_mul_i32 s{sM0+1}, s{sW}, 5120
        s_add_u32 s{sM0+1}, s{sM0+1}, 16384
        s_lshl_b32 s{sM0+2}, s{sW}, 11
        s_add_u32 s{sM0+2}, s{sM0+2}, 36864
        s_lshl_b32 s{sKW}, s{sHG}, 7
        s_add_u32 s{sKW}, s{sKW}, {19*128}""")
        def dma_x(st):
            g = []
            for j in range(4):
                it = [('x', f"s_add_u32 m0, s{sM0}, {(st%3)*ST}")] if j == 0 else []
                g.append(it + [('vm', f"buffer_load_dwordx4 v{208+j}, {srd(SX)}, s{sE+st} offen offset:{j*1024} {c.xsc} lds", ('S', st))])
            return g
        def dma_w(st, i):
            it = []
            if i == 0: it = [('x', f"s_mul_i32 s{sKA}, s{sE+st}, 1920"), ('x', f"s_add_u32 m0, s{sM0+1}, {(st%3)*ST}")]
            if i == 4: it = [('x', "s_add_u32 m0, m0, 4096")]
            return it + [('vm', f"buffer_load_dwordx4 v{212+i}, {srd(SQ)}, s{sKA} offen offset:{(i%4)*1024} {c.wsc} lds", ('S', st))]
        def dma_h(st, i):
            it = [('x', f"s_mul_i32 s{sKB}, s{sE+st}, 1728"), ('x', f"s_add_u32 m0, s{sM0+2}, {(st%3)*ST}")] if i == 0 else []
            return it + [('vm', f"buffer_load_dwordx4 v{217+i}, {srd(S1)}, s{sKB} offen offset:{i*1024} {c.wsc} lds", ('S', st))]
        def dma_stage(st): return dma_x(st) + [dma_w(st, i) for i in range(5)] + [dma_h(st, i) for i in range(2)]
        if c.fast:
            self.kernarg_wait()
            if c.touch == 3: self.touch()
            for g in dma_x(0): self.emit_items(g)
            if c.touch == 5: self.touch()
            self.small_dma(SM, 6, f"s{sKW}", L_BIASKV, 8, 'bias')
        e(f"""s_and_b32 s{sT0}, s{sW}, 1
        s_mul_i32 s{sT0}, s{sT0}, 320
        s_lshr_b32 s{sT1}, s{sW}, 1
        s_add_u32 s{sT1}, s{sT1}, 1
        s_mul_i32 s{sT1}, s{sT1}, 1280
        s_mul_i32 s{sT3}, s{sHG}, 160
        s_add_u32 s{sT1}, s{sT1}, s{sT3}""")
        for i in range(5):
            e(f"v_add_u32 v9, {64*i}, v0\nv_add_u32 v9, s{sT0}, v9")
            self.attn_voff(212 + i, None, sT1)
            if i % 4: e(f"v_subrev_u32 v{212+i}, {(i%4)*1024}, v{212+i}")
            if c.fast: self.emit_items(dma_w(0, i))
        if not c.fast:
            self.kernarg_wait()
            self.small_dma(SM, 6, f"s{sKW}", L_BIASKV, 8, 'bias')
            for g in dma_x(0) + [dma_w(0, i) for i in range(5)]: self.emit_items(g)
        e(f"s_lshl_b32 s{sT3}, s{sW}, 4\nv_lshlrev_b32 v11, 1, v2\nv_xor_b32 v11, v11, v0\nv_and_b32 v11, 7, v11")
        for pp in range(2):
            e(f"v_add_u32 v10, {8*pp}, v5\nv_add_u32 v10, s{sT3}, v10")
            self.swap23(10, 12)
            e(f"""v_mul_u32_u24 v10, 3456, v10
            v_lshl_add_u32 v10, v11, 4, v10
            v_add_u32 v10, s{sKW}, v10
            v_subrev_u32 v{217+pp}, {pp*1024}, v10""")
            self.emit_items(dma_h(0, pp))
        mk_srd(e, 28, pGATE, 1280)
        if c.rot == 4: e(f"v_xor_b32 v9, s{sE}, v6\ns_and_b32 s{sT3}, s{sE}, 128\nv_xor_b32 v11, s{sT3}, v6\nv_add_u32 v11, 1024, v11")
        elif c.rot == 3: e(f"v_xor_b32 v9, s{sE}, v6\nv_add_u32 v11, 1024, v9")
        else: e(f"v_add_u32 v9, s{sE}, v6\nv_subrev_u32 v10, 1280, v9\nv_min_u32 v9, v9, v10\nv_add_u32 v11, 1024, v9\nv_subrev_u32 v10, 1280, v11\nv_min_u32 v11, v11, v10")
        self.small_dma(28, 9, "0", L_GATE, 64, ('S', 0)); self.small_dma(28, 11, "0", L_GATE + 1024, 16, ('S', 0))
        self.pstamp(1)
        if c.pke:
            self.pack_setup()
            for g in self.pack_loads(): self.emit_items(g)
        if c.touch == 1: self.touch()
        if c.touch == 4:
            self.touch3_setup()
            for p_ in range(c.tp0): self.emit_items(self.touch3(p_))
        self.pstamp(2)
        def setup():
            e = self.e
            self.x_addr(ST); self.rho0(8)
            e(f"v_mul_u32_u24 v9, 160, v8\nv_mad_u32_u24 v9, v4, 40, v9\nv_add_u32 v226, 16384, v9")
            for sl in (1, 2): e(f"v_add_u32 v{226+sl}, {sl*ST}, v226")
            e(f"v_lshlrev_b32 v9, 7, v8\nv_lshl_add_u32 v9, v4, 3, v9\nv_add_u32 v9, 36864, v9\nv_bfe_u32 v10, v8, 1, 2")
            for t in range(4): e(f"v_xor_b32 v11, {t}, v10\nv_lshl_add_u32 v{229+t}, v11, 5, v9\nv_add_u32 v{204+t}, {2*ST}, v{229+t}")
            e(f"v_lshlrev_b32 v233, 4, v2\nv_add_u32 v233, {L_GATE}, v233\nv_lshlrev_b32 v253, 3, v2\nv_add_u32 v253, {L_BIASKV}, v253")
            self.common_setup()
            if not c.pke: self.pack_setup()
            e(f"""v_lshrrev_b32 v8, 2, v1
            v_mul_u32_u24 v8, 2560, v8
            v_lshl_add_u32 v8, v4, 5, v8
            v_lshrrev_b32 v9, 1, v2
            v_lshl_add_u32 v8, v9, 9, v8
            v_and_b32 v9, 1, v2
            v_lshl_add_u32 v8, v9, 4, v8
            s_lshl_b32 s{sT0}, s{sW}, 7
            v_add_u32 v241, s{sT0}, v8
            v_add_u32 v243, 10240, v241
            v_mov_b32 v9, {OOB}
            v_cmp_ge_u32 vcc, 7, v1
            v_cndmask_b32 v243, v9, v243, vcc
            v_cmp_gt_u32 vcc, 2, v2
            v_cndmask_b32 v242, v9, v241, vcc
            v_cndmask_b32 v244, v9, v243, vcc
            v_mul_u32_u24 v12, {PSZ}, v2
            v_min_u32 v10, 14, v1
            v_lshl_add_u32 v12, v10, 4, v12
            v_lshlrev_b32 v13, 4, v1
            v_cmp_gt_u32 vcc, 16, v0
            v_cndmask_b32 v234, v9, v13, vcc
            v_cmp_gt_u32 vcc, 15, v0
            v_cndmask_b32 v13, v9, v13, vcc""")
        self.interleave(self.record(setup), dma_stage(1)[:c.n1], c.pe2)
        self.pstamp(3)
        if c.n1 >= 12:
            self.small_dma(SM, 6, "s36", None, 50, 'misc', "s_mov_b32 m0, s37")
            if c.touch == 2: self.touch()
            if not c.pke:
                for g in self.pack_loads(): self.emit_items(g)
        self.tag_wait(); self.pstamp(4)
        e.wait(vm='bias')
        for s_ in range(4): e.lgop(f"ds_read_b64 v[{136+2*s_}:{137+2*s_}], v253 offset:{s_*32}", ('b', s_))
        for s_ in range(4):
            e.wait(lg=('b', s_))
            for h in range(2): e(f"v_lshlrev_b32 v{96+8*s_+2*h}, 16, v{136+2*s_+h}\nv_and_b32 v{97+8*s_+2*h}, 0xffff0000, v{136+2*s_+h}")
        self.stamp(0)
        NS = 15; nm = NS * 4; mf = []; reads = []; late = []; gs = 0
        S0 = 10 - c.dfr; AD = AW - 56 * c.dfr
        for st in range(10):
            sl = st % 3; mst = len(mf)
            for t in range(NS):
                dfr = st >= S0 and t >= 10
                wr = (('a', AD + (st - S0) * 56 + 16 + (t - 10) * 8) if dfr else ('v', 168 + 8 * (gs % 4))); m0 = len(mf)
                dl, ea = (mst + 6 + 6 * (t - 10), -1) if dfr else (m0, m0 - 13)
                RR = lambda o, n: R((wr[0], wr[1] + o), n)
                for ks in range(2):
                    if t == 14: reads.append([f"ds_read_b128 {RR(4*ks, 4)}, v233 offset:{(st*2+ks)*64}", dl, st, ea]); continue
                    for rd in range(2):
                        if t < 10: ad, off = 226 + sl, (t // 5) * 10240 + ks * 5120 + rd * 1280 + (t % 5) * 8
                        else: ad, off = (229 if sl < 2 else 204) + t - 10, (sl % 2) * ST + ks * 4096 + rd * 1024
                        reads.append([f"ds_read_b64_tr_b16 {RR(4*ks+2*rd, 2)}, v{ad} offset:{off}", dl, st, ea])
                for j in ((1, 0) if st == 0 else (0, 1)):
                    for ks in range(2):
                        xr = ('a', AD + (st - S0) * 56 + (j * 2 + ks) * 4) if st >= S0 else ('v', 136 + (st % 2) * 16 + (j * 2 + ks) * 4)
                        d = 16 + (t * 2 + j) * 4
                        if t == 0: reads.append([f"ds_read_b128 {R(xr)}, v{220+2*sl+ks} offset:{j*2048}", len(mf), st, -1])
                        cc = vr(d)
                        if st == 0 and ks == 0: cc = vr(16 + t * 8) if 10 <= t < 14 else "0"
                        (late if dfr else mf).append(f"v_mfma_f32_16x16x32_bf16 {vr(d)}, {RR(4*ks, 4)}, {R(xr)}, {cc}")
                if not dfr: gs += 1
        self.ulim = AD // 4
        self.kloop(mf, reads, nm, dma_stage, [], 'KV')
        e.wait(lg_all=True)
        A64 = lambda u: u < 64; ALL = lambda u: True
        A51 = lambda u: u < 51; Sa = c.Sa
        ALL0 = ALL; ALL = lambda u: u < self.ulim or u >= 51
        KQ = 136; PR = 168; VT = 156
        nl2e = fl(-math.log2(math.e))
        side = [l.strip() for l in f"""v_mul_f32 v128, {nl2e}, v128
        v_mul_f32 v132, {nl2e}, v132
        v_exp_f32 v128, v128
        v_exp_f32 v132, v132
        s_lshl_b32 s{sT2}, s{sMT}, 2
        v_add_f32 v128, 1.0, v128
        v_add_f32 v132, 1.0, v132
        v_rcp_f32 v128, v128
        v_rcp_f32 v132, v132
        s_add_u32 s{sT2}, s{sT2}, s{sW}
        s_lshl_b32 s{sT3}, s{sT2}, 9
        s_lshl_b32 s{sT4}, s{sHG}, 15
        s_add_u32 s{sT3}, s{sT3}, s{sT4}
        s_add_u32 s{sT3}, s{sT3}, {GB}
        v_mul_u32_u24 v220, {RSV}, v1
        v_mad_u32_u24 v220, v2, 48, v220
        s_mul_i32 s{sT0}, s{sW}, {32*RSV}
        s_add_u32 s{sT0}, s{sT0}, {L_V}
        v_add_u32 v220, s{sT0}, v220
        v_mul_u32_u24 v221, {RSP}, v1
        s_mov_b32 s{sT0}, 80
        v_mad_u32_u24 v221, v2, s{sT0}, v221
        s_mul_i32 s{sT0}, s{sW}, {32*RSP}
        v_add_u32 v221, s{sT0}, v221
        v_lshl_add_u32 v8, v2, 2, v3
        v_mul_u32_u24 v222, {RSP}, v8
        v_lshl_add_u32 v222, v4, 3, v222
        s_mul_i32 s{sT0}, s{sW}, 80
        v_add_u32 v222, s{sT0}, v222
        v_mul_u32_u24 v223, {RSV}, v8
        v_lshl_add_u32 v223, v4, 3, v223
        s_mul_i32 s{sT0}, s{sW}, 48
        s_add_u32 s{sT0}, s{sT0}, {L_V}
        v_add_u32 v223, s{sT0}, v223
        s_lshl_b32 s{sT0}, s{sHG}, 4
        s_add_u32 s{sT0}, s{sT0}, s{sMT}
        s_mul_i32 s{sT1}, s{sT0}, {PSZ}
        s_add_u32 s{sT1}, s{sT1}, {PP}
        s_mov_b32 s{sC0}, {fl(math.log2(math.e))}""".split("\n")]
        self.b2_loads(); self.tag_update()
        self.valu(self.cvt_heads(16, KQ, 0) + self.cvt_heads(16, KQ + 10, 1))
        e.wait(lg='wphi')
        gate = side[:14]; side = self.cvt_heads(56, VT, 0) + side[14:38]
        self.valu(self.phi_mfmas(KQ, PR), [[('x', l)] for l in side], 1)
        e(f"v_mov_b32 v{VT+10}, 0x3f80\nv_mov_b32 v{VT+11}, 0\ns_mov_b32 s{sC0}, {fl(math.log2(math.e))}\ns_barrier")
        for i in range(3): e.lgop(f"ds_write_b128 v220, {vr(VT+4*i)} offset:{i*16}", 'vw')
        L0 = self.softmax_lines(PR, 16, 136)
        self.valu(L0[:16], bg=ALL, S=Sa)
        self.valu(self.cvt_heads(56, 208, 1) + ["v_mov_b32 v218, 0x3f80", "v_mov_b32 v219, 0"], bg=ALL, S=Sa)
        for i in range(3): e.lgop(f"ds_write_b128 v220, {vr(208+4*i)} offset:{16*RSV + i*16}", 'vw')
        self.valu(L0[16:], bg=ALL, S=Sa)
        PH = (136, 56)
        pw = lambda j: [[('lg', f"ds_write_b128 v221, {vr(PH[j]+4*i)} offset:{j*16*RSP + i*16}", 'pw')] for i in range(5)]
        L1 = self.softmax_lines(PR + 20, 16, 56)
        self.valu(L1[:40], pw(0), 8, ALL, Sa)
        self.valu(L1[40:-20], bg=ALL, S=Sa)
        self.valu(L1[-20:], pw(1), 4)
        e.wait(lg_all=True); e("s_barrier")
        self.stamp(2)
        mf = []; reads = []; D0 = 168
        for s_ in range(4):
            b0 = 16 + s_ * 20; m0 = len(mf)
            for dt in range(2):
                for rd in range(2): reads.append([f"ds_read_b64_tr_b16 v[{b0+12+4*dt+2*rd}:{b0+13+4*dt+2*rd}], v223 offset:{(32*s_+16*rd)*RSV + dt*32}", m0 + dt, -1, -1])
            for ft in range(3):
                for rd in range(2): reads.append([f"ds_read_b64_tr_b16 v[{b0+4*ft+2*rd}:{b0+4*ft+2*rd+1}], v222 offset:{(32*s_+16*rd)*RSP + ft*32}", m0 + 2 * ft, -1, -1])
                for dt in range(2):
                    d = D0 + (ft * 2 + dt) * 4
                    mf.append(f"v_mfma_f32_16x16x32_bf16 {vr(d)}, {vr(b0+4*ft)}, {vr(b0+12+4*dt)}, {vr(d) if s_ else 0}")
        reads.sort(key=lambda r: r[1]); rp = 0
        for m in range(24):
            while rp < 40 and (len(e.lg) < 14 and (m == 0 or reads[rp][1] <= m + 8) or reads[rp][1] <= m): e.lgop(reads[rp][0], ('kv', reads[rp][1])); rp += 1
            e.wait(lg=[('kv', k) for k in range(m + 1)])
            e(mf[m])
            if c.kvb: self.bg_try(ALL, c.kvb)
        e("s_nop 4")
        for ft in range(3):
            for dt in range(2):
                for i in range(4): e(self.tag_put(D0 + (ft * 2 + dt) * 4 + i))
                e.vmop(f"buffer_store_dwordx4 {vr(D0+(ft*2+dt)*4)}, v{241+2*dt+(ft==2)}, {srd(SWS)}, s{sT1} offen offset:{ft*1024} sc1", 'pst')
        self.stamp(3)
        sc = [l.strip() for l in f"""s_lshl_b32 s{sT2}, s{sMT}, 2
        s_add_u32 s{sT2}, s{sT2}, s{sW}
        s_lshl_b32 s{sT4}, s{sMT}, 1
        s_lshr_b32 s{sT5}, s{sW}, 1
        s_add_u32 s{sT4}, s{sT4}, s{sT5}
        s_and_b32 s{sT5}, s{sW}, 1
        s_mul_i32 s{sT0}, s{sT4}, 74
        s_lshl_b32 s{sKW}, s{sHG}, 1
        s_add_u32 s{sT0}, s{sT0}, s{sKW}
        s_add_u32 s{sT0}, s{sT0}, 38
        s_lshl_b32 s{sT0}, s{sT0}, 12
        s_lshl_b32 s{sT5}, s{sT5}, 11
        s_add_u32 s{sT0}, s{sT0}, s{sT5}
        s_add_u32 s{sT0}, s{sT0}, {A2}
        s_lshl_b32 s{sKW}, s{sMT}, 4
        s_add_u32 s{sKW}, s{sKW}, s{sHG}
        s_lshl_b32 s{sKW}, s{sKW}, 7
        s_add_u32 s{sKW}, s{sKW}, {F4+1024}
        s_mul_i32 s32, s{sT2}, 240
        s_mul_i32 s{sT4}, s{sHG}, {FSZ}
        s_add_u32 s{sT1}, s32, s{sT4}
        s_add_u32 s{sT1}, s{sT1}, {FIN}
        s_lshl_b32 s{sT4}, s{sT4}, 4
        s_add_u32 s32, s32, s{sT4}
        s_add_u32 s32, s32, {PP}
        s_add_u32 s33, s32, {4*PSZ}
        s_add_u32 s34, s33, {4*PSZ}
        s_add_u32 s35, s34, {4*PSZ}""".split("\n")] + [f"s_cmp_eq_u32 s{sW}, 0\ns_cselect_b32 s{sKW}, s{sKW}, {OOB}"]
        sd = [[('x', l)] for l in sc]
        self.valu(late, sd, 1, ALL if c.kvb else None, c.kvb)
        for g in sd: self.emit_items(g)
        ALL = ALL0
        for l in gate: e(l)
        for j in range(2):
            for i in (3, 2, 1, 0): e(self.tag_put(128 + 4 * j + i, 128 + 4 * j))
            e.vmop(f"buffer_store_dwordx4 {vr(128+4*j)}, v234, {srd(SWS)}, s{sT3} offen offset:{j*256} sc1", 'hst')
        self.gelu_consts()
        L = []; hs = []
        for p in range(2):
            for j in range(2):
                O = 152 + 4 * ((2 * p + j) % 4)
                L += self.gelu_lines(96 + (4 * p + j) * 4, 96 + (4 * p + 2 + j) * 4, 136 + 8 * j, O)
                hs.append(('vm', f"buffer_store_dwordx4 {vr(O)}, v{6 if p == 0 else 240}, {srd(SWS)}, s{sT0} offen offset:{j*1024} sc1", 'hst'))
        RD = 16
        pld = [f"buffer_load_dwordx4 {vr(RD+4*i)}, v12, {srd(SWS)}, s{32+i} offen sc1" for i in range(4)]
        self.valu(L[:c.kpl], bg=ALL if c.kgb else None, S=Sa)
        for l in pld: e.vmop(l, 'pld')
        if c.kp4 == 0: self.poll4a_issue()
        self.valu(L[c.kpl:], bg=ALL if c.kgb else None, S=Sa)
        if c.khs == 0: self.emit_items(hs)
        pool = [[('v', r), 999] for r in list(range(168, 224, 4)) + list(range(116, 152, 4))]
        for _ in range(c.kb2): self.bg_try(ALL, -9999)
        self.stamp(4)
        def h_r2():
            red = [self.tag_strip(RD + i) for i in range(16)]
            red += [f"v_add_f32 v{RD+i}, v{RD+i}, v{RD+4+i}" for i in range(4)] + [f"v_add_f32 v{RD+8+i}, v{RD+8+i}, v{RD+12+i}" for i in range(4)] + [f"v_add_f32 v{RD+i}, v{RD+i}, v{RD+8+i}" for i in range(4)]
            for sw in ('32', '16'):
                red += [f"v_mov_b32 v{RD+4+i}, v{RD+i}" for i in range(4)] + [f"v_permlane{sw}_swap_b32 v{RD+i}, v{RD+4+i}" for i in range(4)] + [f"v_add_f32 v{RD+i}, v{RD+i}, v{RD+4+i}" for i in range(4)]
            red += [self.tag_put(RD + i) for i in range(4)]
            it = [('st', 14, 1), ('wvm', 'pld')] + [('x', l) for l in self.tag_check(pld, range(RD, RD + 16), 9)] + [('st', 5, 1)] + [('x', l) for l in red]
            it += [('vm', f"buffer_store_dwordx4 {vr(RD)}, v13, {srd(SWS)}, s{sT1} offen sc1", 'fst')]
            self.emit_items(it)
        def h_f4():
            e.wait(vm='hst'); e("s_barrier"); e.vmop(self.flag_store(245, 246, f"s{sKW}"), 'f4st')
        h_r2()
        if c.khs == 1:
            self.emit_items(hs)
            for _ in range(c.kb4): self.bg_try(ALL, -9999)
        pool += [[('v', r), 999] for r in range(152, 168, 4)]
        if c.f4k < 0: h_f4()
        if c.kp4 == 1:
            self.poll4a_issue()
            for _ in range(c.kb3): self.bg_try(ALL, -9999)
        self.ph2_begin(pool)
        while len(self.Bpend) > c.kleft: self.bg_try(ALL, -9999)
        self.stamp(6)
        self.bias2()
        self.phase2({c.f4k: h_f4, c.p1: self.poll4b_issue, c.c1: self.poll4b_check})

    def kloop(self, mf, reads, nm0, dma_stage, poison, name):
        e = self.e; c = self.c; back = []
        def mksync(st):
            def f(m):
                nm = nm0 - (20 if st >= 10 - (c.dfr if name == 'KV' else c.dfq) else 0)
                tg = [it[2] for g in back for it in (g[1] if g[0] == 'atomic' else g) if it[0] == 'vm']
                assert not (st == c.pks and 'packld' in tg) and not (st == c.pks + 3 and 'pkst' in tg) and not (st == 3 and 'misc' in tg) and ('S', st) not in tg
                e.wait(vm=[('S', st)] + (['pkst'] if st == c.pks + 3 else []) + (['misc'] if st == 3 else []) + (['packld'] if st == c.pks else []), lg_all=True); e("s_barrier")
                self.stamp(st + 1, 2)
                if st < 3: self.stamp(7 + st, 3)
                if st == 2: self.pstamp_flush()
                out = []
                if st == 0 and c.n1 < 12:
                    back.extend(dma_stage(1)[c.n1:])
                    back.append(('atomic', self.record(lambda: self.small_dma(SM, 6, "s36", None, 50, 'misc', "s_mov_b32 m0, s37"))))
                if st + 2 < 10: back.extend(dma_stage(st + 2))
                if st == c.pkl and c.n1 < 12: back.extend(self.pack_loads())
                if st == c.pks: back.extend(self.pack_stores())
                if c.f1s < st < 8 or (st == c.f1s and st < 8 and c.f1c + 8 < nm - 16):
                    for u in self.Bpend[:c.bk]: self.Bpend.remove(u); back.append(self.B_take([u])[0])
                need = max([k + 1 for k, g in enumerate(back) if g[0] != 'atomic' and g[-1][2] == ('S', st + 1)], default=0)
                n = min(len(back), max(c.quota, need)) if st < 7 else len(back)
                take = back[:n]; del back[:n]
                if take:
                    pc = self.paced([g[1] if g[0] == 'atomic' else g for g in take], m, nm - c.dtail)
                    for f, g in zip(pc, take):
                        if g[0] == 'atomic': f['atomic'] = 1
                    out += pc
                if c.touch == 4: out += [dict(at=m + nm - c.dtail + 1, chain=1, ins=self.touch3(p_)) for p_ in range(c.tp0, 3) if c.tst[p_] == st]
                if st in c.cpf: out.append(dict(at=m + nm - c.dtail + 2, ins=self.code_touch('L_QH' if name == 'KV' else 'L_end')))
                if st == c.pks: out += self.pack_fill(m, nm)
                if st == c.pks + 3: out.append(dict(at=m + 1, ins=[('vm', self.flag_store(245, 246, f"s{sF1}"), 'f1st')]))
                if st == 3: out += [dict(at=m + 3 + 5 * k, ins=g) for k, g in enumerate(self.wphi_reads(254))]
                if st == c.f1s - 1: g = self.f1_issue()[0]; out += [dict(at=m + nm - 30, ins=g[:-1]), dict(at=m + nm - c.dtail, chain=1, ins=g[-1:])]
                if st == c.f1s:
                    chk = [dict(at=m + c.f1c + 2 * k, ins=[it]) for k, it in enumerate(self.f1_check())]
                    out += chk
                    if c.bt: out += [dict(at=m + c.f1c + 26 + c.btsp * k, ins=g) for k, g in enumerate(self.btouch())]
                if st == 9 and name == 'KV': out.append(dict(at=m + 4, ins=self.record(self.tag_issue)))
                if st == 8:
                    if poison: out += self.paced(poison, m, 30)
                    self.bg0 = max(m + c.bgs, (m + c.f1c + 8) if c.f1s == 8 else 0)
                return out
            return f
        self.bg0 = 9999; self.wphi_addr(254)
        self.stream(mf, reads, [], {st: mksync(st) for st in range(10)}, name=name, bg=lambda m: (lambda u: m >= self.bg0 and u < self.ulim))
        self.stamp(1); self.stamp(11, 2)
        self.typ = name
        if c.dly == (1 if name == 'KV' else 2): e(f's_sleep {c.dlyn}')
        self.ph2_pre()

    def ph2_pre(self):
        e = self.e
        mk_srd(e, SM, pB2, 1280); mk_srd(e, SPK, pOUT, 2048 * 1280)
        e(f"""s_mul_i32 s{sM0}, s{sNB}, 160
        s_and_b32 s{sM0+1}, s{sNB}, 1
        s_lshl_b32 s{sM0+2}, s{sM0+1}, 5
        s_add_u32 s{sM0+2}, s{sM0+2}, s{sM0}
        s_xor_b32 s{sM0+1}, s{sM0+1}, 1
        s_lshl_b32 s{sM0+1}, s{sM0+1}, 7
        s_add_u32 s{sM0+1}, s{sM0+1}, s{sM0}
        s_min_u32 s{sM0+3}, s{sW}, 1
        s_mul_i32 s{sM0+3}, s{sM0+3}, 1280
        s_sub_u32 s{SM+2}, 1280, s{sM0+3}
        s_lshr_b32 s{sM0+5}, s{sRB}, 1
        s_lshl_b32 s{sM0+3}, s{sM0+5}, 11
        s_add_u32 s{sM0+3}, s{sM0+3}, {F4}
        s_add_u32 s{sM0+4}, s{sM0+3}, 1024
        v_and_b32 v235, 7, v0
        v_lshlrev_b32 v235, 7, v235""")
    def b2_loads(self):
        e = self.e
        e("v_lshlrev_b32 v7, 4, v2\nv_lshlrev_b32 v8, 3, v2")
        e.vmop(f"buffer_load_dwordx4 v[224:227], v7, {srd(SM)}, s{sM0+2} offen", 'b2')
        e.vmop(f"buffer_load_dwordx4 v[228:231], v7, {srd(SM)}, s{sM0+2} offen offset:64", 'b2')
        e.vmop(f"buffer_load_dwordx2 v[232:233], v8, {srd(SM)}, s{sM0+1} offen", 'b2')
    def poll4a_issue(self): self.e.vmop(self.poll_issue(235, 252, 2, None, f"s{sM0+3}"), 'p4a')

    def poll4b_issue(self): self.e.vmop(self.poll_issue(235, 252, 2, None, f"s{sM0+4}"), 'p4b')
    def poll4b_check(self):
        e = self.e
        self.stamp(10)
        e.wait(vm='p4b')
        for l in self.poll_check([(235, 252, 2, f"s{sM0+4}")]): e(l)
        self.stamp(11)
        self.gate[1] = True; self.g_loads()
        for _ in range(self.c.burst): self.try_issue(self.m, True)
    def g_loads(self):
        e = self.e
        e(f"s_lshl_b32 s{sT0}, s{sRB}, 10\ns_add_u32 s{sT0}, s{sT0}, {GB}\nv_lshlrev_b32 v7, 4, v1")
        for jj in range(4):
            e(f"v_subrev_u32 v8, v6, v{236+jj}\nv_lshrrev_b32 v8, 2, v8\nv_add_u32 v8, v8, v7")
            e.vmop(f"buffer_load_dword v{241+jj}, v8, {srd(SWS)}, s{sT0} offen sc1", 'g')
    def bias2(self):
        e = self.e; BI = 96
        e.wait(vm='b2')
        for t in range(5):
            for h in range(2):
                s_ = 224 + 2 * t + h
                e(f"v_lshlrev_b32 v{BI+4*t+2*h}, 16, v{s_}\nv_and_b32 v{BI+4*t+2*h+1}, 0xffff0000, v{s_}")

    def ph2_begin(self, pool):
        e = self.e; c = self.c
        e.wait(vm='p4a')
        for l in self.poll_check([(235, 252, 2, f"s{sM0+3}")]): e(l)
        self.pool = pool; self.busy = []; self.Aloc = {}; self.Bl = dict(self.Bloc); self.Acur = {}
        groups = [(0, 1), (2, 3), (4, 5), (6, 7), (8, 9), (10, 11), (12, 13), (14, 15), (16, 17, 18)]
        self.mf = [(i, t, j) for g in groups for t in range(5) for j in range(4) for i in g]
        fA, lA, fB, lB = {}, {}, {}, {}
        for m, (i, t, j) in enumerate(self.mf):
            fA.setdefault((i, j), m); lA[(i, j)] = m; fB.setdefault((i, t), m); lB[(i, t)] = m
        self.lA, self.lB = lA, lB
        w = [('A', k, fA[k] if k[0] < 14 else (280 if k[0] < 16 else 320) - c.vlead - 1, lA[k]) for k in fA]
        w += [('S', k, fB[k], lB[k]) for k in fB if self.Bl[k] and self.Bl[k][0] == 'l']
        w += [('B', k, fB[k], lB[k]) for k in fB if self.Bl[k] is None]
        self.fB = fB
        self.work = sorted(w, key=lambda x: (x[2] // 40 * 40 + x[1][0] % 2 * 4 + x[1][1]) if (x[0] == 'A' and c.aord and x[1][0] < 14) else x[2]); self.gate = {0: True, 1: False, 2: False, 3: False}; self.Atxt = {}; self.lastiss = -99; self.m = 0
        for _ in range(c.a0): self.try_issue(0, True)

    def try_issue(self, m, force=False, nos=False):
        e = self.e; c = self.c; pool = self.pool
        cls = lambda i: 0 if i < 10 else (1 if i < 14 else 2 if i < 16 else 3)
        for w in self.work:
            kind, k, dl, last = w
            if kind == 'A' and not self.gate[cls(k[0])]: continue
            if kind == 'S' and (nos or dl - m > 16 or self.Border.index(k) in self.Bpend): continue
            if kind != 'S' and not force and dl - m >= 12 and e.t - e.tvm < (c.S2 if dl - m >= c.urg else c.S3): continue
            if kind == 'P':
                self.Bpend.remove(k); self.emit_items(self.B_take([k])[0]); self.work.remove(w); return True
            ok = [p for p in pool if p[1] > last and p not in self.busy and (p[0][0] == 'v' or kind != 'A' or k[0] < 14)]
            if not (kind == 'A' and k[0] >= 14): ok.sort(key=lambda p: p[0][0] == 'v' and m > 150)
            if len(ok) < (1 if dl - m <= 40 else 4 if kind == 'A' else 7): continue
            p = ok[0]; pool.remove(p); loc = p[0]; self.until[loc] = p[1]
            if kind == 'A':
                i, j = k; sr = sAT if i % 2 == 0 else sAT2
                if self.Acur.get(sr) != i:
                    e(self.soff(sr, i, 'A')); self.Acur[sr] = i
                e.vmop(f"buffer_load_dwordx4 {R(loc)}, v{236+j}, {srd(SWS)}, s{sB if c.xA == 1 and i < 14 else 41 if c.xA == 2 else sr} offen sc1", ('A', k)); self.Aloc[k] = loc
                self.Atxt[k] = self.soff(sT1, i, 'A').split("\n") + [ f"buffer_load_dwordx4 {R(loc)}, v{236+j}, {srd(SWS)}, s{sT1} offen sc1"]
            elif kind == 'B':
                self.emit_items(self.B_items(k, loc)); self.Bl[k] = loc
            else:
                e.wait(vm=('B', k))
                e.lgop(f"ds_read_b128 {R(loc)}, v234 offset:{self.Bl[k][1]*1024}", ('S', k)); self.Bl[k] = loc
            if kind != 'S': self.lastiss = m
            if c.verbose > 1: print(f'{kind}{k}@{m}->{dl}', end=' ')
            self.work.remove(w); return True
        return False

    def phase2(self, hooks):
        e = self.e; c = self.c
        ACC = 16; BI = 96; pool = self.pool; mf = self.mf; Bl = self.Bl; Aloc = self.Aloc
        mtrans = min(m for m, x in enumerate(mf) if x[0] >= 14)
        if c.verbose: print("B loads left for phase 2:", len(self.Bpend))
        hooks = {k: v for k, v in hooks.items() if k >= 0}
        for u in self.Bpend:
            k = self.Border[u]; self.work.append(('P', u, self.fB[k] - (20 if self.Bloc[k][0] == 'l' else 0), 0))
        self.work.sort(key=lambda x: (x[2] // 40 * 40 + x[1][0] % 2 * 4 + x[1][1]) if (x[0] == 'A' and c.aord and x[1][0] < 14) else x[2])
        e(f"s_add_u32 s{sT0}, s88, {L_BL}\nv_add_u32 v234, s{sT0}, v6")
        pool += [[('v', r), 999] for r in (224, 228)]
        if c.dly == (3 if self.typ == 'KV' else 4): e(f's_sleep {c.dlyn}')
        seen = set(); vchk = {280: (14, 15), 320: (16, 17, 18)}
        aq = []
        lastH = {}; firstO = {}; lastO = {}
        for m, (i, t, j) in enumerate(mf):
            if i < 14: lastH[(j, t)] = m
            else: firstO.setdefault((j, t), m); lastO[(j, t)] = m
        g0 = min(lastH.values()) - 10
        aq.append([g0, g0 + 4, ('wvm', 'g')])
        for jj in range(4): aq += [[g0, g0 + 8, ('x', self.tag_strip(241 + jj))]]
        for jj in range(4): aq += [[g0, g0 + 12, ('x', f"v_sub_f32 v{241+jj}, 1.0, v{241+jj}")]]
        for k in sorted(lastH, key=lambda k: lastH[k]):
            jj, tt = k; d = ACC + (jj * 5 + tt) * 4
            for q in range(4): aq.append([lastH[k] + 3, firstO[k] - 2, ('x', f"v_mul_f32 v{d+q}, v{241+jj}, v{d+q}")])
        adr = []
        for jj in range(1, 4):
            adr += [f"s_add_u32 s{sT0}, s{sW}, {jj}", f"s_and_b32 s{sT0}, s{sT0}, 3", f"s_mul_i32 s{sT0}, s{sT0}, 15360",
                    f"s_add_u32 s{sT0}, s{sT0}, {L_RED + (jj-1)*5120}", f"v_add_u32 v{8+jj}, s{sT0}, v6"]
        adr += [l.strip() for l in f"""s_mul_i32 s{sT0}, s{sW}, 15360
        s_add_u32 s{sT0}, s{sT0}, {L_RED}
        v_add_u32 v8, s{sT0}, v6
        s_lshl_b32 s{sT0}, s{sRB}, 2
        s_add_u32 s{sT0}, s{sT0}, s{sW}
        s_mul_i32 s{sT0}, s{sT0}, {16*1280}
        s_add_u32 s{sT3}, s{sT0}, s{sM0+2}
        s_add_u32 s{sT2}, s{sT0}, s{sM0+1}
        v_mul_u32_u24 v12, 1280, v1
        v_lshl_add_u32 v13, v2, 3, v12
        v_lshl_add_u32 v12, v2, 4, v12""".split("\n")]
        for l in adr: aq.append([c.adr0, 325, ('x', l)])
        for k in sorted(lastO, key=lambda k: lastO[k]):
            jj, tt = k
            if jj: aq.append([lastO[k] + 3, 999, ('lg', f"ds_write_b128 v{8+jj}, {vr(ACC+(jj*5+tt)*4)} offset:{tt*1024}", 'rw')])
        self.aq = aq
        for m, (i, t, j) in enumerate(mf):
            self.m = m
            if m == mtrans: self.stamp(7)
            assert (i, j) in Aloc and Bl[(i, t)] and Bl[(i, t)][0] != 'l', (m, i, t, j)
            assert not any(a[1] < m for a in aq), (m, aq[0])
            e.wait(vm=[('A', (i, j)), ('B', (i, t))], lg=('S', (i, t)))
            d = ACC + (j * 5 + t) * 4
            cc = vr(d) if (j, t) in seen else vr(BI + 4 * t); seen.add((j, t))
            e(f"v_mfma_f32_16x16x32_bf16 {vr(d)}, {R(Bl[(i, t)])}, {R(Aloc[(i, j)])}, {cc}")
            k0 = len(e.ins)
            for loc, last in ((Aloc[(i, j)], self.lA[(i, j)]), (Bl[(i, t)], self.lB[(i, t)])):
                if last == m: pool.append([loc, self.until.get(loc, 999) if self.until.get(loc, 999) > m else 999])
            if m == 40: pool.extend([[('v', BI + 4 * k), 999] for k in range(5)])
            if m == 200 and c.dly == (5 if self.typ == 'KV' else 6): e(f's_sleep {c.dlyn}')
            if m == c.o1: self.gate[2] = True
            if m == c.o2: self.gate[3] = True
            if m + 1 + c.vlead in vchk:
                mv = m + 1 + c.vlead; ks = [(ii, jj) for ii in vchk[mv] for jj in range(4)]
                assert all(k in Aloc for k in ks), (m, ks)
                vq = [('wvm', [('A', k) for k in ks])] + [('x', l) for l in self.valid_check(sum([self.Atxt[k] for k in ks], []), [Aloc[k][1] + q for k in ks for q in range(4)], 7)]
                if mv == 280: vq = [('st', 12, 1)] + vq + [('st', 13, 1), ('open',)]
                aq[:0] = [[m, mv - 1, it] for it in vq]
            if m in hooks: hooks[m]()
            self.try_issue(m)
            while any(w[2] - m < 4 for w in self.work) and self.try_issue(m): pass
            while True:
                av = [a for a in aq if a[0] <= m]
                if not av: break
                hurry = any(sum(1 for b in aq if b[1] <= a[1]) > 2 * (a[1] - m) for a in aq if a[1] < 999)
                a = min(av, key=lambda a: a[1])
                if len(e.ins) - k0 >= 2 and not hurry: break
                if a[2][0] == 'lg' and any(x.kind in ('dsw', 'dsr', 'vload', 'dma') for x in e.ins[k0:]): break
                aq.remove(a)
                if a[2][0] == 'open':
                    self.gate[3] = True
                    for _ in range(c.burst3): self.try_issue(m, True)
                elif a[2][0] == 'call': a[2][1]()
                else: self.emit_items([a[2]])
        assert not self.work, self.work
        self.stamp(8)
        for a in aq: self.emit_items([a[2]])
        e.wait(lg_all=True); e("s_barrier")
        for t in range(5):
            for s_ in range(3): e.lgop(f"ds_read_b128 {vr(116+(t*3+s_)*4)}, v8 offset:{s_*5120+t*1024}", ('rr', t))
        for t in range(5):
            e.wait(lg=('rr', t)); d = ACC + t * 4; r = 116 + t * 12
            e(f"""v_pk_add_f32 v[{d}:{d+1}], v[{d}:{d+1}], v[{r}:{r+1}]
            v_pk_add_f32 v[{d+2}:{d+3}], v[{d+2}:{d+3}], v[{r+2}:{r+3}]
            v_pk_add_f32 v[{r+4}:{r+5}], v[{r+4}:{r+5}], v[{r+8}:{r+9}]
            v_pk_add_f32 v[{r+6}:{r+7}], v[{r+6}:{r+7}], v[{r+10}:{r+11}]
            v_pk_add_f32 v[{d}:{d+1}], v[{d}:{d+1}], v[{r+4}:{r+5}]
            v_pk_add_f32 v[{d+2}:{d+3}], v[{d+2}:{d+3}], v[{r+6}:{r+7}]
            v_cvt_pk_bf16_f32 v{96+2*t}, v{d}, v{d+1}
            v_cvt_pk_bf16_f32 v{97+2*t}, v{d+2}, v{d+3}""")
            if t == 1: e.vmop(f"buffer_store_dwordx4 v[96:99], v12, {srd(SPK)}, s{sT3} offen {c.osc}", 'o')
            if t == 3: e.vmop(f"buffer_store_dwordx4 v[100:103], v12, {srd(SPK)}, s{sT3} offen offset:64 {c.osc}", 'o')
            if t == 4: e.vmop(f"buffer_store_dwordx2 v[104:105], v13, {srd(SPK)}, s{sT2} offen {c.osc}", 'o')
        self.stamp(9)
        e("s_endpgm")

    def build(self):
        e = self.e
        self.prologue()
        st = (list(e.vm), list(e.lg))
        self.until = {}
        self.prog_KV()
        e.vm, e.lg = list(st[0]), list(st[1])
        self.until = {}
        self.prog_QH()
        e("\n".join(self.tail))
        e("L_end:\ns_endpgm")
        body = e.finish()
        hdr = open('cdna_kernels/' + NAME + '.s.ref').read().split('; Override launch')[0]
        K = NAME + "_kernel"
        out = hdr + "; Generated by a hand-written Python generator (persistent fused kernel; see comments in the generator).\n"
        out += "; @launch grid=(256,1,1) block=(256,1,1) lds=163840\n"
        out += f'.amdgcn_target "amdgcn-amd-amdhsa--gfx950"\n.text\n.globl {K}\n.p2align 8\n.type {K},@function\n{K}:\n' + body
        out += f""".fill 64, 4, 0xbf800000
.section .rodata,"a"
.p2align 6
.amdhsa_kernel {K}
  .amdhsa_next_free_vgpr 512
  .amdhsa_next_free_sgpr 102
  .amdhsa_accum_offset 256
  .amdhsa_group_segment_fixed_size 0
  .amdhsa_kernarg_size 104
  .amdhsa_user_sgpr_count 2
  .amdhsa_user_sgpr_kernarg_segment_ptr 1
  .amdhsa_system_sgpr_workgroup_id_x 1
.end_amdhsa_kernel
"""
        return out

for k_, v_ in dict(rot=3, par=0, bk=0, dfr=1, dfq=0, kpl=120, khs=0, kb4=10, qb2=6, qb3=6, qfo=0, a0q=12, kp4=1, dly=0, dlyn=16, kvb=64, VC=64, cnt=0, cpf=(), aord=1, nochk=0, skip=0, fast=1, n1=0, quota=28, pkl=0, tp0=1, tst=(0, 0, 1), sp1=24, tlb=0, tlb2=0, pks=3, pke=0, f1s=8, bt=0, btsp=20, bgs=4, qleft=0, kpre=180, kord=0, kgb=1, tmask=7, wbl=0, exit_at=-1, only=0, dstamp=0, xsc='', wsc='', psc='nt', pss='sc1', xA=0, S=48, S2=32, urg=50, S3=0, kb3=8, xB=0, mix=1, perm=0, kf1=60, pe=20, pe2=20, dtail=4, qb0=14, qb1=22, se=10, a0=14, ap=4, osc='sc1 nt', touch=1, kvring=3, f1c=10,
                   f4at=20, pa=100, pb=144, p3=30, c3=58, r1=30, r2=70, rspan=24, kbeg=0, kb1=20, kpa=60, mo=79, p1q=100, c1q=150, Sa=64, kb2=6, kleft=99, Sg=100, o2=226, o1=210, vlead=14, adr0=205, burst3=12, sleep2=1, f4k=-1, p1=130, c1=158, burst=4).items():
    setattr(Cfg, k_, v_)

def generate(**kw):
    c = Cfg()
    for k, v in kw.items(): setattr(c, k, v)
    g = Gen(c); g.e.VC = c.VC; t = g.build()
    return t, g

if __name__ == "__main__":
    kw = {}
    for a_ in sys.argv[2:]:
        k, v = a_.split('='); kw[k] = tuple(map(int, v.split(','))) if ',' in v else int(v, 0) if v.lstrip('-')[0].isdigit() else v.replace('+', ' ')
    t, g = generate(**kw)
    open(sys.argv[1], 'w').write(t)
    print("instructions:", len(g.e.ins), "nops added:", g.e.nop_added)
```

```python
import sys, math
from emit import Emit
NAME = "gated_mix__linear_kernel_hedgehog__dense_activation_gelu__prompt"

TAG = 0x0
F1 = 0x18000
F2 = 0x2000; F3 = 0x6000; F4 = 0xa000; F5 = 0x12000
STAMP = 0x1000000
GB = 0x280000
PP = 0x40000; PSZ = 15360
FIN = 0x240000; FSZ = 15360
PB = 0x300000
A2 = 0x600000
OOB = 0x7ff00000

K1 = 1024
QH_ST = 46 * K1; KV_ST = 44 * K1
MISC = 154 * K1
L_WPHI = MISC; L_GATE = MISC + 3200; L_BIASKV = MISC + 4480; L_BIASQH = MISC + 3200
L_PACK = 138 * K1
WH0 = 114 * K1; WH5 = 74 * K1
L_PHI = 0; RSP = 352; L_V = 128 * RSP; RSV = 224
L_BL = 72 * K1
NL = 18
L_RED = 0
L_FIN = 64 * K1

sW = 3
SX, SQ, S1, SWS, SPK, SM = 4, 8, 12, 16, 20, 24
pX, pQKV, pPHI, pWO, pBX, pW1, pB1, pW2, pB2, pGATE, pOUT, pDBG, pWS = [32 + 2 * i for i in range(13)]
sTAG = 58
sMT, sHG, sRB, sNB = 60, 61, 62, 63
sE = 64
sT0, sT1, sT2, sT3, sT4, sT5 = 74, 75, 76, 77, 78, 79
sM0 = 80
sBT, sAT, sB9, sA9, sAT2 = 100, 101, 86, 87, 55
sAo, sBo, sA8, sB8 = 44, 45, 56, 57
sKW, sK1 = 89, 90
sF1 = 91
sPKD = 92
sA, sB = 96, 97
sC0, sC1 = 98, 99
sP0 = 28

PKA = 200
TB = 10; TBM = (1 << TB) - 1; sTB = 58
AW = 204
def srd(r): return f"s[{r}:{r+3}]"
def vr(r, n=4): return f"v[{r}:{r+n-1}]" if n > 1 else f"v{r}"
def ar(r, n=4): return f"a[{r}:{r+n-1}]"
def R(loc, n=4): return (vr if loc[0] == 'v' else ar)(loc[1], n)
def fl(x):
    import struct
    return hex(struct.unpack('<I', struct.pack('<f', x))[0])

class Cfg:
    rot = 1; map2 = 1; stamps = 0; LA = 12; spin = 200000; codepf = 1; lag = 2; th1 = 2; th2 = 4; minlead = 4; verbose = 0; sleep = 1

sKA, sKB = 0, 1
def mk_srd(e, r, p, nbytes):
    e(f"s_mov_b32 s{r}, s{p}\ns_and_b32 s{r+1}, s{p+1}, 0xffff\ns_mov_b32 s{r+2}, {nbytes}\ns_mov_b32 s{r+3}, 0x20000")

class Gen:
    def __init__(self, cfg):
        self.c = cfg; self.e = Emit(); self.tail = []; self.uid = 0; self.nstamp = 0
    def record(self, fn):
        real = self.e
        class Rec:
            def __init__(r): r.items = []; r.lg = []; r.vm = []
            def __call__(r, t):
                for l in t.strip("\n").split("\n"):
                    if l.strip(): r.items.append(('x', l.strip()))
            def vmop(r, t, tag=None): r.items.append(('vm', t, tag))
            def lgop(r, t, tag=None): r.items.append(('lg', t, tag))
        rec = Rec(); self.e = rec
        try: fn()
        finally: self.e = real
        return rec.items
    def cnt(self):
        if not self.c.cnt: return [], []
        self.ncnt = getattr(self, 'ncnt', 0) + 1; k = self.ncnt - 1
        post = ["s_load_dwordx2 s[46:47], s[40:41], 88", f"s_sub_u32 s54, {self.c.spin}, s54", "s_lshl_b32 s54, s54, 12", "s_add_u32 s54, s54, 1", "s_waitcnt lgkmcnt(0)",
                "v_mov_b32 v14, s54", "v_mov_b32 v15, 0", "s_mov_b64 exec, 1", f"global_atomic_add v15, v14, s[46:47] offset:{k*4}", "s_mov_b64 exec, -1"]
        return [], post
    def lab(self, p):
        self.uid += 1; return f"L_{p}_{self.uid}"
    def stamp(self, i, grp=1):
        if self.c.dstamp and grp == 1:
            slot = self.dmap.get(i)
            if slot is None: return
            e = self.e
            e(f"s_memrealtime s[{sC0}:{sC1}]\ns_load_dwordx2 s[46:47], s[40:41], 88\ns_waitcnt lgkmcnt(0)\nv_mov_b32 v14, s{sC0}\nv_mov_b32 v15, 0"); e.lg = []
            e("s_cmp_eq_u32 s3, 0\ns_cselect_b64 exec, 1, 0")
            L = self.lab('ds'); e(f"s_cbranch_execz {L}")
            e(f"global_atomic_umax v15, v14, s[46:47] offset:{slot*4}")
            if i == 0: e(f"v_mov_b32 v14, s54\nglobal_atomic_umax v15, v14, s[46:47] offset:4\nv_not_b32 v14, v14\nglobal_atomic_umax v15, v14, s[46:47] offset:0")
            e(f"{L}:\ns_mov_b64 exec, -1")
            return
        if not self.c.stamps or (i and self.c.stamps != grp): return
        if self.c.only and i not in (0, self.c.only): return
        e = self.e
        e(f"s_memrealtime s[{sC0}:{sC1}]\ns_memtime s[46:47]\ns_waitcnt lgkmcnt(0)"); e.lg = []
        e(f"v_mov_b32 v14, s{sC0}\nv_mov_b32 v15, s46")
        e(f"s_lshl_b32 s{sC0}, s2, 2\ns_add_u32 s{sC0}, s{sC0}, s{sW}\ns_lshl_b32 s{sC0}, s{sC0}, 7\ns_add_u32 s{sC0}, s{sC0}, {STAMP}")
        e.vmop(f"buffer_store_dwordx2 v[14:15], v245, {srd(SWS)}, s{sC0} offen offset:{i*8}", 'stamp')
        if self.c.exit_at == i and grp == 1: e("s_endpgm")
        if i == 0:
            e(f"v_mov_b32 v14, s54\nv_mov_b32 v15, s40")
            e.vmop(f"buffer_store_dwordx2 v[14:15], v245, {srd(SWS)}, s{sC0} offen offset:{15*8}", 'stamp')

    def pstamp(self, i):
        if self.c.stamps == 3: self.e(f"s_memtime s[100:101]\ns_waitcnt lgkmcnt(0)\nv_mov_b32 v{(248,249,250,251,235)[i]}, s100")
    def pstamp_flush(self):
        if self.c.stamps != 3: return
        e = self.e
        e(f"s_lshl_b32 s{sC0}, s2, 2\ns_add_u32 s{sC0}, s{sC0}, s{sW}\ns_lshl_b32 s{sC0}, s{sC0}, 7\ns_add_u32 s{sC0}, s{sC0}, {STAMP}")
        for i in range(5): e.vmop(f"buffer_store_dword v{(248,249,250,251,235)[i]}, v245, {srd(SWS)}, s{sC0} offen offset:{(2+i)*8+4} sc1", 'stamp')
    def ts(self, k):
        if not self.c.ts: return
        self.e(f"s_memrealtime s[40:41]\ns_waitcnt lgkmcnt(0)\ns_mov_b32 s{(44, 45, 56, 57, 36, 37)[k]}, s40"); self.e.lg = []
    def ts_flush(self):
        if not self.c.ts: return
        e = self.e; L = self.lab('ts'); o = 2 if self.typ == 'KV' else 8
        e(f"s_cmp_lg_u32 s{sW}, 0\ns_cbranch_scc1 {L}\ns_load_dwordx2 s[46:47], s[92:93], 88\ns_waitcnt lgkmcnt(0)\ns_mov_b64 exec, 1\nv_mov_b32 v15, 0")
        for k, r in enumerate((44, 45, 56, 57, 36, 37)): e(f"v_mov_b32 v14, s{r}\nglobal_atomic_umax v15, v14, s[46:47] offset:{(o+k)*4}\ns_nop 1")
        e(f"v_mov_b32 v14, s99\nglobal_atomic_umax v15, v14, s[46:47] offset:4\ns_nop 1\nv_not_b32 v14, v14\nglobal_atomic_umax v15, v14, s[46:47] offset:0\n{L}:")
    def dump(self, name, regs):
        if getattr(self.c, 'dbg', None) != name: return
        e = self.e
        e(f"s_lshl_b32 s{sBT}, s2, 2\ns_add_u32 s{sBT}, s{sBT}, s{sW}\ns_lshl_b32 s{sBT}, s{sBT}, 14\ns_add_u32 s{sBT}, s{sBT}, 0x2000000\nv_lshlrev_b32 v7, 2, v0")
        for i, r in enumerate(regs):
            e.vmop(f"buffer_store_dword v{r}, v7, {srd(SWS)}, s{sBT} offen offset:{(i%16)*256}", 'dbg')
            if i % 16 == 15: e(f"s_add_u32 s{sBT}, s{sBT}, 4096")
        e.wait(vm='dbg'); self.Bcur = None

    def poll_issue(self, vaddr, vdst, n, tag, soff="0"):
        suf = {2: 'dwordx2', 4: 'dwordx4'}[n]
        return f"buffer_load_{suf} {vr(vdst, n)}, v{vaddr}, {srd(SWS)}, {soff} offen sc1"
    def poll_check(self, loads):
        Ls, Lb = self.lab('slow'), self.lab('back')
        cmps = []; ors = []; k = 0
        prs = ['vcc', 's[28:29]', 's[30:31]', 's[46:47]']
        for (va, vd, n, so) in loads:
            for h in range(n // 2):
                cmps.append(f"v_cmp_ne_u64 {prs[k]}, s[{sTAG}:{sTAG+1}], v[{vd+2*h}:{vd+2*h+1}]")
                if k: ors.append(f"s_or_b64 vcc, vcc, {prs[k]}")
                k += 1
        cmps = cmps[::-1] if False else cmps
        fast = cmps + ors + [f"s_cbranch_vccnz {Ls}\n{Lb}:" if not (self.c.nochk & 1) else f"{Lb}:"]
        t = [f"{Ls}:", f"s_mov_b32 s54, {self.c.spin}", f"{Ls}_l:"]
        if self.c.sleep: t.append(f"s_sleep {self.c.sleep}")
        for (va, vd, n, so) in loads: t.append(self.poll_issue(va, vd, n, None, so))
        t += ["s_waitcnt vmcnt(0)"] + cmps + ors
        t += ["s_sub_u32 s54, s54, 1", f"s_cbranch_vccz {Ls}_x", "s_cmp_lg_u32 s54, 0", f"s_cbranch_scc1 {Ls}_l", f"{Ls}_x:"] + self.cnt()[1] + ["s_nop 4", f"s_branch {Lb}"]
        self.tail += t
        return fast
    def tag_check(self, reload, regs, acc):
        Ls, Lb = self.lab('slow'), self.lab('back')
        regs = list(regs); L = [f"v_xor_b32 v{acc}, s{sTB}, v{regs[0]}"]
        for r in regs[1:]: L.append(f"v_bitop3_b32 v{acc}, v{r}, s{sTB}, v{acc} bitop3:0xbe")
        L += [f"v_and_b32 v{acc}, {TBM}, v{acc}", f"v_cmp_ne_u32 vcc, 0, v{acc}"]
        t = [f"{Ls}:", f"s_mov_b32 s54, {self.c.spin}", f"{Ls}_l:"]
        if self.c.sleep: t.append(f"s_sleep {self.c.sleep2}")
        t += list(reload) + ["s_waitcnt vmcnt(0)"] + L
        t += ["s_sub_u32 s54, s54, 1", f"s_cbranch_vccz {Ls}_x", "s_cmp_lg_u32 s54, 0", f"s_cbranch_scc1 {Ls}_l", f"{Ls}_x:"] + self.cnt()[1] + ["s_nop 4", f"s_branch {Lb}"]
        self.tail += t
        return L + [f"s_cbranch_vccnz {Ls}\n{Lb}:" if not (self.c.nochk & 2) else f"{Lb}:"]
    def tag_put(self, r, src=None): return f"v_bfi_b32 v{r}, s42, v246, v{r if src is None else src}"
    def tag_strip(self, r): return f"v_and_b32 v{r}, {hex(0xffffffff ^ TBM)}, v{r}"
    def valid_check(self, reload, regs, acc):
        Ls, Lb = self.lab('slow'), self.lab('back')
        regs = list(regs); L = [f"v_max3_u32 v{acc}, v{regs[0]}, v{regs[1]}, v{regs[2 if len(regs) > 2 else 1]}"]
        r = regs[3:]
        for i in range(0, len(r), 2): L.append(f"v_max3_u32 v{acc}, v{acc}, v{r[i]}, v{r[min(i+1, len(r)-1)]}")
        L.append(f"v_cmp_eq_u32 vcc, -1, v{acc}")
        t = [f"{Ls}:", f"s_mov_b32 s54, {self.c.spin}", f"{Ls}_l:"]
        if self.c.sleep: t.append(f"s_sleep {self.c.sleep2}")
        t += list(reload) + ["s_waitcnt vmcnt(0)"] + L
        t += ["s_sub_u32 s54, s54, 1", f"s_cbranch_vccz {Ls}_x", "s_cmp_lg_u32 s54, 0", f"s_cbranch_scc1 {Ls}_l", f"{Ls}_x:"] + self.cnt()[1] + ["s_nop 4", f"s_branch {Lb}"]
        self.tail += t
        return L + [f"s_cbranch_vccnz {Ls}\n{Lb}:" if not (self.c.nochk & 4) else f"{Lb}:"]
    def flag_store(self, vaddr, vtag, soff="0"):
        return f"buffer_store_dwordx2 {vr(vtag, 2)}, v{vaddr}, {srd(SWS)}, {soff} offen sc1"

    def stream(self, mf, reads, fill, syncs=None, LA=None, name='', bg=None):
        e = self.e; LA = LA or self.c.LA
        reads = sorted(reads, key=lambda r: r[1]); rp = 0; synced = -1 if syncs else 99
        fq = sorted(fill, key=lambda f: f['at'])
        self.sid = getattr(self, 'sid', 0) + 1; sid = self.sid
        start = len(e.ins)
        def add_fill(items):
            lo = max([f['at'] for f in fq if f.get('chain')], default=-99)
            for f in items:
                if f.get('chain'): f['at'] = lo = max(f['at'], lo)
            fq.extend(items); fq.sort(key=lambda f: f['at'])
        def rd():
            nonlocal rp
            e.lgop(reads[rp][0], ('rd', sid, rp)); rp += 1
        if syncs: add_fill(syncs[0](0)); synced = 0
        while rp < len(reads) and reads[rp][1] < 8 and reads[rp][2] <= synced: rd()
        last_read = -99
        dl_of = {('rd', sid, i): r[1] for i, r in enumerate(reads)}
        def due(m): return [t for t in e.lg if t in dl_of and dl_of[t] <= m]
        ismem = lambda it: it[0] in ('vm', 'lg')
        for m in range(len(mf)):
            d = due(m)
            if d: e.wait(lg=d)
            e(mf[m])
            can = lambda: rp < len(reads) and reads[rp][2] <= synced and reads[rp][3] <= m and len(e.lg) < 15
            lead = lambda: reads[rp][1] - m
            if syncs and rp < len(reads) and reads[rp][2] > synced and m - last_read >= self.c.lag and lead() <= LA:
                synced = reads[rp][2]
                assert not any(it[0] == 'vm' and it[2] == ('S', synced) for f in fq for it in f['ins'])
                add_fill(syncs[synced](m + 1))
                if can(): rd(); last_read = m
                continue
            w = 1 if due(m + 1) else 0
            n = w; mem = 0
            if fq and fq[0]['at'] <= m:
                f = fq[0]
                if f.get('atomic'):
                    self.emit_items(f['ins']); n += len(f['ins']); mem += sum(map(ismem, f['ins'])); fq.pop(0)
                elif ismem(f['ins'][0]):
                    self.emit_items([f['ins'].pop(0)]); n += 1; mem += 1
                    if not f['ins']: fq.pop(0)
            if bg and mem == 0:
                k0 = len(e.ins)
                if self.bg_try(bg(m)): n += len(e.ins) - k0; mem += 1
            if can() and lead() <= LA and (mem == 0 or (lead() <= LA - self.c.th1 and not w)):
                rd(); n += 1; mem += 1; last_read = m
            if can() and mem == 1 and not w and lead() <= LA - self.c.th2:
                rd(); n += 1; mem += 1
            while can() and lead() <= self.c.minlead: rd(); n += 1; mem += 1; last_read = m
            while (n < 2 or (fq and fq[0]['at'] <= m - 2 and n < 3)) and fq and fq[0]['at'] <= m + 2 and not fq[0].get('atomic') and not ismem(fq[0]['ins'][0]):
                f = fq[0]; self.emit_items([f['ins'].pop(0)]); n += 1
                if not f['ins']: fq.pop(0)
            assert rp >= len(reads) or reads[rp][1] > m + 1, (m, reads[rp])
        for f in fq: self.emit_items(f['ins'])
        if self.c.verbose:
            tot = 0; g = None
            for i in e.ins[start:]:
                if i.label: continue
                if i.kind == 'mfma':
                    if g is not None: tot += max(16, g)
                    g = 8; prevmem = False
                elif g is not None:
                    mm = i.kind in ('dsr', 'dsw', 'vload', 'vstore', 'dma')
                    g += 8 if (mm and prevmem) else 4; prevmem = mm
            print(f"stream {name}: {len(mf)} mfma, est clks {tot} (ideal {16*len(mf)})")

    def prologue(self):
        e = self.e; c = self.c
        if c.stamps or c.dstamp or c.ts: e("s_memrealtime s[54:55]\ns_memtime s[98:99]")
        e(f"""s_cmp_ge_u32 s2, 256
        s_cbranch_scc1 L_end
        s_load_dwordx16 s[32:47], s[0:1], 0
        s_load_dwordx4 s[48:51], s[0:1], 64
        s_load_dwordx2 s[52:53], s[0:1], 80
        s_load_dwordx2 s[56:57], s[0:1], 96""")
        if c.codepf:
            e(f"""s_getpc_b64 s[{sA}:{sB}]
            L_pf:
            s_lshr_b32 s{sT0}, s2, 3
            s_lshl_b32 s{sT0}, s{sT0}, 11
            v_lshrrev_b32 v1, 4, v0
            v_lshlrev_b32 v1, 7, v1
            v_add_u32 v1, s{sT0}, v1
            v_cmp_gt_u32 vcc, L_end-L_pf, v1
            v_cndmask_b32 v1, 0, v1, vcc""")
            e.vmop(f"global_load_dword v255, v1, s[{sA}:{sB}]", 'pf')
        e(f"""v_lshrrev_b32 v1, 6, v0
        v_and_b32 v0, 63, v0
        s_and_b32 s{sT0}, s2, 7
        v_readfirstlane_b32 s{sW}, v1
        s_lshr_b32 s{sT1}, s2, 3
        s_lshr_b32 s{sT2}, s{sT0}, 1
        s_and_b32 s{sT3}, s{sT1}, 3
        s_lshl_b32 s{sMT}, s{sT2}, 2
        s_add_u32 s{sMT}, s{sMT}, s{sT3}
        s_lshr_b32 s{sT4}, s{sT1}, 2
        s_and_b32 s{sHG}, s{sT0}, 1
        s_lshl_b32 s{sHG}, s{sHG}, 2
        s_and_b32 s{sT5}, s{sT4}, 3
        s_add_u32 s{sHG}, s{sHG}, s{sT5}""")
        if c.rot == 2:
            e(f"""s_mul_i32 s{sE}, s{sT2}, 5
            s_lshr_b32 s{sE}, s{sE}, 1
            s_and_b32 s{sT5}, s{sT0}, 1
            s_mul_i32 s{sT5}, s{sT5}, 5
            s_add_u32 s{sE}, s{sE}, s{sT5}
            s_cmp_ge_u32 s{sE}, 10
            s_cselect_b32 s{sT5}, 10, 0
            s_sub_u32 s{sE}, s{sE}, s{sT5}
            s_lshl_b32 s{sE}, s{sE}, 7""")
        elif c.rot == 3:
            e(f"s_xor_b32 s{sE}, s{sT3}, s{sT4}\ns_and_b32 s{sE}, s{sE}, 1\ns_lshl_b32 s{sE}, s{sE}, 7")
        elif c.rot == 4:
            e(f"s_xor_b32 s{sE}, s{sT3}, s{sT4}\ns_and_b32 s{sE}, s{sE}, 3\ns_lshl_b32 s{sE}, s{sE}, 7")
        else: e(f"s_mov_b32 s{sE}, 0")
        e(f"""v_and_b32 v1, 15, v0
        v_lshrrev_b32 v2, 4, v0
        v_bfe_u32 v3, v0, 2, 2
        v_and_b32 v4, 3, v0
        v_lshrrev_b32 v5, 3, v0
        v_lshlrev_b32 v6, 4, v0
        s_lshl_b32 s{sT2}, s{sMT}, 2
        s_add_u32 s{sT2}, s{sT2}, s{sW}
        s_mul_i32 s{sT2}, s{sT2}, {32*1280}
        v_xor_b32 v7, v2, v0
        v_and_b32 v7, 7, v7
        v_lshlrev_b32 v7, 4, v7
        v_mul_u32_u24 v8, 1280, v5
        v_add_u32 v8, s{sT2}, v8
        v_add_u32 v208, v8, v7
        v_xor_b32 v7, 64, v7
        v_add_u32 v209, v8, v7
        v_add_u32 v209, {10240-1024}, v209
        v_add_u32 v210, {2*(10240-1024)}, v208
        v_add_u32 v211, {2*(10240-1024)}, v209
        s_lshl_b32 s{sM0}, s{sW}, 12
""")
        if c.rot >= 3: e(f"s_xor_b32 s{sE+1}, s{sE}, 128")
        else: e(f"s_add_u32 s{sE+1}, s{sE}, 128\ns_cmp_eq_u32 s{sE+1}, 1280\ns_cselect_b32 s{sE+1}, 0, s{sE+1}")
        for r, n in ((SX, 2048 * 1280), (SQ, 640 * 3840), (S1, 640 * 3456), (SM, 3456)): e(f"s_mov_b32 s{r+2}, {n}\ns_mov_b32 s{r+3}, 0x20000")
        if c.touch == 6: self.touch6_pre()
        e(f"s_bitcmp1_b32 s2, 7\ns_cbranch_scc1 L_QH")

    def kernarg_wait(self):
        e = self.e
        e("s_waitcnt lgkmcnt(0)"); self.pstamp(0)
        e(f"s_load_dwordx2 s[{sTAG}:{sTAG+1}], s[{pWS}:{pWS+1}], {TAG}")
        if self.c.stamps: e('s_mov_b32 s40, s98')
        if self.c.ts: e('s_mov_b32 s99, s54\ns_mov_b64 s[54:55], s[0:1]')
        if self.c.dstamp or self.c.cnt: e('s_mov_b64 s[40:41], s[0:1]')
        for r, p in ((SX, pX), (SM, pB1), (SQ, pQKV), (S1, pW1)): e(f"s_mov_b32 s{r}, s{p}\ns_and_b32 s{r+1}, s{p+1}, 0xffff")

    def pack_setup(self):
        e = self.e
        e(f"""s_lshl_b32 s{sT0}, s2, 2
        s_add_u32 s{sT0}, s{sT0}, s{sW}
        s_mul_i32 s{sT2}, s{sT0}, 886
        s_lshr_b32 s{sT2}, s{sT2}, 16
        s_mul_i32 s{sT1}, s{sT2}, 74
        s_sub_u32 s{sT1}, s{sT0}, s{sT1}
        s_sub_u32 s{sT3}, s{sT1}, 54
        s_and_b32 s{sT3}, s{sT3}, 63
        s_mul_i32 s{sT4}, s{sT3}, 52
        s_lshr_b32 s{sT4}, s{sT4}, 8
        s_mul_i32 s{sT5}, s{sT4}, 5
        s_sub_u32 s{sT5}, s{sT3}, s{sT5}
        s_mul_i32 s{sBT}, s{sT4}, 160
        s_lshr_b32 s{sAT}, s{sT5}, 1
        s_mul_i32 s{sAT}, s{sAT}, 80
        s_and_b32 s{sT3}, s{sT5}, 1
        s_lshl_b32 s{sT3}, s{sT3}, 3
        s_add_u32 s{sAT}, s{sAT}, s{sT3}
        s_cmp_eq_u32 s{sT5}, 4
        s_cselect_b32 s{sAT}, 16, s{sAT}
        s_cselect_b32 s{sT3}, 80, 4
        s_add_u32 s{sBT}, s{sBT}, s{sAT}
        s_lshl_b32 s{sAT}, s{sT1}, 5
        s_cmp_lt_u32 s{sT1}, 54
        s_cselect_b32 s{sBT}, s{sAT}, s{sBT}
        s_cselect_b32 s{sT3}, 16, s{sT3}""")
        self.csel(sT4, 4 * 1280 - 1024, 20 * 1280 - 1024)
        self.csel(SPK + 2, 1728 * 1280, 640 * 1280)
        e(f"""s_mov_b32 s{SPK+3}, 0x20000
        s_cmp_lt_u32 s{sT0}, 740
        s_cselect_b32 s{SPK+2}, s{SPK+2}, 0
        s_mul_i32 s{sBT}, s{sBT}, 1280
        s_lshl_b32 s{sAT}, s{sT2}, 7
        s_add_u32 s32, s{sBT}, s{sAT}
        s_add_u32 s33, s32, s{sT4}
        s_add_u32 s34, s33, s{sT4}
        s_add_u32 s35, s34, s{sT4}
        v_lshrrev_b32 v9, 5, v0
        v_mul_lo_u32 v9, v9, s{sT3}
        v_and_b32 v10, 3, v5
        v_add_u32 v9, v9, v10
        v_mul_u32_u24 v9, 1280, v9
        v_and_b32 v10, 7, v0
        v_lshl_add_u32 v252, v10, 4, v9
        v_lshlrev_b32 v9, 10, v2
        v_lshl_add_u32 v9, v3, 7, v9
        v_add_u32 v9, s{sM0}, v9
        v_add_u32 v9, {L_PACK}, v9""")
        for g in range(2):
            e(f"""s_lshl_b32 s{sT3}, s{sT2}, 1
            s_add_u32 s{sT3}, s{sT3}, {g}
            s_mul_i32 s{sT4}, s{sT3}, 52
            s_lshr_b32 s{sT4}, s{sT4}, 8
            s_mul_i32 s{sT5}, s{sT4}, 5
            s_sub_u32 s{sT5}, s{sT3}, s{sT5}
            s_cmp_eq_u32 s{sT5}, 2
            s_cselect_b32 s{sT3}, 3, 4
            s_cselect_b32 s{sAT}, 32, 8
            v_lshlrev_b32 v10, s{sT3}, v4
            v_add_u32 v{PKA+2*g}, v9, v10
            v_add_u32 v{PKA+1+2*g}, s{sAT}, v{PKA+2*g}
            s_mul_i32 s{sT4}, s{sT4}, 740
            s_mul_i32 s{sAT}, s{sT1}, 5
            s_add_u32 s{sT4}, s{sT4}, s{sAT}""")
            for a_ in range(2):
                d = sPKD + 2 * g + a_
                e(f"""s_lshl_b32 s{sT3}, s{sT5}, 1
                s_add_u32 s{sT3}, s{sT3}, {a_}
                s_add_u32 s{d}, s{sT3}, 364
                s_cmp_eq_u32 s{sT3}, 5
                s_cselect_b32 s{d}, 374, s{d}
                s_cmp_lt_u32 s{sT3}, 5
                s_cselect_b32 s{d}, s{sT3}, s{d}
                s_add_u32 s{d}, s{d}, s{sT4}
                s_lshl_b32 s{d}, s{d}, 10
                s_add_u32 s{d}, s{d}, {PB}
                s_cmp_lt_u32 s{sT0}, 740
                s_cselect_b32 s{d}, s{d}, {OOB}""")
        e(f"""s_cmp_lt_u32 s{sT1}, 54
        s_cselect_b32 s{SPK}, s{pW2}, s{pWO}
        s_cselect_b32 s{SPK+1}, s{pW2+1}, s{pWO+1}
        s_and_b32 s{SPK+1}, s{SPK+1}, 0xffff""")

    def common_setup(self):
        e = self.e; c = self.c
        e(f"s_and_b32 s{sT0}, s2, 7\ns_lshr_b32 s{sT1}, s2, 3\ns_lshr_b32 s{sT2}, s{sT0}, 1\ns_and_b32 s{sT3}, s{sT1}, 3\ns_lshr_b32 s{sT4}, s{sT1}, 2")
        if c.mix: e(f"s_lshr_b32 s{sT5}, s{sT1}, 2\ns_and_b32 s{sT5}, s{sT5}, 4\ns_xor_b32 s{sT5}, s{sT5}, s{sT1}" if c.map2 else
                    f"s_lshr_b32 s{sT5}, s{sT1}, 4\ns_xor_b32 s{sT5}, s{sT5}, s{sT1}")
        if c.map2:
            if c.mix: e(f"s_and_b32 s{sRB}, s{sT5}, 7\ns_bfe_u32 s{sT5}, s{sT1}, 0x20002")
            else: e(f"s_and_b32 s{sRB}, s{sT1}, 7\ns_lshr_b32 s{sT5}, s{sT1}, 3")
            e(f"""s_lshl_b32 s{sT2}, s{sT2}, 3
            s_add_u32 s{sRB}, s{sRB}, s{sT2}
            s_and_b32 s{sNB}, s{sT0}, 1
            s_lshl_b32 s{sNB}, s{sNB}, 2
            s_add_u32 s{sNB}, s{sNB}, s{sT5}""")
        else:
            if c.mix: e(f"s_bfe_u32 s{sNB}, s{sT1}, 0x30001\ns_and_b32 s{sT3}, s{sT5}, 1\ns_lshr_b32 s{sT5}, s{sT1}, 4\ns_bfe_u32 s{sT4}, s{sT1}, 0x10001\ns_xor_b32 s{sT5}, s{sT5}, s{sT4}\ns_and_b32 s{sT3}, s{sT1}, 1\ns_lshl_b32 s{sT5}, s{sT5}, 1\ns_add_u32 s{sT3}, s{sT3}, s{sT5}")
            else: e(f"s_mov_b32 s{sNB}, s{sT4}")
            e(f"s_lshl_b32 s{sRB}, s{sT0}, 2\ns_add_u32 s{sRB}, s{sRB}, s{sT3}")
        mk_srd(e, SWS, pWS, 0x10000000); mk_srd(e, SM, pPHI, 32 * 800)
        e(f"""s_lshl_b32 s{sT3}, s{sHG}, 2
        s_add_u32 s{sT3}, s{sT3}, s{sW}
        s_mul_i32 s36, s{sT3}, 800
        s_mul_i32 s37, s{sW}, 800
        s_add_u32 s37, s37, {L_WPHI}""")
        for i in range(2, 10):
            if c.rot == 4: e(f"s_xor_b32 s{sE+i}, s{sE}, {i*128}" if i < 8 else f"s_and_b32 s{sE+i}, s{sE+i-8}, 128\ns_add_u32 s{sE+i}, s{sE+i}, 1024")
            elif c.rot == 3: e(f"s_add_u32 s{sE+i}, s{sE+i-2}, 256")
            else: e(f"s_add_u32 s{sE+i}, s{sE+i-1}, 128\ns_cmp_eq_u32 s{sE+i}, 1280\ns_cselect_b32 s{sE+i}, 0, s{sE+i}")
        e(f"""s_mul_i32 s{sB}, s{sNB}, 74
        s_add_u32 s{sB}, s{sB}, s{sW}
        s_mul_i32 s{sB}, s{sB}, 5120
        s_add_u32 s{sB}, s{sB}, {PB}
        s_mul_i32 s{sA}, s{sRB}, 74
        s_add_u32 s{sA}, s{sA}, s{sW}
        s_lshl_b32 s{sA}, s{sA}, 12
        s_add_u32 s{sA}, s{sA}, {A2}
""")
        if c.par: e(f"""s_xor_b32 s{sT0}, s{sRB}, s{sNB}
        s_and_b32 s{sT0}, s{sT0}, {min(c.par, 1)}
        s_mul_i32 s{sT1}, s{sT0}, {4*5120}
        s_add_u32 s{sB8}, s{sB}, {32*5120}
        s_add_u32 s{sB8}, s{sB8}, s{sT1}
        s_add_u32 s{sB9}, s{sB}, {36*5120}
        s_sub_u32 s{sB9}, s{sB9}, s{sT1}
        s_mul_i32 s{sT1}, s{sT1}, {max(c.par, 1)}
        s_sub_u32 s{sBo}, s{sB}, s{sT1}
        s_add_u32 s{sB}, s{sB}, s{sT1}
        s_lshl_b32 s{sT1}, s{sT0}, 14
        s_add_u32 s{sA8}, s{sA}, {32*4096}
        s_add_u32 s{sA8}, s{sA8}, s{sT1}
        s_add_u32 s{sA9}, s{sA}, {36*4096}
        s_sub_u32 s{sA9}, s{sA9}, s{sT1}
        s_mul_i32 s{sT1}, s{sT1}, {max(c.par, 1)}
        s_sub_u32 s{sAo}, s{sA}, s{sT1}
        s_add_u32 s{sA}, s{sA}, s{sT1}
        s_lshr_b32 s{sT1}, s{sW}, 1
        s_and_b32 s{sT3}, s{sT1}, s{sT0}
        s_cselect_b32 s{sB8}, {OOB}, s{sB8}
        s_cselect_b32 s{sA8}, {OOB}, s{sA8}
        s_andn2_b32 s{sT3}, s{sT1}, s{sT0}
        s_cselect_b32 s{sB9}, {OOB}, s{sB9}
        s_cselect_b32 s{sA9}, {OOB}, s{sA9}
""")
        else: e(f"""s_add_u32 s{sB9}, s{sB}, {36*5120}
        s_add_u32 s{sA9}, s{sA}, {36*4096}
        s_cmp_lt_u32 s{sW}, 2
        s_cselect_b32 s{sB9}, s{sB9}, {OOB}
        s_cselect_b32 s{sA9}, s{sA9}, {OOB}""")
        e(f"""s_mul_i32 s88, s{sW}, {NL*1024}
        v_add_u32 v240, 4096, v6""")
        for j in range(4):
            e(f"s_add_u32 s{sT3}, s{sW}, {j}\ns_and_b32 s{sT3}, s{sT3}, 3\ns_lshl_b32 s{sT3}, s{sT3}, 10\nv_add_u32 v{236+j}, s{sT3}, v6")
        e(f"""s_lshl_b32 s{sF1}, s2, 7
        s_add_u32 s{sF1}, s{sF1}, {F1}
        s_cmp_eq_u32 s{sW}, 0
        s_cselect_b32 s{sF1}, s{sF1}, {OOB}
        v_mov_b32 v245, {OOB}
        v_cmp_eq_u32 vcc, 0, v0
        v_cndmask_b32 v245, v245, 0, vcc""")

    def touch(self):
        e = self.e; c = self.c
        e(f"""s_cmp_eq_u32 s{sW}, 0
        s_cselect_b64 s[28:29], s[{SX}:{SX+1}], s[{S1}:{S1+1}]
        s_cselect_b32 s30, s{SX+2}, s{S1+2}
        s_cselect_b32 s{sT0}, 12, 0
        s_add_u32 s{sT0}, s{sT0}, 68
        s_cmp_eq_u32 s{sW}, 1
        s_cselect_b64 s[28:29], s[{SQ}:{SQ+1}], s[28:29]
        s_cselect_b32 s30, s{SQ+2}, s30
        s_cselect_b32 s{sT0}, 75, s{sT0}
        s_lshl_b32 s{sT1}, 1, s{sW}
        s_and_b32 s{sT1}, s{sT1}, {c.tmask}
        s_cselect_b32 s30, s30, 0
        s_mov_b32 s31, 0x20000
        s_mul_i32 s{sT1}, s{sT0}, s2
        s_lshl_b32 s{sT1}, s{sT1}, 7
        v_lshlrev_b32 v10, 7, v0
        v_add_u32 v11, 64, v0
        v_cmp_gt_u32 vcc, s{sT0}, v11
        v_lshlrev_b32 v11, 7, v11
        v_mov_b32 v14, {OOB}
        v_cndmask_b32 v11, v14, v11, vcc""")
        e.vmop(f"buffer_load_dword v255, v10, s[28:31], s{sT1} offen", 'pf')
        e.vmop(f"buffer_load_dword v255, v11, s[28:31], s{sT1} offen", 'pf')

    def touch3_setup(self):
        e = self.e
        e(f"""s_cmp_eq_u32 s{sW}, 0
        s_cselect_b64 s[28:29], s[{SX}:{SX+1}], s[{S1}:{S1+1}]
        s_cselect_b32 s30, s{SX+2}, s{S1+2}
        s_cselect_b32 s{sT0}, 24, 21
        s_mov_b32 s44, {64*3456}
        s_cselect_b32 s44, 128, s44
        s_cselect_b64 vcc, -1, 0
        s_cmp_eq_u32 s{sW}, 1
        s_cselect_b64 s[28:29], s[{SQ}:{SQ+1}], s[28:29]
        s_cselect_b32 s30, s{SQ+2}, s30
        s_cselect_b32 s{sT0}, 23, s{sT0}
        s_cselect_b32 s44, {64*3840}, s44
        s_cmp_eq_u32 s{sW}, 3
        s_cselect_b32 s30, 0, s30
        s_mov_b32 s31, 0x20000
        s_mul_i32 s{sT1}, s{sT0}, s2
        v_add_u32 v10, s{sT1}, v0
        v_mul_u32_u24 v11, 21846, v10
        v_lshrrev_b32 v11, 16, v11
        v_mul_u32_u24 v11, {1280-384}, v11
        v_lshlrev_b32 v10, 7, v10
        v_add_u32 v11, v11, v10
        v_cndmask_b32 v10, v10, v11, vcc
        v_mov_b32 v14, {OOB}
        v_cmp_gt_u32 vcc, s{sT0}, v0
        v_cndmask_b32 v251, v14, v10, vcc""")
    def touch3(self, part):
        return [('x', f"s_mul_i32 s45, s44, {1 + 3 * part}"), ('vm', "buffer_load_dword v255, v251, s[28:31], s45 offen", 'pf')]

    def touch6_pre(self):
        e = self.e; a, b = self.c.tab
        for reg, s0, n in ((250, a, b - a), (251, b, 10 - b)):
            nx, nq, n1 = 8 * n, -(-64 * n * 30 // 256), -(-64 * n * 27 // 256)
            e(f"""s_cmp_eq_u32 s{sW}, 1
            s_cselect_b32 s{sT0}, {nq}, {n1}
            s_mov_b32 s{sT2}, {s0*64*3456}
            s_cselect_b32 s{sT2}, {s0*64*3840}, s{sT2}
            s_cmp_eq_u32 s{sW}, 0
            s_cselect_b32 s{sT0}, {nx}, s{sT0}
            s_cselect_b32 s{sT2}, {s0*128}, s{sT2}
            s_cselect_b32 s{sT3}, {1280 - 128*n}, 0
            s_mul_i32 s{sT1}, s{sT0}, s2
            v_add_u32 v10, s{sT1}, v0
            v_mul_u32_u24 v11, {-(-65536*4 // n)}, v10
            v_lshrrev_b32 v11, 18, v11
            v_mul_lo_u32 v11, v11, s{sT3}
            v_lshl_add_u32 v10, v10, 7, v11
            v_add_u32 v10, s{sT2}, v10
            v_mov_b32 v14, {OOB}
            v_cmp_gt_u32 vcc, s{sT0}, v0
            v_cndmask_b32 v{reg}, v14, v10, vcc""")
    def touch6_srd(self):
        self.e(f"""s_cmp_eq_u32 s{sW}, 0
        s_cselect_b64 s[28:29], s[{SX}:{SX+1}], s[{S1}:{S1+1}]
        s_cselect_b32 s30, s{SX+2}, s{S1+2}
        s_cmp_eq_u32 s{sW}, 1
        s_cselect_b64 s[28:29], s[{SQ}:{SQ+1}], s[28:29]
        s_cselect_b32 s30, s{SQ+2}, s30
        s_cmp_eq_u32 s{sW}, 3
        s_cselect_b32 s30, 0, s30
        s_mov_b32 s31, 0x20000""")
    def touch6(self, part): return [('vm', f"buffer_load_dword v255, v{250+part}, s[28:31], 0 offen", 'pf')]

    def tlb_touch(self):
        e = self.e; c = self.c
        if not c.tlb: return
        if c.tlb == 1:
            e(f"v_lshlrev_b32 v10, 18, v0\nv_add_u32 v10, 0x1f800, v10")
            e.vmop(f"buffer_load_dword v255, v10, {srd(SWS)}, 0 offen sc1", 'pf')
        else:
            e(f"""s_mul_i32 s{sT0}, s{sNB}, {74*5120}
            s_add_u32 s{sT0}, s{sT0}, {PB}
            s_mul_i32 s{sT1}, s{sRB}, {74*4096}
            s_add_u32 s{sT1}, s{sT1}, {A2 - 8*65536}
            s_mul_i32 s{sT3}, s{sMT}, {2*74*4096}
            s_add_u32 s{sT3}, s{sT3}, {A2 - 16*65536}
            v_lshlrev_b32 v10, 16, v0
            v_mov_b32 v11, s{sT0}
            v_mov_b32 v14, s{sT1}
            v_cmp_le_u32 vcc, 8, v0
            v_cndmask_b32 v11, v11, v14, vcc
            v_mov_b32 v14, s{sT3}
            v_cmp_le_u32 vcc, 16, v0
            v_cndmask_b32 v11, v11, v14, vcc
            v_add_u32 v11, v11, v10
            v_subrev_u32 v14, 32, v0
            v_mul_u32_u24 v14, 0x18000, v14
            v_cmp_le_u32 vcc, 32, v0
            v_cndmask_b32 v10, v11, v14, vcc""")
            e.vmop(f"buffer_load_dword v255, v10, {srd(SWS)}, 0 offen sc1", 'pf')
        mk_srd(e, 28, pOUT, 2048 * 1280)
        e("v_lshlrev_b32 v10, 16, v0")
        e.vmop("buffer_load_dword v255, v10, s[28:31], 0 offen sc1", 'pf')
        if c.tlb2:
            for p, n in ((pB2, 1280),):
                mk_srd(e, 28, p, n); e.vmop("buffer_load_dword v255, v6, s[28:31], 0 offen", 'pf')

    def tag_wait(self):
        e = self.e
        e(f"""s_waitcnt lgkmcnt(0)
        s_add_u32 s{sTAG}, s{sTAG}, 1
        v_mov_b32 v247, s{sTAG+1}
        v_mov_b32 v246, s{sTAG}
        s_movk_i32 s42, {TBM}""")
        if self.c.xA == 2: e(f's_mov_b32 s41, {OOB}')
        e.lg = []
    def pack_loads(self):
        return [([('x', f"s_add_u32 m0, s{sM0}, {L_PACK}")] if i == 0 else []) +
                [('vm', f"buffer_load_dwordx4 v252, {srd(SPK)}, s{32+i} offen offset:{i*1024} {self.c.psc} lds", 'packld')] for i in range(4)]
    def pack_fill(self, m, nm):
        f = []
        for i in range(8):
            t, h = i >> 1, i & 1
            f.append(dict(at=m + 2 + 2 * i, ins=[('lg', f"ds_read_b64_tr_b16 a[{160+4*t+2*h}:{161+4*t+2*h}], v{PKA+t} offset:{(t>>1)*64+512*h}", 'pk')]))
        return f
    def wb_item(self):
        return [[('wvm', 'pkst'), ('vm', "buffer_wbl2 sc1", 'pkst')]] if self.c.wbl else []
    def pack_stores(self):
        return [([('wlg', 'pk')] if i == 0 else []) + [('vm', f"buffer_store_dwordx4 {ar(160+4*i)}, v6, {srd(SWS)}, s{sPKD+i} offen {self.c.pss}", 'pkst')] for i in range(4)]

    def btouch(self):
        pre = [l.strip() for l in f"""s_and_b32 s{sT0}, s{sRB}, 7
        s_lshl_b32 s{sT0}, s{sT0}, 2
        s_add_u32 s{sT0}, s{sT0}, s{sW}
        s_mul_i32 s{sT0}, s{sT0}, {93*128}
        s_mul_i32 s{sT1}, s{sNB}, {74*5120}
        s_add_u32 s{sT0}, s{sT0}, s{sT1}
        s_add_u32 s{sT0}, s{sT0}, {PB}
        v_lshlrev_b32 v248, 7, v0
        v_min_u32 v249, 28, v0
        v_lshlrev_b32 v249, 7, v249""".split("\n")]
        n = self.c.bt
        out = [[('x', l) for l in pre]]
        if n == 1:
            out[0] += [('vm', f"buffer_load_dword v255, v248, {srd(SWS)}, s{sT0} offen sc1", 'pf')]
            out.append([('x', f"s_add_u32 s{sT0}, s{sT0}, 8192"), ('vm', f"buffer_load_dword v255, v249, {srd(SWS)}, s{sT0} offen sc1", 'pf')])
        else:
            out[0] += [('x', "v_min_u32 v249, 23, v0"), ('x', "v_lshlrev_b32 v249, 7, v249")]
            for i in range(4): out.append([('vm', f"buffer_load_dword v255, v249, {srd(SWS)}, s{sT0} offen offset:0 sc1", 'pf'), ('x', f"s_add_u32 s{sT0}, s{sT0}, 3072")])
        return out
    def code_touch(self, endlab):
        Lp = self.lab('pc')
        return [('x', f"s_getpc_b64 s[30:31]\n{Lp}:"), ('x', f"s_bfe_u32 s{sT0}, s2, 0x40003"), ('x', f"s_lshl_b32 s{sT0}, s{sT0}, 2"), ('x', f"s_add_u32 s{sT0}, s{sT0}, s{sW}"),
                ('x', f"s_lshl_b32 s{sT0}, s{sT0}, 9"), ('x', "v_and_b32 v7, 3, v0"), ('x', f"v_lshl_add_u32 v7, v7, 7, s{sT0}"),
                ('x', f"v_cmp_gt_u32 vcc, {endlab}-{Lp}, v7"), ('x', "v_cndmask_b32 v7, 0, v7, vcc"), ('vm', "global_load_dword v255, v7, s[30:31]", 'pf')]
    def f1_issue(self):
        pre = [l.strip() for l in f"""s_mul_i32 s{sT0}, s{sNB}, 5
        s_add_u32 s{sT1}, s{sT0}, 4
        s_lshr_b32 s{sT0}, s{sT0}, 2
        s_mul_i32 s{sT0}, s{sT0}, 74
        s_lshr_b32 s{sT0}, s{sT0}, 2
        s_lshr_b32 s{sT1}, s{sT1}, 2
        s_mul_i32 s{sT1}, s{sT1}, 74
        s_add_u32 s{sT1}, s{sT1}, 73
        s_lshr_b32 s{sT1}, s{sT1}, 2
        v_add_u32 v235, s{sT0}, v0
        v_min_u32 v235, s{sT1}, v235
        v_lshlrev_b32 v235, 7, v235
        s_mov_b32 s{sT0}, {F1}""".split("\n")]
        return [[('x', l) for l in pre] + [('vm', self.poll_issue(235, 248, 2, None, f"s{sT0}"), 'f1p')]]
    def f1_check(self):
        return [('wvm', 'f1p')] + [('x', t) for t in self.poll_check([(235, 248, 2, f"s{sT0}")])]
    def tag_issue(self):
        e = self.e
        e(f"s_or_b32 s55, s2, s{sW}\ns_min_u32 s55, s55, 1\ns_mul_i32 s55, s55, {OOB}\ns_add_u32 s55, s55, {F1}\nv_lshlrev_b32 v200, 7, v0")
        for i in range(1, 4): e(f"v_add_u32 v{200+i}, {8192*i}, v200")
        self.tgl = [(200 + i, 248 + 2 * i, 2, "s55") for i in range(4)]
        for p in self.tgl: e.vmop(self.poll_issue(p[0], p[1], 2, None, p[3]), 'tg')
    def tag_update(self):
        e = self.e; L = self.lab('tg')
        e.wait(vm='tg')
        e(f"s_or_b32 s{sT0}, s2, s{sW}\ns_cbranch_scc1 {L}")
        for l in self.poll_check(self.tgl): e(l)
        e(self.flag_store(245, 246, str(TAG)))
        e(f"{L}:")

    def attn_voff(self, dst, cexpr_base, colbase_s):
        e = self.e
        e(f"""v_mul_u32_u24 v10, 6554, v9
        v_lshrrev_b32 v10, 16, v10
        v_mad_i32_i24 v11, v10, -10, v9""")
        self.swap23(10, 12)
        e(f"""v_mul_u32_u24 v10, 3840, v10
        v_lshl_add_u32 v10, v11, 4, v10
        v_add_u32 v{dst}, s{colbase_s}, v10""")
    def swap23(self, r, t):
        self.e(f"""v_lshrrev_b32 v{t}, 1, v{r}
        v_xor_b32 v{t}, v{t}, v{r}
        v_and_b32 v{t}, 4, v{t}
        v_mul_u32_u24 v{t}, 3, v{t}
        v_xor_b32 v{r}, v{r}, v{t}""")

    def small_dma(self, sr, vaddr, soff, ldsaddr, nlanes, tag, m0expr=None):
        e = self.e
        e(m0expr or f"s_mov_b32 m0, {ldsaddr}")
        if nlanes < 64: e(f"s_mov_b64 exec, {hex((1 << nlanes) - 1)}" if nlanes <= 32 else f"s_mov_b32 exec_hi, {hex((1 << (nlanes-32)) - 1)}")
        e.vmop(f"buffer_load_dwordx4 v{vaddr}, {srd(sr)}, {soff} offen lds", tag)
        if nlanes < 64: e("s_mov_b64 exec, -1")

    def csel(self, d, a, b):
        inl = lambda x: isinstance(x, str) or -16 <= x <= 64
        if inl(a) or inl(b): self.e(f"s_cselect_b32 s{d}, {a}, {b}")
        else: self.e(f"s_mov_b32 s{d}, {b}\ns_cselect_b32 s{d}, {a}, s{d}")

    def init_B(self):
        self.Bloc = {}; self.Bq = []
        order = [(i, t) for i in range(19) for t in range(5)]
        for u, k in enumerate(order):
            if u < 64: self.Bloc[k] = ('a', 4 * u)
            elif u < 64 + NL: self.Bloc[k] = ('l', u - 64)
            else: self.Bloc[k] = None
        self.Border = order; self.Bpend = list(range(64 + NL)); self.Bcur = None; self.Acur = None
    def koff(self, i):
        r0, r1, r2 = self.perm
        if i < 10: return 4 * ((i + r0) % 10)
        if i < 14: return 38 + 4 * ((i - 10 + r1) % 4)
        return 54 + 4 * ((i - 14 + r2) % 5)
    def soff(self, d, i, w):
        e_, o_, s8, s9, unit = (sB, sBo, sB8, sB9, 5120) if w == 'B' else (sA, sAo, sA8, sA9, 4096)
        if not self.c.par: return f"s_mov_b32 s{d}, s{s9}" if self.koff(i) == 36 else f"s_add_u32 s{d}, s{e_}, {self.koff(i)*unit}"
        if i in (8, 9): return f"s_mov_b32 s{d}, s{s8 if i == 8 else s9}"
        if i == 18: return f"s_add_u32 s{d}, s{e_}, s{o_}\ns_lshr_b32 s{d}, s{d}, 1\ns_add_u32 s{d}, s{d}, {self.koff(i)*unit}"
        idx = i if i < 10 else i - 10 if i < 14 else i - 14
        return f"s_add_u32 s{d}, s{e_ if idx & max(self.c.par, 1) == 0 else o_}, {self.koff(i)*unit}"
    def B_items(self, k, loc):
        i, t = k; it = []
        if self.Bcur != i:
            it.append(('x', self.soff(sBT, i, 'B'))); self.Bcur = i
        va, imm = (6, t * 1024) if t < 4 else (240, 0)
        if loc[0] == 'l':
            assert L_BL + loc[1]*1024 - imm >= 0
            it.append(('x', f"s_add_u32 m0, s88, {L_BL + loc[1]*1024 - imm}"))
            it.append(('vm', f"buffer_load_dwordx4 v{va}, {srd(SWS)}, s{sBT} offen offset:{imm} sc1 lds", ('B', k)))
        else:
            it.append(('vm', f"buffer_load_dwordx4 {R(loc)}, v{va}, {srd(SWS)}, s{sBT} offen offset:{imm} sc1", ('B', k)))
        return it
    def B_take(self, us):
        out = []
        for u in us:
            k = self.Border[u]; out.append(self.B_items(k, self.Bloc[k]))
            if self.c.xB == 1: out[-1] = [('x', 's_nop 0')]
            if self.c.xB == 2: out[-1] = [(it[0], it[1].replace(f"s{sBT} offen", "s43 offen"), it[2]) if it[0] == 'vm' else it for it in out[-1]]
            if self.c.xB == 3: out[-1] = [(it[0], it[1].replace(f"s{sBT} offen", f"s{sB} offen"), it[2]) if it[0] == 'vm' else it for it in out[-1]]
        return out
    def ph2_bg(self, u): pass
    def bg_try(self, allowed, S=None):
        e = self.e
        if e.t - e.tvm < (S or self.c.S): return False
        if allowed == self.ph2_bg: return self.try_issue(self.m, True, True)
        for u in self.Bpend:
            if allowed(u):
                self.Bpend.remove(u); self.emit_items(self.B_take([u])[0]); return True
        return False
    def emit_items(self, items):
        e = self.e
        for it in items:
            if it[0] == 'vm': e.vmop(it[1], it[2])
            elif it[0] == 'lg': e.lgop(it[1], it[2])
            elif it[0] == 'wvm': e.wait(vm=it[1])
            elif it[0] == 'wlg': e.wait(lg=it[1])
            elif it[0] == 'st': self.stamp(it[1], it[2])
            else: e(it[1])
    def valu(self, lines, side=None, every=1, bg=None, S=None):
        n = 0
        for l in lines:
            if isinstance(l, str): self.e(l)
            else: self.emit_items([l])
            n += 1
            if side and n % every == 0: self.emit_items(side.pop(0))
            if bg: self.bg_try(bg, S)

    def interleave(self, items, side, every):
        W = ('s_cmp', 's_add', 's_sub', 's_and', 's_andn2', 's_or', 's_xor', 's_lshl', 's_lshr', 's_bitcmp', 's_min', 's_max')
        Rd = ('s_cselect', 's_addc', 's_subb', 's_cbranch_scc')
        live = [False] * len(items); l = False
        for i in range(len(items) - 1, -1, -1):
            live[i] = l
            t = items[i][1]
            if t.startswith(Rd): l = True
            elif t.startswith(W): l = False
        n = 0
        for i, it in enumerate(items):
            self.emit_items([it]); n += 1
            if side and n >= every and not live[i]: self.emit_items(side.pop(0)); n = 0
        for g in side: self.emit_items(g)

    def gelu_lines(self, X, Y, T, O):
        U = [X, X + 2, Y, Y + 2]; L = []
        P = lambda r: f"v[{r}:{r+1}]"
        for i in range(4): L.append(f"v_pk_mul_f32 {P(T+2*i)}, {P(U[i])}, {P(U[i])}")
        for i in range(4): L.append(f"v_pk_fma_f32 {P(T+2*i)}, {P(T+2*i)}, v[14:15], s[{sC0}:{sC1}] op_sel_hi:[1,0,0]")
        for i in range(4): L.append(f"v_pk_mul_f32 {P(T+2*i)}, {P(T+2*i)}, {P(U[i])}")
        for i in range(8): L.append(f"v_exp_f32 v{T+i}, v{T+i}")
        for i in range(4): L.append(f"v_pk_add_f32 {P(T+2*i)}, {P(T+2*i)}, 1.0 op_sel_hi:[1,0]")
        for i in range(8): L.append(f"v_rcp_f32 v{T+i}, v{T+i}")
        for i in range(4): L.append(f"v_pk_mul_f32 {P(T+2*i)}, {P(T+2*i)}, {P(U[i])}")
        for i in range(4): L.append(f"v_cvt_pk_bf16_f32 v{O+i}, v{T+2*i}, v{T+2*i+1}")
        return L if not (self.c.skip & 1) else L[-8:]
    def gelu_consts(self):
        c1 = -2.0 * math.sqrt(2.0 / math.pi) * math.log2(math.e)
        self.e(f"s_mov_b32 s{sC0}, {fl(c1)}\nv_mov_b32 v14, {fl(c1 * 0.044715)}")
    def softmax_lines(self, Pp, E, PH):
        L = []; P = lambda r: f"v[{r}:{r+1}]"
        L += [f"v_max3_f32 v8, v{Pp}, v{Pp+1}, v{Pp+2}", f"v_min3_f32 v10, v{Pp}, v{Pp+1}, v{Pp+2}"]
        for i in range(3, 19, 2): L += [f"v_max3_f32 v8, v8, v{Pp+i}, v{Pp+i+1}", f"v_min3_f32 v10, v10, v{Pp+i}, v{Pp+i+1}"]
        L += [f"v_max_f32 v8, v8, v{Pp+19}", f"v_min_f32 v10, v10, v{Pp+19}"]
        L += [f"v_mul_f32_e64 v8, -v8, s{sC0}", f"v_mul_f32 v10, s{sC0}, v10"]
        for i in range(10):
            L.append(f"v_pk_fma_f32 {P(E+2*i)}, {P(Pp+2*i)}, s[{sC0}:{sC1}], v[8:9] op_sel_hi:[1,0,0]")
            L.append(f"v_pk_fma_f32 {P(E+20+2*i)}, {P(Pp+2*i)}, s[{sC0}:{sC1}], v[10:11] op_sel_hi:[1,0,0] neg_lo:[1,0,0] neg_hi:[1,0,0]")
        for i in range(40): L.append(f"v_exp_f32 v{E+i}, v{E+i}")
        L += [f"v_pk_add_f32 v[8:9], {P(E)}, {P(E+2)}", f"v_pk_add_f32 v[10:11], {P(E+20)}, {P(E+22)}"]
        for i in range(2, 10): L += [f"v_pk_add_f32 v[8:9], v[8:9], {P(E+2*i)}", f"v_pk_add_f32 v[10:11], v[10:11], {P(E+20+2*i)}"]
        L += ["v_add_f32 v8, v8, v9", "v_add_f32 v10, v10, v11", "v_rcp_f32 v8, v8", "v_rcp_f32 v10, v10"]
        for i in range(10): L.append(f"v_pk_mul_f32 {P(E+2*i)}, {P(E+2*i)}, v[8:9] op_sel_hi:[1,0]")
        for i in range(10): L.append(f"v_pk_mul_f32 {P(E+20+2*i)}, {P(E+20+2*i)}, v[10:11] op_sel_hi:[1,0]")
        for i in range(20): L.append(f"v_cvt_pk_bf16_f32 v{PH+i}, v{E+2*i}, v{E+2*i+1}")
        return L if not (self.c.skip & 2) else [l if 'cvt' in l else '' for l in L]
    def wphi_addr(self, va):
        self.e(f"v_mul_u32_u24 v{va}, 800, v2\nv_mad_u32_u24 v{va}, v3, 40, v{va}\nv_add_u32 v{va}, {L_WPHI}, v{va}")
    def wphi_reads(self, va):
        return [[('lg', f"ds_read_b64_tr_b16 a[{AW+2*(dg*5+fg)}:{AW+1+2*(dg*5+fg)}], v{va} offset:{dg*160 + fg*8}", 'wphi')] for dg in range(5) for fg in range(5)]
    def phi_mfmas(self, KQ, Pp):
        L = []
        for dg in range(5):
            for j in range(2):
                for fg in range(5):
                    d = Pp + 20 * j + 4 * fg; w = AW + 2 * (dg * 5 + fg); b = KQ + 10 * j + 2 * dg
                    L.append(f"v_mfma_f32_4x4x4_16b_bf16 {vr(d)}, a[{w}:{w+1}], v[{b}:{b+1}], {vr(d) if dg else 0}")
        return L
    def cvt_heads(self, acc0, dst, j, n=5):
        return [f"v_cvt_pk_bf16_f32 v{dst+2*t+h}, v{acc0+(t*2+j)*4+2*h}, v{acc0+(t*2+j)*4+2*h+1}" for t in range(n) for h in range(2)]
    def rho0(self, dst):
        self.e(f"v_lshrrev_b32 v{dst}, 1, v2\nv_lshl_add_u32 v{dst}, v{dst}, 4, v3\nv_and_b32 v7, 1, v2\nv_lshl_add_u32 v{dst}, v7, 2, v{dst}")
    def x_addr(self, ST, nsl=3, base=220):
        e = self.e
        e(f"""v_lshrrev_b32 v9, 1, v1
        v_xor_b32 v9, v9, v2
        v_lshlrev_b32 v9, 4, v9
        v_lshl_add_u32 v9, v1, 7, v9
        v_add_u32 v{base}, s{sM0}, v9
        v_xor_b32 v{base+1}, 64, v{base}""")
        for sl in range(1, nsl): e(f"v_add_u32 v{base+2*sl}, {sl*ST}, v{base}\nv_add_u32 v{base+1+2*sl}, {sl*ST}, v{base+1}")
    def paced(self, groups, m0, span):
        n = len(groups)
        return [dict(at=m0 + int((k + 0.2) * span / n), chain=1, ins=list(g)) for k, g in enumerate(groups)]
    def prog_QH(self):
        e = self.e; c = self.c; self.init_B(); self.perm = (0, 0, 0); self.dmap = {0: 3, 1: 5, 2: 7, 3: 9, 14: 11, 7: 13, 9: 15}
        e("L_QH:")
        ST = QH_ST
        e(f"""s_mul_i32 s{sKW}, s{sHG}, 320
        s_lshl_b32 s{sT0}, s{sHG}, 8
        s_add_u32 s{sT0}, s{sT0}, 384
        s_cmp_lt_u32 s{sHG}, 6
        s_cselect_b32 s{sKW}, s{sKW}, s{sT0}
        s_cselect_b32 s{sK1}, 20, 16
        s_mul_i32 s{sT2}, s{sW}, 320""")
        def dma_x(st):
            g = []
            for j in range(4):
                it = [('x', f"s_add_u32 m0, s{sM0}, {(st%3)*ST}")] if j == 0 else []
                g.append(it + [('vm', f"buffer_load_dwordx4 v{208+j}, {srd(SX)}, s{sE+st} offen offset:{j*1024} {c.xsc} lds", ('S', st))])
            return g
        def dma_a(st, i):
            it = []
            if i == 0: it = [('x', f"s_mul_i32 s{sKA}, s{sE+st}, 1920"), ('x', f"s_add_u32 m0, s{sM0+1}, {(st%3)*ST}")]
            if i == 2: it = [('x', f"s_mov_b32 m0, s{sM0+3+st%3}")]
            return it + [('vm', f"buffer_load_dwordx4 v{212+i}, {srd(SQ)}, s{sKA} offen offset:{1024 if i == 1 else 0} {c.wsc} lds", ('S', st))]
        def dma_h(st, i):
            it = []
            if i == 0: it = [('x', f"s_mul_i32 s{sKB}, s{sE+st}, 1728"), ('x', f"s_add_u32 m0, s{sM0+2}, {(st%3)*ST}")]
            if i == 4: it = [('x', "s_add_u32 m0, m0, 4096")]
            return it + [('vm', f"buffer_load_dwordx4 v{215+i}, {srd(S1)}, s{sKB} offen offset:{(i%4)*1024} {c.wsc} lds", ('S', st))]
        def dma_stage(st): return dma_x(st) + [dma_a(st, i) for i in range(3)] + [dma_h(st, i) for i in range(5)]
        if c.fast:
            self.kernarg_wait()
            if c.touch == 3: self.touch()
            if c.touch == 6:
                self.touch6_srd()
                if c.tpa == 0: self.emit_items(self.touch6(0))
            for g in dma_x(0): self.emit_items(g)
            if c.touch == 5: self.touch()
            self.small_dma(SM, 6, f"s{sKW}", None, 20, 'bias', f"s_add_u32 m0, s{sT2}, {L_BIASQH}")
        e(f"""s_mul_i32 s{sT0}, s{sW}, 3
        s_lshl_b32 s{sT1}, s{sW}, 1
        s_add_u32 s{sT1}, s{sT1}, 2
        s_cmp_lt_u32 s{sW}, 2
        s_cselect_b32 s{sT0}, s{sT0}, s{sT1}
        s_lshl_b32 s{sM0+1}, s{sT0}, 10
        s_add_u32 s{sM0+1}, s{sM0+1}, 16384""")
        for sl in range(3):
            e(f"s_add_u32 s{sM0+3+sl}, s{sM0+1}, {2048 + sl*ST}\ns_cmp_lt_u32 s{sW}, 2\ns_cselect_b32 s{sM0+3+sl}, s{sM0+3+sl}, {MISC+4608}")
        e(f"s_lshl_b32 s{sT0}, s{sT0}, 6\ns_mul_i32 s{sT1}, s{sHG}, 160\ns_mul_i32 s{sM0+2}, s{sW}, 5120\ns_add_u32 s{sM0+2}, s{sM0+2}, {16384+10240}")
        for i in range(3):
            e(f"v_add_u32 v9, {64*i}, v0\nv_add_u32 v9, s{sT0}, v9")
            self.attn_voff(212 + i, None, sT1)
            if i == 1: e("v_subrev_u32 v213, 1024, v213")
            if i == 2: e(f"s_cmp_lt_u32 s{sW}, 2\ns_cselect_b32 s{sT4}, 0, {OOB}\nv_add_u32 v214, s{sT4}, v214")
            if c.fast: self.emit_items(dma_a(0, i))
        if not c.fast:
            self.kernarg_wait()
            self.small_dma(SM, 6, f"s{sKW}", None, 20, 'bias', f"s_add_u32 m0, s{sT2}, {L_BIASQH}")
            for g in dma_x(0) + [dma_a(0, i) for i in range(3)]: self.emit_items(g)
        e(f"s_mul_i32 s{sT0}, s{sW}, 320\nv_mov_b32 v14, {OOB}")
        for i in range(5):
            e(f"""v_add_u32 v9, {64*i}, v0
            v_add_u32 v9, s{sT0}, v9
            v_mul_u32_u24 v10, 3277, v9
            v_lshrrev_b32 v10, 16, v10
            v_mul_u32_u24 v11, 20, v10
            v_sub_u32 v11, v9, v11
            v_bfe_u32 v13, v10, 2, 1
            v_lshlrev_b32 v13, 1, v13
            v_xor_b32 v11, v11, v13
            v_cmp_gt_u32 vcc, s{sK1}, v11""")
            self.swap23(10, 12)
            e(f"""v_mul_u32_u24 v10, 3456, v10
            v_lshl_add_u32 v10, v11, 4, v10
            v_add_u32 v10, s{sKW}, v10
            v_subrev_u32 v10, {(i%4)*1024}, v10
            v_cndmask_b32 v{215+i}, v14, v10, vcc""")
            self.emit_items(dma_h(0, i))
        self.pstamp(1)
        if c.pke:
            self.pack_setup()
            for g in self.pack_loads(): self.emit_items(g)
        if c.touch == 1: self.touch()
        if c.touch == 6 and c.tpa == 1: self.emit_items(self.touch6(0))
        if c.touch == 4:
            self.touch3_setup()
            for p_ in range(c.tp0): self.emit_items(self.touch3(p_))
        self.pstamp(2)
        def setup():
            e = self.e
            self.x_addr(ST); self.rho0(8)
            e(f"v_mul_u32_u24 v9, 160, v8\nv_mad_u32_u24 v9, v4, 40, v9\nv_add_u32 v226, 16384, v9")
            e(f"v_mul_u32_u24 v9, 320, v8\nv_lshl_add_u32 v9, v4, 3, v9\nv_add_u32 v9, {16384+10240}, v9\nv_lshl_add_u32 v229, v7, 5, v9\nv_xor_b32 v7, 1, v7\nv_lshl_add_u32 v232, v7, 5, v9")
            for sl in (1, 2): e(f"v_add_u32 v{226+sl}, {sl*ST}, v226\nv_add_u32 v{229+sl}, {sl*ST}, v229\nv_add_u32 v{232+sl}, {sl*ST}, v232")
            self.common_setup()
            if not c.pke: self.pack_setup()
            e(f"s_mul_i32 s{sT1}, s{sW}, 320\ns_add_u32 s{sT1}, s{sT1}, {L_BIASQH}\nv_lshl_add_u32 v13, v2, 3, s{sT1}")
            e(f"""s_lshl_b32 s{sT0}, s{sMT}, 1
            s_lshr_b32 s{sT1}, s{sW}, 1
            s_add_u32 s{sT0}, s{sT0}, s{sT1}
            s_and_b32 s{sT1}, s{sW}, 1
            s_mul_i32 s{sT2}, s{sT0}, 74
            s_lshl_b32 s{sT2}, s{sT2}, 12
            s_lshl_b32 s{sT3}, s{sT1}, 11
            s_add_u32 s{sT2}, s{sT2}, s{sT3}
            s_add_u32 s{sT2}, s{sT2}, {A2}
            s_lshr_b32 s{sT4}, s{sHG}, 1
            s_mul_i32 s{sT4}, s{sT4}, 5
            s_add_u32 s{sT4}, s{sT4}, 54
            s_lshl_b32 s{sT4}, s{sT4}, 12
            s_add_u32 s{sT4}, s{sT4}, s{sT2}
            s_and_b32 s{sT5}, s{sHG}, 1
            s_lshl_b32 s38, s{sT5}, 13
            s_add_u32 s38, s38, s{sT4}
            s_add_u32 s39, s{sT4}, {4*4096}
            s_lshl_b32 s{sT5}, s{sT5}, 3
            s_add_u32 s39, s39, s{sT5}
            s_lshl_b32 s{sT0}, s{sHG}, 4
            s_add_u32 s{sT0}, s{sT0}, s{sMT}
            s_lshl_b32 s{sT0}, s{sT0}, 2
            s_add_u32 s{sT0}, s{sT0}, s{sW}
            s_lshl_b32 s{sT0}, s{sT0}, 9
            s_add_u32 s43, s{sT0}, {GB}
            v_mov_b32 v204, -1
            v_mov_b32 v205, -1
            v_mov_b32 v206, -1
            v_mov_b32 v207, -1""")
        self.interleave(self.record(setup), dma_stage(1)[:c.n1], c.pe)
        self.pstamp(3)
        if c.n1 >= 12:
            self.small_dma(SM, 6, "s36", None, 50, 'misc', "s_mov_b32 m0, s37")
            if c.touch == 2: self.touch()
            if not c.pke and not c.pkl:
                for g in self.pack_loads(): self.emit_items(g)
        self.tag_wait(); self.pstamp(4)
        e.wait(vm='bias')
        for s_ in range(10): e.lgop(f"ds_read_b64 v[{136+2*s_}:{137+2*s_}], v13 offset:{s_*32}", ('b', s_))
        for s_ in range(10):
            a0 = 16 + (5 + s_) * 8; e.wait(lg=('b', s_))
            for h in range(2): e(f"v_lshlrev_b32 v{a0+2*h}, 16, v{136+2*s_+h}\nv_and_b32 v{a0+2*h+1}, 0xffff0000, v{136+2*s_+h}")
        self.stamp(0)
        NS = 15; nm = NS * 4; mf = []; reads = []; mfl = []; readsl = []; gs = [0, 0]
        for st in range(10):
            sl = st % 3; seen = set()
            for t in range(NS):
                lt = int(st >= 10 - c.dfq and t < 5); M, RD_ = (mf, mfl)[lt], (reads, readsl)[lt]; stg = -1 if lt else st
                wr = 168 + 8 * (gs[lt] % 4); gs[lt] += 1; m0 = len(M)
                for ks in range(2):
                    for rd in range(2):
                        if t < 5: ad, off = 226 + sl, ks * 5120 + rd * 1280 + t * 8
                        else: ad, off = (229 if (t - 5) % 2 == 0 else 232) + sl, ks * 10240 + rd * 2560 + ((t - 5) >> 1) * 64
                        RD_.append([f"ds_read_b64_tr_b16 v[{wr+4*ks+2*rd}:{wr+4*ks+2*rd+1}], v{ad} offset:{off}", m0, stg, m0 - 13])
                for j in ((1, 0) if st == 0 else (0, 1)):
                    for ks in range(2):
                        xr = 136 + (st % 2) * 16 + (j * 2 + ks) * 4; d = 16 + (t * 2 + j) * 4
                        if (lt, j, ks) not in seen:
                            seen.add((lt, j, ks)); RD_.append([f"ds_read_b128 {vr(xr)}, v{220+2*sl+ks} offset:{j*2048}", len(M), stg, (len(M) // 20) * 20 - 21 if lt else -1])
                        cc = vr(d)
                        if st == 0 and ks == 0: cc = "0" if t < 5 else vr(16 + t * 8)
                        M.append(f"v_mfma_f32_16x16x32_bf16 {vr(d)}, {vr(wr+4*ks)}, {vr(xr)}, {cc}")
        po = lambda va, off: [('vm', f"buffer_store_dwordx4 v[204:207], v{va}, {srd(SWS)}, s38 offen offset:{off} sc1", 'hst')]
        poison = [po(6, 0), po(6, 1024), po(240, 0), po(240, 1024)] + [[('vm', f"buffer_store_dwordx2 v[204:205], v6, {srd(SWS)}, s39 offen offset:{j*1024} sc1", 'hst')] for j in range(2)]
        self.ulim = 51
        self.kloop(mf, reads, nm, dma_stage, poison, 'QH')
        A51 = lambda u: u < 51; A64 = lambda u: u < 64; ALL = lambda u: True
        self.gelu_consts()
        e(f"s_lshl_b32 s{sT3}, s{sKW}, 6\ns_add_u32 s{sT3}, s{sT3}, s{sT2}")
        L = []
        for p in range(5):
            for j in range(2):
                O = 152 + 4 * ((2 * p + j) % 4)
                L += self.gelu_lines(16 + ((5 + 2 * p) * 2 + j) * 4, 16 + ((6 + 2 * p) * 2 + j) * 4, 136 + 8 * j, O)
                if j == 0:
                    if p == 4: L += [f"s_add_u32 s{sT4}, s{sT3}, {4*4096}", f"s_cmp_lt_u32 s{sHG}, 6\ns_cselect_b32 s{sT4}, s{sT4}, {OOB}"]
                    else: L.append(f"s_add_u32 s{sT4}, s{sT3}, {p*4096}")
                L.append(('vm', f"buffer_store_dwordx4 {vr(O)}, v6, {srd(SWS)}, s{sT4} offen offset:{j*1024} sc1", 'hst'))
        self.valu(L, bg=A51, S=c.Sg)
        if mfl: self.stream(mfl, readsl, [], None, name='QHlate', bg=lambda m: A51)
        e(f"""s_lshl_b32 s{sT4}, s{sMT}, 4
        s_add_u32 s{sT4}, s{sT4}, s{sHG}
        s_lshl_b32 s{sT4}, s{sT4}, 7
        s_add_u32 s{sT4}, s{sT4}, {F4}
        s_cmp_eq_u32 s{sW}, 0
        s_cselect_b32 s{sT5}, s{sT4}, {OOB}
        s_mov_b32 s{sC0}, {fl(math.log2(math.e))}""")
        def pub():
            e.wait(vm='hst'); e("s_barrier")
            e.vmop(self.flag_store(245, 246, f"s{sT5}"), 'f4st')
        if c.f4at < 0: pub(); A51 = lambda u: u < 51 or u >= 64
        self.b2_loads()
        self.valu(self.cvt_heads(16, 56, 0) + self.cvt_heads(16, 66, 1), bg=A51)
        self.stamp(2)
        if c.stamps: e(f"s_mov_b32 s{sC0}, {fl(math.log2(math.e))}")
        e.wait(lg='wphi')
        self.valu(self.phi_mfmas(56, 76), bg=A51)
        L1 = self.softmax_lines(76, 16, 116)
        if c.f4at >= 0:
            self.valu(L1[:c.f4at], bg=A64); pub()
        self.valu(L1[max(c.f4at, 0):], bg=ALL)
        L2 = self.softmax_lines(96, 16, 136)
        self.valu(L2[:c.pa], bg=ALL)
        self.poll4a_issue()
        self.valu(L2[c.pa:c.pb], bg=ALL)
        pool = [[('v', r), c.mo + 1 if r < 204 else c.p3 if r < 220 else 999] for r in list(range(204, 224, 4)) + list(range(168, 204, 4))]
        while len(self.Bpend) > c.qleft: self.bg_try(ALL, -9999)
        self.ph2_begin(pool)
        if c.stamps == 3: e(f"s_mov_b32 s{sC0}, {fl(math.log2(math.e))}")
        self.valu(L2[c.pb:], bg=ALL)
        self.stamp(3)
        pool += [[('v', r), c.mo + 1] for r in range(156, 168, 4)]
        FO = (0, 1024, 2048, 2816)
        finld = [f"buffer_load_dwordx4 {vr(204+4*i)}, v6, {srd(SWS)}, s{sKW} offen offset:{FO[i]} sc1" for i in range(4)]
        finld += [f"buffer_load_dwordx4 {vr(248+4*j)}, v13, {srd(SWS)}, s43 offen offset:{j*256} sc1" for j in range(2)]
        def h_p3():
            e(f"""s_mul_i32 s{sKW}, s{sHG}, {FSZ}
            s_mul_i32 s{sK1}, s{sW}, 3840
            s_add_u32 s{sKW}, s{sKW}, s{sK1}
            s_add_u32 s{sKW}, s{sKW}, {FIN}
            v_lshlrev_b32 v13, 4, v1""")
            for l in finld: e.vmop(l, 'fin')
        def h_c3():
            it = [('st', 4, 1)] + [('x', l) for l in f"s_lshr_b32 s{sK1}, s{sK1}, 1\ns_add_u32 s{sK1}, s{sK1}, {L_FIN}\nv_lshl_add_u32 v9, v0, 3, s{sK1}".split("\n")] + [('wvm', 'fin')]
            it += [('x', l) for l in self.tag_check(finld, list(range(204, 220)) + list(range(248, 256)), 8)] + [('st', 5, 1)]
            it += [('x', self.tag_strip(r)) for r in list(range(204, 220)) + [248, 252]] + [('x', "v_mov_b32 v250, v248"), ('x', "v_mov_b32 v251, v252")]
            for i in range(4):
                it += [('x', f"v_cvt_pk_bf16_f32 v{204+4*i}, v{204+4*i}, v{205+4*i}"), ('x', f"v_cvt_pk_bf16_f32 v{205+4*i}, v{206+4*i}, v{207+4*i}"),
                       ('lg', f"ds_write_b64 v9, v[{204+4*i}:{205+4*i}] offset:{FO[i]//2}", 'fw')]
            it += [('x', l) for l in f"v_lshlrev_b32 v13, 6, v2\nv_lshl_add_u32 v13, v4, 4, v13\nv_add_u32 v13, {L_FIN}, v13".split("\n")]
            self.aq[:0] = [[self.m, c.mo - 3, x] for x in it]
        def h_o():
            if c.p1q < 0: self.poll4b_issue()
            fr = [p for p in pool if p[0][0] == 'a'][:8]; assert len(fr) == 8; self.busy = fr
            e.wait(lg='fw'); e("s_barrier")
            self.stamp(6)
            mf = []; reads = []
            for fp in range(5):
                for dg in range(6):
                    n = fp * 6 + dg; f0 = fr[n % 8][0][1]; base = (n // 2) * 8
                    reads.append([f"ds_read_b128 {ar(f0)}, v13 offset:{(dg*5+fp)*256}", base + 2 * (n % 2), -1, base - 24])
                    for h in range(2):
                        for j in range(2):
                            d = 156 + 24 * j + 4 * dg; b = 116 + 20 * j + 2 * (2 * fp + h)
                            mf.append(f"v_mfma_f32_4x4x4_16b_bf16 {vr(d)}, a[{f0+2*h}:{f0+2*h+1}], v[{b}:{b+1}], {vr(d) if (fp or h) else 0}")
            mf2 = []
            for n in range(0, 30, 2):
                a_, b_ = mf[4*n:4*n+4], mf[4*n+4:4*n+8]
                mf2 += [a_[0], a_[1], b_[0], b_[1], a_[2], a_[3], b_[2], b_[3]]
            if c.skip & 4: mf2 = mf2[:8]; reads = reads[:2]
            self.stream(mf2, reads, [], None, LA=20, bg=lambda m: self.ph2_bg)
            for j in range(2): e(f"v_add_f32 v{8+2*j}, {fl(1e-6)}, v{156+24*j+20}")
            for j in range(2): e(f"v_rcp_f32 v{8+2*j}, v{8+2*j}")
            for j in range(2): e(f"v_mul_f32 v{8+2*j}, v{8+2*j}, v{250+j}")
            for j in range(2):
                D = 156 + 24 * j
                for i in range(10): e(f"v_pk_mul_f32 v[{D+2*i}:{D+2*i+1}], v[{D+2*i}:{D+2*i+1}], v[{8+2*j}:{9+2*j}] op_sel_hi:[1,0]")
                for i in range(10): e(f"v_cvt_pk_bf16_f32 v{D+i}, v{D+2*i}, v{D+2*i+1}")
                for i in range(10): e(f"v_min_u32 v{D+i}, -2, v{D+i}")
                e.vmop(f"buffer_store_dwordx4 {vr(D)}, v6, {srd(SWS)}, s38 offen offset:{j*1024} sc1", 'ost')
                e.vmop(f"buffer_store_dwordx4 {vr(D+4)}, v240, {srd(SWS)}, s38 offen offset:{j*1024} sc1", 'ost')
                e.vmop(f"buffer_store_dwordx2 {vr(D+8, 2)}, v6, {srd(SWS)}, s39 offen offset:{j*1024} sc1", 'ost')
            self.busy = []
            for p in pool: p[1] = 999
            pool.extend([[('v', r), 999] for r in range(116, 156, 4)])
            self.stamp(14)
        self.bias2()
        self.phase2({c.p3: h_p3, c.c3: h_c3, c.mo: h_o, c.p1q: self.poll4b_issue, c.c1q: self.poll4b_check})

    def prog_KV(self):
        e = self.e; c = self.c; self.init_B(); self.perm = c.perm or (0, 0, 0); self.dmap = {0: 2, 1: 4, 3: 6, 4: 8, 5: 10, 7: 12, 9: 14}
        ST = KV_ST
        e(f"""s_mul_i32 s{sM0+1}, s{sW}, 5120
        s_add_u32 s{sM0+1}, s{sM0+1}, 16384
        s_lshl_b32 s{sM0+2}, s{sW}, 11
        s_add_u32 s{sM0+2}, s{sM0+2}, 36864
        s_lshl_b32 s{sKW}, s{sHG}, 7
        s_add_u32 s{sKW}, s{sKW}, {19*128}""")
        def dma_x(st):
            g = []
            for j in range(4):
                it = [('x', f"s_add_u32 m0, s{sM0}, {(st%3)*ST}")] if j == 0 else []
                g.append(it + [('vm', f"buffer_load_dwordx4 v{208+j}, {srd(SX)}, s{sE+st} offen offset:{j*1024} {c.xsc} lds", ('S', st))])
            return g
        def dma_w(st, i):
            it = []
            if i == 0: it = [('x', f"s_mul_i32 s{sKA}, s{sE+st}, 1920"), ('x', f"s_add_u32 m0, s{sM0+1}, {(st%3)*ST}")]
            if i == 4: it = [('x', "s_add_u32 m0, m0, 4096")]
            return it + [('vm', f"buffer_load_dwordx4 v{212+i}, {srd(SQ)}, s{sKA} offen offset:{(i%4)*1024} {c.wsc} lds", ('S', st))]
        def dma_h(st, i):
            it = [('x', f"s_mul_i32 s{sKB}, s{sE+st}, 1728"), ('x', f"s_add_u32 m0, s{sM0+2}, {(st%3)*ST}")] if i == 0 else []
            return it + [('vm', f"buffer_load_dwordx4 v{217+i}, {srd(S1)}, s{sKB} offen offset:{i*1024} {c.wsc} lds", ('S', st))]
        def dma_stage(st): return dma_x(st) + [dma_w(st, i) for i in range(5)] + [dma_h(st, i) for i in range(2)]
        if c.fast:
            self.kernarg_wait()
            if c.touch == 3: self.touch()
            if c.touch == 6:
                self.touch6_srd()
                if c.tpa == 0: self.emit_items(self.touch6(0))
            for g in dma_x(0): self.emit_items(g)
            if c.touch == 5: self.touch()
            self.small_dma(SM, 6, f"s{sKW}", L_BIASKV, 8, 'bias')
        e(f"""s_and_b32 s{sT0}, s{sW}, 1
        s_mul_i32 s{sT0}, s{sT0}, 320
        s_lshr_b32 s{sT1}, s{sW}, 1
        s_add_u32 s{sT1}, s{sT1}, 1
        s_mul_i32 s{sT1}, s{sT1}, 1280
        s_mul_i32 s{sT3}, s{sHG}, 160
        s_add_u32 s{sT1}, s{sT1}, s{sT3}""")
        for i in range(5):
            e(f"v_add_u32 v9, {64*i}, v0\nv_add_u32 v9, s{sT0}, v9")
            self.attn_voff(212 + i, None, sT1)
            if i % 4: e(f"v_subrev_u32 v{212+i}, {(i%4)*1024}, v{212+i}")
            if c.fast: self.emit_items(dma_w(0, i))
        if not c.fast:
            self.kernarg_wait()
            self.small_dma(SM, 6, f"s{sKW}", L_BIASKV, 8, 'bias')
            for g in dma_x(0) + [dma_w(0, i) for i in range(5)]: self.emit_items(g)
        e(f"s_lshl_b32 s{sT3}, s{sW}, 4\nv_lshlrev_b32 v11, 1, v2\nv_xor_b32 v11, v11, v0\nv_and_b32 v11, 7, v11")
        for pp in range(2):
            e(f"v_add_u32 v10, {8*pp}, v5\nv_add_u32 v10, s{sT3}, v10")
            self.swap23(10, 12)
            e(f"""v_mul_u32_u24 v10, 3456, v10
            v_lshl_add_u32 v10, v11, 4, v10
            v_add_u32 v10, s{sKW}, v10
            v_subrev_u32 v{217+pp}, {pp*1024}, v10""")
            self.emit_items(dma_h(0, pp))
        mk_srd(e, SM, pGATE, 1280)
        if c.rot == 4: e(f"v_xor_b32 v9, s{sE}, v6\ns_and_b32 s{sT3}, s{sE}, 128\nv_xor_b32 v11, s{sT3}, v6\nv_add_u32 v11, 1024, v11")
        elif c.rot == 3: e(f"v_xor_b32 v9, s{sE}, v6\nv_add_u32 v11, 1024, v9")
        else: e(f"v_add_u32 v9, s{sE}, v6\nv_subrev_u32 v10, 1280, v9\nv_min_u32 v9, v9, v10\nv_add_u32 v11, 1024, v9\nv_subrev_u32 v10, 1280, v11\nv_min_u32 v11, v11, v10")
        self.small_dma(SM, 9, "0", L_GATE, 64, ('S', 0)); self.small_dma(SM, 11, "0", L_GATE + 1024, 16, ('S', 0))
        self.pstamp(1)
        if c.pke:
            self.pack_setup()
            for g in self.pack_loads(): self.emit_items(g)
        if c.touch == 1: self.touch()
        if c.touch == 6 and c.tpa == 1: self.emit_items(self.touch6(0))
        if c.touch == 4:
            self.touch3_setup()
            for p_ in range(c.tp0): self.emit_items(self.touch3(p_))
        self.pstamp(2)
        def setup():
            e = self.e
            self.x_addr(ST); self.rho0(8)
            e(f"v_mul_u32_u24 v9, 160, v8\nv_mad_u32_u24 v9, v4, 40, v9\nv_add_u32 v226, 16384, v9")
            for sl in (1, 2): e(f"v_add_u32 v{226+sl}, {sl*ST}, v226")
            e(f"v_lshlrev_b32 v9, 7, v8\nv_lshl_add_u32 v9, v4, 3, v9\nv_add_u32 v9, 36864, v9\nv_bfe_u32 v10, v8, 1, 2")
            for t in range(4): e(f"v_xor_b32 v11, {t}, v10\nv_lshl_add_u32 v{229+t}, v11, 5, v9\nv_add_u32 v{204+t}, {2*ST}, v{229+t}")
            e(f"v_lshlrev_b32 v233, 4, v2\nv_add_u32 v233, {L_GATE}, v233\nv_lshlrev_b32 v253, 3, v2\nv_add_u32 v253, {L_BIASKV}, v253")
            self.common_setup()
            if not c.pke: self.pack_setup()
            e(f"""v_lshrrev_b32 v8, 2, v1
            v_mul_u32_u24 v8, 2560, v8
            v_lshl_add_u32 v8, v4, 5, v8
            v_lshrrev_b32 v9, 1, v2
            v_lshl_add_u32 v8, v9, 9, v8
            v_and_b32 v9, 1, v2
            v_lshl_add_u32 v8, v9, 4, v8
            s_lshl_b32 s{sT0}, s{sW}, 7
            v_add_u32 v241, s{sT0}, v8
            v_add_u32 v243, 10240, v241
            v_mov_b32 v9, {OOB}
            v_cmp_ge_u32 vcc, 7, v1
            v_cndmask_b32 v243, v9, v243, vcc
            v_cmp_gt_u32 vcc, 2, v2
            v_cndmask_b32 v242, v9, v241, vcc
            v_cndmask_b32 v244, v9, v243, vcc
            v_mul_u32_u24 v12, {PSZ}, v2
            v_min_u32 v10, 14, v1
            v_lshl_add_u32 v12, v10, 4, v12
            v_lshlrev_b32 v13, 4, v1
            v_cmp_gt_u32 vcc, 16, v0
            v_cndmask_b32 v234, v9, v13, vcc
            v_cmp_gt_u32 vcc, 15, v0
            v_cndmask_b32 v13, v9, v13, vcc""")
        self.interleave(self.record(setup), dma_stage(1)[:c.n1], c.pe2)
        self.pstamp(3)
        if c.n1 >= 12:
            self.small_dma(SM, 6, "s36", None, 50, 'misc', "s_mov_b32 m0, s37")
            if c.touch == 2: self.touch()
            if not c.pke and not c.pkl:
                for g in self.pack_loads(): self.emit_items(g)
        self.tag_wait(); self.pstamp(4)
        e.wait(vm='bias')
        for s_ in range(4): e.lgop(f"ds_read_b64 v[{136+2*s_}:{137+2*s_}], v253 offset:{s_*32}", ('b', s_))
        for s_ in range(4):
            e.wait(lg=('b', s_))
            for h in range(2): e(f"v_lshlrev_b32 v{96+8*s_+2*h}, 16, v{136+2*s_+h}\nv_and_b32 v{97+8*s_+2*h}, 0xffff0000, v{136+2*s_+h}")
        self.stamp(0)
        NS = 15; nm = NS * 4; mf = []; reads = []; late = []; gs = 0
        S0 = 10 - c.dfr; AD = AW - 56 * c.dfr
        for st in range(10):
            sl = st % 3; mst = len(mf)
            for t in range(NS):
                dfr = st >= S0 and t >= 10
                wr = (('a', AD + (st - S0) * 56 + 16 + (t - 10) * 8) if dfr else ('v', 168 + 8 * (gs % 4))); m0 = len(mf)
                dl, ea = (mst + 6 + 6 * (t - 10), -1) if dfr else (m0, m0 - 13)
                RR = lambda o, n: R((wr[0], wr[1] + o), n)
                for ks in range(2):
                    if t == 14: reads.append([f"ds_read_b128 {RR(4*ks, 4)}, v233 offset:{(st*2+ks)*64}", dl, st, ea]); continue
                    for rd in range(2):
                        if t < 10: ad, off = 226 + sl, (t // 5) * 10240 + ks * 5120 + rd * 1280 + (t % 5) * 8
                        else: ad, off = (229 if sl < 2 else 204) + t - 10, (sl % 2) * ST + ks * 4096 + rd * 1024
                        reads.append([f"ds_read_b64_tr_b16 {RR(4*ks+2*rd, 2)}, v{ad} offset:{off}", dl, st, ea])
                for j in ((1, 0) if st == 0 else (0, 1)):
                    for ks in range(2):
                        xr = ('a', AD + (st - S0) * 56 + (j * 2 + ks) * 4) if st >= S0 else ('v', 136 + (st % 2) * 16 + (j * 2 + ks) * 4)
                        d = 16 + (t * 2 + j) * 4
                        if t == 0: reads.append([f"ds_read_b128 {R(xr)}, v{220+2*sl+ks} offset:{j*2048}", len(mf), st, -1])
                        cc = vr(d)
                        if st == 0 and ks == 0: cc = vr(16 + t * 8) if 10 <= t < 14 else "0"
                        (late if dfr else mf).append(f"v_mfma_f32_16x16x32_bf16 {vr(d)}, {RR(4*ks, 4)}, {R(xr)}, {cc}")
                if not dfr: gs += 1
        self.ulim = AD // 4
        self.kloop(mf, reads, nm, dma_stage, [], 'KV')
        e.wait(lg_all=True)
        A64 = lambda u: u < 64; ALL = lambda u: True
        A51 = lambda u: u < 51; Sa = c.Sa
        ALL0 = ALL; ALL = lambda u: u < self.ulim or u >= 51
        KQ = 136; PR = 168; VT = 156
        nl2e = fl(-math.log2(math.e))
        side = [l.strip() for l in f"""v_mul_f32 v128, {nl2e}, v128
        v_mul_f32 v132, {nl2e}, v132
        v_exp_f32 v128, v128
        v_exp_f32 v132, v132
        s_lshl_b32 s{sT2}, s{sMT}, 2
        v_add_f32 v128, 1.0, v128
        v_add_f32 v132, 1.0, v132
        v_rcp_f32 v128, v128
        v_rcp_f32 v132, v132
        s_add_u32 s{sT2}, s{sT2}, s{sW}
        s_lshl_b32 s{sT3}, s{sT2}, 9
        s_lshl_b32 s{sT4}, s{sHG}, 15
        s_add_u32 s{sT3}, s{sT3}, s{sT4}
        s_add_u32 s{sT3}, s{sT3}, {GB}
        v_mul_u32_u24 v220, {RSV}, v1
        v_mad_u32_u24 v220, v2, 48, v220
        s_mul_i32 s{sT0}, s{sW}, {32*RSV}
        s_add_u32 s{sT0}, s{sT0}, {L_V}
        v_add_u32 v220, s{sT0}, v220
        v_mul_u32_u24 v221, {RSP}, v1
        s_mov_b32 s{sT0}, 80
        v_mad_u32_u24 v221, v2, s{sT0}, v221
        s_mul_i32 s{sT0}, s{sW}, {32*RSP}
        v_add_u32 v221, s{sT0}, v221
        v_lshl_add_u32 v8, v2, 2, v3
        v_mul_u32_u24 v222, {RSP}, v8
        v_lshl_add_u32 v222, v4, 3, v222
        s_mul_i32 s{sT0}, s{sW}, 80
        v_add_u32 v222, s{sT0}, v222
        v_mul_u32_u24 v223, {RSV}, v8
        v_lshl_add_u32 v223, v4, 3, v223
        s_mul_i32 s{sT0}, s{sW}, 48
        s_add_u32 s{sT0}, s{sT0}, {L_V}
        v_add_u32 v223, s{sT0}, v223
        s_lshl_b32 s{sT0}, s{sHG}, 4
        s_add_u32 s{sT0}, s{sT0}, s{sMT}
        s_mul_i32 s{sT1}, s{sT0}, {PSZ}
        s_add_u32 s{sT1}, s{sT1}, {PP}
        s_mov_b32 s{sC0}, {fl(math.log2(math.e))}""".split("\n")]
        self.b2_loads(); self.tag_update()
        self.valu(self.cvt_heads(16, KQ, 0) + self.cvt_heads(16, KQ + 10, 1))
        e.wait(lg='wphi')
        gate = side[:14]; side = self.cvt_heads(56, VT, 0) + side[14:38]
        self.valu(self.phi_mfmas(KQ, PR), [[('x', l)] for l in side], 1)
        e(f"v_mov_b32 v{VT+10}, 0x3f80\nv_mov_b32 v{VT+11}, 0\ns_mov_b32 s{sC0}, {fl(math.log2(math.e))}\ns_barrier")
        for i in range(3): e.lgop(f"ds_write_b128 v220, {vr(VT+4*i)} offset:{i*16}", 'vw')
        L0 = self.softmax_lines(PR, 16, 136)
        self.valu(L0[:16], bg=ALL, S=Sa)
        self.valu(self.cvt_heads(56, 208, 1) + ["v_mov_b32 v218, 0x3f80", "v_mov_b32 v219, 0"], bg=ALL, S=Sa)
        for i in range(3): e.lgop(f"ds_write_b128 v220, {vr(208+4*i)} offset:{16*RSV + i*16}", 'vw')
        self.valu(L0[16:], bg=ALL, S=Sa)
        PH = (136, 56)
        pw = lambda j: [[('lg', f"ds_write_b128 v221, {vr(PH[j]+4*i)} offset:{j*16*RSP + i*16}", 'pw')] for i in range(5)]
        L1 = self.softmax_lines(PR + 20, 16, 56)
        self.valu(L1[:40], pw(0), 8, ALL, Sa)
        self.valu(L1[40:-20], bg=ALL, S=Sa)
        self.valu(L1[-20:], pw(1), 4)
        e.wait(lg_all=True); e("s_barrier")
        self.stamp(2)
        mf = []; reads = []; D0 = 168
        for s_ in range(4):
            b0 = 16 + s_ * 20; m0 = len(mf)
            for dt in range(2):
                for rd in range(2): reads.append([f"ds_read_b64_tr_b16 v[{b0+12+4*dt+2*rd}:{b0+13+4*dt+2*rd}], v223 offset:{(32*s_+16*rd)*RSV + dt*32}", m0 + dt, -1, -1])
            for ft in range(3):
                for rd in range(2): reads.append([f"ds_read_b64_tr_b16 v[{b0+4*ft+2*rd}:{b0+4*ft+2*rd+1}], v222 offset:{(32*s_+16*rd)*RSP + ft*32}", m0 + 2 * ft, -1, -1])
                for dt in range(2):
                    d = D0 + (ft * 2 + dt) * 4
                    mf.append(f"v_mfma_f32_16x16x32_bf16 {vr(d)}, {vr(b0+4*ft)}, {vr(b0+12+4*dt)}, {vr(d) if s_ else 0}")
        reads.sort(key=lambda r: r[1]); rp = 0
        for m in range(24):
            while rp < 40 and (len(e.lg) < 14 and (m == 0 or reads[rp][1] <= m + 8) or reads[rp][1] <= m): e.lgop(reads[rp][0], ('kv', reads[rp][1])); rp += 1
            e.wait(lg=[('kv', k) for k in range(m + 1)])
            e(mf[m])
            if c.kvb: self.bg_try(ALL, c.kvb)
        e("s_nop 4")
        for ft in range(3):
            for dt in range(2):
                for i in range(4): e(self.tag_put(D0 + (ft * 2 + dt) * 4 + i))
                e.vmop(f"buffer_store_dwordx4 {vr(D0+(ft*2+dt)*4)}, v{241+2*dt+(ft==2)}, {srd(SWS)}, s{sT1} offen offset:{ft*1024} sc1", 'pst')
        self.stamp(3)
        sc = [l.strip() for l in f"""s_lshl_b32 s{sT2}, s{sMT}, 2
        s_add_u32 s{sT2}, s{sT2}, s{sW}
        s_lshl_b32 s{sT4}, s{sMT}, 1
        s_lshr_b32 s{sT5}, s{sW}, 1
        s_add_u32 s{sT4}, s{sT4}, s{sT5}
        s_and_b32 s{sT5}, s{sW}, 1
        s_mul_i32 s{sT0}, s{sT4}, 74
        s_lshl_b32 s{sKW}, s{sHG}, 1
        s_add_u32 s{sT0}, s{sT0}, s{sKW}
        s_add_u32 s{sT0}, s{sT0}, 38
        s_lshl_b32 s{sT0}, s{sT0}, 12
        s_lshl_b32 s{sT5}, s{sT5}, 11
        s_add_u32 s{sT0}, s{sT0}, s{sT5}
        s_add_u32 s{sT0}, s{sT0}, {A2}
        s_lshl_b32 s{sKW}, s{sMT}, 4
        s_add_u32 s{sKW}, s{sKW}, s{sHG}
        s_lshl_b32 s{sKW}, s{sKW}, 7
        s_add_u32 s{sKW}, s{sKW}, {F4+1024}
        s_mul_i32 s32, s{sT2}, 240
        s_mul_i32 s{sT4}, s{sHG}, {FSZ}
        s_add_u32 s{sT1}, s32, s{sT4}
        s_add_u32 s{sT1}, s{sT1}, {FIN}
        s_lshl_b32 s{sT4}, s{sT4}, 4
        s_add_u32 s32, s32, s{sT4}
        s_add_u32 s32, s32, {PP}
        s_add_u32 s33, s32, {4*PSZ}
        s_add_u32 s34, s33, {4*PSZ}
        s_add_u32 s35, s34, {4*PSZ}""".split("\n")] + [f"s_cmp_eq_u32 s{sW}, 0\ns_cselect_b32 s{sKW}, s{sKW}, {OOB}"]
        sd = [[('x', l)] for l in sc]
        self.valu(late, sd, 1, ALL if c.kvb else None, c.kvb)
        for g in sd: self.emit_items(g)
        ALL = ALL0
        for l in gate: e(l)
        for j in range(2):
            for i in (3, 2, 1, 0): e(self.tag_put(128 + 4 * j + i, 128 + 4 * j))
            e.vmop(f"buffer_store_dwordx4 {vr(128+4*j)}, v234, {srd(SWS)}, s{sT3} offen offset:{j*256} sc1", 'hst')
        self.gelu_consts()
        L = []; hs = []
        for p in range(2):
            for j in range(2):
                O = 152 + 4 * ((2 * p + j) % 4)
                L += self.gelu_lines(96 + (4 * p + j) * 4, 96 + (4 * p + 2 + j) * 4, 136 + 8 * j, O)
                hs.append(('vm', f"buffer_store_dwordx4 {vr(O)}, v{6 if p == 0 else 240}, {srd(SWS)}, s{sT0} offen offset:{j*1024} sc1", 'hst'))
        RD = 16
        pld = [f"buffer_load_dwordx4 {vr(RD+4*i)}, v12, {srd(SWS)}, s{32+i} offen sc1" for i in range(4)]
        self.valu(L[:c.kpl], bg=ALL if c.kgb else None, S=Sa)
        for l in pld: e.vmop(l, 'pld')
        if c.kp4 == 0: self.poll4a_issue()
        self.valu(L[c.kpl:], bg=ALL if c.kgb else None, S=Sa)
        if c.khs == 0: self.emit_items(hs)
        pool = [[('v', r), 999] for r in list(range(168, 224, 4)) + list(range(116, 152, 4))]
        for _ in range(c.kb2): self.bg_try(ALL, -9999)
        self.stamp(4)
        def h_r2():
            red = [self.tag_strip(RD + i) for i in range(16)]
            red += [f"v_add_f32 v{RD+i}, v{RD+i}, v{RD+4+i}" for i in range(4)] + [f"v_add_f32 v{RD+8+i}, v{RD+8+i}, v{RD+12+i}" for i in range(4)] + [f"v_add_f32 v{RD+i}, v{RD+i}, v{RD+8+i}" for i in range(4)]
            for sw in ('32', '16'):
                red += [f"v_mov_b32 v{RD+4+i}, v{RD+i}" for i in range(4)] + [f"v_permlane{sw}_swap_b32 v{RD+i}, v{RD+4+i}" for i in range(4)] + [f"v_add_f32 v{RD+i}, v{RD+i}, v{RD+4+i}" for i in range(4)]
            red += [self.tag_put(RD + i) for i in range(4)]
            it = [('st', 14, 1), ('wvm', 'pld')] + [('x', l) for l in self.tag_check(pld, range(RD, RD + 16), 9)] + [('st', 5, 1)] + [('x', l) for l in red]
            it += [('vm', f"buffer_store_dwordx4 {vr(RD)}, v13, {srd(SWS)}, s{sT1} offen sc1", 'fst')]
            self.emit_items(it)
        def h_f4():
            e.wait(vm='hst'); e("s_barrier"); e.vmop(self.flag_store(245, 246, f"s{sKW}"), 'f4st')
        h_r2()
        if c.khs == 1:
            self.emit_items(hs)
            for _ in range(c.kb4): self.bg_try(ALL, -9999)
        pool += [[('v', r), 999] for r in range(152, 168, 4)]
        if c.f4k < 0: h_f4()
        if c.kp4 == 1:
            self.poll4a_issue()
            for _ in range(c.kb3): self.bg_try(ALL, -9999)
        self.ph2_begin(pool)
        while len(self.Bpend) > c.kleft: self.bg_try(ALL, -9999)
        self.stamp(6)
        self.bias2()
        self.phase2({c.f4k: h_f4, c.p1: self.poll4b_issue, c.c1: self.poll4b_check})

    def kloop(self, mf, reads, nm0, dma_stage, poison, name):
        e = self.e; c = self.c; back = []
        def mksync(st):
            def f(m):
                nm = nm0 - (20 if st >= 10 - (c.dfr if name == 'KV' else c.dfq) else 0)
                tg = [it[2] for g in back for it in (g[1] if g[0] == 'atomic' else g) if it[0] == 'vm']
                assert not (st == c.pks and 'packld' in tg) and not (st == c.pks + 3 and 'pkst' in tg) and not (st == 3 and 'misc' in tg) and ('S', st) not in tg
                e.wait(vm=[('S', st)] + (['pkst'] if st == c.pks + 3 else []) + (['misc'] if st == 3 else []) + (['packld'] if st == c.pks else []), lg_all=True); e("s_barrier")
                self.stamp(st + 1, 2)
                if st == 0: self.ts(0)
                if st == 2: self.ts(1)
                if st == 5 and c.ts: e('s_mov_b64 s[92:93], s[54:55]')
                if st < 3: self.stamp(7 + st, 3)
                if st == 2: self.pstamp_flush()
                out = []
                if st == 0 and c.n1 < 12:
                    back.extend(dma_stage(1)[c.n1:])
                    back.append(('atomic', self.record(lambda: self.small_dma(SM, 6, "s36", None, 50, 'misc', "s_mov_b32 m0, s37"))))
                if st + 2 < 10: back.extend(dma_stage(st + 2))
                if st == c.tpb and c.touch == 6: back.append(self.touch6(1))
                if st == c.pkl and (c.n1 < 12 or c.pkl): back.extend(self.pack_loads())
                if st == c.pks: back.extend(self.pack_stores())
                if c.f1s < st < 8 or (st == c.f1s and st < 8 and c.f1c + 8 < nm - 16):
                    for u in self.Bpend[:c.bk]: self.Bpend.remove(u); back.append(self.B_take([u])[0])
                need = max([k + 1 for k, g in enumerate(back) if g[0] != 'atomic' and g[-1][2] == ('S', st + 1)], default=0)
                n = min(len(back), max(c.quota, need)) if st < 7 else len(back)
                take = back[:n]; del back[:n]
                if take:
                    pc = self.paced([g[1] if g[0] == 'atomic' else g for g in take], m, nm - c.dtail)
                    for f, g in zip(pc, take):
                        if g[0] == 'atomic': f['atomic'] = 1
                    out += pc
                if c.touch == 4: out += [dict(at=m + nm - c.dtail + 1, chain=1, ins=self.touch3(p_)) for p_ in range(c.tp0, 3) if c.tst[p_] == st]
                if st in c.cpf: out.append(dict(at=m + nm - c.dtail + 2, ins=self.code_touch('L_QH' if name == 'KV' else 'L_end')))
                if st == c.pks: out += self.pack_fill(m, nm)
                if st == c.pks + 3: out.append(dict(at=m + 1, ins=[('vm', self.flag_store(245, 246, f"s{sF1}"), 'f1st')]))
                if st == 3: out += [dict(at=m + 3 + 5 * k, ins=g) for k, g in enumerate(self.wphi_reads(254))]
                if st == c.f1s - 1: g = self.f1_issue()[0]; out += [dict(at=m + nm - 30, ins=g[:-1]), dict(at=m + nm - c.dtail, chain=1, ins=g[-1:])]
                if st == c.f1s:
                    chk = [dict(at=m + c.f1c + 2 * k, ins=[it]) for k, it in enumerate(self.f1_check())]
                    out += chk
                    if c.bt: out += [dict(at=m + c.f1c + 26 + c.btsp * k, ins=g) for k, g in enumerate(self.btouch())]
                if st == 9 and name == 'KV': out.append(dict(at=m + 4, ins=self.record(self.tag_issue)))
                if st == 8:
                    if poison: out += self.paced(poison, m, 30)
                    self.bg0 = max(m + c.bgs, (m + c.f1c + 8) if c.f1s == 8 else 0)
                return out
            return f
        self.bg0 = 9999; self.wphi_addr(254)
        self.stream(mf, reads, [], {st: mksync(st) for st in range(10)}, name=name, bg=lambda m: (lambda u: m >= self.bg0 and u < self.ulim))
        self.stamp(1); self.stamp(11, 2)
        self.typ = name; self.ts(2)
        if c.dly == (1 if name == 'KV' else 2): e(f's_sleep {c.dlyn}')
        self.ph2_pre()

    def ph2_pre(self):
        e = self.e
        mk_srd(e, SM, pB2, 1280); mk_srd(e, SPK, pOUT, 2048 * 1280)
        e(f"""s_mul_i32 s{sM0}, s{sNB}, 160
        s_and_b32 s{sM0+1}, s{sNB}, 1
        s_lshl_b32 s{sM0+2}, s{sM0+1}, 5
        s_add_u32 s{sM0+2}, s{sM0+2}, s{sM0}
        s_xor_b32 s{sM0+1}, s{sM0+1}, 1
        s_lshl_b32 s{sM0+1}, s{sM0+1}, 7
        s_add_u32 s{sM0+1}, s{sM0+1}, s{sM0}
        s_min_u32 s{sM0+3}, s{sW}, 1
        s_mul_i32 s{sM0+3}, s{sM0+3}, 1280
        s_sub_u32 s{SM+2}, 1280, s{sM0+3}
        s_lshr_b32 s{sM0+5}, s{sRB}, 1
        s_lshl_b32 s{sM0+3}, s{sM0+5}, 11
        s_add_u32 s{sM0+3}, s{sM0+3}, {F4}
        s_add_u32 s{sM0+4}, s{sM0+3}, 1024
        v_and_b32 v235, 7, v0
        v_lshlrev_b32 v235, 7, v235""")
    def b2_loads(self):
        e = self.e
        e("v_lshlrev_b32 v7, 4, v2\nv_lshlrev_b32 v8, 3, v2")
        e.vmop(f"buffer_load_dwordx4 v[224:227], v7, {srd(SM)}, s{sM0+2} offen", 'b2')
        e.vmop(f"buffer_load_dwordx4 v[228:231], v7, {srd(SM)}, s{sM0+2} offen offset:64", 'b2')
        e.vmop(f"buffer_load_dwordx2 v[232:233], v8, {srd(SM)}, s{sM0+1} offen", 'b2')
    def poll4a_issue(self): self.e.vmop(self.poll_issue(235, 252, 2, None, f"s{sM0+3}"), 'p4a')

    def poll4b_issue(self): self.e.vmop(self.poll_issue(235, 252, 2, None, f"s{sM0+4}"), 'p4b')
    def poll4b_check(self):
        e = self.e
        self.stamp(10)
        e.wait(vm='p4b')
        for l in self.poll_check([(235, 252, 2, f"s{sM0+4}")]): e(l)
        self.stamp(11)
        self.gate[1] = True; self.g_loads()
        for _ in range(self.c.burst): self.try_issue(self.m, True)
    def g_loads(self):
        e = self.e
        e(f"s_lshl_b32 s{sT0}, s{sRB}, 10\ns_add_u32 s{sT0}, s{sT0}, {GB}\nv_lshlrev_b32 v7, 4, v1")
        for jj in range(4):
            e(f"v_subrev_u32 v8, v6, v{236+jj}\nv_lshrrev_b32 v8, 2, v8\nv_add_u32 v8, v8, v7")
            e.vmop(f"buffer_load_dword v{241+jj}, v8, {srd(SWS)}, s{sT0} offen sc1", 'g')
    def bias2(self):
        e = self.e; BI = 96
        e.wait(vm='b2')
        for t in range(5):
            for h in range(2):
                s_ = 224 + 2 * t + h
                e(f"v_lshlrev_b32 v{BI+4*t+2*h}, 16, v{s_}\nv_and_b32 v{BI+4*t+2*h+1}, 0xffff0000, v{s_}")

    def ph2_begin(self, pool):
        e = self.e; c = self.c
        e.wait(vm='p4a')
        for l in self.poll_check([(235, 252, 2, f"s{sM0+3}")]): e(l)
        self.pool = pool; self.busy = []; self.Aloc = {}; self.Bl = dict(self.Bloc); self.Acur = {}
        groups = [(0, 1), (2, 3), (4, 5), (6, 7), (8, 9), (10, 11), (12, 13), (14, 15), (16, 17, 18)]
        self.mf = [(i, t, j) for g in groups for t in range(5) for j in range(4) for i in g]
        fA, lA, fB, lB = {}, {}, {}, {}
        for m, (i, t, j) in enumerate(self.mf):
            fA.setdefault((i, j), m); lA[(i, j)] = m; fB.setdefault((i, t), m); lB[(i, t)] = m
        self.lA, self.lB = lA, lB
        w = [('A', k, fA[k] if k[0] < 14 else (280 if k[0] < 16 else 320) - c.vlead - 1, lA[k]) for k in fA]
        w += [('S', k, fB[k], lB[k]) for k in fB if self.Bl[k] and self.Bl[k][0] == 'l']
        w += [('B', k, fB[k], lB[k]) for k in fB if self.Bl[k] is None]
        self.fB = fB
        self.work = sorted(w, key=lambda x: (x[2] // 40 * 40 + x[1][0] % 2 * 4 + x[1][1]) if (x[0] == 'A' and c.aord and x[1][0] < 14) else x[2]); self.gate = {0: True, 1: False, 2: False, 3: False}; self.Atxt = {}; self.lastiss = -99; self.m = 0
        for _ in range(c.a0): self.try_issue(0, True)

    def try_issue(self, m, force=False, nos=False):
        e = self.e; c = self.c; pool = self.pool
        cls = lambda i: 0 if i < 10 else (1 if i < 14 else 2 if i < 16 else 3)
        for w in self.work:
            kind, k, dl, last = w
            if kind == 'A' and not self.gate[cls(k[0])]: continue
            if kind == 'S' and (nos or dl - m > 16 or self.Border.index(k) in self.Bpend): continue
            if kind != 'S' and not force and dl - m >= 12 and e.t - e.tvm < (c.S2 if dl - m >= c.urg else c.S3): continue
            if kind == 'P':
                self.Bpend.remove(k); self.emit_items(self.B_take([k])[0]); self.work.remove(w); return True
            ok = [p for p in pool if p[1] > last and p not in self.busy and (p[0][0] == 'v' or kind != 'A' or k[0] < 14)]
            if not (kind == 'A' and k[0] >= 14): ok.sort(key=lambda p: p[0][0] == 'v' and m > 150)
            if len(ok) < (1 if dl - m <= 40 else 4 if kind == 'A' else 7): continue
            p = ok[0]; pool.remove(p); loc = p[0]; self.until[loc] = p[1]
            if kind == 'A':
                i, j = k; sr = sAT if i % 2 == 0 else sAT2
                if self.Acur.get(sr) != i:
                    e(self.soff(sr, i, 'A')); self.Acur[sr] = i
                e.vmop(f"buffer_load_dwordx4 {R(loc)}, v{236+j}, {srd(SWS)}, s{sB if c.xA == 1 and i < 14 else 41 if c.xA == 2 else sr} offen sc1", ('A', k)); self.Aloc[k] = loc
                self.Atxt[k] = self.soff(sT1, i, 'A').split("\n") + [ f"buffer_load_dwordx4 {R(loc)}, v{236+j}, {srd(SWS)}, s{sT1} offen sc1"]
            elif kind == 'B':
                self.emit_items(self.B_items(k, loc)); self.Bl[k] = loc
            else:
                e.wait(vm=('B', k))
                e.lgop(f"ds_read_b128 {R(loc)}, v234 offset:{self.Bl[k][1]*1024}", ('S', k)); self.Bl[k] = loc
            if kind != 'S': self.lastiss = m
            if c.verbose > 1: print(f'{kind}{k}@{m}->{dl}', end=' ')
            self.work.remove(w); return True
        return False

    def phase2(self, hooks):
        e = self.e; c = self.c
        ACC = 16; BI = 96; pool = self.pool; mf = self.mf; Bl = self.Bl; Aloc = self.Aloc
        mtrans = min(m for m, x in enumerate(mf) if x[0] >= 14)
        if c.verbose: print("B loads left for phase 2:", len(self.Bpend))
        hooks = {k: v for k, v in hooks.items() if k >= 0}
        for u in self.Bpend:
            k = self.Border[u]; self.work.append(('P', u, self.fB[k] - (20 if self.Bloc[k][0] == 'l' else 0), 0))
        self.work.sort(key=lambda x: (x[2] // 40 * 40 + x[1][0] % 2 * 4 + x[1][1]) if (x[0] == 'A' and c.aord and x[1][0] < 14) else x[2])
        e(f"s_add_u32 s{sT0}, s88, {L_BL}\nv_add_u32 v234, s{sT0}, v6")
        pool += [[('v', r), 999] for r in (224, 228)]
        if c.dly == (3 if self.typ == 'KV' else 4): e(f's_sleep {c.dlyn}')
        seen = set(); vchk = {280: (14, 15), 320: (16, 17, 18)}
        aq = []
        lastH = {}; firstO = {}; lastO = {}
        for m, (i, t, j) in enumerate(mf):
            if i < 14: lastH[(j, t)] = m
            else: firstO.setdefault((j, t), m); lastO[(j, t)] = m
        g0 = min(lastH.values()) - 10
        aq.append([g0, g0 + 4, ('wvm', 'g')])
        for jj in range(4): aq += [[g0, g0 + 8, ('x', self.tag_strip(241 + jj))]]
        for jj in range(4): aq += [[g0, g0 + 12, ('x', f"v_sub_f32 v{241+jj}, 1.0, v{241+jj}")]]
        for k in sorted(lastH, key=lambda k: lastH[k]):
            jj, tt = k; d = ACC + (jj * 5 + tt) * 4
            for q in range(4): aq.append([lastH[k] + 3, firstO[k] - 2, ('x', f"v_mul_f32 v{d+q}, v{241+jj}, v{d+q}")])
        adr = []
        for jj in range(1, 4):
            adr += [f"s_add_u32 s{sT0}, s{sW}, {jj}", f"s_and_b32 s{sT0}, s{sT0}, 3", f"s_mul_i32 s{sT0}, s{sT0}, 15360",
                    f"s_add_u32 s{sT0}, s{sT0}, {L_RED + (jj-1)*5120}", f"v_add_u32 v{8+jj}, s{sT0}, v6"]
        adr += [l.strip() for l in f"""s_mul_i32 s{sT0}, s{sW}, 15360
        s_add_u32 s{sT0}, s{sT0}, {L_RED}
        v_add_u32 v8, s{sT0}, v6
        s_lshl_b32 s{sT0}, s{sRB}, 2
        s_add_u32 s{sT0}, s{sT0}, s{sW}
        s_mul_i32 s{sT0}, s{sT0}, {16*1280}
        s_add_u32 s{sT3}, s{sT0}, s{sM0+2}
        s_add_u32 s{sT2}, s{sT0}, s{sM0+1}
        v_mul_u32_u24 v12, 1280, v1
        v_lshl_add_u32 v13, v2, 3, v12
        v_lshl_add_u32 v12, v2, 4, v12""".split("\n")]
        for l in adr: aq.append([c.adr0, 325, ('x', l)])
        for k in sorted(lastO, key=lambda k: lastO[k]):
            jj, tt = k
            if jj: aq.append([lastO[k] + 3, 999, ('lg', f"ds_write_b128 v{8+jj}, {vr(ACC+(jj*5+tt)*4)} offset:{tt*1024}", 'rw')])
        self.aq = aq
        for m, (i, t, j) in enumerate(mf):
            self.m = m
            if m == mtrans: self.stamp(7); self.ts(4)
            if m == 1: self.ts(3)
            assert (i, j) in Aloc and Bl[(i, t)] and Bl[(i, t)][0] != 'l', (m, i, t, j)
            assert not any(a[1] < m for a in aq), (m, aq[0])
            e.wait(vm=[('A', (i, j)), ('B', (i, t))], lg=('S', (i, t)))
            d = ACC + (j * 5 + t) * 4
            cc = vr(d) if (j, t) in seen else vr(BI + 4 * t); seen.add((j, t))
            e(f"v_mfma_f32_16x16x32_bf16 {vr(d)}, {R(Bl[(i, t)])}, {R(Aloc[(i, j)])}, {cc}")
            k0 = len(e.ins)
            for loc, last in ((Aloc[(i, j)], self.lA[(i, j)]), (Bl[(i, t)], self.lB[(i, t)])):
                if last == m: pool.append([loc, self.until.get(loc, 999) if self.until.get(loc, 999) > m else 999])
            if m == 40: pool.extend([[('v', BI + 4 * k), 999] for k in range(5)])
            if m == 200 and c.dly == (5 if self.typ == 'KV' else 6): e(f's_sleep {c.dlyn}')
            if m == c.o1: self.gate[2] = True
            if m == c.o2: self.gate[3] = True
            if m + 1 + c.vlead in vchk:
                mv = m + 1 + c.vlead; ks = [(ii, jj) for ii in vchk[mv] for jj in range(4)]
                assert all(k in Aloc for k in ks), (m, ks)
                vq = [('wvm', [('A', k) for k in ks])] + [('x', l) for l in self.valid_check(sum([self.Atxt[k] for k in ks], []), [Aloc[k][1] + q for k in ks for q in range(4)], 7)]
                if mv == 280: vq = [('st', 12, 1)] + vq + [('st', 13, 1), ('open',)]
                aq[:0] = [[m, mv - 1, it] for it in vq]
            if m in hooks: hooks[m]()
            self.try_issue(m)
            while any(w[2] - m < 4 for w in self.work) and self.try_issue(m): pass
            while True:
                av = [a for a in aq if a[0] <= m]
                if not av: break
                hurry = any(sum(1 for b in aq if b[1] <= a[1]) > 2 * (a[1] - m) for a in aq if a[1] < 999)
                a = min(av, key=lambda a: a[1])
                if len(e.ins) - k0 >= 2 and not hurry: break
                if a[2][0] == 'lg' and any(x.kind in ('dsw', 'dsr', 'vload', 'dma') for x in e.ins[k0:]): break
                aq.remove(a)
                if a[2][0] == 'open':
                    self.gate[3] = True
                    for _ in range(c.burst3): self.try_issue(m, True)
                elif a[2][0] == 'call': a[2][1]()
                else: self.emit_items([a[2]])
        assert not self.work, self.work
        self.stamp(8)
        for a in aq: self.emit_items([a[2]])
        e.wait(lg_all=True); e("s_barrier")
        for t in range(5):
            for s_ in range(3): e.lgop(f"ds_read_b128 {vr(116+(t*3+s_)*4)}, v8 offset:{s_*5120+t*1024}", ('rr', t))
        for t in range(5):
            e.wait(lg=('rr', t)); d = ACC + t * 4; r = 116 + t * 12
            e(f"""v_pk_add_f32 v[{d}:{d+1}], v[{d}:{d+1}], v[{r}:{r+1}]
            v_pk_add_f32 v[{d+2}:{d+3}], v[{d+2}:{d+3}], v[{r+2}:{r+3}]
            v_pk_add_f32 v[{r+4}:{r+5}], v[{r+4}:{r+5}], v[{r+8}:{r+9}]
            v_pk_add_f32 v[{r+6}:{r+7}], v[{r+6}:{r+7}], v[{r+10}:{r+11}]
            v_pk_add_f32 v[{d}:{d+1}], v[{d}:{d+1}], v[{r+4}:{r+5}]
            v_pk_add_f32 v[{d+2}:{d+3}], v[{d+2}:{d+3}], v[{r+6}:{r+7}]
            v_cvt_pk_bf16_f32 v{96+2*t}, v{d}, v{d+1}
            v_cvt_pk_bf16_f32 v{97+2*t}, v{d+2}, v{d+3}""")
            if t == 1: e.vmop(f"buffer_store_dwordx4 v[96:99], v12, {srd(SPK)}, s{sT3} offen {c.osc}", 'o')
            if t == 3: e.vmop(f"buffer_store_dwordx4 v[100:103], v12, {srd(SPK)}, s{sT3} offen offset:64 {c.osc}", 'o')
            if t == 4: e.vmop(f"buffer_store_dwordx2 v[104:105], v13, {srd(SPK)}, s{sT2} offen {c.osc}", 'o')
        self.stamp(9); self.ts(5); self.ts_flush()
        e("s_endpgm")

    def build(self):
        e = self.e
        self.prologue()
        st = (list(e.vm), list(e.lg))
        self.until = {}
        self.prog_KV()
        e.vm, e.lg = list(st[0]), list(st[1])
        self.until = {}
        self.prog_QH()
        e("\n".join(self.tail))
        e("L_end:\ns_endpgm")
        body = e.finish()
        hdr = open('cdna_kernels/' + NAME + '.s.ref').read().split('; Override launch')[0]
        K = NAME + "_kernel"
        out = hdr + "; Generated by a hand-written Python generator (persistent fused kernel; see comments in the generator).\n"
        out += "; @launch grid=(256,1,1) block=(256,1,1) lds=163840\n"
        out += f'.amdgcn_target "amdgcn-amd-amdhsa--gfx950"\n.text\n.globl {K}\n.p2align 8\n.type {K},@function\n{K}:\n' + body
        out += f""".fill 64, 4, 0xbf800000
.section .rodata,"a"
.p2align 6
.amdhsa_kernel {K}
  .amdhsa_next_free_vgpr 512
  .amdhsa_next_free_sgpr 102
  .amdhsa_accum_offset 256
  .amdhsa_group_segment_fixed_size 0
  .amdhsa_kernarg_size 104
  .amdhsa_user_sgpr_count 2
  .amdhsa_user_sgpr_kernarg_segment_ptr 1
  .amdhsa_system_sgpr_workgroup_id_x 1
.end_amdhsa_kernel
"""
        return out

for k_, v_ in dict(rot=3, par=0, tab=(2, 4), tpa=0, tpb=0, ts=0, bk=0, dfr=1, dfq=0, kpl=120, khs=0, kb4=10, qb2=6, qb3=6, qfo=0, a0q=12, kp4=1, dly=0, dlyn=16, kvb=64, VC=64, cnt=0, cpf=(), aord=1, nochk=0, skip=0, fast=1, n1=0, quota=28, pkl=0, tp0=1, tst=(0, 0, 1), sp1=24, tlb=0, tlb2=0, pks=3, pke=0, f1s=8, bt=0, btsp=20, bgs=4, qleft=0, kpre=180, kord=0, kgb=1, tmask=7, wbl=0, exit_at=-1, only=0, dstamp=0, xsc='', wsc='', psc='nt', pss='sc1', xA=0, S=48, S2=32, urg=50, S3=0, kb3=8, xB=0, mix=1, perm=0, kf1=60, pe=20, pe2=20, dtail=4, qb0=14, qb1=22, se=10, a0=14, ap=4, osc='sc1 nt', touch=1, kvring=3, f1c=10,
                   f4at=20, pa=100, pb=144, p3=30, c3=58, r1=30, r2=70, rspan=24, kbeg=0, kb1=20, kpa=60, mo=79, p1q=100, c1q=150, Sa=64, kb2=6, kleft=99, Sg=100, o2=226, o1=210, vlead=14, adr0=205, burst3=12, sleep2=1, f4k=-1, p1=130, c1=158, burst=4).items():
    setattr(Cfg, k_, v_)

def generate(**kw):
    c = Cfg()
    for k, v in kw.items(): setattr(c, k, v)
    g = Gen(c); g.e.VC = c.VC; t = g.build()
    return t, g

if __name__ == "__main__":
    kw = {}
    for a_ in sys.argv[2:]:
        k, v = a_.split('='); kw[k] = tuple(map(int, v.split(','))) if ',' in v else int(v, 0) if v.lstrip('-')[0].isdigit() else v.replace('+', ' ')
    t, g = generate(**kw)
    open(sys.argv[1], 'w').write(t)
    print("instructions:", len(g.e.ins), "nops added:", g.e.nop_added)
```

```python
import sys, math
from emit import Emit
NAME = "gated_mix__linear_kernel_hedgehog__dense_activation_gelu__prompt"

TAG = 0x0
F1 = 0x18000
F2 = 0x2000; F3 = 0x6000; F4 = 0xa000; F5 = 0x12000
STAMP = 0x1000000
GB = 0x280000
PP = 0x40000; PSZ = 15360
FIN = 0x240000; FSZ = 15360
PB = 0x300000
A2 = 0x600000
OOB = 0x7ff00000

K1 = 1024
QH_ST = 46 * K1; KV_ST = 44 * K1
MISC = 154 * K1
L_WPHI = MISC; L_GATE = MISC + 3200; L_BIASKV = MISC + 4480; L_BIASQH = MISC + 3200
L_PACK = 138 * K1
WH0 = 114 * K1; WH5 = 74 * K1
L_PHI = 0; RSP = 352; L_V = 128 * RSP; RSV = 224
L_BL = 72 * K1
NL = 18
L_RED = 0
L_FIN = 64 * K1

sW = 3
SX, SQ, S1, SWS, SPK, SM = 4, 8, 12, 16, 20, 24
pX, pQKV, pPHI, pWO, pBX, pW1, pB1, pW2, pB2, pGATE, pOUT, pDBG, pWS = [32 + 2 * i for i in range(13)]
sTAG = 58
sMT, sHG, sRB, sNB = 60, 61, 62, 63
sE = 64
sT0, sT1, sT2, sT3, sT4, sT5 = 74, 75, 76, 77, 78, 79
sM0 = 80
sBT, sAT, sB9, sA9, sAT2 = 100, 101, 86, 87, 55
sAo, sBo, sA8, sB8 = 44, 45, 56, 57
sKW, sK1 = 89, 90
sF1 = 91
sPKD = 92
sA, sB = 96, 97
sC0, sC1 = 98, 99
sP0 = 28

PKA = 200
TB = 10; TBM = (1 << TB) - 1; sTB = 58
AW = 204
def srd(r): return f"s[{r}:{r+3}]"
def vr(r, n=4): return f"v[{r}:{r+n-1}]" if n > 1 else f"v{r}"
def ar(r, n=4): return f"a[{r}:{r+n-1}]"
def R(loc, n=4): return (vr if loc[0] == 'v' else ar)(loc[1], n)
def fl(x):
    import struct
    return hex(struct.unpack('<I', struct.pack('<f', x))[0])

class Cfg:
    rot = 1; map2 = 1; stamps = 0; LA = 12; spin = 200000; codepf = 1; lag = 2; th1 = 2; th2 = 4; minlead = 4; verbose = 0; sleep = 1

sKA, sKB = 0, 1
def mk_srd(e, r, p, nbytes):
    e(f"s_mov_b32 s{r}, s{p}\ns_and_b32 s{r+1}, s{p+1}, 0xffff\ns_mov_b32 s{r+2}, {nbytes}\ns_mov_b32 s{r+3}, 0x20000")

class Gen:
    def __init__(self, cfg):
        self.c = cfg; self.e = Emit(); self.tail = []; self.uid = 0; self.nstamp = 0
    def record(self, fn):
        real = self.e
        class Rec:
            def __init__(r): r.items = []; r.lg = []; r.vm = []
            def __call__(r, t):
                for l in t.strip("\n").split("\n"):
                    if l.strip(): r.items.append(('x', l.strip()))
            def vmop(r, t, tag=None): r.items.append(('vm', t, tag))
            def lgop(r, t, tag=None): r.items.append(('lg', t, tag))
        rec = Rec(); self.e = rec
        try: fn()
        finally: self.e = real
        return rec.items
    def cnt(self):
        if not self.c.cnt: return [], []
        self.ncnt = getattr(self, 'ncnt', 0) + 1; k = self.ncnt - 1
        post = ["s_load_dwordx2 s[46:47], s[40:41], 88", f"s_sub_u32 s54, {self.c.spin}, s54", "s_lshl_b32 s54, s54, 12", "s_add_u32 s54, s54, 1", "s_waitcnt lgkmcnt(0)",
                "v_mov_b32 v14, s54", "v_mov_b32 v15, 0", "s_mov_b64 exec, 1", f"global_atomic_add v15, v14, s[46:47] offset:{k*4}", "s_mov_b64 exec, -1"]
        return [], post
    def lab(self, p):
        self.uid += 1; return f"L_{p}_{self.uid}"
    def stamp(self, i, grp=1):
        if self.c.dstamp and grp == 1:
            slot = self.dmap.get(i)
            if slot is None: return
            e = self.e
            e(f"s_memrealtime s[{sC0}:{sC1}]\ns_load_dwordx2 s[46:47], s[40:41], 88\ns_waitcnt lgkmcnt(0)\nv_mov_b32 v14, s{sC0}\nv_mov_b32 v15, 0"); e.lg = []
            e("s_cmp_eq_u32 s3, 0\ns_cselect_b64 exec, 1, 0")
            L = self.lab('ds'); e(f"s_cbranch_execz {L}")
            e(f"global_atomic_umax v15, v14, s[46:47] offset:{slot*4}")
            if i == 0: e(f"v_mov_b32 v14, s54\nglobal_atomic_umax v15, v14, s[46:47] offset:4\nv_not_b32 v14, v14\nglobal_atomic_umax v15, v14, s[46:47] offset:0")
            e(f"{L}:\ns_mov_b64 exec, -1")
            return
        if not self.c.stamps or (i and self.c.stamps != grp): return
        if self.c.only and i not in (0, self.c.only): return
        e = self.e
        e(f"s_memrealtime s[{sC0}:{sC1}]\ns_memtime s[46:47]\ns_waitcnt lgkmcnt(0)"); e.lg = []
        e(f"v_mov_b32 v14, s{sC0}\nv_mov_b32 v15, s46")
        e(f"s_lshl_b32 s{sC0}, s2, 2\ns_add_u32 s{sC0}, s{sC0}, s{sW}\ns_lshl_b32 s{sC0}, s{sC0}, 7\ns_add_u32 s{sC0}, s{sC0}, {STAMP}")
        e.vmop(f"buffer_store_dwordx2 v[14:15], v245, {srd(SWS)}, s{sC0} offen offset:{i*8}", 'stamp')
        if self.c.exit_at == i and grp == 1: e("s_endpgm")
        if i == 0:
            e(f"v_mov_b32 v14, s54\nv_mov_b32 v15, s40")
            e.vmop(f"buffer_store_dwordx2 v[14:15], v245, {srd(SWS)}, s{sC0} offen offset:{15*8}", 'stamp')

    def pstamp(self, i):
        if self.c.stamps == 3: self.e(f"s_memtime s[100:101]\ns_waitcnt lgkmcnt(0)\nv_mov_b32 v{(248,249,250,251,235)[i]}, s100")
    def pstamp_flush(self):
        if self.c.stamps != 3: return
        e = self.e
        e(f"s_lshl_b32 s{sC0}, s2, 2\ns_add_u32 s{sC0}, s{sC0}, s{sW}\ns_lshl_b32 s{sC0}, s{sC0}, 7\ns_add_u32 s{sC0}, s{sC0}, {STAMP}")
        for i in range(5): e.vmop(f"buffer_store_dword v{(248,249,250,251,235)[i]}, v245, {srd(SWS)}, s{sC0} offen offset:{(2+i)*8+4} sc1", 'stamp')
    def ts(self, k):
        if not self.c.ts: return
        self.e(f"s_memrealtime s[40:41]\ns_waitcnt lgkmcnt(0)\ns_mov_b32 s{(44, 45, 56, 57, 36, 37)[k]}, s40"); self.e.lg = []
    def ts_flush(self):
        if not self.c.ts: return
        e = self.e; L = self.lab('ts'); o = 2 if self.typ == 'KV' else 8
        e(f"s_cmp_lg_u32 s{sW}, 0\ns_cbranch_scc1 {L}\ns_load_dwordx2 s[46:47], s[92:93], 88\ns_waitcnt lgkmcnt(0)\ns_mov_b64 exec, 1\nv_mov_b32 v15, 0")
        for k, r in enumerate((44, 45, 56, 57, 36, 37)): e(f"v_mov_b32 v14, s{r}\nglobal_atomic_umax v15, v14, s[46:47] offset:{(o+k)*4}\ns_nop 1")
        e(f"v_mov_b32 v14, s99\nglobal_atomic_umax v15, v14, s[46:47] offset:4\ns_nop 1\nv_not_b32 v14, v14\nglobal_atomic_umax v15, v14, s[46:47] offset:0\n{L}:")
    def dump(self, name, regs):
        if getattr(self.c, 'dbg', None) != name: return
        e = self.e
        e(f"s_lshl_b32 s{sBT}, s2, 2\ns_add_u32 s{sBT}, s{sBT}, s{sW}\ns_lshl_b32 s{sBT}, s{sBT}, 14\ns_add_u32 s{sBT}, s{sBT}, 0x2000000\nv_lshlrev_b32 v7, 2, v0")
        for i, r in enumerate(regs):
            e.vmop(f"buffer_store_dword v{r}, v7, {srd(SWS)}, s{sBT} offen offset:{(i%16)*256}", 'dbg')
            if i % 16 == 15: e(f"s_add_u32 s{sBT}, s{sBT}, 4096")
        e.wait(vm='dbg'); self.Bcur = None

    def poll_issue(self, vaddr, vdst, n, tag, soff="0"):
        suf = {2: 'dwordx2', 4: 'dwordx4'}[n]
        return f"buffer_load_{suf} {vr(vdst, n)}, v{vaddr}, {srd(SWS)}, {soff} offen sc1"
    def poll_check(self, loads):
        Ls, Lb = self.lab('slow'), self.lab('back')
        cmps = []; ors = []; k = 0
        prs = ['vcc', 's[28:29]', 's[30:31]', 's[46:47]']
        for (va, vd, n, so) in loads:
            for h in range(n // 2):
                cmps.append(f"v_cmp_ne_u64 {prs[k]}, s[{sTAG}:{sTAG+1}], v[{vd+2*h}:{vd+2*h+1}]")
                if k: ors.append(f"s_or_b64 vcc, vcc, {prs[k]}")
                k += 1
        cmps = cmps[::-1] if False else cmps
        fast = cmps + ors + [f"s_cbranch_vccnz {Ls}\n{Lb}:" if not (self.c.nochk & 1) else f"{Lb}:"]
        t = [f"{Ls}:", f"s_mov_b32 s54, {self.c.spin}", f"{Ls}_l:"]
        if self.c.sleep: t.append(f"s_sleep {self.c.sleep}")
        for (va, vd, n, so) in loads: t.append(self.poll_issue(va, vd, n, None, so))
        t += ["s_waitcnt vmcnt(0)"] + cmps + ors
        t += ["s_sub_u32 s54, s54, 1", f"s_cbranch_vccz {Ls}_x", "s_cmp_lg_u32 s54, 0", f"s_cbranch_scc1 {Ls}_l", f"{Ls}_x:"] + self.cnt()[1] + ["s_nop 4", f"s_branch {Lb}"]
        self.tail += t
        return fast
    def tag_check(self, reload, regs, acc):
        Ls, Lb = self.lab('slow'), self.lab('back')
        regs = list(regs); L = [f"v_xor_b32 v{acc}, s{sTB}, v{regs[0]}"]
        for r in regs[1:]: L.append(f"v_bitop3_b32 v{acc}, v{r}, s{sTB}, v{acc} bitop3:0xbe")
        L += [f"v_and_b32 v{acc}, {TBM}, v{acc}", f"v_cmp_ne_u32 vcc, 0, v{acc}"]
        t = [f"{Ls}:", f"s_mov_b32 s54, {self.c.spin}", f"{Ls}_l:"]
        if self.c.sleep: t.append(f"s_sleep {self.c.sleep2}")
        t += list(reload) + ["s_waitcnt vmcnt(0)"] + L
        t += ["s_sub_u32 s54, s54, 1", f"s_cbranch_vccz {Ls}_x", "s_cmp_lg_u32 s54, 0", f"s_cbranch_scc1 {Ls}_l", f"{Ls}_x:"] + self.cnt()[1] + ["s_nop 4", f"s_branch {Lb}"]
        self.tail += t
        return L + [f"s_cbranch_vccnz {Ls}\n{Lb}:" if not (self.c.nochk & 2) else f"{Lb}:"]
    def tag_put(self, r, src=None): return f"v_bfi_b32 v{r}, s42, v246, v{r if src is None else src}"
    def tag_strip(self, r): return f"v_and_b32 v{r}, {hex(0xffffffff ^ TBM)}, v{r}"
    def valid_check(self, reload, regs, acc):
        Ls, Lb = self.lab('slow'), self.lab('back')
        regs = list(regs); L = [f"v_max3_u32 v{acc}, v{regs[0]}, v{regs[1]}, v{regs[2 if len(regs) > 2 else 1]}"]
        r = regs[3:]
        for i in range(0, len(r), 2): L.append(f"v_max3_u32 v{acc}, v{acc}, v{r[i]}, v{r[min(i+1, len(r)-1)]}")
        L.append(f"v_cmp_eq_u32 vcc, -1, v{acc}")
        t = [f"{Ls}:", f"s_mov_b32 s54, {self.c.spin}", f"{Ls}_l:"]
        if self.c.sleep: t.append(f"s_sleep {self.c.sleep2}")
        t += list(reload) + ["s_waitcnt vmcnt(0)"] + L
        t += ["s_sub_u32 s54, s54, 1", f"s_cbranch_vccz {Ls}_x", "s_cmp_lg_u32 s54, 0", f"s_cbranch_scc1 {Ls}_l", f"{Ls}_x:"] + self.cnt()[1] + ["s_nop 4", f"s_branch {Lb}"]
        self.tail += t
        return L + [f"s_cbranch_vccnz {Ls}\n{Lb}:" if not (self.c.nochk & 4) else f"{Lb}:"]
    def flag_store(self, vaddr, vtag, soff="0"):
        return f"buffer_store_dwordx2 {vr(vtag, 2)}, v{vaddr}, {srd(SWS)}, {soff} offen sc1"

    def stream(self, mf, reads, fill, syncs=None, LA=None, name='', bg=None):
        e = self.e; LA = LA or self.c.LA
        reads = sorted(reads, key=lambda r: r[1]); rp = 0; synced = -1 if syncs else 99
        fq = sorted(fill, key=lambda f: f['at'])
        self.sid = getattr(self, 'sid', 0) + 1; sid = self.sid
        start = len(e.ins)
        def add_fill(items):
            lo = max([f['at'] for f in fq if f.get('chain')], default=-99)
            for f in items:
                if f.get('chain'): f['at'] = lo = max(f['at'], lo)
            fq.extend(items); fq.sort(key=lambda f: f['at'])
        def rd():
            nonlocal rp
            e.lgop(reads[rp][0], ('rd', sid, rp)); rp += 1
        if syncs: add_fill(syncs[0](0)); synced = 0
        while rp < len(reads) and reads[rp][1] < 8 and reads[rp][2] <= synced: rd()
        last_read = -99
        dl_of = {('rd', sid, i): r[1] for i, r in enumerate(reads)}
        def due(m): return [t for t in e.lg if t in dl_of and dl_of[t] <= m]
        ismem = lambda it: it[0] in ('vm', 'lg')
        for m in range(len(mf)):
            d = due(m)
            if d: e.wait(lg=d)
            e(mf[m])
            can = lambda: rp < len(reads) and reads[rp][2] <= synced and reads[rp][3] <= m and len(e.lg) < 15
            lead = lambda: reads[rp][1] - m
            if syncs and rp < len(reads) and reads[rp][2] > synced and m - last_read >= self.c.lag and lead() <= LA:
                synced = reads[rp][2]
                assert not any(it[0] == 'vm' and it[2] == ('S', synced) for f in fq for it in f['ins'])
                add_fill(syncs[synced](m + 1))
                if can(): rd(); last_read = m
                continue
            w = 1 if due(m + 1) else 0
            n = w; mem = 0
            if fq and fq[0]['at'] <= m:
                f = fq[0]
                if f.get('atomic'):
                    self.emit_items(f['ins']); n += len(f['ins']); mem += sum(map(ismem, f['ins'])); fq.pop(0)
                elif ismem(f['ins'][0]):
                    self.emit_items([f['ins'].pop(0)]); n += 1; mem += 1
                    if not f['ins']: fq.pop(0)
            if bg and mem == 0:
                k0 = len(e.ins)
                if self.bg_try(bg(m)): n += len(e.ins) - k0; mem += 1
            if can() and lead() <= LA and (mem == 0 or (lead() <= LA - self.c.th1 and not w)):
                rd(); n += 1; mem += 1; last_read = m
            if can() and mem == 1 and not w and lead() <= LA - self.c.th2:
                rd(); n += 1; mem += 1
            while can() and lead() <= self.c.minlead: rd(); n += 1; mem += 1; last_read = m
            while (n < 2 or (fq and fq[0]['at'] <= m - 2 and n < 3)) and fq and fq[0]['at'] <= m + 2 and not fq[0].get('atomic') and not ismem(fq[0]['ins'][0]):
                f = fq[0]; self.emit_items([f['ins'].pop(0)]); n += 1
                if not f['ins']: fq.pop(0)
            assert rp >= len(reads) or reads[rp][1] > m + 1, (m, reads[rp])
        for f in fq: self.emit_items(f['ins'])
        if self.c.verbose:
            tot = 0; g = None
            for i in e.ins[start:]:
                if i.label: continue
                if i.kind == 'mfma':
                    if g is not None: tot += max(16, g)
                    g = 8; prevmem = False
                elif g is not None:
                    mm = i.kind in ('dsr', 'dsw', 'vload', 'vstore', 'dma')
                    g += 8 if (mm and prevmem) else 4; prevmem = mm
            print(f"stream {name}: {len(mf)} mfma, est clks {tot} (ideal {16*len(mf)})")

    def prologue(self):
        e = self.e; c = self.c
        if c.stamps or c.dstamp or c.ts: e("s_memrealtime s[54:55]\ns_memtime s[98:99]")
        e(f"""s_cmp_ge_u32 s2, 256
        s_cbranch_scc1 L_end
        s_load_dwordx16 s[32:47], s[0:1], 0
        s_load_dwordx4 s[48:51], s[0:1], 64
        s_load_dwordx2 s[52:53], s[0:1], 80
        s_load_dwordx2 s[56:57], s[0:1], 96""")
        if c.codepf:
            e(f"""s_getpc_b64 s[{sA}:{sB}]
            L_pf:
            s_lshr_b32 s{sT0}, s2, 3
            s_lshl_b32 s{sT0}, s{sT0}, 11
            v_lshrrev_b32 v1, 4, v0
            v_lshlrev_b32 v1, 7, v1
            v_add_u32 v1, s{sT0}, v1
            v_cmp_gt_u32 vcc, L_end-L_pf, v1
            v_cndmask_b32 v1, 0, v1, vcc""")
            e.vmop(f"global_load_dword v255, v1, s[{sA}:{sB}]", 'pf')
        e(f"""v_lshrrev_b32 v1, 6, v0
        v_and_b32 v0, 63, v0
        s_and_b32 s{sT0}, s2, 7
        v_readfirstlane_b32 s{sW}, v1
        s_lshr_b32 s{sT1}, s2, 3
        s_lshr_b32 s{sT2}, s{sT0}, 1
        s_and_b32 s{sT3}, s{sT1}, 3
        s_lshl_b32 s{sMT}, s{sT2}, 2
        s_add_u32 s{sMT}, s{sMT}, s{sT3}
        s_lshr_b32 s{sT4}, s{sT1}, 2
        s_and_b32 s{sHG}, s{sT0}, 1
        s_lshl_b32 s{sHG}, s{sHG}, 2
        s_and_b32 s{sT5}, s{sT4}, 3
        s_add_u32 s{sHG}, s{sHG}, s{sT5}""")
        if c.rot == 2:
            e(f"""s_mul_i32 s{sE}, s{sT2}, 5
            s_lshr_b32 s{sE}, s{sE}, 1
            s_and_b32 s{sT5}, s{sT0}, 1
            s_mul_i32 s{sT5}, s{sT5}, 5
            s_add_u32 s{sE}, s{sE}, s{sT5}
            s_cmp_ge_u32 s{sE}, 10
            s_cselect_b32 s{sT5}, 10, 0
            s_sub_u32 s{sE}, s{sE}, s{sT5}
            s_lshl_b32 s{sE}, s{sE}, 7""")
        elif c.rot == 3:
            e(f"s_xor_b32 s{sE}, s{sT3}, s{sT4}\ns_and_b32 s{sE}, s{sE}, 1\ns_lshl_b32 s{sE}, s{sE}, 7")
        elif c.rot == 4:
            e(f"s_xor_b32 s{sE}, s{sT3}, s{sT4}\ns_and_b32 s{sE}, s{sE}, 3\ns_lshl_b32 s{sE}, s{sE}, 7")
        else: e(f"s_mov_b32 s{sE}, 0")
        e(f"""v_and_b32 v1, 15, v0
        v_lshrrev_b32 v2, 4, v0
        v_bfe_u32 v3, v0, 2, 2
        v_and_b32 v4, 3, v0
        v_lshrrev_b32 v5, 3, v0
        v_lshlrev_b32 v6, 4, v0
        s_lshl_b32 s{sT2}, s{sMT}, 2
        s_add_u32 s{sT2}, s{sT2}, s{sW}
        s_mul_i32 s{sT2}, s{sT2}, {32*1280}
        v_xor_b32 v7, v2, v0
        v_and_b32 v7, 7, v7
        v_lshlrev_b32 v7, 4, v7
        v_mul_u32_u24 v8, 1280, v5
        v_add_u32 v8, s{sT2}, v8
        v_add_u32 v208, v8, v7
        v_xor_b32 v7, 64, v7
        v_add_u32 v209, v8, v7
        v_add_u32 v209, {10240-1024}, v209
        v_add_u32 v210, {2*(10240-1024)}, v208
        v_add_u32 v211, {2*(10240-1024)}, v209
        s_lshl_b32 s{sM0}, s{sW}, 12
""")
        if c.rot >= 3: e(f"s_xor_b32 s{sE+1}, s{sE}, 128")
        else: e(f"s_add_u32 s{sE+1}, s{sE}, 128\ns_cmp_eq_u32 s{sE+1}, 1280\ns_cselect_b32 s{sE+1}, 0, s{sE+1}")
        for r, n in ((SX, 2048 * 1280), (SQ, 640 * 3840), (S1, 640 * 3456), (SM, 3456)): e(f"s_mov_b32 s{r+2}, {n}\ns_mov_b32 s{r+3}, 0x20000")
        if c.touch == 6: self.touch6_pre()
        e(f"s_bitcmp1_b32 s2, 7\ns_cbranch_scc1 L_QH")

    def kernarg_wait(self):
        e = self.e
        e("s_waitcnt lgkmcnt(0)"); self.pstamp(0)
        e(f"s_load_dwordx2 s[{sTAG}:{sTAG+1}], s[{pWS}:{pWS+1}], {TAG}")
        if self.c.stamps: e('s_mov_b32 s40, s98')
        if self.c.ts: e('s_mov_b32 s99, s54\ns_mov_b64 s[54:55], s[0:1]')
        if self.c.dstamp or self.c.cnt: e('s_mov_b64 s[40:41], s[0:1]')
        for r, p in ((SX, pX), (SM, pB1), (SQ, pQKV), (S1, pW1)): e(f"s_mov_b32 s{r}, s{p}\ns_and_b32 s{r+1}, s{p+1}, 0xffff")

    def pack_setup(self):
        e = self.e
        e(f"""s_lshl_b32 s{sT0}, s2, 2
        s_add_u32 s{sT0}, s{sT0}, s{sW}
        s_mul_i32 s{sT2}, s{sT0}, 886
        s_lshr_b32 s{sT2}, s{sT2}, 16
        s_mul_i32 s{sT1}, s{sT2}, 74
        s_sub_u32 s{sT1}, s{sT0}, s{sT1}
        s_sub_u32 s{sT3}, s{sT1}, 54
        s_and_b32 s{sT3}, s{sT3}, 63
        s_mul_i32 s{sT4}, s{sT3}, 52
        s_lshr_b32 s{sT4}, s{sT4}, 8
        s_mul_i32 s{sT5}, s{sT4}, 5
        s_sub_u32 s{sT5}, s{sT3}, s{sT5}
        s_mul_i32 s{sBT}, s{sT4}, 160
        s_lshr_b32 s{sAT}, s{sT5}, 1
        s_mul_i32 s{sAT}, s{sAT}, 80
        s_and_b32 s{sT3}, s{sT5}, 1
        s_lshl_b32 s{sT3}, s{sT3}, 3
        s_add_u32 s{sAT}, s{sAT}, s{sT3}
        s_cmp_eq_u32 s{sT5}, 4
        s_cselect_b32 s{sAT}, 16, s{sAT}
        s_cselect_b32 s{sT3}, 80, 4
        s_add_u32 s{sBT}, s{sBT}, s{sAT}
        s_lshl_b32 s{sAT}, s{sT1}, 5
        s_cmp_lt_u32 s{sT1}, 54
        s_cselect_b32 s{sBT}, s{sAT}, s{sBT}
        s_cselect_b32 s{sT3}, 16, s{sT3}""")
        self.csel(sT4, 4 * 1280 - 1024, 20 * 1280 - 1024)
        self.csel(SPK + 2, 1728 * 1280, 640 * 1280)
        e(f"""s_mov_b32 s{SPK+3}, 0x20000
        s_cmp_lt_u32 s{sT0}, 740
        s_cselect_b32 s{SPK+2}, s{SPK+2}, 0
        s_mul_i32 s{sBT}, s{sBT}, 1280
        s_lshl_b32 s{sAT}, s{sT2}, 7
        s_add_u32 s32, s{sBT}, s{sAT}
        s_add_u32 s33, s32, s{sT4}
        s_add_u32 s34, s33, s{sT4}
        s_add_u32 s35, s34, s{sT4}
        v_lshrrev_b32 v9, 5, v0
        v_mul_lo_u32 v9, v9, s{sT3}
        v_and_b32 v10, 3, v5
        v_add_u32 v9, v9, v10
        v_mul_u32_u24 v9, 1280, v9
        v_and_b32 v10, 7, v0
        v_lshl_add_u32 v252, v10, 4, v9
        v_lshlrev_b32 v9, 10, v2
        v_lshl_add_u32 v9, v3, 7, v9
        v_add_u32 v9, s{sM0}, v9
        v_add_u32 v9, {L_PACK}, v9""")
        for g in range(2):
            e(f"""s_lshl_b32 s{sT3}, s{sT2}, 1
            s_add_u32 s{sT3}, s{sT3}, {g}
            s_mul_i32 s{sT4}, s{sT3}, 52
            s_lshr_b32 s{sT4}, s{sT4}, 8
            s_mul_i32 s{sT5}, s{sT4}, 5
            s_sub_u32 s{sT5}, s{sT3}, s{sT5}
            s_cmp_eq_u32 s{sT5}, 2
            s_cselect_b32 s{sT3}, 3, 4
            s_cselect_b32 s{sAT}, 32, 8
            v_lshlrev_b32 v10, s{sT3}, v4
            v_add_u32 v{PKA+2*g}, v9, v10
            v_add_u32 v{PKA+1+2*g}, s{sAT}, v{PKA+2*g}
            s_mul_i32 s{sT4}, s{sT4}, 740
            s_mul_i32 s{sAT}, s{sT1}, 5
            s_add_u32 s{sT4}, s{sT4}, s{sAT}""")
            for a_ in range(2):
                d = sPKD + 2 * g + a_
                e(f"""s_lshl_b32 s{sT3}, s{sT5}, 1
                s_add_u32 s{sT3}, s{sT3}, {a_}
                s_add_u32 s{d}, s{sT3}, 364
                s_cmp_eq_u32 s{sT3}, 5
                s_cselect_b32 s{d}, 374, s{d}
                s_cmp_lt_u32 s{sT3}, 5
                s_cselect_b32 s{d}, s{sT3}, s{d}
                s_add_u32 s{d}, s{d}, s{sT4}
                s_lshl_b32 s{d}, s{d}, 10
                s_add_u32 s{d}, s{d}, {PB}
                s_cmp_lt_u32 s{sT0}, 740
                s_cselect_b32 s{d}, s{d}, {OOB}""")
        e(f"""s_cmp_lt_u32 s{sT1}, 54
        s_cselect_b32 s{SPK}, s{pW2}, s{pWO}
        s_cselect_b32 s{SPK+1}, s{pW2+1}, s{pWO+1}
        s_and_b32 s{SPK+1}, s{SPK+1}, 0xffff""")

    def common_setup(self):
        e = self.e; c = self.c
        e(f"s_and_b32 s{sT0}, s2, 7\ns_lshr_b32 s{sT1}, s2, 3\ns_lshr_b32 s{sT2}, s{sT0}, 1\ns_and_b32 s{sT3}, s{sT1}, 3\ns_lshr_b32 s{sT4}, s{sT1}, 2")
        if c.mix: e(f"s_lshr_b32 s{sT5}, s{sT1}, 2\ns_and_b32 s{sT5}, s{sT5}, 4\ns_xor_b32 s{sT5}, s{sT5}, s{sT1}" if c.map2 else
                    f"s_lshr_b32 s{sT5}, s{sT1}, 4\ns_xor_b32 s{sT5}, s{sT5}, s{sT1}")
        if c.map2:
            if c.mix: e(f"s_and_b32 s{sRB}, s{sT5}, 7\ns_bfe_u32 s{sT5}, s{sT1}, 0x20002")
            else: e(f"s_and_b32 s{sRB}, s{sT1}, 7\ns_lshr_b32 s{sT5}, s{sT1}, 3")
            e(f"""s_lshl_b32 s{sT2}, s{sT2}, 3
            s_add_u32 s{sRB}, s{sRB}, s{sT2}
            s_and_b32 s{sNB}, s{sT0}, 1
            s_lshl_b32 s{sNB}, s{sNB}, 2
            s_add_u32 s{sNB}, s{sNB}, s{sT5}""")
        else:
            if c.mix: e(f"s_bfe_u32 s{sNB}, s{sT1}, 0x30001\ns_and_b32 s{sT3}, s{sT5}, 1\ns_lshr_b32 s{sT5}, s{sT1}, 4\ns_bfe_u32 s{sT4}, s{sT1}, 0x10001\ns_xor_b32 s{sT5}, s{sT5}, s{sT4}\ns_and_b32 s{sT3}, s{sT1}, 1\ns_lshl_b32 s{sT5}, s{sT5}, 1\ns_add_u32 s{sT3}, s{sT3}, s{sT5}")
            else: e(f"s_mov_b32 s{sNB}, s{sT4}")
            e(f"s_lshl_b32 s{sRB}, s{sT0}, 2\ns_add_u32 s{sRB}, s{sRB}, s{sT3}")
        mk_srd(e, SWS, pWS, 0x10000000); mk_srd(e, SM, pPHI, 32 * 800)
        e(f"""s_lshl_b32 s{sT3}, s{sHG}, 2
        s_add_u32 s{sT3}, s{sT3}, s{sW}
        s_mul_i32 s36, s{sT3}, 800
        s_mul_i32 s37, s{sW}, 800
        s_add_u32 s37, s37, {L_WPHI}""")
        for i in range(2, 10):
            if c.rot == 4: e(f"s_xor_b32 s{sE+i}, s{sE}, {i*128}" if i < 8 else f"s_and_b32 s{sE+i}, s{sE+i-8}, 128\ns_add_u32 s{sE+i}, s{sE+i}, 1024")
            elif c.rot == 3: e(f"s_add_u32 s{sE+i}, s{sE+i-2}, 256")
            else: e(f"s_add_u32 s{sE+i}, s{sE+i-1}, 128\ns_cmp_eq_u32 s{sE+i}, 1280\ns_cselect_b32 s{sE+i}, 0, s{sE+i}")
        e(f"""s_mul_i32 s{sB}, s{sNB}, 74
        s_add_u32 s{sB}, s{sB}, s{sW}
        s_mul_i32 s{sB}, s{sB}, 5120
        s_add_u32 s{sB}, s{sB}, {PB}
        s_mul_i32 s{sA}, s{sRB}, 74
        s_add_u32 s{sA}, s{sA}, s{sW}
        s_lshl_b32 s{sA}, s{sA}, 12
        s_add_u32 s{sA}, s{sA}, {A2}
""")
        if c.par: e(f"""s_xor_b32 s{sT0}, s{sRB}, s{sNB}
        s_and_b32 s{sT0}, s{sT0}, {min(c.par, 1)}
        s_mul_i32 s{sT1}, s{sT0}, {4*5120}
        s_add_u32 s{sB8}, s{sB}, {32*5120}
        s_add_u32 s{sB8}, s{sB8}, s{sT1}
        s_add_u32 s{sB9}, s{sB}, {36*5120}
        s_sub_u32 s{sB9}, s{sB9}, s{sT1}
        s_mul_i32 s{sT1}, s{sT1}, {max(c.par, 1)}
        s_sub_u32 s{sBo}, s{sB}, s{sT1}
        s_add_u32 s{sB}, s{sB}, s{sT1}
        s_lshl_b32 s{sT1}, s{sT0}, 14
        s_add_u32 s{sA8}, s{sA}, {32*4096}
        s_add_u32 s{sA8}, s{sA8}, s{sT1}
        s_add_u32 s{sA9}, s{sA}, {36*4096}
        s_sub_u32 s{sA9}, s{sA9}, s{sT1}
        s_mul_i32 s{sT1}, s{sT1}, {max(c.par, 1)}
        s_sub_u32 s{sAo}, s{sA}, s{sT1}
        s_add_u32 s{sA}, s{sA}, s{sT1}
        s_lshr_b32 s{sT1}, s{sW}, 1
        s_and_b32 s{sT3}, s{sT1}, s{sT0}
        s_cselect_b32 s{sB8}, {OOB}, s{sB8}
        s_cselect_b32 s{sA8}, {OOB}, s{sA8}
        s_andn2_b32 s{sT3}, s{sT1}, s{sT0}
        s_cselect_b32 s{sB9}, {OOB}, s{sB9}
        s_cselect_b32 s{sA9}, {OOB}, s{sA9}
""")
        else: e(f"""s_add_u32 s{sB9}, s{sB}, {36*5120}
        s_add_u32 s{sA9}, s{sA}, {36*4096}
        s_cmp_lt_u32 s{sW}, 2
        s_cselect_b32 s{sB9}, s{sB9}, {OOB}
        s_cselect_b32 s{sA9}, s{sA9}, {OOB}""")
        e(f"""s_mul_i32 s88, s{sW}, {NL*1024}
        v_add_u32 v240, 4096, v6""")
        for j in range(4):
            e(f"s_add_u32 s{sT3}, s{sW}, {j}\ns_and_b32 s{sT3}, s{sT3}, 3\ns_lshl_b32 s{sT3}, s{sT3}, 10\nv_add_u32 v{236+j}, s{sT3}, v6")
        e(f"""s_lshl_b32 s{sF1}, s2, 7
        s_add_u32 s{sF1}, s{sF1}, {F1}
        s_cmp_eq_u32 s{sW}, 0
        s_cselect_b32 s{sF1}, s{sF1}, {OOB}
        v_mov_b32 v245, {OOB}
        v_cmp_eq_u32 vcc, 0, v0
        v_cndmask_b32 v245, v245, 0, vcc""")

    def touch(self):
        e = self.e; c = self.c
        e(f"""s_cmp_eq_u32 s{sW}, 0
        s_cselect_b64 s[28:29], s[{SX}:{SX+1}], s[{S1}:{S1+1}]
        s_cselect_b32 s30, s{SX+2}, s{S1+2}
        s_cselect_b32 s{sT0}, 12, 0
        s_add_u32 s{sT0}, s{sT0}, 68
        s_cmp_eq_u32 s{sW}, 1
        s_cselect_b64 s[28:29], s[{SQ}:{SQ+1}], s[28:29]
        s_cselect_b32 s30, s{SQ+2}, s30
        s_cselect_b32 s{sT0}, 75, s{sT0}
        s_lshl_b32 s{sT1}, 1, s{sW}
        s_and_b32 s{sT1}, s{sT1}, {c.tmask}
        s_cselect_b32 s30, s30, 0
        s_mov_b32 s31, 0x20000
        s_mul_i32 s{sT1}, s{sT0}, s2
        s_lshl_b32 s{sT1}, s{sT1}, 7
        v_lshlrev_b32 v10, 7, v0
        v_add_u32 v11, 64, v0
        v_cmp_gt_u32 vcc, s{sT0}, v11
        v_lshlrev_b32 v11, 7, v11
        v_mov_b32 v14, {OOB}
        v_cndmask_b32 v11, v14, v11, vcc""")
        e.vmop(f"buffer_load_dword v255, v10, s[28:31], s{sT1} offen", 'pf')
        e.vmop(f"buffer_load_dword v255, v11, s[28:31], s{sT1} offen", 'pf')

    def touch3_setup(self):
        e = self.e
        e(f"""s_cmp_eq_u32 s{sW}, 0
        s_cselect_b64 s[28:29], s[{SX}:{SX+1}], s[{S1}:{S1+1}]
        s_cselect_b32 s30, s{SX+2}, s{S1+2}
        s_cselect_b32 s{sT0}, 24, 21
        s_mov_b32 s44, {64*3456}
        s_cselect_b32 s44, 128, s44
        s_cselect_b64 vcc, -1, 0
        s_cmp_eq_u32 s{sW}, 1
        s_cselect_b64 s[28:29], s[{SQ}:{SQ+1}], s[28:29]
        s_cselect_b32 s30, s{SQ+2}, s30
        s_cselect_b32 s{sT0}, 23, s{sT0}
        s_cselect_b32 s44, {64*3840}, s44
        s_cmp_eq_u32 s{sW}, 3
        s_cselect_b32 s30, 0, s30
        s_mov_b32 s31, 0x20000
        s_mul_i32 s{sT1}, s{sT0}, s2
        v_add_u32 v10, s{sT1}, v0
        v_mul_u32_u24 v11, 21846, v10
        v_lshrrev_b32 v11, 16, v11
        v_mul_u32_u24 v11, {1280-384}, v11
        v_lshlrev_b32 v10, 7, v10
        v_add_u32 v11, v11, v10
        v_cndmask_b32 v10, v10, v11, vcc
        v_mov_b32 v14, {OOB}
        v_cmp_gt_u32 vcc, s{sT0}, v0
        v_cndmask_b32 v251, v14, v10, vcc""")
    def touch3(self, part):
        return [('x', f"s_mul_i32 s45, s44, {1 + 3 * part}"), ('vm', "buffer_load_dword v255, v251, s[28:31], s45 offen", 'pf')]

    def touch6_pre(self):
        e = self.e; a, b = self.c.tab
        for reg, s0, n in ((250, a, b - a), (251, b, 10 - b)):
            nx, nq, n1 = 8 * n, -(-64 * n * 30 // 256), -(-64 * n * 27 // 256)
            e(f"""s_cmp_eq_u32 s{sW}, 1
            s_cselect_b32 s{sT0}, {nq}, {n1}
            s_mov_b32 s{sT2}, {s0*64*3456}
            s_cselect_b32 s{sT2}, {s0*64*3840}, s{sT2}
            s_cmp_eq_u32 s{sW}, 0
            s_cselect_b32 s{sT0}, {nx}, s{sT0}
            s_cselect_b32 s{sT2}, {s0*128}, s{sT2}
            s_cselect_b32 s{sT3}, {1280 - 128*n}, 0
            s_mul_i32 s{sT1}, s{sT0}, s2
            v_add_u32 v10, s{sT1}, v0
            v_mul_u32_u24 v11, {-(-65536*4 // n)}, v10
            v_lshrrev_b32 v11, 18, v11
            v_mul_lo_u32 v11, v11, s{sT3}
            v_lshl_add_u32 v10, v10, 7, v11
            v_add_u32 v10, s{sT2}, v10
            v_mov_b32 v14, {OOB}
            v_cmp_gt_u32 vcc, s{sT0}, v0
            v_cndmask_b32 v{reg}, v14, v10, vcc""")
    def touch6_srd(self):
        self.e(f"""s_cmp_eq_u32 s{sW}, 0
        s_cselect_b64 s[28:29], s[{SX}:{SX+1}], s[{S1}:{S1+1}]
        s_cselect_b32 s30, s{SX+2}, s{S1+2}
        s_cmp_eq_u32 s{sW}, 1
        s_cselect_b64 s[28:29], s[{SQ}:{SQ+1}], s[28:29]
        s_cselect_b32 s30, s{SQ+2}, s30
        s_cmp_eq_u32 s{sW}, 3
        s_cselect_b32 s30, 0, s30
        s_mov_b32 s31, 0x20000""")
    def touch6(self, part): return [('vm', f"buffer_load_dword v255, v{250+part}, s[28:31], 0 offen", 'pf')]

    def tlb_touch(self):
        e = self.e; c = self.c
        if not c.tlb: return
        if c.tlb == 1:
            e(f"v_lshlrev_b32 v10, 18, v0\nv_add_u32 v10, 0x1f800, v10")
            e.vmop(f"buffer_load_dword v255, v10, {srd(SWS)}, 0 offen sc1", 'pf')
        else:
            e(f"""s_mul_i32 s{sT0}, s{sNB}, {74*5120}
            s_add_u32 s{sT0}, s{sT0}, {PB}
            s_mul_i32 s{sT1}, s{sRB}, {74*4096}
            s_add_u32 s{sT1}, s{sT1}, {A2 - 8*65536}
            s_mul_i32 s{sT3}, s{sMT}, {2*74*4096}
            s_add_u32 s{sT3}, s{sT3}, {A2 - 16*65536}
            v_lshlrev_b32 v10, 16, v0
            v_mov_b32 v11, s{sT0}
            v_mov_b32 v14, s{sT1}
            v_cmp_le_u32 vcc, 8, v0
            v_cndmask_b32 v11, v11, v14, vcc
            v_mov_b32 v14, s{sT3}
            v_cmp_le_u32 vcc, 16, v0
            v_cndmask_b32 v11, v11, v14, vcc
            v_add_u32 v11, v11, v10
            v_subrev_u32 v14, 32, v0
            v_mul_u32_u24 v14, 0x18000, v14
            v_cmp_le_u32 vcc, 32, v0
            v_cndmask_b32 v10, v11, v14, vcc""")
            e.vmop(f"buffer_load_dword v255, v10, {srd(SWS)}, 0 offen sc1", 'pf')
        mk_srd(e, 28, pOUT, 2048 * 1280)
        e("v_lshlrev_b32 v10, 16, v0")
        e.vmop("buffer_load_dword v255, v10, s[28:31], 0 offen sc1", 'pf')
        if c.tlb2:
            for p, n in ((pB2, 1280),):
                mk_srd(e, 28, p, n); e.vmop("buffer_load_dword v255, v6, s[28:31], 0 offen", 'pf')

    def tag_wait(self):
        e = self.e
        e(f"""s_waitcnt lgkmcnt(0)
        s_add_u32 s{sTAG}, s{sTAG}, 1
        v_mov_b32 v247, s{sTAG+1}
        v_mov_b32 v246, s{sTAG}
        s_movk_i32 s42, {TBM}""")
        if self.c.xA == 2: e(f's_mov_b32 s41, {OOB}')
        e.lg = []
    def pack_loads(self):
        return [([('x', f"s_add_u32 m0, s{sM0}, {L_PACK}")] if i == 0 else []) +
                [('vm', f"buffer_load_dwordx4 v252, {srd(SPK)}, s{32+i} offen offset:{i*1024} {self.c.psc} lds", 'packld')] for i in range(4)]
    def pack_fill(self, m, nm):
        f = []
        for i in range(8):
            t, h = i >> 1, i & 1
            f.append(dict(at=m + 2 + 2 * i, ins=[('lg', f"ds_read_b64_tr_b16 a[{160+4*t+2*h}:{161+4*t+2*h}], v{PKA+t} offset:{(t>>1)*64+512*h}", 'pk')]))
        return f
    def wb_item(self):
        return [[('wvm', 'pkst'), ('vm', "buffer_wbl2 sc1", 'pkst')]] if self.c.wbl else []
    def pack_stores(self):
        return [([('wlg', 'pk')] if i == 0 else []) + [('vm', f"buffer_store_dwordx4 {ar(160+4*i)}, v6, {srd(SWS)}, s{sPKD+i} offen {self.c.pss}", 'pkst')] for i in range(4)]

    def btouch(self):
        pre = [l.strip() for l in f"""s_and_b32 s{sT0}, s{sRB}, 7
        s_lshl_b32 s{sT0}, s{sT0}, 2
        s_add_u32 s{sT0}, s{sT0}, s{sW}
        s_mul_i32 s{sT0}, s{sT0}, {93*128}
        s_mul_i32 s{sT1}, s{sNB}, {74*5120}
        s_add_u32 s{sT0}, s{sT0}, s{sT1}
        s_add_u32 s{sT0}, s{sT0}, {PB}
        v_lshlrev_b32 v248, 7, v0
        v_min_u32 v249, 28, v0
        v_lshlrev_b32 v249, 7, v249""".split("\n")]
        n = self.c.bt
        out = [[('x', l) for l in pre]]
        if n == 1:
            out[0] += [('vm', f"buffer_load_dword v255, v248, {srd(SWS)}, s{sT0} offen sc1", 'pf')]
            out.append([('x', f"s_add_u32 s{sT0}, s{sT0}, 8192"), ('vm', f"buffer_load_dword v255, v249, {srd(SWS)}, s{sT0} offen sc1", 'pf')])
        else:
            out[0] += [('x', "v_min_u32 v249, 23, v0"), ('x', "v_lshlrev_b32 v249, 7, v249")]
            for i in range(4): out.append([('vm', f"buffer_load_dword v255, v249, {srd(SWS)}, s{sT0} offen offset:0 sc1", 'pf'), ('x', f"s_add_u32 s{sT0}, s{sT0}, 3072")])
        return out
    def btouch3_pre(self):
        return [('x', l.strip()) for l in f"""s_and_b32 s44, s{sRB}, 7
        s_lshl_b32 s44, s44, 2
        s_add_u32 s44, s44, s{sW}
        s_mul_i32 s44, s44, {93*128}
        s_mul_i32 s45, s{sNB}, {74*5120}
        s_add_u32 s44, s44, s45
        s_add_u32 s44, s44, {PB}
        v_min_u32 v250, {self.c.btl - 1}, v0
        v_lshlrev_b32 v250, 7, v250""".split("\n")]
    def btouch3(self, k, n):
        tot = -(-93 // self.c.btl); per = -(-tot // n)
        return [[('x', f"s_add_u32 s45, s44, {i*self.c.btl*128}"), ('vm', f"buffer_load_dword v255, v250, {srd(SWS)}, s45 offen sc1", 'pf')] for i in range(k * per, min(tot, (k + 1) * per))]
    def code_touch(self, endlab):
        Lp = self.lab('pc')
        return [('x', f"s_getpc_b64 s[30:31]\n{Lp}:"), ('x', f"s_bfe_u32 s{sT0}, s2, 0x40003"), ('x', f"s_lshl_b32 s{sT0}, s{sT0}, 2"), ('x', f"s_add_u32 s{sT0}, s{sT0}, s{sW}"),
                ('x', f"s_lshl_b32 s{sT0}, s{sT0}, 9"), ('x', "v_and_b32 v7, 3, v0"), ('x', f"v_lshl_add_u32 v7, v7, 7, s{sT0}"),
                ('x', f"v_cmp_gt_u32 vcc, {endlab}-{Lp}, v7"), ('x', "v_cndmask_b32 v7, 0, v7, vcc"), ('vm', "global_load_dword v255, v7, s[30:31]", 'pf')]
    def f1_issue(self):
        pre = [l.strip() for l in f"""s_mul_i32 s{sT0}, s{sNB}, 5
        s_add_u32 s{sT1}, s{sT0}, 4
        s_lshr_b32 s{sT0}, s{sT0}, 2
        s_mul_i32 s{sT0}, s{sT0}, 74
        s_lshr_b32 s{sT0}, s{sT0}, 2
        s_lshr_b32 s{sT1}, s{sT1}, 2
        s_mul_i32 s{sT1}, s{sT1}, 74
        s_add_u32 s{sT1}, s{sT1}, 73
        s_lshr_b32 s{sT1}, s{sT1}, 2
        v_add_u32 v235, s{sT0}, v0
        v_min_u32 v235, s{sT1}, v235
        v_lshlrev_b32 v235, 7, v235
        s_mov_b32 s{sT0}, {F1}""".split("\n")]
        return [[('x', l) for l in pre] + [('vm', self.poll_issue(235, 248, 2, None, f"s{sT0}"), 'f1p')]]
    def f1_check(self):
        return [('wvm', 'f1p')] + [('x', t) for t in self.poll_check([(235, 248, 2, f"s{sT0}")])]
    def tag_issue(self):
        e = self.e
        e(f"s_or_b32 s55, s2, s{sW}\ns_min_u32 s55, s55, 1\ns_mul_i32 s55, s55, {OOB}\ns_add_u32 s55, s55, {F1}\nv_lshlrev_b32 v200, 7, v0")
        for i in range(1, 4): e(f"v_add_u32 v{200+i}, {8192*i}, v200")
        self.tgl = [(200 + i, 248 + 2 * i, 2, "s55") for i in range(4)]
        for p in self.tgl: e.vmop(self.poll_issue(p[0], p[1], 2, None, p[3]), 'tg')
    def tag_update(self):
        e = self.e; L = self.lab('tg')
        e.wait(vm='tg')
        e(f"s_or_b32 s{sT0}, s2, s{sW}\ns_cbranch_scc1 {L}")
        for l in self.poll_check(self.tgl): e(l)
        e(self.flag_store(245, 246, str(TAG)))
        e(f"{L}:")

    def attn_voff(self, dst, cexpr_base, colbase_s):
        e = self.e
        e(f"""v_mul_u32_u24 v10, 6554, v9
        v_lshrrev_b32 v10, 16, v10
        v_mad_i32_i24 v11, v10, -10, v9""")
        self.swap23(10, 12)
        e(f"""v_mul_u32_u24 v10, 3840, v10
        v_lshl_add_u32 v10, v11, 4, v10
        v_add_u32 v{dst}, s{colbase_s}, v10""")
    def swap23(self, r, t):
        self.e(f"""v_lshrrev_b32 v{t}, 1, v{r}
        v_xor_b32 v{t}, v{t}, v{r}
        v_and_b32 v{t}, 4, v{t}
        v_mul_u32_u24 v{t}, 3, v{t}
        v_xor_b32 v{r}, v{r}, v{t}""")

    def small_dma(self, sr, vaddr, soff, ldsaddr, nlanes, tag, m0expr=None):
        e = self.e
        e(m0expr or f"s_mov_b32 m0, {ldsaddr}")
        if nlanes < 64: e(f"s_mov_b64 exec, {hex((1 << nlanes) - 1)}" if nlanes <= 32 else f"s_mov_b32 exec_hi, {hex((1 << (nlanes-32)) - 1)}")
        e.vmop(f"buffer_load_dwordx4 v{vaddr}, {srd(sr)}, {soff} offen lds", tag)
        if nlanes < 64: e("s_mov_b64 exec, -1")

    def csel(self, d, a, b):
        inl = lambda x: isinstance(x, str) or -16 <= x <= 64
        if inl(a) or inl(b): self.e(f"s_cselect_b32 s{d}, {a}, {b}")
        else: self.e(f"s_mov_b32 s{d}, {b}\ns_cselect_b32 s{d}, {a}, s{d}")

    def init_B(self):
        self.Bloc = {}; self.Bq = []
        order = [(i, t) for i in range(19) for t in range(5)]
        for u, k in enumerate(order):
            if u < 64: self.Bloc[k] = ('a', 4 * u)
            elif u < 64 + NL: self.Bloc[k] = ('l', u - 64)
            else: self.Bloc[k] = None
        self.Border = order; self.Bpend = list(range(64 + NL)); self.Bcur = None; self.Acur = None
    def koff(self, i):
        r0, r1, r2 = self.perm
        if i < 10: return 4 * ((i + r0) % 10)
        if i < 14: return 38 + 4 * ((i - 10 + r1) % 4)
        return 54 + 4 * ((i - 14 + r2) % 5)
    def soff(self, d, i, w):
        e_, o_, s8, s9, unit = (sB, sBo, sB8, sB9, 5120) if w == 'B' else (sA, sAo, sA8, sA9, 4096)
        if not self.c.par: return f"s_mov_b32 s{d}, s{s9}" if self.koff(i) == 36 else f"s_add_u32 s{d}, s{e_}, {self.koff(i)*unit}"
        if i in (8, 9): return f"s_mov_b32 s{d}, s{s8 if i == 8 else s9}"
        if i == 18: return f"s_add_u32 s{d}, s{e_}, s{o_}\ns_lshr_b32 s{d}, s{d}, 1\ns_add_u32 s{d}, s{d}, {self.koff(i)*unit}"
        idx = i if i < 10 else i - 10 if i < 14 else i - 14
        return f"s_add_u32 s{d}, s{e_ if idx & max(self.c.par, 1) == 0 else o_}, {self.koff(i)*unit}"
    def B_items(self, k, loc):
        i, t = k; it = []
        if self.Bcur != i:
            it.append(('x', self.soff(sBT, i, 'B'))); self.Bcur = i
        va, imm = (6, t * 1024) if t < 4 else (240, 0)
        if loc[0] == 'l':
            assert L_BL + loc[1]*1024 - imm >= 0
            it.append(('x', f"s_add_u32 m0, s88, {L_BL + loc[1]*1024 - imm}"))
            it.append(('vm', f"buffer_load_dwordx4 v{va}, {srd(SWS)}, s{sBT} offen offset:{imm} sc1 lds", ('B', k)))
        else:
            it.append(('vm', f"buffer_load_dwordx4 {R(loc)}, v{va}, {srd(SWS)}, s{sBT} offen offset:{imm} sc1", ('B', k)))
        return it
    def B_take(self, us):
        out = []
        for u in us:
            k = self.Border[u]; out.append(self.B_items(k, self.Bloc[k]))
            if self.c.xB == 1: out[-1] = [('x', 's_nop 0')]
            if self.c.xB == 2: out[-1] = [(it[0], it[1].replace(f"s{sBT} offen", "s43 offen"), it[2]) if it[0] == 'vm' else it for it in out[-1]]
            if self.c.xB == 3: out[-1] = [(it[0], it[1].replace(f"s{sBT} offen", f"s{sB} offen"), it[2]) if it[0] == 'vm' else it for it in out[-1]]
        return out
    def ph2_bg(self, u): pass
    def bg_try(self, allowed, S=None):
        e = self.e
        if e.t - e.tvm < (S or self.c.S): return False
        if allowed == self.ph2_bg: return self.try_issue(self.m, True, True)
        for u in self.Bpend:
            if allowed(u):
                self.Bpend.remove(u); self.emit_items(self.B_take([u])[0]); return True
        return False
    def emit_items(self, items):
        e = self.e
        for it in items:
            if it[0] == 'vm': e.vmop(it[1], it[2])
            elif it[0] == 'lg': e.lgop(it[1], it[2])
            elif it[0] == 'wvm': e.wait(vm=it[1])
            elif it[0] == 'wlg': e.wait(lg=it[1])
            elif it[0] == 'st': self.stamp(it[1], it[2])
            else: e(it[1])
    def valu(self, lines, side=None, every=1, bg=None, S=None):
        n = 0
        for l in lines:
            if isinstance(l, str): self.e(l)
            else: self.emit_items([l])
            n += 1
            if side and n % every == 0: self.emit_items(side.pop(0))
            if bg: self.bg_try(bg, S)

    def interleave(self, items, side, every):
        W = ('s_cmp', 's_add', 's_sub', 's_and', 's_andn2', 's_or', 's_xor', 's_lshl', 's_lshr', 's_bitcmp', 's_min', 's_max')
        Rd = ('s_cselect', 's_addc', 's_subb', 's_cbranch_scc')
        live = [False] * len(items); l = False
        for i in range(len(items) - 1, -1, -1):
            live[i] = l
            t = items[i][1]
            if t.startswith(Rd): l = True
            elif t.startswith(W): l = False
        n = 0
        for i, it in enumerate(items):
            self.emit_items([it]); n += 1
            if side and n >= every and not live[i]: self.emit_items(side.pop(0)); n = 0
        for g in side: self.emit_items(g)

    def gelu_lines(self, X, Y, T, O):
        U = [X, X + 2, Y, Y + 2]; L = []
        P = lambda r: f"v[{r}:{r+1}]"
        for i in range(4): L.append(f"v_pk_mul_f32 {P(T+2*i)}, {P(U[i])}, {P(U[i])}")
        for i in range(4): L.append(f"v_pk_fma_f32 {P(T+2*i)}, {P(T+2*i)}, v[14:15], s[{sC0}:{sC1}] op_sel_hi:[1,0,0]")
        for i in range(4): L.append(f"v_pk_mul_f32 {P(T+2*i)}, {P(T+2*i)}, {P(U[i])}")
        for i in range(8): L.append(f"v_exp_f32 v{T+i}, v{T+i}")
        for i in range(4): L.append(f"v_pk_add_f32 {P(T+2*i)}, {P(T+2*i)}, 1.0 op_sel_hi:[1,0]")
        for i in range(8): L.append(f"v_rcp_f32 v{T+i}, v{T+i}")
        for i in range(4): L.append(f"v_pk_mul_f32 {P(T+2*i)}, {P(T+2*i)}, {P(U[i])}")
        for i in range(4): L.append(f"v_cvt_pk_bf16_f32 v{O+i}, v{T+2*i}, v{T+2*i+1}")
        return L if not (self.c.skip & 1) else L[-8:]
    def gelu_consts(self):
        c1 = -2.0 * math.sqrt(2.0 / math.pi) * math.log2(math.e)
        self.e(f"s_mov_b32 s{sC0}, {fl(c1)}\nv_mov_b32 v14, {fl(c1 * 0.044715)}")
    def softmax_lines(self, Pp, E, PH):
        L = []; P = lambda r: f"v[{r}:{r+1}]"
        L += [f"v_max3_f32 v8, v{Pp}, v{Pp+1}, v{Pp+2}", f"v_min3_f32 v10, v{Pp}, v{Pp+1}, v{Pp+2}"]
        for i in range(3, 19, 2): L += [f"v_max3_f32 v8, v8, v{Pp+i}, v{Pp+i+1}", f"v_min3_f32 v10, v10, v{Pp+i}, v{Pp+i+1}"]
        L += [f"v_max_f32 v8, v8, v{Pp+19}", f"v_min_f32 v10, v10, v{Pp+19}"]
        L += [f"v_mul_f32_e64 v8, -v8, s{sC0}", f"v_mul_f32 v10, s{sC0}, v10"]
        for i in range(10):
            L.append(f"v_pk_fma_f32 {P(E+2*i)}, {P(Pp+2*i)}, s[{sC0}:{sC1}], v[8:9] op_sel_hi:[1,0,0]")
            L.append(f"v_pk_fma_f32 {P(E+20+2*i)}, {P(Pp+2*i)}, s[{sC0}:{sC1}], v[10:11] op_sel_hi:[1,0,0] neg_lo:[1,0,0] neg_hi:[1,0,0]")
        for i in range(40): L.append(f"v_exp_f32 v{E+i}, v{E+i}")
        L += [f"v_pk_add_f32 v[8:9], {P(E)}, {P(E+2)}", f"v_pk_add_f32 v[10:11], {P(E+20)}, {P(E+22)}"]
        for i in range(2, 10): L += [f"v_pk_add_f32 v[8:9], v[8:9], {P(E+2*i)}", f"v_pk_add_f32 v[10:11], v[10:11], {P(E+20+2*i)}"]
        L += ["v_add_f32 v8, v8, v9", "v_add_f32 v10, v10, v11", "v_rcp_f32 v8, v8", "v_rcp_f32 v10, v10"]
        for i in range(10): L.append(f"v_pk_mul_f32 {P(E+2*i)}, {P(E+2*i)}, v[8:9] op_sel_hi:[1,0]")
        for i in range(10): L.append(f"v_pk_mul_f32 {P(E+20+2*i)}, {P(E+20+2*i)}, v[10:11] op_sel_hi:[1,0]")
        for i in range(20): L.append(f"v_cvt_pk_bf16_f32 v{PH+i}, v{E+2*i}, v{E+2*i+1}")
        return L if not (self.c.skip & 2) else [l if 'cvt' in l else '' for l in L]
    def wphi_addr(self, va):
        self.e(f"v_mul_u32_u24 v{va}, 800, v2\nv_mad_u32_u24 v{va}, v3, 40, v{va}\nv_add_u32 v{va}, {L_WPHI}, v{va}")
    def wphi_reads(self, va):
        return [[('lg', f"ds_read_b64_tr_b16 a[{AW+2*(dg*5+fg)}:{AW+1+2*(dg*5+fg)}], v{va} offset:{dg*160 + fg*8}", 'wphi')] for dg in range(5) for fg in range(5)]
    def phi_mfmas(self, KQ, Pp):
        L = []
        for dg in range(5):
            for j in range(2):
                for fg in range(5):
                    d = Pp + 20 * j + 4 * fg; w = AW + 2 * (dg * 5 + fg); b = KQ + 10 * j + 2 * dg
                    L.append(f"v_mfma_f32_4x4x4_16b_bf16 {vr(d)}, a[{w}:{w+1}], v[{b}:{b+1}], {vr(d) if dg else 0}")
        return L
    def cvt_heads(self, acc0, dst, j, n=5):
        return [f"v_cvt_pk_bf16_f32 v{dst+2*t+h}, v{acc0+(t*2+j)*4+2*h}, v{acc0+(t*2+j)*4+2*h+1}" for t in range(n) for h in range(2)]
    def rho0(self, dst):
        self.e(f"v_lshrrev_b32 v{dst}, 1, v2\nv_lshl_add_u32 v{dst}, v{dst}, 4, v3\nv_and_b32 v7, 1, v2\nv_lshl_add_u32 v{dst}, v7, 2, v{dst}")
    def x_addr(self, ST, nsl=3, base=220):
        e = self.e
        e(f"""v_lshrrev_b32 v9, 1, v1
        v_xor_b32 v9, v9, v2
        v_lshlrev_b32 v9, 4, v9
        v_lshl_add_u32 v9, v1, 7, v9
        v_add_u32 v{base}, s{sM0}, v9
        v_xor_b32 v{base+1}, 64, v{base}""")
        for sl in range(1, nsl): e(f"v_add_u32 v{base+2*sl}, {sl*ST}, v{base}\nv_add_u32 v{base+1+2*sl}, {sl*ST}, v{base+1}")
    def paced(self, groups, m0, span):
        n = len(groups)
        return [dict(at=m0 + int((k + 0.2) * span / n), chain=1, ins=list(g)) for k, g in enumerate(groups)]
    def prog_QH(self):
        e = self.e; c = self.c; self.init_B(); self.perm = (0, 0, 0); self.dmap = {0: 3, 1: 5, 2: 7, 3: 9, 14: 11, 7: 13, 9: 15}
        e("L_QH:")
        ST = QH_ST
        e(f"""s_mul_i32 s{sKW}, s{sHG}, 320
        s_lshl_b32 s{sT0}, s{sHG}, 8
        s_add_u32 s{sT0}, s{sT0}, 384
        s_cmp_lt_u32 s{sHG}, 6
        s_cselect_b32 s{sKW}, s{sKW}, s{sT0}
        s_cselect_b32 s{sK1}, 20, 16
        s_mul_i32 s{sT2}, s{sW}, 320""")
        def dma_x(st):
            g = []
            for j in range(4):
                it = [('x', f"s_add_u32 m0, s{sM0}, {(st%3)*ST}")] if j == 0 else []
                g.append(it + [('vm', f"buffer_load_dwordx4 v{208+j}, {srd(SX)}, s{sE+st} offen offset:{j*1024} {c.xsc} lds", ('S', st))])
            return g
        def dma_a(st, i):
            it = []
            if i == 0: it = [('x', f"s_mul_i32 s{sKA}, s{sE+st}, 1920"), ('x', f"s_add_u32 m0, s{sM0+1}, {(st%3)*ST}")]
            if i == 2: it = [('x', f"s_mov_b32 m0, s{sM0+3+st%3}")]
            return it + [('vm', f"buffer_load_dwordx4 v{212+i}, {srd(SQ)}, s{sKA} offen offset:{1024 if i == 1 else 0} {c.wsc} lds", ('S', st))]
        def dma_h(st, i):
            it = []
            if i == 0: it = [('x', f"s_mul_i32 s{sKB}, s{sE+st}, 1728"), ('x', f"s_add_u32 m0, s{sM0+2}, {(st%3)*ST}")]
            if i == 4: it = [('x', "s_add_u32 m0, m0, 4096")]
            return it + [('vm', f"buffer_load_dwordx4 v{215+i}, {srd(S1)}, s{sKB} offen offset:{(i%4)*1024} {c.wsc} lds", ('S', st))]
        def dma_stage(st): return dma_x(st) + [dma_a(st, i) for i in range(3)] + [dma_h(st, i) for i in range(5)]
        if c.fast:
            self.kernarg_wait()
            if c.touch == 3: self.touch()
            if c.touch == 6:
                self.touch6_srd()
                if c.tpa == 0: self.emit_items(self.touch6(0))
            for g in dma_x(0): self.emit_items(g)
            if c.touch == 5: self.touch()
            self.small_dma(SM, 6, f"s{sKW}", None, 20, 'bias', f"s_add_u32 m0, s{sT2}, {L_BIASQH}")
        e(f"""s_mul_i32 s{sT0}, s{sW}, 3
        s_lshl_b32 s{sT1}, s{sW}, 1
        s_add_u32 s{sT1}, s{sT1}, 2
        s_cmp_lt_u32 s{sW}, 2
        s_cselect_b32 s{sT0}, s{sT0}, s{sT1}
        s_lshl_b32 s{sM0+1}, s{sT0}, 10
        s_add_u32 s{sM0+1}, s{sM0+1}, 16384""")
        for sl in range(3):
            e(f"s_add_u32 s{sM0+3+sl}, s{sM0+1}, {2048 + sl*ST}\ns_cmp_lt_u32 s{sW}, 2\ns_cselect_b32 s{sM0+3+sl}, s{sM0+3+sl}, {MISC+4608}")
        e(f"s_lshl_b32 s{sT0}, s{sT0}, 6\ns_mul_i32 s{sT1}, s{sHG}, 160\ns_mul_i32 s{sM0+2}, s{sW}, 5120\ns_add_u32 s{sM0+2}, s{sM0+2}, {16384+10240}")
        for i in range(3):
            e(f"v_add_u32 v9, {64*i}, v0\nv_add_u32 v9, s{sT0}, v9")
            self.attn_voff(212 + i, None, sT1)
            if i == 1: e("v_subrev_u32 v213, 1024, v213")
            if i == 2: e(f"s_cmp_lt_u32 s{sW}, 2\ns_cselect_b32 s{sT4}, 0, {OOB}\nv_add_u32 v214, s{sT4}, v214")
            if c.fast: self.emit_items(dma_a(0, i))
        if not c.fast:
            self.kernarg_wait()
            self.small_dma(SM, 6, f"s{sKW}", None, 20, 'bias', f"s_add_u32 m0, s{sT2}, {L_BIASQH}")
            for g in dma_x(0) + [dma_a(0, i) for i in range(3)]: self.emit_items(g)
        e(f"s_mul_i32 s{sT0}, s{sW}, 320\nv_mov_b32 v14, {OOB}")
        for i in range(5):
            e(f"""v_add_u32 v9, {64*i}, v0
            v_add_u32 v9, s{sT0}, v9
            v_mul_u32_u24 v10, 3277, v9
            v_lshrrev_b32 v10, 16, v10
            v_mul_u32_u24 v11, 20, v10
            v_sub_u32 v11, v9, v11
            v_bfe_u32 v13, v10, 2, 1
            v_lshlrev_b32 v13, 1, v13
            v_xor_b32 v11, v11, v13
            v_cmp_gt_u32 vcc, s{sK1}, v11""")
            self.swap23(10, 12)
            e(f"""v_mul_u32_u24 v10, 3456, v10
            v_lshl_add_u32 v10, v11, 4, v10
            v_add_u32 v10, s{sKW}, v10
            v_subrev_u32 v10, {(i%4)*1024}, v10
            v_cndmask_b32 v{215+i}, v14, v10, vcc""")
            self.emit_items(dma_h(0, i))
        self.pstamp(1)
        if c.pke:
            self.pack_setup()
            for g in self.pack_loads(): self.emit_items(g)
        if c.touch == 1: self.touch()
        if c.touch == 6 and c.tpa == 1: self.emit_items(self.touch6(0))
        if c.touch == 4:
            self.touch3_setup()
            for p_ in range(c.tp0): self.emit_items(self.touch3(p_))
        self.pstamp(2)
        def setup():
            e = self.e
            self.x_addr(ST); self.rho0(8)
            e(f"v_mul_u32_u24 v9, 160, v8\nv_mad_u32_u24 v9, v4, 40, v9\nv_add_u32 v226, 16384, v9")
            e(f"v_mul_u32_u24 v9, 320, v8\nv_lshl_add_u32 v9, v4, 3, v9\nv_add_u32 v9, {16384+10240}, v9\nv_lshl_add_u32 v229, v7, 5, v9\nv_xor_b32 v7, 1, v7\nv_lshl_add_u32 v232, v7, 5, v9")
            for sl in (1, 2): e(f"v_add_u32 v{226+sl}, {sl*ST}, v226\nv_add_u32 v{229+sl}, {sl*ST}, v229\nv_add_u32 v{232+sl}, {sl*ST}, v232")
            self.common_setup()
            if not c.pke: self.pack_setup()
            e(f"s_mul_i32 s{sT1}, s{sW}, 320\ns_add_u32 s{sT1}, s{sT1}, {L_BIASQH}\nv_lshl_add_u32 v13, v2, 3, s{sT1}")
            e(f"""s_lshl_b32 s{sT0}, s{sMT}, 1
            s_lshr_b32 s{sT1}, s{sW}, 1
            s_add_u32 s{sT0}, s{sT0}, s{sT1}
            s_and_b32 s{sT1}, s{sW}, 1
            s_mul_i32 s{sT2}, s{sT0}, 74
            s_lshl_b32 s{sT2}, s{sT2}, 12
            s_lshl_b32 s{sT3}, s{sT1}, 11
            s_add_u32 s{sT2}, s{sT2}, s{sT3}
            s_add_u32 s{sT2}, s{sT2}, {A2}
            s_lshr_b32 s{sT4}, s{sHG}, 1
            s_mul_i32 s{sT4}, s{sT4}, 5
            s_add_u32 s{sT4}, s{sT4}, 54
            s_lshl_b32 s{sT4}, s{sT4}, 12
            s_add_u32 s{sT4}, s{sT4}, s{sT2}
            s_and_b32 s{sT5}, s{sHG}, 1
            s_lshl_b32 s38, s{sT5}, 13
            s_add_u32 s38, s38, s{sT4}
            s_add_u32 s39, s{sT4}, {4*4096}
            s_lshl_b32 s{sT5}, s{sT5}, 3
            s_add_u32 s39, s39, s{sT5}
            s_lshl_b32 s{sT0}, s{sHG}, 4
            s_add_u32 s{sT0}, s{sT0}, s{sMT}
            s_lshl_b32 s{sT0}, s{sT0}, 2
            s_add_u32 s{sT0}, s{sT0}, s{sW}
            s_lshl_b32 s{sT0}, s{sT0}, 9
            s_add_u32 s43, s{sT0}, {GB}
            v_mov_b32 v204, -1
            v_mov_b32 v205, -1
            v_mov_b32 v206, -1
            v_mov_b32 v207, -1""")
        self.interleave(self.record(setup), dma_stage(1)[:c.n1], c.pe)
        self.pstamp(3)
        if c.n1 >= 12:
            self.small_dma(SM, 6, "s36", None, 50, 'misc', "s_mov_b32 m0, s37")
            if c.touch == 2: self.touch()
            if not c.pke and not c.pkl:
                for g in self.pack_loads(): self.emit_items(g)
        self.tag_wait(); self.pstamp(4)
        e.wait(vm='bias')
        for s_ in range(10): e.lgop(f"ds_read_b64 v[{136+2*s_}:{137+2*s_}], v13 offset:{s_*32}", ('b', s_))
        for s_ in range(10):
            a0 = 16 + (5 + s_) * 8; e.wait(lg=('b', s_))
            for h in range(2): e(f"v_lshlrev_b32 v{a0+2*h}, 16, v{136+2*s_+h}\nv_and_b32 v{a0+2*h+1}, 0xffff0000, v{136+2*s_+h}")
        self.stamp(0)
        NS = 15; nm = NS * 4; mf = []; reads = []; mfl = []; readsl = []; gs = [0, 0]
        for st in range(10):
            sl = st % 3; seen = set()
            for t in range(NS):
                lt = int(st >= 10 - c.dfq and t < 5); M, RD_ = (mf, mfl)[lt], (reads, readsl)[lt]; stg = -1 if lt else st
                wr = 168 + 8 * (gs[lt] % 4); gs[lt] += 1; m0 = len(M)
                for ks in range(2):
                    for rd in range(2):
                        if t < 5: ad, off = 226 + sl, ks * 5120 + rd * 1280 + t * 8
                        else: ad, off = (229 if (t - 5) % 2 == 0 else 232) + sl, ks * 10240 + rd * 2560 + ((t - 5) >> 1) * 64
                        RD_.append([f"ds_read_b64_tr_b16 v[{wr+4*ks+2*rd}:{wr+4*ks+2*rd+1}], v{ad} offset:{off}", m0, stg, m0 - 13])
                for j in ((1, 0) if st == 0 else (0, 1)):
                    for ks in range(2):
                        xr = 136 + (st % 2) * 16 + (j * 2 + ks) * 4; d = 16 + (t * 2 + j) * 4
                        if (lt, j, ks) not in seen:
                            seen.add((lt, j, ks)); RD_.append([f"ds_read_b128 {vr(xr)}, v{220+2*sl+ks} offset:{j*2048}", len(M), stg, (len(M) // 20) * 20 - 21 if lt else -1])
                        cc = vr(d)
                        if st == 0 and ks == 0: cc = "0" if t < 5 else vr(16 + t * 8)
                        M.append(f"v_mfma_f32_16x16x32_bf16 {vr(d)}, {vr(wr+4*ks)}, {vr(xr)}, {cc}")
        po = lambda va, off: [('vm', f"buffer_store_dwordx4 v[204:207], v{va}, {srd(SWS)}, s38 offen offset:{off} sc1", 'hst')]
        poison = [po(6, 0), po(6, 1024), po(240, 0), po(240, 1024)] + [[('vm', f"buffer_store_dwordx2 v[204:205], v6, {srd(SWS)}, s39 offen offset:{j*1024} sc1", 'hst')] for j in range(2)]
        self.ulim = 51
        self.kloop(mf, reads, nm, dma_stage, poison, 'QH')
        A51 = lambda u: u < 51; A64 = lambda u: u < 64; ALL = lambda u: True
        self.gelu_consts()
        e(f"s_lshl_b32 s{sT3}, s{sKW}, 6\ns_add_u32 s{sT3}, s{sT3}, s{sT2}")
        L = []
        for p in range(5):
            for j in range(2):
                O = 152 + 4 * ((2 * p + j) % 4)
                L += self.gelu_lines(16 + ((5 + 2 * p) * 2 + j) * 4, 16 + ((6 + 2 * p) * 2 + j) * 4, 136 + 8 * j, O)
                if j == 0:
                    if p == 4: L += [f"s_add_u32 s{sT4}, s{sT3}, {4*4096}", f"s_cmp_lt_u32 s{sHG}, 6\ns_cselect_b32 s{sT4}, s{sT4}, {OOB}"]
                    else: L.append(f"s_add_u32 s{sT4}, s{sT3}, {p*4096}")
                L.append(('vm', f"buffer_store_dwordx4 {vr(O)}, v6, {srd(SWS)}, s{sT4} offen offset:{j*1024} sc1", 'hst'))
        self.valu(L, bg=A51, S=c.Sg)
        if mfl: self.stream(mfl, readsl, [], None, name='QHlate', bg=lambda m: A51)
        e(f"""s_lshl_b32 s{sT4}, s{sMT}, 4
        s_add_u32 s{sT4}, s{sT4}, s{sHG}
        s_lshl_b32 s{sT4}, s{sT4}, 7
        s_add_u32 s{sT4}, s{sT4}, {F4}
        s_cmp_eq_u32 s{sW}, 0
        s_cselect_b32 s{sT5}, s{sT4}, {OOB}
        s_mov_b32 s{sC0}, {fl(math.log2(math.e))}""")
        def pub():
            e.wait(vm='hst'); e("s_barrier")
            e.vmop(self.flag_store(245, 246, f"s{sT5}"), 'f4st')
        if c.f4at < 0: pub(); A51 = lambda u: u < 51 or u >= 64
        self.b2_loads()
        self.valu(self.cvt_heads(16, 56, 0) + self.cvt_heads(16, 66, 1), bg=A51)
        self.stamp(2)
        if c.stamps: e(f"s_mov_b32 s{sC0}, {fl(math.log2(math.e))}")
        e.wait(lg='wphi')
        self.valu(self.phi_mfmas(56, 76), bg=A51)
        L1 = self.softmax_lines(76, 16, 116)
        if c.f4at >= 0:
            self.valu(L1[:c.f4at], bg=A64); pub()
        self.valu(L1[max(c.f4at, 0):], bg=ALL)
        L2 = self.softmax_lines(96, 16, 136)
        self.valu(L2[:c.pa], bg=ALL)
        self.poll4a_issue()
        self.valu(L2[c.pa:c.pb], bg=ALL)
        pool = [[('v', r), c.mo + 1 if r < 204 else c.p3 if r < 220 else 999] for r in list(range(204, 224, 4)) + list(range(168, 204, 4))]
        while len(self.Bpend) > c.qleft: self.bg_try(ALL, -9999)
        self.ph2_begin(pool)
        if c.stamps == 3: e(f"s_mov_b32 s{sC0}, {fl(math.log2(math.e))}")
        self.valu(L2[c.pb:], bg=ALL)
        self.stamp(3)
        pool += [[('v', r), c.mo + 1] for r in range(156, 168, 4)]
        FO = (0, 1024, 2048, 2816)
        finld = [f"buffer_load_dwordx4 {vr(204+4*i)}, v6, {srd(SWS)}, s{sKW} offen offset:{FO[i]} sc1" for i in range(4)]
        finld += [f"buffer_load_dwordx4 {vr(248+4*j)}, v13, {srd(SWS)}, s43 offen offset:{j*256} sc1" for j in range(2)]
        def h_p3():
            e(f"""s_mul_i32 s{sKW}, s{sHG}, {FSZ}
            s_mul_i32 s{sK1}, s{sW}, 3840
            s_add_u32 s{sKW}, s{sKW}, s{sK1}
            s_add_u32 s{sKW}, s{sKW}, {FIN}
            v_lshlrev_b32 v13, 4, v1""")
            for l in finld: e.vmop(l, 'fin')
        def h_c3():
            it = [('st', 4, 1)] + [('x', l) for l in f"s_lshr_b32 s{sK1}, s{sK1}, 1\ns_add_u32 s{sK1}, s{sK1}, {L_FIN}\nv_lshl_add_u32 v9, v0, 3, s{sK1}".split("\n")] + [('wvm', 'fin')]
            it += [('x', l) for l in self.tag_check(finld, list(range(204, 220)) + list(range(248, 256)), 8)] + [('st', 5, 1)]
            it += [('x', self.tag_strip(r)) for r in list(range(204, 220)) + [248, 252]] + [('x', "v_mov_b32 v250, v248"), ('x', "v_mov_b32 v251, v252")]
            for i in range(4):
                it += [('x', f"v_cvt_pk_bf16_f32 v{204+4*i}, v{204+4*i}, v{205+4*i}"), ('x', f"v_cvt_pk_bf16_f32 v{205+4*i}, v{206+4*i}, v{207+4*i}"),
                       ('lg', f"ds_write_b64 v9, v[{204+4*i}:{205+4*i}] offset:{FO[i]//2}", 'fw')]
            it += [('x', l) for l in f"v_lshlrev_b32 v13, 6, v2\nv_lshl_add_u32 v13, v4, 4, v13\nv_add_u32 v13, {L_FIN}, v13".split("\n")]
            self.aq[:0] = [[self.m, c.mo - 3, x] for x in it]
        def h_o():
            if c.p1q < 0: self.poll4b_issue()
            fr = [p for p in pool if p[0][0] == 'a'][:8]; assert len(fr) == 8; self.busy = fr
            e.wait(lg='fw'); e("s_barrier")
            self.stamp(6)
            mf = []; reads = []
            for fp in range(5):
                for dg in range(6):
                    n = fp * 6 + dg; f0 = fr[n % 8][0][1]; base = (n // 2) * 8
                    reads.append([f"ds_read_b128 {ar(f0)}, v13 offset:{(dg*5+fp)*256}", base + 2 * (n % 2), -1, base - 24])
                    for h in range(2):
                        for j in range(2):
                            d = 156 + 24 * j + 4 * dg; b = 116 + 20 * j + 2 * (2 * fp + h)
                            mf.append(f"v_mfma_f32_4x4x4_16b_bf16 {vr(d)}, a[{f0+2*h}:{f0+2*h+1}], v[{b}:{b+1}], {vr(d) if (fp or h) else 0}")
            mf2 = []
            for n in range(0, 30, 2):
                a_, b_ = mf[4*n:4*n+4], mf[4*n+4:4*n+8]
                mf2 += [a_[0], a_[1], b_[0], b_[1], a_[2], a_[3], b_[2], b_[3]]
            if c.skip & 4: mf2 = mf2[:8]; reads = reads[:2]
            self.stream(mf2, reads, [], None, LA=20, bg=lambda m: self.ph2_bg)
            for j in range(2): e(f"v_add_f32 v{8+2*j}, {fl(1e-6)}, v{156+24*j+20}")
            for j in range(2): e(f"v_rcp_f32 v{8+2*j}, v{8+2*j}")
            for j in range(2): e(f"v_mul_f32 v{8+2*j}, v{8+2*j}, v{250+j}")
            for j in range(2):
                D = 156 + 24 * j
                for i in range(10): e(f"v_pk_mul_f32 v[{D+2*i}:{D+2*i+1}], v[{D+2*i}:{D+2*i+1}], v[{8+2*j}:{9+2*j}] op_sel_hi:[1,0]")
                for i in range(10): e(f"v_cvt_pk_bf16_f32 v{D+i}, v{D+2*i}, v{D+2*i+1}")
                for i in range(10): e(f"v_min_u32 v{D+i}, -2, v{D+i}")
                e.vmop(f"buffer_store_dwordx4 {vr(D)}, v6, {srd(SWS)}, s38 offen offset:{j*1024} sc1", 'ost')
                e.vmop(f"buffer_store_dwordx4 {vr(D+4)}, v240, {srd(SWS)}, s38 offen offset:{j*1024} sc1", 'ost')
                e.vmop(f"buffer_store_dwordx2 {vr(D+8, 2)}, v6, {srd(SWS)}, s39 offen offset:{j*1024} sc1", 'ost')
            self.busy = []
            for p in pool: p[1] = 999
            pool.extend([[('v', r), 999] for r in range(116, 156, 4)])
            self.stamp(14)
        self.bias2()
        self.phase2({c.p3: h_p3, c.c3: h_c3, c.mo: h_o, c.p1q: self.poll4b_issue, c.c1q: self.poll4b_check})

    def prog_KV(self):
        e = self.e; c = self.c; self.init_B(); self.perm = c.perm or (0, 0, 0); self.dmap = {0: 2, 1: 4, 3: 6, 4: 8, 5: 10, 7: 12, 9: 14}
        ST = KV_ST
        e(f"""s_mul_i32 s{sM0+1}, s{sW}, 5120
        s_add_u32 s{sM0+1}, s{sM0+1}, 16384
        s_lshl_b32 s{sM0+2}, s{sW}, 11
        s_add_u32 s{sM0+2}, s{sM0+2}, 36864
        s_lshl_b32 s{sKW}, s{sHG}, 7
        s_add_u32 s{sKW}, s{sKW}, {19*128}""")
        def dma_x(st):
            g = []
            for j in range(4):
                it = [('x', f"s_add_u32 m0, s{sM0}, {(st%3)*ST}")] if j == 0 else []
                g.append(it + [('vm', f"buffer_load_dwordx4 v{208+j}, {srd(SX)}, s{sE+st} offen offset:{j*1024} {c.xsc} lds", ('S', st))])
            return g
        def dma_w(st, i):
            it = []
            if i == 0: it = [('x', f"s_mul_i32 s{sKA}, s{sE+st}, 1920"), ('x', f"s_add_u32 m0, s{sM0+1}, {(st%3)*ST}")]
            if i == 4: it = [('x', "s_add_u32 m0, m0, 4096")]
            return it + [('vm', f"buffer_load_dwordx4 v{212+i}, {srd(SQ)}, s{sKA} offen offset:{(i%4)*1024} {c.wsc} lds", ('S', st))]
        def dma_h(st, i):
            it = [('x', f"s_mul_i32 s{sKB}, s{sE+st}, 1728"), ('x', f"s_add_u32 m0, s{sM0+2}, {(st%3)*ST}")] if i == 0 else []
            return it + [('vm', f"buffer_load_dwordx4 v{217+i}, {srd(S1)}, s{sKB} offen offset:{i*1024} {c.wsc} lds", ('S', st))]
        def dma_stage(st): return dma_x(st) + [dma_w(st, i) for i in range(5)] + [dma_h(st, i) for i in range(2)]
        if c.fast:
            self.kernarg_wait()
            if c.touch == 3: self.touch()
            if c.touch == 6:
                self.touch6_srd()
                if c.tpa == 0: self.emit_items(self.touch6(0))
            for g in dma_x(0): self.emit_items(g)
            if c.touch == 5: self.touch()
            self.small_dma(SM, 6, f"s{sKW}", L_BIASKV, 8, 'bias')
        e(f"""s_and_b32 s{sT0}, s{sW}, 1
        s_mul_i32 s{sT0}, s{sT0}, 320
        s_lshr_b32 s{sT1}, s{sW}, 1
        s_add_u32 s{sT1}, s{sT1}, 1
        s_mul_i32 s{sT1}, s{sT1}, 1280
        s_mul_i32 s{sT3}, s{sHG}, 160
        s_add_u32 s{sT1}, s{sT1}, s{sT3}""")
        for i in range(5):
            e(f"v_add_u32 v9, {64*i}, v0\nv_add_u32 v9, s{sT0}, v9")
            self.attn_voff(212 + i, None, sT1)
            if i % 4: e(f"v_subrev_u32 v{212+i}, {(i%4)*1024}, v{212+i}")
            if c.fast: self.emit_items(dma_w(0, i))
        if not c.fast:
            self.kernarg_wait()
            self.small_dma(SM, 6, f"s{sKW}", L_BIASKV, 8, 'bias')
            for g in dma_x(0) + [dma_w(0, i) for i in range(5)]: self.emit_items(g)
        e(f"s_lshl_b32 s{sT3}, s{sW}, 4\nv_lshlrev_b32 v11, 1, v2\nv_xor_b32 v11, v11, v0\nv_and_b32 v11, 7, v11")
        for pp in range(2):
            e(f"v_add_u32 v10, {8*pp}, v5\nv_add_u32 v10, s{sT3}, v10")
            self.swap23(10, 12)
            e(f"""v_mul_u32_u24 v10, 3456, v10
            v_lshl_add_u32 v10, v11, 4, v10
            v_add_u32 v10, s{sKW}, v10
            v_subrev_u32 v{217+pp}, {pp*1024}, v10""")
            self.emit_items(dma_h(0, pp))
        mk_srd(e, SM, pGATE, 1280)
        if c.rot == 4: e(f"v_xor_b32 v9, s{sE}, v6\ns_and_b32 s{sT3}, s{sE}, 128\nv_xor_b32 v11, s{sT3}, v6\nv_add_u32 v11, 1024, v11")
        elif c.rot == 3: e(f"v_xor_b32 v9, s{sE}, v6\nv_add_u32 v11, 1024, v9")
        else: e(f"v_add_u32 v9, s{sE}, v6\nv_subrev_u32 v10, 1280, v9\nv_min_u32 v9, v9, v10\nv_add_u32 v11, 1024, v9\nv_subrev_u32 v10, 1280, v11\nv_min_u32 v11, v11, v10")
        self.small_dma(SM, 9, "0", L_GATE, 64, ('S', 0)); self.small_dma(SM, 11, "0", L_GATE + 1024, 16, ('S', 0))
        self.pstamp(1)
        if c.pke:
            self.pack_setup()
            for g in self.pack_loads(): self.emit_items(g)
        if c.touch == 1: self.touch()
        if c.touch == 6 and c.tpa == 1: self.emit_items(self.touch6(0))
        if c.touch == 4:
            self.touch3_setup()
            for p_ in range(c.tp0): self.emit_items(self.touch3(p_))
        self.pstamp(2)
        def setup():
            e = self.e
            self.x_addr(ST); self.rho0(8)
            e(f"v_mul_u32_u24 v9, 160, v8\nv_mad_u32_u24 v9, v4, 40, v9\nv_add_u32 v226, 16384, v9")
            for sl in (1, 2): e(f"v_add_u32 v{226+sl}, {sl*ST}, v226")
            e(f"v_lshlrev_b32 v9, 7, v8\nv_lshl_add_u32 v9, v4, 3, v9\nv_add_u32 v9, 36864, v9\nv_bfe_u32 v10, v8, 1, 2")
            for t in range(4): e(f"v_xor_b32 v11, {t}, v10\nv_lshl_add_u32 v{229+t}, v11, 5, v9\nv_add_u32 v{204+t}, {2*ST}, v{229+t}")
            e(f"v_lshlrev_b32 v233, 4, v2\nv_add_u32 v233, {L_GATE}, v233\nv_lshlrev_b32 v253, 3, v2\nv_add_u32 v253, {L_BIASKV}, v253")
            self.common_setup()
            if not c.pke: self.pack_setup()
            e(f"""v_lshrrev_b32 v8, 2, v1
            v_mul_u32_u24 v8, 2560, v8
            v_lshl_add_u32 v8, v4, 5, v8
            v_lshrrev_b32 v9, 1, v2
            v_lshl_add_u32 v8, v9, 9, v8
            v_and_b32 v9, 1, v2
            v_lshl_add_u32 v8, v9, 4, v8
            s_lshl_b32 s{sT0}, s{sW}, 7
            v_add_u32 v241, s{sT0}, v8
            v_add_u32 v243, 10240, v241
            v_mov_b32 v9, {OOB}
            v_cmp_ge_u32 vcc, 7, v1
            v_cndmask_b32 v243, v9, v243, vcc
            v_cmp_gt_u32 vcc, 2, v2
            v_cndmask_b32 v242, v9, v241, vcc
            v_cndmask_b32 v244, v9, v243, vcc
            v_mul_u32_u24 v12, {PSZ}, v2
            v_min_u32 v10, 14, v1
            v_lshl_add_u32 v12, v10, 4, v12
            v_lshlrev_b32 v13, 4, v1
            v_cmp_gt_u32 vcc, 16, v0
            v_cndmask_b32 v234, v9, v13, vcc
            v_cmp_gt_u32 vcc, 15, v0
            v_cndmask_b32 v13, v9, v13, vcc""")
        self.interleave(self.record(setup), dma_stage(1)[:c.n1], c.pe2)
        self.pstamp(3)
        if c.n1 >= 12:
            self.small_dma(SM, 6, "s36", None, 50, 'misc', "s_mov_b32 m0, s37")
            if c.touch == 2: self.touch()
            if not c.pke and not c.pkl:
                for g in self.pack_loads(): self.emit_items(g)
        self.tag_wait(); self.pstamp(4)
        e.wait(vm='bias')
        for s_ in range(4): e.lgop(f"ds_read_b64 v[{136+2*s_}:{137+2*s_}], v253 offset:{s_*32}", ('b', s_))
        for s_ in range(4):
            e.wait(lg=('b', s_))
            for h in range(2): e(f"v_lshlrev_b32 v{96+8*s_+2*h}, 16, v{136+2*s_+h}\nv_and_b32 v{97+8*s_+2*h}, 0xffff0000, v{136+2*s_+h}")
        self.stamp(0)
        NS = 15; nm = NS * 4; mf = []; reads = []; late = []; gs = 0
        S0 = 10 - c.dfr; AD = AW - 56 * c.dfr
        for st in range(10):
            sl = st % 3; mst = len(mf)
            for t in range(NS):
                dfr = st >= S0 and t >= 10
                wr = (('a', AD + (st - S0) * 56 + 16 + (t - 10) * 8) if dfr else ('v', 168 + 8 * (gs % 4))); m0 = len(mf)
                dl, ea = (mst + 6 + 6 * (t - 10), -1) if dfr else (m0, m0 - 13)
                RR = lambda o, n: R((wr[0], wr[1] + o), n)
                for ks in range(2):
                    if t == 14: reads.append([f"ds_read_b128 {RR(4*ks, 4)}, v233 offset:{(st*2+ks)*64}", dl, st, ea]); continue
                    for rd in range(2):
                        if t < 10: ad, off = 226 + sl, (t // 5) * 10240 + ks * 5120 + rd * 1280 + (t % 5) * 8
                        else: ad, off = (229 if sl < 2 else 204) + t - 10, (sl % 2) * ST + ks * 4096 + rd * 1024
                        reads.append([f"ds_read_b64_tr_b16 {RR(4*ks+2*rd, 2)}, v{ad} offset:{off}", dl, st, ea])
                for j in ((1, 0) if st == 0 else (0, 1)):
                    for ks in range(2):
                        xr = ('a', AD + (st - S0) * 56 + (j * 2 + ks) * 4) if st >= S0 else ('v', 136 + (st % 2) * 16 + (j * 2 + ks) * 4)
                        d = 16 + (t * 2 + j) * 4
                        if t == 0: reads.append([f"ds_read_b128 {R(xr)}, v{220+2*sl+ks} offset:{j*2048}", len(mf), st, -1])
                        cc = vr(d)
                        if st == 0 and ks == 0: cc = vr(16 + t * 8) if 10 <= t < 14 else "0"
                        (late if dfr else mf).append(f"v_mfma_f32_16x16x32_bf16 {vr(d)}, {RR(4*ks, 4)}, {R(xr)}, {cc}")
                if not dfr: gs += 1
        self.ulim = AD // 4
        self.kloop(mf, reads, nm, dma_stage, [], 'KV')
        e.wait(lg_all=True)
        A64 = lambda u: u < 64; ALL = lambda u: True
        A51 = lambda u: u < 51; Sa = c.Sa
        ALL0 = ALL; ALL = lambda u: u < self.ulim or u >= 51
        KQ = 136; PR = 168; VT = 156
        nl2e = fl(-math.log2(math.e))
        side = [l.strip() for l in f"""v_mul_f32 v128, {nl2e}, v128
        v_mul_f32 v132, {nl2e}, v132
        v_exp_f32 v128, v128
        v_exp_f32 v132, v132
        s_lshl_b32 s{sT2}, s{sMT}, 2
        v_add_f32 v128, 1.0, v128
        v_add_f32 v132, 1.0, v132
        v_rcp_f32 v128, v128
        v_rcp_f32 v132, v132
        s_add_u32 s{sT2}, s{sT2}, s{sW}
        s_lshl_b32 s{sT3}, s{sT2}, 9
        s_lshl_b32 s{sT4}, s{sHG}, 15
        s_add_u32 s{sT3}, s{sT3}, s{sT4}
        s_add_u32 s{sT3}, s{sT3}, {GB}
        v_mul_u32_u24 v220, {RSV}, v1
        v_mad_u32_u24 v220, v2, 48, v220
        s_mul_i32 s{sT0}, s{sW}, {32*RSV}
        s_add_u32 s{sT0}, s{sT0}, {L_V}
        v_add_u32 v220, s{sT0}, v220
        v_mul_u32_u24 v221, {RSP}, v1
        s_mov_b32 s{sT0}, 80
        v_mad_u32_u24 v221, v2, s{sT0}, v221
        s_mul_i32 s{sT0}, s{sW}, {32*RSP}
        v_add_u32 v221, s{sT0}, v221
        v_lshl_add_u32 v8, v2, 2, v3
        v_mul_u32_u24 v222, {RSP}, v8
        v_lshl_add_u32 v222, v4, 3, v222
        s_mul_i32 s{sT0}, s{sW}, 80
        v_add_u32 v222, s{sT0}, v222
        v_mul_u32_u24 v223, {RSV}, v8
        v_lshl_add_u32 v223, v4, 3, v223
        s_mul_i32 s{sT0}, s{sW}, 48
        s_add_u32 s{sT0}, s{sT0}, {L_V}
        v_add_u32 v223, s{sT0}, v223
        s_lshl_b32 s{sT0}, s{sHG}, 4
        s_add_u32 s{sT0}, s{sT0}, s{sMT}
        s_mul_i32 s{sT1}, s{sT0}, {PSZ}
        s_add_u32 s{sT1}, s{sT1}, {PP}
        s_mov_b32 s{sC0}, {fl(math.log2(math.e))}""".split("\n")]
        self.b2_loads(); self.tag_update()
        self.valu(self.cvt_heads(16, KQ, 0) + self.cvt_heads(16, KQ + 10, 1))
        e.wait(lg='wphi')
        gate = side[:14]; side = self.cvt_heads(56, VT, 0) + side[14:38]
        self.valu(self.phi_mfmas(KQ, PR), [[('x', l)] for l in side], 1)
        e(f"v_mov_b32 v{VT+10}, 0x3f80\nv_mov_b32 v{VT+11}, 0\ns_mov_b32 s{sC0}, {fl(math.log2(math.e))}\ns_barrier")
        for i in range(3): e.lgop(f"ds_write_b128 v220, {vr(VT+4*i)} offset:{i*16}", 'vw')
        L0 = self.softmax_lines(PR, 16, 136)
        self.valu(L0[:16], bg=ALL, S=Sa)
        self.valu(self.cvt_heads(56, 208, 1) + ["v_mov_b32 v218, 0x3f80", "v_mov_b32 v219, 0"], bg=ALL, S=Sa)
        for i in range(3): e.lgop(f"ds_write_b128 v220, {vr(208+4*i)} offset:{16*RSV + i*16}", 'vw')
        self.valu(L0[16:], bg=ALL, S=Sa)
        PH = (136, 56)
        pw = lambda j: [[('lg', f"ds_write_b128 v221, {vr(PH[j]+4*i)} offset:{j*16*RSP + i*16}", 'pw')] for i in range(5)]
        L1 = self.softmax_lines(PR + 20, 16, 56)
        self.valu(L1[:40], pw(0), 8, ALL, Sa)
        self.valu(L1[40:-20], bg=ALL, S=Sa)
        self.valu(L1[-20:], pw(1), 4)
        e.wait(lg_all=True); e("s_barrier")
        self.stamp(2)
        mf = []; reads = []; D0 = 168
        for s_ in range(4):
            b0 = 16 + s_ * 20; m0 = len(mf)
            for dt in range(2):
                for rd in range(2): reads.append([f"ds_read_b64_tr_b16 v[{b0+12+4*dt+2*rd}:{b0+13+4*dt+2*rd}], v223 offset:{(32*s_+16*rd)*RSV + dt*32}", m0 + dt, -1, -1])
            for ft in range(3):
                for rd in range(2): reads.append([f"ds_read_b64_tr_b16 v[{b0+4*ft+2*rd}:{b0+4*ft+2*rd+1}], v222 offset:{(32*s_+16*rd)*RSP + ft*32}", m0 + 2 * ft, -1, -1])
                for dt in range(2):
                    d = D0 + (ft * 2 + dt) * 4
                    mf.append(f"v_mfma_f32_16x16x32_bf16 {vr(d)}, {vr(b0+4*ft)}, {vr(b0+12+4*dt)}, {vr(d) if s_ else 0}")
        reads.sort(key=lambda r: r[1]); rp = 0
        for m in range(24):
            while rp < 40 and (len(e.lg) < 14 and (m == 0 or reads[rp][1] <= m + 8) or reads[rp][1] <= m): e.lgop(reads[rp][0], ('kv', reads[rp][1])); rp += 1
            e.wait(lg=[('kv', k) for k in range(m + 1)])
            e(mf[m])
            if c.kvb: self.bg_try(ALL, c.kvb)
        e("s_nop 4")
        for ft in range(3):
            for dt in range(2):
                for i in range(4): e(self.tag_put(D0 + (ft * 2 + dt) * 4 + i))
                e.vmop(f"buffer_store_dwordx4 {vr(D0+(ft*2+dt)*4)}, v{241+2*dt+(ft==2)}, {srd(SWS)}, s{sT1} offen offset:{ft*1024} sc1", 'pst')
        self.stamp(3)
        sc = [l.strip() for l in f"""s_lshl_b32 s{sT2}, s{sMT}, 2
        s_add_u32 s{sT2}, s{sT2}, s{sW}
        s_lshl_b32 s{sT4}, s{sMT}, 1
        s_lshr_b32 s{sT5}, s{sW}, 1
        s_add_u32 s{sT4}, s{sT4}, s{sT5}
        s_and_b32 s{sT5}, s{sW}, 1
        s_mul_i32 s{sT0}, s{sT4}, 74
        s_lshl_b32 s{sKW}, s{sHG}, 1
        s_add_u32 s{sT0}, s{sT0}, s{sKW}
        s_add_u32 s{sT0}, s{sT0}, 38
        s_lshl_b32 s{sT0}, s{sT0}, 12
        s_lshl_b32 s{sT5}, s{sT5}, 11
        s_add_u32 s{sT0}, s{sT0}, s{sT5}
        s_add_u32 s{sT0}, s{sT0}, {A2}
        s_lshl_b32 s{sKW}, s{sMT}, 4
        s_add_u32 s{sKW}, s{sKW}, s{sHG}
        s_lshl_b32 s{sKW}, s{sKW}, 7
        s_add_u32 s{sKW}, s{sKW}, {F4+1024}
        s_mul_i32 s32, s{sT2}, 240
        s_mul_i32 s{sT4}, s{sHG}, {FSZ}
        s_add_u32 s{sT1}, s32, s{sT4}
        s_add_u32 s{sT1}, s{sT1}, {FIN}
        s_lshl_b32 s{sT4}, s{sT4}, 4
        s_add_u32 s32, s32, s{sT4}
        s_add_u32 s32, s32, {PP}
        s_add_u32 s33, s32, {4*PSZ}
        s_add_u32 s34, s33, {4*PSZ}
        s_add_u32 s35, s34, {4*PSZ}""".split("\n")] + [f"s_cmp_eq_u32 s{sW}, 0\ns_cselect_b32 s{sKW}, s{sKW}, {OOB}"]
        sd = [[('x', l)] for l in sc]
        self.valu(late, sd, 1, ALL if c.kvb else None, c.kvb)
        for g in sd: self.emit_items(g)
        ALL = ALL0
        for l in gate: e(l)
        for j in range(2):
            for i in (3, 2, 1, 0): e(self.tag_put(128 + 4 * j + i, 128 + 4 * j))
            e.vmop(f"buffer_store_dwordx4 {vr(128+4*j)}, v234, {srd(SWS)}, s{sT3} offen offset:{j*256} sc1", 'hst')
        self.gelu_consts()
        L = []; hs = []
        for p in range(2):
            for j in range(2):
                O = 152 + 4 * ((2 * p + j) % 4)
                L += self.gelu_lines(96 + (4 * p + j) * 4, 96 + (4 * p + 2 + j) * 4, 136 + 8 * j, O)
                hs.append(('vm', f"buffer_store_dwordx4 {vr(O)}, v{6 if p == 0 else 240}, {srd(SWS)}, s{sT0} offen offset:{j*1024} sc1", 'hst'))
        RD = 16
        pld = [f"buffer_load_dwordx4 {vr(RD+4*i)}, v12, {srd(SWS)}, s{32+i} offen sc1" for i in range(4)]
        self.valu(L[:c.kpl], bg=ALL if c.kgb else None, S=Sa)
        for l in pld: e.vmop(l, 'pld')
        if c.kp4 == 0: self.poll4a_issue()
        self.valu(L[c.kpl:], bg=ALL if c.kgb else None, S=Sa)
        if c.khs == 0: self.emit_items(hs)
        pool = [[('v', r), 999] for r in list(range(168, 224, 4)) + list(range(116, 152, 4))]
        for _ in range(c.kb2): self.bg_try(ALL, -9999)
        self.stamp(4)
        def h_r2():
            red = [self.tag_strip(RD + i) for i in range(16)]
            red += [f"v_add_f32 v{RD+i}, v{RD+i}, v{RD+4+i}" for i in range(4)] + [f"v_add_f32 v{RD+8+i}, v{RD+8+i}, v{RD+12+i}" for i in range(4)] + [f"v_add_f32 v{RD+i}, v{RD+i}, v{RD+8+i}" for i in range(4)]
            for sw in ('32', '16'):
                red += [f"v_mov_b32 v{RD+4+i}, v{RD+i}" for i in range(4)] + [f"v_permlane{sw}_swap_b32 v{RD+i}, v{RD+4+i}" for i in range(4)] + [f"v_add_f32 v{RD+i}, v{RD+i}, v{RD+4+i}" for i in range(4)]
            red += [self.tag_put(RD + i) for i in range(4)]
            it = [('st', 14, 1), ('wvm', 'pld')] + [('x', l) for l in self.tag_check(pld, range(RD, RD + 16), 9)] + [('st', 5, 1)] + [('x', l) for l in red]
            it += [('vm', f"buffer_store_dwordx4 {vr(RD)}, v13, {srd(SWS)}, s{sT1} offen sc1", 'fst')]
            self.emit_items(it)
        def h_f4():
            e.wait(vm='hst'); e("s_barrier"); e.vmop(self.flag_store(245, 246, f"s{sKW}"), 'f4st')
        h_r2()
        if c.khs == 1:
            self.emit_items(hs)
            for _ in range(c.kb4): self.bg_try(ALL, -9999)
        pool += [[('v', r), 999] for r in range(152, 168, 4)]
        if c.f4k < 0: h_f4()
        if c.kp4 == 1:
            self.poll4a_issue()
            for _ in range(c.kb3): self.bg_try(ALL, -9999)
        self.ph2_begin(pool)
        while len(self.Bpend) > c.kleft: self.bg_try(ALL, -9999)
        self.stamp(6)
        self.bias2()
        self.phase2({c.f4k: h_f4, c.p1: self.poll4b_issue, c.c1: self.poll4b_check})

    def kloop(self, mf, reads, nm0, dma_stage, poison, name):
        e = self.e; c = self.c; back = []
        def mksync(st):
            def f(m):
                nm = nm0 - (20 if st >= 10 - (c.dfr if name == 'KV' else c.dfq) else 0)
                tg = [it[2] for g in back for it in (g[1] if g[0] == 'atomic' else g) if it[0] == 'vm']
                assert not (st == c.pks and 'packld' in tg) and not (st == c.pks + 3 and 'pkst' in tg) and not (st == 3 and 'misc' in tg) and ('S', st) not in tg
                e.wait(vm=[('S', st)] + (['pkst'] if st == c.pks + 3 else []) + (['misc'] if st == 3 else []) + (['packld'] if st == c.pks else []), lg_all=True); e("s_barrier")
                self.stamp(st + 1, 2)
                if st == 0: self.ts(0)
                if st == 2: self.ts(1)
                if st == 5 and c.ts: e('s_mov_b64 s[92:93], s[54:55]')
                if st < 3: self.stamp(7 + st, 3)
                if st == 2: self.pstamp_flush()
                out = []
                if st == 0 and c.n1 < 12:
                    back.extend(dma_stage(1)[c.n1:])
                    back.append(('atomic', self.record(lambda: self.small_dma(SM, 6, "s36", None, 50, 'misc', "s_mov_b32 m0, s37"))))
                if st + 2 < 10: back.extend(dma_stage(st + 2))
                if st == c.tpb and c.touch == 6: back.append(self.touch6(1))
                if st == c.pkl and (c.n1 < 12 or c.pkl) and not c.pke: back.extend(self.pack_loads())
                if st == c.pks: back.extend(self.pack_stores())
                if st in c.pos: n_ = -(-6 // len(c.pos)); back.extend(poison[:n_]); del poison[:n_]
                if c.bt == 3 and c.f1s < st < 8: back.extend(self.btouch3(st - c.f1s - 1, 7 - c.f1s))
                if c.f1s < st < 8 or (st == c.f1s and st < 8 and c.f1c + 8 < nm - 16):
                    for u in self.Bpend[:c.bk]: self.Bpend.remove(u); back.append(self.B_take([u])[0])
                need = max([k + 1 for k, g in enumerate(back) if g[0] != 'atomic' and g[-1][2] == ('S', st + 1)], default=0)
                n = min(len(back), max(c.quota, need)) if st < 7 else len(back)
                take = back[:n]; del back[:n]
                if take:
                    pc = self.paced([g[1] if g[0] == 'atomic' else g for g in take], m, nm - c.dtail)
                    for f, g in zip(pc, take):
                        if g[0] == 'atomic': f['atomic'] = 1
                    out += pc
                if c.touch == 4: out += [dict(at=m + nm - c.dtail + 1, chain=1, ins=self.touch3(p_)) for p_ in range(c.tp0, 3) if c.tst[p_] == st]
                if st in c.cpf: out.append(dict(at=m + nm - c.dtail + 2, ins=self.code_touch('L_QH' if name == 'KV' else 'L_end')))
                if st == c.pks: out += self.pack_fill(m, nm)
                if st == c.pks + 3: out.append(dict(at=m + 1, ins=[('vm', self.flag_store(245, 246, f"s{sF1}"), 'f1st')]))
                if st == 3: out += [dict(at=m + 3 + 5 * k, ins=g) for k, g in enumerate(self.wphi_reads(254))]
                if st == c.f1s - 1: g = self.f1_issue()[0]; out += [dict(at=m + nm - 30, ins=g[:-1]), dict(at=m + nm - c.dtail, chain=1, ins=g[-1:])]
                if st == c.f1s:
                    chk = [dict(at=m + c.f1c + 2 * k, ins=[it]) for k, it in enumerate(self.f1_check())]
                    out += chk
                    if c.bt == 3: out.append(dict(at=m + c.f1c + 8, ins=self.btouch3_pre()))
                    elif c.bt: out += [dict(at=m + c.f1c + 26 + c.btsp * k, ins=g) for k, g in enumerate(self.btouch())]
                if st == 9 and name == 'KV': out.append(dict(at=m + 4, ins=self.record(self.tag_issue)))
                if st == 8:
                    if poison: out += self.paced(poison, m, 30)
                    self.bg0 = max(m + c.bgs, (m + c.f1c + 8) if c.f1s == 8 else 0)
                return out
            return f
        self.bg0 = 9999; self.wphi_addr(254)
        self.stream(mf, reads, [], {st: mksync(st) for st in range(10)}, name=name, bg=lambda m: (lambda u: m >= self.bg0 and u < self.ulim))
        self.stamp(1); self.stamp(11, 2)
        self.typ = name; self.ts(2)
        if c.dly == (1 if name == 'KV' else 2): e(f's_sleep {c.dlyn}')
        self.ph2_pre()

    def ph2_pre(self):
        e = self.e
        mk_srd(e, SM, pB2, 1280); mk_srd(e, SPK, pOUT, 2048 * 1280)
        e(f"""s_mul_i32 s{sM0}, s{sNB}, 160
        s_and_b32 s{sM0+1}, s{sNB}, 1
        s_lshl_b32 s{sM0+2}, s{sM0+1}, 5
        s_add_u32 s{sM0+2}, s{sM0+2}, s{sM0}
        s_xor_b32 s{sM0+1}, s{sM0+1}, 1
        s_lshl_b32 s{sM0+1}, s{sM0+1}, 7
        s_add_u32 s{sM0+1}, s{sM0+1}, s{sM0}
        s_min_u32 s{sM0+3}, s{sW}, 1
        s_mul_i32 s{sM0+3}, s{sM0+3}, 1280
        s_sub_u32 s{SM+2}, 1280, s{sM0+3}
        s_lshr_b32 s{sM0+5}, s{sRB}, 1
        s_lshl_b32 s{sM0+3}, s{sM0+5}, 11
        s_add_u32 s{sM0+3}, s{sM0+3}, {F4}
        s_add_u32 s{sM0+4}, s{sM0+3}, 1024
        v_and_b32 v235, 7, v0
        v_lshlrev_b32 v235, 7, v235""")
    def b2_loads(self):
        e = self.e
        e("v_lshlrev_b32 v7, 4, v2\nv_lshlrev_b32 v8, 3, v2")
        e.vmop(f"buffer_load_dwordx4 v[224:227], v7, {srd(SM)}, s{sM0+2} offen", 'b2')
        e.vmop(f"buffer_load_dwordx4 v[228:231], v7, {srd(SM)}, s{sM0+2} offen offset:64", 'b2')
        e.vmop(f"buffer_load_dwordx2 v[232:233], v8, {srd(SM)}, s{sM0+1} offen", 'b2')
    def poll4a_issue(self): self.e.vmop(self.poll_issue(235, 252, 2, None, f"s{sM0+3}"), 'p4a')

    def poll4b_issue(self): self.e.vmop(self.poll_issue(235, 252, 2, None, f"s{sM0+4}"), 'p4b')
    def poll4b_check(self):
        e = self.e
        self.stamp(10)
        e.wait(vm='p4b')
        for l in self.poll_check([(235, 252, 2, f"s{sM0+4}")]): e(l)
        self.stamp(11)
        self.gate[1] = True; self.g_loads()
        for _ in range(self.c.burst): self.try_issue(self.m, True)
    def g_loads(self):
        e = self.e
        e(f"s_lshl_b32 s{sT0}, s{sRB}, 10\ns_add_u32 s{sT0}, s{sT0}, {GB}\nv_lshlrev_b32 v7, 4, v1")
        for jj in range(4):
            e(f"v_subrev_u32 v8, v6, v{236+jj}\nv_lshrrev_b32 v8, 2, v8\nv_add_u32 v8, v8, v7")
            e.vmop(f"buffer_load_dword v{241+jj}, v8, {srd(SWS)}, s{sT0} offen sc1", 'g')
    def bias2(self):
        e = self.e; BI = 96
        e.wait(vm='b2')
        for t in range(5):
            for h in range(2):
                s_ = 224 + 2 * t + h
                e(f"v_lshlrev_b32 v{BI+4*t+2*h}, 16, v{s_}\nv_and_b32 v{BI+4*t+2*h+1}, 0xffff0000, v{s_}")

    def ph2_begin(self, pool):
        e = self.e; c = self.c
        e.wait(vm='p4a')
        for l in self.poll_check([(235, 252, 2, f"s{sM0+3}")]): e(l)
        self.pool = pool; self.busy = []; self.Aloc = {}; self.Bl = dict(self.Bloc); self.Acur = {}
        groups = [(0, 1), (2, 3), (4, 5), (6, 7), (8, 9), (10, 11), (12, 13), (14, 15), (16, 17, 18)]
        self.mf = [(i, t, j) for g in groups for t in range(5) for j in range(4) for i in g]
        fA, lA, fB, lB = {}, {}, {}, {}
        for m, (i, t, j) in enumerate(self.mf):
            fA.setdefault((i, j), m); lA[(i, j)] = m; fB.setdefault((i, t), m); lB[(i, t)] = m
        self.lA, self.lB = lA, lB
        w = [('A', k, fA[k] if k[0] < 14 else (280 if k[0] < 16 else 320) - c.vlead - 1, lA[k]) for k in fA]
        w += [('S', k, fB[k], lB[k]) for k in fB if self.Bl[k] and self.Bl[k][0] == 'l']
        w += [('B', k, fB[k], lB[k]) for k in fB if self.Bl[k] is None]
        self.fB = fB
        self.work = sorted(w, key=lambda x: (x[2] // 40 * 40 + x[1][0] % 2 * 4 + x[1][1]) if (x[0] == 'A' and c.aord and x[1][0] < 14) else x[2]); self.gate = {0: True, 1: False, 2: False, 3: False}; self.Atxt = {}; self.lastiss = -99; self.m = 0
        for _ in range(c.a0): self.try_issue(0, True)

    def try_issue(self, m, force=False, nos=False):
        e = self.e; c = self.c; pool = self.pool
        cls = lambda i: 0 if i < 10 else (1 if i < 14 else 2 if i < 16 else 3)
        for w in self.work:
            kind, k, dl, last = w
            if kind == 'A' and not self.gate[cls(k[0])]: continue
            if kind == 'S' and (nos or dl - m > 16 or self.Border.index(k) in self.Bpend): continue
            if kind != 'S' and not force and dl - m >= 12 and e.t - e.tvm < (c.S2 if dl - m >= c.urg else c.S3): continue
            if kind == 'P':
                self.Bpend.remove(k); self.emit_items(self.B_take([k])[0]); self.work.remove(w); return True
            ok = [p for p in pool if p[1] > last and p not in self.busy and (p[0][0] == 'v' or kind != 'A' or k[0] < 14)]
            if not (kind == 'A' and k[0] >= 14): ok.sort(key=lambda p: p[0][0] == 'v' and m > 150)
            if len(ok) < (1 if dl - m <= 40 else 4 if kind == 'A' else 7): continue
            p = ok[0]; pool.remove(p); loc = p[0]; self.until[loc] = p[1]
            if kind == 'A':
                i, j = k; sr = sAT if i % 2 == 0 else sAT2
                if self.Acur.get(sr) != i:
                    e(self.soff(sr, i, 'A')); self.Acur[sr] = i
                e.vmop(f"buffer_load_dwordx4 {R(loc)}, v{236+j}, {srd(SWS)}, s{sB if c.xA == 1 and i < 14 else 41 if c.xA == 2 else sr} offen sc1", ('A', k)); self.Aloc[k] = loc
                self.Atxt[k] = self.soff(sT1, i, 'A').split("\n") + [ f"buffer_load_dwordx4 {R(loc)}, v{236+j}, {srd(SWS)}, s{sT1} offen sc1"]
            elif kind == 'B':
                self.emit_items(self.B_items(k, loc)); self.Bl[k] = loc
            else:
                e.wait(vm=('B', k))
                e.lgop(f"ds_read_b128 {R(loc)}, v234 offset:{self.Bl[k][1]*1024}", ('S', k)); self.Bl[k] = loc
            if kind != 'S': self.lastiss = m
            if c.verbose > 1: print(f'{kind}{k}@{m}->{dl}', end=' ')
            self.work.remove(w); return True
        return False

    def phase2(self, hooks):
        e = self.e; c = self.c
        ACC = 16; BI = 96; pool = self.pool; mf = self.mf; Bl = self.Bl; Aloc = self.Aloc
        mtrans = min(m for m, x in enumerate(mf) if x[0] >= 14)
        if c.verbose: print("B loads left for phase 2:", len(self.Bpend))
        hooks = {k: v for k, v in hooks.items() if k >= 0}
        for u in self.Bpend:
            k = self.Border[u]; self.work.append(('P', u, self.fB[k] - (20 if self.Bloc[k][0] == 'l' else 0), 0))
        self.work.sort(key=lambda x: (x[2] // 40 * 40 + x[1][0] % 2 * 4 + x[1][1]) if (x[0] == 'A' and c.aord and x[1][0] < 14) else x[2])
        e(f"s_add_u32 s{sT0}, s88, {L_BL}\nv_add_u32 v234, s{sT0}, v6")
        pool += [[('v', r), 999] for r in (224, 228)]
        if c.dly == (3 if self.typ == 'KV' else 4): e(f's_sleep {c.dlyn}')
        seen = set(); vchk = {280: (14, 15), 320: (16, 17, 18)}
        aq = []
        lastH = {}; firstO = {}; lastO = {}
        for m, (i, t, j) in enumerate(mf):
            if i < 14: lastH[(j, t)] = m
            else: firstO.setdefault((j, t), m); lastO[(j, t)] = m
        g0 = min(lastH.values()) - 10
        aq.append([g0, g0 + 4, ('wvm', 'g')])
        for jj in range(4): aq += [[g0, g0 + 8, ('x', self.tag_strip(241 + jj))]]
        for jj in range(4): aq += [[g0, g0 + 12, ('x', f"v_sub_f32 v{241+jj}, 1.0, v{241+jj}")]]
        for k in sorted(lastH, key=lambda k: lastH[k]):
            jj, tt = k; d = ACC + (jj * 5 + tt) * 4
            for q in range(4): aq.append([lastH[k] + 3, firstO[k] - 2, ('x', f"v_mul_f32 v{d+q}, v{241+jj}, v{d+q}")])
        adr = []
        for jj in range(1, 4):
            adr += [f"s_add_u32 s{sT0}, s{sW}, {jj}", f"s_and_b32 s{sT0}, s{sT0}, 3", f"s_mul_i32 s{sT0}, s{sT0}, 15360",
                    f"s_add_u32 s{sT0}, s{sT0}, {L_RED + (jj-1)*5120}", f"v_add_u32 v{8+jj}, s{sT0}, v6"]
        adr += [l.strip() for l in f"""s_mul_i32 s{sT0}, s{sW}, 15360
        s_add_u32 s{sT0}, s{sT0}, {L_RED}
        v_add_u32 v8, s{sT0}, v6
        s_lshl_b32 s{sT0}, s{sRB}, 2
        s_add_u32 s{sT0}, s{sT0}, s{sW}
        s_mul_i32 s{sT0}, s{sT0}, {16*1280}
        s_add_u32 s{sT3}, s{sT0}, s{sM0+2}
        s_add_u32 s{sT2}, s{sT0}, s{sM0+1}
        v_mul_u32_u24 v12, 1280, v1
        v_lshl_add_u32 v13, v2, 3, v12
        v_lshl_add_u32 v12, v2, 4, v12""".split("\n")]
        for l in adr: aq.append([c.adr0, 325, ('x', l)])
        for k in sorted(lastO, key=lambda k: lastO[k]):
            jj, tt = k
            if jj: aq.append([lastO[k] + 3, 999, ('lg', f"ds_write_b128 v{8+jj}, {vr(ACC+(jj*5+tt)*4)} offset:{tt*1024}", 'rw')])
        self.aq = aq
        for m, (i, t, j) in enumerate(mf):
            self.m = m
            if m == mtrans: self.stamp(7); self.ts(4)
            if m == 1: self.ts(3)
            assert (i, j) in Aloc and Bl[(i, t)] and Bl[(i, t)][0] != 'l', (m, i, t, j)
            assert not any(a[1] < m for a in aq), (m, aq[0])
            e.wait(vm=[('A', (i, j)), ('B', (i, t))], lg=('S', (i, t)))
            d = ACC + (j * 5 + t) * 4
            cc = vr(d) if (j, t) in seen else vr(BI + 4 * t); seen.add((j, t))
            e(f"v_mfma_f32_16x16x32_bf16 {vr(d)}, {R(Bl[(i, t)])}, {R(Aloc[(i, j)])}, {cc}")
            k0 = len(e.ins)
            for loc, last in ((Aloc[(i, j)], self.lA[(i, j)]), (Bl[(i, t)], self.lB[(i, t)])):
                if last == m: pool.append([loc, self.until.get(loc, 999) if self.until.get(loc, 999) > m else 999])
            if m == 40: pool.extend([[('v', BI + 4 * k), 999] for k in range(5)])
            if m == 200 and c.dly == (5 if self.typ == 'KV' else 6): e(f's_sleep {c.dlyn}')
            if m == c.o1: self.gate[2] = True
            if m == c.o2: self.gate[3] = True
            if m + 1 + c.vlead in vchk:
                mv = m + 1 + c.vlead; ks = [(ii, jj) for ii in vchk[mv] for jj in range(4)]
                assert all(k in Aloc for k in ks), (m, ks)
                vq = [('wvm', [('A', k) for k in ks])] + [('x', l) for l in self.valid_check(sum([self.Atxt[k] for k in ks], []), [Aloc[k][1] + q for k in ks for q in range(4)], 7)]
                if mv == 280: vq = [('st', 12, 1)] + vq + [('st', 13, 1), ('open',)]
                aq[:0] = [[m, mv - 1, it] for it in vq]
            if m in hooks: hooks[m]()
            self.try_issue(m)
            while any(w[2] - m < 4 for w in self.work) and self.try_issue(m): pass
            while True:
                av = [a for a in aq if a[0] <= m]
                if not av: break
                hurry = any(sum(1 for b in aq if b[1] <= a[1]) > 2 * (a[1] - m) for a in aq if a[1] < 999)
                a = min(av, key=lambda a: a[1])
                if len(e.ins) - k0 >= 2 and not hurry: break
                if a[2][0] == 'lg' and any(x.kind in ('dsw', 'dsr', 'vload', 'dma') for x in e.ins[k0:]): break
                aq.remove(a)
                if a[2][0] == 'open':
                    self.gate[3] = True
                    for _ in range(c.burst3): self.try_issue(m, True)
                elif a[2][0] == 'call': a[2][1]()
                else: self.emit_items([a[2]])
        assert not self.work, self.work
        self.stamp(8)
        for a in aq: self.emit_items([a[2]])
        e.wait(lg_all=True); e("s_barrier")
        for t in range(5):
            for s_ in range(3): e.lgop(f"ds_read_b128 {vr(116+(t*3+s_)*4)}, v8 offset:{s_*5120+t*1024}", ('rr', t))
        for t in range(5):
            e.wait(lg=('rr', t)); d = ACC + t * 4; r = 116 + t * 12
            e(f"""v_pk_add_f32 v[{d}:{d+1}], v[{d}:{d+1}], v[{r}:{r+1}]
            v_pk_add_f32 v[{d+2}:{d+3}], v[{d+2}:{d+3}], v[{r+2}:{r+3}]
            v_pk_add_f32 v[{r+4}:{r+5}], v[{r+4}:{r+5}], v[{r+8}:{r+9}]
            v_pk_add_f32 v[{r+6}:{r+7}], v[{r+6}:{r+7}], v[{r+10}:{r+11}]
            v_pk_add_f32 v[{d}:{d+1}], v[{d}:{d+1}], v[{r+4}:{r+5}]
            v_pk_add_f32 v[{d+2}:{d+3}], v[{d+2}:{d+3}], v[{r+6}:{r+7}]
            v_cvt_pk_bf16_f32 v{96+2*t}, v{d}, v{d+1}
            v_cvt_pk_bf16_f32 v{97+2*t}, v{d+2}, v{d+3}""")
            if t == 1: e.vmop(f"buffer_store_dwordx4 v[96:99], v12, {srd(SPK)}, s{sT3} offen {c.osc}", 'o')
            if t == 3: e.vmop(f"buffer_store_dwordx4 v[100:103], v12, {srd(SPK)}, s{sT3} offen offset:64 {c.osc}", 'o')
            if t == 4: e.vmop(f"buffer_store_dwordx2 v[104:105], v13, {srd(SPK)}, s{sT2} offen {c.osc}", 'o')
        self.stamp(9); self.ts(5); self.ts_flush()
        e("s_endpgm")

    def build(self):
        e = self.e
        self.prologue()
        st = (list(e.vm), list(e.lg))
        self.until = {}
        self.prog_KV()
        e.vm, e.lg = list(st[0]), list(st[1])
        self.until = {}
        self.prog_QH()
        e("\n".join(self.tail))
        e("L_end:\ns_endpgm")
        body = e.finish()
        hdr = open('cdna_kernels/' + NAME + '.s.ref').read().split('; Override launch')[0]
        K = NAME + "_kernel"
        out = hdr + DOC
        out += "; @launch grid=(256,1,1) block=(256,1,1) lds=163840\n"
        out += f'.amdgcn_target "amdgcn-amd-amdhsa--gfx950"\n.text\n.globl {K}\n.p2align 8\n.type {K},@function\n{K}:\n' + body
        out += f""".fill 64, 4, 0xbf800000
.section .rodata,"a"
.p2align 6
.amdhsa_kernel {K}
  .amdhsa_next_free_vgpr 512
  .amdhsa_next_free_sgpr 102
  .amdhsa_accum_offset 256
  .amdhsa_group_segment_fixed_size 0
  .amdhsa_kernarg_size 104
  .amdhsa_user_sgpr_count 2
  .amdhsa_user_sgpr_kernarg_segment_ptr 1
  .amdhsa_system_sgpr_workgroup_id_x 1
.end_amdhsa_kernel
"""
        return out

DOC = """; Hand-designed kernel, emitted by my own scheduling generator (no compiler output).
; One persistent launch, 256 workgroups x 4 waves (one per CU, 512 registers per wave).
;   KV workgroups: 128 tokens x [k, v of 4 heads | 64 FFN columns | gate]; QH workgroups: 128 tokens x [q of 4 heads | 160 FFN columns].
;   a distributed sum of the 16 partials, o = g * num / (den + 1e-6).  w2 / wo are re-packed into MFMA fragment order on the side.
; Hand-offs between workgroups go through d_ws with write-through (sc1) stores and sc1 loads, valid for any XCD placement:
"""
for k_, v_ in dict(rot=3, par=0, pos=(4, 5, 6), btl=12, tab=(2, 4), tpa=0, tpb=0, ts=0, bk=0, dfr=1, dfq=0, kpl=120, khs=0, kb4=10, qb2=6, qb3=6, qfo=0, a0q=12, kp4=1, dly=0, dlyn=16, kvb=64, VC=64, cnt=0, cpf=(), aord=1, nochk=0, skip=0, fast=1, n1=0, quota=28, pkl=0, tp0=1, tst=(0, 0, 1), sp1=24, tlb=0, tlb2=0, pks=3, pke=0, f1s=8, bt=0, btsp=20, bgs=4, qleft=0, kpre=180, kord=0, kgb=1, tmask=7, wbl=0, exit_at=-1, only=0, dstamp=0, xsc='', wsc='', psc='nt', pss='sc1', xA=0, S=48, S2=32, urg=50, S3=0, kb3=8, xB=0, mix=1, perm=0, kf1=60, pe=20, pe2=20, dtail=4, qb0=14, qb1=22, se=10, a0=14, ap=4, osc='sc1 nt', touch=1, kvring=3, f1c=10,
                   f4at=20, pa=100, pb=144, p3=30, c3=58, r1=30, r2=70, rspan=24, kbeg=0, kb1=20, kpa=60, mo=79, p1q=95, c1q=130, Sa=48, kb2=6, kleft=99, Sg=100, o2=226, o1=210, vlead=14, adr0=205, burst3=12, sleep2=1, f4k=-1, p1=100, c1=130, burst=4).items():
    setattr(Cfg, k_, v_)

def generate(**kw):
    c = Cfg()
    for k, v in kw.items(): setattr(c, k, v)
    g = Gen(c); g.e.VC = c.VC; t = g.build()
    return t, g

if __name__ == "__main__":
    kw = {}
    for a_ in sys.argv[2:]:
        k, v = a_.split('='); kw[k] = tuple(map(int, v.split(','))) if ',' in v else int(v, 0) if v.lstrip('-')[0].isdigit() else v.replace('+', ' ')
    t, g = generate(**kw)
    open(sys.argv[1], 'w').write(t)
    print("instructions:", len(g.e.ins), "nops added:", g.e.nop_added)
```

```python
import sys, math
from emit import Emit
NAME = "gated_mix__linear_kernel_hedgehog__dense_activation_gelu__prompt"

TAG = 0x0
F1 = 0x18000
F2 = 0x2000; F3 = 0x6000; F4 = 0xa000; F5 = 0x12000
STAMP = 0x1000000
GB = 0x280000
PP = 0x40000; PSZ = 15360
FIN = 0x240000; FSZ = 15360
PB = 0x300000
A2 = 0x600000
OOB = 0x7ff00000

K1 = 1024
QH_ST = 46 * K1; KV_ST = 44 * K1
MISC = 154 * K1
L_WPHI = MISC; L_GATE = MISC + 3200; L_BIASKV = MISC + 4480; L_BIASQH = MISC + 3200
L_PACK = 138 * K1
WH0 = 114 * K1; WH5 = 74 * K1
L_PHI = 0; RSP = 352; L_V = 128 * RSP; RSV = 224
L_BL = 72 * K1
NL = 18
L_RED = 0
L_FIN = 64 * K1

sW = 3
SX, SQ, S1, SWS, SPK, SM = 4, 8, 12, 16, 20, 24
pX, pQKV, pPHI, pWO, pBX, pW1, pB1, pW2, pB2, pGATE, pOUT, pDBG, pWS = [32 + 2 * i for i in range(13)]
sTAG = 58
sMT, sHG, sRB, sNB = 60, 61, 62, 63
sE = 64
sT0, sT1, sT2, sT3, sT4, sT5 = 74, 75, 76, 77, 78, 79
sM0 = 80
sBT, sAT, sB9, sA9, sAT2 = 100, 101, 86, 87, 55
sAo, sBo, sA8, sB8 = 44, 45, 56, 57
sKW, sK1 = 89, 90
sF1 = 91
sPKD = 92
sA, sB = 96, 97
sC0, sC1 = 98, 99
sP0 = 28

PKA = 200
TB = 10; TBM = (1 << TB) - 1; sTB = 58
AW = 204
def srd(r): return f"s[{r}:{r+3}]"
def vr(r, n=4): return f"v[{r}:{r+n-1}]" if n > 1 else f"v{r}"
def ar(r, n=4): return f"a[{r}:{r+n-1}]"
def R(loc, n=4): return (vr if loc[0] == 'v' else ar)(loc[1], n)
def fl(x):
    import struct
    return hex(struct.unpack('<I', struct.pack('<f', x))[0])

class Cfg:
    rot = 1; map2 = 1; stamps = 0; LA = 12; spin = 200000; codepf = 1; lag = 2; th1 = 2; th2 = 4; minlead = 4; verbose = 0; sleep = 1

sKA, sKB = 0, 1
def mk_srd(e, r, p, nbytes):
    e(f"s_mov_b32 s{r}, s{p}\ns_and_b32 s{r+1}, s{p+1}, 0xffff\ns_mov_b32 s{r+2}, {nbytes}\ns_mov_b32 s{r+3}, 0x20000")

class Gen:
    def __init__(self, cfg):
        self.c = cfg; self.e = Emit(); self.tail = []; self.uid = 0; self.nstamp = 0
    def record(self, fn):
        real = self.e
        class Rec:
            def __init__(r): r.items = []; r.lg = []; r.vm = []
            def __call__(r, t):
                for l in t.strip("\n").split("\n"):
                    if l.strip(): r.items.append(('x', l.strip()))
            def vmop(r, t, tag=None): r.items.append(('vm', t, tag))
            def lgop(r, t, tag=None): r.items.append(('lg', t, tag))
        rec = Rec(); self.e = rec
        try: fn()
        finally: self.e = real
        return rec.items
    def cnt(self):
        if not self.c.cnt: return [], []
        self.ncnt = getattr(self, 'ncnt', 0) + 1; k = self.ncnt - 1
        post = ["s_load_dwordx2 s[46:47], s[40:41], 88", f"s_sub_u32 s54, {self.c.spin}, s54", "s_lshl_b32 s54, s54, 12", "s_add_u32 s54, s54, 1", "s_waitcnt lgkmcnt(0)",
                "v_mov_b32 v14, s54", "v_mov_b32 v15, 0", "s_mov_b64 exec, 1", f"global_atomic_add v15, v14, s[46:47] offset:{k*4}", "s_mov_b64 exec, -1"]
        return [], post
    def lab(self, p):
        self.uid += 1; return f"L_{p}_{self.uid}"
    def stamp(self, i, grp=1):
        if self.c.dstamp and grp == 1:
            slot = self.dmap.get(i)
            if slot is None: return
            e = self.e
            e(f"s_memrealtime s[{sC0}:{sC1}]\ns_load_dwordx2 s[46:47], s[40:41], 88\ns_waitcnt lgkmcnt(0)\nv_mov_b32 v14, s{sC0}\nv_mov_b32 v15, 0"); e.lg = []
            e("s_cmp_eq_u32 s3, 0\ns_cselect_b64 exec, 1, 0")
            L = self.lab('ds'); e(f"s_cbranch_execz {L}")
            e(f"global_atomic_umax v15, v14, s[46:47] offset:{slot*4}")
            if i == 0: e(f"v_mov_b32 v14, s54\nglobal_atomic_umax v15, v14, s[46:47] offset:4\nv_not_b32 v14, v14\nglobal_atomic_umax v15, v14, s[46:47] offset:0")
            e(f"{L}:\ns_mov_b64 exec, -1")
            return
        if not self.c.stamps or (i and self.c.stamps != grp): return
        if self.c.only and i not in (0, self.c.only): return
        e = self.e
        e(f"s_memrealtime s[{sC0}:{sC1}]\ns_memtime s[46:47]\ns_waitcnt lgkmcnt(0)"); e.lg = []
        e(f"v_mov_b32 v14, s{sC0}\nv_mov_b32 v15, s46")
        e(f"s_lshl_b32 s{sC0}, s2, 2\ns_add_u32 s{sC0}, s{sC0}, s{sW}\ns_lshl_b32 s{sC0}, s{sC0}, 7\ns_add_u32 s{sC0}, s{sC0}, {STAMP}")
        e.vmop(f"buffer_store_dwordx2 v[14:15], v245, {srd(SWS)}, s{sC0} offen offset:{i*8}", 'stamp')
        if self.c.exit_at == i and grp == 1: e("s_endpgm")
        if i == 0:
            e(f"v_mov_b32 v14, s54\nv_mov_b32 v15, s40")
            e.vmop(f"buffer_store_dwordx2 v[14:15], v245, {srd(SWS)}, s{sC0} offen offset:{15*8}", 'stamp')

    def pstamp(self, i):
        if self.c.stamps == 3: self.e(f"s_memtime s[100:101]\ns_waitcnt lgkmcnt(0)\nv_mov_b32 v{(248,249,250,251,235)[i]}, s100")
    def pstamp_flush(self):
        if self.c.stamps != 3: return
        e = self.e
        e(f"s_lshl_b32 s{sC0}, s2, 2\ns_add_u32 s{sC0}, s{sC0}, s{sW}\ns_lshl_b32 s{sC0}, s{sC0}, 7\ns_add_u32 s{sC0}, s{sC0}, {STAMP}")
        for i in range(5): e.vmop(f"buffer_store_dword v{(248,249,250,251,235)[i]}, v245, {srd(SWS)}, s{sC0} offen offset:{(2+i)*8+4} sc1", 'stamp')
    def ts(self, k):
        if not self.c.ts: return
        self.e(f"s_memrealtime s[40:41]\ns_waitcnt lgkmcnt(0)\ns_mov_b32 s{(44, 45, 56, 57, 36, 37)[k]}, s40"); self.e.lg = []
    def ts_flush(self):
        if not self.c.ts: return
        e = self.e; L = self.lab('ts'); o = 2 if self.typ == 'KV' else 8
        e(f"s_cmp_lg_u32 s{sW}, 0\ns_cbranch_scc1 {L}\ns_load_dwordx2 s[46:47], s[92:93], 88\ns_waitcnt lgkmcnt(0)\ns_mov_b64 exec, 1\nv_mov_b32 v15, 0")
        for k, r in enumerate((44, 45, 56, 57, 36, 37)): e(f"v_mov_b32 v14, s{r}\nglobal_atomic_umax v15, v14, s[46:47] offset:{(o+k)*4}\ns_nop 1")
        e(f"v_mov_b32 v14, s99\nglobal_atomic_umax v15, v14, s[46:47] offset:4\ns_nop 1\nv_not_b32 v14, v14\nglobal_atomic_umax v15, v14, s[46:47] offset:0\n{L}:")
    def dump(self, name, regs):
        if getattr(self.c, 'dbg', None) != name: return
        e = self.e
        e(f"s_lshl_b32 s{sBT}, s2, 2\ns_add_u32 s{sBT}, s{sBT}, s{sW}\ns_lshl_b32 s{sBT}, s{sBT}, 14\ns_add_u32 s{sBT}, s{sBT}, 0x2000000\nv_lshlrev_b32 v7, 2, v0")
        for i, r in enumerate(regs):
            e.vmop(f"buffer_store_dword v{r}, v7, {srd(SWS)}, s{sBT} offen offset:{(i%16)*256}", 'dbg')
            if i % 16 == 15: e(f"s_add_u32 s{sBT}, s{sBT}, 4096")
        e.wait(vm='dbg'); self.Bcur = None

    def poll_issue(self, vaddr, vdst, n, tag, soff="0"):
        suf = {2: 'dwordx2', 4: 'dwordx4'}[n]
        return f"buffer_load_{suf} {vr(vdst, n)}, v{vaddr}, {srd(SWS)}, {soff} offen sc1"
    def poll_check(self, loads):
        Ls, Lb = self.lab('slow'), self.lab('back')
        cmps = []; ors = []; k = 0
        prs = ['vcc', 's[28:29]', 's[30:31]', 's[46:47]']
        for (va, vd, n, so) in loads:
            for h in range(n // 2):
                cmps.append(f"v_cmp_ne_u64 {prs[k]}, s[{sTAG}:{sTAG+1}], v[{vd+2*h}:{vd+2*h+1}]")
                if k: ors.append(f"s_or_b64 vcc, vcc, {prs[k]}")
                k += 1
        cmps = cmps[::-1] if False else cmps
        fast = cmps + ors + [f"s_cbranch_vccnz {Ls}\n{Lb}:" if not (self.c.nochk & 1) else f"{Lb}:"]
        t = [f"{Ls}:", f"s_mov_b32 s54, {self.c.spin}", f"{Ls}_l:"]
        if self.c.sleep: t.append(f"s_sleep {self.c.sleep}")
        for (va, vd, n, so) in loads: t.append(self.poll_issue(va, vd, n, None, so))
        t += ["s_waitcnt vmcnt(0)"] + cmps + ors
        t += ["s_sub_u32 s54, s54, 1", f"s_cbranch_vccz {Ls}_x", "s_cmp_lg_u32 s54, 0", f"s_cbranch_scc1 {Ls}_l", f"{Ls}_x:"] + self.cnt()[1] + ["s_nop 4", f"s_branch {Lb}"]
        self.tail += t
        return fast
    def tag_check(self, reload, regs, acc):
        Ls, Lb = self.lab('slow'), self.lab('back')
        regs = list(regs); L = [f"v_xor_b32 v{acc}, s{sTB}, v{regs[0]}"]
        for r in regs[1:]: L.append(f"v_bitop3_b32 v{acc}, v{r}, s{sTB}, v{acc} bitop3:0xbe")
        L += [f"v_and_b32 v{acc}, {TBM}, v{acc}", f"v_cmp_ne_u32 vcc, 0, v{acc}"]
        t = [f"{Ls}:", f"s_mov_b32 s54, {self.c.spin}", f"{Ls}_l:"]
        if self.c.sleep: t.append(f"s_sleep {self.c.sleep2}")
        t += list(reload) + ["s_waitcnt vmcnt(0)"] + L
        t += ["s_sub_u32 s54, s54, 1", f"s_cbranch_vccz {Ls}_x", "s_cmp_lg_u32 s54, 0", f"s_cbranch_scc1 {Ls}_l", f"{Ls}_x:"] + self.cnt()[1] + ["s_nop 4", f"s_branch {Lb}"]
        self.tail += t
        return L + [f"s_cbranch_vccnz {Ls}\n{Lb}:" if not (self.c.nochk & 2) else f"{Lb}:"]
    def tag_put(self, r, src=None): return f"v_bfi_b32 v{r}, s42, v246, v{r if src is None else src}"
    def tag_strip(self, r): return f"v_and_b32 v{r}, {hex(0xffffffff ^ TBM)}, v{r}"
    def valid_check(self, reload, regs, acc):
        Ls, Lb = self.lab('slow'), self.lab('back')
        regs = list(regs); L = [f"v_max3_u32 v{acc}, v{regs[0]}, v{regs[1]}, v{regs[2 if len(regs) > 2 else 1]}"]
        r = regs[3:]
        for i in range(0, len(r), 2): L.append(f"v_max3_u32 v{acc}, v{acc}, v{r[i]}, v{r[min(i+1, len(r)-1)]}")
        L.append(f"v_cmp_eq_u32 vcc, -1, v{acc}")
        t = [f"{Ls}:", f"s_mov_b32 s54, {self.c.spin}", f"{Ls}_l:"]
        if self.c.sleep: t.append(f"s_sleep {self.c.sleep2}")
        t += list(reload) + ["s_waitcnt vmcnt(0)"] + L
        t += ["s_sub_u32 s54, s54, 1", f"s_cbranch_vccz {Ls}_x", "s_cmp_lg_u32 s54, 0", f"s_cbranch_scc1 {Ls}_l", f"{Ls}_x:"] + self.cnt()[1] + ["s_nop 4", f"s_branch {Lb}"]
        self.tail += t
        return L + [f"s_cbranch_vccnz {Ls}\n{Lb}:" if not (self.c.nochk & 4) else f"{Lb}:"]
    def flag_store(self, vaddr, vtag, soff="0"):
        return f"buffer_store_dwordx2 {vr(vtag, 2)}, v{vaddr}, {srd(SWS)}, {soff} offen sc1"

    def stream(self, mf, reads, fill, syncs=None, LA=None, name='', bg=None):
        e = self.e; LA = LA or self.c.LA
        reads = sorted(reads, key=lambda r: r[1]); rp = 0; synced = -1 if syncs else 99
        fq = sorted(fill, key=lambda f: f['at'])
        self.sid = getattr(self, 'sid', 0) + 1; sid = self.sid
        start = len(e.ins)
        def add_fill(items):
            lo = max([f['at'] for f in fq if f.get('chain')], default=-99)
            for f in items:
                if f.get('chain'): f['at'] = lo = max(f['at'], lo)
            fq.extend(items); fq.sort(key=lambda f: f['at'])
        def rd():
            nonlocal rp
            e.lgop(reads[rp][0], ('rd', sid, rp)); rp += 1
        if syncs: add_fill(syncs[0](0)); synced = 0
        while rp < len(reads) and reads[rp][1] < 8 and reads[rp][2] <= synced: rd()
        last_read = -99
        dl_of = {('rd', sid, i): r[1] for i, r in enumerate(reads)}
        def due(m): return [t for t in e.lg if t in dl_of and dl_of[t] <= m]
        ismem = lambda it: it[0] in ('vm', 'lg')
        for m in range(len(mf)):
            d = due(m)
            if d: e.wait(lg=d)
            e(mf[m])
            can = lambda: rp < len(reads) and reads[rp][2] <= synced and reads[rp][3] <= m and len(e.lg) < 15
            lead = lambda: reads[rp][1] - m
            if syncs and rp < len(reads) and reads[rp][2] > synced and m - last_read >= self.c.lag and lead() <= LA:
                synced = reads[rp][2]
                assert not any(it[0] == 'vm' and it[2] == ('S', synced) for f in fq for it in f['ins'])
                add_fill(syncs[synced](m + 1))
                if can(): rd(); last_read = m
                continue
            w = 1 if due(m + 1) else 0
            n = w; mem = 0
            if fq and fq[0]['at'] <= m:
                f = fq[0]
                if f.get('atomic'):
                    self.emit_items(f['ins']); n += len(f['ins']); mem += sum(map(ismem, f['ins'])); fq.pop(0)
                elif ismem(f['ins'][0]):
                    self.emit_items([f['ins'].pop(0)]); n += 1; mem += 1
                    if not f['ins']: fq.pop(0)
            if bg and mem == 0:
                k0 = len(e.ins)
                if self.bg_try(bg(m)): n += len(e.ins) - k0; mem += 1
            if can() and lead() <= LA and (mem == 0 or (lead() <= LA - self.c.th1 and not w)):
                rd(); n += 1; mem += 1; last_read = m
            if can() and mem == 1 and not w and lead() <= LA - self.c.th2:
                rd(); n += 1; mem += 1
            while can() and lead() <= self.c.minlead: rd(); n += 1; mem += 1; last_read = m
            while (n < 2 or (fq and fq[0]['at'] <= m - 2 and n < 3)) and fq and fq[0]['at'] <= m + 2 and not fq[0].get('atomic') and not ismem(fq[0]['ins'][0]):
                f = fq[0]; self.emit_items([f['ins'].pop(0)]); n += 1
                if not f['ins']: fq.pop(0)
            assert rp >= len(reads) or reads[rp][1] > m + 1, (m, reads[rp])
        for f in fq: self.emit_items(f['ins'])
        if self.c.verbose:
            tot = 0; g = None
            for i in e.ins[start:]:
                if i.label: continue
                if i.kind == 'mfma':
                    if g is not None: tot += max(16, g)
                    g = 8; prevmem = False
                elif g is not None:
                    mm = i.kind in ('dsr', 'dsw', 'vload', 'vstore', 'dma')
                    g += 8 if (mm and prevmem) else 4; prevmem = mm
            print(f"stream {name}: {len(mf)} mfma, est clks {tot} (ideal {16*len(mf)})")

    def prologue(self):
        e = self.e; c = self.c
        if c.stamps or c.dstamp or c.ts: e("s_memrealtime s[54:55]\ns_memtime s[98:99]")
        e(f"""s_cmp_ge_u32 s2, 256
        s_cbranch_scc1 L_end
        s_load_dwordx16 s[32:47], s[0:1], 0
        s_load_dwordx4 s[48:51], s[0:1], 64
        s_load_dwordx2 s[52:53], s[0:1], 80
        s_load_dwordx2 s[56:57], s[0:1], 96""")
        if c.codepf:
            e(f"""s_getpc_b64 s[{sA}:{sB}]
            L_pf:
            s_lshr_b32 s{sT0}, s2, 3
            s_lshl_b32 s{sT0}, s{sT0}, 11
            v_lshrrev_b32 v1, 4, v0
            v_lshlrev_b32 v1, 7, v1
            v_add_u32 v1, s{sT0}, v1
            v_cmp_gt_u32 vcc, L_end-L_pf, v1
            v_cndmask_b32 v1, 0, v1, vcc""")
            e.vmop(f"global_load_dword v255, v1, s[{sA}:{sB}]", 'pf')
        e(f"""v_lshrrev_b32 v1, 6, v0
        v_and_b32 v0, 63, v0
        s_and_b32 s{sT0}, s2, 7
        v_readfirstlane_b32 s{sW}, v1
        s_lshr_b32 s{sT1}, s2, 3
        s_lshr_b32 s{sT2}, s{sT0}, 1
        s_and_b32 s{sT3}, s{sT1}, 3
        s_lshl_b32 s{sMT}, s{sT2}, 2
        s_add_u32 s{sMT}, s{sMT}, s{sT3}
        s_lshr_b32 s{sT4}, s{sT1}, 2
        s_and_b32 s{sHG}, s{sT0}, 1
        s_lshl_b32 s{sHG}, s{sHG}, 2
        s_and_b32 s{sT5}, s{sT4}, 3
        s_add_u32 s{sHG}, s{sHG}, s{sT5}""")
        if c.rot == 2:
            e(f"""s_mul_i32 s{sE}, s{sT2}, 5
            s_lshr_b32 s{sE}, s{sE}, 1
            s_and_b32 s{sT5}, s{sT0}, 1
            s_mul_i32 s{sT5}, s{sT5}, 5
            s_add_u32 s{sE}, s{sE}, s{sT5}
            s_cmp_ge_u32 s{sE}, 10
            s_cselect_b32 s{sT5}, 10, 0
            s_sub_u32 s{sE}, s{sE}, s{sT5}
            s_lshl_b32 s{sE}, s{sE}, 7""")
        elif c.rot == 3:
            e(f"s_xor_b32 s{sE}, s{sT3}, s{sT4}\ns_and_b32 s{sE}, s{sE}, 1\ns_lshl_b32 s{sE}, s{sE}, 7")
        elif c.rot == 4:
            e(f"s_xor_b32 s{sE}, s{sT3}, s{sT4}\ns_and_b32 s{sE}, s{sE}, 3\ns_lshl_b32 s{sE}, s{sE}, 7")
        else: e(f"s_mov_b32 s{sE}, 0")
        e(f"""v_and_b32 v1, 15, v0
        v_lshrrev_b32 v2, 4, v0
        v_bfe_u32 v3, v0, 2, 2
        v_and_b32 v4, 3, v0
        v_lshrrev_b32 v5, 3, v0
        v_lshlrev_b32 v6, 4, v0
        s_lshl_b32 s{sT2}, s{sMT}, 2
        s_add_u32 s{sT2}, s{sT2}, s{sW}
        s_mul_i32 s{sT2}, s{sT2}, {32*1280}
        v_xor_b32 v7, v2, v0
        v_and_b32 v7, 7, v7
        v_lshlrev_b32 v7, 4, v7
        v_mul_u32_u24 v8, 1280, v5
        v_add_u32 v8, s{sT2}, v8
        v_add_u32 v208, v8, v7
        v_xor_b32 v7, 64, v7
        v_add_u32 v209, v8, v7
        v_add_u32 v209, {10240-1024}, v209
        v_add_u32 v210, {2*(10240-1024)}, v208
        v_add_u32 v211, {2*(10240-1024)}, v209
        s_lshl_b32 s{sM0}, s{sW}, 12
""")
        if c.rot >= 3: e(f"s_xor_b32 s{sE+1}, s{sE}, 128")
        else: e(f"s_add_u32 s{sE+1}, s{sE}, 128\ns_cmp_eq_u32 s{sE+1}, 1280\ns_cselect_b32 s{sE+1}, 0, s{sE+1}")
        for r, n in ((SX, 2048 * 1280), (SQ, 640 * 3840), (S1, 640 * 3456), (SM, 3456)): e(f"s_mov_b32 s{r+2}, {n}\ns_mov_b32 s{r+3}, 0x20000")
        if c.touch == 6: self.touch6_pre()
        e(f"s_bitcmp1_b32 s2, 7\ns_cbranch_scc1 L_QH")

    def kernarg_wait(self):
        e = self.e
        e("s_waitcnt lgkmcnt(0)"); self.pstamp(0)
        e(f"s_load_dwordx2 s[{sTAG}:{sTAG+1}], s[{pWS}:{pWS+1}], {TAG}")
        if self.c.stamps: e('s_mov_b32 s40, s98')
        if self.c.ts: e('s_mov_b32 s99, s54\ns_mov_b64 s[54:55], s[0:1]')
        if self.c.dstamp or self.c.cnt: e('s_mov_b64 s[40:41], s[0:1]')
        for r, p in ((SX, pX), (SM, pB1), (SQ, pQKV), (S1, pW1)): e(f"s_mov_b32 s{r}, s{p}\ns_and_b32 s{r+1}, s{p+1}, 0xffff")

    def pack_setup(self):
        e = self.e
        e(f"""s_lshl_b32 s{sT0}, s2, 2
        s_add_u32 s{sT0}, s{sT0}, s{sW}
        s_mul_i32 s{sT2}, s{sT0}, 886
        s_lshr_b32 s{sT2}, s{sT2}, 16
        s_mul_i32 s{sT1}, s{sT2}, 74
        s_sub_u32 s{sT1}, s{sT0}, s{sT1}
        s_sub_u32 s{sT3}, s{sT1}, 54
        s_and_b32 s{sT3}, s{sT3}, 63
        s_mul_i32 s{sT4}, s{sT3}, 52
        s_lshr_b32 s{sT4}, s{sT4}, 8
        s_mul_i32 s{sT5}, s{sT4}, 5
        s_sub_u32 s{sT5}, s{sT3}, s{sT5}
        s_mul_i32 s{sBT}, s{sT4}, 160
        s_lshr_b32 s{sAT}, s{sT5}, 1
        s_mul_i32 s{sAT}, s{sAT}, 80
        s_and_b32 s{sT3}, s{sT5}, 1
        s_lshl_b32 s{sT3}, s{sT3}, 3
        s_add_u32 s{sAT}, s{sAT}, s{sT3}
        s_cmp_eq_u32 s{sT5}, 4
        s_cselect_b32 s{sAT}, 16, s{sAT}
        s_cselect_b32 s{sT3}, 80, 4
        s_add_u32 s{sBT}, s{sBT}, s{sAT}
        s_lshl_b32 s{sAT}, s{sT1}, 5
        s_cmp_lt_u32 s{sT1}, 54
        s_cselect_b32 s{sBT}, s{sAT}, s{sBT}
        s_cselect_b32 s{sT3}, 16, s{sT3}""")
        self.csel(sT4, 4 * 1280 - 1024, 20 * 1280 - 1024)
        self.csel(SPK + 2, 1728 * 1280, 640 * 1280)
        e(f"""s_mov_b32 s{SPK+3}, 0x20000
        s_cmp_lt_u32 s{sT0}, 740
        s_cselect_b32 s{SPK+2}, s{SPK+2}, 0
        s_mul_i32 s{sBT}, s{sBT}, 1280
        s_lshl_b32 s{sAT}, s{sT2}, 7
        s_add_u32 s32, s{sBT}, s{sAT}
        s_add_u32 s33, s32, s{sT4}
        s_add_u32 s34, s33, s{sT4}
        s_add_u32 s35, s34, s{sT4}
        v_lshrrev_b32 v9, 5, v0
        v_mul_lo_u32 v9, v9, s{sT3}
        v_and_b32 v10, 3, v5
        v_add_u32 v9, v9, v10
        v_mul_u32_u24 v9, 1280, v9
        v_and_b32 v10, 7, v0
        v_lshl_add_u32 v252, v10, 4, v9
        v_lshlrev_b32 v9, 10, v2
        v_lshl_add_u32 v9, v3, 7, v9
        v_add_u32 v9, s{sM0}, v9
        v_add_u32 v9, {L_PACK}, v9""")
        for g in range(2):
            e(f"""s_lshl_b32 s{sT3}, s{sT2}, 1
            s_add_u32 s{sT3}, s{sT3}, {g}
            s_mul_i32 s{sT4}, s{sT3}, 52
            s_lshr_b32 s{sT4}, s{sT4}, 8
            s_mul_i32 s{sT5}, s{sT4}, 5
            s_sub_u32 s{sT5}, s{sT3}, s{sT5}
            s_cmp_eq_u32 s{sT5}, 2
            s_cselect_b32 s{sT3}, 3, 4
            s_cselect_b32 s{sAT}, 32, 8
            v_lshlrev_b32 v10, s{sT3}, v4
            v_add_u32 v{PKA+2*g}, v9, v10
            v_add_u32 v{PKA+1+2*g}, s{sAT}, v{PKA+2*g}
            s_mul_i32 s{sT4}, s{sT4}, 740
            s_mul_i32 s{sAT}, s{sT1}, 5
            s_add_u32 s{sT4}, s{sT4}, s{sAT}""")
            for a_ in range(2):
                d = sPKD + 2 * g + a_
                e(f"""s_lshl_b32 s{sT3}, s{sT5}, 1
                s_add_u32 s{sT3}, s{sT3}, {a_}
                s_add_u32 s{d}, s{sT3}, 364
                s_cmp_eq_u32 s{sT3}, 5
                s_cselect_b32 s{d}, 374, s{d}
                s_cmp_lt_u32 s{sT3}, 5
                s_cselect_b32 s{d}, s{sT3}, s{d}
                s_add_u32 s{d}, s{d}, s{sT4}
                s_lshl_b32 s{d}, s{d}, 10
                s_add_u32 s{d}, s{d}, {PB}
                s_cmp_lt_u32 s{sT0}, 740
                s_cselect_b32 s{d}, s{d}, {OOB}""")
        e(f"""s_cmp_lt_u32 s{sT1}, 54
        s_cselect_b32 s{SPK}, s{pW2}, s{pWO}
        s_cselect_b32 s{SPK+1}, s{pW2+1}, s{pWO+1}
        s_and_b32 s{SPK+1}, s{SPK+1}, 0xffff""")

    def common_setup(self):
        e = self.e; c = self.c
        e(f"s_and_b32 s{sT0}, s2, 7\ns_lshr_b32 s{sT1}, s2, 3\ns_lshr_b32 s{sT2}, s{sT0}, 1\ns_and_b32 s{sT3}, s{sT1}, 3\ns_lshr_b32 s{sT4}, s{sT1}, 2")
        if c.mix: e(f"s_lshr_b32 s{sT5}, s{sT1}, 2\ns_and_b32 s{sT5}, s{sT5}, 4\ns_xor_b32 s{sT5}, s{sT5}, s{sT1}" if c.map2 else
                    f"s_lshr_b32 s{sT5}, s{sT1}, 4\ns_xor_b32 s{sT5}, s{sT5}, s{sT1}")
        if c.map2:
            if c.mix: e(f"s_and_b32 s{sRB}, s{sT5}, 7\ns_bfe_u32 s{sT5}, s{sT1}, 0x20002")
            else: e(f"s_and_b32 s{sRB}, s{sT1}, 7\ns_lshr_b32 s{sT5}, s{sT1}, 3")
            e(f"""s_lshl_b32 s{sT2}, s{sT2}, 3
            s_add_u32 s{sRB}, s{sRB}, s{sT2}
            s_and_b32 s{sNB}, s{sT0}, 1
            s_lshl_b32 s{sNB}, s{sNB}, 2
            s_add_u32 s{sNB}, s{sNB}, s{sT5}""")
        else:
            if c.mix: e(f"s_bfe_u32 s{sNB}, s{sT1}, 0x30001\ns_and_b32 s{sT3}, s{sT5}, 1\ns_lshr_b32 s{sT5}, s{sT1}, 4\ns_bfe_u32 s{sT4}, s{sT1}, 0x10001\ns_xor_b32 s{sT5}, s{sT5}, s{sT4}\ns_and_b32 s{sT3}, s{sT1}, 1\ns_lshl_b32 s{sT5}, s{sT5}, 1\ns_add_u32 s{sT3}, s{sT3}, s{sT5}")
            else: e(f"s_mov_b32 s{sNB}, s{sT4}")
            e(f"s_lshl_b32 s{sRB}, s{sT0}, 2\ns_add_u32 s{sRB}, s{sRB}, s{sT3}")
        mk_srd(e, SWS, pWS, 0x10000000); mk_srd(e, SM, pPHI, 32 * 800)
        e(f"""s_lshl_b32 s{sT3}, s{sHG}, 2
        s_add_u32 s{sT3}, s{sT3}, s{sW}
        s_mul_i32 s36, s{sT3}, 800
        s_mul_i32 s37, s{sW}, 800
        s_add_u32 s37, s37, {L_WPHI}""")
        for i in range(2, 10):
            if c.rot == 4: e(f"s_xor_b32 s{sE+i}, s{sE}, {i*128}" if i < 8 else f"s_and_b32 s{sE+i}, s{sE+i-8}, 128\ns_add_u32 s{sE+i}, s{sE+i}, 1024")
            elif c.rot == 3: e(f"s_add_u32 s{sE+i}, s{sE+i-2}, 256")
            else: e(f"s_add_u32 s{sE+i}, s{sE+i-1}, 128\ns_cmp_eq_u32 s{sE+i}, 1280\ns_cselect_b32 s{sE+i}, 0, s{sE+i}")
        e(f"""s_mul_i32 s{sB}, s{sNB}, 74
        s_add_u32 s{sB}, s{sB}, s{sW}
        s_mul_i32 s{sB}, s{sB}, 5120
        s_add_u32 s{sB}, s{sB}, {PB}
        s_mul_i32 s{sA}, s{sRB}, 74
        s_add_u32 s{sA}, s{sA}, s{sW}
        s_lshl_b32 s{sA}, s{sA}, 12
        s_add_u32 s{sA}, s{sA}, {A2}
""")
        if c.par: e(f"""s_xor_b32 s{sT0}, s{sRB}, s{sNB}
        s_and_b32 s{sT0}, s{sT0}, {min(c.par, 1)}
        s_mul_i32 s{sT1}, s{sT0}, {4*5120}
        s_add_u32 s{sB8}, s{sB}, {32*5120}
        s_add_u32 s{sB8}, s{sB8}, s{sT1}
        s_add_u32 s{sB9}, s{sB}, {36*5120}
        s_sub_u32 s{sB9}, s{sB9}, s{sT1}
        s_mul_i32 s{sT1}, s{sT1}, {max(c.par, 1)}
        s_sub_u32 s{sBo}, s{sB}, s{sT1}
        s_add_u32 s{sB}, s{sB}, s{sT1}
        s_lshl_b32 s{sT1}, s{sT0}, 14
        s_add_u32 s{sA8}, s{sA}, {32*4096}
        s_add_u32 s{sA8}, s{sA8}, s{sT1}
        s_add_u32 s{sA9}, s{sA}, {36*4096}
        s_sub_u32 s{sA9}, s{sA9}, s{sT1}
        s_mul_i32 s{sT1}, s{sT1}, {max(c.par, 1)}
        s_sub_u32 s{sAo}, s{sA}, s{sT1}
        s_add_u32 s{sA}, s{sA}, s{sT1}
        s_lshr_b32 s{sT1}, s{sW}, 1
        s_and_b32 s{sT3}, s{sT1}, s{sT0}
        s_cselect_b32 s{sB8}, {OOB}, s{sB8}
        s_cselect_b32 s{sA8}, {OOB}, s{sA8}
        s_andn2_b32 s{sT3}, s{sT1}, s{sT0}
        s_cselect_b32 s{sB9}, {OOB}, s{sB9}
        s_cselect_b32 s{sA9}, {OOB}, s{sA9}
""")
        else: e(f"""s_add_u32 s{sB9}, s{sB}, {36*5120}
        s_add_u32 s{sA9}, s{sA}, {36*4096}
        s_cmp_lt_u32 s{sW}, 2
        s_cselect_b32 s{sB9}, s{sB9}, {OOB}
        s_cselect_b32 s{sA9}, s{sA9}, {OOB}""")
        e(f"""s_mul_i32 s88, s{sW}, {NL*1024}
        v_add_u32 v240, 4096, v6""")
        for j in range(4):
            e(f"s_add_u32 s{sT3}, s{sW}, {j}\ns_and_b32 s{sT3}, s{sT3}, 3\ns_lshl_b32 s{sT3}, s{sT3}, 10\nv_add_u32 v{236+j}, s{sT3}, v6")
        e(f"""s_lshl_b32 s{sF1}, s2, 7
        s_add_u32 s{sF1}, s{sF1}, {F1}
        s_cmp_eq_u32 s{sW}, 0
        s_cselect_b32 s{sF1}, s{sF1}, {OOB}
        v_mov_b32 v245, {OOB}
        v_cmp_eq_u32 vcc, 0, v0
        v_cndmask_b32 v245, v245, 0, vcc""")

    def touch(self):
        e = self.e; c = self.c
        e(f"""s_cmp_eq_u32 s{sW}, 0
        s_cselect_b64 s[28:29], s[{SX}:{SX+1}], s[{S1}:{S1+1}]
        s_cselect_b32 s30, s{SX+2}, s{S1+2}
        s_cselect_b32 s{sT0}, 12, 0
        s_add_u32 s{sT0}, s{sT0}, 68
        s_cmp_eq_u32 s{sW}, 1
        s_cselect_b64 s[28:29], s[{SQ}:{SQ+1}], s[28:29]
        s_cselect_b32 s30, s{SQ+2}, s30
        s_cselect_b32 s{sT0}, 75, s{sT0}
        s_lshl_b32 s{sT1}, 1, s{sW}
        s_and_b32 s{sT1}, s{sT1}, {c.tmask}
        s_cselect_b32 s30, s30, 0
        s_mov_b32 s31, 0x20000
        s_mul_i32 s{sT1}, s{sT0}, s2
        s_lshl_b32 s{sT1}, s{sT1}, 7
        v_lshlrev_b32 v10, 7, v0
        v_add_u32 v11, 64, v0
        v_cmp_gt_u32 vcc, s{sT0}, v11
        v_lshlrev_b32 v11, 7, v11
        v_mov_b32 v14, {OOB}
        v_cndmask_b32 v11, v14, v11, vcc""")
        e.vmop(f"buffer_load_dword v255, v10, s[28:31], s{sT1} offen", 'pf')
        e.vmop(f"buffer_load_dword v255, v11, s[28:31], s{sT1} offen", 'pf')

    def touch3_setup(self):
        e = self.e
        e(f"""s_cmp_eq_u32 s{sW}, 0
        s_cselect_b64 s[28:29], s[{SX}:{SX+1}], s[{S1}:{S1+1}]
        s_cselect_b32 s30, s{SX+2}, s{S1+2}
        s_cselect_b32 s{sT0}, 24, 21
        s_mov_b32 s44, {64*3456}
        s_cselect_b32 s44, 128, s44
        s_cselect_b64 vcc, -1, 0
        s_cmp_eq_u32 s{sW}, 1
        s_cselect_b64 s[28:29], s[{SQ}:{SQ+1}], s[28:29]
        s_cselect_b32 s30, s{SQ+2}, s30
        s_cselect_b32 s{sT0}, 23, s{sT0}
        s_cselect_b32 s44, {64*3840}, s44
        s_cmp_eq_u32 s{sW}, 3
        s_cselect_b32 s30, 0, s30
        s_mov_b32 s31, 0x20000
        s_mul_i32 s{sT1}, s{sT0}, s2
        v_add_u32 v10, s{sT1}, v0
        v_mul_u32_u24 v11, 21846, v10
        v_lshrrev_b32 v11, 16, v11
        v_mul_u32_u24 v11, {1280-384}, v11
        v_lshlrev_b32 v10, 7, v10
        v_add_u32 v11, v11, v10
        v_cndmask_b32 v10, v10, v11, vcc
        v_mov_b32 v14, {OOB}
        v_cmp_gt_u32 vcc, s{sT0}, v0
        v_cndmask_b32 v251, v14, v10, vcc""")
    def touch3(self, part):
        return [('x', f"s_mul_i32 s45, s44, {1 + 3 * part}"), ('vm', "buffer_load_dword v255, v251, s[28:31], s45 offen", 'pf')]

    def touch6_pre(self):
        e = self.e; a, b = self.c.tab
        for reg, s0, n in ((250, a, b - a), (251, b, 10 - b)):
            nx, nq, n1 = 8 * n, -(-64 * n * 30 // 256), -(-64 * n * 27 // 256)
            e(f"""s_cmp_eq_u32 s{sW}, 1
            s_cselect_b32 s{sT0}, {nq}, {n1}
            s_mov_b32 s{sT2}, {s0*64*3456}
            s_cselect_b32 s{sT2}, {s0*64*3840}, s{sT2}
            s_cmp_eq_u32 s{sW}, 0
            s_cselect_b32 s{sT0}, {nx}, s{sT0}
            s_cselect_b32 s{sT2}, {s0*128}, s{sT2}
            s_cselect_b32 s{sT3}, {1280 - 128*n}, 0
            s_mul_i32 s{sT1}, s{sT0}, s2
            v_add_u32 v10, s{sT1}, v0
            v_mul_u32_u24 v11, {-(-65536*4 // n)}, v10
            v_lshrrev_b32 v11, 18, v11
            v_mul_lo_u32 v11, v11, s{sT3}
            v_lshl_add_u32 v10, v10, 7, v11
            v_add_u32 v10, s{sT2}, v10
            v_mov_b32 v14, {OOB}
            v_cmp_gt_u32 vcc, s{sT0}, v0
            v_cndmask_b32 v{reg}, v14, v10, vcc""")
    def touch6_srd(self):
        self.e(f"""s_cmp_eq_u32 s{sW}, 0
        s_cselect_b64 s[28:29], s[{SX}:{SX+1}], s[{S1}:{S1+1}]
        s_cselect_b32 s30, s{SX+2}, s{S1+2}
        s_cmp_eq_u32 s{sW}, 1
        s_cselect_b64 s[28:29], s[{SQ}:{SQ+1}], s[28:29]
        s_cselect_b32 s30, s{SQ+2}, s30
        s_cmp_eq_u32 s{sW}, 3
        s_cselect_b32 s30, 0, s30
        s_mov_b32 s31, 0x20000""")
    def touch6(self, part): return [('vm', f"buffer_load_dword v255, v{250+part}, s[28:31], 0 offen", 'pf')]

    def tlb_touch(self):
        e = self.e; c = self.c
        if not c.tlb: return
        if c.tlb == 1:
            e(f"v_lshlrev_b32 v10, 18, v0\nv_add_u32 v10, 0x1f800, v10")
            e.vmop(f"buffer_load_dword v255, v10, {srd(SWS)}, 0 offen sc1", 'pf')
        else:
            e(f"""s_mul_i32 s{sT0}, s{sNB}, {74*5120}
            s_add_u32 s{sT0}, s{sT0}, {PB}
            s_mul_i32 s{sT1}, s{sRB}, {74*4096}
            s_add_u32 s{sT1}, s{sT1}, {A2 - 8*65536}
            s_mul_i32 s{sT3}, s{sMT}, {2*74*4096}
            s_add_u32 s{sT3}, s{sT3}, {A2 - 16*65536}
            v_lshlrev_b32 v10, 16, v0
            v_mov_b32 v11, s{sT0}
            v_mov_b32 v14, s{sT1}
            v_cmp_le_u32 vcc, 8, v0
            v_cndmask_b32 v11, v11, v14, vcc
            v_mov_b32 v14, s{sT3}
            v_cmp_le_u32 vcc, 16, v0
            v_cndmask_b32 v11, v11, v14, vcc
            v_add_u32 v11, v11, v10
            v_subrev_u32 v14, 32, v0
            v_mul_u32_u24 v14, 0x18000, v14
            v_cmp_le_u32 vcc, 32, v0
            v_cndmask_b32 v10, v11, v14, vcc""")
            e.vmop(f"buffer_load_dword v255, v10, {srd(SWS)}, 0 offen sc1", 'pf')
        mk_srd(e, 28, pOUT, 2048 * 1280)
        e("v_lshlrev_b32 v10, 16, v0")
        e.vmop("buffer_load_dword v255, v10, s[28:31], 0 offen sc1", 'pf')
        if c.tlb2:
            for p, n in ((pB2, 1280),):
                mk_srd(e, 28, p, n); e.vmop("buffer_load_dword v255, v6, s[28:31], 0 offen", 'pf')

    def tag_wait(self):
        e = self.e
        e(f"""s_waitcnt lgkmcnt(0)
        s_add_u32 s{sTAG}, s{sTAG}, 1
        v_mov_b32 v247, s{sTAG+1}
        v_mov_b32 v246, s{sTAG}
        s_movk_i32 s42, {TBM}""")
        if self.c.xA == 2: e(f's_mov_b32 s41, {OOB}')
        e.lg = []
    def pack_loads(self):
        return [([('x', f"s_add_u32 m0, s{sM0}, {L_PACK}")] if i == 0 else []) +
                [('vm', f"buffer_load_dwordx4 v252, {srd(SPK)}, s{32+i} offen offset:{i*1024} {self.c.psc} lds", 'packld')] for i in range(4)]
    def pack_fill(self, m, nm):
        f = []
        for i in range(8):
            t, h = i >> 1, i & 1
            f.append(dict(at=m + 2 + 2 * i, ins=[('lg', f"ds_read_b64_tr_b16 a[{160+4*t+2*h}:{161+4*t+2*h}], v{PKA+t} offset:{(t>>1)*64+512*h}", 'pk')]))
        return f
    def wb_item(self):
        return [[('wvm', 'pkst'), ('vm', "buffer_wbl2 sc1", 'pkst')]] if self.c.wbl else []
    def pack_stores(self):
        return [([('wlg', 'pk')] if i == 0 else []) + [('vm', f"buffer_store_dwordx4 {ar(160+4*i)}, v6, {srd(SWS)}, s{sPKD+i} offen {self.c.pss}", 'pkst')] for i in range(4)]

    def btouch(self):
        pre = [l.strip() for l in f"""s_and_b32 s{sT0}, s{sRB}, 7
        s_lshl_b32 s{sT0}, s{sT0}, 2
        s_add_u32 s{sT0}, s{sT0}, s{sW}
        s_mul_i32 s{sT0}, s{sT0}, {93*128}
        s_mul_i32 s{sT1}, s{sNB}, {74*5120}
        s_add_u32 s{sT0}, s{sT0}, s{sT1}
        s_add_u32 s{sT0}, s{sT0}, {PB}
        v_lshlrev_b32 v248, 7, v0
        v_min_u32 v249, 28, v0
        v_lshlrev_b32 v249, 7, v249""".split("\n")]
        n = self.c.bt
        out = [[('x', l) for l in pre]]
        if n == 1:
            out[0] += [('vm', f"buffer_load_dword v255, v248, {srd(SWS)}, s{sT0} offen sc1", 'pf')]
            out.append([('x', f"s_add_u32 s{sT0}, s{sT0}, 8192"), ('vm', f"buffer_load_dword v255, v249, {srd(SWS)}, s{sT0} offen sc1", 'pf')])
        else:
            out[0] += [('x', "v_min_u32 v249, 23, v0"), ('x', "v_lshlrev_b32 v249, 7, v249")]
            for i in range(4): out.append([('vm', f"buffer_load_dword v255, v249, {srd(SWS)}, s{sT0} offen offset:0 sc1", 'pf'), ('x', f"s_add_u32 s{sT0}, s{sT0}, 3072")])
        return out
    def btouch3_pre(self):
        return [('x', l.strip()) for l in f"""s_and_b32 s44, s{sRB}, 7
        s_lshl_b32 s44, s44, 2
        s_add_u32 s44, s44, s{sW}
        s_mul_i32 s44, s44, {93*128}
        s_mul_i32 s45, s{sNB}, {74*5120}
        s_add_u32 s44, s44, s45
        s_add_u32 s44, s44, {PB}
        v_min_u32 v250, {self.c.btl - 1}, v0
        v_lshlrev_b32 v250, 7, v250""".split("\n")]
    def btouch3(self, k, n):
        tot = -(-93 // self.c.btl); per = -(-tot // n)
        return [[('x', f"s_add_u32 s45, s44, {i*self.c.btl*128}"), ('vm', f"buffer_load_dword v255, v250, {srd(SWS)}, s45 offen sc1", 'pf')] for i in range(k * per, min(tot, (k + 1) * per))]
    def code_touch(self, endlab):
        Lp = self.lab('pc')
        return [('x', f"s_getpc_b64 s[30:31]\n{Lp}:"), ('x', f"s_bfe_u32 s{sT0}, s2, 0x40003"), ('x', f"s_lshl_b32 s{sT0}, s{sT0}, 2"), ('x', f"s_add_u32 s{sT0}, s{sT0}, s{sW}"),
                ('x', f"s_lshl_b32 s{sT0}, s{sT0}, 9"), ('x', "v_and_b32 v7, 3, v0"), ('x', f"v_lshl_add_u32 v7, v7, 7, s{sT0}"),
                ('x', f"v_cmp_gt_u32 vcc, {endlab}-{Lp}, v7"), ('x', "v_cndmask_b32 v7, 0, v7, vcc"), ('vm', "global_load_dword v255, v7, s[30:31]", 'pf')]
    def f1_issue(self):
        pre = [l.strip() for l in f"""s_mul_i32 s{sT0}, s{sNB}, 5
        s_add_u32 s{sT1}, s{sT0}, 4
        s_lshr_b32 s{sT0}, s{sT0}, 2
        s_mul_i32 s{sT0}, s{sT0}, 74
        s_lshr_b32 s{sT0}, s{sT0}, 2
        s_lshr_b32 s{sT1}, s{sT1}, 2
        s_mul_i32 s{sT1}, s{sT1}, 74
        s_add_u32 s{sT1}, s{sT1}, 73
        s_lshr_b32 s{sT1}, s{sT1}, 2
        v_add_u32 v235, s{sT0}, v0
        v_min_u32 v235, s{sT1}, v235
        v_lshlrev_b32 v235, 7, v235
        s_mov_b32 s{sT0}, {F1}""".split("\n")]
        return [[('x', l) for l in pre] + [('vm', self.poll_issue(235, 248, 2, None, f"s{sT0}"), 'f1p')]]
    def f1_check(self):
        return [('wvm', 'f1p')] + [('x', t) for t in self.poll_check([(235, 248, 2, f"s{sT0}")])]
    def tag_issue(self):
        e = self.e
        e(f"s_or_b32 s55, s2, s{sW}\ns_min_u32 s55, s55, 1\ns_mul_i32 s55, s55, {OOB}\ns_add_u32 s55, s55, {F1}\nv_lshlrev_b32 v200, 7, v0")
        for i in range(1, 4): e(f"v_add_u32 v{200+i}, {8192*i}, v200")
        self.tgl = [(200 + i, 248 + 2 * i, 2, "s55") for i in range(4)]
        for p in self.tgl: e.vmop(self.poll_issue(p[0], p[1], 2, None, p[3]), 'tg')
    def tag_update(self):
        e = self.e; L = self.lab('tg')
        e.wait(vm='tg')
        e(f"s_or_b32 s{sT0}, s2, s{sW}\ns_cbranch_scc1 {L}")
        for l in self.poll_check(self.tgl): e(l)
        e(self.flag_store(245, 246, str(TAG)))
        e(f"{L}:")

    def attn_voff(self, dst, cexpr_base, colbase_s):
        e = self.e
        e(f"""v_mul_u32_u24 v10, 6554, v9
        v_lshrrev_b32 v10, 16, v10
        v_mad_i32_i24 v11, v10, -10, v9""")
        self.swap23(10, 12)
        e(f"""v_mul_u32_u24 v10, 3840, v10
        v_lshl_add_u32 v10, v11, 4, v10
        v_add_u32 v{dst}, s{colbase_s}, v10""")
    def swap23(self, r, t):
        self.e(f"""v_lshrrev_b32 v{t}, 1, v{r}
        v_xor_b32 v{t}, v{t}, v{r}
        v_and_b32 v{t}, 4, v{t}
        v_mul_u32_u24 v{t}, 3, v{t}
        v_xor_b32 v{r}, v{r}, v{t}""")

    def small_dma(self, sr, vaddr, soff, ldsaddr, nlanes, tag, m0expr=None):
        e = self.e
        e(m0expr or f"s_mov_b32 m0, {ldsaddr}")
        if nlanes < 64: e(f"s_mov_b64 exec, {hex((1 << nlanes) - 1)}" if nlanes <= 32 else f"s_mov_b32 exec_hi, {hex((1 << (nlanes-32)) - 1)}")
        e.vmop(f"buffer_load_dwordx4 v{vaddr}, {srd(sr)}, {soff} offen lds", tag)
        if nlanes < 64: e("s_mov_b64 exec, -1")

    def csel(self, d, a, b):
        inl = lambda x: isinstance(x, str) or -16 <= x <= 64
        if inl(a) or inl(b): self.e(f"s_cselect_b32 s{d}, {a}, {b}")
        else: self.e(f"s_mov_b32 s{d}, {b}\ns_cselect_b32 s{d}, {a}, s{d}")

    def init_B(self):
        self.Bloc = {}; self.Bq = []
        order = [(i, t) for i in range(19) for t in range(5)]
        for u, k in enumerate(order):
            if u < 64: self.Bloc[k] = ('a', 4 * u)
            elif u < 64 + NL: self.Bloc[k] = ('l', u - 64)
            else: self.Bloc[k] = None
        self.Border = order; self.Bpend = list(range(64 + NL)); self.Bcur = None; self.Acur = None
    def koff(self, i):
        r0, r1, r2 = self.perm
        if i < 10: return 4 * ((i + r0) % 10)
        if i < 14: return 38 + 4 * ((i - 10 + r1) % 4)
        return 54 + 4 * ((i - 14 + r2) % 5)
    def soff(self, d, i, w):
        e_, o_, s8, s9, unit = (sB, sBo, sB8, sB9, 5120) if w == 'B' else (sA, sAo, sA8, sA9, 4096)
        if not self.c.par: return f"s_mov_b32 s{d}, s{s9}" if self.koff(i) == 36 else f"s_add_u32 s{d}, s{e_}, {self.koff(i)*unit}"
        if i in (8, 9): return f"s_mov_b32 s{d}, s{s8 if i == 8 else s9}"
        if i == 18: return f"s_add_u32 s{d}, s{e_}, s{o_}\ns_lshr_b32 s{d}, s{d}, 1\ns_add_u32 s{d}, s{d}, {self.koff(i)*unit}"
        idx = i if i < 10 else i - 10 if i < 14 else i - 14
        return f"s_add_u32 s{d}, s{e_ if idx & max(self.c.par, 1) == 0 else o_}, {self.koff(i)*unit}"
    def B_items(self, k, loc):
        i, t = k; it = []
        if self.Bcur != i:
            it.append(('x', self.soff(sBT, i, 'B'))); self.Bcur = i
        va, imm = (6, t * 1024) if t < 4 else (240, 0)
        if loc[0] == 'l':
            assert L_BL + loc[1]*1024 - imm >= 0
            it.append(('x', f"s_add_u32 m0, s88, {L_BL + loc[1]*1024 - imm}"))
            it.append(('vm', f"buffer_load_dwordx4 v{va}, {srd(SWS)}, s{sBT} offen offset:{imm} sc1 lds", ('B', k)))
        else:
            it.append(('vm', f"buffer_load_dwordx4 {R(loc)}, v{va}, {srd(SWS)}, s{sBT} offen offset:{imm} sc1", ('B', k)))
        return it
    def B_take(self, us):
        out = []
        for u in us:
            k = self.Border[u]; out.append(self.B_items(k, self.Bloc[k]))
            if self.c.xB == 1: out[-1] = [('x', 's_nop 0')]
            if self.c.xB == 2: out[-1] = [(it[0], it[1].replace(f"s{sBT} offen", "s43 offen"), it[2]) if it[0] == 'vm' else it for it in out[-1]]
            if self.c.xB == 3: out[-1] = [(it[0], it[1].replace(f"s{sBT} offen", f"s{sB} offen"), it[2]) if it[0] == 'vm' else it for it in out[-1]]
        return out
    def ph2_bg(self, u): pass
    def bg_try(self, allowed, S=None):
        e = self.e
        if e.t - e.tvm < (S or self.c.S): return False
        if allowed == self.ph2_bg: return self.try_issue(self.m, True, True)
        for u in self.Bpend:
            if allowed(u):
                self.Bpend.remove(u); self.emit_items(self.B_take([u])[0]); return True
        return False
    def emit_items(self, items):
        e = self.e
        for it in items:
            if it[0] == 'vm': e.vmop(it[1], it[2])
            elif it[0] == 'lg': e.lgop(it[1], it[2])
            elif it[0] == 'wvm': e.wait(vm=it[1])
            elif it[0] == 'wlg': e.wait(lg=it[1])
            elif it[0] == 'st': self.stamp(it[1], it[2])
            else: e(it[1])
    def valu(self, lines, side=None, every=1, bg=None, S=None):
        n = 0
        for l in lines:
            if isinstance(l, str): self.e(l)
            else: self.emit_items([l])
            n += 1
            if side and n % every == 0: self.emit_items(side.pop(0))
            if bg: self.bg_try(bg, S)

    def interleave(self, items, side, every):
        W = ('s_cmp', 's_add', 's_sub', 's_and', 's_andn2', 's_or', 's_xor', 's_lshl', 's_lshr', 's_bitcmp', 's_min', 's_max')
        Rd = ('s_cselect', 's_addc', 's_subb', 's_cbranch_scc')
        live = [False] * len(items); l = False
        for i in range(len(items) - 1, -1, -1):
            live[i] = l
            t = items[i][1]
            if t.startswith(Rd): l = True
            elif t.startswith(W): l = False
        n = 0
        for i, it in enumerate(items):
            self.emit_items([it]); n += 1
            if side and n >= every and not live[i]: self.emit_items(side.pop(0)); n = 0
        for g in side: self.emit_items(g)

    def gelu_lines(self, X, Y, T, O):
        U = [X, X + 2, Y, Y + 2]; L = []
        P = lambda r: f"v[{r}:{r+1}]"
        for i in range(4): L.append(f"v_pk_mul_f32 {P(T+2*i)}, {P(U[i])}, {P(U[i])}")
        for i in range(4): L.append(f"v_pk_fma_f32 {P(T+2*i)}, {P(T+2*i)}, v[14:15], s[{sC0}:{sC1}] op_sel_hi:[1,0,0]")
        for i in range(4): L.append(f"v_pk_mul_f32 {P(T+2*i)}, {P(T+2*i)}, {P(U[i])}")
        for i in range(8): L.append(f"v_exp_f32 v{T+i}, v{T+i}")
        for i in range(4): L.append(f"v_pk_add_f32 {P(T+2*i)}, {P(T+2*i)}, 1.0 op_sel_hi:[1,0]")
        for i in range(8): L.append(f"v_rcp_f32 v{T+i}, v{T+i}")
        for i in range(4): L.append(f"v_pk_mul_f32 {P(T+2*i)}, {P(T+2*i)}, {P(U[i])}")
        for i in range(4): L.append(f"v_cvt_pk_bf16_f32 v{O+i}, v{T+2*i}, v{T+2*i+1}")
        return L if not (self.c.skip & 1) else L[-8:]
    def gelu_consts(self):
        c1 = -2.0 * math.sqrt(2.0 / math.pi) * math.log2(math.e)
        self.e(f"s_mov_b32 s{sC0}, {fl(c1)}\nv_mov_b32 v14, {fl(c1 * 0.044715)}")
    def softmax_lines(self, Pp, E, PH):
        L = []; P = lambda r: f"v[{r}:{r+1}]"
        L += [f"v_max3_f32 v8, v{Pp}, v{Pp+1}, v{Pp+2}", f"v_min3_f32 v10, v{Pp}, v{Pp+1}, v{Pp+2}"]
        for i in range(3, 19, 2): L += [f"v_max3_f32 v8, v8, v{Pp+i}, v{Pp+i+1}", f"v_min3_f32 v10, v10, v{Pp+i}, v{Pp+i+1}"]
        L += [f"v_max_f32 v8, v8, v{Pp+19}", f"v_min_f32 v10, v10, v{Pp+19}"]
        L += [f"v_mul_f32_e64 v8, -v8, s{sC0}", f"v_mul_f32 v10, s{sC0}, v10"]
        for i in range(10):
            L.append(f"v_pk_fma_f32 {P(E+2*i)}, {P(Pp+2*i)}, s[{sC0}:{sC1}], v[8:9] op_sel_hi:[1,0,0]")
            L.append(f"v_pk_fma_f32 {P(E+20+2*i)}, {P(Pp+2*i)}, s[{sC0}:{sC1}], v[10:11] op_sel_hi:[1,0,0] neg_lo:[1,0,0] neg_hi:[1,0,0]")
        for i in range(40): L.append(f"v_exp_f32 v{E+i}, v{E+i}")
        L += [f"v_pk_add_f32 v[8:9], {P(E)}, {P(E+2)}", f"v_pk_add_f32 v[10:11], {P(E+20)}, {P(E+22)}"]
        for i in range(2, 10): L += [f"v_pk_add_f32 v[8:9], v[8:9], {P(E+2*i)}", f"v_pk_add_f32 v[10:11], v[10:11], {P(E+20+2*i)}"]
        L += ["v_add_f32 v8, v8, v9", "v_add_f32 v10, v10, v11", "v_rcp_f32 v8, v8", "v_rcp_f32 v10, v10"]
        for i in range(10): L.append(f"v_pk_mul_f32 {P(E+2*i)}, {P(E+2*i)}, v[8:9] op_sel_hi:[1,0]")
        for i in range(10): L.append(f"v_pk_mul_f32 {P(E+20+2*i)}, {P(E+20+2*i)}, v[10:11] op_sel_hi:[1,0]")
        for i in range(20): L.append(f"v_cvt_pk_bf16_f32 v{PH+i}, v{E+2*i}, v{E+2*i+1}")
        return L if not (self.c.skip & 2) else [l if 'cvt' in l else '' for l in L]
    def wphi_addr(self, va):
        self.e(f"v_mul_u32_u24 v{va}, 800, v2\nv_mad_u32_u24 v{va}, v3, 40, v{va}\nv_add_u32 v{va}, {L_WPHI}, v{va}")
    def wphi_reads(self, va):
        return [[('lg', f"ds_read_b64_tr_b16 a[{AW+2*(dg*5+fg)}:{AW+1+2*(dg*5+fg)}], v{va} offset:{dg*160 + fg*8}", 'wphi')] for dg in range(5) for fg in range(5)]
    def phi_mfmas(self, KQ, Pp):
        L = []
        for dg in range(5):
            for j in range(2):
                for fg in range(5):
                    d = Pp + 20 * j + 4 * fg; w = AW + 2 * (dg * 5 + fg); b = KQ + 10 * j + 2 * dg
                    L.append(f"v_mfma_f32_4x4x4_16b_bf16 {vr(d)}, a[{w}:{w+1}], v[{b}:{b+1}], {vr(d) if dg else 0}")
        return L
    def cvt_heads(self, acc0, dst, j, n=5):
        return [f"v_cvt_pk_bf16_f32 v{dst+2*t+h}, v{acc0+(t*2+j)*4+2*h}, v{acc0+(t*2+j)*4+2*h+1}" for t in range(n) for h in range(2)]
    def rho0(self, dst):
        self.e(f"v_lshrrev_b32 v{dst}, 1, v2\nv_lshl_add_u32 v{dst}, v{dst}, 4, v3\nv_and_b32 v7, 1, v2\nv_lshl_add_u32 v{dst}, v7, 2, v{dst}")
    def x_addr(self, ST, nsl=3, base=220):
        e = self.e
        e(f"""v_lshrrev_b32 v9, 1, v1
        v_xor_b32 v9, v9, v2
        v_lshlrev_b32 v9, 4, v9
        v_lshl_add_u32 v9, v1, 7, v9
        v_add_u32 v{base}, s{sM0}, v9
        v_xor_b32 v{base+1}, 64, v{base}""")
        for sl in range(1, nsl): e(f"v_add_u32 v{base+2*sl}, {sl*ST}, v{base}\nv_add_u32 v{base+1+2*sl}, {sl*ST}, v{base+1}")
    def paced(self, groups, m0, span):
        n = len(groups)
        return [dict(at=m0 + int((k + 0.2) * span / n), chain=1, ins=list(g)) for k, g in enumerate(groups)]
    def prog_QH(self):
        e = self.e; c = self.c; self.init_B(); self.perm = (0, 0, 0); self.dmap = {0: 3, 1: 5, 2: 7, 3: 9, 14: 11, 7: 13, 9: 15}
        e("L_QH:")
        ST = QH_ST
        e(f"""s_mul_i32 s{sKW}, s{sHG}, 320
        s_lshl_b32 s{sT0}, s{sHG}, 8
        s_add_u32 s{sT0}, s{sT0}, 384
        s_cmp_lt_u32 s{sHG}, 6
        s_cselect_b32 s{sKW}, s{sKW}, s{sT0}
        s_cselect_b32 s{sK1}, 20, 16
        s_mul_i32 s{sT2}, s{sW}, 320""")
        def dma_x(st):
            g = []
            for j in range(4):
                it = [('x', f"s_add_u32 m0, s{sM0}, {(st%3)*ST}")] if j == 0 else []
                g.append(it + [('vm', f"buffer_load_dwordx4 v{208+j}, {srd(SX)}, s{sE+st} offen offset:{j*1024} {c.xsc} lds", ('S', st))])
            return g
        def dma_a(st, i):
            it = []
            if i == 0: it = [('x', f"s_mul_i32 s{sKA}, s{sE+st}, 1920"), ('x', f"s_add_u32 m0, s{sM0+1}, {(st%3)*ST}")]
            if i == 2: it = [('x', f"s_mov_b32 m0, s{sM0+3+st%3}")]
            return it + [('vm', f"buffer_load_dwordx4 v{212+i}, {srd(SQ)}, s{sKA} offen offset:{1024 if i == 1 else 0} {c.wsc} lds", ('S', st))]
        def dma_h(st, i):
            it = []
            if i == 0: it = [('x', f"s_mul_i32 s{sKB}, s{sE+st}, 1728"), ('x', f"s_add_u32 m0, s{sM0+2}, {(st%3)*ST}")]
            if i == 4: it = [('x', "s_add_u32 m0, m0, 4096")]
            return it + [('vm', f"buffer_load_dwordx4 v{215+i}, {srd(S1)}, s{sKB} offen offset:{(i%4)*1024} {c.wsc} lds", ('S', st))]
        def dma_stage(st): return dma_x(st) + [dma_a(st, i) for i in range(3)] + [dma_h(st, i) for i in range(5)]
        if c.fast:
            self.kernarg_wait()
            if c.touch == 3: self.touch()
            if c.touch == 6:
                self.touch6_srd()
                if c.tpa == 0: self.emit_items(self.touch6(0))
            for g in dma_x(0): self.emit_items(g)
            if c.touch == 5: self.touch()
            self.small_dma(SM, 6, f"s{sKW}", None, 20, 'bias', f"s_add_u32 m0, s{sT2}, {L_BIASQH}")
        e(f"""s_mul_i32 s{sT0}, s{sW}, 3
        s_lshl_b32 s{sT1}, s{sW}, 1
        s_add_u32 s{sT1}, s{sT1}, 2
        s_cmp_lt_u32 s{sW}, 2
        s_cselect_b32 s{sT0}, s{sT0}, s{sT1}
        s_lshl_b32 s{sM0+1}, s{sT0}, 10
        s_add_u32 s{sM0+1}, s{sM0+1}, 16384""")
        for sl in range(3):
            e(f"s_add_u32 s{sM0+3+sl}, s{sM0+1}, {2048 + sl*ST}\ns_cmp_lt_u32 s{sW}, 2\ns_cselect_b32 s{sM0+3+sl}, s{sM0+3+sl}, {MISC+4608}")
        e(f"s_lshl_b32 s{sT0}, s{sT0}, 6\ns_mul_i32 s{sT1}, s{sHG}, 160\ns_mul_i32 s{sM0+2}, s{sW}, 5120\ns_add_u32 s{sM0+2}, s{sM0+2}, {16384+10240}")
        for i in range(3):
            e(f"v_add_u32 v9, {64*i}, v0\nv_add_u32 v9, s{sT0}, v9")
            self.attn_voff(212 + i, None, sT1)
            if i == 1: e("v_subrev_u32 v213, 1024, v213")
            if i == 2: e(f"s_cmp_lt_u32 s{sW}, 2\ns_cselect_b32 s{sT4}, 0, {OOB}\nv_add_u32 v214, s{sT4}, v214")
            if c.fast: self.emit_items(dma_a(0, i))
        if not c.fast:
            self.kernarg_wait()
            self.small_dma(SM, 6, f"s{sKW}", None, 20, 'bias', f"s_add_u32 m0, s{sT2}, {L_BIASQH}")
            for g in dma_x(0) + [dma_a(0, i) for i in range(3)]: self.emit_items(g)
        e(f"s_mul_i32 s{sT0}, s{sW}, 320\nv_mov_b32 v14, {OOB}")
        for i in range(5):
            e(f"""v_add_u32 v9, {64*i}, v0
            v_add_u32 v9, s{sT0}, v9
            v_mul_u32_u24 v10, 3277, v9
            v_lshrrev_b32 v10, 16, v10
            v_mul_u32_u24 v11, 20, v10
            v_sub_u32 v11, v9, v11
            v_bfe_u32 v13, v10, 2, 1
            v_lshlrev_b32 v13, 1, v13
            v_xor_b32 v11, v11, v13
            v_cmp_gt_u32 vcc, s{sK1}, v11""")
            self.swap23(10, 12)
            e(f"""v_mul_u32_u24 v10, 3456, v10
            v_lshl_add_u32 v10, v11, 4, v10
            v_add_u32 v10, s{sKW}, v10
            v_subrev_u32 v10, {(i%4)*1024}, v10
            v_cndmask_b32 v{215+i}, v14, v10, vcc""")
            self.emit_items(dma_h(0, i))
        self.pstamp(1)
        if c.pke:
            self.pack_setup()
            for g in self.pack_loads(): self.emit_items(g)
        if c.touch == 1: self.touch()
        if c.touch == 6 and c.tpa == 1: self.emit_items(self.touch6(0))
        if c.touch == 4:
            self.touch3_setup()
            for p_ in range(c.tp0): self.emit_items(self.touch3(p_))
        self.pstamp(2)
        def setup():
            e = self.e
            self.x_addr(ST); self.rho0(8)
            e(f"v_mul_u32_u24 v9, 160, v8\nv_mad_u32_u24 v9, v4, 40, v9\nv_add_u32 v226, 16384, v9")
            e(f"v_mul_u32_u24 v9, 320, v8\nv_lshl_add_u32 v9, v4, 3, v9\nv_add_u32 v9, {16384+10240}, v9\nv_lshl_add_u32 v229, v7, 5, v9\nv_xor_b32 v7, 1, v7\nv_lshl_add_u32 v232, v7, 5, v9")
            for sl in (1, 2): e(f"v_add_u32 v{226+sl}, {sl*ST}, v226\nv_add_u32 v{229+sl}, {sl*ST}, v229\nv_add_u32 v{232+sl}, {sl*ST}, v232")
            self.common_setup()
            if not c.pke: self.pack_setup()
            e(f"s_mul_i32 s{sT1}, s{sW}, 320\ns_add_u32 s{sT1}, s{sT1}, {L_BIASQH}\nv_lshl_add_u32 v13, v2, 3, s{sT1}")
            e(f"""s_lshl_b32 s{sT0}, s{sMT}, 1
            s_lshr_b32 s{sT1}, s{sW}, 1
            s_add_u32 s{sT0}, s{sT0}, s{sT1}
            s_and_b32 s{sT1}, s{sW}, 1
            s_mul_i32 s{sT2}, s{sT0}, 74
            s_lshl_b32 s{sT2}, s{sT2}, 12
            s_lshl_b32 s{sT3}, s{sT1}, 11
            s_add_u32 s{sT2}, s{sT2}, s{sT3}
            s_add_u32 s{sT2}, s{sT2}, {A2}
            s_lshr_b32 s{sT4}, s{sHG}, 1
            s_mul_i32 s{sT4}, s{sT4}, 5
            s_add_u32 s{sT4}, s{sT4}, 54
            s_lshl_b32 s{sT4}, s{sT4}, 12
            s_add_u32 s{sT4}, s{sT4}, s{sT2}
            s_and_b32 s{sT5}, s{sHG}, 1
            s_lshl_b32 s38, s{sT5}, 13
            s_add_u32 s38, s38, s{sT4}
            s_add_u32 s39, s{sT4}, {4*4096}
            s_lshl_b32 s{sT5}, s{sT5}, 3
            s_add_u32 s39, s39, s{sT5}
            s_lshl_b32 s{sT0}, s{sHG}, 4
            s_add_u32 s{sT0}, s{sT0}, s{sMT}
            s_lshl_b32 s{sT0}, s{sT0}, 2
            s_add_u32 s{sT0}, s{sT0}, s{sW}
            s_lshl_b32 s{sT0}, s{sT0}, 9
            s_add_u32 s43, s{sT0}, {GB}
            v_mov_b32 v204, -1
            v_mov_b32 v205, -1
            v_mov_b32 v206, -1
            v_mov_b32 v207, -1""")
        self.interleave(self.record(setup), dma_stage(1)[:c.n1], c.pe)
        self.pstamp(3)
        if c.n1 >= 12:
            self.small_dma(SM, 6, "s36", None, 50, 'misc', "s_mov_b32 m0, s37")
            if c.touch == 2: self.touch()
            if not c.pke and not c.pkl:
                for g in self.pack_loads(): self.emit_items(g)
        self.tag_wait(); self.pstamp(4)
        e.wait(vm='bias')
        for s_ in range(10): e.lgop(f"ds_read_b64 v[{136+2*s_}:{137+2*s_}], v13 offset:{s_*32}", ('b', s_))
        for s_ in range(10):
            a0 = 16 + (5 + s_) * 8; e.wait(lg=('b', s_))
            for h in range(2): e(f"v_lshlrev_b32 v{a0+2*h}, 16, v{136+2*s_+h}\nv_and_b32 v{a0+2*h+1}, 0xffff0000, v{136+2*s_+h}")
        self.stamp(0)
        NS = 15; nm = NS * 4; mf = []; reads = []; mfl = []; readsl = []; gs = [0, 0]
        for st in range(10):
            sl = st % 3; seen = set()
            for t in range(NS):
                lt = int(st >= 10 - c.dfq and t < 5); M, RD_ = (mf, mfl)[lt], (reads, readsl)[lt]; stg = -1 if lt else st
                wr = 168 + 8 * (gs[lt] % 4); gs[lt] += 1; m0 = len(M)
                for ks in range(2):
                    for rd in range(2):
                        if t < 5: ad, off = 226 + sl, ks * 5120 + rd * 1280 + t * 8
                        else: ad, off = (229 if (t - 5) % 2 == 0 else 232) + sl, ks * 10240 + rd * 2560 + ((t - 5) >> 1) * 64
                        RD_.append([f"ds_read_b64_tr_b16 v[{wr+4*ks+2*rd}:{wr+4*ks+2*rd+1}], v{ad} offset:{off}", m0, stg, m0 - 13])
                for j in ((1, 0) if st == 0 else (0, 1)):
                    for ks in range(2):
                        xr = 136 + (st % 2) * 16 + (j * 2 + ks) * 4; d = 16 + (t * 2 + j) * 4
                        if (lt, j, ks) not in seen:
                            seen.add((lt, j, ks)); RD_.append([f"ds_read_b128 {vr(xr)}, v{220+2*sl+ks} offset:{j*2048}", len(M), stg, (len(M) // 20) * 20 - 21 if lt else -1])
                        cc = vr(d)
                        if st == 0 and ks == 0: cc = "0" if t < 5 else vr(16 + t * 8)
                        M.append(f"v_mfma_f32_16x16x32_bf16 {vr(d)}, {vr(wr+4*ks)}, {vr(xr)}, {cc}")
        po = lambda va, off: [('vm', f"buffer_store_dwordx4 v[204:207], v{va}, {srd(SWS)}, s38 offen offset:{off} sc1", 'hst')]
        poison = [po(6, 0), po(6, 1024), po(240, 0), po(240, 1024)] + [[('vm', f"buffer_store_dwordx2 v[204:205], v6, {srd(SWS)}, s39 offen offset:{j*1024} sc1", 'hst')] for j in range(2)]
        self.ulim = 51
        self.kloop(mf, reads, nm, dma_stage, poison, 'QH')
        A51 = lambda u: u < 51; A64 = lambda u: u < 64; ALL = lambda u: True
        self.gelu_consts()
        e(f"s_lshl_b32 s{sT3}, s{sKW}, 6\ns_add_u32 s{sT3}, s{sT3}, s{sT2}")
        L = []
        for p in range(5):
            for j in range(2):
                O = 152 + 4 * ((2 * p + j) % 4)
                L += self.gelu_lines(16 + ((5 + 2 * p) * 2 + j) * 4, 16 + ((6 + 2 * p) * 2 + j) * 4, 136 + 8 * j, O)
                if j == 0:
                    if p == 4: L += [f"s_add_u32 s{sT4}, s{sT3}, {4*4096}", f"s_cmp_lt_u32 s{sHG}, 6\ns_cselect_b32 s{sT4}, s{sT4}, {OOB}"]
                    else: L.append(f"s_add_u32 s{sT4}, s{sT3}, {p*4096}")
                L.append(('vm', f"buffer_store_dwordx4 {vr(O)}, v6, {srd(SWS)}, s{sT4} offen offset:{j*1024} sc1", 'hst'))
        self.valu(L, bg=A51, S=c.Sg)
        if mfl: self.stream(mfl, readsl, [], None, name='QHlate', bg=lambda m: A51)
        e(f"""s_lshl_b32 s{sT4}, s{sMT}, 4
        s_add_u32 s{sT4}, s{sT4}, s{sHG}
        s_lshl_b32 s{sT4}, s{sT4}, 7
        s_add_u32 s{sT4}, s{sT4}, {F4}
        s_cmp_eq_u32 s{sW}, 0
        s_cselect_b32 s{sT5}, s{sT4}, {OOB}
        s_mov_b32 s{sC0}, {fl(math.log2(math.e))}""")
        def pub():
            e.wait(vm='hst'); e("s_barrier")
            e.vmop(self.flag_store(245, 246, f"s{sT5}"), 'f4st')
        if c.f4at < 0: pub(); A51 = lambda u: u < 51 or u >= 64
        self.b2_loads()
        self.valu(self.cvt_heads(16, 56, 0) + self.cvt_heads(16, 66, 1), bg=A51)
        self.stamp(2)
        if c.stamps: e(f"s_mov_b32 s{sC0}, {fl(math.log2(math.e))}")
        e.wait(lg='wphi')
        self.valu(self.phi_mfmas(56, 76), bg=A51)
        L1 = self.softmax_lines(76, 16, 116)
        if c.f4at >= 0:
            self.valu(L1[:c.f4at], bg=A64); pub()
        self.valu(L1[max(c.f4at, 0):], bg=ALL)
        L2 = self.softmax_lines(96, 16, 136)
        self.valu(L2[:c.pa], bg=ALL)
        self.poll4a_issue()
        self.valu(L2[c.pa:c.pb], bg=ALL)
        pool = [[('v', r), c.mo + 1 if r < 204 else c.p3 if r < 220 else 999] for r in list(range(204, 224, 4)) + list(range(168, 204, 4))]
        while len(self.Bpend) > c.qleft: self.bg_try(ALL, -9999)
        self.ph2_begin(pool)
        if c.stamps == 3: e(f"s_mov_b32 s{sC0}, {fl(math.log2(math.e))}")
        self.valu(L2[c.pb:], bg=ALL)
        self.stamp(3)
        pool += [[('v', r), c.mo + 1] for r in range(156, 168, 4)]
        FO = (0, 1024, 2048, 2816)
        finld = [f"buffer_load_dwordx4 {vr(204+4*i)}, v6, {srd(SWS)}, s{sKW} offen offset:{FO[i]} sc1" for i in range(4)]
        finld += [f"buffer_load_dwordx4 {vr(248+4*j)}, v13, {srd(SWS)}, s43 offen offset:{j*256} sc1" for j in range(2)]
        def h_p3():
            e(f"""s_mul_i32 s{sKW}, s{sHG}, {FSZ}
            s_mul_i32 s{sK1}, s{sW}, 3840
            s_add_u32 s{sKW}, s{sKW}, s{sK1}
            s_add_u32 s{sKW}, s{sKW}, {FIN}
            v_lshlrev_b32 v13, 4, v1""")
            for l in finld: e.vmop(l, 'fin')
        def h_c3():
            it = [('st', 4, 1)] + [('x', l) for l in f"s_lshr_b32 s{sK1}, s{sK1}, 1\ns_add_u32 s{sK1}, s{sK1}, {L_FIN}\nv_lshl_add_u32 v9, v0, 3, s{sK1}".split("\n")] + [('wvm', 'fin')]
            it += [('x', l) for l in self.tag_check(finld, list(range(204, 220)) + list(range(248, 256)), 8)] + [('st', 5, 1)]
            it += [('x', self.tag_strip(r)) for r in list(range(204, 220)) + [248, 252]] + [('x', "v_mov_b32 v250, v248"), ('x', "v_mov_b32 v251, v252")]
            for i in range(4):
                it += [('x', f"v_cvt_pk_bf16_f32 v{204+4*i}, v{204+4*i}, v{205+4*i}"), ('x', f"v_cvt_pk_bf16_f32 v{205+4*i}, v{206+4*i}, v{207+4*i}"),
                       ('lg', f"ds_write_b64 v9, v[{204+4*i}:{205+4*i}] offset:{FO[i]//2}", 'fw')]
            it += [('x', l) for l in f"v_lshlrev_b32 v13, 6, v2\nv_lshl_add_u32 v13, v4, 4, v13\nv_add_u32 v13, {L_FIN}, v13".split("\n")]
            self.aq[:0] = [[self.m, c.mo - 3, x] for x in it]
        def h_o():
            if c.p1q < 0: self.poll4b_issue()
            fr = [p for p in pool if p[0][0] == 'a'][:8]; assert len(fr) == 8; self.busy = fr
            e.wait(lg='fw'); e("s_barrier")
            self.stamp(6)
            mf = []; reads = []
            for fp in range(5):
                for dg in range(6):
                    n = fp * 6 + dg; f0 = fr[n % 8][0][1]; base = (n // 2) * 8
                    reads.append([f"ds_read_b128 {ar(f0)}, v13 offset:{(dg*5+fp)*256}", base + 2 * (n % 2), -1, base - 24])
                    for h in range(2):
                        for j in range(2):
                            d = 156 + 24 * j + 4 * dg; b = 116 + 20 * j + 2 * (2 * fp + h)
                            mf.append(f"v_mfma_f32_4x4x4_16b_bf16 {vr(d)}, a[{f0+2*h}:{f0+2*h+1}], v[{b}:{b+1}], {vr(d) if (fp or h) else 0}")
            mf2 = []
            for n in range(0, 30, 2):
                a_, b_ = mf[4*n:4*n+4], mf[4*n+4:4*n+8]
                mf2 += [a_[0], a_[1], b_[0], b_[1], a_[2], a_[3], b_[2], b_[3]]
            if c.skip & 4: mf2 = mf2[:8]; reads = reads[:2]
            self.stream(mf2, reads, [], None, LA=20, bg=lambda m: self.ph2_bg)
            for j in range(2): e(f"v_add_f32 v{8+2*j}, {fl(1e-6)}, v{156+24*j+20}")
            for j in range(2): e(f"v_rcp_f32 v{8+2*j}, v{8+2*j}")
            for j in range(2): e(f"v_mul_f32 v{8+2*j}, v{8+2*j}, v{250+j}")
            for j in range(2):
                D = 156 + 24 * j
                for i in range(10): e(f"v_pk_mul_f32 v[{D+2*i}:{D+2*i+1}], v[{D+2*i}:{D+2*i+1}], v[{8+2*j}:{9+2*j}] op_sel_hi:[1,0]")
                for i in range(10): e(f"v_cvt_pk_bf16_f32 v{D+i}, v{D+2*i}, v{D+2*i+1}")
                for i in range(10): e(f"v_min_u32 v{D+i}, -2, v{D+i}")
                e.vmop(f"buffer_store_dwordx4 {vr(D)}, v6, {srd(SWS)}, s38 offen offset:{j*1024} sc1", 'ost')
                e.vmop(f"buffer_store_dwordx4 {vr(D+4)}, v240, {srd(SWS)}, s38 offen offset:{j*1024} sc1", 'ost')
                e.vmop(f"buffer_store_dwordx2 {vr(D+8, 2)}, v6, {srd(SWS)}, s39 offen offset:{j*1024} sc1", 'ost')
            self.busy = []
            for p in pool: p[1] = 999
            pool.extend([[('v', r), 999] for r in range(116, 156, 4)])
            self.stamp(14)
        self.bias2()
        self.phase2({c.p3: h_p3, c.c3: h_c3, c.mo: h_o, c.p1q: self.poll4b_issue, c.c1q: self.poll4b_check})

    def prog_KV(self):
        e = self.e; c = self.c; self.init_B(); self.perm = c.perm or (0, 0, 0); self.dmap = {0: 2, 1: 4, 3: 6, 4: 8, 5: 10, 7: 12, 9: 14}
        ST = KV_ST
        e(f"""s_mul_i32 s{sM0+1}, s{sW}, 5120
        s_add_u32 s{sM0+1}, s{sM0+1}, 16384
        s_lshl_b32 s{sM0+2}, s{sW}, 11
        s_add_u32 s{sM0+2}, s{sM0+2}, 36864
        s_lshl_b32 s{sKW}, s{sHG}, 7
        s_add_u32 s{sKW}, s{sKW}, {19*128}""")
        def dma_x(st):
            g = []
            for j in range(4):
                it = [('x', f"s_add_u32 m0, s{sM0}, {(st%3)*ST}")] if j == 0 else []
                g.append(it + [('vm', f"buffer_load_dwordx4 v{208+j}, {srd(SX)}, s{sE+st} offen offset:{j*1024} {c.xsc} lds", ('S', st))])
            return g
        def dma_w(st, i):
            it = []
            if i == 0: it = [('x', f"s_mul_i32 s{sKA}, s{sE+st}, 1920"), ('x', f"s_add_u32 m0, s{sM0+1}, {(st%3)*ST}")]
            if i == 4: it = [('x', "s_add_u32 m0, m0, 4096")]
            return it + [('vm', f"buffer_load_dwordx4 v{212+i}, {srd(SQ)}, s{sKA} offen offset:{(i%4)*1024} {c.wsc} lds", ('S', st))]
        def dma_h(st, i):
            it = [('x', f"s_mul_i32 s{sKB}, s{sE+st}, 1728"), ('x', f"s_add_u32 m0, s{sM0+2}, {(st%3)*ST}")] if i == 0 else []
            return it + [('vm', f"buffer_load_dwordx4 v{217+i}, {srd(S1)}, s{sKB} offen offset:{i*1024} {c.wsc} lds", ('S', st))]
        def dma_stage(st): return dma_x(st) + [dma_w(st, i) for i in range(5)] + [dma_h(st, i) for i in range(2)]
        if c.fast:
            self.kernarg_wait()
            if c.touch == 3: self.touch()
            if c.touch == 6:
                self.touch6_srd()
                if c.tpa == 0: self.emit_items(self.touch6(0))
            for g in dma_x(0): self.emit_items(g)
            if c.touch == 5: self.touch()
            self.small_dma(SM, 6, f"s{sKW}", L_BIASKV, 8, 'bias')
        e(f"""s_and_b32 s{sT0}, s{sW}, 1
        s_mul_i32 s{sT0}, s{sT0}, 320
        s_lshr_b32 s{sT1}, s{sW}, 1
        s_add_u32 s{sT1}, s{sT1}, 1
        s_mul_i32 s{sT1}, s{sT1}, 1280
        s_mul_i32 s{sT3}, s{sHG}, 160
        s_add_u32 s{sT1}, s{sT1}, s{sT3}""")
        for i in range(5):
            e(f"v_add_u32 v9, {64*i}, v0\nv_add_u32 v9, s{sT0}, v9")
            self.attn_voff(212 + i, None, sT1)
            if i % 4: e(f"v_subrev_u32 v{212+i}, {(i%4)*1024}, v{212+i}")
            if c.fast: self.emit_items(dma_w(0, i))
        if not c.fast:
            self.kernarg_wait()
            self.small_dma(SM, 6, f"s{sKW}", L_BIASKV, 8, 'bias')
            for g in dma_x(0) + [dma_w(0, i) for i in range(5)]: self.emit_items(g)
        e(f"s_lshl_b32 s{sT3}, s{sW}, 4\nv_lshlrev_b32 v11, 1, v2\nv_xor_b32 v11, v11, v0\nv_and_b32 v11, 7, v11")
        for pp in range(2):
            e(f"v_add_u32 v10, {8*pp}, v5\nv_add_u32 v10, s{sT3}, v10")
            self.swap23(10, 12)
            e(f"""v_mul_u32_u24 v10, 3456, v10
            v_lshl_add_u32 v10, v11, 4, v10
            v_add_u32 v10, s{sKW}, v10
            v_subrev_u32 v{217+pp}, {pp*1024}, v10""")
            self.emit_items(dma_h(0, pp))
        mk_srd(e, SM, pGATE, 1280)
        if c.rot == 4: e(f"v_xor_b32 v9, s{sE}, v6\ns_and_b32 s{sT3}, s{sE}, 128\nv_xor_b32 v11, s{sT3}, v6\nv_add_u32 v11, 1024, v11")
        elif c.rot == 3: e(f"v_xor_b32 v9, s{sE}, v6\nv_add_u32 v11, 1024, v9")
        else: e(f"v_add_u32 v9, s{sE}, v6\nv_subrev_u32 v10, 1280, v9\nv_min_u32 v9, v9, v10\nv_add_u32 v11, 1024, v9\nv_subrev_u32 v10, 1280, v11\nv_min_u32 v11, v11, v10")
        self.small_dma(SM, 9, "0", L_GATE, 64, ('S', 0)); self.small_dma(SM, 11, "0", L_GATE + 1024, 16, ('S', 0))
        self.pstamp(1)
        if c.pke:
            self.pack_setup()
            for g in self.pack_loads(): self.emit_items(g)
        if c.touch == 1: self.touch()
        if c.touch == 6 and c.tpa == 1: self.emit_items(self.touch6(0))
        if c.touch == 4:
            self.touch3_setup()
            for p_ in range(c.tp0): self.emit_items(self.touch3(p_))
        self.pstamp(2)
        def setup():
            e = self.e
            self.x_addr(ST); self.rho0(8)
            e(f"v_mul_u32_u24 v9, 160, v8\nv_mad_u32_u24 v9, v4, 40, v9\nv_add_u32 v226, 16384, v9")
            for sl in (1, 2): e(f"v_add_u32 v{226+sl}, {sl*ST}, v226")
            e(f"v_lshlrev_b32 v9, 7, v8\nv_lshl_add_u32 v9, v4, 3, v9\nv_add_u32 v9, 36864, v9\nv_bfe_u32 v10, v8, 1, 2")
            for t in range(4): e(f"v_xor_b32 v11, {t}, v10\nv_lshl_add_u32 v{229+t}, v11, 5, v9\nv_add_u32 v{204+t}, {2*ST}, v{229+t}")
            e(f"v_lshlrev_b32 v233, 4, v2\nv_add_u32 v233, {L_GATE}, v233\nv_lshlrev_b32 v253, 3, v2\nv_add_u32 v253, {L_BIASKV}, v253")
            self.common_setup()
            if not c.pke: self.pack_setup()
            e(f"""v_lshrrev_b32 v8, 2, v1
            v_mul_u32_u24 v8, 2560, v8
            v_lshl_add_u32 v8, v4, 5, v8
            v_lshrrev_b32 v9, 1, v2
            v_lshl_add_u32 v8, v9, 9, v8
            v_and_b32 v9, 1, v2
            v_lshl_add_u32 v8, v9, 4, v8
            s_lshl_b32 s{sT0}, s{sW}, 7
            v_add_u32 v241, s{sT0}, v8
            v_add_u32 v243, 10240, v241
            v_mov_b32 v9, {OOB}
            v_cmp_ge_u32 vcc, 7, v1
            v_cndmask_b32 v243, v9, v243, vcc
            v_cmp_gt_u32 vcc, 2, v2
            v_cndmask_b32 v242, v9, v241, vcc
            v_cndmask_b32 v244, v9, v243, vcc
            v_mul_u32_u24 v12, {PSZ}, v2
            v_min_u32 v10, 14, v1
            v_lshl_add_u32 v12, v10, 4, v12
            v_lshlrev_b32 v13, 4, v1
            v_cmp_gt_u32 vcc, 16, v0
            v_cndmask_b32 v234, v9, v13, vcc
            v_cmp_gt_u32 vcc, 15, v0
            v_cndmask_b32 v13, v9, v13, vcc""")
        self.interleave(self.record(setup), dma_stage(1)[:c.n1], c.pe2)
        self.pstamp(3)
        if c.n1 >= 12:
            self.small_dma(SM, 6, "s36", None, 50, 'misc', "s_mov_b32 m0, s37")
            if c.touch == 2: self.touch()
            if not c.pke and not c.pkl:
                for g in self.pack_loads(): self.emit_items(g)
        self.tag_wait(); self.pstamp(4)
        e.wait(vm='bias')
        for s_ in range(4): e.lgop(f"ds_read_b64 v[{136+2*s_}:{137+2*s_}], v253 offset:{s_*32}", ('b', s_))
        for s_ in range(4):
            e.wait(lg=('b', s_))
            for h in range(2): e(f"v_lshlrev_b32 v{96+8*s_+2*h}, 16, v{136+2*s_+h}\nv_and_b32 v{97+8*s_+2*h}, 0xffff0000, v{136+2*s_+h}")
        self.stamp(0)
        NS = 15; nm = NS * 4; mf = []; reads = []; late = []; gs = 0
        S0 = 10 - c.dfr; AD = AW - 56 * c.dfr
        for st in range(10):
            sl = st % 3; mst = len(mf)
            for t in range(NS):
                dfr = st >= S0 and t >= 10
                wr = (('a', AD + (st - S0) * 56 + 16 + (t - 10) * 8) if dfr else ('v', 168 + 8 * (gs % 4))); m0 = len(mf)
                dl, ea = (mst + 6 + 6 * (t - 10), -1) if dfr else (m0, m0 - 13)
                RR = lambda o, n: R((wr[0], wr[1] + o), n)
                for ks in range(2):
                    if t == 14: reads.append([f"ds_read_b128 {RR(4*ks, 4)}, v233 offset:{(st*2+ks)*64}", dl, st, ea]); continue
                    for rd in range(2):
                        if t < 10: ad, off = 226 + sl, (t // 5) * 10240 + ks * 5120 + rd * 1280 + (t % 5) * 8
                        else: ad, off = (229 if sl < 2 else 204) + t - 10, (sl % 2) * ST + ks * 4096 + rd * 1024
                        reads.append([f"ds_read_b64_tr_b16 {RR(4*ks+2*rd, 2)}, v{ad} offset:{off}", dl, st, ea])
                for j in ((1, 0) if st == 0 else (0, 1)):
                    for ks in range(2):
                        xr = ('a', AD + (st - S0) * 56 + (j * 2 + ks) * 4) if st >= S0 else ('v', 136 + (st % 2) * 16 + (j * 2 + ks) * 4)
                        d = 16 + (t * 2 + j) * 4
                        if t == 0: reads.append([f"ds_read_b128 {R(xr)}, v{220+2*sl+ks} offset:{j*2048}", len(mf), st, -1])
                        cc = vr(d)
                        if st == 0 and ks == 0: cc = vr(16 + t * 8) if 10 <= t < 14 else "0"
                        (late if dfr else mf).append(f"v_mfma_f32_16x16x32_bf16 {vr(d)}, {RR(4*ks, 4)}, {R(xr)}, {cc}")
                if not dfr: gs += 1
        self.ulim = AD // 4
        self.kloop(mf, reads, nm, dma_stage, [], 'KV')
        e.wait(lg_all=True)
        A64 = lambda u: u < 64; ALL = lambda u: True
        A51 = lambda u: u < 51; Sa = c.Sa
        ALL0 = ALL; ALL = lambda u: u < self.ulim or u >= 51
        KQ = 136; PR = 168; VT = 156
        nl2e = fl(-math.log2(math.e))
        side = [l.strip() for l in f"""v_mul_f32 v128, {nl2e}, v128
        v_mul_f32 v132, {nl2e}, v132
        v_exp_f32 v128, v128
        v_exp_f32 v132, v132
        s_lshl_b32 s{sT2}, s{sMT}, 2
        v_add_f32 v128, 1.0, v128
        v_add_f32 v132, 1.0, v132
        v_rcp_f32 v128, v128
        v_rcp_f32 v132, v132
        s_add_u32 s{sT2}, s{sT2}, s{sW}
        s_lshl_b32 s{sT3}, s{sT2}, 9
        s_lshl_b32 s{sT4}, s{sHG}, 15
        s_add_u32 s{sT3}, s{sT3}, s{sT4}
        s_add_u32 s{sT3}, s{sT3}, {GB}
        v_mul_u32_u24 v220, {RSV}, v1
        v_mad_u32_u24 v220, v2, 48, v220
        s_mul_i32 s{sT0}, s{sW}, {32*RSV}
        s_add_u32 s{sT0}, s{sT0}, {L_V}
        v_add_u32 v220, s{sT0}, v220
        v_mul_u32_u24 v221, {RSP}, v1
        s_mov_b32 s{sT0}, 80
        v_mad_u32_u24 v221, v2, s{sT0}, v221
        s_mul_i32 s{sT0}, s{sW}, {32*RSP}
        v_add_u32 v221, s{sT0}, v221
        v_lshl_add_u32 v8, v2, 2, v3
        v_mul_u32_u24 v222, {RSP}, v8
        v_lshl_add_u32 v222, v4, 3, v222
        s_mul_i32 s{sT0}, s{sW}, 80
        v_add_u32 v222, s{sT0}, v222
        v_mul_u32_u24 v223, {RSV}, v8
        v_lshl_add_u32 v223, v4, 3, v223
        s_mul_i32 s{sT0}, s{sW}, 48
        s_add_u32 s{sT0}, s{sT0}, {L_V}
        v_add_u32 v223, s{sT0}, v223
        s_lshl_b32 s{sT0}, s{sHG}, 4
        s_add_u32 s{sT0}, s{sT0}, s{sMT}
        s_mul_i32 s{sT1}, s{sT0}, {PSZ}
        s_add_u32 s{sT1}, s{sT1}, {PP}
        s_mov_b32 s{sC0}, {fl(math.log2(math.e))}""".split("\n")]
        self.b2_loads(); self.tag_update()
        self.valu(self.cvt_heads(16, KQ, 0) + self.cvt_heads(16, KQ + 10, 1))
        e.wait(lg='wphi')
        gate = side[:14]; side = self.cvt_heads(56, VT, 0) + side[14:38]
        self.valu(self.phi_mfmas(KQ, PR), [[('x', l)] for l in side], 1)
        e(f"v_mov_b32 v{VT+10}, 0x3f80\nv_mov_b32 v{VT+11}, 0\ns_mov_b32 s{sC0}, {fl(math.log2(math.e))}\ns_barrier")
        for i in range(3): e.lgop(f"ds_write_b128 v220, {vr(VT+4*i)} offset:{i*16}", 'vw')
        L0 = self.softmax_lines(PR, 16, 136)
        self.valu(L0[:16], bg=ALL, S=Sa)
        self.valu(self.cvt_heads(56, 208, 1) + ["v_mov_b32 v218, 0x3f80", "v_mov_b32 v219, 0"], bg=ALL, S=Sa)
        for i in range(3): e.lgop(f"ds_write_b128 v220, {vr(208+4*i)} offset:{16*RSV + i*16}", 'vw')
        self.valu(L0[16:], bg=ALL, S=Sa)
        PH = (136, 56)
        pw = lambda j: [[('lg', f"ds_write_b128 v221, {vr(PH[j]+4*i)} offset:{j*16*RSP + i*16}", 'pw')] for i in range(5)]
        L1 = self.softmax_lines(PR + 20, 16, 56)
        self.valu(L1[:40], pw(0), 8, ALL, Sa)
        self.valu(L1[40:-20], bg=ALL, S=Sa)
        self.valu(L1[-20:], pw(1), 4)
        e.wait(lg_all=True); e("s_barrier")
        self.stamp(2)
        mf = []; reads = []; D0 = 168
        for s_ in range(4):
            b0 = 16 + s_ * 20; m0 = len(mf)
            for dt in range(2):
                for rd in range(2): reads.append([f"ds_read_b64_tr_b16 v[{b0+12+4*dt+2*rd}:{b0+13+4*dt+2*rd}], v223 offset:{(32*s_+16*rd)*RSV + dt*32}", m0 + dt, -1, -1])
            for ft in range(3):
                for rd in range(2): reads.append([f"ds_read_b64_tr_b16 v[{b0+4*ft+2*rd}:{b0+4*ft+2*rd+1}], v222 offset:{(32*s_+16*rd)*RSP + ft*32}", m0 + 2 * ft, -1, -1])
                for dt in range(2):
                    d = D0 + (ft * 2 + dt) * 4
                    mf.append(f"v_mfma_f32_16x16x32_bf16 {vr(d)}, {vr(b0+4*ft)}, {vr(b0+12+4*dt)}, {vr(d) if s_ else 0}")
        reads.sort(key=lambda r: r[1]); rp = 0
        for m in range(24):
            while rp < 40 and (len(e.lg) < 14 and (m == 0 or reads[rp][1] <= m + 8) or reads[rp][1] <= m): e.lgop(reads[rp][0], ('kv', reads[rp][1])); rp += 1
            e.wait(lg=[('kv', k) for k in range(m + 1)])
            e(mf[m])
            if c.kvb: self.bg_try(ALL, c.kvb)
        e("s_nop 4")
        for ft in range(3):
            for dt in range(2):
                for i in range(4): e(self.tag_put(D0 + (ft * 2 + dt) * 4 + i))
                e.vmop(f"buffer_store_dwordx4 {vr(D0+(ft*2+dt)*4)}, v{241+2*dt+(ft==2)}, {srd(SWS)}, s{sT1} offen offset:{ft*1024} sc1", 'pst')
        self.stamp(3)
        sc = [l.strip() for l in f"""s_lshl_b32 s{sT2}, s{sMT}, 2
        s_add_u32 s{sT2}, s{sT2}, s{sW}
        s_lshl_b32 s{sT4}, s{sMT}, 1
        s_lshr_b32 s{sT5}, s{sW}, 1
        s_add_u32 s{sT4}, s{sT4}, s{sT5}
        s_and_b32 s{sT5}, s{sW}, 1
        s_mul_i32 s{sT0}, s{sT4}, 74
        s_lshl_b32 s{sKW}, s{sHG}, 1
        s_add_u32 s{sT0}, s{sT0}, s{sKW}
        s_add_u32 s{sT0}, s{sT0}, 38
        s_lshl_b32 s{sT0}, s{sT0}, 12
        s_lshl_b32 s{sT5}, s{sT5}, 11
        s_add_u32 s{sT0}, s{sT0}, s{sT5}
        s_add_u32 s{sT0}, s{sT0}, {A2}
        s_lshl_b32 s{sKW}, s{sMT}, 4
        s_add_u32 s{sKW}, s{sKW}, s{sHG}
        s_lshl_b32 s{sKW}, s{sKW}, 7
        s_add_u32 s{sKW}, s{sKW}, {F4+1024}
        s_mul_i32 s32, s{sT2}, 240
        s_mul_i32 s{sT4}, s{sHG}, {FSZ}
        s_add_u32 s{sT1}, s32, s{sT4}
        s_add_u32 s{sT1}, s{sT1}, {FIN}
        s_lshl_b32 s{sT4}, s{sT4}, 4
        s_add_u32 s32, s32, s{sT4}
        s_add_u32 s32, s32, {PP}
        s_add_u32 s33, s32, {4*PSZ}
        s_add_u32 s34, s33, {4*PSZ}
        s_add_u32 s35, s34, {4*PSZ}""".split("\n")] + [f"s_cmp_eq_u32 s{sW}, 0\ns_cselect_b32 s{sKW}, s{sKW}, {OOB}"]
        sd = [[('x', l)] for l in sc]
        self.valu(late, sd, 1, ALL if c.kvb else None, c.kvb)
        for g in sd: self.emit_items(g)
        ALL = ALL0
        for l in gate: e(l)
        for j in range(2):
            for i in (3, 2, 1, 0): e(self.tag_put(128 + 4 * j + i, 128 + 4 * j))
            e.vmop(f"buffer_store_dwordx4 {vr(128+4*j)}, v234, {srd(SWS)}, s{sT3} offen offset:{j*256} sc1", 'hst')
        self.gelu_consts()
        L = []; hs = []
        for p in range(2):
            for j in range(2):
                O = 152 + 4 * ((2 * p + j) % 4)
                L += self.gelu_lines(96 + (4 * p + j) * 4, 96 + (4 * p + 2 + j) * 4, 136 + 8 * j, O)
                hs.append(('vm', f"buffer_store_dwordx4 {vr(O)}, v{6 if p == 0 else 240}, {srd(SWS)}, s{sT0} offen offset:{j*1024} sc1", 'hst'))
        RD = 16
        pld = [f"buffer_load_dwordx4 {vr(RD+4*i)}, v12, {srd(SWS)}, s{32+i} offen sc1" for i in range(4)]
        self.valu(L[:c.kpl], bg=ALL if c.kgb else None, S=Sa)
        for l in pld: e.vmop(l, 'pld')
        if c.kp4 == 0: self.poll4a_issue()
        self.valu(L[c.kpl:], bg=ALL if c.kgb else None, S=Sa)
        if c.khs == 0: self.emit_items(hs)
        pool = [[('v', r), 999] for r in list(range(168, 224, 4)) + list(range(116, 152, 4))]
        for _ in range(c.kb2): self.bg_try(ALL, -9999)
        self.stamp(4)
        def h_r2():
            red = [self.tag_strip(RD + i) for i in range(16)]
            red += [f"v_add_f32 v{RD+i}, v{RD+i}, v{RD+4+i}" for i in range(4)] + [f"v_add_f32 v{RD+8+i}, v{RD+8+i}, v{RD+12+i}" for i in range(4)] + [f"v_add_f32 v{RD+i}, v{RD+i}, v{RD+8+i}" for i in range(4)]
            for sw in ('32', '16'):
                red += [f"v_mov_b32 v{RD+4+i}, v{RD+i}" for i in range(4)] + [f"v_permlane{sw}_swap_b32 v{RD+i}, v{RD+4+i}" for i in range(4)] + [f"v_add_f32 v{RD+i}, v{RD+i}, v{RD+4+i}" for i in range(4)]
            red += [self.tag_put(RD + i) for i in range(4)]
            it = [('st', 14, 1), ('wvm', 'pld')] + [('x', l) for l in self.tag_check(pld, range(RD, RD + 16), 9)] + [('st', 5, 1)] + [('x', l) for l in red]
            it += [('vm', f"buffer_store_dwordx4 {vr(RD)}, v13, {srd(SWS)}, s{sT1} offen sc1", 'fst')]
            self.emit_items(it)
        def h_f4():
            e.wait(vm='hst'); e("s_barrier"); e.vmop(self.flag_store(245, 246, f"s{sKW}"), 'f4st')
        h_r2()
        if c.khs == 1:
            self.emit_items(hs)
            for _ in range(c.kb4): self.bg_try(ALL, -9999)
        pool += [[('v', r), 999] for r in range(152, 168, 4)]
        if c.f4k < 0: h_f4()
        if c.kp4 == 1:
            self.poll4a_issue()
            for _ in range(c.kb3): self.bg_try(ALL, -9999)
        self.ph2_begin(pool)
        while len(self.Bpend) > c.kleft: self.bg_try(ALL, -9999)
        self.stamp(6)
        self.bias2()
        self.phase2({c.f4k: h_f4, c.p1: self.poll4b_issue, c.c1: self.poll4b_check})

    def kloop(self, mf, reads, nm0, dma_stage, poison, name):
        e = self.e; c = self.c; back = []
        def mksync(st):
            def f(m):
                nm = nm0 - (20 if st >= 10 - (c.dfr if name == 'KV' else c.dfq) else 0)
                tg = [it[2] for g in back for it in (g[1] if g[0] == 'atomic' else g) if it[0] == 'vm']
                assert not (st == c.pks and 'packld' in tg) and not (st == c.pks + 3 and 'pkst' in tg) and not (st == 3 and 'misc' in tg) and ('S', st) not in tg
                e.wait(vm=[('S', st)] + (['pkst'] if st == c.pks + 3 else []) + (['misc'] if st == 3 else []) + (['packld'] if st == c.pks else []), lg_all=True); e("s_barrier")
                self.stamp(st + 1, 2)
                if st == 0: self.ts(0)
                if st == 2: self.ts(1)
                if st == 5 and c.ts: e('s_mov_b64 s[92:93], s[54:55]')
                if st < 3: self.stamp(7 + st, 3)
                if st == 2: self.pstamp_flush()
                out = []
                if st == 0 and c.n1 < 12:
                    back.extend(dma_stage(1)[c.n1:])
                    back.append(('atomic', self.record(lambda: self.small_dma(SM, 6, "s36", None, 50, 'misc', "s_mov_b32 m0, s37"))))
                if st + 2 < 10: back.extend(dma_stage(st + 2))
                if st == c.tpb and c.touch == 6: back.append(self.touch6(1))
                if st == c.pkl and (c.n1 < 12 or c.pkl) and not c.pke: back.extend(self.pack_loads())
                if st == c.pks: back.extend(self.pack_stores())
                if st in c.pos: n_ = -(-6 // len(c.pos)); back.extend(poison[:n_]); del poison[:n_]
                if c.bt == 3 and c.f1s < st < 8: back.extend(self.btouch3(st - c.f1s - 1, 7 - c.f1s))
                if c.f1s < st < 8 or (st == c.f1s and st < 8 and c.f1c + 8 < nm - 16):
                    for u in self.Bpend[:c.bk]: self.Bpend.remove(u); back.append(self.B_take([u])[0])
                need = max([k + 1 for k, g in enumerate(back) if g[0] != 'atomic' and g[-1][2] == ('S', st + 1)], default=0)
                n = min(len(back), max(c.quota, need)) if st < 7 else len(back)
                take = back[:n]; del back[:n]
                if take:
                    pc = self.paced([g[1] if g[0] == 'atomic' else g for g in take], m, nm - c.dtail)
                    for f, g in zip(pc, take):
                        if g[0] == 'atomic': f['atomic'] = 1
                    out += pc
                if c.touch == 4: out += [dict(at=m + nm - c.dtail + 1, chain=1, ins=self.touch3(p_)) for p_ in range(c.tp0, 3) if c.tst[p_] == st]
                if st in c.cpf: out.append(dict(at=m + nm - c.dtail + 2, ins=self.code_touch('L_QH' if name == 'KV' else 'L_end')))
                if st == c.pks: out += self.pack_fill(m, nm)
                if st == c.pks + 3: out.append(dict(at=m + 1, ins=[('vm', self.flag_store(245, 246, f"s{sF1}"), 'f1st')]))
                if st == 3: out += [dict(at=m + 3 + 5 * k, ins=g) for k, g in enumerate(self.wphi_reads(254))]
                if st == c.f1s - 1: g = self.f1_issue()[0]; out += [dict(at=m + nm - 30, ins=g[:-1]), dict(at=m + nm - c.dtail, chain=1, ins=g[-1:])]
                if st == c.f1s:
                    chk = [dict(at=m + c.f1c + 2 * k, ins=[it]) for k, it in enumerate(self.f1_check())]
                    out += chk
                    if c.bt == 3: out.append(dict(at=m + c.f1c + 8, ins=self.btouch3_pre()))
                    elif c.bt: out += [dict(at=m + c.f1c + 26 + c.btsp * k, ins=g) for k, g in enumerate(self.btouch())]
                if st == 9 and name == 'KV': out.append(dict(at=m + 4, ins=self.record(self.tag_issue)))
                if st == 8:
                    if poison: out += self.paced(poison, m, 30)
                    self.bg0 = max(m + c.bgs, (m + c.f1c + 8) if c.f1s == 8 else 0)
                return out
            return f
        self.bg0 = 9999; self.wphi_addr(254)
        self.stream(mf, reads, [], {st: mksync(st) for st in range(10)}, name=name, bg=lambda m: (lambda u: m >= self.bg0 and u < self.ulim))
        self.stamp(1); self.stamp(11, 2)
        self.typ = name; self.ts(2)
        if c.dly == (1 if name == 'KV' else 2): e(f's_sleep {c.dlyn}')
        self.ph2_pre()

    def ph2_pre(self):
        e = self.e
        mk_srd(e, SM, pB2, 1280); mk_srd(e, SPK, pOUT, 2048 * 1280)
        e(f"""s_mul_i32 s{sM0}, s{sNB}, 160
        s_and_b32 s{sM0+1}, s{sNB}, 1
        s_lshl_b32 s{sM0+2}, s{sM0+1}, 5
        s_add_u32 s{sM0+2}, s{sM0+2}, s{sM0}
        s_xor_b32 s{sM0+1}, s{sM0+1}, 1
        s_lshl_b32 s{sM0+1}, s{sM0+1}, 7
        s_add_u32 s{sM0+1}, s{sM0+1}, s{sM0}
        s_min_u32 s{sM0+3}, s{sW}, 1
        s_mul_i32 s{sM0+3}, s{sM0+3}, 1280
        s_sub_u32 s{SM+2}, 1280, s{sM0+3}
        s_lshr_b32 s{sM0+5}, s{sRB}, 1
        s_lshl_b32 s{sM0+3}, s{sM0+5}, 11
        s_add_u32 s{sM0+3}, s{sM0+3}, {F4}
        s_add_u32 s{sM0+4}, s{sM0+3}, 1024
        v_and_b32 v235, 7, v0
        v_lshlrev_b32 v235, 7, v235""")
    def b2_loads(self):
        e = self.e
        e("v_lshlrev_b32 v7, 4, v2\nv_lshlrev_b32 v8, 3, v2")
        e.vmop(f"buffer_load_dwordx4 v[224:227], v7, {srd(SM)}, s{sM0+2} offen", 'b2')
        e.vmop(f"buffer_load_dwordx4 v[228:231], v7, {srd(SM)}, s{sM0+2} offen offset:64", 'b2')
        e.vmop(f"buffer_load_dwordx2 v[232:233], v8, {srd(SM)}, s{sM0+1} offen", 'b2')
    def poll4a_issue(self): self.e.vmop(self.poll_issue(235, 252, 2, None, f"s{sM0+3}"), 'p4a')

    def poll4b_issue(self): self.e.vmop(self.poll_issue(235, 252, 2, None, f"s{sM0+4}"), 'p4b')
    def poll4b_check(self):
        e = self.e
        self.stamp(10)
        e.wait(vm='p4b')
        for l in self.poll_check([(235, 252, 2, f"s{sM0+4}")]): e(l)
        self.stamp(11)
        self.gate[1] = True; self.g_loads()
        for _ in range(self.c.burst): self.try_issue(self.m, True)
    def g_loads(self):
        e = self.e
        e(f"s_lshl_b32 s{sT0}, s{sRB}, 10\ns_add_u32 s{sT0}, s{sT0}, {GB}\nv_lshlrev_b32 v7, 4, v1")
        for jj in range(4):
            e(f"v_subrev_u32 v8, v6, v{236+jj}\nv_lshrrev_b32 v8, 2, v8\nv_add_u32 v8, v8, v7")
            e.vmop(f"buffer_load_dword v{241+jj}, v8, {srd(SWS)}, s{sT0} offen sc1", 'g')
    def bias2(self):
        e = self.e; BI = 96
        e.wait(vm='b2')
        for t in range(5):
            for h in range(2):
                s_ = 224 + 2 * t + h
                e(f"v_lshlrev_b32 v{BI+4*t+2*h}, 16, v{s_}\nv_and_b32 v{BI+4*t+2*h+1}, 0xffff0000, v{s_}")

    def ph2_begin(self, pool):
        e = self.e; c = self.c
        e.wait(vm='p4a')
        for l in self.poll_check([(235, 252, 2, f"s{sM0+3}")]): e(l)
        self.pool = pool; self.busy = []; self.Aloc = {}; self.Bl = dict(self.Bloc); self.Acur = {}
        groups = [(0, 1), (2, 3), (4, 5), (6, 7), (8, 9), (10, 11), (12, 13), (14, 15), (16, 17, 18)]
        self.mf = [(i, t, j) for g in groups for t in range(5) for j in range(4) for i in g] if not c.jm else \
                  [(i, t, j) for g in groups for j in ((1, 2, 3, 0) if g[0] >= 12 else range(4)) for t in range(5) for i in g]
        self.vchk = {280: [(i, j) for i in (14, 15) for j in range(4)], 320: [(i, j) for i in (16, 17, 18) for j in range(4)]} if not c.jm else \
                    {**{280 + 10 * q: [(14, j), (15, j)] for q, j in enumerate((1, 2, 3, 0))}, **{320 + 15 * q: [(16, j), (17, j), (18, j)] for q, j in enumerate((1, 2, 3, 0))}}
        vdl = {k: mv - c.vlead - 1 for mv, ks in self.vchk.items() for k in ks}
        fA, lA, fB, lB = {}, {}, {}, {}
        for m, (i, t, j) in enumerate(self.mf):
            fA.setdefault((i, j), m); lA[(i, j)] = m; fB.setdefault((i, t), m); lB[(i, t)] = m
        self.lA, self.lB = lA, lB
        w = [('A', k, vdl.get(k, fA[k]), lA[k]) for k in fA]
        w += [('S', k, fB[k], lB[k]) for k in fB if self.Bl[k] and self.Bl[k][0] == 'l']
        w += [('B', k, fB[k], lB[k]) for k in fB if self.Bl[k] is None]
        self.fB = fB
        self.work = sorted(w, key=lambda x: (x[2] // 40 * 40 + x[1][0] % 2 * 4 + x[1][1]) if (x[0] == 'A' and c.aord and not c.jm and x[1][0] < 14) else x[2]); self.gate = {0: True, 1: False, 2: False, 3: False}; self.Atxt = {}; self.lastiss = -99; self.m = 0
        for _ in range(c.a0): self.try_issue(0, True)

    def try_issue(self, m, force=False, nos=False):
        e = self.e; c = self.c; pool = self.pool
        cls = lambda i: 0 if i < 10 else (1 if i < 14 else 2 if i < 16 else 3)
        for w in self.work:
            kind, k, dl, last = w
            if kind == 'A' and not self.gate[cls(k[0])]: continue
            if kind == 'S' and (nos or dl - m > c.slead or self.Border.index(k) in self.Bpend): continue
            if kind != 'S' and not force and dl - m >= 12 and e.t - e.tvm < (c.S2 if dl - m >= c.urg else c.S3): continue
            if kind == 'P':
                self.Bpend.remove(k); self.emit_items(self.B_take([k])[0]); self.work.remove(w); return True
            ok = [p for p in pool if p[1] > last and p not in self.busy and (p[0][0] == 'v' or kind != 'A' or k[0] < 14)]
            if not (kind == 'A' and k[0] >= 14): ok.sort(key=lambda p: p[0][0] == 'v' and m > 150)
            if len(ok) < (1 if dl - m <= 40 else 4 if kind == 'A' else 7): continue
            p = ok[0]; pool.remove(p); loc = p[0]; self.until[loc] = p[1]
            if kind == 'A':
                i, j = k; sr = sAT if i % 2 == 0 else sAT2
                if self.Acur.get(sr) != i:
                    e(self.soff(sr, i, 'A')); self.Acur[sr] = i
                e.vmop(f"buffer_load_dwordx4 {R(loc)}, v{236+j}, {srd(SWS)}, s{sB if c.xA == 1 and i < 14 else 41 if c.xA == 2 else sr} offen sc1", ('A', k)); self.Aloc[k] = loc
                self.Atxt[k] = self.soff(sT1, i, 'A').split("\n") + [ f"buffer_load_dwordx4 {R(loc)}, v{236+j}, {srd(SWS)}, s{sT1} offen sc1"]
            elif kind == 'B':
                self.emit_items(self.B_items(k, loc)); self.Bl[k] = loc
            else:
                e.wait(vm=('B', k))
                e.lgop(f"ds_read_b128 {R(loc)}, v234 offset:{self.Bl[k][1]*1024}", ('S', k)); self.Bl[k] = loc
            if kind != 'S': self.lastiss = m
            if c.verbose > 1: print(f'{kind}{k}@{m}->{dl}', end=' ')
            self.work.remove(w); return True
        return False

    def phase2(self, hooks):
        e = self.e; c = self.c
        ACC = 16; BI = 96; pool = self.pool; mf = self.mf; Bl = self.Bl; Aloc = self.Aloc
        mtrans = min(m for m, x in enumerate(mf) if x[0] >= 14)
        if c.verbose: print("B loads left for phase 2:", len(self.Bpend))
        hooks = {k: v for k, v in hooks.items() if k >= 0}
        for u in self.Bpend:
            k = self.Border[u]; self.work.append(('P', u, self.fB[k] - (20 if self.Bloc[k][0] == 'l' else 0), 0))
        self.work.sort(key=lambda x: (x[2] // 40 * 40 + x[1][0] % 2 * 4 + x[1][1]) if (x[0] == 'A' and c.aord and not c.jm and x[1][0] < 14) else x[2])
        e(f"s_add_u32 s{sT0}, s88, {L_BL}\nv_add_u32 v234, s{sT0}, v6")
        pool += [[('v', r), 999] for r in (224, 228)]
        if c.dly == (3 if self.typ == 'KV' else 4): e(f's_sleep {c.dlyn}')
        seen = set(); vchk = self.vchk
        aq = []
        lastH = {}; firstO = {}; lastO = {}
        for m, (i, t, j) in enumerate(mf):
            if i < 14: lastH[(j, t)] = m
            else: firstO.setdefault((j, t), m); lastO[(j, t)] = m
        g0 = min(lastH.values()) - 10
        aq.append([g0, g0 + 4, ('wvm', 'g')])
        for jj in range(4): aq += [[g0, g0 + 8, ('x', self.tag_strip(241 + jj))]]
        for jj in range(4): aq += [[g0, g0 + 12, ('x', f"v_sub_f32 v{241+jj}, 1.0, v{241+jj}")]]
        for k in sorted(lastH, key=lambda k: lastH[k]):
            jj, tt = k; d = ACC + (jj * 5 + tt) * 4
            for q in range(4): aq.append([lastH[k] + 3, firstO[k] - 2, ('x', f"v_mul_f32 v{d+q}, v{241+jj}, v{d+q}")])
        adr = []
        for jj in range(1, 4):
            adr += [f"s_add_u32 s{sT0}, s{sW}, {jj}", f"s_and_b32 s{sT0}, s{sT0}, 3", f"s_mul_i32 s{sT0}, s{sT0}, 15360",
                    f"s_add_u32 s{sT0}, s{sT0}, {L_RED + (jj-1)*5120}", f"v_add_u32 v{8+jj}, s{sT0}, v6"]
        adr += [l.strip() for l in f"""s_mul_i32 s{sT0}, s{sW}, 15360
        s_add_u32 s{sT0}, s{sT0}, {L_RED}
        v_add_u32 v8, s{sT0}, v6
        s_lshl_b32 s{sT0}, s{sRB}, 2
        s_add_u32 s{sT0}, s{sT0}, s{sW}
        s_mul_i32 s{sT0}, s{sT0}, {16*1280}
        s_add_u32 s{sT3}, s{sT0}, s{sM0+2}
        s_add_u32 s{sT2}, s{sT0}, s{sM0+1}
        v_mul_u32_u24 v12, 1280, v1
        v_lshl_add_u32 v13, v2, 3, v12
        v_lshl_add_u32 v12, v2, 4, v12""".split("\n")]
        for l in adr: aq.append([c.adr0, 325, ('x', l)])
        for k in sorted(lastO, key=lambda k: lastO[k]):
            jj, tt = k
            if jj: aq.append([lastO[k] + 3, 999, ('lg', f"ds_write_b128 v{8+jj}, {vr(ACC+(jj*5+tt)*4)} offset:{tt*1024}", 'rw')])
        if c.jm and c.early:
            aq += [[c.early, 999, ('wlg', 'rw')], [c.early, 999, ('x', 's_barrier')]]
            aq += [[c.early, 999, ('lg', f"ds_read_b128 {vr(36+(t*3+s_)*4)}, v8 offset:{s_*5120+t*1024}", ('rr', t))] for t in range(5) for s_ in range(3)]
        self.aq = aq
        for m, (i, t, j) in enumerate(mf):
            self.m = m
            if m == mtrans: self.stamp(7); self.ts(4)
            if m == 1: self.ts(3)
            assert (i, j) in Aloc and Bl[(i, t)] and Bl[(i, t)][0] != 'l', (m, i, t, j)
            assert not any(a[1] < m for a in aq), (m, aq[0])
            e.wait(vm=[('A', (i, j)), ('B', (i, t))], lg=('S', (i, t)))
            d = ACC + (j * 5 + t) * 4
            cc = vr(d) if (j, t) in seen else vr(BI + 4 * t); seen.add((j, t))
            e(f"v_mfma_f32_16x16x32_bf16 {vr(d)}, {R(Bl[(i, t)])}, {R(Aloc[(i, j)])}, {cc}")
            k0 = len(e.ins)
            for loc, last in ((Aloc[(i, j)], self.lA[(i, j)]), (Bl[(i, t)], self.lB[(i, t)])):
                if last == m: pool.append([loc, self.until.get(loc, 999) if self.until.get(loc, 999) > m else 999])
            if m == 40: pool.extend([[('v', BI + 4 * k), 999] for k in range(5)])
            if m == 200 and c.dly == (5 if self.typ == 'KV' else 6): e(f's_sleep {c.dlyn}')
            if m == c.o1: self.gate[2] = True
            if m == c.o2: self.gate[3] = True
            if m + 1 + c.vlead in vchk:
                mv = m + 1 + c.vlead; ks = vchk[mv]
                assert all(k in Aloc for k in ks), (m, ks)
                vq = [('wvm', [('A', k) for k in ks])] + [('x', l) for l in self.valid_check(sum([self.Atxt[k] for k in ks], []), [Aloc[k][1] + q for k in ks for q in range(4)], 7)]
                if mv == 280: vq = [('st', 12, 1)] + vq + [('st', 13, 1), ('open',)]
                aq[:0] = [[m, mv - 1, it] for it in vq]
            if m in hooks: hooks[m]()
            self.try_issue(m)
            while any(w[2] - m < 4 for w in self.work) and self.try_issue(m): pass
            while True:
                av = [a for a in aq if a[0] <= m]
                if not av: break
                hurry = any(sum(1 for b in aq if b[1] <= a[1]) > 2 * (a[1] - m) for a in aq if a[1] < 999)
                a = min(av, key=lambda a: a[1])
                if a[1] == 999 and a is not [b for b in aq if b[1] == 999][0]: break
                if len(e.ins) - k0 >= 2 and not hurry: break
                if a[2][0] == 'lg' and any(x.kind in ('dsw', 'dsr', 'vload', 'dma') for x in e.ins[k0:]): break
                aq.remove(a)
                if a[2][0] == 'open':
                    self.gate[3] = True
                    for _ in range(c.burst3): self.try_issue(m, True)
                elif a[2][0] == 'call': a[2][1]()
                else: self.emit_items([a[2]])
        assert not self.work, self.work
        self.stamp(8)
        for a in aq: self.emit_items([a[2]])
        R0 = 36 if c.jm and c.early else 116
        if R0 == 116:
            e.wait(lg_all=True); e("s_barrier")
            for t in range(5):
                for s_ in range(3): e.lgop(f"ds_read_b128 {vr(116+(t*3+s_)*4)}, v8 offset:{s_*5120+t*1024}", ('rr', t))
        for t in range(5):
            e.wait(lg=('rr', t)); d = ACC + t * 4; r = R0 + t * 12
            e(f"""v_pk_add_f32 v[{d}:{d+1}], v[{d}:{d+1}], v[{r}:{r+1}]
            v_pk_add_f32 v[{d+2}:{d+3}], v[{d+2}:{d+3}], v[{r+2}:{r+3}]
            v_pk_add_f32 v[{r+4}:{r+5}], v[{r+4}:{r+5}], v[{r+8}:{r+9}]
            v_pk_add_f32 v[{r+6}:{r+7}], v[{r+6}:{r+7}], v[{r+10}:{r+11}]
            v_pk_add_f32 v[{d}:{d+1}], v[{d}:{d+1}], v[{r+4}:{r+5}]
            v_pk_add_f32 v[{d+2}:{d+3}], v[{d+2}:{d+3}], v[{r+6}:{r+7}]
            v_cvt_pk_bf16_f32 v{96+2*t}, v{d}, v{d+1}
            v_cvt_pk_bf16_f32 v{97+2*t}, v{d+2}, v{d+3}""")
            if t == 1: e.vmop(f"buffer_store_dwordx4 v[96:99], v12, {srd(SPK)}, s{sT3} offen {c.osc}", 'o')
            if t == 3: e.vmop(f"buffer_store_dwordx4 v[100:103], v12, {srd(SPK)}, s{sT3} offen offset:64 {c.osc}", 'o')
            if t == 4: e.vmop(f"buffer_store_dwordx2 v[104:105], v13, {srd(SPK)}, s{sT2} offen {c.osc}", 'o')
        self.stamp(9); self.ts(5); self.ts_flush()
        e("s_endpgm")

    def build(self):
        e = self.e
        self.prologue()
        st = (list(e.vm), list(e.lg))
        self.until = {}
        self.prog_KV()
        e.vm, e.lg = list(st[0]), list(st[1])
        self.until = {}
        self.prog_QH()
        e("\n".join(self.tail))
        e("L_end:\ns_endpgm")
        body = e.finish()
        hdr = open('cdna_kernels/' + NAME + '.s.ref').read().split('; Override launch')[0]
        K = NAME + "_kernel"
        out = hdr + DOC
        out += "; @launch grid=(256,1,1) block=(256,1,1) lds=163840\n"
        out += f'.amdgcn_target "amdgcn-amd-amdhsa--gfx950"\n.text\n.globl {K}\n.p2align 8\n.type {K},@function\n{K}:\n' + body
        out += f""".fill 64, 4, 0xbf800000
.section .rodata,"a"
.p2align 6
.amdhsa_kernel {K}
  .amdhsa_next_free_vgpr 512
  .amdhsa_next_free_sgpr 102
  .amdhsa_accum_offset 256
  .amdhsa_group_segment_fixed_size 0
  .amdhsa_kernarg_size 104
  .amdhsa_user_sgpr_count 2
  .amdhsa_user_sgpr_kernarg_segment_ptr 1
  .amdhsa_system_sgpr_workgroup_id_x 1
.end_amdhsa_kernel
"""
        return out

DOC = """; Hand-designed kernel, emitted by my own scheduling generator (no compiler output).
; One persistent launch, 256 workgroups x 4 waves (one per CU, 512 registers per wave).
;   KV workgroups: 128 tokens x [k, v of 4 heads | 64 FFN columns | gate]; QH workgroups: 128 tokens x [q of 4 heads | 160 FFN columns].
;   a distributed sum of the 16 partials, o = g * num / (den + 1e-6).  w2 / wo are re-packed into MFMA fragment order on the side.
; Hand-offs between workgroups go through d_ws with write-through (sc1) stores and sc1 loads, valid for any XCD placement:
"""
for k_, v_ in dict(rot=3, par=0, jm=1, slead=24, early=372, pos=(4, 5, 6), btl=12, tab=(2, 4), tpa=0, tpb=0, ts=0, bk=0, dfr=1, dfq=0, kpl=120, khs=0, kb4=10, qb2=6, qb3=6, qfo=0, a0q=12, kp4=1, dly=0, dlyn=16, kvb=64, VC=64, cnt=0, cpf=(), aord=1, nochk=0, skip=0, fast=1, n1=0, quota=20, pkl=0, tp0=1, tst=(0, 0, 1), sp1=24, tlb=0, tlb2=0, pks=3, pke=0, f1s=8, bt=0, btsp=20, bgs=4, qleft=0, kpre=180, kord=0, kgb=1, tmask=7, wbl=0, exit_at=-1, only=0, dstamp=0, xsc='', wsc='', psc='nt', pss='sc1', xA=0, S=48, S2=24, urg=50, S3=0, kb3=14, xB=0, mix=1, perm=0, kf1=60, pe=20, pe2=20, dtail=4, qb0=14, qb1=22, se=10, a0=6, ap=4, osc='sc1 nt', touch=1, kvring=3, f1c=10,
                   f4at=20, pa=100, pb=144, p3=30, c3=58, r1=30, r2=70, rspan=24, kbeg=0, kb1=20, kpa=60, mo=79, p1q=140, c1q=165, Sa=48, kb2=6, kleft=99, Sg=100, o2=250, o1=225, vlead=6, adr0=205, burst3=0, sleep2=1, f4k=-1, p1=140, c1=165, burst=4).items():
    setattr(Cfg, k_, v_)

def generate(**kw):
    c = Cfg()
    for k, v in kw.items(): setattr(c, k, v)
    g = Gen(c); g.e.VC = c.VC; t = g.build()
    return t, g

if __name__ == "__main__":
    kw = {}
    for a_ in sys.argv[2:]:
        k, v = a_.split('='); kw[k] = tuple(map(int, v.split(','))) if ',' in v else int(v, 0) if v.lstrip('-')[0].isdigit() else v.replace('+', ' ')
    t, g = generate(**kw)
    open(sys.argv[1], 'w').write(t)
    print("instructions:", len(g.e.ins), "nops added:", g.e.nop_added)
```
